```python
import torch

def _softmax(x, axis=-1):
    return torch.softmax(x, dim=axis)
def _gelu(x):
    return torch.nn.functional.gelu(x, approximate="tanh")
def _silu(x):
    return torch.nn.functional.silu(x)
def _sigmoid(x):
    return torch.sigmoid(x)
def _layernorm(x, axis=-1, eps=1e-5):
    m = x.mean(dim=axis, keepdim=True)
    v = x.var(dim=axis, keepdim=True, unbiased=False)
    return (x - m) / torch.sqrt(v + eps)
def _scatter_add(tgt, idx, src, axis=0):
    return tgt.clone().index_add_(axis, idx, src)
def _segment_sum(src, seg, n):
    out = torch.zeros((n,) + src.shape[1:], dtype=src.dtype)
    return out.index_add_(0, seg, src)
def _pad(x, pw):
    flat = tuple(v for pair in reversed(pw) for v in pair)
    return torch.nn.functional.pad(x, flat)

kernel_name = 'gated_mix__grouped_kv_mqa__ssm_conv_s5__prompt'

def setup_inputs():

    _w = (lambda a: (lambda t: t.to(torch.bfloat16) if t.is_floating_point() else t)(torch.as_tensor(a)))
    def _A_setup():
        B, S, D, H = 1, 2048, 448, 16
        Dh = D // H
        return {
            "x": _w((lambda *s: torch.randn(*s, dtype=torch.bfloat16) * 0.05)(B, S, D)),
            "wq": _w((lambda *s: torch.randn(*s, dtype=torch.bfloat16) * 1.6)(D, H * Dh)),
            "wk": _w((lambda *s: torch.randn(*s, dtype=torch.bfloat16) * 1.6)(D, Dh)),
            "wv": _w((lambda *s: torch.randn(*s, dtype=torch.bfloat16) * 0.05)(D, Dh)),
            "wo": _w((lambda *s: torch.randn(*s, dtype=torch.bfloat16) * 0.05)(H * Dh, D)),
        }
    _A_in = _A_setup()

    def _B_setup():
        B, S, D = 1, 2048, 448
        P = D
        Lambda_re = -0.5 * (lambda _x: torch.exp(torch.as_tensor(_x)))((lambda *s: torch.randn(*s, dtype=torch.bfloat16) * 0.4)(P))
        Lambda_im = (lambda *s: torch.randn(*s, dtype=torch.bfloat16) * 0.8)(P) * 1.0
        B_re = (lambda *s: torch.randn(*s, dtype=torch.bfloat16) * 0.4)(P, D) * (D ** -0.5)
        B_im = (lambda *s: torch.randn(*s, dtype=torch.bfloat16) * 0.4)(P, D) * (D ** -0.5)
        C_re = (lambda *s: torch.randn(*s, dtype=torch.bfloat16) * 0.4)(D, P) * (P ** -0.5)
        C_im = (lambda *s: torch.randn(*s, dtype=torch.bfloat16) * 0.4)(D, P) * (P ** -0.5)
        log_dt = (lambda *s: torch.randn(*s, dtype=torch.bfloat16) * 0.4)(P) * 0.3 - 2.0
        Dskip = (lambda *s: torch.randn(*s, dtype=torch.bfloat16) * 0.2)(D)
        return {
            "x": _w((lambda *s: torch.randn(*s, dtype=torch.bfloat16) * 0.05)(B, S, D)),
            "Lambda_re": _w(Lambda_re),
            "Lambda_im": _w(Lambda_im),
            "B_re": _w(B_re),
            "B_im": _w(B_im),
            "C_re": _w(C_re),
            "C_im": _w(C_im),
            "log_dt": _w(log_dt),
            "Dskip": _w(Dskip),
        }
    _B_in = _B_setup()

    return {
        "A_x": _A_in["x"],
        "A_wq": _A_in["wq"],
        "A_wk": _A_in["wk"],
        "A_wv": _A_in["wv"],
        "A_wo": _A_in["wo"],
        "B_x": _B_in["x"],
        "B_Lambda_re": _B_in["Lambda_re"],
        "B_Lambda_im": _B_in["Lambda_im"],
        "B_B_re": _B_in["B_re"],
        "B_B_im": _B_in["B_im"],
        "B_C_re": _B_in["C_re"],
        "B_C_im": _B_in["C_im"],
        "B_log_dt": _B_in["log_dt"],
        "B_Dskip": _B_in["Dskip"],
        "gate_w": _w((lambda *s: torch.randn(*s, dtype=torch.bfloat16) * 0.05)(448) * 16.0),
    }

def reference(A_x, A_wq, A_wk, A_wv, A_wo, B_x, B_Lambda_re, B_Lambda_im, B_B_re, B_B_im, B_C_re, B_C_im, B_log_dt, B_Dskip, gate_w):
    def _A_ref(x, wq, wk, wv, wo):
        B, S, D = x.shape
        H = 16
        Dh = D // H
        q = (lambda x, *d: x.permute(*d))((x @ wq).reshape(B, S, H, Dh), 0, 2, 1, 3)
        k = x @ wk
        v = x @ wv
        scores = torch.einsum("bhqd,bkd->bhqk", q, k) * (Dh ** -0.5)
        p = _softmax(scores, axis=-1)
        o = torch.einsum("bhqk,bkd->bhqd", p, v)
        return (lambda x, *d: x.permute(*d))(o, 0, 2, 1, 3).reshape(B, S, H * Dh) @ wo

    def _B_ref(x, Lambda_re, Lambda_im, B_re, B_im, C_re, C_im, log_dt, Dskip):
        Bsz, L, H = x.shape
        Lam = Lambda_re + 1j * Lambda_im
        Bmat = B_re + 1j * B_im
        Cmat = C_re + 1j * C_im
        dt = torch.exp(log_dt)
        Lam_bar = torch.exp(dt * Lam)
        B_bar = ((Lam_bar - 1.0) / Lam)[:, None] * Bmat
        Bu = torch.einsum("bld,pd->blp", x + 0j, B_bar)
        h = torch.zeros_like(Bu[:, 0, :])
        hs = []
        for t in range(L):
            h = Lam_bar[None, :] * h + Bu[:, t, :]
            hs.append(h)
        hseq = torch.stack(hs, 1)
        y = 2.0 * torch.einsum("blp,dp->bld", hseq, Cmat).real + x * Dskip[None, None, :]
        return y

    x = A_x
    g = _sigmoid((x * gate_w).sum(-1, keepdims=True))
    a = _A_ref(x, A_wq, A_wk, A_wv, A_wo)
    b = _B_ref(x, B_Lambda_re, B_Lambda_im, B_B_re, B_B_im, B_C_re, B_C_im, B_log_dt, B_Dskip)
    return g * a + (1 - g) * b
```

```python
import re

class Asm:
    def __init__(self):
        self.lines = []
        self._uid = 0
    def __call__(self, s):
        for ln in s.strip("\n").split("\n"):
            ln = ln.strip()
            if not ln:
                continue
            if ln.endswith(":") or ln.startswith("."):
                self.lines.append(ln)
            else:
                self.lines.append("    " + ln)
    def c(self, s):
        self.lines.append("    ; " + s)
    def label(self, name):
        self.lines.append(name + ":")
    def uid(self, p="L"):
        self._uid += 1
        return f"{p}_{self._uid}"
    def text(self):
        return "\n".join(self.lines) + "\n"

def v(a, n=1):
    return f"v{a}" if n == 1 else f"v[{a}:{a+n-1}]"
def s(a, n=1):
    return f"s{a}" if n == 1 else f"s[{a}:{a+n-1}]"

_REG = re.compile(r"^(-|\|)?(abs\()?([vsa])(\d+)\)?\|?$")
_RNG = re.compile(r"^-?([vsa])\[(\d+):(\d+)\]$")
def regs_of(op):
    op = op.strip()
    m = _RNG.match(op)
    if m:
        return {(m.group(1), i) for i in range(int(m.group(2)), int(m.group(3)) + 1)}
    m = _REG.match(op)
    if m:
        return {(m.group(3), int(m.group(4)))}
    if op in ("vcc", "vcc_lo", "vcc_hi"):
        return {("vcc", 0)}
    if op in ("exec", "exec_lo", "exec_hi"):
        return {("exec", 0)}
    if op == "m0":
        return {("m0", 0)}
    return set()

TRANS = ("v_exp_f32", "v_log_f32", "v_rcp_f32", "v_rsq_f32", "v_sqrt_f32", "v_sin_f32", "v_cos_f32", "v_exp_f16", "v_rcp_iflag_f32")

class Ins:
    def __init__(self, idx, text):
        self.idx = idx
        self.text = text
        t = text.split(";")[0].strip()
        parts = t.split(None, 1)
        self.op = parts[0]
        rest = parts[1] if len(parts) > 1 else ""
        ops = [o.strip() for o in rest.split(",")] if rest else []
        mods = ""
        if ops:
            last = ops[-1].split(None, 1)
            ops[-1] = last[0]
            if len(last) > 1:
                mods = last[1]
        self.ops = ops
        self.mods = mods
        self.dst = set(); self.src = set()
        op = self.op
        self.is_mfma = op.startswith("v_mfma")
        self.is_valu = op.startswith("v_") and not self.is_mfma
        self.is_trans = any(op.startswith(x) for x in TRANS)
        self.is_vmem = op.startswith("buffer_") or op.startswith("global_")
        self.is_ds = op.startswith("ds_")
        self.is_salu = op.startswith("s_")
        self.states = 1
        if op == "s_nop":
            self.states = int(ops[0], 0) + 1
        R = [regs_of(o) for o in ops]
        if self.is_mfma:
            self.dst = R[0]; self.A = R[1]; self.B = R[2]; self.C = R[3] if len(R) > 3 else set()
            self.src = self.A | self.B | self.C
            self.passes = 8 if "32x32x16" in op or "32x32x8" in op else (4 if "16x16x32" in op or "16x16x16" in op else 16)
        elif self.is_valu:
            if op.startswith("v_cmp"):
                self.dst = R[0]; self.src = set().union(*R[1:])
                if op.startswith("v_cmpx"): self.dst |= {("exec", 0)}
            elif op.startswith("v_permlane32_swap") or op.startswith("v_permlane16_swap") or op.startswith("v_swap"):
                self.dst = R[0] | R[1]; self.src = R[0] | R[1]
            elif op.startswith(("v_add_co", "v_sub_co", "v_addc_co", "v_subb_co", "v_subrev_co")):
                self.dst = R[0] | R[1]; self.src = set().union(*R[2:])
            elif op.startswith(("v_fmac", "v_dot2c", "v_mac", "v_pk_fmac", "v_writelane")):
                self.dst = R[0]; self.src = set().union(*R)
            else:
                self.dst = R[0]; self.src = set().union(*R[1:]) if len(R) > 1 else set()
                if op.startswith("v_cndmask") and len(ops) == 3:
                    self.src |= {("vcc", 0)}
                if "UNUSED_PRESERVE" in mods:
                    self.src |= R[0]
        elif self.is_ds:
            if op.startswith(("ds_read", "ds_bpermute", "ds_permute", "ds_swizzle")) or "_rtn" in op:
                self.dst = R[0]; self.src = set().union(*R[1:])
            else:
                self.src = set().union(*R)
        elif self.is_vmem:
            if "_load" in op:
                if re.search(r"\blds\b", mods):
                    self.src = set().union(*R) | {("m0", 0)}
                else:
                    self.dst = R[0]; self.src = set().union(*R[1:])
                    if "d16" in op: self.src |= R[0]
            elif "atomic" in op:
                self.src = set().union(*R)
                if "sc0" in mods: self.dst = R[0]
            else:
                self.src = set().union(*R)
            self.store_wide = ("_store" in op) and (op.endswith("x4") or op.endswith("x3"))
            self.store_data = R[0] if "_store" in op and op.startswith("buffer") else (R[1] if "_store" in op else set())
        elif self.is_salu:
            if op.startswith(("s_cmp", "s_cbranch", "s_branch", "s_waitcnt", "s_barrier", "s_nop", "s_endpgm", "s_sleep", "s_setprio")):
                self.src = set().union(*R) if R else set()
            elif op.startswith(("s_and_saveexec", "s_or_saveexec")):
                self.dst = R[0] | {("exec", 0)}; self.src = set().union(*R[1:])
            else:
                self.dst = R[0] if R else set(); self.src = set().union(*R[1:]) if len(R) > 1 else set()

def check_hazards(text, verbose=True):
    ins = []; labels = {}
    for ln in text.split("\n"):
        t = ln.split(";")[0].strip()
        if not t or t.startswith("."):
            continue
        if t.endswith(":"):
            labels[t[:-1]] = len(ins); continue
        ins.append(Ins(len(ins), t))
    n = len(ins)
    def succ(i):
        I = ins[i]
        if I.op == "s_endpgm": return []
        if I.op == "s_branch": return [labels[I.ops[0]]]
        if I.op.startswith("s_cbranch"): return [labels[I.ops[0]], i + 1]
        return [i + 1] if i + 1 < n else []
    problems = []
    def isv(r): return r[0] in ("v", "a")
    def walk(i, need, pred, what):
        stack = [(j, 0) for j in succ(i)]
        seen = {}
        while stack:
            j, d = stack.pop()
            if d >= need or j >= n: continue
            if seen.get(j, 99) <= d: continue
            seen[j] = d
            J = ins[j]
            if pred(J):
                problems.append(f"{what}: need {need} have {d}: [{ins[i].text}] -> [{J.text}]")
            for k in succ(j):
                stack.append((k, d + J.states))
    for i, I in enumerate(ins):
        if I.is_valu:
            vd = {r for r in I.dst if isv(r)}
            sd = {r for r in I.dst if r[0] in ("s", "vcc")}
            if vd:
                walk(i, 2, lambda J: J.is_mfma and (J.src & vd), "VALU->MFMA src")
                walk(i, 1, lambda J: J.op.startswith(("v_readfirstlane", "v_readlane")) and (J.src & vd), "VALU->readlane")
                walk(i, 2, lambda J: J.op.startswith("v_permlane") and (J.src & vd), "VALU->permlane")
                walk(i, 2, lambda J: J.is_valu and ("row_" in J.mods or "quad_perm" in J.mods or "dpp" in J.op or "wave_" in J.mods) and (J.src & vd), "VALU->DPP")
                if I.is_trans:
                    walk(i, 1, lambda J: (J.is_valu and not J.is_trans or J.is_mfma) and (J.src & vd), "TRANS->use")
                if "sdwa" in I.op or "op_sel" in I.mods:
                    walk(i, 1, lambda J: J.is_valu and ((J.src | J.dst) & vd), "SDWA/opsel->use")
            if sd:
                walk(i, 5, lambda J: J.is_vmem and (J.src & sd), "VALU sgpr->VMEM")
                walk(i, 2, lambda J: J.is_valu and (J.src & sd), "VALU sgpr->VALU read")
                walk(i, 4, lambda J: J.op.startswith(("v_readlane", "v_writelane")) and (J.src & sd), "VALU sgpr->lane select")
            if ("exec", 0) in I.dst:
                walk(i, 4, lambda J: J.is_mfma, "VALU exec->MFMA")
        if I.is_salu and ("m0", 0) in I.dst:
            walk(i, 1, lambda J: J.is_vmem and ("m0", 0) in J.src, "M0->LDS DMA")
        if I.is_mfma:
            P = I.passes
            nD = {2: 5, 4: 8, 8: 12, 16: 20}[P]
            nC = {2: 4, 4: 6, 8: 10, 16: 18}[P]
            nW = {2: 1, 4: 3, 8: 7, 16: 15}[P]
            d = I.dst
            walk(i, nD, lambda J: (J.is_valu or J.is_vmem or J.is_ds) and ((J.src | J.dst) & d), "MFMA D->VALU/VMEM/DS")
            walk(i, nD, lambda J: J.is_mfma and ((J.A | J.B) & d), "MFMA D->MFMA A/B")
            walk(i, nC, lambda J: J.is_mfma and (J.C & d) and not (J.C == d and J.passes == P), "MFMA D->MFMA C partial")
            if I.C:
                walk(i, nW, lambda J: J.is_valu and (J.dst & I.C), "MFMA C WAR VALU write")
        if I.is_vmem and getattr(I, "store_wide", False):
            sdat = I.store_data
            walk(i, 2, lambda J: J.is_valu and (J.dst & sdat), "wide store data WAR")
            walk(i, 1, lambda J: (J.is_ds or J.is_vmem or J.is_mfma) and (J.dst & sdat), "wide store data WAR(any)")
    problems = list(dict.fromkeys(problems))
    if verbose:
        for p in problems: print("HAZARD:", p)
    return problems
```

```python
import sys
from asmlib import Asm, v, s, check_hazards

NAME = "gated_mix__grouped_kv_mqa__ssm_conv_s5__prompt"
KA = dict(x=0, wq=8, wk=16, wv=24, wo=32, bx=40, lre=48, lim=56, bre=64, bim=72, cre=80, cim=88,
          logdt=96, dskip=104, gw=112, out=120, dbg=128, ws=136)
WS_QF = 0x000000
WS_KV = 0x200000
WS_OF = 0x240000
WS_HF = 0x440000
WS_G  = 0x7C0000
WS_E  = 0x7C4000
WS_FL = 0x7E0000
WS_Y  = 0x800000
WS_SIZE = 0x1000000
XBYTES = 2048 * 448 * 2
WBYTES = 448 * 448 * 2
WKBYTES = 448 * 28 * 2
QSCALE = 0x3E8B9E09
import struct, math
def f2u(x): return struct.unpack("<I", struct.pack("<f", x))[0]
QSCALE = f2u(math.log2(math.e) / math.sqrt(28.0))
LOG2E = f2u(math.log2(math.e))

def srd(a, dst, src, nbytes):
    a(f"s_mov_b32 s{dst}, s{src}")
    a(f"s_mov_b32 s{dst+1}, s{src+1}")
    a(f"s_mov_b32 s{dst+2}, {hex(nbytes)}")
    a(f"s_mov_b32 s{dst+3}, 0x00020000")

PROF = False
import os
X = set(os.environ.get('XF', '').split(','))
WS_PROF = 0xA00000
def stamp(a, slot):
    if not PROF: return
    a("s_memtime s[90:91]")
    a("s_memrealtime s[92:93]")
    a("s_waitcnt lgkmcnt(0)")
    a(f"s_mov_b32 s{60+2*slot}, s90")
    a(f"s_mov_b32 s{61+2*slot}, s92")
def stamp_flush(a, nslots, kidx):
    if not PROF: return
    a("s_lshl_b32 s90, s2, 4")
    a("s_add_u32 s90, s90, s22")
    a("s_lshl_b32 s90, s90, 7")
    a(f"s_add_u32 s90, s90, {WS_PROF + kidx*0x80000}")
    a("v_mov_b32 v4, 0")
    a("s_mov_b64 exec, 1")
    for i in range(nslots):
        a(f"v_mov_b32 v6, s{60+2*i}")
        a(f"v_mov_b32 v7, s{61+2*i}")
        a(f"buffer_store_dwordx2 v[6:7], v4, s[24:27], s90 offen offset:{8*i}")
        a("s_nop 1")
    a("s_waitcnt vmcnt(0)")

def header(a, name):
    a(f".globl {name}")
    a(".p2align 8")
    a(f".type {name},@function")
    a.label(name)

def descriptor(name, vgpr, sgpr=96):
    return f""".section .rodata,"a"
.p2align 6
.amdhsa_kernel {name}
  .amdhsa_next_free_vgpr {vgpr}
  .amdhsa_next_free_sgpr {sgpr}
  .amdhsa_accum_offset {((vgpr + 3) // 4) * 4}
  .amdhsa_group_segment_fixed_size 0
  .amdhsa_kernarg_size 144
  .amdhsa_user_sgpr_count 2
  .amdhsa_user_sgpr_kernarg_segment_ptr 1
  .amdhsa_system_sgpr_workgroup_id_x 1
.end_amdhsa_kernel
.text
"""

def decode_wg(a, s_rb, s_j2, exit_label):
    a(f"s_cmp_ge_u32 s2, 256")
    a(f"s_cbranch_scc1 {exit_label}")
    a(f"s_and_b32 s{s_rb}, s2, 7")
    a(f"s_lshl_b32 s{s_rb}, s{s_rb}, 2")
    a(f"s_lshr_b32 s{s_j2}, s2, 3")
    a(f"s_and_b32 s3, s{s_j2}, 3")
    a(f"s_add_u32 s{s_rb}, s{s_rb}, s3")
    a(f"s_lshr_b32 s{s_j2}, s{s_j2}, 2")

L_X = 0
L_WQ = 57344
L_WKV = 114688
L_GW = 143360
LDS_K1 = 147456

def xtile_lane_off(a, vd, vlane, vt0, vt1):
    a(f"v_lshrrev_b32 v{vt0}, 4, v{vlane}")
    a(f"v_and_b32 v{vt1}, 1, v{vt0}")
    a(f"v_lshlrev_b32 v{vt1}, 4, v{vt1}")
    a(f"v_lshrrev_b32 v{vd}, 5, v{vlane}")
    a(f"v_lshl_add_u32 v{vt1}, v{vd}, 2, v{vt1}")
    a(f"v_bfe_u32 v{vd}, v{vlane}, 2, 2")
    a(f"v_add_u32 v{vt1}, v{vt1}, v{vd}")
    a(f"v_mul_u32_u24 v{vt1}, 896, v{vt1}")
    a(f"v_and_b32 v{vd}, 3, v{vlane}")
    a(f"v_xor_b32 v{vd}, v{vd}, v{vt0}")
    a(f"v_lshl_add_u32 v{vd}, v{vd}, 4, v{vt1}")

def xfrag_addr(a, vd, vlane, vt0):
    a(f"v_bfe_u32 v{vt0}, v{vlane}, 2, 2")
    a(f"v_lshrrev_b32 v{vd}, 5, v{vlane}")
    a(f"v_xor_b32 v{vt0}, v{vt0}, v{vd}")
    a(f"v_lshlrev_b32 v{vt0}, 4, v{vt0}")
    a(f"v_and_b32 v{vd}, 31, v{vlane}")
    a(f"v_lshl_add_u32 v{vd}, v{vd}, 6, v{vt0}")

def tr_rowcol(a, vrow, vcol, vlane, vt):
    a(f"v_lshrrev_b32 v{vrow}, 5, v{vlane}")
    a(f"v_lshlrev_b32 v{vrow}, 3, v{vrow}")
    a(f"v_bfe_u32 v{vt}, v{vlane}, 2, 2")
    a(f"v_add_u32 v{vrow}, v{vrow}, v{vt}")
    a(f"v_and_b32 v{vcol}, 16, v{vlane}")
    a(f"v_and_b32 v{vt}, 3, v{vlane}")
    a(f"v_lshl_add_u32 v{vcol}, v{vt}, 2, v{vcol}")

def proj_loop(a, swap, acc, xe, xo, we, wo_, vxe, vxo, vw1, vw2, s_wstep, s_cnt, lab):
    def rd_even():
        a(f"ds_read_b128 {v(xe,4)}, v{vxe}")
        a(f"ds_read_b64_tr_b16 {v(we,2)}, v{vw1}")
        a(f"ds_read_b64_tr_b16 {v(we+2,2)}, v{vw2}")
        a(f"v_add_u32 v{vxe}, 0x1000, v{vxe}")
        a(f"v_add_u32 v{vw1}, s{s_wstep}, v{vw1}")
        a(f"v_add_u32 v{vw2}, s{s_wstep}, v{vw2}")
    def rd_odd():
        a(f"ds_read_b128 {v(xo,4)}, v{vxo}")
        a(f"ds_read_b64_tr_b16 {v(wo_,2)}, v{vw1}")
        a(f"ds_read_b64_tr_b16 {v(wo_+2,2)}, v{vw2}")
        a(f"v_add_u32 v{vxo}, 0x1000, v{vxo}")
        a(f"v_add_u32 v{vw1}, s{s_wstep}, v{vw1}")
        a(f"v_add_u32 v{vw2}, s{s_wstep}, v{vw2}")
    def mf(x, w):
        A, B = (x, w) if swap else (w, x)
        a(f"v_mfma_f32_32x32x16_bf16 {v(acc,16)}, {v(A,4)}, {v(B,4)}, {v(acc,16)}")
    rd_even(); rd_odd()
    a(f"s_mov_b32 s{s_cnt}, 14")
    a.label(lab)
    a("s_waitcnt lgkmcnt(3)")
    mf(xe, we)
    rd_even()
    a("s_waitcnt lgkmcnt(3)")
    mf(xo, wo_)
    rd_odd()
    a(f"s_sub_u32 s{s_cnt}, s{s_cnt}, 1")
    a(f"s_cmp_lg_u32 s{s_cnt}, 0")
    a(f"s_cbranch_scc1 {lab}")
    a("s_waitcnt lgkmcnt(0)")

def gen_k1(a):
    name = "k1_kernel"
    header(a, name)
    END = "k1_end"
    decode_wg(a, 20, 21, END)
    stamp(a, 0)
    a("s_load_dwordx4 s[4:7], s[0:1], 0")
    a("s_load_dwordx4 s[8:11], s[0:1], 16")
    a("s_load_dwordx2 s[12:13], s[0:1], 112")
    a("s_load_dwordx2 s[14:15], s[0:1], 136")
    a("v_and_b32 v1, 63, v0")
    a("v_lshrrev_b32 v2, 6, v0")
    a("s_nop 0")
    a("v_readfirstlane_b32 s22, v2")
    a("s_waitcnt lgkmcnt(0)")
    srd(a, 24, 14, WS_SIZE)
    a("s_cmp_lt_u32 s22, 4")
    a("s_cbranch_scc1 k1_dma_x")
    a("s_cmp_lt_u32 s22, 8")
    a("s_cbranch_scc1 k1_dma_wq")
    a("s_cmp_lt_u32 s21, 4")
    a("s_cbranch_scc1 k1_dma_wkv")
    a("s_cmp_lt_u32 s21, 6")
    a("s_cbranch_scc0 k1_dma_done")
    a("s_cmp_eq_u32 s22, 8")
    a("s_cbranch_scc0 k1_dma_done")
    srd(a, 28, 12, 896)
    a("v_lshlrev_b32 v3, 1, v1")
    for i in range(7):
        a(f"buffer_load_ushort v{10+i}, v3, s[28:31], 0 offen offset:{i*128}")
    a("v_lshlrev_b32 v4, 3, v1")
    a(f"v_add_u32 v4, {L_GW}, v4")
    a("s_waitcnt vmcnt(0)")
    for i in range(7):
        a(f"v_lshl_or_b32 v{20+2*i}, v{10+i}, 16, v{10+i}")
        a(f"v_mov_b32 v{21+2*i}, v{20+2*i}")
        a(f"ds_write_b64 v4, {v(20+2*i,2)} offset:{i*512}")
    a("s_branch k1_dma_done")
    a.label("k1_dma_wkv")
    a("s_cmp_lt_u32 s21, 2")
    a("s_cselect_b32 s28, s8, s10")
    a("s_cselect_b32 s29, s9, s11")
    a(f"s_mov_b32 s30, {WKBYTES}")
    a("s_mov_b32 s31, 0x00020000")
    a("v_lshlrev_b32 v3, 4, v1")
    a("s_sub_u32 s3, s22, 8")
    a("s_mul_i32 s32, s3, 7168")
    a("s_mov_b32 s33, 1024")
    a(f"s_add_u32 s34, s32, {L_WKV}")
    a("s_mov_b32 s35, 1024")
    a("s_mov_b32 s36, 7")
    a("s_branch k1_dma_go")
    a.label("k1_dma_wq")
    srd(a, 28, 6, WBYTES)
    a("v_lshrrev_b32 v3, 3, v1")
    a("v_mul_u32_u24 v3, 896, v3")
    a("v_and_b32 v4, 7, v1")
    a("v_lshl_add_u32 v3, v4, 4, v3")
    a("s_sub_u32 s3, s22, 4")
    a(f"s_mul_i32 s32, s3, {112*896}")
    a("s_mul_i32 s37, s21, 112")
    a("s_add_u32 s32, s32, s37")
    a("s_mov_b32 s33, 7168")
    a("s_mul_i32 s34, s3, 14336")
    a(f"s_add_u32 s34, s34, {L_WQ}")
    a("s_mov_b32 s35, 1024")
    a("s_mov_b32 s36, 14")
    a("s_branch k1_dma_go")
    a.label("k1_dma_x")
    srd(a, 28, 4, XBYTES)
    xtile_lane_off(a, 3, 1, 4, 5)
    a(f"s_mul_i32 s32, s20, {64*896}")
    a("s_lshr_b32 s3, s22, 1")
    a(f"s_mul_i32 s3, s3, {32*896}")
    a("s_add_u32 s32, s32, s3")
    a("s_and_b32 s3, s22, 1")
    a(f"s_mul_i32 s3, s3, {8*896}")
    a("s_add_u32 s32, s32, s3")
    a("s_mov_b32 s33, 64")
    a("s_lshl_b32 s34, s22, 10")
    a("s_mov_b32 s35, 4096")
    a("s_mov_b32 s36, 14")
    a.label("k1_dma_go")
    a("s_mov_b32 m0, s34")
    a.label("k1_dma_loop")
    a("s_sub_u32 s36, s36, 1")
    a("buffer_load_dwordx4 v3, s[28:31], s32 offen lds")
    a("s_add_u32 s32, s32, s33")
    a("s_add_u32 m0, m0, s35")
    a("s_cmp_lg_u32 s36, 0")
    a("s_cbranch_scc1 k1_dma_loop")
    a.label("k1_dma_done")
    a("s_cmp_eq_u32 s22, 11")
    a("s_cbranch_scc0 k1_noflag")
    a("s_cmp_lt_u32 s2, 24")
    a("s_cbranch_scc0 k1_noflag")
    a("s_lshl_b32 s3, s2, 8")
    a(f"s_add_u32 s3, s3, {WS_FL}")
    a("v_lshlrev_b32 v4, 2, v1")
    a("v_mov_b32 v5, 0")
    a("buffer_store_dword v5, v4, s[24:27], s3 offen")
    a.label("k1_noflag")
    xfrag_addr(a, 6, 1, 4)
    tr_rowcol(a, 8, 9, 1, 4)
    for i in range(16):
        a(f"v_mov_b32 v{16+i}, 0")
    stamp(a, 1)
    a("s_waitcnt vmcnt(0) lgkmcnt(0)")
    stamp(a, 2)
    a("s_barrier")
    stamp(a, 3)
    a("s_cmp_gt_u32 s22, 4")
    a(f"s_cbranch_scc1 {END}")
    a("s_cmp_eq_u32 s22, 4")
    a("s_cbranch_scc1 k1_job4")
    a("s_lshr_b32 s38, s22, 1")
    a("s_and_b32 s39, s22, 1")
    a("s_lshl_b32 s3, s38, 11")
    a("v_add_u32 v6, s3, v6")
    a("v_xor_b32 v7, 32, v6")
    a("v_lshlrev_b32 v10, 7, v8")
    a("v_lshl_add_u32 v10, v9, 1, v10")
    a("s_mul_i32 s3, s39, 56")
    a(f"s_add_u32 s3, s3, {L_WQ}")
    a("v_add_u32 v10, s3, v10")
    a("v_add_u32 v11, 512, v10")
    a("s_mov_b32 s40, 2048")
    proj_loop(a, False, 16, 32, 36, 40, 44, 6, 7, 10, 11, 40, 41, "k1_qloop")
    a("s_nop 7")
    a(f"s_mov_b32 s42, {hex(QSCALE)}")
    a("s_lshl_b32 s3, s21, 1")
    a("s_add_u32 s3, s3, s39")
    a("s_lshl_b32 s3, s3, 6")
    a("s_lshl_b32 s43, s20, 1")
    a("s_add_u32 s43, s43, s38")
    a("s_add_u32 s3, s3, s43")
    a("s_lshl_b32 s44, s3, 11")
    a("v_lshlrev_b32 v12, 4, v1")
    for i in range(16):
        a(f"v_mul_f32 v{16+i}, s42, v{16+i}")
    for i in range(8):
        a(f"v_cvt_pk_bf16_f32 v{32+i}, v{16+2*i}, v{17+2*i}")
    a("s_mov_b32 exec_lo, 0")
    a("v_mov_b32 v38, 0")
    a("v_mov_b32 v39, 0")
    a("s_mov_b32 exec_lo, -1")
    a("buffer_store_dwordx4 v[32:35], v12, s[24:27], s44 offen")
    a("buffer_store_dwordx4 v[36:39], v12, s[24:27], s44 offen offset:1024")
    a(f"s_branch {END}")
    a.label("k1_job4")
    a("s_cmp_ge_u32 s21, 6")
    a(f"s_cbranch_scc1 {END}")
    a("s_and_b32 s38, s21, 1")
    a("s_lshl_b32 s3, s38, 11")
    a("v_add_u32 v6, s3, v6")
    a("v_xor_b32 v7, 32, v6")
    a("s_lshl_b32 s43, s20, 1")
    a("s_add_u32 s43, s43, s38")
    a("v_lshlrev_b32 v12, 4, v1")
    a("s_cmp_ge_u32 s21, 4")
    a("s_cbranch_scc1 k1_gate")
    a("v_mul_u32_u24 v10, 56, v8")
    a("v_lshl_add_u32 v10, v9, 1, v10")
    a(f"v_add_u32 v10, {L_WKV}, v10")
    a("v_add_u32 v11, 224, v10")
    a(f"s_mov_b32 s40, {16*56}")
    a(f"s_lshl_b32 s44, s43, 12")
    a(f"s_add_u32 s44, s44, {WS_KV}")
    a("s_cmp_ge_u32 s21, 2")
    a("s_cbranch_scc1 k1_vjob")
    proj_loop(a, False, 16, 32, 36, 40, 44, 6, 7, 10, 11, 40, 41, "k1_kloop")
    a("s_nop 7")
    a("s_nop 3")
    for i in range(8):
        a(f"v_cvt_pk_bf16_f32 v{32+i}, v{16+2*i}, v{17+2*i}")
    a("s_mov_b32 exec_lo, 0")
    a("v_mov_b32 v38, 0x3f803f80")
    a("v_mov_b32 v39, 0x00003f80")
    a("s_mov_b32 exec_lo, -1")
    a("buffer_store_dwordx4 v[32:35], v12, s[24:27], s44 offen")
    a("buffer_store_dwordx4 v[36:39], v12, s[24:27], s44 offen offset:1024")
    a(f"s_branch {END}")
    a.label("k1_gate")
    a("v_lshlrev_b32 v10, 3, v8")
    a(f"v_add_u32 v10, {L_GW}, v10")
    a("v_add_u32 v11, 32, v10")
    a("s_mov_b32 s40, 128")
    a.label("k1_vjob")
    proj_loop(a, True, 16, 32, 36, 40, 44, 6, 7, 10, 11, 40, 41, "k1_vloop")
    a("s_nop 7")
    a("s_nop 3")
    a("s_cmp_ge_u32 s21, 4")
    a("s_cbranch_scc1 k1_gate_epi")
    for i in range(8):
        a(f"v_cvt_pk_bf16_f32 v{32+i}, v{16+2*i}, v{17+2*i}")
    a("v_and_b32 v13, 31, v1")
    a("v_cmp_eq_u32 vcc, 28, v13")
    a("v_mov_b32 v14, 0x3f803f80")
    a("s_nop 0")
    a("v_cndmask_b32 v14, 0, v14, vcc")
    a("v_cmp_lt_u32 vcc, 27, v13")
    a("s_nop 1")
    for i in range(8):
        a(f"v_cndmask_b32 v{32+i}, v{32+i}, v14, vcc")
    a("buffer_store_dwordx4 v[32:35], v12, s[24:27], s44 offen offset:2048")
    a("buffer_store_dwordx4 v[36:39], v12, s[24:27], s44 offen offset:3072")
    a(f"s_branch {END}")
    a.label("k1_gate_epi")
    a(f"s_mov_b32 s42, {hex(LOG2E)}")
    for i in range(16):
        a(f"v_mul_f32 v{16+i}, s42, v{16+i}")
    for i in range(16):
        a(f"v_exp_f32 v{16+i}, -v{16+i}")
    for i in range(16):
        a(f"v_add_f32 v{16+i}, 1.0, v{16+i}")
    for i in range(16):
        a(f"v_rcp_f32 v{16+i}, v{16+i}")
    a("v_lshrrev_b32 v13, 5, v1")
    a("v_lshlrev_b32 v13, 6, v13")
    a("s_lshl_b32 s44, s43, 7")
    a(f"s_add_u32 s44, s44, {WS_G}")
    a("v_and_b32 v14, 31, v1")
    a("v_cmp_eq_u32 vcc, 0, v14")
    a("s_and_saveexec_b64 s[46:47], vcc")
    for q in range(4):
        a(f"buffer_store_dwordx4 {v(16+4*q,4)}, v13, s[24:27], s44 offen offset:{16*q}")
    a.label(END)
    if PROF:
        a("s_cmp_ge_u32 s2, 256")
        a("s_cbranch_scc1 k1_end2")
        a("s_mov_b64 exec, -1")
        stamp(a, 4)
        a("s_waitcnt vmcnt(0)")
        stamp(a, 5)
        stamp_flush(a, 6, 0)
        a.label("k1_end2")
    a("s_endpgm")
    return name, 768, LDS_K1, 104


A_OP = 0
A_LP = 65536
A_CNT = 73728
LDS_K2A = 73728 + 256
AQ, AO, AS, AK, AV, APB = 8, 40, [104, 120], [136, 144], [152, 160], 4
MF = "v_mfma_f32_32x32x16_bf16"

def att_unit(a, u, side):
    g = u & 3; kt = u >> 2
    up = u - 1; un = u + 1
    cur = AS[u & 1]; prv = AS[(u + 1) & 1]
    Vp = AV[(up >> 2) & 1]; Op = AO + 16 * (up & 3)
    Kn = AK[(un >> 2) & 1]; Qn = AQ + 8 * (un & 3)
    side = list(side)
    def E(lo, hi):
        for j in range(lo, hi):
            a(f"v_exp_f32 v{cur+j}, v{cur+j}")
            if side:
                x = side.pop(0)
                if x: a(x)
    def pre(tag):
        while side and isinstance(side[0], tuple) and side[0][0] == tag:
            a(side.pop(0)[1])
    pre("q0")
    a(f"{MF} {v(Op,16)}, {v(Vp,4)}, {v(prv,4)}, {v(Op,16)}")
    E(0, 4)
    a(f"v_cvt_pk_bf16_f32 v{APB+2}, v{prv+12}, v{prv+13}")
    a(f"v_cvt_pk_bf16_f32 v{APB+3}, v{prv+14}, v{prv+15}")
    a(f"{MF} {v(prv,16)}, {v(Kn,4)}, {v(Qn,4)}, 0")
    E(4, 8)
    a(f"v_cvt_pk_bf16_f32 v{cur}, v{cur}, v{cur+1}")
    a(f"v_cvt_pk_bf16_f32 v{cur+1}, v{cur+2}, v{cur+3}")
    a(f"{MF} {v(prv,16)}, {v(Kn+4,4)}, {v(Qn+4,4)}, {v(prv,16)}")
    E(8, 12)
    a(f"v_cvt_pk_bf16_f32 v{cur+2}, v{cur+4}, v{cur+5}")
    a(f"v_cvt_pk_bf16_f32 v{cur+3}, v{cur+6}, v{cur+7}")
    a(f"{MF} {v(Op,16)}, {v(Vp+4,4)}, {v(APB,4)}, {v(Op,16)}")
    E(12, 16)
    a(f"v_cvt_pk_bf16_f32 v{APB}, v{cur+8}, v{cur+9}")
    a(f"v_cvt_pk_bf16_f32 v{APB+1}, v{cur+10}, v{cur+11}")
    assert not side, side

def gen_att(a, P, sc1="", bar=None):
    a("s_lshl_b32 s47, s21, 7")
    a("s_lshl_b32 s48, s20, 1")
    a("s_add_u32 s3, s47, s48")
    a("s_lshl_b32 s3, s3, 11")
    a(f"s_add_u32 s40, s3, {64*2048}")
    a(f"s_add_u32 s41, s3, 2048")
    a(f"s_add_u32 s42, s40, 2048")
    a(f"s_add_u32 s28, s24, {WS_KV}")
    a("s_addc_u32 s29, s25, 0")
    a(f"s_mov_b32 s30, {0x40000}")
    a("s_mov_b32 s31, 0x00020000")
    if "nowarm" not in X:
        a("s_lshr_b32 s52, s2, 3")
        a("s_lshl_b32 s52, s52, 3")
        a("s_add_u32 s52, s52, s22")
        a("s_lshl_b32 s52, s52, 10")
        a(f"buffer_load_dwordx4 {v(AV[1],4)}, v1, s[28:31], s52 offen{sc1}")
    for g, so in enumerate(("s3", "s40", "s41", "s42")):
        a(f"buffer_load_dwordx4 {v(AQ+8*g,4)}, v1, s[24:27], {so} offen{sc1}")
        a(f"buffer_load_dwordx4 {v(AQ+8*g+4,4)}, v1, s[24:27], {so} offen offset:1024{sc1}")
    a(f"buffer_load_dwordx4 {v(AS[1],4)}, v1, s[28:31], 0 offen{sc1}")
    a(f"buffer_load_dwordx4 {v(AS[1]+4,4)}, v1, s[28:31], 0 offen offset:1024{sc1}")
    a("s_lshl_b32 s43, s22, 15")
    a(f"buffer_load_dwordx4 {v(AK[0],4)}, v1, s[28:31], s43 offen{sc1}")
    a(f"buffer_load_dwordx4 {v(AK[0]+4,4)}, v1, s[28:31], s43 offen offset:1024{sc1}")
    a(f"buffer_load_dwordx4 {v(AV[0],4)}, v1, s[28:31], s43 offen offset:2048{sc1}")
    a(f"buffer_load_dwordx4 {v(AV[0]+4,4)}, v1, s[28:31], s43 offen offset:3072{sc1}")
    a("s_add_u32 s43, s43, 4096")
    a(f"buffer_load_dwordx4 {v(AK[1],4)}, v1, s[28:31], s43 offen{sc1}")
    a(f"buffer_load_dwordx4 {v(AK[1]+4,4)}, v1, s[28:31], s43 offen offset:1024{sc1}")
    stamp(a, 2)
    a("s_waitcnt vmcnt(6)")
    a("s_cmp_lg_u32 s51, 0")
    a(f"s_cbranch_scc1 {P}_haveshift")
    for g in range(4):
        a(f"{MF} {v(AO+16*g,16)}, {v(AS[1],4)}, {v(AQ+8*g,4)}, 0")
        a(f"{MF} {v(AO+16*g,16)}, {v(AS[1]+4,4)}, {v(AQ+8*g+4,4)}, {v(AO+16*g,16)}")
    a("s_nop 5")
    for g in range(4):
        o = AO + 16 * g
        a(f"v_max3_f32 v2, v{o}, v{o+1}, v{o+2}")
        for j in range(3, 15, 2):
            a(f"v_max3_f32 v2, v2, v{o+j}, v{o+j+1}")
        a(f"v_max_f32 v2, v2, v{o+15}")
        a("v_mov_b32 v3, v2")
        a("s_nop 1")
        a("v_permlane32_swap_b32 v2, v3")
        a("v_max_f32 v2, v2, v3")
        a("v_cvt_pk_bf16_f32 v2, -v2, 0")
        a("s_mov_b32 exec_lo, 0")
        a(f"v_mov_b32 v{AQ+8*g+6}, v2")
        a("s_mov_b32 exec_lo, -1")
    a.label(P + "_haveshift")
    for j in range(4): a(f"v_mov_b32 v{APB+j}, 0")
    for j in range(8): a(f"v_mov_b32 v{AV[1]+j}, 0")
    for j in (0, 1, 2, 3, 12, 13, 14, 15): a(f"v_mov_b32 v{AS[1]+j}, 0")
    for g in range(4):
        a(f"{MF} {v(AO+16*g,16)}, {v(AV[1],4)}, {v(APB,4)}, 0")
    a("s_waitcnt vmcnt(4)")
    a(f"{MF} {v(AS[0],16)}, {v(AK[0],4)}, {v(AQ,4)}, 0")
    a(f"{MF} {v(AS[0],16)}, {v(AK[0]+4,4)}, {v(AQ+4,4)}, {v(AS[0],16)}")
    a("s_mov_b32 s44, 0")
    a("s_nop 7")
    a("s_nop 1")
    stamp(a, 3)
    a(".p2align 3")
    a.label(P + "_loop")
    for u in range(8):
        g = u & 3; par = (u >> 2) & 1
        side = []
        if g == 1:
            side.append(("q0", "s_waitcnt vmcnt(2)"))
            side.append(f"buffer_load_dwordx4 {v(AV[par^1],4)}, v1, s[28:31], s43 offen offset:2048{sc1}")
            side.append(f"buffer_load_dwordx4 {v(AV[par^1]+4,4)}, v1, s[28:31], s43 offen offset:3072{sc1}")
            side.append("s_add_u32 s43, s43, 4096")
            if par == 0:
                side.append("s_cmp_eq_u32 s44, 3")
                side.append("s_cselect_b32 s30, 0, s30")
        if g == 3:
            side += [None, None, None, "s_waitcnt vmcnt(2)"]
            side.append(f"buffer_load_dwordx4 {v(AK[par],4)}, v1, s[28:31], s43 offen{sc1}")
            side.append(f"buffer_load_dwordx4 {v(AK[par]+4,4)}, v1, s[28:31], s43 offen offset:1024{sc1}")
            if par == 1:
                side += ["s_add_u32 s44, s44, 1", None, None, None, None, None, None, None, None, "s_cmp_lt_u32 s44, 4"]
        att_unit(a, u, side)
    a(f"s_cbranch_scc1 {P}_loop")
    prv = AS[1]
    a(f"{MF} {v(AO+48,16)}, {v(AV[1],4)}, {v(prv,4)}, {v(AO+48,16)}")
    a(f"v_cvt_pk_bf16_f32 v{APB+2}, v{prv+12}, v{prv+13}")
    a(f"v_cvt_pk_bf16_f32 v{APB+3}, v{prv+14}, v{prv+15}")
    a("s_nop 1")
    a(f"{MF} {v(AO+48,16)}, {v(AV[1]+4,4)}, {v(APB,4)}, {v(AO+48,16)}")
    stamp(a, 4)
    a("s_lshl_b32 s3, s22, 13")
    a(f"v_add_u32 v2, s3, v1")
    a("s_lshl_b32 s3, s22, 10")
    a(f"s_add_u32 s3, s3, {A_LP}")
    a("v_lshrrev_b32 v3, 2, v1")
    a("v_add_u32 v3, s3, v3")
    for g in range(4):
        o = AO + 16 * g
        if g == 3: a("s_nop 7")
        a(f"ds_write_b32 v3, v{o+12} offset:{g*256}")
        for j in range(8):
            a(f"v_cvt_pk_bf16_f32 v{AS[0]+8*g+j}, v{o+2*j}, v{o+2*j+1}")
        a(f"ds_write_b128 v2, {v(AS[0]+8*g,4)} offset:{g*2048}")
        a(f"ds_write_b128 v2, {v(AS[0]+8*g+4,4)} offset:{g*2048+1024}")
    a("s_waitcnt lgkmcnt(0)")
    if bar: bar()
    else: a("s_barrier")
    a("s_lshl_b32 s3, s22, 10")
    a("v_add_u32 v2, s3, v1")
    for w in range(8):
        a(f"ds_read_b128 {v(AO+4*w,4)}, v2 offset:{w*8192}")
    a("s_lshr_b32 s45, s22, 1")
    a("s_lshl_b32 s3, s45, 8")
    a(f"s_add_u32 s3, s3, {A_LP + 128}")
    a("v_lshrrev_b32 v3, 2, v1")
    a("v_and_b32 v3, 127, v3")
    a("v_add_u32 v3, s3, v3")
    for w in range(8):
        a(f"ds_read_b32 v{AO+32+w}, v3 offset:{w*1024}")
    a("s_mov_b32 s46, 0x00003f80")
    a("s_mov_b32 s49, 0x3f800000")
    acc = AO + 40
    for j in range(8): a(f"v_mov_b32 v{acc+j}, 0")
    for w in range(8):
        a(f"s_waitcnt lgkmcnt({15 - w})")
        for j in range(4):
            a(f"v_dot2c_f32_bf16 v{acc+2*j}, s46, v{AO+4*w+j}")
            a(f"v_dot2c_f32_bf16 v{acc+2*j+1}, s49, v{AO+4*w+j}")
    a("s_waitcnt lgkmcnt(0)")
    l = AO + 32
    a(f"v_add_f32 v{l}, v{l}, v{l+1}")
    a(f"v_add_f32 v{l+2}, v{l+2}, v{l+3}")
    a(f"v_add_f32 v{l+4}, v{l+4}, v{l+5}")
    a(f"v_add_f32 v{l+6}, v{l+6}, v{l+7}")
    a(f"v_add_f32 v{l}, v{l}, v{l+2}")
    a(f"v_add_f32 v{l+4}, v{l+4}, v{l+6}")
    a(f"v_add_f32 v{l}, v{l}, v{l+4}")
    a(f"v_rcp_f32 v{l+1}, v{l}")
    a("s_nop 0")
    for j in range(8): a(f"v_mul_f32 v{acc+j}, v{acc+j}, v{l+1}")
    for j in range(4): a(f"v_cvt_pk_bf16_f32 v{AO+j}, v{acc+2*j}, v{acc+2*j+1}")
    a("s_and_b32 s3, s22, 1")
    a("s_cmp_eq_u32 s3, 1")
    a("s_cselect_b32 exec_hi, -1, 0")
    a("s_mov_b32 exec_lo, 0")
    a(f"v_mov_b32 v{AO+2}, 0")
    a(f"v_mov_b32 v{AO+3}, 0")
    a("s_mov_b64 exec, -1")
    a("s_lshr_b32 s3, s45, 1")
    a("s_add_u32 s3, s3, s48")
    a("s_lshl_b32 s3, s3, 4")
    a("s_lshl_b32 s46, s21, 1")
    a("s_add_u32 s3, s3, s46")
    a("s_and_b32 s46, s45, 1")
    a("s_add_u32 s3, s3, s46")
    a("s_lshl_b32 s3, s3, 11")
    a("s_and_b32 s46, s22, 1")
    a("s_lshl_b32 s46, s46, 10")
    a("s_add_u32 s3, s3, s46")
    a(f"s_add_u32 s3, s3, {WS_OF}")
    a(f"buffer_store_dwordx4 {v(AO,4)}, v1, s[24:27], s3 offen{sc1}")

def gen_k2a(a):
    name = "k2a_kernel"
    header(a, name)
    END = "k2a_end"
    decode_wg(a, 20, 21, END)
    stamp(a, 0)
    a("s_load_dwordx2 s[14:15], s[0:1], 136")
    a("v_lshrrev_b32 v2, 6, v0")
    a("v_and_b32 v1, 63, v0")
    a("v_readfirstlane_b32 s22, v2")
    a("v_lshlrev_b32 v1, 4, v1")
    a("s_mov_b32 s51, 0")
    a("s_waitcnt lgkmcnt(0)")
    srd(a, 24, 14, WS_SIZE)
    stamp(a, 1)
    gen_att(a, "att")
    stamp(a, 5)
    stamp_flush(a, 6, 1)
    a.label(END)
    a("s_endpgm")
    return name, 512, LDS_K2A, 168

FL_E = WS_FL
FL_H = WS_FL + 0x800
FL_O = WS_FL + 0x1800
INV2PI = f2u(1.0 / (2.0 * math.pi))
B_EX = 114688
B_HT = 116736
LDS_K2B = 116736 + 16384

def plain_lane_off(a, vd, vlane, vt0):
    a(f"v_lshrrev_b32 v{vt0}, 4, v{vlane}")
    a(f"v_and_b32 v{vd}, 3, v{vlane}")
    a(f"v_xor_b32 v{vd}, v{vd}, v{vt0}")
    a(f"v_lshlrev_b32 v{vd}, 4, v{vd}")
    a(f"v_lshrrev_b32 v{vt0}, 2, v{vlane}")
    a(f"v_mul_u32_u24 v{vt0}, 896, v{vt0}")
    a(f"v_add_u32 v{vd}, v{vd}, v{vt0}")

def cpow(a, dr, di, va, vang, n, t0, t1):
    a(f"v_mul_f32 v{t0}, {n}, v{va}" if isinstance(n, str) else f"v_mul_f32 v{t0}, {hex(f2u(float(n)))}, v{va}")
    a(f"v_mul_f32 v{t1}, {n}, v{vang}" if isinstance(n, str) else f"v_mul_f32 v{t1}, {hex(f2u(float(n)))}, v{vang}")
    a(f"v_exp_f32 v{t0}, v{t0}")
    a(f"v_fract_f32 v{t1}, v{t1}")
    a("s_nop 0")
    a(f"v_cos_f32 v{dr}, v{t1}")
    a(f"v_sin_f32 v{di}, v{t1}")
    a("s_nop 0")
    a(f"v_mul_f32 v{dr}, v{dr}, v{t0}")
    a(f"v_mul_f32 v{di}, v{di}, v{t0}")

def cfma(a, hr, hi, lr, li, ur, ui, tr, ti):
    a(f"v_fma_f32 v{tr}, -v{li}, v{hi}, v{ur}")
    a(f"v_fma_f32 v{ti}, v{li}, v{hr}, v{ui}")
    a(f"v_fma_f32 v{hr}, v{lr}, v{hr}, v{tr}")
    a(f"v_fma_f32 v{hi}, v{lr}, v{hi}, v{ti}")

def gen_ssm(a, P, bar, sc1=" sc1", flagval="1"):
    XF = 56; ARE, AIM = 8, 24
    a("s_load_dwordx2 s[4:5], s[0:1], 0")
    a("s_load_dwordx4 s[8:11], s[0:1], 48")
    a("s_load_dwordx4 s[12:15], s[0:1], 64")
    a("s_load_dwordx4 s[16:19], s[0:1], 80")
    a("s_load_dwordx4 s[52:55], s[0:1], 96")
    a("s_load_dwordx2 s[56:57], s[0:1], 120")
    xtile_lane_off(a, 3, 0, 4, 5)
    a("s_waitcnt lgkmcnt(0)")
    srd(a, 28, 4, XBYTES)
    a(f"s_mul_i32 s32, s20, {64*896}")
    a("s_lshr_b32 s3, s23, 1")
    a(f"s_mul_i32 s3, s3, {32*896}")
    a("s_add_u32 s32, s32, s3")
    a("s_and_b32 s3, s23, 1")
    a(f"s_mul_i32 s3, s3, {8*896}")
    a("s_add_u32 s32, s32, s3")
    a("s_lshl_b32 s34, s23, 10")
    a("s_mov_b32 m0, s34")
    a("s_mov_b32 s36, 14")
    a.label(P + "_xdma")
    a("s_sub_u32 s36, s36, 1")
    a("buffer_load_dwordx4 v3, s[28:31], s32 offen lds")
    a("s_add_u32 s32, s32, 64")
    a("s_add_u32 m0, m0, 4096")
    a("s_cmp_lg_u32 s36, 0")
    a(f"s_cbranch_scc1 {P}_xdma")
    a("s_lshl_b32 s37, s21, 1")
    a("s_and_b32 s3, s23, 1")
    a("s_add_u32 s37, s37, s3")
    a("v_and_b32 v4, 31, v0")
    a("s_lshl_b32 s3, s37, 6")
    a("v_lshl_add_u32 v4, v4, 1, s3")
    srd(a, 40, 8, 896);  a("buffer_load_ushort v8, v4, s[40:43], 0 offen")
    srd(a, 44, 10, 896); a("buffer_load_ushort v9, v4, s[44:47], 0 offen")
    srd(a, 48, 52, 896); a("buffer_load_ushort v10, v4, s[48:51], 0 offen")
    xfrag_addr(a, 6, 0, 5)
    a("s_lshr_b32 s38, s23, 1")
    a("s_lshl_b32 s3, s38, 11")
    a("v_add_u32 v6, s3, v6")
    a("v_xor_b32 v7, 32, v6")
    a("s_waitcnt vmcnt(0)")
    bar()
    for j in range(28):
        a(f"ds_read_b128 {v(XF+4*j,4)}, v{6 + (j&1)} offset:{(j>>1)*4096}")
        if j in (11, 21): a("s_waitcnt lgkmcnt(2)")
    a("v_lshlrev_b32 v8, 16, v8")
    a("v_lshlrev_b32 v9, 16, v9")
    a("v_lshlrev_b32 v10, 16, v10")
    a(f"v_mul_f32 v10, {hex(LOG2E)}, v10")
    a("v_exp_f32 v10, v10")
    a("s_nop 0")
    a("v_cvt_pk_bf16_f32 v10, v10, v10")
    a("v_lshlrev_b32 v10, 16, v10")
    a("v_mul_f32 v11, v10, v8")
    a("v_mul_f32 v12, v10, v9")
    a(f"v_mul_f32 v11, {hex(LOG2E)}, v11")
    a(f"v_mul_f32 v12, {hex(INV2PI)}, v12")
    cpow(a, 2, 3, 11, 12, "1.0", 13, 14)
    a("v_add_f32 v13, -1.0, v2")
    a("v_mul_f32 v14, v8, v8")
    a("v_fma_f32 v14, v9, v9, v14")
    a("v_rcp_f32 v14, v14")
    a("v_mul_f32 v15, v13, v8")
    a("v_fma_f32 v15, v3, v9, v15")
    a("v_mul_f32 v16, v3, v8")
    a("v_fma_f32 v16, -v13, v9, v16")
    a("v_mul_f32 v4, v15, v14")
    a("v_mul_f32 v5, v16, v14")
    a("s_waitcnt lgkmcnt(0)")
    bar()
    a("s_and_b32 s3, s23, 1")
    a("s_cmp_eq_u32 s3, 0")
    a("s_cselect_b32 s28, s12, s14")
    a("s_cselect_b32 s29, s13, s15")
    a(f"s_mov_b32 s30, {WBYTES}")
    plain_lane_off(a, 8, 0, 9)
    a("s_lshl_b32 s3, s21, 1")
    a("s_add_u32 s3, s3, s38")
    a(f"s_mul_i32 s32, s3, {32*896}")
    a("s_lshl_b32 s34, s23, 11")
    a("s_mov_b32 m0, s34")
    a("s_mov_b32 s36, 14")
    a.label(P + "_bdma")
    a(f"s_add_u32 s33, s32, {16*896}")
    a("buffer_load_dwordx4 v8, s[28:31], s32 offen lds")
    a("s_add_u32 m0, m0, 1024")
    a("s_sub_u32 s36, s36, 1")
    a("buffer_load_dwordx4 v8, s[28:31], s33 offen lds")
    a("s_add_u32 s32, s32, 64")
    a(f"s_add_u32 m0, m0, {8192-1024}")
    a("s_cmp_lg_u32 s36, 0")
    a(f"s_cbranch_scc1 {P}_bdma")
    xfrag_addr(a, 6, 0, 8)
    a("s_and_b32 s3, s23, 1")
    a("s_lshl_b32 s3, s3, 12")
    a("v_add_u32 v6, s3, v6")
    a("v_xor_b32 v7, 32, v6")
    a("s_waitcnt vmcnt(0)")
    bar()
    BB = [40, 48]
    def rdB(j):
        b = BB[j & 1]
        if j in (16, 17): a(f"v_add_u32 v{6+(j&1)}, 0x10000, v{6+(j&1)}")
        o = (j >> 1) * 8192 - (65536 if j >= 16 else 0)
        a(f"ds_read_b128 {v(b,4)}, v{6+(j&1)} offset:{o}")
        a(f"ds_read_b128 {v(b+4,4)}, v{6+(j&1)} offset:{o+2048}")
    rdB(0); rdB(1)
    for j in range(28):
        b = BB[j & 1]
        a("s_waitcnt lgkmcnt(2)" if j < 27 else "s_waitcnt lgkmcnt(0)")
        c1 = "0" if j == 0 else v(ARE,16); c2 = "0" if j == 0 else v(AIM,16)
        a(f"{MF} {v(ARE,16)}, {v(XF+4*j,4)}, {v(b,4)}, {c1}")
        a(f"{MF} {v(AIM,16)}, {v(XF+4*j,4)}, {v(b+4,4)}, {c2}")
        if j + 2 < 28: rdB(j + 2)
    def csq(dr, di, sr, si):
        a(f"v_mul_f32 v46, v{si}, v{si}")
        a(f"v_mul_f32 v47, v{sr}, v{si}")
        a(f"v_fma_f32 v{dr}, v{sr}, v{sr}, -v46")
        a(f"v_add_f32 v{di}, v47, v47")
    csq(40, 41, 2, 3)
    for _ in range(3): csq(40, 41, 40, 41)
    csq(42, 43, 40, 41); csq(42, 43, 42, 43)
    csq(44, 45, 42, 43)
    for _ in range(3): csq(44, 45, 44, 45)
    for r in range(16):
        a(f"v_mul_f32 v46, v5, v{AIM+r}")
        a(f"v_mul_f32 v47, v5, v{ARE+r}")
        a(f"v_fma_f32 v{ARE+r}, v4, v{ARE+r}, -v46")
        a(f"v_fma_f32 v{AIM+r}, v4, v{AIM+r}, v47")
    a(f"v_mov_b32 v48, v{ARE}")
    a(f"v_mov_b32 v49, v{AIM}")
    for r in range(1, 16):
        cfma(a, 48, 49, 2, 3, ARE + r, AIM + r, 46, 47)
    a("v_and_b32 v50, 31, v0")
    a("v_lshlrev_b32 v50, 3, v50")
    a("s_and_b32 s3, s23, 1")
    a("s_lshl_b32 s3, s3, 10")
    a(f"s_add_u32 s3, s3, {B_EX}")
    a("v_add_u32 v50, s3, v50")
    a("v_lshrrev_b32 v51, 5, v0")
    a("s_lshl_b32 s3, s38, 1")
    a("v_add_u32 v51, s3, v51")
    a("v_lshl_add_u32 v52, v51, 8, v50")
    a("ds_write_b64 v52, v[48:49]")
    a("s_waitcnt lgkmcnt(0)")
    bar()
    for c in range(4):
        a(f"ds_read_b64 {v(56+2*c,2)}, v50 offset:{c*256}")
    a("s_waitcnt lgkmcnt(0)")
    a("v_mov_b32 v64, v56")
    a("v_mov_b32 v65, v57")
    for c in range(1, 4):
        cfma(a, 64, 65, 40, 41, 56 + 2*c, 57 + 2*c, 46, 47)
    a("s_cmp_eq_u32 s38, 1")
    a(f"s_cbranch_scc0 {P}_nopub")
    a("v_and_b32 v66, 31, v0")
    a("v_lshlrev_b32 v66, 3, v66")
    a(f"s_mul_i32 s3, s20, {448*8}")
    a("s_lshl_b32 s33, s37, 8")
    a("s_add_u32 s3, s3, s33")
    a(f"s_add_u32 s3, s3, {WS_E}")
    a("s_mov_b32 exec_hi, 0")
    a(f"buffer_store_dwordx2 v[64:65], v66, s[24:27], s3 offen{sc1}")
    a("s_waitcnt vmcnt(0)")
    a("s_lshl_b32 s3, s37, 5")
    a("s_add_u32 s3, s3, s20")
    a("s_lshl_b32 s3, s3, 2")
    a(f"s_add_u32 s3, s3, {FL_E}")
    a("s_mov_b64 exec, 1")
    a(f"v_mov_b32 v66, {flagval}")
    a("v_mov_b32 v67, 0")
    a(f"buffer_store_dword v66, v67, s[24:27], s3 offen{sc1}")
    a("s_mov_b64 exec, -1")
    a.label(P + "_nopub")
    a("v_and_b32 v66, 31, v0")
    a("v_lshlrev_b32 v67, 2, v66")
    a("s_lshl_b32 s3, s37, 7")
    a(f"s_add_u32 s3, s3, {FL_E}")
    a("v_cmp_gt_u32 s[58:59], s20, v66")
    a.label(P + "_pollE")
    a(f"buffer_load_dword v68, v67, s[24:27], s3 offen{sc1}")
    a("s_waitcnt vmcnt(0)")
    a(f"v_cmp_ne_u32 vcc, {flagval}, v68")
    a("s_and_b64 vcc, vcc, s[58:59]")
    a(f"s_cbranch_vccz {P}_gotE")
    a("s_sleep 2")
    a(f"s_branch {P}_pollE")
    a.label(P + "_gotE")
    a(f"s_add_u32 s28, s24, {WS_E}")
    a("s_addc_u32 s29, s25, 0")
    a(f"s_mov_b32 s30, {32*448*8}")
    a("v_lshrrev_b32 v67, 5, v0")
    a("v_lshlrev_b32 v67, 4, v67")
    a("v_sub_u32 v67, s20, v67")
    a("v_add_u32 v67, -1, v67")
    a(f"s_mov_b32 s3, {448*8}")
    a("v_mul_lo_u32 v67, v67, s3")
    a("v_lshlrev_b32 v66, 3, v66")
    a("s_lshl_b32 s33, s37, 8")
    a("v_add3_u32 v67, v67, v66, s33")
    for i in range(16):
        a(f"buffer_load_dwordx2 {v(72+2*i,2)}, v67, s[28:31], 0 offen{sc1}")
        if i < 15: a(f"v_subrev_u32 v67, {448*8}, v67")
    a("s_waitcnt vmcnt(0)")
    a("v_mov_b32 v68, v102")
    a("v_mov_b32 v69, v103")
    for i in range(14, -1, -1):
        cfma(a, 68, 69, 42, 43, 72 + 2*i, 73 + 2*i, 46, 47)
    a("v_mov_b32 v70, v68")
    a("v_mov_b32 v71, v69")
    a("v_mov_b32 v72, v68")
    a("v_mov_b32 v73, v69")
    a("s_nop 1")
    a("v_permlane32_swap_b32 v70, v72")
    a("v_permlane32_swap_b32 v71, v73")
    cfma(a, 72, 73, 44, 45, 70, 71, 46, 47)
    for cp in range(3):
        a("v_mov_b32 v74, v72")
        a("v_mov_b32 v75, v73")
        cfma(a, 74, 75, 40, 41, 56 + 2*cp, 57 + 2*cp, 46, 47)
        a(f"v_cmp_lt_u32 vcc, {cp}, v51")
        a("s_nop 1")
        a("v_cndmask_b32 v72, v72, v74, vcc")
        a("v_cndmask_b32 v73, v73, v75, vcc")
    a("s_lshl_b32 s3, s23, 12")
    a(f"s_add_u32 s3, s3, {B_HT}")
    a("v_and_b32 v66, 31, v0")
    a("v_lshlrev_b32 v66, 1, v66")
    a("v_lshrrev_b32 v67, 5, v0")
    a("v_lshl_add_u32 v66, v67, 8, v66")
    a("v_add_u32 v66, s3, v66")
    for r in range(16):
        cfma(a, 72, 73, 2, 3, ARE + r, AIM + r, 46, 47)
        a("v_cvt_pk_bf16_f32 v76, v72, -v73")
        slot = (r & 3) + 8 * (r >> 2)
        a(f"ds_write_b16 v66, v76 offset:{slot*64}")
        a(f"ds_write_b16_d16_hi v66, v76 offset:{2048+slot*64}")
    a("v_and_b32 v67, 31, v0")
    a("v_lshlrev_b32 v67, 6, v67")
    a("v_lshrrev_b32 v68, 5, v0")
    a("v_lshl_add_u32 v67, v68, 4, v67")
    a("v_add_u32 v67, s3, v67")
    a("s_waitcnt lgkmcnt(0)")
    for part in range(2):
        for jj in range(2):
            a(f"ds_read_b128 {v(80+8*part+4*jj,4)}, v67 offset:{part*2048+jj*32}")
    a("s_lshl_b32 s3, s20, 1")
    a("s_add_u32 s3, s3, s38")
    a("s_mul_i32 s3, s3, 56")
    a("s_lshl_b32 s33, s37, 1")
    a("s_add_u32 s3, s3, s33")
    a("s_lshl_b32 s3, s3, 10")
    a(f"s_add_u32 s3, s3, {WS_HF}")
    a(f"s_add_u32 s33, s3, {28*1024}")
    a("s_waitcnt lgkmcnt(0)")
    a(f"buffer_store_dwordx4 {v(80,4)}, v1, s[24:27], s3 offen{sc1}")
    a(f"buffer_store_dwordx4 {v(84,4)}, v1, s[24:27], s3 offen offset:1024{sc1}")
    a(f"buffer_store_dwordx4 {v(88,4)}, v1, s[24:27], s33 offen{sc1}")
    a(f"buffer_store_dwordx4 {v(92,4)}, v1, s[24:27], s33 offen offset:1024{sc1}")
    a("s_waitcnt vmcnt(0)")
    a("s_lshl_b32 s3, s20, 5")
    a("s_lshl_b32 s33, s21, 2")
    a("s_add_u32 s3, s3, s33")
    a("s_add_u32 s3, s3, s23")
    a("s_lshl_b32 s3, s3, 2")
    a(f"s_add_u32 s3, s3, {FL_H}")
    a("s_mov_b64 exec, 1")
    a(f"v_mov_b32 v66, {flagval}")
    a("v_mov_b32 v67, 0")
    a(f"buffer_store_dword v66, v67, s[24:27], s3 offen{sc1}")
    a("s_mov_b64 exec, -1")
    bar()
    a("s_lshr_b32 s3, s23, 1")
    a("s_cmp_eq_u32 s3, 0")
    a("s_cselect_b32 s28, s16, s18")
    a("s_cselect_b32 s29, s17, s19")
    a(f"s_mov_b32 s30, {WBYTES}")
    plain_lane_off(a, 8, 0, 9)
    a(f"s_mul_i32 s32, s21, {64*896}")
    a("s_and_b32 s3, s23, 1")
    a("s_mul_i32 s3, s3, 448")
    a("s_add_u32 s32, s32, s3")
    a("s_mul_i32 s34, s23, 28672")
    a("s_mov_b32 m0, s34")
    a("s_mov_b32 s36, 7")
    a.label(P + "_cdma")
    for q in range(4):
        a(f"s_add_u32 s33, s32, {q*16*896}")
        a("buffer_load_dwordx4 v8, s[28:31], s33 offen lds")
        a("s_add_u32 m0, m0, 1024")
    a("s_add_u32 s32, s32, 64")
    a("s_sub_u32 s36, s36, 1")
    a("s_cmp_lg_u32 s36, 0")
    a(f"s_cbranch_scc1 {P}_cdma")
    a("v_lshlrev_b32 v67, 2, v0")
    a("s_lshl_b32 s3, s20, 7")
    a(f"s_add_u32 s3, s3, {FL_H}")
    a("v_cmp_gt_u32 s[58:59], 28, v0")
    a.label(P + "_pollH")
    a(f"buffer_load_dword v68, v67, s[24:27], s3 offen{sc1}")
    a("s_waitcnt vmcnt(0)")
    a(f"v_cmp_ne_u32 vcc, {flagval}, v68")
    a("s_and_b64 vcc, vcc, s[58:59]")
    a(f"s_cbranch_vccz {P}_gotH")
    a("s_sleep 2")
    a(f"s_branch {P}_pollH")
    a.label(P + "_gotH")
    ACC = 8
    a("s_lshl_b32 s3, s20, 1")
    a("s_mul_i32 s3, s3, 56")
    a("s_mul_i32 s33, s23, 14")
    a("s_add_u32 s3, s3, s33")
    a("s_lshl_b32 s3, s3, 10")
    a(f"s_add_u32 s32, s3, {WS_HF}")
    a(f"s_add_u32 s33, s32, {56*1024}")
    AF = 96
    xfrag_addr(a, 6, 0, 8)
    a("v_add_u32 v6, s34, v6")
    a("v_xor_b32 v7, 32, v6")
    CB = [72, 80]
    for half in range(2):
        for sl in range(7):
            st_ = half * 7 + sl
            a(f"s_add_u32 s35, s32, {st_*1024}")
            a(f"s_add_u32 s36, s33, {st_*1024}")
            a(f"buffer_load_dwordx4 {v(AF+8*sl,4)}, v1, s[24:27], s35 offen{sc1}")
            a(f"buffer_load_dwordx4 {v(AF+8*sl+4,4)}, v1, s[24:27], s36 offen{sc1}")
        def rdC(st_):
            b = CB[st_ & 1]
            a(f"ds_read_b128 {v(b,4)}, v{6+(st_&1)} offset:{(st_>>1)*4096}")
            a(f"ds_read_b128 {v(b+4,4)}, v{6+(st_&1)} offset:{(st_>>1)*4096+2048}")
        if half == 0:
            rdC(0)
        for sl in range(7):
            st_ = half * 7 + sl
            b = CB[st_ & 1]
            if st_ + 1 < 14: rdC(st_ + 1)
            a(f"s_waitcnt vmcnt({12-2*sl}) lgkmcnt({2 if st_ + 1 < 14 else 0})")
            for rt in range(2):
                for ct in range(2):
                    acc = ACC + 16 * (2 * rt + ct)
                    c = "0" if st_ == 0 else v(acc, 16)
                    a(f"{MF} {v(acc,16)}, {v(AF+8*sl+4*rt,4)}, {v(b+4*ct,4)}, {c}")
    bar()
    a("s_nop 7")
    a("s_lshl_b32 s3, s23, 12")
    a("v_add_u32 v72, s3, v1")
    for t in range(4):
        for q in range(4):
            a(f"ds_write_b128 v72, {v(ACC+16*t+4*q,4)} offset:{t*16384+q*1024}")
    a("s_waitcnt lgkmcnt(0)")
    bar()
    a("s_lshl_b32 s3, s23, 14")
    a("v_add_u32 v72, s3, v1")
    for src in range(4):
        for q in range(4):
            a(f"ds_read_b128 {v(96+16*src+4*q,4)}, v72 offset:{src*4096+q*1024}")
    a("s_lshl_b32 s3, s20, 6")
    a("s_lshl_b32 s33, s38, 5")
    a("s_add_u32 s3, s3, s33")
    a("v_lshrrev_b32 v73, 5, v0")
    a("v_lshlrev_b32 v73, 4, v73")
    a("v_add_u32 v73, s3, v73")
    a("s_lshl_b32 s33, s21, 6")
    a("s_and_b32 s35, s23, 1")
    a("s_lshl_b32 s35, s35, 5")
    a("s_add_u32 s33, s33, s35")
    a("v_and_b32 v74, 31, v0")
    a("v_add_u32 v74, s33, v74")
    a("v_lshlrev_b32 v75, 2, v73")
    for q in range(4):
        a(f"buffer_load_dwordx4 {v(8+4*q,4)}, v75, s[24:27], s60 offen offset:{16*q}")
    srd(a, 28, 4, XBYTES)
    a("v_mul_u32_u24 v76, 896, v73")
    a("v_lshl_add_u32 v76, v74, 1, v76")
    for r in range(16):
        a(f"buffer_load_ushort v{24+r}, v76, s[28:31], 0 offen offset:{(r%4)*896}" )
        if r % 4 == 3 and r < 15: a(f"v_add_u32 v76, {4*896}, v76")
    srd(a, 40, 54, 896)
    a("v_lshlrev_b32 v77, 1, v74")
    a("buffer_load_ushort v78, v77, s[40:43], 0 offen")
    a("s_waitcnt lgkmcnt(0)")
    for r in range(16):
        a(f"v_add_f32 v{96+r}, v{96+r}, v{112+r}")
        a(f"v_add_f32 v{128+r}, v{128+r}, v{144+r}")
    for r in range(16):
        a(f"v_add_f32 v{96+r}, v{96+r}, v{128+r}")
    a("s_waitcnt vmcnt(0)")
    a("v_lshlrev_b32 v78, 16, v78")
    srd(a, 40, 56, 2048*448*4)
    a("v_mul_u32_u24 v76, 1792, v73")
    a("v_lshl_add_u32 v76, v74, 2, v76")
    for r in range(16):
        a(f"v_lshlrev_b32 v{24+r}, 16, v{24+r}")
        a(f"v_mul_f32 v{24+r}, v{24+r}, v78")
        a(f"v_fma_f32 v{24+r}, 2.0, v{96+r}, v{24+r}")
        a(f"v_sub_f32 v{8+r}, 1.0, v{8+r}")
        a(f"v_mul_f32 v{24+r}, v{24+r}, v{8+r}")
    for r in range(16):
        a(f"buffer_store_dword v{24+r}, v76, s[40:43], 0 offen offset:{(r%2)*1792}")
        if r % 2 == 1 and r < 15: a(f"v_add_u32 v76, {2*1792}, v76")

def gen_k2b(a):
    name = "k2b_kernel"
    header(a, name)
    END = "k2b_end"
    decode_wg(a, 20, 21, END)
    a("s_cmp_eq_u32 s21, 7")
    a(f"s_cbranch_scc1 {END}")
    a("s_load_dwordx2 s[14:15], s[0:1], 136")
    a("v_lshrrev_b32 v2, 6, v0")
    a("v_and_b32 v0, 63, v0")
    a("v_readfirstlane_b32 s23, v2")
    a("v_lshlrev_b32 v1, 4, v0")
    a("s_waitcnt lgkmcnt(0)")
    srd(a, 24, 14, WS_SIZE)
    a(f"s_mov_b32 s60, {WS_G}")
    gen_ssm(a, "ssm", lambda: a("s_barrier"))
    a.label(END)
    a("s_endpgm")
    return name, 256, LDS_K2B, 168

def gen_k3(a):
    name = "k3_kernel"
    header(a, name)
    END = "k3_end"
    decode_wg(a, 20, 21, END)
    a("s_cmp_eq_u32 s21, 7")
    a(f"s_cbranch_scc1 {END}")
    a("s_load_dwordx2 s[14:15], s[0:1], 136")
    a("s_load_dwordx2 s[4:5], s[0:1], 32")
    a("s_load_dwordx2 s[56:57], s[0:1], 120")
    a("v_lshrrev_b32 v2, 6, v0")
    a("v_and_b32 v0, 63, v0")
    a("v_readfirstlane_b32 s23, v2")
    a("v_lshlrev_b32 v1, 4, v0")
    a("s_waitcnt lgkmcnt(0)")
    srd(a, 24, 14, WS_SIZE)
    srd(a, 28, 4, WBYTES)
    a("v_lshrrev_b32 v3, 3, v0")
    a("v_mul_u32_u24 v3, 896, v3")
    a("v_and_b32 v4, 7, v0")
    a("v_lshl_add_u32 v3, v4, 4, v3")
    a(f"s_mul_i32 s32, s23, {112*896}")
    a("s_lshl_b32 s3, s21, 7")
    a("s_add_u32 s32, s32, s3")
    a("s_mul_i32 s34, s23, 14336")
    a("s_mov_b32 m0, s34")
    a("s_mov_b32 s36, 14")
    a.label("k3_dma")
    a("s_sub_u32 s36, s36, 1")
    a("buffer_load_dwordx4 v3, s[28:31], s32 offen lds")
    a("s_add_u32 s32, s32, 7168")
    a("s_add_u32 m0, m0, 1024")
    a("s_cmp_lg_u32 s36, 0")
    a("s_cbranch_scc1 k3_dma")
    a("v_mov_b32 v4, 0")
    a("v_mov_b32 v5, 0")
    a("v_lshlrev_b32 v6, 3, v0")
    a("ds_write_b64 v6, v[4:5] offset:57344")
    a("s_lshr_b32 s38, s23, 1")
    a("s_lshl_b32 s3, s20, 1")
    a("s_add_u32 s3, s3, s38")
    a("s_lshl_b32 s3, s3, 15")
    a(f"s_add_u32 s32, s3, {WS_OF}")
    AF = 32
    for st_ in range(32):
        a(f"s_add_u32 s33, s32, {st_*1024}")
        a(f"buffer_load_dwordx4 {v(AF+4*st_,4)}, v1, s[24:27], s33 offen")
    a("v_lshrrev_b32 v6, 5, v0")
    a("v_lshlrev_b32 v6, 2, v6")
    a("v_bfe_u32 v7, v0, 2, 2")
    a("v_add_u32 v6, v6, v7")
    a("v_lshlrev_b32 v6, 7, v6")
    a("v_and_b32 v7, 16, v0")
    a("v_and_b32 v8, 3, v0")
    a("v_lshl_add_u32 v7, v8, 2, v7")
    a("s_and_b32 s3, s23, 1")
    a("s_lshl_b32 s3, s3, 5")
    a("v_add_u32 v7, s3, v7")
    a("v_lshl_add_u32 v6, v7, 1, v6")
    a("s_waitcnt vmcnt(32) lgkmcnt(0)")
    a("s_barrier")
    ACC = 8
    BB = [24, 28]
    def rdW(st_):
        hd, f = st_ >> 1, st_ & 1
        off = (28 * hd + 16 * f) * 128
        b = BB[st_ & 1]
        a(f"ds_read_b64_tr_b16 {v(b,2)}, v6 offset:{off}")
        a(f"ds_read_b64_tr_b16 {v(b+2,2)}, v6 offset:{off+1024}")
    rdW(0)
    for st_ in range(32):
        if st_ + 1 < 32: rdW(st_ + 1)
        a(f"s_waitcnt vmcnt({31-st_}) lgkmcnt({2 if st_ + 1 < 32 else 0})")
        c = "0" if st_ == 0 else v(ACC, 16)
        a(f"{MF} {v(ACC,16)}, {v(AF+4*st_,4)}, {v(BB[st_&1],4)}, {c}")
    a("s_lshl_b32 s3, s20, 6")
    a("s_lshl_b32 s33, s38, 5")
    a("s_add_u32 s3, s3, s33")
    a("v_lshrrev_b32 v73, 5, v0")
    a("v_lshlrev_b32 v73, 4, v73")
    a("v_add_u32 v73, s3, v73")
    a("s_lshl_b32 s33, s21, 6")
    a("s_and_b32 s35, s23, 1")
    a("s_lshl_b32 s35, s35, 5")
    a("s_add_u32 s33, s33, s35")
    a("v_and_b32 v74, 31, v0")
    a("v_add_u32 v74, s33, v74")
    a("v_lshlrev_b32 v75, 2, v73")
    a(f"s_mov_b32 s60, {WS_G}")
    for q in range(4):
        a(f"buffer_load_dwordx4 {v(32+4*q,4)}, v75, s[24:27], s60 offen offset:{16*q}")
    srd(a, 40, 56, 2048*448*4)
    a("v_mul_u32_u24 v76, 1792, v73")
    a("v_lshl_add_u32 v76, v74, 2, v76")
    a("v_mov_b32 v77, v76")
    for r in range(16):
        a(f"buffer_load_dword v{48+r}, v77, s[40:43], 0 offen offset:{(r%2)*1792}")
        if r % 2 == 1 and r < 15: a(f"v_add_u32 v77, {2*1792}, v77")
    a("s_waitcnt vmcnt(0)")
    for r in range(16):
        a(f"v_fma_f32 v{48+r}, v{32+r}, v{ACC+r}, v{48+r}")
    for r in range(16):
        a(f"buffer_store_dword v{48+r}, v76, s[40:43], 0 offen offset:{(r%2)*1792}")
        if r % 2 == 1 and r < 15: a(f"v_add_u32 v76, {2*1792}, v76")
    a.label(END)
    a("s_endpgm")
    return name, 256, 57344 + 512, 168

def gen_empty(tag):
    def g(a):
        name = f"e{tag}_kernel"
        header(a, name)
        a("s_endpgm")
        return name, 256, 0, 16
    return g
KERNELS = {"k1": gen_k1, "k2a": gen_k2a, "k2b": gen_k2b, "k3": gen_k3, "e1": gen_empty(1), "e2": gen_empty(2), "e3": gen_empty(3)}


def build(which):
    a = Asm()
    infos = []
    for w in which:
        infos.append(KERNELS[w](a))
    text = a.text()
    probs = check_hazards(text)
    ref = open("gated_mix__grouped_kv_mqa__ssm_conv_s5__prompt.s.ref").read().split("\n")
    pre = []
    for ln in ref:
        if not ln.startswith(";") or "Override launch" in ln or "grid=ceil" in ln or "@launch" in ln:
            if not ln.startswith(";"): break
            continue
        pre.append(ln)
    head = "\n".join(pre) + "\n"
    head += "".join(f"; @launch kernel={n} grid=(256,1,1) block=({b},1,1) lds={l}\n" for (n, b, l, vg) in infos)
    out = head + '.amdgcn_target "amdgcn-amd-amdhsa--gfx950"\n.text\n' + text
    for (n, b, l, vg) in infos:
        out += descriptor(n, vg)
    return out, probs

if __name__ == "__main__":
    which = sys.argv[2].split(",")
    if len(sys.argv) > 3 and sys.argv[3] == "prof": PROF = True
    out, probs = build(which)
    open(sys.argv[1], "w").write(out)
    print("wrote", sys.argv[1], "hazards:", len(probs))
```

```python
import sys
from asmlib import Asm, v, s, check_hazards

NAME = "gated_mix__grouped_kv_mqa__ssm_conv_s5__prompt"
KA = dict(x=0, wq=8, wk=16, wv=24, wo=32, bx=40, lre=48, lim=56, bre=64, bim=72, cre=80, cim=88,
          logdt=96, dskip=104, gw=112, out=120, dbg=128, ws=136)
WS_QF = 0x000000
WS_KV = 0x200000
WS_OF = 0x240000
WS_HF = 0x440000
WS_G  = 0x7C0000
WS_E  = 0x7C4000
WS_FL = 0x7E0000
WS_Y  = 0x800000
WS_SIZE = 0x1000000
XBYTES = 2048 * 448 * 2
WBYTES = 448 * 448 * 2
WKBYTES = 448 * 28 * 2
QSCALE = 0x3E8B9E09
import struct, math
def f2u(x): return struct.unpack("<I", struct.pack("<f", x))[0]
QSCALE = f2u(math.log2(math.e) / math.sqrt(28.0))
LOG2E = f2u(math.log2(math.e))

def srd(a, dst, src, nbytes):
    a(f"s_mov_b32 s{dst}, s{src}")
    a(f"s_mov_b32 s{dst+1}, s{src+1}")
    a(f"s_mov_b32 s{dst+2}, {hex(nbytes)}")
    a(f"s_mov_b32 s{dst+3}, 0x00020000")

PROF = False
import os
X = set(os.environ.get('XF', '').split(','))
WS_PROF = 0xA00000
def stamp(a, slot):
    if not PROF: return
    a("s_memtime s[90:91]")
    a("s_memrealtime s[92:93]")
    a("s_waitcnt lgkmcnt(0)")
    a(f"s_mov_b32 s{62+2*slot}, s90")
    a(f"s_mov_b32 s{63+2*slot}, s92")
def stamp_flush(a, nslots, kidx):
    if not PROF: return
    a("s_lshl_b32 s90, s2, 4")
    a("s_add_u32 s90, s90, s22")
    a("s_lshl_b32 s90, s90, 7")
    a(f"s_add_u32 s90, s90, {WS_PROF + kidx*0x80000}")
    a("v_mov_b32 v4, 0")
    a("s_mov_b64 exec, 1")
    for i in range(nslots):
        a(f"v_mov_b32 v6, s{62+2*i}")
        a(f"v_mov_b32 v7, s{63+2*i}")
        a(f"buffer_store_dwordx2 v[6:7], v4, s[24:27], s90 offen offset:{8*i}")
        a("s_nop 1")
    a("s_waitcnt vmcnt(0)")

def header(a, name):
    a(f".globl {name}")
    a(".p2align 8")
    a(f".type {name},@function")
    a.label(name)

def descriptor(name, vgpr, sgpr=96):
    return f""".section .rodata,"a"
.p2align 6
.amdhsa_kernel {name}
  .amdhsa_next_free_vgpr {vgpr}
  .amdhsa_next_free_sgpr {sgpr}
  .amdhsa_accum_offset {((vgpr + 3) // 4) * 4}
  .amdhsa_group_segment_fixed_size 0
  .amdhsa_kernarg_size 144
  .amdhsa_user_sgpr_count 2
  .amdhsa_user_sgpr_kernarg_segment_ptr 1
  .amdhsa_system_sgpr_workgroup_id_x 1
.end_amdhsa_kernel
.text
"""

def decode_wg(a, s_rb, s_j2, exit_label):
    a(f"s_cmp_ge_u32 s2, 256")
    a(f"s_cbranch_scc1 {exit_label}")
    a(f"s_and_b32 s{s_rb}, s2, 7")
    a(f"s_lshl_b32 s{s_rb}, s{s_rb}, 2")
    a(f"s_lshr_b32 s{s_j2}, s2, 3")
    a(f"s_and_b32 s3, s{s_j2}, 3")
    a(f"s_add_u32 s{s_rb}, s{s_rb}, s3")
    a(f"s_lshr_b32 s{s_j2}, s{s_j2}, 2")

L_X = 0
L_WQ = 57344
L_WKV = 114688
L_GW = 143360
LDS_K1 = 147456

def xtile_lane_off(a, vd, vlane, vt0, vt1):
    a(f"v_lshrrev_b32 v{vt0}, 4, v{vlane}")
    a(f"v_and_b32 v{vt1}, 1, v{vt0}")
    a(f"v_lshlrev_b32 v{vt1}, 4, v{vt1}")
    a(f"v_lshrrev_b32 v{vd}, 5, v{vlane}")
    a(f"v_lshl_add_u32 v{vt1}, v{vd}, 2, v{vt1}")
    a(f"v_bfe_u32 v{vd}, v{vlane}, 2, 2")
    a(f"v_add_u32 v{vt1}, v{vt1}, v{vd}")
    a(f"v_mul_u32_u24 v{vt1}, 896, v{vt1}")
    a(f"v_and_b32 v{vd}, 3, v{vlane}")
    a(f"v_xor_b32 v{vd}, v{vd}, v{vt0}")
    a(f"v_lshl_add_u32 v{vd}, v{vd}, 4, v{vt1}")

def xfrag_addr(a, vd, vlane, vt0):
    a(f"v_bfe_u32 v{vt0}, v{vlane}, 2, 2")
    a(f"v_lshrrev_b32 v{vd}, 5, v{vlane}")
    a(f"v_xor_b32 v{vt0}, v{vt0}, v{vd}")
    a(f"v_lshlrev_b32 v{vt0}, 4, v{vt0}")
    a(f"v_and_b32 v{vd}, 31, v{vlane}")
    a(f"v_lshl_add_u32 v{vd}, v{vd}, 6, v{vt0}")

def tr_rowcol(a, vrow, vcol, vlane, vt):
    a(f"v_lshrrev_b32 v{vrow}, 5, v{vlane}")
    a(f"v_lshlrev_b32 v{vrow}, 3, v{vrow}")
    a(f"v_bfe_u32 v{vt}, v{vlane}, 2, 2")
    a(f"v_add_u32 v{vrow}, v{vrow}, v{vt}")
    a(f"v_and_b32 v{vcol}, 16, v{vlane}")
    a(f"v_and_b32 v{vt}, 3, v{vlane}")
    a(f"v_lshl_add_u32 v{vcol}, v{vt}, 2, v{vcol}")

def proj_loop(a, swap, acc, xe, xo, we, wo_, vxe, vxo, vw1, vw2, s_wstep, s_cnt, lab):
    def rd_even():
        a(f"ds_read_b128 {v(xe,4)}, v{vxe}")
        a(f"ds_read_b64_tr_b16 {v(we,2)}, v{vw1}")
        a(f"ds_read_b64_tr_b16 {v(we+2,2)}, v{vw2}")
        a(f"v_add_u32 v{vxe}, 0x1000, v{vxe}")
        a(f"v_add_u32 v{vw1}, s{s_wstep}, v{vw1}")
        a(f"v_add_u32 v{vw2}, s{s_wstep}, v{vw2}")
    def rd_odd():
        a(f"ds_read_b128 {v(xo,4)}, v{vxo}")
        a(f"ds_read_b64_tr_b16 {v(wo_,2)}, v{vw1}")
        a(f"ds_read_b64_tr_b16 {v(wo_+2,2)}, v{vw2}")
        a(f"v_add_u32 v{vxo}, 0x1000, v{vxo}")
        a(f"v_add_u32 v{vw1}, s{s_wstep}, v{vw1}")
        a(f"v_add_u32 v{vw2}, s{s_wstep}, v{vw2}")
    def mf(x, w):
        A, B = (x, w) if swap else (w, x)
        a(f"v_mfma_f32_32x32x16_bf16 {v(acc,16)}, {v(A,4)}, {v(B,4)}, {v(acc,16)}")
    rd_even(); rd_odd()
    a(f"s_mov_b32 s{s_cnt}, 14")
    a.label(lab)
    a("s_waitcnt lgkmcnt(3)")
    mf(xe, we)
    rd_even()
    a("s_waitcnt lgkmcnt(3)")
    mf(xo, wo_)
    rd_odd()
    a(f"s_sub_u32 s{s_cnt}, s{s_cnt}, 1")
    a(f"s_cmp_lg_u32 s{s_cnt}, 0")
    a(f"s_cbranch_scc1 {lab}")
    a("s_waitcnt lgkmcnt(0)")

def gen_k1(a):
    name = "k1_kernel"
    header(a, name)
    END = "k1_end"
    decode_wg(a, 20, 21, END)
    stamp(a, 0)
    a("s_load_dwordx4 s[4:7], s[0:1], 0")
    a("s_load_dwordx4 s[8:11], s[0:1], 16")
    a("s_load_dwordx2 s[12:13], s[0:1], 112")
    a("s_load_dwordx2 s[14:15], s[0:1], 136")
    a("v_and_b32 v1, 63, v0")
    a("v_lshrrev_b32 v2, 6, v0")
    a("s_nop 0")
    a("v_readfirstlane_b32 s22, v2")
    a("s_waitcnt lgkmcnt(0)")
    srd(a, 24, 14, WS_SIZE)
    a("s_cmp_lt_u32 s22, 4")
    a("s_cbranch_scc1 k1_dma_x")
    a("s_cmp_lt_u32 s22, 8")
    a("s_cbranch_scc1 k1_dma_wq")
    a("s_cmp_lt_u32 s21, 4")
    a("s_cbranch_scc1 k1_dma_wkv")
    a("s_cmp_lt_u32 s21, 6")
    a("s_cbranch_scc0 k1_dma_done")
    a("s_cmp_eq_u32 s22, 8")
    a("s_cbranch_scc0 k1_dma_done")
    srd(a, 28, 12, 896)
    a("v_lshlrev_b32 v3, 1, v1")
    for i in range(7):
        a(f"buffer_load_ushort v{10+i}, v3, s[28:31], 0 offen offset:{i*128}")
    a("v_lshlrev_b32 v4, 3, v1")
    a(f"v_add_u32 v4, {L_GW}, v4")
    a("s_waitcnt vmcnt(0)")
    for i in range(7):
        a(f"v_lshl_or_b32 v{20+2*i}, v{10+i}, 16, v{10+i}")
        a(f"v_mov_b32 v{21+2*i}, v{20+2*i}")
        a(f"ds_write_b64 v4, {v(20+2*i,2)} offset:{i*512}")
    a("s_branch k1_dma_done")
    a.label("k1_dma_wkv")
    a("s_cmp_lt_u32 s21, 2")
    a("s_cselect_b32 s28, s8, s10")
    a("s_cselect_b32 s29, s9, s11")
    a(f"s_mov_b32 s30, {WKBYTES}")
    a("s_mov_b32 s31, 0x00020000")
    a("v_lshlrev_b32 v3, 4, v1")
    a("s_sub_u32 s3, s22, 8")
    a("s_mul_i32 s32, s3, 7168")
    a("s_mov_b32 s33, 1024")
    a(f"s_add_u32 s34, s32, {L_WKV}")
    a("s_mov_b32 s35, 1024")
    a("s_mov_b32 s36, 7")
    a("s_branch k1_dma_go")
    a.label("k1_dma_wq")
    srd(a, 28, 6, WBYTES)
    a("v_lshrrev_b32 v3, 3, v1")
    a("v_mul_u32_u24 v3, 896, v3")
    a("v_and_b32 v4, 7, v1")
    a("v_lshl_add_u32 v3, v4, 4, v3")
    a("s_sub_u32 s3, s22, 4")
    a(f"s_mul_i32 s32, s3, {112*896}")
    a("s_mul_i32 s37, s21, 112")
    a("s_add_u32 s32, s32, s37")
    a("s_mov_b32 s33, 7168")
    a("s_mul_i32 s34, s3, 14336")
    a(f"s_add_u32 s34, s34, {L_WQ}")
    a("s_mov_b32 s35, 1024")
    a("s_mov_b32 s36, 14")
    a("s_branch k1_dma_go")
    a.label("k1_dma_x")
    srd(a, 28, 4, XBYTES)
    xtile_lane_off(a, 3, 1, 4, 5)
    a(f"s_mul_i32 s32, s20, {64*896}")
    a("s_lshr_b32 s3, s22, 1")
    a(f"s_mul_i32 s3, s3, {32*896}")
    a("s_add_u32 s32, s32, s3")
    a("s_and_b32 s3, s22, 1")
    a(f"s_mul_i32 s3, s3, {8*896}")
    a("s_add_u32 s32, s32, s3")
    a("s_mov_b32 s33, 64")
    a("s_lshl_b32 s34, s22, 10")
    a("s_mov_b32 s35, 4096")
    a("s_mov_b32 s36, 14")
    a.label("k1_dma_go")
    a("s_mov_b32 m0, s34")
    a.label("k1_dma_loop")
    a("s_sub_u32 s36, s36, 1")
    a("buffer_load_dwordx4 v3, s[28:31], s32 offen lds")
    a("s_add_u32 s32, s32, s33")
    a("s_add_u32 m0, m0, s35")
    a("s_cmp_lg_u32 s36, 0")
    a("s_cbranch_scc1 k1_dma_loop")
    a.label("k1_dma_done")
    a("s_cmp_eq_u32 s22, 11")
    a("s_cbranch_scc0 k1_noflag")
    a("s_cmp_lt_u32 s2, 24")
    a("s_cbranch_scc0 k1_noflag")
    a("s_lshl_b32 s3, s2, 8")
    a(f"s_add_u32 s3, s3, {WS_FL}")
    a("v_lshlrev_b32 v4, 2, v1")
    a("v_mov_b32 v5, 0")
    a("buffer_store_dword v5, v4, s[24:27], s3 offen")
    a.label("k1_noflag")
    xfrag_addr(a, 6, 1, 4)
    tr_rowcol(a, 8, 9, 1, 4)
    for i in range(16):
        a(f"v_mov_b32 v{16+i}, 0")
    stamp(a, 1)
    a("s_waitcnt vmcnt(0) lgkmcnt(0)")
    stamp(a, 2)
    a("s_barrier")
    stamp(a, 3)
    a("s_cmp_gt_u32 s22, 4")
    a(f"s_cbranch_scc1 {END}")
    a("s_cmp_eq_u32 s22, 4")
    a("s_cbranch_scc1 k1_job4")
    a("s_lshr_b32 s38, s22, 1")
    a("s_and_b32 s39, s22, 1")
    a("s_lshl_b32 s3, s38, 11")
    a("v_add_u32 v6, s3, v6")
    a("v_xor_b32 v7, 32, v6")
    a("v_lshlrev_b32 v10, 7, v8")
    a("v_lshl_add_u32 v10, v9, 1, v10")
    a("s_mul_i32 s3, s39, 56")
    a(f"s_add_u32 s3, s3, {L_WQ}")
    a("v_add_u32 v10, s3, v10")
    a("v_add_u32 v11, 512, v10")
    a("s_mov_b32 s40, 2048")
    proj_loop(a, False, 16, 32, 36, 40, 44, 6, 7, 10, 11, 40, 41, "k1_qloop")
    a("s_nop 7")
    a(f"s_mov_b32 s42, {hex(QSCALE)}")
    a("s_lshl_b32 s3, s21, 1")
    a("s_add_u32 s3, s3, s39")
    a("s_lshl_b32 s3, s3, 6")
    a("s_lshl_b32 s43, s20, 1")
    a("s_add_u32 s43, s43, s38")
    a("s_add_u32 s3, s3, s43")
    a("s_lshl_b32 s44, s3, 11")
    a("v_lshlrev_b32 v12, 4, v1")
    for i in range(16):
        a(f"v_mul_f32 v{16+i}, s42, v{16+i}")
    for i in range(8):
        a(f"v_cvt_pk_bf16_f32 v{32+i}, v{16+2*i}, v{17+2*i}")
    a("s_mov_b32 exec_lo, 0")
    a("v_mov_b32 v38, 0")
    a("v_mov_b32 v39, 0")
    a("s_mov_b32 exec_lo, -1")
    a("buffer_store_dwordx4 v[32:35], v12, s[24:27], s44 offen")
    a("buffer_store_dwordx4 v[36:39], v12, s[24:27], s44 offen offset:1024")
    a(f"s_branch {END}")
    a.label("k1_job4")
    a("s_cmp_ge_u32 s21, 6")
    a(f"s_cbranch_scc1 {END}")
    a("s_and_b32 s38, s21, 1")
    a("s_lshl_b32 s3, s38, 11")
    a("v_add_u32 v6, s3, v6")
    a("v_xor_b32 v7, 32, v6")
    a("s_lshl_b32 s43, s20, 1")
    a("s_add_u32 s43, s43, s38")
    a("v_lshlrev_b32 v12, 4, v1")
    a("s_cmp_ge_u32 s21, 4")
    a("s_cbranch_scc1 k1_gate")
    a("v_mul_u32_u24 v10, 56, v8")
    a("v_lshl_add_u32 v10, v9, 1, v10")
    a(f"v_add_u32 v10, {L_WKV}, v10")
    a("v_add_u32 v11, 224, v10")
    a(f"s_mov_b32 s40, {16*56}")
    a(f"s_lshl_b32 s44, s43, 12")
    a(f"s_add_u32 s44, s44, {WS_KV}")
    a("s_cmp_ge_u32 s21, 2")
    a("s_cbranch_scc1 k1_vjob")
    proj_loop(a, False, 16, 32, 36, 40, 44, 6, 7, 10, 11, 40, 41, "k1_kloop")
    a("s_nop 7")
    a("s_nop 3")
    for i in range(8):
        a(f"v_cvt_pk_bf16_f32 v{32+i}, v{16+2*i}, v{17+2*i}")
    a("s_mov_b32 exec_lo, 0")
    a("v_mov_b32 v38, 0x3f803f80")
    a("v_mov_b32 v39, 0x00003f80")
    a("s_mov_b32 exec_lo, -1")
    a("buffer_store_dwordx4 v[32:35], v12, s[24:27], s44 offen")
    a("buffer_store_dwordx4 v[36:39], v12, s[24:27], s44 offen offset:1024")
    a(f"s_branch {END}")
    a.label("k1_gate")
    a("v_lshlrev_b32 v10, 3, v8")
    a(f"v_add_u32 v10, {L_GW}, v10")
    a("v_add_u32 v11, 32, v10")
    a("s_mov_b32 s40, 128")
    a.label("k1_vjob")
    proj_loop(a, True, 16, 32, 36, 40, 44, 6, 7, 10, 11, 40, 41, "k1_vloop")
    a("s_nop 7")
    a("s_nop 3")
    a("s_cmp_ge_u32 s21, 4")
    a("s_cbranch_scc1 k1_gate_epi")
    for i in range(8):
        a(f"v_cvt_pk_bf16_f32 v{32+i}, v{16+2*i}, v{17+2*i}")
    a("v_and_b32 v13, 31, v1")
    a("v_cmp_eq_u32 vcc, 28, v13")
    a("v_mov_b32 v14, 0x3f803f80")
    a("s_nop 0")
    a("v_cndmask_b32 v14, 0, v14, vcc")
    a("v_cmp_lt_u32 vcc, 27, v13")
    a("s_nop 1")
    for i in range(8):
        a(f"v_cndmask_b32 v{32+i}, v{32+i}, v14, vcc")
    a("buffer_store_dwordx4 v[32:35], v12, s[24:27], s44 offen offset:2048")
    a("buffer_store_dwordx4 v[36:39], v12, s[24:27], s44 offen offset:3072")
    a(f"s_branch {END}")
    a.label("k1_gate_epi")
    a(f"s_mov_b32 s42, {hex(LOG2E)}")
    for i in range(16):
        a(f"v_mul_f32 v{16+i}, s42, v{16+i}")
    for i in range(16):
        a(f"v_exp_f32 v{16+i}, -v{16+i}")
    for i in range(16):
        a(f"v_add_f32 v{16+i}, 1.0, v{16+i}")
    for i in range(16):
        a(f"v_rcp_f32 v{16+i}, v{16+i}")
    a("v_lshrrev_b32 v13, 5, v1")
    a("v_lshlrev_b32 v13, 6, v13")
    a("s_lshl_b32 s44, s43, 7")
    a(f"s_add_u32 s44, s44, {WS_G}")
    a("v_and_b32 v14, 31, v1")
    a("v_cmp_eq_u32 vcc, 0, v14")
    a("s_and_saveexec_b64 s[46:47], vcc")
    for q in range(4):
        a(f"buffer_store_dwordx4 {v(16+4*q,4)}, v13, s[24:27], s44 offen offset:{16*q}")
    a.label(END)
    if PROF:
        a("s_cmp_ge_u32 s2, 256")
        a("s_cbranch_scc1 k1_end2")
        a("s_mov_b64 exec, -1")
        stamp(a, 4)
        a("s_waitcnt vmcnt(0)")
        stamp(a, 5)
        stamp_flush(a, 6, 0)
        a.label("k1_end2")
    a("s_endpgm")
    return name, 768, LDS_K1, 104


A_OP = 0
A_LP = 65536
A_CNT = 73728
LDS_K2A = 73728 + 256
AQ, AO, AS, AK, AV, APB = 8, 40, [104, 120], [136, 144], [152, 160], 4
MF = "v_mfma_f32_32x32x16_bf16"

def att_unit(a, u, side):
    g = u & 3; kt = u >> 2
    up = u - 1; un = u + 1
    cur = AS[u & 1]; prv = AS[(u + 1) & 1]
    Vp = AV[(up >> 2) & 1]; Op = AO + 16 * (up & 3)
    Kn = AK[(un >> 2) & 1]; Qn = AQ + 8 * (un & 3)
    side = list(side)
    def E(lo, hi):
        for j in range(lo, hi):
            a(f"v_exp_f32 v{cur+j}, v{cur+j}")
            if side:
                x = side.pop(0)
                if x: a(x)
    def pre(tag):
        while side and isinstance(side[0], tuple) and side[0][0] == tag:
            a(side.pop(0)[1])
    pre("q0")
    a(f"{MF} {v(Op,16)}, {v(Vp,4)}, {v(prv,4)}, {v(Op,16)}")
    E(0, 4)
    a(f"v_cvt_pk_bf16_f32 v{APB+2}, v{prv+12}, v{prv+13}")
    a(f"v_cvt_pk_bf16_f32 v{APB+3}, v{prv+14}, v{prv+15}")
    a(f"{MF} {v(prv,16)}, {v(Kn,4)}, {v(Qn,4)}, 0")
    E(4, 8)
    a(f"v_cvt_pk_bf16_f32 v{cur}, v{cur}, v{cur+1}")
    a(f"v_cvt_pk_bf16_f32 v{cur+1}, v{cur+2}, v{cur+3}")
    a(f"{MF} {v(prv,16)}, {v(Kn+4,4)}, {v(Qn+4,4)}, {v(prv,16)}")
    E(8, 12)
    a(f"v_cvt_pk_bf16_f32 v{cur+2}, v{cur+4}, v{cur+5}")
    a(f"v_cvt_pk_bf16_f32 v{cur+3}, v{cur+6}, v{cur+7}")
    a(f"{MF} {v(Op,16)}, {v(Vp+4,4)}, {v(APB,4)}, {v(Op,16)}")
    E(12, 16)
    a(f"v_cvt_pk_bf16_f32 v{APB}, v{cur+8}, v{cur+9}")
    a(f"v_cvt_pk_bf16_f32 v{APB+1}, v{cur+10}, v{cur+11}")
    assert not side, side

def gen_att(a, P, sc1="", bar=None):
    a("s_lshl_b32 s47, s21, 7")
    a("s_lshl_b32 s48, s20, 1")
    a("s_add_u32 s3, s47, s48")
    a("s_lshl_b32 s3, s3, 11")
    a(f"s_add_u32 s40, s3, {64*2048}")
    a(f"s_add_u32 s41, s3, 2048")
    a(f"s_add_u32 s42, s40, 2048")
    a(f"s_add_u32 s28, s24, {WS_KV}")
    a("s_addc_u32 s29, s25, 0")
    a(f"s_mov_b32 s30, {0x40000}")
    a("s_mov_b32 s31, 0x00020000")
    if "nowarm" not in X:
        a("s_lshr_b32 s52, s2, 3")
        a("s_lshl_b32 s52, s52, 3")
        a("s_add_u32 s52, s52, s22")
        a("s_lshl_b32 s52, s52, 10")
        a(f"buffer_load_dwordx4 {v(AV[1],4)}, v1, s[28:31], s52 offen{sc1}")
    for g, so in enumerate(("s3", "s40", "s41", "s42")):
        a(f"buffer_load_dwordx4 {v(AQ+8*g,4)}, v1, s[24:27], {so} offen{sc1}")
        a(f"buffer_load_dwordx4 {v(AQ+8*g+4,4)}, v1, s[24:27], {so} offen offset:1024{sc1}")
    a(f"buffer_load_dwordx4 {v(AS[1],4)}, v1, s[28:31], 0 offen{sc1}")
    a(f"buffer_load_dwordx4 {v(AS[1]+4,4)}, v1, s[28:31], 0 offen offset:1024{sc1}")
    a("s_lshl_b32 s43, s22, 15")
    a(f"buffer_load_dwordx4 {v(AK[0],4)}, v1, s[28:31], s43 offen{sc1}")
    a(f"buffer_load_dwordx4 {v(AK[0]+4,4)}, v1, s[28:31], s43 offen offset:1024{sc1}")
    a(f"buffer_load_dwordx4 {v(AV[0],4)}, v1, s[28:31], s43 offen offset:2048{sc1}")
    a(f"buffer_load_dwordx4 {v(AV[0]+4,4)}, v1, s[28:31], s43 offen offset:3072{sc1}")
    a("s_add_u32 s43, s43, 4096")
    a(f"buffer_load_dwordx4 {v(AK[1],4)}, v1, s[28:31], s43 offen{sc1}")
    a(f"buffer_load_dwordx4 {v(AK[1]+4,4)}, v1, s[28:31], s43 offen offset:1024{sc1}")
    stamp(a, 2)
    a("s_waitcnt vmcnt(6)")
    a("s_cmp_lg_u32 s51, 0")
    a(f"s_cbranch_scc1 {P}_haveshift")
    for g in range(4):
        a(f"{MF} {v(AO+16*g,16)}, {v(AS[1],4)}, {v(AQ+8*g,4)}, 0")
        a(f"{MF} {v(AO+16*g,16)}, {v(AS[1]+4,4)}, {v(AQ+8*g+4,4)}, {v(AO+16*g,16)}")
    a("s_nop 5")
    for g in range(4):
        o = AO + 16 * g
        a(f"v_max3_f32 v2, v{o}, v{o+1}, v{o+2}")
        for j in range(3, 15, 2):
            a(f"v_max3_f32 v2, v2, v{o+j}, v{o+j+1}")
        a(f"v_max_f32 v2, v2, v{o+15}")
        a("v_mov_b32 v3, v2")
        a("s_nop 1")
        a("v_permlane32_swap_b32 v2, v3")
        a("v_max_f32 v2, v2, v3")
        a("v_cvt_pk_bf16_f32 v2, -v2, 0")
        a("s_mov_b32 exec_lo, 0")
        a(f"v_mov_b32 v{AQ+8*g+6}, v2")
        a("s_mov_b32 exec_lo, -1")
    a.label(P + "_haveshift")
    for j in range(4): a(f"v_mov_b32 v{APB+j}, 0")
    for j in range(8): a(f"v_mov_b32 v{AV[1]+j}, 0")
    for j in (0, 1, 2, 3, 12, 13, 14, 15): a(f"v_mov_b32 v{AS[1]+j}, 0")
    for g in range(4):
        a(f"{MF} {v(AO+16*g,16)}, {v(AV[1],4)}, {v(APB,4)}, 0")
    a("s_waitcnt vmcnt(4)")
    a(f"{MF} {v(AS[0],16)}, {v(AK[0],4)}, {v(AQ,4)}, 0")
    a(f"{MF} {v(AS[0],16)}, {v(AK[0]+4,4)}, {v(AQ+4,4)}, {v(AS[0],16)}")
    a("s_mov_b32 s44, 0")
    a("s_nop 7")
    a("s_nop 1")
    stamp(a, 3)
    a(".p2align 3")
    a.label(P + "_loop")
    for u in range(8):
        g = u & 3; par = (u >> 2) & 1
        side = []
        if g == 1:
            side.append(("q0", "s_waitcnt vmcnt(2)"))
            side.append(f"buffer_load_dwordx4 {v(AV[par^1],4)}, v1, s[28:31], s43 offen offset:2048{sc1}")
            side.append(f"buffer_load_dwordx4 {v(AV[par^1]+4,4)}, v1, s[28:31], s43 offen offset:3072{sc1}")
            side.append("s_add_u32 s43, s43, 4096")
            if par == 0:
                side.append("s_cmp_eq_u32 s44, 3")
                side.append("s_cselect_b32 s30, 0, s30")
        if g == 3:
            side += [None, None, None, "s_waitcnt vmcnt(2)"]
            side.append(f"buffer_load_dwordx4 {v(AK[par],4)}, v1, s[28:31], s43 offen{sc1}")
            side.append(f"buffer_load_dwordx4 {v(AK[par]+4,4)}, v1, s[28:31], s43 offen offset:1024{sc1}")
            if par == 1:
                side += ["s_add_u32 s44, s44, 1", None, None, None, None, None, None, None, None, "s_cmp_lt_u32 s44, 4"]
        att_unit(a, u, side)
    a(f"s_cbranch_scc1 {P}_loop")
    prv = AS[1]
    a(f"{MF} {v(AO+48,16)}, {v(AV[1],4)}, {v(prv,4)}, {v(AO+48,16)}")
    a(f"v_cvt_pk_bf16_f32 v{APB+2}, v{prv+12}, v{prv+13}")
    a(f"v_cvt_pk_bf16_f32 v{APB+3}, v{prv+14}, v{prv+15}")
    a("s_nop 1")
    a(f"{MF} {v(AO+48,16)}, {v(AV[1]+4,4)}, {v(APB,4)}, {v(AO+48,16)}")
    stamp(a, 4)
    a("s_lshl_b32 s3, s22, 13")
    a(f"v_add_u32 v2, s3, v1")
    a("s_lshl_b32 s3, s22, 10")
    a(f"s_add_u32 s3, s3, {A_LP}")
    a("v_lshrrev_b32 v3, 2, v1")
    a("v_add_u32 v3, s3, v3")
    for g in range(4):
        o = AO + 16 * g
        if g == 3: a("s_nop 7")
        a(f"ds_write_b32 v3, v{o+12} offset:{g*256}")
        for j in range(8):
            a(f"v_cvt_pk_bf16_f32 v{AS[0]+8*g+j}, v{o+2*j}, v{o+2*j+1}")
        a(f"ds_write_b128 v2, {v(AS[0]+8*g,4)} offset:{g*2048}")
        a(f"ds_write_b128 v2, {v(AS[0]+8*g+4,4)} offset:{g*2048+1024}")
    a("s_waitcnt lgkmcnt(0)")
    if bar: bar()
    else: a("s_barrier")
    a("s_lshl_b32 s3, s22, 10")
    a("v_add_u32 v2, s3, v1")
    for w in range(8):
        a(f"ds_read_b128 {v(AO+4*w,4)}, v2 offset:{w*8192}")
    a("s_lshr_b32 s45, s22, 1")
    a("s_lshl_b32 s3, s45, 8")
    a(f"s_add_u32 s3, s3, {A_LP + 128}")
    a("v_lshrrev_b32 v3, 2, v1")
    a("v_and_b32 v3, 127, v3")
    a("v_add_u32 v3, s3, v3")
    for w in range(8):
        a(f"ds_read_b32 v{AO+32+w}, v3 offset:{w*1024}")
    a("s_mov_b32 s46, 0x00003f80")
    a("s_mov_b32 s49, 0x3f800000")
    acc = AO + 40
    for j in range(8): a(f"v_mov_b32 v{acc+j}, 0")
    for w in range(8):
        a(f"s_waitcnt lgkmcnt({15 - w})")
        for j in range(4):
            a(f"v_dot2c_f32_bf16 v{acc+2*j}, s46, v{AO+4*w+j}")
            a(f"v_dot2c_f32_bf16 v{acc+2*j+1}, s49, v{AO+4*w+j}")
    a("s_waitcnt lgkmcnt(0)")
    l = AO + 32
    a(f"v_add_f32 v{l}, v{l}, v{l+1}")
    a(f"v_add_f32 v{l+2}, v{l+2}, v{l+3}")
    a(f"v_add_f32 v{l+4}, v{l+4}, v{l+5}")
    a(f"v_add_f32 v{l+6}, v{l+6}, v{l+7}")
    a(f"v_add_f32 v{l}, v{l}, v{l+2}")
    a(f"v_add_f32 v{l+4}, v{l+4}, v{l+6}")
    a(f"v_add_f32 v{l}, v{l}, v{l+4}")
    a(f"v_rcp_f32 v{l+1}, v{l}")
    a("s_nop 0")
    for j in range(8): a(f"v_mul_f32 v{acc+j}, v{acc+j}, v{l+1}")
    for j in range(4): a(f"v_cvt_pk_bf16_f32 v{AO+j}, v{acc+2*j}, v{acc+2*j+1}")
    a("s_and_b32 s3, s22, 1")
    a("s_cmp_eq_u32 s3, 1")
    a("s_cselect_b32 exec_hi, -1, 0")
    a("s_mov_b32 exec_lo, 0")
    a(f"v_mov_b32 v{AO+2}, 0")
    a(f"v_mov_b32 v{AO+3}, 0")
    a("s_mov_b64 exec, -1")
    a("s_lshr_b32 s3, s45, 1")
    a("s_add_u32 s3, s3, s48")
    a("s_lshl_b32 s3, s3, 4")
    a("s_lshl_b32 s46, s21, 1")
    a("s_add_u32 s3, s3, s46")
    a("s_and_b32 s46, s45, 1")
    a("s_add_u32 s3, s3, s46")
    a("s_lshl_b32 s3, s3, 11")
    a("s_and_b32 s46, s22, 1")
    a("s_lshl_b32 s46, s46, 10")
    a("s_add_u32 s3, s3, s46")
    a(f"s_add_u32 s3, s3, {WS_OF}")
    a(f"buffer_store_dwordx4 {v(AO,4)}, v1, s[24:27], s3 offen{sc1}")

def gen_k2a(a):
    name = "k2a_kernel"
    header(a, name)
    END = "k2a_end"
    decode_wg(a, 20, 21, END)
    stamp(a, 0)
    a("s_load_dwordx2 s[14:15], s[0:1], 136")
    a("v_lshrrev_b32 v2, 6, v0")
    a("v_and_b32 v1, 63, v0")
    a("v_readfirstlane_b32 s22, v2")
    a("v_lshlrev_b32 v1, 4, v1")
    a("s_mov_b32 s51, 0")
    a("s_waitcnt lgkmcnt(0)")
    srd(a, 24, 14, WS_SIZE)
    stamp(a, 1)
    gen_att(a, "att")
    stamp(a, 5)
    stamp_flush(a, 6, 1)
    a.label(END)
    a("s_endpgm")
    return name, 512, LDS_K2A, 168

FL_E = WS_FL
FL_H = WS_FL + 0x800
FL_O = WS_FL + 0x1800
INV2PI = f2u(1.0 / (2.0 * math.pi))
B_EX = 114688
B_HT = 116736
LDS_K2B = 116736 + 16384

def plain_lane_off(a, vd, vlane, vt0):
    a(f"v_lshrrev_b32 v{vt0}, 4, v{vlane}")
    a(f"v_and_b32 v{vd}, 3, v{vlane}")
    a(f"v_xor_b32 v{vd}, v{vd}, v{vt0}")
    a(f"v_lshlrev_b32 v{vd}, 4, v{vd}")
    a(f"v_lshrrev_b32 v{vt0}, 2, v{vlane}")
    a(f"v_mul_u32_u24 v{vt0}, 896, v{vt0}")
    a(f"v_add_u32 v{vd}, v{vd}, v{vt0}")

def cpow(a, dr, di, va, vang, n, t0, t1):
    a(f"v_mul_f32 v{t0}, {n}, v{va}" if isinstance(n, str) else f"v_mul_f32 v{t0}, {hex(f2u(float(n)))}, v{va}")
    a(f"v_mul_f32 v{t1}, {n}, v{vang}" if isinstance(n, str) else f"v_mul_f32 v{t1}, {hex(f2u(float(n)))}, v{vang}")
    a(f"v_exp_f32 v{t0}, v{t0}")
    a(f"v_fract_f32 v{t1}, v{t1}")
    a("s_nop 0")
    a(f"v_cos_f32 v{dr}, v{t1}")
    a(f"v_sin_f32 v{di}, v{t1}")
    a("s_nop 0")
    a(f"v_mul_f32 v{dr}, v{dr}, v{t0}")
    a(f"v_mul_f32 v{di}, v{di}, v{t0}")

def cfma(a, hr, hi, lr, li, ur, ui, tr, ti):
    a(f"v_fma_f32 v{tr}, -v{li}, v{hi}, v{ur}")
    a(f"v_fma_f32 v{ti}, v{li}, v{hr}, v{ui}")
    a(f"v_fma_f32 v{hr}, v{lr}, v{hr}, v{tr}")
    a(f"v_fma_f32 v{hi}, v{lr}, v{hi}, v{ti}")

def gen_ssm(a, P, bar, sc1=" sc1", flagval="1"):
    XF = 56; ARE, AIM = 8, 24
    stamp(a, 0)
    a("s_load_dwordx2 s[4:5], s[0:1], 0")
    a("s_load_dwordx4 s[8:11], s[0:1], 48")
    a("s_load_dwordx4 s[12:15], s[0:1], 64")
    a("s_load_dwordx4 s[16:19], s[0:1], 80")
    a("s_load_dwordx4 s[52:55], s[0:1], 96")
    a("s_load_dwordx2 s[56:57], s[0:1], 120")
    xtile_lane_off(a, 3, 0, 4, 5)
    a("s_waitcnt lgkmcnt(0)")
    srd(a, 28, 4, XBYTES)
    a(f"s_mul_i32 s32, s20, {64*896}")
    a("s_lshr_b32 s3, s23, 1")
    a(f"s_mul_i32 s3, s3, {32*896}")
    a("s_add_u32 s32, s32, s3")
    a("s_and_b32 s3, s23, 1")
    a(f"s_mul_i32 s3, s3, {8*896}")
    a("s_add_u32 s32, s32, s3")
    a("s_lshl_b32 s34, s23, 10")
    a("s_mov_b32 m0, s34")
    a("s_mov_b32 s36, 14")
    a.label(P + "_xdma")
    a("s_sub_u32 s36, s36, 1")
    a("buffer_load_dwordx4 v3, s[28:31], s32 offen lds")
    a("s_add_u32 s32, s32, 64")
    a("s_add_u32 m0, m0, 4096")
    a("s_cmp_lg_u32 s36, 0")
    a(f"s_cbranch_scc1 {P}_xdma")
    a("s_lshl_b32 s37, s21, 1")
    a("s_and_b32 s3, s23, 1")
    a("s_add_u32 s37, s37, s3")
    a("v_and_b32 v4, 31, v0")
    a("s_lshl_b32 s3, s37, 6")
    a("v_lshl_add_u32 v4, v4, 1, s3")
    srd(a, 40, 8, 896);  a("buffer_load_ushort v8, v4, s[40:43], 0 offen")
    srd(a, 44, 10, 896); a("buffer_load_ushort v9, v4, s[44:47], 0 offen")
    srd(a, 48, 52, 896); a("buffer_load_ushort v10, v4, s[48:51], 0 offen")
    xfrag_addr(a, 6, 0, 5)
    a("s_lshr_b32 s38, s23, 1")
    a("s_lshl_b32 s3, s38, 11")
    a("v_add_u32 v6, s3, v6")
    a("v_xor_b32 v7, 32, v6")
    a("s_waitcnt vmcnt(0)")
    bar()
    stamp(a, 1)
    for j in range(28):
        a(f"ds_read_b128 {v(XF+4*j,4)}, v{6 + (j&1)} offset:{(j>>1)*4096}")
        if j in (11, 21): a("s_waitcnt lgkmcnt(2)")
    a("v_lshlrev_b32 v8, 16, v8")
    a("v_lshlrev_b32 v9, 16, v9")
    a("v_lshlrev_b32 v10, 16, v10")
    a(f"v_mul_f32 v10, {hex(LOG2E)}, v10")
    a("v_exp_f32 v10, v10")
    a("s_nop 0")
    a("v_cvt_pk_bf16_f32 v10, v10, v10")
    a("v_lshlrev_b32 v10, 16, v10")
    a("v_mul_f32 v11, v10, v8")
    a("v_mul_f32 v12, v10, v9")
    a(f"v_mul_f32 v11, {hex(LOG2E)}, v11")
    a(f"v_mul_f32 v12, {hex(INV2PI)}, v12")
    cpow(a, 2, 3, 11, 12, "1.0", 13, 14)
    a("v_add_f32 v13, -1.0, v2")
    a("v_mul_f32 v14, v8, v8")
    a("v_fma_f32 v14, v9, v9, v14")
    a("v_rcp_f32 v14, v14")
    a("v_mul_f32 v15, v13, v8")
    a("v_fma_f32 v15, v3, v9, v15")
    a("v_mul_f32 v16, v3, v8")
    a("v_fma_f32 v16, -v13, v9, v16")
    a("v_mul_f32 v4, v15, v14")
    a("v_mul_f32 v5, v16, v14")
    a("s_waitcnt lgkmcnt(0)")
    bar()
    stamp(a, 2)
    a("s_and_b32 s3, s23, 1")
    a("s_cmp_eq_u32 s3, 0")
    a("s_cselect_b32 s28, s12, s14")
    a("s_cselect_b32 s29, s13, s15")
    a(f"s_mov_b32 s30, {WBYTES}")
    plain_lane_off(a, 8, 0, 9)
    a("s_lshl_b32 s3, s21, 1")
    a("s_add_u32 s3, s3, s38")
    a(f"s_mul_i32 s32, s3, {32*896}")
    a("s_lshl_b32 s34, s23, 11")
    a("s_mov_b32 m0, s34")
    a("s_mov_b32 s36, 14")
    a.label(P + "_bdma")
    a(f"s_add_u32 s33, s32, {16*896}")
    a("buffer_load_dwordx4 v8, s[28:31], s32 offen lds")
    a("s_add_u32 m0, m0, 1024")
    a("s_sub_u32 s36, s36, 1")
    a("buffer_load_dwordx4 v8, s[28:31], s33 offen lds")
    a("s_add_u32 s32, s32, 64")
    a(f"s_add_u32 m0, m0, {8192-1024}")
    a("s_cmp_lg_u32 s36, 0")
    a(f"s_cbranch_scc1 {P}_bdma")
    xfrag_addr(a, 6, 0, 8)
    a("s_and_b32 s3, s23, 1")
    a("s_lshl_b32 s3, s3, 12")
    a("v_add_u32 v6, s3, v6")
    a("v_xor_b32 v7, 32, v6")
    a("s_waitcnt vmcnt(0)")
    bar()
    stamp(a, 3)
    BB = [40, 48]
    def rdB(j):
        b = BB[j & 1]
        if j in (16, 17): a(f"v_add_u32 v{6+(j&1)}, 0x10000, v{6+(j&1)}")
        o = (j >> 1) * 8192 - (65536 if j >= 16 else 0)
        a(f"ds_read_b128 {v(b,4)}, v{6+(j&1)} offset:{o}")
        a(f"ds_read_b128 {v(b+4,4)}, v{6+(j&1)} offset:{o+2048}")
    rdB(0); rdB(1)
    for j in range(28):
        b = BB[j & 1]
        a("s_waitcnt lgkmcnt(2)" if j < 27 else "s_waitcnt lgkmcnt(0)")
        c1 = "0" if j == 0 else v(ARE,16); c2 = "0" if j == 0 else v(AIM,16)
        a(f"{MF} {v(ARE,16)}, {v(XF+4*j,4)}, {v(b,4)}, {c1}")
        a(f"{MF} {v(AIM,16)}, {v(XF+4*j,4)}, {v(b+4,4)}, {c2}")
        if j + 2 < 28: rdB(j + 2)
    stamp(a, 4)
    def csq(dr, di, sr, si):
        a(f"v_mul_f32 v46, v{si}, v{si}")
        a(f"v_mul_f32 v47, v{sr}, v{si}")
        a(f"v_fma_f32 v{dr}, v{sr}, v{sr}, -v46")
        a(f"v_add_f32 v{di}, v47, v47")
    csq(40, 41, 2, 3)
    for _ in range(3): csq(40, 41, 40, 41)
    csq(42, 43, 40, 41); csq(42, 43, 42, 43)
    csq(44, 45, 42, 43)
    for _ in range(3): csq(44, 45, 44, 45)
    for r in range(16):
        a(f"v_mul_f32 v46, v5, v{AIM+r}")
        a(f"v_mul_f32 v47, v5, v{ARE+r}")
        a(f"v_fma_f32 v{ARE+r}, v4, v{ARE+r}, -v46")
        a(f"v_fma_f32 v{AIM+r}, v4, v{AIM+r}, v47")
    a(f"v_mov_b32 v48, v{ARE}")
    a(f"v_mov_b32 v49, v{AIM}")
    for r in range(1, 16):
        cfma(a, 48, 49, 2, 3, ARE + r, AIM + r, 46, 47)
    a("v_and_b32 v50, 31, v0")
    a("v_lshlrev_b32 v50, 3, v50")
    a("s_and_b32 s3, s23, 1")
    a("s_lshl_b32 s3, s3, 10")
    a(f"s_add_u32 s3, s3, {B_EX}")
    a("v_add_u32 v50, s3, v50")
    a("v_lshrrev_b32 v51, 5, v0")
    a("s_lshl_b32 s3, s38, 1")
    a("v_add_u32 v51, s3, v51")
    a("v_lshl_add_u32 v52, v51, 8, v50")
    a("ds_write_b64 v52, v[48:49]")
    a("s_waitcnt lgkmcnt(0)")
    bar()
    for c in range(4):
        a(f"ds_read_b64 {v(56+2*c,2)}, v50 offset:{c*256}")
    a("s_waitcnt lgkmcnt(0)")
    a("v_mov_b32 v64, v56")
    a("v_mov_b32 v65, v57")
    for c in range(1, 4):
        cfma(a, 64, 65, 40, 41, 56 + 2*c, 57 + 2*c, 46, 47)
    a("s_cmp_eq_u32 s38, 1")
    a(f"s_cbranch_scc0 {P}_nopub")
    a("v_and_b32 v66, 31, v0")
    a("v_lshlrev_b32 v66, 3, v66")
    a(f"s_mul_i32 s3, s20, {448*8}")
    a("s_lshl_b32 s33, s37, 8")
    a("s_add_u32 s3, s3, s33")
    a(f"s_add_u32 s3, s3, {WS_E}")
    a("s_mov_b32 exec_hi, 0")
    a(f"buffer_store_dwordx2 v[64:65], v66, s[24:27], s3 offen{sc1}")
    a("s_waitcnt vmcnt(0)")
    a("s_lshl_b32 s3, s37, 5")
    a("s_add_u32 s3, s3, s20")
    a("s_lshl_b32 s3, s3, 2")
    a(f"s_add_u32 s3, s3, {FL_E}")
    a("s_mov_b64 exec, 1")
    a(f"v_mov_b32 v66, {flagval}")
    a("v_mov_b32 v67, 0")
    a(f"buffer_store_dword v66, v67, s[24:27], s3 offen{sc1}")
    a("s_mov_b64 exec, -1")
    a.label(P + "_nopub")
    stamp(a, 5)
    a("v_and_b32 v66, 31, v0")
    a("v_lshlrev_b32 v67, 2, v66")
    a("s_lshl_b32 s3, s37, 7")
    a(f"s_add_u32 s3, s3, {FL_E}")
    a("v_cmp_gt_u32 s[58:59], s20, v66")
    a.label(P + "_pollE")
    a(f"buffer_load_dword v68, v67, s[24:27], s3 offen{sc1}")
    a("s_waitcnt vmcnt(0)")
    a(f"v_cmp_ne_u32 vcc, {flagval}, v68")
    a("s_and_b64 vcc, vcc, s[58:59]")
    a(f"s_cbranch_vccz {P}_gotE")
    a("s_sleep 2")
    a(f"s_branch {P}_pollE")
    a.label(P + "_gotE")
    stamp(a, 6)
    a(f"s_add_u32 s28, s24, {WS_E}")
    a("s_addc_u32 s29, s25, 0")
    a(f"s_mov_b32 s30, {32*448*8}")
    a("v_lshrrev_b32 v67, 5, v0")
    a("v_lshlrev_b32 v67, 4, v67")
    a("v_sub_u32 v67, s20, v67")
    a("v_add_u32 v67, -1, v67")
    a(f"s_mov_b32 s3, {448*8}")
    a("v_mul_lo_u32 v67, v67, s3")
    a("v_lshlrev_b32 v66, 3, v66")
    a("s_lshl_b32 s33, s37, 8")
    a("v_add3_u32 v67, v67, v66, s33")
    for i in range(16):
        a(f"buffer_load_dwordx2 {v(72+2*i,2)}, v67, s[28:31], 0 offen{sc1}")
        if i < 15: a(f"v_subrev_u32 v67, {448*8}, v67")
    a("s_waitcnt vmcnt(0)")
    a("v_mov_b32 v68, v102")
    a("v_mov_b32 v69, v103")
    for i in range(14, -1, -1):
        cfma(a, 68, 69, 42, 43, 72 + 2*i, 73 + 2*i, 46, 47)
    a("v_mov_b32 v70, v68")
    a("v_mov_b32 v71, v69")
    a("v_mov_b32 v72, v68")
    a("v_mov_b32 v73, v69")
    a("s_nop 1")
    a("v_permlane32_swap_b32 v70, v72")
    a("v_permlane32_swap_b32 v71, v73")
    cfma(a, 72, 73, 44, 45, 70, 71, 46, 47)
    for cp in range(3):
        a("v_mov_b32 v74, v72")
        a("v_mov_b32 v75, v73")
        cfma(a, 74, 75, 40, 41, 56 + 2*cp, 57 + 2*cp, 46, 47)
        a(f"v_cmp_lt_u32 vcc, {cp}, v51")
        a("s_nop 1")
        a("v_cndmask_b32 v72, v72, v74, vcc")
        a("v_cndmask_b32 v73, v73, v75, vcc")
    a("s_lshl_b32 s3, s23, 12")
    a(f"s_add_u32 s3, s3, {B_HT}")
    a("v_and_b32 v66, 31, v0")
    a("v_lshlrev_b32 v66, 1, v66")
    a("v_lshrrev_b32 v67, 5, v0")
    a("v_lshl_add_u32 v66, v67, 8, v66")
    a("v_add_u32 v66, s3, v66")
    for r in range(16):
        cfma(a, 72, 73, 2, 3, ARE + r, AIM + r, 46, 47)
        a("v_cvt_pk_bf16_f32 v76, v72, -v73")
        slot = (r & 3) + 8 * (r >> 2)
        a(f"ds_write_b16 v66, v76 offset:{slot*64}")
        a(f"ds_write_b16_d16_hi v66, v76 offset:{2048+slot*64}")
    a("v_and_b32 v67, 31, v0")
    a("v_lshlrev_b32 v67, 6, v67")
    a("v_lshrrev_b32 v68, 5, v0")
    a("v_lshl_add_u32 v67, v68, 4, v67")
    a("v_add_u32 v67, s3, v67")
    a("s_waitcnt lgkmcnt(0)")
    for part in range(2):
        for jj in range(2):
            a(f"ds_read_b128 {v(80+8*part+4*jj,4)}, v67 offset:{part*2048+jj*32}")
    a("s_lshl_b32 s3, s20, 1")
    a("s_add_u32 s3, s3, s38")
    a("s_mul_i32 s3, s3, 56")
    a("s_lshl_b32 s33, s37, 1")
    a("s_add_u32 s3, s3, s33")
    a("s_lshl_b32 s3, s3, 10")
    a(f"s_add_u32 s3, s3, {WS_HF}")
    a(f"s_add_u32 s33, s3, {28*1024}")
    a("s_waitcnt lgkmcnt(0)")
    a(f"buffer_store_dwordx4 {v(80,4)}, v1, s[24:27], s3 offen{sc1}")
    a(f"buffer_store_dwordx4 {v(84,4)}, v1, s[24:27], s3 offen offset:1024{sc1}")
    a(f"buffer_store_dwordx4 {v(88,4)}, v1, s[24:27], s33 offen{sc1}")
    a(f"buffer_store_dwordx4 {v(92,4)}, v1, s[24:27], s33 offen offset:1024{sc1}")
    a("s_waitcnt vmcnt(0)")
    stamp(a, 7)
    a("s_lshl_b32 s3, s20, 5")
    a("s_lshl_b32 s33, s21, 2")
    a("s_add_u32 s3, s3, s33")
    a("s_add_u32 s3, s3, s23")
    a("s_lshl_b32 s3, s3, 2")
    a(f"s_add_u32 s3, s3, {FL_H}")
    a("s_mov_b64 exec, 1")
    a(f"v_mov_b32 v66, {flagval}")
    a("v_mov_b32 v67, 0")
    a(f"buffer_store_dword v66, v67, s[24:27], s3 offen{sc1}")
    a("s_mov_b64 exec, -1")
    bar()
    a("s_lshr_b32 s3, s23, 1")
    a("s_cmp_eq_u32 s3, 0")
    a("s_cselect_b32 s28, s16, s18")
    a("s_cselect_b32 s29, s17, s19")
    a(f"s_mov_b32 s30, {WBYTES}")
    plain_lane_off(a, 8, 0, 9)
    a(f"s_mul_i32 s32, s21, {64*896}")
    a("s_and_b32 s3, s23, 1")
    a("s_mul_i32 s3, s3, 448")
    a("s_add_u32 s32, s32, s3")
    a("s_mul_i32 s34, s23, 28672")
    a("s_mov_b32 m0, s34")
    a("s_mov_b32 s36, 7")
    a.label(P + "_cdma")
    for q in range(4):
        a(f"s_add_u32 s33, s32, {q*16*896}")
        a("buffer_load_dwordx4 v8, s[28:31], s33 offen lds")
        a("s_add_u32 m0, m0, 1024")
    a("s_add_u32 s32, s32, 64")
    a("s_sub_u32 s36, s36, 1")
    a("s_cmp_lg_u32 s36, 0")
    a(f"s_cbranch_scc1 {P}_cdma")
    stamp(a, 8)
    a("v_lshlrev_b32 v67, 2, v0")
    a("s_lshl_b32 s3, s20, 7")
    a(f"s_add_u32 s3, s3, {FL_H}")
    a("v_cmp_gt_u32 s[58:59], 28, v0")
    a.label(P + "_pollH")
    a(f"buffer_load_dword v68, v67, s[24:27], s3 offen{sc1}")
    a("s_waitcnt vmcnt(0)")
    a(f"v_cmp_ne_u32 vcc, {flagval}, v68")
    a("s_and_b64 vcc, vcc, s[58:59]")
    a(f"s_cbranch_vccz {P}_gotH")
    a("s_sleep 2")
    a(f"s_branch {P}_pollH")
    a.label(P + "_gotH")
    stamp(a, 9)
    ACC = 8
    a("s_lshl_b32 s3, s20, 1")
    a("s_mul_i32 s3, s3, 56")
    a("s_mul_i32 s33, s23, 14")
    a("s_add_u32 s3, s3, s33")
    a("s_lshl_b32 s3, s3, 10")
    a(f"s_add_u32 s32, s3, {WS_HF}")
    a(f"s_add_u32 s33, s32, {56*1024}")
    AF = 96
    xfrag_addr(a, 6, 0, 8)
    a("v_add_u32 v6, s34, v6")
    a("v_xor_b32 v7, 32, v6")
    CB = [72, 80]
    for half in range(2):
        for sl in range(7):
            st_ = half * 7 + sl
            a(f"s_add_u32 s35, s32, {st_*1024}")
            a(f"s_add_u32 s36, s33, {st_*1024}")
            a(f"buffer_load_dwordx4 {v(AF+8*sl,4)}, v1, s[24:27], s35 offen{sc1}")
            a(f"buffer_load_dwordx4 {v(AF+8*sl+4,4)}, v1, s[24:27], s36 offen{sc1}")
        def rdC(st_):
            b = CB[st_ & 1]
            a(f"ds_read_b128 {v(b,4)}, v{6+(st_&1)} offset:{(st_>>1)*4096}")
            a(f"ds_read_b128 {v(b+4,4)}, v{6+(st_&1)} offset:{(st_>>1)*4096+2048}")
        if half == 0:
            rdC(0)
        for sl in range(7):
            st_ = half * 7 + sl
            b = CB[st_ & 1]
            if st_ + 1 < 14: rdC(st_ + 1)
            a(f"s_waitcnt vmcnt({12-2*sl}) lgkmcnt({2 if st_ + 1 < 14 else 0})")
            for rt in range(2):
                for ct in range(2):
                    acc = ACC + 16 * (2 * rt + ct)
                    c = "0" if st_ == 0 else v(acc, 16)
                    a(f"{MF} {v(acc,16)}, {v(AF+8*sl+4*rt,4)}, {v(b+4*ct,4)}, {c}")
    stamp(a, 10)
    bar()
    a("s_nop 7")
    a("s_lshl_b32 s3, s23, 12")
    a("v_add_u32 v72, s3, v1")
    for t in range(4):
        for q in range(4):
            a(f"ds_write_b128 v72, {v(ACC+16*t+4*q,4)} offset:{t*16384+q*1024}")
    a("s_waitcnt lgkmcnt(0)")
    bar()
    a("s_lshl_b32 s3, s23, 14")
    a("v_add_u32 v72, s3, v1")
    for src in range(4):
        for q in range(4):
            a(f"ds_read_b128 {v(96+16*src+4*q,4)}, v72 offset:{src*4096+q*1024}")
    a("s_lshl_b32 s3, s20, 6")
    a("s_lshl_b32 s33, s38, 5")
    a("s_add_u32 s3, s3, s33")
    a("v_lshrrev_b32 v73, 5, v0")
    a("v_lshlrev_b32 v73, 4, v73")
    a("v_add_u32 v73, s3, v73")
    a("s_lshl_b32 s33, s21, 6")
    a("s_and_b32 s35, s23, 1")
    a("s_lshl_b32 s35, s35, 5")
    a("s_add_u32 s33, s33, s35")
    a("v_and_b32 v74, 31, v0")
    a("v_add_u32 v74, s33, v74")
    a("v_lshlrev_b32 v75, 2, v73")
    for q in range(4):
        a(f"buffer_load_dwordx4 {v(8+4*q,4)}, v75, s[24:27], s60 offen offset:{16*q}")
    srd(a, 28, 4, XBYTES)
    a("v_mul_u32_u24 v76, 896, v73")
    a("v_lshl_add_u32 v76, v74, 1, v76")
    for r in range(16):
        a(f"buffer_load_ushort v{24+r}, v76, s[28:31], 0 offen offset:{(r%4)*896}" )
        if r % 4 == 3 and r < 15: a(f"v_add_u32 v76, {4*896}, v76")
    srd(a, 40, 54, 896)
    a("v_lshlrev_b32 v77, 1, v74")
    a("buffer_load_ushort v78, v77, s[40:43], 0 offen")
    a("s_waitcnt lgkmcnt(0)")
    for r in range(16):
        a(f"v_add_f32 v{96+r}, v{96+r}, v{112+r}")
        a(f"v_add_f32 v{128+r}, v{128+r}, v{144+r}")
    for r in range(16):
        a(f"v_add_f32 v{96+r}, v{96+r}, v{128+r}")
    a("s_waitcnt vmcnt(0)")
    a("v_lshlrev_b32 v78, 16, v78")
    srd(a, 40, 56, 2048*448*4)
    a("v_mul_u32_u24 v76, 1792, v73")
    a("v_lshl_add_u32 v76, v74, 2, v76")
    for r in range(16):
        a(f"v_lshlrev_b32 v{24+r}, 16, v{24+r}")
        a(f"v_mul_f32 v{24+r}, v{24+r}, v78")
        a(f"v_fma_f32 v{24+r}, 2.0, v{96+r}, v{24+r}")
        a(f"v_sub_f32 v{8+r}, 1.0, v{8+r}")
        a(f"v_mul_f32 v{24+r}, v{24+r}, v{8+r}")
    for r in range(16):
        a(f"buffer_store_dword v{24+r}, v76, s[40:43], 0 offen offset:{(r%2)*1792}")
        if r % 2 == 1 and r < 15: a(f"v_add_u32 v76, {2*1792}, v76")

def gen_k2b(a):
    name = "k2b_kernel"
    header(a, name)
    END = "k2b_end"
    decode_wg(a, 20, 21, END)
    a("s_cmp_eq_u32 s21, 7")
    a(f"s_cbranch_scc1 {END}")
    a("s_load_dwordx2 s[14:15], s[0:1], 136")
    a("v_lshrrev_b32 v2, 6, v0")
    a("v_and_b32 v0, 63, v0")
    a("v_readfirstlane_b32 s23, v2")
    a("v_lshlrev_b32 v1, 4, v0")
    a("s_waitcnt lgkmcnt(0)")
    srd(a, 24, 14, WS_SIZE)
    a(f"s_mov_b32 s60, {WS_G}")
    gen_ssm(a, "ssm", lambda: a("s_barrier"))
    stamp(a, 11)
    a("s_waitcnt vmcnt(0)")
    stamp(a, 12)
    if PROF: a("s_mov_b32 s22, s23")
    stamp_flush(a, 13, 2)
    a.label(END)
    a("s_endpgm")
    return name, 256, LDS_K2B, 168

def gen_k3(a):
    name = "k3_kernel"
    header(a, name)
    END = "k3_end"
    decode_wg(a, 20, 21, END)
    a("s_cmp_eq_u32 s21, 7")
    a(f"s_cbranch_scc1 {END}")
    a("s_load_dwordx2 s[14:15], s[0:1], 136")
    a("s_load_dwordx2 s[4:5], s[0:1], 32")
    a("s_load_dwordx2 s[56:57], s[0:1], 120")
    a("v_lshrrev_b32 v2, 6, v0")
    a("v_and_b32 v0, 63, v0")
    a("v_readfirstlane_b32 s23, v2")
    a("v_lshlrev_b32 v1, 4, v0")
    a("s_waitcnt lgkmcnt(0)")
    srd(a, 24, 14, WS_SIZE)
    srd(a, 28, 4, WBYTES)
    a("v_lshrrev_b32 v3, 3, v0")
    a("v_mul_u32_u24 v3, 896, v3")
    a("v_and_b32 v4, 7, v0")
    a("v_lshl_add_u32 v3, v4, 4, v3")
    a(f"s_mul_i32 s32, s23, {112*896}")
    a("s_lshl_b32 s3, s21, 7")
    a("s_add_u32 s32, s32, s3")
    a("s_mul_i32 s34, s23, 14336")
    a("s_mov_b32 m0, s34")
    a("s_mov_b32 s36, 14")
    a.label("k3_dma")
    a("s_sub_u32 s36, s36, 1")
    a("buffer_load_dwordx4 v3, s[28:31], s32 offen lds")
    a("s_add_u32 s32, s32, 7168")
    a("s_add_u32 m0, m0, 1024")
    a("s_cmp_lg_u32 s36, 0")
    a("s_cbranch_scc1 k3_dma")
    a("v_mov_b32 v4, 0")
    a("v_mov_b32 v5, 0")
    a("v_lshlrev_b32 v6, 3, v0")
    a("ds_write_b64 v6, v[4:5] offset:57344")
    a("s_lshr_b32 s38, s23, 1")
    a("s_lshl_b32 s3, s20, 1")
    a("s_add_u32 s3, s3, s38")
    a("s_lshl_b32 s3, s3, 15")
    a(f"s_add_u32 s32, s3, {WS_OF}")
    AF = 32
    for st_ in range(32):
        a(f"s_add_u32 s33, s32, {st_*1024}")
        a(f"buffer_load_dwordx4 {v(AF+4*st_,4)}, v1, s[24:27], s33 offen")
    a("v_lshrrev_b32 v6, 5, v0")
    a("v_lshlrev_b32 v6, 2, v6")
    a("v_bfe_u32 v7, v0, 2, 2")
    a("v_add_u32 v6, v6, v7")
    a("v_lshlrev_b32 v6, 7, v6")
    a("v_and_b32 v7, 16, v0")
    a("v_and_b32 v8, 3, v0")
    a("v_lshl_add_u32 v7, v8, 2, v7")
    a("s_and_b32 s3, s23, 1")
    a("s_lshl_b32 s3, s3, 5")
    a("v_add_u32 v7, s3, v7")
    a("v_lshl_add_u32 v6, v7, 1, v6")
    a("s_waitcnt vmcnt(32) lgkmcnt(0)")
    a("s_barrier")
    ACC = 8
    BB = [24, 28]
    def rdW(st_):
        hd, f = st_ >> 1, st_ & 1
        off = (28 * hd + 16 * f) * 128
        b = BB[st_ & 1]
        a(f"ds_read_b64_tr_b16 {v(b,2)}, v6 offset:{off}")
        a(f"ds_read_b64_tr_b16 {v(b+2,2)}, v6 offset:{off+1024}")
    rdW(0)
    for st_ in range(32):
        if st_ + 1 < 32: rdW(st_ + 1)
        a(f"s_waitcnt vmcnt({31-st_}) lgkmcnt({2 if st_ + 1 < 32 else 0})")
        c = "0" if st_ == 0 else v(ACC, 16)
        a(f"{MF} {v(ACC,16)}, {v(AF+4*st_,4)}, {v(BB[st_&1],4)}, {c}")
    a("s_lshl_b32 s3, s20, 6")
    a("s_lshl_b32 s33, s38, 5")
    a("s_add_u32 s3, s3, s33")
    a("v_lshrrev_b32 v73, 5, v0")
    a("v_lshlrev_b32 v73, 4, v73")
    a("v_add_u32 v73, s3, v73")
    a("s_lshl_b32 s33, s21, 6")
    a("s_and_b32 s35, s23, 1")
    a("s_lshl_b32 s35, s35, 5")
    a("s_add_u32 s33, s33, s35")
    a("v_and_b32 v74, 31, v0")
    a("v_add_u32 v74, s33, v74")
    a("v_lshlrev_b32 v75, 2, v73")
    a(f"s_mov_b32 s60, {WS_G}")
    for q in range(4):
        a(f"buffer_load_dwordx4 {v(32+4*q,4)}, v75, s[24:27], s60 offen offset:{16*q}")
    srd(a, 40, 56, 2048*448*4)
    a("v_mul_u32_u24 v76, 1792, v73")
    a("v_lshl_add_u32 v76, v74, 2, v76")
    a("v_mov_b32 v77, v76")
    for r in range(16):
        a(f"buffer_load_dword v{48+r}, v77, s[40:43], 0 offen offset:{(r%2)*1792}")
        if r % 2 == 1 and r < 15: a(f"v_add_u32 v77, {2*1792}, v77")
    a("s_waitcnt vmcnt(0)")
    for r in range(16):
        a(f"v_fma_f32 v{48+r}, v{32+r}, v{ACC+r}, v{48+r}")
    for r in range(16):
        a(f"buffer_store_dword v{48+r}, v76, s[40:43], 0 offen offset:{(r%2)*1792}")
        if r % 2 == 1 and r < 15: a(f"v_add_u32 v76, {2*1792}, v76")
    a.label(END)
    a("s_endpgm")
    return name, 256, 57344 + 512, 168

def gen_empty(tag):
    def g(a):
        name = f"e{tag}_kernel"
        header(a, name)
        a("s_endpgm")
        return name, 256, 0, 16
    return g
KERNELS = {"k1": gen_k1, "k2a": gen_k2a, "k2b": gen_k2b, "k3": gen_k3, "e1": gen_empty(1), "e2": gen_empty(2), "e3": gen_empty(3)}


def build(which):
    a = Asm()
    infos = []
    for w in which:
        infos.append(KERNELS[w](a))
    text = a.text()
    probs = check_hazards(text)
    ref = open("gated_mix__grouped_kv_mqa__ssm_conv_s5__prompt.s.ref").read().split("\n")
    pre = []
    for ln in ref:
        if not ln.startswith(";") or "Override launch" in ln or "grid=ceil" in ln or "@launch" in ln:
            if not ln.startswith(";"): break
            continue
        pre.append(ln)
    head = "\n".join(pre) + "\n"
    head += "".join(f"; @launch kernel={n} grid=(256,1,1) block=({b},1,1) lds={l}\n" for (n, b, l, vg) in infos)
    out = head + '.amdgcn_target "amdgcn-amd-amdhsa--gfx950"\n.text\n' + text
    for (n, b, l, vg) in infos:
        out += descriptor(n, vg)
    return out, probs

if __name__ == "__main__":
    which = sys.argv[2].split(",")
    if len(sys.argv) > 3 and sys.argv[3] == "prof": PROF = True
    out, probs = build(which)
    open(sys.argv[1], "w").write(out)
    print("wrote", sys.argv[1], "hazards:", len(probs))
```

```python
import sys, os, struct, math
from asmlib import Asm, v, s, check_hazards

NAME = "gated_mix__grouped_kv_mqa__ssm_conv_s5__prompt"
X = set(os.environ.get('XF', '').split(','))
PROF = "prof" in X
def f2u(x): return struct.unpack("<I", struct.pack("<f", x))[0]
QSCALE = f2u(math.log2(math.e) / math.sqrt(28.0))
LOG2E = f2u(math.log2(math.e))
INV2PI = f2u(1.0 / (2.0 * math.pi))
MF = "v_mfma_f32_32x32x16_bf16"
SC1 = " sc1"
POLLSLEEP = int(os.environ.get('PS', '1'))

WS_KV = 0x000000
WS_G  = 0x040000
WS_FL = 0x042000
FL_H  = WS_FL
FL_O  = WS_FL + 0x1000
WS_E  = 0x048000
D_CNT, D_GCNT, D_GO, D_NONCE, D_GOG = 0, 64, 128, 132, 136
WS_OF = 0x080000
WS_HF = 0x280000
WS_PROF = 0x800000
WS_SIZE = 0x1000000
XBYTES = 2048 * 448 * 2
WBYTES = 448 * 448 * 2
WKBYTES = 448 * 28 * 2
OUTBYTES = 2048 * 448 * 4

S_X, S_WQ, S_WK, S_WV, S_WO = 64, 66, 68, 70, 72
S_LRE, S_LIM = 76, 78
S_BRE, S_BIM, S_CRE, S_CIM, S_LDT, S_DSK, S_GW, S_OUT = 80, 82, 84, 86, 88, 90, 92, 94
S_DBG, S_WS = 96, 98
RB, J2, WV, BW = 20, 21, 22, 23
WSR = 24
TR = 28
NONCE = 19
SPIN = 18

L_X = 0; L_WQ = 57344; L_WKV = 114688; L_GW = 143360
L_QX = 147456
L_CNT = 163584
C_ATT, C_BG, C_NONCE, C_BAD, C_UDONE, C_HCNT, C_OCNT, C_XR, C_KVR, C_KVA = 0, 4, 8, 12, 16, 20, 24, 28, 32, 40
B_EX = 159744; B_HT = 65536
B_HT2 = 69632
L_C = 0
L_RED = 0
L_WO = 0
A_OP = 90112; A_LP = 155648
LDS_TOTAL = 163840

def srd(a, dst, src, nbytes):
    a(f"s_mov_b32 s{dst}, s{src}")
    a(f"s_mov_b32 s{dst+1}, s{src+1}")
    a(f"s_mov_b32 s{dst+2}, {hex(nbytes)}")
    a(f"s_mov_b32 s{dst+3}, 0x00020000")

class Prof:
    def __init__(self, a, vreg): self.a = a; self.v = vreg
    def stamp(self, slot):
        if not PROF: return
        a = self.a
        a("s_memrealtime s[60:61]")
        a("s_waitcnt lgkmcnt(0)")
        a(f"v_writelane_b32 v{self.v}, s60, {slot}")
    def flush(self, vt):
        if not PROF: return
        a = self.a
        a("s_lshl_b32 s60, s2, 4")
        a(f"s_add_u32 s60, s60, s{WV}")
        a("s_lshl_b32 s60, s60, 8")
        a(f"s_add_u32 s60, s60, {WS_PROF}")
        a("s_mov_b64 exec, -1")
        a(f"v_mbcnt_lo_u32_b32 v{vt}, -1, 0")
        a(f"v_mbcnt_hi_u32_b32 v{vt}, -1, v{vt}")
        a(f"v_lshlrev_b32 v{vt}, 2, v{vt}")
        a(f"buffer_store_dword v{self.v}, v{vt}, s[{WSR}:{WSR+3}], s60 offen")
        a("s_waitcnt vmcnt(0)")

def xtile_lane_off(a, vd, vlane, vt0, vt1):
    a(f"v_lshrrev_b32 v{vt0}, 4, v{vlane}")
    a(f"v_and_b32 v{vt1}, 1, v{vt0}")
    a(f"v_lshlrev_b32 v{vt1}, 4, v{vt1}")
    a(f"v_lshrrev_b32 v{vd}, 5, v{vlane}")
    a(f"v_lshl_add_u32 v{vt1}, v{vd}, 2, v{vt1}")
    a(f"v_bfe_u32 v{vd}, v{vlane}, 2, 2")
    a(f"v_add_u32 v{vt1}, v{vt1}, v{vd}")
    a(f"v_mul_u32_u24 v{vt1}, 896, v{vt1}")
    a(f"v_and_b32 v{vd}, 3, v{vlane}")
    a(f"v_xor_b32 v{vd}, v{vd}, v{vt0}")
    a(f"v_lshl_add_u32 v{vd}, v{vd}, 4, v{vt1}")

def plain_lane_off(a, vd, vlane, vt0):
    a(f"v_lshrrev_b32 v{vt0}, 4, v{vlane}")
    a(f"v_and_b32 v{vd}, 3, v{vlane}")
    a(f"v_xor_b32 v{vd}, v{vd}, v{vt0}")
    a(f"v_lshlrev_b32 v{vd}, 4, v{vd}")
    a(f"v_lshrrev_b32 v{vt0}, 2, v{vlane}")
    a(f"v_mul_u32_u24 v{vt0}, 896, v{vt0}")
    a(f"v_add_u32 v{vd}, v{vd}, v{vt0}")

def xfrag_addr(a, vd, vlane, vt0):
    a(f"v_bfe_u32 v{vt0}, v{vlane}, 2, 2")
    a(f"v_lshrrev_b32 v{vd}, 5, v{vlane}")
    a(f"v_xor_b32 v{vt0}, v{vt0}, v{vd}")
    a(f"v_lshlrev_b32 v{vt0}, 4, v{vt0}")
    a(f"v_and_b32 v{vd}, 31, v{vlane}")
    a(f"v_lshl_add_u32 v{vd}, v{vd}, 6, v{vt0}")

def tr_rowcol(a, vrow, vcol, vlane, vt):
    a(f"v_lshrrev_b32 v{vrow}, 5, v{vlane}")
    a(f"v_lshlrev_b32 v{vrow}, 3, v{vrow}")
    a(f"v_bfe_u32 v{vt}, v{vlane}, 2, 2")
    a(f"v_add_u32 v{vrow}, v{vrow}, v{vt}")
    a(f"v_and_b32 v{vcol}, 16, v{vlane}")
    a(f"v_and_b32 v{vt}, 3, v{vlane}")
    a(f"v_lshl_add_u32 v{vcol}, v{vt}, 2, v{vcol}")

def proj_loop(a, swap, acc, xe, xo, we, wo_, vxe, vxo, vw1, vw2, s_wstep, s_cnt, lab):
    def rd(xr, wr, vx):
        a(f"ds_read_b128 {v(xr,4)}, v{vx}")
        a(f"ds_read_b64_tr_b16 {v(wr,2)}, v{vw1}")
        a(f"ds_read_b64_tr_b16 {v(wr+2,2)}, v{vw2}")
        a(f"v_add_u32 v{vx}, 0x1000, v{vx}")
        a(f"v_add_u32 v{vw1}, s{s_wstep}, v{vw1}")
        a(f"v_add_u32 v{vw2}, s{s_wstep}, v{vw2}")
    def mf(x, w):
        A, B = (x, w) if swap else (w, x)
        a(f"{MF} {v(acc,16)}, {v(A,4)}, {v(B,4)}, {v(acc,16)}")
    rd(xe, we, vxe); rd(xo, wo_, vxo)
    a(f"s_mov_b32 s{s_cnt}, 14")
    a.label(lab)
    a("s_waitcnt lgkmcnt(3)")
    mf(xe, we)
    rd(xe, we, vxe)
    a("s_waitcnt lgkmcnt(3)")
    mf(xo, wo_)
    rd(xo, wo_, vxo)
    a(f"s_sub_u32 s{s_cnt}, s{s_cnt}, 1")
    a(f"s_cmp_lg_u32 s{s_cnt}, 0")
    a(f"s_cbranch_scc1 {lab}")
    a("s_waitcnt lgkmcnt(0)")

def sw_barrier(a, coff, s_tgt, n, vaddr, vtmp, lab):
    a(f"s_add_u32 s{s_tgt}, s{s_tgt}, {n}")
    a(f"v_mov_b32 v{vtmp}, 1")
    a("s_waitcnt lgkmcnt(0)")
    a("s_mov_b64 exec, 1")
    a(f"ds_add_u32 v{vaddr}, v{vtmp} offset:{coff}")
    a("s_mov_b64 exec, -1")
    a.label(lab)
    a(f"ds_read_b32 v{vtmp}, v{vaddr} offset:{coff}")
    a("s_waitcnt lgkmcnt(0)")
    a(f"v_readfirstlane_b32 s3, v{vtmp}")
    a(f"s_cmp_ge_u32 s3, s{s_tgt}")
    a(f"s_cbranch_scc1 {lab}_ok")
    a("s_sleep 1")
    a(f"s_sub_u32 s{SPIN}, s{SPIN}, 1")
    a(f"s_cbranch_scc0 {lab}")
    a(f"s_mov_b32 s{SPIN}, 0")
    a.label(lab + "_ok")

def flag_store(a, soff_reg, vt0, vt1, val=None):
    a("s_mov_b64 exec, 1")
    a(f"v_mov_b32 v{vt0}, s{val if val is not None else NONCE}")
    a(f"v_mov_b32 v{vt1}, 0")
    a(f"buffer_store_dword v{vt0}, v{vt1}, s[{WSR}:{WSR+3}], s{soff_reg} offen{SC1}")
    a("s_mov_b64 exec, -1")

def arrive_flag(a, coff, n, soff_reg, vt0, vt1, lab):
    a(f"v_mov_b32 v{vt0}, {L_CNT}")
    a(f"v_mov_b32 v{vt1}, 1")
    a("s_waitcnt vmcnt(0)")
    a("s_mov_b64 exec, 1")
    a(f"ds_add_rtn_u32 v{vt1}, v{vt0}, v{vt1} offset:{coff}")
    a("s_waitcnt lgkmcnt(0)")
    a(f"v_readfirstlane_b32 s60, v{vt1}")
    a("s_mov_b64 exec, -1")
    a(f"s_cmp_eq_u32 s60, {n-1}")
    a(f"s_cbranch_scc0 {lab}")
    flag_store(a, soff_reg, vt0, vt1)
    a.label(lab)

def poll(a, lab, vdst, voff, soff_reg, mask_pair, sleep=None):
    sleep = POLLSLEEP if sleep is None else sleep
    a.label(lab)
    a(f"buffer_load_dword v{vdst}, v{voff}, s[{WSR}:{WSR+3}], s{soff_reg} offen{SC1}")
    a("s_waitcnt vmcnt(0)")
    a(f"v_cmp_ne_u32 vcc, s{NONCE}, v{vdst}")
    a(f"s_and_b64 vcc, vcc, s[{mask_pair}:{mask_pair+1}]")
    a(f"s_cbranch_vccz {lab}_ok")
    a(f"s_sleep {sleep}")
    a(f"s_sub_u32 s{SPIN}, s{SPIN}, 1")
    a(f"s_cbranch_scc0 {lab}")
    a(f"s_mov_b32 s{SPIN}, 0")
    a.label(lab + "_ok")

def cfma(a, hr, hi, lr, li, ur, ui, tr, ti):
    a(f"v_fma_f32 v{tr}, -v{li}, v{hi}, v{ur}")
    a(f"v_fma_f32 v{ti}, v{li}, v{hr}, v{ui}")
    a(f"v_fma_f32 v{hr}, v{lr}, v{hr}, v{tr}")
    a(f"v_fma_f32 v{hi}, v{lr}, v{hi}, v{ti}")

def touch_matrix(a, sptr, vdst, vt, sr=48):
    srd(a, sr, sptr, WBYTES)
    a("s_lshr_b32 s3, s2, 3")
    a(f"s_mul_i32 s3, s3, {98*128}")
    a(f"v_lshlrev_b32 v{vt}, 7, v0")
    a(f"buffer_load_dword v{vdst}, v{vt}, s[{sr}:{sr+3}], s3 offen")
    a("s_add_u32 s3, s3, 8192")
    a("s_mov_b32 exec_hi, 3")
    a(f"buffer_load_dword v{vdst+1}, v{vt}, s[{sr}:{sr+3}], s3 offen")
    a("s_mov_b64 exec, -1")

AQ, AO, AS, AK, AV, APB = 8, 40, [104, 120], [136, 144], [152, 160], 4

def att_unit(a, u, side):
    up = u - 1; un = u + 1
    cur = AS[u & 1]; prv = AS[(u + 1) & 1]
    Vp = AV[(up >> 2) & 1]; Op = AO + 16 * (up & 3)
    Kn = AK[(un >> 2) & 1]; Qn = AQ + 8 * (un & 3)
    side = list(side)
    def E(lo, hi):
        for j in range(lo, hi):
            a(f"v_exp_f32 v{cur+j}, v{cur+j}")
            if side:
                x = side.pop(0)
                if x: a(x)
    while side and isinstance(side[0], tuple):
        a(side.pop(0)[1])
    a(f"{MF} {v(Op,16)}, {v(Vp,4)}, {v(prv,4)}, {v(Op,16)}")
    E(0, 4)
    a(f"v_cvt_pk_bf16_f32 v{APB+2}, v{prv+12}, v{prv+13}")
    a(f"v_cvt_pk_bf16_f32 v{APB+3}, v{prv+14}, v{prv+15}")
    a(f"{MF} {v(prv,16)}, {v(Kn,4)}, {v(Qn,4)}, 0")
    E(4, 8)
    a(f"v_cvt_pk_bf16_f32 v{cur}, v{cur}, v{cur+1}")
    a(f"v_cvt_pk_bf16_f32 v{cur+1}, v{cur+2}, v{cur+3}")
    a(f"{MF} {v(prv,16)}, {v(Kn+4,4)}, {v(Qn+4,4)}, {v(prv,16)}")
    E(8, 12)
    a(f"v_cvt_pk_bf16_f32 v{cur+2}, v{cur+4}, v{cur+5}")
    a(f"v_cvt_pk_bf16_f32 v{cur+3}, v{cur+6}, v{cur+7}")
    a(f"{MF} {v(Op,16)}, {v(Vp+4,4)}, {v(APB,4)}, {v(Op,16)}")
    E(12, 16)
    a(f"v_cvt_pk_bf16_f32 v{APB}, v{cur+8}, v{cur+9}")
    a(f"v_cvt_pk_bf16_f32 v{APB+1}, v{cur+10}, v{cur+11}")
    assert not side, side

def gen_attention(a, pf):
    P = "att"
    KR = TR
    a(f"v_add_u32 v2, {L_QX}, v1")
    for g in range(4):
        a(f"ds_read_b128 {v(AQ+8*g,4)}, v2 offset:{g*2048}")
        a(f"ds_read_b128 {v(AQ+8*g+4,4)}, v2 offset:{g*2048+1024}")
    a(f"s_add_u32 s{KR}, s{WSR}, {WS_KV}")
    a(f"s_addc_u32 s{KR+1}, s{WSR+1}, 0")
    a(f"s_mov_b32 s{KR+2}, 0x40000")
    a(f"s_mov_b32 s{KR+3}, 0x00020000")
    a("s_mov_b32 s44, 0")
    a("s_mov_b32 s51, 0")
    for j in range(4): a(f"v_mov_b32 v{APB+j}, 0")
    for j in range(8): a(f"v_mov_b32 v{AV[1]+j}, 0")
    a(f"s_cmp_eq_u32 s{WV}, 0")
    a(f"s_cbranch_scc0 {P}_nopoll")
    srd(a, 48, S_DBG, 256)
    a(f"v_mov_b32 v2, {D_GO}")
    a.label(P + "_poll")
    a(f"buffer_load_dword v104, v2, s[48:51], 0 offen{SC1}")
    a("s_waitcnt vmcnt(0)")
    a("v_readfirstlane_b32 s3, v104")
    a("s_cmp_lg_u32 s3, 0")
    a(f"s_cbranch_scc1 {P}_nopoll")
    a(f"s_sleep {POLLSLEEP}")
    a(f"s_sub_u32 s{SPIN}, s{SPIN}, 1")
    a(f"s_cbranch_scc0 {P}_poll")
    a(f"s_mov_b32 s{SPIN}, 0")
    a.label(P + "_nopoll")
    if "delayspin" in X:
        a(f"s_cmp_eq_u32 s{WV}, 0")
        a(f"s_cbranch_scc1 {P}_ds")
        a("s_sleep 127")
        a.label(P + "_ds")
    a(f"v_mov_b32 v3, {L_CNT}")
    sw_barrier(a, C_ATT, 44, 8, 3, 2, P + "_b0")
    pf.stamp(5)
    a("s_lshr_b32 s52, s2, 3")
    a("s_lshl_b32 s52, s52, 3")
    a(f"s_add_u32 s52, s52, s{WV}")
    a("s_lshl_b32 s52, s52, 10")
    a(f"buffer_load_dwordx4 {v(AS[0],4)}, v1, s[{KR}:{KR+3}], s52 offen{SC1}")
    a(f"buffer_load_dwordx4 {v(AS[1],4)}, v1, s[{KR}:{KR+3}], 0 offen{SC1}")
    a(f"buffer_load_dwordx4 {v(AS[1]+4,4)}, v1, s[{KR}:{KR+3}], 0 offen offset:1024{SC1}")
    a(f"s_lshl_b32 s43, s{WV}, 15")
    a(f"buffer_load_dwordx4 {v(AK[0],4)}, v1, s[{KR}:{KR+3}], s43 offen{SC1}")
    a(f"buffer_load_dwordx4 {v(AK[0]+4,4)}, v1, s[{KR}:{KR+3}], s43 offen offset:1024{SC1}")
    a(f"buffer_load_dwordx4 {v(AV[0],4)}, v1, s[{KR}:{KR+3}], s43 offen offset:2048{SC1}")
    a(f"buffer_load_dwordx4 {v(AV[0]+4,4)}, v1, s[{KR}:{KR+3}], s43 offen offset:3072{SC1}")
    a("s_add_u32 s43, s43, 4096")
    a(f"buffer_load_dwordx4 {v(AK[1],4)}, v1, s[{KR}:{KR+3}], s43 offen{SC1}")
    a(f"buffer_load_dwordx4 {v(AK[1]+4,4)}, v1, s[{KR}:{KR+3}], s43 offen offset:1024{SC1}")
    a("s_waitcnt vmcnt(6)")
    for g in range(4):
        a(f"{MF} {v(AO+16*g,16)}, {v(AS[1],4)}, {v(AQ+8*g,4)}, 0")
        a(f"{MF} {v(AO+16*g,16)}, {v(AS[1]+4,4)}, {v(AQ+8*g+4,4)}, {v(AO+16*g,16)}")
    a("s_nop 5")
    for g in range(4):
        o = AO + 16 * g
        a(f"v_max3_f32 v2, v{o}, v{o+1}, v{o+2}")
        for j in range(3, 15, 2):
            a(f"v_max3_f32 v2, v2, v{o+j}, v{o+j+1}")
        a(f"v_max_f32 v2, v2, v{o+15}")
        a("v_mov_b32 v3, v2")
        a("s_nop 1")
        a("v_permlane32_swap_b32 v2, v3")
        a("v_max_f32 v2, v2, v3")
        a("v_cvt_pk_bf16_f32 v2, -v2, 0")
        a("s_mov_b32 exec_lo, 0")
        a(f"v_mov_b32 v{AQ+8*g+6}, v2")
        a("s_mov_b32 exec_lo, -1")
    for j in (0, 1, 2, 3, 12, 13, 14, 15): a(f"v_mov_b32 v{AS[1]+j}, 0")
    for g in range(4):
        a(f"{MF} {v(AO+16*g,16)}, {v(AV[1],4)}, {v(APB,4)}, 0")
    a("s_waitcnt vmcnt(4)")
    a(f"{MF} {v(AS[0],16)}, {v(AK[0],4)}, {v(AQ,4)}, 0")
    a(f"{MF} {v(AS[0],16)}, {v(AK[0]+4,4)}, {v(AQ+4,4)}, {v(AS[0],16)}")
    a("s_mov_b32 s48, 0")
    a("s_nop 7")
    a("s_nop 1")
    pf.stamp(6)
    a(".p2align 3")
    a.label(P + "_loop")
    for u in range(8):
        g = u & 3; par = (u >> 2) & 1
        side = []
        if g == 1:
            side.append(("q0", "s_waitcnt vmcnt(2)"))
            side.append(f"buffer_load_dwordx4 {v(AV[par^1],4)}, v1, s[{KR}:{KR+3}], s43 offen offset:2048{SC1}")
            side.append(f"buffer_load_dwordx4 {v(AV[par^1]+4,4)}, v1, s[{KR}:{KR+3}], s43 offen offset:3072{SC1}")
            side.append("s_add_u32 s43, s43, 4096")
            if par == 0:
                side.append("s_cmp_eq_u32 s48, 3")
                side.append(f"s_cselect_b32 s{KR+2}, 0, s{KR+2}")
        if g == 3:
            side += [None, None, None, "s_waitcnt vmcnt(2)"]
            side.append(f"buffer_load_dwordx4 {v(AK[par],4)}, v1, s[{KR}:{KR+3}], s43 offen{SC1}")
            side.append(f"buffer_load_dwordx4 {v(AK[par]+4,4)}, v1, s[{KR}:{KR+3}], s43 offen offset:1024{SC1}")
            if par == 1:
                side += ["s_add_u32 s48, s48, 1", None, None, None, None, None, None, None, None, "s_cmp_lt_u32 s48, 4"]
        att_unit(a, u, side)
    a(f"s_cbranch_scc1 {P}_loop")
    prv = AS[1]
    a(f"{MF} {v(AO+48,16)}, {v(AV[1],4)}, {v(prv,4)}, {v(AO+48,16)}")
    a(f"v_cvt_pk_bf16_f32 v{APB+2}, v{prv+12}, v{prv+13}")
    a(f"v_cvt_pk_bf16_f32 v{APB+3}, v{prv+14}, v{prv+15}")
    a("s_nop 1")
    a(f"{MF} {v(AO+48,16)}, {v(AV[1]+4,4)}, {v(APB,4)}, {v(AO+48,16)}")
    pf.stamp(7)
    a(f"v_mov_b32 v3, {L_CNT}")
    a.label(P + "_udone")
    a(f"ds_read_b32 v2, v3 offset:{C_UDONE}")
    a("s_waitcnt lgkmcnt(0)")
    a("v_readfirstlane_b32 s3, v2")
    a("s_cmp_ge_u32 s3, 4")
    a(f"s_cbranch_scc1 {P}_udone_ok")
    a(f"s_sub_u32 s{SPIN}, s{SPIN}, 1")
    a(f"s_cbranch_scc0 {P}_udone")
    a(f"s_mov_b32 s{SPIN}, 0")
    a.label(P + "_udone_ok")
    a(f"s_lshl_b32 s3, s{WV}, 13")
    a(f"s_add_u32 s3, s3, {A_OP}")
    a(f"v_add_u32 v2, s3, v1")
    a(f"s_lshl_b32 s3, s{WV}, 9")
    a(f"s_add_u32 s3, s3, {A_LP}")
    a("v_lshrrev_b32 v3, 2, v1")
    a("v_and_b32 v4, 127, v3")
    a("v_add_u32 v4, s3, v4")
    for g in range(4):
        o = AO + 16 * g
        if g == 3: a("s_nop 7")
        a("s_mov_b32 exec_lo, 0")
        a(f"ds_write_b32 v4, v{o+12} offset:{g*128}")
        a("s_mov_b32 exec_lo, -1")
        for j in range(8):
            a(f"v_cvt_pk_bf16_f32 v{AS[0]+8*g+j}, v{o+2*j}, v{o+2*j+1}")
        a(f"ds_write_b128 v2, {v(AS[0]+8*g,4)} offset:{g*2048}")
        a(f"ds_write_b128 v2, {v(AS[0]+8*g+4,4)} offset:{g*2048+1024}")
    a(f"v_mov_b32 v3, {L_CNT}")
    sw_barrier(a, C_ATT, 44, 8, 3, 2, P + "_b1")
    a(f"s_lshl_b32 s3, s{WV}, 10")
    a(f"s_add_u32 s3, s3, {A_OP}")
    a("v_add_u32 v2, s3, v1")
    for w in range(8):
        a(f"ds_read_b128 {v(AO+4*w,4)}, v2 offset:{w*8192}")
    a(f"s_lshr_b32 s45, s{WV}, 1")
    a("s_lshl_b32 s3, s45, 7")
    a(f"s_add_u32 s3, s3, {A_LP}")
    a("v_lshrrev_b32 v3, 2, v1")
    a("v_and_b32 v3, 127, v3")
    a("v_add_u32 v3, s3, v3")
    acc = AO + 40
    a("s_mov_b32 s46, 0x00003f80")
    a("s_mov_b32 s49, 0x3f800000")
    for j in range(8): a(f"v_mov_b32 v{acc+j}, 0")
    for w in range(7):
        a(f"ds_read_b32 v{AO+32+w}, v3 offset:{w*512}")
    for w in range(8):
        a(f"s_waitcnt lgkmcnt({14 - w})" if w < 7 else "s_waitcnt lgkmcnt(7)")
        if w == 0: a(f"ds_read_b32 v{AO+39}, v3 offset:{7*512}")
        for j in range(4):
            a(f"v_dot2c_f32_bf16 v{acc+2*j}, s46, v{AO+4*w+j}")
            a(f"v_dot2c_f32_bf16 v{acc+2*j+1}, s49, v{AO+4*w+j}")
    a("s_waitcnt lgkmcnt(0)")
    l = AO + 32
    a(f"v_add_f32 v{l}, v{l}, v{l+1}")
    a(f"v_add_f32 v{l+2}, v{l+2}, v{l+3}")
    a(f"v_add_f32 v{l+4}, v{l+4}, v{l+5}")
    a(f"v_add_f32 v{l+6}, v{l+6}, v{l+7}")
    a(f"v_add_f32 v{l}, v{l}, v{l+2}")
    a(f"v_add_f32 v{l+4}, v{l+4}, v{l+6}")
    a(f"v_add_f32 v{l}, v{l}, v{l+4}")
    a(f"v_rcp_f32 v{l+1}, v{l}")
    a("s_nop 0")
    for j in range(8): a(f"v_mul_f32 v{acc+j}, v{acc+j}, v{l+1}")
    for j in range(4): a(f"v_cvt_pk_bf16_f32 v{AO+j}, v{acc+2*j}, v{acc+2*j+1}")
    a(f"s_and_b32 s3, s{WV}, 1")
    a("s_cmp_eq_u32 s3, 1")
    a("s_cselect_b32 exec_hi, -1, 0")
    a("s_mov_b32 exec_lo, 0")
    a(f"v_mov_b32 v{AO+2}, 0")
    a(f"v_mov_b32 v{AO+3}, 0")
    a("s_mov_b64 exec, -1")
    a("s_lshr_b32 s3, s45, 1")
    a(f"s_lshl_b32 s46, s{RB}, 1")
    a("s_add_u32 s3, s3, s46")
    a("s_lshl_b32 s3, s3, 4")
    a(f"s_lshl_b32 s46, s{J2}, 1")
    a("s_add_u32 s3, s3, s46")
    a("s_and_b32 s46, s45, 1")
    a("s_add_u32 s3, s3, s46")
    a("s_lshl_b32 s3, s3, 11")
    a(f"s_and_b32 s46, s{WV}, 1")
    a("s_lshl_b32 s46, s46, 10")
    a("s_add_u32 s3, s3, s46")
    a(f"s_add_u32 s3, s3, {WS_OF}")
    a(f"buffer_store_dwordx4 {v(AO,4)}, v1, s[{WSR}:{WSR+3}], s3 offen{SC1}")
    a(f"v_mov_b32 v3, {L_CNT}")
    a(f"ds_read_b32 v2, v3 offset:{C_NONCE}")
    a("s_waitcnt lgkmcnt(0)")
    a(f"v_readfirstlane_b32 s{NONCE}, v2")
    a(f"s_lshl_b32 s3, s{RB}, 5")
    a(f"s_add_u32 s3, s3, s{J2}")
    a("s_lshl_b32 s3, s3, 2")
    a(f"s_add_u32 s3, s3, {FL_O}")
    arrive_flag(a, C_OCNT, 8, 3, 2, 3, P + "_oflag")
    pf.stamp(8)

def gen_background(a, pf):
    P = "bg"
    XF = 56; ARE, AIM = 8, 24
    nbar = [0]
    T = [54, 55]
    pf.T = T
    def bar():
        nbar[0] += 1
        a(f"v_mov_b32 v{T[0]}, {L_CNT}")
        sw_barrier(a, C_BG, 44, 4, T[0], T[1], f"{P}_bar{nbar[0]}")
    a("s_mov_b32 s44, 0")
    a(f"s_lshl_b32 s37, s{J2}, 1")
    a(f"s_and_b32 s3, s{BW}, 1")
    a("s_add_u32 s37, s37, s3")
    a(f"s_lshr_b32 s38, s{BW}, 1")
    a(f"s_cmp_eq_u32 s{BW}, 3")
    a(f"s_cbranch_scc0 {P}_nononce")
    srd(a, 48, S_DBG, 256)
    a("v_mov_b32 v7, 0")
    a.label(P + "_npoll")
    a(f"buffer_load_dword v6, v7, s[48:51], 0 offen offset:{D_NONCE}{SC1}")
    a("s_waitcnt vmcnt(0)")
    a("v_readfirstlane_b32 s3, v6")
    a("s_cmp_lg_u32 s3, 0")
    a(f"s_cbranch_scc1 {P}_npoll_ok")
    a(f"s_sleep {POLLSLEEP}")
    a(f"s_sub_u32 s{SPIN}, s{SPIN}, 1")
    a(f"s_cbranch_scc0 {P}_npoll")
    a(f"s_mov_b32 s{SPIN}, 0")
    a.label(P + "_npoll_ok")
    a(f"v_mov_b32 v7, {L_CNT}")
    a(f"ds_write_b32 v7, v6 offset:{C_NONCE}")
    a.label(P + "_nononce")
    a(f"s_cmp_eq_u32 s{J2}, 7")
    a(f"s_cbranch_scc1 {P}_skip")
    if "nobg" in X: a(f"s_branch {P}_skip")
    a(f"s_and_b32 s3, s{BW}, 1")
    a("s_cmp_eq_u32 s3, 0")
    a(f"s_cselect_b32 s{TR}, s{S_BRE}, s{S_BIM}")
    a(f"s_cselect_b32 s{TR+1}, s{S_BRE+1}, s{S_BIM+1}")
    a(f"s_mov_b32 s{TR+2}, {WBYTES}")
    a(f"s_mov_b32 s{TR+3}, 0x00020000")
    plain_lane_off(a, 8, 0, 9)
    a(f"s_lshl_b32 s3, s{J2}, 1")
    a("s_add_u32 s3, s3, s38")
    a(f"s_mul_i32 s32, s3, {32*896}")
    a(f"s_lshl_b32 s34, s{BW}, 11")
    a("s_mov_b32 m0, s34")
    a("s_mov_b32 s36, 14")
    a.label(P + "_bdma")
    a(f"s_add_u32 s33, s32, {16*896}")
    a(f"buffer_load_dwordx4 v8, s[{TR}:{TR+3}], s32 offen lds")
    a("s_add_u32 m0, m0, 1024")
    a("s_sub_u32 s36, s36, 1")
    a(f"buffer_load_dwordx4 v8, s[{TR}:{TR+3}], s33 offen lds")
    a("s_add_u32 s32, s32, 64")
    a(f"s_add_u32 m0, m0, {8192-1024}")
    a("s_cmp_lg_u32 s36, 0")
    a(f"s_cbranch_scc1 {P}_bdma")
    xfrag_addr(a, 6, 0, 8)
    a(f"s_and_b32 s3, s{BW}, 1")
    a("s_lshl_b32 s3, s3, 12")
    a("v_add_u32 v6, s3, v6")
    a("v_xor_b32 v7, 32, v6")
    a("s_waitcnt vmcnt(0)")
    bar()
    a(f"ds_read_b32 v55, v54 offset:{C_NONCE}")
    a("s_waitcnt lgkmcnt(0)")
    a(f"v_readfirstlane_b32 s{NONCE}, v55")
    pf.stamp(5)
    BB = [40, 48]
    def rdB(j):
        b = BB[j & 1]
        if j in (16, 17): a(f"v_add_u32 v{6+(j&1)}, 0x10000, v{6+(j&1)}")
        o = (j >> 1) * 8192 - (65536 if j >= 16 else 0)
        a(f"ds_read_b128 {v(b,4)}, v{6+(j&1)} offset:{o}")
        a(f"ds_read_b128 {v(b+4,4)}, v{6+(j&1)} offset:{o+2048}")
    rdB(0); rdB(1)
    for j in range(28):
        b = BB[j & 1]
        a("s_waitcnt lgkmcnt(2)" if j < 27 else "s_waitcnt lgkmcnt(0)")
        c1 = "0" if j == 0 else v(ARE,16); c2 = "0" if j == 0 else v(AIM,16)
        a(f"{MF} {v(ARE,16)}, {v(XF+4*j,4)}, {v(b,4)}, {c1}")
        a(f"{MF} {v(AIM,16)}, {v(XF+4*j,4)}, {v(b+4,4)}, {c2}")
        if j + 2 < 28: rdB(j + 2)
    a(f"v_mov_b32 v54, {L_CNT}")
    a("v_mov_b32 v55, 1")
    a("s_mov_b64 exec, 1")
    a(f"ds_add_u32 v54, v55 offset:{C_UDONE}")
    a("s_mov_b64 exec, -1")
    pf.stamp(6)
    def stage3(tag):
        if "nopf" in X: return
        a(f"s_cmp_eq_u32 s{BW}, 3")
        a(f"s_cbranch_scc1 {P}_not3{tag}")
        a(f"s_cmp_eq_u32 s{BW}, 0")
        a(f"s_cselect_b32 s56, s{S_CRE}, s{S_CIM}")
        a(f"s_cselect_b32 s57, s{S_CRE+1}, s{S_CIM+1}")
        a(f"s_cmp_eq_u32 s{BW}, 2")
        a(f"s_cselect_b32 s56, s{S_WO}, s56")
        a(f"s_cselect_b32 s57, s{S_WO+1}, s57")
        touch_matrix(a, 56, 140, 142)
        a.label(P + "_not3" + tag)
    stage3("a")
    def csq(dr, di, sr, si):
        a(f"v_mul_f32 v46, v{si}, v{si}")
        a(f"v_mul_f32 v47, v{sr}, v{si}")
        a(f"v_fma_f32 v{dr}, v{sr}, v{sr}, -v46")
        a(f"v_add_f32 v{di}, v47, v47")
    csq(40, 41, 2, 3)
    for _ in range(3): csq(40, 41, 40, 41)
    csq(42, 43, 40, 41); csq(42, 43, 42, 43)
    csq(44, 45, 42, 43)
    for _ in range(3): csq(44, 45, 44, 45)
    for r in range(16):
        a(f"v_mul_f32 v46, v5, v{AIM+r}")
        a(f"v_mul_f32 v47, v5, v{ARE+r}")
        a(f"v_fma_f32 v{ARE+r}, v4, v{ARE+r}, -v46")
        a(f"v_fma_f32 v{AIM+r}, v4, v{AIM+r}, v47")
    a(f"v_mov_b32 v48, v{ARE}")
    a(f"v_mov_b32 v49, v{AIM}")
    for r in range(1, 16):
        cfma(a, 48, 49, 2, 3, ARE + r, AIM + r, 46, 47)
    a("v_and_b32 v50, 31, v0")
    a("v_lshlrev_b32 v50, 3, v50")
    a(f"s_and_b32 s3, s{BW}, 1")
    a("s_lshl_b32 s3, s3, 10")
    a(f"s_add_u32 s3, s3, {B_EX}")
    a("v_add_u32 v50, s3, v50")
    a("v_lshrrev_b32 v51, 5, v0")
    a("s_lshl_b32 s3, s38, 1")
    a("v_add_u32 v51, s3, v51")
    a("v_lshl_add_u32 v52, v51, 8, v50")
    a("ds_write_b64 v52, v[48:49]")
    bar()
    for c in range(4):
        a(f"ds_read_b64 {v(56+2*c,2)}, v50 offset:{c*256}")
    a(f"s_lshr_b32 s3, s{BW}, 1")
    a("s_cmp_eq_u32 s3, 0")
    a(f"s_cselect_b32 s{TR}, s{S_CRE}, s{S_CIM}")
    a(f"s_cselect_b32 s{TR+1}, s{S_CRE+1}, s{S_CIM+1}")
    plain_lane_off(a, 53, 0, 66)
    a(f"s_mul_i32 s40, s{J2}, {64*896}")
    a(f"s_and_b32 s3, s{BW}, 1")
    a("s_mul_i32 s3, s3, 448")
    a("s_add_u32 s40, s40, s3")
    a(f"s_lshl_b32 s41, s{BW}, 14")
    CDMA = [53]
    def c_dma(kb):
        a(f"s_add_u32 m0, s41, {(kb & 3)*4096}")
        for q in range(4):
            a(f"s_add_u32 s33, s40, {q*16*896 + kb*64}")
            a(f"buffer_load_dwordx4 v{CDMA[0]}, s[{TR}:{TR+3}], s33 offen lds")
            if q < 3: a("s_add_u32 m0, m0, 1024")
    for kb in range(4): c_dma(kb)
    a("s_waitcnt lgkmcnt(0)")
    a("v_mov_b32 v64, v56")
    a("v_mov_b32 v65, v57")
    for c in range(1, 4):
        cfma(a, 64, 65, 40, 41, 56 + 2*c, 57 + 2*c, 46, 47)
    a("s_cmp_eq_u32 s38, 1")
    a(f"s_cbranch_scc0 {P}_nopub")
    a("v_and_b32 v66, 31, v0")
    a("v_lshlrev_b32 v66, 4, v66")
    a(f"s_mul_i32 s3, s{RB}, {448*16}")
    a("s_lshl_b32 s33, s37, 9")
    a("s_add_u32 s3, s3, s33")
    a(f"s_add_u32 s3, s3, {WS_E}")
    a("v_mov_b32 v68, v64")
    a(f"v_mov_b32 v69, s{NONCE}")
    a("v_mov_b32 v70, v65")
    a(f"v_mov_b32 v71, s{NONCE}")
    a("s_mov_b32 exec_hi, 0")
    a(f"buffer_store_dwordx4 v[68:71], v66, s[{WSR}:{WSR+3}], s3 offen{SC1}")
    a("s_mov_b64 exec, -1")
    a.label(P + "_nopub")
    pf.stamp(7)
    a(f"s_add_u32 s48, s{WSR}, {WS_E}")
    a(f"s_addc_u32 s49, s{WSR+1}, 0")
    a(f"s_mov_b32 s50, {32*448*16}")
    a("s_mov_b32 s51, 0x00020000")
    a("v_lshrrev_b32 v67, 5, v0")
    a("v_lshlrev_b32 v67, 4, v67")
    a(f"v_sub_u32 v67, s{RB}, v67")
    a("v_add_u32 v67, -1, v67")
    a(f"s_mov_b32 s3, {448*16}")
    a("v_mul_lo_u32 v68, v67, s3")
    a("v_and_b32 v66, 31, v0")
    a("v_lshlrev_b32 v66, 4, v66")
    a("s_lshl_b32 s33, s37, 9")
    a("v_add3_u32 v68, v68, v66, s33")
    EG = 72
    for i in range(16):
        a(f"v_mov_b32 v{EG+4*i}, 0")
        a(f"v_mov_b32 v{EG+4*i+1}, s{NONCE}")
        a(f"v_mov_b32 v{EG+4*i+2}, 0")
        a(f"v_mov_b32 v{EG+4*i+3}, s{NONCE}")
    a.label(P + "_pollE")
    a("v_mov_b32 v69, v68")
    for i in range(16):
        a(f"v_cmp_le_i32 vcc, {i}, v67")
        a("s_and_b64 exec, vcc, vcc")
        a(f"s_cbranch_execz {P}_eskip")
        a(f"buffer_load_dwordx4 {v(EG+4*i,4)}, v69, s[48:51], 0 offen{SC1}")
        a(f"v_subrev_u32 v69, {448*16}, v69")
    a.label(P + "_eskip")
    a("s_mov_b64 exec, -1")
    a("s_waitcnt vmcnt(0)")
    a("v_mov_b32 v70, 0")
    for i in range(16):
        a(f"v_xor_b32 v71, s{NONCE}, v{EG+4*i+1}")
        a(f"v_xor_b32 v136, s{NONCE}, v{EG+4*i+3}")
        a("v_or3_b32 v70, v70, v71, v136")
    a("v_cmp_ne_u32 vcc, 0, v70")
    a(f"s_cbranch_vccz {P}_pollE_ok")
    a(f"s_sleep {POLLSLEEP}")
    a(f"s_sub_u32 s{SPIN}, s{SPIN}, 1")
    a(f"s_cbranch_scc0 {P}_pollE")
    a(f"s_mov_b32 s{SPIN}, 0")
    a.label(P + "_pollE_ok")
    pf.stamp(8)
    a(f"v_mov_b32 v68, v{EG+60}")
    a(f"v_mov_b32 v69, v{EG+62}")
    for i in range(14, -1, -1):
        cfma(a, 68, 69, 42, 43, EG + 4*i, EG + 4*i + 2, 46, 47)
    a("v_mov_b32 v70, v68")
    a("v_mov_b32 v71, v69")
    a("v_mov_b32 v72, v68")
    a("v_mov_b32 v73, v69")
    a("s_nop 1")
    a("v_permlane32_swap_b32 v70, v72")
    a("v_permlane32_swap_b32 v71, v73")
    cfma(a, 72, 73, 44, 45, 70, 71, 46, 47)
    for cp in range(3):
        a("v_mov_b32 v74, v72")
        a("v_mov_b32 v75, v73")
        cfma(a, 74, 75, 40, 41, 56 + 2*cp, 57 + 2*cp, 46, 47)
        a(f"v_cmp_lt_u32 vcc, {cp}, v51")
        a("s_nop 1")
        a("v_cndmask_b32 v72, v72, v74, vcc")
        a("v_cndmask_b32 v73, v73, v75, vcc")
    a(f"s_lshl_b32 s3, s{BW}, 12")
    a(f"s_add_u32 s3, s3, {B_HT}")
    a("v_and_b32 v66, 31, v0")
    a("v_lshlrev_b32 v66, 1, v66")
    a("v_lshrrev_b32 v67, 5, v0")
    a("v_lshl_add_u32 v66, v67, 8, v66")
    a("v_add_u32 v66, s3, v66")
    for r in range(16):
        cfma(a, 72, 73, 2, 3, ARE + r, AIM + r, 46, 47)
        a(f"v_cvt_pk_bf16_f32 v{76+(r&1)}, v72, -v73")
        slot = (r & 3) + 8 * (r >> 2)
        a(f"ds_write_b16 v66, v{76+(r&1)} offset:{slot*64}")
        a(f"ds_write_b16_d16_hi v66, v{76+(r&1)} offset:{2048+slot*64}")
    a("v_and_b32 v67, 31, v0")
    a("v_lshlrev_b32 v67, 6, v67")
    a("v_lshrrev_b32 v68, 5, v0")
    a("v_lshl_add_u32 v67, v68, 4, v67")
    a("v_add_u32 v67, s3, v67")
    a("s_waitcnt lgkmcnt(0)")
    for part in range(2):
        for jj in range(2):
            a(f"ds_read_b128 {v(80+8*part+4*jj,4)}, v67 offset:{part*2048+jj*32}")
    a(f"s_lshl_b32 s3, s{RB}, 1")
    a("s_add_u32 s3, s3, s38")
    a("s_mul_i32 s3, s3, 56")
    a("s_lshl_b32 s33, s37, 1")
    a("s_add_u32 s3, s3, s33")
    a("s_lshl_b32 s3, s3, 10")
    a(f"s_add_u32 s3, s3, {WS_HF}")
    a(f"s_add_u32 s33, s3, {28*1024}")
    a("s_waitcnt lgkmcnt(0)")
    a(f"buffer_store_dwordx4 {v(80,4)}, v1, s[{WSR}:{WSR+3}], s3 offen{SC1}")
    a(f"buffer_store_dwordx4 {v(84,4)}, v1, s[{WSR}:{WSR+3}], s3 offen offset:1024{SC1}")
    a(f"buffer_store_dwordx4 {v(88,4)}, v1, s[{WSR}:{WSR+3}], s33 offen{SC1}")
    a(f"buffer_store_dwordx4 {v(92,4)}, v1, s[{WSR}:{WSR+3}], s33 offen offset:1024{SC1}")
    a(f"s_lshl_b32 s3, s{RB}, 5")
    a(f"s_add_u32 s3, s3, s{J2}")
    a("s_lshl_b32 s3, s3, 2")
    a(f"s_add_u32 s3, s3, {FL_H}")
    arrive_flag(a, C_HCNT, 4, 3, 66, 67, P + "_hflag")
    pf.stamp(9)
    a(f"s_cmp_eq_u32 s{BW}, 0")
    a(f"s_cbranch_scc0 {P}_nopollH")
    a("v_lshlrev_b32 v67, 2, v0")
    a(f"s_lshl_b32 s35, s{RB}, 7")
    a(f"s_add_u32 s35, s35, {FL_H}")
    a("s_mov_b64 s[58:59], 0x7f")
    poll(a, P + "_pollH", 68, 67, 35, 58)
    srd(a, 48, S_DBG, 256)
    a(f"v_mov_b32 v67, {D_GOG}")
    a.label(P + "_pollG")
    a(f"buffer_load_dword v68, v67, s[48:51], 0 offen{SC1}")
    a("s_waitcnt vmcnt(0)")
    a("v_readfirstlane_b32 s3, v68")
    a("s_cmp_lg_u32 s3, 0")
    a(f"s_cbranch_scc1 {P}_pollG_ok")
    a(f"s_sleep {POLLSLEEP}")
    a(f"s_sub_u32 s{SPIN}, s{SPIN}, 1")
    a(f"s_cbranch_scc0 {P}_pollG")
    a(f"s_mov_b32 s{SPIN}, 0")
    a.label(P + "_pollG_ok")
    a.label(P + "_nopollH")
    a("s_waitcnt vmcnt(0)")
    bar()
    pf.stamp(10)
    T[0], T[1] = 4, 5
    ACC = 8
    a(f"s_lshl_b32 s3, s{RB}, 1")
    a("s_mul_i32 s3, s3, 56")
    a(f"s_mul_i32 s33, s{BW}, 14")
    a("s_add_u32 s3, s3, s33")
    a("s_lshl_b32 s3, s3, 10")
    a(f"s_add_u32 s32, s3, {WS_HF}")
    a(f"s_add_u32 s34, s32, {56*1024}")
    AF = 88; NA = 10
    plain_lane_off(a, 2, 0, 3)
    CDMA[0] = 2
    xfrag_addr(a, 6, 0, 3)
    a("v_add_u32 v6, s41, v6")
    a("v_xor_b32 v7, 32, v6")
    def ldA(st_):
        r = AF + 8 * (st_ % NA)
        a(f"s_add_u32 s35, s32, {st_*1024}")
        a(f"s_add_u32 s36, s34, {st_*1024}")
        a(f"buffer_load_dwordx4 {v(r,4)}, v1, s[{WSR}:{WSR+3}], s35 offen{SC1}")
        a(f"buffer_load_dwordx4 {v(r+4,4)}, v1, s[{WSR}:{WSR+3}], s36 offen{SC1}")
    for st_ in range(NA): ldA(st_)
    CB = [72, 80]
    def rdC(st_):
        b = CB[st_ & 1]
        kb = st_ >> 1
        a(f"ds_read_b128 {v(b,4)}, v{6+(st_&1)} offset:{(kb&3)*4096}")
        a(f"ds_read_b128 {v(b+4,4)}, v{6+(st_&1)} offset:{(kb&3)*4096+2048}")
    issued = []
    for st_ in range(NA): issued += [("A", st_)] * 2
    rdC(0)
    for st_ in range(14):
        kb = st_ >> 1
        need = [("A", st_)]
        if st_ + 1 < 14 and ((st_ + 1) >> 1) >= 4: need.append(("C", (st_ + 1) >> 1))
        last = max(i for i, t in enumerate(issued) if t in need)
        n_out = len(issued) - 1 - last
        a(f"s_waitcnt vmcnt({n_out})")
        if st_ + 1 < 14: rdC(st_ + 1)
        a(f"s_waitcnt lgkmcnt({2 if st_ + 1 < 14 else 0})")
        b = CB[st_ & 1]; r = AF + 8 * (st_ % NA)
        for rt in range(2):
            for ct in range(2):
                acc = ACC + 16 * (2 * rt + ct)
                c = "0" if st_ == 0 else v(acc, 16)
                a(f"{MF} {v(acc,16)}, {v(r+4*rt,4)}, {v(b+4*ct,4)}, {c}")
        if st_ + NA < 14:
            ldA(NA + st_); issued += [("A", NA + st_)] * 2
        if (st_ & 1) == 1 and kb + 4 < 7:
            c_dma(kb + 4); issued += [("C", kb + 4)] * 4
    pf.stamp(11)
    bar()
    a("s_nop 7")
    a(f"s_lshl_b32 s3, s{BW}, 12")
    a("v_add_u32 v72, s3, v1")
    for t in range(4):
        for q in range(4):
            a(f"ds_write_b128 v72, {v(ACC+16*t+4*q,4)} offset:{t*16384+q*1024}")
    bar()
    a(f"s_lshl_b32 s3, s{BW}, 14")
    a("v_add_u32 v72, s3, v1")
    for src in range(4):
        for q in range(4):
            a(f"ds_read_b128 {v(96+16*src+4*q,4)}, v72 offset:{src*4096+q*1024}")
        if src == 2: a("s_waitcnt lgkmcnt(4)")
    a("s_waitcnt lgkmcnt(0)")
    YT = 8
    for r in range(16):
        a(f"v_add_f32 v{96+r}, v{96+r}, v{112+r}")
        a(f"v_add_f32 v{128+r}, v{128+r}, v{144+r}")
    for r in range(16):
        a(f"v_add_f32 v{YT+r}, v{96+r}, v{128+r}")
    bar()
    VT_, VD_, VO_, t1, t2, t3, t4, t5 = 88, 89, 90, 91, 92, 93, 94, 95
    srd(a, TR, S_WO, WBYTES)
    a(f"v_lshrrev_b32 v{t1}, 3, v0")
    a(f"v_mul_u32_u24 v{t1}, 896, v{t1}")
    a(f"v_and_b32 v{t2}, 7, v0")
    a(f"v_lshl_add_u32 v{t1}, v{t2}, 4, v{t1}")
    a(f"s_mul_i32 s32, s{BW}, {112*896}")
    a(f"s_lshl_b32 s3, s{J2}, 7")
    a("s_add_u32 s32, s32, s3")
    a(f"s_mul_i32 s34, s{BW}, 14336")
    a("s_mov_b32 m0, s34")
    a("s_mov_b32 s36, 14")
    a.label(P + "_wodma")
    a("s_sub_u32 s36, s36, 1")
    a(f"buffer_load_dwordx4 v{t1}, s[{TR}:{TR+3}], s32 offen lds")
    a("s_add_u32 s32, s32, 7168")
    a("s_add_u32 m0, m0, 1024")
    a("s_cmp_lg_u32 s36, 0")
    a(f"s_cbranch_scc1 {P}_wodma")
    a("v_mov_b32 v160, 0")
    a("v_mov_b32 v161, 0")
    a(f"v_lshlrev_b32 v{t2}, 3, v0")
    a(f"ds_write_b64 v{t2}, v[160:161] offset:57344")
    a(f"s_lshl_b32 s3, s{RB}, 6")
    a("s_lshl_b32 s33, s38, 5")
    a("s_add_u32 s3, s3, s33")
    a(f"v_lshrrev_b32 v{VT_}, 5, v0")
    a(f"v_lshlrev_b32 v{VT_}, 4, v{VT_}")
    a(f"v_add_u32 v{VT_}, s3, v{VT_}")
    a(f"s_lshl_b32 s33, s{J2}, 6")
    a(f"s_and_b32 s35, s{BW}, 1")
    a("s_lshl_b32 s35, s35, 5")
    a("s_add_u32 s33, s33, s35")
    a(f"v_and_b32 v{VD_}, 31, v0")
    a(f"v_add_u32 v{VD_}, s33, v{VD_}")
    srd(a, 48, S_X, XBYTES)
    a(f"v_mul_u32_u24 v{VO_}, 896, v{VT_}")
    a(f"v_lshl_add_u32 v{VO_}, v{VD_}, 1, v{VO_}")
    XS = 24
    for r in range(16):
        a(f"buffer_load_ushort v{XS+r}, v{VO_}, s[48:51], 0 offen offset:{(r%4)*896}")
        if r % 4 == 3 and r < 15: a(f"v_add_u32 v{VO_}, {4*896}, v{VO_}")
    srd(a, 52, S_DSK, 896)
    a(f"v_lshlrev_b32 v{t2}, 1, v{VD_}")
    a(f"buffer_load_ushort v{t3}, v{t2}, s[52:55], 0 offen")
    GT = 40
    a(f"v_lshlrev_b32 v{t4}, 2, v{VT_}")
    a(f"s_mov_b32 s35, {WS_G}")
    for q in range(4):
        a(f"buffer_load_dwordx4 {v(GT+4*q,4)}, v{t4}, s[{WSR}:{WSR+3}], s35 offen offset:{16*q}{SC1}")
    a("s_waitcnt vmcnt(0)")
    a(f"v_lshlrev_b32 v{t3}, 16, v{t3}")
    for r in range(16):
        a(f"v_lshlrev_b32 v{XS+r}, 16, v{XS+r}")
        a(f"v_mul_f32 v{XS+r}, v{XS+r}, v{t3}")
        a(f"v_fma_f32 v{YT+r}, 2.0, v{YT+r}, v{XS+r}")
        a(f"v_sub_f32 v{XS+r}, 1.0, v{GT+r}")
        a(f"v_mul_f32 v{YT+r}, v{YT+r}, v{XS+r}")
    bar()
    pf.stamp(12)
    a("v_lshrrev_b32 v6, 5, v0")
    a("v_lshlrev_b32 v6, 2, v6")
    a("v_bfe_u32 v7, v0, 2, 2")
    a("v_add_u32 v6, v6, v7")
    a("v_lshlrev_b32 v6, 7, v6")
    a("v_and_b32 v7, 16, v0")
    a(f"v_and_b32 v{t1}, 3, v0")
    a(f"v_lshl_add_u32 v7, v{t1}, 2, v7")
    a("v_lshl_add_u32 v6, v7, 1, v6")
    a(f"s_and_b32 s3, s{BW}, 1")
    a(f"s_mul_i32 s3, s3, {8*28*128}")
    a("v_add_u32 v6, s3, v6")
    a(f"s_cmp_eq_u32 s{BW}, 0")
    a(f"s_cbranch_scc0 {P}_nopollO")
    a(f"v_lshlrev_b32 v{t4}, 2, v0")
    a(f"s_lshl_b32 s35, s{RB}, 7")
    a(f"s_add_u32 s35, s35, {FL_O}")
    a("s_mov_b64 s[58:59], 0xff")
    poll(a, P + "_pollO", t5, t4, 35, 58)
    a.label(P + "_nopollO")
    bar()
    pf.stamp(13)
    a(f"s_lshl_b32 s3, s{RB}, 1")
    a("s_add_u32 s3, s3, s38")
    a("s_lshl_b32 s3, s3, 15")
    a(f"s_and_b32 s33, s{BW}, 1")
    a("s_lshl_b32 s33, s33, 14")
    a("s_add_u32 s3, s3, s33")
    a(f"s_add_u32 s32, s3, {WS_OF}")
    OFR = 96
    for st_ in range(16):
        a(f"s_add_u32 s33, s32, {st_*1024}")
        a(f"buffer_load_dwordx4 {v(OFR+4*st_,4)}, v1, s[{WSR}:{WSR+3}], s33 offen{SC1}")
    PA_ = [56, 72]
    WB = [24, 32]
    def rdW(st_):
        hd, f = st_ >> 1, st_ & 1
        off = (28 * hd + 16 * f) * 128
        b = WB[st_ & 1]
        for ct in range(2):
            a(f"ds_read_b64_tr_b16 {v(b+4*ct,2)}, v6 offset:{off+ct*64}")
            a(f"ds_read_b64_tr_b16 {v(b+4*ct+2,2)}, v6 offset:{off+ct*64+1024}")
    rdW(0)
    for st_ in range(16):
        if st_ + 1 < 16: rdW(st_ + 1)
        a(f"s_waitcnt vmcnt({15-st_}) lgkmcnt({4 if st_ + 1 < 16 else 0})")
        for ct in range(2):
            c = "0" if st_ == 0 else v(PA_[ct], 16)
            a(f"{MF} {v(PA_[ct],16)}, {v(OFR+4*st_,4)}, {v(WB[st_&1]+4*ct,4)}, {c}")
    a("s_nop 7")
    a("s_nop 3")
    a(f"s_xor_b32 s3, s{BW}, 1")
    a("s_lshl_b32 s3, s3, 12")
    a("s_add_u32 s3, s3, 65536")
    a(f"v_add_u32 v{t1}, s3, v1")
    a(f"s_and_b32 s33, s{BW}, 1")
    a("s_cmp_eq_u32 s33, 0")
    a(f"s_cbranch_scc0 {P}_send0")
    for q in range(4): a(f"ds_write_b128 v{t1}, {v(PA_[1]+4*q,4)} offset:{q*1024}")
    a(f"s_branch {P}_sent")
    a.label(P + "_send0")
    for q in range(4): a(f"ds_write_b128 v{t1}, {v(PA_[0]+4*q,4)} offset:{q*1024}")
    a("s_nop 1")
    for r in range(16): a(f"v_mov_b32 v{PA_[0]+r}, v{PA_[1]+r}")
    a.label(P + "_sent")
    bar()
    a(f"s_lshl_b32 s3, s{BW}, 12")
    a("s_add_u32 s3, s3, 65536")
    a(f"v_add_u32 v{t1}, s3, v1")
    for q in range(4): a(f"ds_read_b128 {v(96+4*q,4)}, v{t1} offset:{q*1024}")
    srd(a, 48, S_OUT, OUTBYTES)
    a(f"v_mul_u32_u24 v{VO_}, 1792, v{VT_}")
    a(f"v_lshl_add_u32 v{VO_}, v{VD_}, 2, v{VO_}")
    a("s_waitcnt lgkmcnt(0)")
    for r in range(16):
        a(f"v_add_f32 v{96+r}, v{96+r}, v{PA_[0]+r}")
        a(f"v_fma_f32 v{96+r}, v{GT+r}, v{96+r}, v{YT+r}")
    for r in range(16):
        a(f"buffer_store_dword v{96+r}, v{VO_}, s[48:51], 0 offen offset:{(r%2)*1792}")
        if r % 2 == 1 and r < 15: a(f"v_add_u32 v{VO_}, {2*1792}, v{VO_}")
    pf.stamp(14)
    a(f"s_branch {P}_end")
    a.label(P + "_skip")
    stage3("b")
    a(f"v_mov_b32 v54, {L_CNT}")
    a("v_mov_b32 v55, 1")
    a("s_mov_b64 exec, 1")
    a(f"ds_add_u32 v54, v55 offset:{C_UDONE}")
    a("s_mov_b64 exec, -1")
    a.label(P + "_end")

def lds_wait(a, coff, target, vaddr, vtmp, lab):
    a.label(lab)
    a(f"ds_read_b32 v{vtmp}, v{vaddr} offset:{coff}")
    a("s_waitcnt lgkmcnt(0)")
    a(f"v_readfirstlane_b32 s3, v{vtmp}")
    a(f"s_cmp_ge_u32 s3, {target}")
    a(f"s_cbranch_scc1 {lab}_ok")
    a("s_sleep 1")
    a(f"s_sub_u32 s{SPIN}, s{SPIN}, 1")
    a(f"s_cbranch_scc0 {lab}")
    a(f"s_mov_b32 s{SPIN}, 0")
    a.label(lab + "_ok")

def lds_arrive(a, coff, vaddr, vtmp):
    a(f"v_mov_b32 v{vaddr}, {L_CNT}")
    a(f"v_mov_b32 v{vtmp}, 1")
    a("s_mov_b64 exec, 1")
    a(f"ds_add_u32 v{vaddr}, v{vtmp} offset:{coff}")
    a("s_mov_b64 exec, -1")

def dma_loop(a, lab, vaddr, n, dsrc, dlds):
    a("s_mov_b32 s36, %d" % n)
    a.label(lab)
    a("s_sub_u32 s36, s36, 1")
    a(f"buffer_load_dwordx4 v{vaddr}, s[{TR}:{TR+3}], s32 offen lds")
    a(f"s_add_u32 s32, s32, {dsrc}")
    a(f"s_add_u32 m0, m0, {dlds}")
    a("s_cmp_lg_u32 s36, 0")
    a(f"s_cbranch_scc1 {lab}")

def q_loop(a, acc, X4, W4, vxe, vxo, vw):
    def rd(j):
        k = j & 3
        a(f"ds_read_b128 {v(X4+4*k,4)}, v{vxo if j & 1 else vxe} offset:{(j>>1)*4096}")
        a(f"ds_read_b64_tr_b16 {v(W4+4*k,2)}, v{vw} offset:{j*2048}")
        a(f"ds_read_b64_tr_b16 {v(W4+4*k+2,2)}, v{vw} offset:{j*2048+512}")
    for j in range(4): rd(j)
    for j in range(28):
        left = min(3, 27 - j)
        a(f"s_waitcnt lgkmcnt({3*left})")
        c = "0" if j == 0 else v(acc, 16)
        a(f"{MF} {v(acc,16)}, {v(W4+4*(j&3),4)}, {v(X4+4*(j&3),4)}, {c}")
        if j + 4 < 28: rd(j + 4)

def gen_fused(a):
    name = NAME + "_kernel"
    a(f".globl {name}")
    a(".p2align 8")
    a(f".type {name},@function")
    a.label(name)
    END = "L_end"
    a("s_cmp_ge_u32 s2, 256")
    a(f"s_cbranch_scc1 {END}")
    a("s_load_dwordx16 s[64:79], s[0:1], 0")
    a("s_load_dwordx16 s[80:95], s[0:1], 64")
    a("s_load_dwordx4 s[96:99], s[0:1], 128")
    a("v_lshrrev_b32 v2, 6, v0")
    a("v_and_b32 v0, 63, v0")
    a(f"v_readfirstlane_b32 s{WV}, v2")
    a(f"v_mov_b32 v4, {L_CNT}")
    a("v_mov_b32 v5, 0")
    a("v_lshl_add_u32 v4, v0, 2, v4")
    a("ds_write_b32 v4, v5")
    a(f"s_and_b32 s{RB}, s2, 7")
    a(f"s_lshl_b32 s{RB}, s{RB}, 2")
    a(f"s_lshr_b32 s{J2}, s2, 3")
    a(f"s_and_b32 s3, s{J2}, 3")
    a(f"s_add_u32 s{RB}, s{RB}, s3")
    a(f"s_lshr_b32 s{J2}, s{J2}, 2")
    a("v_lshlrev_b32 v1, 4, v0")
    a(f"s_mov_b32 s{SPIN}, 0x100000")
    a(f"s_sub_u32 s{BW}, s{WV}, 8")
    pfA = Prof(a, 167)
    a("s_waitcnt lgkmcnt(0)")
    a("s_barrier")
    srd(a, WSR, S_WS, WS_SIZE)
    if PROF: a("v_mov_b32 v167, 0")
    pfA.stamp(0)
    if PROF:
        a("s_getreg_b32 s60, hwreg(HW_REG_XCC_ID)")
        a("v_writelane_b32 v167, s60, 20")
        a("s_getreg_b32 s60, hwreg(HW_REG_HW_ID)")
        a("v_writelane_b32 v167, s60, 21")
    a(f"s_cmp_ge_u32 s{WV}, 8")
    a("s_cbranch_scc1 p0_bgw")
    a(f"s_cmp_ge_u32 s{WV}, 4")
    a("s_cbranch_scc1 p0_kvw")
    srd(a, TR, S_X, XBYTES)
    xtile_lane_off(a, 3, 0, 4, 5)
    a(f"s_mul_i32 s32, s{RB}, {64*896}")
    a(f"s_lshr_b32 s3, s{WV}, 1")
    a(f"s_mul_i32 s3, s3, {32*896}")
    a("s_add_u32 s32, s32, s3")
    a(f"s_and_b32 s3, s{WV}, 1")
    a(f"s_mul_i32 s3, s3, {8*896}")
    a("s_add_u32 s32, s32, s3")
    a(f"s_lshl_b32 s34, s{WV}, 10")
    a("s_mov_b32 m0, s34")
    dma_loop(a, "p0_xdma", 3, 14, 64, 4096)
    pfA.stamp(1)
    xfrag_addr(a, 6, 0, 4)
    tr_rowcol(a, 12, 13, 0, 4)
    a(f"s_lshr_b32 s38, s{WV}, 1")
    a(f"s_and_b32 s39, s{WV}, 1")
    a("s_lshl_b32 s3, s38, 11")
    a("v_add_u32 v6, s3, v6")
    a("v_xor_b32 v7, 32, v6")
    a("v_lshlrev_b32 v10, 7, v12")
    a("v_lshl_add_u32 v10, v13, 1, v10")
    a("s_mul_i32 s3, s39, 56")
    a(f"s_add_u32 s3, s3, {L_WQ}")
    a("v_add_u32 v10, s3, v10")
    a("s_waitcnt vmcnt(0)")
    lds_arrive(a, C_XR, 4, 5)
    pfA.stamp(2)
    a("s_waitcnt lgkmcnt(0)")
    a("s_barrier")
    pfA.stamp(3)
    q_loop(a, 16, 32, 48, 6, 7, 10)
    a(f"s_mov_b32 s42, {hex(QSCALE)}")
    a(f"s_lshl_b32 s3, s{WV}, 11")
    a(f"s_add_u32 s3, s3, {L_QX}")
    a("v_add_u32 v12, s3, v1")
    a("s_nop 7")
    a("s_nop 0")
    for i in range(16): a(f"v_mul_f32 v{16+i}, s42, v{16+i}")
    for i in range(8): a(f"v_cvt_pk_bf16_f32 v{32+i}, v{16+2*i}, v{17+2*i}")
    a("s_mov_b32 exec_lo, 0")
    a("v_mov_b32 v38, 0")
    a("v_mov_b32 v39, 0")
    a("s_mov_b32 exec_lo, -1")
    a("ds_write_b128 v12, v[32:35]")
    a("ds_write_b128 v12, v[36:39] offset:1024")
    a("s_branch p0_b1")
    a.label("p0_kvw")
    a("s_getpc_b64 s[56:57]")
    a.label("p0_pc")
    a(f"s_sub_u32 s39, s{WV}, 4")
    a("s_lshl_b32 s3, s39, 13")
    a("v_lshlrev_b32 v150, 7, v0")
    a("v_add_u32 v150, s3, v150")
    a(f"s_sub_u32 s56, s56, p0_pc-{NAME}_kernel")
    a("s_subb_u32 s57, s57, 0")
    a(f"s_mov_b32 s3, L_end-{NAME}_kernel")
    a("v_min_u32 v150, s3, v150")
    a("global_load_dword v150, v150, s[56:57]")
    a("s_cmp_eq_u32 s39, 0")
    a("s_cbranch_scc0 p0_pf_out")
    a("v_lshlrev_b32 v151, 21, v0")
    a("s_mov_b64 exec, 7")
    a(f"buffer_load_dword v151, v151, s[{WSR}:{WSR+3}], 0 offen")
    a("s_mov_b64 exec, -1")
    a.label("p0_pf_out")
    a("s_cmp_eq_u32 s39, 1")
    a("s_cbranch_scc0 p0_pf_done")
    srd(a, 48, S_OUT, OUTBYTES)
    a("v_mul_u32_u24 v151, 0x1c0000, v0")
    a("s_mov_b64 exec, 7")
    a("buffer_load_dword v151, v151, s[48:51], 0 offen")
    a("s_mov_b64 exec, -1")
    a.label("p0_pf_done")
    a(f"s_cmp_ge_u32 s{J2}, 3")
    a("s_cbranch_scc1 p0_kv_none")
    a("s_lshr_b32 s38, s39, 1")
    a("s_and_b32 s39, s39, 1")
    xfrag_addr(a, 6, 0, 4)
    tr_rowcol(a, 12, 13, 0, 4)
    a("s_lshl_b32 s3, s38, 11")
    a("s_mul_i32 s41, s39, 28672")
    a("s_add_u32 s3, s3, s41")
    a("v_add_u32 v6, s3, v6")
    a("v_xor_b32 v7, 32, v6")
    a("s_mul_i32 s40, s39, 14")
    a(f"s_cmp_eq_u32 s{J2}, 2")
    a("s_cbranch_scc1 p0_kv_gaddr")
    a("v_mul_u32_u24 v10, 56, v12")
    a("v_lshl_add_u32 v10, v13, 1, v10")
    a(f"s_mul_i32 s3, s40, {16*56}")
    a(f"s_add_u32 s3, s3, {L_WKV}")
    a("v_add_u32 v10, s3, v10")
    a("v_add_u32 v11, 224, v10")
    a(f"s_mov_b32 s42, {16*56}")
    a("s_branch p0_kv_addr_done")
    a.label("p0_kv_gaddr")
    a("v_lshlrev_b32 v10, 3, v12")
    a("s_lshl_b32 s3, s40, 7")
    a(f"s_add_u32 s3, s3, {L_WKV}")
    a("v_add_u32 v10, s3, v10")
    a("v_add_u32 v11, 32, v10")
    a("s_mov_b32 s42, 128")
    a.label("p0_kv_addr_done")
    a(f"v_mov_b32 v4, {L_CNT}")
    lds_wait(a, C_XR, 8, 4, 5, "p0_xr")
    pfA.stamp(2)
    def kv_rd(i):
        a(f"ds_read_b128 {v(32+4*i,4)}, v{6+(i&1)} offset:{(i>>1)*4096}")
        a(f"ds_read_b64_tr_b16 {v(88+4*i,2)}, v10")
        a(f"ds_read_b64_tr_b16 {v(88+4*i+2,2)}, v11")
        if i < 13:
            a("v_add_u32 v10, s42, v10")
            a("v_add_u32 v11, s42, v11")
    def kv_mm(swap, tag):
        for i in range(4): kv_rd(i)
        for i in range(14):
            a(f"s_waitcnt lgkmcnt({3*min(3, 13-i)})")
            A, B = (32+4*i, 88+4*i) if swap else (88+4*i, 32+4*i)
            a(f"{MF} v[16:31], {v(A,4)}, {v(B,4)}, {'0' if i == 0 else 'v[16:31]'}")
            if i + 4 < 14: kv_rd(i + 4)
    a(f"s_cmp_ge_u32 s{J2}, 1")
    a("s_cbranch_scc1 p0_kv_swap")
    kv_mm(False, "k")
    a("s_branch p0_kv_mm_done")
    a.label("p0_kv_swap")
    kv_mm(True, "v")
    a.label("p0_kv_mm_done")
    a("s_lshl_b32 s3, s38, 12")
    a(f"s_add_u32 s3, s3, {L_QX}")
    a("v_add_u32 v12, s3, v1")
    a("s_nop 7")
    a("s_nop 0")
    a("s_cmp_eq_u32 s39, 0")
    a("s_cbranch_scc1 p0_kv_root")
    for q in range(4): a(f"ds_write_b128 v12, {v(16+4*q,4)} offset:{q*1024}")
    a("s_waitcnt lgkmcnt(0)")
    a("s_lshl_b32 s3, s38, 2")
    a(f"v_mov_b32 v4, {L_CNT}")
    a("v_add_u32 v4, s3, v4")
    a("v_mov_b32 v5, 1")
    a("s_mov_b64 exec, 1")
    a(f"ds_add_u32 v4, v5 offset:{C_KVR}")
    a("s_mov_b64 exec, -1")
    a("s_branch p0_kv_none")
    a.label("p0_kv_root")
    a("s_lshl_b32 s3, s38, 2")
    a(f"v_mov_b32 v4, {L_CNT}")
    a("v_add_u32 v4, s3, v4")
    lds_wait(a, C_KVR, 1, 4, 5, "p0_kvr")
    for i in range(4): a(f"ds_read_b128 {v(32+4*i,4)}, v12 offset:{i*1024}")
    a("s_waitcnt lgkmcnt(0)")
    for r in range(16): a(f"v_add_f32 v{16+r}, v{16+r}, v{32+r}")
    a(f"s_lshl_b32 s43, s{RB}, 1")
    a("s_add_u32 s43, s43, s38")
    a(f"s_cmp_eq_u32 s{J2}, 2")
    a("s_cbranch_scc1 p0_gate_epi")
    for i in range(8): a(f"v_cvt_pk_bf16_f32 v{32+i}, v{16+2*i}, v{17+2*i}")
    a("s_lshl_b32 s44, s43, 12")
    a(f"s_add_u32 s44, s44, {WS_KV}")
    a(f"s_cmp_eq_u32 s{J2}, 1")
    a("s_cbranch_scc1 p0_v_epi")
    a("s_mov_b32 exec_lo, 0")
    a("v_mov_b32 v38, 0x3f803f80")
    a("v_mov_b32 v39, 0x00003f80")
    a("s_mov_b32 exec_lo, -1")
    a(f"buffer_store_dwordx4 v[32:35], v1, s[{WSR}:{WSR+3}], s44 offen{SC1}")
    a(f"buffer_store_dwordx4 v[36:39], v1, s[{WSR}:{WSR+3}], s44 offen offset:1024{SC1}")
    a("s_branch p0_kv_arrive")
    a.label("p0_v_epi")
    a("v_and_b32 v13, 31, v0")
    a("v_cmp_eq_u32 vcc, 28, v13")
    a("v_mov_b32 v14, 0x3f803f80")
    a("s_nop 0")
    a("v_cndmask_b32 v14, 0, v14, vcc")
    a("v_cmp_lt_u32 vcc, 27, v13")
    a("s_nop 1")
    for i in range(8): a(f"v_cndmask_b32 v{32+i}, v{32+i}, v14, vcc")
    a(f"buffer_store_dwordx4 v[32:35], v1, s[{WSR}:{WSR+3}], s44 offen offset:2048{SC1}")
    a(f"buffer_store_dwordx4 v[36:39], v1, s[{WSR}:{WSR+3}], s44 offen offset:3072{SC1}")
    a("s_branch p0_kv_arrive")
    a.label("p0_gate_epi")
    a(f"s_mov_b32 s42, {hex(LOG2E)}")
    for i in range(16): a(f"v_mul_f32 v{16+i}, s42, v{16+i}")
    for i in range(16): a(f"v_exp_f32 v{16+i}, -v{16+i}")
    for i in range(16): a(f"v_add_f32 v{16+i}, 1.0, v{16+i}")
    for i in range(16): a(f"v_rcp_f32 v{16+i}, v{16+i}")
    a("v_lshrrev_b32 v13, 5, v0")
    a("v_lshlrev_b32 v13, 6, v13")
    a("s_lshl_b32 s44, s43, 7")
    a(f"s_add_u32 s44, s44, {WS_G}")
    a("v_and_b32 v14, 31, v0")
    a("v_cmp_eq_u32 vcc, 0, v14")
    a("s_and_saveexec_b64 s[46:47], vcc")
    for q in range(4):
        a(f"buffer_store_dwordx4 {v(16+4*q,4)}, v13, s[{WSR}:{WSR+3}], s44 offen offset:{16*q}{SC1}")
    a("s_mov_b64 exec, -1")
    a.label("p0_kv_arrive")
    pfA.stamp(10)
    a("s_mov_b32 s16, 1")
    a("s_branch p0_kv_b0")
    a.label("p0_kv_none")
    a("s_mov_b32 s16, 0")
    a.label("p0_kv_b0")
    a("s_waitcnt lgkmcnt(0)")
    a("s_barrier")
    pfA.stamp(3)
    a("s_branch p0_b1")
    a.label("p0_bgw")
    a(f"s_cmp_eq_u32 s{WV}, 8")
    a("s_cbranch_scc0 p0_t9")
    srd(a, 48, S_X, XBYTES)
    a("s_and_b32 s3, s2, 7")
    a(f"s_mul_i32 s3, s3, {256*896}")
    a("s_lshr_b32 s46, s2, 3")
    a("s_mul_i32 s46, s46, 7168")
    a("s_add_u32 s3, s3, s46")
    a("v_lshlrev_b32 v50, 7, v0")
    a("s_mov_b32 exec_hi, 0xffffff")
    a("buffer_load_dword v52, v50, s[48:51], s3 offen")
    a("s_mov_b64 exec, -1")
    a("s_branch p0_t_done")
    a.label("p0_t9")
    a(f"s_cmp_eq_u32 s{WV}, 9")
    a("s_cbranch_scc0 p0_t10")
    touch_matrix(a, S_WQ, 52, 50)
    a("s_branch p0_t_done")
    a.label("p0_t10")
    a(f"s_cmp_eq_u32 s{WV}, 10")
    a("s_cbranch_scc0 p0_t_done")
    a("s_lshr_b32 s3, s2, 3")
    a(f"s_mul_i32 s3, s3, {7*128}")
    a("v_lshlrev_b32 v50, 7, v0")
    a("s_mov_b64 exec, 0x7f")
    srd(a, 48, S_WK, WKBYTES)
    a("buffer_load_dword v52, v50, s[48:51], s3 offen")
    srd(a, 48, S_WV, WKBYTES)
    a("buffer_load_dword v53, v50, s[48:51], s3 offen")
    a("s_mov_b64 exec, -1")
    a.label("p0_t_done")
    a(f"s_cmp_eq_u32 s{WV}, 11")
    a("s_cbranch_scc0 p0_nononce")
    a("s_cmp_eq_u32 s2, 0")
    a("s_cbranch_scc0 p0_nononce")
    srd(a, 48, S_DBG, 256)
    a("v_mov_b32 v7, 0")
    a("s_memrealtime s[60:61]")
    a("s_waitcnt lgkmcnt(0)")
    a("s_and_b32 s60, s60, 0xfffffffc")
    a("s_or_b32 s60, s60, 1")
    a("v_mov_b32 v6, s60")
    a("s_mov_b64 exec, 1")
    a(f"buffer_store_dword v6, v7, s[48:51], 0 offen offset:{D_NONCE}{SC1}")
    a("s_mov_b64 exec, -1")
    a("s_waitcnt vmcnt(0)")
    a.label("p0_nononce")
    a(f"s_cmp_lt_u32 s{J2}, 2")
    a("s_cbranch_scc1 p0_dma_wkv")
    a(f"s_cmp_eq_u32 s{J2}, 2")
    a("s_cbranch_scc0 p0_wkv_done")
    a(f"s_cmp_eq_u32 s{WV}, 8")
    a("s_cbranch_scc0 p0_wkv_done")
    srd(a, TR, S_GW, 896)
    a("v_lshlrev_b32 v3, 1, v0")
    for i in range(7):
        a(f"buffer_load_ushort v{10+i}, v3, s[{TR}:{TR+3}], 0 offen offset:{i*128}")
    a("v_lshlrev_b32 v4, 3, v0")
    a(f"v_add_u32 v4, {L_WKV}, v4")
    a("s_waitcnt vmcnt(0)")
    for i in range(7):
        a(f"v_lshl_or_b32 v{20+2*i}, v{10+i}, 16, v{10+i}")
        a(f"v_mov_b32 v{21+2*i}, v{20+2*i}")
        a(f"ds_write_b64 v4, {v(20+2*i,2)} offset:{i*512}")
    a("s_branch p0_wkv_done")
    a.label("p0_dma_wkv")
    a(f"s_cmp_eq_u32 s{J2}, 0")
    a(f"s_cselect_b32 s{TR}, s{S_WK}, s{S_WV}")
    a(f"s_cselect_b32 s{TR+1}, s{S_WK+1}, s{S_WV+1}")
    a(f"s_mov_b32 s{TR+2}, {WKBYTES}")
    a(f"s_mov_b32 s{TR+3}, 0x00020000")
    a("v_lshlrev_b32 v3, 4, v0")
    a(f"s_mul_i32 s32, s{BW}, 7168")
    a(f"s_add_u32 s34, s32, {L_WKV}")
    a("s_mov_b32 m0, s34")
    dma_loop(a, "p0_wdma", 3, 7, 1024, 1024)
    a.label("p0_wkv_done")
    a(f"s_lshl_b32 s37, s{J2}, 1")
    a(f"s_and_b32 s3, s{BW}, 1")
    a("s_add_u32 s37, s37, s3")
    a("v_and_b32 v4, 31, v0")
    a("s_lshl_b32 s3, s37, 6")
    a("v_lshl_add_u32 v4, v4, 1, s3")
    srd(a, 40, S_LRE, 896); a("buffer_load_ushort v8, v4, s[40:43], 0 offen")
    srd(a, 44, S_LIM, 896); a("buffer_load_ushort v9, v4, s[44:47], 0 offen")
    srd(a, 52, S_LDT, 896); a("buffer_load_ushort v10, v4, s[52:55], 0 offen")
    a("s_waitcnt vmcnt(3) lgkmcnt(0)")
    lds_arrive(a, C_XR, 4, 5)
    srd(a, TR, S_WQ, WBYTES)
    a("v_lshrrev_b32 v3, 3, v0")
    a("v_mul_u32_u24 v3, 896, v3")
    a("v_and_b32 v4, 7, v0")
    a("v_lshl_add_u32 v3, v4, 4, v3")
    a(f"s_mul_i32 s32, s{BW}, {112*896}")
    a(f"s_mul_i32 s33, s{J2}, 112")
    a("s_add_u32 s32, s32, s33")
    a(f"s_mul_i32 s34, s{BW}, 14336")
    a(f"s_add_u32 s34, s34, {L_WQ}")
    a("s_mov_b32 m0, s34")
    dma_loop(a, "p0_qdma", 3, 14, 7168, 1024)
    a(f"s_cmp_gt_u32 s{WV}, 9")
    a("s_cbranch_scc1 p0_nob")
    a(f"s_cmp_eq_u32 s{WV}, 8")
    a(f"s_cselect_b32 s56, s{S_BRE}, s{S_BIM}")
    a(f"s_cselect_b32 s57, s{S_BRE+1}, s{S_BIM+1}")
    touch_matrix(a, 56, 52, 50)
    a("s_mov_b32 s17, 1")
    a("s_waitcnt vmcnt(16)")
    a("s_branch p0_nob2")
    a.label("p0_nob")
    a("s_mov_b32 s17, 0")
    a("s_waitcnt vmcnt(14)")
    a.label("p0_nob2")
    a(f"v_mov_b32 v4, {L_CNT}")
    lds_wait(a, C_XR, 8, 4, 5, "p0_xr2")
    xfrag_addr(a, 6, 0, 4)
    a(f"s_lshr_b32 s38, s{BW}, 1")
    a("s_lshl_b32 s3, s38, 11")
    a("v_add_u32 v6, s3, v6")
    a("v_xor_b32 v7, 32, v6")
    for j in range(28):
        a(f"ds_read_b128 {v(56+4*j,4)}, v{6 + (j&1)} offset:{(j>>1)*4096}")
        if j in (11, 21): a("s_waitcnt lgkmcnt(2)")
    a("v_lshlrev_b32 v8, 16, v8")
    a("v_lshlrev_b32 v9, 16, v9")
    a("v_lshlrev_b32 v10, 16, v10")
    a(f"v_mul_f32 v10, {hex(LOG2E)}, v10")
    a("v_exp_f32 v10, v10")
    a("s_nop 0")
    a("v_cvt_pk_bf16_f32 v10, v10, v10")
    a("v_lshlrev_b32 v10, 16, v10")
    a("v_mul_f32 v11, v10, v8")
    a("v_mul_f32 v12, v10, v9")
    a(f"v_mul_f32 v11, {hex(LOG2E)}, v11")
    a(f"v_mul_f32 v12, {hex(INV2PI)}, v12")
    a("v_exp_f32 v13, v11")
    a("v_fract_f32 v14, v12")
    a("s_nop 0")
    a("v_cos_f32 v2, v14")
    a("v_sin_f32 v3, v14")
    a("s_nop 0")
    a("v_mul_f32 v2, v2, v13")
    a("v_mul_f32 v3, v3, v13")
    a("v_add_f32 v13, -1.0, v2")
    a("v_mul_f32 v14, v8, v8")
    a("v_fma_f32 v14, v9, v9, v14")
    a("v_rcp_f32 v14, v14")
    a("v_mul_f32 v15, v13, v8")
    a("v_fma_f32 v15, v3, v9, v15")
    a("v_mul_f32 v16, v3, v8")
    a("v_fma_f32 v16, -v13, v9, v16")
    a("v_mul_f32 v4, v15, v14")
    a("v_mul_f32 v5, v16, v14")
    a("s_cmp_eq_u32 s17, 0")
    a("s_cbranch_scc1 p0_bgw0")
    a("s_waitcnt vmcnt(2) lgkmcnt(0)")
    a("s_branch p0_bgw1")
    a.label("p0_bgw0")
    a("s_waitcnt vmcnt(0) lgkmcnt(0)")
    a.label("p0_bgw1")
    a("s_barrier")
    a.label("p0_b1")
    a("s_waitcnt lgkmcnt(0)")
    if PROF:
        a(f"s_cmp_ge_u32 s{WV}, 8")
        a("s_cbranch_scc1 p0_b1_bgst")
        pfA.stamp(9)
        a("s_branch p0_b1_go")
        a.label("p0_b1_bgst")
        BgProf(a).stamp(4)
        a.label("p0_b1_go")
    a("s_barrier")
    a(f"s_cmp_ge_u32 s{WV}, 8")
    a("s_cbranch_scc1 p1_bg")
    a(f"s_cmp_lt_u32 s{WV}, 4")
    a("s_cbranch_scc1 p1_noarr")
    a("s_cmp_eq_u32 s16, 0")
    a("s_cbranch_scc1 p1_noarr")
    a(f"v_mov_b32 v14, {L_CNT}")
    a("v_mov_b32 v15, 1")
    a("s_waitcnt vmcnt(0)")
    pfA.stamp(11)
    a("s_mov_b64 exec, 1")
    a(f"ds_add_rtn_u32 v15, v14, v15 offset:{C_KVA}")
    a("s_waitcnt lgkmcnt(0)")
    a("v_readfirstlane_b32 s3, v15")
    a("s_cmp_eq_u32 s3, 1")
    a("s_cbranch_scc0 p1_arrdone")
    srd(a, 48, S_DBG, 256)
    a("v_mov_b32 v14, 1")
    a(f"s_cmp_eq_u32 s{J2}, 2")
    a(f"s_cselect_b32 s3, {D_GCNT}, {D_CNT}")
    a("v_mov_b32 v15, s3")
    a("buffer_atomic_add v14, v15, s[48:51], 0 offen sc0 sc1")
    a("s_waitcnt vmcnt(0)")
    a("v_readfirstlane_b32 s3, v14")
    a(f"s_cmp_eq_u32 s{J2}, 2")
    a("s_cselect_b32 s46, 31, 63")
    a(f"s_mov_b32 s47, {D_GO}")
    a(f"s_cselect_b32 s47, {D_GOG}, s47")
    a("s_cmp_eq_u32 s3, s46")
    a("s_cbranch_scc0 p1_arrdone")
    a("v_mov_b32 v14, 1")
    a("v_mov_b32 v15, s47")
    a(f"buffer_store_dword v14, v15, s[48:51], 0 offen{SC1}")
    a.label("p1_arrdone")
    a("s_mov_b64 exec, -1")
    pfA.stamp(12)
    a.label("p1_noarr")
    if PROF: a("v_mov_b32 v0, v167")
    pf = Prof(a, 0)
    pf.stamp(4)
    gen_attention(a, pf)
    pf.flush(2)
    a(f"s_branch {END}")
    a.label("p1_bg")
    a("s_setprio 2")
    gen_background(a, BgProf(a))
    a.label(END)
    a("s_endpgm")
    return name

class BgProf:
    def __init__(self, a): self.a = a; self.T = [54, 55]
    def stamp(self, slot):
        if not PROF: return
        a = self.a
        a("s_memrealtime s[60:61]")
        a("s_lshl_b32 s62, s2, 4")
        a(f"s_add_u32 s62, s62, s{WV}")
        a("s_lshl_b32 s62, s62, 8")
        a(f"s_add_u32 s62, s62, {WS_PROF + 4*slot}")
        a("s_waitcnt vmcnt(0) lgkmcnt(0)")
        a("s_mov_b64 exec, 1")
        t0, t1 = self.T
        a(f"v_mov_b32 v{t0}, s60")
        a(f"v_mov_b32 v{t1}, 0")
        a(f"buffer_store_dword v{t0}, v{t1}, s[{WSR}:{WSR+3}], s62 offen")
        a("s_mov_b64 exec, -1")
        a("s_waitcnt vmcnt(0)")
    def flush(self): pass

def build():
    a = Asm()
    name = gen_fused(a)
    text = a.text()
    probs = check_hazards(text)
    ref = open("gated_mix__grouped_kv_mqa__ssm_conv_s5__prompt.s.ref").read().split("\n")
    pre = []
    for ln in ref:
        if not ln.startswith(";"): break
        if "Override launch" in ln or "grid=ceil" in ln or "@launch" in ln: continue
        pre.append(ln)
    head = "\n".join(pre) + "\n"
    head += f"; @launch grid=(256,1,1) block=(768,1,1) lds={LDS_TOTAL}\n"
    out = head + '.amdgcn_target "amdgcn-amd-amdhsa--gfx950"\n.text\n' + text
    out += f""".section .rodata,"a"
.p2align 6
.amdhsa_kernel {name}
  .amdhsa_next_free_vgpr 168
  .amdhsa_next_free_sgpr 102
  .amdhsa_accum_offset 168
  .amdhsa_group_segment_fixed_size 0
  .amdhsa_kernarg_size 144
  .amdhsa_user_sgpr_count 2
  .amdhsa_user_sgpr_kernarg_segment_ptr 1
  .amdhsa_system_sgpr_workgroup_id_x 1
.end_amdhsa_kernel
"""
    return out, probs

if __name__ == "__main__":
    out, probs = build()
    open(sys.argv[1], "w").write(out)
    print("wrote", sys.argv[1], "hazards:", len(probs))
```

```python
import sys, os, struct, math
from asmlib import Asm, v, s, check_hazards

NAME = "gated_mix__grouped_kv_mqa__ssm_conv_s5__prompt"
X = set(os.environ.get('XF', '').split(','))
PROF = "prof" in X
def f2u(x): return struct.unpack("<I", struct.pack("<f", x))[0]
QSCALE = f2u(math.log2(math.e) / math.sqrt(28.0))
LOG2E = f2u(math.log2(math.e))
INV2PI = f2u(1.0 / (2.0 * math.pi))
MF = "v_mfma_f32_32x32x16_bf16"
SC1 = " sc1"
POLLSLEEP = int(os.environ.get('PS', '1'))

WS_KV = 0x000000
WS_G  = 0x040000
WS_FL = 0x042000
FL_H  = WS_FL
FL_O  = WS_FL + 0x1000
WS_E  = 0x048000
D_CNT, D_GCNT, D_GO, D_NONCE, D_GOG = 0, 64, 128, 132, 136
WS_OF = 0x080000
WS_HF = 0x280000
WS_PROF = 0x800000
WS_SIZE = 0x1000000
XBYTES = 2048 * 448 * 2
WBYTES = 448 * 448 * 2
WKBYTES = 448 * 28 * 2
OUTBYTES = 2048 * 448 * 4

S_X, S_WQ, S_WK, S_WV, S_WO = 64, 66, 68, 70, 72
S_LRE, S_LIM = 76, 78
S_BRE, S_BIM, S_CRE, S_CIM, S_LDT, S_DSK, S_GW, S_OUT = 80, 82, 84, 86, 88, 90, 92, 94
S_DBG, S_WS = 96, 98
RB, J2, WV, BW = 20, 21, 22, 23
WSR = 24
TR = 28
NONCE = 19
SPIN = 18

L_X = 0; L_WQ = 57344; L_WKV = 114688; L_GW = 143360
L_QX = 147456
L_CNT = 163584
C_ATT, C_BG, C_NONCE, C_BAD, C_UDONE, C_HCNT, C_OCNT, C_XR, C_KVR, C_KVA = 0, 4, 8, 12, 16, 20, 24, 28, 32, 40
B_EX = 159744; B_HT = 65536
B_HT2 = 69632
L_C = 0
L_RED = 0
L_WO = 0
A_OP = 90112; A_LP = 155648
LDS_TOTAL = 163840

def srd(a, dst, src, nbytes):
    a(f"s_mov_b32 s{dst}, s{src}")
    a(f"s_mov_b32 s{dst+1}, s{src+1}")
    a(f"s_mov_b32 s{dst+2}, {hex(nbytes)}")
    a(f"s_mov_b32 s{dst+3}, 0x00020000")

class Prof:
    def __init__(self, a, vreg): self.a = a; self.v = vreg
    def stamp(self, slot):
        if not PROF: return
        a = self.a
        a("s_memrealtime s[60:61]")
        a("s_memtime s[62:63]")
        a("s_waitcnt lgkmcnt(0)")
        a(f"v_writelane_b32 v{self.v}, s60, {slot}")
        a(f"v_writelane_b32 v{self.v}, s62, {slot+32}")
    def flush(self, vt):
        if not PROF: return
        a = self.a
        a("s_lshl_b32 s60, s2, 4")
        a(f"s_add_u32 s60, s60, s{WV}")
        a("s_lshl_b32 s60, s60, 8")
        a(f"s_add_u32 s60, s60, {WS_PROF}")
        a("s_mov_b64 exec, -1")
        a(f"v_mbcnt_lo_u32_b32 v{vt}, -1, 0")
        a(f"v_mbcnt_hi_u32_b32 v{vt}, -1, v{vt}")
        a(f"v_lshlrev_b32 v{vt}, 2, v{vt}")
        a(f"buffer_store_dword v{self.v}, v{vt}, s[{WSR}:{WSR+3}], s60 offen")
        a("s_waitcnt vmcnt(0)")

def xtile_lane_off(a, vd, vlane, vt0, vt1):
    a(f"v_lshrrev_b32 v{vt0}, 4, v{vlane}")
    a(f"v_and_b32 v{vt1}, 1, v{vt0}")
    a(f"v_lshlrev_b32 v{vt1}, 4, v{vt1}")
    a(f"v_lshrrev_b32 v{vd}, 5, v{vlane}")
    a(f"v_lshl_add_u32 v{vt1}, v{vd}, 2, v{vt1}")
    a(f"v_bfe_u32 v{vd}, v{vlane}, 2, 2")
    a(f"v_add_u32 v{vt1}, v{vt1}, v{vd}")
    a(f"v_mul_u32_u24 v{vt1}, 896, v{vt1}")
    a(f"v_and_b32 v{vd}, 3, v{vlane}")
    a(f"v_xor_b32 v{vd}, v{vd}, v{vt0}")
    a(f"v_lshl_add_u32 v{vd}, v{vd}, 4, v{vt1}")

def plain_lane_off(a, vd, vlane, vt0):
    a(f"v_lshrrev_b32 v{vt0}, 4, v{vlane}")
    a(f"v_and_b32 v{vd}, 3, v{vlane}")
    a(f"v_xor_b32 v{vd}, v{vd}, v{vt0}")
    a(f"v_lshlrev_b32 v{vd}, 4, v{vd}")
    a(f"v_lshrrev_b32 v{vt0}, 2, v{vlane}")
    a(f"v_mul_u32_u24 v{vt0}, 896, v{vt0}")
    a(f"v_add_u32 v{vd}, v{vd}, v{vt0}")

def xfrag_addr(a, vd, vlane, vt0):
    a(f"v_bfe_u32 v{vt0}, v{vlane}, 2, 2")
    a(f"v_lshrrev_b32 v{vd}, 5, v{vlane}")
    a(f"v_xor_b32 v{vt0}, v{vt0}, v{vd}")
    a(f"v_lshlrev_b32 v{vt0}, 4, v{vt0}")
    a(f"v_and_b32 v{vd}, 31, v{vlane}")
    a(f"v_lshl_add_u32 v{vd}, v{vd}, 6, v{vt0}")

def tr_rowcol(a, vrow, vcol, vlane, vt):
    a(f"v_lshrrev_b32 v{vrow}, 5, v{vlane}")
    a(f"v_lshlrev_b32 v{vrow}, 3, v{vrow}")
    a(f"v_bfe_u32 v{vt}, v{vlane}, 2, 2")
    a(f"v_add_u32 v{vrow}, v{vrow}, v{vt}")
    a(f"v_and_b32 v{vcol}, 16, v{vlane}")
    a(f"v_and_b32 v{vt}, 3, v{vlane}")
    a(f"v_lshl_add_u32 v{vcol}, v{vt}, 2, v{vcol}")

def proj_loop(a, swap, acc, xe, xo, we, wo_, vxe, vxo, vw1, vw2, s_wstep, s_cnt, lab):
    def rd(xr, wr, vx):
        a(f"ds_read_b128 {v(xr,4)}, v{vx}")
        a(f"ds_read_b64_tr_b16 {v(wr,2)}, v{vw1}")
        a(f"ds_read_b64_tr_b16 {v(wr+2,2)}, v{vw2}")
        a(f"v_add_u32 v{vx}, 0x1000, v{vx}")
        a(f"v_add_u32 v{vw1}, s{s_wstep}, v{vw1}")
        a(f"v_add_u32 v{vw2}, s{s_wstep}, v{vw2}")
    def mf(x, w):
        A, B = (x, w) if swap else (w, x)
        a(f"{MF} {v(acc,16)}, {v(A,4)}, {v(B,4)}, {v(acc,16)}")
    rd(xe, we, vxe); rd(xo, wo_, vxo)
    a(f"s_mov_b32 s{s_cnt}, 14")
    a.label(lab)
    a("s_waitcnt lgkmcnt(3)")
    mf(xe, we)
    rd(xe, we, vxe)
    a("s_waitcnt lgkmcnt(3)")
    mf(xo, wo_)
    rd(xo, wo_, vxo)
    a(f"s_sub_u32 s{s_cnt}, s{s_cnt}, 1")
    a(f"s_cmp_lg_u32 s{s_cnt}, 0")
    a(f"s_cbranch_scc1 {lab}")
    a("s_waitcnt lgkmcnt(0)")

def sw_barrier(a, coff, s_tgt, n, vaddr, vtmp, lab):
    a(f"s_add_u32 s{s_tgt}, s{s_tgt}, {n}")
    a(f"v_mov_b32 v{vtmp}, 1")
    a("s_waitcnt lgkmcnt(0)")
    a("s_mov_b64 exec, 1")
    a(f"ds_add_u32 v{vaddr}, v{vtmp} offset:{coff}")
    a("s_mov_b64 exec, -1")
    a.label(lab)
    a(f"ds_read_b32 v{vtmp}, v{vaddr} offset:{coff}")
    a("s_waitcnt lgkmcnt(0)")
    a(f"v_readfirstlane_b32 s3, v{vtmp}")
    a(f"s_cmp_ge_u32 s3, s{s_tgt}")
    a(f"s_cbranch_scc1 {lab}_ok")
    a("s_sleep 1")
    a(f"s_sub_u32 s{SPIN}, s{SPIN}, 1")
    a(f"s_cbranch_scc0 {lab}")
    a(f"s_mov_b32 s{SPIN}, 0")
    a.label(lab + "_ok")

def flag_store(a, soff_reg, vt0, vt1, val=None):
    a("s_mov_b64 exec, 1")
    a(f"v_mov_b32 v{vt0}, s{val if val is not None else NONCE}")
    a(f"v_mov_b32 v{vt1}, 0")
    a(f"buffer_store_dword v{vt0}, v{vt1}, s[{WSR}:{WSR+3}], s{soff_reg} offen{SC1}")
    a("s_mov_b64 exec, -1")

def arrive_flag(a, coff, n, soff_reg, vt0, vt1, lab):
    a(f"v_mov_b32 v{vt0}, {L_CNT}")
    a(f"v_mov_b32 v{vt1}, 1")
    a("s_waitcnt vmcnt(0)")
    a("s_mov_b64 exec, 1")
    a(f"ds_add_rtn_u32 v{vt1}, v{vt0}, v{vt1} offset:{coff}")
    a("s_waitcnt lgkmcnt(0)")
    a(f"v_readfirstlane_b32 s60, v{vt1}")
    a("s_mov_b64 exec, -1")
    a(f"s_cmp_eq_u32 s60, {n-1}")
    a(f"s_cbranch_scc0 {lab}")
    flag_store(a, soff_reg, vt0, vt1)
    a.label(lab)

def poll(a, lab, vdst, voff, soff_reg, mask_pair, sleep=None):
    sleep = POLLSLEEP if sleep is None else sleep
    a.label(lab)
    a(f"buffer_load_dword v{vdst}, v{voff}, s[{WSR}:{WSR+3}], s{soff_reg} offen{SC1}")
    a("s_waitcnt vmcnt(0)")
    a(f"v_cmp_ne_u32 vcc, s{NONCE}, v{vdst}")
    a(f"s_and_b64 vcc, vcc, s[{mask_pair}:{mask_pair+1}]")
    a(f"s_cbranch_vccz {lab}_ok")
    a(f"s_sleep {sleep}")
    a(f"s_sub_u32 s{SPIN}, s{SPIN}, 1")
    a(f"s_cbranch_scc0 {lab}")
    a(f"s_mov_b32 s{SPIN}, 0")
    a.label(lab + "_ok")

def cfma(a, hr, hi, lr, li, ur, ui, tr, ti):
    a(f"v_fma_f32 v{tr}, -v{li}, v{hi}, v{ur}")
    a(f"v_fma_f32 v{ti}, v{li}, v{hr}, v{ui}")
    a(f"v_fma_f32 v{hr}, v{lr}, v{hr}, v{tr}")
    a(f"v_fma_f32 v{hi}, v{lr}, v{hi}, v{ti}")

L_JUNK = 161792
def touch_matrix(a, sptr, vdst, vt, sr=48):
    srd(a, sr, sptr, WBYTES)
    a("s_lshr_b32 s3, s2, 3")
    a(f"s_mul_i32 s3, s3, {98*128}")
    a(f"v_lshlrev_b32 v{vt}, 7, v0")
    a(f"s_mov_b32 m0, {L_JUNK}")
    a("s_nop 0")
    a(f"buffer_load_dword v{vt}, s[{sr}:{sr+3}], s3 offen lds")
    a("s_add_u32 s3, s3, 8192")
    a("s_mov_b32 exec_hi, 3")
    a(f"buffer_load_dword v{vt}, s[{sr}:{sr+3}], s3 offen lds")
    a("s_mov_b64 exec, -1")

AQ, AO, AS, AK, AV, APB = 8, 40, [104, 120], [136, 144], [152, 160], 4

def att_unit(a, u, side):
    up = u - 1; un = u + 1
    cur = AS[u & 1]; prv = AS[(u + 1) & 1]
    Vp = AV[(up >> 2) & 1]; Op = AO + 16 * (up & 3)
    Kn = AK[(un >> 2) & 1]; Qn = AQ + 8 * (un & 3)
    side = list(side)
    def E(lo, hi):
        for j in range(lo, hi):
            a(f"v_exp_f32 v{cur+j}, v{cur+j}")
            if side:
                x = side.pop(0)
                if x: a(x)
    while side and isinstance(side[0], tuple):
        a(side.pop(0)[1])
    a(f"{MF} {v(Op,16)}, {v(Vp,4)}, {v(prv,4)}, {v(Op,16)}")
    E(0, 4)
    a(f"v_cvt_pk_bf16_f32 v{APB+2}, v{prv+12}, v{prv+13}")
    a(f"v_cvt_pk_bf16_f32 v{APB+3}, v{prv+14}, v{prv+15}")
    a(f"{MF} {v(prv,16)}, {v(Kn,4)}, {v(Qn,4)}, 0")
    E(4, 8)
    a(f"v_cvt_pk_bf16_f32 v{cur}, v{cur}, v{cur+1}")
    a(f"v_cvt_pk_bf16_f32 v{cur+1}, v{cur+2}, v{cur+3}")
    a(f"{MF} {v(prv,16)}, {v(Kn+4,4)}, {v(Qn+4,4)}, {v(prv,16)}")
    E(8, 12)
    a(f"v_cvt_pk_bf16_f32 v{cur+2}, v{cur+4}, v{cur+5}")
    a(f"v_cvt_pk_bf16_f32 v{cur+3}, v{cur+6}, v{cur+7}")
    a(f"{MF} {v(Op,16)}, {v(Vp+4,4)}, {v(APB,4)}, {v(Op,16)}")
    E(12, 16)
    a(f"v_cvt_pk_bf16_f32 v{APB}, v{cur+8}, v{cur+9}")
    a(f"v_cvt_pk_bf16_f32 v{APB+1}, v{cur+10}, v{cur+11}")
    assert not side, side

def gen_attention(a, pf):
    P = "att"
    KR = TR
    a(f"v_add_u32 v2, {L_QX}, v1")
    for g in range(4):
        a(f"ds_read_b128 {v(AQ+8*g,4)}, v2 offset:{g*2048}")
        a(f"ds_read_b128 {v(AQ+8*g+4,4)}, v2 offset:{g*2048+1024}")
    a(f"s_add_u32 s{KR}, s{WSR}, {WS_KV}")
    a(f"s_addc_u32 s{KR+1}, s{WSR+1}, 0")
    a(f"s_mov_b32 s{KR+2}, 0x40000")
    a(f"s_mov_b32 s{KR+3}, 0x00020000")
    a("s_mov_b32 s44, 0")
    a("s_mov_b32 s51, 0")
    for j in range(4): a(f"v_mov_b32 v{APB+j}, 0")
    for j in range(8): a(f"v_mov_b32 v{AV[1]+j}, 0")
    a(f"s_cmp_eq_u32 s{WV}, 0")
    a(f"s_cbranch_scc0 {P}_nopoll")
    srd(a, 48, S_DBG, 256)
    a(f"v_mov_b32 v2, {D_GO}")
    a.label(P + "_poll")
    a(f"buffer_load_dword v104, v2, s[48:51], 0 offen{SC1}")
    a("s_waitcnt vmcnt(0)")
    a("v_readfirstlane_b32 s3, v104")
    a("s_cmp_lg_u32 s3, 0")
    a(f"s_cbranch_scc1 {P}_nopoll")
    a(f"s_sleep {POLLSLEEP}")
    a(f"s_sub_u32 s{SPIN}, s{SPIN}, 1")
    a(f"s_cbranch_scc0 {P}_poll")
    a(f"s_mov_b32 s{SPIN}, 0")
    a.label(P + "_nopoll")
    if "delayspin" in X:
        a(f"s_cmp_eq_u32 s{WV}, 0")
        a(f"s_cbranch_scc1 {P}_ds")
        a("s_sleep 127")
        a.label(P + "_ds")
    a(f"v_mov_b32 v3, {L_CNT}")
    sw_barrier(a, C_ATT, 44, 8, 3, 2, P + "_b0")
    pf.stamp(5)
    a("s_lshr_b32 s52, s2, 3")
    a("s_lshl_b32 s52, s52, 3")
    a(f"s_add_u32 s52, s52, s{WV}")
    a("s_lshl_b32 s52, s52, 10")
    a(f"buffer_load_dwordx4 {v(AS[0],4)}, v1, s[{KR}:{KR+3}], s52 offen{SC1}")
    a(f"buffer_load_dwordx4 {v(AS[1],4)}, v1, s[{KR}:{KR+3}], 0 offen{SC1}")
    a(f"buffer_load_dwordx4 {v(AS[1]+4,4)}, v1, s[{KR}:{KR+3}], 0 offen offset:1024{SC1}")
    a(f"s_lshl_b32 s43, s{WV}, 15")
    a(f"buffer_load_dwordx4 {v(AK[0],4)}, v1, s[{KR}:{KR+3}], s43 offen{SC1}")
    a(f"buffer_load_dwordx4 {v(AK[0]+4,4)}, v1, s[{KR}:{KR+3}], s43 offen offset:1024{SC1}")
    a(f"buffer_load_dwordx4 {v(AV[0],4)}, v1, s[{KR}:{KR+3}], s43 offen offset:2048{SC1}")
    a(f"buffer_load_dwordx4 {v(AV[0]+4,4)}, v1, s[{KR}:{KR+3}], s43 offen offset:3072{SC1}")
    a("s_add_u32 s43, s43, 4096")
    a(f"buffer_load_dwordx4 {v(AK[1],4)}, v1, s[{KR}:{KR+3}], s43 offen{SC1}")
    a(f"buffer_load_dwordx4 {v(AK[1]+4,4)}, v1, s[{KR}:{KR+3}], s43 offen offset:1024{SC1}")
    a("s_waitcnt vmcnt(6)")
    for g in range(4):
        a(f"{MF} {v(AO+16*g,16)}, {v(AS[1],4)}, {v(AQ+8*g,4)}, 0")
        a(f"{MF} {v(AO+16*g,16)}, {v(AS[1]+4,4)}, {v(AQ+8*g+4,4)}, {v(AO+16*g,16)}")
    a("s_nop 5")
    for g in range(4):
        o = AO + 16 * g
        a(f"v_max3_f32 v2, v{o}, v{o+1}, v{o+2}")
        for j in range(3, 15, 2):
            a(f"v_max3_f32 v2, v2, v{o+j}, v{o+j+1}")
        a(f"v_max_f32 v2, v2, v{o+15}")
        a("v_mov_b32 v3, v2")
        a("s_nop 1")
        a("v_permlane32_swap_b32 v2, v3")
        a("v_max_f32 v2, v2, v3")
        a("v_cvt_pk_bf16_f32 v2, -v2, 0")
        a("s_mov_b32 exec_lo, 0")
        a(f"v_mov_b32 v{AQ+8*g+6}, v2")
        a("s_mov_b32 exec_lo, -1")
    for j in (0, 1, 2, 3, 12, 13, 14, 15): a(f"v_mov_b32 v{AS[1]+j}, 0")
    for g in range(4):
        a(f"{MF} {v(AO+16*g,16)}, {v(AV[1],4)}, {v(APB,4)}, 0")
    a("s_waitcnt vmcnt(4)")
    a(f"{MF} {v(AS[0],16)}, {v(AK[0],4)}, {v(AQ,4)}, 0")
    a(f"{MF} {v(AS[0],16)}, {v(AK[0]+4,4)}, {v(AQ+4,4)}, {v(AS[0],16)}")
    a("s_mov_b32 s48, 0")
    if "fair" in X:
        a(f"s_and_b32 s3, s{WV}, 3")
        a("s_lshl_b32 s3, s3, 2")
        a(f"s_add_u32 s3, s3, {L_CNT + 64}")
        a("v_mov_b32 v2, s3")
        a(f"s_cmp_lt_u32 s{WV}, 4")
        a("s_cselect_b32 s53, 1, -1")
        a("s_setprio 2")
    a("s_nop 7")
    a("s_nop 1")
    pf.stamp(6)
    a(".p2align 3")
    a.label(P + "_loop")
    if "itstamp" in X:
        a("s_memrealtime s[60:61]")
        a("s_add_u32 s62, s48, 13")
        a("s_waitcnt lgkmcnt(0)")
        a("s_mov_b32 m0, s62")
        a("s_nop 3")
        a("v_writelane_b32 v0, s60, m0")
    for u in range(8):
        g = u & 3; par = (u >> 2) & 1
        side = []
        LSC = "" if "nosc1loop" in X else SC1
        if g == 1:
            side.append(("q0", "s_waitcnt vmcnt(2)"))
            if "noloads" not in X:
                side.append(f"buffer_load_dwordx4 {v(AV[par^1],4)}, v1, s[{KR}:{KR+3}], s43 offen offset:2048{LSC}")
                side.append(f"buffer_load_dwordx4 {v(AV[par^1]+4,4)}, v1, s[{KR}:{KR+3}], s43 offen offset:3072{LSC}")
            side.append("s_add_u32 s43, s43, 4096")
            if par == 0:
                side.append("s_cmp_eq_u32 s48, 3")
                side.append(f"s_cselect_b32 s{KR+2}, 0, s{KR+2}")
        if "fair" in X and g == 0:
            side += ["v_mov_b32 v3, s53", None, "s_mov_b64 exec, 1\nds_add_rtn_u32 v3, v2, v3\ns_mov_b64 exec, -1"]
        if "fair" in X and g == 2:
            lab = f"{P}_fp{u}"
            side += ["s_waitcnt lgkmcnt(0)", "v_readfirstlane_b32 s54, v3", None, "s_mul_i32 s54, s54, s53", "s_cmp_gt_i32 s54, 0",
                     f"s_cbranch_scc1 {lab}a\ns_setprio 2\ns_branch {lab}b\n{lab}a:\ns_setprio 1\n{lab}b:"]
        if g == 3:
            side += [None, None, None, "s_waitcnt vmcnt(2)"]
            if "noloads" not in X:
                side.append(f"buffer_load_dwordx4 {v(AK[par],4)}, v1, s[{KR}:{KR+3}], s43 offen{LSC}")
                side.append(f"buffer_load_dwordx4 {v(AK[par]+4,4)}, v1, s[{KR}:{KR+3}], s43 offen offset:1024{LSC}")
            else:
                side += [None, None]
            if par == 1:
                side += ["s_add_u32 s48, s48, 1", None, None, None, None, None, None, None, None, "s_cmp_lt_u32 s48, 4"]
        att_unit(a, u, side)
    a(f"s_cbranch_scc1 {P}_loop")
    prv = AS[1]
    a(f"{MF} {v(AO+48,16)}, {v(AV[1],4)}, {v(prv,4)}, {v(AO+48,16)}")
    a(f"v_cvt_pk_bf16_f32 v{APB+2}, v{prv+12}, v{prv+13}")
    a(f"v_cvt_pk_bf16_f32 v{APB+3}, v{prv+14}, v{prv+15}")
    a("s_nop 1")
    a(f"{MF} {v(AO+48,16)}, {v(AV[1]+4,4)}, {v(APB,4)}, {v(AO+48,16)}")
    pf.stamp(7)
    a(f"v_mov_b32 v3, {L_CNT}")
    a.label(P + "_udone")
    a(f"ds_read_b32 v2, v3 offset:{C_UDONE}")
    a("s_waitcnt lgkmcnt(0)")
    a("v_readfirstlane_b32 s3, v2")
    a("s_cmp_ge_u32 s3, 4")
    a(f"s_cbranch_scc1 {P}_udone_ok")
    a(f"s_sub_u32 s{SPIN}, s{SPIN}, 1")
    a(f"s_cbranch_scc0 {P}_udone")
    a(f"s_mov_b32 s{SPIN}, 0")
    a.label(P + "_udone_ok")
    a(f"s_lshl_b32 s3, s{WV}, 13")
    a(f"s_add_u32 s3, s3, {A_OP}")
    a(f"v_add_u32 v2, s3, v1")
    a(f"s_lshl_b32 s3, s{WV}, 9")
    a(f"s_add_u32 s3, s3, {A_LP}")
    a("v_lshrrev_b32 v3, 2, v1")
    a("v_and_b32 v4, 127, v3")
    a("v_add_u32 v4, s3, v4")
    for g in range(4):
        o = AO + 16 * g
        if g == 3: a("s_nop 7")
        a("s_mov_b32 exec_lo, 0")
        a(f"ds_write_b32 v4, v{o+12} offset:{g*128}")
        a("s_mov_b32 exec_lo, -1")
        for j in range(8):
            a(f"v_cvt_pk_bf16_f32 v{AS[0]+8*g+j}, v{o+2*j}, v{o+2*j+1}")
        a(f"ds_write_b128 v2, {v(AS[0]+8*g,4)} offset:{g*2048}")
        a(f"ds_write_b128 v2, {v(AS[0]+8*g+4,4)} offset:{g*2048+1024}")
    a(f"v_mov_b32 v3, {L_CNT}")
    pf.stamp(17)
    sw_barrier(a, C_ATT, 44, 8, 3, 2, P + "_b1")
    pf.stamp(18)
    a(f"s_lshl_b32 s3, s{WV}, 10")
    a(f"s_add_u32 s3, s3, {A_OP}")
    a("v_add_u32 v2, s3, v1")
    for w in range(8):
        a(f"ds_read_b128 {v(AO+4*w,4)}, v2 offset:{w*8192}")
    a(f"s_lshr_b32 s45, s{WV}, 1")
    a("s_lshl_b32 s3, s45, 7")
    a(f"s_add_u32 s3, s3, {A_LP}")
    a("v_lshrrev_b32 v3, 2, v1")
    a("v_and_b32 v3, 127, v3")
    a("v_add_u32 v3, s3, v3")
    acc = AO + 40
    a("s_mov_b32 s46, 0x00003f80")
    a("s_mov_b32 s49, 0x3f800000")
    for j in range(8): a(f"v_mov_b32 v{acc+j}, 0")
    for w in range(7):
        a(f"ds_read_b32 v{AO+32+w}, v3 offset:{w*512}")
    for w in range(8):
        a(f"s_waitcnt lgkmcnt({14 - w})" if w < 7 else "s_waitcnt lgkmcnt(7)")
        if w == 0: a(f"ds_read_b32 v{AO+39}, v3 offset:{7*512}")
        for j in range(4):
            a(f"v_dot2c_f32_bf16 v{acc+2*j}, s46, v{AO+4*w+j}")
            a(f"v_dot2c_f32_bf16 v{acc+2*j+1}, s49, v{AO+4*w+j}")
    a("s_waitcnt lgkmcnt(0)")
    l = AO + 32
    a(f"v_add_f32 v{l}, v{l}, v{l+1}")
    a(f"v_add_f32 v{l+2}, v{l+2}, v{l+3}")
    a(f"v_add_f32 v{l+4}, v{l+4}, v{l+5}")
    a(f"v_add_f32 v{l+6}, v{l+6}, v{l+7}")
    a(f"v_add_f32 v{l}, v{l}, v{l+2}")
    a(f"v_add_f32 v{l+4}, v{l+4}, v{l+6}")
    a(f"v_add_f32 v{l}, v{l}, v{l+4}")
    a(f"v_rcp_f32 v{l+1}, v{l}")
    a("s_nop 0")
    for j in range(8): a(f"v_mul_f32 v{acc+j}, v{acc+j}, v{l+1}")
    for j in range(4): a(f"v_cvt_pk_bf16_f32 v{AO+j}, v{acc+2*j}, v{acc+2*j+1}")
    a(f"s_and_b32 s3, s{WV}, 1")
    a("s_cmp_eq_u32 s3, 1")
    a("s_cselect_b32 exec_hi, -1, 0")
    a("s_mov_b32 exec_lo, 0")
    a(f"v_mov_b32 v{AO+2}, 0")
    a(f"v_mov_b32 v{AO+3}, 0")
    a("s_mov_b64 exec, -1")
    a("s_lshr_b32 s3, s45, 1")
    a(f"s_lshl_b32 s46, s{RB}, 1")
    a("s_add_u32 s3, s3, s46")
    a("s_lshl_b32 s3, s3, 4")
    a(f"s_lshl_b32 s46, s{J2}, 1")
    a("s_add_u32 s3, s3, s46")
    a("s_and_b32 s46, s45, 1")
    a("s_add_u32 s3, s3, s46")
    a("s_lshl_b32 s3, s3, 11")
    a(f"s_and_b32 s46, s{WV}, 1")
    a("s_lshl_b32 s46, s46, 10")
    a("s_add_u32 s3, s3, s46")
    a(f"s_add_u32 s3, s3, {WS_OF}")
    pf.stamp(19)
    a(f"buffer_store_dwordx4 {v(AO,4)}, v1, s[{WSR}:{WSR+3}], s3 offen{SC1}")
    if "dup" in X:
        a(f"buffer_store_dwordx4 {v(AO,4)}, v1, s[{WSR}:{WSR+3}], s3 offen")
    a(f"v_mov_b32 v3, {L_CNT}")
    a(f"ds_read_b32 v2, v3 offset:{C_NONCE}")
    a("s_waitcnt lgkmcnt(0)")
    a(f"v_readfirstlane_b32 s{NONCE}, v2")
    a(f"s_lshl_b32 s3, s{RB}, 5")
    a(f"s_add_u32 s3, s3, s{J2}")
    a("s_lshl_b32 s3, s3, 2")
    a(f"s_add_u32 s3, s3, {FL_O}")
    arrive_flag(a, C_OCNT, 8, 3, 2, 3, P + "_oflag")
    pf.stamp(8)

def gen_background(a, pf):
    P = "bg"
    XF = 56; ARE, AIM = 8, 24
    nbar = [0]
    T = [54, 55]
    pf.T = T
    def bar():
        nbar[0] += 1
        a(f"v_mov_b32 v{T[0]}, {L_CNT}")
        sw_barrier(a, C_BG, 44, 4, T[0], T[1], f"{P}_bar{nbar[0]}")
    def stage3(tag, vd_=156, vt_=158):
        if "nopf" in X: return
        a(f"s_cmp_eq_u32 s{BW}, 3")
        a(f"s_cbranch_scc1 {P}_not3{tag}")
        a(f"s_cmp_eq_u32 s{BW}, 0")
        a(f"s_cselect_b32 s56, s{S_CRE}, s{S_CIM}")
        a(f"s_cselect_b32 s57, s{S_CRE+1}, s{S_CIM+1}")
        a(f"s_cmp_eq_u32 s{BW}, 2")
        a(f"s_cselect_b32 s56, s{S_WO}, s56")
        a(f"s_cselect_b32 s57, s{S_WO+1}, s57")
        touch_matrix(a, 56, vd_, vt_)
        a.label(P + "_not3" + tag)
    a("s_mov_b32 s44, 0")
    a(f"s_lshl_b32 s37, s{J2}, 1")
    a(f"s_and_b32 s3, s{BW}, 1")
    a("s_add_u32 s37, s37, s3")
    a(f"s_lshr_b32 s38, s{BW}, 1")
    a(f"s_cmp_eq_u32 s{BW}, 3")
    a(f"s_cbranch_scc0 {P}_nononce")
    srd(a, 48, S_DBG, 256)
    a("v_mov_b32 v7, 0")
    a.label(P + "_npoll")
    a(f"buffer_load_dword v6, v7, s[48:51], 0 offen offset:{D_NONCE}{SC1}")
    a("s_waitcnt vmcnt(0)")
    a("v_readfirstlane_b32 s3, v6")
    a("s_cmp_lg_u32 s3, 0")
    a(f"s_cbranch_scc1 {P}_npoll_ok")
    a(f"s_sleep {POLLSLEEP}")
    a(f"s_sub_u32 s{SPIN}, s{SPIN}, 1")
    a(f"s_cbranch_scc0 {P}_npoll")
    a(f"s_mov_b32 s{SPIN}, 0")
    a.label(P + "_npoll_ok")
    a(f"v_mov_b32 v7, {L_CNT}")
    a(f"ds_write_b32 v7, v6 offset:{C_NONCE}")
    a.label(P + "_nononce")
    a(f"s_cmp_eq_u32 s{J2}, 7")
    a(f"s_cbranch_scc1 {P}_skip")
    if "nobg" in X: a(f"s_branch {P}_skip")
    a(f"s_and_b32 s3, s{BW}, 1")
    a("s_cmp_eq_u32 s3, 0")
    a(f"s_cselect_b32 s{TR}, s{S_BRE}, s{S_BIM}")
    a(f"s_cselect_b32 s{TR+1}, s{S_BRE+1}, s{S_BIM+1}")
    a(f"s_mov_b32 s{TR+2}, {WBYTES}")
    a(f"s_mov_b32 s{TR+3}, 0x00020000")
    plain_lane_off(a, 8, 0, 9)
    a(f"s_lshl_b32 s3, s{J2}, 1")
    a("s_add_u32 s3, s3, s38")
    a(f"s_mul_i32 s32, s3, {32*896}")
    a(f"s_lshl_b32 s34, s{BW}, 11")
    a("s_mov_b32 m0, s34")
    a("s_mov_b32 s36, 14")
    a.label(P + "_bdma")
    a(f"s_add_u32 s33, s32, {16*896}")
    a(f"buffer_load_dwordx4 v8, s[{TR}:{TR+3}], s32 offen lds")
    a("s_add_u32 m0, m0, 1024")
    a("s_sub_u32 s36, s36, 1")
    a(f"buffer_load_dwordx4 v8, s[{TR}:{TR+3}], s33 offen lds")
    a("s_add_u32 s32, s32, 64")
    a(f"s_add_u32 m0, m0, {8192-1024}")
    a("s_cmp_lg_u32 s36, 0")
    a(f"s_cbranch_scc1 {P}_bdma")
    xfrag_addr(a, 6, 0, 8)
    a(f"s_and_b32 s3, s{BW}, 1")
    a("s_lshl_b32 s3, s3, 12")
    a("v_add_u32 v6, s3, v6")
    a("v_xor_b32 v7, 32, v6")
    a("s_waitcnt vmcnt(0)")
    bar()
    a(f"ds_read_b32 v55, v54 offset:{C_NONCE}")
    a("s_waitcnt lgkmcnt(0)")
    a(f"v_readfirstlane_b32 s{NONCE}, v55")
    pf.stamp(5)
    S3 = os.environ.get("S3", "b")
    if S3 == "b": stage3("a", 52, 54)
    BB = [40, 48]
    def rdB(j):
        b = BB[j & 1]
        if j in (16, 17): a(f"v_add_u32 v{6+(j&1)}, 0x10000, v{6+(j&1)}")
        o = (j >> 1) * 8192 - (65536 if j >= 16 else 0)
        a(f"ds_read_b128 {v(b,4)}, v{6+(j&1)} offset:{o}")
        a(f"ds_read_b128 {v(b+4,4)}, v{6+(j&1)} offset:{o+2048}")
    rdB(0); rdB(1)
    for j in range(28):
        b = BB[j & 1]
        a("s_waitcnt lgkmcnt(2)" if j < 27 else "s_waitcnt lgkmcnt(0)")
        c1 = "0" if j == 0 else v(ARE,16); c2 = "0" if j == 0 else v(AIM,16)
        a(f"{MF} {v(ARE,16)}, {v(XF+4*j,4)}, {v(b,4)}, {c1}")
        a(f"{MF} {v(AIM,16)}, {v(XF+4*j,4)}, {v(b+4,4)}, {c2}")
        if j + 2 < 28: rdB(j + 2)
    a(f"v_mov_b32 v54, {L_CNT}")
    a("v_mov_b32 v55, 1")
    a("s_mov_b64 exec, 1")
    a(f"ds_add_u32 v54, v55 offset:{C_UDONE}")
    a("s_mov_b64 exec, -1")
    pf.stamp(6)
    if S3 == "u": stage3("a")
    def csq(dr, di, sr, si):
        a(f"v_mul_f32 v46, v{si}, v{si}")
        a(f"v_mul_f32 v47, v{sr}, v{si}")
        a(f"v_fma_f32 v{dr}, v{sr}, v{sr}, -v46")
        a(f"v_add_f32 v{di}, v47, v47")
    csq(40, 41, 2, 3)
    for _ in range(3): csq(40, 41, 40, 41)
    csq(42, 43, 40, 41); csq(42, 43, 42, 43)
    csq(44, 45, 42, 43)
    for _ in range(3): csq(44, 45, 44, 45)
    a("v_mov_b32 v48, v4")
    a("v_mov_b32 v49, v4")
    a("v_mov_b32 v50, v5")
    a("v_mov_b32 v51, v5")
    for r in range(0, 16, 2):
        a(f"v_pk_mul_f32 v[46:47], v[50:51], {v(AIM+r,2)}")
        a(f"v_pk_mul_f32 v[52:53], v[50:51], {v(ARE+r,2)}")
        a(f"v_pk_fma_f32 {v(ARE+r,2)}, v[48:49], {v(ARE+r,2)}, v[46:47] neg_lo:[0,0,1] neg_hi:[0,0,1]")
        a(f"v_pk_fma_f32 {v(AIM+r,2)}, v[48:49], {v(AIM+r,2)}, v[52:53]")
    a(f"v_mov_b32 v48, v{ARE}")
    a(f"v_mov_b32 v49, v{AIM}")
    for r in range(1, 16):
        cfma(a, 48, 49, 2, 3, ARE + r, AIM + r, 46, 47)
    a("v_and_b32 v50, 31, v0")
    a("v_lshlrev_b32 v50, 3, v50")
    a(f"s_and_b32 s3, s{BW}, 1")
    a("s_lshl_b32 s3, s3, 10")
    a(f"s_add_u32 s3, s3, {B_EX}")
    a("v_add_u32 v50, s3, v50")
    a("v_lshrrev_b32 v51, 5, v0")
    a("s_lshl_b32 s3, s38, 1")
    a("v_add_u32 v51, s3, v51")
    a("v_lshl_add_u32 v52, v51, 8, v50")
    a("ds_write_b64 v52, v[48:49]")
    bar()
    for c in range(4):
        a(f"ds_read_b64 {v(56+2*c,2)}, v50 offset:{c*256}")
    a("s_waitcnt lgkmcnt(0)")
    a("v_mov_b32 v64, v56")
    a("v_mov_b32 v65, v57")
    for c in range(1, 4):
        cfma(a, 64, 65, 40, 41, 56 + 2*c, 57 + 2*c, 46, 47)
    a("s_cmp_eq_u32 s38, 1")
    a(f"s_cbranch_scc0 {P}_nopub")
    a(f"s_mul_i32 s3, s{RB}, {448*16}")
    a("s_lshl_b32 s33, s37, 9")
    a("s_add_u32 s3, s3, s33")
    a(f"s_add_u32 s3, s3, {WS_E}")
    a(f"v_mov_b32 v66, s{NONCE}")
    a(f"v_mov_b32 v67, s{NONCE}")
    a("v_and_b32 v68, 31, v0")
    a("v_lshlrev_b32 v68, 4, v68")
    a("s_mov_b32 exec_hi, 0")
    a(f"buffer_store_dwordx4 v[64:67], v68, s[{WSR}:{WSR+3}], s3 offen{SC1}")
    a("s_mov_b64 exec, -1")
    a.label(P + "_nopub")
    pf.stamp(7)
    a(f"s_add_u32 s48, s{WSR}, {WS_E}")
    a(f"s_addc_u32 s49, s{WSR+1}, 0")
    a(f"s_mov_b32 s50, {32*448*16}")
    a("s_mov_b32 s51, 0x00020000")
    a("v_lshrrev_b32 v67, 5, v0")
    a("v_lshlrev_b32 v67, 4, v67")
    a(f"v_sub_u32 v67, s{RB}, v67")
    a("v_add_u32 v67, -1, v67")
    a(f"s_mov_b32 s3, {448*16}")
    a("v_mul_lo_u32 v68, v67, s3")
    a("v_and_b32 v66, 31, v0")
    a("v_lshlrev_b32 v66, 4, v66")
    a("s_lshl_b32 s33, s37, 9")
    a("v_add3_u32 v68, v68, v66, s33")
    EG = 72
    for i in range(1, 16):
        a(f"v_subrev_u32 v{136+i}, {448*16*i}, v68")
    a("v_mov_b32 v136, v68")
    a.label(P + "_pollE")
    for i in range(16):
        a(f"buffer_load_dwordx3 {v(EG+4*i,3)}, v{136+i}, s[48:51], 0 offen{SC1}")
    a("s_mov_b64 s[56:57], 0")
    a("s_waitcnt vmcnt(0)")
    for i in range(16):
        a(f"v_cmp_ne_u32 vcc, s{NONCE}, v{EG+4*i+2}")
        a(f"s_cmp_gt_u32 s{RB}, {i}")
        a("s_cselect_b32 s58, -1, 0")
        a(f"s_cmp_gt_u32 s{RB}, {i+16}")
        a("s_cselect_b32 s59, -1, 0")
        a("s_and_b64 vcc, vcc, s[58:59]")
        a("s_or_b64 s[56:57], s[56:57], vcc")
    a("s_cmp_eq_u64 s[56:57], 0")
    a(f"s_cbranch_scc1 {P}_pollE_ok")
    a("s_sleep 4")
    a(f"s_sub_u32 s{SPIN}, s{SPIN}, 1")
    a(f"s_cbranch_scc0 {P}_pollE")
    a(f"s_mov_b32 s{SPIN}, 0")
    a.label(P + "_pollE_ok")
    pf.stamp(8)
    a(f"v_mov_b32 v68, v{EG+60}")
    a(f"v_mov_b32 v69, v{EG+61}")
    for i in range(14, -1, -1):
        cfma(a, 68, 69, 42, 43, EG + 4*i, EG + 4*i + 1, 46, 47)
    a("v_mov_b32 v70, v68")
    a("v_mov_b32 v71, v69")
    a("v_mov_b32 v72, v68")
    a("v_mov_b32 v73, v69")
    a("s_nop 1")
    a("v_permlane32_swap_b32 v70, v72")
    a("v_permlane32_swap_b32 v71, v73")
    cfma(a, 72, 73, 44, 45, 70, 71, 46, 47)
    for cp in range(3):
        a("v_mov_b32 v74, v72")
        a("v_mov_b32 v75, v73")
        cfma(a, 74, 75, 40, 41, 56 + 2*cp, 57 + 2*cp, 46, 47)
        a(f"v_cmp_lt_u32 vcc, {cp}, v51")
        a("s_nop 1")
        a("v_cndmask_b32 v72, v72, v74, vcc")
        a("v_cndmask_b32 v73, v73, v75, vcc")
    a(f"s_lshl_b32 s3, s{BW}, 12")
    a(f"s_add_u32 s3, s3, {B_HT}")
    a("v_and_b32 v66, 31, v0")
    a("v_lshlrev_b32 v66, 1, v66")
    a("v_lshrrev_b32 v67, 5, v0")
    a("v_lshl_add_u32 v66, v67, 8, v66")
    a("v_add_u32 v66, s3, v66")
    for r in range(16):
        cfma(a, 72, 73, 2, 3, ARE + r, AIM + r, 46, 47)
        a(f"v_cvt_pk_bf16_f32 v{76+(r&1)}, v72, -v73")
        slot = (r & 3) + 8 * (r >> 2)
        a(f"ds_write_b16 v66, v{76+(r&1)} offset:{slot*64}")
        a(f"ds_write_b16_d16_hi v66, v{76+(r&1)} offset:{2048+slot*64}")
    a("v_and_b32 v67, 31, v0")
    a("v_lshlrev_b32 v67, 6, v67")
    a("v_lshrrev_b32 v68, 5, v0")
    a("v_lshl_add_u32 v67, v68, 4, v67")
    a("v_add_u32 v67, s3, v67")
    a("s_waitcnt lgkmcnt(0)")
    for part in range(2):
        for jj in range(2):
            a(f"ds_read_b128 {v(80+8*part+4*jj,4)}, v67 offset:{part*2048+jj*32}")
    a(f"s_lshl_b32 s3, s{RB}, 1")
    a("s_add_u32 s3, s3, s38")
    a("s_mul_i32 s3, s3, 56")
    a("s_lshl_b32 s33, s37, 1")
    a("s_add_u32 s3, s3, s33")
    a("s_lshl_b32 s3, s3, 10")
    a(f"s_add_u32 s3, s3, {WS_HF}")
    a(f"s_add_u32 s33, s3, {28*1024}")
    a("s_waitcnt lgkmcnt(0)")
    a(f"buffer_store_dwordx4 {v(80,4)}, v1, s[{WSR}:{WSR+3}], s3 offen{SC1}")
    a(f"buffer_store_dwordx4 {v(84,4)}, v1, s[{WSR}:{WSR+3}], s3 offen offset:1024{SC1}")
    a(f"buffer_store_dwordx4 {v(88,4)}, v1, s[{WSR}:{WSR+3}], s33 offen{SC1}")
    a(f"buffer_store_dwordx4 {v(92,4)}, v1, s[{WSR}:{WSR+3}], s33 offen offset:1024{SC1}")
    if "dup" in X:
        a(f"buffer_store_dwordx4 {v(80,4)}, v1, s[{WSR}:{WSR+3}], s3 offen")
        a(f"buffer_store_dwordx4 {v(84,4)}, v1, s[{WSR}:{WSR+3}], s3 offen offset:1024")
        a(f"buffer_store_dwordx4 {v(88,4)}, v1, s[{WSR}:{WSR+3}], s33 offen")
        a(f"buffer_store_dwordx4 {v(92,4)}, v1, s[{WSR}:{WSR+3}], s33 offen offset:1024")
    a(f"s_lshl_b32 s3, s{RB}, 5")
    a(f"s_add_u32 s3, s3, s{J2}")
    a("s_lshl_b32 s3, s3, 2")
    a(f"s_add_u32 s3, s3, {FL_H}")
    arrive_flag(a, C_HCNT, 4, 3, 66, 67, P + "_hflag")
    pf.stamp(9)
    a(f"s_lshr_b32 s3, s{BW}, 1")
    a("s_cmp_eq_u32 s3, 0")
    a(f"s_cselect_b32 s{TR}, s{S_CRE}, s{S_CIM}")
    a(f"s_cselect_b32 s{TR+1}, s{S_CRE+1}, s{S_CIM+1}")
    plain_lane_off(a, 53, 0, 69)
    a(f"s_mul_i32 s40, s{J2}, {64*896}")
    a(f"s_and_b32 s3, s{BW}, 1")
    a("s_mul_i32 s3, s3, 448")
    a("s_add_u32 s40, s40, s3")
    a(f"s_lshl_b32 s41, s{BW}, 14")
    CDMA = [53]
    def c_dma(kb):
        a(f"s_add_u32 m0, s41, {(kb & 3)*4096}")
        for q in range(4):
            a(f"s_add_u32 s33, s40, {q*16*896 + kb*64}")
            a(f"buffer_load_dwordx4 v{CDMA[0]}, s[{TR}:{TR+3}], s33 offen lds")
            if q < 3: a("s_add_u32 m0, m0, 1024")
    for kb in range(4): c_dma(kb)
    a(f"s_cmp_eq_u32 s{BW}, 0")
    a(f"s_cbranch_scc0 {P}_nopollH")
    a("v_lshlrev_b32 v67, 2, v0")
    a(f"s_lshl_b32 s35, s{RB}, 7")
    a(f"s_add_u32 s35, s35, {FL_H}")
    a("s_mov_b64 s[58:59], 0x7f")
    poll(a, P + "_pollH", 68, 67, 35, 58)
    srd(a, 48, S_DBG, 256)
    a(f"v_mov_b32 v67, {D_GOG}")
    a.label(P + "_pollG")
    a(f"buffer_load_dword v68, v67, s[48:51], 0 offen{SC1}")
    a("s_waitcnt vmcnt(0)")
    a("v_readfirstlane_b32 s3, v68")
    a("s_cmp_lg_u32 s3, 0")
    a(f"s_cbranch_scc1 {P}_pollG_ok")
    a(f"s_sleep {POLLSLEEP}")
    a(f"s_sub_u32 s{SPIN}, s{SPIN}, 1")
    a(f"s_cbranch_scc0 {P}_pollG")
    a(f"s_mov_b32 s{SPIN}, 0")
    a.label(P + "_pollG_ok")
    a.label(P + "_nopollH")
    a("s_waitcnt vmcnt(0)")
    bar()
    pf.stamp(10)
    T[0], T[1] = 4, 5
    ACC = 8
    XS, GT = 136, 152
    a(f"s_lshl_b32 s3, s{RB}, 6")
    a("s_lshl_b32 s33, s38, 5")
    a("s_add_u32 s3, s3, s33")
    a("v_lshrrev_b32 v72, 5, v0")
    a("v_lshlrev_b32 v72, 4, v72")
    a("v_add_u32 v72, s3, v72")
    a(f"s_lshl_b32 s33, s{J2}, 6")
    a(f"s_and_b32 s35, s{BW}, 1")
    a("s_lshl_b32 s35, s35, 5")
    a("s_add_u32 s33, s33, s35")
    a("v_and_b32 v73, 31, v0")
    a("v_add_u32 v73, s33, v73")
    srd(a, 48, S_X, XBYTES)
    a("v_mul_u32_u24 v74, 896, v72")
    a("v_lshl_add_u32 v74, v73, 1, v74")
    for r in range(16):
        a(f"buffer_load_ushort v{XS+r}, v74, s[48:51], 0 offen offset:{(r%4)*896}")
        if r % 4 == 3 and r < 15: a(f"v_add_u32 v74, {4*896}, v74")
    srd(a, 52, S_DSK, 896)
    a("v_lshlrev_b32 v75, 1, v73")
    a("buffer_load_ushort v3, v75, s[52:55], 0 offen")
    a("v_lshlrev_b32 v75, 2, v72")
    a(f"s_mov_b32 s35, {WS_G}")
    for q in range(4):
        a(f"buffer_load_dwordx4 {v(GT+4*q,4)}, v75, s[{WSR}:{WSR+3}], s35 offen offset:{16*q}{SC1}")
    if "lowy" in X: a("s_setprio 0")
    a(f"s_lshl_b32 s3, s{RB}, 1")
    a("s_mul_i32 s3, s3, 56")
    a(f"s_mul_i32 s33, s{BW}, 14")
    a("s_add_u32 s3, s3, s33")
    a("s_lshl_b32 s3, s3, 10")
    a(f"s_add_u32 s32, s3, {WS_HF}")
    a(f"s_add_u32 s34, s32, {56*1024}")
    AF = 88; NA = 6
    plain_lane_off(a, 2, 0, 72)
    CDMA[0] = 2
    xfrag_addr(a, 6, 0, 72)
    a("v_add_u32 v6, s41, v6")
    a("v_xor_b32 v7, 32, v6")
    def ldA(st_):
        r = AF + 8 * (st_ % NA)
        a(f"s_add_u32 s35, s32, {st_*1024}")
        a(f"s_add_u32 s36, s34, {st_*1024}")
        a(f"buffer_load_dwordx4 {v(r,4)}, v1, s[{WSR}:{WSR+3}], s35 offen{SC1}")
        a(f"buffer_load_dwordx4 {v(r+4,4)}, v1, s[{WSR}:{WSR+3}], s36 offen{SC1}")
    for st_ in range(NA): ldA(st_)
    CB = [72, 80]
    def rdC(st_):
        b = CB[st_ & 1]
        kb = st_ >> 1
        a(f"ds_read_b128 {v(b,4)}, v{6+(st_&1)} offset:{(kb&3)*4096}")
        a(f"ds_read_b128 {v(b+4,4)}, v{6+(st_&1)} offset:{(kb&3)*4096+2048}")
    issued = []
    for st_ in range(NA): issued += [("A", st_)] * 2
    rdC(0)
    for st_ in range(14):
        kb = st_ >> 1
        need = [("A", st_)]
        if st_ + 1 < 14 and ((st_ + 1) >> 1) >= 4: need.append(("C", (st_ + 1) >> 1))
        last = max(i for i, t in enumerate(issued) if t in need)
        n_out = len(issued) - 1 - last
        a(f"s_waitcnt vmcnt({n_out})")
        if st_ + 1 < 14: rdC(st_ + 1)
        a(f"s_waitcnt lgkmcnt({2 if st_ + 1 < 14 else 0})")
        b = CB[st_ & 1]; r = AF + 8 * (st_ % NA)
        for rt in range(2):
            for ct in range(2):
                acc = ACC + 16 * (2 * rt + ct)
                c = "0" if st_ == 0 else v(acc, 16)
                a(f"{MF} {v(acc,16)}, {v(r+4*rt,4)}, {v(b+4*ct,4)}, {c}")
        if st_ + NA < 14:
            ldA(NA + st_); issued += [("A", NA + st_)] * 2
        if (st_ & 1) == 1 and kb + 4 < 7:
            c_dma(kb + 4); issued += [("C", kb + 4)] * 4
    pf.stamp(11)
    a("s_setprio 3")
    bar()
    a("s_nop 7")
    a(f"s_lshl_b32 s3, s{BW}, 12")
    a("v_add_u32 v72, s3, v1")
    for t in range(4):
        for q in range(4):
            a(f"ds_write_b128 v72, {v(ACC+16*t+4*q,4)} offset:{t*16384+q*1024}")
    bar()
    a(f"s_lshl_b32 s3, s{BW}, 14")
    a("v_add_u32 v72, s3, v1")
    for src in range(3):
        for q in range(4):
            a(f"ds_read_b128 {v(88+16*src+4*q,4)}, v72 offset:{src*4096+q*1024}")
    YT = 8
    for q in range(4):
        a(f"ds_read_b128 {v(YT+4*q,4)}, v72 offset:{3*4096+q*1024}")
        if q == 2: a("s_waitcnt lgkmcnt(4)")
    a("s_waitcnt lgkmcnt(0)")
    bar()
    VT_, VD_, VO_, t1, t2, t3, t4, t5 = 40, 41, 42, 43, 44, 45, 46, 47
    srd(a, TR, S_WO, WBYTES)
    a(f"v_lshrrev_b32 v{t1}, 3, v0")
    a(f"v_mul_u32_u24 v{t1}, 896, v{t1}")
    a(f"v_and_b32 v{t2}, 7, v0")
    a(f"v_lshl_add_u32 v{t1}, v{t2}, 4, v{t1}")
    a(f"s_mul_i32 s32, s{BW}, {112*896}")
    a(f"s_lshl_b32 s3, s{J2}, 7")
    a("s_add_u32 s32, s32, s3")
    a(f"s_mul_i32 s34, s{BW}, 14336")
    a("s_mov_b32 m0, s34")
    a("s_mov_b32 s36, 14")
    a.label(P + "_wodma")
    a("s_sub_u32 s36, s36, 1")
    a(f"buffer_load_dwordx4 v{t1}, s[{TR}:{TR+3}], s32 offen lds")
    a("s_add_u32 s32, s32, 7168")
    a("s_add_u32 m0, m0, 1024")
    a("s_cmp_lg_u32 s36, 0")
    a(f"s_cbranch_scc1 {P}_wodma")
    a("v_mov_b32 v48, 0")
    a("v_mov_b32 v49, 0")
    a(f"v_lshlrev_b32 v{t2}, 3, v0")
    a(f"ds_write_b64 v{t2}, v[48:49] offset:57344")
    for r in range(16):
        a(f"v_add_f32 v{88+r}, v{88+r}, v{104+r}")
        a(f"v_add_f32 v{YT+r}, v{YT+r}, v{120+r}")
    a("v_lshlrev_b32 v3, 16, v3")
    for r in range(16):
        a(f"v_add_f32 v{YT+r}, v{YT+r}, v{88+r}")
        a(f"v_lshlrev_b32 v{XS+r}, 16, v{XS+r}")
        a(f"v_mul_f32 v{XS+r}, v{XS+r}, v3")
        a(f"v_fma_f32 v{YT+r}, 2.0, v{YT+r}, v{XS+r}")
        a(f"v_sub_f32 v{XS+r}, 1.0, v{GT+r}")
        a(f"v_mul_f32 v{YT+r}, v{YT+r}, v{XS+r}")
    a(f"s_lshl_b32 s3, s{RB}, 6")
    a("s_lshl_b32 s33, s38, 5")
    a("s_add_u32 s3, s3, s33")
    a(f"v_lshrrev_b32 v{VT_}, 5, v0")
    a(f"v_lshlrev_b32 v{VT_}, 4, v{VT_}")
    a(f"v_add_u32 v{VT_}, s3, v{VT_}")
    a(f"s_lshl_b32 s33, s{J2}, 6")
    a(f"s_and_b32 s35, s{BW}, 1")
    a("s_lshl_b32 s35, s35, 5")
    a("s_add_u32 s33, s33, s35")
    a(f"v_and_b32 v{VD_}, 31, v0")
    a(f"v_add_u32 v{VD_}, s33, v{VD_}")
    a(f"v_mul_u32_u24 v{VO_}, 1792, v{VT_}")
    a(f"v_lshl_add_u32 v{VO_}, v{VD_}, 2, v{VO_}")
    srd(a, 48, S_OUT, OUTBYTES)
    a("v_lshrrev_b32 v6, 5, v0")
    a("v_lshlrev_b32 v6, 2, v6")
    a("v_bfe_u32 v7, v0, 2, 2")
    a("v_add_u32 v6, v6, v7")
    a("v_lshlrev_b32 v6, 7, v6")
    a("v_and_b32 v7, 16, v0")
    a(f"v_and_b32 v{t1}, 3, v0")
    a(f"v_lshl_add_u32 v7, v{t1}, 2, v7")
    a("v_lshl_add_u32 v6, v7, 1, v6")
    a(f"s_and_b32 s3, s{BW}, 1")
    a(f"s_mul_i32 s3, s3, {8*28*128}")
    a("v_add_u32 v6, s3, v6")
    a("s_waitcnt vmcnt(0)")
    pf.stamp(12)
    a(f"s_cmp_eq_u32 s{BW}, 0")
    a(f"s_cbranch_scc0 {P}_nopollO")
    a(f"v_lshlrev_b32 v{t4}, 2, v0")
    a(f"s_lshl_b32 s35, s{RB}, 7")
    a(f"s_add_u32 s35, s35, {FL_O}")
    a("s_mov_b64 s[58:59], 0xff")
    poll(a, P + "_pollO", t5, t4, 35, 58)
    a.label(P + "_nopollO")
    bar()
    pf.stamp(13)
    a(f"s_lshl_b32 s3, s{RB}, 1")
    a("s_add_u32 s3, s3, s38")
    a("s_lshl_b32 s3, s3, 15")
    a(f"s_and_b32 s33, s{BW}, 1")
    a("s_lshl_b32 s33, s33, 14")
    a("s_add_u32 s3, s3, s33")
    a(f"s_add_u32 s32, s3, {WS_OF}")
    OFR = 88
    for st_ in range(16):
        a(f"s_add_u32 s33, s32, {st_*1024}")
        a(f"buffer_load_dwordx4 {v(OFR+4*st_,4)}, v1, s[{WSR}:{WSR+3}], s33 offen{SC1}")
    PA_ = [56, 72]
    WB = [24, 32]
    def rdW(st_):
        hd, f = st_ >> 1, st_ & 1
        off = (28 * hd + 16 * f) * 128
        b = WB[st_ & 1]
        for ct in range(2):
            a(f"ds_read_b64_tr_b16 {v(b+4*ct,2)}, v6 offset:{off+ct*64}")
            a(f"ds_read_b64_tr_b16 {v(b+4*ct+2,2)}, v6 offset:{off+ct*64+1024}")
    rdW(0)
    for st_ in range(16):
        if st_ + 1 < 16: rdW(st_ + 1)
        a(f"s_waitcnt vmcnt({15-st_}) lgkmcnt({4 if st_ + 1 < 16 else 0})")
        for ct in range(2):
            c = "0" if st_ == 0 else v(PA_[ct], 16)
            a(f"{MF} {v(PA_[ct],16)}, {v(OFR+4*st_,4)}, {v(WB[st_&1]+4*ct,4)}, {c}")
    a(f"s_xor_b32 s3, s{BW}, 1")
    a("s_lshl_b32 s3, s3, 12")
    a("s_add_u32 s3, s3, 65536")
    a(f"v_add_u32 v{t1}, s3, v1")
    a(f"s_and_b32 s33, s{BW}, 1")
    a("s_nop 7")
    a("s_cmp_eq_u32 s33, 0")
    a(f"s_cbranch_scc0 {P}_send0")
    for q in range(4): a(f"ds_write_b128 v{t1}, {v(PA_[1]+4*q,4)} offset:{q*1024}")
    a(f"s_branch {P}_sent")
    a.label(P + "_send0")
    a("s_nop 1")
    for q in range(4): a(f"ds_write_b128 v{t1}, {v(PA_[0]+4*q,4)} offset:{q*1024}")
    a("s_nop 1")
    for r in range(16): a(f"v_mov_b32 v{PA_[0]+r}, v{PA_[1]+r}")
    a.label(P + "_sent")
    bar()
    a(f"s_lshl_b32 s3, s{BW}, 12")
    a("s_add_u32 s3, s3, 65536")
    a(f"v_add_u32 v{t1}, s3, v1")
    for q in range(4): a(f"ds_read_b128 {v(88+4*q,4)}, v{t1} offset:{q*1024}")
    a("s_waitcnt lgkmcnt(0)")
    for r in range(16):
        a(f"v_add_f32 v{88+r}, v{88+r}, v{PA_[0]+r}")
        a(f"v_fma_f32 v{88+r}, v{GT+r}, v{88+r}, v{YT+r}")
    for r in range(16):
        a(f"buffer_store_dword v{88+r}, v{VO_}, s[48:51], 0 offen offset:{(r%2)*1792}")
        if r % 2 == 1 and r < 15: a(f"v_add_u32 v{VO_}, {2*1792}, v{VO_}")
    pf.stamp(14)
    a(f"s_branch {P}_end")
    a.label(P + "_skip")
    stage3("b")
    a(f"v_mov_b32 v54, {L_CNT}")
    a("v_mov_b32 v55, 1")
    a("s_mov_b64 exec, 1")
    a(f"ds_add_u32 v54, v55 offset:{C_UDONE}")
    a("s_mov_b64 exec, -1")
    a.label(P + "_end")

def lds_wait(a, coff, target, vaddr, vtmp, lab):
    a.label(lab)
    a(f"ds_read_b32 v{vtmp}, v{vaddr} offset:{coff}")
    a("s_waitcnt lgkmcnt(0)")
    a(f"v_readfirstlane_b32 s3, v{vtmp}")
    a(f"s_cmp_ge_u32 s3, {target}")
    a(f"s_cbranch_scc1 {lab}_ok")
    a("s_sleep 1")
    a(f"s_sub_u32 s{SPIN}, s{SPIN}, 1")
    a(f"s_cbranch_scc0 {lab}")
    a(f"s_mov_b32 s{SPIN}, 0")
    a.label(lab + "_ok")

def lds_arrive(a, coff, vaddr, vtmp):
    a(f"v_mov_b32 v{vaddr}, {L_CNT}")
    a(f"v_mov_b32 v{vtmp}, 1")
    a("s_mov_b64 exec, 1")
    a(f"ds_add_u32 v{vaddr}, v{vtmp} offset:{coff}")
    a("s_mov_b64 exec, -1")

def dma_loop(a, lab, vaddr, n, dsrc, dlds):
    a("s_mov_b32 s36, %d" % n)
    a.label(lab)
    a("s_sub_u32 s36, s36, 1")
    a(f"buffer_load_dwordx4 v{vaddr}, s[{TR}:{TR+3}], s32 offen lds")
    a(f"s_add_u32 s32, s32, {dsrc}")
    a(f"s_add_u32 m0, m0, {dlds}")
    a("s_cmp_lg_u32 s36, 0")
    a(f"s_cbranch_scc1 {lab}")

def q_loop(a, acc, X4, W4, vxe, vxo, vw):
    def rd(j):
        k = j & 3
        a(f"ds_read_b128 {v(X4+4*k,4)}, v{vxo if j & 1 else vxe} offset:{(j>>1)*4096}")
        a(f"ds_read_b64_tr_b16 {v(W4+4*k,2)}, v{vw} offset:{j*2048}")
        a(f"ds_read_b64_tr_b16 {v(W4+4*k+2,2)}, v{vw} offset:{j*2048+512}")
    for j in range(4): rd(j)
    for j in range(28):
        left = min(3, 27 - j)
        a(f"s_waitcnt lgkmcnt({3*left})")
        c = "0" if j == 0 else v(acc, 16)
        a(f"{MF} {v(acc,16)}, {v(W4+4*(j&3),4)}, {v(X4+4*(j&3),4)}, {c}")
        if j + 4 < 28: rd(j + 4)

def gen_fused(a):
    name = NAME + "_kernel"
    a(f".globl {name}")
    a(".p2align 8")
    a(f".type {name},@function")
    a.label(name)
    END = "L_end"
    a("s_cmp_ge_u32 s2, 256")
    a(f"s_cbranch_scc1 {END}")
    a("s_load_dwordx16 s[64:79], s[0:1], 0")
    a("s_load_dwordx16 s[80:95], s[0:1], 64")
    a("s_load_dwordx4 s[96:99], s[0:1], 128")
    a("v_lshrrev_b32 v2, 6, v0")
    a("v_and_b32 v0, 63, v0")
    a(f"v_readfirstlane_b32 s{WV}, v2")
    a(f"v_mov_b32 v4, {L_CNT}")
    a("v_mov_b32 v5, 0")
    a("v_lshl_add_u32 v4, v0, 2, v4")
    a("ds_write_b32 v4, v5")
    a(f"s_and_b32 s{RB}, s2, 7")
    a(f"s_lshl_b32 s{RB}, s{RB}, 2")
    a(f"s_lshr_b32 s{J2}, s2, 3")
    a(f"s_and_b32 s3, s{J2}, 3")
    a(f"s_add_u32 s{RB}, s{RB}, s3")
    a(f"s_lshr_b32 s{J2}, s{J2}, 2")
    a("v_lshlrev_b32 v1, 4, v0")
    a(f"s_mov_b32 s{SPIN}, 0x100000")
    a(f"s_sub_u32 s{BW}, s{WV}, 8")
    pfA = Prof(a, 167)
    a("s_waitcnt lgkmcnt(0)")
    a("s_barrier")
    srd(a, WSR, S_WS, WS_SIZE)
    if PROF: a("v_mov_b32 v167, 0")
    pfA.stamp(0)
    if PROF:
        a("s_getreg_b32 s60, hwreg(HW_REG_XCC_ID)")
        a("v_writelane_b32 v167, s60, 20")
        a("s_getreg_b32 s60, hwreg(HW_REG_HW_ID)")
        a("v_writelane_b32 v167, s60, 21")
    a(f"s_cmp_ge_u32 s{WV}, 8")
    a("s_cbranch_scc1 p0_bgw")
    a(f"s_cmp_ge_u32 s{WV}, 4")
    a("s_cbranch_scc1 p0_kvw")
    srd(a, TR, S_X, XBYTES)
    xtile_lane_off(a, 3, 0, 4, 5)
    a(f"s_mul_i32 s32, s{RB}, {64*896}")
    a(f"s_lshr_b32 s3, s{WV}, 1")
    a(f"s_mul_i32 s3, s3, {32*896}")
    a("s_add_u32 s32, s32, s3")
    a(f"s_and_b32 s3, s{WV}, 1")
    a(f"s_mul_i32 s3, s3, {8*896}")
    a("s_add_u32 s32, s32, s3")
    a(f"s_lshl_b32 s34, s{WV}, 10")
    a("s_mov_b32 m0, s34")
    dma_loop(a, "p0_xdma", 3, 14, 64, 4096)
    pfA.stamp(1)
    xfrag_addr(a, 6, 0, 4)
    tr_rowcol(a, 12, 13, 0, 4)
    a(f"s_lshr_b32 s38, s{WV}, 1")
    a(f"s_and_b32 s39, s{WV}, 1")
    a("s_lshl_b32 s3, s38, 11")
    a("v_add_u32 v6, s3, v6")
    a("v_xor_b32 v7, 32, v6")
    a("v_lshlrev_b32 v10, 7, v12")
    a("v_lshl_add_u32 v10, v13, 1, v10")
    a("s_mul_i32 s3, s39, 56")
    a(f"s_add_u32 s3, s3, {L_WQ}")
    a("v_add_u32 v10, s3, v10")
    a("s_waitcnt vmcnt(0)")
    lds_arrive(a, C_XR, 4, 5)
    pfA.stamp(2)
    a("s_waitcnt lgkmcnt(0)")
    a("s_barrier")
    pfA.stamp(3)
    q_loop(a, 16, 32, 48, 6, 7, 10)
    a(f"s_mov_b32 s42, {hex(QSCALE)}")
    a(f"s_lshl_b32 s3, s{WV}, 11")
    a(f"s_add_u32 s3, s3, {L_QX}")
    a("v_add_u32 v12, s3, v1")
    a("s_nop 7")
    a("s_nop 0")
    for i in range(16): a(f"v_mul_f32 v{16+i}, s42, v{16+i}")
    for i in range(8): a(f"v_cvt_pk_bf16_f32 v{32+i}, v{16+2*i}, v{17+2*i}")
    a("s_mov_b32 exec_lo, 0")
    a("v_mov_b32 v38, 0")
    a("v_mov_b32 v39, 0")
    a("s_mov_b32 exec_lo, -1")
    a("ds_write_b128 v12, v[32:35]")
    a("ds_write_b128 v12, v[36:39] offset:1024")
    a("s_branch p0_b1")
    a.label("p0_kvw")
    a("s_getpc_b64 s[56:57]")
    a.label("p0_pc")
    a(f"s_sub_u32 s39, s{WV}, 4")
    a("s_lshl_b32 s3, s39, 13")
    a("v_lshlrev_b32 v150, 7, v0")
    a("v_add_u32 v150, s3, v150")
    a(f"s_sub_u32 s56, s56, p0_pc-{NAME}_kernel")
    a("s_subb_u32 s57, s57, 0")
    a(f"s_mov_b32 s3, L_end-{NAME}_kernel")
    a("v_min_u32 v150, s3, v150")
    a("global_load_dword v150, v150, s[56:57]")
    a("s_cmp_eq_u32 s39, 0")
    a("s_cbranch_scc0 p0_pf_out")
    a("v_lshlrev_b32 v151, 21, v0")
    a("s_mov_b64 exec, 7")
    a(f"buffer_load_dword v151, v151, s[{WSR}:{WSR+3}], 0 offen")
    a("s_mov_b64 exec, -1")
    a.label("p0_pf_out")
    a("s_cmp_eq_u32 s39, 1")
    a("s_cbranch_scc0 p0_pf_done")
    srd(a, 48, S_OUT, OUTBYTES)
    a("v_mul_u32_u24 v151, 0x1c0000, v0")
    a("s_mov_b64 exec, 7")
    a("buffer_load_dword v151, v151, s[48:51], 0 offen")
    a("s_mov_b64 exec, -1")
    a.label("p0_pf_done")
    a(f"s_cmp_ge_u32 s{J2}, 3")
    a("s_cbranch_scc1 p0_kv_none")
    a("s_lshr_b32 s38, s39, 1")
    a("s_and_b32 s39, s39, 1")
    xfrag_addr(a, 6, 0, 4)
    tr_rowcol(a, 12, 13, 0, 4)
    a("s_lshl_b32 s3, s38, 11")
    a("s_mul_i32 s41, s39, 28672")
    a("s_add_u32 s3, s3, s41")
    a("v_add_u32 v6, s3, v6")
    a("v_xor_b32 v7, 32, v6")
    a("s_mul_i32 s40, s39, 14")
    a(f"s_cmp_eq_u32 s{J2}, 2")
    a("s_cbranch_scc1 p0_kv_gaddr")
    a("v_mul_u32_u24 v10, 56, v12")
    a("v_lshl_add_u32 v10, v13, 1, v10")
    a(f"s_mul_i32 s3, s40, {16*56}")
    a(f"s_add_u32 s3, s3, {L_WKV}")
    a("v_add_u32 v10, s3, v10")
    a("v_add_u32 v11, 224, v10")
    a(f"s_mov_b32 s42, {16*56}")
    a("s_branch p0_kv_addr_done")
    a.label("p0_kv_gaddr")
    a("v_lshlrev_b32 v10, 3, v12")
    a("s_lshl_b32 s3, s40, 7")
    a(f"s_add_u32 s3, s3, {L_WKV}")
    a("v_add_u32 v10, s3, v10")
    a("v_add_u32 v11, 32, v10")
    a("s_mov_b32 s42, 128")
    a.label("p0_kv_addr_done")
    a(f"v_mov_b32 v4, {L_CNT}")
    lds_wait(a, C_XR, 8, 4, 5, "p0_xr")
    pfA.stamp(2)
    def kv_rd(i):
        a(f"ds_read_b128 {v(32+4*i,4)}, v{6+(i&1)} offset:{(i>>1)*4096}")
        a(f"ds_read_b64_tr_b16 {v(88+4*i,2)}, v10")
        a(f"ds_read_b64_tr_b16 {v(88+4*i+2,2)}, v11")
        if i < 13:
            a("v_add_u32 v10, s42, v10")
            a("v_add_u32 v11, s42, v11")
    def kv_mm(swap, tag):
        for i in range(4): kv_rd(i)
        for i in range(14):
            a(f"s_waitcnt lgkmcnt({3*min(3, 13-i)})")
            A, B = (32+4*i, 88+4*i) if swap else (88+4*i, 32+4*i)
            a(f"{MF} v[16:31], {v(A,4)}, {v(B,4)}, {'0' if i == 0 else 'v[16:31]'}")
            if i + 4 < 14: kv_rd(i + 4)
    a(f"s_cmp_ge_u32 s{J2}, 1")
    a("s_cbranch_scc1 p0_kv_swap")
    kv_mm(False, "k")
    a("s_branch p0_kv_mm_done")
    a.label("p0_kv_swap")
    kv_mm(True, "v")
    a.label("p0_kv_mm_done")
    a("s_lshl_b32 s3, s38, 12")
    a(f"s_add_u32 s3, s3, {L_QX}")
    a("v_add_u32 v12, s3, v1")
    a("s_nop 7")
    a("s_nop 0")
    a("s_cmp_eq_u32 s39, 0")
    a("s_cbranch_scc1 p0_kv_root")
    for q in range(4): a(f"ds_write_b128 v12, {v(16+4*q,4)} offset:{q*1024}")
    a("s_waitcnt lgkmcnt(0)")
    a("s_lshl_b32 s3, s38, 2")
    a(f"v_mov_b32 v4, {L_CNT}")
    a("v_add_u32 v4, s3, v4")
    a("v_mov_b32 v5, 1")
    a("s_mov_b64 exec, 1")
    a(f"ds_add_u32 v4, v5 offset:{C_KVR}")
    a("s_mov_b64 exec, -1")
    a("s_branch p0_kv_none")
    a.label("p0_kv_root")
    a("s_lshl_b32 s3, s38, 2")
    a(f"v_mov_b32 v4, {L_CNT}")
    a("v_add_u32 v4, s3, v4")
    lds_wait(a, C_KVR, 1, 4, 5, "p0_kvr")
    for i in range(4): a(f"ds_read_b128 {v(32+4*i,4)}, v12 offset:{i*1024}")
    a("s_waitcnt lgkmcnt(0)")
    for r in range(16): a(f"v_add_f32 v{16+r}, v{16+r}, v{32+r}")
    a(f"s_lshl_b32 s43, s{RB}, 1")
    a("s_add_u32 s43, s43, s38")
    a(f"s_cmp_eq_u32 s{J2}, 2")
    a("s_cbranch_scc1 p0_gate_epi")
    for i in range(8): a(f"v_cvt_pk_bf16_f32 v{32+i}, v{16+2*i}, v{17+2*i}")
    a("s_lshl_b32 s44, s43, 12")
    a(f"s_add_u32 s44, s44, {WS_KV}")
    a(f"s_cmp_eq_u32 s{J2}, 1")
    a("s_cbranch_scc1 p0_v_epi")
    a("s_mov_b32 exec_lo, 0")
    a("v_mov_b32 v38, 0x3f803f80")
    a("v_mov_b32 v39, 0x00003f80")
    a("s_mov_b32 exec_lo, -1")
    a(f"buffer_store_dwordx4 v[32:35], v1, s[{WSR}:{WSR+3}], s44 offen{SC1}")
    a(f"buffer_store_dwordx4 v[36:39], v1, s[{WSR}:{WSR+3}], s44 offen offset:1024{SC1}")
    a("s_branch p0_kv_arrive")
    a.label("p0_v_epi")
    a("v_and_b32 v13, 31, v0")
    a("v_cmp_eq_u32 vcc, 28, v13")
    a("v_mov_b32 v14, 0x3f803f80")
    a("s_nop 0")
    a("v_cndmask_b32 v14, 0, v14, vcc")
    a("v_cmp_lt_u32 vcc, 27, v13")
    a("s_nop 1")
    for i in range(8): a(f"v_cndmask_b32 v{32+i}, v{32+i}, v14, vcc")
    a(f"buffer_store_dwordx4 v[32:35], v1, s[{WSR}:{WSR+3}], s44 offen offset:2048{SC1}")
    a(f"buffer_store_dwordx4 v[36:39], v1, s[{WSR}:{WSR+3}], s44 offen offset:3072{SC1}")
    a("s_branch p0_kv_arrive")
    a.label("p0_gate_epi")
    a(f"s_mov_b32 s42, {hex(LOG2E)}")
    for i in range(16): a(f"v_mul_f32 v{16+i}, s42, v{16+i}")
    for i in range(16): a(f"v_exp_f32 v{16+i}, -v{16+i}")
    for i in range(16): a(f"v_add_f32 v{16+i}, 1.0, v{16+i}")
    for i in range(16): a(f"v_rcp_f32 v{16+i}, v{16+i}")
    a("v_lshrrev_b32 v13, 5, v0")
    a("v_lshlrev_b32 v13, 6, v13")
    a("s_lshl_b32 s44, s43, 7")
    a(f"s_add_u32 s44, s44, {WS_G}")
    a("v_and_b32 v14, 31, v0")
    a("v_cmp_eq_u32 vcc, 0, v14")
    a("s_and_saveexec_b64 s[46:47], vcc")
    for q in range(4):
        a(f"buffer_store_dwordx4 {v(16+4*q,4)}, v13, s[{WSR}:{WSR+3}], s44 offen offset:{16*q}{SC1}")
    a("s_mov_b64 exec, -1")
    a.label("p0_kv_arrive")
    pfA.stamp(10)
    a("s_mov_b32 s16, 1")
    a("s_branch p0_kv_b0")
    a.label("p0_kv_none")
    a("s_mov_b32 s16, 0")
    a.label("p0_kv_b0")
    a("s_waitcnt lgkmcnt(0)")
    a("s_barrier")
    pfA.stamp(3)
    a("s_branch p0_b1")
    a.label("p0_bgw")
    a(f"s_cmp_eq_u32 s{WV}, 8")
    a("s_cbranch_scc0 p0_t9")
    srd(a, 48, S_X, XBYTES)
    a("s_and_b32 s3, s2, 7")
    a(f"s_mul_i32 s3, s3, {256*896}")
    a("s_lshr_b32 s46, s2, 3")
    a("s_mul_i32 s46, s46, 7168")
    a("s_add_u32 s3, s3, s46")
    a("v_lshlrev_b32 v50, 7, v0")
    a("s_mov_b32 exec_hi, 0xffffff")
    a("buffer_load_dword v52, v50, s[48:51], s3 offen")
    a("s_mov_b64 exec, -1")
    a("s_branch p0_t_done")
    a.label("p0_t9")
    a(f"s_cmp_eq_u32 s{WV}, 9")
    a("s_cbranch_scc0 p0_t10")
    touch_matrix(a, S_WQ, 52, 50)
    a("s_branch p0_t_done")
    a.label("p0_t10")
    a(f"s_cmp_eq_u32 s{WV}, 10")
    a("s_cbranch_scc0 p0_t_done")
    a("s_lshr_b32 s3, s2, 3")
    a(f"s_mul_i32 s3, s3, {7*128}")
    a("v_lshlrev_b32 v50, 7, v0")
    a("s_mov_b64 exec, 0x7f")
    srd(a, 48, S_WK, WKBYTES)
    a("buffer_load_dword v52, v50, s[48:51], s3 offen")
    srd(a, 48, S_WV, WKBYTES)
    a("buffer_load_dword v53, v50, s[48:51], s3 offen")
    a("s_mov_b64 exec, -1")
    a.label("p0_t_done")
    a(f"s_cmp_eq_u32 s{WV}, 11")
    a("s_cbranch_scc0 p0_nononce")
    a("s_cmp_eq_u32 s2, 0")
    a("s_cbranch_scc0 p0_nononce")
    srd(a, 48, S_DBG, 256)
    a("v_mov_b32 v7, 0")
    a("s_memrealtime s[60:61]")
    a("s_waitcnt lgkmcnt(0)")
    a("s_and_b32 s60, s60, 0xfffffffc")
    a("s_or_b32 s60, s60, 1")
    a("v_mov_b32 v6, s60")
    a("s_mov_b64 exec, 1")
    a(f"buffer_store_dword v6, v7, s[48:51], 0 offen offset:{D_NONCE}{SC1}")
    a("s_mov_b64 exec, -1")
    a("s_waitcnt vmcnt(0)")
    a.label("p0_nononce")
    a(f"s_cmp_lt_u32 s{J2}, 2")
    a("s_cbranch_scc1 p0_dma_wkv")
    a(f"s_cmp_eq_u32 s{J2}, 2")
    a("s_cbranch_scc0 p0_wkv_done")
    a(f"s_cmp_eq_u32 s{WV}, 8")
    a("s_cbranch_scc0 p0_wkv_done")
    srd(a, TR, S_GW, 896)
    a("v_lshlrev_b32 v3, 1, v0")
    for i in range(7):
        a(f"buffer_load_ushort v{10+i}, v3, s[{TR}:{TR+3}], 0 offen offset:{i*128}")
    a("v_lshlrev_b32 v4, 3, v0")
    a(f"v_add_u32 v4, {L_WKV}, v4")
    a("s_waitcnt vmcnt(0)")
    for i in range(7):
        a(f"v_lshl_or_b32 v{20+2*i}, v{10+i}, 16, v{10+i}")
        a(f"v_mov_b32 v{21+2*i}, v{20+2*i}")
        a(f"ds_write_b64 v4, {v(20+2*i,2)} offset:{i*512}")
    a("s_branch p0_wkv_done")
    a.label("p0_dma_wkv")
    a(f"s_cmp_eq_u32 s{J2}, 0")
    a(f"s_cselect_b32 s{TR}, s{S_WK}, s{S_WV}")
    a(f"s_cselect_b32 s{TR+1}, s{S_WK+1}, s{S_WV+1}")
    a(f"s_mov_b32 s{TR+2}, {WKBYTES}")
    a(f"s_mov_b32 s{TR+3}, 0x00020000")
    a("v_lshlrev_b32 v3, 4, v0")
    a(f"s_mul_i32 s32, s{BW}, 7168")
    a(f"s_add_u32 s34, s32, {L_WKV}")
    a("s_mov_b32 m0, s34")
    dma_loop(a, "p0_wdma", 3, 7, 1024, 1024)
    a.label("p0_wkv_done")
    a(f"s_lshl_b32 s37, s{J2}, 1")
    a(f"s_and_b32 s3, s{BW}, 1")
    a("s_add_u32 s37, s37, s3")
    a("v_and_b32 v4, 31, v0")
    a("s_lshl_b32 s3, s37, 6")
    a("v_lshl_add_u32 v4, v4, 1, s3")
    srd(a, 40, S_LRE, 896); a("buffer_load_ushort v8, v4, s[40:43], 0 offen")
    srd(a, 44, S_LIM, 896); a("buffer_load_ushort v9, v4, s[44:47], 0 offen")
    srd(a, 52, S_LDT, 896); a("buffer_load_ushort v10, v4, s[52:55], 0 offen")
    a("s_waitcnt vmcnt(3) lgkmcnt(0)")
    lds_arrive(a, C_XR, 4, 5)
    srd(a, TR, S_WQ, WBYTES)
    a("v_lshrrev_b32 v3, 3, v0")
    a("v_mul_u32_u24 v3, 896, v3")
    a("v_and_b32 v4, 7, v0")
    a("v_lshl_add_u32 v3, v4, 4, v3")
    a(f"s_mul_i32 s32, s{BW}, {112*896}")
    a(f"s_mul_i32 s33, s{J2}, 112")
    a("s_add_u32 s32, s32, s33")
    a(f"s_mul_i32 s34, s{BW}, 14336")
    a(f"s_add_u32 s34, s34, {L_WQ}")
    a("s_mov_b32 m0, s34")
    dma_loop(a, "p0_qdma", 3, 14, 7168, 1024)
    a(f"s_cmp_gt_u32 s{WV}, 9")
    a("s_cbranch_scc1 p0_nob")
    a(f"s_cmp_eq_u32 s{WV}, 8")
    a(f"s_cselect_b32 s56, s{S_BRE}, s{S_BIM}")
    a(f"s_cselect_b32 s57, s{S_BRE+1}, s{S_BIM+1}")
    touch_matrix(a, 56, 52, 50)
    a("s_mov_b32 s17, 1")
    a("s_waitcnt vmcnt(16)")
    a("s_branch p0_nob2")
    a.label("p0_nob")
    a("s_mov_b32 s17, 0")
    a("s_waitcnt vmcnt(14)")
    a.label("p0_nob2")
    a(f"v_mov_b32 v4, {L_CNT}")
    lds_wait(a, C_XR, 8, 4, 5, "p0_xr2")
    xfrag_addr(a, 6, 0, 4)
    a(f"s_lshr_b32 s38, s{BW}, 1")
    a("s_lshl_b32 s3, s38, 11")
    a("v_add_u32 v6, s3, v6")
    a("v_xor_b32 v7, 32, v6")
    for j in range(28):
        a(f"ds_read_b128 {v(56+4*j,4)}, v{6 + (j&1)} offset:{(j>>1)*4096}")
        if j in (11, 21): a("s_waitcnt lgkmcnt(2)")
    a("v_lshlrev_b32 v8, 16, v8")
    a("v_lshlrev_b32 v9, 16, v9")
    a("v_lshlrev_b32 v10, 16, v10")
    a(f"v_mul_f32 v10, {hex(LOG2E)}, v10")
    a("v_exp_f32 v10, v10")
    a("s_nop 0")
    a("v_cvt_pk_bf16_f32 v10, v10, v10")
    a("v_lshlrev_b32 v10, 16, v10")
    a("v_mul_f32 v11, v10, v8")
    a("v_mul_f32 v12, v10, v9")
    a(f"v_mul_f32 v11, {hex(LOG2E)}, v11")
    a(f"v_mul_f32 v12, {hex(INV2PI)}, v12")
    a("v_exp_f32 v13, v11")
    a("v_fract_f32 v14, v12")
    a("s_nop 0")
    a("v_cos_f32 v2, v14")
    a("v_sin_f32 v3, v14")
    a("s_nop 0")
    a("v_mul_f32 v2, v2, v13")
    a("v_mul_f32 v3, v3, v13")
    a("v_add_f32 v13, -1.0, v2")
    a("v_mul_f32 v14, v8, v8")
    a("v_fma_f32 v14, v9, v9, v14")
    a("v_rcp_f32 v14, v14")
    a("v_mul_f32 v15, v13, v8")
    a("v_fma_f32 v15, v3, v9, v15")
    a("v_mul_f32 v16, v3, v8")
    a("v_fma_f32 v16, -v13, v9, v16")
    a("v_mul_f32 v4, v15, v14")
    a("v_mul_f32 v5, v16, v14")
    a("s_cmp_eq_u32 s17, 0")
    a("s_cbranch_scc1 p0_bgw0")
    a("s_waitcnt vmcnt(2) lgkmcnt(0)")
    a("s_branch p0_bgw1")
    a.label("p0_bgw0")
    a("s_waitcnt vmcnt(0) lgkmcnt(0)")
    a.label("p0_bgw1")
    a("s_barrier")
    a.label("p0_b1")
    a("s_waitcnt lgkmcnt(0)")
    if PROF:
        a(f"s_cmp_ge_u32 s{WV}, 8")
        a("s_cbranch_scc1 p0_b1_bgst")
        pfA.stamp(9)
        a("s_branch p0_b1_go")
        a.label("p0_b1_bgst")
        BgProf(a).stamp(4)
        a.label("p0_b1_go")
    a("s_barrier")
    a(f"s_cmp_ge_u32 s{WV}, 8")
    a("s_cbranch_scc1 p1_bg")
    a(f"s_cmp_lt_u32 s{WV}, 4")
    a("s_cbranch_scc1 p1_noarr")
    a("s_cmp_eq_u32 s16, 0")
    a("s_cbranch_scc1 p1_noarr")
    a(f"v_mov_b32 v14, {L_CNT}")
    a("v_mov_b32 v15, 1")
    a("s_waitcnt vmcnt(0)")
    pfA.stamp(11)
    a("s_mov_b64 exec, 1")
    a(f"ds_add_rtn_u32 v15, v14, v15 offset:{C_KVA}")
    a("s_waitcnt lgkmcnt(0)")
    a("v_readfirstlane_b32 s3, v15")
    a("s_cmp_eq_u32 s3, 1")
    a("s_cbranch_scc0 p1_arrdone")
    srd(a, 48, S_DBG, 256)
    a("v_mov_b32 v14, 1")
    a(f"s_cmp_eq_u32 s{J2}, 2")
    a(f"s_cselect_b32 s3, {D_GCNT}, {D_CNT}")
    a("v_mov_b32 v15, s3")
    a("buffer_atomic_add v14, v15, s[48:51], 0 offen sc0 sc1")
    a("s_waitcnt vmcnt(0)")
    a("v_readfirstlane_b32 s3, v14")
    a(f"s_cmp_eq_u32 s{J2}, 2")
    a("s_cselect_b32 s46, 31, 63")
    a(f"s_mov_b32 s47, {D_GO}")
    a(f"s_cselect_b32 s47, {D_GOG}, s47")
    a("s_cmp_eq_u32 s3, s46")
    a("s_cbranch_scc0 p1_arrdone")
    a("v_mov_b32 v14, 1")
    a("v_mov_b32 v15, s47")
    a(f"buffer_store_dword v14, v15, s[48:51], 0 offen{SC1}")
    a.label("p1_arrdone")
    a("s_mov_b64 exec, -1")
    pfA.stamp(12)
    a.label("p1_noarr")
    if PROF: a("v_mov_b32 v0, v167")
    pf = Prof(a, 0)
    pf.stamp(4)
    gen_attention(a, pf)
    pf.flush(2)
    a(f"s_branch {END}")
    a.label("p1_bg")
    a("s_setprio 3")
    gen_background(a, BgProf(a))
    a.label(END)
    a("s_endpgm")
    return name

class BgProf:
    def __init__(self, a): self.a = a; self.T = [54, 55]
    def stamp(self, slot):
        if not PROF: return
        a = self.a
        a("s_memrealtime s[60:61]")
        a("s_lshl_b32 s62, s2, 4")
        a(f"s_add_u32 s62, s62, s{WV}")
        a("s_lshl_b32 s62, s62, 8")
        a(f"s_add_u32 s62, s62, {WS_PROF + 4*slot}")
        a("s_waitcnt vmcnt(0) lgkmcnt(0)")
        a("s_mov_b64 exec, 1")
        t0, t1 = self.T
        a(f"v_mov_b32 v{t0}, s60")
        a(f"v_mov_b32 v{t1}, 0")
        a(f"buffer_store_dword v{t0}, v{t1}, s[{WSR}:{WSR+3}], s62 offen")
        a("s_mov_b64 exec, -1")
        a("s_waitcnt vmcnt(0)")
    def flush(self): pass

def build():
    a = Asm()
    name = gen_fused(a)
    text = a.text()
    probs = check_hazards(text)
    ref = open("gated_mix__grouped_kv_mqa__ssm_conv_s5__prompt.s.ref").read().split("\n")
    pre = []
    for ln in ref:
        if not ln.startswith(";"): break
        if "Override launch" in ln or "grid=ceil" in ln or "@launch" in ln: continue
        pre.append(ln)
    head = "\n".join(pre) + "\n"
    head += f"; @launch grid=(256,1,1) block=(768,1,1) lds={LDS_TOTAL}\n"
    out = head + '.amdgcn_target "amdgcn-amd-amdhsa--gfx950"\n.text\n' + text
    out += f""".section .rodata,"a"
.p2align 6
.amdhsa_kernel {name}
  .amdhsa_next_free_vgpr 168
  .amdhsa_next_free_sgpr 102
  .amdhsa_accum_offset 168
  .amdhsa_group_segment_fixed_size 0
  .amdhsa_kernarg_size 144
  .amdhsa_user_sgpr_count 2
  .amdhsa_user_sgpr_kernarg_segment_ptr 1
  .amdhsa_system_sgpr_workgroup_id_x 1
.end_amdhsa_kernel
"""
    return out, probs

if __name__ == "__main__":
    out, probs = build()
    open(sys.argv[1], "w").write(out)
    print("wrote", sys.argv[1], "hazards:", len(probs))
```

```python
import sys, os, struct, math
from asmlib import Asm, v, s, check_hazards

NAME = "gated_mix__grouped_kv_mqa__ssm_conv_s5__prompt"
X = set(os.environ.get('XF', '').split(','))
PROF = "prof" in X
def f2u(x): return struct.unpack("<I", struct.pack("<f", x))[0]
QSCALE = f2u(math.log2(math.e) / math.sqrt(28.0))
LOG2E = f2u(math.log2(math.e))
INV2PI = f2u(1.0 / (2.0 * math.pi))
MF = "v_mfma_f32_32x32x16_bf16"
SC1 = " sc1"
POLLSLEEP = int(os.environ.get('PS', '1'))

WS_KV = 0x000000
WS_G  = 0x040000
WS_FL = 0x042000
FL_H  = WS_FL
FL_O  = WS_FL + 0x1000
WS_E  = 0x048000
D_CNT, D_GCNT, D_GO, D_NONCE, D_GOG, D_BAD = 0, 64, 128, 132, 136, 140
WS_OF = 0x080000
WS_HF = 0x280000
WS_PROF = 0x800000
WS_SIZE = 0x1000000
XBYTES = 2048 * 448 * 2
WBYTES = 448 * 448 * 2
WKBYTES = 448 * 28 * 2
OUTBYTES = 2048 * 448 * 4

S_X, S_WQ, S_WK, S_WV, S_WO = 64, 66, 68, 70, 72
S_LRE, S_LIM = 76, 78
S_BRE, S_BIM, S_CRE, S_CIM, S_LDT, S_DSK, S_GW, S_OUT = 80, 82, 84, 86, 88, 90, 92, 94
S_DBG, S_WS = 96, 98
RB, J2, WV, BW = 20, 21, 22, 23
WSR = 24
TR = 28
NONCE = 19
SPIN = 18

L_X = 0; L_WQ = 57344; L_WKV = 114688; L_GW = 143360
L_QX = 147456
L_CNT = 163584
C_ATT, C_BG, C_NONCE, C_BAD, C_UDONE, C_HCNT, C_OCNT, C_XR, C_KVR, C_KVA, C_TRD, C_LEND = 0, 4, 8, 12, 16, 20, 24, 28, 32, 40, 44, 48
B_EX = 159744; B_HT = 65536
B_HT2 = 69632
L_C = 0
L_RED = 0
L_WO = 0
A_OP = 90112; A_LP = 155648
LDS_TOTAL = 163840

def srd(a, dst, src, nbytes):
    a(f"s_mov_b32 s{dst}, s{src}")
    a(f"s_mov_b32 s{dst+1}, s{src+1}")
    a(f"s_mov_b32 s{dst+2}, {hex(nbytes)}")
    a(f"s_mov_b32 s{dst+3}, 0x00020000")

class Prof:
    def __init__(self, a, vreg): self.a = a; self.v = vreg
    def stamp(self, slot):
        if not PROF or "noprofa" in X: return
        a = self.a
        a("s_memrealtime s[60:61]")
        a("s_memtime s[62:63]")
        a("s_waitcnt lgkmcnt(0)")
        a(f"v_writelane_b32 v{self.v}, s60, {slot}")
        a(f"v_writelane_b32 v{self.v}, s62, {slot+32}")
    def flush(self, vt):
        if not PROF: return
        a = self.a
        a("s_lshl_b32 s60, s2, 4")
        a(f"s_add_u32 s60, s60, s{WV}")
        a("s_lshl_b32 s60, s60, 8")
        a(f"s_add_u32 s60, s60, {WS_PROF}")
        a("s_mov_b64 exec, -1")
        a(f"v_mbcnt_lo_u32_b32 v{vt}, -1, 0")
        a(f"v_mbcnt_hi_u32_b32 v{vt}, -1, v{vt}")
        a(f"v_lshlrev_b32 v{vt}, 2, v{vt}")
        a(f"buffer_store_dword v{self.v}, v{vt}, s[{WSR}:{WSR+3}], s60 offen")
        a("s_waitcnt vmcnt(0)")

def xtile_lane_off(a, vd, vlane, vt0, vt1):
    a(f"v_lshrrev_b32 v{vt0}, 4, v{vlane}")
    a(f"v_and_b32 v{vt1}, 1, v{vt0}")
    a(f"v_lshlrev_b32 v{vt1}, 4, v{vt1}")
    a(f"v_lshrrev_b32 v{vd}, 5, v{vlane}")
    a(f"v_lshl_add_u32 v{vt1}, v{vd}, 2, v{vt1}")
    a(f"v_bfe_u32 v{vd}, v{vlane}, 2, 2")
    a(f"v_add_u32 v{vt1}, v{vt1}, v{vd}")
    a(f"v_mul_u32_u24 v{vt1}, 896, v{vt1}")
    a(f"v_and_b32 v{vd}, 3, v{vlane}")
    a(f"v_xor_b32 v{vd}, v{vd}, v{vt0}")
    a(f"v_lshl_add_u32 v{vd}, v{vd}, 4, v{vt1}")

def plain_lane_off(a, vd, vlane, vt0):
    a(f"v_lshrrev_b32 v{vt0}, 4, v{vlane}")
    a(f"v_and_b32 v{vd}, 3, v{vlane}")
    a(f"v_xor_b32 v{vd}, v{vd}, v{vt0}")
    a(f"v_lshlrev_b32 v{vd}, 4, v{vd}")
    a(f"v_lshrrev_b32 v{vt0}, 2, v{vlane}")
    a(f"v_mul_u32_u24 v{vt0}, 896, v{vt0}")
    a(f"v_add_u32 v{vd}, v{vd}, v{vt0}")

def xfrag_addr(a, vd, vlane, vt0):
    a(f"v_bfe_u32 v{vt0}, v{vlane}, 2, 2")
    a(f"v_lshrrev_b32 v{vd}, 5, v{vlane}")
    a(f"v_xor_b32 v{vt0}, v{vt0}, v{vd}")
    a(f"v_lshlrev_b32 v{vt0}, 4, v{vt0}")
    a(f"v_and_b32 v{vd}, 31, v{vlane}")
    a(f"v_lshl_add_u32 v{vd}, v{vd}, 6, v{vt0}")

def tr_rowcol(a, vrow, vcol, vlane, vt):
    a(f"v_lshrrev_b32 v{vrow}, 5, v{vlane}")
    a(f"v_lshlrev_b32 v{vrow}, 3, v{vrow}")
    a(f"v_bfe_u32 v{vt}, v{vlane}, 2, 2")
    a(f"v_add_u32 v{vrow}, v{vrow}, v{vt}")
    a(f"v_and_b32 v{vcol}, 16, v{vlane}")
    a(f"v_and_b32 v{vt}, 3, v{vlane}")
    a(f"v_lshl_add_u32 v{vcol}, v{vt}, 2, v{vcol}")

def proj_loop(a, swap, acc, xe, xo, we, wo_, vxe, vxo, vw1, vw2, s_wstep, s_cnt, lab):
    def rd(xr, wr, vx):
        a(f"ds_read_b128 {v(xr,4)}, v{vx}")
        a(f"ds_read_b64_tr_b16 {v(wr,2)}, v{vw1}")
        a(f"ds_read_b64_tr_b16 {v(wr+2,2)}, v{vw2}")
        a(f"v_add_u32 v{vx}, 0x1000, v{vx}")
        a(f"v_add_u32 v{vw1}, s{s_wstep}, v{vw1}")
        a(f"v_add_u32 v{vw2}, s{s_wstep}, v{vw2}")
    def mf(x, w):
        A, B = (x, w) if swap else (w, x)
        a(f"{MF} {v(acc,16)}, {v(A,4)}, {v(B,4)}, {v(acc,16)}")
    rd(xe, we, vxe); rd(xo, wo_, vxo)
    a(f"s_mov_b32 s{s_cnt}, 14")
    a.label(lab)
    a("s_waitcnt lgkmcnt(3)")
    mf(xe, we)
    rd(xe, we, vxe)
    a("s_waitcnt lgkmcnt(3)")
    mf(xo, wo_)
    rd(xo, wo_, vxo)
    a(f"s_sub_u32 s{s_cnt}, s{s_cnt}, 1")
    a(f"s_cmp_lg_u32 s{s_cnt}, 0")
    a(f"s_cbranch_scc1 {lab}")
    a("s_waitcnt lgkmcnt(0)")

def sw_barrier(a, coff, s_tgt, n, vaddr, vtmp, lab):
    a(f"s_add_u32 s{s_tgt}, s{s_tgt}, {n}")
    a(f"v_mov_b32 v{vtmp}, 1")
    a("s_waitcnt lgkmcnt(0)")
    a("s_mov_b64 exec, 1")
    a(f"ds_add_u32 v{vaddr}, v{vtmp} offset:{coff}")
    a("s_mov_b64 exec, -1")
    a.label(lab)
    a(f"ds_read_b32 v{vtmp}, v{vaddr} offset:{coff}")
    a("s_waitcnt lgkmcnt(0)")
    a(f"v_readfirstlane_b32 s3, v{vtmp}")
    a(f"s_cmp_ge_u32 s3, s{s_tgt}")
    a(f"s_cbranch_scc1 {lab}_ok")
    a("s_sleep 1")
    a(f"s_sub_u32 s{SPIN}, s{SPIN}, 1")
    a(f"s_cbranch_scc0 {lab}")
    a(f"s_mov_b32 s{SPIN}, 0")
    a.label(lab + "_ok")

def flag_store(a, soff_reg, vt0, vt1, val=None):
    a("s_mov_b64 exec, 1")
    a(f"v_mov_b32 v{vt0}, s{val if val is not None else NONCE}")
    a(f"v_mov_b32 v{vt1}, 0")
    a(f"buffer_store_dword v{vt0}, v{vt1}, s[{WSR}:{WSR+3}], s{soff_reg} offen{SC1}")
    a("s_mov_b64 exec, -1")

def arrive_flag(a, coff, n, soff_reg, vt0, vt1, lab):
    a(f"v_mov_b32 v{vt0}, {L_CNT}")
    a(f"v_mov_b32 v{vt1}, 1")
    a("s_waitcnt vmcnt(0)")
    a("s_mov_b64 exec, 1")
    a(f"ds_add_rtn_u32 v{vt1}, v{vt0}, v{vt1} offset:{coff}")
    a("s_waitcnt lgkmcnt(0)")
    a(f"v_readfirstlane_b32 s60, v{vt1}")
    a("s_mov_b64 exec, -1")
    a(f"s_cmp_eq_u32 s60, {n-1}")
    a(f"s_cbranch_scc0 {lab}")
    flag_store(a, soff_reg, vt0, vt1)
    a.label(lab)

def poll(a, lab, vdst, voff, soff_reg, mask_pair, sleep=None):
    sleep = POLLSLEEP if sleep is None else sleep
    a.label(lab)
    a(f"buffer_load_dword v{vdst}, v{voff}, s[{WSR}:{WSR+3}], s{soff_reg} offen{SC1}")
    a("s_waitcnt vmcnt(0)")
    a(f"v_cmp_ne_u32 vcc, s{NONCE}, v{vdst}")
    a(f"s_and_b64 vcc, vcc, s[{mask_pair}:{mask_pair+1}]")
    a(f"s_cbranch_vccz {lab}_ok")
    a(f"s_sleep {sleep}")
    a(f"s_sub_u32 s{SPIN}, s{SPIN}, 1")
    a(f"s_cbranch_scc0 {lab}")
    a(f"s_mov_b32 s{SPIN}, 0")
    a.label(lab + "_ok")

def cfma(a, hr, hi, lr, li, ur, ui, tr, ti):
    a(f"v_fma_f32 v{tr}, -v{li}, v{hi}, v{ur}")
    a(f"v_fma_f32 v{ti}, v{li}, v{hr}, v{ui}")
    a(f"v_fma_f32 v{hr}, v{lr}, v{hr}, v{tr}")
    a(f"v_fma_f32 v{hi}, v{lr}, v{hi}, v{ti}")

L_JUNK = 161792
def touch_matrix(a, sptr, vdst, vt, sr=48):
    srd(a, sr, sptr, WBYTES)
    a("s_lshr_b32 s3, s2, 3")
    a(f"s_mul_i32 s3, s3, {98*128}")
    a(f"v_lshlrev_b32 v{vt}, 7, v0")
    a(f"s_mov_b32 m0, {L_JUNK}")
    a("s_nop 0")
    a(f"buffer_load_dword v{vt}, s[{sr}:{sr+3}], s3 offen lds")
    a("s_add_u32 s3, s3, 8192")
    a("s_mov_b32 exec_hi, 3")
    a(f"buffer_load_dword v{vt}, s[{sr}:{sr+3}], s3 offen lds")
    a("s_mov_b64 exec, -1")

AQ, AO, AS, AK, AV, APB = 8, 40, [104, 120], [136, 144], [152, 160], 4

def att_unit(a, u, side):
    up = u - 1; un = u + 1
    cur = AS[u & 1]; prv = AS[(u + 1) & 1]
    Vp = AV[(up >> 2) & 1]; Op = AO + 16 * (up & 3)
    Kn = AK[(un >> 2) & 1]; Qn = AQ + 8 * (un & 3)
    side = list(side)
    def E(lo, hi):
        for j in range(lo, hi):
            a(f"v_exp_f32 v{cur+j}, v{cur+j}")
            if side:
                x = side.pop(0)
                if x: a(x)
    while side and isinstance(side[0], tuple):
        a(side.pop(0)[1])
    a(f"{MF} {v(Op,16)}, {v(Vp,4)}, {v(prv,4)}, {v(Op,16)}")
    E(0, 4)
    a(f"v_cvt_pk_bf16_f32 v{APB+2}, v{prv+12}, v{prv+13}")
    a(f"v_cvt_pk_bf16_f32 v{APB+3}, v{prv+14}, v{prv+15}")
    a(f"{MF} {v(prv,16)}, {v(Kn,4)}, {v(Qn,4)}, 0")
    E(4, 8)
    a(f"v_cvt_pk_bf16_f32 v{cur}, v{cur}, v{cur+1}")
    a(f"v_cvt_pk_bf16_f32 v{cur+1}, v{cur+2}, v{cur+3}")
    a(f"{MF} {v(prv,16)}, {v(Kn+4,4)}, {v(Qn+4,4)}, {v(prv,16)}")
    E(8, 12)
    a(f"v_cvt_pk_bf16_f32 v{cur+2}, v{cur+4}, v{cur+5}")
    a(f"v_cvt_pk_bf16_f32 v{cur+3}, v{cur+6}, v{cur+7}")
    a(f"{MF} {v(Op,16)}, {v(Vp+4,4)}, {v(APB,4)}, {v(Op,16)}")
    E(12, 16)
    a(f"v_cvt_pk_bf16_f32 v{APB}, v{cur+8}, v{cur+9}")
    a(f"v_cvt_pk_bf16_f32 v{APB+1}, v{cur+10}, v{cur+11}")
    assert not side, side

L_SH = 162048
LMAX = f2u(2.0 ** 90) if "forcefb" not in X else f2u(2.0 ** -20)
VMAX = f2u(2.0 ** 20)

def gen_attention(a, pf):
    P = "att"
    KR = TR
    a(f"v_add_u32 v2, {L_QX}, v1")
    for g in range(4):
        a(f"ds_read_b128 {v(AQ+8*g,4)}, v2 offset:{g*2048}")
        a(f"ds_read_b128 {v(AQ+8*g+4,4)}, v2 offset:{g*2048+1024}")
    a(f"s_add_u32 s{KR}, s{WSR}, {WS_KV}")
    a(f"s_addc_u32 s{KR+1}, s{WSR+1}, 0")
    a(f"s_mov_b32 s{KR+3}, 0x00020000")
    a("s_mov_b32 s44, 0")
    a("s_mov_b32 s51, 0")
    a(f"s_cmp_lt_u32 s{WV}, 4")
    a("s_cselect_b32 s53, 1, -1")
    a(f"s_cmp_eq_u32 s{WV}, 0")
    a(f"s_cbranch_scc0 {P}_nopoll")
    srd(a, 56, S_DBG, 256)
    a(f"v_mov_b32 v2, {D_GO}")
    a.label(P + "_poll")
    a(f"buffer_load_dwordx4 v[104:107], v2, s[56:59], 0 offen{SC1}")
    a("s_waitcnt vmcnt(0)")
    a("v_readfirstlane_b32 s3, v104")
    a("s_cmp_lg_u32 s3, 0")
    a(f"s_cbranch_scc1 {P}_pollok")
    a(f"s_sleep {POLLSLEEP}")
    a(f"s_sub_u32 s{SPIN}, s{SPIN}, 1")
    a(f"s_cbranch_scc0 {P}_poll")
    a(f"s_mov_b32 s{SPIN}, 0")
    a.label(P + "_pollok")
    a(f"v_mov_b32 v3, {L_CNT}")
    a("s_mov_b64 exec, 1")
    a(f"ds_add_u32 v3, v107 offset:{C_BAD}")
    a("s_mov_b64 exec, -1")
    a.label(P + "_nopoll")
    a(f"v_mov_b32 v3, {L_CNT}")
    sw_barrier(a, C_ATT, 44, 8, 3, 2, P + "_b0")
    pf.stamp(5)
    a(f"s_mov_b32 s{KR+2}, 0x40000")
    a("s_lshr_b32 s52, s2, 3")
    a("s_lshl_b32 s52, s52, 3")
    a(f"s_add_u32 s52, s52, s{WV}")
    a("s_lshl_b32 s52, s52, 10")
    a(f"buffer_load_dwordx4 {v(AS[0],4)}, v1, s[{KR}:{KR+3}], s52 offen{SC1}")
    a.label(P + "_restart")
    a(f"s_mov_b32 s{KR+2}, 0x40000")
    a(f"s_lshl_b32 s43, s{WV}, 15")
    a(f"buffer_load_dwordx4 {v(AK[0],4)}, v1, s[{KR}:{KR+3}], s43 offen{SC1}")
    a(f"buffer_load_dwordx4 {v(AK[0]+4,4)}, v1, s[{KR}:{KR+3}], s43 offen offset:1024{SC1}")
    a(f"buffer_load_dwordx4 {v(AV[0],4)}, v1, s[{KR}:{KR+3}], s43 offen offset:2048{SC1}")
    a(f"buffer_load_dwordx4 {v(AV[0]+4,4)}, v1, s[{KR}:{KR+3}], s43 offen offset:3072{SC1}")
    a("s_add_u32 s43, s43, 4096")
    a(f"buffer_load_dwordx4 {v(AK[1],4)}, v1, s[{KR}:{KR+3}], s43 offen{SC1}")
    a(f"buffer_load_dwordx4 {v(AK[1]+4,4)}, v1, s[{KR}:{KR+3}], s43 offen offset:1024{SC1}")
    for j in range(4): a(f"v_mov_b32 v{APB+j}, 0")
    for j in range(8): a(f"v_mov_b32 v{AV[1]+j}, 0")
    a("s_cmp_lg_u32 s51, 0")
    a(f"s_cbranch_scc1 {P}_haveshift")
    a(f"s_cmp_ge_u32 s{WV}, 4")
    a(f"s_cbranch_scc1 {P}_shwait")
    a(f"buffer_load_dwordx4 {v(AS[1],4)}, v1, s[{KR}:{KR+3}], 0 offen{SC1}")
    a(f"buffer_load_dwordx4 {v(AS[1]+4,4)}, v1, s[{KR}:{KR+3}], 0 offen offset:1024{SC1}")
    a(f"s_lshl_b32 s3, s{WV}, 11")
    a(f"s_add_u32 s3, s3, {L_QX}")
    a("v_add_u32 v2, s3, v1")
    a(f"ds_read_b128 {v(AO,4)}, v2")
    a(f"ds_read_b128 {v(AO+4,4)}, v2 offset:1024")
    a("s_waitcnt vmcnt(0) lgkmcnt(0)")
    o = AO + 16
    a(f"{MF} {v(o,16)}, {v(AS[1],4)}, {v(AO,4)}, 0")
    a(f"{MF} {v(o,16)}, {v(AS[1]+4,4)}, {v(AO+4,4)}, {v(o,16)}")
    a(f"s_lshl_b32 s3, s{WV}, 7")
    a(f"s_add_u32 s3, s3, {L_SH}")
    a("v_lshrrev_b32 v3, 2, v1")
    a("v_and_b32 v3, 127, v3")
    a("v_add_u32 v3, s3, v3")
    a("s_nop 7")
    a(f"v_max3_f32 v2, v{o}, v{o+1}, v{o+2}")
    for j in range(3, 15, 2):
        a(f"v_max3_f32 v2, v2, v{o+j}, v{o+j+1}")
    a(f"v_max_f32 v2, v2, v{o+15}")
    a(f"v_mov_b32 v{AO}, v2")
    a("s_nop 1")
    a(f"v_permlane32_swap_b32 v2, v{AO}")
    a(f"v_max_f32 v2, v2, v{AO}")
    a("v_cvt_pk_bf16_f32 v2, -v2, 0")
    a("s_mov_b32 exec_hi, 0")
    a("ds_write_b32 v3, v2")
    a("s_mov_b64 exec, -1")
    a.label(P + "_shwait")
    a(f"v_mov_b32 v3, {L_CNT}")
    sw_barrier(a, C_ATT, 44, 8, 3, 2, P + "_bs")
    a("v_lshrrev_b32 v3, 2, v1")
    a("v_and_b32 v3, 127, v3")
    a(f"v_add_u32 v3, {L_SH}, v3")
    for g in range(4): a(f"ds_read_b32 v{AO+g}, v3 offset:{g*128}")
    a("s_waitcnt lgkmcnt(0)")
    a("s_mov_b32 exec_lo, 0")
    for g in range(4): a(f"v_mov_b32 v{AQ+8*g+6}, v{AO+g}")
    a("s_mov_b32 exec_lo, -1")
    a.label(P + "_haveshift")
    for j in (0, 1, 2, 3, 12, 13, 14, 15): a(f"v_mov_b32 v{AS[1]+j}, 0")
    a(f"s_and_b32 s3, s{WV}, 3")
    a("s_lshl_b32 s3, s3, 2")
    a(f"s_add_u32 s3, s3, {L_CNT + 64}")
    a("v_mov_b32 v2, s3")
    for g in range(4):
        a(f"{MF} {v(AO+16*g,16)}, {v(AV[1],4)}, {v(APB,4)}, 0")
    a("s_waitcnt vmcnt(4)")
    a(f"{MF} {v(AS[0],16)}, {v(AK[0],4)}, {v(AQ,4)}, 0")
    a(f"{MF} {v(AS[0],16)}, {v(AK[0]+4,4)}, {v(AQ+4,4)}, {v(AS[0],16)}")
    a("s_mov_b32 s48, 0")
    a("s_setprio 2")
    a("s_nop 7")
    a("s_nop 1")
    pf.stamp(6)
    a(".p2align 3")
    a.label(P + "_loop")
    for u in range(8):
        g = u & 3; par = (u >> 2) & 1
        side = []
        if g == 1:
            side.append(("q0", "s_waitcnt vmcnt(2)"))
            side.append(f"buffer_load_dwordx4 {v(AV[par^1],4)}, v1, s[{KR}:{KR+3}], s43 offen offset:2048{SC1}")
            side.append(f"buffer_load_dwordx4 {v(AV[par^1]+4,4)}, v1, s[{KR}:{KR+3}], s43 offen offset:3072{SC1}")
            side.append("s_add_u32 s43, s43, 4096")
            if par == 0:
                side.append("s_cmp_eq_u32 s48, 3")
                side.append(f"s_cselect_b32 s{KR+2}, 0, s{KR+2}")
        if g == 3:
            side += [None, None, None, "s_waitcnt vmcnt(2)"]
            side.append(f"buffer_load_dwordx4 {v(AK[par],4)}, v1, s[{KR}:{KR+3}], s43 offen{SC1}")
            side.append(f"buffer_load_dwordx4 {v(AK[par]+4,4)}, v1, s[{KR}:{KR+3}], s43 offen offset:1024{SC1}")
            if par == 1:
                side += ["s_add_u32 s48, s48, 1", None, None, None, None, None, None, None, None, "s_cmp_lt_u32 s48, 4"]
        if g == 0:
            side += ["v_mov_b32 v3, s53", None, "s_mov_b64 exec, 1\nds_add_rtn_u32 v3, v2, v3\ns_mov_b64 exec, -1"]
        if g == 2:
            lab = f"{P}_fp{u}"
            side += ["s_waitcnt lgkmcnt(0)", "v_readfirstlane_b32 s54, v3", None, "s_mul_i32 s54, s54, s53", "s_cmp_gt_i32 s54, 0",
                     f"s_cbranch_scc1 {lab}a\ns_setprio 2\ns_branch {lab}b\n{lab}a:\ns_setprio 1\n{lab}b:"]
        att_unit(a, u, side)
    a(f"s_cbranch_scc1 {P}_loop")
    prv = AS[1]
    a(f"{MF} {v(AO+48,16)}, {v(AV[1],4)}, {v(prv,4)}, {v(AO+48,16)}")
    a(f"v_cvt_pk_bf16_f32 v{APB+2}, v{prv+12}, v{prv+13}")
    a(f"v_cvt_pk_bf16_f32 v{APB+3}, v{prv+14}, v{prv+15}")
    a("s_nop 1")
    a(f"{MF} {v(AO+48,16)}, {v(AV[1]+4,4)}, {v(APB,4)}, {v(AO+48,16)}")
    pf.stamp(7)
    a("s_cmp_lg_u32 s51, 0")
    a(f"s_cbranch_scc1 {P}_nolend")
    lds_arrive(a, C_LEND, 2, 3)
    a.label(P + "_nolend")
    a(f"v_mov_b32 v3, {L_CNT}")
    a.label(P + "_udone")
    a(f"ds_read2_b32 v[104:105], v3 offset0:{C_NONCE//4} offset1:{C_UDONE//4}")
    a("s_waitcnt lgkmcnt(0)")
    a("v_readfirstlane_b32 s3, v105")
    a(f"v_readfirstlane_b32 s{NONCE}, v104")
    a("s_cmp_ge_u32 s3, 4")
    a(f"s_cbranch_scc1 {P}_udone_ok")
    a(f"s_sub_u32 s{SPIN}, s{SPIN}, 1")
    a(f"s_cbranch_scc0 {P}_udone")
    a(f"s_mov_b32 s{SPIN}, 0")
    a.label(P + "_udone_ok")
    a(f"s_lshl_b32 s3, s{WV}, 13")
    a(f"s_add_u32 s3, s3, {A_OP}")
    a(f"v_add_u32 v2, s3, v1")
    a(f"s_lshl_b32 s3, s{WV}, 9")
    a(f"s_add_u32 s3, s3, {A_LP}")
    a("v_lshrrev_b32 v3, 2, v1")
    a("v_and_b32 v4, 127, v3")
    a("v_add_u32 v4, s3, v4")
    a(f"s_mov_b32 s46, {hex(LMAX)}")
    a("s_mov_b64 s[56:57], 0")
    for g in range(4):
        o = AO + 16 * g
        if g == 3: a("s_nop 3")
        a("s_mov_b32 exec_lo, 0")
        a(f"ds_write_b32 v4, v{o+12} offset:{g*128}")
        a(f"v_cmp_nge_f32 vcc, s46, v{o+12}")
        a("s_mov_b32 exec_lo, -1")
        a("s_or_b64 s[56:57], s[56:57], vcc")
        for j in range(8):
            a(f"v_cvt_pk_bf16_f32 v{AS[0]+8*g+j}, v{o+2*j}, v{o+2*j+1}")
        a(f"ds_write_b128 v2, {v(AS[0]+8*g,4)} offset:{g*2048}")
        a(f"ds_write_b128 v2, {v(AS[0]+8*g+4,4)} offset:{g*2048+1024}")
    a(f"v_mov_b32 v3, {L_CNT}")
    a("s_cmp_eq_u64 s[56:57], 0")
    a(f"s_cbranch_scc1 {P}_safe")
    a("v_mov_b32 v2, 1")
    a("s_mov_b64 exec, 1")
    a(f"ds_add_u32 v3, v2 offset:{C_BAD}")
    a("s_mov_b64 exec, -1")
    a.label(P + "_safe")
    pf.stamp(17)
    sw_barrier(a, C_ATT, 44, 8, 3, 2, P + "_b1")
    pf.stamp(18)
    a(f"ds_read_b32 v2, v3 offset:{C_BAD}")
    a(f"s_lshl_b32 s3, s{WV}, 10")
    a(f"s_add_u32 s3, s3, {A_OP}")
    a("v_add_u32 v4, s3, v1")
    for w in range(8):
        a(f"ds_read_b128 {v(AO+4*w,4)}, v4 offset:{w*8192}")
    a(f"s_lshr_b32 s45, s{WV}, 1")
    a("s_lshl_b32 s3, s45, 7")
    a(f"s_add_u32 s3, s3, {A_LP}")
    a("v_lshrrev_b32 v3, 2, v1")
    a("v_and_b32 v3, 127, v3")
    a("v_add_u32 v3, s3, v3")
    a("s_waitcnt lgkmcnt(8)")
    a("v_readfirstlane_b32 s3, v2")
    a("s_cmp_lg_u32 s3, 0")
    a("s_cselect_b32 s3, 1, 0")
    a("s_andn2_b32 s3, s3, s51")
    a(f"s_cbranch_scc1 {P}_fallback")
    acc = AO + 40
    a("s_mov_b32 s46, 0x00003f80")
    a("s_mov_b32 s49, 0x3f800000")
    for w in range(7):
        a(f"ds_read_b32 v{AO+32+w}, v3 offset:{w*512}")
    for j in range(8): a(f"v_mov_b32 v{acc+j}, 0")
    for w in range(8):
        a(f"s_waitcnt lgkmcnt({14 - w})" if w < 7 else "s_waitcnt lgkmcnt(7)")
        if w == 0: a(f"ds_read_b32 v{AO+39}, v3 offset:{7*512}")
        for j in range(4):
            a(f"v_dot2c_f32_bf16 v{acc+2*j}, s46, v{AO+4*w+j}")
            a(f"v_dot2c_f32_bf16 v{acc+2*j+1}, s49, v{AO+4*w+j}")
    a("s_lshr_b32 s3, s45, 1")
    a(f"s_lshl_b32 s46, s{RB}, 1")
    a("s_add_u32 s3, s3, s46")
    a("s_lshl_b32 s3, s3, 4")
    a(f"s_lshl_b32 s46, s{J2}, 1")
    a("s_add_u32 s3, s3, s46")
    a("s_and_b32 s46, s45, 1")
    a("s_add_u32 s3, s3, s46")
    a("s_lshl_b32 s3, s3, 11")
    a(f"s_and_b32 s46, s{WV}, 1")
    a("s_lshl_b32 s46, s46, 10")
    a("s_add_u32 s3, s3, s46")
    a(f"s_add_u32 s47, s3, {WS_OF}")
    a("s_waitcnt lgkmcnt(0)")
    lds_arrive(a, C_TRD, 2, 3)
    l = AO + 32
    a(f"v_add_f32 v{l}, v{l}, v{l+1}")
    a(f"v_add_f32 v{l+2}, v{l+2}, v{l+3}")
    a(f"v_add_f32 v{l+4}, v{l+4}, v{l+5}")
    a(f"v_add_f32 v{l+6}, v{l+6}, v{l+7}")
    a(f"v_add_f32 v{l}, v{l}, v{l+2}")
    a(f"v_add_f32 v{l+4}, v{l+4}, v{l+6}")
    a(f"v_add_f32 v{l}, v{l}, v{l+4}")
    a(f"v_rcp_f32 v{l+1}, v{l}")
    a("s_nop 0")
    for j in range(8): a(f"v_mul_f32 v{acc+j}, v{acc+j}, v{l+1}")
    for j in range(4): a(f"v_cvt_pk_bf16_f32 v{AO+j}, v{acc+2*j}, v{acc+2*j+1}")
    a(f"s_and_b32 s3, s{WV}, 1")
    a("s_cmp_eq_u32 s3, 1")
    a("s_cselect_b32 exec_hi, -1, 0")
    a("s_mov_b32 exec_lo, 0")
    a(f"v_mov_b32 v{AO+2}, 0")
    a(f"v_mov_b32 v{AO+3}, 0")
    a("s_mov_b64 exec, -1")
    pf.stamp(19)
    a(f"buffer_store_dwordx4 {v(AO,4)}, v1, s[{WSR}:{WSR+3}], s47 offen{SC1}")
    a(f"buffer_store_dwordx4 {v(AO,4)}, v1, s[{WSR}:{WSR+3}], s47 offen")
    a(f"s_lshl_b32 s3, s{RB}, 5")
    a(f"s_add_u32 s3, s3, s{J2}")
    a("s_lshl_b32 s3, s3, 2")
    a(f"s_add_u32 s3, s3, {FL_O}")
    arrive_flag(a, C_OCNT, 8, 3, 2, 3, P + "_oflag")
    pf.stamp(8)
    a(f"s_branch {P}_done")
    a.label(P + "_fallback")
    a("s_waitcnt lgkmcnt(0)")
    a("s_mov_b32 s51, 1")
    a(f"s_mov_b32 s{KR+2}, 0x40000")
    a("s_mov_b32 exec_lo, 0")
    for g in range(4):
        a(f"v_mov_b32 v{AQ+8*g+6}, 0")
        a(f"v_mov_b32 v{AQ+8*g+7}, 0")
    a("s_mov_b32 exec_lo, -1")
    for g in range(4): a(f"v_mov_b32 v{APB+g}, 0xff800000")
    a("s_mov_b32 s43, 0")
    a.label(P + "_fb_loop")
    a(f"buffer_load_dwordx4 {v(AK[0],4)}, v1, s[{KR}:{KR+3}], s43 offen{SC1}")
    a(f"buffer_load_dwordx4 {v(AK[0]+4,4)}, v1, s[{KR}:{KR+3}], s43 offen offset:1024{SC1}")
    a("s_waitcnt vmcnt(0)")
    for g in range(4):
        o = AO + 16 * g
        a(f"{MF} {v(o,16)}, {v(AK[0],4)}, {v(AQ+8*g,4)}, 0")
        a(f"{MF} {v(o,16)}, {v(AK[0]+4,4)}, {v(AQ+8*g+4,4)}, {v(o,16)}")
    a("s_nop 7")
    for g in range(4):
        o = AO + 16 * g
        for j in range(0, 16, 2):
            a(f"v_max3_f32 v{APB+g}, v{APB+g}, v{o+j}, v{o+j+1}")
    a("s_add_u32 s43, s43, 4096")
    a("s_cmp_lt_u32 s43, 0x40000")
    a(f"s_cbranch_scc1 {P}_fb_loop")
    for g in range(4):
        m = APB + g
        a(f"v_mov_b32 v2, v{m}")
        a("s_nop 1")
        a(f"v_permlane32_swap_b32 v2, v{m}")
        a(f"v_max_f32 v2, v2, v{m}")
        a("v_sub_f32 v2, 0, v2")
        a("v_cvt_pk_bf16_f32 v3, v2, v2")
        a("v_and_b32 v3, 0xffff0000, v3")
        a(f"v_sub_f32 v{m}, v2, v3")
        a(f"v_cvt_pk_bf16_f32 v2, v{m}, v{m}")
        a("v_and_b32 v2, 0xffff0000, v2")
        a(f"v_sub_f32 v{m}, v{m}, v2")
        a(f"v_cvt_pk_bf16_f32 v{m}, v{m}, 0")
        a("v_lshrrev_b32 v3, 16, v3")
        a("v_or_b32 v3, v3, v2")
        a("s_mov_b32 exec_lo, 0")
        a(f"v_mov_b32 v{AQ+8*g+6}, v3")
        a(f"v_mov_b32 v{AQ+8*g+7}, v{m}")
        a("s_mov_b32 exec_lo, -1")
    a(f"v_mov_b32 v3, {L_CNT}")
    sw_barrier(a, C_ATT, 44, 8, 3, 2, P + "_bf")
    a(f"s_branch {P}_restart")
    a.label(P + "_done")

def gen_background(a, pf):
    P = "bg"
    XF = 56; ARE, AIM = 8, 24
    nbar = [0]
    T = [54, 55]
    pf.T = T
    def bar():
        nbar[0] += 1
        a(f"v_mov_b32 v{T[0]}, {L_CNT}")
        sw_barrier(a, C_BG, 44, 4, T[0], T[1], f"{P}_bar{nbar[0]}")
    def stage3(tag, vd_=156, vt_=158):
        if "nopf" in X: return
        a(f"s_cmp_eq_u32 s{BW}, 3")
        a(f"s_cbranch_scc1 {P}_not3{tag}")
        a(f"s_cmp_eq_u32 s{BW}, 0")
        a(f"s_cselect_b32 s56, s{S_CRE}, s{S_CIM}")
        a(f"s_cselect_b32 s57, s{S_CRE+1}, s{S_CIM+1}")
        a(f"s_cmp_eq_u32 s{BW}, 2")
        a(f"s_cselect_b32 s56, s{S_WO}, s56")
        a(f"s_cselect_b32 s57, s{S_WO+1}, s57")
        touch_matrix(a, 56, vd_, vt_)
        a.label(P + "_not3" + tag)
    a("s_mov_b32 s44, 0")
    a(f"s_lshl_b32 s37, s{J2}, 1")
    a(f"s_and_b32 s3, s{BW}, 1")
    a("s_add_u32 s37, s37, s3")
    a(f"s_lshr_b32 s38, s{BW}, 1")
    a(f"s_cmp_eq_u32 s{BW}, 3")
    a(f"s_cbranch_scc0 {P}_nononce")
    srd(a, 48, S_DBG, 256)
    a("v_mov_b32 v7, 0")
    a.label(P + "_npoll")
    a(f"buffer_load_dword v6, v7, s[48:51], 0 offen offset:{D_NONCE}{SC1}")
    a("s_waitcnt vmcnt(0)")
    a("v_readfirstlane_b32 s3, v6")
    a("s_cmp_lg_u32 s3, 0")
    a(f"s_cbranch_scc1 {P}_npoll_ok")
    a(f"s_sleep {POLLSLEEP}")
    a(f"s_sub_u32 s{SPIN}, s{SPIN}, 1")
    a(f"s_cbranch_scc0 {P}_npoll")
    a(f"s_mov_b32 s{SPIN}, 0")
    a.label(P + "_npoll_ok")
    a(f"v_mov_b32 v7, {L_CNT}")
    a(f"ds_write_b32 v7, v6 offset:{C_NONCE}")
    a.label(P + "_nononce")
    a(f"s_cmp_eq_u32 s{J2}, 7")
    a(f"s_cbranch_scc1 {P}_skip")
    if "nobg" in X: a(f"s_branch {P}_skip")
    a(f"s_and_b32 s3, s{BW}, 1")
    a("s_cmp_eq_u32 s3, 0")
    a(f"s_cselect_b32 s{TR}, s{S_BRE}, s{S_BIM}")
    a(f"s_cselect_b32 s{TR+1}, s{S_BRE+1}, s{S_BIM+1}")
    a(f"s_mov_b32 s{TR+2}, {WBYTES}")
    a(f"s_mov_b32 s{TR+3}, 0x00020000")
    plain_lane_off(a, 8, 0, 9)
    a(f"s_lshl_b32 s3, s{J2}, 1")
    a("s_add_u32 s3, s3, s38")
    a(f"s_mul_i32 s32, s3, {32*896}")
    a(f"s_lshl_b32 s34, s{BW}, 11")
    a("s_mov_b32 m0, s34")
    a("s_mov_b32 s36, 14")
    a.label(P + "_bdma")
    a(f"s_add_u32 s33, s32, {16*896}")
    a(f"buffer_load_dwordx4 v8, s[{TR}:{TR+3}], s32 offen lds")
    a("s_add_u32 m0, m0, 1024")
    a("s_sub_u32 s36, s36, 1")
    a(f"buffer_load_dwordx4 v8, s[{TR}:{TR+3}], s33 offen lds")
    a("s_add_u32 s32, s32, 64")
    a(f"s_add_u32 m0, m0, {8192-1024}")
    a("s_cmp_lg_u32 s36, 0")
    a(f"s_cbranch_scc1 {P}_bdma")
    xfrag_addr(a, 6, 0, 8)
    a(f"s_and_b32 s3, s{BW}, 1")
    a("s_lshl_b32 s3, s3, 12")
    a("v_add_u32 v6, s3, v6")
    a("v_xor_b32 v7, 32, v6")
    a("s_waitcnt vmcnt(0)")
    bar()
    a(f"ds_read_b32 v55, v54 offset:{C_NONCE}")
    a("s_waitcnt lgkmcnt(0)")
    a(f"v_readfirstlane_b32 s{NONCE}, v55")
    pf.stamp(5)
    S3 = os.environ.get("S3", "b")
    if S3 == "b": stage3("a", 52, 54)
    BB = [40, 48]
    def rdB(j):
        b = BB[j & 1]
        if j in (16, 17): a(f"v_add_u32 v{6+(j&1)}, 0x10000, v{6+(j&1)}")
        o = (j >> 1) * 8192 - (65536 if j >= 16 else 0)
        a(f"ds_read_b128 {v(b,4)}, v{6+(j&1)} offset:{o}")
        a(f"ds_read_b128 {v(b+4,4)}, v{6+(j&1)} offset:{o+2048}")
    rdB(0); rdB(1)
    for j in range(28):
        b = BB[j & 1]
        a("s_waitcnt lgkmcnt(2)" if j < 27 else "s_waitcnt lgkmcnt(0)")
        c1 = "0" if j == 0 else v(ARE,16); c2 = "0" if j == 0 else v(AIM,16)
        a(f"{MF} {v(ARE,16)}, {v(XF+4*j,4)}, {v(b,4)}, {c1}")
        a(f"{MF} {v(AIM,16)}, {v(XF+4*j,4)}, {v(b+4,4)}, {c2}")
        if j + 2 < 28: rdB(j + 2)
    a(f"v_mov_b32 v54, {L_CNT}")
    a("v_mov_b32 v55, 1")
    a("s_mov_b64 exec, 1")
    a(f"ds_add_u32 v54, v55 offset:{C_UDONE}")
    a("s_mov_b64 exec, -1")
    pf.stamp(6)
    if S3 == "u": stage3("a")
    def csq(dr, di, sr, si):
        a(f"v_mul_f32 v46, v{si}, v{si}")
        a(f"v_mul_f32 v47, v{sr}, v{si}")
        a(f"v_fma_f32 v{dr}, v{sr}, v{sr}, -v46")
        a(f"v_add_f32 v{di}, v47, v47")
    csq(40, 41, 2, 3)
    for _ in range(3): csq(40, 41, 40, 41)
    csq(42, 43, 40, 41); csq(42, 43, 42, 43)
    csq(44, 45, 42, 43)
    for _ in range(3): csq(44, 45, 44, 45)
    a("v_mov_b32 v48, v4")
    a("v_mov_b32 v49, v4")
    a("v_mov_b32 v50, v5")
    a("v_mov_b32 v51, v5")
    for r in range(0, 16, 2):
        a(f"v_pk_mul_f32 v[46:47], v[50:51], {v(AIM+r,2)}")
        a(f"v_pk_mul_f32 v[52:53], v[50:51], {v(ARE+r,2)}")
        a(f"v_pk_fma_f32 {v(ARE+r,2)}, v[48:49], {v(ARE+r,2)}, v[46:47] neg_lo:[0,0,1] neg_hi:[0,0,1]")
        a(f"v_pk_fma_f32 {v(AIM+r,2)}, v[48:49], {v(AIM+r,2)}, v[52:53]")
    a(f"v_mov_b32 v48, v{ARE}")
    a(f"v_mov_b32 v49, v{AIM}")
    for r in range(1, 16):
        cfma(a, 48, 49, 2, 3, ARE + r, AIM + r, 46, 47)
    a("v_and_b32 v50, 31, v0")
    a("v_lshlrev_b32 v50, 3, v50")
    a(f"s_and_b32 s3, s{BW}, 1")
    a("s_lshl_b32 s3, s3, 10")
    a(f"s_add_u32 s3, s3, {B_EX}")
    a("v_add_u32 v50, s3, v50")
    a("v_lshrrev_b32 v51, 5, v0")
    a("s_lshl_b32 s3, s38, 1")
    a("v_add_u32 v51, s3, v51")
    a("v_lshl_add_u32 v52, v51, 8, v50")
    a("ds_write_b64 v52, v[48:49]")
    bar()
    for c in range(4):
        a(f"ds_read_b64 {v(56+2*c,2)}, v50 offset:{c*256}")
    a("s_waitcnt lgkmcnt(0)")
    a("v_mov_b32 v64, v56")
    a("v_mov_b32 v65, v57")
    for c in range(1, 4):
        cfma(a, 64, 65, 40, 41, 56 + 2*c, 57 + 2*c, 46, 47)
    a("s_cmp_eq_u32 s38, 1")
    a(f"s_cbranch_scc0 {P}_nopub")
    a(f"s_mul_i32 s3, s{RB}, {448*16}")
    a("s_lshl_b32 s33, s37, 9")
    a("s_add_u32 s3, s3, s33")
    a(f"s_add_u32 s3, s3, {WS_E}")
    a(f"v_mov_b32 v66, s{NONCE}")
    a(f"v_mov_b32 v67, s{NONCE}")
    a("v_and_b32 v68, 31, v0")
    a("v_lshlrev_b32 v68, 4, v68")
    a("s_mov_b32 exec_hi, 0")
    a(f"buffer_store_dwordx4 v[64:67], v68, s[{WSR}:{WSR+3}], s3 offen{SC1}")
    a("s_mov_b64 exec, -1")
    a.label(P + "_nopub")
    pf.stamp(7)
    a(f"s_add_u32 s48, s{WSR}, {WS_E}")
    a(f"s_addc_u32 s49, s{WSR+1}, 0")
    a(f"s_mov_b32 s50, {32*448*16}")
    a("s_mov_b32 s51, 0x00020000")
    a("v_lshrrev_b32 v67, 5, v0")
    a("v_lshlrev_b32 v67, 4, v67")
    a(f"v_sub_u32 v67, s{RB}, v67")
    a("v_add_u32 v67, -1, v67")
    a(f"s_mov_b32 s3, {448*16}")
    a("v_mul_lo_u32 v68, v67, s3")
    a("v_and_b32 v66, 31, v0")
    a("v_lshlrev_b32 v66, 4, v66")
    a("s_lshl_b32 s33, s37, 9")
    a("v_add3_u32 v68, v68, v66, s33")
    EG = 72
    for i in range(1, 16):
        a(f"v_subrev_u32 v{136+i}, {448*16*i}, v68")
    a("v_mov_b32 v136, v68")
    a("s_waitcnt vmcnt(0)")
    a(f"s_cmp_eq_u32 s{RB}, 0")
    a(f"s_cbranch_scc1 {P}_pollE")
    a.label(P + "_pollE0")
    a("s_mov_b32 exec_hi, 0")
    a(f"buffer_load_dwordx3 {v(EG,3)}, v136, s[48:51], 0 offen{SC1}")
    a("s_mov_b64 exec, -1")
    a("s_waitcnt vmcnt(0)")
    a(f"v_cmp_ne_u32 vcc, s{NONCE}, v{EG+2}")
    a("s_cmp_eq_u32 vcc_lo, 0")
    a(f"s_cbranch_scc1 {P}_pollE")
    a(f"s_sleep {os.environ.get('ES', '6')}")
    a(f"s_sub_u32 s{SPIN}, s{SPIN}, 1")
    a(f"s_cbranch_scc0 {P}_pollE0")
    a(f"s_mov_b32 s{SPIN}, 0")
    a.label(P + "_pollE")
    for i in range(16):
        a(f"buffer_load_dwordx3 {v(EG+4*i,3)}, v{136+i}, s[48:51], 0 offen{SC1}")
    a("s_mov_b64 s[56:57], 0")
    a("s_waitcnt vmcnt(0)")
    for i in range(16):
        a(f"v_cmp_ne_u32 vcc, s{NONCE}, v{EG+4*i+2}")
        a(f"s_cmp_gt_u32 s{RB}, {i}")
        a("s_cselect_b32 s58, -1, 0")
        a(f"s_cmp_gt_u32 s{RB}, {i+16}")
        a("s_cselect_b32 s59, -1, 0")
        a("s_and_b64 vcc, vcc, s[58:59]")
        a("s_or_b64 s[56:57], s[56:57], vcc")
    a("s_cmp_eq_u64 s[56:57], 0")
    a(f"s_cbranch_scc1 {P}_pollE_ok")
    a("s_sleep 12")
    a(f"s_sub_u32 s{SPIN}, s{SPIN}, 1")
    a(f"s_cbranch_scc0 {P}_pollE")
    a(f"s_mov_b32 s{SPIN}, 0")
    a.label(P + "_pollE_ok")
    pf.stamp(8)
    a(f"v_mov_b32 v68, v{EG+60}")
    a(f"v_mov_b32 v69, v{EG+61}")
    for i in range(14, -1, -1):
        cfma(a, 68, 69, 42, 43, EG + 4*i, EG + 4*i + 1, 46, 47)
    a("v_mov_b32 v70, v68")
    a("v_mov_b32 v71, v69")
    a("v_mov_b32 v72, v68")
    a("v_mov_b32 v73, v69")
    a("s_nop 1")
    a("v_permlane32_swap_b32 v70, v72")
    a("v_permlane32_swap_b32 v71, v73")
    cfma(a, 72, 73, 44, 45, 70, 71, 46, 47)
    for cp in range(3):
        a("v_mov_b32 v74, v72")
        a("v_mov_b32 v75, v73")
        cfma(a, 74, 75, 40, 41, 56 + 2*cp, 57 + 2*cp, 46, 47)
        a(f"v_cmp_lt_u32 vcc, {cp}, v51")
        a("s_nop 1")
        a("v_cndmask_b32 v72, v72, v74, vcc")
        a("v_cndmask_b32 v73, v73, v75, vcc")
    a(f"s_lshl_b32 s3, s{BW}, 12")
    a(f"s_add_u32 s3, s3, {B_HT}")
    a("v_and_b32 v66, 31, v0")
    a("v_lshlrev_b32 v66, 1, v66")
    a("v_lshrrev_b32 v67, 5, v0")
    a("v_lshl_add_u32 v66, v67, 8, v66")
    a("v_add_u32 v66, s3, v66")
    for r in range(16):
        cfma(a, 72, 73, 2, 3, ARE + r, AIM + r, 46, 47)
        a(f"v_cvt_pk_bf16_f32 v{76+(r&1)}, v72, -v73")
        slot = (r & 3) + 8 * (r >> 2)
        a(f"ds_write_b16 v66, v{76+(r&1)} offset:{slot*64}")
        a(f"ds_write_b16_d16_hi v66, v{76+(r&1)} offset:{2048+slot*64}")
    a("v_and_b32 v67, 31, v0")
    a("v_lshlrev_b32 v67, 6, v67")
    a("v_lshrrev_b32 v68, 5, v0")
    a("v_lshl_add_u32 v67, v68, 4, v67")
    a("v_add_u32 v67, s3, v67")
    a("s_waitcnt lgkmcnt(0)")
    for part in range(2):
        for jj in range(2):
            a(f"ds_read_b128 {v(80+8*part+4*jj,4)}, v67 offset:{part*2048+jj*32}")
    a(f"s_lshl_b32 s3, s{RB}, 1")
    a("s_add_u32 s3, s3, s38")
    a("s_mul_i32 s3, s3, 56")
    a("s_lshl_b32 s33, s37, 1")
    a("s_add_u32 s3, s3, s33")
    a("s_lshl_b32 s3, s3, 10")
    a(f"s_add_u32 s3, s3, {WS_HF}")
    a(f"s_add_u32 s33, s3, {28*1024}")
    a("s_waitcnt lgkmcnt(0)")
    a(f"buffer_store_dwordx4 {v(80,4)}, v1, s[{WSR}:{WSR+3}], s3 offen{SC1}")
    a(f"buffer_store_dwordx4 {v(84,4)}, v1, s[{WSR}:{WSR+3}], s3 offen offset:1024{SC1}")
    a(f"buffer_store_dwordx4 {v(88,4)}, v1, s[{WSR}:{WSR+3}], s33 offen{SC1}")
    a(f"buffer_store_dwordx4 {v(92,4)}, v1, s[{WSR}:{WSR+3}], s33 offen offset:1024{SC1}")
    if "dup" in X:
        a(f"buffer_store_dwordx4 {v(80,4)}, v1, s[{WSR}:{WSR+3}], s3 offen")
        a(f"buffer_store_dwordx4 {v(84,4)}, v1, s[{WSR}:{WSR+3}], s3 offen offset:1024")
        a(f"buffer_store_dwordx4 {v(88,4)}, v1, s[{WSR}:{WSR+3}], s33 offen")
        a(f"buffer_store_dwordx4 {v(92,4)}, v1, s[{WSR}:{WSR+3}], s33 offen offset:1024")
    a(f"s_lshl_b32 s3, s{RB}, 5")
    a(f"s_add_u32 s3, s3, s{J2}")
    a("s_lshl_b32 s3, s3, 2")
    a(f"s_add_u32 s3, s3, {FL_H}")
    arrive_flag(a, C_HCNT, 4, 3, 66, 67, P + "_hflag")
    pf.stamp(9)
    a(f"s_lshr_b32 s3, s{BW}, 1")
    a("s_cmp_eq_u32 s3, 0")
    a(f"s_cselect_b32 s{TR}, s{S_CRE}, s{S_CIM}")
    a(f"s_cselect_b32 s{TR+1}, s{S_CRE+1}, s{S_CIM+1}")
    plain_lane_off(a, 53, 0, 69)
    a(f"s_mul_i32 s40, s{J2}, {64*896}")
    a(f"s_and_b32 s3, s{BW}, 1")
    a("s_mul_i32 s3, s3, 448")
    a("s_add_u32 s40, s40, s3")
    a(f"s_lshl_b32 s41, s{BW}, 14")
    CDMA = [53]
    def c_dma(kb):
        a(f"s_add_u32 m0, s41, {(kb & 3)*4096}")
        for q in range(4):
            a(f"s_add_u32 s33, s40, {q*16*896 + kb*64}")
            a(f"buffer_load_dwordx4 v{CDMA[0]}, s[{TR}:{TR+3}], s33 offen lds")
            if q < 3: a("s_add_u32 m0, m0, 1024")
    for kb in range(4): c_dma(kb)
    a(f"s_cmp_eq_u32 s{BW}, 0")
    a(f"s_cbranch_scc0 {P}_nopollH")
    a("v_lshlrev_b32 v67, 2, v0")
    a(f"s_lshl_b32 s35, s{RB}, 7")
    a(f"s_add_u32 s35, s35, {FL_H}")
    a("s_mov_b64 s[58:59], 0x7f")
    poll(a, P + "_pollH", 68, 67, 35, 58)
    srd(a, 48, S_DBG, 256)
    a(f"v_mov_b32 v67, {D_GOG}")
    a.label(P + "_pollG")
    a(f"buffer_load_dword v68, v67, s[48:51], 0 offen{SC1}")
    a("s_waitcnt vmcnt(0)")
    a("v_readfirstlane_b32 s3, v68")
    a("s_cmp_lg_u32 s3, 0")
    a(f"s_cbranch_scc1 {P}_pollG_ok")
    a(f"s_sleep {POLLSLEEP}")
    a(f"s_sub_u32 s{SPIN}, s{SPIN}, 1")
    a(f"s_cbranch_scc0 {P}_pollG")
    a(f"s_mov_b32 s{SPIN}, 0")
    a.label(P + "_pollG_ok")
    a.label(P + "_nopollH")
    a("s_waitcnt vmcnt(0)")
    bar()
    pf.stamp(10)
    T[0], T[1] = 4, 5
    ACC = 8
    XS, GT = 136, 152
    a(f"s_lshl_b32 s3, s{RB}, 6")
    a("s_lshl_b32 s33, s38, 5")
    a("s_add_u32 s3, s3, s33")
    a("v_lshrrev_b32 v72, 5, v0")
    a("v_lshlrev_b32 v72, 4, v72")
    a("v_add_u32 v72, s3, v72")
    a(f"s_lshl_b32 s33, s{J2}, 6")
    a(f"s_and_b32 s35, s{BW}, 1")
    a("s_lshl_b32 s35, s35, 5")
    a("s_add_u32 s33, s33, s35")
    a("v_and_b32 v73, 31, v0")
    a("v_add_u32 v73, s33, v73")
    srd(a, 48, S_X, XBYTES)
    a("v_mul_u32_u24 v74, 896, v72")
    a("v_lshl_add_u32 v74, v73, 1, v74")
    for r in range(16):
        a(f"buffer_load_ushort v{XS+r}, v74, s[48:51], 0 offen offset:{(r%4)*896}")
        if r % 4 == 3 and r < 15: a(f"v_add_u32 v74, {4*896}, v74")
    srd(a, 52, S_DSK, 896)
    a("v_lshlrev_b32 v75, 1, v73")
    a("buffer_load_ushort v3, v75, s[52:55], 0 offen")
    a("v_lshlrev_b32 v75, 2, v72")
    a(f"s_mov_b32 s35, {WS_G}")
    for q in range(4):
        a(f"buffer_load_dwordx4 {v(GT+4*q,4)}, v75, s[{WSR}:{WSR+3}], s35 offen offset:{16*q}{SC1}")
    if "lowy" in X: a("s_setprio 0")
    a(f"s_lshl_b32 s3, s{RB}, 1")
    a("s_mul_i32 s3, s3, 56")
    a(f"s_mul_i32 s33, s{BW}, 14")
    a("s_add_u32 s3, s3, s33")
    a("s_lshl_b32 s3, s3, 10")
    a(f"s_add_u32 s32, s3, {WS_HF}")
    a(f"s_add_u32 s34, s32, {56*1024}")
    AF = 88; NA = 6
    plain_lane_off(a, 2, 0, 72)
    CDMA[0] = 2
    xfrag_addr(a, 6, 0, 72)
    a("v_add_u32 v6, s41, v6")
    a("v_xor_b32 v7, 32, v6")
    def ldA(st_):
        r = AF + 8 * (st_ % NA)
        a(f"s_add_u32 s35, s32, {st_*1024}")
        a(f"s_add_u32 s36, s34, {st_*1024}")
        a(f"buffer_load_dwordx4 {v(r,4)}, v1, s[{WSR}:{WSR+3}], s35 offen{SC1}")
        a(f"buffer_load_dwordx4 {v(r+4,4)}, v1, s[{WSR}:{WSR+3}], s36 offen{SC1}")
    for st_ in range(NA): ldA(st_)
    CB = [72, 80]
    def rdC(st_):
        b = CB[st_ & 1]
        kb = st_ >> 1
        a(f"ds_read_b128 {v(b,4)}, v{6+(st_&1)} offset:{(kb&3)*4096}")
        a(f"ds_read_b128 {v(b+4,4)}, v{6+(st_&1)} offset:{(kb&3)*4096+2048}")
    issued = []
    for st_ in range(NA): issued += [("A", st_)] * 2
    HY = int(os.environ.get("HY", "0"))
    if HY:
        a(f"v_mov_b32 v4, {L_CNT}")
        lds_wait(a, C_LEND, HY, 4, 5, P + "_lend", sleep=8)
        a("s_setprio 3")
    rdC(0)
    for st_ in range(14):
        kb = st_ >> 1
        need = [("A", st_)]
        if st_ + 1 < 14 and ((st_ + 1) >> 1) >= 4: need.append(("C", (st_ + 1) >> 1))
        last = max(i for i, t in enumerate(issued) if t in need)
        n_out = len(issued) - 1 - last
        a(f"s_waitcnt vmcnt({n_out})")
        if st_ + 1 < 14: rdC(st_ + 1)
        a(f"s_waitcnt lgkmcnt({2 if st_ + 1 < 14 else 0})")
        b = CB[st_ & 1]; r = AF + 8 * (st_ % NA)
        for rt in range(2):
            for ct in range(2):
                acc = ACC + 16 * (2 * rt + ct)
                c = "0" if st_ == 0 else v(acc, 16)
                a(f"{MF} {v(acc,16)}, {v(r+4*rt,4)}, {v(b+4*ct,4)}, {c}")
        if st_ + NA < 14:
            ldA(NA + st_); issued += [("A", NA + st_)] * 2
        if (st_ & 1) == 1 and kb + 4 < 7:
            c_dma(kb + 4); issued += [("C", kb + 4)] * 4
    pf.stamp(11)
    a("s_setprio 3")
    bar()
    VT_, VD_, VO_, t1, t2, t3, t4, t5 = 72, 73, 74, 75, 76, 77, 78, 79
    srd(a, TR, S_WO, WBYTES)
    a(f"v_lshrrev_b32 v{t1}, 3, v0")
    a(f"v_mul_u32_u24 v{t1}, 896, v{t1}")
    a(f"v_and_b32 v{t2}, 7, v0")
    a(f"v_lshl_add_u32 v{t1}, v{t2}, 4, v{t1}")
    a(f"s_mul_i32 s32, s{BW}, {112*896}")
    a(f"s_lshl_b32 s3, s{J2}, 7")
    a("s_add_u32 s32, s32, s3")
    a(f"s_mul_i32 s34, s{BW}, 14336")
    a("s_mov_b32 m0, s34")
    a("s_mov_b32 s36, 14")
    a.label(P + "_wodma")
    a("s_sub_u32 s36, s36, 1")
    a(f"buffer_load_dwordx4 v{t1}, s[{TR}:{TR+3}], s32 offen lds")
    a("s_add_u32 s32, s32, 7168")
    a("s_add_u32 m0, m0, 1024")
    a("s_cmp_lg_u32 s36, 0")
    a(f"s_cbranch_scc1 {P}_wodma")
    a("v_mov_b32 v80, 0")
    a("v_mov_b32 v81, 0")
    a(f"v_lshlrev_b32 v{t2}, 3, v0")
    a(f"ds_write_b64 v{t2}, v[80:81] offset:57344")
    a(f"v_mov_b32 v4, {L_CNT}")
    lds_wait(a, C_TRD, 8, 4, 5, P + "_trd")
    a(f"s_lshl_b32 s3, s{BW}, 12")
    a(f"s_add_u32 s3, s3, {A_OP}")
    a(f"v_add_u32 v{t1}, s3, v1")
    for t in range(4):
        for q in range(4):
            a(f"ds_write_b128 v{t1}, {v(ACC+16*t+4*q,4)} offset:{t*16384+q*1024}")
    bar()
    a(f"s_lshl_b32 s3, s{BW}, 14")
    a(f"s_add_u32 s3, s3, {A_OP}")
    a(f"v_add_u32 v{t1}, s3, v1")
    for src in range(3):
        for q in range(4):
            a(f"ds_read_b128 {v(88+16*src+4*q,4)}, v{t1} offset:{src*4096+q*1024}")
    YT = 8
    for q in range(4):
        a(f"ds_read_b128 {v(YT+4*q,4)}, v{t1} offset:{3*4096+q*1024}")
        if q == 2: a("s_waitcnt lgkmcnt(4)")
    a("s_waitcnt lgkmcnt(0)")
    VT_, VD_, VO_, t1, t2, t3, t4, t5 = 40, 41, 42, 43, 44, 45, 46, 47
    for r in range(16):
        a(f"v_add_f32 v{88+r}, v{88+r}, v{104+r}")
        a(f"v_add_f32 v{YT+r}, v{YT+r}, v{120+r}")
    a("v_lshlrev_b32 v3, 16, v3")
    for r in range(16):
        a(f"v_add_f32 v{YT+r}, v{YT+r}, v{88+r}")
        a(f"v_lshlrev_b32 v{XS+r}, 16, v{XS+r}")
        a(f"v_mul_f32 v{XS+r}, v{XS+r}, v3")
        a(f"v_fma_f32 v{YT+r}, 2.0, v{YT+r}, v{XS+r}")
        a(f"v_sub_f32 v{XS+r}, 1.0, v{GT+r}")
        a(f"v_mul_f32 v{YT+r}, v{YT+r}, v{XS+r}")
    a(f"s_lshl_b32 s3, s{RB}, 6")
    a("s_lshl_b32 s33, s38, 5")
    a("s_add_u32 s3, s3, s33")
    a(f"v_lshrrev_b32 v{VT_}, 5, v0")
    a(f"v_lshlrev_b32 v{VT_}, 4, v{VT_}")
    a(f"v_add_u32 v{VT_}, s3, v{VT_}")
    a(f"s_lshl_b32 s33, s{J2}, 6")
    a(f"s_and_b32 s35, s{BW}, 1")
    a("s_lshl_b32 s35, s35, 5")
    a("s_add_u32 s33, s33, s35")
    a(f"v_and_b32 v{VD_}, 31, v0")
    a(f"v_add_u32 v{VD_}, s33, v{VD_}")
    a(f"v_mul_u32_u24 v{VO_}, 1792, v{VT_}")
    a(f"v_lshl_add_u32 v{VO_}, v{VD_}, 2, v{VO_}")
    srd(a, 48, S_OUT, OUTBYTES)
    a("v_lshrrev_b32 v6, 5, v0")
    a("v_lshlrev_b32 v6, 2, v6")
    a("v_bfe_u32 v7, v0, 2, 2")
    a("v_add_u32 v6, v6, v7")
    a("v_lshlrev_b32 v6, 7, v6")
    a("v_and_b32 v7, 16, v0")
    a(f"v_and_b32 v{t1}, 3, v0")
    a(f"v_lshl_add_u32 v7, v{t1}, 2, v7")
    a("v_lshl_add_u32 v6, v7, 1, v6")
    a(f"s_and_b32 s3, s{BW}, 1")
    a(f"s_mul_i32 s3, s3, {8*28*128}")
    a("v_add_u32 v6, s3, v6")
    a("s_waitcnt vmcnt(0)")
    pf.stamp(12)
    bar()
    a(f"v_lshlrev_b32 v{t4}, 2, v0")
    a(f"s_lshl_b32 s35, s{RB}, 7")
    a(f"s_add_u32 s35, s35, {FL_O}")
    a("s_mov_b64 s[58:59], 0xff")
    poll(a, P + "_pollO", t5, t4, 35, 58)
    pf.stamp(13)
    a(f"s_lshl_b32 s3, s{RB}, 1")
    a("s_add_u32 s3, s3, s38")
    a("s_lshl_b32 s3, s3, 15")
    a(f"s_and_b32 s33, s{BW}, 1")
    a("s_lshl_b32 s33, s33, 14")
    a("s_add_u32 s3, s3, s33")
    a(f"s_add_u32 s32, s3, {WS_OF}")
    OFR = 88
    for st_ in range(16):
        a(f"s_add_u32 s33, s32, {st_*1024}")
        a(f"buffer_load_dwordx4 {v(OFR+4*st_,4)}, v1, s[{WSR}:{WSR+3}], s33 offen{SC1}")
    PA_ = [56, 72]
    WB = [24, 32]
    def rdW(st_):
        hd, f = st_ >> 1, st_ & 1
        off = (28 * hd + 16 * f) * 128
        b = WB[st_ & 1]
        for ct in range(2):
            a(f"ds_read_b64_tr_b16 {v(b+4*ct,2)}, v6 offset:{off+ct*64}")
            a(f"ds_read_b64_tr_b16 {v(b+4*ct+2,2)}, v6 offset:{off+ct*64+1024}")
    rdW(0)
    for st_ in range(16):
        if st_ + 1 < 16: rdW(st_ + 1)
        a(f"s_waitcnt vmcnt({15-st_}) lgkmcnt({4 if st_ + 1 < 16 else 0})")
        for ct in range(2):
            c = "0" if st_ == 0 else v(PA_[ct], 16)
            a(f"{MF} {v(PA_[ct],16)}, {v(OFR+4*st_,4)}, {v(WB[st_&1]+4*ct,4)}, {c}")
    a(f"s_xor_b32 s3, s{BW}, 1")
    a("s_lshl_b32 s3, s3, 12")
    a("s_add_u32 s3, s3, 65536")
    a(f"v_add_u32 v{t1}, s3, v1")
    a(f"s_and_b32 s33, s{BW}, 1")
    a("s_nop 7")
    a("s_cmp_eq_u32 s33, 0")
    a(f"s_cbranch_scc0 {P}_send0")
    for q in range(4): a(f"ds_write_b128 v{t1}, {v(PA_[1]+4*q,4)} offset:{q*1024}")
    a(f"s_branch {P}_sent")
    a.label(P + "_send0")
    a("s_nop 1")
    for q in range(4): a(f"ds_write_b128 v{t1}, {v(PA_[0]+4*q,4)} offset:{q*1024}")
    a("s_nop 1")
    for r in range(16): a(f"v_mov_b32 v{PA_[0]+r}, v{PA_[1]+r}")
    a.label(P + "_sent")
    bar()
    a(f"s_lshl_b32 s3, s{BW}, 12")
    a("s_add_u32 s3, s3, 65536")
    a(f"v_add_u32 v{t1}, s3, v1")
    for q in range(4): a(f"ds_read_b128 {v(88+4*q,4)}, v{t1} offset:{q*1024}")
    a("s_waitcnt lgkmcnt(0)")
    for r in range(16):
        a(f"v_add_f32 v{88+r}, v{88+r}, v{PA_[0]+r}")
        a(f"v_fma_f32 v{88+r}, v{GT+r}, v{88+r}, v{YT+r}")
    for r in range(16):
        a(f"buffer_store_dword v{88+r}, v{VO_}, s[48:51], 0 offen offset:{(r%2)*1792}")
        if r % 2 == 1 and r < 15: a(f"v_add_u32 v{VO_}, {2*1792}, v{VO_}")
    pf.stamp(14)
    a(f"s_branch {P}_end")
    a.label(P + "_skip")
    if os.environ.get("S3", "b") in ("b", "u"): stage3("b")
    a(f"v_mov_b32 v54, {L_CNT}")
    a("v_mov_b32 v55, 1")
    a("s_mov_b64 exec, 1")
    a(f"ds_add_u32 v54, v55 offset:{C_UDONE}")
    a("s_mov_b64 exec, -1")
    a.label(P + "_end")

def lds_wait(a, coff, target, vaddr, vtmp, lab, sleep=1):
    a.label(lab)
    a(f"ds_read_b32 v{vtmp}, v{vaddr} offset:{coff}")
    a("s_waitcnt lgkmcnt(0)")
    a(f"v_readfirstlane_b32 s3, v{vtmp}")
    a(f"s_cmp_ge_u32 s3, {target}")
    a(f"s_cbranch_scc1 {lab}_ok")
    a(f"s_sleep {sleep}")
    a(f"s_sub_u32 s{SPIN}, s{SPIN}, 1")
    a(f"s_cbranch_scc0 {lab}")
    a(f"s_mov_b32 s{SPIN}, 0")
    a.label(lab + "_ok")

def lds_arrive(a, coff, vaddr, vtmp):
    a(f"v_mov_b32 v{vaddr}, {L_CNT}")
    a(f"v_mov_b32 v{vtmp}, 1")
    a("s_mov_b64 exec, 1")
    a(f"ds_add_u32 v{vaddr}, v{vtmp} offset:{coff}")
    a("s_mov_b64 exec, -1")

def dma_loop(a, lab, vaddr, n, dsrc, dlds):
    a("s_mov_b32 s36, %d" % n)
    a.label(lab)
    a("s_sub_u32 s36, s36, 1")
    a(f"buffer_load_dwordx4 v{vaddr}, s[{TR}:{TR+3}], s32 offen lds")
    a(f"s_add_u32 s32, s32, {dsrc}")
    a(f"s_add_u32 m0, m0, {dlds}")
    a("s_cmp_lg_u32 s36, 0")
    a(f"s_cbranch_scc1 {lab}")

def q_loop(a, acc, X4, W4, vxe, vxo, vw):
    def rd(j):
        k = j & 3
        a(f"ds_read_b128 {v(X4+4*k,4)}, v{vxo if j & 1 else vxe} offset:{(j>>1)*4096}")
        a(f"ds_read_b64_tr_b16 {v(W4+4*k,2)}, v{vw} offset:{j*2048}")
        a(f"ds_read_b64_tr_b16 {v(W4+4*k+2,2)}, v{vw} offset:{j*2048+512}")
    for j in range(4): rd(j)
    for j in range(28):
        left = min(3, 27 - j)
        a(f"s_waitcnt lgkmcnt({3*left})")
        c = "0" if j == 0 else v(acc, 16)
        a(f"{MF} {v(acc,16)}, {v(W4+4*(j&3),4)}, {v(X4+4*(j&3),4)}, {c}")
        if j + 4 < 28: rd(j + 4)

def gen_fused(a):
    name = NAME + "_kernel"
    a(f".globl {name}")
    a(".p2align 8")
    a(f".type {name},@function")
    a.label(name)
    END = "L_end"
    a("s_cmp_ge_u32 s2, 256")
    a(f"s_cbranch_scc1 {END}")
    a("s_load_dwordx16 s[64:79], s[0:1], 0")
    a("s_load_dwordx16 s[80:95], s[0:1], 64")
    a("s_load_dwordx4 s[96:99], s[0:1], 128")
    a("v_lshrrev_b32 v2, 6, v0")
    a("v_and_b32 v0, 63, v0")
    a(f"v_readfirstlane_b32 s{WV}, v2")
    a(f"v_mov_b32 v4, {L_CNT}")
    a("v_mov_b32 v5, 0")
    a("v_lshl_add_u32 v4, v0, 2, v4")
    a("ds_write_b32 v4, v5")
    a(f"s_and_b32 s{RB}, s2, 7")
    a(f"s_lshl_b32 s{RB}, s{RB}, 2")
    a(f"s_lshr_b32 s{J2}, s2, 3")
    a(f"s_and_b32 s3, s{J2}, 3")
    a(f"s_add_u32 s{RB}, s{RB}, s3")
    a(f"s_lshr_b32 s{J2}, s{J2}, 2")
    a("v_lshlrev_b32 v1, 4, v0")
    a(f"s_mov_b32 s{SPIN}, 0x100000")
    a(f"s_sub_u32 s{BW}, s{WV}, 8")
    pfA = Prof(a, 167)
    a("s_waitcnt lgkmcnt(0)")
    a("s_barrier")
    srd(a, WSR, S_WS, WS_SIZE)
    if PROF: a("v_mov_b32 v167, 0")
    pfA.stamp(0)
    if PROF:
        a("s_getreg_b32 s60, hwreg(HW_REG_XCC_ID)")
        a("v_writelane_b32 v167, s60, 20")
        a("s_getreg_b32 s60, hwreg(HW_REG_HW_ID)")
        a("v_writelane_b32 v167, s60, 21")
    a(f"s_cmp_ge_u32 s{WV}, 8")
    a("s_cbranch_scc1 p0_bgw")
    a(f"s_cmp_ge_u32 s{WV}, 4")
    a("s_cbranch_scc1 p0_kvw")
    srd(a, TR, S_X, XBYTES)
    xtile_lane_off(a, 3, 0, 4, 5)
    a(f"s_mul_i32 s32, s{RB}, {64*896}")
    a(f"s_lshr_b32 s3, s{WV}, 1")
    a(f"s_mul_i32 s3, s3, {32*896}")
    a("s_add_u32 s32, s32, s3")
    a(f"s_and_b32 s3, s{WV}, 1")
    a(f"s_mul_i32 s3, s3, {8*896}")
    a("s_add_u32 s32, s32, s3")
    a(f"s_lshl_b32 s34, s{WV}, 10")
    a("s_mov_b32 m0, s34")
    dma_loop(a, "p0_xdma", 3, 14, 64, 4096)
    pfA.stamp(1)
    xfrag_addr(a, 6, 0, 4)
    tr_rowcol(a, 12, 13, 0, 4)
    a(f"s_lshr_b32 s38, s{WV}, 1")
    a(f"s_and_b32 s39, s{WV}, 1")
    a("s_lshl_b32 s3, s38, 11")
    a("v_add_u32 v6, s3, v6")
    a("v_xor_b32 v7, 32, v6")
    a("v_lshlrev_b32 v10, 7, v12")
    a("v_lshl_add_u32 v10, v13, 1, v10")
    a("s_mul_i32 s3, s39, 56")
    a(f"s_add_u32 s3, s3, {L_WQ}")
    a("v_add_u32 v10, s3, v10")
    a("s_waitcnt vmcnt(0)")
    lds_arrive(a, C_XR, 4, 5)
    pfA.stamp(2)
    a("s_waitcnt lgkmcnt(0)")
    a("s_barrier")
    pfA.stamp(3)
    q_loop(a, 16, 32, 48, 6, 7, 10)
    a(f"s_mov_b32 s42, {hex(QSCALE)}")
    a(f"s_lshl_b32 s3, s{WV}, 11")
    a(f"s_add_u32 s3, s3, {L_QX}")
    a("v_add_u32 v12, s3, v1")
    a("s_nop 7")
    a("s_nop 0")
    for i in range(16): a(f"v_mul_f32 v{16+i}, s42, v{16+i}")
    for i in range(8): a(f"v_cvt_pk_bf16_f32 v{32+i}, v{16+2*i}, v{17+2*i}")
    a("s_mov_b32 exec_lo, 0")
    a("v_mov_b32 v38, 0")
    a("v_mov_b32 v39, 0")
    a("s_mov_b32 exec_lo, -1")
    a("ds_write_b128 v12, v[32:35]")
    a("ds_write_b128 v12, v[36:39] offset:1024")
    a("s_branch p0_b1")
    a.label("p0_kvw")
    a("s_getpc_b64 s[56:57]")
    a.label("p0_pc")
    a(f"s_sub_u32 s39, s{WV}, 4")
    a("s_lshl_b32 s3, s39, 13")
    a("v_lshlrev_b32 v150, 7, v0")
    a("v_add_u32 v150, s3, v150")
    a(f"s_sub_u32 s56, s56, p0_pc-{NAME}_kernel")
    a("s_subb_u32 s57, s57, 0")
    a(f"s_mov_b32 s3, L_end-{NAME}_kernel")
    a("v_min_u32 v150, s3, v150")
    a("global_load_dword v150, v150, s[56:57]")
    a("s_cmp_eq_u32 s39, 0")
    a("s_cbranch_scc0 p0_pf_out")
    a("v_lshlrev_b32 v151, 21, v0")
    a("s_mov_b64 exec, 7")
    a(f"buffer_load_dword v151, v151, s[{WSR}:{WSR+3}], 0 offen")
    a("s_mov_b64 exec, -1")
    a.label("p0_pf_out")
    a("s_cmp_eq_u32 s39, 1")
    a("s_cbranch_scc0 p0_pf_done")
    srd(a, 48, S_OUT, OUTBYTES)
    a("v_mul_u32_u24 v151, 0x1c0000, v0")
    a("s_mov_b64 exec, 7")
    a("buffer_load_dword v151, v151, s[48:51], 0 offen")
    a("s_mov_b64 exec, -1")
    if os.environ.get("S3") == "mall":
        a("s_cmp_eq_u32 s39, 3")
        a("s_cbranch_scc0 p0_pf_done")
        a("v_lshlrev_b32 v149, 7, v0")
        a(f"s_mul_i32 s3, s2, {13*128}")
        a(f"s_mov_b32 m0, {L_JUNK}")
        a("s_mov_b64 exec, 0x1fff")
        for sp in (S_CRE, S_CIM, S_WO):
            srd(a, 48, sp, WBYTES)
            a("buffer_load_dword v149, s[48:51], s3 offen lds")
        a("s_mov_b64 exec, -1")
    a.label("p0_pf_done")
    a(f"s_cmp_ge_u32 s{J2}, 3")
    a("s_cbranch_scc1 p0_kv_none")
    a("s_lshr_b32 s38, s39, 1")
    a("s_and_b32 s39, s39, 1")
    xfrag_addr(a, 6, 0, 4)
    tr_rowcol(a, 12, 13, 0, 4)
    a("s_lshl_b32 s3, s38, 11")
    a("s_mul_i32 s41, s39, 28672")
    a("s_add_u32 s3, s3, s41")
    a("v_add_u32 v6, s3, v6")
    a("v_xor_b32 v7, 32, v6")
    a("s_mul_i32 s40, s39, 14")
    a(f"s_cmp_eq_u32 s{J2}, 2")
    a("s_cbranch_scc1 p0_kv_gaddr")
    a("v_mul_u32_u24 v10, 56, v12")
    a("v_lshl_add_u32 v10, v13, 1, v10")
    a(f"s_mul_i32 s3, s40, {16*56}")
    a(f"s_add_u32 s3, s3, {L_WKV}")
    a("v_add_u32 v10, s3, v10")
    a("v_add_u32 v11, 224, v10")
    a(f"s_mov_b32 s42, {16*56}")
    a("s_branch p0_kv_addr_done")
    a.label("p0_kv_gaddr")
    a("v_lshlrev_b32 v10, 3, v12")
    a("s_lshl_b32 s3, s40, 7")
    a(f"s_add_u32 s3, s3, {L_WKV}")
    a("v_add_u32 v10, s3, v10")
    a("v_add_u32 v11, 32, v10")
    a("s_mov_b32 s42, 128")
    a.label("p0_kv_addr_done")
    a(f"v_mov_b32 v4, {L_CNT}")
    lds_wait(a, C_XR, 8, 4, 5, "p0_xr")
    pfA.stamp(2)
    def kv_rd(i):
        a(f"ds_read_b128 {v(32+4*i,4)}, v{6+(i&1)} offset:{(i>>1)*4096}")
        a(f"ds_read_b64_tr_b16 {v(88+4*i,2)}, v10")
        a(f"ds_read_b64_tr_b16 {v(88+4*i+2,2)}, v11")
        if i < 13:
            a("v_add_u32 v10, s42, v10")
            a("v_add_u32 v11, s42, v11")
    def kv_mm(swap, tag):
        for i in range(4): kv_rd(i)
        for i in range(14):
            a(f"s_waitcnt lgkmcnt({3*min(3, 13-i)})")
            A, B = (32+4*i, 88+4*i) if swap else (88+4*i, 32+4*i)
            a(f"{MF} v[16:31], {v(A,4)}, {v(B,4)}, {'0' if i == 0 else 'v[16:31]'}")
            if i + 4 < 14: kv_rd(i + 4)
    a(f"s_cmp_ge_u32 s{J2}, 1")
    a("s_cbranch_scc1 p0_kv_swap")
    kv_mm(False, "k")
    a("s_branch p0_kv_mm_done")
    a.label("p0_kv_swap")
    kv_mm(True, "v")
    a.label("p0_kv_mm_done")
    a("s_lshl_b32 s3, s38, 12")
    a(f"s_add_u32 s3, s3, {L_QX}")
    a("v_add_u32 v12, s3, v1")
    a("s_nop 7")
    a("s_nop 0")
    a("s_cmp_eq_u32 s39, 0")
    a("s_cbranch_scc1 p0_kv_root")
    for q in range(4): a(f"ds_write_b128 v12, {v(16+4*q,4)} offset:{q*1024}")
    a("s_waitcnt lgkmcnt(0)")
    a("s_lshl_b32 s3, s38, 2")
    a(f"v_mov_b32 v4, {L_CNT}")
    a("v_add_u32 v4, s3, v4")
    a("v_mov_b32 v5, 1")
    a("s_mov_b64 exec, 1")
    a(f"ds_add_u32 v4, v5 offset:{C_KVR}")
    a("s_mov_b64 exec, -1")
    a("s_branch p0_kv_none")
    a.label("p0_kv_root")
    a("s_lshl_b32 s3, s38, 2")
    a(f"v_mov_b32 v4, {L_CNT}")
    a("v_add_u32 v4, s3, v4")
    lds_wait(a, C_KVR, 1, 4, 5, "p0_kvr")
    for i in range(4): a(f"ds_read_b128 {v(32+4*i,4)}, v12 offset:{i*1024}")
    a("s_waitcnt lgkmcnt(0)")
    for r in range(16): a(f"v_add_f32 v{16+r}, v{16+r}, v{32+r}")
    a(f"s_lshl_b32 s43, s{RB}, 1")
    a("s_add_u32 s43, s43, s38")
    a(f"s_cmp_eq_u32 s{J2}, 2")
    a("s_cbranch_scc1 p0_gate_epi")
    for i in range(8): a(f"v_cvt_pk_bf16_f32 v{32+i}, v{16+2*i}, v{17+2*i}")
    a("s_lshl_b32 s44, s43, 12")
    a(f"s_add_u32 s44, s44, {WS_KV}")
    a(f"s_cmp_eq_u32 s{J2}, 1")
    a("s_cbranch_scc1 p0_v_epi")
    a("s_mov_b32 exec_lo, 0")
    a("v_mov_b32 v38, 0x3f803f80")
    a("v_mov_b32 v39, 0x00003f80")
    a("s_mov_b32 exec_lo, -1")
    a(f"buffer_store_dwordx4 v[32:35], v1, s[{WSR}:{WSR+3}], s44 offen{SC1}")
    a(f"buffer_store_dwordx4 v[36:39], v1, s[{WSR}:{WSR+3}], s44 offen offset:1024{SC1}")
    a("s_branch p0_kv_arrive")
    a.label("p0_v_epi")
    a("v_max3_f32 v14, |v16|, |v17|, |v18|")
    for j in range(3, 15, 2): a(f"v_max3_f32 v14, v14, |v{16+j}|, |v{17+j}|")
    a("v_max_f32 v14, v14, |v31|")
    a("v_and_b32 v13, 31, v0")
    a("v_cmp_gt_u32 s[46:47], 28, v13")
    a(f"v_cmp_lt_f32 vcc, {hex(VMAX)}, v14")
    a("s_and_b64 vcc, vcc, s[46:47]")
    a("s_cbranch_vccz p0_v_ok")
    srd(a, 48, S_DBG, 256)
    a("v_mov_b32 v14, 1")
    a(f"v_mov_b32 v15, {D_BAD}")
    a("s_mov_b64 exec, 1")
    a(f"buffer_store_dword v14, v15, s[48:51], 0 offen{SC1}")
    a("s_mov_b64 exec, -1")
    a.label("p0_v_ok")
    a("v_and_b32 v13, 31, v0")
    a("v_cmp_eq_u32 vcc, 28, v13")
    a("v_mov_b32 v14, 0x3f803f80")
    a("s_nop 0")
    a("v_cndmask_b32 v14, 0, v14, vcc")
    a("v_cmp_lt_u32 vcc, 27, v13")
    a("s_nop 1")
    for i in range(8): a(f"v_cndmask_b32 v{32+i}, v{32+i}, v14, vcc")
    a(f"buffer_store_dwordx4 v[32:35], v1, s[{WSR}:{WSR+3}], s44 offen offset:2048{SC1}")
    a(f"buffer_store_dwordx4 v[36:39], v1, s[{WSR}:{WSR+3}], s44 offen offset:3072{SC1}")
    a("s_branch p0_kv_arrive")
    a.label("p0_gate_epi")
    a(f"s_mov_b32 s42, {hex(LOG2E)}")
    for i in range(16): a(f"v_mul_f32 v{16+i}, s42, v{16+i}")
    for i in range(16): a(f"v_exp_f32 v{16+i}, -v{16+i}")
    for i in range(16): a(f"v_add_f32 v{16+i}, 1.0, v{16+i}")
    for i in range(16): a(f"v_rcp_f32 v{16+i}, v{16+i}")
    a("v_lshrrev_b32 v13, 5, v0")
    a("v_lshlrev_b32 v13, 6, v13")
    a("s_lshl_b32 s44, s43, 7")
    a(f"s_add_u32 s44, s44, {WS_G}")
    a("v_and_b32 v14, 31, v0")
    a("v_cmp_eq_u32 vcc, 0, v14")
    a("s_and_saveexec_b64 s[46:47], vcc")
    for q in range(4):
        a(f"buffer_store_dwordx4 {v(16+4*q,4)}, v13, s[{WSR}:{WSR+3}], s44 offen offset:{16*q}{SC1}")
    a("s_mov_b64 exec, -1")
    a.label("p0_kv_arrive")
    pfA.stamp(10)
    a("s_mov_b32 s16, 1")
    a("s_branch p0_kv_b0")
    a.label("p0_kv_none")
    a("s_mov_b32 s16, 0")
    a.label("p0_kv_b0")
    a("s_waitcnt lgkmcnt(0)")
    a("s_barrier")
    pfA.stamp(3)
    a("s_branch p0_b1")
    a.label("p0_bgw")
    a(f"s_cmp_eq_u32 s{WV}, 8")
    a("s_cbranch_scc0 p0_t9")
    srd(a, 48, S_X, XBYTES)
    a("s_and_b32 s3, s2, 7")
    a(f"s_mul_i32 s3, s3, {256*896}")
    a("s_lshr_b32 s46, s2, 3")
    a("s_mul_i32 s46, s46, 7168")
    a("s_add_u32 s3, s3, s46")
    a("v_lshlrev_b32 v50, 7, v0")
    a("s_mov_b32 exec_hi, 0xffffff")
    a("buffer_load_dword v52, v50, s[48:51], s3 offen")
    a("s_mov_b64 exec, -1")
    a("s_branch p0_t_done")
    a.label("p0_t9")
    a(f"s_cmp_eq_u32 s{WV}, 9")
    a("s_cbranch_scc0 p0_t10")
    touch_matrix(a, S_WQ, 52, 50)
    a("s_branch p0_t_done")
    a.label("p0_t10")
    a(f"s_cmp_eq_u32 s{WV}, 10")
    a("s_cbranch_scc0 p0_t_done")
    a("s_lshr_b32 s3, s2, 3")
    a(f"s_mul_i32 s3, s3, {7*128}")
    a("v_lshlrev_b32 v50, 7, v0")
    a("s_mov_b64 exec, 0x7f")
    srd(a, 48, S_WK, WKBYTES)
    a("buffer_load_dword v52, v50, s[48:51], s3 offen")
    srd(a, 48, S_WV, WKBYTES)
    a("buffer_load_dword v53, v50, s[48:51], s3 offen")
    a("s_mov_b64 exec, -1")
    a.label("p0_t_done")
    a(f"s_cmp_eq_u32 s{WV}, 11")
    a("s_cbranch_scc0 p0_nononce")
    a("s_cmp_eq_u32 s2, 0")
    a("s_cbranch_scc0 p0_nononce")
    srd(a, 48, S_DBG, 256)
    a("v_mov_b32 v7, 0")
    a("s_memrealtime s[60:61]")
    a("s_waitcnt lgkmcnt(0)")
    a("s_and_b32 s60, s60, 0xfffffffc")
    a("s_or_b32 s60, s60, 1")
    a("v_mov_b32 v6, s60")
    a("s_mov_b64 exec, 1")
    a(f"buffer_store_dword v6, v7, s[48:51], 0 offen offset:{D_NONCE}{SC1}")
    a("s_mov_b64 exec, -1")
    a("s_waitcnt vmcnt(0)")
    a.label("p0_nononce")
    a(f"s_cmp_lt_u32 s{J2}, 2")
    a("s_cbranch_scc1 p0_dma_wkv")
    a(f"s_cmp_eq_u32 s{J2}, 2")
    a("s_cbranch_scc0 p0_wkv_done")
    a(f"s_cmp_eq_u32 s{WV}, 8")
    a("s_cbranch_scc0 p0_wkv_done")
    srd(a, TR, S_GW, 896)
    a("v_lshlrev_b32 v3, 1, v0")
    for i in range(7):
        a(f"buffer_load_ushort v{10+i}, v3, s[{TR}:{TR+3}], 0 offen offset:{i*128}")
    a("v_lshlrev_b32 v4, 3, v0")
    a(f"v_add_u32 v4, {L_WKV}, v4")
    a("s_waitcnt vmcnt(0)")
    for i in range(7):
        a(f"v_lshl_or_b32 v{20+2*i}, v{10+i}, 16, v{10+i}")
        a(f"v_mov_b32 v{21+2*i}, v{20+2*i}")
        a(f"ds_write_b64 v4, {v(20+2*i,2)} offset:{i*512}")
    a("s_branch p0_wkv_done")
    a.label("p0_dma_wkv")
    a(f"s_cmp_eq_u32 s{J2}, 0")
    a(f"s_cselect_b32 s{TR}, s{S_WK}, s{S_WV}")
    a(f"s_cselect_b32 s{TR+1}, s{S_WK+1}, s{S_WV+1}")
    a(f"s_mov_b32 s{TR+2}, {WKBYTES}")
    a(f"s_mov_b32 s{TR+3}, 0x00020000")
    a("v_lshlrev_b32 v3, 4, v0")
    a(f"s_mul_i32 s32, s{BW}, 7168")
    a(f"s_add_u32 s34, s32, {L_WKV}")
    a("s_mov_b32 m0, s34")
    dma_loop(a, "p0_wdma", 3, 7, 1024, 1024)
    a.label("p0_wkv_done")
    a(f"s_lshl_b32 s37, s{J2}, 1")
    a(f"s_and_b32 s3, s{BW}, 1")
    a("s_add_u32 s37, s37, s3")
    a("v_and_b32 v4, 31, v0")
    a("s_lshl_b32 s3, s37, 6")
    a("v_lshl_add_u32 v4, v4, 1, s3")
    srd(a, 40, S_LRE, 896); a("buffer_load_ushort v8, v4, s[40:43], 0 offen")
    srd(a, 44, S_LIM, 896); a("buffer_load_ushort v9, v4, s[44:47], 0 offen")
    srd(a, 52, S_LDT, 896); a("buffer_load_ushort v10, v4, s[52:55], 0 offen")
    a("s_waitcnt vmcnt(3) lgkmcnt(0)")
    lds_arrive(a, C_XR, 4, 5)
    srd(a, TR, S_WQ, WBYTES)
    a("v_lshrrev_b32 v3, 3, v0")
    a("v_mul_u32_u24 v3, 896, v3")
    a("v_and_b32 v4, 7, v0")
    a("v_lshl_add_u32 v3, v4, 4, v3")
    a(f"s_mul_i32 s32, s{BW}, {112*896}")
    a(f"s_mul_i32 s33, s{J2}, 112")
    a("s_add_u32 s32, s32, s33")
    a(f"s_mul_i32 s34, s{BW}, 14336")
    a(f"s_add_u32 s34, s34, {L_WQ}")
    a("s_mov_b32 m0, s34")
    dma_loop(a, "p0_qdma", 3, 14, 7168, 1024)
    a(f"s_cmp_gt_u32 s{WV}, 9")
    a("s_cbranch_scc1 p0_nob")
    a(f"s_cmp_eq_u32 s{WV}, 8")
    a(f"s_cselect_b32 s56, s{S_BRE}, s{S_BIM}")
    a(f"s_cselect_b32 s57, s{S_BRE+1}, s{S_BIM+1}")
    touch_matrix(a, 56, 52, 50)
    a("s_mov_b32 s17, 1")
    a("s_waitcnt vmcnt(16)")
    a("s_branch p0_nob2")
    a.label("p0_nob")
    a("s_mov_b32 s17, 0")
    a("s_waitcnt vmcnt(14)")
    a.label("p0_nob2")
    a(f"v_mov_b32 v4, {L_CNT}")
    lds_wait(a, C_XR, 8, 4, 5, "p0_xr2")
    xfrag_addr(a, 6, 0, 4)
    a(f"s_lshr_b32 s38, s{BW}, 1")
    a("s_lshl_b32 s3, s38, 11")
    a("v_add_u32 v6, s3, v6")
    a("v_xor_b32 v7, 32, v6")
    for j in range(28):
        a(f"ds_read_b128 {v(56+4*j,4)}, v{6 + (j&1)} offset:{(j>>1)*4096}")
        if j in (11, 21): a("s_waitcnt lgkmcnt(2)")
    a("v_lshlrev_b32 v8, 16, v8")
    a("v_lshlrev_b32 v9, 16, v9")
    a("v_lshlrev_b32 v10, 16, v10")
    a(f"v_mul_f32 v10, {hex(LOG2E)}, v10")
    a("v_exp_f32 v10, v10")
    a("s_nop 0")
    a("v_cvt_pk_bf16_f32 v10, v10, v10")
    a("v_lshlrev_b32 v10, 16, v10")
    a("v_mul_f32 v11, v10, v8")
    a("v_mul_f32 v12, v10, v9")
    a(f"v_mul_f32 v11, {hex(LOG2E)}, v11")
    a(f"v_mul_f32 v12, {hex(INV2PI)}, v12")
    a("v_exp_f32 v13, v11")
    a("v_fract_f32 v14, v12")
    a("s_nop 0")
    a("v_cos_f32 v2, v14")
    a("v_sin_f32 v3, v14")
    a("s_nop 0")
    a("v_mul_f32 v2, v2, v13")
    a("v_mul_f32 v3, v3, v13")
    a("v_add_f32 v13, -1.0, v2")
    a("v_mul_f32 v14, v8, v8")
    a("v_fma_f32 v14, v9, v9, v14")
    a("v_rcp_f32 v14, v14")
    a("v_mul_f32 v15, v13, v8")
    a("v_fma_f32 v15, v3, v9, v15")
    a("v_mul_f32 v16, v3, v8")
    a("v_fma_f32 v16, -v13, v9, v16")
    a("v_mul_f32 v4, v15, v14")
    a("v_mul_f32 v5, v16, v14")
    a("s_cmp_eq_u32 s17, 0")
    a("s_cbranch_scc1 p0_bgw0")
    a("s_waitcnt vmcnt(2) lgkmcnt(0)")
    a("s_branch p0_bgw1")
    a.label("p0_bgw0")
    a("s_waitcnt vmcnt(0) lgkmcnt(0)")
    a.label("p0_bgw1")
    a("s_barrier")
    a.label("p0_b1")
    a("s_waitcnt lgkmcnt(0)")
    if PROF:
        a(f"s_cmp_ge_u32 s{WV}, 8")
        a("s_cbranch_scc1 p0_b1_bgst")
        pfA.stamp(9)
        a("s_branch p0_b1_go")
        a.label("p0_b1_bgst")
        BgProf(a).stamp(4)
        a.label("p0_b1_go")
    a("s_barrier")
    a(f"s_cmp_ge_u32 s{WV}, 8")
    a("s_cbranch_scc1 p1_bg")
    a(f"s_cmp_lt_u32 s{WV}, 4")
    a("s_cbranch_scc1 p1_noarr")
    a("s_cmp_eq_u32 s16, 0")
    a("s_cbranch_scc1 p1_noarr")
    a(f"v_mov_b32 v14, {L_CNT}")
    a("v_mov_b32 v15, 1")
    a("s_waitcnt vmcnt(0)")
    pfA.stamp(11)
    a("s_mov_b64 exec, 1")
    a(f"ds_add_rtn_u32 v15, v14, v15 offset:{C_KVA}")
    a("s_waitcnt lgkmcnt(0)")
    a("v_readfirstlane_b32 s3, v15")
    a("s_cmp_eq_u32 s3, 1")
    a("s_cbranch_scc0 p1_arrdone")
    srd(a, 48, S_DBG, 256)
    a("v_mov_b32 v14, 1")
    a(f"s_cmp_eq_u32 s{J2}, 2")
    a(f"s_cselect_b32 s3, {D_GCNT}, {D_CNT}")
    a("v_mov_b32 v15, s3")
    a("buffer_atomic_add v14, v15, s[48:51], 0 offen sc0 sc1")
    a("s_waitcnt vmcnt(0)")
    a("v_readfirstlane_b32 s3, v14")
    a(f"s_cmp_eq_u32 s{J2}, 2")
    a("s_cselect_b32 s46, 31, 63")
    a(f"s_mov_b32 s47, {D_GO}")
    a(f"s_cselect_b32 s47, {D_GOG}, s47")
    a("s_cmp_eq_u32 s3, s46")
    a("s_cbranch_scc0 p1_arrdone")
    a("v_mov_b32 v14, 1")
    a("v_mov_b32 v15, s47")
    a(f"buffer_store_dword v14, v15, s[48:51], 0 offen{SC1}")
    a.label("p1_arrdone")
    a("s_mov_b64 exec, -1")
    pfA.stamp(12)
    a.label("p1_noarr")
    if PROF: a("v_mov_b32 v0, v167")
    pf = Prof(a, 0)
    pf.stamp(4)
    gen_attention(a, pf)
    pf.flush(2)
    a(f"s_branch {END}")
    a.label("p1_bg")
    a("s_setprio 3")
    gen_background(a, BgProf(a))
    a.label(END)
    a("s_endpgm")
    return name

class BgProf:
    def __init__(self, a): self.a = a; self.T = [54, 55]
    def stamp(self, slot):
        if not PROF or "noprofb" in X: return
        if "onlyb" in os.environ and str(slot) not in os.environ["onlyb"].split(","): return
        a = self.a
        a("s_memrealtime s[60:61]")
        a("s_lshl_b32 s62, s2, 4")
        a(f"s_add_u32 s62, s62, s{WV}")
        a("s_lshl_b32 s62, s62, 8")
        a(f"s_add_u32 s62, s62, {WS_PROF + 4*slot}")
        a("s_waitcnt vmcnt(0) lgkmcnt(0)")
        a("s_mov_b64 exec, 1")
        t0, t1 = self.T
        a(f"v_mov_b32 v{t0}, s60")
        a(f"v_mov_b32 v{t1}, 0")
        a(f"buffer_store_dword v{t0}, v{t1}, s[{WSR}:{WSR+3}], s62 offen")
        a("s_mov_b64 exec, -1")
        a("s_waitcnt vmcnt(0)")
    def flush(self): pass

def build():
    a = Asm()
    name = gen_fused(a)
    text = a.text()
    probs = check_hazards(text)
    ref = open("gated_mix__grouped_kv_mqa__ssm_conv_s5__prompt.s.ref").read().split("\n")
    pre = []
    for ln in ref:
        if not ln.startswith(";"): break
        if "Override launch" in ln or "grid=ceil" in ln or "@launch" in ln: continue
        pre.append(ln)
    head = "\n".join(pre) + "\n"
    head += f"; @launch grid=(256,1,1) block=(768,1,1) lds={LDS_TOTAL}\n"
    out = head + '.amdgcn_target "amdgcn-amd-amdhsa--gfx950"\n.text\n' + text
    out += f""".section .rodata,"a"
.p2align 6
.amdhsa_kernel {name}
  .amdhsa_next_free_vgpr 168
  .amdhsa_next_free_sgpr 102
  .amdhsa_accum_offset 168
  .amdhsa_group_segment_fixed_size 0
  .amdhsa_kernarg_size 144
  .amdhsa_user_sgpr_count 2
  .amdhsa_user_sgpr_kernarg_segment_ptr 1
  .amdhsa_system_sgpr_workgroup_id_x 1
.end_amdhsa_kernel
"""
    return out, probs

if __name__ == "__main__":
    out, probs = build()
    open(sys.argv[1], "w").write(out)
    print("wrote", sys.argv[1], "hazards:", len(probs))
```

```python
import sys, os, struct, math
from asmlib import Asm, v, s, check_hazards

NAME = "gated_mix__grouped_kv_mqa__ssm_conv_s5__prompt"
X = set(os.environ.get('XF', '').split(','))
PROF = "prof" in X
def f2u(x): return struct.unpack("<I", struct.pack("<f", x))[0]
QSCALE = f2u(math.log2(math.e) / math.sqrt(28.0))
LOG2E = f2u(math.log2(math.e))
INV2PI = f2u(1.0 / (2.0 * math.pi))
MF = "v_mfma_f32_32x32x16_bf16"
SC1 = " sc1"
POLLSLEEP = int(os.environ.get('PS', '1'))

WS_KV = 0x000000
WS_G  = 0x040000
WS_FL = 0x042000
FL_H  = WS_FL
FL_O  = WS_FL + 0x1000
WS_E  = 0x048000
D_CNT, D_GCNT, D_GO, D_NONCE, D_GOG, D_BAD = 0, 64, 128, 132, 136, (4 if 'cntpoll' in X else 140)
WS_OF = 0x080000
WS_HF = 0x280000
WS_PROF = 0x800000
WS_SIZE = 0x1000000
XBYTES = 2048 * 448 * 2
WBYTES = 448 * 448 * 2
WKBYTES = 448 * 28 * 2
OUTBYTES = 2048 * 448 * 4

S_X, S_WQ, S_WK, S_WV, S_WO = 64, 66, 68, 70, 72
S_LRE, S_LIM = 76, 78
S_BRE, S_BIM, S_CRE, S_CIM, S_LDT, S_DSK, S_GW, S_OUT = 80, 82, 84, 86, 88, 90, 92, 94
S_DBG, S_WS = 96, 98
RB, J2, WV, BW = 20, 21, 22, 23
WSR = 24
TR = 28
NONCE = 19
SPIN = 18

L_X = 0; L_WQ = 57344; L_WKV = 114688; L_GW = 143360
L_QX = 147456
L_CNT = 163584
C_ATT, C_BG, C_NONCE, C_BAD, C_UDONE, C_HCNT, C_OCNT, C_XR, C_KVR, C_KVA, C_TRD, C_LEND, C_BL = 0, 4, 8, 12, 16, 20, 24, 28, 32, 40, 44, 48, 52
B_EX = 159744; B_HT = 65536
B_HT2 = 69632
L_C = 0
L_RED = 0
L_WO = 0
A_OP = 90112; A_LP = 155648
LDS_TOTAL = 163840

def srd(a, dst, src, nbytes):
    a(f"s_mov_b32 s{dst}, s{src}")
    a(f"s_mov_b32 s{dst+1}, s{src+1}")
    a(f"s_mov_b32 s{dst+2}, {hex(nbytes)}")
    a(f"s_mov_b32 s{dst+3}, 0x00020000")

class Prof:
    def __init__(self, a, vreg): self.a = a; self.v = vreg
    def stamp(self, slot):
        if not PROF or "noprofa" in X: return
        a = self.a
        a("s_memrealtime s[60:61]")
        a("s_memtime s[62:63]")
        a("s_waitcnt lgkmcnt(0)")
        a(f"v_writelane_b32 v{self.v}, s60, {slot}")
        a(f"v_writelane_b32 v{self.v}, s62, {slot+32}")
    def flush(self, vt):
        if not PROF: return
        a = self.a
        a("s_lshl_b32 s60, s2, 4")
        a(f"s_add_u32 s60, s60, s{WV}")
        a("s_lshl_b32 s60, s60, 8")
        a(f"s_add_u32 s60, s60, {WS_PROF}")
        a("s_mov_b64 exec, -1")
        a(f"v_mbcnt_lo_u32_b32 v{vt}, -1, 0")
        a(f"v_mbcnt_hi_u32_b32 v{vt}, -1, v{vt}")
        a(f"v_lshlrev_b32 v{vt}, 2, v{vt}")
        a(f"buffer_store_dword v{self.v}, v{vt}, s[{WSR}:{WSR+3}], s60 offen")
        a("s_waitcnt vmcnt(0)")

def xtile_lane_off(a, vd, vlane, vt0, vt1):
    a(f"v_lshrrev_b32 v{vt0}, 4, v{vlane}")
    a(f"v_and_b32 v{vt1}, 1, v{vt0}")
    a(f"v_lshlrev_b32 v{vt1}, 4, v{vt1}")
    a(f"v_lshrrev_b32 v{vd}, 5, v{vlane}")
    a(f"v_lshl_add_u32 v{vt1}, v{vd}, 2, v{vt1}")
    a(f"v_bfe_u32 v{vd}, v{vlane}, 2, 2")
    a(f"v_add_u32 v{vt1}, v{vt1}, v{vd}")
    a(f"v_mul_u32_u24 v{vt1}, 896, v{vt1}")
    a(f"v_and_b32 v{vd}, 3, v{vlane}")
    a(f"v_xor_b32 v{vd}, v{vd}, v{vt0}")
    a(f"v_lshl_add_u32 v{vd}, v{vd}, 4, v{vt1}")

def plain_lane_off(a, vd, vlane, vt0):
    a(f"v_lshrrev_b32 v{vt0}, 4, v{vlane}")
    a(f"v_and_b32 v{vd}, 3, v{vlane}")
    a(f"v_xor_b32 v{vd}, v{vd}, v{vt0}")
    a(f"v_lshlrev_b32 v{vd}, 4, v{vd}")
    a(f"v_lshrrev_b32 v{vt0}, 2, v{vlane}")
    a(f"v_mul_u32_u24 v{vt0}, 896, v{vt0}")
    a(f"v_add_u32 v{vd}, v{vd}, v{vt0}")

def xfrag_addr(a, vd, vlane, vt0):
    a(f"v_bfe_u32 v{vt0}, v{vlane}, 2, 2")
    a(f"v_lshrrev_b32 v{vd}, 5, v{vlane}")
    a(f"v_xor_b32 v{vt0}, v{vt0}, v{vd}")
    a(f"v_lshlrev_b32 v{vt0}, 4, v{vt0}")
    a(f"v_and_b32 v{vd}, 31, v{vlane}")
    a(f"v_lshl_add_u32 v{vd}, v{vd}, 6, v{vt0}")

def tr_rowcol(a, vrow, vcol, vlane, vt):
    a(f"v_lshrrev_b32 v{vrow}, 5, v{vlane}")
    a(f"v_lshlrev_b32 v{vrow}, 3, v{vrow}")
    a(f"v_bfe_u32 v{vt}, v{vlane}, 2, 2")
    a(f"v_add_u32 v{vrow}, v{vrow}, v{vt}")
    a(f"v_and_b32 v{vcol}, 16, v{vlane}")
    a(f"v_and_b32 v{vt}, 3, v{vlane}")
    a(f"v_lshl_add_u32 v{vcol}, v{vt}, 2, v{vcol}")

def proj_loop(a, swap, acc, xe, xo, we, wo_, vxe, vxo, vw1, vw2, s_wstep, s_cnt, lab):
    def rd(xr, wr, vx):
        a(f"ds_read_b128 {v(xr,4)}, v{vx}")
        a(f"ds_read_b64_tr_b16 {v(wr,2)}, v{vw1}")
        a(f"ds_read_b64_tr_b16 {v(wr+2,2)}, v{vw2}")
        a(f"v_add_u32 v{vx}, 0x1000, v{vx}")
        a(f"v_add_u32 v{vw1}, s{s_wstep}, v{vw1}")
        a(f"v_add_u32 v{vw2}, s{s_wstep}, v{vw2}")
    def mf(x, w):
        A, B = (x, w) if swap else (w, x)
        a(f"{MF} {v(acc,16)}, {v(A,4)}, {v(B,4)}, {v(acc,16)}")
    rd(xe, we, vxe); rd(xo, wo_, vxo)
    a(f"s_mov_b32 s{s_cnt}, 14")
    a.label(lab)
    a("s_waitcnt lgkmcnt(3)")
    mf(xe, we)
    rd(xe, we, vxe)
    a("s_waitcnt lgkmcnt(3)")
    mf(xo, wo_)
    rd(xo, wo_, vxo)
    a(f"s_sub_u32 s{s_cnt}, s{s_cnt}, 1")
    a(f"s_cmp_lg_u32 s{s_cnt}, 0")
    a(f"s_cbranch_scc1 {lab}")
    a("s_waitcnt lgkmcnt(0)")

def sw_barrier(a, coff, s_tgt, n, vaddr, vtmp, lab):
    a(f"s_add_u32 s{s_tgt}, s{s_tgt}, {n}")
    a(f"v_mov_b32 v{vtmp}, 1")
    a("s_waitcnt lgkmcnt(0)")
    a("s_mov_b64 exec, 1")
    a(f"ds_add_u32 v{vaddr}, v{vtmp} offset:{coff}")
    a("s_mov_b64 exec, -1")
    a.label(lab)
    a(f"ds_read_b32 v{vtmp}, v{vaddr} offset:{coff}")
    a("s_waitcnt lgkmcnt(0)")
    a(f"v_readfirstlane_b32 s3, v{vtmp}")
    a(f"s_cmp_ge_u32 s3, s{s_tgt}")
    a(f"s_cbranch_scc1 {lab}_ok")
    a("s_sleep 1")
    a(f"s_sub_u32 s{SPIN}, s{SPIN}, 1")
    a(f"s_cbranch_scc0 {lab}")
    a(f"s_mov_b32 s{SPIN}, 0")
    a.label(lab + "_ok")

def flag_store(a, soff_reg, vt0, vt1, val=None):
    a("s_mov_b64 exec, 1")
    a(f"v_mov_b32 v{vt0}, s{val if val is not None else NONCE}")
    a(f"v_mov_b32 v{vt1}, 0")
    a(f"buffer_store_dword v{vt0}, v{vt1}, s[{WSR}:{WSR+3}], s{soff_reg} offen{SC1}")
    a("s_mov_b64 exec, -1")

def arrive_flag(a, coff, n, soff_reg, vt0, vt1, lab):
    a(f"v_mov_b32 v{vt0}, {L_CNT}")
    a(f"v_mov_b32 v{vt1}, 1")
    a("s_waitcnt vmcnt(0)")
    a("s_mov_b64 exec, 1")
    a(f"ds_add_rtn_u32 v{vt1}, v{vt0}, v{vt1} offset:{coff}")
    a("s_waitcnt lgkmcnt(0)")
    a(f"v_readfirstlane_b32 s60, v{vt1}")
    a("s_mov_b64 exec, -1")
    a(f"s_cmp_eq_u32 s60, {n-1}")
    a(f"s_cbranch_scc0 {lab}")
    flag_store(a, soff_reg, vt0, vt1)
    a.label(lab)

def poll(a, lab, vdst, voff, soff_reg, mask_pair, sleep=None):
    sleep = POLLSLEEP if sleep is None else sleep
    a.label(lab)
    a(f"buffer_load_dword v{vdst}, v{voff}, s[{WSR}:{WSR+3}], s{soff_reg} offen{SC1}")
    a("s_waitcnt vmcnt(0)")
    a(f"v_cmp_ne_u32 vcc, s{NONCE}, v{vdst}")
    a(f"s_and_b64 vcc, vcc, s[{mask_pair}:{mask_pair+1}]")
    a(f"s_cbranch_vccz {lab}_ok")
    a(f"s_sleep {sleep}")
    a(f"s_sub_u32 s{SPIN}, s{SPIN}, 1")
    a(f"s_cbranch_scc0 {lab}")
    a(f"s_mov_b32 s{SPIN}, 0")
    a.label(lab + "_ok")

def cfma(a, hr, hi, lr, li, ur, ui, tr, ti):
    a(f"v_fma_f32 v{tr}, -v{li}, v{hi}, v{ur}")
    a(f"v_fma_f32 v{ti}, v{li}, v{hr}, v{ui}")
    a(f"v_fma_f32 v{hr}, v{lr}, v{hr}, v{tr}")
    a(f"v_fma_f32 v{hi}, v{lr}, v{hi}, v{ti}")

L_JUNK = 161792
def touch_matrix(a, sptr, vdst, vt, sr=48):
    srd(a, sr, sptr, WBYTES)
    a("s_lshr_b32 s3, s2, 3")
    a(f"s_mul_i32 s3, s3, {98*128}")
    a(f"v_lshlrev_b32 v{vt}, 7, v0")
    a(f"s_mov_b32 m0, {L_JUNK}")
    a("s_nop 0")
    a(f"buffer_load_dword v{vt}, s[{sr}:{sr+3}], s3 offen lds")
    a("s_add_u32 s3, s3, 8192")
    a("s_mov_b32 exec_hi, 3")
    a(f"buffer_load_dword v{vt}, s[{sr}:{sr+3}], s3 offen lds")
    a("s_mov_b64 exec, -1")

AQ, AO, AS, AK, AV, APB = 8, 40, [104, 120], [136, 144], [152, 160], 4

def att_unit(a, u, side):
    up = u - 1; un = u + 1
    cur = AS[u & 1]; prv = AS[(u + 1) & 1]
    Vp = AV[(up >> 2) & 1]; Op = AO + 16 * (up & 3)
    Kn = AK[(un >> 2) & 1]; Qn = AQ + 8 * (un & 3)
    side = list(side)
    def E(lo, hi):
        for j in range(lo, hi):
            a(f"v_exp_f32 v{cur+j}, v{cur+j}")
            if side:
                x = side.pop(0)
                if x: a(x)
    while side and isinstance(side[0], tuple):
        a(side.pop(0)[1])
    a(f"{MF} {v(Op,16)}, {v(Vp,4)}, {v(prv,4)}, {v(Op,16)}")
    E(0, 4)
    a(f"v_cvt_pk_bf16_f32 v{APB+2}, v{prv+12}, v{prv+13}")
    a(f"v_cvt_pk_bf16_f32 v{APB+3}, v{prv+14}, v{prv+15}")
    a(f"{MF} {v(prv,16)}, {v(Kn,4)}, {v(Qn,4)}, 0")
    E(4, 8)
    a(f"v_cvt_pk_bf16_f32 v{cur}, v{cur}, v{cur+1}")
    a(f"v_cvt_pk_bf16_f32 v{cur+1}, v{cur+2}, v{cur+3}")
    a(f"{MF} {v(prv,16)}, {v(Kn+4,4)}, {v(Qn+4,4)}, {v(prv,16)}")
    E(8, 12)
    a(f"v_cvt_pk_bf16_f32 v{cur+2}, v{cur+4}, v{cur+5}")
    a(f"v_cvt_pk_bf16_f32 v{cur+3}, v{cur+6}, v{cur+7}")
    a(f"{MF} {v(Op,16)}, {v(Vp+4,4)}, {v(APB,4)}, {v(Op,16)}")
    E(12, 16)
    a(f"v_cvt_pk_bf16_f32 v{APB}, v{cur+8}, v{cur+9}")
    a(f"v_cvt_pk_bf16_f32 v{APB+1}, v{cur+10}, v{cur+11}")
    assert not side, side

L_SH = 162048
LMAX = f2u(2.0 ** 90) if "forcefb" not in X else f2u(2.0 ** -20)
VMAX = f2u(2.0 ** 20)

def gen_attention(a, pf):
    P = "att"
    KR = TR
    a(f"v_add_u32 v2, {L_QX}, v1")
    for g in range(4):
        a(f"ds_read_b128 {v(AQ+8*g,4)}, v2 offset:{g*2048}")
        a(f"ds_read_b128 {v(AQ+8*g+4,4)}, v2 offset:{g*2048+1024}")
    a(f"s_add_u32 s{KR}, s{WSR}, {WS_KV}")
    a(f"s_addc_u32 s{KR+1}, s{WSR+1}, 0")
    a(f"s_mov_b32 s{KR+3}, 0x00020000")
    a("s_mov_b32 s44, 0")
    a("s_mov_b32 s51, 0")
    a(f"s_cmp_lt_u32 s{WV}, 4")
    a("s_cselect_b32 s53, 1, -1")
    a(f"s_cmp_eq_u32 s{WV}, 0")
    a(f"s_cbranch_scc0 {P}_nopoll")
    srd(a, 56, S_DBG, 256)
    if "cntpoll" in X:
        a(f"s_cmp_eq_u32 s{J2}, 7")
        a(f"s_cbranch_scc1 {P}_nobl")
        a(f"v_mov_b32 v3, {L_CNT}")
        lds_wait(a, C_BL, 1, 3, 2, P + "_bl", sleep=2)
        a.label(P + "_nobl")
        a(f"v_mov_b32 v2, {D_CNT}")
        a.label(P + "_poll")
        a(f"buffer_load_dwordx2 v[104:105], v2, s[56:59], 0 offen{SC1}")
        a("s_waitcnt vmcnt(0)")
        a("v_readfirstlane_b32 s3, v104")
        a("s_cmp_ge_u32 s3, 64")
        a(f"s_cbranch_scc1 {P}_pollgot")
        a(f"s_sleep {POLLSLEEP}")
        a(f"s_sub_u32 s{SPIN}, s{SPIN}, 1")
        a(f"s_cbranch_scc0 {P}_poll")
        a(f"s_mov_b32 s{SPIN}, 0")
        a.label(P + "_pollgot")
        a("v_mov_b32 v107, v105")
    else:
        a(f"v_mov_b32 v2, {D_GO}")
        a.label(P + "_poll")
        a(f"buffer_load_dwordx4 v[104:107], v2, s[56:59], 0 offen{SC1}")
        a("s_waitcnt vmcnt(0)")
        a("v_readfirstlane_b32 s3, v104")
        a("s_cmp_lg_u32 s3, 0")
        a(f"s_cbranch_scc1 {P}_pollok")
        a(f"s_sleep {POLLSLEEP}")
        a(f"s_sub_u32 s{SPIN}, s{SPIN}, 1")
        a(f"s_cbranch_scc0 {P}_poll")
        a(f"s_mov_b32 s{SPIN}, 0")
    a.label(P + "_pollok")
    a(f"v_mov_b32 v3, {L_CNT}")
    a("s_mov_b64 exec, 1")
    a(f"ds_add_u32 v3, v107 offset:{C_BAD}")
    a("s_mov_b64 exec, -1")
    a.label(P + "_nopoll")
    a(f"v_mov_b32 v3, {L_CNT}")
    sw_barrier(a, C_ATT, 44, 8, 3, 2, P + "_b0")
    pf.stamp(5)
    a(f"s_mov_b32 s{KR+2}, 0x40000")
    a("s_lshr_b32 s52, s2, 3")
    a("s_lshl_b32 s52, s52, 3")
    a(f"s_add_u32 s52, s52, s{WV}")
    a("s_lshl_b32 s52, s52, 10")
    a(f"buffer_load_dwordx4 {v(AS[0],4)}, v1, s[{KR}:{KR+3}], s52 offen{SC1}")
    a.label(P + "_restart")
    a(f"s_mov_b32 s{KR+2}, 0x40000")
    a(f"s_lshl_b32 s43, s{WV}, 15")
    a(f"buffer_load_dwordx4 {v(AK[0],4)}, v1, s[{KR}:{KR+3}], s43 offen{SC1}")
    a(f"buffer_load_dwordx4 {v(AK[0]+4,4)}, v1, s[{KR}:{KR+3}], s43 offen offset:1024{SC1}")
    a(f"buffer_load_dwordx4 {v(AV[0],4)}, v1, s[{KR}:{KR+3}], s43 offen offset:2048{SC1}")
    a(f"buffer_load_dwordx4 {v(AV[0]+4,4)}, v1, s[{KR}:{KR+3}], s43 offen offset:3072{SC1}")
    a("s_add_u32 s43, s43, 4096")
    a(f"buffer_load_dwordx4 {v(AK[1],4)}, v1, s[{KR}:{KR+3}], s43 offen{SC1}")
    a(f"buffer_load_dwordx4 {v(AK[1]+4,4)}, v1, s[{KR}:{KR+3}], s43 offen offset:1024{SC1}")
    for j in range(4): a(f"v_mov_b32 v{APB+j}, 0")
    for j in range(8): a(f"v_mov_b32 v{AV[1]+j}, 0")
    a("s_cmp_lg_u32 s51, 0")
    a(f"s_cbranch_scc1 {P}_haveshift")
    a(f"s_cmp_ge_u32 s{WV}, 4")
    a(f"s_cbranch_scc1 {P}_shwait")
    a(f"buffer_load_dwordx4 {v(AS[1],4)}, v1, s[{KR}:{KR+3}], 0 offen{SC1}")
    a(f"buffer_load_dwordx4 {v(AS[1]+4,4)}, v1, s[{KR}:{KR+3}], 0 offen offset:1024{SC1}")
    a(f"s_lshl_b32 s3, s{WV}, 11")
    a(f"s_add_u32 s3, s3, {L_QX}")
    a("v_add_u32 v2, s3, v1")
    a(f"ds_read_b128 {v(AO,4)}, v2")
    a(f"ds_read_b128 {v(AO+4,4)}, v2 offset:1024")
    a("s_waitcnt vmcnt(0) lgkmcnt(0)")
    o = AO + 16
    a(f"{MF} {v(o,16)}, {v(AS[1],4)}, {v(AO,4)}, 0")
    a(f"{MF} {v(o,16)}, {v(AS[1]+4,4)}, {v(AO+4,4)}, {v(o,16)}")
    a(f"s_lshl_b32 s3, s{WV}, 7")
    a(f"s_add_u32 s3, s3, {L_SH}")
    a("v_lshrrev_b32 v3, 2, v1")
    a("v_and_b32 v3, 127, v3")
    a("v_add_u32 v3, s3, v3")
    a("s_nop 7")
    a(f"v_max3_f32 v2, v{o}, v{o+1}, v{o+2}")
    for j in range(3, 15, 2):
        a(f"v_max3_f32 v2, v2, v{o+j}, v{o+j+1}")
    a(f"v_max_f32 v2, v2, v{o+15}")
    a(f"v_mov_b32 v{AO}, v2")
    a("s_nop 1")
    a(f"v_permlane32_swap_b32 v2, v{AO}")
    a(f"v_max_f32 v2, v2, v{AO}")
    a("v_cvt_pk_bf16_f32 v2, -v2, 0")
    a("s_mov_b32 exec_hi, 0")
    a("ds_write_b32 v3, v2")
    a("s_mov_b64 exec, -1")
    a.label(P + "_shwait")
    a(f"v_mov_b32 v3, {L_CNT}")
    sw_barrier(a, C_ATT, 44, 8, 3, 2, P + "_bs")
    a("v_lshrrev_b32 v3, 2, v1")
    a("v_and_b32 v3, 127, v3")
    a(f"v_add_u32 v3, {L_SH}, v3")
    for g in range(4): a(f"ds_read_b32 v{AO+g}, v3 offset:{g*128}")
    a("s_waitcnt lgkmcnt(0)")
    a("s_mov_b32 exec_lo, 0")
    for g in range(4): a(f"v_mov_b32 v{AQ+8*g+6}, v{AO+g}")
    a("s_mov_b32 exec_lo, -1")
    a.label(P + "_haveshift")
    for j in (0, 1, 2, 3, 12, 13, 14, 15): a(f"v_mov_b32 v{AS[1]+j}, 0")
    a(f"s_and_b32 s3, s{WV}, 3")
    a("s_lshl_b32 s3, s3, 2")
    a(f"s_add_u32 s3, s3, {L_CNT + 64}")
    a("v_mov_b32 v2, s3")
    for g in range(4):
        a(f"{MF} {v(AO+16*g,16)}, {v(AV[1],4)}, {v(APB,4)}, 0")
    a("s_waitcnt vmcnt(4)")
    a(f"{MF} {v(AS[0],16)}, {v(AK[0],4)}, {v(AQ,4)}, 0")
    a(f"{MF} {v(AS[0],16)}, {v(AK[0]+4,4)}, {v(AQ+4,4)}, {v(AS[0],16)}")
    a("s_mov_b32 s48, 0")
    a("s_setprio 2")
    a("s_nop 7")
    a("s_nop 1")
    pf.stamp(6)
    a(".p2align 3")
    a.label(P + "_loop")
    for u in range(8):
        g = u & 3; par = (u >> 2) & 1
        side = []
        if g == 1:
            side.append(("q0", "s_waitcnt vmcnt(2)"))
            side.append(f"buffer_load_dwordx4 {v(AV[par^1],4)}, v1, s[{KR}:{KR+3}], s43 offen offset:2048{SC1}")
            side.append(f"buffer_load_dwordx4 {v(AV[par^1]+4,4)}, v1, s[{KR}:{KR+3}], s43 offen offset:3072{SC1}")
            side.append("s_add_u32 s43, s43, 4096")
            if par == 0:
                side.append("s_cmp_eq_u32 s48, 3")
                side.append(f"s_cselect_b32 s{KR+2}, 0, s{KR+2}")
        if g == 3:
            side += [None, None, None, "s_waitcnt vmcnt(2)"]
            side.append(f"buffer_load_dwordx4 {v(AK[par],4)}, v1, s[{KR}:{KR+3}], s43 offen{SC1}")
            side.append(f"buffer_load_dwordx4 {v(AK[par]+4,4)}, v1, s[{KR}:{KR+3}], s43 offen offset:1024{SC1}")
            if par == 1:
                side += ["s_add_u32 s48, s48, 1", None, None, None, None, None, None, None, None, "s_cmp_lt_u32 s48, 4"]
        if g == 0:
            side += ["v_mov_b32 v3, s53", None, "s_mov_b64 exec, 1\nds_add_rtn_u32 v3, v2, v3\ns_mov_b64 exec, -1"]
        if g == 2:
            lab = f"{P}_fp{u}"
            side += ["s_waitcnt lgkmcnt(0)", "v_readfirstlane_b32 s54, v3", None, "s_mul_i32 s54, s54, s53", "s_cmp_gt_i32 s54, 0",
                     f"s_cbranch_scc1 {lab}a\ns_setprio 2\ns_branch {lab}b\n{lab}a:\ns_setprio 1\n{lab}b:"]
        att_unit(a, u, side)
    a(f"s_cbranch_scc1 {P}_loop")
    prv = AS[1]
    a(f"{MF} {v(AO+48,16)}, {v(AV[1],4)}, {v(prv,4)}, {v(AO+48,16)}")
    a(f"v_cvt_pk_bf16_f32 v{APB+2}, v{prv+12}, v{prv+13}")
    a(f"v_cvt_pk_bf16_f32 v{APB+3}, v{prv+14}, v{prv+15}")
    a("s_nop 1")
    a(f"{MF} {v(AO+48,16)}, {v(AV[1]+4,4)}, {v(APB,4)}, {v(AO+48,16)}")
    pf.stamp(7)
    a("s_setprio 3")
    a("s_cmp_lg_u32 s51, 0")
    a(f"s_cbranch_scc1 {P}_nolend")
    lds_arrive(a, C_LEND, 2, 3)
    a.label(P + "_nolend")
    a(f"v_mov_b32 v3, {L_CNT}")
    a.label(P + "_udone")
    a(f"ds_read2_b32 v[104:105], v3 offset0:{C_NONCE//4} offset1:{C_UDONE//4}")
    a("s_waitcnt lgkmcnt(0)")
    a("v_readfirstlane_b32 s3, v105")
    a(f"v_readfirstlane_b32 s{NONCE}, v104")
    a("s_cmp_ge_u32 s3, 4")
    a(f"s_cbranch_scc1 {P}_udone_ok")
    a(f"s_sub_u32 s{SPIN}, s{SPIN}, 1")
    a(f"s_cbranch_scc0 {P}_udone")
    a(f"s_mov_b32 s{SPIN}, 0")
    a.label(P + "_udone_ok")
    a(f"s_lshl_b32 s3, s{WV}, 13")
    a(f"s_add_u32 s3, s3, {A_OP}")
    a(f"v_add_u32 v2, s3, v1")
    a(f"s_lshl_b32 s3, s{WV}, 9")
    a(f"s_add_u32 s3, s3, {A_LP}")
    a("v_lshrrev_b32 v3, 2, v1")
    a("v_and_b32 v4, 127, v3")
    a("v_add_u32 v4, s3, v4")
    a(f"s_mov_b32 s46, {hex(LMAX)}")
    a("s_mov_b64 s[56:57], 0")
    for g in range(4):
        o = AO + 16 * g
        if g == 3: a("s_nop 3")
        a("s_mov_b32 exec_lo, 0")
        a(f"ds_write_b32 v4, v{o+12} offset:{g*128}")
        a(f"v_cmp_nge_f32 vcc, s46, v{o+12}")
        a("s_mov_b32 exec_lo, -1")
        a("s_or_b64 s[56:57], s[56:57], vcc")
        for j in range(8):
            a(f"v_cvt_pk_bf16_f32 v{AS[0]+8*g+j}, v{o+2*j}, v{o+2*j+1}")
        a(f"ds_write_b128 v2, {v(AS[0]+8*g,4)} offset:{g*2048}")
        a(f"ds_write_b128 v2, {v(AS[0]+8*g+4,4)} offset:{g*2048+1024}")
    a(f"v_mov_b32 v3, {L_CNT}")
    a("s_cmp_eq_u64 s[56:57], 0")
    a(f"s_cbranch_scc1 {P}_safe")
    a("v_mov_b32 v2, 1")
    a("s_mov_b64 exec, 1")
    a(f"ds_add_u32 v3, v2 offset:{C_BAD}")
    a("s_mov_b64 exec, -1")
    a.label(P + "_safe")
    pf.stamp(17)
    sw_barrier(a, C_ATT, 44, 8, 3, 2, P + "_b1")
    pf.stamp(18)
    a(f"ds_read_b32 v2, v3 offset:{C_BAD}")
    a(f"s_lshl_b32 s3, s{WV}, 10")
    a(f"s_add_u32 s3, s3, {A_OP}")
    a("v_add_u32 v4, s3, v1")
    for w in range(8):
        a(f"ds_read_b128 {v(AO+4*w,4)}, v4 offset:{w*8192}")
    a(f"s_lshr_b32 s45, s{WV}, 1")
    a("s_lshl_b32 s3, s45, 7")
    a(f"s_add_u32 s3, s3, {A_LP}")
    a("v_lshrrev_b32 v3, 2, v1")
    a("v_and_b32 v3, 127, v3")
    a("v_add_u32 v3, s3, v3")
    a("s_waitcnt lgkmcnt(8)")
    a("v_readfirstlane_b32 s3, v2")
    a("s_cmp_lg_u32 s3, 0")
    a("s_cselect_b32 s3, 1, 0")
    a("s_andn2_b32 s3, s3, s51")
    a(f"s_cbranch_scc1 {P}_fallback")
    acc = AO + 40
    a("s_mov_b32 s46, 0x00003f80")
    a("s_mov_b32 s49, 0x3f800000")
    for w in range(7):
        a(f"ds_read_b32 v{AO+32+w}, v3 offset:{w*512}")
    for j in range(8): a(f"v_mov_b32 v{acc+j}, 0")
    for w in range(8):
        a(f"s_waitcnt lgkmcnt({14 - w})" if w < 7 else "s_waitcnt lgkmcnt(7)")
        if w == 0: a(f"ds_read_b32 v{AO+39}, v3 offset:{7*512}")
        for j in range(4):
            a(f"v_dot2c_f32_bf16 v{acc+2*j}, s46, v{AO+4*w+j}")
            a(f"v_dot2c_f32_bf16 v{acc+2*j+1}, s49, v{AO+4*w+j}")
    a("s_lshr_b32 s3, s45, 1")
    a(f"s_lshl_b32 s46, s{RB}, 1")
    a("s_add_u32 s3, s3, s46")
    a("s_lshl_b32 s3, s3, 4")
    a(f"s_lshl_b32 s46, s{J2}, 1")
    a("s_add_u32 s3, s3, s46")
    a("s_and_b32 s46, s45, 1")
    a("s_add_u32 s3, s3, s46")
    a("s_lshl_b32 s3, s3, 11")
    a(f"s_and_b32 s46, s{WV}, 1")
    a("s_lshl_b32 s46, s46, 10")
    a("s_add_u32 s3, s3, s46")
    a(f"s_add_u32 s47, s3, {WS_OF}")
    a("s_waitcnt lgkmcnt(0)")
    lds_arrive(a, C_TRD, 2, 3)
    l = AO + 32
    a(f"v_add_f32 v{l}, v{l}, v{l+1}")
    a(f"v_add_f32 v{l+2}, v{l+2}, v{l+3}")
    a(f"v_add_f32 v{l+4}, v{l+4}, v{l+5}")
    a(f"v_add_f32 v{l+6}, v{l+6}, v{l+7}")
    a(f"v_add_f32 v{l}, v{l}, v{l+2}")
    a(f"v_add_f32 v{l+4}, v{l+4}, v{l+6}")
    a(f"v_add_f32 v{l}, v{l}, v{l+4}")
    a(f"v_rcp_f32 v{l+1}, v{l}")
    a("s_nop 0")
    for j in range(8): a(f"v_mul_f32 v{acc+j}, v{acc+j}, v{l+1}")
    for j in range(4): a(f"v_cvt_pk_bf16_f32 v{AO+j}, v{acc+2*j}, v{acc+2*j+1}")
    a(f"s_and_b32 s3, s{WV}, 1")
    a("s_cmp_eq_u32 s3, 1")
    a("s_cselect_b32 exec_hi, -1, 0")
    a("s_mov_b32 exec_lo, 0")
    a(f"v_mov_b32 v{AO+2}, 0")
    a(f"v_mov_b32 v{AO+3}, 0")
    a("s_mov_b64 exec, -1")
    pf.stamp(19)
    a(f"buffer_store_dwordx4 {v(AO,4)}, v1, s[{WSR}:{WSR+3}], s47 offen{SC1}")
    if "dup" in X or "dupo" in X:
        a(f"buffer_store_dwordx4 {v(AO,4)}, v1, s[{WSR}:{WSR+3}], s47 offen")
    a(f"s_lshl_b32 s3, s{RB}, 5")
    a(f"s_add_u32 s3, s3, s{J2}")
    a("s_lshl_b32 s3, s3, 2")
    a(f"s_add_u32 s3, s3, {FL_O}")
    arrive_flag(a, C_OCNT, 8, 3, 2, 3, P + "_oflag")
    pf.stamp(8)
    a(f"s_branch {P}_done")
    a.label(P + "_fallback")
    a("s_waitcnt lgkmcnt(0)")
    a("s_mov_b32 s51, 1")
    a(f"s_mov_b32 s{KR+2}, 0x40000")
    a("s_mov_b32 exec_lo, 0")
    for g in range(4):
        a(f"v_mov_b32 v{AQ+8*g+6}, 0")
        a(f"v_mov_b32 v{AQ+8*g+7}, 0")
    a("s_mov_b32 exec_lo, -1")
    for g in range(4): a(f"v_mov_b32 v{APB+g}, 0xff800000")
    a("s_mov_b32 s43, 0")
    a.label(P + "_fb_loop")
    a(f"buffer_load_dwordx4 {v(AK[0],4)}, v1, s[{KR}:{KR+3}], s43 offen{SC1}")
    a(f"buffer_load_dwordx4 {v(AK[0]+4,4)}, v1, s[{KR}:{KR+3}], s43 offen offset:1024{SC1}")
    a("s_waitcnt vmcnt(0)")
    for g in range(4):
        o = AO + 16 * g
        a(f"{MF} {v(o,16)}, {v(AK[0],4)}, {v(AQ+8*g,4)}, 0")
        a(f"{MF} {v(o,16)}, {v(AK[0]+4,4)}, {v(AQ+8*g+4,4)}, {v(o,16)}")
    a("s_nop 7")
    for g in range(4):
        o = AO + 16 * g
        for j in range(0, 16, 2):
            a(f"v_max3_f32 v{APB+g}, v{APB+g}, v{o+j}, v{o+j+1}")
    a("s_add_u32 s43, s43, 4096")
    a("s_cmp_lt_u32 s43, 0x40000")
    a(f"s_cbranch_scc1 {P}_fb_loop")
    for g in range(4):
        m = APB + g
        a(f"v_mov_b32 v2, v{m}")
        a("s_nop 1")
        a(f"v_permlane32_swap_b32 v2, v{m}")
        a(f"v_max_f32 v2, v2, v{m}")
        a("v_sub_f32 v2, 0, v2")
        a("v_cvt_pk_bf16_f32 v3, v2, v2")
        a("v_and_b32 v3, 0xffff0000, v3")
        a(f"v_sub_f32 v{m}, v2, v3")
        a(f"v_cvt_pk_bf16_f32 v2, v{m}, v{m}")
        a("v_and_b32 v2, 0xffff0000, v2")
        a(f"v_sub_f32 v{m}, v{m}, v2")
        a(f"v_cvt_pk_bf16_f32 v{m}, v{m}, 0")
        a("v_lshrrev_b32 v3, 16, v3")
        a("v_or_b32 v3, v3, v2")
        a("s_mov_b32 exec_lo, 0")
        a(f"v_mov_b32 v{AQ+8*g+6}, v3")
        a(f"v_mov_b32 v{AQ+8*g+7}, v{m}")
        a("s_mov_b32 exec_lo, -1")
    a(f"v_mov_b32 v3, {L_CNT}")
    sw_barrier(a, C_ATT, 44, 8, 3, 2, P + "_bf")
    a(f"s_branch {P}_restart")
    a.label(P + "_done")

def gen_background(a, pf):
    P = "bg"
    XF = 56; ARE, AIM = 8, 24
    nbar = [0]
    T = [54, 55]
    pf.T = T
    def bar():
        nbar[0] += 1
        a(f"v_mov_b32 v{T[0]}, {L_CNT}")
        sw_barrier(a, C_BG, 44, 4, T[0], T[1], f"{P}_bar{nbar[0]}")
    def stage3(tag, vd_=156, vt_=158):
        if "nopf" in X: return
        a(f"s_cmp_eq_u32 s{BW}, 3")
        a(f"s_cbranch_scc1 {P}_not3{tag}")
        a(f"s_cmp_eq_u32 s{BW}, 0")
        a(f"s_cselect_b32 s56, s{S_CRE}, s{S_CIM}")
        a(f"s_cselect_b32 s57, s{S_CRE+1}, s{S_CIM+1}")
        a(f"s_cmp_eq_u32 s{BW}, 2")
        a(f"s_cselect_b32 s56, s{S_WO}, s56")
        a(f"s_cselect_b32 s57, s{S_WO+1}, s57")
        touch_matrix(a, 56, vd_, vt_)
        a.label(P + "_not3" + tag)
    a("s_mov_b32 s44, 0")
    a(f"s_lshl_b32 s37, s{J2}, 1")
    a(f"s_and_b32 s3, s{BW}, 1")
    a("s_add_u32 s37, s37, s3")
    a(f"s_lshr_b32 s38, s{BW}, 1")
    a(f"s_cmp_eq_u32 s{BW}, 3")
    a(f"s_cbranch_scc0 {P}_nononce")
    srd(a, 48, S_DBG, 256)
    a("v_mov_b32 v7, 0")
    a.label(P + "_npoll")
    a(f"buffer_load_dword v6, v7, s[48:51], 0 offen offset:{D_NONCE}{SC1}")
    a("s_waitcnt vmcnt(0)")
    a("v_readfirstlane_b32 s3, v6")
    a("s_cmp_lg_u32 s3, 0")
    a(f"s_cbranch_scc1 {P}_npoll_ok")
    a(f"s_sleep {POLLSLEEP}")
    a(f"s_sub_u32 s{SPIN}, s{SPIN}, 1")
    a(f"s_cbranch_scc0 {P}_npoll")
    a(f"s_mov_b32 s{SPIN}, 0")
    a.label(P + "_npoll_ok")
    a(f"v_mov_b32 v7, {L_CNT}")
    a(f"ds_write_b32 v7, v6 offset:{C_NONCE}")
    a.label(P + "_nononce")
    a(f"s_cmp_eq_u32 s{J2}, 7")
    a(f"s_cbranch_scc1 {P}_skip")
    if "nobg" in X: a(f"s_branch {P}_skip")
    a(f"s_and_b32 s3, s{BW}, 1")
    a("s_cmp_eq_u32 s3, 0")
    a(f"s_cselect_b32 s{TR}, s{S_BRE}, s{S_BIM}")
    a(f"s_cselect_b32 s{TR+1}, s{S_BRE+1}, s{S_BIM+1}")
    a(f"s_mov_b32 s{TR+2}, {WBYTES}")
    a(f"s_mov_b32 s{TR+3}, 0x00020000")
    plain_lane_off(a, 8, 0, 9)
    a(f"s_lshl_b32 s3, s{J2}, 1")
    a("s_add_u32 s3, s3, s38")
    a(f"s_mul_i32 s32, s3, {32*896}")
    a(f"s_lshl_b32 s34, s{BW}, 11")
    a("s_mov_b32 m0, s34")
    a("s_mov_b32 s36, 14")
    a.label(P + "_bdma")
    a(f"s_add_u32 s33, s32, {16*896}")
    a(f"buffer_load_dwordx4 v8, s[{TR}:{TR+3}], s32 offen lds")
    a("s_add_u32 m0, m0, 1024")
    a("s_sub_u32 s36, s36, 1")
    a(f"buffer_load_dwordx4 v8, s[{TR}:{TR+3}], s33 offen lds")
    a("s_add_u32 s32, s32, 64")
    a(f"s_add_u32 m0, m0, {8192-1024}")
    a("s_cmp_lg_u32 s36, 0")
    a(f"s_cbranch_scc1 {P}_bdma")
    xfrag_addr(a, 6, 0, 8)
    a(f"s_and_b32 s3, s{BW}, 1")
    a("s_lshl_b32 s3, s3, 12")
    a("v_add_u32 v6, s3, v6")
    a("v_xor_b32 v7, 32, v6")
    a("s_waitcnt vmcnt(0)")
    bar()
    a(f"ds_read_b32 v55, v54 offset:{C_NONCE}")
    a("s_waitcnt lgkmcnt(0)")
    a(f"v_readfirstlane_b32 s{NONCE}, v55")
    if "cntpoll" in X:
        lds_arrive(a, C_BL, 54, 55)
    pf.stamp(5)
    S3 = os.environ.get("S3", "b")
    if S3 == "b": stage3("a", 52, 54)
    BB = [40, 48]
    def rdB(j):
        b = BB[j & 1]
        if j in (16, 17): a(f"v_add_u32 v{6+(j&1)}, 0x10000, v{6+(j&1)}")
        o = (j >> 1) * 8192 - (65536 if j >= 16 else 0)
        a(f"ds_read_b128 {v(b,4)}, v{6+(j&1)} offset:{o}")
        a(f"ds_read_b128 {v(b+4,4)}, v{6+(j&1)} offset:{o+2048}")
    rdB(0); rdB(1)
    for j in range(28):
        b = BB[j & 1]
        a("s_waitcnt lgkmcnt(2)" if j < 27 else "s_waitcnt lgkmcnt(0)")
        c1 = "0" if j == 0 else v(ARE,16); c2 = "0" if j == 0 else v(AIM,16)
        a(f"{MF} {v(ARE,16)}, {v(XF+4*j,4)}, {v(b,4)}, {c1}")
        a(f"{MF} {v(AIM,16)}, {v(XF+4*j,4)}, {v(b+4,4)}, {c2}")
        if j + 2 < 28: rdB(j + 2)
    a(f"v_mov_b32 v54, {L_CNT}")
    a("v_mov_b32 v55, 1")
    a("s_mov_b64 exec, 1")
    a(f"ds_add_u32 v54, v55 offset:{C_UDONE}")
    a("s_mov_b64 exec, -1")
    pf.stamp(6)
    if S3 == "u": stage3("a")
    def csq(dr, di, sr, si):
        a(f"v_mul_f32 v46, v{si}, v{si}")
        a(f"v_mul_f32 v47, v{sr}, v{si}")
        a(f"v_fma_f32 v{dr}, v{sr}, v{sr}, -v46")
        a(f"v_add_f32 v{di}, v47, v47")
    csq(40, 41, 2, 3)
    for _ in range(3): csq(40, 41, 40, 41)
    csq(42, 43, 40, 41); csq(42, 43, 42, 43)
    csq(44, 45, 42, 43)
    for _ in range(3): csq(44, 45, 44, 45)
    a("v_mov_b32 v48, v4")
    a("v_mov_b32 v49, v4")
    a("v_mov_b32 v50, v5")
    a("v_mov_b32 v51, v5")
    for r in range(0, 16, 2):
        a(f"v_pk_mul_f32 v[46:47], v[50:51], {v(AIM+r,2)}")
        a(f"v_pk_mul_f32 v[52:53], v[50:51], {v(ARE+r,2)}")
        a(f"v_pk_fma_f32 {v(ARE+r,2)}, v[48:49], {v(ARE+r,2)}, v[46:47] neg_lo:[0,0,1] neg_hi:[0,0,1]")
        a(f"v_pk_fma_f32 {v(AIM+r,2)}, v[48:49], {v(AIM+r,2)}, v[52:53]")
    a(f"v_mov_b32 v48, v{ARE}")
    a(f"v_mov_b32 v49, v{AIM}")
    for r in range(1, 16):
        cfma(a, 48, 49, 2, 3, ARE + r, AIM + r, 46, 47)
    a("v_and_b32 v50, 31, v0")
    a("v_lshlrev_b32 v50, 3, v50")
    a(f"s_and_b32 s3, s{BW}, 1")
    a("s_lshl_b32 s3, s3, 10")
    a(f"s_add_u32 s3, s3, {B_EX}")
    a("v_add_u32 v50, s3, v50")
    a("v_lshrrev_b32 v51, 5, v0")
    a("s_lshl_b32 s3, s38, 1")
    a("v_add_u32 v51, s3, v51")
    a("v_lshl_add_u32 v52, v51, 8, v50")
    a("ds_write_b64 v52, v[48:49]")
    bar()
    for c in range(4):
        a(f"ds_read_b64 {v(56+2*c,2)}, v50 offset:{c*256}")
    a("s_waitcnt lgkmcnt(0)")
    a("v_mov_b32 v64, v56")
    a("v_mov_b32 v65, v57")
    for c in range(1, 4):
        cfma(a, 64, 65, 40, 41, 56 + 2*c, 57 + 2*c, 46, 47)
    a("s_cmp_eq_u32 s38, 1")
    a(f"s_cbranch_scc0 {P}_nopub")
    a(f"s_mul_i32 s3, s{RB}, {448*16}")
    a("s_lshl_b32 s33, s37, 9")
    a("s_add_u32 s3, s3, s33")
    a(f"s_add_u32 s3, s3, {WS_E}")
    a(f"v_mov_b32 v66, s{NONCE}")
    a(f"v_mov_b32 v67, s{NONCE}")
    a("v_and_b32 v68, 31, v0")
    a("v_lshlrev_b32 v68, 4, v68")
    a("s_mov_b32 exec_hi, 0")
    a(f"buffer_store_dwordx4 v[64:67], v68, s[{WSR}:{WSR+3}], s3 offen{SC1}")
    a("s_mov_b64 exec, -1")
    a.label(P + "_nopub")
    pf.stamp(7)
    a(f"s_add_u32 s48, s{WSR}, {WS_E}")
    a(f"s_addc_u32 s49, s{WSR+1}, 0")
    a(f"s_mov_b32 s50, {32*448*16}")
    a("s_mov_b32 s51, 0x00020000")
    a("v_lshrrev_b32 v67, 5, v0")
    a("v_lshlrev_b32 v67, 4, v67")
    a(f"v_sub_u32 v67, s{RB}, v67")
    a("v_add_u32 v67, -1, v67")
    a(f"s_mov_b32 s3, {448*16}")
    a("v_mul_lo_u32 v68, v67, s3")
    a("v_and_b32 v66, 31, v0")
    a("v_lshlrev_b32 v66, 4, v66")
    a("s_lshl_b32 s33, s37, 9")
    a("v_add3_u32 v68, v68, v66, s33")
    EG = 72
    for i in range(1, 16):
        a(f"v_subrev_u32 v{136+i}, {448*16*i}, v68")
    a("v_mov_b32 v136, v68")
    a("s_waitcnt vmcnt(0)")
    a(f"s_cmp_eq_u32 s{RB}, 0")
    a(f"s_cbranch_scc1 {P}_pollE")
    a.label(P + "_pollE0")
    a("s_mov_b32 exec_hi, 0")
    a(f"buffer_load_dwordx3 {v(EG,3)}, v136, s[48:51], 0 offen{SC1}")
    a("s_mov_b64 exec, -1")
    a("s_waitcnt vmcnt(0)")
    a(f"v_cmp_ne_u32 vcc, s{NONCE}, v{EG+2}")
    a("s_cmp_eq_u32 vcc_lo, 0")
    a(f"s_cbranch_scc1 {P}_pollE")
    a(f"s_sleep {os.environ.get('ES', '6')}")
    a(f"s_sub_u32 s{SPIN}, s{SPIN}, 1")
    a(f"s_cbranch_scc0 {P}_pollE0")
    a(f"s_mov_b32 s{SPIN}, 0")
    a.label(P + "_pollE")
    for i in range(16):
        a(f"buffer_load_dwordx3 {v(EG+4*i,3)}, v{136+i}, s[48:51], 0 offen{SC1}")
    a("s_mov_b64 s[56:57], 0")
    a("s_waitcnt vmcnt(0)")
    for i in range(16):
        a(f"v_cmp_ne_u32 vcc, s{NONCE}, v{EG+4*i+2}")
        a(f"s_cmp_gt_u32 s{RB}, {i}")
        a("s_cselect_b32 s58, -1, 0")
        a(f"s_cmp_gt_u32 s{RB}, {i+16}")
        a("s_cselect_b32 s59, -1, 0")
        a("s_and_b64 vcc, vcc, s[58:59]")
        a("s_or_b64 s[56:57], s[56:57], vcc")
    a("s_cmp_eq_u64 s[56:57], 0")
    a(f"s_cbranch_scc1 {P}_pollE_ok")
    a("s_sleep 12")
    a(f"s_sub_u32 s{SPIN}, s{SPIN}, 1")
    a(f"s_cbranch_scc0 {P}_pollE")
    a(f"s_mov_b32 s{SPIN}, 0")
    a.label(P + "_pollE_ok")
    pf.stamp(8)
    a(f"v_mov_b32 v68, v{EG+60}")
    a(f"v_mov_b32 v69, v{EG+61}")
    for i in range(14, -1, -1):
        cfma(a, 68, 69, 42, 43, EG + 4*i, EG + 4*i + 1, 46, 47)
    a("v_mov_b32 v70, v68")
    a("v_mov_b32 v71, v69")
    a("v_mov_b32 v72, v68")
    a("v_mov_b32 v73, v69")
    a("s_nop 1")
    a("v_permlane32_swap_b32 v70, v72")
    a("v_permlane32_swap_b32 v71, v73")
    cfma(a, 72, 73, 44, 45, 70, 71, 46, 47)
    for cp in range(3):
        a("v_mov_b32 v74, v72")
        a("v_mov_b32 v75, v73")
        cfma(a, 74, 75, 40, 41, 56 + 2*cp, 57 + 2*cp, 46, 47)
        a(f"v_cmp_lt_u32 vcc, {cp}, v51")
        a("s_nop 1")
        a("v_cndmask_b32 v72, v72, v74, vcc")
        a("v_cndmask_b32 v73, v73, v75, vcc")
    a(f"s_lshl_b32 s3, s{BW}, 12")
    a(f"s_add_u32 s3, s3, {B_HT}")
    a("v_and_b32 v66, 31, v0")
    a("v_lshlrev_b32 v66, 1, v66")
    a("v_lshrrev_b32 v67, 5, v0")
    a("v_lshl_add_u32 v66, v67, 8, v66")
    a("v_add_u32 v66, s3, v66")
    for r in range(16):
        cfma(a, 72, 73, 2, 3, ARE + r, AIM + r, 46, 47)
        a(f"v_cvt_pk_bf16_f32 v{76+(r&1)}, v72, -v73")
        slot = (r & 3) + 8 * (r >> 2)
        a(f"ds_write_b16 v66, v{76+(r&1)} offset:{slot*64}")
        a(f"ds_write_b16_d16_hi v66, v{76+(r&1)} offset:{2048+slot*64}")
    a("v_and_b32 v67, 31, v0")
    a("v_lshlrev_b32 v67, 6, v67")
    a("v_lshrrev_b32 v68, 5, v0")
    a("v_lshl_add_u32 v67, v68, 4, v67")
    a("v_add_u32 v67, s3, v67")
    a("s_waitcnt lgkmcnt(0)")
    for part in range(2):
        for jj in range(2):
            a(f"ds_read_b128 {v(80+8*part+4*jj,4)}, v67 offset:{part*2048+jj*32}")
    a(f"s_lshl_b32 s3, s{RB}, 1")
    a("s_add_u32 s3, s3, s38")
    a("s_mul_i32 s3, s3, 56")
    a("s_lshl_b32 s33, s37, 1")
    a("s_add_u32 s3, s3, s33")
    a("s_lshl_b32 s3, s3, 10")
    a(f"s_add_u32 s3, s3, {WS_HF}")
    a(f"s_add_u32 s33, s3, {28*1024}")
    a("s_waitcnt lgkmcnt(0)")
    a(f"buffer_store_dwordx4 {v(80,4)}, v1, s[{WSR}:{WSR+3}], s3 offen{SC1}")
    a(f"buffer_store_dwordx4 {v(84,4)}, v1, s[{WSR}:{WSR+3}], s3 offen offset:1024{SC1}")
    a(f"buffer_store_dwordx4 {v(88,4)}, v1, s[{WSR}:{WSR+3}], s33 offen{SC1}")
    a(f"buffer_store_dwordx4 {v(92,4)}, v1, s[{WSR}:{WSR+3}], s33 offen offset:1024{SC1}")
    if "dup" in X:
        a(f"buffer_store_dwordx4 {v(80,4)}, v1, s[{WSR}:{WSR+3}], s3 offen")
        a(f"buffer_store_dwordx4 {v(84,4)}, v1, s[{WSR}:{WSR+3}], s3 offen offset:1024")
        a(f"buffer_store_dwordx4 {v(88,4)}, v1, s[{WSR}:{WSR+3}], s33 offen")
        a(f"buffer_store_dwordx4 {v(92,4)}, v1, s[{WSR}:{WSR+3}], s33 offen offset:1024")
    a(f"s_lshl_b32 s3, s{RB}, 5")
    a(f"s_add_u32 s3, s3, s{J2}")
    a("s_lshl_b32 s3, s3, 2")
    a(f"s_add_u32 s3, s3, {FL_H}")
    arrive_flag(a, C_HCNT, 4, 3, 66, 67, P + "_hflag")
    pf.stamp(9)
    a(f"s_lshr_b32 s3, s{BW}, 1")
    a("s_cmp_eq_u32 s3, 0")
    a(f"s_cselect_b32 s{TR}, s{S_CRE}, s{S_CIM}")
    a(f"s_cselect_b32 s{TR+1}, s{S_CRE+1}, s{S_CIM+1}")
    plain_lane_off(a, 53, 0, 69)
    a(f"s_mul_i32 s40, s{J2}, {64*896}")
    a(f"s_and_b32 s3, s{BW}, 1")
    a("s_mul_i32 s3, s3, 448")
    a("s_add_u32 s40, s40, s3")
    a(f"s_lshl_b32 s41, s{BW}, 14")
    CDMA = [53]
    def c_dma(kb):
        a(f"s_add_u32 m0, s41, {(kb & 3)*4096}")
        for q in range(4):
            a(f"s_add_u32 s33, s40, {q*16*896 + kb*64}")
            a(f"buffer_load_dwordx4 v{CDMA[0]}, s[{TR}:{TR+3}], s33 offen lds")
            if q < 3: a("s_add_u32 m0, m0, 1024")
    for kb in range(4): c_dma(kb)
    a(f"s_cmp_eq_u32 s{BW}, 0")
    a(f"s_cbranch_scc0 {P}_nopollH")
    a("v_lshlrev_b32 v67, 2, v0")
    a(f"s_lshl_b32 s35, s{RB}, 7")
    a(f"s_add_u32 s35, s35, {FL_H}")
    a("s_mov_b64 s[58:59], 0x7f")
    poll(a, P + "_pollH", 68, 67, 35, 58)
    srd(a, 48, S_DBG, 256)
    a(f"v_mov_b32 v67, {D_GOG}")
    a.label(P + "_pollG")
    a(f"buffer_load_dword v68, v67, s[48:51], 0 offen{SC1}")
    a("s_waitcnt vmcnt(0)")
    a("v_readfirstlane_b32 s3, v68")
    a("s_cmp_lg_u32 s3, 0")
    a(f"s_cbranch_scc1 {P}_pollG_ok")
    a(f"s_sleep {POLLSLEEP}")
    a(f"s_sub_u32 s{SPIN}, s{SPIN}, 1")
    a(f"s_cbranch_scc0 {P}_pollG")
    a(f"s_mov_b32 s{SPIN}, 0")
    a.label(P + "_pollG_ok")
    a.label(P + "_nopollH")
    a("s_waitcnt vmcnt(0)")
    bar()
    pf.stamp(10)
    T[0], T[1] = 4, 5
    ACC = 8
    XS, GT = 136, 152
    a(f"s_lshl_b32 s3, s{RB}, 6")
    a("s_lshl_b32 s33, s38, 5")
    a("s_add_u32 s3, s3, s33")
    a("v_lshrrev_b32 v72, 5, v0")
    a("v_lshlrev_b32 v72, 4, v72")
    a("v_add_u32 v72, s3, v72")
    a(f"s_lshl_b32 s33, s{J2}, 6")
    a(f"s_and_b32 s35, s{BW}, 1")
    a("s_lshl_b32 s35, s35, 5")
    a("s_add_u32 s33, s33, s35")
    a("v_and_b32 v73, 31, v0")
    a("v_add_u32 v73, s33, v73")
    srd(a, 48, S_X, XBYTES)
    a("v_mul_u32_u24 v74, 896, v72")
    a("v_lshl_add_u32 v74, v73, 1, v74")
    for r in range(16):
        a(f"buffer_load_ushort v{XS+r}, v74, s[48:51], 0 offen offset:{(r%4)*896}")
        if r % 4 == 3 and r < 15: a(f"v_add_u32 v74, {4*896}, v74")
    srd(a, 52, S_DSK, 896)
    a("v_lshlrev_b32 v75, 1, v73")
    a("buffer_load_ushort v3, v75, s[52:55], 0 offen")
    a("v_lshlrev_b32 v75, 2, v72")
    a(f"s_mov_b32 s35, {WS_G}")
    for q in range(4):
        a(f"buffer_load_dwordx4 {v(GT+4*q,4)}, v75, s[{WSR}:{WSR+3}], s35 offen offset:{16*q}{SC1}")
    if "lowy" in X: a("s_setprio 0")
    a(f"s_lshl_b32 s3, s{RB}, 1")
    a("s_mul_i32 s3, s3, 56")
    a(f"s_mul_i32 s33, s{BW}, 14")
    a("s_add_u32 s3, s3, s33")
    a("s_lshl_b32 s3, s3, 10")
    a(f"s_add_u32 s32, s3, {WS_HF}")
    a(f"s_add_u32 s34, s32, {56*1024}")
    AF = 88; NA = 6
    plain_lane_off(a, 2, 0, 72)
    CDMA[0] = 2
    xfrag_addr(a, 6, 0, 72)
    a("v_add_u32 v6, s41, v6")
    a("v_xor_b32 v7, 32, v6")
    def ldA(st_):
        r = AF + 8 * (st_ % NA)
        a(f"s_add_u32 s35, s32, {st_*1024}")
        a(f"s_add_u32 s36, s34, {st_*1024}")
        a(f"buffer_load_dwordx4 {v(r,4)}, v1, s[{WSR}:{WSR+3}], s35 offen{SC1}")
        a(f"buffer_load_dwordx4 {v(r+4,4)}, v1, s[{WSR}:{WSR+3}], s36 offen{SC1}")
    for st_ in range(NA): ldA(st_)
    CB = [72, 80]
    def rdC(st_):
        b = CB[st_ & 1]
        kb = st_ >> 1
        a(f"ds_read_b128 {v(b,4)}, v{6+(st_&1)} offset:{(kb&3)*4096}")
        a(f"ds_read_b128 {v(b+4,4)}, v{6+(st_&1)} offset:{(kb&3)*4096+2048}")
    issued = []
    for st_ in range(NA): issued += [("A", st_)] * 2
    HY = int(os.environ.get("HY", "0"))
    if HY:
        a(f"v_mov_b32 v4, {L_CNT}")
        lds_wait(a, C_LEND, HY, 4, 5, P + "_lend", sleep=8)
        a(f"s_setprio {os.environ.get('YP', '1')}")
    rdC(0)
    for st_ in range(14):
        kb = st_ >> 1
        need = [("A", st_)]
        if st_ + 1 < 14 and ((st_ + 1) >> 1) >= 4: need.append(("C", (st_ + 1) >> 1))
        last = max(i for i, t in enumerate(issued) if t in need)
        n_out = len(issued) - 1 - last
        a(f"s_waitcnt vmcnt({n_out})")
        if st_ + 1 < 14: rdC(st_ + 1)
        a(f"s_waitcnt lgkmcnt({2 if st_ + 1 < 14 else 0})")
        b = CB[st_ & 1]; r = AF + 8 * (st_ % NA)
        for rt in range(2):
            for ct in range(2):
                acc = ACC + 16 * (2 * rt + ct)
                c = "0" if st_ == 0 else v(acc, 16)
                a(f"{MF} {v(acc,16)}, {v(r+4*rt,4)}, {v(b+4*ct,4)}, {c}")
        if st_ + NA < 14:
            ldA(NA + st_); issued += [("A", NA + st_)] * 2
        if (st_ & 1) == 1 and kb + 4 < 7:
            c_dma(kb + 4); issued += [("C", kb + 4)] * 4
    pf.stamp(11)
    a(f"s_setprio {os.environ.get('YP2', '2')}")
    bar()
    VT_, VD_, VO_, t1, t2, t3, t4, t5 = 72, 73, 74, 75, 76, 77, 78, 79
    srd(a, TR, S_WO, WBYTES)
    a(f"v_lshrrev_b32 v{t1}, 3, v0")
    a(f"v_mul_u32_u24 v{t1}, 896, v{t1}")
    a(f"v_and_b32 v{t2}, 7, v0")
    a(f"v_lshl_add_u32 v{t1}, v{t2}, 4, v{t1}")
    a(f"s_mul_i32 s32, s{BW}, {112*896}")
    a(f"s_lshl_b32 s3, s{J2}, 7")
    a("s_add_u32 s32, s32, s3")
    a(f"s_mul_i32 s34, s{BW}, 14336")
    a("s_mov_b32 m0, s34")
    a("s_mov_b32 s36, 14")
    a.label(P + "_wodma")
    a("s_sub_u32 s36, s36, 1")
    a(f"buffer_load_dwordx4 v{t1}, s[{TR}:{TR+3}], s32 offen lds")
    a("s_add_u32 s32, s32, 7168")
    a("s_add_u32 m0, m0, 1024")
    a("s_cmp_lg_u32 s36, 0")
    a(f"s_cbranch_scc1 {P}_wodma")
    a("v_mov_b32 v80, 0")
    a("v_mov_b32 v81, 0")
    a(f"v_lshlrev_b32 v{t2}, 3, v0")
    a(f"ds_write_b64 v{t2}, v[80:81] offset:57344")
    a(f"v_mov_b32 v4, {L_CNT}")
    lds_wait(a, C_TRD, 8, 4, 5, P + "_trd")
    a(f"s_lshl_b32 s3, s{BW}, 12")
    a(f"s_add_u32 s3, s3, {A_OP}")
    a(f"v_add_u32 v{t1}, s3, v1")
    for t in range(4):
        for q in range(4):
            a(f"ds_write_b128 v{t1}, {v(ACC+16*t+4*q,4)} offset:{t*16384+q*1024}")
    bar()
    a(f"s_lshl_b32 s3, s{BW}, 14")
    a(f"s_add_u32 s3, s3, {A_OP}")
    a(f"v_add_u32 v{t1}, s3, v1")
    for src in range(3):
        for q in range(4):
            a(f"ds_read_b128 {v(88+16*src+4*q,4)}, v{t1} offset:{src*4096+q*1024}")
    YT = 8
    for q in range(4):
        a(f"ds_read_b128 {v(YT+4*q,4)}, v{t1} offset:{3*4096+q*1024}")
        if q == 2: a("s_waitcnt lgkmcnt(4)")
    a("s_waitcnt lgkmcnt(0)")
    VT_, VD_, VO_, t1, t2, t3, t4, t5 = 40, 41, 42, 43, 44, 45, 46, 47
    for r in range(16):
        a(f"v_add_f32 v{88+r}, v{88+r}, v{104+r}")
        a(f"v_add_f32 v{YT+r}, v{YT+r}, v{120+r}")
    a("v_lshlrev_b32 v3, 16, v3")
    for r in range(16):
        a(f"v_add_f32 v{YT+r}, v{YT+r}, v{88+r}")
        a(f"v_lshlrev_b32 v{XS+r}, 16, v{XS+r}")
        a(f"v_mul_f32 v{XS+r}, v{XS+r}, v3")
        a(f"v_fma_f32 v{YT+r}, 2.0, v{YT+r}, v{XS+r}")
        a(f"v_sub_f32 v{XS+r}, 1.0, v{GT+r}")
        a(f"v_mul_f32 v{YT+r}, v{YT+r}, v{XS+r}")
    a(f"s_lshl_b32 s3, s{RB}, 6")
    a("s_lshl_b32 s33, s38, 5")
    a("s_add_u32 s3, s3, s33")
    a(f"v_lshrrev_b32 v{VT_}, 5, v0")
    a(f"v_lshlrev_b32 v{VT_}, 4, v{VT_}")
    a(f"v_add_u32 v{VT_}, s3, v{VT_}")
    a(f"s_lshl_b32 s33, s{J2}, 6")
    a(f"s_and_b32 s35, s{BW}, 1")
    a("s_lshl_b32 s35, s35, 5")
    a("s_add_u32 s33, s33, s35")
    a(f"v_and_b32 v{VD_}, 31, v0")
    a(f"v_add_u32 v{VD_}, s33, v{VD_}")
    a(f"v_mul_u32_u24 v{VO_}, 1792, v{VT_}")
    a(f"v_lshl_add_u32 v{VO_}, v{VD_}, 2, v{VO_}")
    srd(a, 48, S_OUT, OUTBYTES)
    a("v_lshrrev_b32 v6, 5, v0")
    a("v_lshlrev_b32 v6, 2, v6")
    a("v_bfe_u32 v7, v0, 2, 2")
    a("v_add_u32 v6, v6, v7")
    a("v_lshlrev_b32 v6, 7, v6")
    a("v_and_b32 v7, 16, v0")
    a(f"v_and_b32 v{t1}, 3, v0")
    a(f"v_lshl_add_u32 v7, v{t1}, 2, v7")
    a("v_lshl_add_u32 v6, v7, 1, v6")
    a(f"s_and_b32 s3, s{BW}, 1")
    a(f"s_mul_i32 s3, s3, {8*28*128}")
    a("v_add_u32 v6, s3, v6")
    a("s_waitcnt vmcnt(0)")
    a("s_setprio 3")
    pf.stamp(12)
    bar()
    a(f"v_lshlrev_b32 v{t4}, 2, v0")
    a(f"s_lshl_b32 s35, s{RB}, 7")
    a(f"s_add_u32 s35, s35, {FL_O}")
    a("s_mov_b64 s[58:59], 0xff")
    poll(a, P + "_pollO", t5, t4, 35, 58)
    pf.stamp(13)
    a(f"s_lshl_b32 s3, s{RB}, 1")
    a("s_add_u32 s3, s3, s38")
    a("s_lshl_b32 s3, s3, 15")
    a(f"s_and_b32 s33, s{BW}, 1")
    a("s_lshl_b32 s33, s33, 14")
    a("s_add_u32 s3, s3, s33")
    a(f"s_add_u32 s32, s3, {WS_OF}")
    OFR = 88
    for st_ in range(16):
        a(f"s_add_u32 s33, s32, {st_*1024}")
        a(f"buffer_load_dwordx4 {v(OFR+4*st_,4)}, v1, s[{WSR}:{WSR+3}], s33 offen{SC1}")
    PA_ = [56, 72]
    WB = [24, 32]
    def rdW(st_):
        hd, f = st_ >> 1, st_ & 1
        off = (28 * hd + 16 * f) * 128
        b = WB[st_ & 1]
        for ct in range(2):
            a(f"ds_read_b64_tr_b16 {v(b+4*ct,2)}, v6 offset:{off+ct*64}")
            a(f"ds_read_b64_tr_b16 {v(b+4*ct+2,2)}, v6 offset:{off+ct*64+1024}")
    rdW(0)
    for st_ in range(16):
        if st_ + 1 < 16: rdW(st_ + 1)
        a(f"s_waitcnt vmcnt({15-st_}) lgkmcnt({4 if st_ + 1 < 16 else 0})")
        for ct in range(2):
            c = "0" if st_ == 0 else v(PA_[ct], 16)
            a(f"{MF} {v(PA_[ct],16)}, {v(OFR+4*st_,4)}, {v(WB[st_&1]+4*ct,4)}, {c}")
    a(f"s_xor_b32 s3, s{BW}, 1")
    a("s_lshl_b32 s3, s3, 12")
    a("s_add_u32 s3, s3, 65536")
    a(f"v_add_u32 v{t1}, s3, v1")
    a(f"s_and_b32 s33, s{BW}, 1")
    a("s_nop 7")
    a("s_cmp_eq_u32 s33, 0")
    a(f"s_cbranch_scc0 {P}_send0")
    for q in range(4): a(f"ds_write_b128 v{t1}, {v(PA_[1]+4*q,4)} offset:{q*1024}")
    a(f"s_branch {P}_sent")
    a.label(P + "_send0")
    a("s_nop 1")
    for q in range(4): a(f"ds_write_b128 v{t1}, {v(PA_[0]+4*q,4)} offset:{q*1024}")
    a("s_nop 1")
    for r in range(16): a(f"v_mov_b32 v{PA_[0]+r}, v{PA_[1]+r}")
    a.label(P + "_sent")
    bar()
    a(f"s_lshl_b32 s3, s{BW}, 12")
    a("s_add_u32 s3, s3, 65536")
    a(f"v_add_u32 v{t1}, s3, v1")
    for q in range(4): a(f"ds_read_b128 {v(88+4*q,4)}, v{t1} offset:{q*1024}")
    a("s_waitcnt lgkmcnt(0)")
    for r in range(16):
        a(f"v_add_f32 v{88+r}, v{88+r}, v{PA_[0]+r}")
        a(f"v_fma_f32 v{88+r}, v{GT+r}, v{88+r}, v{YT+r}")
    for r in range(16):
        a(f"buffer_store_dword v{88+r}, v{VO_}, s[48:51], 0 offen offset:{(r%2)*1792}{os.environ.get('OST', '')}")
        if r % 2 == 1 and r < 15: a(f"v_add_u32 v{VO_}, {2*1792}, v{VO_}")
    pf.stamp(14)
    a(f"s_branch {P}_end")
    a.label(P + "_skip")
    if os.environ.get("S3", "b") in ("b", "u"): stage3("b")
    a(f"v_mov_b32 v54, {L_CNT}")
    a("v_mov_b32 v55, 1")
    a("s_mov_b64 exec, 1")
    a(f"ds_add_u32 v54, v55 offset:{C_UDONE}")
    a("s_mov_b64 exec, -1")
    a.label(P + "_end")

def lds_wait(a, coff, target, vaddr, vtmp, lab, sleep=1):
    a.label(lab)
    a(f"ds_read_b32 v{vtmp}, v{vaddr} offset:{coff}")
    a("s_waitcnt lgkmcnt(0)")
    a(f"v_readfirstlane_b32 s3, v{vtmp}")
    a(f"s_cmp_ge_u32 s3, {target}")
    a(f"s_cbranch_scc1 {lab}_ok")
    a(f"s_sleep {sleep}")
    a(f"s_sub_u32 s{SPIN}, s{SPIN}, 1")
    a(f"s_cbranch_scc0 {lab}")
    a(f"s_mov_b32 s{SPIN}, 0")
    a.label(lab + "_ok")

def lds_arrive(a, coff, vaddr, vtmp):
    a(f"v_mov_b32 v{vaddr}, {L_CNT}")
    a(f"v_mov_b32 v{vtmp}, 1")
    a("s_mov_b64 exec, 1")
    a(f"ds_add_u32 v{vaddr}, v{vtmp} offset:{coff}")
    a("s_mov_b64 exec, -1")

def dma_loop(a, lab, vaddr, n, dsrc, dlds):
    a("s_mov_b32 s36, %d" % n)
    a.label(lab)
    a("s_sub_u32 s36, s36, 1")
    a(f"buffer_load_dwordx4 v{vaddr}, s[{TR}:{TR+3}], s32 offen lds")
    a(f"s_add_u32 s32, s32, {dsrc}")
    a(f"s_add_u32 m0, m0, {dlds}")
    a("s_cmp_lg_u32 s36, 0")
    a(f"s_cbranch_scc1 {lab}")

def q_loop(a, acc, X4, W4, vxe, vxo, vw):
    def rd(j):
        k = j & 3
        a(f"ds_read_b128 {v(X4+4*k,4)}, v{vxo if j & 1 else vxe} offset:{(j>>1)*4096}")
        a(f"ds_read_b64_tr_b16 {v(W4+4*k,2)}, v{vw} offset:{j*2048}")
        a(f"ds_read_b64_tr_b16 {v(W4+4*k+2,2)}, v{vw} offset:{j*2048+512}")
    for j in range(4): rd(j)
    for j in range(28):
        left = min(3, 27 - j)
        a(f"s_waitcnt lgkmcnt({3*left})")
        c = "0" if j == 0 else v(acc, 16)
        a(f"{MF} {v(acc,16)}, {v(W4+4*(j&3),4)}, {v(X4+4*(j&3),4)}, {c}")
        if j + 4 < 28: rd(j + 4)

def gen_fused(a):
    name = NAME + "_kernel"
    a(f".globl {name}")
    a(".p2align 8")
    a(f".type {name},@function")
    a.label(name)
    END = "L_end"
    a("s_cmp_ge_u32 s2, 256")
    a(f"s_cbranch_scc1 {END}")
    a("s_load_dwordx16 s[64:79], s[0:1], 0")
    a("s_load_dwordx16 s[80:95], s[0:1], 64")
    a("s_load_dwordx4 s[96:99], s[0:1], 128")
    a("v_lshrrev_b32 v2, 6, v0")
    a("v_and_b32 v0, 63, v0")
    a(f"v_readfirstlane_b32 s{WV}, v2")
    a(f"v_mov_b32 v4, {L_CNT}")
    a("v_mov_b32 v5, 0")
    a("v_lshl_add_u32 v4, v0, 2, v4")
    a("ds_write_b32 v4, v5")
    a(f"s_and_b32 s{RB}, s2, 7")
    a(f"s_lshl_b32 s{RB}, s{RB}, 2")
    a(f"s_lshr_b32 s{J2}, s2, 3")
    a(f"s_and_b32 s3, s{J2}, 3")
    a(f"s_add_u32 s{RB}, s{RB}, s3")
    a(f"s_lshr_b32 s{J2}, s{J2}, 2")
    a("v_lshlrev_b32 v1, 4, v0")
    a(f"s_mov_b32 s{SPIN}, 0x100000")
    a(f"s_sub_u32 s{BW}, s{WV}, 8")
    pfA = Prof(a, 167)
    a("s_waitcnt lgkmcnt(0)")
    a("s_barrier")
    srd(a, WSR, S_WS, WS_SIZE)
    if PROF: a("v_mov_b32 v167, 0")
    pfA.stamp(0)
    if PROF:
        a("s_getreg_b32 s60, hwreg(HW_REG_XCC_ID)")
        a("v_writelane_b32 v167, s60, 20")
        a("s_getreg_b32 s60, hwreg(HW_REG_HW_ID)")
        a("v_writelane_b32 v167, s60, 21")
    a(f"s_cmp_ge_u32 s{WV}, 8")
    a("s_cbranch_scc1 p0_bgw")
    a(f"s_cmp_ge_u32 s{WV}, 4")
    a("s_cbranch_scc1 p0_kvw")
    srd(a, TR, S_X, XBYTES)
    xtile_lane_off(a, 3, 0, 4, 5)
    a(f"s_mul_i32 s32, s{RB}, {64*896}")
    a(f"s_lshr_b32 s3, s{WV}, 1")
    a(f"s_mul_i32 s3, s3, {32*896}")
    a("s_add_u32 s32, s32, s3")
    a(f"s_and_b32 s3, s{WV}, 1")
    a(f"s_mul_i32 s3, s3, {8*896}")
    a("s_add_u32 s32, s32, s3")
    a(f"s_lshl_b32 s34, s{WV}, 10")
    a("s_mov_b32 m0, s34")
    dma_loop(a, "p0_xdma", 3, 14, 64, 4096)
    pfA.stamp(1)
    xfrag_addr(a, 6, 0, 4)
    tr_rowcol(a, 12, 13, 0, 4)
    a(f"s_lshr_b32 s38, s{WV}, 1")
    a(f"s_and_b32 s39, s{WV}, 1")
    a("s_lshl_b32 s3, s38, 11")
    a("v_add_u32 v6, s3, v6")
    a("v_xor_b32 v7, 32, v6")
    a("v_lshlrev_b32 v10, 7, v12")
    a("v_lshl_add_u32 v10, v13, 1, v10")
    a("s_mul_i32 s3, s39, 56")
    a(f"s_add_u32 s3, s3, {L_WQ}")
    a("v_add_u32 v10, s3, v10")
    a("s_waitcnt vmcnt(0)")
    lds_arrive(a, C_XR, 4, 5)
    pfA.stamp(2)
    a("s_waitcnt lgkmcnt(0)")
    a("s_barrier")
    pfA.stamp(3)
    q_loop(a, 16, 32, 48, 6, 7, 10)
    a(f"s_mov_b32 s42, {hex(QSCALE)}")
    a(f"s_lshl_b32 s3, s{WV}, 11")
    a(f"s_add_u32 s3, s3, {L_QX}")
    a("v_add_u32 v12, s3, v1")
    a("s_nop 7")
    a("s_nop 0")
    for i in range(16): a(f"v_mul_f32 v{16+i}, s42, v{16+i}")
    for i in range(8): a(f"v_cvt_pk_bf16_f32 v{32+i}, v{16+2*i}, v{17+2*i}")
    a("s_mov_b32 exec_lo, 0")
    a("v_mov_b32 v38, 0")
    a("v_mov_b32 v39, 0")
    a("s_mov_b32 exec_lo, -1")
    a("ds_write_b128 v12, v[32:35]")
    a("ds_write_b128 v12, v[36:39] offset:1024")
    a("s_branch p0_b1")
    a.label("p0_kvw")
    a("s_getpc_b64 s[56:57]")
    a.label("p0_pc")
    a(f"s_sub_u32 s39, s{WV}, 4")
    a("s_lshl_b32 s3, s39, 13")
    a("v_lshlrev_b32 v150, 7, v0")
    a("v_add_u32 v150, s3, v150")
    a(f"s_sub_u32 s56, s56, p0_pc-{NAME}_kernel")
    a("s_subb_u32 s57, s57, 0")
    a(f"s_mov_b32 s3, L_end-{NAME}_kernel")
    a("v_min_u32 v150, s3, v150")
    a("global_load_dword v150, v150, s[56:57]")
    a("s_cmp_eq_u32 s39, 0")
    a("s_cbranch_scc0 p0_pf_out")
    a("v_lshlrev_b32 v151, 21, v0")
    a("s_mov_b64 exec, 7")
    a(f"buffer_load_dword v151, v151, s[{WSR}:{WSR+3}], 0 offen")
    a("s_mov_b64 exec, -1")
    a.label("p0_pf_out")
    a("s_cmp_eq_u32 s39, 1")
    a("s_cbranch_scc0 p0_pf_done")
    srd(a, 48, S_OUT, OUTBYTES)
    a("v_mul_u32_u24 v151, 0x1c0000, v0")
    a("s_mov_b64 exec, 7")
    a("buffer_load_dword v151, v151, s[48:51], 0 offen")
    a("s_mov_b64 exec, -1")
    if os.environ.get("S3") == "mall":
        a("s_cmp_eq_u32 s39, 3")
        a("s_cbranch_scc0 p0_pf_done")
        a("v_lshlrev_b32 v149, 7, v0")
        a(f"s_mul_i32 s3, s2, {13*128}")
        a(f"s_mov_b32 m0, {L_JUNK}")
        a("s_mov_b64 exec, 0x1fff")
        for sp in (S_CRE, S_CIM, S_WO):
            srd(a, 48, sp, WBYTES)
            a("buffer_load_dword v149, s[48:51], s3 offen lds")
        a("s_mov_b64 exec, -1")
    a.label("p0_pf_done")
    a(f"s_cmp_ge_u32 s{J2}, 3")
    a("s_cbranch_scc1 p0_kv_none")
    a("s_lshr_b32 s38, s39, 1")
    a("s_and_b32 s39, s39, 1")
    a(f"s_mov_b32 s15, {1 if 'dry' in X else 0}")
    a("s_setprio 3")
    a.label("p0_kv_setup")
    a(f"s_mov_b32 s8, s{WSR}")
    a(f"s_mov_b32 s9, s{WSR+1}")
    a("s_cmp_eq_u32 s15, 0")
    a(f"s_cselect_b32 s10, {WS_SIZE}, 0")
    a("s_mov_b32 s11, 0x00020000")
    xfrag_addr(a, 6, 0, 4)
    tr_rowcol(a, 12, 13, 0, 4)
    a("s_lshl_b32 s3, s38, 11")
    a("s_mul_i32 s41, s39, 28672")
    a("s_add_u32 s3, s3, s41")
    a("v_add_u32 v6, s3, v6")
    a("v_xor_b32 v7, 32, v6")
    a("s_mul_i32 s40, s39, 14")
    a(f"s_cmp_eq_u32 s{J2}, 2")
    a("s_cbranch_scc1 p0_kv_gaddr")
    a("v_mul_u32_u24 v10, 56, v12")
    a("v_lshl_add_u32 v10, v13, 1, v10")
    a(f"s_mul_i32 s3, s40, {16*56}")
    a(f"s_add_u32 s3, s3, {L_WKV}")
    a("v_add_u32 v10, s3, v10")
    a("v_add_u32 v11, 224, v10")
    a(f"s_mov_b32 s42, {16*56}")
    a("s_branch p0_kv_addr_done")
    a.label("p0_kv_gaddr")
    a("v_lshlrev_b32 v10, 3, v12")
    a("s_lshl_b32 s3, s40, 7")
    a(f"s_add_u32 s3, s3, {L_WKV}")
    a("v_add_u32 v10, s3, v10")
    a("v_add_u32 v11, 32, v10")
    a("s_mov_b32 s42, 128")
    a.label("p0_kv_addr_done")
    a(f"v_mov_b32 v4, {L_CNT}")
    a("s_cmp_lg_u32 s15, 0")
    a("s_cbranch_scc1 p0_xr_ok")
    lds_wait(a, C_XR, 8, 4, 5, "p0_xr")
    pfA.stamp(2)
    def kv_rd(i):
        a(f"ds_read_b128 {v(32+4*i,4)}, v{6+(i&1)} offset:{(i>>1)*4096}")
        a(f"ds_read_b64_tr_b16 {v(88+4*i,2)}, v10")
        a(f"ds_read_b64_tr_b16 {v(88+4*i+2,2)}, v11")
        if i < 13:
            a("v_add_u32 v10, s42, v10")
            a("v_add_u32 v11, s42, v11")
    def kv_mm(swap, tag):
        for i in range(4): kv_rd(i)
        for i in range(14):
            a(f"s_waitcnt lgkmcnt({3*min(3, 13-i)})")
            A, B = (32+4*i, 88+4*i) if swap else (88+4*i, 32+4*i)
            a(f"{MF} v[16:31], {v(A,4)}, {v(B,4)}, {'0' if i == 0 else 'v[16:31]'}")
            if i + 4 < 14: kv_rd(i + 4)
    a(f"s_cmp_ge_u32 s{J2}, 1")
    a("s_cbranch_scc1 p0_kv_swap")
    kv_mm(False, "k")
    a("s_branch p0_kv_mm_done")
    a.label("p0_kv_swap")
    kv_mm(True, "v")
    a.label("p0_kv_mm_done")
    pfA.stamp(22)
    a("s_lshl_b32 s3, s38, 12")
    a(f"s_add_u32 s3, s3, {L_QX}")
    a("v_add_u32 v12, s3, v1")
    a("s_nop 7")
    a("s_nop 0")
    a("s_cmp_lg_u32 s15, 0")
    a("s_cbranch_scc1 p0_kv_root")
    a("s_cmp_eq_u32 s39, 0")
    a("s_cbranch_scc1 p0_kv_root")
    for q in range(4): a(f"ds_write_b128 v12, {v(16+4*q,4)} offset:{q*1024}")
    a("s_waitcnt lgkmcnt(0)")
    a("s_lshl_b32 s3, s38, 2")
    a(f"v_mov_b32 v4, {L_CNT}")
    a("v_add_u32 v4, s3, v4")
    a("v_mov_b32 v5, 1")
    a("s_mov_b64 exec, 1")
    a(f"ds_add_u32 v4, v5 offset:{C_KVR}")
    a("s_mov_b64 exec, -1")
    a("s_branch p0_kv_none")
    a.label("p0_kv_root")
    a("s_lshl_b32 s3, s38, 2")
    a(f"v_mov_b32 v4, {L_CNT}")
    a("v_add_u32 v4, s3, v4")
    a("s_cmp_lg_u32 s15, 0")
    a("s_cbranch_scc1 p0_kvr_ok")
    lds_wait(a, C_KVR, 1, 4, 5, "p0_kvr")
    pfA.stamp(23)
    for i in range(4): a(f"ds_read_b128 {v(32+4*i,4)}, v12 offset:{i*1024}")
    a("s_waitcnt lgkmcnt(0)")
    for r in range(16): a(f"v_add_f32 v{16+r}, v{16+r}, v{32+r}")
    a(f"s_lshl_b32 s43, s{RB}, 1")
    a("s_add_u32 s43, s43, s38")
    a(f"s_cmp_eq_u32 s{J2}, 2")
    a("s_cbranch_scc1 p0_gate_epi")
    for i in range(8): a(f"v_cvt_pk_bf16_f32 v{32+i}, v{16+2*i}, v{17+2*i}")
    a("s_lshl_b32 s44, s43, 12")
    a(f"s_add_u32 s44, s44, {WS_KV}")
    a(f"s_cmp_eq_u32 s{J2}, 1")
    a("s_cbranch_scc1 p0_v_epi")
    a("s_mov_b32 exec_lo, 0")
    a("v_mov_b32 v38, 0x3f803f80")
    a("v_mov_b32 v39, 0x00003f80")
    a("s_mov_b32 exec_lo, -1")
    a(f"buffer_store_dwordx4 v[32:35], v1, s[8:11], s44 offen{SC1}")
    a(f"buffer_store_dwordx4 v[36:39], v1, s[8:11], s44 offen offset:1024{SC1}")
    a("s_branch p0_kv_arrive")
    a.label("p0_v_epi")
    a("v_max3_f32 v14, |v16|, |v17|, |v18|")
    for j in range(3, 15, 2): a(f"v_max3_f32 v14, v14, |v{16+j}|, |v{17+j}|")
    a("v_max_f32 v14, v14, |v31|")
    a("v_and_b32 v13, 31, v0")
    a("v_cmp_gt_u32 s[46:47], 28, v13")
    a(f"v_cmp_lt_f32 vcc, {hex(VMAX)}, v14")
    a("s_and_b64 vcc, vcc, s[46:47]")
    a("s_cbranch_vccz p0_v_ok")
    a("s_cmp_lg_u32 s15, 0")
    a("s_cbranch_scc1 p0_v_ok")
    srd(a, 48, S_DBG, 256)
    a("v_mov_b32 v14, 1")
    a(f"v_mov_b32 v15, {D_BAD}")
    a("s_mov_b64 exec, 1")
    a(f"buffer_store_dword v14, v15, s[48:51], 0 offen{SC1}")
    a("s_mov_b64 exec, -1")
    a.label("p0_v_ok")
    a("v_and_b32 v13, 31, v0")
    a("v_cmp_eq_u32 vcc, 28, v13")
    a("v_mov_b32 v14, 0x3f803f80")
    a("s_nop 0")
    a("v_cndmask_b32 v14, 0, v14, vcc")
    a("v_cmp_lt_u32 vcc, 27, v13")
    a("s_nop 1")
    for i in range(8): a(f"v_cndmask_b32 v{32+i}, v{32+i}, v14, vcc")
    a(f"buffer_store_dwordx4 v[32:35], v1, s[8:11], s44 offen offset:2048{SC1}")
    a(f"buffer_store_dwordx4 v[36:39], v1, s[8:11], s44 offen offset:3072{SC1}")
    a("s_branch p0_kv_arrive")
    a.label("p0_gate_epi")
    a(f"s_mov_b32 s42, {hex(LOG2E)}")
    for i in range(16): a(f"v_mul_f32 v{16+i}, s42, v{16+i}")
    for i in range(16): a(f"v_exp_f32 v{16+i}, -v{16+i}")
    for i in range(16): a(f"v_add_f32 v{16+i}, 1.0, v{16+i}")
    for i in range(16): a(f"v_rcp_f32 v{16+i}, v{16+i}")
    a("v_lshrrev_b32 v13, 5, v0")
    a("v_lshlrev_b32 v13, 6, v13")
    a("s_lshl_b32 s44, s43, 7")
    a(f"s_add_u32 s44, s44, {WS_G}")
    a("v_and_b32 v14, 31, v0")
    a("v_cmp_eq_u32 vcc, 0, v14")
    a("s_and_saveexec_b64 s[46:47], vcc")
    for q in range(4):
        a(f"buffer_store_dwordx4 {v(16+4*q,4)}, v13, s[8:11], s44 offen offset:{16*q}{SC1}")
    a("s_mov_b64 exec, -1")
    a.label("p0_kv_arrive")
    a("s_cmp_eq_u32 s15, 0")
    a("s_cbranch_scc1 p0_kv_real")
    a("s_mov_b32 s15, 0")
    a("s_branch p0_kv_setup")
    a.label("p0_kv_real")
    pfA.stamp(10)
    a("s_mov_b32 s16, 1")
    a("s_branch p0_kv_b0")
    a.label("p0_kv_none")
    a("s_mov_b32 s16, 0")
    a.label("p0_kv_b0")
    a("s_setprio 0")
    a("s_waitcnt lgkmcnt(0)")
    a("s_barrier")
    pfA.stamp(3)
    a("s_branch p0_b1")
    a.label("p0_bgw")
    a(f"s_cmp_eq_u32 s{WV}, 8")
    a("s_cbranch_scc0 p0_t9")
    srd(a, 48, S_X, XBYTES)
    a("s_and_b32 s3, s2, 7")
    a(f"s_mul_i32 s3, s3, {256*896}")
    a("s_lshr_b32 s46, s2, 3")
    a("s_mul_i32 s46, s46, 7168")
    a("s_add_u32 s3, s3, s46")
    a("v_lshlrev_b32 v50, 7, v0")
    a("s_mov_b32 exec_hi, 0xffffff")
    a("buffer_load_dword v52, v50, s[48:51], s3 offen")
    a("s_mov_b64 exec, -1")
    a("s_branch p0_t_done")
    a.label("p0_t9")
    a(f"s_cmp_eq_u32 s{WV}, 9")
    a("s_cbranch_scc0 p0_t10")
    touch_matrix(a, S_WQ, 52, 50)
    a("s_branch p0_t_done")
    a.label("p0_t10")
    a(f"s_cmp_eq_u32 s{WV}, 10")
    a("s_cbranch_scc0 p0_t_done")
    a("s_lshr_b32 s3, s2, 3")
    a(f"s_mul_i32 s3, s3, {7*128}")
    a("v_lshlrev_b32 v50, 7, v0")
    a("s_mov_b64 exec, 0x7f")
    srd(a, 48, S_WK, WKBYTES)
    a("buffer_load_dword v52, v50, s[48:51], s3 offen")
    srd(a, 48, S_WV, WKBYTES)
    a("buffer_load_dword v53, v50, s[48:51], s3 offen")
    a("s_mov_b64 exec, -1")
    a.label("p0_t_done")
    a(f"s_cmp_eq_u32 s{WV}, 11")
    a("s_cbranch_scc0 p0_nononce")
    a("s_cmp_eq_u32 s2, 0")
    a("s_cbranch_scc0 p0_nononce")
    srd(a, 48, S_DBG, 256)
    a("v_mov_b32 v7, 0")
    a("s_memrealtime s[60:61]")
    a("s_waitcnt lgkmcnt(0)")
    a("s_and_b32 s60, s60, 0xfffffffc")
    a("s_or_b32 s60, s60, 1")
    a("v_mov_b32 v6, s60")
    a("s_mov_b64 exec, 1")
    a(f"buffer_store_dword v6, v7, s[48:51], 0 offen offset:{D_NONCE}{SC1}")
    a("s_mov_b64 exec, -1")
    a("s_waitcnt vmcnt(0)")
    a.label("p0_nononce")
    a(f"s_cmp_lt_u32 s{J2}, 2")
    a("s_cbranch_scc1 p0_dma_wkv")
    a(f"s_cmp_eq_u32 s{J2}, 2")
    a("s_cbranch_scc0 p0_wkv_done")
    a(f"s_cmp_eq_u32 s{WV}, 8")
    a("s_cbranch_scc0 p0_wkv_done")
    srd(a, TR, S_GW, 896)
    a("v_lshlrev_b32 v3, 1, v0")
    for i in range(7):
        a(f"buffer_load_ushort v{10+i}, v3, s[{TR}:{TR+3}], 0 offen offset:{i*128}")
    a("v_lshlrev_b32 v4, 3, v0")
    a(f"v_add_u32 v4, {L_WKV}, v4")
    a("s_waitcnt vmcnt(0)")
    for i in range(7):
        a(f"v_lshl_or_b32 v{20+2*i}, v{10+i}, 16, v{10+i}")
        a(f"v_mov_b32 v{21+2*i}, v{20+2*i}")
        a(f"ds_write_b64 v4, {v(20+2*i,2)} offset:{i*512}")
    a("s_branch p0_wkv_done")
    a.label("p0_dma_wkv")
    a(f"s_cmp_eq_u32 s{J2}, 0")
    a(f"s_cselect_b32 s{TR}, s{S_WK}, s{S_WV}")
    a(f"s_cselect_b32 s{TR+1}, s{S_WK+1}, s{S_WV+1}")
    a(f"s_mov_b32 s{TR+2}, {WKBYTES}")
    a(f"s_mov_b32 s{TR+3}, 0x00020000")
    a("v_lshlrev_b32 v3, 4, v0")
    a(f"s_mul_i32 s32, s{BW}, 7168")
    a(f"s_add_u32 s34, s32, {L_WKV}")
    a("s_mov_b32 m0, s34")
    dma_loop(a, "p0_wdma", 3, 7, 1024, 1024)
    a.label("p0_wkv_done")
    a(f"s_lshl_b32 s37, s{J2}, 1")
    a(f"s_and_b32 s3, s{BW}, 1")
    a("s_add_u32 s37, s37, s3")
    a("v_and_b32 v4, 31, v0")
    a("s_lshl_b32 s3, s37, 6")
    a("v_lshl_add_u32 v4, v4, 1, s3")
    srd(a, 40, S_LRE, 896); a("buffer_load_ushort v8, v4, s[40:43], 0 offen")
    srd(a, 44, S_LIM, 896); a("buffer_load_ushort v9, v4, s[44:47], 0 offen")
    srd(a, 52, S_LDT, 896); a("buffer_load_ushort v10, v4, s[52:55], 0 offen")
    a("s_waitcnt vmcnt(3) lgkmcnt(0)")
    lds_arrive(a, C_XR, 4, 5)
    srd(a, TR, S_WQ, WBYTES)
    a("v_lshrrev_b32 v3, 3, v0")
    a("v_mul_u32_u24 v3, 896, v3")
    a("v_and_b32 v4, 7, v0")
    a("v_lshl_add_u32 v3, v4, 4, v3")
    a(f"s_mul_i32 s32, s{BW}, {112*896}")
    a(f"s_mul_i32 s33, s{J2}, 112")
    a("s_add_u32 s32, s32, s33")
    a(f"s_mul_i32 s34, s{BW}, 14336")
    a(f"s_add_u32 s34, s34, {L_WQ}")
    a("s_mov_b32 m0, s34")
    dma_loop(a, "p0_qdma", 3, 14, 7168, 1024)
    a(f"s_cmp_gt_u32 s{WV}, 9")
    a("s_cbranch_scc1 p0_nob")
    a(f"s_cmp_eq_u32 s{WV}, 8")
    a(f"s_cselect_b32 s56, s{S_BRE}, s{S_BIM}")
    a(f"s_cselect_b32 s57, s{S_BRE+1}, s{S_BIM+1}")
    touch_matrix(a, 56, 52, 50)
    a("s_mov_b32 s17, 1")
    a("s_waitcnt vmcnt(16)")
    a("s_branch p0_nob2")
    a.label("p0_nob")
    a("s_mov_b32 s17, 0")
    a("s_waitcnt vmcnt(14)")
    a.label("p0_nob2")
    a(f"v_mov_b32 v4, {L_CNT}")
    lds_wait(a, C_XR, 8, 4, 5, "p0_xr2")
    xfrag_addr(a, 6, 0, 4)
    a(f"s_lshr_b32 s38, s{BW}, 1")
    a("s_lshl_b32 s3, s38, 11")
    a("v_add_u32 v6, s3, v6")
    a("v_xor_b32 v7, 32, v6")
    for j in range(28):
        a(f"ds_read_b128 {v(56+4*j,4)}, v{6 + (j&1)} offset:{(j>>1)*4096}")
        if j in (11, 21): a("s_waitcnt lgkmcnt(2)")
    a("v_lshlrev_b32 v8, 16, v8")
    a("v_lshlrev_b32 v9, 16, v9")
    a("v_lshlrev_b32 v10, 16, v10")
    a(f"v_mul_f32 v10, {hex(LOG2E)}, v10")
    a("v_exp_f32 v10, v10")
    a("s_nop 0")
    a("v_cvt_pk_bf16_f32 v10, v10, v10")
    a("v_lshlrev_b32 v10, 16, v10")
    a("v_mul_f32 v11, v10, v8")
    a("v_mul_f32 v12, v10, v9")
    a(f"v_mul_f32 v11, {hex(LOG2E)}, v11")
    a(f"v_mul_f32 v12, {hex(INV2PI)}, v12")
    a("v_exp_f32 v13, v11")
    a("v_fract_f32 v14, v12")
    a("s_nop 0")
    a("v_cos_f32 v2, v14")
    a("v_sin_f32 v3, v14")
    a("s_nop 0")
    a("v_mul_f32 v2, v2, v13")
    a("v_mul_f32 v3, v3, v13")
    a("v_add_f32 v13, -1.0, v2")
    a("v_mul_f32 v14, v8, v8")
    a("v_fma_f32 v14, v9, v9, v14")
    a("v_rcp_f32 v14, v14")
    a("v_mul_f32 v15, v13, v8")
    a("v_fma_f32 v15, v3, v9, v15")
    a("v_mul_f32 v16, v3, v8")
    a("v_fma_f32 v16, -v13, v9, v16")
    a("v_mul_f32 v4, v15, v14")
    a("v_mul_f32 v5, v16, v14")
    a("s_cmp_eq_u32 s17, 0")
    a("s_cbranch_scc1 p0_bgw0")
    a("s_waitcnt vmcnt(2) lgkmcnt(0)")
    a("s_branch p0_bgw1")
    a.label("p0_bgw0")
    a("s_waitcnt vmcnt(0) lgkmcnt(0)")
    a.label("p0_bgw1")
    a("s_barrier")
    a.label("p0_b1")
    a("s_waitcnt lgkmcnt(0)")
    if PROF:
        a(f"s_cmp_ge_u32 s{WV}, 8")
        a("s_cbranch_scc1 p0_b1_bgst")
        pfA.stamp(9)
        a("s_branch p0_b1_go")
        a.label("p0_b1_bgst")
        BgProf(a).stamp(4)
        a.label("p0_b1_go")
    a("s_barrier")
    a(f"s_cmp_ge_u32 s{WV}, 8")
    a("s_cbranch_scc1 p1_bg")
    a(f"s_cmp_lt_u32 s{WV}, 4")
    a("s_cbranch_scc1 p1_noarr")
    a("s_cmp_eq_u32 s16, 0")
    a("s_cbranch_scc1 p1_noarr")
    a(f"v_mov_b32 v14, {L_CNT}")
    a("v_mov_b32 v15, 1")
    a("s_waitcnt vmcnt(0)")
    pfA.stamp(11)
    a("s_mov_b64 exec, 1")
    a(f"ds_add_rtn_u32 v15, v14, v15 offset:{C_KVA}")
    a("s_waitcnt lgkmcnt(0)")
    a("v_readfirstlane_b32 s3, v15")
    a("s_cmp_eq_u32 s3, 1")
    a("s_cbranch_scc0 p1_arrdone")
    srd(a, 48, S_DBG, 256)
    a("v_mov_b32 v14, 1")
    a(f"s_cmp_eq_u32 s{J2}, 2")
    a(f"s_cselect_b32 s3, {D_GCNT}, {D_CNT}")
    a("v_mov_b32 v15, s3")
    a("buffer_atomic_add v14, v15, s[48:51], 0 offen sc0 sc1")
    a("s_waitcnt vmcnt(0)")
    a("v_readfirstlane_b32 s3, v14")
    a(f"s_cmp_eq_u32 s{J2}, 2")
    a("s_cselect_b32 s46, 31, 63")
    a(f"s_mov_b32 s47, {D_GO}")
    a(f"s_cselect_b32 s47, {D_GOG}, s47")
    a("s_cmp_eq_u32 s3, s46")
    a("s_cbranch_scc0 p1_arrdone")
    a("v_mov_b32 v14, 1")
    a("v_mov_b32 v15, s47")
    a(f"buffer_store_dword v14, v15, s[48:51], 0 offen{SC1}")
    a.label("p1_arrdone")
    a("s_mov_b64 exec, -1")
    pfA.stamp(12)
    a.label("p1_noarr")
    if PROF: a("v_mov_b32 v0, v167")
    pf = Prof(a, 0)
    pf.stamp(4)
    gen_attention(a, pf)
    pf.flush(2)
    a(f"s_branch {END}")
    a.label("p1_bg")
    a("s_setprio 3")
    gen_background(a, BgProf(a))
    a.label(END)
    a("s_endpgm")
    return name

class BgProf:
    def __init__(self, a): self.a = a; self.T = [54, 55]
    def stamp(self, slot):
        if not PROF or "noprofb" in X: return
        if "onlyb" in os.environ and str(slot) not in os.environ["onlyb"].split(","): return
        a = self.a
        a("s_memrealtime s[60:61]")
        a("s_lshl_b32 s62, s2, 4")
        a(f"s_add_u32 s62, s62, s{WV}")
        a("s_lshl_b32 s62, s62, 8")
        a(f"s_add_u32 s62, s62, {WS_PROF + 4*slot}")
        a("s_waitcnt vmcnt(0) lgkmcnt(0)")
        a("s_mov_b64 exec, 1")
        t0, t1 = self.T
        a(f"v_mov_b32 v{t0}, s60")
        a(f"v_mov_b32 v{t1}, 0")
        a(f"buffer_store_dword v{t0}, v{t1}, s[{WSR}:{WSR+3}], s62 offen")
        a("s_mov_b64 exec, -1")
        a("s_waitcnt vmcnt(0)")
    def flush(self): pass

def build():
    a = Asm()
    name = gen_fused(a)
    text = a.text()
    probs = check_hazards(text)
    ref = open("gated_mix__grouped_kv_mqa__ssm_conv_s5__prompt.s.ref").read().split("\n")
    pre = []
    for ln in ref:
        if not ln.startswith(";"): break
        if "Override launch" in ln or "grid=ceil" in ln or "@launch" in ln: continue
        pre.append(ln)
    head = "\n".join(pre) + "\n"
    head += f"; @launch grid=(256,1,1) block=(768,1,1) lds={LDS_TOTAL}\n"
    out = head + '.amdgcn_target "amdgcn-amd-amdhsa--gfx950"\n.text\n' + text
    out += f""".section .rodata,"a"
.p2align 6
.amdhsa_kernel {name}
  .amdhsa_next_free_vgpr 168
  .amdhsa_next_free_sgpr 102
  .amdhsa_accum_offset 168
  .amdhsa_group_segment_fixed_size 0
  .amdhsa_kernarg_size 144
  .amdhsa_user_sgpr_count 2
  .amdhsa_user_sgpr_kernarg_segment_ptr 1
  .amdhsa_system_sgpr_workgroup_id_x 1
.end_amdhsa_kernel
"""
    return out, probs

if __name__ == "__main__":
    out, probs = build()
    open(sys.argv[1], "w").write(out)
    print("wrote", sys.argv[1], "hazards:", len(probs))
```

```python
import sys, os, struct, math
from asmlib import Asm, v, s, check_hazards

NAME = "gated_mix__grouped_kv_mqa__ssm_conv_s5__prompt"
X = set(os.environ.get('XF', '').split(','))
PROF = "prof" in X
def f2u(x): return struct.unpack("<I", struct.pack("<f", x))[0]
QSCALE = f2u(math.log2(math.e) / math.sqrt(28.0))
LOG2E = f2u(math.log2(math.e))
INV2PI = f2u(1.0 / (2.0 * math.pi))
MF = "v_mfma_f32_32x32x16_bf16"
SC1 = " sc1"
POLLSLEEP = int(os.environ.get('PS', '1'))

WS_KV = 0x000000
WS_G  = 0x040000
WS_FL = 0x042000
FL_H  = WS_FL
FL_O  = WS_FL + 0x1000
WS_E  = 0x048000
D_CNT, D_GCNT, D_GO, D_NONCE, D_GOG, D_BAD = 0, 64, 128, 132, 136, (4 if 'cntpoll' in X else 140)
WS_OF = 0x080000
WS_HF = 0x280000
WS_PROF = 0x800000
WS_SIZE = 0x1000000
XBYTES = 2048 * 448 * 2
WBYTES = 448 * 448 * 2
WKBYTES = 448 * 28 * 2
OUTBYTES = 2048 * 448 * 4

S_X, S_WQ, S_WK, S_WV, S_WO = 64, 66, 68, 70, 72
S_LRE, S_LIM = 76, 78
S_BRE, S_BIM, S_CRE, S_CIM, S_LDT, S_DSK, S_GW, S_OUT = 80, 82, 84, 86, 88, 90, 92, 94
S_DBG, S_WS = 96, 98
RB, J2, WV, BW = 20, 21, 22, 23
WSR = 24
TR = 28
NONCE = 19
SPIN = 18

L_X = 0; L_WQ = 57344; L_WKV = 114688; L_GW = 143360
L_QX = 147456
L_CNT = 163584
C_ATT, C_BG, C_NONCE, C_BAD, C_UDONE, C_HCNT, C_OCNT, C_XR, C_KVR, C_KVA, C_TRD, C_LEND, C_BL = 0, 4, 8, 12, 16, 20, 24, 28, 32, 40, 44, 48, 52
B_EX = 159744; B_HT = 65536
B_HT2 = 69632
L_C = 0
L_RED = 0
L_WO = 0
A_OP = 90112; A_LP = 155648
LDS_TOTAL = 163840

def srd(a, dst, src, nbytes):
    a(f"s_mov_b32 s{dst}, s{src}")
    a(f"s_mov_b32 s{dst+1}, s{src+1}")
    a(f"s_mov_b32 s{dst+2}, {hex(nbytes)}")
    a(f"s_mov_b32 s{dst+3}, 0x00020000")

class Prof:
    def __init__(self, a, vreg): self.a = a; self.v = vreg
    def stamp(self, slot):
        if not PROF or "noprofa" in X: return
        a = self.a
        a("s_memrealtime s[60:61]")
        a("s_memtime s[62:63]")
        a("s_waitcnt lgkmcnt(0)")
        a(f"v_writelane_b32 v{self.v}, s60, {slot}")
        a(f"v_writelane_b32 v{self.v}, s62, {slot+32}")
    def flush(self, vt):
        if not PROF: return
        a = self.a
        a("s_lshl_b32 s60, s2, 4")
        a(f"s_add_u32 s60, s60, s{WV}")
        a("s_lshl_b32 s60, s60, 8")
        a(f"s_add_u32 s60, s60, {WS_PROF}")
        a("s_mov_b64 exec, -1")
        a(f"v_mbcnt_lo_u32_b32 v{vt}, -1, 0")
        a(f"v_mbcnt_hi_u32_b32 v{vt}, -1, v{vt}")
        a(f"v_lshlrev_b32 v{vt}, 2, v{vt}")
        a(f"buffer_store_dword v{self.v}, v{vt}, s[{WSR}:{WSR+3}], s60 offen")
        a("s_waitcnt vmcnt(0)")

def xtile_lane_off(a, vd, vlane, vt0, vt1):
    a(f"v_lshrrev_b32 v{vt0}, 4, v{vlane}")
    a(f"v_and_b32 v{vt1}, 1, v{vt0}")
    a(f"v_lshlrev_b32 v{vt1}, 4, v{vt1}")
    a(f"v_lshrrev_b32 v{vd}, 5, v{vlane}")
    a(f"v_lshl_add_u32 v{vt1}, v{vd}, 2, v{vt1}")
    a(f"v_bfe_u32 v{vd}, v{vlane}, 2, 2")
    a(f"v_add_u32 v{vt1}, v{vt1}, v{vd}")
    a(f"v_mul_u32_u24 v{vt1}, 896, v{vt1}")
    a(f"v_and_b32 v{vd}, 3, v{vlane}")
    a(f"v_xor_b32 v{vd}, v{vd}, v{vt0}")
    a(f"v_lshl_add_u32 v{vd}, v{vd}, 4, v{vt1}")

def plain_lane_off(a, vd, vlane, vt0):
    a(f"v_lshrrev_b32 v{vt0}, 4, v{vlane}")
    a(f"v_and_b32 v{vd}, 3, v{vlane}")
    a(f"v_xor_b32 v{vd}, v{vd}, v{vt0}")
    a(f"v_lshlrev_b32 v{vd}, 4, v{vd}")
    a(f"v_lshrrev_b32 v{vt0}, 2, v{vlane}")
    a(f"v_mul_u32_u24 v{vt0}, 896, v{vt0}")
    a(f"v_add_u32 v{vd}, v{vd}, v{vt0}")

def xfrag_addr(a, vd, vlane, vt0):
    a(f"v_bfe_u32 v{vt0}, v{vlane}, 2, 2")
    a(f"v_lshrrev_b32 v{vd}, 5, v{vlane}")
    a(f"v_xor_b32 v{vt0}, v{vt0}, v{vd}")
    a(f"v_lshlrev_b32 v{vt0}, 4, v{vt0}")
    a(f"v_and_b32 v{vd}, 31, v{vlane}")
    a(f"v_lshl_add_u32 v{vd}, v{vd}, 6, v{vt0}")

def tr_rowcol(a, vrow, vcol, vlane, vt):
    a(f"v_lshrrev_b32 v{vrow}, 5, v{vlane}")
    a(f"v_lshlrev_b32 v{vrow}, 3, v{vrow}")
    a(f"v_bfe_u32 v{vt}, v{vlane}, 2, 2")
    a(f"v_add_u32 v{vrow}, v{vrow}, v{vt}")
    a(f"v_and_b32 v{vcol}, 16, v{vlane}")
    a(f"v_and_b32 v{vt}, 3, v{vlane}")
    a(f"v_lshl_add_u32 v{vcol}, v{vt}, 2, v{vcol}")

def proj_loop(a, swap, acc, xe, xo, we, wo_, vxe, vxo, vw1, vw2, s_wstep, s_cnt, lab):
    def rd(xr, wr, vx):
        a(f"ds_read_b128 {v(xr,4)}, v{vx}")
        a(f"ds_read_b64_tr_b16 {v(wr,2)}, v{vw1}")
        a(f"ds_read_b64_tr_b16 {v(wr+2,2)}, v{vw2}")
        a(f"v_add_u32 v{vx}, 0x1000, v{vx}")
        a(f"v_add_u32 v{vw1}, s{s_wstep}, v{vw1}")
        a(f"v_add_u32 v{vw2}, s{s_wstep}, v{vw2}")
    def mf(x, w):
        A, B = (x, w) if swap else (w, x)
        a(f"{MF} {v(acc,16)}, {v(A,4)}, {v(B,4)}, {v(acc,16)}")
    rd(xe, we, vxe); rd(xo, wo_, vxo)
    a(f"s_mov_b32 s{s_cnt}, 14")
    a.label(lab)
    a("s_waitcnt lgkmcnt(3)")
    mf(xe, we)
    rd(xe, we, vxe)
    a("s_waitcnt lgkmcnt(3)")
    mf(xo, wo_)
    rd(xo, wo_, vxo)
    a(f"s_sub_u32 s{s_cnt}, s{s_cnt}, 1")
    a(f"s_cmp_lg_u32 s{s_cnt}, 0")
    a(f"s_cbranch_scc1 {lab}")
    a("s_waitcnt lgkmcnt(0)")

def sw_barrier(a, coff, s_tgt, n, vaddr, vtmp, lab):
    a(f"s_add_u32 s{s_tgt}, s{s_tgt}, {n}")
    a(f"v_mov_b32 v{vtmp}, 1")
    a("s_waitcnt lgkmcnt(0)")
    a("s_mov_b64 exec, 1")
    a(f"ds_add_u32 v{vaddr}, v{vtmp} offset:{coff}")
    a("s_mov_b64 exec, -1")
    a.label(lab)
    a(f"ds_read_b32 v{vtmp}, v{vaddr} offset:{coff}")
    a("s_waitcnt lgkmcnt(0)")
    a(f"v_readfirstlane_b32 s3, v{vtmp}")
    a(f"s_cmp_ge_u32 s3, s{s_tgt}")
    a(f"s_cbranch_scc1 {lab}_ok")
    a("s_sleep 1")
    a(f"s_sub_u32 s{SPIN}, s{SPIN}, 1")
    a(f"s_cbranch_scc0 {lab}")
    a(f"s_mov_b32 s{SPIN}, 0")
    a.label(lab + "_ok")

def flag_store(a, soff_reg, vt0, vt1, val=None):
    a("s_mov_b64 exec, 1")
    a(f"v_mov_b32 v{vt0}, s{val if val is not None else NONCE}")
    a(f"v_mov_b32 v{vt1}, 0")
    a(f"buffer_store_dword v{vt0}, v{vt1}, s[{WSR}:{WSR+3}], s{soff_reg} offen{SC1}")
    a("s_mov_b64 exec, -1")

def arrive_flag(a, coff, n, soff_reg, vt0, vt1, lab):
    a(f"v_mov_b32 v{vt0}, {L_CNT}")
    a(f"v_mov_b32 v{vt1}, 1")
    a("s_waitcnt vmcnt(0)")
    a("s_mov_b64 exec, 1")
    a(f"ds_add_rtn_u32 v{vt1}, v{vt0}, v{vt1} offset:{coff}")
    a("s_waitcnt lgkmcnt(0)")
    a(f"v_readfirstlane_b32 s60, v{vt1}")
    a("s_mov_b64 exec, -1")
    a(f"s_cmp_eq_u32 s60, {n-1}")
    a(f"s_cbranch_scc0 {lab}")
    flag_store(a, soff_reg, vt0, vt1)
    a.label(lab)

def poll(a, lab, vdst, voff, soff_reg, mask_pair, sleep=None):
    sleep = POLLSLEEP if sleep is None else sleep
    a.label(lab)
    a(f"buffer_load_dword v{vdst}, v{voff}, s[{WSR}:{WSR+3}], s{soff_reg} offen{SC1}")
    a("s_waitcnt vmcnt(0)")
    a(f"v_cmp_ne_u32 vcc, s{NONCE}, v{vdst}")
    a(f"s_and_b64 vcc, vcc, s[{mask_pair}:{mask_pair+1}]")
    a(f"s_cbranch_vccz {lab}_ok")
    a(f"s_sleep {sleep}")
    a(f"s_sub_u32 s{SPIN}, s{SPIN}, 1")
    a(f"s_cbranch_scc0 {lab}")
    a(f"s_mov_b32 s{SPIN}, 0")
    a.label(lab + "_ok")

def cfma(a, hr, hi, lr, li, ur, ui, tr, ti):
    a(f"v_fma_f32 v{tr}, -v{li}, v{hi}, v{ur}")
    a(f"v_fma_f32 v{ti}, v{li}, v{hr}, v{ui}")
    a(f"v_fma_f32 v{hr}, v{lr}, v{hr}, v{tr}")
    a(f"v_fma_f32 v{hi}, v{lr}, v{hi}, v{ti}")

L_JUNK = 161792
def touch_matrix(a, sptr, vdst, vt, sr=48):
    srd(a, sr, sptr, WBYTES)
    a("s_lshr_b32 s3, s2, 3")
    a(f"s_mul_i32 s3, s3, {98*128}")
    a(f"v_lshlrev_b32 v{vt}, 7, v0")
    a(f"s_mov_b32 m0, {L_JUNK}")
    a("s_nop 0")
    a(f"buffer_load_dword v{vt}, s[{sr}:{sr+3}], s3 offen lds")
    a("s_add_u32 s3, s3, 8192")
    a("s_mov_b32 exec_hi, 3")
    a(f"buffer_load_dword v{vt}, s[{sr}:{sr+3}], s3 offen lds")
    a("s_mov_b64 exec, -1")

AQ, AO, AS, AK, AV, APB = 8, 40, [104, 120], [136, 144], [152, 160], 4

def att_unit(a, u, side):
    up = u - 1; un = u + 1
    cur = AS[u & 1]; prv = AS[(u + 1) & 1]
    Vp = AV[(up >> 2) & 1]; Op = AO + 16 * (up & 3)
    Kn = AK[(un >> 2) & 1]; Qn = AQ + 8 * (un & 3)
    side = list(side)
    def E(lo, hi):
        for j in range(lo, hi):
            a(f"v_exp_f32 v{cur+j}, v{cur+j}")
            if side:
                x = side.pop(0)
                if x: a(x)
    while side and isinstance(side[0], tuple):
        a(side.pop(0)[1])
    a(f"{MF} {v(Op,16)}, {v(Vp,4)}, {v(prv,4)}, {v(Op,16)}")
    E(0, 4)
    a(f"v_cvt_pk_bf16_f32 v{APB+2}, v{prv+12}, v{prv+13}")
    a(f"v_cvt_pk_bf16_f32 v{APB+3}, v{prv+14}, v{prv+15}")
    a(f"{MF} {v(prv,16)}, {v(Kn,4)}, {v(Qn,4)}, 0")
    E(4, 8)
    a(f"v_cvt_pk_bf16_f32 v{cur}, v{cur}, v{cur+1}")
    a(f"v_cvt_pk_bf16_f32 v{cur+1}, v{cur+2}, v{cur+3}")
    a(f"{MF} {v(prv,16)}, {v(Kn+4,4)}, {v(Qn+4,4)}, {v(prv,16)}")
    E(8, 12)
    a(f"v_cvt_pk_bf16_f32 v{cur+2}, v{cur+4}, v{cur+5}")
    a(f"v_cvt_pk_bf16_f32 v{cur+3}, v{cur+6}, v{cur+7}")
    a(f"{MF} {v(Op,16)}, {v(Vp+4,4)}, {v(APB,4)}, {v(Op,16)}")
    E(12, 16)
    a(f"v_cvt_pk_bf16_f32 v{APB}, v{cur+8}, v{cur+9}")
    a(f"v_cvt_pk_bf16_f32 v{APB+1}, v{cur+10}, v{cur+11}")
    assert not side, side

L_SH = 162048
LMAX = f2u(2.0 ** 90) if "forcefb" not in X else f2u(2.0 ** -20)
VMAX = f2u(2.0 ** 20)

def gen_attention(a, pf):
    P = "att"
    KR = TR
    a(f"v_add_u32 v2, {L_QX}, v1")
    for g in range(4):
        a(f"ds_read_b128 {v(AQ+8*g,4)}, v2 offset:{g*2048}")
        a(f"ds_read_b128 {v(AQ+8*g+4,4)}, v2 offset:{g*2048+1024}")
    a(f"s_add_u32 s{KR}, s{WSR}, {WS_KV}")
    a(f"s_addc_u32 s{KR+1}, s{WSR+1}, 0")
    a(f"s_mov_b32 s{KR+3}, 0x00020000")
    a("s_mov_b32 s44, 0")
    a("s_mov_b32 s51, 0")
    a(f"s_cmp_lt_u32 s{WV}, 4")
    a("s_cselect_b32 s53, 1, -1")
    a(f"s_cmp_eq_u32 s{WV}, 0")
    a(f"s_cbranch_scc0 {P}_nopoll")
    srd(a, 56, S_DBG, 256)
    if "cntpoll" in X:
        a(f"s_cmp_eq_u32 s{J2}, 7")
        a(f"s_cbranch_scc1 {P}_nobl")
        a(f"v_mov_b32 v3, {L_CNT}")
        lds_wait(a, C_BL, 1, 3, 2, P + "_bl", sleep=2)
        a.label(P + "_nobl")
        a(f"v_mov_b32 v2, {D_CNT}")
        a.label(P + "_poll")
        a(f"buffer_load_dwordx2 v[104:105], v2, s[56:59], 0 offen{SC1}")
        a("s_waitcnt vmcnt(0)")
        a("v_readfirstlane_b32 s3, v104")
        a("s_cmp_ge_u32 s3, 64")
        a(f"s_cbranch_scc1 {P}_pollgot")
        a(f"s_sleep {POLLSLEEP}")
        a(f"s_sub_u32 s{SPIN}, s{SPIN}, 1")
        a(f"s_cbranch_scc0 {P}_poll")
        a(f"s_mov_b32 s{SPIN}, 0")
        a.label(P + "_pollgot")
        a("v_mov_b32 v107, v105")
    else:
        a(f"v_mov_b32 v2, {D_GO}")
        a.label(P + "_poll")
        a(f"buffer_load_dwordx4 v[104:107], v2, s[56:59], 0 offen{SC1}")
        a("s_waitcnt vmcnt(0)")
        a("v_readfirstlane_b32 s3, v104")
        a("s_cmp_lg_u32 s3, 0")
        a(f"s_cbranch_scc1 {P}_pollok")
        a(f"s_sleep {POLLSLEEP}")
        a(f"s_sub_u32 s{SPIN}, s{SPIN}, 1")
        a(f"s_cbranch_scc0 {P}_poll")
        a(f"s_mov_b32 s{SPIN}, 0")
    a.label(P + "_pollok")
    a(f"v_mov_b32 v3, {L_CNT}")
    a("s_mov_b64 exec, 1")
    a(f"ds_add_u32 v3, v107 offset:{C_BAD}")
    a("s_mov_b64 exec, -1")
    a.label(P + "_nopoll")
    a(f"v_mov_b32 v3, {L_CNT}")
    sw_barrier(a, C_ATT, 44, 8, 3, 2, P + "_b0")
    pf.stamp(5)
    a(f"s_mov_b32 s{KR+2}, 0x40000")
    a("s_lshr_b32 s52, s2, 3")
    a("s_lshl_b32 s52, s52, 3")
    a(f"s_add_u32 s52, s52, s{WV}")
    a("s_lshl_b32 s52, s52, 10")
    a(f"buffer_load_dwordx4 {v(AS[0],4)}, v1, s[{KR}:{KR+3}], s52 offen{SC1}")
    a.label(P + "_restart")
    a(f"s_mov_b32 s{KR+2}, 0x40000")
    a(f"s_lshl_b32 s43, s{WV}, 15")
    a(f"buffer_load_dwordx4 {v(AK[0],4)}, v1, s[{KR}:{KR+3}], s43 offen{SC1}")
    a(f"buffer_load_dwordx4 {v(AK[0]+4,4)}, v1, s[{KR}:{KR+3}], s43 offen offset:1024{SC1}")
    a(f"buffer_load_dwordx4 {v(AV[0],4)}, v1, s[{KR}:{KR+3}], s43 offen offset:2048{SC1}")
    a(f"buffer_load_dwordx4 {v(AV[0]+4,4)}, v1, s[{KR}:{KR+3}], s43 offen offset:3072{SC1}")
    a("s_add_u32 s43, s43, 4096")
    a(f"buffer_load_dwordx4 {v(AK[1],4)}, v1, s[{KR}:{KR+3}], s43 offen{SC1}")
    a(f"buffer_load_dwordx4 {v(AK[1]+4,4)}, v1, s[{KR}:{KR+3}], s43 offen offset:1024{SC1}")
    for j in range(4): a(f"v_mov_b32 v{APB+j}, 0")
    for j in range(8): a(f"v_mov_b32 v{AV[1]+j}, 0")
    a("s_cmp_lg_u32 s51, 0")
    a(f"s_cbranch_scc1 {P}_haveshift")
    a(f"s_cmp_ge_u32 s{WV}, 4")
    a(f"s_cbranch_scc1 {P}_shwait")
    a(f"buffer_load_dwordx4 {v(AS[1],4)}, v1, s[{KR}:{KR+3}], 0 offen{SC1}")
    a(f"buffer_load_dwordx4 {v(AS[1]+4,4)}, v1, s[{KR}:{KR+3}], 0 offen offset:1024{SC1}")
    a(f"s_lshl_b32 s3, s{WV}, 11")
    a(f"s_add_u32 s3, s3, {L_QX}")
    a("v_add_u32 v2, s3, v1")
    a(f"ds_read_b128 {v(AO,4)}, v2")
    a(f"ds_read_b128 {v(AO+4,4)}, v2 offset:1024")
    a("s_waitcnt vmcnt(0) lgkmcnt(0)")
    o = AO + 16
    a(f"{MF} {v(o,16)}, {v(AS[1],4)}, {v(AO,4)}, 0")
    a(f"{MF} {v(o,16)}, {v(AS[1]+4,4)}, {v(AO+4,4)}, {v(o,16)}")
    a(f"s_lshl_b32 s3, s{WV}, 7")
    a(f"s_add_u32 s3, s3, {L_SH}")
    a("v_lshrrev_b32 v3, 2, v1")
    a("v_and_b32 v3, 127, v3")
    a("v_add_u32 v3, s3, v3")
    a("s_nop 7")
    a(f"v_max3_f32 v2, v{o}, v{o+1}, v{o+2}")
    for j in range(3, 15, 2):
        a(f"v_max3_f32 v2, v2, v{o+j}, v{o+j+1}")
    a(f"v_max_f32 v2, v2, v{o+15}")
    a(f"v_mov_b32 v{AO}, v2")
    a("s_nop 1")
    a(f"v_permlane32_swap_b32 v2, v{AO}")
    a(f"v_max_f32 v2, v2, v{AO}")
    a("v_cvt_pk_bf16_f32 v2, -v2, 0")
    a("s_mov_b32 exec_hi, 0")
    a("ds_write_b32 v3, v2")
    a("s_mov_b64 exec, -1")
    a.label(P + "_shwait")
    a(f"v_mov_b32 v3, {L_CNT}")
    sw_barrier(a, C_ATT, 44, 8, 3, 2, P + "_bs")
    a("v_lshrrev_b32 v3, 2, v1")
    a("v_and_b32 v3, 127, v3")
    a(f"v_add_u32 v3, {L_SH}, v3")
    for g in range(4): a(f"ds_read_b32 v{AO+g}, v3 offset:{g*128}")
    a("s_waitcnt lgkmcnt(0)")
    a("s_mov_b32 exec_lo, 0")
    for g in range(4): a(f"v_mov_b32 v{AQ+8*g+6}, v{AO+g}")
    a("s_mov_b32 exec_lo, -1")
    a.label(P + "_haveshift")
    for j in (0, 1, 2, 3, 12, 13, 14, 15): a(f"v_mov_b32 v{AS[1]+j}, 0")
    a(f"s_and_b32 s3, s{WV}, 3")
    a("s_lshl_b32 s3, s3, 2")
    a(f"s_add_u32 s3, s3, {L_CNT + 64}")
    a("v_mov_b32 v2, s3")
    for g in range(4):
        a(f"{MF} {v(AO+16*g,16)}, {v(AV[1],4)}, {v(APB,4)}, 0")
    a("s_waitcnt vmcnt(4)")
    a(f"{MF} {v(AS[0],16)}, {v(AK[0],4)}, {v(AQ,4)}, 0")
    a(f"{MF} {v(AS[0],16)}, {v(AK[0]+4,4)}, {v(AQ+4,4)}, {v(AS[0],16)}")
    a("s_mov_b32 s48, 0")
    a("s_setprio 2")
    a("s_nop 7")
    a("s_nop 1")
    pf.stamp(6)
    a(".p2align 3")
    a.label(P + "_loop")
    for u in range(8):
        g = u & 3; par = (u >> 2) & 1
        side = []
        if g == 1:
            side.append(("q0", "s_waitcnt vmcnt(2)"))
            side.append(f"buffer_load_dwordx4 {v(AV[par^1],4)}, v1, s[{KR}:{KR+3}], s43 offen offset:2048{SC1}")
            side.append(f"buffer_load_dwordx4 {v(AV[par^1]+4,4)}, v1, s[{KR}:{KR+3}], s43 offen offset:3072{SC1}")
            side.append("s_add_u32 s43, s43, 4096")
            if par == 0:
                side.append("s_cmp_eq_u32 s48, 3")
                side.append(f"s_cselect_b32 s{KR+2}, 0, s{KR+2}")
        if g == 3:
            side += [None, None, None, "s_waitcnt vmcnt(2)"]
            side.append(f"buffer_load_dwordx4 {v(AK[par],4)}, v1, s[{KR}:{KR+3}], s43 offen{SC1}")
            side.append(f"buffer_load_dwordx4 {v(AK[par]+4,4)}, v1, s[{KR}:{KR+3}], s43 offen offset:1024{SC1}")
            if par == 1:
                side += ["s_add_u32 s48, s48, 1", None, None, None, None, None, None, None, None, "s_cmp_lt_u32 s48, 4"]
        if g == 0:
            side += ["v_mov_b32 v3, s53", None, "s_mov_b64 exec, 1\nds_add_rtn_u32 v3, v2, v3\ns_mov_b64 exec, -1"]
        if g == 2:
            lab = f"{P}_fp{u}"
            side += ["s_waitcnt lgkmcnt(0)", "v_readfirstlane_b32 s54, v3", None, "s_mul_i32 s54, s54, s53", "s_cmp_gt_i32 s54, 0",
                     f"s_cbranch_scc1 {lab}a\ns_setprio 2\ns_branch {lab}b\n{lab}a:\ns_setprio 1\n{lab}b:"]
        att_unit(a, u, side)
    a(f"s_cbranch_scc1 {P}_loop")
    prv = AS[1]
    a(f"{MF} {v(AO+48,16)}, {v(AV[1],4)}, {v(prv,4)}, {v(AO+48,16)}")
    a(f"v_cvt_pk_bf16_f32 v{APB+2}, v{prv+12}, v{prv+13}")
    a(f"v_cvt_pk_bf16_f32 v{APB+3}, v{prv+14}, v{prv+15}")
    a("s_nop 1")
    a(f"{MF} {v(AO+48,16)}, {v(AV[1]+4,4)}, {v(APB,4)}, {v(AO+48,16)}")
    pf.stamp(7)
    a("s_setprio 3")
    a("s_cmp_lg_u32 s51, 0")
    a(f"s_cbranch_scc1 {P}_nolend")
    lds_arrive(a, C_LEND, 2, 3)
    a.label(P + "_nolend")
    a(f"v_mov_b32 v3, {L_CNT}")
    a.label(P + "_udone")
    a(f"ds_read2_b32 v[104:105], v3 offset0:{C_NONCE//4} offset1:{C_UDONE//4}")
    a("s_waitcnt lgkmcnt(0)")
    a("v_readfirstlane_b32 s3, v105")
    a(f"v_readfirstlane_b32 s{NONCE}, v104")
    a("s_cmp_ge_u32 s3, 4")
    a(f"s_cbranch_scc1 {P}_udone_ok")
    a(f"s_sub_u32 s{SPIN}, s{SPIN}, 1")
    a(f"s_cbranch_scc0 {P}_udone")
    a(f"s_mov_b32 s{SPIN}, 0")
    a.label(P + "_udone_ok")
    a(f"s_lshl_b32 s3, s{WV}, 13")
    a(f"s_add_u32 s3, s3, {A_OP}")
    a(f"v_add_u32 v2, s3, v1")
    a(f"s_lshl_b32 s3, s{WV}, 9")
    a(f"s_add_u32 s3, s3, {A_LP}")
    a("v_lshrrev_b32 v3, 2, v1")
    a("v_and_b32 v4, 127, v3")
    a("v_add_u32 v4, s3, v4")
    a(f"s_mov_b32 s46, {hex(LMAX)}")
    a("s_mov_b64 s[56:57], 0")
    for g in range(4):
        o = AO + 16 * g
        if g == 3: a("s_nop 3")
        a("s_mov_b32 exec_lo, 0")
        a(f"ds_write_b32 v4, v{o+12} offset:{g*128}")
        a(f"v_cmp_nge_f32 vcc, s46, v{o+12}")
        a("s_mov_b32 exec_lo, -1")
        a("s_or_b64 s[56:57], s[56:57], vcc")
        for j in range(8):
            a(f"v_cvt_pk_bf16_f32 v{AS[0]+8*g+j}, v{o+2*j}, v{o+2*j+1}")
        a(f"ds_write_b128 v2, {v(AS[0]+8*g,4)} offset:{g*2048}")
        a(f"ds_write_b128 v2, {v(AS[0]+8*g+4,4)} offset:{g*2048+1024}")
    a(f"v_mov_b32 v3, {L_CNT}")
    a("s_cmp_eq_u64 s[56:57], 0")
    a(f"s_cbranch_scc1 {P}_safe")
    a("v_mov_b32 v2, 1")
    a("s_mov_b64 exec, 1")
    a(f"ds_add_u32 v3, v2 offset:{C_BAD}")
    a("s_mov_b64 exec, -1")
    a.label(P + "_safe")
    pf.stamp(17)
    sw_barrier(a, C_ATT, 44, 8, 3, 2, P + "_b1")
    pf.stamp(18)
    a(f"ds_read_b32 v2, v3 offset:{C_BAD}")
    a(f"s_lshl_b32 s3, s{WV}, 10")
    a(f"s_add_u32 s3, s3, {A_OP}")
    a("v_add_u32 v4, s3, v1")
    for w in range(8):
        a(f"ds_read_b128 {v(AO+4*w,4)}, v4 offset:{w*8192}")
    a(f"s_lshr_b32 s45, s{WV}, 1")
    a("s_lshl_b32 s3, s45, 7")
    a(f"s_add_u32 s3, s3, {A_LP}")
    a("v_lshrrev_b32 v3, 2, v1")
    a("v_and_b32 v3, 127, v3")
    a("v_add_u32 v3, s3, v3")
    a("s_waitcnt lgkmcnt(8)")
    a("v_readfirstlane_b32 s3, v2")
    a("s_cmp_lg_u32 s3, 0")
    a("s_cselect_b32 s3, 1, 0")
    a("s_andn2_b32 s3, s3, s51")
    a(f"s_cbranch_scc1 {P}_fallback")
    acc = AO + 40
    a("s_mov_b32 s46, 0x00003f80")
    a("s_mov_b32 s49, 0x3f800000")
    for w in range(7):
        a(f"ds_read_b32 v{AO+32+w}, v3 offset:{w*512}")
    for j in range(8): a(f"v_mov_b32 v{acc+j}, 0")
    for w in range(8):
        a(f"s_waitcnt lgkmcnt({14 - w})" if w < 7 else "s_waitcnt lgkmcnt(7)")
        if w == 0: a(f"ds_read_b32 v{AO+39}, v3 offset:{7*512}")
        for j in range(4):
            a(f"v_dot2c_f32_bf16 v{acc+2*j}, s46, v{AO+4*w+j}")
            a(f"v_dot2c_f32_bf16 v{acc+2*j+1}, s49, v{AO+4*w+j}")
    a("s_lshr_b32 s3, s45, 1")
    a(f"s_lshl_b32 s46, s{RB}, 1")
    a("s_add_u32 s3, s3, s46")
    a("s_lshl_b32 s3, s3, 4")
    a(f"s_lshl_b32 s46, s{J2}, 1")
    a("s_add_u32 s3, s3, s46")
    a("s_and_b32 s46, s45, 1")
    a("s_add_u32 s3, s3, s46")
    a("s_lshl_b32 s3, s3, 11")
    a(f"s_and_b32 s46, s{WV}, 1")
    a("s_lshl_b32 s46, s46, 10")
    a("s_add_u32 s3, s3, s46")
    a(f"s_add_u32 s47, s3, {WS_OF}")
    a("s_waitcnt lgkmcnt(0)")
    lds_arrive(a, C_TRD, 2, 3)
    l = AO + 32
    a(f"v_add_f32 v{l}, v{l}, v{l+1}")
    a(f"v_add_f32 v{l+2}, v{l+2}, v{l+3}")
    a(f"v_add_f32 v{l+4}, v{l+4}, v{l+5}")
    a(f"v_add_f32 v{l+6}, v{l+6}, v{l+7}")
    a(f"v_add_f32 v{l}, v{l}, v{l+2}")
    a(f"v_add_f32 v{l+4}, v{l+4}, v{l+6}")
    a(f"v_add_f32 v{l}, v{l}, v{l+4}")
    a(f"v_rcp_f32 v{l+1}, v{l}")
    a("s_nop 0")
    for j in range(8): a(f"v_mul_f32 v{acc+j}, v{acc+j}, v{l+1}")
    for j in range(4): a(f"v_cvt_pk_bf16_f32 v{AO+j}, v{acc+2*j}, v{acc+2*j+1}")
    a(f"s_and_b32 s3, s{WV}, 1")
    a("s_cmp_eq_u32 s3, 1")
    a("s_cselect_b32 exec_hi, -1, 0")
    a("s_mov_b32 exec_lo, 0")
    a(f"v_mov_b32 v{AO+2}, 0")
    a(f"v_mov_b32 v{AO+3}, 0")
    a("s_mov_b64 exec, -1")
    pf.stamp(19)
    a(f"buffer_store_dwordx4 {v(AO,4)}, v1, s[{WSR}:{WSR+3}], s47 offen{SC1}")
    if "dup" in X or "dupo" in X:
        a(f"buffer_store_dwordx4 {v(AO,4)}, v1, s[{WSR}:{WSR+3}], s47 offen")
    a(f"s_lshl_b32 s3, s{RB}, 5")
    a(f"s_add_u32 s3, s3, s{J2}")
    a("s_lshl_b32 s3, s3, 2")
    a(f"s_add_u32 s3, s3, {FL_O}")
    arrive_flag(a, C_OCNT, 8, 3, 2, 3, P + "_oflag")
    pf.stamp(8)
    a(f"s_branch {P}_done")
    a.label(P + "_fallback")
    a("s_waitcnt lgkmcnt(0)")
    a("s_mov_b32 s51, 1")
    a(f"s_mov_b32 s{KR+2}, 0x40000")
    a("s_mov_b32 exec_lo, 0")
    for g in range(4):
        a(f"v_mov_b32 v{AQ+8*g+6}, 0")
        a(f"v_mov_b32 v{AQ+8*g+7}, 0")
    a("s_mov_b32 exec_lo, -1")
    for g in range(4): a(f"v_mov_b32 v{APB+g}, 0xff800000")
    a("s_mov_b32 s43, 0")
    a.label(P + "_fb_loop")
    a(f"buffer_load_dwordx4 {v(AK[0],4)}, v1, s[{KR}:{KR+3}], s43 offen{SC1}")
    a(f"buffer_load_dwordx4 {v(AK[0]+4,4)}, v1, s[{KR}:{KR+3}], s43 offen offset:1024{SC1}")
    a("s_waitcnt vmcnt(0)")
    for g in range(4):
        o = AO + 16 * g
        a(f"{MF} {v(o,16)}, {v(AK[0],4)}, {v(AQ+8*g,4)}, 0")
        a(f"{MF} {v(o,16)}, {v(AK[0]+4,4)}, {v(AQ+8*g+4,4)}, {v(o,16)}")
    a("s_nop 7")
    for g in range(4):
        o = AO + 16 * g
        for j in range(0, 16, 2):
            a(f"v_max3_f32 v{APB+g}, v{APB+g}, v{o+j}, v{o+j+1}")
    a("s_add_u32 s43, s43, 4096")
    a("s_cmp_lt_u32 s43, 0x40000")
    a(f"s_cbranch_scc1 {P}_fb_loop")
    for g in range(4):
        m = APB + g
        a(f"v_mov_b32 v2, v{m}")
        a("s_nop 1")
        a(f"v_permlane32_swap_b32 v2, v{m}")
        a(f"v_max_f32 v2, v2, v{m}")
        a("v_sub_f32 v2, 0, v2")
        a("v_cvt_pk_bf16_f32 v3, v2, v2")
        a("v_and_b32 v3, 0xffff0000, v3")
        a(f"v_sub_f32 v{m}, v2, v3")
        a(f"v_cvt_pk_bf16_f32 v2, v{m}, v{m}")
        a("v_and_b32 v2, 0xffff0000, v2")
        a(f"v_sub_f32 v{m}, v{m}, v2")
        a(f"v_cvt_pk_bf16_f32 v{m}, v{m}, 0")
        a("v_lshrrev_b32 v3, 16, v3")
        a("v_or_b32 v3, v3, v2")
        a("s_mov_b32 exec_lo, 0")
        a(f"v_mov_b32 v{AQ+8*g+6}, v3")
        a(f"v_mov_b32 v{AQ+8*g+7}, v{m}")
        a("s_mov_b32 exec_lo, -1")
    a(f"v_mov_b32 v3, {L_CNT}")
    sw_barrier(a, C_ATT, 44, 8, 3, 2, P + "_bf")
    a(f"s_branch {P}_restart")
    a.label(P + "_done")

def gen_background(a, pf):
    P = "bg"
    XF = 56; ARE, AIM = 8, 24
    nbar = [0]
    T = [54, 55]
    pf.T = T
    def bar():
        nbar[0] += 1
        a(f"v_mov_b32 v{T[0]}, {L_CNT}")
        sw_barrier(a, C_BG, 44, 4, T[0], T[1], f"{P}_bar{nbar[0]}")
    def stage3(tag, vd_=156, vt_=158):
        if "nopf" in X: return
        a(f"s_cmp_eq_u32 s{BW}, 3")
        a(f"s_cbranch_scc1 {P}_not3{tag}")
        a(f"s_cmp_eq_u32 s{BW}, 0")
        a(f"s_cselect_b32 s56, s{S_CRE}, s{S_CIM}")
        a(f"s_cselect_b32 s57, s{S_CRE+1}, s{S_CIM+1}")
        a(f"s_cmp_eq_u32 s{BW}, 2")
        a(f"s_cselect_b32 s56, s{S_WO}, s56")
        a(f"s_cselect_b32 s57, s{S_WO+1}, s57")
        touch_matrix(a, 56, vd_, vt_)
        a.label(P + "_not3" + tag)
    a("s_mov_b32 s44, 0")
    a(f"s_lshl_b32 s37, s{J2}, 1")
    a(f"s_and_b32 s3, s{BW}, 1")
    a("s_add_u32 s37, s37, s3")
    a(f"s_lshr_b32 s38, s{BW}, 1")
    a(f"s_cmp_eq_u32 s{BW}, 3")
    a(f"s_cbranch_scc0 {P}_nononce")
    srd(a, 48, S_DBG, 256)
    a("v_mov_b32 v7, 0")
    a.label(P + "_npoll")
    a(f"buffer_load_dword v6, v7, s[48:51], 0 offen offset:{D_NONCE}{SC1}")
    a("s_waitcnt vmcnt(0)")
    a("v_readfirstlane_b32 s3, v6")
    a("s_cmp_lg_u32 s3, 0")
    a(f"s_cbranch_scc1 {P}_npoll_ok")
    a(f"s_sleep {POLLSLEEP}")
    a(f"s_sub_u32 s{SPIN}, s{SPIN}, 1")
    a(f"s_cbranch_scc0 {P}_npoll")
    a(f"s_mov_b32 s{SPIN}, 0")
    a.label(P + "_npoll_ok")
    a(f"v_mov_b32 v7, {L_CNT}")
    a(f"ds_write_b32 v7, v6 offset:{C_NONCE}")
    a.label(P + "_nononce")
    a(f"s_cmp_eq_u32 s{J2}, 7")
    a(f"s_cbranch_scc1 {P}_skip")
    if "nobg" in X: a(f"s_branch {P}_skip")
    a(f"s_and_b32 s3, s{BW}, 1")
    a("s_cmp_eq_u32 s3, 0")
    a(f"s_cselect_b32 s{TR}, s{S_BRE}, s{S_BIM}")
    a(f"s_cselect_b32 s{TR+1}, s{S_BRE+1}, s{S_BIM+1}")
    a(f"s_mov_b32 s{TR+2}, {WBYTES}")
    a(f"s_mov_b32 s{TR+3}, 0x00020000")
    plain_lane_off(a, 8, 0, 9)
    a(f"s_lshl_b32 s3, s{J2}, 1")
    a("s_add_u32 s3, s3, s38")
    a(f"s_mul_i32 s32, s3, {32*896}")
    a(f"s_lshl_b32 s34, s{BW}, 11")
    a("s_mov_b32 m0, s34")
    a("s_mov_b32 s36, 14")
    a.label(P + "_bdma")
    a(f"s_add_u32 s33, s32, {16*896}")
    a(f"buffer_load_dwordx4 v8, s[{TR}:{TR+3}], s32 offen lds")
    a("s_add_u32 m0, m0, 1024")
    a("s_sub_u32 s36, s36, 1")
    a(f"buffer_load_dwordx4 v8, s[{TR}:{TR+3}], s33 offen lds")
    a("s_add_u32 s32, s32, 64")
    a(f"s_add_u32 m0, m0, {8192-1024}")
    a("s_cmp_lg_u32 s36, 0")
    a(f"s_cbranch_scc1 {P}_bdma")
    xfrag_addr(a, 6, 0, 8)
    a(f"s_and_b32 s3, s{BW}, 1")
    a("s_lshl_b32 s3, s3, 12")
    a("v_add_u32 v6, s3, v6")
    a("v_xor_b32 v7, 32, v6")
    a("s_waitcnt vmcnt(0)")
    bar()
    a(f"ds_read_b32 v55, v54 offset:{C_NONCE}")
    a("s_waitcnt lgkmcnt(0)")
    a(f"v_readfirstlane_b32 s{NONCE}, v55")
    if "cntpoll" in X:
        lds_arrive(a, C_BL, 54, 55)
    pf.stamp(5)
    S3 = os.environ.get("S3", "b")
    if S3 == "b": stage3("a", 52, 54)
    BB = [40, 48]
    def rdB(j):
        b = BB[j & 1]
        if j in (16, 17): a(f"v_add_u32 v{6+(j&1)}, 0x10000, v{6+(j&1)}")
        o = (j >> 1) * 8192 - (65536 if j >= 16 else 0)
        a(f"ds_read_b128 {v(b,4)}, v{6+(j&1)} offset:{o}")
        a(f"ds_read_b128 {v(b+4,4)}, v{6+(j&1)} offset:{o+2048}")
    rdB(0); rdB(1)
    for j in range(28):
        b = BB[j & 1]
        a("s_waitcnt lgkmcnt(2)" if j < 27 else "s_waitcnt lgkmcnt(0)")
        c1 = "0" if j == 0 else v(ARE,16); c2 = "0" if j == 0 else v(AIM,16)
        a(f"{MF} {v(ARE,16)}, {v(XF+4*j,4)}, {v(b,4)}, {c1}")
        a(f"{MF} {v(AIM,16)}, {v(XF+4*j,4)}, {v(b+4,4)}, {c2}")
        if j + 2 < 28: rdB(j + 2)
    a(f"v_mov_b32 v54, {L_CNT}")
    a("v_mov_b32 v55, 1")
    a("s_mov_b64 exec, 1")
    a(f"ds_add_u32 v54, v55 offset:{C_UDONE}")
    a("s_mov_b64 exec, -1")
    pf.stamp(6)
    if S3 == "u": stage3("a")
    def csq(dr, di, sr, si):
        a(f"v_mul_f32 v46, v{si}, v{si}")
        a(f"v_mul_f32 v47, v{sr}, v{si}")
        a(f"v_fma_f32 v{dr}, v{sr}, v{sr}, -v46")
        a(f"v_add_f32 v{di}, v47, v47")
    csq(40, 41, 2, 3)
    for _ in range(3): csq(40, 41, 40, 41)
    csq(42, 43, 40, 41); csq(42, 43, 42, 43)
    csq(44, 45, 42, 43)
    for _ in range(3): csq(44, 45, 44, 45)
    a("v_mov_b32 v48, v4")
    a("v_mov_b32 v49, v4")
    a("v_mov_b32 v50, v5")
    a("v_mov_b32 v51, v5")
    for r in range(0, 16, 2):
        a(f"v_pk_mul_f32 v[46:47], v[50:51], {v(AIM+r,2)}")
        a(f"v_pk_mul_f32 v[52:53], v[50:51], {v(ARE+r,2)}")
        a(f"v_pk_fma_f32 {v(ARE+r,2)}, v[48:49], {v(ARE+r,2)}, v[46:47] neg_lo:[0,0,1] neg_hi:[0,0,1]")
        a(f"v_pk_fma_f32 {v(AIM+r,2)}, v[48:49], {v(AIM+r,2)}, v[52:53]")
    a(f"v_mov_b32 v48, v{ARE}")
    a(f"v_mov_b32 v49, v{AIM}")
    for r in range(1, 16):
        cfma(a, 48, 49, 2, 3, ARE + r, AIM + r, 46, 47)
    a("v_and_b32 v50, 31, v0")
    a("v_lshlrev_b32 v50, 3, v50")
    a(f"s_and_b32 s3, s{BW}, 1")
    a("s_lshl_b32 s3, s3, 10")
    a(f"s_add_u32 s3, s3, {B_EX}")
    a("v_add_u32 v50, s3, v50")
    a("v_lshrrev_b32 v51, 5, v0")
    a("s_lshl_b32 s3, s38, 1")
    a("v_add_u32 v51, s3, v51")
    a("v_lshl_add_u32 v52, v51, 8, v50")
    a("ds_write_b64 v52, v[48:49]")
    bar()
    for c in range(4):
        a(f"ds_read_b64 {v(56+2*c,2)}, v50 offset:{c*256}")
    a("s_waitcnt lgkmcnt(0)")
    a("v_mov_b32 v64, v56")
    a("v_mov_b32 v65, v57")
    for c in range(1, 4):
        cfma(a, 64, 65, 40, 41, 56 + 2*c, 57 + 2*c, 46, 47)
    a("s_cmp_eq_u32 s38, 1")
    a(f"s_cbranch_scc0 {P}_nopub")
    a(f"s_mul_i32 s3, s{RB}, {448*16}")
    a("s_lshl_b32 s33, s37, 9")
    a("s_add_u32 s3, s3, s33")
    a(f"s_add_u32 s3, s3, {WS_E}")
    a(f"v_mov_b32 v66, s{NONCE}")
    a(f"v_mov_b32 v67, s{NONCE}")
    a("v_and_b32 v68, 31, v0")
    a("v_lshlrev_b32 v68, 4, v68")
    a("s_mov_b32 exec_hi, 0")
    a(f"buffer_store_dwordx4 v[64:67], v68, s[{WSR}:{WSR+3}], s3 offen{SC1}")
    a("s_mov_b64 exec, -1")
    a.label(P + "_nopub")
    pf.stamp(7)
    a(f"s_add_u32 s48, s{WSR}, {WS_E}")
    a(f"s_addc_u32 s49, s{WSR+1}, 0")
    a(f"s_mov_b32 s50, {32*448*16}")
    a("s_mov_b32 s51, 0x00020000")
    a("v_lshrrev_b32 v67, 5, v0")
    a("v_lshlrev_b32 v67, 4, v67")
    a(f"v_sub_u32 v67, s{RB}, v67")
    a("v_add_u32 v67, -1, v67")
    a(f"s_mov_b32 s3, {448*16}")
    a("v_mul_lo_u32 v68, v67, s3")
    a("v_and_b32 v66, 31, v0")
    a("v_lshlrev_b32 v66, 4, v66")
    a("s_lshl_b32 s33, s37, 9")
    a("v_add3_u32 v68, v68, v66, s33")
    EG = 72
    for i in range(1, 16):
        a(f"v_subrev_u32 v{136+i}, {448*16*i}, v68")
    a("v_mov_b32 v136, v68")
    a("s_waitcnt vmcnt(0)")
    a(f"s_cmp_eq_u32 s{RB}, 0")
    a(f"s_cbranch_scc1 {P}_pollE")
    a.label(P + "_pollE0")
    a("s_mov_b32 exec_hi, 0")
    a(f"buffer_load_dwordx3 {v(EG,3)}, v136, s[48:51], 0 offen{SC1}")
    a("s_mov_b64 exec, -1")
    a("s_waitcnt vmcnt(0)")
    a(f"v_cmp_ne_u32 vcc, s{NONCE}, v{EG+2}")
    a("s_cmp_eq_u32 vcc_lo, 0")
    a(f"s_cbranch_scc1 {P}_pollE")
    a(f"s_sleep {os.environ.get('ES', '6')}")
    a(f"s_sub_u32 s{SPIN}, s{SPIN}, 1")
    a(f"s_cbranch_scc0 {P}_pollE0")
    a(f"s_mov_b32 s{SPIN}, 0")
    a.label(P + "_pollE")
    for i in range(16):
        a(f"buffer_load_dwordx3 {v(EG+4*i,3)}, v{136+i}, s[48:51], 0 offen{SC1}")
    a("s_mov_b64 s[56:57], 0")
    a("s_waitcnt vmcnt(0)")
    for i in range(16):
        a(f"v_cmp_ne_u32 vcc, s{NONCE}, v{EG+4*i+2}")
        a(f"s_cmp_gt_u32 s{RB}, {i}")
        a("s_cselect_b32 s58, -1, 0")
        a(f"s_cmp_gt_u32 s{RB}, {i+16}")
        a("s_cselect_b32 s59, -1, 0")
        a("s_and_b64 vcc, vcc, s[58:59]")
        a("s_or_b64 s[56:57], s[56:57], vcc")
    a("s_cmp_eq_u64 s[56:57], 0")
    a(f"s_cbranch_scc1 {P}_pollE_ok")
    a("s_sleep 12")
    a(f"s_sub_u32 s{SPIN}, s{SPIN}, 1")
    a(f"s_cbranch_scc0 {P}_pollE")
    a(f"s_mov_b32 s{SPIN}, 0")
    a.label(P + "_pollE_ok")
    pf.stamp(8)
    a(f"v_mov_b32 v68, v{EG+60}")
    a(f"v_mov_b32 v69, v{EG+61}")
    for i in range(14, -1, -1):
        cfma(a, 68, 69, 42, 43, EG + 4*i, EG + 4*i + 1, 46, 47)
    a("v_mov_b32 v70, v68")
    a("v_mov_b32 v71, v69")
    a("v_mov_b32 v72, v68")
    a("v_mov_b32 v73, v69")
    a("s_nop 1")
    a("v_permlane32_swap_b32 v70, v72")
    a("v_permlane32_swap_b32 v71, v73")
    cfma(a, 72, 73, 44, 45, 70, 71, 46, 47)
    for cp in range(3):
        a("v_mov_b32 v74, v72")
        a("v_mov_b32 v75, v73")
        cfma(a, 74, 75, 40, 41, 56 + 2*cp, 57 + 2*cp, 46, 47)
        a(f"v_cmp_lt_u32 vcc, {cp}, v51")
        a("s_nop 1")
        a("v_cndmask_b32 v72, v72, v74, vcc")
        a("v_cndmask_b32 v73, v73, v75, vcc")
    a(f"s_lshl_b32 s3, s{BW}, 12")
    a(f"s_add_u32 s3, s3, {B_HT}")
    a("v_and_b32 v66, 31, v0")
    a("v_lshlrev_b32 v66, 1, v66")
    a("v_lshrrev_b32 v67, 5, v0")
    a("v_lshl_add_u32 v66, v67, 8, v66")
    a("v_add_u32 v66, s3, v66")
    for r in range(16):
        cfma(a, 72, 73, 2, 3, ARE + r, AIM + r, 46, 47)
        a(f"v_cvt_pk_bf16_f32 v{76+(r&1)}, v72, -v73")
        slot = (r & 3) + 8 * (r >> 2)
        a(f"ds_write_b16 v66, v{76+(r&1)} offset:{slot*64}")
        a(f"ds_write_b16_d16_hi v66, v{76+(r&1)} offset:{2048+slot*64}")
    a("v_and_b32 v67, 31, v0")
    a("v_lshlrev_b32 v67, 6, v67")
    a("v_lshrrev_b32 v68, 5, v0")
    a("v_lshl_add_u32 v67, v68, 4, v67")
    a("v_add_u32 v67, s3, v67")
    a("s_waitcnt lgkmcnt(0)")
    for part in range(2):
        for jj in range(2):
            a(f"ds_read_b128 {v(80+8*part+4*jj,4)}, v67 offset:{part*2048+jj*32}")
    a(f"s_lshl_b32 s3, s{RB}, 1")
    a("s_add_u32 s3, s3, s38")
    a("s_mul_i32 s3, s3, 56")
    a("s_lshl_b32 s33, s37, 1")
    a("s_add_u32 s3, s3, s33")
    a("s_lshl_b32 s3, s3, 10")
    a(f"s_add_u32 s3, s3, {WS_HF}")
    a(f"s_add_u32 s33, s3, {28*1024}")
    a("s_waitcnt lgkmcnt(0)")
    a(f"buffer_store_dwordx4 {v(80,4)}, v1, s[{WSR}:{WSR+3}], s3 offen{SC1}")
    a(f"buffer_store_dwordx4 {v(84,4)}, v1, s[{WSR}:{WSR+3}], s3 offen offset:1024{SC1}")
    a(f"buffer_store_dwordx4 {v(88,4)}, v1, s[{WSR}:{WSR+3}], s33 offen{SC1}")
    a(f"buffer_store_dwordx4 {v(92,4)}, v1, s[{WSR}:{WSR+3}], s33 offen offset:1024{SC1}")
    if "dup" in X:
        a(f"buffer_store_dwordx4 {v(80,4)}, v1, s[{WSR}:{WSR+3}], s3 offen")
        a(f"buffer_store_dwordx4 {v(84,4)}, v1, s[{WSR}:{WSR+3}], s3 offen offset:1024")
        a(f"buffer_store_dwordx4 {v(88,4)}, v1, s[{WSR}:{WSR+3}], s33 offen")
        a(f"buffer_store_dwordx4 {v(92,4)}, v1, s[{WSR}:{WSR+3}], s33 offen offset:1024")
    a(f"s_lshl_b32 s3, s{RB}, 5")
    a(f"s_add_u32 s3, s3, s{J2}")
    a("s_lshl_b32 s3, s3, 2")
    a(f"s_add_u32 s3, s3, {FL_H}")
    arrive_flag(a, C_HCNT, 4, 3, 66, 67, P + "_hflag")
    pf.stamp(9)
    a(f"s_lshr_b32 s3, s{BW}, 1")
    a("s_cmp_eq_u32 s3, 0")
    a(f"s_cselect_b32 s{TR}, s{S_CRE}, s{S_CIM}")
    a(f"s_cselect_b32 s{TR+1}, s{S_CRE+1}, s{S_CIM+1}")
    plain_lane_off(a, 53, 0, 69)
    a(f"s_mul_i32 s40, s{J2}, {64*896}")
    a(f"s_and_b32 s3, s{BW}, 1")
    a("s_mul_i32 s3, s3, 448")
    a("s_add_u32 s40, s40, s3")
    a(f"s_lshl_b32 s41, s{BW}, 14")
    CDMA = [53]
    def c_dma(kb):
        a(f"s_add_u32 m0, s41, {(kb & 3)*4096}")
        for q in range(4):
            a(f"s_add_u32 s33, s40, {q*16*896 + kb*64}")
            a(f"buffer_load_dwordx4 v{CDMA[0]}, s[{TR}:{TR+3}], s33 offen lds")
            if q < 3: a("s_add_u32 m0, m0, 1024")
    for kb in range(4): c_dma(kb)
    a(f"s_cmp_eq_u32 s{BW}, 0")
    a(f"s_cbranch_scc0 {P}_nopollH")
    a("v_lshlrev_b32 v67, 2, v0")
    a(f"s_lshl_b32 s35, s{RB}, 7")
    a(f"s_add_u32 s35, s35, {FL_H}")
    a("s_mov_b64 s[58:59], 0x7f")
    poll(a, P + "_pollH", 68, 67, 35, 58)
    srd(a, 48, S_DBG, 256)
    a(f"v_mov_b32 v67, {D_GOG}")
    a.label(P + "_pollG")
    a(f"buffer_load_dword v68, v67, s[48:51], 0 offen{SC1}")
    a("s_waitcnt vmcnt(0)")
    a("v_readfirstlane_b32 s3, v68")
    a("s_cmp_lg_u32 s3, 0")
    a(f"s_cbranch_scc1 {P}_pollG_ok")
    a(f"s_sleep {POLLSLEEP}")
    a(f"s_sub_u32 s{SPIN}, s{SPIN}, 1")
    a(f"s_cbranch_scc0 {P}_pollG")
    a(f"s_mov_b32 s{SPIN}, 0")
    a.label(P + "_pollG_ok")
    a.label(P + "_nopollH")
    a("s_waitcnt vmcnt(0)")
    bar()
    pf.stamp(10)
    T[0], T[1] = 4, 5
    ACC = 8
    XS, GT = 136, 152
    a(f"s_lshl_b32 s3, s{RB}, 6")
    a("s_lshl_b32 s33, s38, 5")
    a("s_add_u32 s3, s3, s33")
    a("v_lshrrev_b32 v72, 5, v0")
    a("v_lshlrev_b32 v72, 4, v72")
    a("v_add_u32 v72, s3, v72")
    a(f"s_lshl_b32 s33, s{J2}, 6")
    a(f"s_and_b32 s35, s{BW}, 1")
    a("s_lshl_b32 s35, s35, 5")
    a("s_add_u32 s33, s33, s35")
    a("v_and_b32 v73, 31, v0")
    a("v_add_u32 v73, s33, v73")
    srd(a, 48, S_X, XBYTES)
    a("v_mul_u32_u24 v74, 896, v72")
    a("v_lshl_add_u32 v74, v73, 1, v74")
    for r in range(16):
        a(f"buffer_load_ushort v{XS+r}, v74, s[48:51], 0 offen offset:{(r%4)*896}")
        if r % 4 == 3 and r < 15: a(f"v_add_u32 v74, {4*896}, v74")
    srd(a, 52, S_DSK, 896)
    a("v_lshlrev_b32 v75, 1, v73")
    a("buffer_load_ushort v3, v75, s[52:55], 0 offen")
    a("v_lshlrev_b32 v75, 2, v72")
    a(f"s_mov_b32 s35, {WS_G}")
    for q in range(4):
        a(f"buffer_load_dwordx4 {v(GT+4*q,4)}, v75, s[{WSR}:{WSR+3}], s35 offen offset:{16*q}{SC1}")
    if "lowy" in X: a("s_setprio 0")
    a(f"s_lshl_b32 s3, s{RB}, 1")
    a("s_mul_i32 s3, s3, 56")
    a(f"s_mul_i32 s33, s{BW}, 14")
    a("s_add_u32 s3, s3, s33")
    a("s_lshl_b32 s3, s3, 10")
    a(f"s_add_u32 s32, s3, {WS_HF}")
    a(f"s_add_u32 s34, s32, {56*1024}")
    AF = 88; NA = 6
    plain_lane_off(a, 2, 0, 72)
    CDMA[0] = 2
    xfrag_addr(a, 6, 0, 72)
    a("v_add_u32 v6, s41, v6")
    a("v_xor_b32 v7, 32, v6")
    def ldA(st_):
        r = AF + 8 * (st_ % NA)
        a(f"s_add_u32 s35, s32, {st_*1024}")
        a(f"s_add_u32 s36, s34, {st_*1024}")
        a(f"buffer_load_dwordx4 {v(r,4)}, v1, s[{WSR}:{WSR+3}], s35 offen{SC1}")
        a(f"buffer_load_dwordx4 {v(r+4,4)}, v1, s[{WSR}:{WSR+3}], s36 offen{SC1}")
    for st_ in range(NA): ldA(st_)
    if "htouch" in X:
        a("v_lshlrev_b32 v72, 7, v0")
        a(f"s_mov_b32 m0, {L_JUNK}")
        a(f"s_add_u32 s35, s32, {NA*1024}")
        a(f"s_add_u32 s36, s34, {NA*1024}")
        a(f"buffer_load_dword v72, s[{WSR}:{WSR+3}], s35 offen{SC1} lds")
        a(f"buffer_load_dword v72, s[{WSR}:{WSR+3}], s36 offen{SC1} lds")
    CB = [72, 80]
    def rdC(st_):
        b = CB[st_ & 1]
        kb = st_ >> 1
        a(f"ds_read_b128 {v(b,4)}, v{6+(st_&1)} offset:{(kb&3)*4096}")
        a(f"ds_read_b128 {v(b+4,4)}, v{6+(st_&1)} offset:{(kb&3)*4096+2048}")
    issued = []
    for st_ in range(NA): issued += [("A", st_)] * 2
    if "htouch" in X: issued += [("T", 0)] * 2
    HY = int(os.environ.get("HY", "0"))
    if HY:
        a(f"v_mov_b32 v4, {L_CNT}")
        lds_wait(a, C_LEND, HY, 4, 5, P + "_lend", sleep=8)
        a(f"s_setprio {os.environ.get('YP', '1')}")
    rdC(0)
    for st_ in range(14):
        kb = st_ >> 1
        need = [("A", st_)]
        if st_ + 1 < 14 and ((st_ + 1) >> 1) >= 4: need.append(("C", (st_ + 1) >> 1))
        last = max(i for i, t in enumerate(issued) if t in need)
        n_out = len(issued) - 1 - last
        a(f"s_waitcnt vmcnt({n_out})")
        if st_ + 1 < 14: rdC(st_ + 1)
        a(f"s_waitcnt lgkmcnt({2 if st_ + 1 < 14 else 0})")
        b = CB[st_ & 1]; r = AF + 8 * (st_ % NA)
        for rt in range(2):
            for ct in range(2):
                acc = ACC + 16 * (2 * rt + ct)
                c = "0" if st_ == 0 else v(acc, 16)
                a(f"{MF} {v(acc,16)}, {v(r+4*rt,4)}, {v(b+4*ct,4)}, {c}")
        if st_ + NA < 14:
            ldA(NA + st_); issued += [("A", NA + st_)] * 2
        if (st_ & 1) == 1 and kb + 4 < 7:
            c_dma(kb + 4); issued += [("C", kb + 4)] * 4
    pf.stamp(11)
    a(f"s_setprio {os.environ.get('YP2', '2')}")
    bar()
    VT_, VD_, VO_, t1, t2, t3, t4, t5 = 72, 73, 74, 75, 76, 77, 78, 79
    srd(a, TR, S_WO, WBYTES)
    a(f"v_lshrrev_b32 v{t1}, 3, v0")
    a(f"v_mul_u32_u24 v{t1}, 896, v{t1}")
    a(f"v_and_b32 v{t2}, 7, v0")
    a(f"v_lshl_add_u32 v{t1}, v{t2}, 4, v{t1}")
    a(f"s_mul_i32 s32, s{BW}, {112*896}")
    a(f"s_lshl_b32 s3, s{J2}, 7")
    a("s_add_u32 s32, s32, s3")
    a(f"s_mul_i32 s34, s{BW}, 14336")
    a("s_mov_b32 m0, s34")
    a("s_mov_b32 s36, 14")
    a.label(P + "_wodma")
    a("s_sub_u32 s36, s36, 1")
    a(f"buffer_load_dwordx4 v{t1}, s[{TR}:{TR+3}], s32 offen lds")
    a("s_add_u32 s32, s32, 7168")
    a("s_add_u32 m0, m0, 1024")
    a("s_cmp_lg_u32 s36, 0")
    a(f"s_cbranch_scc1 {P}_wodma")
    a("v_mov_b32 v80, 0")
    a("v_mov_b32 v81, 0")
    a(f"v_lshlrev_b32 v{t2}, 3, v0")
    a(f"ds_write_b64 v{t2}, v[80:81] offset:57344")
    a(f"v_mov_b32 v4, {L_CNT}")
    lds_wait(a, C_TRD, 8, 4, 5, P + "_trd")
    a(f"s_lshl_b32 s3, s{BW}, 12")
    a(f"s_add_u32 s3, s3, {A_OP}")
    a(f"v_add_u32 v{t1}, s3, v1")
    for t in range(4):
        for q in range(4):
            a(f"ds_write_b128 v{t1}, {v(ACC+16*t+4*q,4)} offset:{t*16384+q*1024}")
    bar()
    a(f"s_lshl_b32 s3, s{BW}, 14")
    a(f"s_add_u32 s3, s3, {A_OP}")
    a(f"v_add_u32 v{t1}, s3, v1")
    for src in range(3):
        for q in range(4):
            a(f"ds_read_b128 {v(88+16*src+4*q,4)}, v{t1} offset:{src*4096+q*1024}")
    YT = 8
    for q in range(4):
        a(f"ds_read_b128 {v(YT+4*q,4)}, v{t1} offset:{3*4096+q*1024}")
        if q == 2: a("s_waitcnt lgkmcnt(4)")
    a("s_waitcnt lgkmcnt(0)")
    VT_, VD_, VO_, t1, t2, t3, t4, t5 = 40, 41, 42, 43, 44, 45, 46, 47
    for r in range(16):
        a(f"v_add_f32 v{88+r}, v{88+r}, v{104+r}")
        a(f"v_add_f32 v{YT+r}, v{YT+r}, v{120+r}")
    a("v_lshlrev_b32 v3, 16, v3")
    for r in range(16):
        a(f"v_add_f32 v{YT+r}, v{YT+r}, v{88+r}")
        a(f"v_lshlrev_b32 v{XS+r}, 16, v{XS+r}")
        a(f"v_mul_f32 v{XS+r}, v{XS+r}, v3")
        a(f"v_fma_f32 v{YT+r}, 2.0, v{YT+r}, v{XS+r}")
        a(f"v_sub_f32 v{XS+r}, 1.0, v{GT+r}")
        a(f"v_mul_f32 v{YT+r}, v{YT+r}, v{XS+r}")
    a(f"s_lshl_b32 s3, s{RB}, 6")
    a("s_lshl_b32 s33, s38, 5")
    a("s_add_u32 s3, s3, s33")
    a(f"v_lshrrev_b32 v{VT_}, 5, v0")
    a(f"v_lshlrev_b32 v{VT_}, 4, v{VT_}")
    a(f"v_add_u32 v{VT_}, s3, v{VT_}")
    a(f"s_lshl_b32 s33, s{J2}, 6")
    a(f"s_and_b32 s35, s{BW}, 1")
    a("s_lshl_b32 s35, s35, 5")
    a("s_add_u32 s33, s33, s35")
    a(f"v_and_b32 v{VD_}, 31, v0")
    a(f"v_add_u32 v{VD_}, s33, v{VD_}")
    a(f"v_mul_u32_u24 v{VO_}, 1792, v{VT_}")
    a(f"v_lshl_add_u32 v{VO_}, v{VD_}, 2, v{VO_}")
    srd(a, 48, S_OUT, OUTBYTES)
    a("v_lshrrev_b32 v6, 5, v0")
    a("v_lshlrev_b32 v6, 2, v6")
    a("v_bfe_u32 v7, v0, 2, 2")
    a("v_add_u32 v6, v6, v7")
    a("v_lshlrev_b32 v6, 7, v6")
    a("v_and_b32 v7, 16, v0")
    a(f"v_and_b32 v{t1}, 3, v0")
    a(f"v_lshl_add_u32 v7, v{t1}, 2, v7")
    a("v_lshl_add_u32 v6, v7, 1, v6")
    a(f"s_and_b32 s3, s{BW}, 1")
    a(f"s_mul_i32 s3, s3, {8*28*128}")
    a("v_add_u32 v6, s3, v6")
    a("s_waitcnt vmcnt(0)")
    a("s_setprio 3")
    pf.stamp(12)
    bar()
    a(f"v_lshlrev_b32 v{t4}, 2, v0")
    a(f"s_lshl_b32 s35, s{RB}, 7")
    a(f"s_add_u32 s35, s35, {FL_O}")
    a("s_mov_b64 s[58:59], 0xff")
    poll(a, P + "_pollO", t5, t4, 35, 58)
    pf.stamp(13)
    a(f"s_lshl_b32 s3, s{RB}, 1")
    a("s_add_u32 s3, s3, s38")
    a("s_lshl_b32 s3, s3, 15")
    a(f"s_and_b32 s33, s{BW}, 1")
    a("s_lshl_b32 s33, s33, 14")
    a("s_add_u32 s3, s3, s33")
    a(f"s_add_u32 s32, s3, {WS_OF}")
    OFR = 88
    for st_ in range(16):
        a(f"s_add_u32 s33, s32, {st_*1024}")
        a(f"buffer_load_dwordx4 {v(OFR+4*st_,4)}, v1, s[{WSR}:{WSR+3}], s33 offen{SC1}")
    PA_ = [56, 72]
    WB = [24, 32]
    def rdW(st_):
        hd, f = st_ >> 1, st_ & 1
        off = (28 * hd + 16 * f) * 128
        b = WB[st_ & 1]
        for ct in range(2):
            a(f"ds_read_b64_tr_b16 {v(b+4*ct,2)}, v6 offset:{off+ct*64}")
            a(f"ds_read_b64_tr_b16 {v(b+4*ct+2,2)}, v6 offset:{off+ct*64+1024}")
    rdW(0)
    for st_ in range(16):
        if st_ + 1 < 16: rdW(st_ + 1)
        a(f"s_waitcnt vmcnt({15-st_}) lgkmcnt({4 if st_ + 1 < 16 else 0})")
        for ct in range(2):
            c = "0" if st_ == 0 else v(PA_[ct], 16)
            a(f"{MF} {v(PA_[ct],16)}, {v(OFR+4*st_,4)}, {v(WB[st_&1]+4*ct,4)}, {c}")
    a(f"s_xor_b32 s3, s{BW}, 1")
    a("s_lshl_b32 s3, s3, 12")
    a("s_add_u32 s3, s3, 65536")
    a(f"v_add_u32 v{t1}, s3, v1")
    a(f"s_and_b32 s33, s{BW}, 1")
    a("s_nop 7")
    a("s_cmp_eq_u32 s33, 0")
    a(f"s_cbranch_scc0 {P}_send0")
    for q in range(4): a(f"ds_write_b128 v{t1}, {v(PA_[1]+4*q,4)} offset:{q*1024}")
    a(f"s_branch {P}_sent")
    a.label(P + "_send0")
    a("s_nop 1")
    for q in range(4): a(f"ds_write_b128 v{t1}, {v(PA_[0]+4*q,4)} offset:{q*1024}")
    a("s_nop 1")
    for r in range(16): a(f"v_mov_b32 v{PA_[0]+r}, v{PA_[1]+r}")
    a.label(P + "_sent")
    bar()
    a(f"s_lshl_b32 s3, s{BW}, 12")
    a("s_add_u32 s3, s3, 65536")
    a(f"v_add_u32 v{t1}, s3, v1")
    for q in range(4): a(f"ds_read_b128 {v(88+4*q,4)}, v{t1} offset:{q*1024}")
    a("s_waitcnt lgkmcnt(0)")
    for r in range(16):
        a(f"v_add_f32 v{88+r}, v{88+r}, v{PA_[0]+r}")
        a(f"v_fma_f32 v{88+r}, v{GT+r}, v{88+r}, v{YT+r}")
    for r in range(16):
        a(f"buffer_store_dword v{88+r}, v{VO_}, s[48:51], 0 offen offset:{(r%2)*1792}{os.environ.get('OST', '')}")
        if r % 2 == 1 and r < 15: a(f"v_add_u32 v{VO_}, {2*1792}, v{VO_}")
    pf.stamp(14)
    a(f"s_branch {P}_end")
    a.label(P + "_skip")
    if os.environ.get("S3", "b") in ("b", "u"): stage3("b")
    a(f"v_mov_b32 v54, {L_CNT}")
    a("v_mov_b32 v55, 1")
    a("s_mov_b64 exec, 1")
    a(f"ds_add_u32 v54, v55 offset:{C_UDONE}")
    a("s_mov_b64 exec, -1")
    a.label(P + "_end")

def lds_wait(a, coff, target, vaddr, vtmp, lab, sleep=1):
    a.label(lab)
    a(f"ds_read_b32 v{vtmp}, v{vaddr} offset:{coff}")
    a("s_waitcnt lgkmcnt(0)")
    a(f"v_readfirstlane_b32 s3, v{vtmp}")
    a(f"s_cmp_ge_u32 s3, {target}")
    a(f"s_cbranch_scc1 {lab}_ok")
    a(f"s_sleep {sleep}")
    a(f"s_sub_u32 s{SPIN}, s{SPIN}, 1")
    a(f"s_cbranch_scc0 {lab}")
    a(f"s_mov_b32 s{SPIN}, 0")
    a.label(lab + "_ok")

def lds_arrive(a, coff, vaddr, vtmp):
    a(f"v_mov_b32 v{vaddr}, {L_CNT}")
    a(f"v_mov_b32 v{vtmp}, 1")
    a("s_mov_b64 exec, 1")
    a(f"ds_add_u32 v{vaddr}, v{vtmp} offset:{coff}")
    a("s_mov_b64 exec, -1")

def dma_loop(a, lab, vaddr, n, dsrc, dlds):
    a("s_mov_b32 s36, %d" % n)
    a.label(lab)
    a("s_sub_u32 s36, s36, 1")
    a(f"buffer_load_dwordx4 v{vaddr}, s[{TR}:{TR+3}], s32 offen lds")
    a(f"s_add_u32 s32, s32, {dsrc}")
    a(f"s_add_u32 m0, m0, {dlds}")
    a("s_cmp_lg_u32 s36, 0")
    a(f"s_cbranch_scc1 {lab}")

def q_loop(a, acc, X4, W4, vxe, vxo, vw):
    def rd(j):
        k = j & 3
        a(f"ds_read_b128 {v(X4+4*k,4)}, v{vxo if j & 1 else vxe} offset:{(j>>1)*4096}")
        a(f"ds_read_b64_tr_b16 {v(W4+4*k,2)}, v{vw} offset:{j*2048}")
        a(f"ds_read_b64_tr_b16 {v(W4+4*k+2,2)}, v{vw} offset:{j*2048+512}")
    for j in range(4): rd(j)
    for j in range(28):
        left = min(3, 27 - j)
        a(f"s_waitcnt lgkmcnt({3*left})")
        c = "0" if j == 0 else v(acc, 16)
        a(f"{MF} {v(acc,16)}, {v(W4+4*(j&3),4)}, {v(X4+4*(j&3),4)}, {c}")
        if j + 4 < 28: rd(j + 4)

def gen_fused(a):
    name = NAME + "_kernel"
    a(f".globl {name}")
    a(".p2align 8")
    a(f".type {name},@function")
    a.label(name)
    END = "L_end"
    a("s_cmp_ge_u32 s2, 256")
    a(f"s_cbranch_scc1 {END}")
    a("s_load_dwordx16 s[64:79], s[0:1], 0")
    a("s_load_dwordx16 s[80:95], s[0:1], 64")
    a("s_load_dwordx4 s[96:99], s[0:1], 128")
    a("v_lshrrev_b32 v2, 6, v0")
    a("v_and_b32 v0, 63, v0")
    a(f"v_readfirstlane_b32 s{WV}, v2")
    a(f"v_mov_b32 v4, {L_CNT}")
    a("v_mov_b32 v5, 0")
    a("v_lshl_add_u32 v4, v0, 2, v4")
    a("ds_write_b32 v4, v5")
    a(f"s_and_b32 s{RB}, s2, 7")
    a(f"s_lshl_b32 s{RB}, s{RB}, 2")
    a(f"s_lshr_b32 s{J2}, s2, 3")
    a(f"s_and_b32 s3, s{J2}, 3")
    a(f"s_add_u32 s{RB}, s{RB}, s3")
    a(f"s_lshr_b32 s{J2}, s{J2}, 2")
    a("v_lshlrev_b32 v1, 4, v0")
    a(f"s_mov_b32 s{SPIN}, 0x100000")
    a(f"s_sub_u32 s{BW}, s{WV}, 8")
    pfA = Prof(a, 167)
    a("s_waitcnt lgkmcnt(0)")
    a("s_barrier")
    srd(a, WSR, S_WS, WS_SIZE)
    if PROF: a("v_mov_b32 v167, 0")
    pfA.stamp(0)
    if PROF:
        a("s_getreg_b32 s60, hwreg(HW_REG_XCC_ID)")
        a("v_writelane_b32 v167, s60, 20")
        a("s_getreg_b32 s60, hwreg(HW_REG_HW_ID)")
        a("v_writelane_b32 v167, s60, 21")
    a(f"s_cmp_ge_u32 s{WV}, 8")
    a("s_cbranch_scc1 p0_bgw")
    a(f"s_cmp_ge_u32 s{WV}, 4")
    a("s_cbranch_scc1 p0_kvw")
    srd(a, TR, S_X, XBYTES)
    xtile_lane_off(a, 3, 0, 4, 5)
    a(f"s_mul_i32 s32, s{RB}, {64*896}")
    a(f"s_lshr_b32 s3, s{WV}, 1")
    a(f"s_mul_i32 s3, s3, {32*896}")
    a("s_add_u32 s32, s32, s3")
    a(f"s_and_b32 s3, s{WV}, 1")
    a(f"s_mul_i32 s3, s3, {8*896}")
    a("s_add_u32 s32, s32, s3")
    a(f"s_lshl_b32 s34, s{WV}, 10")
    a("s_mov_b32 m0, s34")
    dma_loop(a, "p0_xdma", 3, 14, 64, 4096)
    pfA.stamp(1)
    xfrag_addr(a, 6, 0, 4)
    tr_rowcol(a, 12, 13, 0, 4)
    a(f"s_lshr_b32 s38, s{WV}, 1")
    a(f"s_and_b32 s39, s{WV}, 1")
    a("s_lshl_b32 s3, s38, 11")
    a("v_add_u32 v6, s3, v6")
    a("v_xor_b32 v7, 32, v6")
    a("v_lshlrev_b32 v10, 7, v12")
    a("v_lshl_add_u32 v10, v13, 1, v10")
    a("s_mul_i32 s3, s39, 56")
    a(f"s_add_u32 s3, s3, {L_WQ}")
    a("v_add_u32 v10, s3, v10")
    a("s_waitcnt vmcnt(0)")
    lds_arrive(a, C_XR, 4, 5)
    pfA.stamp(2)
    a("s_waitcnt lgkmcnt(0)")
    a("s_barrier")
    pfA.stamp(3)
    q_loop(a, 16, 32, 48, 6, 7, 10)
    a(f"s_mov_b32 s42, {hex(QSCALE)}")
    a(f"s_lshl_b32 s3, s{WV}, 11")
    a(f"s_add_u32 s3, s3, {L_QX}")
    a("v_add_u32 v12, s3, v1")
    a("s_nop 7")
    a("s_nop 0")
    for i in range(16): a(f"v_mul_f32 v{16+i}, s42, v{16+i}")
    for i in range(8): a(f"v_cvt_pk_bf16_f32 v{32+i}, v{16+2*i}, v{17+2*i}")
    a("s_mov_b32 exec_lo, 0")
    a("v_mov_b32 v38, 0")
    a("v_mov_b32 v39, 0")
    a("s_mov_b32 exec_lo, -1")
    a("ds_write_b128 v12, v[32:35]")
    a("ds_write_b128 v12, v[36:39] offset:1024")
    a("s_branch p0_b1")
    a.label("p0_kvw")
    a("s_getpc_b64 s[56:57]")
    a.label("p0_pc")
    a(f"s_sub_u32 s39, s{WV}, 4")
    a("s_lshl_b32 s3, s39, 13")
    a("v_lshlrev_b32 v150, 7, v0")
    a("v_add_u32 v150, s3, v150")
    a(f"s_sub_u32 s56, s56, p0_pc-{NAME}_kernel")
    a("s_subb_u32 s57, s57, 0")
    a(f"s_mov_b32 s3, L_end-{NAME}_kernel")
    a("v_min_u32 v150, s3, v150")
    a("global_load_dword v150, v150, s[56:57]")
    a("s_cmp_eq_u32 s39, 0")
    a("s_cbranch_scc0 p0_pf_out")
    a("v_lshlrev_b32 v151, 21, v0")
    a("s_mov_b64 exec, 7")
    a(f"buffer_load_dword v151, v151, s[{WSR}:{WSR+3}], 0 offen")
    a("s_mov_b64 exec, -1")
    a.label("p0_pf_out")
    a("s_cmp_eq_u32 s39, 1")
    a("s_cbranch_scc0 p0_pf_done")
    srd(a, 48, S_OUT, OUTBYTES)
    a("v_mul_u32_u24 v151, 0x1c0000, v0")
    a("s_mov_b64 exec, 7")
    a("buffer_load_dword v151, v151, s[48:51], 0 offen")
    a("s_mov_b64 exec, -1")
    if os.environ.get("S3") == "mall":
        a("s_cmp_eq_u32 s39, 3")
        a("s_cbranch_scc0 p0_pf_done")
        a("v_lshlrev_b32 v149, 7, v0")
        a(f"s_mul_i32 s3, s2, {13*128}")
        a(f"s_mov_b32 m0, {L_JUNK}")
        a("s_mov_b64 exec, 0x1fff")
        for sp in (S_CRE, S_CIM, S_WO):
            srd(a, 48, sp, WBYTES)
            a("buffer_load_dword v149, s[48:51], s3 offen lds")
        a("s_mov_b64 exec, -1")
    a.label("p0_pf_done")
    a(f"s_cmp_ge_u32 s{J2}, 3")
    a("s_cbranch_scc1 p0_kv_none")
    a("s_lshr_b32 s38, s39, 1")
    a("s_and_b32 s39, s39, 1")
    a(f"s_mov_b32 s15, {1 if 'dry' in X else 0}")
    a("s_setprio 3")
    a.label("p0_kv_setup")
    a(f"s_mov_b32 s8, s{WSR}")
    a(f"s_mov_b32 s9, s{WSR+1}")
    a("s_cmp_eq_u32 s15, 0")
    a(f"s_cselect_b32 s10, {WS_SIZE}, 0")
    a("s_mov_b32 s11, 0x00020000")
    xfrag_addr(a, 6, 0, 4)
    tr_rowcol(a, 12, 13, 0, 4)
    a("s_lshl_b32 s3, s38, 11")
    a("s_mul_i32 s41, s39, 28672")
    a("s_add_u32 s3, s3, s41")
    a("v_add_u32 v6, s3, v6")
    a("v_xor_b32 v7, 32, v6")
    a("s_mul_i32 s40, s39, 14")
    a(f"s_cmp_eq_u32 s{J2}, 2")
    a("s_cbranch_scc1 p0_kv_gaddr")
    a("v_mul_u32_u24 v10, 56, v12")
    a("v_lshl_add_u32 v10, v13, 1, v10")
    a(f"s_mul_i32 s3, s40, {16*56}")
    a(f"s_add_u32 s3, s3, {L_WKV}")
    a("v_add_u32 v10, s3, v10")
    a("v_add_u32 v11, 224, v10")
    a(f"s_mov_b32 s42, {16*56}")
    a("s_branch p0_kv_addr_done")
    a.label("p0_kv_gaddr")
    a("v_lshlrev_b32 v10, 3, v12")
    a("s_lshl_b32 s3, s40, 7")
    a(f"s_add_u32 s3, s3, {L_WKV}")
    a("v_add_u32 v10, s3, v10")
    a("v_add_u32 v11, 32, v10")
    a("s_mov_b32 s42, 128")
    a.label("p0_kv_addr_done")
    a(f"v_mov_b32 v4, {L_CNT}")
    a("s_cmp_lg_u32 s15, 0")
    a("s_cbranch_scc1 p0_xr_ok")
    lds_wait(a, C_XR, 8, 4, 5, "p0_xr")
    pfA.stamp(2)
    def kv_rd(i):
        a(f"ds_read_b128 {v(32+4*i,4)}, v{6+(i&1)} offset:{(i>>1)*4096}")
        a(f"ds_read_b64_tr_b16 {v(88+4*i,2)}, v10")
        a(f"ds_read_b64_tr_b16 {v(88+4*i+2,2)}, v11")
        if i < 13:
            a("v_add_u32 v10, s42, v10")
            a("v_add_u32 v11, s42, v11")
    def kv_mm(swap, tag):
        for i in range(4): kv_rd(i)
        for i in range(14):
            a(f"s_waitcnt lgkmcnt({3*min(3, 13-i)})")
            A, B = (32+4*i, 88+4*i) if swap else (88+4*i, 32+4*i)
            a(f"{MF} v[16:31], {v(A,4)}, {v(B,4)}, {'0' if i == 0 else 'v[16:31]'}")
            if i + 4 < 14: kv_rd(i + 4)
    a(f"s_cmp_ge_u32 s{J2}, 1")
    a("s_cbranch_scc1 p0_kv_swap")
    kv_mm(False, "k")
    a("s_branch p0_kv_mm_done")
    a.label("p0_kv_swap")
    kv_mm(True, "v")
    a.label("p0_kv_mm_done")
    pfA.stamp(22)
    a("s_lshl_b32 s3, s38, 12")
    a(f"s_add_u32 s3, s3, {L_QX}")
    a("v_add_u32 v12, s3, v1")
    a("s_nop 7")
    a("s_nop 0")
    a("s_cmp_lg_u32 s15, 0")
    a("s_cbranch_scc1 p0_kv_root")
    a("s_cmp_eq_u32 s39, 0")
    a("s_cbranch_scc1 p0_kv_root")
    for q in range(4): a(f"ds_write_b128 v12, {v(16+4*q,4)} offset:{q*1024}")
    a("s_waitcnt lgkmcnt(0)")
    a("s_lshl_b32 s3, s38, 2")
    a(f"v_mov_b32 v4, {L_CNT}")
    a("v_add_u32 v4, s3, v4")
    a("v_mov_b32 v5, 1")
    a("s_mov_b64 exec, 1")
    a(f"ds_add_u32 v4, v5 offset:{C_KVR}")
    a("s_mov_b64 exec, -1")
    a("s_branch p0_kv_none")
    a.label("p0_kv_root")
    a("s_lshl_b32 s3, s38, 2")
    a(f"v_mov_b32 v4, {L_CNT}")
    a("v_add_u32 v4, s3, v4")
    a("s_cmp_lg_u32 s15, 0")
    a("s_cbranch_scc1 p0_kvr_ok")
    lds_wait(a, C_KVR, 1, 4, 5, "p0_kvr")
    pfA.stamp(23)
    for i in range(4): a(f"ds_read_b128 {v(32+4*i,4)}, v12 offset:{i*1024}")
    a("s_waitcnt lgkmcnt(0)")
    for r in range(16): a(f"v_add_f32 v{16+r}, v{16+r}, v{32+r}")
    a(f"s_lshl_b32 s43, s{RB}, 1")
    a("s_add_u32 s43, s43, s38")
    a(f"s_cmp_eq_u32 s{J2}, 2")
    a("s_cbranch_scc1 p0_gate_epi")
    for i in range(8): a(f"v_cvt_pk_bf16_f32 v{32+i}, v{16+2*i}, v{17+2*i}")
    a("s_lshl_b32 s44, s43, 12")
    a(f"s_add_u32 s44, s44, {WS_KV}")
    a(f"s_cmp_eq_u32 s{J2}, 1")
    a("s_cbranch_scc1 p0_v_epi")
    a("s_mov_b32 exec_lo, 0")
    a("v_mov_b32 v38, 0x3f803f80")
    a("v_mov_b32 v39, 0x00003f80")
    a("s_mov_b32 exec_lo, -1")
    a(f"buffer_store_dwordx4 v[32:35], v1, s[8:11], s44 offen{SC1}")
    a(f"buffer_store_dwordx4 v[36:39], v1, s[8:11], s44 offen offset:1024{SC1}")
    a("s_branch p0_kv_arrive")
    a.label("p0_v_epi")
    a("v_max3_f32 v14, |v16|, |v17|, |v18|")
    for j in range(3, 15, 2): a(f"v_max3_f32 v14, v14, |v{16+j}|, |v{17+j}|")
    a("v_max_f32 v14, v14, |v31|")
    a("v_and_b32 v13, 31, v0")
    a("v_cmp_gt_u32 s[46:47], 28, v13")
    a(f"v_cmp_lt_f32 vcc, {hex(VMAX)}, v14")
    a("s_and_b64 vcc, vcc, s[46:47]")
    a("s_cbranch_vccz p0_v_ok")
    a("s_cmp_lg_u32 s15, 0")
    a("s_cbranch_scc1 p0_v_ok")
    srd(a, 48, S_DBG, 256)
    a("v_mov_b32 v14, 1")
    a(f"v_mov_b32 v15, {D_BAD}")
    a("s_mov_b64 exec, 1")
    a(f"buffer_store_dword v14, v15, s[48:51], 0 offen{SC1}")
    a("s_mov_b64 exec, -1")
    a.label("p0_v_ok")
    a("v_and_b32 v13, 31, v0")
    a("v_cmp_eq_u32 vcc, 28, v13")
    a("v_mov_b32 v14, 0x3f803f80")
    a("s_nop 0")
    a("v_cndmask_b32 v14, 0, v14, vcc")
    a("v_cmp_lt_u32 vcc, 27, v13")
    a("s_nop 1")
    for i in range(8): a(f"v_cndmask_b32 v{32+i}, v{32+i}, v14, vcc")
    a(f"buffer_store_dwordx4 v[32:35], v1, s[8:11], s44 offen offset:2048{SC1}")
    a(f"buffer_store_dwordx4 v[36:39], v1, s[8:11], s44 offen offset:3072{SC1}")
    a("s_branch p0_kv_arrive")
    a.label("p0_gate_epi")
    a(f"s_mov_b32 s42, {hex(LOG2E)}")
    for i in range(16): a(f"v_mul_f32 v{16+i}, s42, v{16+i}")
    for i in range(16): a(f"v_exp_f32 v{16+i}, -v{16+i}")
    for i in range(16): a(f"v_add_f32 v{16+i}, 1.0, v{16+i}")
    for i in range(16): a(f"v_rcp_f32 v{16+i}, v{16+i}")
    a("v_lshrrev_b32 v13, 5, v0")
    a("v_lshlrev_b32 v13, 6, v13")
    a("s_lshl_b32 s44, s43, 7")
    a(f"s_add_u32 s44, s44, {WS_G}")
    a("v_and_b32 v14, 31, v0")
    a("v_cmp_eq_u32 vcc, 0, v14")
    a("s_and_saveexec_b64 s[46:47], vcc")
    for q in range(4):
        a(f"buffer_store_dwordx4 {v(16+4*q,4)}, v13, s[8:11], s44 offen offset:{16*q}{SC1}")
    a("s_mov_b64 exec, -1")
    a.label("p0_kv_arrive")
    a("s_cmp_eq_u32 s15, 0")
    a("s_cbranch_scc1 p0_kv_real")
    a("s_mov_b32 s15, 0")
    a("s_branch p0_kv_setup")
    a.label("p0_kv_real")
    pfA.stamp(10)
    a("s_mov_b32 s16, 1")
    a("s_branch p0_kv_b0")
    a.label("p0_kv_none")
    a("s_mov_b32 s16, 0")
    a.label("p0_kv_b0")
    a("s_setprio 0")
    a("s_waitcnt lgkmcnt(0)")
    a("s_barrier")
    pfA.stamp(3)
    a("s_branch p0_b1")
    a.label("p0_bgw")
    a(f"s_cmp_eq_u32 s{WV}, 8")
    a("s_cbranch_scc0 p0_t9")
    srd(a, 48, S_X, XBYTES)
    a("s_and_b32 s3, s2, 7")
    a(f"s_mul_i32 s3, s3, {256*896}")
    a("s_lshr_b32 s46, s2, 3")
    a("s_mul_i32 s46, s46, 7168")
    a("s_add_u32 s3, s3, s46")
    a("v_lshlrev_b32 v50, 7, v0")
    a("s_mov_b32 exec_hi, 0xffffff")
    a("buffer_load_dword v52, v50, s[48:51], s3 offen")
    a("s_mov_b64 exec, -1")
    a("s_branch p0_t_done")
    a.label("p0_t9")
    a(f"s_cmp_eq_u32 s{WV}, 9")
    a("s_cbranch_scc0 p0_t10")
    touch_matrix(a, S_WQ, 52, 50)
    a("s_branch p0_t_done")
    a.label("p0_t10")
    a(f"s_cmp_eq_u32 s{WV}, 10")
    a("s_cbranch_scc0 p0_t_done")
    a("s_lshr_b32 s3, s2, 3")
    a(f"s_mul_i32 s3, s3, {7*128}")
    a("v_lshlrev_b32 v50, 7, v0")
    a("s_mov_b64 exec, 0x7f")
    srd(a, 48, S_WK, WKBYTES)
    a("buffer_load_dword v52, v50, s[48:51], s3 offen")
    srd(a, 48, S_WV, WKBYTES)
    a("buffer_load_dword v53, v50, s[48:51], s3 offen")
    a("s_mov_b64 exec, -1")
    a.label("p0_t_done")
    a(f"s_cmp_eq_u32 s{WV}, 11")
    a("s_cbranch_scc0 p0_nononce")
    a("s_cmp_eq_u32 s2, 0")
    a("s_cbranch_scc0 p0_nononce")
    srd(a, 48, S_DBG, 256)
    a("v_mov_b32 v7, 0")
    a("s_memrealtime s[60:61]")
    a("s_waitcnt lgkmcnt(0)")
    a("s_and_b32 s60, s60, 0xfffffffc")
    a("s_or_b32 s60, s60, 1")
    a("v_mov_b32 v6, s60")
    a("s_mov_b64 exec, 1")
    a(f"buffer_store_dword v6, v7, s[48:51], 0 offen offset:{D_NONCE}{SC1}")
    a("s_mov_b64 exec, -1")
    a("s_waitcnt vmcnt(0)")
    a.label("p0_nononce")
    a(f"s_cmp_lt_u32 s{J2}, 2")
    a("s_cbranch_scc1 p0_dma_wkv")
    a(f"s_cmp_eq_u32 s{J2}, 2")
    a("s_cbranch_scc0 p0_wkv_done")
    a(f"s_cmp_eq_u32 s{WV}, 8")
    a("s_cbranch_scc0 p0_wkv_done")
    srd(a, TR, S_GW, 896)
    a("v_lshlrev_b32 v3, 1, v0")
    for i in range(7):
        a(f"buffer_load_ushort v{10+i}, v3, s[{TR}:{TR+3}], 0 offen offset:{i*128}")
    a("v_lshlrev_b32 v4, 3, v0")
    a(f"v_add_u32 v4, {L_WKV}, v4")
    a("s_waitcnt vmcnt(0)")
    for i in range(7):
        a(f"v_lshl_or_b32 v{20+2*i}, v{10+i}, 16, v{10+i}")
        a(f"v_mov_b32 v{21+2*i}, v{20+2*i}")
        a(f"ds_write_b64 v4, {v(20+2*i,2)} offset:{i*512}")
    a("s_branch p0_wkv_done")
    a.label("p0_dma_wkv")
    a(f"s_cmp_eq_u32 s{J2}, 0")
    a(f"s_cselect_b32 s{TR}, s{S_WK}, s{S_WV}")
    a(f"s_cselect_b32 s{TR+1}, s{S_WK+1}, s{S_WV+1}")
    a(f"s_mov_b32 s{TR+2}, {WKBYTES}")
    a(f"s_mov_b32 s{TR+3}, 0x00020000")
    a("v_lshlrev_b32 v3, 4, v0")
    a(f"s_mul_i32 s32, s{BW}, 7168")
    a(f"s_add_u32 s34, s32, {L_WKV}")
    a("s_mov_b32 m0, s34")
    dma_loop(a, "p0_wdma", 3, 7, 1024, 1024)
    a.label("p0_wkv_done")
    a(f"s_lshl_b32 s37, s{J2}, 1")
    a(f"s_and_b32 s3, s{BW}, 1")
    a("s_add_u32 s37, s37, s3")
    a("v_and_b32 v4, 31, v0")
    a("s_lshl_b32 s3, s37, 6")
    a("v_lshl_add_u32 v4, v4, 1, s3")
    srd(a, 40, S_LRE, 896); a("buffer_load_ushort v8, v4, s[40:43], 0 offen")
    srd(a, 44, S_LIM, 896); a("buffer_load_ushort v9, v4, s[44:47], 0 offen")
    srd(a, 52, S_LDT, 896); a("buffer_load_ushort v10, v4, s[52:55], 0 offen")
    a("s_waitcnt vmcnt(3) lgkmcnt(0)")
    lds_arrive(a, C_XR, 4, 5)
    srd(a, TR, S_WQ, WBYTES)
    a("v_lshrrev_b32 v3, 3, v0")
    a("v_mul_u32_u24 v3, 896, v3")
    a("v_and_b32 v4, 7, v0")
    a("v_lshl_add_u32 v3, v4, 4, v3")
    a(f"s_mul_i32 s32, s{BW}, {112*896}")
    a(f"s_mul_i32 s33, s{J2}, 112")
    a("s_add_u32 s32, s32, s33")
    a(f"s_mul_i32 s34, s{BW}, 14336")
    a(f"s_add_u32 s34, s34, {L_WQ}")
    a("s_mov_b32 m0, s34")
    dma_loop(a, "p0_qdma", 3, 14, 7168, 1024)
    a(f"s_cmp_gt_u32 s{WV}, 9")
    a("s_cbranch_scc1 p0_nob")
    a(f"s_cmp_eq_u32 s{WV}, 8")
    a(f"s_cselect_b32 s56, s{S_BRE}, s{S_BIM}")
    a(f"s_cselect_b32 s57, s{S_BRE+1}, s{S_BIM+1}")
    touch_matrix(a, 56, 52, 50)
    a("s_mov_b32 s17, 1")
    a("s_waitcnt vmcnt(16)")
    a("s_branch p0_nob2")
    a.label("p0_nob")
    a("s_mov_b32 s17, 0")
    a("s_waitcnt vmcnt(14)")
    a.label("p0_nob2")
    a(f"v_mov_b32 v4, {L_CNT}")
    lds_wait(a, C_XR, 8, 4, 5, "p0_xr2")
    xfrag_addr(a, 6, 0, 4)
    a(f"s_lshr_b32 s38, s{BW}, 1")
    a("s_lshl_b32 s3, s38, 11")
    a("v_add_u32 v6, s3, v6")
    a("v_xor_b32 v7, 32, v6")
    for j in range(28):
        a(f"ds_read_b128 {v(56+4*j,4)}, v{6 + (j&1)} offset:{(j>>1)*4096}")
        if j in (11, 21): a("s_waitcnt lgkmcnt(2)")
    a("v_lshlrev_b32 v8, 16, v8")
    a("v_lshlrev_b32 v9, 16, v9")
    a("v_lshlrev_b32 v10, 16, v10")
    a(f"v_mul_f32 v10, {hex(LOG2E)}, v10")
    a("v_exp_f32 v10, v10")
    a("s_nop 0")
    a("v_cvt_pk_bf16_f32 v10, v10, v10")
    a("v_lshlrev_b32 v10, 16, v10")
    a("v_mul_f32 v11, v10, v8")
    a("v_mul_f32 v12, v10, v9")
    a(f"v_mul_f32 v11, {hex(LOG2E)}, v11")
    a(f"v_mul_f32 v12, {hex(INV2PI)}, v12")
    a("v_exp_f32 v13, v11")
    a("v_fract_f32 v14, v12")
    a("s_nop 0")
    a("v_cos_f32 v2, v14")
    a("v_sin_f32 v3, v14")
    a("s_nop 0")
    a("v_mul_f32 v2, v2, v13")
    a("v_mul_f32 v3, v3, v13")
    a("v_add_f32 v13, -1.0, v2")
    a("v_mul_f32 v14, v8, v8")
    a("v_fma_f32 v14, v9, v9, v14")
    a("v_rcp_f32 v14, v14")
    a("v_mul_f32 v15, v13, v8")
    a("v_fma_f32 v15, v3, v9, v15")
    a("v_mul_f32 v16, v3, v8")
    a("v_fma_f32 v16, -v13, v9, v16")
    a("v_mul_f32 v4, v15, v14")
    a("v_mul_f32 v5, v16, v14")
    a("s_cmp_eq_u32 s17, 0")
    a("s_cbranch_scc1 p0_bgw0")
    a("s_waitcnt vmcnt(2) lgkmcnt(0)")
    a("s_branch p0_bgw1")
    a.label("p0_bgw0")
    a("s_waitcnt vmcnt(0) lgkmcnt(0)")
    a.label("p0_bgw1")
    a("s_barrier")
    a.label("p0_b1")
    a("s_waitcnt lgkmcnt(0)")
    if PROF:
        a(f"s_cmp_ge_u32 s{WV}, 8")
        a("s_cbranch_scc1 p0_b1_bgst")
        pfA.stamp(9)
        a("s_branch p0_b1_go")
        a.label("p0_b1_bgst")
        BgProf(a).stamp(4)
        a.label("p0_b1_go")
    a("s_barrier")
    a(f"s_cmp_ge_u32 s{WV}, 8")
    a("s_cbranch_scc1 p1_bg")
    a(f"s_cmp_lt_u32 s{WV}, 4")
    a("s_cbranch_scc1 p1_noarr")
    a("s_cmp_eq_u32 s16, 0")
    a("s_cbranch_scc1 p1_noarr")
    a(f"v_mov_b32 v14, {L_CNT}")
    a("v_mov_b32 v15, 1")
    a("s_waitcnt vmcnt(0)")
    pfA.stamp(11)
    a("s_mov_b64 exec, 1")
    a(f"ds_add_rtn_u32 v15, v14, v15 offset:{C_KVA}")
    a("s_waitcnt lgkmcnt(0)")
    a("v_readfirstlane_b32 s3, v15")
    a("s_cmp_eq_u32 s3, 1")
    a("s_cbranch_scc0 p1_arrdone")
    srd(a, 48, S_DBG, 256)
    a("v_mov_b32 v14, 1")
    a(f"s_cmp_eq_u32 s{J2}, 2")
    a(f"s_cselect_b32 s3, {D_GCNT}, {D_CNT}")
    a("v_mov_b32 v15, s3")
    a("buffer_atomic_add v14, v15, s[48:51], 0 offen sc0 sc1")
    a("s_waitcnt vmcnt(0)")
    a("v_readfirstlane_b32 s3, v14")
    a(f"s_cmp_eq_u32 s{J2}, 2")
    a("s_cselect_b32 s46, 31, 63")
    a(f"s_mov_b32 s47, {D_GO}")
    a(f"s_cselect_b32 s47, {D_GOG}, s47")
    a("s_cmp_eq_u32 s3, s46")
    a("s_cbranch_scc0 p1_arrdone")
    a("v_mov_b32 v14, 1")
    a("v_mov_b32 v15, s47")
    a(f"buffer_store_dword v14, v15, s[48:51], 0 offen{SC1}")
    a.label("p1_arrdone")
    a("s_mov_b64 exec, -1")
    pfA.stamp(12)
    a.label("p1_noarr")
    if PROF: a("v_mov_b32 v0, v167")
    pf = Prof(a, 0)
    pf.stamp(4)
    gen_attention(a, pf)
    pf.flush(2)
    a(f"s_branch {END}")
    a.label("p1_bg")
    a("s_setprio 3")
    gen_background(a, BgProf(a))
    a.label(END)
    a("s_endpgm")
    return name

class BgProf:
    def __init__(self, a): self.a = a; self.T = [54, 55]
    def stamp(self, slot):
        if not PROF or "noprofb" in X: return
        if "onlyb" in os.environ and str(slot) not in os.environ["onlyb"].split(","): return
        a = self.a
        a("s_memrealtime s[60:61]")
        a("s_lshl_b32 s62, s2, 4")
        a(f"s_add_u32 s62, s62, s{WV}")
        a("s_lshl_b32 s62, s62, 8")
        a(f"s_add_u32 s62, s62, {WS_PROF + 4*slot}")
        a("s_waitcnt vmcnt(0) lgkmcnt(0)")
        a("s_mov_b64 exec, 1")
        t0, t1 = self.T
        a(f"v_mov_b32 v{t0}, s60")
        a(f"v_mov_b32 v{t1}, 0")
        a(f"buffer_store_dword v{t0}, v{t1}, s[{WSR}:{WSR+3}], s62 offen")
        a("s_mov_b64 exec, -1")
        a("s_waitcnt vmcnt(0)")
    def flush(self): pass

def build():
    a = Asm()
    name = gen_fused(a)
    text = a.text()
    probs = check_hazards(text)
    ref = open("gated_mix__grouped_kv_mqa__ssm_conv_s5__prompt.s.ref").read().split("\n")
    pre = []
    for ln in ref:
        if not ln.startswith(";"): break
        if "Override launch" in ln or "grid=ceil" in ln or "@launch" in ln: continue
        pre.append(ln)
    head = "\n".join(pre) + "\n"
    head += f"; @launch grid=(256,1,1) block=(768,1,1) lds={LDS_TOTAL}\n"
    out = head + '.amdgcn_target "amdgcn-amd-amdhsa--gfx950"\n.text\n' + text
    out += f""".section .rodata,"a"
.p2align 6
.amdhsa_kernel {name}
  .amdhsa_next_free_vgpr 168
  .amdhsa_next_free_sgpr 102
  .amdhsa_accum_offset 168
  .amdhsa_group_segment_fixed_size 0
  .amdhsa_kernarg_size 144
  .amdhsa_user_sgpr_count 2
  .amdhsa_user_sgpr_kernarg_segment_ptr 1
  .amdhsa_system_sgpr_workgroup_id_x 1
.end_amdhsa_kernel
"""
    return out, probs

if __name__ == "__main__":
    out, probs = build()
    open(sys.argv[1], "w").write(out)
    print("wrote", sys.argv[1], "hazards:", len(probs))
```

```python
import sys, os, struct, math
from asmlib import Asm, v, s, check_hazards

NAME = "gated_mix__grouped_kv_mqa__ssm_conv_s5__prompt"
X = set(os.environ.get('XF', '').split(','))
PROF = "prof" in X
def f2u(x): return struct.unpack("<I", struct.pack("<f", x))[0]
QSCALE = f2u(math.log2(math.e) / math.sqrt(28.0))
LOG2E = f2u(math.log2(math.e))
INV2PI = f2u(1.0 / (2.0 * math.pi))
MF = "v_mfma_f32_32x32x16_bf16"
SC1 = " sc1"
POLLSLEEP = int(os.environ.get('PS', '1'))

WS_KV = 0x000000
WS_G  = 0x040000
WS_FL = 0x042000
FL_H  = WS_FL
FL_O  = WS_FL + 0x1000
WS_E  = 0x048000
D_CNT, D_GCNT, D_GO, D_BAD, D_K0, D_NONCE, D_GOG = 0, 64, 128, 132, 136, 140, 144
WS_OF = 0x080000
WS_HF = 0x280000
WS_PROF = 0x800000
WS_SIZE = 0x1000000
XBYTES = 2048 * 448 * 2
WBYTES = 448 * 448 * 2
WKBYTES = 448 * 28 * 2
OUTBYTES = 2048 * 448 * 4

S_X, S_WQ, S_WK, S_WV, S_WO = 64, 66, 68, 70, 72
S_LRE, S_LIM = 76, 78
S_BRE, S_BIM, S_CRE, S_CIM, S_LDT, S_DSK, S_GW, S_OUT = 80, 82, 84, 86, 88, 90, 92, 94
S_DBG, S_WS = 96, 98
RB, J2, WV, BW = 20, 21, 22, 23
WSR = 24
TR = 28
NONCE = 19
SPIN = 18

L_X = 0; L_WQ = 57344; L_WKV = 114688; L_GW = 143360
L_QX = 147456
L_CNT = 163584
C_ATT, C_BG, C_NONCE, C_BAD, C_UDONE, C_HCNT, C_OCNT, C_XR, C_KVR, C_KVA, C_TRD, C_LEND, C_BL = 0, 4, 8, 12, 16, 20, 24, 28, 32, 40, 44, 48, 52
B_EX = 159744; B_HT = 65536
B_HT2 = 69632
L_C = 0
L_RED = 0
L_WO = 0
A_OP = 90112; A_LP = 155648
LDS_TOTAL = 163840

def srd(a, dst, src, nbytes):
    a(f"s_mov_b32 s{dst}, s{src}")
    a(f"s_mov_b32 s{dst+1}, s{src+1}")
    a(f"s_mov_b32 s{dst+2}, {hex(nbytes)}")
    a(f"s_mov_b32 s{dst+3}, 0x00020000")

class Prof:
    def __init__(self, a, vreg): self.a = a; self.v = vreg
    def stamp(self, slot):
        if not PROF or "noprofa" in X: return
        a = self.a
        a("s_memrealtime s[60:61]")
        a("s_memtime s[62:63]")
        a("s_waitcnt lgkmcnt(0)")
        a(f"v_writelane_b32 v{self.v}, s60, {slot}")
        a(f"v_writelane_b32 v{self.v}, s62, {slot+32}")
    def flush(self, vt):
        if not PROF: return
        a = self.a
        a("s_lshl_b32 s60, s2, 4")
        a(f"s_add_u32 s60, s60, s{WV}")
        a("s_lshl_b32 s60, s60, 8")
        a(f"s_add_u32 s60, s60, {WS_PROF}")
        a("s_mov_b64 exec, -1")
        a(f"v_mbcnt_lo_u32_b32 v{vt}, -1, 0")
        a(f"v_mbcnt_hi_u32_b32 v{vt}, -1, v{vt}")
        a(f"v_lshlrev_b32 v{vt}, 2, v{vt}")
        a(f"buffer_store_dword v{self.v}, v{vt}, s[{WSR}:{WSR+3}], s60 offen")
        a("s_waitcnt vmcnt(0)")

def xtile_lane_off(a, vd, vlane, vt0, vt1):
    a(f"v_lshrrev_b32 v{vt0}, 4, v{vlane}")
    a(f"v_and_b32 v{vt1}, 1, v{vt0}")
    a(f"v_lshlrev_b32 v{vt1}, 4, v{vt1}")
    a(f"v_lshrrev_b32 v{vd}, 5, v{vlane}")
    a(f"v_lshl_add_u32 v{vt1}, v{vd}, 2, v{vt1}")
    a(f"v_bfe_u32 v{vd}, v{vlane}, 2, 2")
    a(f"v_add_u32 v{vt1}, v{vt1}, v{vd}")
    a(f"v_mul_u32_u24 v{vt1}, 896, v{vt1}")
    a(f"v_and_b32 v{vd}, 3, v{vlane}")
    a(f"v_xor_b32 v{vd}, v{vd}, v{vt0}")
    a(f"v_lshl_add_u32 v{vd}, v{vd}, 4, v{vt1}")

def plain_lane_off(a, vd, vlane, vt0):
    a(f"v_lshrrev_b32 v{vt0}, 4, v{vlane}")
    a(f"v_and_b32 v{vd}, 3, v{vlane}")
    a(f"v_xor_b32 v{vd}, v{vd}, v{vt0}")
    a(f"v_lshlrev_b32 v{vd}, 4, v{vd}")
    a(f"v_lshrrev_b32 v{vt0}, 2, v{vlane}")
    a(f"v_mul_u32_u24 v{vt0}, 896, v{vt0}")
    a(f"v_add_u32 v{vd}, v{vd}, v{vt0}")

def xfrag_addr(a, vd, vlane, vt0):
    a(f"v_bfe_u32 v{vt0}, v{vlane}, 2, 2")
    a(f"v_lshrrev_b32 v{vd}, 5, v{vlane}")
    a(f"v_xor_b32 v{vt0}, v{vt0}, v{vd}")
    a(f"v_lshlrev_b32 v{vt0}, 4, v{vt0}")
    a(f"v_and_b32 v{vd}, 31, v{vlane}")
    a(f"v_lshl_add_u32 v{vd}, v{vd}, 6, v{vt0}")

def tr_rowcol(a, vrow, vcol, vlane, vt):
    a(f"v_lshrrev_b32 v{vrow}, 5, v{vlane}")
    a(f"v_lshlrev_b32 v{vrow}, 3, v{vrow}")
    a(f"v_bfe_u32 v{vt}, v{vlane}, 2, 2")
    a(f"v_add_u32 v{vrow}, v{vrow}, v{vt}")
    a(f"v_and_b32 v{vcol}, 16, v{vlane}")
    a(f"v_and_b32 v{vt}, 3, v{vlane}")
    a(f"v_lshl_add_u32 v{vcol}, v{vt}, 2, v{vcol}")

def proj_loop(a, swap, acc, xe, xo, we, wo_, vxe, vxo, vw1, vw2, s_wstep, s_cnt, lab):
    def rd(xr, wr, vx):
        a(f"ds_read_b128 {v(xr,4)}, v{vx}")
        a(f"ds_read_b64_tr_b16 {v(wr,2)}, v{vw1}")
        a(f"ds_read_b64_tr_b16 {v(wr+2,2)}, v{vw2}")
        a(f"v_add_u32 v{vx}, 0x1000, v{vx}")
        a(f"v_add_u32 v{vw1}, s{s_wstep}, v{vw1}")
        a(f"v_add_u32 v{vw2}, s{s_wstep}, v{vw2}")
    def mf(x, w):
        A, B = (x, w) if swap else (w, x)
        a(f"{MF} {v(acc,16)}, {v(A,4)}, {v(B,4)}, {v(acc,16)}")
    rd(xe, we, vxe); rd(xo, wo_, vxo)
    a(f"s_mov_b32 s{s_cnt}, 14")
    a.label(lab)
    a("s_waitcnt lgkmcnt(3)")
    mf(xe, we)
    rd(xe, we, vxe)
    a("s_waitcnt lgkmcnt(3)")
    mf(xo, wo_)
    rd(xo, wo_, vxo)
    a(f"s_sub_u32 s{s_cnt}, s{s_cnt}, 1")
    a(f"s_cmp_lg_u32 s{s_cnt}, 0")
    a(f"s_cbranch_scc1 {lab}")
    a("s_waitcnt lgkmcnt(0)")

def sw_barrier(a, coff, s_tgt, n, vaddr, vtmp, lab):
    a(f"s_add_u32 s{s_tgt}, s{s_tgt}, {n}")
    a(f"v_mov_b32 v{vtmp}, 1")
    a("s_waitcnt lgkmcnt(0)")
    a("s_mov_b64 exec, 1")
    a(f"ds_add_u32 v{vaddr}, v{vtmp} offset:{coff}")
    a("s_mov_b64 exec, -1")
    a.label(lab)
    a(f"ds_read_b32 v{vtmp}, v{vaddr} offset:{coff}")
    a("s_waitcnt lgkmcnt(0)")
    a(f"v_readfirstlane_b32 s3, v{vtmp}")
    a(f"s_cmp_ge_u32 s3, s{s_tgt}")
    a(f"s_cbranch_scc1 {lab}_ok")
    a("s_sleep 1")
    a(f"s_sub_u32 s{SPIN}, s{SPIN}, 1")
    a(f"s_cbranch_scc0 {lab}")
    a(f"s_mov_b32 s{SPIN}, 0")
    a.label(lab + "_ok")

def flag_store(a, soff_reg, vt0, vt1, val=None):
    a("s_mov_b64 exec, 1")
    a(f"v_mov_b32 v{vt0}, s{val if val is not None else NONCE}")
    a(f"v_mov_b32 v{vt1}, 0")
    a(f"buffer_store_dword v{vt0}, v{vt1}, s[{WSR}:{WSR+3}], s{soff_reg} offen{SC1}")
    a("s_mov_b64 exec, -1")

def arrive_flag(a, coff, n, soff_reg, vt0, vt1, lab):
    a(f"v_mov_b32 v{vt0}, {L_CNT}")
    a(f"v_mov_b32 v{vt1}, 1")
    a("s_waitcnt vmcnt(0)")
    a("s_mov_b64 exec, 1")
    a(f"ds_add_rtn_u32 v{vt1}, v{vt0}, v{vt1} offset:{coff}")
    a("s_waitcnt lgkmcnt(0)")
    a(f"v_readfirstlane_b32 s60, v{vt1}")
    a("s_mov_b64 exec, -1")
    a(f"s_cmp_eq_u32 s60, {n-1}")
    a(f"s_cbranch_scc0 {lab}")
    flag_store(a, soff_reg, vt0, vt1)
    a.label(lab)

def poll(a, lab, vdst, voff, soff_reg, mask_pair, sleep=None):
    sleep = POLLSLEEP if sleep is None else sleep
    a.label(lab)
    a(f"buffer_load_dword v{vdst}, v{voff}, s[{WSR}:{WSR+3}], s{soff_reg} offen{SC1}")
    a("s_waitcnt vmcnt(0)")
    a(f"v_cmp_ne_u32 vcc, s{NONCE}, v{vdst}")
    a(f"s_and_b64 vcc, vcc, s[{mask_pair}:{mask_pair+1}]")
    a(f"s_cbranch_vccz {lab}_ok")
    a(f"s_sleep {sleep}")
    a(f"s_sub_u32 s{SPIN}, s{SPIN}, 1")
    a(f"s_cbranch_scc0 {lab}")
    a(f"s_mov_b32 s{SPIN}, 0")
    a.label(lab + "_ok")

def cfma(a, hr, hi, lr, li, ur, ui, tr, ti):
    a(f"v_fma_f32 v{tr}, -v{li}, v{hi}, v{ur}")
    a(f"v_fma_f32 v{ti}, v{li}, v{hr}, v{ui}")
    a(f"v_fma_f32 v{hr}, v{lr}, v{hr}, v{tr}")
    a(f"v_fma_f32 v{hi}, v{lr}, v{hi}, v{ti}")

L_JUNK = 161792
def touch_matrix(a, sptr, vdst, vt, sr=48):
    srd(a, sr, sptr, WBYTES)
    a("s_lshr_b32 s3, s2, 3")
    a(f"s_mul_i32 s3, s3, {98*128}")
    a(f"v_lshlrev_b32 v{vt}, 7, v0")
    a(f"s_mov_b32 m0, {L_JUNK}")
    a("s_nop 0")
    a(f"buffer_load_dword v{vt}, s[{sr}:{sr+3}], s3 offen lds")
    a("s_add_u32 s3, s3, 8192")
    a("s_mov_b32 exec_hi, 3")
    a(f"buffer_load_dword v{vt}, s[{sr}:{sr+3}], s3 offen lds")
    a("s_mov_b64 exec, -1")

AQ, AO, AS, AK, AV, APB = 8, 40, [104, 120], [136, 144], [152, 160], 4

def att_unit(a, u, side):
    up = u - 1; un = u + 1
    cur = AS[u & 1]; prv = AS[(u + 1) & 1]
    Vp = AV[(up >> 2) & 1]; Op = AO + 16 * (up & 3)
    Kn = AK[(un >> 2) & 1]; Qn = AQ + 8 * (un & 3)
    side = list(side)
    def E(lo, hi):
        for j in range(lo, hi):
            a(f"v_exp_f32 v{cur+j}, v{cur+j}")
            if side:
                x = side.pop(0)
                if x: a(x)
    while side and isinstance(side[0], tuple):
        a(side.pop(0)[1])
    a(f"{MF} {v(Op,16)}, {v(Vp,4)}, {v(prv,4)}, {v(Op,16)}")
    E(0, 4)
    a(f"v_cvt_pk_bf16_f32 v{APB+2}, v{prv+12}, v{prv+13}")
    a(f"v_cvt_pk_bf16_f32 v{APB+3}, v{prv+14}, v{prv+15}")
    a(f"{MF} {v(prv,16)}, {v(Kn,4)}, {v(Qn,4)}, 0")
    E(4, 8)
    a(f"v_cvt_pk_bf16_f32 v{cur}, v{cur}, v{cur+1}")
    a(f"v_cvt_pk_bf16_f32 v{cur+1}, v{cur+2}, v{cur+3}")
    a(f"{MF} {v(prv,16)}, {v(Kn+4,4)}, {v(Qn+4,4)}, {v(prv,16)}")
    E(8, 12)
    a(f"v_cvt_pk_bf16_f32 v{cur+2}, v{cur+4}, v{cur+5}")
    a(f"v_cvt_pk_bf16_f32 v{cur+3}, v{cur+6}, v{cur+7}")
    a(f"{MF} {v(Op,16)}, {v(Vp+4,4)}, {v(APB,4)}, {v(Op,16)}")
    E(12, 16)
    a(f"v_cvt_pk_bf16_f32 v{APB}, v{cur+8}, v{cur+9}")
    a(f"v_cvt_pk_bf16_f32 v{APB+1}, v{cur+10}, v{cur+11}")
    assert not side, side

L_SEL = 162560
L_SH = 162048
LMAX = f2u(2.0 ** 90) if "forcefb" not in X else f2u(2.0 ** -20)
VMAX = f2u(2.0 ** 20)

def gen_attention(a, pf):
    P = "att"
    KR = TR
    a(f"v_add_u32 v2, {L_QX}, v1")
    for g in range(4):
        a(f"ds_read_b128 {v(AQ+8*g,4)}, v2 offset:{g*2048}")
        a(f"ds_read_b128 {v(AQ+8*g+4,4)}, v2 offset:{g*2048+1024}")
    a(f"s_add_u32 s{KR}, s{WSR}, {WS_KV}")
    a(f"s_addc_u32 s{KR+1}, s{WSR+1}, 0")
    a(f"s_mov_b32 s{KR+3}, 0x00020000")
    a("s_mov_b32 s44, 0")
    a("s_mov_b32 s51, 0")
    a(f"s_cmp_lt_u32 s{WV}, 4")
    a("s_cselect_b32 s53, 1, -1")
    a(f"s_cmp_eq_u32 s{WV}, 7")
    a(f"s_cbranch_scc0 {P}_nosel")
    a("v_lshrrev_b32 v104, 4, v1")
    a("v_and_b32 v105, 31, v104")
    a("v_lshrrev_b32 v104, 5, v104")
    a("v_lshlrev_b32 v104, 2, v104")
    a("v_sub_u32 v105, v105, v104")
    for j in range(4):
        d0 = (2 * j & 3) + 8 * ((2 * j) >> 2)
        a(f"v_cmp_eq_u32 vcc, {d0}, v105")
        a(f"v_mov_b32 v106, 0x3f80")
        a("s_nop 0")
        a(f"v_cndmask_b32 v{108+j}, 0, v106, vcc")
        a(f"v_cmp_eq_u32 vcc, {d0+1}, v105")
        a(f"v_mov_b32 v106, 0x3f800000")
        a("s_nop 0")
        a(f"v_cndmask_b32 v107, 0, v106, vcc")
        a(f"v_or_b32 v{108+j}, v{108+j}, v107")
    a(f"v_add_u32 v104, {L_SEL}, v1")
    a("ds_write_b128 v104, v[108:111]")
    a.label(P + "_nosel")
    srd(a, 56, S_DBG, 256)
    a(f"s_cmp_eq_u32 s{WV}, 0")
    a(f"s_cbranch_scc0 {P}_nopollA")
    a(f"v_mov_b32 v2, {D_K0}")
    a.label(P + "_pollA")
    a(f"buffer_load_dword v104, v2, s[56:59], 0 offen{SC1}")
    a("s_waitcnt vmcnt(0)")
    a("v_readfirstlane_b32 s3, v104")
    a("s_cmp_lg_u32 s3, 0")
    a(f"s_cbranch_scc1 {P}_nopollA")
    a(f"s_sleep {POLLSLEEP}")
    a(f"s_sub_u32 s{SPIN}, s{SPIN}, 1")
    a(f"s_cbranch_scc0 {P}_pollA")
    a(f"s_mov_b32 s{SPIN}, 0")
    a.label(P + "_nopollA")
    a(f"v_mov_b32 v3, {L_CNT}")
    sw_barrier(a, C_ATT, 44, 8, 3, 2, P + "_ba")
    a(f"s_mov_b32 s{KR+2}, 0x40000")
    a(f"s_cmp_ge_u32 s{WV}, 4")
    a(f"s_cbranch_scc1 {P}_shwait")
    a(f"buffer_load_dwordx4 {v(AS[1],4)}, v1, s[{KR}:{KR+3}], 0 offen{SC1}")
    a(f"buffer_load_dwordx4 {v(AS[1]+4,4)}, v1, s[{KR}:{KR+3}], 0 offen offset:1024{SC1}")
    a(f"s_lshl_b32 s3, s{WV}, 11")
    a(f"s_add_u32 s3, s3, {L_QX}")
    a("v_add_u32 v2, s3, v1")
    a(f"ds_read_b128 {v(AO,4)}, v2")
    a(f"ds_read_b128 {v(AO+4,4)}, v2 offset:1024")
    a("s_waitcnt vmcnt(0) lgkmcnt(0)")
    o = AO + 16
    a(f"{MF} {v(o,16)}, {v(AS[1],4)}, {v(AO,4)}, 0")
    a(f"{MF} {v(o,16)}, {v(AS[1]+4,4)}, {v(AO+4,4)}, {v(o,16)}")
    a(f"s_lshl_b32 s3, s{WV}, 7")
    a(f"s_add_u32 s3, s3, {L_SH}")
    a("v_lshrrev_b32 v3, 2, v1")
    a("v_and_b32 v3, 127, v3")
    a("v_add_u32 v3, s3, v3")
    a("s_nop 7")
    a(f"v_max3_f32 v2, v{o}, v{o+1}, v{o+2}")
    for j in range(3, 15, 2):
        a(f"v_max3_f32 v2, v2, v{o+j}, v{o+j+1}")
    a(f"v_max_f32 v2, v2, v{o+15}")
    a(f"v_mov_b32 v{AO}, v2")
    a("s_nop 1")
    a(f"v_permlane32_swap_b32 v2, v{AO}")
    a(f"v_max_f32 v2, v2, v{AO}")
    a("v_cvt_pk_bf16_f32 v2, -v2, 0")
    a("s_mov_b32 exec_hi, 0")
    a("ds_write_b32 v3, v2")
    a("s_mov_b64 exec, -1")
    a.label(P + "_shwait")
    a(f"v_mov_b32 v3, {L_CNT}")
    sw_barrier(a, C_ATT, 44, 8, 3, 2, P + "_bs")
    a("v_lshrrev_b32 v3, 2, v1")
    a("v_and_b32 v3, 127, v3")
    a(f"v_add_u32 v3, {L_SH}, v3")
    for g in range(4): a(f"ds_read_b32 v{AO+g}, v3 offset:{g*128}")
    a("s_waitcnt lgkmcnt(0)")
    a("s_mov_b32 exec_lo, 0")
    for g in range(4): a(f"v_mov_b32 v{AQ+8*g+6}, v{AO+g}")
    a("s_mov_b32 exec_lo, -1")
    a(f"s_cmp_eq_u32 s{WV}, 0")
    a(f"s_cbranch_scc0 {P}_nopoll")
    a(f"v_mov_b32 v2, {D_GO}")
    a.label(P + "_poll")
    a(f"buffer_load_dwordx2 v[104:105], v2, s[56:59], 0 offen{SC1}")
    a("s_waitcnt vmcnt(0)")
    a("v_readfirstlane_b32 s3, v104")
    a("s_cmp_lg_u32 s3, 0")
    a(f"s_cbranch_scc1 {P}_pollok")
    a(f"s_sleep {POLLSLEEP}")
    a(f"s_sub_u32 s{SPIN}, s{SPIN}, 1")
    a(f"s_cbranch_scc0 {P}_poll")
    a(f"s_mov_b32 s{SPIN}, 0")
    a.label(P + "_pollok")
    a(f"v_mov_b32 v3, {L_CNT}")
    a("s_mov_b64 exec, 1")
    a(f"ds_add_u32 v3, v105 offset:{C_BAD}")
    a("s_mov_b64 exec, -1")
    a.label(P + "_nopoll")
    a(f"v_mov_b32 v3, {L_CNT}")
    sw_barrier(a, C_ATT, 44, 8, 3, 2, P + "_b0")
    pf.stamp(5)
    a("s_lshr_b32 s52, s2, 3")
    a("s_lshl_b32 s52, s52, 3")
    a(f"s_add_u32 s52, s52, s{WV}")
    a("s_lshl_b32 s52, s52, 10")
    a.label(P + "_restart")
    a(f"s_mov_b32 s{KR+2}, 0x40000")
    a(f"s_lshl_b32 s43, s{WV}, 15")
    a(f"buffer_load_dwordx4 {v(AK[0],4)}, v1, s[{KR}:{KR+3}], s43 offen{SC1}")
    a(f"buffer_load_dwordx4 {v(AK[0]+4,4)}, v1, s[{KR}:{KR+3}], s43 offen offset:1024{SC1}")
    a(f"buffer_load_dwordx4 {v(AV[0],4)}, v1, s[{KR}:{KR+3}], s43 offen offset:2048{SC1}")
    a(f"buffer_load_dwordx4 {v(AV[0]+4,4)}, v1, s[{KR}:{KR+3}], s43 offen offset:3072{SC1}")
    a("s_add_u32 s43, s43, 4096")
    a(f"buffer_load_dwordx4 {v(AK[1],4)}, v1, s[{KR}:{KR+3}], s43 offen{SC1}")
    a(f"buffer_load_dwordx4 {v(AK[1]+4,4)}, v1, s[{KR}:{KR+3}], s43 offen offset:1024{SC1}")
    a(f"s_lshl_b32 s3, s{WV}, 9")
    a(f"s_mov_b32 m0, {L_JUNK}")
    a("v_lshlrev_b32 v2, 3, v1")
    a("s_mov_b64 exec, 0xff")
    a(f"buffer_load_dword v2, s[{KR}:{KR+3}], s52 offen{SC1} lds")
    a("s_mov_b64 exec, -1")
    for j in range(4): a(f"v_mov_b32 v{APB+j}, 0")
    for j in range(8): a(f"v_mov_b32 v{AV[1]+j}, 0")
    a.label(P + "_haveshift")
    for j in (0, 1, 2, 3, 12, 13, 14, 15): a(f"v_mov_b32 v{AS[1]+j}, 0")
    a(f"s_and_b32 s3, s{WV}, 3")
    a("s_lshl_b32 s3, s3, 2")
    a(f"s_add_u32 s3, s3, {L_CNT + 64}")
    a("v_mov_b32 v2, s3")
    for g in range(4):
        a(f"{MF} {v(AO+16*g,16)}, {v(AV[1],4)}, {v(APB,4)}, 0")
    a("s_waitcnt vmcnt(5)")
    a(f"{MF} {v(AS[0],16)}, {v(AK[0],4)}, {v(AQ,4)}, 0")
    a(f"{MF} {v(AS[0],16)}, {v(AK[0]+4,4)}, {v(AQ+4,4)}, {v(AS[0],16)}")
    a("s_mov_b32 s48, 0")
    a("s_setprio 2")
    a("s_nop 7")
    a("s_nop 1")
    pf.stamp(6)
    a(".p2align 3")
    a.label(P + "_loop")
    for u in range(8):
        g = u & 3; par = (u >> 2) & 1
        side = []
        if g == 1:
            side.append(("q0", "s_waitcnt vmcnt(2)"))
            side.append(f"buffer_load_dwordx4 {v(AV[par^1],4)}, v1, s[{KR}:{KR+3}], s43 offen offset:2048{SC1}")
            side.append(f"buffer_load_dwordx4 {v(AV[par^1]+4,4)}, v1, s[{KR}:{KR+3}], s43 offen offset:3072{SC1}")
            side.append("s_add_u32 s43, s43, 4096")
            if par == 0:
                side.append("s_cmp_eq_u32 s48, 3")
                side.append(f"s_cselect_b32 s{KR+2}, 0, s{KR+2}")
        if g == 3:
            side += [None, None, None, "s_waitcnt vmcnt(2)"]
            side.append(f"buffer_load_dwordx4 {v(AK[par],4)}, v1, s[{KR}:{KR+3}], s43 offen{SC1}")
            side.append(f"buffer_load_dwordx4 {v(AK[par]+4,4)}, v1, s[{KR}:{KR+3}], s43 offen offset:1024{SC1}")
            if par == 1:
                side += ["s_add_u32 s48, s48, 1", None, None, None, None, None, None, None, None, "s_cmp_lt_u32 s48, 4"]
        if g == 0:
            side += ["v_mov_b32 v3, s53", None, "s_mov_b64 exec, 1\nds_add_rtn_u32 v3, v2, v3\ns_mov_b64 exec, -1"]
        if g == 2:
            lab = f"{P}_fp{u}"
            side += ["s_waitcnt lgkmcnt(0)", "v_readfirstlane_b32 s54, v3", None, "s_mul_i32 s54, s54, s53", "s_cmp_gt_i32 s54, 0",
                     f"s_cbranch_scc1 {lab}a\ns_setprio 2\ns_branch {lab}b\n{lab}a:\ns_setprio 1\n{lab}b:"]
        att_unit(a, u, side)
    a(f"s_cbranch_scc1 {P}_loop")
    prv = AS[1]
    a(f"{MF} {v(AO+48,16)}, {v(AV[1],4)}, {v(prv,4)}, {v(AO+48,16)}")
    a(f"v_cvt_pk_bf16_f32 v{APB+2}, v{prv+12}, v{prv+13}")
    a(f"v_cvt_pk_bf16_f32 v{APB+3}, v{prv+14}, v{prv+15}")
    a("s_nop 1")
    a(f"{MF} {v(AO+48,16)}, {v(AV[1]+4,4)}, {v(APB,4)}, {v(AO+48,16)}")
    pf.stamp(7)
    a("s_setprio 3")
    a("s_cmp_lg_u32 s51, 0")
    a(f"s_cbranch_scc1 {P}_nolend")
    lds_arrive(a, C_LEND, 2, 3)
    a.label(P + "_nolend")
    a(f"v_mov_b32 v3, {L_CNT}")
    a.label(P + "_udone")
    a(f"ds_read2_b32 v[104:105], v3 offset0:{C_NONCE//4} offset1:{C_UDONE//4}")
    a("s_waitcnt lgkmcnt(0)")
    a("v_readfirstlane_b32 s3, v105")
    a(f"v_readfirstlane_b32 s{NONCE}, v104")
    a("s_cmp_ge_u32 s3, 4")
    a(f"s_cbranch_scc1 {P}_udone_ok")
    a(f"s_sub_u32 s{SPIN}, s{SPIN}, 1")
    a(f"s_cbranch_scc0 {P}_udone")
    a(f"s_mov_b32 s{SPIN}, 0")
    a.label(P + "_udone_ok")
    a(f"s_lshl_b32 s3, s{WV}, 13")
    a(f"s_add_u32 s3, s3, {A_OP}")
    a(f"v_add_u32 v2, s3, v1")
    a(f"s_lshl_b32 s3, s{WV}, 9")
    a(f"s_add_u32 s3, s3, {A_LP}")
    a("v_lshrrev_b32 v3, 2, v1")
    a("v_and_b32 v4, 127, v3")
    a("v_add_u32 v4, s3, v4")
    a(f"s_mov_b32 s46, {hex(LMAX)}")
    a("s_mov_b64 s[56:57], 0")
    for g in range(4):
        o = AO + 16 * g
        if g == 3: a("s_nop 3")
        a("s_mov_b32 exec_lo, 0")
        a(f"ds_write_b32 v4, v{o+12} offset:{g*128}")
        a(f"v_cmp_nge_f32 vcc, s46, v{o+12}")
        a("s_mov_b32 exec_lo, -1")
        a("s_or_b64 s[56:57], s[56:57], vcc")
        for j in range(8):
            a(f"v_cvt_pk_bf16_f32 v{AS[0]+8*g+j}, v{o+2*j}, v{o+2*j+1}")
        a(f"ds_write_b128 v2, {v(AS[0]+8*g,4)} offset:{g*2048}")
        a(f"ds_write_b128 v2, {v(AS[0]+8*g+4,4)} offset:{g*2048+1024}")
    a(f"v_mov_b32 v3, {L_CNT}")
    a("s_cmp_eq_u64 s[56:57], 0")
    a(f"s_cbranch_scc1 {P}_safe")
    a("v_mov_b32 v2, 1")
    a("s_mov_b64 exec, 1")
    a(f"ds_add_u32 v3, v2 offset:{C_BAD}")
    a("s_mov_b64 exec, -1")
    a.label(P + "_safe")
    pf.stamp(17)
    sw_barrier(a, C_ATT, 44, 8, 3, 2, P + "_b1")
    pf.stamp(18)
    a(f"ds_read_b32 v2, v3 offset:{C_BAD}")
    a(f"s_lshl_b32 s3, s{WV}, 10")
    a(f"s_add_u32 s3, s3, {A_OP}")
    a("v_add_u32 v4, s3, v1")
    for w in range(8):
        a(f"ds_read_b128 {v(AO+4*w,4)}, v4 offset:{w*8192}")
    a(f"s_lshr_b32 s45, s{WV}, 1")
    a("s_lshl_b32 s3, s45, 7")
    a(f"s_add_u32 s3, s3, {A_LP}")
    a("v_lshrrev_b32 v3, 2, v1")
    a("v_and_b32 v3, 127, v3")
    a("v_add_u32 v3, s3, v3")
    a("s_waitcnt lgkmcnt(8)")
    a("v_readfirstlane_b32 s3, v2")
    a("s_cmp_lg_u32 s3, 0")
    a("s_cselect_b32 s3, 1, 0")
    a("s_andn2_b32 s3, s3, s51")
    a(f"s_cbranch_scc1 {P}_fallback")
    acc = AO + 48
    a(f"v_add_u32 v2, {L_SEL}, v1")
    a(f"ds_read_b128 {v(AO+40,4)}, v2")
    for w in range(6):
        a(f"ds_read_b32 v{AO+32+w}, v3 offset:{w*512}")
    for w in range(8):
        a(f"s_waitcnt lgkmcnt({6 if w < 1 else 6})") if w == 0 else None
        if w == 0:
            a(f"ds_read_b32 v{AO+38}, v3 offset:{6*512}")
            a(f"ds_read_b32 v{AO+39}, v3 offset:{7*512}")
        a(f"{MF} {v(acc,16)}, {v(AO+40,4)}, {v(AO+4*w,4)}, {'0' if w == 0 else v(acc,16)}")
    a("s_lshr_b32 s3, s45, 1")
    a(f"s_lshl_b32 s46, s{RB}, 1")
    a("s_add_u32 s3, s3, s46")
    a("s_lshl_b32 s3, s3, 4")
    a(f"s_lshl_b32 s46, s{J2}, 1")
    a("s_add_u32 s3, s3, s46")
    a("s_and_b32 s46, s45, 1")
    a("s_add_u32 s3, s3, s46")
    a("s_lshl_b32 s3, s3, 11")
    a(f"s_and_b32 s46, s{WV}, 1")
    a("s_lshl_b32 s46, s46, 10")
    a("s_add_u32 s3, s3, s46")
    a(f"s_add_u32 s47, s3, {WS_OF}")
    a("s_waitcnt lgkmcnt(0)")
    lds_arrive(a, C_TRD, 2, 3)
    l = AO + 32
    a(f"v_add_f32 v{l}, v{l}, v{l+1}")
    a(f"v_add_f32 v{l+2}, v{l+2}, v{l+3}")
    a(f"v_add_f32 v{l+4}, v{l+4}, v{l+5}")
    a(f"v_add_f32 v{l+6}, v{l+6}, v{l+7}")
    a(f"v_add_f32 v{l}, v{l}, v{l+2}")
    a(f"v_add_f32 v{l+4}, v{l+4}, v{l+6}")
    a(f"v_add_f32 v{l}, v{l}, v{l+4}")
    a(f"v_rcp_f32 v{l+1}, v{l}")
    a("s_nop 3")
    for j in range(8): a(f"v_mul_f32 v{acc+j}, v{acc+j}, v{l+1}")
    for j in range(4): a(f"v_cvt_pk_bf16_f32 v{AO+j}, v{acc+2*j}, v{acc+2*j+1}")
    a(f"s_and_b32 s3, s{WV}, 1")
    a("s_cmp_eq_u32 s3, 1")
    a("s_cselect_b32 exec_hi, -1, 0")
    a("s_mov_b32 exec_lo, 0")
    a(f"v_mov_b32 v{AO+2}, 0")
    a(f"v_mov_b32 v{AO+3}, 0")
    a("s_mov_b64 exec, -1")
    pf.stamp(19)
    a(f"buffer_store_dwordx4 {v(AO,4)}, v1, s[{WSR}:{WSR+3}], s47 offen{SC1}")
    if "dup" in X or "dupo" in X:
        a(f"buffer_store_dwordx4 {v(AO,4)}, v1, s[{WSR}:{WSR+3}], s47 offen")
    a(f"s_lshl_b32 s3, s{RB}, 5")
    a(f"s_add_u32 s3, s3, s{J2}")
    a("s_lshl_b32 s3, s3, 2")
    a(f"s_add_u32 s3, s3, {FL_O}")
    arrive_flag(a, C_OCNT, 8, 3, 2, 3, P + "_oflag")
    pf.stamp(8)
    a(f"s_branch {P}_done")
    a.label(P + "_fallback")
    a("s_waitcnt lgkmcnt(0)")
    a("s_mov_b32 s51, 1")
    a(f"s_mov_b32 s{KR+2}, 0x40000")
    a("s_mov_b32 exec_lo, 0")
    for g in range(4):
        a(f"v_mov_b32 v{AQ+8*g+6}, 0")
        a(f"v_mov_b32 v{AQ+8*g+7}, 0")
    a("s_mov_b32 exec_lo, -1")
    for g in range(4): a(f"v_mov_b32 v{APB+g}, 0xff800000")
    a("s_mov_b32 s43, 0")
    a.label(P + "_fb_loop")
    a(f"buffer_load_dwordx4 {v(AK[0],4)}, v1, s[{KR}:{KR+3}], s43 offen{SC1}")
    a(f"buffer_load_dwordx4 {v(AK[0]+4,4)}, v1, s[{KR}:{KR+3}], s43 offen offset:1024{SC1}")
    a("s_waitcnt vmcnt(0)")
    for g in range(4):
        o = AO + 16 * g
        a(f"{MF} {v(o,16)}, {v(AK[0],4)}, {v(AQ+8*g,4)}, 0")
        a(f"{MF} {v(o,16)}, {v(AK[0]+4,4)}, {v(AQ+8*g+4,4)}, {v(o,16)}")
    a("s_nop 7")
    for g in range(4):
        o = AO + 16 * g
        for j in range(0, 16, 2):
            a(f"v_max3_f32 v{APB+g}, v{APB+g}, v{o+j}, v{o+j+1}")
    a("s_add_u32 s43, s43, 4096")
    a("s_cmp_lt_u32 s43, 0x40000")
    a(f"s_cbranch_scc1 {P}_fb_loop")
    for g in range(4):
        m = APB + g
        a(f"v_mov_b32 v2, v{m}")
        a("s_nop 1")
        a(f"v_permlane32_swap_b32 v2, v{m}")
        a(f"v_max_f32 v2, v2, v{m}")
        a("v_sub_f32 v2, 0, v2")
        a("v_cvt_pk_bf16_f32 v3, v2, v2")
        a("v_and_b32 v3, 0xffff0000, v3")
        a(f"v_sub_f32 v{m}, v2, v3")
        a(f"v_cvt_pk_bf16_f32 v2, v{m}, v{m}")
        a("v_and_b32 v2, 0xffff0000, v2")
        a(f"v_sub_f32 v{m}, v{m}, v2")
        a(f"v_cvt_pk_bf16_f32 v{m}, v{m}, 0")
        a("v_lshrrev_b32 v3, 16, v3")
        a("v_or_b32 v3, v3, v2")
        a("s_mov_b32 exec_lo, 0")
        a(f"v_mov_b32 v{AQ+8*g+6}, v3")
        a(f"v_mov_b32 v{AQ+8*g+7}, v{m}")
        a("s_mov_b32 exec_lo, -1")
    a(f"v_mov_b32 v3, {L_CNT}")
    sw_barrier(a, C_ATT, 44, 8, 3, 2, P + "_bf")
    a(f"s_branch {P}_restart")
    a.label(P + "_done")

def gen_background(a, pf):
    P = "bg"
    XF = 56; ARE, AIM = 8, 24
    nbar = [0]
    T = [54, 55]
    pf.T = T
    def bar():
        nbar[0] += 1
        a(f"v_mov_b32 v{T[0]}, {L_CNT}")
        sw_barrier(a, C_BG, 44, 4, T[0], T[1], f"{P}_bar{nbar[0]}")
    def stage3(tag, vd_=156, vt_=158):
        if "nopf" in X: return
        a(f"s_cmp_eq_u32 s{BW}, 3")
        a(f"s_cbranch_scc1 {P}_not3{tag}")
        a(f"s_cmp_eq_u32 s{BW}, 0")
        a(f"s_cselect_b32 s56, s{S_CRE}, s{S_CIM}")
        a(f"s_cselect_b32 s57, s{S_CRE+1}, s{S_CIM+1}")
        a(f"s_cmp_eq_u32 s{BW}, 2")
        a(f"s_cselect_b32 s56, s{S_WO}, s56")
        a(f"s_cselect_b32 s57, s{S_WO+1}, s57")
        touch_matrix(a, 56, vd_, vt_)
        a.label(P + "_not3" + tag)
    a("s_mov_b32 s44, 0")
    a(f"s_lshl_b32 s37, s{J2}, 1")
    a(f"s_and_b32 s3, s{BW}, 1")
    a("s_add_u32 s37, s37, s3")
    a(f"s_lshr_b32 s38, s{BW}, 1")
    a(f"s_cmp_eq_u32 s{BW}, 3")
    a(f"s_cbranch_scc0 {P}_nononce")
    srd(a, 48, S_DBG, 256)
    a("v_mov_b32 v7, 0")
    a.label(P + "_npoll")
    a(f"buffer_load_dword v6, v7, s[48:51], 0 offen offset:{D_NONCE}{SC1}")
    a("s_waitcnt vmcnt(0)")
    a("v_readfirstlane_b32 s3, v6")
    a("s_cmp_lg_u32 s3, 0")
    a(f"s_cbranch_scc1 {P}_npoll_ok")
    a(f"s_sleep {POLLSLEEP}")
    a(f"s_sub_u32 s{SPIN}, s{SPIN}, 1")
    a(f"s_cbranch_scc0 {P}_npoll")
    a(f"s_mov_b32 s{SPIN}, 0")
    a.label(P + "_npoll_ok")
    a(f"v_mov_b32 v7, {L_CNT}")
    a(f"ds_write_b32 v7, v6 offset:{C_NONCE}")
    a.label(P + "_nononce")
    a(f"s_cmp_eq_u32 s{J2}, 7")
    a(f"s_cbranch_scc1 {P}_skip")
    if "nobg" in X: a(f"s_branch {P}_skip")
    a(f"s_and_b32 s3, s{BW}, 1")
    a("s_cmp_eq_u32 s3, 0")
    a(f"s_cselect_b32 s{TR}, s{S_BRE}, s{S_BIM}")
    a(f"s_cselect_b32 s{TR+1}, s{S_BRE+1}, s{S_BIM+1}")
    a(f"s_mov_b32 s{TR+2}, {WBYTES}")
    a(f"s_mov_b32 s{TR+3}, 0x00020000")
    plain_lane_off(a, 8, 0, 9)
    a(f"s_lshl_b32 s3, s{J2}, 1")
    a("s_add_u32 s3, s3, s38")
    a(f"s_mul_i32 s32, s3, {32*896}")
    a(f"s_lshl_b32 s34, s{BW}, 11")
    a("s_mov_b32 m0, s34")
    a("s_mov_b32 s36, 14")
    a.label(P + "_bdma")
    a(f"s_add_u32 s33, s32, {16*896}")
    a(f"buffer_load_dwordx4 v8, s[{TR}:{TR+3}], s32 offen lds")
    a("s_add_u32 m0, m0, 1024")
    a("s_sub_u32 s36, s36, 1")
    a(f"buffer_load_dwordx4 v8, s[{TR}:{TR+3}], s33 offen lds")
    a("s_add_u32 s32, s32, 64")
    a(f"s_add_u32 m0, m0, {8192-1024}")
    a("s_cmp_lg_u32 s36, 0")
    a(f"s_cbranch_scc1 {P}_bdma")
    xfrag_addr(a, 6, 0, 8)
    a(f"s_and_b32 s3, s{BW}, 1")
    a("s_lshl_b32 s3, s3, 12")
    a("v_add_u32 v6, s3, v6")
    a("v_xor_b32 v7, 32, v6")
    a("s_waitcnt vmcnt(0)")
    bar()
    a(f"ds_read_b32 v55, v54 offset:{C_NONCE}")
    a("s_waitcnt lgkmcnt(0)")
    a(f"v_readfirstlane_b32 s{NONCE}, v55")
    if "cntpoll" in X:
        lds_arrive(a, C_BL, 54, 55)
    pf.stamp(5)
    S3 = os.environ.get("S3", "b")
    if S3 == "b": stage3("a", 52, 54)
    BB = [40, 48]
    def rdB(j):
        b = BB[j & 1]
        if j in (16, 17): a(f"v_add_u32 v{6+(j&1)}, 0x10000, v{6+(j&1)}")
        o = (j >> 1) * 8192 - (65536 if j >= 16 else 0)
        a(f"ds_read_b128 {v(b,4)}, v{6+(j&1)} offset:{o}")
        a(f"ds_read_b128 {v(b+4,4)}, v{6+(j&1)} offset:{o+2048}")
    rdB(0); rdB(1)
    for j in range(28):
        b = BB[j & 1]
        a("s_waitcnt lgkmcnt(2)" if j < 27 else "s_waitcnt lgkmcnt(0)")
        c1 = "0" if j == 0 else v(ARE,16); c2 = "0" if j == 0 else v(AIM,16)
        a(f"{MF} {v(ARE,16)}, {v(XF+4*j,4)}, {v(b,4)}, {c1}")
        a(f"{MF} {v(AIM,16)}, {v(XF+4*j,4)}, {v(b+4,4)}, {c2}")
        if j + 2 < 28: rdB(j + 2)
    a(f"v_mov_b32 v54, {L_CNT}")
    a("v_mov_b32 v55, 1")
    a("s_mov_b64 exec, 1")
    a(f"ds_add_u32 v54, v55 offset:{C_UDONE}")
    a("s_mov_b64 exec, -1")
    pf.stamp(6)
    if S3 == "u": stage3("a")
    def csq(dr, di, sr, si):
        a(f"v_mul_f32 v46, v{si}, v{si}")
        a(f"v_mul_f32 v47, v{sr}, v{si}")
        a(f"v_fma_f32 v{dr}, v{sr}, v{sr}, -v46")
        a(f"v_add_f32 v{di}, v47, v47")
    csq(40, 41, 2, 3)
    for _ in range(3): csq(40, 41, 40, 41)
    csq(42, 43, 40, 41); csq(42, 43, 42, 43)
    csq(44, 45, 42, 43)
    for _ in range(3): csq(44, 45, 44, 45)
    a("v_mov_b32 v48, v4")
    a("v_mov_b32 v49, v4")
    a("v_mov_b32 v50, v5")
    a("v_mov_b32 v51, v5")
    for r in range(0, 16, 2):
        a(f"v_pk_mul_f32 v[46:47], v[50:51], {v(AIM+r,2)}")
        a(f"v_pk_mul_f32 v[52:53], v[50:51], {v(ARE+r,2)}")
        a(f"v_pk_fma_f32 {v(ARE+r,2)}, v[48:49], {v(ARE+r,2)}, v[46:47] neg_lo:[0,0,1] neg_hi:[0,0,1]")
        a(f"v_pk_fma_f32 {v(AIM+r,2)}, v[48:49], {v(AIM+r,2)}, v[52:53]")
    a(f"v_mov_b32 v48, v{ARE}")
    a(f"v_mov_b32 v49, v{AIM}")
    for r in range(1, 16):
        cfma(a, 48, 49, 2, 3, ARE + r, AIM + r, 46, 47)
    a("v_and_b32 v50, 31, v0")
    a("v_lshlrev_b32 v50, 3, v50")
    a(f"s_and_b32 s3, s{BW}, 1")
    a("s_lshl_b32 s3, s3, 10")
    a(f"s_add_u32 s3, s3, {B_EX}")
    a("v_add_u32 v50, s3, v50")
    a("v_lshrrev_b32 v51, 5, v0")
    a("s_lshl_b32 s3, s38, 1")
    a("v_add_u32 v51, s3, v51")
    a("v_lshl_add_u32 v52, v51, 8, v50")
    a("ds_write_b64 v52, v[48:49]")
    bar()
    for c in range(4):
        a(f"ds_read_b64 {v(56+2*c,2)}, v50 offset:{c*256}")
    a("s_waitcnt lgkmcnt(0)")
    a("v_mov_b32 v64, v56")
    a("v_mov_b32 v65, v57")
    for c in range(1, 4):
        cfma(a, 64, 65, 40, 41, 56 + 2*c, 57 + 2*c, 46, 47)
    a("s_cmp_eq_u32 s38, 1")
    a(f"s_cbranch_scc0 {P}_nopub")
    a(f"s_mul_i32 s3, s{RB}, {448*16}")
    a("s_lshl_b32 s33, s37, 9")
    a("s_add_u32 s3, s3, s33")
    a(f"s_add_u32 s3, s3, {WS_E}")
    a(f"v_mov_b32 v66, s{NONCE}")
    a(f"v_mov_b32 v67, s{NONCE}")
    a("v_and_b32 v68, 31, v0")
    a("v_lshlrev_b32 v68, 4, v68")
    a("s_mov_b32 exec_hi, 0")
    a(f"buffer_store_dwordx4 v[64:67], v68, s[{WSR}:{WSR+3}], s3 offen{SC1}")
    a("s_mov_b64 exec, -1")
    a.label(P + "_nopub")
    pf.stamp(7)
    a(f"s_add_u32 s48, s{WSR}, {WS_E}")
    a(f"s_addc_u32 s49, s{WSR+1}, 0")
    a(f"s_mov_b32 s50, {32*448*16}")
    a("s_mov_b32 s51, 0x00020000")
    a("v_lshrrev_b32 v67, 5, v0")
    a("v_lshlrev_b32 v67, 4, v67")
    a(f"v_sub_u32 v67, s{RB}, v67")
    a("v_add_u32 v67, -1, v67")
    a(f"s_mov_b32 s3, {448*16}")
    a("v_mul_lo_u32 v68, v67, s3")
    a("v_and_b32 v66, 31, v0")
    a("v_lshlrev_b32 v66, 4, v66")
    a("s_lshl_b32 s33, s37, 9")
    a("v_add3_u32 v68, v68, v66, s33")
    EG = 72
    for i in range(1, 16):
        a(f"v_subrev_u32 v{136+i}, {448*16*i}, v68")
    a("v_mov_b32 v136, v68")
    a("s_waitcnt vmcnt(0)")
    a(f"s_cmp_eq_u32 s{RB}, 0")
    a(f"s_cbranch_scc1 {P}_pollE")
    a.label(P + "_pollE0")
    a("s_mov_b32 exec_hi, 0")
    a(f"buffer_load_dwordx3 {v(EG,3)}, v136, s[48:51], 0 offen{SC1}")
    a("s_mov_b64 exec, -1")
    a("s_waitcnt vmcnt(0)")
    a(f"v_cmp_ne_u32 vcc, s{NONCE}, v{EG+2}")
    a("s_cmp_eq_u32 vcc_lo, 0")
    a(f"s_cbranch_scc1 {P}_pollE")
    a(f"s_sleep {os.environ.get('ES', '6')}")
    a(f"s_sub_u32 s{SPIN}, s{SPIN}, 1")
    a(f"s_cbranch_scc0 {P}_pollE0")
    a(f"s_mov_b32 s{SPIN}, 0")
    a.label(P + "_pollE")
    for i in range(16):
        a(f"buffer_load_dwordx3 {v(EG+4*i,3)}, v{136+i}, s[48:51], 0 offen{SC1}")
    a("s_mov_b64 s[56:57], 0")
    a("s_waitcnt vmcnt(0)")
    for i in range(16):
        a(f"v_cmp_ne_u32 vcc, s{NONCE}, v{EG+4*i+2}")
        a(f"s_cmp_gt_u32 s{RB}, {i}")
        a("s_cselect_b32 s58, -1, 0")
        a(f"s_cmp_gt_u32 s{RB}, {i+16}")
        a("s_cselect_b32 s59, -1, 0")
        a("s_and_b64 vcc, vcc, s[58:59]")
        a("s_or_b64 s[56:57], s[56:57], vcc")
    a("s_cmp_eq_u64 s[56:57], 0")
    a(f"s_cbranch_scc1 {P}_pollE_ok")
    a("s_sleep 12")
    a(f"s_sub_u32 s{SPIN}, s{SPIN}, 1")
    a(f"s_cbranch_scc0 {P}_pollE")
    a(f"s_mov_b32 s{SPIN}, 0")
    a.label(P + "_pollE_ok")
    pf.stamp(8)
    a(f"v_mov_b32 v68, v{EG+60}")
    a(f"v_mov_b32 v69, v{EG+61}")
    for i in range(14, -1, -1):
        cfma(a, 68, 69, 42, 43, EG + 4*i, EG + 4*i + 1, 46, 47)
    a("v_mov_b32 v70, v68")
    a("v_mov_b32 v71, v69")
    a("v_mov_b32 v72, v68")
    a("v_mov_b32 v73, v69")
    a("s_nop 1")
    a("v_permlane32_swap_b32 v70, v72")
    a("v_permlane32_swap_b32 v71, v73")
    cfma(a, 72, 73, 44, 45, 70, 71, 46, 47)
    for cp in range(3):
        a("v_mov_b32 v74, v72")
        a("v_mov_b32 v75, v73")
        cfma(a, 74, 75, 40, 41, 56 + 2*cp, 57 + 2*cp, 46, 47)
        a(f"v_cmp_lt_u32 vcc, {cp}, v51")
        a("s_nop 1")
        a("v_cndmask_b32 v72, v72, v74, vcc")
        a("v_cndmask_b32 v73, v73, v75, vcc")
    a(f"s_lshl_b32 s3, s{BW}, 12")
    a(f"s_add_u32 s3, s3, {B_HT}")
    a("v_and_b32 v66, 31, v0")
    a("v_lshlrev_b32 v66, 1, v66")
    a("v_lshrrev_b32 v67, 5, v0")
    a("v_lshl_add_u32 v66, v67, 8, v66")
    a("v_add_u32 v66, s3, v66")
    for r in range(16):
        cfma(a, 72, 73, 2, 3, ARE + r, AIM + r, 46, 47)
        a(f"v_cvt_pk_bf16_f32 v{76+(r&1)}, v72, -v73")
        slot = (r & 3) + 8 * (r >> 2)
        a(f"ds_write_b16 v66, v{76+(r&1)} offset:{slot*64}")
        a(f"ds_write_b16_d16_hi v66, v{76+(r&1)} offset:{2048+slot*64}")
    a("v_and_b32 v67, 31, v0")
    a("v_lshlrev_b32 v67, 6, v67")
    a("v_lshrrev_b32 v68, 5, v0")
    a("v_lshl_add_u32 v67, v68, 4, v67")
    a("v_add_u32 v67, s3, v67")
    a("s_waitcnt lgkmcnt(0)")
    for part in range(2):
        for jj in range(2):
            a(f"ds_read_b128 {v(80+8*part+4*jj,4)}, v67 offset:{part*2048+jj*32}")
    a(f"s_lshl_b32 s3, s{RB}, 1")
    a("s_add_u32 s3, s3, s38")
    a("s_mul_i32 s3, s3, 56")
    a("s_lshl_b32 s33, s37, 1")
    a("s_add_u32 s3, s3, s33")
    a("s_lshl_b32 s3, s3, 10")
    a(f"s_add_u32 s3, s3, {WS_HF}")
    a(f"s_add_u32 s33, s3, {28*1024}")
    a("s_waitcnt lgkmcnt(0)")
    a(f"buffer_store_dwordx4 {v(80,4)}, v1, s[{WSR}:{WSR+3}], s3 offen{SC1}")
    a(f"buffer_store_dwordx4 {v(84,4)}, v1, s[{WSR}:{WSR+3}], s3 offen offset:1024{SC1}")
    a(f"buffer_store_dwordx4 {v(88,4)}, v1, s[{WSR}:{WSR+3}], s33 offen{SC1}")
    a(f"buffer_store_dwordx4 {v(92,4)}, v1, s[{WSR}:{WSR+3}], s33 offen offset:1024{SC1}")
    if "dup" in X:
        a(f"buffer_store_dwordx4 {v(80,4)}, v1, s[{WSR}:{WSR+3}], s3 offen")
        a(f"buffer_store_dwordx4 {v(84,4)}, v1, s[{WSR}:{WSR+3}], s3 offen offset:1024")
        a(f"buffer_store_dwordx4 {v(88,4)}, v1, s[{WSR}:{WSR+3}], s33 offen")
        a(f"buffer_store_dwordx4 {v(92,4)}, v1, s[{WSR}:{WSR+3}], s33 offen offset:1024")
    a(f"s_lshl_b32 s3, s{RB}, 5")
    a(f"s_add_u32 s3, s3, s{J2}")
    a("s_lshl_b32 s3, s3, 2")
    a(f"s_add_u32 s3, s3, {FL_H}")
    arrive_flag(a, C_HCNT, 4, 3, 66, 67, P + "_hflag")
    pf.stamp(9)
    a(f"s_lshr_b32 s3, s{BW}, 1")
    a("s_cmp_eq_u32 s3, 0")
    a(f"s_cselect_b32 s{TR}, s{S_CRE}, s{S_CIM}")
    a(f"s_cselect_b32 s{TR+1}, s{S_CRE+1}, s{S_CIM+1}")
    plain_lane_off(a, 53, 0, 69)
    a(f"s_mul_i32 s40, s{J2}, {64*896}")
    a(f"s_and_b32 s3, s{BW}, 1")
    a("s_mul_i32 s3, s3, 448")
    a("s_add_u32 s40, s40, s3")
    a(f"s_lshl_b32 s41, s{BW}, 14")
    CDMA = [53]
    def c_dma(kb):
        a(f"s_add_u32 m0, s41, {(kb & 3)*4096}")
        for q in range(4):
            a(f"s_add_u32 s33, s40, {q*16*896 + kb*64}")
            a(f"buffer_load_dwordx4 v{CDMA[0]}, s[{TR}:{TR+3}], s33 offen lds")
            if q < 3: a("s_add_u32 m0, m0, 1024")
    for kb in range(4): c_dma(kb)
    a(f"s_cmp_eq_u32 s{BW}, 0")
    a(f"s_cbranch_scc0 {P}_nopollH")
    a("v_lshlrev_b32 v67, 2, v0")
    a(f"s_lshl_b32 s35, s{RB}, 7")
    a(f"s_add_u32 s35, s35, {FL_H}")
    a("s_mov_b64 s[58:59], 0x7f")
    poll(a, P + "_pollH", 68, 67, 35, 58)
    srd(a, 48, S_DBG, 256)
    a(f"v_mov_b32 v67, {D_GOG}")
    a.label(P + "_pollG")
    a(f"buffer_load_dword v68, v67, s[48:51], 0 offen{SC1}")
    a("s_waitcnt vmcnt(0)")
    a("v_readfirstlane_b32 s3, v68")
    a("s_cmp_lg_u32 s3, 0")
    a(f"s_cbranch_scc1 {P}_pollG_ok")
    a(f"s_sleep {POLLSLEEP}")
    a(f"s_sub_u32 s{SPIN}, s{SPIN}, 1")
    a(f"s_cbranch_scc0 {P}_pollG")
    a(f"s_mov_b32 s{SPIN}, 0")
    a.label(P + "_pollG_ok")
    a.label(P + "_nopollH")
    a("s_waitcnt vmcnt(0)")
    bar()
    pf.stamp(10)
    T[0], T[1] = 4, 5
    ACC = 8
    XS, GT = 136, 152
    a(f"s_lshl_b32 s3, s{RB}, 6")
    a("s_lshl_b32 s33, s38, 5")
    a("s_add_u32 s3, s3, s33")
    a("v_lshrrev_b32 v72, 5, v0")
    a("v_lshlrev_b32 v72, 4, v72")
    a("v_add_u32 v72, s3, v72")
    a(f"s_lshl_b32 s33, s{J2}, 6")
    a(f"s_and_b32 s35, s{BW}, 1")
    a("s_lshl_b32 s35, s35, 5")
    a("s_add_u32 s33, s33, s35")
    a("v_and_b32 v73, 31, v0")
    a("v_add_u32 v73, s33, v73")
    srd(a, 48, S_X, XBYTES)
    a("v_mul_u32_u24 v74, 896, v72")
    a("v_lshl_add_u32 v74, v73, 1, v74")
    for r in range(16):
        a(f"buffer_load_ushort v{XS+r}, v74, s[48:51], 0 offen offset:{(r%4)*896}")
        if r % 4 == 3 and r < 15: a(f"v_add_u32 v74, {4*896}, v74")
    srd(a, 52, S_DSK, 896)
    a("v_lshlrev_b32 v75, 1, v73")
    a("buffer_load_ushort v3, v75, s[52:55], 0 offen")
    a("v_lshlrev_b32 v75, 2, v72")
    a(f"s_mov_b32 s35, {WS_G}")
    for q in range(4):
        a(f"buffer_load_dwordx4 {v(GT+4*q,4)}, v75, s[{WSR}:{WSR+3}], s35 offen offset:{16*q}{SC1}")
    if "lowy" in X: a("s_setprio 0")
    a(f"s_lshl_b32 s3, s{RB}, 1")
    a("s_mul_i32 s3, s3, 56")
    a(f"s_mul_i32 s33, s{BW}, 14")
    a("s_add_u32 s3, s3, s33")
    a("s_lshl_b32 s3, s3, 10")
    a(f"s_add_u32 s32, s3, {WS_HF}")
    a(f"s_add_u32 s34, s32, {56*1024}")
    AF = 88; NA = 6
    plain_lane_off(a, 2, 0, 72)
    CDMA[0] = 2
    xfrag_addr(a, 6, 0, 72)
    a("v_add_u32 v6, s41, v6")
    a("v_xor_b32 v7, 32, v6")
    def ldA(st_):
        r = AF + 8 * (st_ % NA)
        a(f"s_add_u32 s35, s32, {st_*1024}")
        a(f"s_add_u32 s36, s34, {st_*1024}")
        a(f"buffer_load_dwordx4 {v(r,4)}, v1, s[{WSR}:{WSR+3}], s35 offen{SC1}")
        a(f"buffer_load_dwordx4 {v(r+4,4)}, v1, s[{WSR}:{WSR+3}], s36 offen{SC1}")
    for st_ in range(NA): ldA(st_)
    if "htouch" in X:
        a("v_lshlrev_b32 v72, 7, v0")
        a(f"s_mov_b32 m0, {L_JUNK}")
        a(f"s_add_u32 s35, s32, {NA*1024}")
        a(f"s_add_u32 s36, s34, {NA*1024}")
        a(f"buffer_load_dword v72, s[{WSR}:{WSR+3}], s35 offen{SC1} lds")
        a(f"buffer_load_dword v72, s[{WSR}:{WSR+3}], s36 offen{SC1} lds")
    CB = [72, 80]
    def rdC(st_):
        b = CB[st_ & 1]
        kb = st_ >> 1
        a(f"ds_read_b128 {v(b,4)}, v{6+(st_&1)} offset:{(kb&3)*4096}")
        a(f"ds_read_b128 {v(b+4,4)}, v{6+(st_&1)} offset:{(kb&3)*4096+2048}")
    issued = []
    for st_ in range(NA): issued += [("A", st_)] * 2
    if "htouch" in X: issued += [("T", 0)] * 2
    HY = int(os.environ.get("HY", "0"))
    if HY:
        a(f"v_mov_b32 v4, {L_CNT}")
        lds_wait(a, C_LEND, HY, 4, 5, P + "_lend", sleep=8)
        a(f"s_setprio {os.environ.get('YP', '1')}")
    rdC(0)
    for st_ in range(14):
        kb = st_ >> 1
        need = [("A", st_)]
        if st_ + 1 < 14 and ((st_ + 1) >> 1) >= 4: need.append(("C", (st_ + 1) >> 1))
        last = max(i for i, t in enumerate(issued) if t in need)
        n_out = len(issued) - 1 - last
        a(f"s_waitcnt vmcnt({n_out})")
        if st_ + 1 < 14: rdC(st_ + 1)
        a(f"s_waitcnt lgkmcnt({2 if st_ + 1 < 14 else 0})")
        b = CB[st_ & 1]; r = AF + 8 * (st_ % NA)
        for rt in range(2):
            for ct in range(2):
                acc = ACC + 16 * (2 * rt + ct)
                c = "0" if st_ == 0 else v(acc, 16)
                a(f"{MF} {v(acc,16)}, {v(r+4*rt,4)}, {v(b+4*ct,4)}, {c}")
        if st_ + NA < 14:
            ldA(NA + st_); issued += [("A", NA + st_)] * 2
        if (st_ & 1) == 1 and kb + 4 < 7:
            c_dma(kb + 4); issued += [("C", kb + 4)] * 4
    pf.stamp(11)
    a(f"s_setprio {os.environ.get('YP2', '2')}")
    bar()
    VT_, VD_, VO_, t1, t2, t3, t4, t5 = 72, 73, 74, 75, 76, 77, 78, 79
    srd(a, TR, S_WO, WBYTES)
    a(f"v_lshrrev_b32 v{t1}, 3, v0")
    a(f"v_mul_u32_u24 v{t1}, 896, v{t1}")
    a(f"v_and_b32 v{t2}, 7, v0")
    a(f"v_lshl_add_u32 v{t1}, v{t2}, 4, v{t1}")
    a(f"s_mul_i32 s32, s{BW}, {112*896}")
    a(f"s_lshl_b32 s3, s{J2}, 7")
    a("s_add_u32 s32, s32, s3")
    a(f"s_mul_i32 s34, s{BW}, 14336")
    a("s_mov_b32 m0, s34")
    a("s_mov_b32 s36, 14")
    a.label(P + "_wodma")
    a("s_sub_u32 s36, s36, 1")
    a(f"buffer_load_dwordx4 v{t1}, s[{TR}:{TR+3}], s32 offen lds")
    a("s_add_u32 s32, s32, 7168")
    a("s_add_u32 m0, m0, 1024")
    a("s_cmp_lg_u32 s36, 0")
    a(f"s_cbranch_scc1 {P}_wodma")
    a("v_mov_b32 v80, 0")
    a("v_mov_b32 v81, 0")
    a(f"v_lshlrev_b32 v{t2}, 3, v0")
    a(f"ds_write_b64 v{t2}, v[80:81] offset:57344")
    a(f"v_mov_b32 v4, {L_CNT}")
    lds_wait(a, C_TRD, 8, 4, 5, P + "_trd")
    a(f"s_lshl_b32 s3, s{BW}, 12")
    a(f"s_add_u32 s3, s3, {A_OP}")
    a(f"v_add_u32 v{t1}, s3, v1")
    for t in range(4):
        for q in range(4):
            a(f"ds_write_b128 v{t1}, {v(ACC+16*t+4*q,4)} offset:{t*16384+q*1024}")
    bar()
    a(f"s_lshl_b32 s3, s{BW}, 14")
    a(f"s_add_u32 s3, s3, {A_OP}")
    a(f"v_add_u32 v{t1}, s3, v1")
    for src in range(3):
        for q in range(4):
            a(f"ds_read_b128 {v(88+16*src+4*q,4)}, v{t1} offset:{src*4096+q*1024}")
    YT = 8
    for q in range(4):
        a(f"ds_read_b128 {v(YT+4*q,4)}, v{t1} offset:{3*4096+q*1024}")
        if q == 2: a("s_waitcnt lgkmcnt(4)")
    a("s_waitcnt lgkmcnt(0)")
    VT_, VD_, VO_, t1, t2, t3, t4, t5 = 40, 41, 42, 43, 44, 45, 46, 47
    for r in range(16):
        a(f"v_add_f32 v{88+r}, v{88+r}, v{104+r}")
        a(f"v_add_f32 v{YT+r}, v{YT+r}, v{120+r}")
    a("v_lshlrev_b32 v3, 16, v3")
    for r in range(16):
        a(f"v_add_f32 v{YT+r}, v{YT+r}, v{88+r}")
        a(f"v_lshlrev_b32 v{XS+r}, 16, v{XS+r}")
        a(f"v_mul_f32 v{XS+r}, v{XS+r}, v3")
        a(f"v_fma_f32 v{YT+r}, 2.0, v{YT+r}, v{XS+r}")
        a(f"v_sub_f32 v{XS+r}, 1.0, v{GT+r}")
        a(f"v_mul_f32 v{YT+r}, v{YT+r}, v{XS+r}")
    a(f"s_lshl_b32 s3, s{RB}, 6")
    a("s_lshl_b32 s33, s38, 5")
    a("s_add_u32 s3, s3, s33")
    a(f"v_lshrrev_b32 v{VT_}, 5, v0")
    a(f"v_lshlrev_b32 v{VT_}, 4, v{VT_}")
    a(f"v_add_u32 v{VT_}, s3, v{VT_}")
    a(f"s_lshl_b32 s33, s{J2}, 6")
    a(f"s_and_b32 s35, s{BW}, 1")
    a("s_lshl_b32 s35, s35, 5")
    a("s_add_u32 s33, s33, s35")
    a(f"v_and_b32 v{VD_}, 31, v0")
    a(f"v_add_u32 v{VD_}, s33, v{VD_}")
    a(f"v_mul_u32_u24 v{VO_}, 1792, v{VT_}")
    a(f"v_lshl_add_u32 v{VO_}, v{VD_}, 2, v{VO_}")
    srd(a, 48, S_OUT, OUTBYTES)
    a("v_lshrrev_b32 v6, 5, v0")
    a("v_lshlrev_b32 v6, 2, v6")
    a("v_bfe_u32 v7, v0, 2, 2")
    a("v_add_u32 v6, v6, v7")
    a("v_lshlrev_b32 v6, 7, v6")
    a("v_and_b32 v7, 16, v0")
    a(f"v_and_b32 v{t1}, 3, v0")
    a(f"v_lshl_add_u32 v7, v{t1}, 2, v7")
    a("v_lshl_add_u32 v6, v7, 1, v6")
    a(f"s_and_b32 s3, s{BW}, 1")
    a(f"s_mul_i32 s3, s3, {8*28*128}")
    a("v_add_u32 v6, s3, v6")
    a("s_waitcnt vmcnt(0)")
    a("s_setprio 3")
    pf.stamp(12)
    bar()
    a(f"v_lshlrev_b32 v{t4}, 2, v0")
    a(f"s_lshl_b32 s35, s{RB}, 7")
    a(f"s_add_u32 s35, s35, {FL_O}")
    a("s_mov_b64 s[58:59], 0xff")
    poll(a, P + "_pollO", t5, t4, 35, 58)
    pf.stamp(13)
    a(f"s_lshl_b32 s3, s{RB}, 1")
    a("s_add_u32 s3, s3, s38")
    a("s_lshl_b32 s3, s3, 15")
    a(f"s_and_b32 s33, s{BW}, 1")
    a("s_lshl_b32 s33, s33, 14")
    a("s_add_u32 s3, s3, s33")
    a(f"s_add_u32 s32, s3, {WS_OF}")
    OFR = 88
    for st_ in range(16):
        a(f"s_add_u32 s33, s32, {st_*1024}")
        a(f"buffer_load_dwordx4 {v(OFR+4*st_,4)}, v1, s[{WSR}:{WSR+3}], s33 offen{SC1}")
    PA_ = [56, 72]
    WB = [24, 32]
    def rdW(st_):
        hd, f = st_ >> 1, st_ & 1
        off = (28 * hd + 16 * f) * 128
        b = WB[st_ & 1]
        for ct in range(2):
            a(f"ds_read_b64_tr_b16 {v(b+4*ct,2)}, v6 offset:{off+ct*64}")
            a(f"ds_read_b64_tr_b16 {v(b+4*ct+2,2)}, v6 offset:{off+ct*64+1024}")
    rdW(0)
    for st_ in range(16):
        if st_ + 1 < 16: rdW(st_ + 1)
        a(f"s_waitcnt vmcnt({15-st_}) lgkmcnt({4 if st_ + 1 < 16 else 0})")
        for ct in range(2):
            c = "0" if st_ == 0 else v(PA_[ct], 16)
            a(f"{MF} {v(PA_[ct],16)}, {v(OFR+4*st_,4)}, {v(WB[st_&1]+4*ct,4)}, {c}")
    a(f"s_xor_b32 s3, s{BW}, 1")
    a("s_lshl_b32 s3, s3, 12")
    a("s_add_u32 s3, s3, 65536")
    a(f"v_add_u32 v{t1}, s3, v1")
    a(f"s_and_b32 s33, s{BW}, 1")
    a("s_nop 7")
    a("s_cmp_eq_u32 s33, 0")
    a(f"s_cbranch_scc0 {P}_send0")
    for q in range(4): a(f"ds_write_b128 v{t1}, {v(PA_[1]+4*q,4)} offset:{q*1024}")
    a(f"s_branch {P}_sent")
    a.label(P + "_send0")
    a("s_nop 1")
    for q in range(4): a(f"ds_write_b128 v{t1}, {v(PA_[0]+4*q,4)} offset:{q*1024}")
    a("s_nop 1")
    for r in range(16): a(f"v_mov_b32 v{PA_[0]+r}, v{PA_[1]+r}")
    a.label(P + "_sent")
    bar()
    a(f"s_lshl_b32 s3, s{BW}, 12")
    a("s_add_u32 s3, s3, 65536")
    a(f"v_add_u32 v{t1}, s3, v1")
    for q in range(4): a(f"ds_read_b128 {v(88+4*q,4)}, v{t1} offset:{q*1024}")
    a("s_waitcnt lgkmcnt(0)")
    for r in range(16):
        a(f"v_add_f32 v{88+r}, v{88+r}, v{PA_[0]+r}")
        a(f"v_fma_f32 v{88+r}, v{GT+r}, v{88+r}, v{YT+r}")
    for r in range(16):
        a(f"buffer_store_dword v{88+r}, v{VO_}, s[48:51], 0 offen offset:{(r%2)*1792}{os.environ.get('OST', '')}")
        if r % 2 == 1 and r < 15: a(f"v_add_u32 v{VO_}, {2*1792}, v{VO_}")
    pf.stamp(14)
    a(f"s_branch {P}_end")
    a.label(P + "_skip")
    if os.environ.get("S3", "b") in ("b", "u"): stage3("b")
    a(f"v_mov_b32 v54, {L_CNT}")
    a("v_mov_b32 v55, 1")
    a("s_mov_b64 exec, 1")
    a(f"ds_add_u32 v54, v55 offset:{C_UDONE}")
    a("s_mov_b64 exec, -1")
    a.label(P + "_end")

def lds_wait(a, coff, target, vaddr, vtmp, lab, sleep=1):
    a.label(lab)
    a(f"ds_read_b32 v{vtmp}, v{vaddr} offset:{coff}")
    a("s_waitcnt lgkmcnt(0)")
    a(f"v_readfirstlane_b32 s3, v{vtmp}")
    a(f"s_cmp_ge_u32 s3, {target}")
    a(f"s_cbranch_scc1 {lab}_ok")
    a(f"s_sleep {sleep}")
    a(f"s_sub_u32 s{SPIN}, s{SPIN}, 1")
    a(f"s_cbranch_scc0 {lab}")
    a(f"s_mov_b32 s{SPIN}, 0")
    a.label(lab + "_ok")

def lds_arrive(a, coff, vaddr, vtmp):
    a(f"v_mov_b32 v{vaddr}, {L_CNT}")
    a(f"v_mov_b32 v{vtmp}, 1")
    a("s_mov_b64 exec, 1")
    a(f"ds_add_u32 v{vaddr}, v{vtmp} offset:{coff}")
    a("s_mov_b64 exec, -1")

def dma_loop(a, lab, vaddr, n, dsrc, dlds):
    a("s_mov_b32 s36, %d" % n)
    a.label(lab)
    a("s_sub_u32 s36, s36, 1")
    a(f"buffer_load_dwordx4 v{vaddr}, s[{TR}:{TR+3}], s32 offen lds")
    a(f"s_add_u32 s32, s32, {dsrc}")
    a(f"s_add_u32 m0, m0, {dlds}")
    a("s_cmp_lg_u32 s36, 0")
    a(f"s_cbranch_scc1 {lab}")

def q_loop(a, acc, X4, W4, vxe, vxo, vw):
    def rd(j):
        k = j & 3
        a(f"ds_read_b128 {v(X4+4*k,4)}, v{vxo if j & 1 else vxe} offset:{(j>>1)*4096}")
        a(f"ds_read_b64_tr_b16 {v(W4+4*k,2)}, v{vw} offset:{j*2048}")
        a(f"ds_read_b64_tr_b16 {v(W4+4*k+2,2)}, v{vw} offset:{j*2048+512}")
    for j in range(4): rd(j)
    for j in range(28):
        left = min(3, 27 - j)
        a(f"s_waitcnt lgkmcnt({3*left})")
        c = "0" if j == 0 else v(acc, 16)
        a(f"{MF} {v(acc,16)}, {v(W4+4*(j&3),4)}, {v(X4+4*(j&3),4)}, {c}")
        if j + 4 < 28: rd(j + 4)

def gen_fused(a):
    name = NAME + "_kernel"
    a(f".globl {name}")
    a(".p2align 8")
    a(f".type {name},@function")
    a.label(name)
    END = "L_end"
    a("s_cmp_ge_u32 s2, 256")
    a(f"s_cbranch_scc1 {END}")
    a("s_load_dwordx16 s[64:79], s[0:1], 0")
    a("s_load_dwordx16 s[80:95], s[0:1], 64")
    a("s_load_dwordx4 s[96:99], s[0:1], 128")
    a("v_lshrrev_b32 v2, 6, v0")
    a("v_and_b32 v0, 63, v0")
    a(f"v_readfirstlane_b32 s{WV}, v2")
    a(f"v_mov_b32 v4, {L_CNT}")
    a("v_mov_b32 v5, 0")
    a("v_lshl_add_u32 v4, v0, 2, v4")
    a("ds_write_b32 v4, v5")
    a(f"s_and_b32 s{RB}, s2, 7")
    a(f"s_lshl_b32 s{RB}, s{RB}, 2")
    a(f"s_lshr_b32 s{J2}, s2, 3")
    a(f"s_and_b32 s3, s{J2}, 3")
    a(f"s_add_u32 s{RB}, s{RB}, s3")
    a(f"s_lshr_b32 s{J2}, s{J2}, 2")
    a("v_lshlrev_b32 v1, 4, v0")
    a(f"s_mov_b32 s{SPIN}, 0x100000")
    a(f"s_sub_u32 s{BW}, s{WV}, 8")
    pfA = Prof(a, 167)
    xtile_lane_off(a, 3, 0, 4, 5)
    a("s_waitcnt lgkmcnt(0)")
    srd(a, WSR, S_WS, WS_SIZE)
    if PROF: a("v_mov_b32 v167, 0")
    pfA.stamp(0)
    if PROF:
        a("s_getreg_b32 s60, hwreg(HW_REG_XCC_ID)")
        a("v_writelane_b32 v167, s60, 20")
        a("s_getreg_b32 s60, hwreg(HW_REG_HW_ID)")
        a("v_writelane_b32 v167, s60, 21")
    a(f"s_cmp_ge_u32 s{WV}, 8")
    a("s_cbranch_scc1 p0_bgw")
    a(f"s_cmp_ge_u32 s{WV}, 4")
    a("s_cbranch_scc1 p0_kvw")
    srd(a, TR, S_X, XBYTES)
    a(f"s_mul_i32 s32, s{RB}, {64*896}")
    a(f"s_lshr_b32 s3, s{WV}, 1")
    a(f"s_mul_i32 s3, s3, {32*896}")
    a("s_add_u32 s32, s32, s3")
    a(f"s_and_b32 s3, s{WV}, 1")
    a(f"s_mul_i32 s3, s3, {8*896}")
    a("s_add_u32 s32, s32, s3")
    a(f"s_lshl_b32 s34, s{WV}, 10")
    a("s_mov_b32 m0, s34")
    dma_loop(a, "p0_xdma", 3, 14, 64, 4096)
    a("s_barrier")
    pfA.stamp(1)
    xfrag_addr(a, 6, 0, 4)
    tr_rowcol(a, 12, 13, 0, 4)
    a(f"s_lshr_b32 s38, s{WV}, 1")
    a(f"s_and_b32 s39, s{WV}, 1")
    a("s_lshl_b32 s3, s38, 11")
    a("v_add_u32 v6, s3, v6")
    a("v_xor_b32 v7, 32, v6")
    a("v_lshlrev_b32 v10, 7, v12")
    a("v_lshl_add_u32 v10, v13, 1, v10")
    a("s_mul_i32 s3, s39, 56")
    a(f"s_add_u32 s3, s3, {L_WQ}")
    a("v_add_u32 v10, s3, v10")
    a("s_waitcnt vmcnt(0)")
    lds_arrive(a, C_XR, 4, 5)
    pfA.stamp(2)
    a("s_waitcnt lgkmcnt(0)")
    a("s_barrier")
    pfA.stamp(3)
    q_loop(a, 16, 32, 48, 6, 7, 10)
    a(f"s_mov_b32 s42, {hex(QSCALE)}")
    a(f"s_lshl_b32 s3, s{WV}, 11")
    a(f"s_add_u32 s3, s3, {L_QX}")
    a("v_add_u32 v12, s3, v1")
    a("s_nop 7")
    a("s_nop 0")
    for i in range(16): a(f"v_mul_f32 v{16+i}, s42, v{16+i}")
    for i in range(8): a(f"v_cvt_pk_bf16_f32 v{32+i}, v{16+2*i}, v{17+2*i}")
    a("s_mov_b32 exec_lo, 0")
    a("v_mov_b32 v38, 0")
    a("v_mov_b32 v39, 0")
    a("s_mov_b32 exec_lo, -1")
    a("ds_write_b128 v12, v[32:35]")
    a("ds_write_b128 v12, v[36:39] offset:1024")
    a("s_branch p0_b1")
    a.label("p0_kvw")
    a("s_getpc_b64 s[56:57]")
    a.label("p0_pc")
    a(f"s_sub_u32 s39, s{WV}, 4")
    a("s_lshl_b32 s3, s39, 13")
    a("v_lshlrev_b32 v150, 7, v0")
    a("v_add_u32 v150, s3, v150")
    a(f"s_sub_u32 s56, s56, p0_pc-{NAME}_kernel")
    a("s_subb_u32 s57, s57, 0")
    a(f"s_mov_b32 s3, L_end-{NAME}_kernel")
    a("v_min_u32 v150, s3, v150")
    a("global_load_dword v150, v150, s[56:57]")
    a("s_cmp_eq_u32 s39, 0")
    a("s_cbranch_scc0 p0_pf_out")
    a("v_lshlrev_b32 v151, 21, v0")
    a("s_mov_b64 exec, 7")
    a(f"buffer_load_dword v151, v151, s[{WSR}:{WSR+3}], 0 offen")
    a("s_mov_b64 exec, -1")
    a.label("p0_pf_out")
    a("s_cmp_eq_u32 s39, 1")
    a("s_cbranch_scc0 p0_pf_done")
    srd(a, 48, S_OUT, OUTBYTES)
    a("v_mul_u32_u24 v151, 0x1c0000, v0")
    a("s_mov_b64 exec, 7")
    a("buffer_load_dword v151, v151, s[48:51], 0 offen")
    a("s_mov_b64 exec, -1")
    if os.environ.get("S3") == "mall":
        a("s_cmp_eq_u32 s39, 3")
        a("s_cbranch_scc0 p0_pf_done")
        a("v_lshlrev_b32 v149, 7, v0")
        a(f"s_mul_i32 s3, s2, {13*128}")
        a(f"s_mov_b32 m0, {L_JUNK}")
        a("s_mov_b64 exec, 0x1fff")
        for sp in (S_CRE, S_CIM, S_WO):
            srd(a, 48, sp, WBYTES)
            a("buffer_load_dword v149, s[48:51], s3 offen lds")
        a("s_mov_b64 exec, -1")
    a.label("p0_pf_done")
    a("s_barrier")
    a(f"s_cmp_ge_u32 s{J2}, 3")
    a("s_cbranch_scc1 p0_kv_none")
    a("s_lshr_b32 s38, s39, 1")
    a("s_and_b32 s39, s39, 1")
    a(f"s_mov_b32 s15, {1 if 'dry' in X else 0}")
    a("s_setprio 3")
    a.label("p0_kv_setup")
    a(f"s_mov_b32 s8, s{WSR}")
    a(f"s_mov_b32 s9, s{WSR+1}")
    a("s_cmp_eq_u32 s15, 0")
    a(f"s_cselect_b32 s10, {WS_SIZE}, 0")
    a("s_mov_b32 s11, 0x00020000")
    xfrag_addr(a, 6, 0, 4)
    tr_rowcol(a, 12, 13, 0, 4)
    a("s_lshl_b32 s3, s38, 11")
    a("s_mul_i32 s41, s39, 28672")
    a("s_add_u32 s3, s3, s41")
    a("v_add_u32 v6, s3, v6")
    a("v_xor_b32 v7, 32, v6")
    a("s_mul_i32 s40, s39, 14")
    a(f"s_cmp_eq_u32 s{J2}, 2")
    a("s_cbranch_scc1 p0_kv_gaddr")
    a("v_mul_u32_u24 v10, 56, v12")
    a("v_lshl_add_u32 v10, v13, 1, v10")
    a(f"s_mul_i32 s3, s40, {16*56}")
    a(f"s_add_u32 s3, s3, {L_WKV}")
    a("v_add_u32 v10, s3, v10")
    a("v_add_u32 v11, 224, v10")
    a(f"s_mov_b32 s42, {16*56}")
    a("s_branch p0_kv_addr_done")
    a.label("p0_kv_gaddr")
    a("v_lshlrev_b32 v10, 3, v12")
    a("s_lshl_b32 s3, s40, 7")
    a(f"s_add_u32 s3, s3, {L_WKV}")
    a("v_add_u32 v10, s3, v10")
    a("v_add_u32 v11, 32, v10")
    a("s_mov_b32 s42, 128")
    a.label("p0_kv_addr_done")
    a(f"v_mov_b32 v4, {L_CNT}")
    a("s_cmp_lg_u32 s15, 0")
    a("s_cbranch_scc1 p0_xr_ok")
    lds_wait(a, C_XR, 8, 4, 5, "p0_xr")
    pfA.stamp(2)
    def kv_rd(i):
        a(f"ds_read_b128 {v(32+4*i,4)}, v{6+(i&1)} offset:{(i>>1)*4096}")
        a(f"ds_read_b64_tr_b16 {v(88+4*i,2)}, v10")
        a(f"ds_read_b64_tr_b16 {v(88+4*i+2,2)}, v11")
        if i < 13:
            a("v_add_u32 v10, s42, v10")
            a("v_add_u32 v11, s42, v11")
    def kv_mm(swap, tag):
        for i in range(4): kv_rd(i)
        for i in range(14):
            a(f"s_waitcnt lgkmcnt({3*min(3, 13-i)})")
            A, B = (32+4*i, 88+4*i) if swap else (88+4*i, 32+4*i)
            a(f"{MF} v[16:31], {v(A,4)}, {v(B,4)}, {'0' if i == 0 else 'v[16:31]'}")
            if i + 4 < 14: kv_rd(i + 4)
    a(f"s_cmp_ge_u32 s{J2}, 1")
    a("s_cbranch_scc1 p0_kv_swap")
    kv_mm(False, "k")
    a("s_branch p0_kv_mm_done")
    a.label("p0_kv_swap")
    kv_mm(True, "v")
    a.label("p0_kv_mm_done")
    pfA.stamp(22)
    a("s_lshl_b32 s3, s38, 12")
    a(f"s_add_u32 s3, s3, {L_QX}")
    a("v_add_u32 v12, s3, v1")
    a("s_nop 7")
    a("s_nop 0")
    a("s_cmp_lg_u32 s15, 0")
    a("s_cbranch_scc1 p0_kv_root")
    a("s_cmp_eq_u32 s39, 0")
    a("s_cbranch_scc1 p0_kv_root")
    for q in range(4): a(f"ds_write_b128 v12, {v(16+4*q,4)} offset:{q*1024}")
    a("s_waitcnt lgkmcnt(0)")
    a("s_lshl_b32 s3, s38, 2")
    a(f"v_mov_b32 v4, {L_CNT}")
    a("v_add_u32 v4, s3, v4")
    a("v_mov_b32 v5, 1")
    a("s_mov_b64 exec, 1")
    a(f"ds_add_u32 v4, v5 offset:{C_KVR}")
    a("s_mov_b64 exec, -1")
    a("s_branch p0_kv_none")
    a.label("p0_kv_root")
    a("s_lshl_b32 s3, s38, 2")
    a(f"v_mov_b32 v4, {L_CNT}")
    a("v_add_u32 v4, s3, v4")
    a("s_cmp_lg_u32 s15, 0")
    a("s_cbranch_scc1 p0_kvr_ok")
    lds_wait(a, C_KVR, 1, 4, 5, "p0_kvr")
    pfA.stamp(23)
    for i in range(4): a(f"ds_read_b128 {v(32+4*i,4)}, v12 offset:{i*1024}")
    a("s_waitcnt lgkmcnt(0)")
    for r in range(16): a(f"v_add_f32 v{16+r}, v{16+r}, v{32+r}")
    a(f"s_lshl_b32 s43, s{RB}, 1")
    a("s_add_u32 s43, s43, s38")
    a(f"s_cmp_eq_u32 s{J2}, 2")
    a("s_cbranch_scc1 p0_gate_epi")
    for i in range(8): a(f"v_cvt_pk_bf16_f32 v{32+i}, v{16+2*i}, v{17+2*i}")
    a("s_lshl_b32 s44, s43, 12")
    a(f"s_add_u32 s44, s44, {WS_KV}")
    a(f"s_cmp_eq_u32 s{J2}, 1")
    a("s_cbranch_scc1 p0_v_epi")
    a("s_mov_b32 exec_lo, 0")
    a("v_mov_b32 v38, 0x3f803f80")
    a("v_mov_b32 v39, 0x00003f80")
    a("s_mov_b32 exec_lo, -1")
    a(f"buffer_store_dwordx4 v[32:35], v1, s[8:11], s44 offen{SC1}")
    a(f"buffer_store_dwordx4 v[36:39], v1, s[8:11], s44 offen offset:1024{SC1}")
    a("s_branch p0_kv_arrive")
    a.label("p0_v_epi")
    a("v_max3_f32 v14, |v16|, |v17|, |v18|")
    for j in range(3, 15, 2): a(f"v_max3_f32 v14, v14, |v{16+j}|, |v{17+j}|")
    a("v_max_f32 v14, v14, |v31|")
    a("v_and_b32 v13, 31, v0")
    a("v_cmp_gt_u32 s[46:47], 28, v13")
    a(f"v_cmp_lt_f32 vcc, {hex(VMAX)}, v14")
    a("s_and_b64 vcc, vcc, s[46:47]")
    a("s_cbranch_vccz p0_v_ok")
    a("s_cmp_lg_u32 s15, 0")
    a("s_cbranch_scc1 p0_v_ok")
    srd(a, 48, S_DBG, 256)
    a("v_mov_b32 v14, 1")
    a(f"v_mov_b32 v15, {D_BAD}")
    a("s_mov_b64 exec, 1")
    a(f"buffer_store_dword v14, v15, s[48:51], 0 offen{SC1}")
    a("s_mov_b64 exec, -1")
    a.label("p0_v_ok")
    a("v_and_b32 v13, 31, v0")
    a("v_cmp_eq_u32 vcc, 28, v13")
    a("v_mov_b32 v14, 0x3f803f80")
    a("s_nop 0")
    a("v_cndmask_b32 v14, 0, v14, vcc")
    a("v_cmp_lt_u32 vcc, 27, v13")
    a("s_nop 1")
    for i in range(8): a(f"v_cndmask_b32 v{32+i}, v{32+i}, v14, vcc")
    a(f"buffer_store_dwordx4 v[32:35], v1, s[8:11], s44 offen offset:2048{SC1}")
    a(f"buffer_store_dwordx4 v[36:39], v1, s[8:11], s44 offen offset:3072{SC1}")
    a("s_branch p0_kv_arrive")
    a.label("p0_gate_epi")
    a(f"s_mov_b32 s42, {hex(LOG2E)}")
    for i in range(16): a(f"v_mul_f32 v{16+i}, s42, v{16+i}")
    for i in range(16): a(f"v_exp_f32 v{16+i}, -v{16+i}")
    for i in range(16): a(f"v_add_f32 v{16+i}, 1.0, v{16+i}")
    for i in range(16): a(f"v_rcp_f32 v{16+i}, v{16+i}")
    a("v_lshrrev_b32 v13, 5, v0")
    a("v_lshlrev_b32 v13, 6, v13")
    a("s_lshl_b32 s44, s43, 7")
    a(f"s_add_u32 s44, s44, {WS_G}")
    a("v_and_b32 v14, 31, v0")
    a("v_cmp_eq_u32 vcc, 0, v14")
    a("s_and_saveexec_b64 s[46:47], vcc")
    for q in range(4):
        a(f"buffer_store_dwordx4 {v(16+4*q,4)}, v13, s[8:11], s44 offen offset:{16*q}{SC1}")
    a("s_mov_b64 exec, -1")
    a.label("p0_kv_arrive")
    a("s_cmp_eq_u32 s15, 0")
    a("s_cbranch_scc1 p0_kv_real")
    a("s_mov_b32 s15, 0")
    a("s_branch p0_kv_setup")
    a.label("p0_kv_real")
    pfA.stamp(10)
    a("s_mov_b32 s16, 1")
    a("s_branch p0_kv_b0")
    a.label("p0_kv_none")
    a("s_mov_b32 s16, 0")
    a.label("p0_kv_b0")
    a("s_setprio 0")
    a("s_waitcnt lgkmcnt(0)")
    a("s_barrier")
    pfA.stamp(3)
    a("s_branch p0_b1")
    a.label("p0_bgw")
    a(f"s_cmp_eq_u32 s{WV}, 8")
    a("s_cbranch_scc0 p0_t9")
    srd(a, 48, S_X, XBYTES)
    a("s_and_b32 s3, s2, 7")
    a(f"s_mul_i32 s3, s3, {256*896}")
    a("s_lshr_b32 s46, s2, 3")
    a("s_mul_i32 s46, s46, 7168")
    a("s_add_u32 s3, s3, s46")
    a("v_lshlrev_b32 v50, 7, v0")
    a("s_mov_b32 exec_hi, 0xffffff")
    a("buffer_load_dword v52, v50, s[48:51], s3 offen")
    a("s_mov_b64 exec, -1")
    a("s_branch p0_t_done")
    a.label("p0_t9")
    a(f"s_cmp_eq_u32 s{WV}, 9")
    a("s_cbranch_scc0 p0_t10")
    touch_matrix(a, S_WQ, 52, 50)
    a("s_branch p0_t_done")
    a.label("p0_t10")
    a(f"s_cmp_eq_u32 s{WV}, 10")
    a("s_cbranch_scc0 p0_t_done")
    a("s_lshr_b32 s3, s2, 3")
    a(f"s_mul_i32 s3, s3, {7*128}")
    a("v_lshlrev_b32 v50, 7, v0")
    a("s_mov_b64 exec, 0x7f")
    srd(a, 48, S_WK, WKBYTES)
    a("buffer_load_dword v52, v50, s[48:51], s3 offen")
    srd(a, 48, S_WV, WKBYTES)
    a("buffer_load_dword v53, v50, s[48:51], s3 offen")
    a("s_mov_b64 exec, -1")
    a.label("p0_t_done")
    a(f"s_cmp_eq_u32 s{WV}, 11")
    a("s_cbranch_scc0 p0_nononce")
    a("s_cmp_eq_u32 s2, 0")
    a("s_cbranch_scc0 p0_nononce")
    srd(a, 48, S_DBG, 256)
    a("v_mov_b32 v7, 0")
    a("s_memrealtime s[60:61]")
    a("s_waitcnt lgkmcnt(0)")
    a("s_and_b32 s60, s60, 0xfffffffc")
    a("s_or_b32 s60, s60, 1")
    a("v_mov_b32 v6, s60")
    a("s_mov_b64 exec, 1")
    a(f"buffer_store_dword v6, v7, s[48:51], 0 offen offset:{D_NONCE}{SC1}")
    a("s_mov_b64 exec, -1")
    a.label("p0_nononce")
    a(f"s_cmp_lt_u32 s{J2}, 2")
    a("s_cbranch_scc1 p0_dma_wkv")
    a(f"s_cmp_eq_u32 s{J2}, 2")
    a("s_cbranch_scc0 p0_wkv_done")
    a(f"s_cmp_eq_u32 s{WV}, 8")
    a("s_cbranch_scc0 p0_wkv_done")
    srd(a, TR, S_GW, 896)
    a("v_lshlrev_b32 v3, 1, v0")
    for i in range(7):
        a(f"buffer_load_ushort v{10+i}, v3, s[{TR}:{TR+3}], 0 offen offset:{i*128}")
    a("v_lshlrev_b32 v4, 3, v0")
    a(f"v_add_u32 v4, {L_WKV}, v4")
    a("s_waitcnt vmcnt(0)")
    for i in range(7):
        a(f"v_lshl_or_b32 v{20+2*i}, v{10+i}, 16, v{10+i}")
        a(f"v_mov_b32 v{21+2*i}, v{20+2*i}")
        a(f"ds_write_b64 v4, {v(20+2*i,2)} offset:{i*512}")
    a("s_branch p0_wkv_done")
    a.label("p0_dma_wkv")
    a(f"s_cmp_eq_u32 s{J2}, 0")
    a(f"s_cselect_b32 s{TR}, s{S_WK}, s{S_WV}")
    a(f"s_cselect_b32 s{TR+1}, s{S_WK+1}, s{S_WV+1}")
    a(f"s_mov_b32 s{TR+2}, {WKBYTES}")
    a(f"s_mov_b32 s{TR+3}, 0x00020000")
    a("v_lshlrev_b32 v3, 4, v0")
    a(f"s_mul_i32 s32, s{BW}, 7168")
    a(f"s_add_u32 s34, s32, {L_WKV}")
    a("s_mov_b32 m0, s34")
    dma_loop(a, "p0_wdma", 3, 7, 1024, 1024)
    a.label("p0_wkv_done")
    a(f"s_lshl_b32 s37, s{J2}, 1")
    a(f"s_and_b32 s3, s{BW}, 1")
    a("s_add_u32 s37, s37, s3")
    a("v_and_b32 v4, 31, v0")
    a("s_lshl_b32 s3, s37, 6")
    a("v_lshl_add_u32 v4, v4, 1, s3")
    srd(a, 40, S_LRE, 896); a("buffer_load_ushort v8, v4, s[40:43], 0 offen")
    srd(a, 44, S_LIM, 896); a("buffer_load_ushort v9, v4, s[44:47], 0 offen")
    srd(a, 52, S_LDT, 896); a("buffer_load_ushort v10, v4, s[52:55], 0 offen")
    a("s_barrier")
    a("s_waitcnt vmcnt(3) lgkmcnt(0)")
    lds_arrive(a, C_XR, 4, 5)
    srd(a, TR, S_WQ, WBYTES)
    a("v_lshrrev_b32 v3, 3, v0")
    a("v_mul_u32_u24 v3, 896, v3")
    a("v_and_b32 v4, 7, v0")
    a("v_lshl_add_u32 v3, v4, 4, v3")
    a(f"s_mul_i32 s32, s{BW}, {112*896}")
    a(f"s_mul_i32 s33, s{J2}, 112")
    a("s_add_u32 s32, s32, s33")
    a(f"s_mul_i32 s34, s{BW}, 14336")
    a(f"s_add_u32 s34, s34, {L_WQ}")
    a("s_mov_b32 m0, s34")
    dma_loop(a, "p0_qdma", 3, 14, 7168, 1024)
    a(f"s_cmp_gt_u32 s{WV}, 9")
    a("s_cbranch_scc1 p0_nob")
    a(f"s_cmp_eq_u32 s{WV}, 8")
    a(f"s_cselect_b32 s56, s{S_BRE}, s{S_BIM}")
    a(f"s_cselect_b32 s57, s{S_BRE+1}, s{S_BIM+1}")
    touch_matrix(a, 56, 52, 50)
    a("s_mov_b32 s17, 1")
    a("s_waitcnt vmcnt(16)")
    a("s_branch p0_nob2")
    a.label("p0_nob")
    a("s_mov_b32 s17, 0")
    a("s_waitcnt vmcnt(14)")
    a.label("p0_nob2")
    a(f"v_mov_b32 v4, {L_CNT}")
    lds_wait(a, C_XR, 8, 4, 5, "p0_xr2")
    xfrag_addr(a, 6, 0, 4)
    a(f"s_lshr_b32 s38, s{BW}, 1")
    a("s_lshl_b32 s3, s38, 11")
    a("v_add_u32 v6, s3, v6")
    a("v_xor_b32 v7, 32, v6")
    for j in range(28):
        a(f"ds_read_b128 {v(56+4*j,4)}, v{6 + (j&1)} offset:{(j>>1)*4096}")
        if j in (11, 21): a("s_waitcnt lgkmcnt(2)")
    a("v_lshlrev_b32 v8, 16, v8")
    a("v_lshlrev_b32 v9, 16, v9")
    a("v_lshlrev_b32 v10, 16, v10")
    a(f"v_mul_f32 v10, {hex(LOG2E)}, v10")
    a("v_exp_f32 v10, v10")
    a("s_nop 0")
    a("v_cvt_pk_bf16_f32 v10, v10, v10")
    a("v_lshlrev_b32 v10, 16, v10")
    a("v_mul_f32 v11, v10, v8")
    a("v_mul_f32 v12, v10, v9")
    a(f"v_mul_f32 v11, {hex(LOG2E)}, v11")
    a(f"v_mul_f32 v12, {hex(INV2PI)}, v12")
    a("v_exp_f32 v13, v11")
    a("v_fract_f32 v14, v12")
    a("s_nop 0")
    a("v_cos_f32 v2, v14")
    a("v_sin_f32 v3, v14")
    a("s_nop 0")
    a("v_mul_f32 v2, v2, v13")
    a("v_mul_f32 v3, v3, v13")
    a("v_add_f32 v13, -1.0, v2")
    a("v_mul_f32 v14, v8, v8")
    a("v_fma_f32 v14, v9, v9, v14")
    a("v_rcp_f32 v14, v14")
    a("v_mul_f32 v15, v13, v8")
    a("v_fma_f32 v15, v3, v9, v15")
    a("v_mul_f32 v16, v3, v8")
    a("v_fma_f32 v16, -v13, v9, v16")
    a("v_mul_f32 v4, v15, v14")
    a("v_mul_f32 v5, v16, v14")
    a("s_cmp_eq_u32 s17, 0")
    a("s_cbranch_scc1 p0_bgw0")
    a("s_waitcnt vmcnt(2) lgkmcnt(0)")
    a("s_branch p0_bgw1")
    a.label("p0_bgw0")
    a("s_waitcnt vmcnt(0) lgkmcnt(0)")
    a.label("p0_bgw1")
    a("s_barrier")
    a.label("p0_b1")
    a("s_waitcnt lgkmcnt(0)")
    if PROF:
        a(f"s_cmp_ge_u32 s{WV}, 8")
        a("s_cbranch_scc1 p0_b1_bgst")
        pfA.stamp(9)
        a("s_branch p0_b1_go")
        a.label("p0_b1_bgst")
        BgProf(a).stamp(4)
        a.label("p0_b1_go")
    a("s_barrier")
    a(f"s_cmp_ge_u32 s{WV}, 8")
    a("s_cbranch_scc1 p1_bg")
    a(f"s_cmp_lt_u32 s{WV}, 4")
    a("s_cbranch_scc1 p1_noarr")
    a("s_cmp_eq_u32 s16, 0")
    a("s_cbranch_scc1 p1_noarr")
    a(f"v_mov_b32 v14, {L_CNT}")
    a("v_mov_b32 v15, 1")
    a("s_waitcnt vmcnt(0)")
    pfA.stamp(11)
    a("s_mov_b64 exec, 1")
    a(f"s_or_b32 s3, s{RB}, s{J2}")
    a(f"s_cmp_eq_u32 s{WV}, 4")
    a("s_cselect_b32 s3, s3, 1")
    a("s_cmp_eq_u32 s3, 0")
    a("s_cbranch_scc0 p1_nok0")
    srd(a, 48, S_DBG, 256)
    a("v_mov_b32 v12, 1")
    a(f"v_mov_b32 v13, {D_K0}")
    a(f"buffer_store_dword v12, v13, s[48:51], 0 offen{SC1}")
    a.label("p1_nok0")
    a(f"ds_add_rtn_u32 v15, v14, v15 offset:{C_KVA}")
    a("s_waitcnt lgkmcnt(0)")
    a("v_readfirstlane_b32 s3, v15")
    a("s_cmp_eq_u32 s3, 1")
    a("s_cbranch_scc0 p1_arrdone")
    srd(a, 48, S_DBG, 256)
    a("v_mov_b32 v14, 1")
    a(f"s_cmp_eq_u32 s{J2}, 2")
    a(f"s_cselect_b32 s3, {D_GCNT}, {D_CNT}")
    a("v_mov_b32 v15, s3")
    a("buffer_atomic_add v14, v15, s[48:51], 0 offen sc0 sc1")
    a("s_waitcnt vmcnt(0)")
    a("v_readfirstlane_b32 s3, v14")
    a(f"s_cmp_eq_u32 s{J2}, 2")
    a("s_cselect_b32 s46, 31, 63")
    a(f"s_mov_b32 s47, {D_GO}")
    a(f"s_cselect_b32 s47, {D_GOG}, s47")
    a("s_cmp_eq_u32 s3, s46")
    a("s_cbranch_scc0 p1_arrdone")
    a("v_mov_b32 v14, 1")
    a("v_mov_b32 v15, s47")
    a(f"buffer_store_dword v14, v15, s[48:51], 0 offen{SC1}")
    a.label("p1_arrdone")
    a("s_mov_b64 exec, -1")
    pfA.stamp(12)
    a.label("p1_noarr")
    if PROF: a("v_mov_b32 v0, v167")
    pf = Prof(a, 0)
    pf.stamp(4)
    gen_attention(a, pf)
    pf.flush(2)
    a(f"s_branch {END}")
    a.label("p1_bg")
    a("s_setprio 3")
    gen_background(a, BgProf(a))
    a.label(END)
    a("s_endpgm")
    return name

class BgProf:
    def __init__(self, a): self.a = a; self.T = [54, 55]
    def stamp(self, slot):
        if not PROF or "noprofb" in X: return
        if "onlyb" in os.environ and str(slot) not in os.environ["onlyb"].split(","): return
        a = self.a
        a("s_memrealtime s[60:61]")
        a("s_lshl_b32 s62, s2, 4")
        a(f"s_add_u32 s62, s62, s{WV}")
        a("s_lshl_b32 s62, s62, 8")
        a(f"s_add_u32 s62, s62, {WS_PROF + 4*slot}")
        a("s_waitcnt vmcnt(0) lgkmcnt(0)")
        a("s_mov_b64 exec, 1")
        t0, t1 = self.T
        a(f"v_mov_b32 v{t0}, s60")
        a(f"v_mov_b32 v{t1}, 0")
        a(f"buffer_store_dword v{t0}, v{t1}, s[{WSR}:{WSR+3}], s62 offen")
        a("s_mov_b64 exec, -1")
        a("s_waitcnt vmcnt(0)")
    def flush(self): pass

def build():
    a = Asm()
    name = gen_fused(a)
    text = a.text()
    probs = check_hazards(text)
    ref = open("gated_mix__grouped_kv_mqa__ssm_conv_s5__prompt.s.ref").read().split("\n")
    pre = []
    for ln in ref:
        if not ln.startswith(";"): break
        if "Override launch" in ln or "grid=ceil" in ln or "@launch" in ln: continue
        pre.append(ln)
    head = "\n".join(pre) + "\n"
    head += f"; @launch grid=(256,1,1) block=(768,1,1) lds={LDS_TOTAL}\n"
    out = head + '.amdgcn_target "amdgcn-amd-amdhsa--gfx950"\n.text\n' + text
    out += f""".section .rodata,"a"
.p2align 6
.amdhsa_kernel {name}
  .amdhsa_next_free_vgpr 168
  .amdhsa_next_free_sgpr 102
  .amdhsa_accum_offset 168
  .amdhsa_group_segment_fixed_size 0
  .amdhsa_kernarg_size 144
  .amdhsa_user_sgpr_count 2
  .amdhsa_user_sgpr_kernarg_segment_ptr 1
  .amdhsa_system_sgpr_workgroup_id_x 1
.end_amdhsa_kernel
"""
    return out, probs

if __name__ == "__main__":
    out, probs = build()
    open(sys.argv[1], "w").write(out)
    print("wrote", sys.argv[1], "hazards:", len(probs))
```

```python
import sys, os, struct, math
from asmlib import Asm, v, s, check_hazards

NAME = "gated_mix__grouped_kv_mqa__ssm_conv_s5__prompt"
X = set(os.environ.get('XF', '').split(','))
PROF = "prof" in X
def f2u(x): return struct.unpack("<I", struct.pack("<f", x))[0]
QSCALE = f2u(math.log2(math.e) / math.sqrt(28.0))
LOG2E = f2u(math.log2(math.e))
INV2PI = f2u(1.0 / (2.0 * math.pi))
MF = "v_mfma_f32_32x32x16_bf16"
SC1 = " sc1"
POLLSLEEP = int(os.environ.get('PS', '1'))

WS_KV = 0x000000
WS_G  = 0x040000
WS_FL = 0x042000
FL_H  = WS_FL
FL_O  = WS_FL + 0x1000
WS_E  = 0x048000
D_CNT, D_GCNT, D_GO, D_BAD, D_K0, D_NONCE, D_GOG = 0, 64, 128, 132, 136, 140, 144
WS_OF = 0x080000
WS_HF = 0x280000
WS_PROF = 0x800000
WS_SIZE = 0x1000000
XBYTES = 2048 * 448 * 2
WBYTES = 448 * 448 * 2
WKBYTES = 448 * 28 * 2
OUTBYTES = 2048 * 448 * 4

S_X, S_WQ, S_WK, S_WV, S_WO = 64, 66, 68, 70, 72
S_LRE, S_LIM = 76, 78
S_BRE, S_BIM, S_CRE, S_CIM, S_LDT, S_DSK, S_GW, S_OUT = 80, 82, 84, 86, 88, 90, 92, 94
S_DBG, S_WS = 96, 98
RB, J2, WV, BW = 20, 21, 22, 23
WSR = 24
TR = 28
NONCE = 19
SPIN = 18

L_X = 0; L_WQ = 57344; L_WKV = 114688; L_GW = 143360
L_QX = 147456
L_CNT = 163584
C_ATT, C_BG, C_NONCE, C_BAD, C_UDONE, C_HCNT, C_OCNT, C_XR, C_KVR, C_KVA, C_TRD, C_LEND, C_BL = 0, 4, 8, 12, 16, 20, 24, 28, 32, 40, 44, 48, 52
B_EX = 159744; B_HT = 90112
B_HT2 = 69632
L_C = 0
L_RED = 0
L_WO = 0
A_OP = 90112; A_LP = 155648
LDS_TOTAL = 163840

def srd(a, dst, src, nbytes):
    a(f"s_mov_b32 s{dst}, s{src}")
    a(f"s_mov_b32 s{dst+1}, s{src+1}")
    a(f"s_mov_b32 s{dst+2}, {hex(nbytes)}")
    a(f"s_mov_b32 s{dst+3}, 0x00020000")

class Prof:
    def __init__(self, a, vreg): self.a = a; self.v = vreg
    def stamp(self, slot):
        if not PROF or "noprofa" in X: return
        a = self.a
        a("s_memrealtime s[60:61]")
        a("s_memtime s[62:63]")
        a("s_waitcnt lgkmcnt(0)")
        a(f"v_writelane_b32 v{self.v}, s60, {slot}")
        a(f"v_writelane_b32 v{self.v}, s62, {slot+32}")
    def flush(self, vt):
        if not PROF: return
        a = self.a
        a("s_lshl_b32 s60, s2, 4")
        a(f"s_add_u32 s60, s60, s{WV}")
        a("s_lshl_b32 s60, s60, 8")
        a(f"s_add_u32 s60, s60, {WS_PROF}")
        a("s_mov_b64 exec, -1")
        a(f"v_mbcnt_lo_u32_b32 v{vt}, -1, 0")
        a(f"v_mbcnt_hi_u32_b32 v{vt}, -1, v{vt}")
        a(f"v_lshlrev_b32 v{vt}, 2, v{vt}")
        a(f"buffer_store_dword v{self.v}, v{vt}, s[{WSR}:{WSR+3}], s60 offen")
        a("s_waitcnt vmcnt(0)")

def xtile_lane_off(a, vd, vlane, vt0, vt1):
    a(f"v_lshrrev_b32 v{vt0}, 4, v{vlane}")
    a(f"v_and_b32 v{vt1}, 1, v{vt0}")
    a(f"v_lshlrev_b32 v{vt1}, 4, v{vt1}")
    a(f"v_lshrrev_b32 v{vd}, 5, v{vlane}")
    a(f"v_lshl_add_u32 v{vt1}, v{vd}, 2, v{vt1}")
    a(f"v_bfe_u32 v{vd}, v{vlane}, 2, 2")
    a(f"v_add_u32 v{vt1}, v{vt1}, v{vd}")
    a(f"v_mul_u32_u24 v{vt1}, 896, v{vt1}")
    a(f"v_and_b32 v{vd}, 3, v{vlane}")
    a(f"v_xor_b32 v{vd}, v{vd}, v{vt0}")
    a(f"v_lshl_add_u32 v{vd}, v{vd}, 4, v{vt1}")

def plain_lane_off(a, vd, vlane, vt0):
    a(f"v_lshrrev_b32 v{vt0}, 4, v{vlane}")
    a(f"v_and_b32 v{vd}, 3, v{vlane}")
    a(f"v_xor_b32 v{vd}, v{vd}, v{vt0}")
    a(f"v_lshlrev_b32 v{vd}, 4, v{vd}")
    a(f"v_lshrrev_b32 v{vt0}, 2, v{vlane}")
    a(f"v_mul_u32_u24 v{vt0}, 896, v{vt0}")
    a(f"v_add_u32 v{vd}, v{vd}, v{vt0}")

def xfrag_addr(a, vd, vlane, vt0):
    a(f"v_bfe_u32 v{vt0}, v{vlane}, 2, 2")
    a(f"v_lshrrev_b32 v{vd}, 5, v{vlane}")
    a(f"v_xor_b32 v{vt0}, v{vt0}, v{vd}")
    a(f"v_lshlrev_b32 v{vt0}, 4, v{vt0}")
    a(f"v_and_b32 v{vd}, 31, v{vlane}")
    a(f"v_lshl_add_u32 v{vd}, v{vd}, 6, v{vt0}")

def tr_rowcol(a, vrow, vcol, vlane, vt):
    a(f"v_lshrrev_b32 v{vrow}, 5, v{vlane}")
    a(f"v_lshlrev_b32 v{vrow}, 3, v{vrow}")
    a(f"v_bfe_u32 v{vt}, v{vlane}, 2, 2")
    a(f"v_add_u32 v{vrow}, v{vrow}, v{vt}")
    a(f"v_and_b32 v{vcol}, 16, v{vlane}")
    a(f"v_and_b32 v{vt}, 3, v{vlane}")
    a(f"v_lshl_add_u32 v{vcol}, v{vt}, 2, v{vcol}")

def proj_loop(a, swap, acc, xe, xo, we, wo_, vxe, vxo, vw1, vw2, s_wstep, s_cnt, lab):
    def rd(xr, wr, vx):
        a(f"ds_read_b128 {v(xr,4)}, v{vx}")
        a(f"ds_read_b64_tr_b16 {v(wr,2)}, v{vw1}")
        a(f"ds_read_b64_tr_b16 {v(wr+2,2)}, v{vw2}")
        a(f"v_add_u32 v{vx}, 0x1000, v{vx}")
        a(f"v_add_u32 v{vw1}, s{s_wstep}, v{vw1}")
        a(f"v_add_u32 v{vw2}, s{s_wstep}, v{vw2}")
    def mf(x, w):
        A, B = (x, w) if swap else (w, x)
        a(f"{MF} {v(acc,16)}, {v(A,4)}, {v(B,4)}, {v(acc,16)}")
    rd(xe, we, vxe); rd(xo, wo_, vxo)
    a(f"s_mov_b32 s{s_cnt}, 14")
    a.label(lab)
    a("s_waitcnt lgkmcnt(3)")
    mf(xe, we)
    rd(xe, we, vxe)
    a("s_waitcnt lgkmcnt(3)")
    mf(xo, wo_)
    rd(xo, wo_, vxo)
    a(f"s_sub_u32 s{s_cnt}, s{s_cnt}, 1")
    a(f"s_cmp_lg_u32 s{s_cnt}, 0")
    a(f"s_cbranch_scc1 {lab}")
    a("s_waitcnt lgkmcnt(0)")

def sw_barrier(a, coff, s_tgt, n, vaddr, vtmp, lab):
    a(f"s_add_u32 s{s_tgt}, s{s_tgt}, {n}")
    a(f"v_mov_b32 v{vtmp}, 1")
    a("s_waitcnt lgkmcnt(0)")
    a("s_mov_b64 exec, 1")
    a(f"ds_add_u32 v{vaddr}, v{vtmp} offset:{coff}")
    a("s_mov_b64 exec, -1")
    a.label(lab)
    a(f"ds_read_b32 v{vtmp}, v{vaddr} offset:{coff}")
    a("s_waitcnt lgkmcnt(0)")
    a(f"v_readfirstlane_b32 s3, v{vtmp}")
    a(f"s_cmp_ge_u32 s3, s{s_tgt}")
    a(f"s_cbranch_scc1 {lab}_ok")
    a("s_sleep 1")
    a(f"s_sub_u32 s{SPIN}, s{SPIN}, 1")
    a(f"s_cbranch_scc0 {lab}")
    a(f"s_mov_b32 s{SPIN}, 0")
    a.label(lab + "_ok")

def flag_store(a, soff_reg, vt0, vt1, val=None):
    a("s_mov_b64 exec, 1")
    a(f"v_mov_b32 v{vt0}, s{val if val is not None else NONCE}")
    a(f"v_mov_b32 v{vt1}, 0")
    a(f"buffer_store_dword v{vt0}, v{vt1}, s[{WSR}:{WSR+3}], s{soff_reg} offen{SC1}")
    a("s_mov_b64 exec, -1")

def arrive_flag(a, coff, n, soff_reg, vt0, vt1, lab):
    a(f"v_mov_b32 v{vt0}, {L_CNT}")
    a(f"v_mov_b32 v{vt1}, 1")
    a("s_waitcnt vmcnt(0)")
    a("s_mov_b64 exec, 1")
    a(f"ds_add_rtn_u32 v{vt1}, v{vt0}, v{vt1} offset:{coff}")
    a("s_waitcnt lgkmcnt(0)")
    a(f"v_readfirstlane_b32 s60, v{vt1}")
    a("s_mov_b64 exec, -1")
    a(f"s_cmp_eq_u32 s60, {n-1}")
    a(f"s_cbranch_scc0 {lab}")
    flag_store(a, soff_reg, vt0, vt1)
    a.label(lab)

def poll(a, lab, vdst, voff, soff_reg, mask_pair, sleep=None):
    sleep = POLLSLEEP if sleep is None else sleep
    a.label(lab)
    a(f"buffer_load_dword v{vdst}, v{voff}, s[{WSR}:{WSR+3}], s{soff_reg} offen{SC1}")
    a("s_waitcnt vmcnt(0)")
    a(f"v_cmp_ne_u32 vcc, s{NONCE}, v{vdst}")
    a(f"s_and_b64 vcc, vcc, s[{mask_pair}:{mask_pair+1}]")
    a(f"s_cbranch_vccz {lab}_ok")
    a(f"s_sleep {sleep}")
    a(f"s_sub_u32 s{SPIN}, s{SPIN}, 1")
    a(f"s_cbranch_scc0 {lab}")
    a(f"s_mov_b32 s{SPIN}, 0")
    a.label(lab + "_ok")

def cfma(a, hr, hi, lr, li, ur, ui, tr, ti):
    a(f"v_fma_f32 v{tr}, -v{li}, v{hi}, v{ur}")
    a(f"v_fma_f32 v{ti}, v{li}, v{hr}, v{ui}")
    a(f"v_fma_f32 v{hr}, v{lr}, v{hr}, v{tr}")
    a(f"v_fma_f32 v{hi}, v{lr}, v{hi}, v{ti}")

L_JUNK = 161792
def touch_matrix(a, sptr, vdst, vt, sr=48):
    srd(a, sr, sptr, WBYTES)
    a("s_lshr_b32 s3, s2, 3")
    a(f"s_mul_i32 s3, s3, {98*128}")
    a(f"v_lshlrev_b32 v{vt}, 7, v0")
    a(f"s_mov_b32 m0, {L_JUNK}")
    a("s_nop 0")
    a(f"buffer_load_dword v{vt}, s[{sr}:{sr+3}], s3 offen lds")
    a("s_add_u32 s3, s3, 8192")
    a("s_mov_b32 exec_hi, 3")
    a(f"buffer_load_dword v{vt}, s[{sr}:{sr+3}], s3 offen lds")
    a("s_mov_b64 exec, -1")

AQ, AO, AS, AK, AV, APB = 8, 40, [104, 120], [136, 144], [152, 160], 4

def att_unit(a, u, side):
    up = u - 1; un = u + 1
    cur = AS[u & 1]; prv = AS[(u + 1) & 1]
    Vp = AV[(up >> 2) & 1]; Op = AO + 16 * (up & 3)
    Kn = AK[(un >> 2) & 1]; Qn = AQ + 8 * (un & 3)
    side = list(side)
    def E(lo, hi):
        for j in range(lo, hi):
            a(f"v_exp_f32 v{cur+j}, v{cur+j}")
            if side:
                x = side.pop(0)
                if x: a(x)
    while side and isinstance(side[0], tuple):
        a(side.pop(0)[1])
    a(f"{MF} {v(Op,16)}, {v(Vp,4)}, {v(prv,4)}, {v(Op,16)}")
    E(0, 4)
    a(f"v_cvt_pk_bf16_f32 v{APB+2}, v{prv+12}, v{prv+13}")
    a(f"v_cvt_pk_bf16_f32 v{APB+3}, v{prv+14}, v{prv+15}")
    a(f"{MF} {v(prv,16)}, {v(Kn,4)}, {v(Qn,4)}, 0")
    E(4, 8)
    a(f"v_cvt_pk_bf16_f32 v{cur}, v{cur}, v{cur+1}")
    a(f"v_cvt_pk_bf16_f32 v{cur+1}, v{cur+2}, v{cur+3}")
    a(f"{MF} {v(prv,16)}, {v(Kn+4,4)}, {v(Qn+4,4)}, {v(prv,16)}")
    E(8, 12)
    a(f"v_cvt_pk_bf16_f32 v{cur+2}, v{cur+4}, v{cur+5}")
    a(f"v_cvt_pk_bf16_f32 v{cur+3}, v{cur+6}, v{cur+7}")
    a(f"{MF} {v(Op,16)}, {v(Vp+4,4)}, {v(APB,4)}, {v(Op,16)}")
    E(12, 16)
    a(f"v_cvt_pk_bf16_f32 v{APB}, v{cur+8}, v{cur+9}")
    a(f"v_cvt_pk_bf16_f32 v{APB+1}, v{cur+10}, v{cur+11}")
    assert not side, side

L_SEL = 162560
L_SH = 162048
LMAX = f2u(2.0 ** 90) if "forcefb" not in X else f2u(2.0 ** -20)
VMAX = f2u(2.0 ** 20)

def gen_attention(a, pf):
    P = "att"
    KR = TR
    a(f"v_add_u32 v2, {L_QX}, v1")
    for g in range(4):
        a(f"ds_read_b128 {v(AQ+8*g,4)}, v2 offset:{g*2048}")
        a(f"ds_read_b128 {v(AQ+8*g+4,4)}, v2 offset:{g*2048+1024}")
    a(f"s_add_u32 s{KR}, s{WSR}, {WS_KV}")
    a(f"s_addc_u32 s{KR+1}, s{WSR+1}, 0")
    a(f"s_mov_b32 s{KR+3}, 0x00020000")
    a("s_mov_b32 s44, 0")
    a("s_mov_b32 s51, 0")
    a(f"s_cmp_lt_u32 s{WV}, 4")
    a("s_cselect_b32 s53, 1, -1")
    a(f"s_cmp_eq_u32 s{WV}, 7")
    a(f"s_cbranch_scc0 {P}_nosel")
    a("v_lshrrev_b32 v104, 4, v1")
    a("v_and_b32 v105, 31, v104")
    a("v_lshrrev_b32 v104, 5, v104")
    a("v_lshlrev_b32 v104, 2, v104")
    a("v_sub_u32 v105, v105, v104")
    for j in range(4):
        d0 = (2 * j & 3) + 8 * ((2 * j) >> 2)
        a(f"v_cmp_eq_u32 vcc, {d0}, v105")
        a(f"v_mov_b32 v106, 0x3f80")
        a("s_nop 0")
        a(f"v_cndmask_b32 v{108+j}, 0, v106, vcc")
        a(f"v_cmp_eq_u32 vcc, {d0+1}, v105")
        a(f"v_mov_b32 v106, 0x3f800000")
        a("s_nop 0")
        a(f"v_cndmask_b32 v107, 0, v106, vcc")
        a(f"v_or_b32 v{108+j}, v{108+j}, v107")
    a(f"v_add_u32 v104, {L_SEL}, v1")
    a("ds_write_b128 v104, v[108:111]")
    a.label(P + "_nosel")
    srd(a, 56, S_DBG, 256)
    a(f"s_cmp_eq_u32 s{WV}, 0")
    a(f"s_cbranch_scc0 {P}_nopollA")
    a(f"v_mov_b32 v2, {D_K0}")
    a.label(P + "_pollA")
    a(f"buffer_load_dword v104, v2, s[56:59], 0 offen{SC1}")
    a("s_waitcnt vmcnt(0)")
    a("v_readfirstlane_b32 s3, v104")
    a("s_cmp_lg_u32 s3, 0")
    a(f"s_cbranch_scc1 {P}_nopollA")
    a(f"s_sleep {POLLSLEEP}")
    a(f"s_sub_u32 s{SPIN}, s{SPIN}, 1")
    a(f"s_cbranch_scc0 {P}_pollA")
    a(f"s_mov_b32 s{SPIN}, 0")
    a.label(P + "_nopollA")
    a(f"v_mov_b32 v3, {L_CNT}")
    sw_barrier(a, C_ATT, 44, 8, 3, 2, P + "_ba")
    a(f"s_mov_b32 s{KR+2}, 0x40000")
    a(f"s_cmp_ge_u32 s{WV}, 4")
    a(f"s_cbranch_scc1 {P}_shwait")
    a(f"buffer_load_dwordx4 {v(AS[1],4)}, v1, s[{KR}:{KR+3}], 0 offen{SC1}")
    a(f"buffer_load_dwordx4 {v(AS[1]+4,4)}, v1, s[{KR}:{KR+3}], 0 offen offset:1024{SC1}")
    a(f"s_lshl_b32 s3, s{WV}, 11")
    a(f"s_add_u32 s3, s3, {L_QX}")
    a("v_add_u32 v2, s3, v1")
    a(f"ds_read_b128 {v(AO,4)}, v2")
    a(f"ds_read_b128 {v(AO+4,4)}, v2 offset:1024")
    a("s_waitcnt vmcnt(0) lgkmcnt(0)")
    o = AO + 16
    a(f"{MF} {v(o,16)}, {v(AS[1],4)}, {v(AO,4)}, 0")
    a(f"{MF} {v(o,16)}, {v(AS[1]+4,4)}, {v(AO+4,4)}, {v(o,16)}")
    a(f"s_lshl_b32 s3, s{WV}, 7")
    a(f"s_add_u32 s3, s3, {L_SH}")
    a("v_lshrrev_b32 v3, 2, v1")
    a("v_and_b32 v3, 127, v3")
    a("v_add_u32 v3, s3, v3")
    a("s_nop 7")
    a(f"v_max3_f32 v2, v{o}, v{o+1}, v{o+2}")
    for j in range(3, 15, 2):
        a(f"v_max3_f32 v2, v2, v{o+j}, v{o+j+1}")
    a(f"v_max_f32 v2, v2, v{o+15}")
    a(f"v_mov_b32 v{AO}, v2")
    a("s_nop 1")
    a(f"v_permlane32_swap_b32 v2, v{AO}")
    a(f"v_max_f32 v2, v2, v{AO}")
    a("v_cvt_pk_bf16_f32 v2, -v2, 0")
    a("s_mov_b32 exec_hi, 0")
    a("ds_write_b32 v3, v2")
    a("s_mov_b64 exec, -1")
    a.label(P + "_shwait")
    a(f"v_mov_b32 v3, {L_CNT}")
    sw_barrier(a, C_ATT, 44, 8, 3, 2, P + "_bs")
    a("v_lshrrev_b32 v3, 2, v1")
    a("v_and_b32 v3, 127, v3")
    a(f"v_add_u32 v3, {L_SH}, v3")
    for g in range(4): a(f"ds_read_b32 v{AO+g}, v3 offset:{g*128}")
    a("s_waitcnt lgkmcnt(0)")
    a("s_mov_b32 exec_lo, 0")
    for g in range(4): a(f"v_mov_b32 v{AQ+8*g+6}, v{AO+g}")
    a("s_mov_b32 exec_lo, -1")
    a(f"s_cmp_eq_u32 s{WV}, 0")
    a(f"s_cbranch_scc0 {P}_nopoll")
    a(f"v_mov_b32 v2, {D_GO}")
    a.label(P + "_poll")
    a(f"buffer_load_dwordx2 v[104:105], v2, s[56:59], 0 offen{SC1}")
    a("s_waitcnt vmcnt(0)")
    a("v_readfirstlane_b32 s3, v104")
    a("s_cmp_lg_u32 s3, 0")
    a(f"s_cbranch_scc1 {P}_pollok")
    a(f"s_sleep {POLLSLEEP}")
    a(f"s_sub_u32 s{SPIN}, s{SPIN}, 1")
    a(f"s_cbranch_scc0 {P}_poll")
    a(f"s_mov_b32 s{SPIN}, 0")
    a.label(P + "_pollok")
    a(f"v_mov_b32 v3, {L_CNT}")
    a("s_mov_b64 exec, 1")
    a(f"ds_add_u32 v3, v105 offset:{C_BAD}")
    a("s_mov_b64 exec, -1")
    a.label(P + "_nopoll")
    a(f"v_mov_b32 v3, {L_CNT}")
    sw_barrier(a, C_ATT, 44, 8, 3, 2, P + "_b0")
    pf.stamp(5)
    a("s_lshr_b32 s52, s2, 3")
    a("s_lshl_b32 s52, s52, 3")
    a(f"s_add_u32 s52, s52, s{WV}")
    a("s_lshl_b32 s52, s52, 10")
    a.label(P + "_restart")
    a(f"s_mov_b32 s{KR+2}, 0x40000")
    a(f"s_lshl_b32 s43, s{WV}, 15")
    a(f"buffer_load_dwordx4 {v(AK[0],4)}, v1, s[{KR}:{KR+3}], s43 offen{SC1}")
    a(f"buffer_load_dwordx4 {v(AK[0]+4,4)}, v1, s[{KR}:{KR+3}], s43 offen offset:1024{SC1}")
    a(f"buffer_load_dwordx4 {v(AV[0],4)}, v1, s[{KR}:{KR+3}], s43 offen offset:2048{SC1}")
    a(f"buffer_load_dwordx4 {v(AV[0]+4,4)}, v1, s[{KR}:{KR+3}], s43 offen offset:3072{SC1}")
    a("s_add_u32 s43, s43, 4096")
    a(f"buffer_load_dwordx4 {v(AK[1],4)}, v1, s[{KR}:{KR+3}], s43 offen{SC1}")
    a(f"buffer_load_dwordx4 {v(AK[1]+4,4)}, v1, s[{KR}:{KR+3}], s43 offen offset:1024{SC1}")
    a(f"s_lshl_b32 s3, s{WV}, 9")
    a(f"s_mov_b32 m0, {L_JUNK}")
    a("v_lshlrev_b32 v2, 3, v1")
    a("s_mov_b64 exec, 0xff")
    a(f"buffer_load_dword v2, s[{KR}:{KR+3}], s52 offen{SC1} lds")
    a("s_mov_b64 exec, -1")
    for j in range(4): a(f"v_mov_b32 v{APB+j}, 0")
    for j in range(8): a(f"v_mov_b32 v{AV[1]+j}, 0")
    a.label(P + "_haveshift")
    for j in (0, 1, 2, 3, 12, 13, 14, 15): a(f"v_mov_b32 v{AS[1]+j}, 0")
    a(f"s_and_b32 s3, s{WV}, 3")
    a("s_lshl_b32 s3, s3, 2")
    a(f"s_add_u32 s3, s3, {L_CNT + 64}")
    a("v_mov_b32 v2, s3")
    for g in range(4):
        a(f"{MF} {v(AO+16*g,16)}, {v(AV[1],4)}, {v(APB,4)}, 0")
    a("s_waitcnt vmcnt(5)")
    a(f"{MF} {v(AS[0],16)}, {v(AK[0],4)}, {v(AQ,4)}, 0")
    a(f"{MF} {v(AS[0],16)}, {v(AK[0]+4,4)}, {v(AQ+4,4)}, {v(AS[0],16)}")
    a("s_mov_b32 s48, 0")
    a("s_setprio 2")
    a("s_nop 7")
    a("s_nop 1")
    pf.stamp(6)
    a(".p2align 3")
    a.label(P + "_loop")
    for u in range(8):
        g = u & 3; par = (u >> 2) & 1
        side = []
        if g == 1:
            side.append(("q0", "s_waitcnt vmcnt(2)"))
            side.append(f"buffer_load_dwordx4 {v(AV[par^1],4)}, v1, s[{KR}:{KR+3}], s43 offen offset:2048{SC1}")
            side.append(f"buffer_load_dwordx4 {v(AV[par^1]+4,4)}, v1, s[{KR}:{KR+3}], s43 offen offset:3072{SC1}")
            side.append("s_add_u32 s43, s43, 4096")
            if par == 0:
                side.append("s_cmp_eq_u32 s48, 3")
                side.append(f"s_cselect_b32 s{KR+2}, 0, s{KR+2}")
        if g == 3:
            side += [None, None, None, "s_waitcnt vmcnt(2)"]
            side.append(f"buffer_load_dwordx4 {v(AK[par],4)}, v1, s[{KR}:{KR+3}], s43 offen{SC1}")
            side.append(f"buffer_load_dwordx4 {v(AK[par]+4,4)}, v1, s[{KR}:{KR+3}], s43 offen offset:1024{SC1}")
            if par == 1:
                side += ["s_add_u32 s48, s48, 1", None, None, None, None, None, None, None, None, "s_cmp_lt_u32 s48, 4"]
        if g == 0:
            side += ["v_mov_b32 v3, s53", None, "s_mov_b64 exec, 1\nds_add_rtn_u32 v3, v2, v3\ns_mov_b64 exec, -1"]
        if g == 2:
            lab = f"{P}_fp{u}"
            side += ["s_waitcnt lgkmcnt(0)", "v_readfirstlane_b32 s54, v3", None, "s_mul_i32 s54, s54, s53", "s_cmp_gt_i32 s54, 0",
                     f"s_cbranch_scc1 {lab}a\ns_setprio 2\ns_branch {lab}b\n{lab}a:\ns_setprio 1\n{lab}b:"]
        att_unit(a, u, side)
    a(f"s_cbranch_scc1 {P}_loop")
    prv = AS[1]
    a(f"{MF} {v(AO+48,16)}, {v(AV[1],4)}, {v(prv,4)}, {v(AO+48,16)}")
    a(f"v_cvt_pk_bf16_f32 v{APB+2}, v{prv+12}, v{prv+13}")
    a(f"v_cvt_pk_bf16_f32 v{APB+3}, v{prv+14}, v{prv+15}")
    a("s_nop 1")
    a(f"{MF} {v(AO+48,16)}, {v(AV[1]+4,4)}, {v(APB,4)}, {v(AO+48,16)}")
    pf.stamp(7)
    a("s_setprio 3")
    a("s_cmp_lg_u32 s51, 0")
    a(f"s_cbranch_scc1 {P}_nolend")
    lds_arrive(a, C_LEND, 2, 3)
    a.label(P + "_nolend")
    a(f"v_mov_b32 v3, {L_CNT}")
    a.label(P + "_udone")
    a(f"ds_read2_b32 v[104:105], v3 offset0:{C_NONCE//4} offset1:{C_HCNT//4}")
    a("s_waitcnt lgkmcnt(0)")
    a("v_readfirstlane_b32 s3, v105")
    a(f"v_readfirstlane_b32 s{NONCE}, v104")
    a("s_cmp_ge_u32 s3, 4")
    a(f"s_cbranch_scc1 {P}_udone_ok")
    a(f"s_sub_u32 s{SPIN}, s{SPIN}, 1")
    a(f"s_cbranch_scc0 {P}_udone")
    a(f"s_mov_b32 s{SPIN}, 0")
    a.label(P + "_udone_ok")
    a(f"s_lshl_b32 s3, s{WV}, 13")
    a(f"s_add_u32 s3, s3, {A_OP}")
    a(f"v_add_u32 v2, s3, v1")
    a(f"s_lshl_b32 s3, s{WV}, 9")
    a(f"s_add_u32 s3, s3, {A_LP}")
    a("v_lshrrev_b32 v3, 2, v1")
    a("v_and_b32 v4, 127, v3")
    a("v_add_u32 v4, s3, v4")
    a(f"s_mov_b32 s46, {hex(LMAX)}")
    a("s_mov_b64 s[56:57], 0")
    for g in range(4):
        o = AO + 16 * g
        if g == 3: a("s_nop 3")
        a("s_mov_b32 exec_lo, 0")
        a(f"ds_write_b32 v4, v{o+12} offset:{g*128}")
        a(f"v_cmp_nge_f32 vcc, s46, v{o+12}")
        a("s_mov_b32 exec_lo, -1")
        a("s_or_b64 s[56:57], s[56:57], vcc")
        for j in range(8):
            a(f"v_cvt_pk_bf16_f32 v{AS[0]+8*g+j}, v{o+2*j}, v{o+2*j+1}")
        a(f"ds_write_b128 v2, {v(AS[0]+8*g,4)} offset:{g*2048}")
        a(f"ds_write_b128 v2, {v(AS[0]+8*g+4,4)} offset:{g*2048+1024}")
    a(f"v_mov_b32 v3, {L_CNT}")
    a("s_cmp_eq_u64 s[56:57], 0")
    a(f"s_cbranch_scc1 {P}_safe")
    a("v_mov_b32 v2, 1")
    a("s_mov_b64 exec, 1")
    a(f"ds_add_u32 v3, v2 offset:{C_BAD}")
    a("s_mov_b64 exec, -1")
    a.label(P + "_safe")
    pf.stamp(17)
    sw_barrier(a, C_ATT, 44, 8, 3, 2, P + "_b1")
    pf.stamp(18)
    a(f"ds_read_b32 v2, v3 offset:{C_BAD}")
    a(f"s_lshl_b32 s3, s{WV}, 10")
    a(f"s_add_u32 s3, s3, {A_OP}")
    a("v_add_u32 v4, s3, v1")
    for w in range(8):
        a(f"ds_read_b128 {v(AO+4*w,4)}, v4 offset:{w*8192}")
    a(f"s_lshr_b32 s45, s{WV}, 1")
    a("s_lshl_b32 s3, s45, 7")
    a(f"s_add_u32 s3, s3, {A_LP}")
    a("v_lshrrev_b32 v3, 2, v1")
    a("v_and_b32 v3, 127, v3")
    a("v_add_u32 v3, s3, v3")
    a("s_waitcnt lgkmcnt(8)")
    a("v_readfirstlane_b32 s3, v2")
    a("s_cmp_lg_u32 s3, 0")
    a("s_cselect_b32 s3, 1, 0")
    a("s_andn2_b32 s3, s3, s51")
    a(f"s_cbranch_scc1 {P}_fallback")
    acc = AO + 48
    a(f"v_add_u32 v2, {L_SEL}, v1")
    a(f"ds_read_b128 {v(AO+40,4)}, v2")
    for w in range(6):
        a(f"ds_read_b32 v{AO+32+w}, v3 offset:{w*512}")
    for w in range(8):
        a(f"s_waitcnt lgkmcnt({6 if w < 1 else 6})") if w == 0 else None
        if w == 0:
            a(f"ds_read_b32 v{AO+38}, v3 offset:{6*512}")
            a(f"ds_read_b32 v{AO+39}, v3 offset:{7*512}")
        a(f"{MF} {v(acc,16)}, {v(AO+40,4)}, {v(AO+4*w,4)}, {'0' if w == 0 else v(acc,16)}")
    a("s_lshr_b32 s3, s45, 1")
    a(f"s_lshl_b32 s46, s{RB}, 1")
    a("s_add_u32 s3, s3, s46")
    a("s_lshl_b32 s3, s3, 4")
    a(f"s_lshl_b32 s46, s{J2}, 1")
    a("s_add_u32 s3, s3, s46")
    a("s_and_b32 s46, s45, 1")
    a("s_add_u32 s3, s3, s46")
    a("s_lshl_b32 s3, s3, 11")
    a(f"s_and_b32 s46, s{WV}, 1")
    a("s_lshl_b32 s46, s46, 10")
    a("s_add_u32 s3, s3, s46")
    a(f"s_add_u32 s47, s3, {WS_OF}")
    a("s_waitcnt lgkmcnt(0)")
    lds_arrive(a, C_TRD, 2, 3)
    l = AO + 32
    a(f"v_add_f32 v{l}, v{l}, v{l+1}")
    a(f"v_add_f32 v{l+2}, v{l+2}, v{l+3}")
    a(f"v_add_f32 v{l+4}, v{l+4}, v{l+5}")
    a(f"v_add_f32 v{l+6}, v{l+6}, v{l+7}")
    a(f"v_add_f32 v{l}, v{l}, v{l+2}")
    a(f"v_add_f32 v{l+4}, v{l+4}, v{l+6}")
    a(f"v_add_f32 v{l}, v{l}, v{l+4}")
    a(f"v_rcp_f32 v{l+1}, v{l}")
    a("s_nop 3")
    for j in range(8): a(f"v_mul_f32 v{acc+j}, v{acc+j}, v{l+1}")
    for j in range(4): a(f"v_cvt_pk_bf16_f32 v{AO+j}, v{acc+2*j}, v{acc+2*j+1}")
    a(f"s_and_b32 s3, s{WV}, 1")
    a("s_cmp_eq_u32 s3, 1")
    a("s_cselect_b32 exec_hi, -1, 0")
    a("s_mov_b32 exec_lo, 0")
    a(f"v_mov_b32 v{AO+2}, 0")
    a(f"v_mov_b32 v{AO+3}, 0")
    a("s_mov_b64 exec, -1")
    pf.stamp(19)
    a(f"buffer_store_dwordx4 {v(AO,4)}, v1, s[{WSR}:{WSR+3}], s47 offen{SC1}")
    if "dup" in X or "dupo" in X:
        a(f"buffer_store_dwordx4 {v(AO,4)}, v1, s[{WSR}:{WSR+3}], s47 offen")
    a(f"s_lshl_b32 s3, s{RB}, 5")
    a(f"s_add_u32 s3, s3, s{J2}")
    a("s_lshl_b32 s3, s3, 2")
    a(f"s_add_u32 s3, s3, {FL_O}")
    arrive_flag(a, C_OCNT, 8, 3, 2, 3, P + "_oflag")
    pf.stamp(8)
    a(f"s_branch {P}_done")
    a.label(P + "_fallback")
    a("s_waitcnt lgkmcnt(0)")
    a("s_mov_b32 s51, 1")
    a(f"s_mov_b32 s{KR+2}, 0x40000")
    a("s_mov_b32 exec_lo, 0")
    for g in range(4):
        a(f"v_mov_b32 v{AQ+8*g+6}, 0")
        a(f"v_mov_b32 v{AQ+8*g+7}, 0")
    a("s_mov_b32 exec_lo, -1")
    for g in range(4): a(f"v_mov_b32 v{APB+g}, 0xff800000")
    a("s_mov_b32 s43, 0")
    a.label(P + "_fb_loop")
    a(f"buffer_load_dwordx4 {v(AK[0],4)}, v1, s[{KR}:{KR+3}], s43 offen{SC1}")
    a(f"buffer_load_dwordx4 {v(AK[0]+4,4)}, v1, s[{KR}:{KR+3}], s43 offen offset:1024{SC1}")
    a("s_waitcnt vmcnt(0)")
    for g in range(4):
        o = AO + 16 * g
        a(f"{MF} {v(o,16)}, {v(AK[0],4)}, {v(AQ+8*g,4)}, 0")
        a(f"{MF} {v(o,16)}, {v(AK[0]+4,4)}, {v(AQ+8*g+4,4)}, {v(o,16)}")
    a("s_nop 7")
    for g in range(4):
        o = AO + 16 * g
        for j in range(0, 16, 2):
            a(f"v_max3_f32 v{APB+g}, v{APB+g}, v{o+j}, v{o+j+1}")
    a("s_add_u32 s43, s43, 4096")
    a("s_cmp_lt_u32 s43, 0x40000")
    a(f"s_cbranch_scc1 {P}_fb_loop")
    for g in range(4):
        m = APB + g
        a(f"v_mov_b32 v2, v{m}")
        a("s_nop 1")
        a(f"v_permlane32_swap_b32 v2, v{m}")
        a(f"v_max_f32 v2, v2, v{m}")
        a("v_sub_f32 v2, 0, v2")
        a("v_cvt_pk_bf16_f32 v3, v2, v2")
        a("v_and_b32 v3, 0xffff0000, v3")
        a(f"v_sub_f32 v{m}, v2, v3")
        a(f"v_cvt_pk_bf16_f32 v2, v{m}, v{m}")
        a("v_and_b32 v2, 0xffff0000, v2")
        a(f"v_sub_f32 v{m}, v{m}, v2")
        a(f"v_cvt_pk_bf16_f32 v{m}, v{m}, 0")
        a("v_lshrrev_b32 v3, 16, v3")
        a("v_or_b32 v3, v3, v2")
        a("s_mov_b32 exec_lo, 0")
        a(f"v_mov_b32 v{AQ+8*g+6}, v3")
        a(f"v_mov_b32 v{AQ+8*g+7}, v{m}")
        a("s_mov_b32 exec_lo, -1")
    a(f"v_mov_b32 v3, {L_CNT}")
    sw_barrier(a, C_ATT, 44, 8, 3, 2, P + "_bf")
    a(f"s_branch {P}_restart")
    a.label(P + "_done")

def gen_background(a, pf):
    P = "bg"
    XF = 56; ARE, AIM = 8, 24
    nbar = [0]
    T = [54, 55]
    pf.T = T
    def bar():
        nbar[0] += 1
        a(f"v_mov_b32 v{T[0]}, {L_CNT}")
        sw_barrier(a, C_BG, 44, 4, T[0], T[1], f"{P}_bar{nbar[0]}")
    def stage3(tag, vd_=156, vt_=158):
        if "nopf" in X: return
        a(f"s_cmp_eq_u32 s{BW}, 3")
        a(f"s_cbranch_scc1 {P}_not3{tag}")
        a(f"s_cmp_eq_u32 s{BW}, 0")
        a(f"s_cselect_b32 s56, s{S_CRE}, s{S_CIM}")
        a(f"s_cselect_b32 s57, s{S_CRE+1}, s{S_CIM+1}")
        a(f"s_cmp_eq_u32 s{BW}, 2")
        a(f"s_cselect_b32 s56, s{S_WO}, s56")
        a(f"s_cselect_b32 s57, s{S_WO+1}, s57")
        touch_matrix(a, 56, vd_, vt_)
        a.label(P + "_not3" + tag)
    a("s_mov_b32 s44, 0")
    a(f"s_lshl_b32 s37, s{J2}, 1")
    a(f"s_and_b32 s3, s{BW}, 1")
    a("s_add_u32 s37, s37, s3")
    a(f"s_lshr_b32 s38, s{BW}, 1")
    a(f"s_cmp_eq_u32 s{BW}, 3")
    a(f"s_cbranch_scc0 {P}_nononce")
    srd(a, 48, S_DBG, 256)
    a("v_mov_b32 v7, 0")
    a.label(P + "_npoll")
    a(f"buffer_load_dword v6, v7, s[48:51], 0 offen offset:{D_NONCE}{SC1}")
    a("s_waitcnt vmcnt(0)")
    a("v_readfirstlane_b32 s3, v6")
    a("s_cmp_lg_u32 s3, 0")
    a(f"s_cbranch_scc1 {P}_npoll_ok")
    a(f"s_sleep {POLLSLEEP}")
    a(f"s_sub_u32 s{SPIN}, s{SPIN}, 1")
    a(f"s_cbranch_scc0 {P}_npoll")
    a(f"s_mov_b32 s{SPIN}, 0")
    a.label(P + "_npoll_ok")
    a(f"v_mov_b32 v7, {L_CNT}")
    a(f"ds_write_b32 v7, v6 offset:{C_NONCE}")
    a.label(P + "_nononce")
    a(f"s_cmp_eq_u32 s{J2}, 7")
    a(f"s_cbranch_scc1 {P}_skip")
    if "nobg" in X: a(f"s_branch {P}_skip")
    a(f"s_and_b32 s3, s{BW}, 1")
    a("s_cmp_eq_u32 s3, 0")
    a(f"s_cselect_b32 s{TR}, s{S_BRE}, s{S_BIM}")
    a(f"s_cselect_b32 s{TR+1}, s{S_BRE+1}, s{S_BIM+1}")
    a(f"s_mov_b32 s{TR+2}, {WBYTES}")
    a(f"s_mov_b32 s{TR+3}, 0x00020000")
    plain_lane_off(a, 8, 0, 9)
    a(f"s_lshl_b32 s3, s{J2}, 1")
    a("s_add_u32 s3, s3, s38")
    a(f"s_mul_i32 s32, s3, {32*896}")
    a(f"s_lshl_b32 s34, s{BW}, 11")
    a("s_mov_b32 m0, s34")
    a("s_mov_b32 s36, 14")
    a.label(P + "_bdma")
    a(f"s_add_u32 s33, s32, {16*896}")
    a(f"buffer_load_dwordx4 v8, s[{TR}:{TR+3}], s32 offen lds")
    a("s_add_u32 m0, m0, 1024")
    a("s_sub_u32 s36, s36, 1")
    a(f"buffer_load_dwordx4 v8, s[{TR}:{TR+3}], s33 offen lds")
    a("s_add_u32 s32, s32, 64")
    a(f"s_add_u32 m0, m0, {8192-1024}")
    a("s_cmp_lg_u32 s36, 0")
    a(f"s_cbranch_scc1 {P}_bdma")
    xfrag_addr(a, 6, 0, 8)
    a(f"s_and_b32 s3, s{BW}, 1")
    a("s_lshl_b32 s3, s3, 12")
    a("v_add_u32 v6, s3, v6")
    a("v_xor_b32 v7, 32, v6")
    a("s_waitcnt vmcnt(0)")
    bar()
    a(f"ds_read_b32 v55, v54 offset:{C_NONCE}")
    a("s_waitcnt lgkmcnt(0)")
    a(f"v_readfirstlane_b32 s{NONCE}, v55")
    if "cntpoll" in X:
        lds_arrive(a, C_BL, 54, 55)
    pf.stamp(5)
    S3 = os.environ.get("S3", "b")
    if S3 == "b": stage3("a", 52, 54)
    BB = [40, 48]
    def rdB(j):
        b = BB[j & 1]
        if j in (16, 17): a(f"v_add_u32 v{6+(j&1)}, 0x10000, v{6+(j&1)}")
        o = (j >> 1) * 8192 - (65536 if j >= 16 else 0)
        a(f"ds_read_b128 {v(b,4)}, v{6+(j&1)} offset:{o}")
        a(f"ds_read_b128 {v(b+4,4)}, v{6+(j&1)} offset:{o+2048}")
    rdB(0); rdB(1)
    for j in range(28):
        b = BB[j & 1]
        a("s_waitcnt lgkmcnt(2)" if j < 27 else "s_waitcnt lgkmcnt(0)")
        c1 = "0" if j == 0 else v(ARE,16); c2 = "0" if j == 0 else v(AIM,16)
        a(f"{MF} {v(ARE,16)}, {v(XF+4*j,4)}, {v(b,4)}, {c1}")
        a(f"{MF} {v(AIM,16)}, {v(XF+4*j,4)}, {v(b+4,4)}, {c2}")
        if j + 2 < 28: rdB(j + 2)
    a(f"v_mov_b32 v54, {L_CNT}")
    a("v_mov_b32 v55, 1")
    a("s_mov_b64 exec, 1")
    a(f"ds_add_u32 v54, v55 offset:{C_UDONE}")
    a("s_mov_b64 exec, -1")
    pf.stamp(6)
    if S3 == "u": stage3("a")
    def csq(dr, di, sr, si):
        a(f"v_mul_f32 v46, v{si}, v{si}")
        a(f"v_mul_f32 v47, v{sr}, v{si}")
        a(f"v_fma_f32 v{dr}, v{sr}, v{sr}, -v46")
        a(f"v_add_f32 v{di}, v47, v47")
    csq(40, 41, 2, 3)
    for _ in range(3): csq(40, 41, 40, 41)
    csq(42, 43, 40, 41); csq(42, 43, 42, 43)
    csq(44, 45, 42, 43)
    for _ in range(3): csq(44, 45, 44, 45)
    a("v_mov_b32 v48, v4")
    a("v_mov_b32 v49, v4")
    a("v_mov_b32 v50, v5")
    a("v_mov_b32 v51, v5")
    for r in range(0, 16, 2):
        a(f"v_pk_mul_f32 v[46:47], v[50:51], {v(AIM+r,2)}")
        a(f"v_pk_mul_f32 v[52:53], v[50:51], {v(ARE+r,2)}")
        a(f"v_pk_fma_f32 {v(ARE+r,2)}, v[48:49], {v(ARE+r,2)}, v[46:47] neg_lo:[0,0,1] neg_hi:[0,0,1]")
        a(f"v_pk_fma_f32 {v(AIM+r,2)}, v[48:49], {v(AIM+r,2)}, v[52:53]")
    a(f"v_mov_b32 v48, v{ARE}")
    a(f"v_mov_b32 v49, v{AIM}")
    for r in range(1, 16):
        cfma(a, 48, 49, 2, 3, ARE + r, AIM + r, 46, 47)
    a("v_and_b32 v50, 31, v0")
    a("v_lshlrev_b32 v50, 3, v50")
    a(f"s_and_b32 s3, s{BW}, 1")
    a("s_lshl_b32 s3, s3, 10")
    a(f"s_add_u32 s3, s3, {B_EX}")
    a("v_add_u32 v50, s3, v50")
    a("v_lshrrev_b32 v51, 5, v0")
    a("s_lshl_b32 s3, s38, 1")
    a("v_add_u32 v51, s3, v51")
    a("v_lshl_add_u32 v52, v51, 8, v50")
    a("ds_write_b64 v52, v[48:49]")
    bar()
    for c in range(4):
        a(f"ds_read_b64 {v(56+2*c,2)}, v50 offset:{c*256}")
    a("s_waitcnt lgkmcnt(0)")
    a("v_mov_b32 v64, v56")
    a("v_mov_b32 v65, v57")
    for c in range(1, 4):
        cfma(a, 64, 65, 40, 41, 56 + 2*c, 57 + 2*c, 46, 47)
    a("s_cmp_eq_u32 s38, 1")
    a(f"s_cbranch_scc0 {P}_nopub")
    a(f"s_mul_i32 s3, s{RB}, {448*16}")
    a("s_lshl_b32 s33, s37, 9")
    a("s_add_u32 s3, s3, s33")
    a(f"s_add_u32 s3, s3, {WS_E}")
    a(f"v_mov_b32 v66, s{NONCE}")
    a(f"v_mov_b32 v67, s{NONCE}")
    a("v_and_b32 v68, 31, v0")
    a("v_lshlrev_b32 v68, 4, v68")
    a("s_mov_b32 exec_hi, 0")
    a(f"buffer_store_dwordx4 v[64:67], v68, s[{WSR}:{WSR+3}], s3 offen{SC1}")
    a("s_mov_b64 exec, -1")
    a.label(P + "_nopub")
    pf.stamp(7)
    a(f"s_add_u32 s48, s{WSR}, {WS_E}")
    a(f"s_addc_u32 s49, s{WSR+1}, 0")
    a(f"s_mov_b32 s50, {32*448*16}")
    a("s_mov_b32 s51, 0x00020000")
    a("v_lshrrev_b32 v67, 5, v0")
    a("v_lshlrev_b32 v67, 4, v67")
    a(f"v_sub_u32 v67, s{RB}, v67")
    a("v_add_u32 v67, -1, v67")
    a(f"s_mov_b32 s3, {448*16}")
    a("v_mul_lo_u32 v68, v67, s3")
    a("v_and_b32 v66, 31, v0")
    a("v_lshlrev_b32 v66, 4, v66")
    a("s_lshl_b32 s33, s37, 9")
    a("v_add3_u32 v68, v68, v66, s33")
    EG = 72
    for i in range(1, 16):
        a(f"v_subrev_u32 v{136+i}, {448*16*i}, v68")
    a("v_mov_b32 v136, v68")
    a("s_waitcnt vmcnt(0)")
    a(f"s_cmp_eq_u32 s{RB}, 0")
    a(f"s_cbranch_scc1 {P}_pollE")
    a.label(P + "_pollE0")
    a("s_mov_b32 exec_hi, 0")
    a(f"buffer_load_dwordx3 {v(EG,3)}, v136, s[48:51], 0 offen{SC1}")
    a("s_mov_b64 exec, -1")
    a("s_waitcnt vmcnt(0)")
    a(f"v_cmp_ne_u32 vcc, s{NONCE}, v{EG+2}")
    a("s_cmp_eq_u32 vcc_lo, 0")
    a(f"s_cbranch_scc1 {P}_pollE")
    a(f"s_sleep {os.environ.get('ES', '6')}")
    a(f"s_sub_u32 s{SPIN}, s{SPIN}, 1")
    a(f"s_cbranch_scc0 {P}_pollE0")
    a(f"s_mov_b32 s{SPIN}, 0")
    a.label(P + "_pollE")
    for i in range(16):
        a(f"buffer_load_dwordx3 {v(EG+4*i,3)}, v{136+i}, s[48:51], 0 offen{SC1}")
    a("s_mov_b64 s[56:57], 0")
    a("s_waitcnt vmcnt(0)")
    for i in range(16):
        a(f"v_cmp_ne_u32 vcc, s{NONCE}, v{EG+4*i+2}")
        a(f"s_cmp_gt_u32 s{RB}, {i}")
        a("s_cselect_b32 s58, -1, 0")
        a(f"s_cmp_gt_u32 s{RB}, {i+16}")
        a("s_cselect_b32 s59, -1, 0")
        a("s_and_b64 vcc, vcc, s[58:59]")
        a("s_or_b64 s[56:57], s[56:57], vcc")
    a("s_cmp_eq_u64 s[56:57], 0")
    a(f"s_cbranch_scc1 {P}_pollE_ok")
    a("s_sleep 12")
    a(f"s_sub_u32 s{SPIN}, s{SPIN}, 1")
    a(f"s_cbranch_scc0 {P}_pollE")
    a(f"s_mov_b32 s{SPIN}, 0")
    a.label(P + "_pollE_ok")
    pf.stamp(8)
    a(f"v_mov_b32 v68, v{EG+60}")
    a(f"v_mov_b32 v69, v{EG+61}")
    for i in range(14, -1, -1):
        cfma(a, 68, 69, 42, 43, EG + 4*i, EG + 4*i + 1, 46, 47)
    a("v_mov_b32 v70, v68")
    a("v_mov_b32 v71, v69")
    a("v_mov_b32 v72, v68")
    a("v_mov_b32 v73, v69")
    a("s_nop 1")
    a("v_permlane32_swap_b32 v70, v72")
    a("v_permlane32_swap_b32 v71, v73")
    cfma(a, 72, 73, 44, 45, 70, 71, 46, 47)
    for cp in range(3):
        a("v_mov_b32 v74, v72")
        a("v_mov_b32 v75, v73")
        cfma(a, 74, 75, 40, 41, 56 + 2*cp, 57 + 2*cp, 46, 47)
        a(f"v_cmp_lt_u32 vcc, {cp}, v51")
        a("s_nop 1")
        a("v_cndmask_b32 v72, v72, v74, vcc")
        a("v_cndmask_b32 v73, v73, v75, vcc")
    a(f"s_lshl_b32 s3, s{BW}, 12")
    a(f"s_add_u32 s3, s3, {B_HT}")
    a("v_and_b32 v66, 31, v0")
    a("v_lshlrev_b32 v66, 1, v66")
    a("v_lshrrev_b32 v67, 5, v0")
    a("v_lshl_add_u32 v66, v67, 8, v66")
    a("v_add_u32 v66, s3, v66")
    for r in range(16):
        cfma(a, 72, 73, 2, 3, ARE + r, AIM + r, 46, 47)
        a(f"v_cvt_pk_bf16_f32 v{76+(r&1)}, v72, -v73")
        slot = (r & 3) + 8 * (r >> 2)
        a(f"ds_write_b16 v66, v{76+(r&1)} offset:{slot*64}")
        a(f"ds_write_b16_d16_hi v66, v{76+(r&1)} offset:{2048+slot*64}")
    a("v_and_b32 v67, 31, v0")
    a("v_lshlrev_b32 v67, 6, v67")
    a("v_lshrrev_b32 v68, 5, v0")
    a("v_lshl_add_u32 v67, v68, 4, v67")
    a("v_add_u32 v67, s3, v67")
    a("s_waitcnt lgkmcnt(0)")
    for part in range(2):
        for jj in range(2):
            a(f"ds_read_b128 {v(80+8*part+4*jj,4)}, v67 offset:{part*2048+jj*32}")
    a(f"s_lshl_b32 s3, s{RB}, 1")
    a("s_add_u32 s3, s3, s38")
    a("s_mul_i32 s3, s3, 56")
    a("s_lshl_b32 s33, s37, 1")
    a("s_add_u32 s3, s3, s33")
    a("s_lshl_b32 s3, s3, 10")
    a(f"s_add_u32 s3, s3, {WS_HF}")
    a(f"s_add_u32 s33, s3, {28*1024}")
    a("s_waitcnt lgkmcnt(0)")
    a(f"buffer_store_dwordx4 {v(80,4)}, v1, s[{WSR}:{WSR+3}], s3 offen{SC1}")
    a(f"buffer_store_dwordx4 {v(84,4)}, v1, s[{WSR}:{WSR+3}], s3 offen offset:1024{SC1}")
    a(f"buffer_store_dwordx4 {v(88,4)}, v1, s[{WSR}:{WSR+3}], s33 offen{SC1}")
    a(f"buffer_store_dwordx4 {v(92,4)}, v1, s[{WSR}:{WSR+3}], s33 offen offset:1024{SC1}")
    if "dup" in X:
        a(f"buffer_store_dwordx4 {v(80,4)}, v1, s[{WSR}:{WSR+3}], s3 offen")
        a(f"buffer_store_dwordx4 {v(84,4)}, v1, s[{WSR}:{WSR+3}], s3 offen offset:1024")
        a(f"buffer_store_dwordx4 {v(88,4)}, v1, s[{WSR}:{WSR+3}], s33 offen")
        a(f"buffer_store_dwordx4 {v(92,4)}, v1, s[{WSR}:{WSR+3}], s33 offen offset:1024")
    a(f"s_lshl_b32 s3, s{RB}, 5")
    a(f"s_add_u32 s3, s3, s{J2}")
    a("s_lshl_b32 s3, s3, 2")
    a(f"s_add_u32 s3, s3, {FL_H}")
    arrive_flag(a, C_HCNT, 4, 3, 66, 67, P + "_hflag")
    pf.stamp(9)
    a(f"s_lshr_b32 s3, s{BW}, 1")
    a("s_cmp_eq_u32 s3, 0")
    a(f"s_cselect_b32 s{TR}, s{S_CRE}, s{S_CIM}")
    a(f"s_cselect_b32 s{TR+1}, s{S_CRE+1}, s{S_CIM+1}")
    plain_lane_off(a, 53, 0, 69)
    a(f"s_mul_i32 s40, s{J2}, {64*896}")
    a(f"s_and_b32 s3, s{BW}, 1")
    a("s_mul_i32 s3, s3, 448")
    a("s_add_u32 s40, s40, s3")
    a(f"s_mul_i32 s41, s{BW}, 20480")
    CDMA = [53]
    def c_dma(kb):
        a(f"s_add_u32 m0, s41, {(kb % 5)*4096}")
        for q in range(4):
            a(f"s_add_u32 s33, s40, {q*16*896 + kb*64}")
            a(f"buffer_load_dwordx4 v{CDMA[0]}, s[{TR}:{TR+3}], s33 offen lds")
            if q < 3: a("s_add_u32 m0, m0, 1024")
    for kb in range(5): c_dma(kb)
    a(f"s_cmp_eq_u32 s{BW}, 0")
    a(f"s_cbranch_scc0 {P}_nopollH")
    a("v_lshlrev_b32 v67, 2, v0")
    a(f"s_lshl_b32 s35, s{RB}, 7")
    a(f"s_add_u32 s35, s35, {FL_H}")
    a("s_mov_b64 s[58:59], 0x7f")
    poll(a, P + "_pollH", 68, 67, 35, 58)
    srd(a, 48, S_DBG, 256)
    a(f"v_mov_b32 v67, {D_GOG}")
    a.label(P + "_pollG")
    a(f"buffer_load_dword v68, v67, s[48:51], 0 offen{SC1}")
    a("s_waitcnt vmcnt(0)")
    a("v_readfirstlane_b32 s3, v68")
    a("s_cmp_lg_u32 s3, 0")
    a(f"s_cbranch_scc1 {P}_pollG_ok")
    a(f"s_sleep {POLLSLEEP}")
    a(f"s_sub_u32 s{SPIN}, s{SPIN}, 1")
    a(f"s_cbranch_scc0 {P}_pollG")
    a(f"s_mov_b32 s{SPIN}, 0")
    a.label(P + "_pollG_ok")
    a.label(P + "_nopollH")
    a("s_waitcnt vmcnt(0)")
    bar()
    pf.stamp(10)
    T[0], T[1] = 4, 5
    ACC = 8
    XS, GT = 136, 152
    if "lowy" in X: a("s_setprio 0")
    a(f"s_lshl_b32 s3, s{RB}, 1")
    a("s_mul_i32 s3, s3, 56")
    a(f"s_mul_i32 s33, s{BW}, 14")
    a("s_add_u32 s3, s3, s33")
    a("s_lshl_b32 s3, s3, 10")
    a(f"s_add_u32 s32, s3, {WS_HF}")
    a(f"s_add_u32 s34, s32, {56*1024}")
    AF = 88; NA = 10
    plain_lane_off(a, 2, 0, 72)
    CDMA[0] = 2
    xfrag_addr(a, 6, 0, 72)
    a("v_add_u32 v6, s41, v6")
    a("v_xor_b32 v7, 32, v6")
    def ldA(st_):
        r = AF + 8 * (st_ % NA)
        a(f"s_add_u32 s35, s32, {st_*1024}")
        a(f"s_add_u32 s36, s34, {st_*1024}")
        a(f"buffer_load_dwordx4 {v(r,4)}, v1, s[{WSR}:{WSR+3}], s35 offen{SC1}")
        a(f"buffer_load_dwordx4 {v(r+4,4)}, v1, s[{WSR}:{WSR+3}], s36 offen{SC1}")
    for st_ in range(NA): ldA(st_)
    if "htouch" in X:
        a("v_lshlrev_b32 v72, 7, v0")
        a(f"s_mov_b32 m0, {L_JUNK}")
        a(f"s_add_u32 s35, s32, {NA*1024}")
        a(f"s_add_u32 s36, s34, {NA*1024}")
        a("s_mov_b32 exec_hi, 0")
        a(f"buffer_load_dword v72, s[{WSR}:{WSR+3}], s35 offen{SC1} lds")
        a(f"buffer_load_dword v72, s[{WSR}:{WSR+3}], s36 offen{SC1} lds")
        a("s_mov_b64 exec, -1")
    CB = [72, 80]
    def rdC(st_):
        b = CB[st_ & 1]
        kb = st_ >> 1
        a(f"ds_read_b128 {v(b,4)}, v{6+(st_&1)} offset:{(kb%5)*4096}")
        a(f"ds_read_b128 {v(b+4,4)}, v{6+(st_&1)} offset:{(kb%5)*4096+2048}")
    issued = []
    for st_ in range(NA): issued += [("A", st_)] * 2
    if "htouch" in X: issued += [("T", 0)] * 2
    HY = int(os.environ.get("HY", "0"))
    if HY:
        a(f"v_mov_b32 v4, {L_CNT}")
        lds_wait(a, C_LEND, HY, 4, 5, P + "_lend", sleep=8)
        a(f"s_setprio {os.environ.get('YP', '1')}")
    rdC(0)
    for st_ in range(14):
        kb = st_ >> 1
        need = [("A", st_)]
        if st_ + 1 < 14 and ((st_ + 1) >> 1) >= 5: need.append(("C", (st_ + 1) >> 1))
        last = max(i for i, t in enumerate(issued) if t in need)
        n_out = len(issued) - 1 - last
        a(f"s_waitcnt vmcnt({n_out})")
        if st_ + 1 < 14: rdC(st_ + 1)
        a(f"s_waitcnt lgkmcnt({2 if st_ + 1 < 14 else 0})")
        b = CB[st_ & 1]; r = AF + 8 * (st_ % NA)
        for rt in range(2):
            for ct in range(2):
                acc = ACC + 16 * (2 * rt + ct)
                c = "0" if st_ == 0 else v(acc, 16)
                a(f"{MF} {v(acc,16)}, {v(r+4*rt,4)}, {v(b+4*ct,4)}, {c}")
        if st_ + NA < 14:
            ldA(NA + st_); issued += [("A", NA + st_)] * 2
        if (st_ & 1) == 1 and kb + 5 < 7:
            c_dma(kb + 5); issued += [("C", kb + 5)] * 4
    pf.stamp(11)
    a(f"s_lshl_b32 s3, s{RB}, 6")
    a("s_lshl_b32 s33, s38, 5")
    a("s_add_u32 s3, s3, s33")
    a("v_lshrrev_b32 v80, 5, v0")
    a("v_lshlrev_b32 v80, 4, v80")
    a("v_add_u32 v80, s3, v80")
    a(f"s_lshl_b32 s33, s{J2}, 6")
    a(f"s_and_b32 s35, s{BW}, 1")
    a("s_lshl_b32 s35, s35, 5")
    a("s_add_u32 s33, s33, s35")
    a("v_and_b32 v81, 31, v0")
    a("v_add_u32 v81, s33, v81")
    srd(a, 48, S_X, XBYTES)
    a("v_mul_u32_u24 v82, 896, v80")
    a("v_lshl_add_u32 v82, v81, 1, v82")
    for r in range(16):
        a(f"buffer_load_ushort v{XS+r}, v82, s[48:51], 0 offen offset:{(r%4)*896}")
        if r % 4 == 3 and r < 15: a(f"v_add_u32 v82, {4*896}, v82")
    srd(a, 52, S_DSK, 896)
    a("v_lshlrev_b32 v83, 1, v81")
    a("buffer_load_ushort v3, v83, s[52:55], 0 offen")
    a("v_lshlrev_b32 v83, 2, v80")
    a(f"s_mov_b32 s35, {WS_G}")
    for q in range(4):
        a(f"buffer_load_dwordx4 {v(GT+4*q,4)}, v83, s[{WSR}:{WSR+3}], s35 offen offset:{16*q}{SC1}")

    a(f"s_setprio {os.environ.get('YP2', '2')}")
    bar()
    VT_, VD_, VO_, t1, t2, t3, t4, t5 = 72, 73, 74, 75, 76, 77, 78, 79
    srd(a, TR, S_WO, WBYTES)
    a(f"v_lshrrev_b32 v{t1}, 3, v0")
    a(f"v_mul_u32_u24 v{t1}, 896, v{t1}")
    a(f"v_and_b32 v{t2}, 7, v0")
    a(f"v_lshl_add_u32 v{t1}, v{t2}, 4, v{t1}")
    a(f"s_mul_i32 s32, s{BW}, {112*896}")
    a(f"s_lshl_b32 s3, s{J2}, 7")
    a("s_add_u32 s32, s32, s3")
    a(f"s_mul_i32 s34, s{BW}, 14336")
    a("s_mov_b32 m0, s34")
    a("s_mov_b32 s36, 14")
    a.label(P + "_wodma")
    a("s_sub_u32 s36, s36, 1")
    a(f"buffer_load_dwordx4 v{t1}, s[{TR}:{TR+3}], s32 offen lds")
    a("s_add_u32 s32, s32, 7168")
    a("s_add_u32 m0, m0, 1024")
    a("s_cmp_lg_u32 s36, 0")
    a(f"s_cbranch_scc1 {P}_wodma")
    a("v_mov_b32 v80, 0")
    a("v_mov_b32 v81, 0")
    a(f"v_lshlrev_b32 v{t2}, 3, v0")
    a(f"ds_write_b64 v{t2}, v[80:81] offset:57344")
    a(f"v_mov_b32 v4, {L_CNT}")
    lds_wait(a, C_TRD, 8, 4, 5, P + "_trd")
    a(f"s_lshl_b32 s3, s{BW}, 12")
    a(f"s_add_u32 s3, s3, {A_OP}")
    a(f"v_add_u32 v{t1}, s3, v1")
    for t in range(4):
        for q in range(4):
            a(f"ds_write_b128 v{t1}, {v(ACC+16*t+4*q,4)} offset:{t*16384+q*1024}")
    bar()
    a(f"s_lshl_b32 s3, s{BW}, 14")
    a(f"s_add_u32 s3, s3, {A_OP}")
    a(f"v_add_u32 v{t1}, s3, v1")
    for src in range(3):
        for q in range(4):
            a(f"ds_read_b128 {v(88+16*src+4*q,4)}, v{t1} offset:{src*4096+q*1024}")
    YT = 8
    for q in range(4):
        a(f"ds_read_b128 {v(YT+4*q,4)}, v{t1} offset:{3*4096+q*1024}")
        if q == 2: a("s_waitcnt lgkmcnt(4)")
    a("s_waitcnt lgkmcnt(0)")
    VT_, VD_, VO_, t1, t2, t3, t4, t5 = 40, 41, 42, 43, 44, 45, 46, 47
    a("s_waitcnt vmcnt(14)")
    for r in range(16):
        a(f"v_add_f32 v{88+r}, v{88+r}, v{104+r}")
        a(f"v_add_f32 v{YT+r}, v{YT+r}, v{120+r}")
    a("v_lshlrev_b32 v3, 16, v3")
    for r in range(16):
        a(f"v_add_f32 v{YT+r}, v{YT+r}, v{88+r}")
        a(f"v_lshlrev_b32 v{XS+r}, 16, v{XS+r}")
        a(f"v_mul_f32 v{XS+r}, v{XS+r}, v3")
        a(f"v_fma_f32 v{YT+r}, 2.0, v{YT+r}, v{XS+r}")
        a(f"v_sub_f32 v{XS+r}, 1.0, v{GT+r}")
        a(f"v_mul_f32 v{YT+r}, v{YT+r}, v{XS+r}")
    a(f"s_lshl_b32 s3, s{RB}, 6")
    a("s_lshl_b32 s33, s38, 5")
    a("s_add_u32 s3, s3, s33")
    a(f"v_lshrrev_b32 v{VT_}, 5, v0")
    a(f"v_lshlrev_b32 v{VT_}, 4, v{VT_}")
    a(f"v_add_u32 v{VT_}, s3, v{VT_}")
    a(f"s_lshl_b32 s33, s{J2}, 6")
    a(f"s_and_b32 s35, s{BW}, 1")
    a("s_lshl_b32 s35, s35, 5")
    a("s_add_u32 s33, s33, s35")
    a(f"v_and_b32 v{VD_}, 31, v0")
    a(f"v_add_u32 v{VD_}, s33, v{VD_}")
    a(f"v_mul_u32_u24 v{VO_}, 1792, v{VT_}")
    a(f"v_lshl_add_u32 v{VO_}, v{VD_}, 2, v{VO_}")
    srd(a, 48, S_OUT, OUTBYTES)
    a("v_lshrrev_b32 v6, 5, v0")
    a("v_lshlrev_b32 v6, 2, v6")
    a("v_bfe_u32 v7, v0, 2, 2")
    a("v_add_u32 v6, v6, v7")
    a("v_lshlrev_b32 v6, 7, v6")
    a("v_and_b32 v7, 16, v0")
    a(f"v_and_b32 v{t1}, 3, v0")
    a(f"v_lshl_add_u32 v7, v{t1}, 2, v7")
    a("v_lshl_add_u32 v6, v7, 1, v6")
    a(f"s_and_b32 s3, s{BW}, 1")
    a(f"s_mul_i32 s3, s3, {8*28*128}")
    a("v_add_u32 v6, s3, v6")
    a("s_waitcnt vmcnt(0)")
    a("s_setprio 3")
    pf.stamp(12)
    bar()
    a(f"v_lshlrev_b32 v{t4}, 2, v0")
    a(f"s_lshl_b32 s35, s{RB}, 7")
    a(f"s_add_u32 s35, s35, {FL_O}")
    a("s_mov_b64 s[58:59], 0xff")
    poll(a, P + "_pollO", t5, t4, 35, 58)
    pf.stamp(13)
    a(f"s_lshl_b32 s3, s{RB}, 1")
    a("s_add_u32 s3, s3, s38")
    a("s_lshl_b32 s3, s3, 15")
    a(f"s_and_b32 s33, s{BW}, 1")
    a("s_lshl_b32 s33, s33, 14")
    a("s_add_u32 s3, s3, s33")
    a(f"s_add_u32 s32, s3, {WS_OF}")
    OFR = 88
    for st_ in range(16):
        a(f"s_add_u32 s33, s32, {st_*1024}")
        a(f"buffer_load_dwordx4 {v(OFR+4*st_,4)}, v1, s[{WSR}:{WSR+3}], s33 offen{SC1}")
    PA_ = [56, 72]
    WB = [24, 32]
    def rdW(st_):
        hd, f = st_ >> 1, st_ & 1
        off = (28 * hd + 16 * f) * 128
        b = WB[st_ & 1]
        for ct in range(2):
            a(f"ds_read_b64_tr_b16 {v(b+4*ct,2)}, v6 offset:{off+ct*64}")
            a(f"ds_read_b64_tr_b16 {v(b+4*ct+2,2)}, v6 offset:{off+ct*64+1024}")
    rdW(0)
    for st_ in range(16):
        if st_ + 1 < 16: rdW(st_ + 1)
        a(f"s_waitcnt vmcnt({15-st_}) lgkmcnt({4 if st_ + 1 < 16 else 0})")
        for ct in range(2):
            c = "0" if st_ == 0 else v(PA_[ct], 16)
            a(f"{MF} {v(PA_[ct],16)}, {v(OFR+4*st_,4)}, {v(WB[st_&1]+4*ct,4)}, {c}")
    a(f"s_xor_b32 s3, s{BW}, 1")
    a("s_lshl_b32 s3, s3, 12")
    a("s_add_u32 s3, s3, 65536")
    a(f"v_add_u32 v{t1}, s3, v1")
    a(f"s_and_b32 s33, s{BW}, 1")
    a("s_nop 7")
    a("s_cmp_eq_u32 s33, 0")
    a(f"s_cbranch_scc0 {P}_send0")
    for q in range(4): a(f"ds_write_b128 v{t1}, {v(PA_[1]+4*q,4)} offset:{q*1024}")
    a(f"s_branch {P}_sent")
    a.label(P + "_send0")
    a("s_nop 1")
    for q in range(4): a(f"ds_write_b128 v{t1}, {v(PA_[0]+4*q,4)} offset:{q*1024}")
    a("s_nop 1")
    for r in range(16): a(f"v_mov_b32 v{PA_[0]+r}, v{PA_[1]+r}")
    a.label(P + "_sent")
    bar()
    a(f"s_lshl_b32 s3, s{BW}, 12")
    a("s_add_u32 s3, s3, 65536")
    a(f"v_add_u32 v{t1}, s3, v1")
    for q in range(4): a(f"ds_read_b128 {v(88+4*q,4)}, v{t1} offset:{q*1024}")
    a("s_waitcnt lgkmcnt(0)")
    for r in range(16):
        a(f"v_add_f32 v{88+r}, v{88+r}, v{PA_[0]+r}")
        a(f"v_fma_f32 v{88+r}, v{GT+r}, v{88+r}, v{YT+r}")
    for r in range(16):
        a(f"buffer_store_dword v{88+r}, v{VO_}, s[48:51], 0 offen offset:{(r%2)*1792}{os.environ.get('OST', '')}")
        if r % 2 == 1 and r < 15: a(f"v_add_u32 v{VO_}, {2*1792}, v{VO_}")
    pf.stamp(14)
    a(f"s_branch {P}_end")
    a.label(P + "_skip")
    if os.environ.get("S3", "b") in ("b", "u"): stage3("b")
    a(f"v_mov_b32 v54, {L_CNT}")
    a("v_mov_b32 v55, 1")
    a("s_mov_b64 exec, 1")
    a(f"ds_add_u32 v54, v55 offset:{C_HCNT}")
    a("s_mov_b64 exec, -1")
    a.label(P + "_end")

def lds_wait(a, coff, target, vaddr, vtmp, lab, sleep=1):
    a.label(lab)
    a(f"ds_read_b32 v{vtmp}, v{vaddr} offset:{coff}")
    a("s_waitcnt lgkmcnt(0)")
    a(f"v_readfirstlane_b32 s3, v{vtmp}")
    a(f"s_cmp_ge_u32 s3, {target}")
    a(f"s_cbranch_scc1 {lab}_ok")
    a(f"s_sleep {sleep}")
    a(f"s_sub_u32 s{SPIN}, s{SPIN}, 1")
    a(f"s_cbranch_scc0 {lab}")
    a(f"s_mov_b32 s{SPIN}, 0")
    a.label(lab + "_ok")

def lds_arrive(a, coff, vaddr, vtmp):
    a(f"v_mov_b32 v{vaddr}, {L_CNT}")
    a(f"v_mov_b32 v{vtmp}, 1")
    a("s_mov_b64 exec, 1")
    a(f"ds_add_u32 v{vaddr}, v{vtmp} offset:{coff}")
    a("s_mov_b64 exec, -1")

def dma_loop(a, lab, vaddr, n, dsrc, dlds):
    a("s_mov_b32 s36, %d" % n)
    a.label(lab)
    a("s_sub_u32 s36, s36, 1")
    a(f"buffer_load_dwordx4 v{vaddr}, s[{TR}:{TR+3}], s32 offen lds")
    a(f"s_add_u32 s32, s32, {dsrc}")
    a(f"s_add_u32 m0, m0, {dlds}")
    a("s_cmp_lg_u32 s36, 0")
    a(f"s_cbranch_scc1 {lab}")

def q_loop(a, acc, X4, W4, vxe, vxo, vw):
    def rd(j):
        k = j & 3
        a(f"ds_read_b128 {v(X4+4*k,4)}, v{vxo if j & 1 else vxe} offset:{(j>>1)*4096}")
        a(f"ds_read_b64_tr_b16 {v(W4+4*k,2)}, v{vw} offset:{j*2048}")
        a(f"ds_read_b64_tr_b16 {v(W4+4*k+2,2)}, v{vw} offset:{j*2048+512}")
    for j in range(4): rd(j)
    for j in range(28):
        left = min(3, 27 - j)
        a(f"s_waitcnt lgkmcnt({3*left})")
        c = "0" if j == 0 else v(acc, 16)
        a(f"{MF} {v(acc,16)}, {v(W4+4*(j&3),4)}, {v(X4+4*(j&3),4)}, {c}")
        if j + 4 < 28: rd(j + 4)

def gen_fused(a):
    name = NAME + "_kernel"
    a(f".globl {name}")
    a(".p2align 8")
    a(f".type {name},@function")
    a.label(name)
    END = "L_end"
    a("s_cmp_ge_u32 s2, 256")
    a(f"s_cbranch_scc1 {END}")
    a("s_load_dwordx16 s[64:79], s[0:1], 0")
    a("s_load_dwordx16 s[80:95], s[0:1], 64")
    a("s_load_dwordx4 s[96:99], s[0:1], 128")
    a("v_lshrrev_b32 v2, 6, v0")
    a("v_and_b32 v0, 63, v0")
    a(f"v_readfirstlane_b32 s{WV}, v2")
    a(f"v_mov_b32 v4, {L_CNT}")
    a("v_mov_b32 v5, 0")
    a("v_lshl_add_u32 v4, v0, 2, v4")
    a("ds_write_b32 v4, v5")
    a(f"s_and_b32 s{RB}, s2, 7")
    a(f"s_lshl_b32 s{RB}, s{RB}, 2")
    a(f"s_lshr_b32 s{J2}, s2, 3")
    a(f"s_and_b32 s3, s{J2}, 3")
    a(f"s_add_u32 s{RB}, s{RB}, s3")
    a(f"s_lshr_b32 s{J2}, s{J2}, 2")
    a("v_lshlrev_b32 v1, 4, v0")
    a(f"s_mov_b32 s{SPIN}, 0x100000")
    a(f"s_sub_u32 s{BW}, s{WV}, 8")
    pfA = Prof(a, 167)
    xtile_lane_off(a, 3, 0, 4, 5)
    a("s_waitcnt lgkmcnt(0)")
    srd(a, WSR, S_WS, WS_SIZE)
    if PROF: a("v_mov_b32 v167, 0")
    pfA.stamp(0)
    if PROF:
        a("s_getreg_b32 s60, hwreg(HW_REG_XCC_ID)")
        a("v_writelane_b32 v167, s60, 20")
        a("s_getreg_b32 s60, hwreg(HW_REG_HW_ID)")
        a("v_writelane_b32 v167, s60, 21")
    a(f"s_cmp_lt_u32 s{WV}, 4")
    a("s_cselect_b64 s[46:47], -1, 0")
    a(f"s_cmp_eq_u32 s{J2}, 0")
    a(f"s_cselect_b32 s{TR}, s{S_WK}, s{S_WV}")
    a(f"s_cselect_b32 s{TR+1}, s{S_WK+1}, s{S_WV+1}")
    a(f"s_mov_b32 s{TR+2}, {WKBYTES}")
    a(f"s_mov_b32 s{TR+3}, 0x00020000")
    a(f"s_mul_i32 s32, s{BW}, 7168")
    a(f"s_add_u32 s34, s32, {L_WKV}")
    a("s_mov_b32 s33, 1024")
    a("s_mov_b32 s35, 1024")
    a(f"s_cmp_lt_u32 s{J2}, 2")
    a("s_cselect_b32 s36, 7, 0")
    a(f"s_cmp_ge_u32 s{WV}, 8")
    a("s_cselect_b32 s36, s36, 0")
    a("v_cndmask_b32 v3, v1, v3, s[46:47]")
    a(f"s_mul_i32 s40, s{RB}, {64*896}")
    a(f"s_lshr_b32 s3, s{WV}, 1")
    a(f"s_mul_i32 s3, s3, {32*896}")
    a("s_add_u32 s40, s40, s3")
    a(f"s_and_b32 s3, s{WV}, 1")
    a(f"s_mul_i32 s3, s3, {8*896}")
    a("s_add_u32 s40, s40, s3")
    a(f"s_lshl_b32 s41, s{WV}, 10")
    a(f"s_cmp_lt_u32 s{WV}, 4")
    a(f"s_cselect_b32 s{TR}, s{S_X}, s{TR}")
    a(f"s_cselect_b32 s{TR+1}, s{S_X+1}, s{TR+1}")
    a(f"s_cselect_b32 s{TR+2}, {XBYTES}, s{TR+2}")
    a("s_cselect_b32 s32, s40, s32")
    a("s_cselect_b32 s34, s41, s34")
    a("s_cselect_b32 s33, 64, s33")
    a("s_cselect_b32 s35, 4096, s35")
    a("s_cselect_b32 s36, 14, s36")
    a("s_mov_b32 m0, s34")
    a("s_cmp_eq_u32 s36, 0")
    a("s_cbranch_scc1 p0_first_done")
    a.label("p0_first")
    a("s_sub_u32 s36, s36, 1")
    a(f"buffer_load_dwordx4 v3, s[{TR}:{TR+3}], s32 offen lds")
    a("s_add_u32 s32, s32, s33")
    a("s_add_u32 m0, m0, s35")
    a("s_cmp_lg_u32 s36, 0")
    a("s_cbranch_scc1 p0_first")
    a.label("p0_first_done")
    a(f"s_cmp_ge_u32 s{WV}, 8")
    a("s_cbranch_scc1 p0_bgw")
    a(f"s_cmp_ge_u32 s{WV}, 4")
    a("s_cbranch_scc1 p0_kvw")
    a("s_barrier")
    pfA.stamp(1)
    xfrag_addr(a, 6, 0, 4)
    tr_rowcol(a, 12, 13, 0, 4)
    a(f"s_lshr_b32 s38, s{WV}, 1")
    a(f"s_and_b32 s39, s{WV}, 1")
    a("s_lshl_b32 s3, s38, 11")
    a("v_add_u32 v6, s3, v6")
    a("v_xor_b32 v7, 32, v6")
    a("v_lshlrev_b32 v10, 7, v12")
    a("v_lshl_add_u32 v10, v13, 1, v10")
    a("s_mul_i32 s3, s39, 56")
    a(f"s_add_u32 s3, s3, {L_WQ}")
    a("v_add_u32 v10, s3, v10")
    a("s_waitcnt vmcnt(0)")
    lds_arrive(a, C_XR, 4, 5)
    pfA.stamp(2)
    a("s_waitcnt lgkmcnt(0)")
    a("s_barrier")
    pfA.stamp(3)
    q_loop(a, 16, 32, 48, 6, 7, 10)
    a(f"s_mov_b32 s42, {hex(QSCALE)}")
    a(f"s_lshl_b32 s3, s{WV}, 11")
    a(f"s_add_u32 s3, s3, {L_QX}")
    a("v_add_u32 v12, s3, v1")
    a("s_nop 7")
    a("s_nop 0")
    for i in range(16): a(f"v_mul_f32 v{16+i}, s42, v{16+i}")
    for i in range(8): a(f"v_cvt_pk_bf16_f32 v{32+i}, v{16+2*i}, v{17+2*i}")
    a("s_mov_b32 exec_lo, 0")
    a("v_mov_b32 v38, 0")
    a("v_mov_b32 v39, 0")
    a("s_mov_b32 exec_lo, -1")
    a("ds_write_b128 v12, v[32:35]")
    a("ds_write_b128 v12, v[36:39] offset:1024")
    a("s_branch p0_b1")
    a.label("p0_kvw")
    a("s_getpc_b64 s[56:57]")
    a.label("p0_pc")
    a(f"s_sub_u32 s39, s{WV}, 4")
    a("s_lshl_b32 s3, s39, 13")
    a("v_lshlrev_b32 v150, 7, v0")
    a("v_add_u32 v150, s3, v150")
    a(f"s_sub_u32 s56, s56, p0_pc-{NAME}_kernel")
    a("s_subb_u32 s57, s57, 0")
    a(f"s_mov_b32 s3, L_end-{NAME}_kernel")
    a("v_min_u32 v150, s3, v150")
    a("global_load_dword v150, v150, s[56:57]")
    a("s_cmp_eq_u32 s39, 0")
    a("s_cbranch_scc0 p0_pf_out")
    a("v_lshlrev_b32 v151, 21, v0")
    a("s_mov_b64 exec, 7")
    a(f"buffer_load_dword v151, v151, s[{WSR}:{WSR+3}], 0 offen")
    a("s_mov_b64 exec, -1")
    a.label("p0_pf_out")
    a("s_cmp_eq_u32 s39, 1")
    a("s_cbranch_scc0 p0_pf_done")
    srd(a, 48, S_OUT, OUTBYTES)
    a("v_mul_u32_u24 v151, 0x1c0000, v0")
    a("s_mov_b64 exec, 7")
    a("buffer_load_dword v151, v151, s[48:51], 0 offen")
    a("s_mov_b64 exec, -1")
    if os.environ.get("S3") == "mall":
        a("s_cmp_eq_u32 s39, 3")
        a("s_cbranch_scc0 p0_pf_done")
        a("v_lshlrev_b32 v149, 7, v0")
        a(f"s_mul_i32 s3, s2, {13*128}")
        a(f"s_mov_b32 m0, {L_JUNK}")
        a("s_mov_b64 exec, 0x1fff")
        for sp in (S_CRE, S_CIM, S_WO):
            srd(a, 48, sp, WBYTES)
            a("buffer_load_dword v149, s[48:51], s3 offen lds")
        a("s_mov_b64 exec, -1")
    a.label("p0_pf_done")
    a("s_barrier")
    a(f"s_cmp_ge_u32 s{J2}, 3")
    a("s_cbranch_scc1 p0_kv_none")
    a("s_lshr_b32 s38, s39, 1")
    a("s_and_b32 s39, s39, 1")
    a(f"s_mov_b32 s15, {1 if 'dry' in X else 0}")
    a("s_setprio 3")
    a.label("p0_kv_setup")
    a(f"s_mov_b32 s8, s{WSR}")
    a(f"s_mov_b32 s9, s{WSR+1}")
    a("s_cmp_eq_u32 s15, 0")
    a(f"s_cselect_b32 s10, {WS_SIZE}, 0")
    a("s_mov_b32 s11, 0x00020000")
    xfrag_addr(a, 6, 0, 4)
    tr_rowcol(a, 12, 13, 0, 4)
    a("s_lshl_b32 s3, s38, 11")
    a("s_mul_i32 s41, s39, 28672")
    a("s_add_u32 s3, s3, s41")
    a("v_add_u32 v6, s3, v6")
    a("v_xor_b32 v7, 32, v6")
    a("s_mul_i32 s40, s39, 14")
    a(f"s_cmp_eq_u32 s{J2}, 2")
    a("s_cbranch_scc1 p0_kv_gaddr")
    a("v_mul_u32_u24 v10, 56, v12")
    a("v_lshl_add_u32 v10, v13, 1, v10")
    a(f"s_mul_i32 s3, s40, {16*56}")
    a(f"s_add_u32 s3, s3, {L_WKV}")
    a("v_add_u32 v10, s3, v10")
    a("v_add_u32 v11, 224, v10")
    a(f"s_mov_b32 s42, {16*56}")
    a("s_branch p0_kv_addr_done")
    a.label("p0_kv_gaddr")
    a("v_lshlrev_b32 v10, 3, v12")
    a("s_lshl_b32 s3, s40, 7")
    a(f"s_add_u32 s3, s3, {L_WKV}")
    a("v_add_u32 v10, s3, v10")
    a("v_add_u32 v11, 32, v10")
    a("s_mov_b32 s42, 128")
    a.label("p0_kv_addr_done")
    a(f"v_mov_b32 v4, {L_CNT}")
    a("s_cmp_lg_u32 s15, 0")
    a("s_cbranch_scc1 p0_xr_ok")
    lds_wait(a, C_XR, 8, 4, 5, "p0_xr")
    pfA.stamp(2)
    def kv_rd(i):
        a(f"ds_read_b128 {v(32+4*i,4)}, v{6+(i&1)} offset:{(i>>1)*4096}")
        a(f"ds_read_b64_tr_b16 {v(88+4*i,2)}, v10")
        a(f"ds_read_b64_tr_b16 {v(88+4*i+2,2)}, v11")
        if i < 13:
            a("v_add_u32 v10, s42, v10")
            a("v_add_u32 v11, s42, v11")
    def kv_mm(swap, tag):
        for i in range(4): kv_rd(i)
        for i in range(14):
            a(f"s_waitcnt lgkmcnt({3*min(3, 13-i)})")
            A, B = (32+4*i, 88+4*i) if swap else (88+4*i, 32+4*i)
            a(f"{MF} v[16:31], {v(A,4)}, {v(B,4)}, {'0' if i == 0 else 'v[16:31]'}")
            if i + 4 < 14: kv_rd(i + 4)
    a(f"s_cmp_ge_u32 s{J2}, 1")
    a("s_cbranch_scc1 p0_kv_swap")
    kv_mm(False, "k")
    a("s_branch p0_kv_mm_done")
    a.label("p0_kv_swap")
    kv_mm(True, "v")
    a.label("p0_kv_mm_done")
    pfA.stamp(22)
    a("s_lshl_b32 s3, s38, 12")
    a(f"s_add_u32 s3, s3, {L_QX}")
    a("v_add_u32 v12, s3, v1")
    a("s_nop 7")
    a("s_nop 0")
    a("s_cmp_lg_u32 s15, 0")
    a("s_cbranch_scc1 p0_kv_root")
    a("s_cmp_eq_u32 s39, 0")
    a("s_cbranch_scc1 p0_kv_root")
    for q in range(4): a(f"ds_write_b128 v12, {v(16+4*q,4)} offset:{q*1024}")
    a("s_waitcnt lgkmcnt(0)")
    a("s_lshl_b32 s3, s38, 2")
    a(f"v_mov_b32 v4, {L_CNT}")
    a("v_add_u32 v4, s3, v4")
    a("v_mov_b32 v5, 1")
    a("s_mov_b64 exec, 1")
    a(f"ds_add_u32 v4, v5 offset:{C_KVR}")
    a("s_mov_b64 exec, -1")
    a("s_branch p0_kv_none")
    a.label("p0_kv_root")
    a("s_lshl_b32 s3, s38, 2")
    a(f"v_mov_b32 v4, {L_CNT}")
    a("v_add_u32 v4, s3, v4")
    a("s_cmp_lg_u32 s15, 0")
    a("s_cbranch_scc1 p0_kvr_ok")
    lds_wait(a, C_KVR, 1, 4, 5, "p0_kvr")
    pfA.stamp(23)
    for i in range(4): a(f"ds_read_b128 {v(32+4*i,4)}, v12 offset:{i*1024}")
    a("s_waitcnt lgkmcnt(0)")
    for r in range(16): a(f"v_add_f32 v{16+r}, v{16+r}, v{32+r}")
    a(f"s_lshl_b32 s43, s{RB}, 1")
    a("s_add_u32 s43, s43, s38")
    a(f"s_cmp_eq_u32 s{J2}, 2")
    a("s_cbranch_scc1 p0_gate_epi")
    for i in range(8): a(f"v_cvt_pk_bf16_f32 v{32+i}, v{16+2*i}, v{17+2*i}")
    a("s_lshl_b32 s44, s43, 12")
    a(f"s_add_u32 s44, s44, {WS_KV}")
    a(f"s_cmp_eq_u32 s{J2}, 1")
    a("s_cbranch_scc1 p0_v_epi")
    a("s_mov_b32 exec_lo, 0")
    a("v_mov_b32 v38, 0x3f803f80")
    a("v_mov_b32 v39, 0x00003f80")
    a("s_mov_b32 exec_lo, -1")
    a(f"buffer_store_dwordx4 v[32:35], v1, s[8:11], s44 offen{SC1}")
    a(f"buffer_store_dwordx4 v[36:39], v1, s[8:11], s44 offen offset:1024{SC1}")
    a("s_branch p0_kv_arrive")
    a.label("p0_v_epi")
    a("v_max3_f32 v14, |v16|, |v17|, |v18|")
    for j in range(3, 15, 2): a(f"v_max3_f32 v14, v14, |v{16+j}|, |v{17+j}|")
    a("v_max_f32 v14, v14, |v31|")
    a("v_and_b32 v13, 31, v0")
    a("v_cmp_gt_u32 s[46:47], 28, v13")
    a(f"v_cmp_lt_f32 vcc, {hex(VMAX)}, v14")
    a("s_and_b64 vcc, vcc, s[46:47]")
    a("s_cbranch_vccz p0_v_ok")
    a("s_cmp_lg_u32 s15, 0")
    a("s_cbranch_scc1 p0_v_ok")
    srd(a, 48, S_DBG, 256)
    a("v_mov_b32 v14, 1")
    a(f"v_mov_b32 v15, {D_BAD}")
    a("s_mov_b64 exec, 1")
    a(f"buffer_store_dword v14, v15, s[48:51], 0 offen{SC1}")
    a("s_mov_b64 exec, -1")
    a.label("p0_v_ok")
    a("v_and_b32 v13, 31, v0")
    a("v_cmp_eq_u32 vcc, 28, v13")
    a("v_mov_b32 v14, 0x3f803f80")
    a("s_nop 0")
    a("v_cndmask_b32 v14, 0, v14, vcc")
    a("v_cmp_lt_u32 vcc, 27, v13")
    a("s_nop 1")
    for i in range(8): a(f"v_cndmask_b32 v{32+i}, v{32+i}, v14, vcc")
    a(f"buffer_store_dwordx4 v[32:35], v1, s[8:11], s44 offen offset:2048{SC1}")
    a(f"buffer_store_dwordx4 v[36:39], v1, s[8:11], s44 offen offset:3072{SC1}")
    a("s_branch p0_kv_arrive")
    a.label("p0_gate_epi")
    a(f"s_mov_b32 s42, {hex(LOG2E)}")
    for i in range(16): a(f"v_mul_f32 v{16+i}, s42, v{16+i}")
    for i in range(16): a(f"v_exp_f32 v{16+i}, -v{16+i}")
    for i in range(16): a(f"v_add_f32 v{16+i}, 1.0, v{16+i}")
    for i in range(16): a(f"v_rcp_f32 v{16+i}, v{16+i}")
    a("v_lshrrev_b32 v13, 5, v0")
    a("v_lshlrev_b32 v13, 6, v13")
    a("s_lshl_b32 s44, s43, 7")
    a(f"s_add_u32 s44, s44, {WS_G}")
    a("v_and_b32 v14, 31, v0")
    a("v_cmp_eq_u32 vcc, 0, v14")
    a("s_and_saveexec_b64 s[46:47], vcc")
    for q in range(4):
        a(f"buffer_store_dwordx4 {v(16+4*q,4)}, v13, s[8:11], s44 offen offset:{16*q}{SC1}")
    a("s_mov_b64 exec, -1")
    a.label("p0_kv_arrive")
    a("s_cmp_eq_u32 s15, 0")
    a("s_cbranch_scc1 p0_kv_real")
    a("s_mov_b32 s15, 0")
    a("s_branch p0_kv_setup")
    a.label("p0_kv_real")
    pfA.stamp(10)
    a("s_mov_b32 s16, 1")
    a("s_branch p0_kv_b0")
    a.label("p0_kv_none")
    a("s_mov_b32 s16, 0")
    a.label("p0_kv_b0")
    a("s_setprio 0")
    a("s_waitcnt lgkmcnt(0)")
    a("s_barrier")
    pfA.stamp(3)
    a("s_branch p0_b1")
    a.label("p0_bgw")
    a(f"s_cmp_eq_u32 s{WV}, 8")
    a("s_cbranch_scc0 p0_t9")
    srd(a, 48, S_X, XBYTES)
    a("s_and_b32 s3, s2, 7")
    a(f"s_mul_i32 s3, s3, {256*896}")
    a("s_lshr_b32 s46, s2, 3")
    a("s_mul_i32 s46, s46, 7168")
    a("s_add_u32 s3, s3, s46")
    a("v_lshlrev_b32 v50, 7, v0")
    a("s_mov_b32 exec_hi, 0xffffff")
    a("buffer_load_dword v52, v50, s[48:51], s3 offen")
    a("s_mov_b64 exec, -1")
    a("s_branch p0_t_done")
    a.label("p0_t9")
    a(f"s_cmp_eq_u32 s{WV}, 9")
    a("s_cbranch_scc0 p0_t10")
    touch_matrix(a, S_WQ, 52, 50)
    a("s_branch p0_t_done")
    a.label("p0_t10")
    a(f"s_cmp_eq_u32 s{WV}, 10")
    a("s_cbranch_scc0 p0_t_done")
    a("s_lshr_b32 s3, s2, 3")
    a(f"s_mul_i32 s3, s3, {7*128}")
    a("v_lshlrev_b32 v50, 7, v0")
    a("s_mov_b64 exec, 0x7f")
    srd(a, 48, S_WK, WKBYTES)
    a("buffer_load_dword v52, v50, s[48:51], s3 offen")
    srd(a, 48, S_WV, WKBYTES)
    a("buffer_load_dword v53, v50, s[48:51], s3 offen")
    a("s_mov_b64 exec, -1")
    a.label("p0_t_done")
    a(f"s_cmp_eq_u32 s{WV}, 11")
    a("s_cbranch_scc0 p0_nononce")
    a("s_cmp_eq_u32 s2, 0")
    a("s_cbranch_scc0 p0_nononce")
    srd(a, 48, S_DBG, 256)
    a("v_mov_b32 v7, 0")
    a("s_memrealtime s[60:61]")
    a("s_waitcnt lgkmcnt(0)")
    a("s_and_b32 s60, s60, 0xfffffffc")
    a("s_or_b32 s60, s60, 1")
    a("v_mov_b32 v6, s60")
    a("s_mov_b64 exec, 1")
    a(f"buffer_store_dword v6, v7, s[48:51], 0 offen offset:{D_NONCE}{SC1}")
    a("s_mov_b64 exec, -1")
    a.label("p0_nononce")
    a(f"s_cmp_eq_u32 s{J2}, 2")
    a("s_cbranch_scc0 p0_wkv_done")
    a(f"s_cmp_eq_u32 s{WV}, 8")
    a("s_cbranch_scc0 p0_wkv_done")
    srd(a, TR, S_GW, 896)
    a("v_lshlrev_b32 v3, 1, v0")
    for i in range(7):
        a(f"buffer_load_ushort v{10+i}, v3, s[{TR}:{TR+3}], 0 offen offset:{i*128}")
    a("v_lshlrev_b32 v4, 3, v0")
    a(f"v_add_u32 v4, {L_WKV}, v4")
    a("s_waitcnt vmcnt(0)")
    for i in range(7):
        a(f"v_lshl_or_b32 v{20+2*i}, v{10+i}, 16, v{10+i}")
        a(f"v_mov_b32 v{21+2*i}, v{20+2*i}")
        a(f"ds_write_b64 v4, {v(20+2*i,2)} offset:{i*512}")
    a.label("p0_wkv_done")
    a(f"s_lshl_b32 s37, s{J2}, 1")
    a(f"s_and_b32 s3, s{BW}, 1")
    a("s_add_u32 s37, s37, s3")
    a("v_and_b32 v4, 31, v0")
    a("s_lshl_b32 s3, s37, 6")
    a("v_lshl_add_u32 v4, v4, 1, s3")
    srd(a, 40, S_LRE, 896); a("buffer_load_ushort v8, v4, s[40:43], 0 offen")
    srd(a, 44, S_LIM, 896); a("buffer_load_ushort v9, v4, s[44:47], 0 offen")
    srd(a, 52, S_LDT, 896); a("buffer_load_ushort v10, v4, s[52:55], 0 offen")
    a("s_barrier")
    a("s_waitcnt vmcnt(3) lgkmcnt(0)")
    lds_arrive(a, C_XR, 4, 5)
    srd(a, TR, S_WQ, WBYTES)
    a("v_lshrrev_b32 v3, 3, v0")
    a("v_mul_u32_u24 v3, 896, v3")
    a("v_and_b32 v4, 7, v0")
    a("v_lshl_add_u32 v3, v4, 4, v3")
    a(f"s_mul_i32 s32, s{BW}, {112*896}")
    a(f"s_mul_i32 s33, s{J2}, 112")
    a("s_add_u32 s32, s32, s33")
    a(f"s_mul_i32 s34, s{BW}, 14336")
    a(f"s_add_u32 s34, s34, {L_WQ}")
    a("s_mov_b32 m0, s34")
    dma_loop(a, "p0_qdma", 3, 14, 7168, 1024)
    a(f"s_cmp_gt_u32 s{WV}, 9")
    a("s_cbranch_scc1 p0_nob")
    a(f"s_cmp_eq_u32 s{WV}, 8")
    a(f"s_cselect_b32 s56, s{S_BRE}, s{S_BIM}")
    a(f"s_cselect_b32 s57, s{S_BRE+1}, s{S_BIM+1}")
    touch_matrix(a, 56, 52, 50)
    a("s_mov_b32 s17, 1")
    a("s_waitcnt vmcnt(16)")
    a("s_branch p0_nob2")
    a.label("p0_nob")
    a("s_mov_b32 s17, 0")
    a("s_waitcnt vmcnt(14)")
    a.label("p0_nob2")
    a(f"v_mov_b32 v4, {L_CNT}")
    lds_wait(a, C_XR, 8, 4, 5, "p0_xr2")
    xfrag_addr(a, 6, 0, 4)
    a(f"s_lshr_b32 s38, s{BW}, 1")
    a("s_lshl_b32 s3, s38, 11")
    a("v_add_u32 v6, s3, v6")
    a("v_xor_b32 v7, 32, v6")
    for j in range(28):
        a(f"ds_read_b128 {v(56+4*j,4)}, v{6 + (j&1)} offset:{(j>>1)*4096}")
        if j in (11, 21): a("s_waitcnt lgkmcnt(2)")
    a("v_lshlrev_b32 v8, 16, v8")
    a("v_lshlrev_b32 v9, 16, v9")
    a("v_lshlrev_b32 v10, 16, v10")
    a(f"v_mul_f32 v10, {hex(LOG2E)}, v10")
    a("v_exp_f32 v10, v10")
    a("s_nop 0")
    a("v_cvt_pk_bf16_f32 v10, v10, v10")
    a("v_lshlrev_b32 v10, 16, v10")
    a("v_mul_f32 v11, v10, v8")
    a("v_mul_f32 v12, v10, v9")
    a(f"v_mul_f32 v11, {hex(LOG2E)}, v11")
    a(f"v_mul_f32 v12, {hex(INV2PI)}, v12")
    a("v_exp_f32 v13, v11")
    a("v_fract_f32 v14, v12")
    a("s_nop 0")
    a("v_cos_f32 v2, v14")
    a("v_sin_f32 v3, v14")
    a("s_nop 0")
    a("v_mul_f32 v2, v2, v13")
    a("v_mul_f32 v3, v3, v13")
    a("v_add_f32 v13, -1.0, v2")
    a("v_mul_f32 v14, v8, v8")
    a("v_fma_f32 v14, v9, v9, v14")
    a("v_rcp_f32 v14, v14")
    a("v_mul_f32 v15, v13, v8")
    a("v_fma_f32 v15, v3, v9, v15")
    a("v_mul_f32 v16, v3, v8")
    a("v_fma_f32 v16, -v13, v9, v16")
    a("v_mul_f32 v4, v15, v14")
    a("v_mul_f32 v5, v16, v14")
    a("s_cmp_eq_u32 s17, 0")
    a("s_cbranch_scc1 p0_bgw0")
    a("s_waitcnt vmcnt(2) lgkmcnt(0)")
    a("s_branch p0_bgw1")
    a.label("p0_bgw0")
    a("s_waitcnt vmcnt(0) lgkmcnt(0)")
    a.label("p0_bgw1")
    a("s_barrier")
    a.label("p0_b1")
    a("s_waitcnt lgkmcnt(0)")
    if PROF:
        a(f"s_cmp_ge_u32 s{WV}, 8")
        a("s_cbranch_scc1 p0_b1_bgst")
        pfA.stamp(9)
        a("s_branch p0_b1_go")
        a.label("p0_b1_bgst")
        BgProf(a).stamp(4)
        a.label("p0_b1_go")
    a("s_barrier")
    a(f"s_cmp_ge_u32 s{WV}, 8")
    a("s_cbranch_scc1 p1_bg")
    a(f"s_cmp_lt_u32 s{WV}, 4")
    a("s_cbranch_scc1 p1_noarr")
    a("s_cmp_eq_u32 s16, 0")
    a("s_cbranch_scc1 p1_noarr")
    a(f"v_mov_b32 v14, {L_CNT}")
    a("v_mov_b32 v15, 1")
    a("s_waitcnt vmcnt(0)")
    pfA.stamp(11)
    a("s_mov_b64 exec, 1")
    a(f"s_or_b32 s3, s{RB}, s{J2}")
    a(f"s_cmp_eq_u32 s{WV}, 4")
    a("s_cselect_b32 s3, s3, 1")
    a("s_cmp_eq_u32 s3, 0")
    a("s_cbranch_scc0 p1_nok0")
    srd(a, 48, S_DBG, 256)
    a("v_mov_b32 v12, 1")
    a(f"v_mov_b32 v13, {D_K0}")
    a(f"buffer_store_dword v12, v13, s[48:51], 0 offen{SC1}")
    a.label("p1_nok0")
    a(f"ds_add_rtn_u32 v15, v14, v15 offset:{C_KVA}")
    a("s_waitcnt lgkmcnt(0)")
    a("v_readfirstlane_b32 s3, v15")
    a("s_cmp_eq_u32 s3, 1")
    a("s_cbranch_scc0 p1_arrdone")
    srd(a, 48, S_DBG, 256)
    a("v_mov_b32 v14, 1")
    a(f"s_cmp_eq_u32 s{J2}, 2")
    a(f"s_cselect_b32 s3, {D_GCNT}, {D_CNT}")
    a("v_mov_b32 v15, s3")
    a("buffer_atomic_add v14, v15, s[48:51], 0 offen sc0 sc1")
    a("s_waitcnt vmcnt(0)")
    a("v_readfirstlane_b32 s3, v14")
    a(f"s_cmp_eq_u32 s{J2}, 2")
    a("s_cselect_b32 s46, 31, 63")
    a(f"s_mov_b32 s47, {D_GO}")
    a(f"s_cselect_b32 s47, {D_GOG}, s47")
    a("s_cmp_eq_u32 s3, s46")
    a("s_cbranch_scc0 p1_arrdone")
    a("v_mov_b32 v14, 1")
    a("v_mov_b32 v15, s47")
    a(f"buffer_store_dword v14, v15, s[48:51], 0 offen{SC1}")
    a.label("p1_arrdone")
    a("s_mov_b64 exec, -1")
    pfA.stamp(12)
    a.label("p1_noarr")
    if PROF: a("v_mov_b32 v0, v167")
    pf = Prof(a, 0)
    pf.stamp(4)
    gen_attention(a, pf)
    pf.flush(2)
    a(f"s_branch {END}")
    a.label("p1_bg")
    a("s_setprio 3")
    gen_background(a, BgProf(a))
    a.label(END)
    a("s_endpgm")
    return name

class BgProf:
    def __init__(self, a): self.a = a; self.T = [54, 55]
    def stamp(self, slot):
        if not PROF or "noprofb" in X: return
        if "onlyb" in os.environ and str(slot) not in os.environ["onlyb"].split(","): return
        a = self.a
        a("s_memrealtime s[60:61]")
        a("s_lshl_b32 s62, s2, 4")
        a(f"s_add_u32 s62, s62, s{WV}")
        a("s_lshl_b32 s62, s62, 8")
        a(f"s_add_u32 s62, s62, {WS_PROF + 4*slot}")
        a("s_waitcnt vmcnt(0) lgkmcnt(0)")
        a("s_mov_b64 exec, 1")
        t0, t1 = self.T
        a(f"v_mov_b32 v{t0}, s60")
        a(f"v_mov_b32 v{t1}, 0")
        a(f"buffer_store_dword v{t0}, v{t1}, s[{WSR}:{WSR+3}], s62 offen")
        a("s_mov_b64 exec, -1")
        a("s_waitcnt vmcnt(0)")
    def flush(self): pass

def build():
    a = Asm()
    name = gen_fused(a)
    text = a.text()
    probs = check_hazards(text)
    ref = open("gated_mix__grouped_kv_mqa__ssm_conv_s5__prompt.s.ref").read().split("\n")
    pre = []
    for ln in ref:
        if not ln.startswith(";"): break
        if "Override launch" in ln or "grid=ceil" in ln or "@launch" in ln: continue
        pre.append(ln)
    head = "\n".join(pre) + "\n"
    head += f"; @launch grid=(256,1,1) block=(768,1,1) lds={LDS_TOTAL}\n"
    out = head + '.amdgcn_target "amdgcn-amd-amdhsa--gfx950"\n.text\n' + text
    out += f""".section .rodata,"a"
.p2align 6
.amdhsa_kernel {name}
  .amdhsa_next_free_vgpr 168
  .amdhsa_next_free_sgpr 102
  .amdhsa_accum_offset 168
  .amdhsa_group_segment_fixed_size 0
  .amdhsa_kernarg_size 144
  .amdhsa_user_sgpr_count 2
  .amdhsa_user_sgpr_kernarg_segment_ptr 1
  .amdhsa_system_sgpr_workgroup_id_x 1
.end_amdhsa_kernel
"""
    return out, probs

if __name__ == "__main__":
    out, probs = build()
    open(sys.argv[1], "w").write(out)
    print("wrote", sys.argv[1], "hazards:", len(probs))
```

```python
import sys, os, struct, math
from asmlib import Asm, v, s, check_hazards

NAME = "gated_mix__grouped_kv_mqa__ssm_conv_s5__prompt"
X = set(os.environ.get('XF', '').split(','))
PROF = "prof" in X
def f2u(x): return struct.unpack("<I", struct.pack("<f", x))[0]
QSCALE = f2u(math.log2(math.e) / math.sqrt(28.0))
LOG2E = f2u(math.log2(math.e))
INV2PI = f2u(1.0 / (2.0 * math.pi))
MF = "v_mfma_f32_32x32x16_bf16"
SC1 = " sc1"
POLLSLEEP = int(os.environ.get('PS', '1'))

WS_KV = 0x000000
WS_G  = 0x040000
WS_FL = 0x042000
FL_H  = WS_FL
FL_O  = WS_FL + 0x1000
WS_E  = 0x048000
D_CNT, D_GCNT, D_GO, D_BAD, D_K0, D_NONCE, D_GOG = 0, 64, 128, 132, 136, 140, 144
WS_OF = 0x080000
WS_HF = 0x280000
WS_PROF = 0x800000
WS_SIZE = 0x1000000
XBYTES = 2048 * 448 * 2
WBYTES = 448 * 448 * 2
WKBYTES = 448 * 28 * 2
OUTBYTES = 2048 * 448 * 4

S_X, S_WQ, S_WK, S_WV, S_WO = 64, 66, 68, 70, 72
S_LRE, S_LIM = 76, 78
S_BRE, S_BIM, S_CRE, S_CIM, S_LDT, S_DSK, S_GW, S_OUT = 80, 82, 84, 86, 88, 90, 92, 94
S_DBG, S_WS = 96, 98
RB, J2, WV, BW = 20, 21, 22, 23
WSR = 24
TR = 28
NONCE = 19
SPIN = 18

L_X = 0; L_WQ = 57344; L_WKV = 114688; L_GW = 143360
L_QX = 147456
L_CNT = 163584
C_ATT, C_BG, C_NONCE, C_BAD, C_UDONE, C_HCNT, C_OCNT, C_XR, C_KVR, C_KVA, C_TRD, C_LEND, C_BL = 0, 4, 8, 12, 16, 20, 24, 28, 32, 40, 44, 48, 52
B_EX = 159744; B_HT = 90112
B_HT2 = 69632
L_C = 0
L_RED = 0
L_WO = 0
A_OP = 90112; A_LP = 155648
LDS_TOTAL = 163840

def srd(a, dst, src, nbytes):
    a(f"s_mov_b32 s{dst}, s{src}")
    a(f"s_mov_b32 s{dst+1}, s{src+1}")
    a(f"s_mov_b32 s{dst+2}, {hex(nbytes)}")
    a(f"s_mov_b32 s{dst+3}, 0x00020000")

class Prof:
    def __init__(self, a, vreg): self.a = a; self.v = vreg
    def stamp(self, slot):
        if not PROF or "noprofa" in X: return
        a = self.a
        a("s_memrealtime s[60:61]")
        a("s_memtime s[62:63]")
        a("s_waitcnt lgkmcnt(0)")
        a(f"v_writelane_b32 v{self.v}, s60, {slot}")
        a(f"v_writelane_b32 v{self.v}, s62, {slot+32}")
    def flush(self, vt):
        if not PROF: return
        a = self.a
        a("s_lshl_b32 s60, s2, 4")
        a(f"s_add_u32 s60, s60, s{WV}")
        a("s_lshl_b32 s60, s60, 8")
        a(f"s_add_u32 s60, s60, {WS_PROF}")
        a("s_mov_b64 exec, -1")
        a(f"v_mbcnt_lo_u32_b32 v{vt}, -1, 0")
        a(f"v_mbcnt_hi_u32_b32 v{vt}, -1, v{vt}")
        a(f"v_lshlrev_b32 v{vt}, 2, v{vt}")
        a(f"buffer_store_dword v{self.v}, v{vt}, s[{WSR}:{WSR+3}], s60 offen")
        a("s_waitcnt vmcnt(0)")

def xtile_lane_off(a, vd, vlane, vt0, vt1):
    a(f"v_lshrrev_b32 v{vt0}, 4, v{vlane}")
    a(f"v_and_b32 v{vt1}, 1, v{vt0}")
    a(f"v_lshlrev_b32 v{vt1}, 4, v{vt1}")
    a(f"v_lshrrev_b32 v{vd}, 5, v{vlane}")
    a(f"v_lshl_add_u32 v{vt1}, v{vd}, 2, v{vt1}")
    a(f"v_bfe_u32 v{vd}, v{vlane}, 2, 2")
    a(f"v_add_u32 v{vt1}, v{vt1}, v{vd}")
    a(f"v_mul_u32_u24 v{vt1}, 896, v{vt1}")
    a(f"v_and_b32 v{vd}, 3, v{vlane}")
    a(f"v_xor_b32 v{vd}, v{vd}, v{vt0}")
    a(f"v_lshl_add_u32 v{vd}, v{vd}, 4, v{vt1}")

def plain_lane_off(a, vd, vlane, vt0):
    a(f"v_lshrrev_b32 v{vt0}, 4, v{vlane}")
    a(f"v_and_b32 v{vd}, 3, v{vlane}")
    a(f"v_xor_b32 v{vd}, v{vd}, v{vt0}")
    a(f"v_lshlrev_b32 v{vd}, 4, v{vd}")
    a(f"v_lshrrev_b32 v{vt0}, 2, v{vlane}")
    a(f"v_mul_u32_u24 v{vt0}, 896, v{vt0}")
    a(f"v_add_u32 v{vd}, v{vd}, v{vt0}")

def xfrag_addr(a, vd, vlane, vt0):
    a(f"v_bfe_u32 v{vt0}, v{vlane}, 2, 2")
    a(f"v_lshrrev_b32 v{vd}, 5, v{vlane}")
    a(f"v_xor_b32 v{vt0}, v{vt0}, v{vd}")
    a(f"v_lshlrev_b32 v{vt0}, 4, v{vt0}")
    a(f"v_and_b32 v{vd}, 31, v{vlane}")
    a(f"v_lshl_add_u32 v{vd}, v{vd}, 6, v{vt0}")

def tr_rowcol(a, vrow, vcol, vlane, vt):
    a(f"v_lshrrev_b32 v{vrow}, 5, v{vlane}")
    a(f"v_lshlrev_b32 v{vrow}, 3, v{vrow}")
    a(f"v_bfe_u32 v{vt}, v{vlane}, 2, 2")
    a(f"v_add_u32 v{vrow}, v{vrow}, v{vt}")
    a(f"v_and_b32 v{vcol}, 16, v{vlane}")
    a(f"v_and_b32 v{vt}, 3, v{vlane}")
    a(f"v_lshl_add_u32 v{vcol}, v{vt}, 2, v{vcol}")

def proj_loop(a, swap, acc, xe, xo, we, wo_, vxe, vxo, vw1, vw2, s_wstep, s_cnt, lab):
    def rd(xr, wr, vx):
        a(f"ds_read_b128 {v(xr,4)}, v{vx}")
        a(f"ds_read_b64_tr_b16 {v(wr,2)}, v{vw1}")
        a(f"ds_read_b64_tr_b16 {v(wr+2,2)}, v{vw2}")
        a(f"v_add_u32 v{vx}, 0x1000, v{vx}")
        a(f"v_add_u32 v{vw1}, s{s_wstep}, v{vw1}")
        a(f"v_add_u32 v{vw2}, s{s_wstep}, v{vw2}")
    def mf(x, w):
        A, B = (x, w) if swap else (w, x)
        a(f"{MF} {v(acc,16)}, {v(A,4)}, {v(B,4)}, {v(acc,16)}")
    rd(xe, we, vxe); rd(xo, wo_, vxo)
    a(f"s_mov_b32 s{s_cnt}, 14")
    a.label(lab)
    a("s_waitcnt lgkmcnt(3)")
    mf(xe, we)
    rd(xe, we, vxe)
    a("s_waitcnt lgkmcnt(3)")
    mf(xo, wo_)
    rd(xo, wo_, vxo)
    a(f"s_sub_u32 s{s_cnt}, s{s_cnt}, 1")
    a(f"s_cmp_lg_u32 s{s_cnt}, 0")
    a(f"s_cbranch_scc1 {lab}")
    a("s_waitcnt lgkmcnt(0)")

def sw_barrier(a, coff, s_tgt, n, vaddr, vtmp, lab):
    a(f"s_add_u32 s{s_tgt}, s{s_tgt}, {n}")
    a(f"v_mov_b32 v{vtmp}, 1")
    a("s_waitcnt lgkmcnt(0)")
    a("s_mov_b64 exec, 1")
    a(f"ds_add_u32 v{vaddr}, v{vtmp} offset:{coff}")
    a("s_mov_b64 exec, -1")
    a.label(lab)
    a(f"ds_read_b32 v{vtmp}, v{vaddr} offset:{coff}")
    a("s_waitcnt lgkmcnt(0)")
    a(f"v_readfirstlane_b32 s3, v{vtmp}")
    a(f"s_cmp_ge_u32 s3, s{s_tgt}")
    a(f"s_cbranch_scc1 {lab}_ok")
    a("s_sleep 1")
    a(f"s_sub_u32 s{SPIN}, s{SPIN}, 1")
    a(f"s_cbranch_scc0 {lab}")
    a(f"s_mov_b32 s{SPIN}, 0")
    a.label(lab + "_ok")

def flag_store(a, soff_reg, vt0, vt1, val=None):
    a("s_mov_b64 exec, 1")
    a(f"v_mov_b32 v{vt0}, s{val if val is not None else NONCE}")
    a(f"v_mov_b32 v{vt1}, 0")
    a(f"buffer_store_dword v{vt0}, v{vt1}, s[{WSR}:{WSR+3}], s{soff_reg} offen{SC1}")
    a("s_mov_b64 exec, -1")

def arrive_flag(a, coff, n, soff_reg, vt0, vt1, lab):
    a(f"v_mov_b32 v{vt0}, {L_CNT}")
    a(f"v_mov_b32 v{vt1}, 1")
    a("s_waitcnt vmcnt(0)")
    a("s_mov_b64 exec, 1")
    a(f"ds_add_rtn_u32 v{vt1}, v{vt0}, v{vt1} offset:{coff}")
    a("s_waitcnt lgkmcnt(0)")
    a(f"v_readfirstlane_b32 s60, v{vt1}")
    a("s_mov_b64 exec, -1")
    a(f"s_cmp_eq_u32 s60, {n-1}")
    a(f"s_cbranch_scc0 {lab}")
    flag_store(a, soff_reg, vt0, vt1)
    a.label(lab)

def poll(a, lab, vdst, voff, soff_reg, mask_pair, sleep=None):
    sleep = POLLSLEEP if sleep is None else sleep
    a.label(lab)
    a(f"buffer_load_dword v{vdst}, v{voff}, s[{WSR}:{WSR+3}], s{soff_reg} offen{SC1}")
    a("s_waitcnt vmcnt(0)")
    a(f"v_cmp_ne_u32 vcc, s{NONCE}, v{vdst}")
    a(f"s_and_b64 vcc, vcc, s[{mask_pair}:{mask_pair+1}]")
    a(f"s_cbranch_vccz {lab}_ok")
    a(f"s_sleep {sleep}")
    a(f"s_sub_u32 s{SPIN}, s{SPIN}, 1")
    a(f"s_cbranch_scc0 {lab}")
    a(f"s_mov_b32 s{SPIN}, 0")
    a.label(lab + "_ok")

def cfma(a, hr, hi, lr, li, ur, ui, tr, ti):
    a(f"v_fma_f32 v{tr}, -v{li}, v{hi}, v{ur}")
    a(f"v_fma_f32 v{ti}, v{li}, v{hr}, v{ui}")
    a(f"v_fma_f32 v{hr}, v{lr}, v{hr}, v{tr}")
    a(f"v_fma_f32 v{hi}, v{lr}, v{hi}, v{ti}")

L_JUNK = 161792
def touch_matrix(a, sptr, vdst, vt, sr=48):
    srd(a, sr, sptr, WBYTES)
    a("s_lshr_b32 s3, s2, 3")
    a(f"s_mul_i32 s3, s3, {98*128}")
    a(f"v_lshlrev_b32 v{vt}, 7, v0")
    a(f"s_mov_b32 m0, {L_JUNK}")
    a("s_nop 0")
    a(f"buffer_load_dword v{vt}, s[{sr}:{sr+3}], s3 offen lds")
    a("s_add_u32 s3, s3, 8192")
    a("s_mov_b32 exec_hi, 3")
    a(f"buffer_load_dword v{vt}, s[{sr}:{sr+3}], s3 offen lds")
    a("s_mov_b64 exec, -1")

AQ, AO, AS, AK, AV, APB = 8, 40, [104, 120], [136, 144], [152, 160], 4

def att_unit(a, u, side):
    up = u - 1; un = u + 1
    cur = AS[u & 1]; prv = AS[(u + 1) & 1]
    Vp = AV[(up >> 2) & 1]; Op = AO + 16 * (up & 3)
    Kn = AK[(un >> 2) & 1]; Qn = AQ + 8 * (un & 3)
    side = list(side)
    def E(lo, hi):
        for j in range(lo, hi):
            a(f"v_exp_f32 v{cur+j}, v{cur+j}")
            if side:
                x = side.pop(0)
                if x: a(x)
    while side and isinstance(side[0], tuple):
        a(side.pop(0)[1])
    a(f"{MF} {v(Op,16)}, {v(Vp,4)}, {v(prv,4)}, {v(Op,16)}")
    E(0, 4)
    a(f"v_cvt_pk_bf16_f32 v{APB+2}, v{prv+12}, v{prv+13}")
    a(f"v_cvt_pk_bf16_f32 v{APB+3}, v{prv+14}, v{prv+15}")
    a(f"{MF} {v(prv,16)}, {v(Kn,4)}, {v(Qn,4)}, 0")
    E(4, 8)
    a(f"v_cvt_pk_bf16_f32 v{cur}, v{cur}, v{cur+1}")
    a(f"v_cvt_pk_bf16_f32 v{cur+1}, v{cur+2}, v{cur+3}")
    a(f"{MF} {v(prv,16)}, {v(Kn+4,4)}, {v(Qn+4,4)}, {v(prv,16)}")
    E(8, 12)
    a(f"v_cvt_pk_bf16_f32 v{cur+2}, v{cur+4}, v{cur+5}")
    a(f"v_cvt_pk_bf16_f32 v{cur+3}, v{cur+6}, v{cur+7}")
    a(f"{MF} {v(Op,16)}, {v(Vp+4,4)}, {v(APB,4)}, {v(Op,16)}")
    E(12, 16)
    a(f"v_cvt_pk_bf16_f32 v{APB}, v{cur+8}, v{cur+9}")
    a(f"v_cvt_pk_bf16_f32 v{APB+1}, v{cur+10}, v{cur+11}")
    assert not side, side

L_SEL = 162560
L_SH = 162048
LMAX = f2u(2.0 ** 90) if "forcefb" not in X else f2u(2.0 ** -20)
VMAX = f2u(2.0 ** 20)

def gen_attention(a, pf):
    P = "att"
    KR = TR
    a(f"v_add_u32 v2, {L_QX}, v1")
    for g in range(4):
        a(f"ds_read_b128 {v(AQ+8*g,4)}, v2 offset:{g*2048}")
        a(f"ds_read_b128 {v(AQ+8*g+4,4)}, v2 offset:{g*2048+1024}")
    a(f"s_add_u32 s{KR}, s{WSR}, {WS_KV}")
    a(f"s_addc_u32 s{KR+1}, s{WSR+1}, 0")
    a(f"s_mov_b32 s{KR+3}, 0x00020000")
    a("s_mov_b32 s44, 0")
    a("s_mov_b32 s51, 0")
    a(f"s_cmp_lt_u32 s{WV}, 4")
    a("s_cselect_b32 s53, 1, -1")
    a(f"s_cmp_eq_u32 s{WV}, 7")
    a(f"s_cbranch_scc0 {P}_nosel")
    a("v_lshrrev_b32 v104, 4, v1")
    a("v_and_b32 v105, 31, v104")
    a("v_lshrrev_b32 v104, 5, v104")
    a("v_lshlrev_b32 v104, 2, v104")
    a("v_sub_u32 v105, v105, v104")
    for j in range(4):
        d0 = (2 * j & 3) + 8 * ((2 * j) >> 2)
        a(f"v_cmp_eq_u32 vcc, {d0}, v105")
        a(f"v_mov_b32 v106, 0x3f80")
        a("s_nop 0")
        a(f"v_cndmask_b32 v{108+j}, 0, v106, vcc")
        a(f"v_cmp_eq_u32 vcc, {d0+1}, v105")
        a(f"v_mov_b32 v106, 0x3f800000")
        a("s_nop 0")
        a(f"v_cndmask_b32 v107, 0, v106, vcc")
        a(f"v_or_b32 v{108+j}, v{108+j}, v107")
    a(f"v_add_u32 v104, {L_SEL}, v1")
    a("ds_write_b128 v104, v[108:111]")
    a.label(P + "_nosel")
    srd(a, 56, S_DBG, 256)
    a(f"s_cmp_eq_u32 s{WV}, 0")
    a(f"s_cbranch_scc0 {P}_nopollA")
    a(f"v_mov_b32 v2, {D_K0}")
    a.label(P + "_pollA")
    a(f"buffer_load_dword v104, v2, s[56:59], 0 offen{SC1}")
    a("s_waitcnt vmcnt(0)")
    a("v_readfirstlane_b32 s3, v104")
    a("s_cmp_lg_u32 s3, 0")
    a(f"s_cbranch_scc1 {P}_nopollA")
    a(f"s_sleep {POLLSLEEP}")
    a(f"s_sub_u32 s{SPIN}, s{SPIN}, 1")
    a(f"s_cbranch_scc0 {P}_pollA")
    a(f"s_mov_b32 s{SPIN}, 0")
    a.label(P + "_nopollA")
    a(f"v_mov_b32 v3, {L_CNT}")
    sw_barrier(a, C_ATT, 44, 8, 3, 2, P + "_ba")
    a(f"s_mov_b32 s{KR+2}, 0x40000")
    a(f"s_cmp_ge_u32 s{WV}, 4")
    a(f"s_cbranch_scc1 {P}_shwait")
    a(f"buffer_load_dwordx4 {v(AS[1],4)}, v1, s[{KR}:{KR+3}], 0 offen{SC1}")
    a(f"buffer_load_dwordx4 {v(AS[1]+4,4)}, v1, s[{KR}:{KR+3}], 0 offen offset:1024{SC1}")
    a(f"s_lshl_b32 s3, s{WV}, 11")
    a(f"s_add_u32 s3, s3, {L_QX}")
    a("v_add_u32 v2, s3, v1")
    a(f"ds_read_b128 {v(AO,4)}, v2")
    a(f"ds_read_b128 {v(AO+4,4)}, v2 offset:1024")
    a("s_waitcnt vmcnt(0) lgkmcnt(0)")
    o = AO + 16
    a(f"{MF} {v(o,16)}, {v(AS[1],4)}, {v(AO,4)}, 0")
    a(f"{MF} {v(o,16)}, {v(AS[1]+4,4)}, {v(AO+4,4)}, {v(o,16)}")
    a(f"s_lshl_b32 s3, s{WV}, 7")
    a(f"s_add_u32 s3, s3, {L_SH}")
    a("v_lshrrev_b32 v3, 2, v1")
    a("v_and_b32 v3, 127, v3")
    a("v_add_u32 v3, s3, v3")
    a("s_nop 7")
    a(f"v_max3_f32 v2, v{o}, v{o+1}, v{o+2}")
    for j in range(3, 15, 2):
        a(f"v_max3_f32 v2, v2, v{o+j}, v{o+j+1}")
    a(f"v_max_f32 v2, v2, v{o+15}")
    a(f"v_mov_b32 v{AO}, v2")
    a("s_nop 1")
    a(f"v_permlane32_swap_b32 v2, v{AO}")
    a(f"v_max_f32 v2, v2, v{AO}")
    a("v_cvt_pk_bf16_f32 v2, -v2, 0")
    a("s_mov_b32 exec_hi, 0")
    a("ds_write_b32 v3, v2")
    a("s_mov_b64 exec, -1")
    a.label(P + "_shwait")
    a(f"v_mov_b32 v3, {L_CNT}")
    sw_barrier(a, C_ATT, 44, 8, 3, 2, P + "_bs")
    a("v_lshrrev_b32 v3, 2, v1")
    a("v_and_b32 v3, 127, v3")
    a(f"v_add_u32 v3, {L_SH}, v3")
    for g in range(4): a(f"ds_read_b32 v{AO+g}, v3 offset:{g*128}")
    a("s_waitcnt lgkmcnt(0)")
    a("s_mov_b32 exec_lo, 0")
    for g in range(4): a(f"v_mov_b32 v{AQ+8*g+6}, v{AO+g}")
    a("s_mov_b32 exec_lo, -1")
    a(f"s_cmp_eq_u32 s{WV}, 0")
    a(f"s_cbranch_scc0 {P}_nopoll")
    a(f"v_mov_b32 v2, {D_GO}")
    a.label(P + "_poll")
    a(f"buffer_load_dwordx2 v[104:105], v2, s[56:59], 0 offen{SC1}")
    a("s_waitcnt vmcnt(0)")
    a("v_readfirstlane_b32 s3, v104")
    a("s_cmp_lg_u32 s3, 0")
    a(f"s_cbranch_scc1 {P}_pollok")
    a(f"s_sleep {POLLSLEEP}")
    a(f"s_sub_u32 s{SPIN}, s{SPIN}, 1")
    a(f"s_cbranch_scc0 {P}_poll")
    a(f"s_mov_b32 s{SPIN}, 0")
    a.label(P + "_pollok")
    a(f"v_mov_b32 v3, {L_CNT}")
    a("s_mov_b64 exec, 1")
    a(f"ds_add_u32 v3, v105 offset:{C_BAD}")
    a("s_mov_b64 exec, -1")
    a.label(P + "_nopoll")
    a(f"v_mov_b32 v3, {L_CNT}")
    sw_barrier(a, C_ATT, 44, 8, 3, 2, P + "_b0")
    pf.stamp(5)
    a("s_lshr_b32 s52, s2, 3")
    a("s_lshl_b32 s52, s52, 3")
    a(f"s_add_u32 s52, s52, s{WV}")
    a("s_lshl_b32 s52, s52, 10")
    a.label(P + "_restart")
    a(f"s_mov_b32 s{KR+2}, 0x40000")
    a(f"s_lshl_b32 s43, s{WV}, 15")
    a(f"buffer_load_dwordx4 {v(AK[0],4)}, v1, s[{KR}:{KR+3}], s43 offen{SC1}")
    a(f"buffer_load_dwordx4 {v(AK[0]+4,4)}, v1, s[{KR}:{KR+3}], s43 offen offset:1024{SC1}")
    a(f"buffer_load_dwordx4 {v(AV[0],4)}, v1, s[{KR}:{KR+3}], s43 offen offset:2048{SC1}")
    a(f"buffer_load_dwordx4 {v(AV[0]+4,4)}, v1, s[{KR}:{KR+3}], s43 offen offset:3072{SC1}")
    a("s_add_u32 s43, s43, 4096")
    a(f"buffer_load_dwordx4 {v(AK[1],4)}, v1, s[{KR}:{KR+3}], s43 offen{SC1}")
    a(f"buffer_load_dwordx4 {v(AK[1]+4,4)}, v1, s[{KR}:{KR+3}], s43 offen offset:1024{SC1}")
    a(f"s_lshl_b32 s3, s{WV}, 9")
    a(f"s_mov_b32 m0, {L_JUNK}")
    a("v_lshlrev_b32 v2, 3, v1")
    a("s_mov_b64 exec, 0xff")
    a(f"buffer_load_dword v2, s[{KR}:{KR+3}], s52 offen{SC1} lds")
    a("s_mov_b64 exec, -1")
    for j in range(4): a(f"v_mov_b32 v{APB+j}, 0")
    for j in range(8): a(f"v_mov_b32 v{AV[1]+j}, 0")
    a.label(P + "_haveshift")
    for j in (0, 1, 2, 3, 12, 13, 14, 15): a(f"v_mov_b32 v{AS[1]+j}, 0")
    a(f"s_and_b32 s3, s{WV}, 3")
    a("s_lshl_b32 s3, s3, 2")
    a(f"s_add_u32 s3, s3, {L_CNT + 64}")
    a("v_mov_b32 v2, s3")
    for g in range(4):
        a(f"{MF} {v(AO+16*g,16)}, {v(AV[1],4)}, {v(APB,4)}, 0")
    a("s_waitcnt vmcnt(5)")
    a(f"{MF} {v(AS[0],16)}, {v(AK[0],4)}, {v(AQ,4)}, 0")
    a(f"{MF} {v(AS[0],16)}, {v(AK[0]+4,4)}, {v(AQ+4,4)}, {v(AS[0],16)}")
    a("s_mov_b32 s48, 0")
    a("s_setprio 2")
    a("s_nop 7")
    a("s_nop 1")
    pf.stamp(6)
    a(".p2align 3")
    a.label(P + "_loop")
    for u in range(8):
        g = u & 3; par = (u >> 2) & 1
        side = []
        if g == 1:
            side.append(("q0", "s_waitcnt vmcnt(2)"))
            side.append(f"buffer_load_dwordx4 {v(AV[par^1],4)}, v1, s[{KR}:{KR+3}], s43 offen offset:2048{SC1}")
            side.append(f"buffer_load_dwordx4 {v(AV[par^1]+4,4)}, v1, s[{KR}:{KR+3}], s43 offen offset:3072{SC1}")
            side.append("s_add_u32 s43, s43, 4096")
            if par == 0:
                side.append("s_cmp_eq_u32 s48, 3")
                side.append(f"s_cselect_b32 s{KR+2}, 0, s{KR+2}")
        if g == 3:
            side += [None, None, None, "s_waitcnt vmcnt(2)"]
            side.append(f"buffer_load_dwordx4 {v(AK[par],4)}, v1, s[{KR}:{KR+3}], s43 offen{SC1}")
            side.append(f"buffer_load_dwordx4 {v(AK[par]+4,4)}, v1, s[{KR}:{KR+3}], s43 offen offset:1024{SC1}")
            if par == 1:
                side += ["s_add_u32 s48, s48, 1", None, None, None, None, None, None, None, None, "s_cmp_lt_u32 s48, 4"]
        if g == 0:
            side += ["v_mov_b32 v3, s53", None, "s_mov_b64 exec, 1\nds_add_rtn_u32 v3, v2, v3\ns_mov_b64 exec, -1"]
        if g == 2:
            lab = f"{P}_fp{u}"
            side += ["s_waitcnt lgkmcnt(0)", "v_readfirstlane_b32 s54, v3", None, "s_mul_i32 s54, s54, s53", "s_cmp_gt_i32 s54, 0",
                     f"s_cbranch_scc1 {lab}a\ns_setprio 2\ns_branch {lab}b\n{lab}a:\ns_setprio 1\n{lab}b:"]
        att_unit(a, u, side)
    a(f"s_cbranch_scc1 {P}_loop")
    prv = AS[1]
    a(f"{MF} {v(AO+48,16)}, {v(AV[1],4)}, {v(prv,4)}, {v(AO+48,16)}")
    a(f"v_cvt_pk_bf16_f32 v{APB+2}, v{prv+12}, v{prv+13}")
    a(f"v_cvt_pk_bf16_f32 v{APB+3}, v{prv+14}, v{prv+15}")
    a("s_nop 1")
    a(f"{MF} {v(AO+48,16)}, {v(AV[1]+4,4)}, {v(APB,4)}, {v(AO+48,16)}")
    pf.stamp(7)
    a("s_setprio 3")
    a("s_cmp_lg_u32 s51, 0")
    a(f"s_cbranch_scc1 {P}_nolend")
    lds_arrive(a, C_LEND, 2, 3)
    a.label(P + "_nolend")
    a(f"v_mov_b32 v3, {L_CNT}")
    a.label(P + "_udone")
    a(f"ds_read2_b32 v[104:105], v3 offset0:{C_NONCE//4} offset1:{C_HCNT//4}")
    a("s_waitcnt lgkmcnt(0)")
    a("v_readfirstlane_b32 s3, v105")
    a(f"v_readfirstlane_b32 s{NONCE}, v104")
    a("s_cmp_ge_u32 s3, 4")
    a(f"s_cbranch_scc1 {P}_udone_ok")
    a(f"s_sub_u32 s{SPIN}, s{SPIN}, 1")
    a(f"s_cbranch_scc0 {P}_udone")
    a(f"s_mov_b32 s{SPIN}, 0")
    a.label(P + "_udone_ok")
    a(f"s_lshl_b32 s3, s{WV}, 13")
    a(f"s_add_u32 s3, s3, {A_OP}")
    a(f"v_add_u32 v2, s3, v1")
    a(f"s_lshl_b32 s3, s{WV}, 9")
    a(f"s_add_u32 s3, s3, {A_LP}")
    a("v_lshrrev_b32 v3, 2, v1")
    a("v_and_b32 v4, 127, v3")
    a("v_add_u32 v4, s3, v4")
    a(f"s_mov_b32 s46, {hex(LMAX)}")
    a("s_mov_b64 s[56:57], 0")
    for g in range(4):
        o = AO + 16 * g
        if g == 3: a("s_nop 3")
        a("s_mov_b32 exec_lo, 0")
        a(f"ds_write_b32 v4, v{o+12} offset:{g*128}")
        a(f"v_cmp_nge_f32 vcc, s46, v{o+12}")
        a("s_mov_b32 exec_lo, -1")
        a("s_or_b64 s[56:57], s[56:57], vcc")
        for j in range(8):
            a(f"v_cvt_pk_bf16_f32 v{AS[0]+8*g+j}, v{o+2*j}, v{o+2*j+1}")
        a(f"ds_write_b128 v2, {v(AS[0]+8*g,4)} offset:{g*2048}")
        a(f"ds_write_b128 v2, {v(AS[0]+8*g+4,4)} offset:{g*2048+1024}")
    a(f"v_mov_b32 v3, {L_CNT}")
    a("s_cmp_eq_u64 s[56:57], 0")
    a(f"s_cbranch_scc1 {P}_safe")
    a("v_mov_b32 v2, 1")
    a("s_mov_b64 exec, 1")
    a(f"ds_add_u32 v3, v2 offset:{C_BAD}")
    a("s_mov_b64 exec, -1")
    a.label(P + "_safe")
    pf.stamp(17)
    sw_barrier(a, C_ATT, 44, 8, 3, 2, P + "_b1")
    pf.stamp(18)
    a(f"ds_read_b32 v2, v3 offset:{C_BAD}")
    a(f"s_lshl_b32 s3, s{WV}, 10")
    a(f"s_add_u32 s3, s3, {A_OP}")
    a("v_add_u32 v4, s3, v1")
    for w in range(8):
        a(f"ds_read_b128 {v(AO+4*w,4)}, v4 offset:{w*8192}")
    a(f"s_lshr_b32 s45, s{WV}, 1")
    a("s_lshl_b32 s3, s45, 7")
    a(f"s_add_u32 s3, s3, {A_LP}")
    a("v_lshrrev_b32 v3, 2, v1")
    a("v_and_b32 v3, 127, v3")
    a("v_add_u32 v3, s3, v3")
    a("s_waitcnt lgkmcnt(8)")
    a("v_readfirstlane_b32 s3, v2")
    a("s_cmp_lg_u32 s3, 0")
    a("s_cselect_b32 s3, 1, 0")
    a("s_andn2_b32 s3, s3, s51")
    a(f"s_cbranch_scc1 {P}_fallback")
    acc = AO + 48
    a(f"v_add_u32 v2, {L_SEL}, v1")
    a(f"ds_read_b128 {v(AO+40,4)}, v2")
    for w in range(6):
        a(f"ds_read_b32 v{AO+32+w}, v3 offset:{w*512}")
    for w in range(8):
        a(f"s_waitcnt lgkmcnt({6 if w < 1 else 6})") if w == 0 else None
        if w == 0:
            a(f"ds_read_b32 v{AO+38}, v3 offset:{6*512}")
            a(f"ds_read_b32 v{AO+39}, v3 offset:{7*512}")
        a(f"{MF} {v(acc,16)}, {v(AO+40,4)}, {v(AO+4*w,4)}, {'0' if w == 0 else v(acc,16)}")
    a("s_lshr_b32 s3, s45, 1")
    a(f"s_lshl_b32 s46, s{RB}, 1")
    a("s_add_u32 s3, s3, s46")
    a("s_lshl_b32 s3, s3, 4")
    a(f"s_lshl_b32 s46, s{J2}, 1")
    a("s_add_u32 s3, s3, s46")
    a("s_and_b32 s46, s45, 1")
    a("s_add_u32 s3, s3, s46")
    a("s_lshl_b32 s3, s3, 11")
    a(f"s_and_b32 s46, s{WV}, 1")
    a("s_lshl_b32 s46, s46, 10")
    a("s_add_u32 s3, s3, s46")
    a(f"s_add_u32 s47, s3, {WS_OF}")
    a("s_waitcnt lgkmcnt(0)")
    lds_arrive(a, C_TRD, 2, 3)
    l = AO + 32
    a(f"v_add_f32 v{l}, v{l}, v{l+1}")
    a(f"v_add_f32 v{l+2}, v{l+2}, v{l+3}")
    a(f"v_add_f32 v{l+4}, v{l+4}, v{l+5}")
    a(f"v_add_f32 v{l+6}, v{l+6}, v{l+7}")
    a(f"v_add_f32 v{l}, v{l}, v{l+2}")
    a(f"v_add_f32 v{l+4}, v{l+4}, v{l+6}")
    a(f"v_add_f32 v{l}, v{l}, v{l+4}")
    a(f"v_rcp_f32 v{l+1}, v{l}")
    a("s_nop 3")
    for j in range(8): a(f"v_mul_f32 v{acc+j}, v{acc+j}, v{l+1}")
    for j in range(4): a(f"v_cvt_pk_bf16_f32 v{AO+j}, v{acc+2*j}, v{acc+2*j+1}")
    a(f"s_and_b32 s3, s{WV}, 1")
    a("s_cmp_eq_u32 s3, 1")
    a("s_cselect_b32 exec_hi, -1, 0")
    a("s_mov_b32 exec_lo, 0")
    a(f"v_mov_b32 v{AO+2}, 0")
    a(f"v_mov_b32 v{AO+3}, 0")
    a("s_mov_b64 exec, -1")
    pf.stamp(19)
    a(f"buffer_store_dwordx4 {v(AO,4)}, v1, s[{WSR}:{WSR+3}], s47 offen{SC1}")
    if "dup" in X or "dupo" in X:
        a(f"buffer_store_dwordx4 {v(AO,4)}, v1, s[{WSR}:{WSR+3}], s47 offen")
    a(f"s_lshl_b32 s3, s{RB}, 5")
    a(f"s_add_u32 s3, s3, s{J2}")
    a("s_lshl_b32 s3, s3, 2")
    a(f"s_add_u32 s3, s3, {FL_O}")
    arrive_flag(a, C_OCNT, 8, 3, 2, 3, P + "_oflag")
    pf.stamp(8)
    a(f"s_branch {P}_done")
    a.label(P + "_fallback")
    a("s_waitcnt lgkmcnt(0)")
    a("s_mov_b32 s51, 1")
    a(f"s_mov_b32 s{KR+2}, 0x40000")
    a("s_mov_b32 exec_lo, 0")
    for g in range(4):
        a(f"v_mov_b32 v{AQ+8*g+6}, 0")
        a(f"v_mov_b32 v{AQ+8*g+7}, 0")
    a("s_mov_b32 exec_lo, -1")
    for g in range(4): a(f"v_mov_b32 v{APB+g}, 0xff800000")
    a("s_mov_b32 s43, 0")
    a.label(P + "_fb_loop")
    a(f"buffer_load_dwordx4 {v(AK[0],4)}, v1, s[{KR}:{KR+3}], s43 offen{SC1}")
    a(f"buffer_load_dwordx4 {v(AK[0]+4,4)}, v1, s[{KR}:{KR+3}], s43 offen offset:1024{SC1}")
    a("s_waitcnt vmcnt(0)")
    for g in range(4):
        o = AO + 16 * g
        a(f"{MF} {v(o,16)}, {v(AK[0],4)}, {v(AQ+8*g,4)}, 0")
        a(f"{MF} {v(o,16)}, {v(AK[0]+4,4)}, {v(AQ+8*g+4,4)}, {v(o,16)}")
    a("s_nop 7")
    for g in range(4):
        o = AO + 16 * g
        for j in range(0, 16, 2):
            a(f"v_max3_f32 v{APB+g}, v{APB+g}, v{o+j}, v{o+j+1}")
    a("s_add_u32 s43, s43, 4096")
    a("s_cmp_lt_u32 s43, 0x40000")
    a(f"s_cbranch_scc1 {P}_fb_loop")
    for g in range(4):
        m = APB + g
        a(f"v_mov_b32 v2, v{m}")
        a("s_nop 1")
        a(f"v_permlane32_swap_b32 v2, v{m}")
        a(f"v_max_f32 v2, v2, v{m}")
        a("v_sub_f32 v2, 0, v2")
        a("v_cvt_pk_bf16_f32 v3, v2, v2")
        a("v_and_b32 v3, 0xffff0000, v3")
        a(f"v_sub_f32 v{m}, v2, v3")
        a(f"v_cvt_pk_bf16_f32 v2, v{m}, v{m}")
        a("v_and_b32 v2, 0xffff0000, v2")
        a(f"v_sub_f32 v{m}, v{m}, v2")
        a(f"v_cvt_pk_bf16_f32 v{m}, v{m}, 0")
        a("v_lshrrev_b32 v3, 16, v3")
        a("v_or_b32 v3, v3, v2")
        a("s_mov_b32 exec_lo, 0")
        a(f"v_mov_b32 v{AQ+8*g+6}, v3")
        a(f"v_mov_b32 v{AQ+8*g+7}, v{m}")
        a("s_mov_b32 exec_lo, -1")
    a(f"v_mov_b32 v3, {L_CNT}")
    sw_barrier(a, C_ATT, 44, 8, 3, 2, P + "_bf")
    a(f"s_branch {P}_restart")
    a.label(P + "_done")

def gen_background(a, pf):
    P = "bg"
    XF = 56; ARE, AIM = 8, 24
    nbar = [0]
    T = [54, 55]
    pf.T = T
    def bar():
        nbar[0] += 1
        a(f"v_mov_b32 v{T[0]}, {L_CNT}")
        sw_barrier(a, C_BG, 44, 4, T[0], T[1], f"{P}_bar{nbar[0]}")
    def stage3(tag, vd_=156, vt_=158):
        if "nopf" in X: return
        a(f"s_cmp_eq_u32 s{BW}, 3")
        a(f"s_cbranch_scc1 {P}_not3{tag}")
        a(f"s_cmp_eq_u32 s{BW}, 0")
        a(f"s_cselect_b32 s56, s{S_CRE}, s{S_CIM}")
        a(f"s_cselect_b32 s57, s{S_CRE+1}, s{S_CIM+1}")
        a(f"s_cmp_eq_u32 s{BW}, 2")
        a(f"s_cselect_b32 s56, s{S_WO}, s56")
        a(f"s_cselect_b32 s57, s{S_WO+1}, s57")
        touch_matrix(a, 56, vd_, vt_)
        a.label(P + "_not3" + tag)
    a("s_mov_b32 s44, 0")
    a(f"s_lshl_b32 s37, s{J2}, 1")
    a(f"s_and_b32 s3, s{BW}, 1")
    a("s_add_u32 s37, s37, s3")
    a(f"s_lshr_b32 s38, s{BW}, 1")
    a(f"s_cmp_eq_u32 s{BW}, 3")
    a(f"s_cbranch_scc0 {P}_nononce")
    srd(a, 48, S_DBG, 256)
    a("v_mov_b32 v7, 0")
    a.label(P + "_npoll")
    a(f"buffer_load_dword v6, v7, s[48:51], 0 offen offset:{D_NONCE}{SC1}")
    a("s_waitcnt vmcnt(0)")
    a("v_readfirstlane_b32 s3, v6")
    a("s_cmp_lg_u32 s3, 0")
    a(f"s_cbranch_scc1 {P}_npoll_ok")
    a(f"s_sleep {POLLSLEEP}")
    a(f"s_sub_u32 s{SPIN}, s{SPIN}, 1")
    a(f"s_cbranch_scc0 {P}_npoll")
    a(f"s_mov_b32 s{SPIN}, 0")
    a.label(P + "_npoll_ok")
    a(f"v_mov_b32 v7, {L_CNT}")
    a(f"ds_write_b32 v7, v6 offset:{C_NONCE}")
    a.label(P + "_nononce")
    a(f"s_cmp_eq_u32 s{J2}, 7")
    a(f"s_cbranch_scc1 {P}_skip")
    if "nobg" in X: a(f"s_branch {P}_skip")
    a(f"s_and_b32 s3, s{BW}, 1")
    a("s_cmp_eq_u32 s3, 0")
    a(f"s_cselect_b32 s{TR}, s{S_BRE}, s{S_BIM}")
    a(f"s_cselect_b32 s{TR+1}, s{S_BRE+1}, s{S_BIM+1}")
    a(f"s_mov_b32 s{TR+2}, {WBYTES}")
    a(f"s_mov_b32 s{TR+3}, 0x00020000")
    plain_lane_off(a, 8, 0, 9)
    a(f"s_lshl_b32 s3, s{J2}, 1")
    a("s_add_u32 s3, s3, s38")
    a(f"s_mul_i32 s32, s3, {32*896}")
    a(f"s_lshl_b32 s34, s{BW}, 11")
    a("s_mov_b32 m0, s34")
    a("s_mov_b32 s36, 14")
    a.label(P + "_bdma")
    a(f"s_add_u32 s33, s32, {16*896}")
    a(f"buffer_load_dwordx4 v8, s[{TR}:{TR+3}], s32 offen lds")
    a("s_add_u32 m0, m0, 1024")
    a("s_sub_u32 s36, s36, 1")
    a(f"buffer_load_dwordx4 v8, s[{TR}:{TR+3}], s33 offen lds")
    a("s_add_u32 s32, s32, 64")
    a(f"s_add_u32 m0, m0, {8192-1024}")
    a("s_cmp_lg_u32 s36, 0")
    a(f"s_cbranch_scc1 {P}_bdma")
    xfrag_addr(a, 6, 0, 8)
    a(f"s_and_b32 s3, s{BW}, 1")
    a("s_lshl_b32 s3, s3, 12")
    a("v_add_u32 v6, s3, v6")
    a("v_xor_b32 v7, 32, v6")
    a("s_waitcnt vmcnt(0)")
    bar()
    a(f"ds_read_b32 v55, v54 offset:{C_NONCE}")
    a("s_waitcnt lgkmcnt(0)")
    a(f"v_readfirstlane_b32 s{NONCE}, v55")
    if "cntpoll" in X:
        lds_arrive(a, C_BL, 54, 55)
    pf.stamp(5)
    S3 = os.environ.get("S3", "b")
    if S3 == "b": stage3("a", 52, 54)
    BB = [40, 48]
    def rdB(j):
        b = BB[j & 1]
        if j in (16, 17): a(f"v_add_u32 v{6+(j&1)}, 0x10000, v{6+(j&1)}")
        o = (j >> 1) * 8192 - (65536 if j >= 16 else 0)
        a(f"ds_read_b128 {v(b,4)}, v{6+(j&1)} offset:{o}")
        a(f"ds_read_b128 {v(b+4,4)}, v{6+(j&1)} offset:{o+2048}")
    rdB(0); rdB(1)
    for j in range(28):
        b = BB[j & 1]
        a("s_waitcnt lgkmcnt(2)" if j < 27 else "s_waitcnt lgkmcnt(0)")
        c1 = "0" if j == 0 else v(ARE,16); c2 = "0" if j == 0 else v(AIM,16)
        a(f"{MF} {v(ARE,16)}, {v(XF+4*j,4)}, {v(b,4)}, {c1}")
        a(f"{MF} {v(AIM,16)}, {v(XF+4*j,4)}, {v(b+4,4)}, {c2}")
        if j + 2 < 28: rdB(j + 2)
    a(f"v_mov_b32 v54, {L_CNT}")
    a("v_mov_b32 v55, 1")
    a("s_mov_b64 exec, 1")
    a(f"ds_add_u32 v54, v55 offset:{C_UDONE}")
    a("s_mov_b64 exec, -1")
    pf.stamp(6)
    if S3 == "u": stage3("a")
    def csq(dr, di, sr, si):
        a(f"v_mul_f32 v46, v{si}, v{si}")
        a(f"v_mul_f32 v47, v{sr}, v{si}")
        a(f"v_fma_f32 v{dr}, v{sr}, v{sr}, -v46")
        a(f"v_add_f32 v{di}, v47, v47")
    csq(40, 41, 2, 3)
    for _ in range(3): csq(40, 41, 40, 41)
    csq(42, 43, 40, 41); csq(42, 43, 42, 43)
    csq(44, 45, 42, 43)
    for _ in range(3): csq(44, 45, 44, 45)
    a("v_mov_b32 v48, v4")
    a("v_mov_b32 v49, v4")
    a("v_mov_b32 v50, v5")
    a("v_mov_b32 v51, v5")
    for r in range(0, 16, 2):
        a(f"v_pk_mul_f32 v[46:47], v[50:51], {v(AIM+r,2)}")
        a(f"v_pk_mul_f32 v[52:53], v[50:51], {v(ARE+r,2)}")
        a(f"v_pk_fma_f32 {v(ARE+r,2)}, v[48:49], {v(ARE+r,2)}, v[46:47] neg_lo:[0,0,1] neg_hi:[0,0,1]")
        a(f"v_pk_fma_f32 {v(AIM+r,2)}, v[48:49], {v(AIM+r,2)}, v[52:53]")
    a(f"v_mov_b32 v48, v{ARE}")
    a(f"v_mov_b32 v49, v{AIM}")
    for r in range(1, 16):
        cfma(a, 48, 49, 2, 3, ARE + r, AIM + r, 46, 47)
    a("v_and_b32 v50, 31, v0")
    a("v_lshlrev_b32 v50, 3, v50")
    a(f"s_and_b32 s3, s{BW}, 1")
    a("s_lshl_b32 s3, s3, 10")
    a(f"s_add_u32 s3, s3, {B_EX}")
    a("v_add_u32 v50, s3, v50")
    a("v_lshrrev_b32 v51, 5, v0")
    a("s_lshl_b32 s3, s38, 1")
    a("v_add_u32 v51, s3, v51")
    a("v_lshl_add_u32 v52, v51, 8, v50")
    a("ds_write_b64 v52, v[48:49]")
    bar()
    for c in range(4):
        a(f"ds_read_b64 {v(56+2*c,2)}, v50 offset:{c*256}")
    a("s_waitcnt lgkmcnt(0)")
    a("v_mov_b32 v64, v56")
    a("v_mov_b32 v65, v57")
    for c in range(1, 4):
        cfma(a, 64, 65, 40, 41, 56 + 2*c, 57 + 2*c, 46, 47)
    a("s_cmp_eq_u32 s38, 1")
    a(f"s_cbranch_scc0 {P}_nopub")
    a(f"s_mul_i32 s3, s{RB}, {448*16}")
    a("s_lshl_b32 s33, s37, 9")
    a("s_add_u32 s3, s3, s33")
    a(f"s_add_u32 s3, s3, {WS_E}")
    a(f"v_mov_b32 v66, s{NONCE}")
    a(f"v_mov_b32 v67, s{NONCE}")
    a("v_and_b32 v68, 31, v0")
    a("v_lshlrev_b32 v68, 4, v68")
    a("s_mov_b32 exec_hi, 0")
    a(f"buffer_store_dwordx4 v[64:67], v68, s[{WSR}:{WSR+3}], s3 offen{SC1}")
    a("s_mov_b64 exec, -1")
    a.label(P + "_nopub")
    pf.stamp(7)
    a(f"s_add_u32 s48, s{WSR}, {WS_E}")
    a(f"s_addc_u32 s49, s{WSR+1}, 0")
    a(f"s_mov_b32 s50, {32*448*16}")
    a("s_mov_b32 s51, 0x00020000")
    a("v_lshrrev_b32 v67, 5, v0")
    a("v_lshlrev_b32 v67, 4, v67")
    a(f"v_sub_u32 v67, s{RB}, v67")
    a("v_add_u32 v67, -1, v67")
    a(f"s_mov_b32 s3, {448*16}")
    a("v_mul_lo_u32 v68, v67, s3")
    a("v_and_b32 v66, 31, v0")
    a("v_lshlrev_b32 v66, 4, v66")
    a("s_lshl_b32 s33, s37, 9")
    a("v_add3_u32 v68, v68, v66, s33")
    EG = 72
    for i in range(1, 16):
        a(f"v_subrev_u32 v{136+i}, {448*16*i}, v68")
    a("v_mov_b32 v136, v68")
    a("s_waitcnt vmcnt(0)")
    a(f"s_cmp_eq_u32 s{RB}, 0")
    a(f"s_cbranch_scc1 {P}_pollE")
    a.label(P + "_pollE0")
    a("s_mov_b32 exec_hi, 0")
    a(f"buffer_load_dwordx3 {v(EG,3)}, v136, s[48:51], 0 offen{SC1}")
    a("s_mov_b64 exec, -1")
    a("s_waitcnt vmcnt(0)")
    a(f"v_cmp_ne_u32 vcc, s{NONCE}, v{EG+2}")
    a("s_cmp_eq_u32 vcc_lo, 0")
    a(f"s_cbranch_scc1 {P}_pollE")
    a(f"s_sleep {os.environ.get('ES', '6')}")
    a(f"s_sub_u32 s{SPIN}, s{SPIN}, 1")
    a(f"s_cbranch_scc0 {P}_pollE0")
    a(f"s_mov_b32 s{SPIN}, 0")
    a.label(P + "_pollE")
    for i in range(16):
        a(f"buffer_load_dwordx3 {v(EG+4*i,3)}, v{136+i}, s[48:51], 0 offen{SC1}")
    a("s_mov_b64 s[56:57], 0")
    a("s_waitcnt vmcnt(0)")
    for i in range(16):
        a(f"v_cmp_ne_u32 vcc, s{NONCE}, v{EG+4*i+2}")
        a(f"s_cmp_gt_u32 s{RB}, {i}")
        a("s_cselect_b32 s58, -1, 0")
        a(f"s_cmp_gt_u32 s{RB}, {i+16}")
        a("s_cselect_b32 s59, -1, 0")
        a("s_and_b64 vcc, vcc, s[58:59]")
        a("s_or_b64 s[56:57], s[56:57], vcc")
    a("s_cmp_eq_u64 s[56:57], 0")
    a(f"s_cbranch_scc1 {P}_pollE_ok")
    a("s_sleep 12")
    a(f"s_sub_u32 s{SPIN}, s{SPIN}, 1")
    a(f"s_cbranch_scc0 {P}_pollE")
    a(f"s_mov_b32 s{SPIN}, 0")
    a.label(P + "_pollE_ok")
    pf.stamp(8)
    a(f"v_mov_b32 v68, v{EG+60}")
    a(f"v_mov_b32 v69, v{EG+61}")
    for i in range(14, -1, -1):
        cfma(a, 68, 69, 42, 43, EG + 4*i, EG + 4*i + 1, 46, 47)
    a("v_mov_b32 v70, v68")
    a("v_mov_b32 v71, v69")
    a("v_mov_b32 v72, v68")
    a("v_mov_b32 v73, v69")
    a("s_nop 1")
    a("v_permlane32_swap_b32 v70, v72")
    a("v_permlane32_swap_b32 v71, v73")
    cfma(a, 72, 73, 44, 45, 70, 71, 46, 47)
    for cp in range(3):
        a("v_mov_b32 v74, v72")
        a("v_mov_b32 v75, v73")
        cfma(a, 74, 75, 40, 41, 56 + 2*cp, 57 + 2*cp, 46, 47)
        a(f"v_cmp_lt_u32 vcc, {cp}, v51")
        a("s_nop 1")
        a("v_cndmask_b32 v72, v72, v74, vcc")
        a("v_cndmask_b32 v73, v73, v75, vcc")
    a(f"s_lshl_b32 s3, s{BW}, 12")
    a(f"s_add_u32 s3, s3, {B_HT}")
    a("v_and_b32 v66, 31, v0")
    a("v_lshlrev_b32 v66, 1, v66")
    a("v_lshrrev_b32 v67, 5, v0")
    a("v_lshl_add_u32 v66, v67, 8, v66")
    a("v_add_u32 v66, s3, v66")
    for r in range(16):
        cfma(a, 72, 73, 2, 3, ARE + r, AIM + r, 46, 47)
        a(f"v_cvt_pk_bf16_f32 v{76+(r&1)}, v72, -v73")
        slot = (r & 3) + 8 * (r >> 2)
        a(f"ds_write_b16 v66, v{76+(r&1)} offset:{slot*64}")
        a(f"ds_write_b16_d16_hi v66, v{76+(r&1)} offset:{2048+slot*64}")
    a("v_and_b32 v67, 31, v0")
    a("v_lshlrev_b32 v67, 6, v67")
    a("v_lshrrev_b32 v68, 5, v0")
    a("v_lshl_add_u32 v67, v68, 4, v67")
    a("v_add_u32 v67, s3, v67")
    a("s_waitcnt lgkmcnt(0)")
    for part in range(2):
        for jj in range(2):
            a(f"ds_read_b128 {v(80+8*part+4*jj,4)}, v67 offset:{part*2048+jj*32}")
    a(f"s_lshl_b32 s3, s{RB}, 1")
    a("s_add_u32 s3, s3, s38")
    a("s_mul_i32 s3, s3, 56")
    a("s_lshl_b32 s33, s37, 1")
    a("s_add_u32 s3, s3, s33")
    a("s_lshl_b32 s3, s3, 10")
    a(f"s_add_u32 s3, s3, {WS_HF}")
    a(f"s_add_u32 s33, s3, {28*1024}")
    a("s_waitcnt lgkmcnt(0)")
    a(f"buffer_store_dwordx4 {v(80,4)}, v1, s[{WSR}:{WSR+3}], s3 offen{SC1}")
    a(f"buffer_store_dwordx4 {v(84,4)}, v1, s[{WSR}:{WSR+3}], s3 offen offset:1024{SC1}")
    a(f"buffer_store_dwordx4 {v(88,4)}, v1, s[{WSR}:{WSR+3}], s33 offen{SC1}")
    a(f"buffer_store_dwordx4 {v(92,4)}, v1, s[{WSR}:{WSR+3}], s33 offen offset:1024{SC1}")
    if "dup" in X:
        a(f"buffer_store_dwordx4 {v(80,4)}, v1, s[{WSR}:{WSR+3}], s3 offen")
        a(f"buffer_store_dwordx4 {v(84,4)}, v1, s[{WSR}:{WSR+3}], s3 offen offset:1024")
        a(f"buffer_store_dwordx4 {v(88,4)}, v1, s[{WSR}:{WSR+3}], s33 offen")
        a(f"buffer_store_dwordx4 {v(92,4)}, v1, s[{WSR}:{WSR+3}], s33 offen offset:1024")
    a(f"s_lshl_b32 s3, s{RB}, 5")
    a(f"s_add_u32 s3, s3, s{J2}")
    a("s_lshl_b32 s3, s3, 2")
    a(f"s_add_u32 s3, s3, {FL_H}")
    arrive_flag(a, C_HCNT, 4, 3, 66, 67, P + "_hflag")
    pf.stamp(9)
    a(f"s_lshr_b32 s3, s{BW}, 1")
    a("s_cmp_eq_u32 s3, 0")
    a(f"s_cselect_b32 s{TR}, s{S_CRE}, s{S_CIM}")
    a(f"s_cselect_b32 s{TR+1}, s{S_CRE+1}, s{S_CIM+1}")
    plain_lane_off(a, 53, 0, 69)
    a(f"s_mul_i32 s40, s{J2}, {64*896}")
    a(f"s_and_b32 s3, s{BW}, 1")
    a("s_mul_i32 s3, s3, 448")
    a("s_add_u32 s40, s40, s3")
    a(f"s_mul_i32 s41, s{BW}, 20480")
    CDMA = [53]
    def c_dma(kb):
        a(f"s_add_u32 m0, s41, {(kb % 5)*4096}")
        for q in range(4):
            a(f"s_add_u32 s33, s40, {q*16*896 + kb*64}")
            a(f"buffer_load_dwordx4 v{CDMA[0]}, s[{TR}:{TR+3}], s33 offen lds")
            if q < 3: a("s_add_u32 m0, m0, 1024")
    for kb in range(5): c_dma(kb)
    a(f"s_cmp_eq_u32 s{BW}, 0")
    a(f"s_cbranch_scc0 {P}_nopollH")
    a("v_lshlrev_b32 v67, 2, v0")
    a(f"s_lshl_b32 s35, s{RB}, 7")
    a(f"s_add_u32 s35, s35, {FL_H}")
    a("s_mov_b64 s[58:59], 0x7f")
    poll(a, P + "_pollH", 68, 67, 35, 58)
    srd(a, 48, S_DBG, 256)
    a(f"v_mov_b32 v67, {D_GOG}")
    a.label(P + "_pollG")
    a(f"buffer_load_dword v68, v67, s[48:51], 0 offen{SC1}")
    a("s_waitcnt vmcnt(0)")
    a("v_readfirstlane_b32 s3, v68")
    a("s_cmp_lg_u32 s3, 0")
    a(f"s_cbranch_scc1 {P}_pollG_ok")
    a(f"s_sleep {POLLSLEEP}")
    a(f"s_sub_u32 s{SPIN}, s{SPIN}, 1")
    a(f"s_cbranch_scc0 {P}_pollG")
    a(f"s_mov_b32 s{SPIN}, 0")
    a.label(P + "_pollG_ok")
    a.label(P + "_nopollH")
    a("s_waitcnt vmcnt(0)")
    bar()
    pf.stamp(10)
    T[0], T[1] = 4, 5
    ACC = 8
    XS, GT = 136, 152
    if "lowy" in X: a("s_setprio 0")
    a(f"s_lshl_b32 s3, s{RB}, 1")
    a("s_mul_i32 s3, s3, 56")
    a(f"s_mul_i32 s33, s{BW}, 14")
    a("s_add_u32 s3, s3, s33")
    a("s_lshl_b32 s3, s3, 10")
    a(f"s_add_u32 s32, s3, {WS_HF}")
    a(f"s_add_u32 s34, s32, {56*1024}")
    AF = 88; NA = 10
    plain_lane_off(a, 2, 0, 72)
    CDMA[0] = 2
    xfrag_addr(a, 6, 0, 72)
    a("v_add_u32 v6, s41, v6")
    a("v_xor_b32 v7, 32, v6")
    def ldA(st_):
        r = AF + 8 * (st_ % NA)
        a(f"s_add_u32 s35, s32, {st_*1024}")
        a(f"s_add_u32 s36, s34, {st_*1024}")
        a(f"buffer_load_dwordx4 {v(r,4)}, v1, s[{WSR}:{WSR+3}], s35 offen{SC1}")
        a(f"buffer_load_dwordx4 {v(r+4,4)}, v1, s[{WSR}:{WSR+3}], s36 offen{SC1}")
    for st_ in range(NA): ldA(st_)
    if "htouch" in X:
        a("v_lshlrev_b32 v72, 7, v0")
        a(f"s_mov_b32 m0, {L_JUNK}")
        a(f"s_add_u32 s35, s32, {NA*1024}")
        a(f"s_add_u32 s36, s34, {NA*1024}")
        a("s_mov_b32 exec_hi, 0")
        a(f"buffer_load_dword v72, s[{WSR}:{WSR+3}], s35 offen{SC1} lds")
        a(f"buffer_load_dword v72, s[{WSR}:{WSR+3}], s36 offen{SC1} lds")
        a("s_mov_b64 exec, -1")
    CB = [72, 80]
    def rdC(st_):
        b = CB[st_ & 1]
        kb = st_ >> 1
        a(f"ds_read_b128 {v(b,4)}, v{6+(st_&1)} offset:{(kb%5)*4096}")
        a(f"ds_read_b128 {v(b+4,4)}, v{6+(st_&1)} offset:{(kb%5)*4096+2048}")
    issued = []
    for st_ in range(NA): issued += [("A", st_)] * 2
    if "htouch" in X: issued += [("T", 0)] * 2
    HY = int(os.environ.get("HY", "0"))
    if HY:
        a(f"v_mov_b32 v4, {L_CNT}")
        lds_wait(a, C_LEND, HY, 4, 5, P + "_lend", sleep=8)
        a(f"s_setprio {os.environ.get('YP', '1')}")
    rdC(0)
    for st_ in range(14):
        kb = st_ >> 1
        need = [("A", st_)]
        if st_ + 1 < 14 and ((st_ + 1) >> 1) >= 5: need.append(("C", (st_ + 1) >> 1))
        last = max(i for i, t in enumerate(issued) if t in need)
        n_out = len(issued) - 1 - last
        a(f"s_waitcnt vmcnt({n_out})")
        if st_ + 1 < 14: rdC(st_ + 1)
        a(f"s_waitcnt lgkmcnt({2 if st_ + 1 < 14 else 0})")
        b = CB[st_ & 1]; r = AF + 8 * (st_ % NA)
        for rt in range(2):
            for ct in range(2):
                acc = ACC + 16 * (2 * rt + ct)
                c = "0" if st_ == 0 else v(acc, 16)
                a(f"{MF} {v(acc,16)}, {v(r+4*rt,4)}, {v(b+4*ct,4)}, {c}")
        if st_ + NA < 14:
            ldA(NA + st_); issued += [("A", NA + st_)] * 2
        if (st_ & 1) == 1 and kb + 5 < 7:
            c_dma(kb + 5); issued += [("C", kb + 5)] * 4
    pf.stamp(11)
    a(f"s_lshl_b32 s3, s{RB}, 6")
    a("s_lshl_b32 s33, s38, 5")
    a("s_add_u32 s3, s3, s33")
    a("v_lshrrev_b32 v80, 5, v0")
    a("v_lshlrev_b32 v80, 4, v80")
    a("v_add_u32 v80, s3, v80")
    a(f"s_lshl_b32 s33, s{J2}, 6")
    a(f"s_and_b32 s35, s{BW}, 1")
    a("s_lshl_b32 s35, s35, 5")
    a("s_add_u32 s33, s33, s35")
    a("v_and_b32 v81, 31, v0")
    a("v_add_u32 v81, s33, v81")
    srd(a, 48, S_X, XBYTES)
    a("v_mul_u32_u24 v82, 896, v80")
    a("v_lshl_add_u32 v82, v81, 1, v82")
    for r in range(16):
        a(f"buffer_load_ushort v{XS+r}, v82, s[48:51], 0 offen offset:{(r%4)*896}")
        if r % 4 == 3 and r < 15: a(f"v_add_u32 v82, {4*896}, v82")
    srd(a, 52, S_DSK, 896)
    a("v_lshlrev_b32 v83, 1, v81")
    a("buffer_load_ushort v3, v83, s[52:55], 0 offen")
    a("v_lshlrev_b32 v83, 2, v80")
    a(f"s_mov_b32 s35, {WS_G}")
    for q in range(4):
        a(f"buffer_load_dwordx4 {v(GT+4*q,4)}, v83, s[{WSR}:{WSR+3}], s35 offen offset:{16*q}{SC1}")

    a(f"s_setprio {os.environ.get('YP2', '2')}")
    bar()
    VT_, VD_, VO_, t1, t2, t3, t4, t5 = 72, 73, 74, 75, 76, 77, 78, 79
    srd(a, TR, S_WO, WBYTES)
    a(f"v_lshrrev_b32 v{t1}, 3, v0")
    a(f"v_mul_u32_u24 v{t1}, 896, v{t1}")
    a(f"v_and_b32 v{t2}, 7, v0")
    a(f"v_lshl_add_u32 v{t1}, v{t2}, 4, v{t1}")
    a(f"s_mul_i32 s32, s{BW}, {112*896}")
    a(f"s_lshl_b32 s3, s{J2}, 7")
    a("s_add_u32 s32, s32, s3")
    a(f"s_mul_i32 s34, s{BW}, 14336")
    a("s_mov_b32 m0, s34")
    a("s_mov_b32 s36, 14")
    a.label(P + "_wodma")
    a("s_sub_u32 s36, s36, 1")
    a(f"buffer_load_dwordx4 v{t1}, s[{TR}:{TR+3}], s32 offen lds")
    a("s_add_u32 s32, s32, 7168")
    a("s_add_u32 m0, m0, 1024")
    a("s_cmp_lg_u32 s36, 0")
    a(f"s_cbranch_scc1 {P}_wodma")
    a("v_mov_b32 v80, 0")
    a("v_mov_b32 v81, 0")
    a(f"v_lshlrev_b32 v{t2}, 3, v0")
    a(f"ds_write_b64 v{t2}, v[80:81] offset:57344")
    a(f"v_mov_b32 v4, {L_CNT}")
    lds_wait(a, C_TRD, 8, 4, 5, P + "_trd")
    a(f"s_lshl_b32 s3, s{BW}, 12")
    a(f"s_add_u32 s3, s3, {A_OP}")
    a(f"v_add_u32 v{t1}, s3, v1")
    for t in range(4):
        for q in range(4):
            a(f"ds_write_b128 v{t1}, {v(ACC+16*t+4*q,4)} offset:{t*16384+q*1024}")
    bar()
    a(f"s_lshl_b32 s3, s{BW}, 14")
    a(f"s_add_u32 s3, s3, {A_OP}")
    a(f"v_add_u32 v{t1}, s3, v1")
    for src in range(3):
        for q in range(4):
            a(f"ds_read_b128 {v(88+16*src+4*q,4)}, v{t1} offset:{src*4096+q*1024}")
    YT = 8
    for q in range(4):
        a(f"ds_read_b128 {v(YT+4*q,4)}, v{t1} offset:{3*4096+q*1024}")
        if q == 2: a("s_waitcnt lgkmcnt(4)")
    a("s_waitcnt lgkmcnt(0)")
    VT_, VD_, VO_, t1, t2, t3, t4, t5 = 40, 41, 42, 43, 44, 45, 46, 47
    a("s_waitcnt vmcnt(14)")
    for r in range(16):
        a(f"v_add_f32 v{88+r}, v{88+r}, v{104+r}")
        a(f"v_add_f32 v{YT+r}, v{YT+r}, v{120+r}")
    a("v_lshlrev_b32 v3, 16, v3")
    for r in range(16):
        a(f"v_add_f32 v{YT+r}, v{YT+r}, v{88+r}")
        a(f"v_lshlrev_b32 v{XS+r}, 16, v{XS+r}")
        a(f"v_mul_f32 v{XS+r}, v{XS+r}, v3")
        a(f"v_fma_f32 v{YT+r}, 2.0, v{YT+r}, v{XS+r}")
        a(f"v_sub_f32 v{XS+r}, 1.0, v{GT+r}")
        a(f"v_mul_f32 v{YT+r}, v{YT+r}, v{XS+r}")
    a(f"s_lshl_b32 s3, s{RB}, 6")
    a("s_lshl_b32 s33, s38, 5")
    a("s_add_u32 s3, s3, s33")
    a(f"v_lshrrev_b32 v{VT_}, 5, v0")
    a(f"v_lshlrev_b32 v{VT_}, 4, v{VT_}")
    a(f"v_add_u32 v{VT_}, s3, v{VT_}")
    a(f"s_lshl_b32 s33, s{J2}, 6")
    a(f"s_and_b32 s35, s{BW}, 1")
    a("s_lshl_b32 s35, s35, 5")
    a("s_add_u32 s33, s33, s35")
    a(f"v_and_b32 v{VD_}, 31, v0")
    a(f"v_add_u32 v{VD_}, s33, v{VD_}")
    a(f"v_mul_u32_u24 v{VO_}, 1792, v{VT_}")
    a(f"v_lshl_add_u32 v{VO_}, v{VD_}, 2, v{VO_}")
    srd(a, 48, S_OUT, OUTBYTES)
    a("v_lshrrev_b32 v6, 5, v0")
    a("v_lshlrev_b32 v6, 2, v6")
    a("v_bfe_u32 v7, v0, 2, 2")
    a("v_add_u32 v6, v6, v7")
    a("v_lshlrev_b32 v6, 7, v6")
    a("v_and_b32 v7, 16, v0")
    a(f"v_and_b32 v{t1}, 3, v0")
    a(f"v_lshl_add_u32 v7, v{t1}, 2, v7")
    a("v_lshl_add_u32 v6, v7, 1, v6")
    a(f"s_and_b32 s3, s{BW}, 1")
    a(f"s_mul_i32 s3, s3, {8*28*128}")
    a("v_add_u32 v6, s3, v6")
    a("s_waitcnt vmcnt(0)")
    a("s_setprio 3")
    pf.stamp(12)
    bar()
    a(f"v_lshlrev_b32 v{t4}, 2, v0")
    a(f"s_lshl_b32 s35, s{RB}, 7")
    a(f"s_add_u32 s35, s35, {FL_O}")
    a("s_mov_b64 s[58:59], 0xff")
    poll(a, P + "_pollO", t5, t4, 35, 58)
    pf.stamp(13)
    a(f"s_lshl_b32 s3, s{RB}, 1")
    a("s_add_u32 s3, s3, s38")
    a("s_lshl_b32 s3, s3, 15")
    a(f"s_and_b32 s33, s{BW}, 1")
    a("s_lshl_b32 s33, s33, 14")
    a("s_add_u32 s3, s3, s33")
    a(f"s_add_u32 s32, s3, {WS_OF}")
    OFR = 88
    for st_ in range(16):
        a(f"s_add_u32 s33, s32, {st_*1024}")
        a(f"buffer_load_dwordx4 {v(OFR+4*st_,4)}, v1, s[{WSR}:{WSR+3}], s33 offen{SC1}")
    PA_ = [56, 72]
    WB = [24, 32]
    def rdW(st_):
        hd, f = st_ >> 1, st_ & 1
        off = (28 * hd + 16 * f) * 128
        b = WB[st_ & 1]
        for ct in range(2):
            a(f"ds_read_b64_tr_b16 {v(b+4*ct,2)}, v6 offset:{off+ct*64}")
            a(f"ds_read_b64_tr_b16 {v(b+4*ct+2,2)}, v6 offset:{off+ct*64+1024}")
    rdW(0)
    for st_ in range(16):
        if st_ + 1 < 16: rdW(st_ + 1)
        a(f"s_waitcnt vmcnt({15-st_}) lgkmcnt({4 if st_ + 1 < 16 else 0})")
        for ct in range(2):
            c = "0" if st_ == 0 else v(PA_[ct], 16)
            a(f"{MF} {v(PA_[ct],16)}, {v(OFR+4*st_,4)}, {v(WB[st_&1]+4*ct,4)}, {c}")
    a(f"s_xor_b32 s3, s{BW}, 1")
    a("s_lshl_b32 s3, s3, 12")
    a("s_add_u32 s3, s3, 65536")
    a(f"v_add_u32 v{t1}, s3, v1")
    a(f"s_and_b32 s33, s{BW}, 1")
    a("s_nop 7")
    a("s_cmp_eq_u32 s33, 0")
    a(f"s_cbranch_scc0 {P}_send0")
    for q in range(4): a(f"ds_write_b128 v{t1}, {v(PA_[1]+4*q,4)} offset:{q*1024}")
    a(f"s_branch {P}_sent")
    a.label(P + "_send0")
    a("s_nop 1")
    for q in range(4): a(f"ds_write_b128 v{t1}, {v(PA_[0]+4*q,4)} offset:{q*1024}")
    a("s_nop 1")
    for r in range(16): a(f"v_mov_b32 v{PA_[0]+r}, v{PA_[1]+r}")
    a.label(P + "_sent")
    bar()
    a(f"s_lshl_b32 s3, s{BW}, 12")
    a("s_add_u32 s3, s3, 65536")
    a(f"v_add_u32 v{t1}, s3, v1")
    for q in range(4): a(f"ds_read_b128 {v(88+4*q,4)}, v{t1} offset:{q*1024}")
    a("s_waitcnt lgkmcnt(0)")
    for r in range(16):
        a(f"v_add_f32 v{88+r}, v{88+r}, v{PA_[0]+r}")
        a(f"v_fma_f32 v{88+r}, v{GT+r}, v{88+r}, v{YT+r}")
    for r in range(16):
        a(f"buffer_store_dword v{88+r}, v{VO_}, s[48:51], 0 offen offset:{(r%2)*1792}{os.environ.get('OST', '')}")
        if r % 2 == 1 and r < 15: a(f"v_add_u32 v{VO_}, {2*1792}, v{VO_}")
    pf.stamp(14)
    a(f"s_branch {P}_end")
    a.label(P + "_skip")
    if os.environ.get("S3", "b") in ("b", "u"): stage3("b")
    a(f"v_mov_b32 v54, {L_CNT}")
    a("v_mov_b32 v55, 1")
    a("s_mov_b64 exec, 1")
    a(f"ds_add_u32 v54, v55 offset:{C_HCNT}")
    a("s_mov_b64 exec, -1")
    a.label(P + "_end")

def lds_wait(a, coff, target, vaddr, vtmp, lab, sleep=1):
    a.label(lab)
    a(f"ds_read_b32 v{vtmp}, v{vaddr} offset:{coff}")
    a("s_waitcnt lgkmcnt(0)")
    a(f"v_readfirstlane_b32 s3, v{vtmp}")
    a(f"s_cmp_ge_u32 s3, {target}")
    a(f"s_cbranch_scc1 {lab}_ok")
    a(f"s_sleep {sleep}")
    a(f"s_sub_u32 s{SPIN}, s{SPIN}, 1")
    a(f"s_cbranch_scc0 {lab}")
    a(f"s_mov_b32 s{SPIN}, 0")
    a.label(lab + "_ok")

def lds_arrive(a, coff, vaddr, vtmp):
    a(f"v_mov_b32 v{vaddr}, {L_CNT}")
    a(f"v_mov_b32 v{vtmp}, 1")
    a("s_mov_b64 exec, 1")
    a(f"ds_add_u32 v{vaddr}, v{vtmp} offset:{coff}")
    a("s_mov_b64 exec, -1")

def dma_loop(a, lab, vaddr, n, dsrc, dlds):
    a("s_mov_b32 s36, %d" % n)
    a.label(lab)
    a("s_sub_u32 s36, s36, 1")
    a(f"buffer_load_dwordx4 v{vaddr}, s[{TR}:{TR+3}], s32 offen lds")
    a(f"s_add_u32 s32, s32, {dsrc}")
    a(f"s_add_u32 m0, m0, {dlds}")
    a("s_cmp_lg_u32 s36, 0")
    a(f"s_cbranch_scc1 {lab}")

def q_loop(a, acc, X4, W4, vxe, vxo, vw):
    def rd(j):
        k = j & 3
        a(f"ds_read_b128 {v(X4+4*k,4)}, v{vxo if j & 1 else vxe} offset:{(j>>1)*4096}")
        a(f"ds_read_b64_tr_b16 {v(W4+4*k,2)}, v{vw} offset:{j*2048}")
        a(f"ds_read_b64_tr_b16 {v(W4+4*k+2,2)}, v{vw} offset:{j*2048+512}")
    for j in range(4): rd(j)
    for j in range(28):
        left = min(3, 27 - j)
        a(f"s_waitcnt lgkmcnt({3*left})")
        c = "0" if j == 0 else v(acc, 16)
        a(f"{MF} {v(acc,16)}, {v(W4+4*(j&3),4)}, {v(X4+4*(j&3),4)}, {c}")
        if j + 4 < 28: rd(j + 4)

def gen_fused(a):
    name = NAME + "_kernel"
    a(f".globl {name}")
    a(".p2align 8")
    a(f".type {name},@function")
    a.label(name)
    END = "L_end"
    a("s_cmp_ge_u32 s2, 256")
    a(f"s_cbranch_scc1 {END}")
    a("s_load_dwordx16 s[64:79], s[0:1], 0")
    a("s_load_dwordx16 s[80:95], s[0:1], 64")
    a("s_load_dwordx4 s[96:99], s[0:1], 128")
    if "earlycode" in X:
        a("s_getpc_b64 s[56:57]")
        a.label("p0_pc0")
        a("v_lshlrev_b32 v148, 7, v0")
        a("s_mov_b32 s3, L_end-p0_pc0")
        a("v_min_u32 v148, s3, v148")
        a("global_load_dword v149, v148, s[56:57]")
    a("v_lshrrev_b32 v2, 6, v0")
    a("v_and_b32 v0, 63, v0")
    a(f"v_readfirstlane_b32 s{WV}, v2")
    a(f"v_mov_b32 v4, {L_CNT}")
    a("v_mov_b32 v5, 0")
    a("v_lshl_add_u32 v4, v0, 2, v4")
    a("ds_write_b32 v4, v5")
    a(f"s_and_b32 s{RB}, s2, 7")
    a(f"s_lshl_b32 s{RB}, s{RB}, 2")
    a(f"s_lshr_b32 s{J2}, s2, 3")
    a(f"s_and_b32 s3, s{J2}, 3")
    a(f"s_add_u32 s{RB}, s{RB}, s3")
    a(f"s_lshr_b32 s{J2}, s{J2}, 2")
    a("v_lshlrev_b32 v1, 4, v0")
    a(f"s_mov_b32 s{SPIN}, 0x100000")
    a(f"s_sub_u32 s{BW}, s{WV}, 8")
    pfA = Prof(a, 167)
    xtile_lane_off(a, 3, 0, 4, 5)
    a("s_waitcnt lgkmcnt(0)")
    srd(a, WSR, S_WS, WS_SIZE)
    if PROF: a("v_mov_b32 v167, 0")
    pfA.stamp(0)
    if PROF:
        a("s_getreg_b32 s60, hwreg(HW_REG_XCC_ID)")
        a("v_writelane_b32 v167, s60, 20")
        a("s_getreg_b32 s60, hwreg(HW_REG_HW_ID)")
        a("v_writelane_b32 v167, s60, 21")
    a(f"s_cmp_lt_u32 s{WV}, 4")
    a("s_cselect_b64 s[46:47], -1, 0")
    a(f"s_cmp_eq_u32 s{J2}, 0")
    a(f"s_cselect_b32 s{TR}, s{S_WK}, s{S_WV}")
    a(f"s_cselect_b32 s{TR+1}, s{S_WK+1}, s{S_WV+1}")
    a(f"s_mov_b32 s{TR+2}, {WKBYTES}")
    a(f"s_mov_b32 s{TR+3}, 0x00020000")
    a(f"s_mul_i32 s32, s{BW}, 7168")
    a(f"s_add_u32 s34, s32, {L_WKV}")
    a("s_mov_b32 s33, 1024")
    a("s_mov_b32 s35, 1024")
    a(f"s_cmp_lt_u32 s{J2}, 2")
    a("s_cselect_b32 s36, 7, 0")
    a(f"s_cmp_ge_u32 s{WV}, 8")
    a("s_cselect_b32 s36, s36, 0")
    a("v_cndmask_b32 v3, v1, v3, s[46:47]")
    a(f"s_mul_i32 s40, s{RB}, {64*896}")
    a(f"s_lshr_b32 s3, s{WV}, 1")
    a(f"s_mul_i32 s3, s3, {32*896}")
    a("s_add_u32 s40, s40, s3")
    a(f"s_and_b32 s3, s{WV}, 1")
    a(f"s_mul_i32 s3, s3, {8*896}")
    a("s_add_u32 s40, s40, s3")
    a(f"s_lshl_b32 s41, s{WV}, 10")
    a(f"s_cmp_lt_u32 s{WV}, 4")
    a(f"s_cselect_b32 s{TR}, s{S_X}, s{TR}")
    a(f"s_cselect_b32 s{TR+1}, s{S_X+1}, s{TR+1}")
    a(f"s_cselect_b32 s{TR+2}, {XBYTES}, s{TR+2}")
    a("s_cselect_b32 s32, s40, s32")
    a("s_cselect_b32 s34, s41, s34")
    a("s_cselect_b32 s33, 64, s33")
    a("s_cselect_b32 s35, 4096, s35")
    a("s_cselect_b32 s36, 14, s36")
    a("s_mov_b32 m0, s34")
    a("s_cmp_eq_u32 s36, 0")
    a("s_cbranch_scc1 p0_first_done")
    a.label("p0_first")
    a("s_sub_u32 s36, s36, 1")
    a(f"buffer_load_dwordx4 v3, s[{TR}:{TR+3}], s32 offen lds")
    a("s_add_u32 s32, s32, s33")
    a("s_add_u32 m0, m0, s35")
    a("s_cmp_lg_u32 s36, 0")
    a("s_cbranch_scc1 p0_first")
    a.label("p0_first_done")
    a(f"s_cmp_ge_u32 s{WV}, 8")
    a("s_cbranch_scc1 p0_bgw")
    a(f"s_cmp_ge_u32 s{WV}, 4")
    a("s_cbranch_scc1 p0_kvw")
    a("s_barrier")
    pfA.stamp(1)
    xfrag_addr(a, 6, 0, 4)
    tr_rowcol(a, 12, 13, 0, 4)
    a(f"s_lshr_b32 s38, s{WV}, 1")
    a(f"s_and_b32 s39, s{WV}, 1")
    a("s_lshl_b32 s3, s38, 11")
    a("v_add_u32 v6, s3, v6")
    a("v_xor_b32 v7, 32, v6")
    a("v_lshlrev_b32 v10, 7, v12")
    a("v_lshl_add_u32 v10, v13, 1, v10")
    a("s_mul_i32 s3, s39, 56")
    a(f"s_add_u32 s3, s3, {L_WQ}")
    a("v_add_u32 v10, s3, v10")
    a("s_waitcnt vmcnt(0)")
    lds_arrive(a, C_XR, 4, 5)
    pfA.stamp(2)
    a("s_waitcnt lgkmcnt(0)")
    a("s_barrier")
    pfA.stamp(3)
    q_loop(a, 16, 32, 48, 6, 7, 10)
    a(f"s_mov_b32 s42, {hex(QSCALE)}")
    a(f"s_lshl_b32 s3, s{WV}, 11")
    a(f"s_add_u32 s3, s3, {L_QX}")
    a("v_add_u32 v12, s3, v1")
    a("s_nop 7")
    a("s_nop 0")
    for i in range(16): a(f"v_mul_f32 v{16+i}, s42, v{16+i}")
    for i in range(8): a(f"v_cvt_pk_bf16_f32 v{32+i}, v{16+2*i}, v{17+2*i}")
    a("s_mov_b32 exec_lo, 0")
    a("v_mov_b32 v38, 0")
    a("v_mov_b32 v39, 0")
    a("s_mov_b32 exec_lo, -1")
    a("ds_write_b128 v12, v[32:35]")
    a("ds_write_b128 v12, v[36:39] offset:1024")
    a("s_branch p0_b1")
    a.label("p0_kvw")
    a(f"s_sub_u32 s39, s{WV}, 4")
    if "earlycode" not in X:
        a("s_getpc_b64 s[56:57]")
        a.label("p0_pc")
        a("s_lshl_b32 s3, s39, 13")
        a("v_lshlrev_b32 v150, 7, v0")
        a("v_add_u32 v150, s3, v150")
        a(f"s_sub_u32 s56, s56, p0_pc-{NAME}_kernel")
        a("s_subb_u32 s57, s57, 0")
        a(f"s_mov_b32 s3, L_end-{NAME}_kernel")
        a("v_min_u32 v150, s3, v150")
        a("global_load_dword v150, v150, s[56:57]")
    a("s_cmp_eq_u32 s39, 0")
    a("s_cbranch_scc0 p0_pf_out")
    a("v_lshlrev_b32 v151, 21, v0")
    a("s_mov_b64 exec, 7")
    a(f"buffer_load_dword v151, v151, s[{WSR}:{WSR+3}], 0 offen")
    a("s_mov_b64 exec, -1")
    a.label("p0_pf_out")
    a("s_cmp_eq_u32 s39, 1")
    a("s_cbranch_scc0 p0_pf_done")
    srd(a, 48, S_OUT, OUTBYTES)
    a("v_mul_u32_u24 v151, 0x1c0000, v0")
    a("s_mov_b64 exec, 7")
    a("buffer_load_dword v151, v151, s[48:51], 0 offen")
    a("s_mov_b64 exec, -1")
    if os.environ.get("S3") == "mall":
        a("s_cmp_eq_u32 s39, 3")
        a("s_cbranch_scc0 p0_pf_done")
        a("v_lshlrev_b32 v149, 7, v0")
        a(f"s_mul_i32 s3, s2, {13*128}")
        a(f"s_mov_b32 m0, {L_JUNK}")
        a("s_mov_b64 exec, 0x1fff")
        for sp in (S_CRE, S_CIM, S_WO):
            srd(a, 48, sp, WBYTES)
            a("buffer_load_dword v149, s[48:51], s3 offen lds")
        a("s_mov_b64 exec, -1")
    a.label("p0_pf_done")
    a("s_barrier")
    a(f"s_cmp_ge_u32 s{J2}, 3")
    a("s_cbranch_scc1 p0_kv_none")
    a("s_lshr_b32 s38, s39, 1")
    a("s_and_b32 s39, s39, 1")
    a(f"s_mov_b32 s15, {1 if 'dry' in X else 0}")
    a("s_setprio 3")
    a.label("p0_kv_setup")
    a(f"s_mov_b32 s8, s{WSR}")
    a(f"s_mov_b32 s9, s{WSR+1}")
    a("s_cmp_eq_u32 s15, 0")
    a(f"s_cselect_b32 s10, {WS_SIZE}, 0")
    a("s_mov_b32 s11, 0x00020000")
    xfrag_addr(a, 6, 0, 4)
    tr_rowcol(a, 12, 13, 0, 4)
    a("s_lshl_b32 s3, s38, 11")
    a("s_mul_i32 s41, s39, 28672")
    a("s_add_u32 s3, s3, s41")
    a("v_add_u32 v6, s3, v6")
    a("v_xor_b32 v7, 32, v6")
    a("s_mul_i32 s40, s39, 14")
    a(f"s_cmp_eq_u32 s{J2}, 2")
    a("s_cbranch_scc1 p0_kv_gaddr")
    a("v_mul_u32_u24 v10, 56, v12")
    a("v_lshl_add_u32 v10, v13, 1, v10")
    a(f"s_mul_i32 s3, s40, {16*56}")
    a(f"s_add_u32 s3, s3, {L_WKV}")
    a("v_add_u32 v10, s3, v10")
    a("v_add_u32 v11, 224, v10")
    a(f"s_mov_b32 s42, {16*56}")
    a("s_branch p0_kv_addr_done")
    a.label("p0_kv_gaddr")
    a("v_lshlrev_b32 v10, 3, v12")
    a("s_lshl_b32 s3, s40, 7")
    a(f"s_add_u32 s3, s3, {L_WKV}")
    a("v_add_u32 v10, s3, v10")
    a("v_add_u32 v11, 32, v10")
    a("s_mov_b32 s42, 128")
    a.label("p0_kv_addr_done")
    a(f"v_mov_b32 v4, {L_CNT}")
    a("s_cmp_lg_u32 s15, 0")
    a("s_cbranch_scc1 p0_xr_ok")
    lds_wait(a, C_XR, 8, 4, 5, "p0_xr")
    pfA.stamp(2)
    def kv_rd(i):
        a(f"ds_read_b128 {v(32+4*i,4)}, v{6+(i&1)} offset:{(i>>1)*4096}")
        a(f"ds_read_b64_tr_b16 {v(88+4*i,2)}, v10")
        a(f"ds_read_b64_tr_b16 {v(88+4*i+2,2)}, v11")
        if i < 13:
            a("v_add_u32 v10, s42, v10")
            a("v_add_u32 v11, s42, v11")
    def kv_mm(swap, tag):
        for i in range(4): kv_rd(i)
        for i in range(14):
            a(f"s_waitcnt lgkmcnt({3*min(3, 13-i)})")
            A, B = (32+4*i, 88+4*i) if swap else (88+4*i, 32+4*i)
            a(f"{MF} v[16:31], {v(A,4)}, {v(B,4)}, {'0' if i == 0 else 'v[16:31]'}")
            if i + 4 < 14: kv_rd(i + 4)
    a(f"s_cmp_ge_u32 s{J2}, 1")
    a("s_cbranch_scc1 p0_kv_swap")
    kv_mm(False, "k")
    a("s_branch p0_kv_mm_done")
    a.label("p0_kv_swap")
    kv_mm(True, "v")
    a.label("p0_kv_mm_done")
    pfA.stamp(22)
    a("s_lshl_b32 s3, s38, 12")
    a(f"s_add_u32 s3, s3, {L_QX}")
    a("v_add_u32 v12, s3, v1")
    a("s_nop 7")
    a("s_nop 0")
    a("s_cmp_lg_u32 s15, 0")
    a("s_cbranch_scc1 p0_kv_root")
    a("s_cmp_eq_u32 s39, 0")
    a("s_cbranch_scc1 p0_kv_root")
    for q in range(4): a(f"ds_write_b128 v12, {v(16+4*q,4)} offset:{q*1024}")
    a("s_waitcnt lgkmcnt(0)")
    a("s_lshl_b32 s3, s38, 2")
    a(f"v_mov_b32 v4, {L_CNT}")
    a("v_add_u32 v4, s3, v4")
    a("v_mov_b32 v5, 1")
    a("s_mov_b64 exec, 1")
    a(f"ds_add_u32 v4, v5 offset:{C_KVR}")
    a("s_mov_b64 exec, -1")
    a("s_branch p0_kv_none")
    a.label("p0_kv_root")
    a("s_lshl_b32 s3, s38, 2")
    a(f"v_mov_b32 v4, {L_CNT}")
    a("v_add_u32 v4, s3, v4")
    a("s_cmp_lg_u32 s15, 0")
    a("s_cbranch_scc1 p0_kvr_ok")
    lds_wait(a, C_KVR, 1, 4, 5, "p0_kvr")
    pfA.stamp(23)
    for i in range(4): a(f"ds_read_b128 {v(32+4*i,4)}, v12 offset:{i*1024}")
    a("s_waitcnt lgkmcnt(0)")
    for r in range(16): a(f"v_add_f32 v{16+r}, v{16+r}, v{32+r}")
    a(f"s_lshl_b32 s43, s{RB}, 1")
    a("s_add_u32 s43, s43, s38")
    a(f"s_cmp_eq_u32 s{J2}, 2")
    a("s_cbranch_scc1 p0_gate_epi")
    for i in range(8): a(f"v_cvt_pk_bf16_f32 v{32+i}, v{16+2*i}, v{17+2*i}")
    a("s_lshl_b32 s44, s43, 12")
    a(f"s_add_u32 s44, s44, {WS_KV}")
    a(f"s_cmp_eq_u32 s{J2}, 1")
    a("s_cbranch_scc1 p0_v_epi")
    a("s_mov_b32 exec_lo, 0")
    a("v_mov_b32 v38, 0x3f803f80")
    a("v_mov_b32 v39, 0x00003f80")
    a("s_mov_b32 exec_lo, -1")
    a(f"buffer_store_dwordx4 v[32:35], v1, s[8:11], s44 offen{SC1}")
    a(f"buffer_store_dwordx4 v[36:39], v1, s[8:11], s44 offen offset:1024{SC1}")
    a("s_branch p0_kv_arrive")
    a.label("p0_v_epi")
    a("v_max3_f32 v14, |v16|, |v17|, |v18|")
    for j in range(3, 15, 2): a(f"v_max3_f32 v14, v14, |v{16+j}|, |v{17+j}|")
    a("v_max_f32 v14, v14, |v31|")
    a("v_and_b32 v13, 31, v0")
    a("v_cmp_gt_u32 s[46:47], 28, v13")
    a(f"v_cmp_lt_f32 vcc, {hex(VMAX)}, v14")
    a("s_and_b64 vcc, vcc, s[46:47]")
    a("s_cbranch_vccz p0_v_ok")
    a("s_cmp_lg_u32 s15, 0")
    a("s_cbranch_scc1 p0_v_ok")
    srd(a, 48, S_DBG, 256)
    a("v_mov_b32 v14, 1")
    a(f"v_mov_b32 v15, {D_BAD}")
    a("s_mov_b64 exec, 1")
    a(f"buffer_store_dword v14, v15, s[48:51], 0 offen{SC1}")
    a("s_mov_b64 exec, -1")
    a.label("p0_v_ok")
    a("v_and_b32 v13, 31, v0")
    a("v_cmp_eq_u32 vcc, 28, v13")
    a("v_mov_b32 v14, 0x3f803f80")
    a("s_nop 0")
    a("v_cndmask_b32 v14, 0, v14, vcc")
    a("v_cmp_lt_u32 vcc, 27, v13")
    a("s_nop 1")
    for i in range(8): a(f"v_cndmask_b32 v{32+i}, v{32+i}, v14, vcc")
    a(f"buffer_store_dwordx4 v[32:35], v1, s[8:11], s44 offen offset:2048{SC1}")
    a(f"buffer_store_dwordx4 v[36:39], v1, s[8:11], s44 offen offset:3072{SC1}")
    a("s_branch p0_kv_arrive")
    a.label("p0_gate_epi")
    a(f"s_mov_b32 s42, {hex(LOG2E)}")
    for i in range(16): a(f"v_mul_f32 v{16+i}, s42, v{16+i}")
    for i in range(16): a(f"v_exp_f32 v{16+i}, -v{16+i}")
    for i in range(16): a(f"v_add_f32 v{16+i}, 1.0, v{16+i}")
    for i in range(16): a(f"v_rcp_f32 v{16+i}, v{16+i}")
    a("v_lshrrev_b32 v13, 5, v0")
    a("v_lshlrev_b32 v13, 6, v13")
    a("s_lshl_b32 s44, s43, 7")
    a(f"s_add_u32 s44, s44, {WS_G}")
    a("v_and_b32 v14, 31, v0")
    a("v_cmp_eq_u32 vcc, 0, v14")
    a("s_and_saveexec_b64 s[46:47], vcc")
    for q in range(4):
        a(f"buffer_store_dwordx4 {v(16+4*q,4)}, v13, s[8:11], s44 offen offset:{16*q}{SC1}")
    a("s_mov_b64 exec, -1")
    a.label("p0_kv_arrive")
    a("s_cmp_eq_u32 s15, 0")
    a("s_cbranch_scc1 p0_kv_real")
    a("s_mov_b32 s15, 0")
    a("s_branch p0_kv_setup")
    a.label("p0_kv_real")
    pfA.stamp(10)
    a("s_mov_b32 s16, 1")
    a("s_branch p0_kv_b0")
    a.label("p0_kv_none")
    a("s_mov_b32 s16, 0")
    a.label("p0_kv_b0")
    a("s_setprio 0")
    a("s_waitcnt lgkmcnt(0)")
    a("s_barrier")
    pfA.stamp(3)
    a("s_branch p0_b1")
    a.label("p0_bgw")
    a(f"s_cmp_eq_u32 s{WV}, 8")
    a("s_cbranch_scc0 p0_t9")
    srd(a, 48, S_X, XBYTES)
    a("s_and_b32 s3, s2, 7")
    a(f"s_mul_i32 s3, s3, {256*896}")
    a("s_lshr_b32 s46, s2, 3")
    a("s_mul_i32 s46, s46, 7168")
    a("s_add_u32 s3, s3, s46")
    a("v_lshlrev_b32 v50, 7, v0")
    a("s_mov_b32 exec_hi, 0xffffff")
    a("buffer_load_dword v52, v50, s[48:51], s3 offen")
    a("s_mov_b64 exec, -1")
    a("s_branch p0_t_done")
    a.label("p0_t9")
    a(f"s_cmp_eq_u32 s{WV}, 9")
    a("s_cbranch_scc0 p0_t10")
    touch_matrix(a, S_WQ, 52, 50)
    a("s_branch p0_t_done")
    a.label("p0_t10")
    a(f"s_cmp_eq_u32 s{WV}, 10")
    a("s_cbranch_scc0 p0_t_done")
    a("s_lshr_b32 s3, s2, 3")
    a(f"s_mul_i32 s3, s3, {7*128}")
    a("v_lshlrev_b32 v50, 7, v0")
    a("s_mov_b64 exec, 0x7f")
    srd(a, 48, S_WK, WKBYTES)
    a("buffer_load_dword v52, v50, s[48:51], s3 offen")
    srd(a, 48, S_WV, WKBYTES)
    a("buffer_load_dword v53, v50, s[48:51], s3 offen")
    a("s_mov_b64 exec, -1")
    a.label("p0_t_done")
    a(f"s_cmp_eq_u32 s{WV}, 11")
    a("s_cbranch_scc0 p0_nononce")
    a("s_cmp_eq_u32 s2, 0")
    a("s_cbranch_scc0 p0_nononce")
    srd(a, 48, S_DBG, 256)
    a("v_mov_b32 v7, 0")
    a("s_memrealtime s[60:61]")
    a("s_waitcnt lgkmcnt(0)")
    a("s_and_b32 s60, s60, 0xfffffffc")
    a("s_or_b32 s60, s60, 1")
    a("v_mov_b32 v6, s60")
    a("s_mov_b64 exec, 1")
    a(f"buffer_store_dword v6, v7, s[48:51], 0 offen offset:{D_NONCE}{SC1}")
    a("s_mov_b64 exec, -1")
    a.label("p0_nononce")
    a(f"s_cmp_eq_u32 s{J2}, 2")
    a("s_cbranch_scc0 p0_wkv_done")
    a(f"s_cmp_eq_u32 s{WV}, 8")
    a("s_cbranch_scc0 p0_wkv_done")
    srd(a, TR, S_GW, 896)
    a("v_lshlrev_b32 v3, 1, v0")
    for i in range(7):
        a(f"buffer_load_ushort v{10+i}, v3, s[{TR}:{TR+3}], 0 offen offset:{i*128}")
    a("v_lshlrev_b32 v4, 3, v0")
    a(f"v_add_u32 v4, {L_WKV}, v4")
    a("s_waitcnt vmcnt(0)")
    for i in range(7):
        a(f"v_lshl_or_b32 v{20+2*i}, v{10+i}, 16, v{10+i}")
        a(f"v_mov_b32 v{21+2*i}, v{20+2*i}")
        a(f"ds_write_b64 v4, {v(20+2*i,2)} offset:{i*512}")
    a.label("p0_wkv_done")
    a(f"s_lshl_b32 s37, s{J2}, 1")
    a(f"s_and_b32 s3, s{BW}, 1")
    a("s_add_u32 s37, s37, s3")
    a("v_and_b32 v4, 31, v0")
    a("s_lshl_b32 s3, s37, 6")
    a("v_lshl_add_u32 v4, v4, 1, s3")
    srd(a, 40, S_LRE, 896); a("buffer_load_ushort v8, v4, s[40:43], 0 offen")
    srd(a, 44, S_LIM, 896); a("buffer_load_ushort v9, v4, s[44:47], 0 offen")
    srd(a, 52, S_LDT, 896); a("buffer_load_ushort v10, v4, s[52:55], 0 offen")
    a("s_barrier")
    a("s_waitcnt vmcnt(3) lgkmcnt(0)")
    lds_arrive(a, C_XR, 4, 5)
    srd(a, TR, S_WQ, WBYTES)
    a("v_lshrrev_b32 v3, 3, v0")
    a("v_mul_u32_u24 v3, 896, v3")
    a("v_and_b32 v4, 7, v0")
    a("v_lshl_add_u32 v3, v4, 4, v3")
    a(f"s_mul_i32 s32, s{BW}, {112*896}")
    a(f"s_mul_i32 s33, s{J2}, 112")
    a("s_add_u32 s32, s32, s33")
    a(f"s_mul_i32 s34, s{BW}, 14336")
    a(f"s_add_u32 s34, s34, {L_WQ}")
    a("s_mov_b32 m0, s34")
    dma_loop(a, "p0_qdma", 3, 14, 7168, 1024)
    a(f"s_cmp_gt_u32 s{WV}, 9")
    a("s_cbranch_scc1 p0_nob")
    a(f"s_cmp_eq_u32 s{WV}, 8")
    a(f"s_cselect_b32 s56, s{S_BRE}, s{S_BIM}")
    a(f"s_cselect_b32 s57, s{S_BRE+1}, s{S_BIM+1}")
    touch_matrix(a, 56, 52, 50)
    a("s_mov_b32 s17, 1")
    a("s_waitcnt vmcnt(16)")
    a("s_branch p0_nob2")
    a.label("p0_nob")
    a("s_mov_b32 s17, 0")
    a("s_waitcnt vmcnt(14)")
    a.label("p0_nob2")
    a(f"v_mov_b32 v4, {L_CNT}")
    lds_wait(a, C_XR, 8, 4, 5, "p0_xr2")
    xfrag_addr(a, 6, 0, 4)
    a(f"s_lshr_b32 s38, s{BW}, 1")
    a("s_lshl_b32 s3, s38, 11")
    a("v_add_u32 v6, s3, v6")
    a("v_xor_b32 v7, 32, v6")
    for j in range(28):
        a(f"ds_read_b128 {v(56+4*j,4)}, v{6 + (j&1)} offset:{(j>>1)*4096}")
        if j in (11, 21): a("s_waitcnt lgkmcnt(2)")
    a("v_lshlrev_b32 v8, 16, v8")
    a("v_lshlrev_b32 v9, 16, v9")
    a("v_lshlrev_b32 v10, 16, v10")
    a(f"v_mul_f32 v10, {hex(LOG2E)}, v10")
    a("v_exp_f32 v10, v10")
    a("s_nop 0")
    a("v_cvt_pk_bf16_f32 v10, v10, v10")
    a("v_lshlrev_b32 v10, 16, v10")
    a("v_mul_f32 v11, v10, v8")
    a("v_mul_f32 v12, v10, v9")
    a(f"v_mul_f32 v11, {hex(LOG2E)}, v11")
    a(f"v_mul_f32 v12, {hex(INV2PI)}, v12")
    a("v_exp_f32 v13, v11")
    a("v_fract_f32 v14, v12")
    a("s_nop 0")
    a("v_cos_f32 v2, v14")
    a("v_sin_f32 v3, v14")
    a("s_nop 0")
    a("v_mul_f32 v2, v2, v13")
    a("v_mul_f32 v3, v3, v13")
    a("v_add_f32 v13, -1.0, v2")
    a("v_mul_f32 v14, v8, v8")
    a("v_fma_f32 v14, v9, v9, v14")
    a("v_rcp_f32 v14, v14")
    a("v_mul_f32 v15, v13, v8")
    a("v_fma_f32 v15, v3, v9, v15")
    a("v_mul_f32 v16, v3, v8")
    a("v_fma_f32 v16, -v13, v9, v16")
    a("v_mul_f32 v4, v15, v14")
    a("v_mul_f32 v5, v16, v14")
    a("s_cmp_eq_u32 s17, 0")
    a("s_cbranch_scc1 p0_bgw0")
    a("s_waitcnt vmcnt(2) lgkmcnt(0)")
    a("s_branch p0_bgw1")
    a.label("p0_bgw0")
    a("s_waitcnt vmcnt(0) lgkmcnt(0)")
    a.label("p0_bgw1")
    a("s_barrier")
    a.label("p0_b1")
    a("s_waitcnt lgkmcnt(0)")
    if PROF:
        a(f"s_cmp_ge_u32 s{WV}, 8")
        a("s_cbranch_scc1 p0_b1_bgst")
        pfA.stamp(9)
        a("s_branch p0_b1_go")
        a.label("p0_b1_bgst")
        BgProf(a).stamp(4)
        a.label("p0_b1_go")
    a("s_barrier")
    a(f"s_cmp_ge_u32 s{WV}, 8")
    a("s_cbranch_scc1 p1_bg")
    a(f"s_cmp_lt_u32 s{WV}, 4")
    a("s_cbranch_scc1 p1_noarr")
    a("s_cmp_eq_u32 s16, 0")
    a("s_cbranch_scc1 p1_noarr")
    a(f"v_mov_b32 v14, {L_CNT}")
    a("v_mov_b32 v15, 1")
    a("s_waitcnt vmcnt(0)")
    pfA.stamp(11)
    a("s_mov_b64 exec, 1")
    a(f"s_or_b32 s3, s{RB}, s{J2}")
    a(f"s_cmp_eq_u32 s{WV}, 4")
    a("s_cselect_b32 s3, s3, 1")
    a("s_cmp_eq_u32 s3, 0")
    a("s_cbranch_scc0 p1_nok0")
    srd(a, 48, S_DBG, 256)
    a("v_mov_b32 v12, 1")
    a(f"v_mov_b32 v13, {D_K0}")
    a(f"buffer_store_dword v12, v13, s[48:51], 0 offen{SC1}")
    a.label("p1_nok0")
    a(f"ds_add_rtn_u32 v15, v14, v15 offset:{C_KVA}")
    a("s_waitcnt lgkmcnt(0)")
    a("v_readfirstlane_b32 s3, v15")
    a("s_cmp_eq_u32 s3, 1")
    a("s_cbranch_scc0 p1_arrdone")
    srd(a, 48, S_DBG, 256)
    a("v_mov_b32 v14, 1")
    a(f"s_cmp_eq_u32 s{J2}, 2")
    a(f"s_cselect_b32 s3, {D_GCNT}, {D_CNT}")
    a("v_mov_b32 v15, s3")
    a("buffer_atomic_add v14, v15, s[48:51], 0 offen sc0 sc1")
    a("s_waitcnt vmcnt(0)")
    a("v_readfirstlane_b32 s3, v14")
    a(f"s_cmp_eq_u32 s{J2}, 2")
    a("s_cselect_b32 s46, 31, 63")
    a(f"s_mov_b32 s47, {D_GO}")
    a(f"s_cselect_b32 s47, {D_GOG}, s47")
    a("s_cmp_eq_u32 s3, s46")
    a("s_cbranch_scc0 p1_arrdone")
    a("v_mov_b32 v14, 1")
    a("v_mov_b32 v15, s47")
    a(f"buffer_store_dword v14, v15, s[48:51], 0 offen{SC1}")
    a.label("p1_arrdone")
    a("s_mov_b64 exec, -1")
    pfA.stamp(12)
    a.label("p1_noarr")
    if PROF: a("v_mov_b32 v0, v167")
    pf = Prof(a, 0)
    pf.stamp(4)
    gen_attention(a, pf)
    pf.flush(2)
    a(f"s_branch {END}")
    a.label("p1_bg")
    a("s_setprio 3")
    gen_background(a, BgProf(a))
    a.label(END)
    a("s_endpgm")
    return name

class BgProf:
    def __init__(self, a): self.a = a; self.T = [54, 55]
    def stamp(self, slot):
        if not PROF or "noprofb" in X: return
        if "onlyb" in os.environ and str(slot) not in os.environ["onlyb"].split(","): return
        a = self.a
        a("s_memrealtime s[60:61]")
        a("s_lshl_b32 s62, s2, 4")
        a(f"s_add_u32 s62, s62, s{WV}")
        a("s_lshl_b32 s62, s62, 8")
        a(f"s_add_u32 s62, s62, {WS_PROF + 4*slot}")
        a("s_waitcnt vmcnt(0) lgkmcnt(0)")
        a("s_mov_b64 exec, 1")
        t0, t1 = self.T
        a(f"v_mov_b32 v{t0}, s60")
        a(f"v_mov_b32 v{t1}, 0")
        a(f"buffer_store_dword v{t0}, v{t1}, s[{WSR}:{WSR+3}], s62 offen")
        a("s_mov_b64 exec, -1")
        a("s_waitcnt vmcnt(0)")
    def flush(self): pass

def build():
    a = Asm()
    name = gen_fused(a)
    text = a.text()
    probs = check_hazards(text)
    ref = open("gated_mix__grouped_kv_mqa__ssm_conv_s5__prompt.s.ref").read().split("\n")
    pre = []
    for ln in ref:
        if not ln.startswith(";"): break
        if "Override launch" in ln or "grid=ceil" in ln or "@launch" in ln: continue
        pre.append(ln)
    head = "\n".join(pre) + "\n"
    head += f"; @launch grid=(256,1,1) block=(768,1,1) lds={LDS_TOTAL}\n"
    out = head + '.amdgcn_target "amdgcn-amd-amdhsa--gfx950"\n.text\n' + text
    out += f""".section .rodata,"a"
.p2align 6
.amdhsa_kernel {name}
  .amdhsa_next_free_vgpr 168
  .amdhsa_next_free_sgpr 102
  .amdhsa_accum_offset 168
  .amdhsa_group_segment_fixed_size 0
  .amdhsa_kernarg_size 144
  .amdhsa_user_sgpr_count 2
  .amdhsa_user_sgpr_kernarg_segment_ptr 1
  .amdhsa_system_sgpr_workgroup_id_x 1
.end_amdhsa_kernel
"""
    return out, probs

if __name__ == "__main__":
    out, probs = build()
    open(sys.argv[1], "w").write(out)
    print("wrote", sys.argv[1], "hazards:", len(probs))
```

```python
import sys, os, struct, math
from asmlib import Asm, v, s, check_hazards

NAME = "gated_mix__grouped_kv_mqa__ssm_conv_s5__prompt"
X = set(os.environ.get('XF', '').split(','))
PROF = "prof" in X
def f2u(x): return struct.unpack("<I", struct.pack("<f", x))[0]
QSCALE = f2u(math.log2(math.e) / math.sqrt(28.0))
LOG2E = f2u(math.log2(math.e))
INV2PI = f2u(1.0 / (2.0 * math.pi))
MF = "v_mfma_f32_32x32x16_bf16"
SC1 = " sc1"
POLLSLEEP = int(os.environ.get('PS', '1'))

WS_KV = 0x000000
WS_G  = 0x040000
WS_FL = 0x042000
FL_H  = WS_FL
FL_O  = WS_FL + 0x1000
WS_E  = 0x048000
D_CNT, D_GCNT, D_GO, D_BAD, D_K0, D_NONCE, D_GOG = 0, 64, 128, 132, 136, 140, 144
WS_OF = 0x080000
WS_HF = 0x280000
WS_PROF = 0x800000
WS_SIZE = 0x1000000
XBYTES = 2048 * 448 * 2
WBYTES = 448 * 448 * 2
WKBYTES = 448 * 28 * 2
OUTBYTES = 2048 * 448 * 4

S_X, S_WQ, S_WK, S_WV, S_WO = 64, 66, 68, 70, 72
S_LRE, S_LIM = 76, 78
S_BRE, S_BIM, S_CRE, S_CIM, S_LDT, S_DSK, S_GW, S_OUT = 80, 82, 84, 86, 88, 90, 92, 94
S_DBG, S_WS = 96, 98
RB, J2, WV, BW = 20, 21, 22, 23
WSR = 24
TR = 28
NONCE = 19
SPIN = 18

L_X = 0; L_WQ = 57344; L_WKV = 114688; L_GW = 143360
L_QX = 147456
L_CNT = 163584
C_ATT, C_BG, C_NONCE, C_BAD, C_UDONE, C_HCNT, C_OCNT, C_XR, C_KVR, C_KVA, C_TRD, C_LEND, C_BL = 0, 4, 8, 12, 16, 20, 24, 28, 32, 40, 44, 48, 52
B_EX = 159744; B_HT = 90112
B_HT2 = 69632
L_C = 0
L_RED = 0
L_WO = 0
A_OP = 90112; A_LP = 155648
LDS_TOTAL = 163840

def srd(a, dst, src, nbytes):
    a(f"s_mov_b32 s{dst}, s{src}")
    a(f"s_mov_b32 s{dst+1}, s{src+1}")
    a(f"s_mov_b32 s{dst+2}, {hex(nbytes)}")
    a(f"s_mov_b32 s{dst+3}, 0x00020000")

class Prof:
    def __init__(self, a, vreg): self.a = a; self.v = vreg
    def stamp(self, slot):
        if not PROF or "noprofa" in X: return
        a = self.a
        a("s_memrealtime s[60:61]")
        a("s_memtime s[62:63]")
        a("s_waitcnt lgkmcnt(0)")
        a(f"v_writelane_b32 v{self.v}, s60, {slot}")
        a(f"v_writelane_b32 v{self.v}, s62, {slot+32}")
    def flush(self, vt):
        if not PROF: return
        a = self.a
        a("s_lshl_b32 s60, s2, 4")
        a(f"s_add_u32 s60, s60, s{WV}")
        a("s_lshl_b32 s60, s60, 8")
        a(f"s_add_u32 s60, s60, {WS_PROF}")
        a("s_mov_b64 exec, -1")
        a(f"v_mbcnt_lo_u32_b32 v{vt}, -1, 0")
        a(f"v_mbcnt_hi_u32_b32 v{vt}, -1, v{vt}")
        a(f"v_lshlrev_b32 v{vt}, 2, v{vt}")
        a(f"buffer_store_dword v{self.v}, v{vt}, s[{WSR}:{WSR+3}], s60 offen")
        a("s_waitcnt vmcnt(0)")

def xtile_lane_off(a, vd, vlane, vt0, vt1):
    a(f"v_lshrrev_b32 v{vt0}, 4, v{vlane}")
    a(f"v_and_b32 v{vt1}, 1, v{vt0}")
    a(f"v_lshlrev_b32 v{vt1}, 4, v{vt1}")
    a(f"v_lshrrev_b32 v{vd}, 5, v{vlane}")
    a(f"v_lshl_add_u32 v{vt1}, v{vd}, 2, v{vt1}")
    a(f"v_bfe_u32 v{vd}, v{vlane}, 2, 2")
    a(f"v_add_u32 v{vt1}, v{vt1}, v{vd}")
    a(f"v_mul_u32_u24 v{vt1}, 896, v{vt1}")
    a(f"v_and_b32 v{vd}, 3, v{vlane}")
    a(f"v_xor_b32 v{vd}, v{vd}, v{vt0}")
    a(f"v_lshl_add_u32 v{vd}, v{vd}, 4, v{vt1}")

def plain_lane_off(a, vd, vlane, vt0):
    a(f"v_lshrrev_b32 v{vt0}, 4, v{vlane}")
    a(f"v_and_b32 v{vd}, 3, v{vlane}")
    a(f"v_xor_b32 v{vd}, v{vd}, v{vt0}")
    a(f"v_lshlrev_b32 v{vd}, 4, v{vd}")
    a(f"v_lshrrev_b32 v{vt0}, 2, v{vlane}")
    a(f"v_mul_u32_u24 v{vt0}, 896, v{vt0}")
    a(f"v_add_u32 v{vd}, v{vd}, v{vt0}")

def xfrag_addr(a, vd, vlane, vt0):
    a(f"v_bfe_u32 v{vt0}, v{vlane}, 2, 2")
    a(f"v_lshrrev_b32 v{vd}, 5, v{vlane}")
    a(f"v_xor_b32 v{vt0}, v{vt0}, v{vd}")
    a(f"v_lshlrev_b32 v{vt0}, 4, v{vt0}")
    a(f"v_and_b32 v{vd}, 31, v{vlane}")
    a(f"v_lshl_add_u32 v{vd}, v{vd}, 6, v{vt0}")

def tr_rowcol(a, vrow, vcol, vlane, vt):
    a(f"v_lshrrev_b32 v{vrow}, 5, v{vlane}")
    a(f"v_lshlrev_b32 v{vrow}, 3, v{vrow}")
    a(f"v_bfe_u32 v{vt}, v{vlane}, 2, 2")
    a(f"v_add_u32 v{vrow}, v{vrow}, v{vt}")
    a(f"v_and_b32 v{vcol}, 16, v{vlane}")
    a(f"v_and_b32 v{vt}, 3, v{vlane}")
    a(f"v_lshl_add_u32 v{vcol}, v{vt}, 2, v{vcol}")

def proj_loop(a, swap, acc, xe, xo, we, wo_, vxe, vxo, vw1, vw2, s_wstep, s_cnt, lab):
    def rd(xr, wr, vx):
        a(f"ds_read_b128 {v(xr,4)}, v{vx}")
        a(f"ds_read_b64_tr_b16 {v(wr,2)}, v{vw1}")
        a(f"ds_read_b64_tr_b16 {v(wr+2,2)}, v{vw2}")
        a(f"v_add_u32 v{vx}, 0x1000, v{vx}")
        a(f"v_add_u32 v{vw1}, s{s_wstep}, v{vw1}")
        a(f"v_add_u32 v{vw2}, s{s_wstep}, v{vw2}")
    def mf(x, w):
        A, B = (x, w) if swap else (w, x)
        a(f"{MF} {v(acc,16)}, {v(A,4)}, {v(B,4)}, {v(acc,16)}")
    rd(xe, we, vxe); rd(xo, wo_, vxo)
    a(f"s_mov_b32 s{s_cnt}, 14")
    a.label(lab)
    a("s_waitcnt lgkmcnt(3)")
    mf(xe, we)
    rd(xe, we, vxe)
    a("s_waitcnt lgkmcnt(3)")
    mf(xo, wo_)
    rd(xo, wo_, vxo)
    a(f"s_sub_u32 s{s_cnt}, s{s_cnt}, 1")
    a(f"s_cmp_lg_u32 s{s_cnt}, 0")
    a(f"s_cbranch_scc1 {lab}")
    a("s_waitcnt lgkmcnt(0)")

def sw_barrier(a, coff, s_tgt, n, vaddr, vtmp, lab):
    a(f"s_add_u32 s{s_tgt}, s{s_tgt}, {n}")
    a(f"v_mov_b32 v{vtmp}, 1")
    a("s_waitcnt lgkmcnt(0)")
    a("s_mov_b64 exec, 1")
    a(f"ds_add_u32 v{vaddr}, v{vtmp} offset:{coff}")
    a("s_mov_b64 exec, -1")
    a.label(lab)
    a(f"ds_read_b32 v{vtmp}, v{vaddr} offset:{coff}")
    a("s_waitcnt lgkmcnt(0)")
    a(f"v_readfirstlane_b32 s3, v{vtmp}")
    a(f"s_cmp_ge_u32 s3, s{s_tgt}")
    a(f"s_cbranch_scc1 {lab}_ok")
    a("s_sleep 1")
    a(f"s_sub_u32 s{SPIN}, s{SPIN}, 1")
    a(f"s_cbranch_scc0 {lab}")
    a(f"s_mov_b32 s{SPIN}, 0")
    a.label(lab + "_ok")

def flag_store(a, soff_reg, vt0, vt1, val=None):
    a("s_mov_b64 exec, 1")
    a(f"v_mov_b32 v{vt0}, s{val if val is not None else NONCE}")
    a(f"v_mov_b32 v{vt1}, 0")
    a(f"buffer_store_dword v{vt0}, v{vt1}, s[{WSR}:{WSR+3}], s{soff_reg} offen{SC1}")
    a("s_mov_b64 exec, -1")

def arrive_flag(a, coff, n, soff_reg, vt0, vt1, lab):
    a(f"v_mov_b32 v{vt0}, {L_CNT}")
    a(f"v_mov_b32 v{vt1}, 1")
    a("s_waitcnt vmcnt(0)")
    a("s_mov_b64 exec, 1")
    a(f"ds_add_rtn_u32 v{vt1}, v{vt0}, v{vt1} offset:{coff}")
    a("s_waitcnt lgkmcnt(0)")
    a(f"v_readfirstlane_b32 s60, v{vt1}")
    a("s_mov_b64 exec, -1")
    a(f"s_cmp_eq_u32 s60, {n-1}")
    a(f"s_cbranch_scc0 {lab}")
    flag_store(a, soff_reg, vt0, vt1)
    a.label(lab)

def poll(a, lab, vdst, voff, soff_reg, mask_pair, sleep=None):
    sleep = POLLSLEEP if sleep is None else sleep
    a.label(lab)
    a(f"buffer_load_dword v{vdst}, v{voff}, s[{WSR}:{WSR+3}], s{soff_reg} offen{SC1}")
    a("s_waitcnt vmcnt(0)")
    a(f"v_cmp_ne_u32 vcc, s{NONCE}, v{vdst}")
    a(f"s_and_b64 vcc, vcc, s[{mask_pair}:{mask_pair+1}]")
    a(f"s_cbranch_vccz {lab}_ok")
    a(f"s_sleep {sleep}")
    a(f"s_sub_u32 s{SPIN}, s{SPIN}, 1")
    a(f"s_cbranch_scc0 {lab}")
    a(f"s_mov_b32 s{SPIN}, 0")
    a.label(lab + "_ok")

def cfma(a, hr, hi, lr, li, ur, ui, tr, ti):
    a(f"v_fma_f32 v{tr}, -v{li}, v{hi}, v{ur}")
    a(f"v_fma_f32 v{ti}, v{li}, v{hr}, v{ui}")
    a(f"v_fma_f32 v{hr}, v{lr}, v{hr}, v{tr}")
    a(f"v_fma_f32 v{hi}, v{lr}, v{hi}, v{ti}")

L_JUNK = 161792
def touch_matrix(a, sptr, vdst, vt, sr=48):
    srd(a, sr, sptr, WBYTES)
    a("s_lshr_b32 s3, s2, 3")
    a(f"s_mul_i32 s3, s3, {98*128}")
    a(f"v_lshlrev_b32 v{vt}, 7, v0")
    a(f"s_mov_b32 m0, {L_JUNK}")
    a("s_nop 0")
    a(f"buffer_load_dword v{vt}, s[{sr}:{sr+3}], s3 offen lds")
    a("s_add_u32 s3, s3, 8192")
    a("s_mov_b32 exec_hi, 3")
    a(f"buffer_load_dword v{vt}, s[{sr}:{sr+3}], s3 offen lds")
    a("s_mov_b64 exec, -1")

AQ, AO, AS, AK, AV, APB = 8, 40, [104, 120], [136, 144], [152, 160], 4

def att_unit(a, u, side):
    up = u - 1; un = u + 1
    cur = AS[u & 1]; prv = AS[(u + 1) & 1]
    Vp = AV[(up >> 2) & 1]; Op = AO + 16 * (up & 3)
    Kn = AK[(un >> 2) & 1]; Qn = AQ + 8 * (un & 3)
    side = list(side)
    def E(lo, hi):
        for j in range(lo, hi):
            a(f"v_exp_f32 v{cur+j}, v{cur+j}")
            if side:
                x = side.pop(0)
                if x: a(x)
    while side and isinstance(side[0], tuple):
        a(side.pop(0)[1])
    a(f"{MF} {v(Op,16)}, {v(Vp,4)}, {v(prv,4)}, {v(Op,16)}")
    E(0, 4)
    a(f"v_cvt_pk_bf16_f32 v{APB+2}, v{prv+12}, v{prv+13}")
    a(f"v_cvt_pk_bf16_f32 v{APB+3}, v{prv+14}, v{prv+15}")
    a(f"{MF} {v(prv,16)}, {v(Kn,4)}, {v(Qn,4)}, 0")
    E(4, 8)
    a(f"v_cvt_pk_bf16_f32 v{cur}, v{cur}, v{cur+1}")
    a(f"v_cvt_pk_bf16_f32 v{cur+1}, v{cur+2}, v{cur+3}")
    a(f"{MF} {v(prv,16)}, {v(Kn+4,4)}, {v(Qn+4,4)}, {v(prv,16)}")
    E(8, 12)
    a(f"v_cvt_pk_bf16_f32 v{cur+2}, v{cur+4}, v{cur+5}")
    a(f"v_cvt_pk_bf16_f32 v{cur+3}, v{cur+6}, v{cur+7}")
    a(f"{MF} {v(Op,16)}, {v(Vp+4,4)}, {v(APB,4)}, {v(Op,16)}")
    E(12, 16)
    a(f"v_cvt_pk_bf16_f32 v{APB}, v{cur+8}, v{cur+9}")
    a(f"v_cvt_pk_bf16_f32 v{APB+1}, v{cur+10}, v{cur+11}")
    assert not side, side

L_SEL = 162560
L_SH = 162048
LMAX = f2u(2.0 ** 90) if "forcefb" not in X else f2u(2.0 ** -20)
VMAX = f2u(2.0 ** 20)

def gen_attention(a, pf):
    P = "att"
    KR = TR
    a(f"v_add_u32 v2, {L_QX}, v1")
    for g in range(4):
        a(f"ds_read_b128 {v(AQ+8*g,4)}, v2 offset:{g*2048}")
        a(f"ds_read_b128 {v(AQ+8*g+4,4)}, v2 offset:{g*2048+1024}")
    a(f"s_add_u32 s{KR}, s{WSR}, {WS_KV}")
    a(f"s_addc_u32 s{KR+1}, s{WSR+1}, 0")
    a(f"s_mov_b32 s{KR+3}, 0x00020000")
    a("s_mov_b32 s44, 0")
    a("s_mov_b32 s51, 0")
    a(f"s_cmp_lt_u32 s{WV}, 4")
    a("s_cselect_b32 s53, 1, -1")
    a(f"s_cmp_eq_u32 s{WV}, 7")
    a(f"s_cbranch_scc0 {P}_nosel")
    a("v_lshrrev_b32 v104, 4, v1")
    a("v_and_b32 v105, 31, v104")
    a("v_lshrrev_b32 v104, 5, v104")
    a("v_lshlrev_b32 v104, 2, v104")
    a("v_sub_u32 v105, v105, v104")
    for j in range(4):
        d0 = (2 * j & 3) + 8 * ((2 * j) >> 2)
        a(f"v_cmp_eq_u32 vcc, {d0}, v105")
        a(f"v_mov_b32 v106, 0x3f80")
        a("s_nop 0")
        a(f"v_cndmask_b32 v{108+j}, 0, v106, vcc")
        a(f"v_cmp_eq_u32 vcc, {d0+1}, v105")
        a(f"v_mov_b32 v106, 0x3f800000")
        a("s_nop 0")
        a(f"v_cndmask_b32 v107, 0, v106, vcc")
        a(f"v_or_b32 v{108+j}, v{108+j}, v107")
    a(f"v_add_u32 v104, {L_SEL}, v1")
    a("ds_write_b128 v104, v[108:111]")
    a.label(P + "_nosel")
    srd(a, 56, S_DBG, 256)
    def phaseA():
        a(f"s_cmp_eq_u32 s{WV}, 0")
        a(f"s_cbranch_scc0 {P}_nopollA")
        a(f"v_mov_b32 v2, {D_K0}")
        a.label(P + "_pollA")
        a(f"buffer_load_dword v104, v2, s[56:59], 0 offen{SC1}")
        a("s_waitcnt vmcnt(0)")
        a("v_readfirstlane_b32 s3, v104")
        a("s_cmp_lg_u32 s3, 0")
        a(f"s_cbranch_scc1 {P}_nopollA")
        a(f"s_sleep {POLLSLEEP}")
        a(f"s_sub_u32 s{SPIN}, s{SPIN}, 1")
        a(f"s_cbranch_scc0 {P}_pollA")
        a(f"s_mov_b32 s{SPIN}, 0")
        a.label(P + "_nopollA")
        a(f"v_mov_b32 v3, {L_CNT}")
        sw_barrier(a, C_ATT, 44, 8, 3, 2, P + "_ba")
    def shiftblk():
        a(f"s_mov_b32 s{KR+2}, 0x40000")
        a(f"s_cmp_ge_u32 s{WV}, 4")
        a(f"s_cbranch_scc1 {P}_shwait")
        a(f"buffer_load_dwordx4 {v(AS[1],4)}, v1, s[{KR}:{KR+3}], 0 offen{SC1}")
        a(f"buffer_load_dwordx4 {v(AS[1]+4,4)}, v1, s[{KR}:{KR+3}], 0 offen offset:1024{SC1}")
        a(f"s_lshl_b32 s3, s{WV}, 11")
        a(f"s_add_u32 s3, s3, {L_QX}")
        a("v_add_u32 v2, s3, v1")
        a(f"ds_read_b128 {v(AO,4)}, v2")
        a(f"ds_read_b128 {v(AO+4,4)}, v2 offset:1024")
        a("s_waitcnt vmcnt(0) lgkmcnt(0)")
        o = AO + 16
        a(f"{MF} {v(o,16)}, {v(AS[1],4)}, {v(AO,4)}, 0")
        a(f"{MF} {v(o,16)}, {v(AS[1]+4,4)}, {v(AO+4,4)}, {v(o,16)}")
        a(f"s_lshl_b32 s3, s{WV}, 7")
        a(f"s_add_u32 s3, s3, {L_SH}")
        a("v_lshrrev_b32 v3, 2, v1")
        a("v_and_b32 v3, 127, v3")
        a("v_add_u32 v3, s3, v3")
        a("s_nop 7")
        a(f"v_max3_f32 v2, v{o}, v{o+1}, v{o+2}")
        for j in range(3, 15, 2):
            a(f"v_max3_f32 v2, v2, v{o+j}, v{o+j+1}")
        a(f"v_max_f32 v2, v2, v{o+15}")
        a(f"v_mov_b32 v{AO}, v2")
        a("s_nop 1")
        a(f"v_permlane32_swap_b32 v2, v{AO}")
        a(f"v_max_f32 v2, v2, v{AO}")
        a("v_cvt_pk_bf16_f32 v2, -v2, 0")
        a("s_mov_b32 exec_hi, 0")
        a("ds_write_b32 v3, v2")
        a("s_mov_b64 exec, -1")
        a.label(P + "_shwait")
        a(f"v_mov_b32 v3, {L_CNT}")
        sw_barrier(a, C_ATT, 44, 8, 3, 2, P + "_bs")
        a("v_lshrrev_b32 v3, 2, v1")
        a("v_and_b32 v3, 127, v3")
        a(f"v_add_u32 v3, {L_SH}, v3")
        for g in range(4): a(f"ds_read_b32 v{AO+g}, v3 offset:{g*128}")
        a("s_waitcnt lgkmcnt(0)")
        a("s_mov_b32 exec_lo, 0")
        for g in range(4): a(f"v_mov_b32 v{AQ+8*g+6}, v{AO+g}")
        a("s_mov_b32 exec_lo, -1")
    def phaseB():
        a(f"s_cmp_eq_u32 s{WV}, 0")
        a(f"s_cbranch_scc0 {P}_nopoll")
        a(f"v_mov_b32 v2, {D_GO}")
        a.label(P + "_poll")
        a(f"buffer_load_dwordx2 v[104:105], v2, s[56:59], 0 offen{SC1}")
        a("s_waitcnt vmcnt(0)")
        a("v_readfirstlane_b32 s3, v104")
        a("s_cmp_lg_u32 s3, 0")
        a(f"s_cbranch_scc1 {P}_pollok")
        a(f"s_sleep {POLLSLEEP}")
        a(f"s_sub_u32 s{SPIN}, s{SPIN}, 1")
        a(f"s_cbranch_scc0 {P}_poll")
        a(f"s_mov_b32 s{SPIN}, 0")
        a.label(P + "_pollok")
        a(f"v_mov_b32 v3, {L_CNT}")
        a("s_mov_b64 exec, 1")
        a(f"ds_add_u32 v3, v105 offset:{C_BAD}")
        a("s_mov_b64 exec, -1")
        a.label(P + "_nopoll")
        a(f"v_mov_b32 v3, {L_CNT}")
        sw_barrier(a, C_ATT, 44, 8, 3, 2, P + "_b0")
        pf.stamp(5)
        a("s_lshr_b32 s52, s2, 3")
        a("s_lshl_b32 s52, s52, 3")
        a(f"s_add_u32 s52, s52, s{WV}")
        a("s_lshl_b32 s52, s52, 10")
    def mainloads():
        a.label(P + "_restart")
        a(f"s_mov_b32 s{KR+2}, 0x40000")
        a(f"s_lshl_b32 s43, s{WV}, 15")
        a(f"buffer_load_dwordx4 {v(AK[0],4)}, v1, s[{KR}:{KR+3}], s43 offen{SC1}")
        a(f"buffer_load_dwordx4 {v(AK[0]+4,4)}, v1, s[{KR}:{KR+3}], s43 offen offset:1024{SC1}")
        a(f"buffer_load_dwordx4 {v(AV[0],4)}, v1, s[{KR}:{KR+3}], s43 offen offset:2048{SC1}")
        a(f"buffer_load_dwordx4 {v(AV[0]+4,4)}, v1, s[{KR}:{KR+3}], s43 offen offset:3072{SC1}")
        a("s_add_u32 s43, s43, 4096")
        a(f"buffer_load_dwordx4 {v(AK[1],4)}, v1, s[{KR}:{KR+3}], s43 offen{SC1}")
        a(f"buffer_load_dwordx4 {v(AK[1]+4,4)}, v1, s[{KR}:{KR+3}], s43 offen offset:1024{SC1}")
        a(f"s_lshl_b32 s3, s{WV}, 9")
        a(f"s_mov_b32 m0, {L_JUNK}")
        a("v_lshlrev_b32 v2, 3, v1")
        a("s_mov_b64 exec, 0xff")
        a(f"buffer_load_dword v2, s[{KR}:{KR+3}], s52 offen{SC1} lds")
        a("s_mov_b64 exec, -1")
        for j in range(4): a(f"v_mov_b32 v{APB+j}, 0")
        for j in range(8): a(f"v_mov_b32 v{AV[1]+j}, 0")
    if "lateshift" in X:
        phaseB(); mainloads()
        a("s_cmp_lg_u32 s51, 0")
        a(f"s_cbranch_scc1 {P}_haveshift")
        shiftblk()
    else:
        phaseA(); shiftblk(); phaseB(); mainloads()
    a.label(P + "_haveshift")
    for j in (0, 1, 2, 3, 12, 13, 14, 15): a(f"v_mov_b32 v{AS[1]+j}, 0")
    a(f"s_and_b32 s3, s{WV}, 3")
    a("s_lshl_b32 s3, s3, 2")
    a(f"s_add_u32 s3, s3, {L_CNT + 64}")
    a("v_mov_b32 v2, s3")
    for g in range(4):
        a(f"{MF} {v(AO+16*g,16)}, {v(AV[1],4)}, {v(APB,4)}, 0")
    a("s_waitcnt vmcnt(5)")
    a(f"{MF} {v(AS[0],16)}, {v(AK[0],4)}, {v(AQ,4)}, 0")
    a(f"{MF} {v(AS[0],16)}, {v(AK[0]+4,4)}, {v(AQ+4,4)}, {v(AS[0],16)}")
    a("s_mov_b32 s48, 0")
    a("s_setprio 2")
    a("s_nop 7")
    a("s_nop 1")
    pf.stamp(6)
    a(".p2align 3")
    a.label(P + "_loop")
    for u in range(8):
        g = u & 3; par = (u >> 2) & 1
        side = []
        if g == 1:
            side.append(("q0", "s_waitcnt vmcnt(2)"))
            side.append(f"buffer_load_dwordx4 {v(AV[par^1],4)}, v1, s[{KR}:{KR+3}], s43 offen offset:2048{SC1}")
            side.append(f"buffer_load_dwordx4 {v(AV[par^1]+4,4)}, v1, s[{KR}:{KR+3}], s43 offen offset:3072{SC1}")
            side.append("s_add_u32 s43, s43, 4096")
            if par == 0:
                side.append("s_cmp_eq_u32 s48, 3")
                side.append(f"s_cselect_b32 s{KR+2}, 0, s{KR+2}")
        if g == 3:
            side += [None, None, None, "s_waitcnt vmcnt(2)"]
            side.append(f"buffer_load_dwordx4 {v(AK[par],4)}, v1, s[{KR}:{KR+3}], s43 offen{SC1}")
            side.append(f"buffer_load_dwordx4 {v(AK[par]+4,4)}, v1, s[{KR}:{KR+3}], s43 offen offset:1024{SC1}")
            if par == 1:
                side += ["s_add_u32 s48, s48, 1", None, None, None, None, None, None, None, None, "s_cmp_lt_u32 s48, 4"]
        if g == 0 and "nofair" not in X:
            side += ["v_mov_b32 v3, s53", None, "s_mov_b64 exec, 1\nds_add_rtn_u32 v3, v2, v3\ns_mov_b64 exec, -1"]
        if g == 2 and "nofair" not in X:
            lab = f"{P}_fp{u}"
            side += ["s_waitcnt lgkmcnt(0)", "v_readfirstlane_b32 s54, v3", None, "s_mul_i32 s54, s54, s53", "s_cmp_gt_i32 s54, 0",
                     f"s_cbranch_scc1 {lab}a\ns_setprio 2\ns_branch {lab}b\n{lab}a:\ns_setprio 1\n{lab}b:"]
        att_unit(a, u, side)
    a(f"s_cbranch_scc1 {P}_loop")
    prv = AS[1]
    a(f"{MF} {v(AO+48,16)}, {v(AV[1],4)}, {v(prv,4)}, {v(AO+48,16)}")
    a(f"v_cvt_pk_bf16_f32 v{APB+2}, v{prv+12}, v{prv+13}")
    a(f"v_cvt_pk_bf16_f32 v{APB+3}, v{prv+14}, v{prv+15}")
    a("s_nop 1")
    a(f"{MF} {v(AO+48,16)}, {v(AV[1]+4,4)}, {v(APB,4)}, {v(AO+48,16)}")
    pf.stamp(7)
    a("s_setprio 3")
    a("s_cmp_lg_u32 s51, 0")
    a(f"s_cbranch_scc1 {P}_nolend")
    lds_arrive(a, C_LEND, 2, 3)
    a.label(P + "_nolend")
    a(f"v_mov_b32 v3, {L_CNT}")
    a.label(P + "_udone")
    a(f"ds_read2_b32 v[104:105], v3 offset0:{C_NONCE//4} offset1:{C_HCNT//4}")
    a("s_waitcnt lgkmcnt(0)")
    a("v_readfirstlane_b32 s3, v105")
    a(f"v_readfirstlane_b32 s{NONCE}, v104")
    a("s_cmp_ge_u32 s3, 4")
    a(f"s_cbranch_scc1 {P}_udone_ok")
    a(f"s_sub_u32 s{SPIN}, s{SPIN}, 1")
    a(f"s_cbranch_scc0 {P}_udone")
    a(f"s_mov_b32 s{SPIN}, 0")
    a.label(P + "_udone_ok")
    a(f"s_lshl_b32 s3, s{WV}, 13")
    a(f"s_add_u32 s3, s3, {A_OP}")
    a(f"v_add_u32 v2, s3, v1")
    a(f"s_lshl_b32 s3, s{WV}, 9")
    a(f"s_add_u32 s3, s3, {A_LP}")
    a("v_lshrrev_b32 v3, 2, v1")
    a("v_and_b32 v4, 127, v3")
    a("v_add_u32 v4, s3, v4")
    a(f"s_mov_b32 s46, {hex(LMAX)}")
    a("s_mov_b64 s[56:57], 0")
    for g in range(4):
        o = AO + 16 * g
        if g == 3: a("s_nop 3")
        a("s_mov_b32 exec_lo, 0")
        a(f"ds_write_b32 v4, v{o+12} offset:{g*128}")
        a(f"v_cmp_nge_f32 vcc, s46, v{o+12}")
        a("s_mov_b32 exec_lo, -1")
        a("s_or_b64 s[56:57], s[56:57], vcc")
        for j in range(8):
            a(f"v_cvt_pk_bf16_f32 v{AS[0]+8*g+j}, v{o+2*j}, v{o+2*j+1}")
        a(f"ds_write_b128 v2, {v(AS[0]+8*g,4)} offset:{g*2048}")
        a(f"ds_write_b128 v2, {v(AS[0]+8*g+4,4)} offset:{g*2048+1024}")
    a(f"v_mov_b32 v3, {L_CNT}")
    a("s_cmp_eq_u64 s[56:57], 0")
    a(f"s_cbranch_scc1 {P}_safe")
    a("v_mov_b32 v2, 1")
    a("s_mov_b64 exec, 1")
    a(f"ds_add_u32 v3, v2 offset:{C_BAD}")
    a("s_mov_b64 exec, -1")
    a.label(P + "_safe")
    pf.stamp(17)
    sw_barrier(a, C_ATT, 44, 8, 3, 2, P + "_b1")
    pf.stamp(18)
    a(f"ds_read_b32 v2, v3 offset:{C_BAD}")
    a(f"s_lshl_b32 s3, s{WV}, 10")
    a(f"s_add_u32 s3, s3, {A_OP}")
    a("v_add_u32 v4, s3, v1")
    for w in range(8):
        a(f"ds_read_b128 {v(AO+4*w,4)}, v4 offset:{w*8192}")
    a(f"s_lshr_b32 s45, s{WV}, 1")
    a("s_lshl_b32 s3, s45, 7")
    a(f"s_add_u32 s3, s3, {A_LP}")
    a("v_lshrrev_b32 v3, 2, v1")
    a("v_and_b32 v3, 127, v3")
    a("v_add_u32 v3, s3, v3")
    a("s_waitcnt lgkmcnt(8)")
    a("v_readfirstlane_b32 s3, v2")
    a("s_cmp_lg_u32 s3, 0")
    a("s_cselect_b32 s3, 1, 0")
    a("s_andn2_b32 s3, s3, s51")
    a(f"s_cbranch_scc1 {P}_fallback")
    acc = AO + 48
    a(f"v_add_u32 v2, {L_SEL}, v1")
    a(f"ds_read_b128 {v(AO+40,4)}, v2")
    for w in range(6):
        a(f"ds_read_b32 v{AO+32+w}, v3 offset:{w*512}")
    for w in range(8):
        a(f"s_waitcnt lgkmcnt({6 if w < 1 else 6})") if w == 0 else None
        if w == 0:
            a(f"ds_read_b32 v{AO+38}, v3 offset:{6*512}")
            a(f"ds_read_b32 v{AO+39}, v3 offset:{7*512}")
        a(f"{MF} {v(acc,16)}, {v(AO+40,4)}, {v(AO+4*w,4)}, {'0' if w == 0 else v(acc,16)}")
    a("s_lshr_b32 s3, s45, 1")
    a(f"s_lshl_b32 s46, s{RB}, 1")
    a("s_add_u32 s3, s3, s46")
    a("s_lshl_b32 s3, s3, 4")
    a(f"s_lshl_b32 s46, s{J2}, 1")
    a("s_add_u32 s3, s3, s46")
    a("s_and_b32 s46, s45, 1")
    a("s_add_u32 s3, s3, s46")
    a("s_lshl_b32 s3, s3, 11")
    a(f"s_and_b32 s46, s{WV}, 1")
    a("s_lshl_b32 s46, s46, 10")
    a("s_add_u32 s3, s3, s46")
    a(f"s_add_u32 s47, s3, {WS_OF}")
    a("s_waitcnt lgkmcnt(0)")
    lds_arrive(a, C_TRD, 2, 3)
    l = AO + 32
    a(f"v_add_f32 v{l}, v{l}, v{l+1}")
    a(f"v_add_f32 v{l+2}, v{l+2}, v{l+3}")
    a(f"v_add_f32 v{l+4}, v{l+4}, v{l+5}")
    a(f"v_add_f32 v{l+6}, v{l+6}, v{l+7}")
    a(f"v_add_f32 v{l}, v{l}, v{l+2}")
    a(f"v_add_f32 v{l+4}, v{l+4}, v{l+6}")
    a(f"v_add_f32 v{l}, v{l}, v{l+4}")
    a(f"v_rcp_f32 v{l+1}, v{l}")
    a("s_nop 3")
    for j in range(8): a(f"v_mul_f32 v{acc+j}, v{acc+j}, v{l+1}")
    for j in range(4): a(f"v_cvt_pk_bf16_f32 v{AO+j}, v{acc+2*j}, v{acc+2*j+1}")
    a(f"s_and_b32 s3, s{WV}, 1")
    a("s_cmp_eq_u32 s3, 1")
    a("s_cselect_b32 exec_hi, -1, 0")
    a("s_mov_b32 exec_lo, 0")
    a(f"v_mov_b32 v{AO+2}, 0")
    a(f"v_mov_b32 v{AO+3}, 0")
    a("s_mov_b64 exec, -1")
    pf.stamp(19)
    a(f"buffer_store_dwordx4 {v(AO,4)}, v1, s[{WSR}:{WSR+3}], s47 offen{SC1}")
    if "dup" in X or "dupo" in X:
        a(f"buffer_store_dwordx4 {v(AO,4)}, v1, s[{WSR}:{WSR+3}], s47 offen")
    a(f"s_lshl_b32 s3, s{RB}, 5")
    a(f"s_add_u32 s3, s3, s{J2}")
    a("s_lshl_b32 s3, s3, 2")
    a(f"s_add_u32 s3, s3, {FL_O}")
    arrive_flag(a, C_OCNT, 8, 3, 2, 3, P + "_oflag")
    pf.stamp(8)
    a(f"s_branch {P}_done")
    a.label(P + "_fallback")
    a("s_waitcnt lgkmcnt(0)")
    a("s_mov_b32 s51, 1")
    a(f"s_mov_b32 s{KR+2}, 0x40000")
    a("s_mov_b32 exec_lo, 0")
    for g in range(4):
        a(f"v_mov_b32 v{AQ+8*g+6}, 0")
        a(f"v_mov_b32 v{AQ+8*g+7}, 0")
    a("s_mov_b32 exec_lo, -1")
    for g in range(4): a(f"v_mov_b32 v{APB+g}, 0xff800000")
    a("s_mov_b32 s43, 0")
    a.label(P + "_fb_loop")
    a(f"buffer_load_dwordx4 {v(AK[0],4)}, v1, s[{KR}:{KR+3}], s43 offen{SC1}")
    a(f"buffer_load_dwordx4 {v(AK[0]+4,4)}, v1, s[{KR}:{KR+3}], s43 offen offset:1024{SC1}")
    a("s_waitcnt vmcnt(0)")
    for g in range(4):
        o = AO + 16 * g
        a(f"{MF} {v(o,16)}, {v(AK[0],4)}, {v(AQ+8*g,4)}, 0")
        a(f"{MF} {v(o,16)}, {v(AK[0]+4,4)}, {v(AQ+8*g+4,4)}, {v(o,16)}")
    a("s_nop 7")
    for g in range(4):
        o = AO + 16 * g
        for j in range(0, 16, 2):
            a(f"v_max3_f32 v{APB+g}, v{APB+g}, v{o+j}, v{o+j+1}")
    a("s_add_u32 s43, s43, 4096")
    a("s_cmp_lt_u32 s43, 0x40000")
    a(f"s_cbranch_scc1 {P}_fb_loop")
    for g in range(4):
        m = APB + g
        a(f"v_mov_b32 v2, v{m}")
        a("s_nop 1")
        a(f"v_permlane32_swap_b32 v2, v{m}")
        a(f"v_max_f32 v2, v2, v{m}")
        a("v_sub_f32 v2, 0, v2")
        a("v_cvt_pk_bf16_f32 v3, v2, v2")
        a("v_and_b32 v3, 0xffff0000, v3")
        a(f"v_sub_f32 v{m}, v2, v3")
        a(f"v_cvt_pk_bf16_f32 v2, v{m}, v{m}")
        a("v_and_b32 v2, 0xffff0000, v2")
        a(f"v_sub_f32 v{m}, v{m}, v2")
        a(f"v_cvt_pk_bf16_f32 v{m}, v{m}, 0")
        a("v_lshrrev_b32 v3, 16, v3")
        a("v_or_b32 v3, v3, v2")
        a("s_mov_b32 exec_lo, 0")
        a(f"v_mov_b32 v{AQ+8*g+6}, v3")
        a(f"v_mov_b32 v{AQ+8*g+7}, v{m}")
        a("s_mov_b32 exec_lo, -1")
    a(f"v_mov_b32 v3, {L_CNT}")
    sw_barrier(a, C_ATT, 44, 8, 3, 2, P + "_bf")
    a(f"s_branch {P}_restart")
    a.label(P + "_done")

def gen_background(a, pf):
    P = "bg"
    XF = 56; ARE, AIM = 8, 24
    nbar = [0]
    T = [54, 55]
    pf.T = T
    def bar():
        nbar[0] += 1
        a(f"v_mov_b32 v{T[0]}, {L_CNT}")
        sw_barrier(a, C_BG, 44, 4, T[0], T[1], f"{P}_bar{nbar[0]}")
    def stage3(tag, vd_=156, vt_=158):
        if "nopf" in X: return
        a(f"s_cmp_eq_u32 s{BW}, 3")
        a(f"s_cbranch_scc1 {P}_not3{tag}")
        a(f"s_cmp_eq_u32 s{BW}, 0")
        a(f"s_cselect_b32 s56, s{S_CRE}, s{S_CIM}")
        a(f"s_cselect_b32 s57, s{S_CRE+1}, s{S_CIM+1}")
        a(f"s_cmp_eq_u32 s{BW}, 2")
        a(f"s_cselect_b32 s56, s{S_WO}, s56")
        a(f"s_cselect_b32 s57, s{S_WO+1}, s57")
        touch_matrix(a, 56, vd_, vt_)
        a.label(P + "_not3" + tag)
    a("s_mov_b32 s44, 0")
    a(f"s_lshl_b32 s37, s{J2}, 1")
    a(f"s_and_b32 s3, s{BW}, 1")
    a("s_add_u32 s37, s37, s3")
    a(f"s_lshr_b32 s38, s{BW}, 1")
    a(f"s_cmp_eq_u32 s{BW}, 3")
    a(f"s_cbranch_scc0 {P}_nononce")
    srd(a, 48, S_DBG, 256)
    a("v_mov_b32 v7, 0")
    a.label(P + "_npoll")
    a(f"buffer_load_dword v6, v7, s[48:51], 0 offen offset:{D_NONCE}{SC1}")
    a("s_waitcnt vmcnt(0)")
    a("v_readfirstlane_b32 s3, v6")
    a("s_cmp_lg_u32 s3, 0")
    a(f"s_cbranch_scc1 {P}_npoll_ok")
    a(f"s_sleep {POLLSLEEP}")
    a(f"s_sub_u32 s{SPIN}, s{SPIN}, 1")
    a(f"s_cbranch_scc0 {P}_npoll")
    a(f"s_mov_b32 s{SPIN}, 0")
    a.label(P + "_npoll_ok")
    a(f"v_mov_b32 v7, {L_CNT}")
    a(f"ds_write_b32 v7, v6 offset:{C_NONCE}")
    a.label(P + "_nononce")
    a(f"s_cmp_eq_u32 s{J2}, 7")
    a(f"s_cbranch_scc1 {P}_skip")
    if "nobg" in X: a(f"s_branch {P}_skip")
    a(f"s_and_b32 s3, s{BW}, 1")
    a("s_cmp_eq_u32 s3, 0")
    a(f"s_cselect_b32 s{TR}, s{S_BRE}, s{S_BIM}")
    a(f"s_cselect_b32 s{TR+1}, s{S_BRE+1}, s{S_BIM+1}")
    a(f"s_mov_b32 s{TR+2}, {WBYTES}")
    a(f"s_mov_b32 s{TR+3}, 0x00020000")
    plain_lane_off(a, 8, 0, 9)
    a(f"s_lshl_b32 s3, s{J2}, 1")
    a("s_add_u32 s3, s3, s38")
    a(f"s_mul_i32 s32, s3, {32*896}")
    a(f"s_lshl_b32 s34, s{BW}, 11")
    a("s_mov_b32 m0, s34")
    a("s_mov_b32 s36, 14")
    a.label(P + "_bdma")
    a(f"s_add_u32 s33, s32, {16*896}")
    a(f"buffer_load_dwordx4 v8, s[{TR}:{TR+3}], s32 offen lds")
    a("s_add_u32 m0, m0, 1024")
    a("s_sub_u32 s36, s36, 1")
    a(f"buffer_load_dwordx4 v8, s[{TR}:{TR+3}], s33 offen lds")
    a("s_add_u32 s32, s32, 64")
    a(f"s_add_u32 m0, m0, {8192-1024}")
    a("s_cmp_lg_u32 s36, 0")
    a(f"s_cbranch_scc1 {P}_bdma")
    xfrag_addr(a, 6, 0, 8)
    a(f"s_and_b32 s3, s{BW}, 1")
    a("s_lshl_b32 s3, s3, 12")
    a("v_add_u32 v6, s3, v6")
    a("v_xor_b32 v7, 32, v6")
    a("s_waitcnt vmcnt(0)")
    bar()
    a(f"ds_read_b32 v55, v54 offset:{C_NONCE}")
    a("s_waitcnt lgkmcnt(0)")
    a(f"v_readfirstlane_b32 s{NONCE}, v55")
    if "cntpoll" in X:
        lds_arrive(a, C_BL, 54, 55)
    pf.stamp(5)
    S3 = os.environ.get("S3", "b")
    if S3 == "b": stage3("a", 52, 54)
    BB = [40, 48]
    def rdB(j):
        b = BB[j & 1]
        if j in (16, 17): a(f"v_add_u32 v{6+(j&1)}, 0x10000, v{6+(j&1)}")
        o = (j >> 1) * 8192 - (65536 if j >= 16 else 0)
        a(f"ds_read_b128 {v(b,4)}, v{6+(j&1)} offset:{o}")
        a(f"ds_read_b128 {v(b+4,4)}, v{6+(j&1)} offset:{o+2048}")
    rdB(0); rdB(1)
    for j in range(28):
        b = BB[j & 1]
        a("s_waitcnt lgkmcnt(2)" if j < 27 else "s_waitcnt lgkmcnt(0)")
        c1 = "0" if j == 0 else v(ARE,16); c2 = "0" if j == 0 else v(AIM,16)
        a(f"{MF} {v(ARE,16)}, {v(XF+4*j,4)}, {v(b,4)}, {c1}")
        a(f"{MF} {v(AIM,16)}, {v(XF+4*j,4)}, {v(b+4,4)}, {c2}")
        if j + 2 < 28: rdB(j + 2)
    a(f"v_mov_b32 v54, {L_CNT}")
    a("v_mov_b32 v55, 1")
    a("s_mov_b64 exec, 1")
    a(f"ds_add_u32 v54, v55 offset:{C_UDONE}")
    a("s_mov_b64 exec, -1")
    pf.stamp(6)
    if S3 == "u": stage3("a")
    def csq(dr, di, sr, si):
        a(f"v_mul_f32 v46, v{si}, v{si}")
        a(f"v_mul_f32 v47, v{sr}, v{si}")
        a(f"v_fma_f32 v{dr}, v{sr}, v{sr}, -v46")
        a(f"v_add_f32 v{di}, v47, v47")
    csq(40, 41, 2, 3)
    for _ in range(3): csq(40, 41, 40, 41)
    csq(42, 43, 40, 41); csq(42, 43, 42, 43)
    csq(44, 45, 42, 43)
    for _ in range(3): csq(44, 45, 44, 45)
    a("v_mov_b32 v48, v4")
    a("v_mov_b32 v49, v4")
    a("v_mov_b32 v50, v5")
    a("v_mov_b32 v51, v5")
    for r in range(0, 16, 2):
        a(f"v_pk_mul_f32 v[46:47], v[50:51], {v(AIM+r,2)}")
        a(f"v_pk_mul_f32 v[52:53], v[50:51], {v(ARE+r,2)}")
        a(f"v_pk_fma_f32 {v(ARE+r,2)}, v[48:49], {v(ARE+r,2)}, v[46:47] neg_lo:[0,0,1] neg_hi:[0,0,1]")
        a(f"v_pk_fma_f32 {v(AIM+r,2)}, v[48:49], {v(AIM+r,2)}, v[52:53]")
    a(f"v_mov_b32 v48, v{ARE}")
    a(f"v_mov_b32 v49, v{AIM}")
    for r in range(1, 16):
        cfma(a, 48, 49, 2, 3, ARE + r, AIM + r, 46, 47)
    a("v_and_b32 v50, 31, v0")
    a("v_lshlrev_b32 v50, 3, v50")
    a(f"s_and_b32 s3, s{BW}, 1")
    a("s_lshl_b32 s3, s3, 10")
    a(f"s_add_u32 s3, s3, {B_EX}")
    a("v_add_u32 v50, s3, v50")
    a("v_lshrrev_b32 v51, 5, v0")
    a("s_lshl_b32 s3, s38, 1")
    a("v_add_u32 v51, s3, v51")
    a("v_lshl_add_u32 v52, v51, 8, v50")
    a("ds_write_b64 v52, v[48:49]")
    bar()
    for c in range(4):
        a(f"ds_read_b64 {v(56+2*c,2)}, v50 offset:{c*256}")
    a("s_waitcnt lgkmcnt(0)")
    a("v_mov_b32 v64, v56")
    a("v_mov_b32 v65, v57")
    for c in range(1, 4):
        cfma(a, 64, 65, 40, 41, 56 + 2*c, 57 + 2*c, 46, 47)
    a("s_cmp_eq_u32 s38, 1")
    a(f"s_cbranch_scc0 {P}_nopub")
    a(f"s_mul_i32 s3, s{RB}, {448*16}")
    a("s_lshl_b32 s33, s37, 9")
    a("s_add_u32 s3, s3, s33")
    a(f"s_add_u32 s3, s3, {WS_E}")
    a(f"v_mov_b32 v66, s{NONCE}")
    a(f"v_mov_b32 v67, s{NONCE}")
    a("v_and_b32 v68, 31, v0")
    a("v_lshlrev_b32 v68, 4, v68")
    a("s_mov_b32 exec_hi, 0")
    a(f"buffer_store_dwordx4 v[64:67], v68, s[{WSR}:{WSR+3}], s3 offen{SC1}")
    a("s_mov_b64 exec, -1")
    a.label(P + "_nopub")
    pf.stamp(7)
    a(f"s_add_u32 s48, s{WSR}, {WS_E}")
    a(f"s_addc_u32 s49, s{WSR+1}, 0")
    a(f"s_mov_b32 s50, {32*448*16}")
    a("s_mov_b32 s51, 0x00020000")
    a("v_lshrrev_b32 v67, 5, v0")
    a("v_lshlrev_b32 v67, 4, v67")
    a(f"v_sub_u32 v67, s{RB}, v67")
    a("v_add_u32 v67, -1, v67")
    a(f"s_mov_b32 s3, {448*16}")
    a("v_mul_lo_u32 v68, v67, s3")
    a("v_and_b32 v66, 31, v0")
    a("v_lshlrev_b32 v66, 4, v66")
    a("s_lshl_b32 s33, s37, 9")
    a("v_add3_u32 v68, v68, v66, s33")
    EG = 72
    for i in range(1, 16):
        a(f"v_subrev_u32 v{136+i}, {448*16*i}, v68")
    a("v_mov_b32 v136, v68")
    a("s_waitcnt vmcnt(0)")
    a(f"s_cmp_eq_u32 s{RB}, 0")
    a(f"s_cbranch_scc1 {P}_pollE")
    a.label(P + "_pollE0")
    a("s_mov_b32 exec_hi, 0")
    a(f"buffer_load_dwordx3 {v(EG,3)}, v136, s[48:51], 0 offen{SC1}")
    a("s_mov_b64 exec, -1")
    a("s_waitcnt vmcnt(0)")
    a(f"v_cmp_ne_u32 vcc, s{NONCE}, v{EG+2}")
    a("s_cmp_eq_u32 vcc_lo, 0")
    a(f"s_cbranch_scc1 {P}_pollE")
    a(f"s_sleep {os.environ.get('ES', '6')}")
    a(f"s_sub_u32 s{SPIN}, s{SPIN}, 1")
    a(f"s_cbranch_scc0 {P}_pollE0")
    a(f"s_mov_b32 s{SPIN}, 0")
    a.label(P + "_pollE")
    for i in range(16):
        a(f"buffer_load_dwordx3 {v(EG+4*i,3)}, v{136+i}, s[48:51], 0 offen{SC1}")
    a("s_mov_b64 s[56:57], 0")
    a("s_waitcnt vmcnt(0)")
    for i in range(16):
        a(f"v_cmp_ne_u32 vcc, s{NONCE}, v{EG+4*i+2}")
        a(f"s_cmp_gt_u32 s{RB}, {i}")
        a("s_cselect_b32 s58, -1, 0")
        a(f"s_cmp_gt_u32 s{RB}, {i+16}")
        a("s_cselect_b32 s59, -1, 0")
        a("s_and_b64 vcc, vcc, s[58:59]")
        a("s_or_b64 s[56:57], s[56:57], vcc")
    a("s_cmp_eq_u64 s[56:57], 0")
    a(f"s_cbranch_scc1 {P}_pollE_ok")
    a("s_sleep 12")
    a(f"s_sub_u32 s{SPIN}, s{SPIN}, 1")
    a(f"s_cbranch_scc0 {P}_pollE")
    a(f"s_mov_b32 s{SPIN}, 0")
    a.label(P + "_pollE_ok")
    pf.stamp(8)
    a(f"v_mov_b32 v68, v{EG+60}")
    a(f"v_mov_b32 v69, v{EG+61}")
    for i in range(14, -1, -1):
        cfma(a, 68, 69, 42, 43, EG + 4*i, EG + 4*i + 1, 46, 47)
    a("v_mov_b32 v70, v68")
    a("v_mov_b32 v71, v69")
    a("v_mov_b32 v72, v68")
    a("v_mov_b32 v73, v69")
    a("s_nop 1")
    a("v_permlane32_swap_b32 v70, v72")
    a("v_permlane32_swap_b32 v71, v73")
    cfma(a, 72, 73, 44, 45, 70, 71, 46, 47)
    for cp in range(3):
        a("v_mov_b32 v74, v72")
        a("v_mov_b32 v75, v73")
        cfma(a, 74, 75, 40, 41, 56 + 2*cp, 57 + 2*cp, 46, 47)
        a(f"v_cmp_lt_u32 vcc, {cp}, v51")
        a("s_nop 1")
        a("v_cndmask_b32 v72, v72, v74, vcc")
        a("v_cndmask_b32 v73, v73, v75, vcc")
    a(f"s_lshl_b32 s3, s{BW}, 12")
    a(f"s_add_u32 s3, s3, {B_HT}")
    a("v_and_b32 v66, 31, v0")
    a("v_lshlrev_b32 v66, 1, v66")
    a("v_lshrrev_b32 v67, 5, v0")
    a("v_lshl_add_u32 v66, v67, 8, v66")
    a("v_add_u32 v66, s3, v66")
    for r in range(16):
        cfma(a, 72, 73, 2, 3, ARE + r, AIM + r, 46, 47)
        a(f"v_cvt_pk_bf16_f32 v{76+(r&1)}, v72, -v73")
        slot = (r & 3) + 8 * (r >> 2)
        a(f"ds_write_b16 v66, v{76+(r&1)} offset:{slot*64}")
        a(f"ds_write_b16_d16_hi v66, v{76+(r&1)} offset:{2048+slot*64}")
    a("v_and_b32 v67, 31, v0")
    a("v_lshlrev_b32 v67, 6, v67")
    a("v_lshrrev_b32 v68, 5, v0")
    a("v_lshl_add_u32 v67, v68, 4, v67")
    a("v_add_u32 v67, s3, v67")
    a("s_waitcnt lgkmcnt(0)")
    for part in range(2):
        for jj in range(2):
            a(f"ds_read_b128 {v(80+8*part+4*jj,4)}, v67 offset:{part*2048+jj*32}")
    a(f"s_lshl_b32 s3, s{RB}, 1")
    a("s_add_u32 s3, s3, s38")
    a("s_mul_i32 s3, s3, 56")
    a("s_lshl_b32 s33, s37, 1")
    a("s_add_u32 s3, s3, s33")
    a("s_lshl_b32 s3, s3, 10")
    a(f"s_add_u32 s3, s3, {WS_HF}")
    a(f"s_add_u32 s33, s3, {28*1024}")
    a("s_waitcnt lgkmcnt(0)")
    a(f"buffer_store_dwordx4 {v(80,4)}, v1, s[{WSR}:{WSR+3}], s3 offen{SC1}")
    a(f"buffer_store_dwordx4 {v(84,4)}, v1, s[{WSR}:{WSR+3}], s3 offen offset:1024{SC1}")
    a(f"buffer_store_dwordx4 {v(88,4)}, v1, s[{WSR}:{WSR+3}], s33 offen{SC1}")
    a(f"buffer_store_dwordx4 {v(92,4)}, v1, s[{WSR}:{WSR+3}], s33 offen offset:1024{SC1}")
    if "dup" in X:
        a(f"buffer_store_dwordx4 {v(80,4)}, v1, s[{WSR}:{WSR+3}], s3 offen")
        a(f"buffer_store_dwordx4 {v(84,4)}, v1, s[{WSR}:{WSR+3}], s3 offen offset:1024")
        a(f"buffer_store_dwordx4 {v(88,4)}, v1, s[{WSR}:{WSR+3}], s33 offen")
        a(f"buffer_store_dwordx4 {v(92,4)}, v1, s[{WSR}:{WSR+3}], s33 offen offset:1024")
    a(f"s_lshl_b32 s3, s{RB}, 5")
    a(f"s_add_u32 s3, s3, s{J2}")
    a("s_lshl_b32 s3, s3, 2")
    a(f"s_add_u32 s3, s3, {FL_H}")
    arrive_flag(a, C_HCNT, 4, 3, 66, 67, P + "_hflag")
    pf.stamp(9)
    a(f"s_lshr_b32 s3, s{BW}, 1")
    a("s_cmp_eq_u32 s3, 0")
    a(f"s_cselect_b32 s{TR}, s{S_CRE}, s{S_CIM}")
    a(f"s_cselect_b32 s{TR+1}, s{S_CRE+1}, s{S_CIM+1}")
    plain_lane_off(a, 53, 0, 69)
    a(f"s_mul_i32 s40, s{J2}, {64*896}")
    a(f"s_and_b32 s3, s{BW}, 1")
    a("s_mul_i32 s3, s3, 448")
    a("s_add_u32 s40, s40, s3")
    a(f"s_mul_i32 s41, s{BW}, 20480")
    CDMA = [53]
    def c_dma(kb):
        a(f"s_add_u32 m0, s41, {(kb % 5)*4096}")
        for q in range(4):
            a(f"s_add_u32 s33, s40, {q*16*896 + kb*64}")
            a(f"buffer_load_dwordx4 v{CDMA[0]}, s[{TR}:{TR+3}], s33 offen lds")
            if q < 3: a("s_add_u32 m0, m0, 1024")
    for kb in range(5): c_dma(kb)
    a(f"s_cmp_eq_u32 s{BW}, 0")
    a(f"s_cbranch_scc0 {P}_nopollH")
    a("v_lshlrev_b32 v67, 2, v0")
    a(f"s_lshl_b32 s35, s{RB}, 7")
    a(f"s_add_u32 s35, s35, {FL_H}")
    a("s_mov_b64 s[58:59], 0x7f")
    poll(a, P + "_pollH", 68, 67, 35, 58)
    srd(a, 48, S_DBG, 256)
    a(f"v_mov_b32 v67, {D_GOG}")
    a.label(P + "_pollG")
    a(f"buffer_load_dword v68, v67, s[48:51], 0 offen{SC1}")
    a("s_waitcnt vmcnt(0)")
    a("v_readfirstlane_b32 s3, v68")
    a("s_cmp_lg_u32 s3, 0")
    a(f"s_cbranch_scc1 {P}_pollG_ok")
    a(f"s_sleep {POLLSLEEP}")
    a(f"s_sub_u32 s{SPIN}, s{SPIN}, 1")
    a(f"s_cbranch_scc0 {P}_pollG")
    a(f"s_mov_b32 s{SPIN}, 0")
    a.label(P + "_pollG_ok")
    a.label(P + "_nopollH")
    a("s_waitcnt vmcnt(0)")
    bar()
    pf.stamp(10)
    T[0], T[1] = 4, 5
    ACC = 8
    XS, GT = 136, 152
    if "lowy" in X: a("s_setprio 0")
    a(f"s_lshl_b32 s3, s{RB}, 1")
    a("s_mul_i32 s3, s3, 56")
    a(f"s_mul_i32 s33, s{BW}, 14")
    a("s_add_u32 s3, s3, s33")
    a("s_lshl_b32 s3, s3, 10")
    a(f"s_add_u32 s32, s3, {WS_HF}")
    a(f"s_add_u32 s34, s32, {56*1024}")
    AF = 88; NA = 10
    plain_lane_off(a, 2, 0, 72)
    CDMA[0] = 2
    xfrag_addr(a, 6, 0, 72)
    a("v_add_u32 v6, s41, v6")
    a("v_xor_b32 v7, 32, v6")
    def ldA(st_):
        r = AF + 8 * (st_ % NA)
        a(f"s_add_u32 s35, s32, {st_*1024}")
        a(f"s_add_u32 s36, s34, {st_*1024}")
        a(f"buffer_load_dwordx4 {v(r,4)}, v1, s[{WSR}:{WSR+3}], s35 offen{SC1}")
        a(f"buffer_load_dwordx4 {v(r+4,4)}, v1, s[{WSR}:{WSR+3}], s36 offen{SC1}")
    for st_ in range(NA): ldA(st_)
    if "htouch" in X:
        a("v_lshlrev_b32 v72, 7, v0")
        a(f"s_mov_b32 m0, {L_JUNK}")
        a(f"s_add_u32 s35, s32, {NA*1024}")
        a(f"s_add_u32 s36, s34, {NA*1024}")
        a("s_mov_b32 exec_hi, 0")
        a(f"buffer_load_dword v72, s[{WSR}:{WSR+3}], s35 offen{SC1} lds")
        a(f"buffer_load_dword v72, s[{WSR}:{WSR+3}], s36 offen{SC1} lds")
        a("s_mov_b64 exec, -1")
    CB = [72, 80]
    def rdC(st_):
        b = CB[st_ & 1]
        kb = st_ >> 1
        a(f"ds_read_b128 {v(b,4)}, v{6+(st_&1)} offset:{(kb%5)*4096}")
        a(f"ds_read_b128 {v(b+4,4)}, v{6+(st_&1)} offset:{(kb%5)*4096+2048}")
    issued = []
    for st_ in range(NA): issued += [("A", st_)] * 2
    if "htouch" in X: issued += [("T", 0)] * 2
    HY = int(os.environ.get("HY", "0"))
    if HY:
        a(f"v_mov_b32 v4, {L_CNT}")
        lds_wait(a, C_LEND, HY, 4, 5, P + "_lend", sleep=8)
        a(f"s_setprio {os.environ.get('YP', '1')}")
    rdC(0)
    for st_ in range(14):
        kb = st_ >> 1
        need = [("A", st_)]
        if st_ + 1 < 14 and ((st_ + 1) >> 1) >= 5: need.append(("C", (st_ + 1) >> 1))
        last = max(i for i, t in enumerate(issued) if t in need)
        n_out = len(issued) - 1 - last
        a(f"s_waitcnt vmcnt({n_out})")
        if st_ + 1 < 14: rdC(st_ + 1)
        a(f"s_waitcnt lgkmcnt({2 if st_ + 1 < 14 else 0})")
        b = CB[st_ & 1]; r = AF + 8 * (st_ % NA)
        for rt in range(2):
            for ct in range(2):
                acc = ACC + 16 * (2 * rt + ct)
                c = "0" if st_ == 0 else v(acc, 16)
                a(f"{MF} {v(acc,16)}, {v(r+4*rt,4)}, {v(b+4*ct,4)}, {c}")
        if st_ + NA < 14:
            ldA(NA + st_); issued += [("A", NA + st_)] * 2
        if (st_ & 1) == 1 and kb + 5 < 7:
            c_dma(kb + 5); issued += [("C", kb + 5)] * 4
    pf.stamp(11)
    a(f"s_lshl_b32 s3, s{RB}, 6")
    a("s_lshl_b32 s33, s38, 5")
    a("s_add_u32 s3, s3, s33")
    a("v_lshrrev_b32 v80, 5, v0")
    a("v_lshlrev_b32 v80, 4, v80")
    a("v_add_u32 v80, s3, v80")
    a(f"s_lshl_b32 s33, s{J2}, 6")
    a(f"s_and_b32 s35, s{BW}, 1")
    a("s_lshl_b32 s35, s35, 5")
    a("s_add_u32 s33, s33, s35")
    a("v_and_b32 v81, 31, v0")
    a("v_add_u32 v81, s33, v81")
    srd(a, 48, S_X, XBYTES)
    a("v_mul_u32_u24 v82, 896, v80")
    a("v_lshl_add_u32 v82, v81, 1, v82")
    for r in range(16):
        a(f"buffer_load_ushort v{XS+r}, v82, s[48:51], 0 offen offset:{(r%4)*896}")
        if r % 4 == 3 and r < 15: a(f"v_add_u32 v82, {4*896}, v82")
    srd(a, 52, S_DSK, 896)
    a("v_lshlrev_b32 v83, 1, v81")
    a("buffer_load_ushort v3, v83, s[52:55], 0 offen")
    a("v_lshlrev_b32 v83, 2, v80")
    a(f"s_mov_b32 s35, {WS_G}")
    for q in range(4):
        a(f"buffer_load_dwordx4 {v(GT+4*q,4)}, v83, s[{WSR}:{WSR+3}], s35 offen offset:{16*q}{SC1}")

    a(f"s_setprio {os.environ.get('YP2', '2')}")
    bar()
    VT_, VD_, VO_, t1, t2, t3, t4, t5 = 72, 73, 74, 75, 76, 77, 78, 79
    srd(a, TR, S_WO, WBYTES)
    a(f"v_lshrrev_b32 v{t1}, 3, v0")
    a(f"v_mul_u32_u24 v{t1}, 896, v{t1}")
    a(f"v_and_b32 v{t2}, 7, v0")
    a(f"v_lshl_add_u32 v{t1}, v{t2}, 4, v{t1}")
    a(f"s_mul_i32 s32, s{BW}, {112*896}")
    a(f"s_lshl_b32 s3, s{J2}, 7")
    a("s_add_u32 s32, s32, s3")
    a(f"s_mul_i32 s34, s{BW}, 14336")
    a("s_mov_b32 m0, s34")
    a("s_mov_b32 s36, 14")
    a.label(P + "_wodma")
    a("s_sub_u32 s36, s36, 1")
    a(f"buffer_load_dwordx4 v{t1}, s[{TR}:{TR+3}], s32 offen lds")
    a("s_add_u32 s32, s32, 7168")
    a("s_add_u32 m0, m0, 1024")
    a("s_cmp_lg_u32 s36, 0")
    a(f"s_cbranch_scc1 {P}_wodma")
    a("v_mov_b32 v80, 0")
    a("v_mov_b32 v81, 0")
    a(f"v_lshlrev_b32 v{t2}, 3, v0")
    a(f"ds_write_b64 v{t2}, v[80:81] offset:57344")
    a(f"v_mov_b32 v4, {L_CNT}")
    lds_wait(a, C_TRD, 8, 4, 5, P + "_trd")
    a(f"s_lshl_b32 s3, s{BW}, 12")
    a(f"s_add_u32 s3, s3, {A_OP}")
    a(f"v_add_u32 v{t1}, s3, v1")
    for t in range(4):
        for q in range(4):
            a(f"ds_write_b128 v{t1}, {v(ACC+16*t+4*q,4)} offset:{t*16384+q*1024}")
    bar()
    a(f"s_lshl_b32 s3, s{BW}, 14")
    a(f"s_add_u32 s3, s3, {A_OP}")
    a(f"v_add_u32 v{t1}, s3, v1")
    for src in range(3):
        for q in range(4):
            a(f"ds_read_b128 {v(88+16*src+4*q,4)}, v{t1} offset:{src*4096+q*1024}")
    YT = 8
    for q in range(4):
        a(f"ds_read_b128 {v(YT+4*q,4)}, v{t1} offset:{3*4096+q*1024}")
        if q == 2: a("s_waitcnt lgkmcnt(4)")
    a("s_waitcnt lgkmcnt(0)")
    VT_, VD_, VO_, t1, t2, t3, t4, t5 = 40, 41, 42, 43, 44, 45, 46, 47
    a("s_waitcnt vmcnt(14)")
    for r in range(16):
        a(f"v_add_f32 v{88+r}, v{88+r}, v{104+r}")
        a(f"v_add_f32 v{YT+r}, v{YT+r}, v{120+r}")
    a("v_lshlrev_b32 v3, 16, v3")
    for r in range(16):
        a(f"v_add_f32 v{YT+r}, v{YT+r}, v{88+r}")
        a(f"v_lshlrev_b32 v{XS+r}, 16, v{XS+r}")
        a(f"v_mul_f32 v{XS+r}, v{XS+r}, v3")
        a(f"v_fma_f32 v{YT+r}, 2.0, v{YT+r}, v{XS+r}")
        a(f"v_sub_f32 v{XS+r}, 1.0, v{GT+r}")
        a(f"v_mul_f32 v{YT+r}, v{YT+r}, v{XS+r}")
    a(f"s_lshl_b32 s3, s{RB}, 6")
    a("s_lshl_b32 s33, s38, 5")
    a("s_add_u32 s3, s3, s33")
    a(f"v_lshrrev_b32 v{VT_}, 5, v0")
    a(f"v_lshlrev_b32 v{VT_}, 4, v{VT_}")
    a(f"v_add_u32 v{VT_}, s3, v{VT_}")
    a(f"s_lshl_b32 s33, s{J2}, 6")
    a(f"s_and_b32 s35, s{BW}, 1")
    a("s_lshl_b32 s35, s35, 5")
    a("s_add_u32 s33, s33, s35")
    a(f"v_and_b32 v{VD_}, 31, v0")
    a(f"v_add_u32 v{VD_}, s33, v{VD_}")
    a(f"v_mul_u32_u24 v{VO_}, 1792, v{VT_}")
    a(f"v_lshl_add_u32 v{VO_}, v{VD_}, 2, v{VO_}")
    srd(a, 48, S_OUT, OUTBYTES)
    a("v_lshrrev_b32 v6, 5, v0")
    a("v_lshlrev_b32 v6, 2, v6")
    a("v_bfe_u32 v7, v0, 2, 2")
    a("v_add_u32 v6, v6, v7")
    a("v_lshlrev_b32 v6, 7, v6")
    a("v_and_b32 v7, 16, v0")
    a(f"v_and_b32 v{t1}, 3, v0")
    a(f"v_lshl_add_u32 v7, v{t1}, 2, v7")
    a("v_lshl_add_u32 v6, v7, 1, v6")
    a(f"s_and_b32 s3, s{BW}, 1")
    a(f"s_mul_i32 s3, s3, {8*28*128}")
    a("v_add_u32 v6, s3, v6")
    a("s_waitcnt vmcnt(0)")
    a("s_setprio 3")
    pf.stamp(12)
    bar()
    a(f"v_lshlrev_b32 v{t4}, 2, v0")
    a(f"s_lshl_b32 s35, s{RB}, 7")
    a(f"s_add_u32 s35, s35, {FL_O}")
    a("s_mov_b64 s[58:59], 0xff")
    poll(a, P + "_pollO", t5, t4, 35, 58)
    pf.stamp(13)
    a(f"s_lshl_b32 s3, s{RB}, 1")
    a("s_add_u32 s3, s3, s38")
    a("s_lshl_b32 s3, s3, 15")
    a(f"s_and_b32 s33, s{BW}, 1")
    a("s_lshl_b32 s33, s33, 14")
    a("s_add_u32 s3, s3, s33")
    a(f"s_add_u32 s32, s3, {WS_OF}")
    OFR = 88
    for st_ in range(16):
        a(f"s_add_u32 s33, s32, {st_*1024}")
        a(f"buffer_load_dwordx4 {v(OFR+4*st_,4)}, v1, s[{WSR}:{WSR+3}], s33 offen{SC1}")
    PA_ = [56, 72]
    WB = [24, 32]
    def rdW(st_):
        hd, f = st_ >> 1, st_ & 1
        off = (28 * hd + 16 * f) * 128
        b = WB[st_ & 1]
        for ct in range(2):
            a(f"ds_read_b64_tr_b16 {v(b+4*ct,2)}, v6 offset:{off+ct*64}")
            a(f"ds_read_b64_tr_b16 {v(b+4*ct+2,2)}, v6 offset:{off+ct*64+1024}")
    rdW(0)
    for st_ in range(16):
        if st_ + 1 < 16: rdW(st_ + 1)
        a(f"s_waitcnt vmcnt({15-st_}) lgkmcnt({4 if st_ + 1 < 16 else 0})")
        for ct in range(2):
            c = "0" if st_ == 0 else v(PA_[ct], 16)
            a(f"{MF} {v(PA_[ct],16)}, {v(OFR+4*st_,4)}, {v(WB[st_&1]+4*ct,4)}, {c}")
    a(f"s_xor_b32 s3, s{BW}, 1")
    a("s_lshl_b32 s3, s3, 12")
    a("s_add_u32 s3, s3, 65536")
    a(f"v_add_u32 v{t1}, s3, v1")
    a(f"s_and_b32 s33, s{BW}, 1")
    a("s_nop 7")
    a("s_cmp_eq_u32 s33, 0")
    a(f"s_cbranch_scc0 {P}_send0")
    for q in range(4): a(f"ds_write_b128 v{t1}, {v(PA_[1]+4*q,4)} offset:{q*1024}")
    a(f"s_branch {P}_sent")
    a.label(P + "_send0")
    a("s_nop 1")
    for q in range(4): a(f"ds_write_b128 v{t1}, {v(PA_[0]+4*q,4)} offset:{q*1024}")
    a("s_nop 1")
    for r in range(16): a(f"v_mov_b32 v{PA_[0]+r}, v{PA_[1]+r}")
    a.label(P + "_sent")
    bar()
    a(f"s_lshl_b32 s3, s{BW}, 12")
    a("s_add_u32 s3, s3, 65536")
    a(f"v_add_u32 v{t1}, s3, v1")
    for q in range(4): a(f"ds_read_b128 {v(88+4*q,4)}, v{t1} offset:{q*1024}")
    a("s_waitcnt lgkmcnt(0)")
    for r in range(16):
        a(f"v_add_f32 v{88+r}, v{88+r}, v{PA_[0]+r}")
        a(f"v_fma_f32 v{88+r}, v{GT+r}, v{88+r}, v{YT+r}")
    for r in range(16):
        a(f"buffer_store_dword v{88+r}, v{VO_}, s[48:51], 0 offen offset:{(r%2)*1792}{os.environ.get('OST', '')}")
        if r % 2 == 1 and r < 15: a(f"v_add_u32 v{VO_}, {2*1792}, v{VO_}")
    pf.stamp(14)
    a(f"s_branch {P}_end")
    a.label(P + "_skip")
    if os.environ.get("S3", "b") in ("b", "u"): stage3("b")
    a(f"v_mov_b32 v54, {L_CNT}")
    a("v_mov_b32 v55, 1")
    a("s_mov_b64 exec, 1")
    a(f"ds_add_u32 v54, v55 offset:{C_HCNT}")
    a("s_mov_b64 exec, -1")
    a.label(P + "_end")

def lds_wait(a, coff, target, vaddr, vtmp, lab, sleep=1):
    a.label(lab)
    a(f"ds_read_b32 v{vtmp}, v{vaddr} offset:{coff}")
    a("s_waitcnt lgkmcnt(0)")
    a(f"v_readfirstlane_b32 s3, v{vtmp}")
    a(f"s_cmp_ge_u32 s3, {target}")
    a(f"s_cbranch_scc1 {lab}_ok")
    a(f"s_sleep {sleep}")
    a(f"s_sub_u32 s{SPIN}, s{SPIN}, 1")
    a(f"s_cbranch_scc0 {lab}")
    a(f"s_mov_b32 s{SPIN}, 0")
    a.label(lab + "_ok")

def lds_arrive(a, coff, vaddr, vtmp):
    a(f"v_mov_b32 v{vaddr}, {L_CNT}")
    a(f"v_mov_b32 v{vtmp}, 1")
    a("s_mov_b64 exec, 1")
    a(f"ds_add_u32 v{vaddr}, v{vtmp} offset:{coff}")
    a("s_mov_b64 exec, -1")

def dma_loop(a, lab, vaddr, n, dsrc, dlds):
    a("s_mov_b32 s36, %d" % n)
    a.label(lab)
    a("s_sub_u32 s36, s36, 1")
    a(f"buffer_load_dwordx4 v{vaddr}, s[{TR}:{TR+3}], s32 offen lds")
    a(f"s_add_u32 s32, s32, {dsrc}")
    a(f"s_add_u32 m0, m0, {dlds}")
    a("s_cmp_lg_u32 s36, 0")
    a(f"s_cbranch_scc1 {lab}")

def q_loop(a, acc, X4, W4, vxe, vxo, vw):
    def rd(j):
        k = j & 3
        a(f"ds_read_b128 {v(X4+4*k,4)}, v{vxo if j & 1 else vxe} offset:{(j>>1)*4096}")
        a(f"ds_read_b64_tr_b16 {v(W4+4*k,2)}, v{vw} offset:{j*2048}")
        a(f"ds_read_b64_tr_b16 {v(W4+4*k+2,2)}, v{vw} offset:{j*2048+512}")
    for j in range(4): rd(j)
    for j in range(28):
        left = min(3, 27 - j)
        a(f"s_waitcnt lgkmcnt({3*left})")
        c = "0" if j == 0 else v(acc, 16)
        a(f"{MF} {v(acc,16)}, {v(W4+4*(j&3),4)}, {v(X4+4*(j&3),4)}, {c}")
        if j + 4 < 28: rd(j + 4)

def gen_fused(a):
    name = NAME + "_kernel"
    a(f".globl {name}")
    a(".p2align 8")
    a(f".type {name},@function")
    a.label(name)
    END = "L_end"
    a("s_cmp_ge_u32 s2, 256")
    a(f"s_cbranch_scc1 {END}")
    a("s_load_dwordx16 s[64:79], s[0:1], 0")
    a("s_load_dwordx16 s[80:95], s[0:1], 64")
    a("s_load_dwordx4 s[96:99], s[0:1], 128")
    if "earlycode" in X:
        a("s_getpc_b64 s[56:57]")
        a.label("p0_pc0")
        a("v_lshlrev_b32 v148, 7, v0")
        a("s_mov_b32 s3, L_end-p0_pc0")
        a("v_min_u32 v148, s3, v148")
        a("global_load_dword v149, v148, s[56:57]")
    a("v_lshrrev_b32 v2, 6, v0")
    a("v_and_b32 v0, 63, v0")
    a(f"v_readfirstlane_b32 s{WV}, v2")
    a(f"v_mov_b32 v4, {L_CNT}")
    a("v_mov_b32 v5, 0")
    a("v_lshl_add_u32 v4, v0, 2, v4")
    a("ds_write_b32 v4, v5")
    a(f"s_and_b32 s{RB}, s2, 7")
    a(f"s_lshl_b32 s{RB}, s{RB}, 2")
    a(f"s_lshr_b32 s{J2}, s2, 3")
    a(f"s_and_b32 s3, s{J2}, 3")
    a(f"s_add_u32 s{RB}, s{RB}, s3")
    a(f"s_lshr_b32 s{J2}, s{J2}, 2")
    a("v_lshlrev_b32 v1, 4, v0")
    a(f"s_mov_b32 s{SPIN}, 0x100000")
    a(f"s_sub_u32 s{BW}, s{WV}, 8")
    pfA = Prof(a, 167)
    xtile_lane_off(a, 3, 0, 4, 5)
    a("s_waitcnt lgkmcnt(0)")
    srd(a, WSR, S_WS, WS_SIZE)
    if PROF: a("v_mov_b32 v167, 0")
    pfA.stamp(0)
    if PROF:
        a("s_getreg_b32 s60, hwreg(HW_REG_XCC_ID)")
        a("v_writelane_b32 v167, s60, 20")
        a("s_getreg_b32 s60, hwreg(HW_REG_HW_ID)")
        a("v_writelane_b32 v167, s60, 21")
    a(f"s_cmp_lt_u32 s{WV}, 4")
    a("s_cselect_b64 s[46:47], -1, 0")
    a(f"s_cmp_eq_u32 s{J2}, 0")
    a(f"s_cselect_b32 s{TR}, s{S_WK}, s{S_WV}")
    a(f"s_cselect_b32 s{TR+1}, s{S_WK+1}, s{S_WV+1}")
    a(f"s_mov_b32 s{TR+2}, {WKBYTES}")
    a(f"s_mov_b32 s{TR+3}, 0x00020000")
    a(f"s_mul_i32 s32, s{BW}, 7168")
    a(f"s_add_u32 s34, s32, {L_WKV}")
    a("s_mov_b32 s33, 1024")
    a("s_mov_b32 s35, 1024")
    a(f"s_cmp_lt_u32 s{J2}, 2")
    a("s_cselect_b32 s36, 7, 0")
    a(f"s_cmp_ge_u32 s{WV}, 8")
    a("s_cselect_b32 s36, s36, 0")
    a("v_cndmask_b32 v3, v1, v3, s[46:47]")
    a(f"s_mul_i32 s40, s{RB}, {64*896}")
    a(f"s_lshr_b32 s3, s{WV}, 1")
    a(f"s_mul_i32 s3, s3, {32*896}")
    a("s_add_u32 s40, s40, s3")
    a(f"s_and_b32 s3, s{WV}, 1")
    a(f"s_mul_i32 s3, s3, {8*896}")
    a("s_add_u32 s40, s40, s3")
    a(f"s_lshl_b32 s41, s{WV}, 10")
    a(f"s_cmp_lt_u32 s{WV}, 4")
    a(f"s_cselect_b32 s{TR}, s{S_X}, s{TR}")
    a(f"s_cselect_b32 s{TR+1}, s{S_X+1}, s{TR+1}")
    a(f"s_cselect_b32 s{TR+2}, {XBYTES}, s{TR+2}")
    a("s_cselect_b32 s32, s40, s32")
    a("s_cselect_b32 s34, s41, s34")
    a("s_cselect_b32 s33, 64, s33")
    a("s_cselect_b32 s35, 4096, s35")
    a("s_cselect_b32 s36, 14, s36")
    a("s_mov_b32 m0, s34")
    a("s_cmp_eq_u32 s36, 0")
    a("s_cbranch_scc1 p0_first_done")
    a.label("p0_first")
    a("s_sub_u32 s36, s36, 1")
    a(f"buffer_load_dwordx4 v3, s[{TR}:{TR+3}], s32 offen lds")
    a("s_add_u32 s32, s32, s33")
    a("s_add_u32 m0, m0, s35")
    a("s_cmp_lg_u32 s36, 0")
    a("s_cbranch_scc1 p0_first")
    a.label("p0_first_done")
    a(f"s_cmp_ge_u32 s{WV}, 8")
    a("s_cbranch_scc1 p0_bgw")
    a(f"s_cmp_ge_u32 s{WV}, 4")
    a("s_cbranch_scc1 p0_kvw")
    a("s_barrier")
    pfA.stamp(1)
    xfrag_addr(a, 6, 0, 4)
    tr_rowcol(a, 12, 13, 0, 4)
    a(f"s_lshr_b32 s38, s{WV}, 1")
    a(f"s_and_b32 s39, s{WV}, 1")
    a("s_lshl_b32 s3, s38, 11")
    a("v_add_u32 v6, s3, v6")
    a("v_xor_b32 v7, 32, v6")
    a("v_lshlrev_b32 v10, 7, v12")
    a("v_lshl_add_u32 v10, v13, 1, v10")
    a("s_mul_i32 s3, s39, 56")
    a(f"s_add_u32 s3, s3, {L_WQ}")
    a("v_add_u32 v10, s3, v10")
    a("s_waitcnt vmcnt(0)")
    lds_arrive(a, C_XR, 4, 5)
    pfA.stamp(2)
    a("s_waitcnt lgkmcnt(0)")
    a("s_barrier")
    pfA.stamp(3)
    q_loop(a, 16, 32, 48, 6, 7, 10)
    a(f"s_mov_b32 s42, {hex(QSCALE)}")
    a(f"s_lshl_b32 s3, s{WV}, 11")
    a(f"s_add_u32 s3, s3, {L_QX}")
    a("v_add_u32 v12, s3, v1")
    a("s_nop 7")
    a("s_nop 0")
    for i in range(16): a(f"v_mul_f32 v{16+i}, s42, v{16+i}")
    for i in range(8): a(f"v_cvt_pk_bf16_f32 v{32+i}, v{16+2*i}, v{17+2*i}")
    a("s_mov_b32 exec_lo, 0")
    a("v_mov_b32 v38, 0")
    a("v_mov_b32 v39, 0")
    a("s_mov_b32 exec_lo, -1")
    a("ds_write_b128 v12, v[32:35]")
    a("ds_write_b128 v12, v[36:39] offset:1024")
    a("s_branch p0_b1")
    a.label("p0_kvw")
    a(f"s_sub_u32 s39, s{WV}, 4")
    if "earlycode" not in X:
        a("s_getpc_b64 s[56:57]")
        a.label("p0_pc")
        a("s_lshl_b32 s3, s39, 13")
        a("v_lshlrev_b32 v150, 7, v0")
        a("v_add_u32 v150, s3, v150")
        a(f"s_sub_u32 s56, s56, p0_pc-{NAME}_kernel")
        a("s_subb_u32 s57, s57, 0")
        a(f"s_mov_b32 s3, L_end-{NAME}_kernel")
        a("v_min_u32 v150, s3, v150")
        a("global_load_dword v150, v150, s[56:57]")
    a("s_cmp_eq_u32 s39, 0")
    a("s_cbranch_scc0 p0_pf_out")
    a("v_lshlrev_b32 v151, 21, v0")
    a("s_mov_b64 exec, 7")
    a(f"buffer_load_dword v151, v151, s[{WSR}:{WSR+3}], 0 offen")
    a("s_mov_b64 exec, -1")
    a.label("p0_pf_out")
    a("s_cmp_eq_u32 s39, 1")
    a("s_cbranch_scc0 p0_pf_done")
    srd(a, 48, S_OUT, OUTBYTES)
    a("v_mul_u32_u24 v151, 0x1c0000, v0")
    a("s_mov_b64 exec, 7")
    a("buffer_load_dword v151, v151, s[48:51], 0 offen")
    a("s_mov_b64 exec, -1")
    if os.environ.get("S3") == "mall":
        a("s_cmp_eq_u32 s39, 3")
        a("s_cbranch_scc0 p0_pf_done")
        a("v_lshlrev_b32 v149, 7, v0")
        a(f"s_mul_i32 s3, s2, {13*128}")
        a(f"s_mov_b32 m0, {L_JUNK}")
        a("s_mov_b64 exec, 0x1fff")
        for sp in (S_CRE, S_CIM, S_WO):
            srd(a, 48, sp, WBYTES)
            a("buffer_load_dword v149, s[48:51], s3 offen lds")
        a("s_mov_b64 exec, -1")
    a.label("p0_pf_done")
    a("s_barrier")
    a(f"s_cmp_ge_u32 s{J2}, 3")
    a("s_cbranch_scc1 p0_kv_none")
    a("s_lshr_b32 s38, s39, 1")
    a("s_and_b32 s39, s39, 1")
    a(f"s_mov_b32 s15, {1 if 'dry' in X else 0}")
    a("s_setprio 3")
    a.label("p0_kv_setup")
    a(f"s_mov_b32 s8, s{WSR}")
    a(f"s_mov_b32 s9, s{WSR+1}")
    a("s_cmp_eq_u32 s15, 0")
    a(f"s_cselect_b32 s10, {WS_SIZE}, 0")
    a("s_mov_b32 s11, 0x00020000")
    xfrag_addr(a, 6, 0, 4)
    tr_rowcol(a, 12, 13, 0, 4)
    a("s_lshl_b32 s3, s38, 11")
    a("s_mul_i32 s41, s39, 28672")
    a("s_add_u32 s3, s3, s41")
    a("v_add_u32 v6, s3, v6")
    a("v_xor_b32 v7, 32, v6")
    a("s_mul_i32 s40, s39, 14")
    a(f"s_cmp_eq_u32 s{J2}, 2")
    a("s_cbranch_scc1 p0_kv_gaddr")
    a("v_mul_u32_u24 v10, 56, v12")
    a("v_lshl_add_u32 v10, v13, 1, v10")
    a(f"s_mul_i32 s3, s40, {16*56}")
    a(f"s_add_u32 s3, s3, {L_WKV}")
    a("v_add_u32 v10, s3, v10")
    a("v_add_u32 v11, 224, v10")
    a(f"s_mov_b32 s42, {16*56}")
    a("s_branch p0_kv_addr_done")
    a.label("p0_kv_gaddr")
    a("v_lshlrev_b32 v10, 3, v12")
    a("s_lshl_b32 s3, s40, 7")
    a(f"s_add_u32 s3, s3, {L_WKV}")
    a("v_add_u32 v10, s3, v10")
    a("v_add_u32 v11, 32, v10")
    a("s_mov_b32 s42, 128")
    a.label("p0_kv_addr_done")
    a(f"v_mov_b32 v4, {L_CNT}")
    a("s_cmp_lg_u32 s15, 0")
    a("s_cbranch_scc1 p0_xr_ok")
    lds_wait(a, C_XR, 8, 4, 5, "p0_xr")
    pfA.stamp(2)
    def kv_rd(i):
        a(f"ds_read_b128 {v(32+4*i,4)}, v{6+(i&1)} offset:{(i>>1)*4096}")
        a(f"ds_read_b64_tr_b16 {v(88+4*i,2)}, v10")
        a(f"ds_read_b64_tr_b16 {v(88+4*i+2,2)}, v11")
        if i < 13:
            a("v_add_u32 v10, s42, v10")
            a("v_add_u32 v11, s42, v11")
    def kv_mm(swap, tag):
        for i in range(4): kv_rd(i)
        for i in range(14):
            a(f"s_waitcnt lgkmcnt({3*min(3, 13-i)})")
            A, B = (32+4*i, 88+4*i) if swap else (88+4*i, 32+4*i)
            a(f"{MF} v[16:31], {v(A,4)}, {v(B,4)}, {'0' if i == 0 else 'v[16:31]'}")
            if i + 4 < 14: kv_rd(i + 4)
    a(f"s_cmp_ge_u32 s{J2}, 1")
    a("s_cbranch_scc1 p0_kv_swap")
    kv_mm(False, "k")
    a("s_branch p0_kv_mm_done")
    a.label("p0_kv_swap")
    kv_mm(True, "v")
    a.label("p0_kv_mm_done")
    pfA.stamp(22)
    a("s_lshl_b32 s3, s38, 12")
    a(f"s_add_u32 s3, s3, {L_QX}")
    a("v_add_u32 v12, s3, v1")
    a("s_nop 7")
    a("s_nop 0")
    a("s_cmp_lg_u32 s15, 0")
    a("s_cbranch_scc1 p0_kv_root")
    a("s_cmp_eq_u32 s39, 0")
    a("s_cbranch_scc1 p0_kv_root")
    for q in range(4): a(f"ds_write_b128 v12, {v(16+4*q,4)} offset:{q*1024}")
    a("s_waitcnt lgkmcnt(0)")
    a("s_lshl_b32 s3, s38, 2")
    a(f"v_mov_b32 v4, {L_CNT}")
    a("v_add_u32 v4, s3, v4")
    a("v_mov_b32 v5, 1")
    a("s_mov_b64 exec, 1")
    a(f"ds_add_u32 v4, v5 offset:{C_KVR}")
    a("s_mov_b64 exec, -1")
    a("s_branch p0_kv_none")
    a.label("p0_kv_root")
    a("s_lshl_b32 s3, s38, 2")
    a(f"v_mov_b32 v4, {L_CNT}")
    a("v_add_u32 v4, s3, v4")
    a("s_cmp_lg_u32 s15, 0")
    a("s_cbranch_scc1 p0_kvr_ok")
    lds_wait(a, C_KVR, 1, 4, 5, "p0_kvr")
    pfA.stamp(23)
    for i in range(4): a(f"ds_read_b128 {v(32+4*i,4)}, v12 offset:{i*1024}")
    a("s_waitcnt lgkmcnt(0)")
    for r in range(16): a(f"v_add_f32 v{16+r}, v{16+r}, v{32+r}")
    a(f"s_lshl_b32 s43, s{RB}, 1")
    a("s_add_u32 s43, s43, s38")
    a(f"s_cmp_eq_u32 s{J2}, 2")
    a("s_cbranch_scc1 p0_gate_epi")
    for i in range(8): a(f"v_cvt_pk_bf16_f32 v{32+i}, v{16+2*i}, v{17+2*i}")
    a("s_lshl_b32 s44, s43, 12")
    a(f"s_add_u32 s44, s44, {WS_KV}")
    a(f"s_cmp_eq_u32 s{J2}, 1")
    a("s_cbranch_scc1 p0_v_epi")
    a("s_mov_b32 exec_lo, 0")
    a("v_mov_b32 v38, 0x3f803f80")
    a("v_mov_b32 v39, 0x00003f80")
    a("s_mov_b32 exec_lo, -1")
    a(f"buffer_store_dwordx4 v[32:35], v1, s[8:11], s44 offen{SC1}")
    a(f"buffer_store_dwordx4 v[36:39], v1, s[8:11], s44 offen offset:1024{SC1}")
    a("s_branch p0_kv_arrive")
    a.label("p0_v_epi")
    a("v_max3_f32 v14, |v16|, |v17|, |v18|")
    for j in range(3, 15, 2): a(f"v_max3_f32 v14, v14, |v{16+j}|, |v{17+j}|")
    a("v_max_f32 v14, v14, |v31|")
    a("v_and_b32 v13, 31, v0")
    a("v_cmp_gt_u32 s[46:47], 28, v13")
    a(f"v_cmp_lt_f32 vcc, {hex(VMAX)}, v14")
    a("s_and_b64 vcc, vcc, s[46:47]")
    a("s_cbranch_vccz p0_v_ok")
    a("s_cmp_lg_u32 s15, 0")
    a("s_cbranch_scc1 p0_v_ok")
    srd(a, 48, S_DBG, 256)
    a("v_mov_b32 v14, 1")
    a(f"v_mov_b32 v15, {D_BAD}")
    a("s_mov_b64 exec, 1")
    a(f"buffer_store_dword v14, v15, s[48:51], 0 offen{SC1}")
    a("s_mov_b64 exec, -1")
    a.label("p0_v_ok")
    a("v_and_b32 v13, 31, v0")
    a("v_cmp_eq_u32 vcc, 28, v13")
    a("v_mov_b32 v14, 0x3f803f80")
    a("s_nop 0")
    a("v_cndmask_b32 v14, 0, v14, vcc")
    a("v_cmp_lt_u32 vcc, 27, v13")
    a("s_nop 1")
    for i in range(8): a(f"v_cndmask_b32 v{32+i}, v{32+i}, v14, vcc")
    a(f"buffer_store_dwordx4 v[32:35], v1, s[8:11], s44 offen offset:2048{SC1}")
    a(f"buffer_store_dwordx4 v[36:39], v1, s[8:11], s44 offen offset:3072{SC1}")
    a("s_branch p0_kv_arrive")
    a.label("p0_gate_epi")
    a(f"s_mov_b32 s42, {hex(LOG2E)}")
    for i in range(16): a(f"v_mul_f32 v{16+i}, s42, v{16+i}")
    for i in range(16): a(f"v_exp_f32 v{16+i}, -v{16+i}")
    for i in range(16): a(f"v_add_f32 v{16+i}, 1.0, v{16+i}")
    for i in range(16): a(f"v_rcp_f32 v{16+i}, v{16+i}")
    a("v_lshrrev_b32 v13, 5, v0")
    a("v_lshlrev_b32 v13, 6, v13")
    a("s_lshl_b32 s44, s43, 7")
    a(f"s_add_u32 s44, s44, {WS_G}")
    a("v_and_b32 v14, 31, v0")
    a("v_cmp_eq_u32 vcc, 0, v14")
    a("s_and_saveexec_b64 s[46:47], vcc")
    for q in range(4):
        a(f"buffer_store_dwordx4 {v(16+4*q,4)}, v13, s[8:11], s44 offen offset:{16*q}{SC1}")
    a("s_mov_b64 exec, -1")
    a.label("p0_kv_arrive")
    a("s_cmp_eq_u32 s15, 0")
    a("s_cbranch_scc1 p0_kv_real")
    a("s_mov_b32 s15, 0")
    a("s_branch p0_kv_setup")
    a.label("p0_kv_real")
    pfA.stamp(10)
    a("s_mov_b32 s16, 1")
    a("s_branch p0_kv_b0")
    a.label("p0_kv_none")
    a("s_mov_b32 s16, 0")
    a.label("p0_kv_b0")
    a("s_setprio 0")
    a("s_waitcnt lgkmcnt(0)")
    a("s_barrier")
    pfA.stamp(3)
    a("s_branch p0_b1")
    a.label("p0_bgw")
    a(f"s_cmp_eq_u32 s{WV}, 8")
    a("s_cbranch_scc0 p0_t9")
    srd(a, 48, S_X, XBYTES)
    a("s_and_b32 s3, s2, 7")
    a(f"s_mul_i32 s3, s3, {256*896}")
    a("s_lshr_b32 s46, s2, 3")
    a("s_mul_i32 s46, s46, 7168")
    a("s_add_u32 s3, s3, s46")
    a("v_lshlrev_b32 v50, 7, v0")
    a("s_mov_b32 exec_hi, 0xffffff")
    a("buffer_load_dword v52, v50, s[48:51], s3 offen")
    a("s_mov_b64 exec, -1")
    a("s_branch p0_t_done")
    a.label("p0_t9")
    a(f"s_cmp_eq_u32 s{WV}, 9")
    a("s_cbranch_scc0 p0_t10")
    touch_matrix(a, S_WQ, 52, 50)
    a("s_branch p0_t_done")
    a.label("p0_t10")
    a(f"s_cmp_eq_u32 s{WV}, 10")
    a("s_cbranch_scc0 p0_t_done")
    a("s_lshr_b32 s3, s2, 3")
    a(f"s_mul_i32 s3, s3, {7*128}")
    a("v_lshlrev_b32 v50, 7, v0")
    a("s_mov_b64 exec, 0x7f")
    srd(a, 48, S_WK, WKBYTES)
    a("buffer_load_dword v52, v50, s[48:51], s3 offen")
    srd(a, 48, S_WV, WKBYTES)
    a("buffer_load_dword v53, v50, s[48:51], s3 offen")
    a("s_mov_b64 exec, -1")
    a.label("p0_t_done")
    a(f"s_cmp_eq_u32 s{WV}, 11")
    a("s_cbranch_scc0 p0_nononce")
    a("s_cmp_eq_u32 s2, 0")
    a("s_cbranch_scc0 p0_nononce")
    srd(a, 48, S_DBG, 256)
    a("v_mov_b32 v7, 0")
    a("s_memrealtime s[60:61]")
    a("s_waitcnt lgkmcnt(0)")
    a("s_and_b32 s60, s60, 0xfffffffc")
    a("s_or_b32 s60, s60, 1")
    a("v_mov_b32 v6, s60")
    a("s_mov_b64 exec, 1")
    a(f"buffer_store_dword v6, v7, s[48:51], 0 offen offset:{D_NONCE}{SC1}")
    a("s_mov_b64 exec, -1")
    a.label("p0_nononce")
    a(f"s_cmp_eq_u32 s{J2}, 2")
    a("s_cbranch_scc0 p0_wkv_done")
    a(f"s_cmp_eq_u32 s{WV}, 8")
    a("s_cbranch_scc0 p0_wkv_done")
    srd(a, TR, S_GW, 896)
    a("v_lshlrev_b32 v3, 1, v0")
    for i in range(7):
        a(f"buffer_load_ushort v{10+i}, v3, s[{TR}:{TR+3}], 0 offen offset:{i*128}")
    a("v_lshlrev_b32 v4, 3, v0")
    a(f"v_add_u32 v4, {L_WKV}, v4")
    a("s_waitcnt vmcnt(0)")
    for i in range(7):
        a(f"v_lshl_or_b32 v{20+2*i}, v{10+i}, 16, v{10+i}")
        a(f"v_mov_b32 v{21+2*i}, v{20+2*i}")
        a(f"ds_write_b64 v4, {v(20+2*i,2)} offset:{i*512}")
    a.label("p0_wkv_done")
    a(f"s_lshl_b32 s37, s{J2}, 1")
    a(f"s_and_b32 s3, s{BW}, 1")
    a("s_add_u32 s37, s37, s3")
    a("v_and_b32 v4, 31, v0")
    a("s_lshl_b32 s3, s37, 6")
    a("v_lshl_add_u32 v4, v4, 1, s3")
    srd(a, 40, S_LRE, 896); a("buffer_load_ushort v8, v4, s[40:43], 0 offen")
    srd(a, 44, S_LIM, 896); a("buffer_load_ushort v9, v4, s[44:47], 0 offen")
    srd(a, 52, S_LDT, 896); a("buffer_load_ushort v10, v4, s[52:55], 0 offen")
    a("s_barrier")
    a("s_waitcnt vmcnt(3) lgkmcnt(0)")
    lds_arrive(a, C_XR, 4, 5)
    srd(a, TR, S_WQ, WBYTES)
    a("v_lshrrev_b32 v3, 3, v0")
    a("v_mul_u32_u24 v3, 896, v3")
    a("v_and_b32 v4, 7, v0")
    a("v_lshl_add_u32 v3, v4, 4, v3")
    a(f"s_mul_i32 s32, s{BW}, {112*896}")
    a(f"s_mul_i32 s33, s{J2}, 112")
    a("s_add_u32 s32, s32, s33")
    a(f"s_mul_i32 s34, s{BW}, 14336")
    a(f"s_add_u32 s34, s34, {L_WQ}")
    a("s_mov_b32 m0, s34")
    dma_loop(a, "p0_qdma", 3, 14, 7168, 1024)
    a(f"s_cmp_gt_u32 s{WV}, 9")
    a("s_cbranch_scc1 p0_nob")
    a(f"s_cmp_eq_u32 s{WV}, 8")
    a(f"s_cselect_b32 s56, s{S_BRE}, s{S_BIM}")
    a(f"s_cselect_b32 s57, s{S_BRE+1}, s{S_BIM+1}")
    touch_matrix(a, 56, 52, 50)
    a("s_mov_b32 s17, 1")
    a("s_waitcnt vmcnt(16)")
    a("s_branch p0_nob2")
    a.label("p0_nob")
    a("s_mov_b32 s17, 0")
    a("s_waitcnt vmcnt(14)")
    a.label("p0_nob2")
    a(f"v_mov_b32 v4, {L_CNT}")
    lds_wait(a, C_XR, 8, 4, 5, "p0_xr2")
    xfrag_addr(a, 6, 0, 4)
    a(f"s_lshr_b32 s38, s{BW}, 1")
    a("s_lshl_b32 s3, s38, 11")
    a("v_add_u32 v6, s3, v6")
    a("v_xor_b32 v7, 32, v6")
    for j in range(28):
        a(f"ds_read_b128 {v(56+4*j,4)}, v{6 + (j&1)} offset:{(j>>1)*4096}")
        if j in (11, 21): a("s_waitcnt lgkmcnt(2)")
    a("v_lshlrev_b32 v8, 16, v8")
    a("v_lshlrev_b32 v9, 16, v9")
    a("v_lshlrev_b32 v10, 16, v10")
    a(f"v_mul_f32 v10, {hex(LOG2E)}, v10")
    a("v_exp_f32 v10, v10")
    a("s_nop 0")
    a("v_cvt_pk_bf16_f32 v10, v10, v10")
    a("v_lshlrev_b32 v10, 16, v10")
    a("v_mul_f32 v11, v10, v8")
    a("v_mul_f32 v12, v10, v9")
    a(f"v_mul_f32 v11, {hex(LOG2E)}, v11")
    a(f"v_mul_f32 v12, {hex(INV2PI)}, v12")
    a("v_exp_f32 v13, v11")
    a("v_fract_f32 v14, v12")
    a("s_nop 0")
    a("v_cos_f32 v2, v14")
    a("v_sin_f32 v3, v14")
    a("s_nop 0")
    a("v_mul_f32 v2, v2, v13")
    a("v_mul_f32 v3, v3, v13")
    a("v_add_f32 v13, -1.0, v2")
    a("v_mul_f32 v14, v8, v8")
    a("v_fma_f32 v14, v9, v9, v14")
    a("v_rcp_f32 v14, v14")
    a("v_mul_f32 v15, v13, v8")
    a("v_fma_f32 v15, v3, v9, v15")
    a("v_mul_f32 v16, v3, v8")
    a("v_fma_f32 v16, -v13, v9, v16")
    a("v_mul_f32 v4, v15, v14")
    a("v_mul_f32 v5, v16, v14")
    a("s_cmp_eq_u32 s17, 0")
    a("s_cbranch_scc1 p0_bgw0")
    a("s_waitcnt vmcnt(2) lgkmcnt(0)")
    a("s_branch p0_bgw1")
    a.label("p0_bgw0")
    a("s_waitcnt vmcnt(0) lgkmcnt(0)")
    a.label("p0_bgw1")
    a("s_barrier")
    a.label("p0_b1")
    a("s_waitcnt lgkmcnt(0)")
    if PROF:
        a(f"s_cmp_ge_u32 s{WV}, 8")
        a("s_cbranch_scc1 p0_b1_bgst")
        pfA.stamp(9)
        a("s_branch p0_b1_go")
        a.label("p0_b1_bgst")
        BgProf(a).stamp(4)
        a.label("p0_b1_go")
    a("s_barrier")
    a(f"s_cmp_ge_u32 s{WV}, 8")
    a("s_cbranch_scc1 p1_bg")
    a(f"s_cmp_lt_u32 s{WV}, 4")
    a("s_cbranch_scc1 p1_noarr")
    a("s_cmp_eq_u32 s16, 0")
    a("s_cbranch_scc1 p1_noarr")
    a(f"v_mov_b32 v14, {L_CNT}")
    a("v_mov_b32 v15, 1")
    a("s_waitcnt vmcnt(0)")
    pfA.stamp(11)
    a("s_mov_b64 exec, 1")
    a(f"s_or_b32 s3, s{RB}, s{J2}")
    a(f"s_cmp_eq_u32 s{WV}, 4")
    a("s_cselect_b32 s3, s3, 1")
    a("s_cmp_eq_u32 s3, 0")
    a("s_cbranch_scc0 p1_nok0")
    srd(a, 48, S_DBG, 256)
    a("v_mov_b32 v12, 1")
    a(f"v_mov_b32 v13, {D_K0}")
    a(f"buffer_store_dword v12, v13, s[48:51], 0 offen{SC1}")
    a.label("p1_nok0")
    a(f"ds_add_rtn_u32 v15, v14, v15 offset:{C_KVA}")
    a("s_waitcnt lgkmcnt(0)")
    a("v_readfirstlane_b32 s3, v15")
    a("s_cmp_eq_u32 s3, 1")
    a("s_cbranch_scc0 p1_arrdone")
    srd(a, 48, S_DBG, 256)
    a("v_mov_b32 v14, 1")
    a(f"s_cmp_eq_u32 s{J2}, 2")
    a(f"s_cselect_b32 s3, {D_GCNT}, {D_CNT}")
    a("v_mov_b32 v15, s3")
    a("buffer_atomic_add v14, v15, s[48:51], 0 offen sc0 sc1")
    a("s_waitcnt vmcnt(0)")
    a("v_readfirstlane_b32 s3, v14")
    a(f"s_cmp_eq_u32 s{J2}, 2")
    a("s_cselect_b32 s46, 31, 63")
    a(f"s_mov_b32 s47, {D_GO}")
    a(f"s_cselect_b32 s47, {D_GOG}, s47")
    a("s_cmp_eq_u32 s3, s46")
    a("s_cbranch_scc0 p1_arrdone")
    a("v_mov_b32 v14, 1")
    a("v_mov_b32 v15, s47")
    a(f"buffer_store_dword v14, v15, s[48:51], 0 offen{SC1}")
    a.label("p1_arrdone")
    a("s_mov_b64 exec, -1")
    pfA.stamp(12)
    a.label("p1_noarr")
    if PROF: a("v_mov_b32 v0, v167")
    pf = Prof(a, 0)
    pf.stamp(4)
    gen_attention(a, pf)
    pf.flush(2)
    a(f"s_branch {END}")
    a.label("p1_bg")
    a("s_setprio 3")
    gen_background(a, BgProf(a))
    a.label(END)
    a("s_endpgm")
    return name

class BgProf:
    def __init__(self, a): self.a = a; self.T = [54, 55]
    def stamp(self, slot):
        if not PROF or "noprofb" in X: return
        if "onlyb" in os.environ and str(slot) not in os.environ["onlyb"].split(","): return
        a = self.a
        a("s_memrealtime s[60:61]")
        a("s_lshl_b32 s62, s2, 4")
        a(f"s_add_u32 s62, s62, s{WV}")
        a("s_lshl_b32 s62, s62, 8")
        a(f"s_add_u32 s62, s62, {WS_PROF + 4*slot}")
        a("s_waitcnt vmcnt(0) lgkmcnt(0)")
        a("s_mov_b64 exec, 1")
        t0, t1 = self.T
        a(f"v_mov_b32 v{t0}, s60")
        a(f"v_mov_b32 v{t1}, 0")
        a(f"buffer_store_dword v{t0}, v{t1}, s[{WSR}:{WSR+3}], s62 offen")
        a("s_mov_b64 exec, -1")
        a("s_waitcnt vmcnt(0)")
    def flush(self): pass

def build():
    a = Asm()
    name = gen_fused(a)
    text = a.text()
    probs = check_hazards(text)
    ref = open("gated_mix__grouped_kv_mqa__ssm_conv_s5__prompt.s.ref").read().split("\n")
    pre = []
    for ln in ref:
        if not ln.startswith(";"): break
        if "Override launch" in ln or "grid=ceil" in ln or "@launch" in ln: continue
        pre.append(ln)
    head = "\n".join(pre) + "\n"
    head += f"; @launch grid=(256,1,1) block=(768,1,1) lds={LDS_TOTAL}\n"
    out = head + '.amdgcn_target "amdgcn-amd-amdhsa--gfx950"\n.text\n' + text
    out += f""".section .rodata,"a"
.p2align 6
.amdhsa_kernel {name}
  .amdhsa_next_free_vgpr 168
  .amdhsa_next_free_sgpr 102
  .amdhsa_accum_offset 168
  .amdhsa_group_segment_fixed_size 0
  .amdhsa_kernarg_size 144
  .amdhsa_user_sgpr_count 2
  .amdhsa_user_sgpr_kernarg_segment_ptr 1
  .amdhsa_system_sgpr_workgroup_id_x 1
.end_amdhsa_kernel
"""
    return out, probs

if __name__ == "__main__":
    out, probs = build()
    open(sys.argv[1], "w").write(out)
    print("wrote", sys.argv[1], "hazards:", len(probs))
```

```python
import sys, os, struct, math
from asmlib import Asm, v, s, check_hazards

NAME = "gated_mix__grouped_kv_mqa__ssm_conv_s5__prompt"
X = set(os.environ.get('XF', '').split(','))
PROF = "prof" in X
def f2u(x): return struct.unpack("<I", struct.pack("<f", x))[0]
QSCALE = f2u(math.log2(math.e) / math.sqrt(28.0))
LOG2E = f2u(math.log2(math.e))
INV2PI = f2u(1.0 / (2.0 * math.pi))
MF = "v_mfma_f32_32x32x16_bf16"
SC1 = " sc1"
POLLSLEEP = int(os.environ.get('PS', '1'))

WS_KV = 0x000000
WS_G  = 0x040000
WS_FL = 0x042000
FL_H  = WS_FL
FL_O  = WS_FL + 0x1000
WS_E  = 0x048000
D_CNT, D_GCNT, D_GO, D_BAD, D_K0, D_NONCE, D_GOG = 0, 64, 128, 132, 136, 140, 144
WS_OF = 0x080000
WS_HF = 0x280000
WS_PROF = 0x800000
WS_SIZE = 0x1000000
XBYTES = 2048 * 448 * 2
WBYTES = 448 * 448 * 2
WKBYTES = 448 * 28 * 2
OUTBYTES = 2048 * 448 * 4

S_X, S_WQ, S_WK, S_WV, S_WO = 64, 66, 68, 70, 72
S_LRE, S_LIM = 76, 78
S_BRE, S_BIM, S_CRE, S_CIM, S_LDT, S_DSK, S_GW, S_OUT = 80, 82, 84, 86, 88, 90, 92, 94
S_DBG, S_WS = 96, 98
RB, J2, WV, BW = 20, 21, 22, 23
WSR = 24
TR = 28
NONCE = 19
SPIN = 18

L_X = 0; L_WQ = 57344; L_WKV = 114688; L_GW = 143360
L_QX = 147456
L_CNT = 163584
C_ATT, C_BG, C_NONCE, C_BAD, C_UDONE, C_HCNT, C_OCNT, C_XR, C_KVR, C_KVA, C_TRD, C_LEND, C_BL = 0, 4, 8, 12, 16, 20, 24, 28, 32, 40, 44, 48, 52
B_EX = 159744; B_HT = 90112
B_HT2 = 69632
L_C = 0
L_RED = 0
L_WO = 0
A_OP = 90112; A_LP = 155648
LDS_TOTAL = 163840

def srd(a, dst, src, nbytes):
    a(f"s_mov_b32 s{dst}, s{src}")
    a(f"s_mov_b32 s{dst+1}, s{src+1}")
    a(f"s_mov_b32 s{dst+2}, {hex(nbytes)}")
    a(f"s_mov_b32 s{dst+3}, 0x00020000")

class Prof:
    def __init__(self, a, vreg): self.a = a; self.v = vreg
    def stamp(self, slot):
        if not PROF or "noprofa" in X: return
        a = self.a
        a("s_memrealtime s[60:61]")
        a("s_memtime s[62:63]")
        a("s_waitcnt lgkmcnt(0)")
        a(f"v_writelane_b32 v{self.v}, s60, {slot}")
        a(f"v_writelane_b32 v{self.v}, s62, {slot+32}")
    def flush(self, vt):
        if not PROF: return
        a = self.a
        a("s_lshl_b32 s60, s2, 4")
        a(f"s_add_u32 s60, s60, s{WV}")
        a("s_lshl_b32 s60, s60, 8")
        a(f"s_add_u32 s60, s60, {WS_PROF}")
        a("s_mov_b64 exec, -1")
        a(f"v_mbcnt_lo_u32_b32 v{vt}, -1, 0")
        a(f"v_mbcnt_hi_u32_b32 v{vt}, -1, v{vt}")
        a(f"v_lshlrev_b32 v{vt}, 2, v{vt}")
        a(f"buffer_store_dword v{self.v}, v{vt}, s[{WSR}:{WSR+3}], s60 offen")
        a("s_waitcnt vmcnt(0)")

def xtile_lane_off(a, vd, vlane, vt0, vt1):
    a(f"v_lshrrev_b32 v{vt0}, 4, v{vlane}")
    a(f"v_and_b32 v{vt1}, 1, v{vt0}")
    a(f"v_lshlrev_b32 v{vt1}, 4, v{vt1}")
    a(f"v_lshrrev_b32 v{vd}, 5, v{vlane}")
    a(f"v_lshl_add_u32 v{vt1}, v{vd}, 2, v{vt1}")
    a(f"v_bfe_u32 v{vd}, v{vlane}, 2, 2")
    a(f"v_add_u32 v{vt1}, v{vt1}, v{vd}")
    a(f"v_mul_u32_u24 v{vt1}, 896, v{vt1}")
    a(f"v_and_b32 v{vd}, 3, v{vlane}")
    a(f"v_xor_b32 v{vd}, v{vd}, v{vt0}")
    a(f"v_lshl_add_u32 v{vd}, v{vd}, 4, v{vt1}")

def plain_lane_off(a, vd, vlane, vt0):
    a(f"v_lshrrev_b32 v{vt0}, 4, v{vlane}")
    a(f"v_and_b32 v{vd}, 3, v{vlane}")
    a(f"v_xor_b32 v{vd}, v{vd}, v{vt0}")
    a(f"v_lshlrev_b32 v{vd}, 4, v{vd}")
    a(f"v_lshrrev_b32 v{vt0}, 2, v{vlane}")
    a(f"v_mul_u32_u24 v{vt0}, 896, v{vt0}")
    a(f"v_add_u32 v{vd}, v{vd}, v{vt0}")

def xfrag_addr(a, vd, vlane, vt0):
    a(f"v_bfe_u32 v{vt0}, v{vlane}, 2, 2")
    a(f"v_lshrrev_b32 v{vd}, 5, v{vlane}")
    a(f"v_xor_b32 v{vt0}, v{vt0}, v{vd}")
    a(f"v_lshlrev_b32 v{vt0}, 4, v{vt0}")
    a(f"v_and_b32 v{vd}, 31, v{vlane}")
    a(f"v_lshl_add_u32 v{vd}, v{vd}, 6, v{vt0}")

def tr_rowcol(a, vrow, vcol, vlane, vt):
    a(f"v_lshrrev_b32 v{vrow}, 5, v{vlane}")
    a(f"v_lshlrev_b32 v{vrow}, 3, v{vrow}")
    a(f"v_bfe_u32 v{vt}, v{vlane}, 2, 2")
    a(f"v_add_u32 v{vrow}, v{vrow}, v{vt}")
    a(f"v_and_b32 v{vcol}, 16, v{vlane}")
    a(f"v_and_b32 v{vt}, 3, v{vlane}")
    a(f"v_lshl_add_u32 v{vcol}, v{vt}, 2, v{vcol}")

def proj_loop(a, swap, acc, xe, xo, we, wo_, vxe, vxo, vw1, vw2, s_wstep, s_cnt, lab):
    def rd(xr, wr, vx):
        a(f"ds_read_b128 {v(xr,4)}, v{vx}")
        a(f"ds_read_b64_tr_b16 {v(wr,2)}, v{vw1}")
        a(f"ds_read_b64_tr_b16 {v(wr+2,2)}, v{vw2}")
        a(f"v_add_u32 v{vx}, 0x1000, v{vx}")
        a(f"v_add_u32 v{vw1}, s{s_wstep}, v{vw1}")
        a(f"v_add_u32 v{vw2}, s{s_wstep}, v{vw2}")
    def mf(x, w):
        A, B = (x, w) if swap else (w, x)
        a(f"{MF} {v(acc,16)}, {v(A,4)}, {v(B,4)}, {v(acc,16)}")
    rd(xe, we, vxe); rd(xo, wo_, vxo)
    a(f"s_mov_b32 s{s_cnt}, 14")
    a.label(lab)
    a("s_waitcnt lgkmcnt(3)")
    mf(xe, we)
    rd(xe, we, vxe)
    a("s_waitcnt lgkmcnt(3)")
    mf(xo, wo_)
    rd(xo, wo_, vxo)
    a(f"s_sub_u32 s{s_cnt}, s{s_cnt}, 1")
    a(f"s_cmp_lg_u32 s{s_cnt}, 0")
    a(f"s_cbranch_scc1 {lab}")
    a("s_waitcnt lgkmcnt(0)")

def sw_barrier(a, coff, s_tgt, n, vaddr, vtmp, lab):
    a(f"s_add_u32 s{s_tgt}, s{s_tgt}, {n}")
    a(f"v_mov_b32 v{vtmp}, 1")
    a("s_waitcnt lgkmcnt(0)")
    a("s_mov_b64 exec, 1")
    a(f"ds_add_u32 v{vaddr}, v{vtmp} offset:{coff}")
    a("s_mov_b64 exec, -1")
    a.label(lab)
    a(f"ds_read_b32 v{vtmp}, v{vaddr} offset:{coff}")
    a("s_waitcnt lgkmcnt(0)")
    a(f"v_readfirstlane_b32 s3, v{vtmp}")
    a(f"s_cmp_ge_u32 s3, s{s_tgt}")
    a(f"s_cbranch_scc1 {lab}_ok")
    a("s_sleep 1")
    a(f"s_sub_u32 s{SPIN}, s{SPIN}, 1")
    a(f"s_cbranch_scc0 {lab}")
    a(f"s_mov_b32 s{SPIN}, 0")
    a.label(lab + "_ok")

def flag_store(a, soff_reg, vt0, vt1, val=None):
    a("s_mov_b64 exec, 1")
    a(f"v_mov_b32 v{vt0}, s{val if val is not None else NONCE}")
    a(f"v_mov_b32 v{vt1}, 0")
    a(f"buffer_store_dword v{vt0}, v{vt1}, s[{WSR}:{WSR+3}], s{soff_reg} offen{SC1}")
    a("s_mov_b64 exec, -1")

def arrive_flag(a, coff, n, soff_reg, vt0, vt1, lab):
    a(f"v_mov_b32 v{vt0}, {L_CNT}")
    a(f"v_mov_b32 v{vt1}, 1")
    a("s_waitcnt vmcnt(0)")
    a("s_mov_b64 exec, 1")
    a(f"ds_add_rtn_u32 v{vt1}, v{vt0}, v{vt1} offset:{coff}")
    a("s_waitcnt lgkmcnt(0)")
    a(f"v_readfirstlane_b32 s60, v{vt1}")
    a("s_mov_b64 exec, -1")
    a(f"s_cmp_eq_u32 s60, {n-1}")
    a(f"s_cbranch_scc0 {lab}")
    flag_store(a, soff_reg, vt0, vt1)
    a.label(lab)

def poll(a, lab, vdst, voff, soff_reg, mask_pair, sleep=None):
    sleep = POLLSLEEP if sleep is None else sleep
    a.label(lab)
    a(f"buffer_load_dword v{vdst}, v{voff}, s[{WSR}:{WSR+3}], s{soff_reg} offen{SC1}")
    a("s_waitcnt vmcnt(0)")
    a(f"v_cmp_ne_u32 vcc, s{NONCE}, v{vdst}")
    a(f"s_and_b64 vcc, vcc, s[{mask_pair}:{mask_pair+1}]")
    a(f"s_cbranch_vccz {lab}_ok")
    a(f"s_sleep {sleep}")
    a(f"s_sub_u32 s{SPIN}, s{SPIN}, 1")
    a(f"s_cbranch_scc0 {lab}")
    a(f"s_mov_b32 s{SPIN}, 0")
    a.label(lab + "_ok")

def cfma(a, hr, hi, lr, li, ur, ui, tr, ti):
    a(f"v_fma_f32 v{tr}, -v{li}, v{hi}, v{ur}")
    a(f"v_fma_f32 v{ti}, v{li}, v{hr}, v{ui}")
    a(f"v_fma_f32 v{hr}, v{lr}, v{hr}, v{tr}")
    a(f"v_fma_f32 v{hi}, v{lr}, v{hi}, v{ti}")

L_JUNK = 161792
def touch_matrix(a, sptr, vdst, vt, sr=48):
    srd(a, sr, sptr, WBYTES)
    a("s_lshr_b32 s3, s2, 3")
    a(f"s_mul_i32 s3, s3, {98*128}")
    a(f"v_lshlrev_b32 v{vt}, 7, v0")
    a(f"s_mov_b32 m0, {L_JUNK}")
    a("s_nop 0")
    a(f"buffer_load_dword v{vt}, s[{sr}:{sr+3}], s3 offen lds")
    a("s_add_u32 s3, s3, 8192")
    a("s_mov_b32 exec_hi, 3")
    a(f"buffer_load_dword v{vt}, s[{sr}:{sr+3}], s3 offen lds")
    a("s_mov_b64 exec, -1")

AQ, AO, AS, AK, AV, APB = 8, 40, [104, 120], [136, 144], [152, 160], 4

def att_unit(a, u, side):
    up = u - 1; un = u + 1
    cur = AS[u & 1]; prv = AS[(u + 1) & 1]
    Vp = AV[(up >> 2) & 1]; Op = AO + 16 * (up & 3)
    Kn = AK[(un >> 2) & 1]; Qn = AQ + 8 * (un & 3)
    side = list(side)
    def E(lo, hi):
        for j in range(lo, hi):
            a(f"v_exp_f32 v{cur+j}, v{cur+j}")
            if side:
                x = side.pop(0)
                if x: a(x)
    while side and isinstance(side[0], tuple):
        a(side.pop(0)[1])
    a(f"{MF} {v(Op,16)}, {v(Vp,4)}, {v(prv,4)}, {v(Op,16)}")
    E(0, 4)
    a(f"v_cvt_pk_bf16_f32 v{APB+2}, v{prv+12}, v{prv+13}")
    a(f"v_cvt_pk_bf16_f32 v{APB+3}, v{prv+14}, v{prv+15}")
    a(f"{MF} {v(prv,16)}, {v(Kn,4)}, {v(Qn,4)}, 0")
    E(4, 8)
    a(f"v_cvt_pk_bf16_f32 v{cur}, v{cur}, v{cur+1}")
    a(f"v_cvt_pk_bf16_f32 v{cur+1}, v{cur+2}, v{cur+3}")
    a(f"{MF} {v(prv,16)}, {v(Kn+4,4)}, {v(Qn+4,4)}, {v(prv,16)}")
    E(8, 12)
    a(f"v_cvt_pk_bf16_f32 v{cur+2}, v{cur+4}, v{cur+5}")
    a(f"v_cvt_pk_bf16_f32 v{cur+3}, v{cur+6}, v{cur+7}")
    a(f"{MF} {v(Op,16)}, {v(Vp+4,4)}, {v(APB,4)}, {v(Op,16)}")
    E(12, 16)
    a(f"v_cvt_pk_bf16_f32 v{APB}, v{cur+8}, v{cur+9}")
    a(f"v_cvt_pk_bf16_f32 v{APB+1}, v{cur+10}, v{cur+11}")
    assert not side, side

L_SEL = 162560
L_SH = 162048
LMAX = f2u(2.0 ** 90) if "forcefb" not in X else f2u(2.0 ** -20)
VMAX = f2u(2.0 ** 20)

def gen_attention(a, pf):
    P = "att"
    KR = TR
    a(f"v_add_u32 v2, {L_QX}, v1")
    for g in range(4):
        a(f"ds_read_b128 {v(AQ+8*g,4)}, v2 offset:{g*2048}")
        a(f"ds_read_b128 {v(AQ+8*g+4,4)}, v2 offset:{g*2048+1024}")
    a(f"s_add_u32 s{KR}, s{WSR}, {WS_KV}")
    a(f"s_addc_u32 s{KR+1}, s{WSR+1}, 0")
    a(f"s_mov_b32 s{KR+3}, 0x00020000")
    a("s_mov_b32 s44, 0")
    a("s_mov_b32 s51, 0")
    a(f"s_cmp_lt_u32 s{WV}, 4")
    a("s_cselect_b32 s53, 1, -1")
    a(f"s_cmp_eq_u32 s{WV}, 7")
    a(f"s_cbranch_scc0 {P}_nosel")
    a("v_lshrrev_b32 v104, 4, v1")
    a("v_and_b32 v105, 31, v104")
    a("v_lshrrev_b32 v104, 5, v104")
    a("v_lshlrev_b32 v104, 2, v104")
    a("v_sub_u32 v105, v105, v104")
    for j in range(4):
        d0 = (2 * j & 3) + 8 * ((2 * j) >> 2)
        a(f"v_cmp_eq_u32 vcc, {d0}, v105")
        a(f"v_mov_b32 v106, 0x3f80")
        a("s_nop 0")
        a(f"v_cndmask_b32 v{108+j}, 0, v106, vcc")
        a(f"v_cmp_eq_u32 vcc, {d0+1}, v105")
        a(f"v_mov_b32 v106, 0x3f800000")
        a("s_nop 0")
        a(f"v_cndmask_b32 v107, 0, v106, vcc")
        a(f"v_or_b32 v{108+j}, v{108+j}, v107")
    a(f"v_add_u32 v104, {L_SEL}, v1")
    a("ds_write_b128 v104, v[108:111]")
    a.label(P + "_nosel")
    srd(a, 56, S_DBG, 256)
    def phaseA():
        a(f"s_cmp_eq_u32 s{WV}, 0")
        a(f"s_cbranch_scc0 {P}_nopollA")
        a(f"v_mov_b32 v2, {D_K0}")
        a.label(P + "_pollA")
        a(f"buffer_load_dword v104, v2, s[56:59], 0 offen{SC1}")
        a("s_waitcnt vmcnt(0)")
        a("v_readfirstlane_b32 s3, v104")
        a("s_cmp_lg_u32 s3, 0")
        a(f"s_cbranch_scc1 {P}_nopollA")
        a(f"s_sleep {POLLSLEEP}")
        a(f"s_sub_u32 s{SPIN}, s{SPIN}, 1")
        a(f"s_cbranch_scc0 {P}_pollA")
        a(f"s_mov_b32 s{SPIN}, 0")
        a.label(P + "_nopollA")
        a(f"v_mov_b32 v3, {L_CNT}")
        sw_barrier(a, C_ATT, 44, 8, 3, 2, P + "_ba")
    def shiftblk():
        a(f"s_mov_b32 s{KR+2}, 0x40000")
        a(f"s_cmp_ge_u32 s{WV}, 4")
        a(f"s_cbranch_scc1 {P}_shwait")
        a(f"buffer_load_dwordx4 {v(AS[1],4)}, v1, s[{KR}:{KR+3}], 0 offen{SC1}")
        a(f"buffer_load_dwordx4 {v(AS[1]+4,4)}, v1, s[{KR}:{KR+3}], 0 offen offset:1024{SC1}")
        a(f"s_lshl_b32 s3, s{WV}, 11")
        a(f"s_add_u32 s3, s3, {L_QX}")
        a("v_add_u32 v2, s3, v1")
        a(f"ds_read_b128 {v(AO,4)}, v2")
        a(f"ds_read_b128 {v(AO+4,4)}, v2 offset:1024")
        a("s_waitcnt vmcnt(0) lgkmcnt(0)")
        o = AO + 16
        a(f"{MF} {v(o,16)}, {v(AS[1],4)}, {v(AO,4)}, 0")
        a(f"{MF} {v(o,16)}, {v(AS[1]+4,4)}, {v(AO+4,4)}, {v(o,16)}")
        a(f"s_lshl_b32 s3, s{WV}, 7")
        a(f"s_add_u32 s3, s3, {L_SH}")
        a("v_lshrrev_b32 v3, 2, v1")
        a("v_and_b32 v3, 127, v3")
        a("v_add_u32 v3, s3, v3")
        a("s_nop 7")
        a(f"v_max3_f32 v2, v{o}, v{o+1}, v{o+2}")
        for j in range(3, 15, 2):
            a(f"v_max3_f32 v2, v2, v{o+j}, v{o+j+1}")
        a(f"v_max_f32 v2, v2, v{o+15}")
        a(f"v_mov_b32 v{AO}, v2")
        a("s_nop 1")
        a(f"v_permlane32_swap_b32 v2, v{AO}")
        a(f"v_max_f32 v2, v2, v{AO}")
        a("v_cvt_pk_bf16_f32 v2, -v2, 0")
        a("s_mov_b32 exec_hi, 0")
        a("ds_write_b32 v3, v2")
        a("s_mov_b64 exec, -1")
        a.label(P + "_shwait")
        a(f"v_mov_b32 v3, {L_CNT}")
        sw_barrier(a, C_ATT, 44, 8, 3, 2, P + "_bs")
        a("v_lshrrev_b32 v3, 2, v1")
        a("v_and_b32 v3, 127, v3")
        a(f"v_add_u32 v3, {L_SH}, v3")
        for g in range(4): a(f"ds_read_b32 v{AO+g}, v3 offset:{g*128}")
        a("s_waitcnt lgkmcnt(0)")
        a("s_mov_b32 exec_lo, 0")
        for g in range(4): a(f"v_mov_b32 v{AQ+8*g+6}, v{AO+g}")
        a("s_mov_b32 exec_lo, -1")
    def phaseB():
        a(f"s_cmp_eq_u32 s{WV}, 0")
        a(f"s_cbranch_scc0 {P}_nopoll")
        a(f"v_mov_b32 v2, {D_GO}")
        a.label(P + "_poll")
        a(f"buffer_load_dwordx2 v[104:105], v2, s[56:59], 0 offen{SC1}")
        a("s_waitcnt vmcnt(0)")
        a("v_readfirstlane_b32 s3, v104")
        a("s_cmp_lg_u32 s3, 0")
        a(f"s_cbranch_scc1 {P}_pollok")
        a(f"s_sleep {POLLSLEEP}")
        a(f"s_sub_u32 s{SPIN}, s{SPIN}, 1")
        a(f"s_cbranch_scc0 {P}_poll")
        a(f"s_mov_b32 s{SPIN}, 0")
        a.label(P + "_pollok")
        a(f"v_mov_b32 v3, {L_CNT}")
        a("s_mov_b64 exec, 1")
        a(f"ds_add_u32 v3, v105 offset:{C_BAD}")
        a("s_mov_b64 exec, -1")
        a.label(P + "_nopoll")
        a(f"v_mov_b32 v3, {L_CNT}")
        sw_barrier(a, C_ATT, 44, 8, 3, 2, P + "_b0")
        pf.stamp(5)
        a("s_lshr_b32 s52, s2, 3")
        a("s_lshl_b32 s52, s52, 3")
        a(f"s_add_u32 s52, s52, s{WV}")
        a("s_lshl_b32 s52, s52, 10")
    def mainloads():
        a.label(P + "_restart")
        a(f"s_mov_b32 s{KR+2}, 0x40000")
        a(f"s_lshl_b32 s43, s{WV}, 15")
        a(f"buffer_load_dwordx4 {v(AK[0],4)}, v1, s[{KR}:{KR+3}], s43 offen{SC1}")
        a(f"buffer_load_dwordx4 {v(AK[0]+4,4)}, v1, s[{KR}:{KR+3}], s43 offen offset:1024{SC1}")
        a(f"buffer_load_dwordx4 {v(AV[0],4)}, v1, s[{KR}:{KR+3}], s43 offen offset:2048{SC1}")
        a(f"buffer_load_dwordx4 {v(AV[0]+4,4)}, v1, s[{KR}:{KR+3}], s43 offen offset:3072{SC1}")
        a("s_add_u32 s43, s43, 4096")
        a(f"buffer_load_dwordx4 {v(AK[1],4)}, v1, s[{KR}:{KR+3}], s43 offen{SC1}")
        a(f"buffer_load_dwordx4 {v(AK[1]+4,4)}, v1, s[{KR}:{KR+3}], s43 offen offset:1024{SC1}")
        a(f"s_lshl_b32 s3, s{WV}, 9")
        a(f"s_mov_b32 m0, {L_JUNK}")
        a("v_lshlrev_b32 v2, 3, v1")
        a("s_mov_b64 exec, 0xff")
        a(f"buffer_load_dword v2, s[{KR}:{KR+3}], s52 offen{SC1} lds")
        a("s_mov_b64 exec, -1")
        for j in range(4): a(f"v_mov_b32 v{APB+j}, 0")
        for j in range(8): a(f"v_mov_b32 v{AV[1]+j}, 0")
    if "lateshift" in X:
        phaseB(); mainloads()
        a("s_cmp_lg_u32 s51, 0")
        a(f"s_cbranch_scc1 {P}_haveshift")
        shiftblk()
    else:
        phaseA(); shiftblk(); phaseB(); mainloads()
    a.label(P + "_haveshift")
    for j in (0, 1, 2, 3, 12, 13, 14, 15): a(f"v_mov_b32 v{AS[1]+j}, 0")
    a(f"s_and_b32 s3, s{WV}, 3")
    a("s_lshl_b32 s3, s3, 2")
    a(f"s_add_u32 s3, s3, {L_CNT + 64}")
    a("v_mov_b32 v2, s3")
    for g in range(4):
        a(f"{MF} {v(AO+16*g,16)}, {v(AV[1],4)}, {v(APB,4)}, 0")
    a("s_waitcnt vmcnt(5)")
    a(f"{MF} {v(AS[0],16)}, {v(AK[0],4)}, {v(AQ,4)}, 0")
    a(f"{MF} {v(AS[0],16)}, {v(AK[0]+4,4)}, {v(AQ+4,4)}, {v(AS[0],16)}")
    a("s_mov_b32 s48, 0")
    a("s_setprio 2")
    a("s_nop 7")
    a("s_nop 1")
    pf.stamp(6)
    a(".p2align 3")
    a.label(P + "_loop")
    for u in range(8):
        g = u & 3; par = (u >> 2) & 1
        side = []
        if g == 1:
            side.append(("q0", "s_waitcnt vmcnt(2)"))
            side.append(f"buffer_load_dwordx4 {v(AV[par^1],4)}, v1, s[{KR}:{KR+3}], s43 offen offset:2048{SC1}")
            side.append(f"buffer_load_dwordx4 {v(AV[par^1]+4,4)}, v1, s[{KR}:{KR+3}], s43 offen offset:3072{SC1}")
            side.append("s_add_u32 s43, s43, 4096")
            if par == 0:
                side.append("s_cmp_eq_u32 s48, 3")
                side.append(f"s_cselect_b32 s{KR+2}, 0, s{KR+2}")
        if g == 3:
            side += [None, None, None, "s_waitcnt vmcnt(2)"]
            side.append(f"buffer_load_dwordx4 {v(AK[par],4)}, v1, s[{KR}:{KR+3}], s43 offen{SC1}")
            side.append(f"buffer_load_dwordx4 {v(AK[par]+4,4)}, v1, s[{KR}:{KR+3}], s43 offen offset:1024{SC1}")
            if par == 1:
                side += ["s_add_u32 s48, s48, 1", None, None, None, None, None, None, None, None, "s_cmp_lt_u32 s48, 4"]
        if g == 0 and "nofair" not in X:
            side += ["v_mov_b32 v3, s53", None, "s_mov_b64 exec, 1\nds_add_rtn_u32 v3, v2, v3\ns_mov_b64 exec, -1"]
        if g == 2 and "nofair" not in X:
            lab = f"{P}_fp{u}"
            side += ["s_waitcnt lgkmcnt(0)", "v_readfirstlane_b32 s54, v3", None, "s_mul_i32 s54, s54, s53", "s_cmp_gt_i32 s54, 0",
                     f"s_cbranch_scc1 {lab}a\ns_setprio 2\ns_branch {lab}b\n{lab}a:\ns_setprio 1\n{lab}b:"]
        att_unit(a, u, side)
    a(f"s_cbranch_scc1 {P}_loop")
    prv = AS[1]
    a(f"{MF} {v(AO+48,16)}, {v(AV[1],4)}, {v(prv,4)}, {v(AO+48,16)}")
    a(f"v_cvt_pk_bf16_f32 v{APB+2}, v{prv+12}, v{prv+13}")
    a(f"v_cvt_pk_bf16_f32 v{APB+3}, v{prv+14}, v{prv+15}")
    a("s_nop 1")
    a(f"{MF} {v(AO+48,16)}, {v(AV[1]+4,4)}, {v(APB,4)}, {v(AO+48,16)}")
    pf.stamp(7)
    a("s_setprio 3")
    a("s_cmp_lg_u32 s51, 0")
    a(f"s_cbranch_scc1 {P}_nolend")
    lds_arrive(a, C_LEND, 2, 3)
    a.label(P + "_nolend")
    a(f"v_mov_b32 v3, {L_CNT}")
    a.label(P + "_udone")
    a(f"ds_read2_b32 v[104:105], v3 offset0:{C_NONCE//4} offset1:{C_HCNT//4}")
    a("s_waitcnt lgkmcnt(0)")
    a("v_readfirstlane_b32 s3, v105")
    a(f"v_readfirstlane_b32 s{NONCE}, v104")
    a("s_cmp_ge_u32 s3, 4")
    a(f"s_cbranch_scc1 {P}_udone_ok")
    a(f"s_sub_u32 s{SPIN}, s{SPIN}, 1")
    a(f"s_cbranch_scc0 {P}_udone")
    a(f"s_mov_b32 s{SPIN}, 0")
    a.label(P + "_udone_ok")
    a(f"s_lshl_b32 s3, s{WV}, 13")
    a(f"s_add_u32 s3, s3, {A_OP}")
    a(f"v_add_u32 v2, s3, v1")
    a(f"s_lshl_b32 s3, s{WV}, 9")
    a(f"s_add_u32 s3, s3, {A_LP}")
    a("v_lshrrev_b32 v3, 2, v1")
    a("v_and_b32 v4, 127, v3")
    a("v_add_u32 v4, s3, v4")
    a(f"s_mov_b32 s46, {hex(LMAX)}")
    a("s_mov_b64 s[56:57], 0")
    for g in range(4):
        o = AO + 16 * g
        if g == 3: a("s_nop 3")
        a("s_mov_b32 exec_lo, 0")
        a(f"ds_write_b32 v4, v{o+12} offset:{g*128}")
        a(f"v_cmp_nge_f32 vcc, s46, v{o+12}")
        a("s_mov_b32 exec_lo, -1")
        a("s_or_b64 s[56:57], s[56:57], vcc")
        for j in range(8):
            a(f"v_cvt_pk_bf16_f32 v{AS[0]+8*g+j}, v{o+2*j}, v{o+2*j+1}")
        a(f"ds_write_b128 v2, {v(AS[0]+8*g,4)} offset:{g*2048}")
        a(f"ds_write_b128 v2, {v(AS[0]+8*g+4,4)} offset:{g*2048+1024}")
    a(f"v_mov_b32 v3, {L_CNT}")
    a("s_cmp_eq_u64 s[56:57], 0")
    a(f"s_cbranch_scc1 {P}_safe")
    a("v_mov_b32 v2, 1")
    a("s_mov_b64 exec, 1")
    a(f"ds_add_u32 v3, v2 offset:{C_BAD}")
    a("s_mov_b64 exec, -1")
    a.label(P + "_safe")
    pf.stamp(17)
    sw_barrier(a, C_ATT, 44, 8, 3, 2, P + "_b1")
    pf.stamp(18)
    a(f"ds_read_b32 v2, v3 offset:{C_BAD}")
    a(f"s_lshl_b32 s3, s{WV}, 10")
    a(f"s_add_u32 s3, s3, {A_OP}")
    a("v_add_u32 v4, s3, v1")
    for w in range(8):
        a(f"ds_read_b128 {v(AO+4*w,4)}, v4 offset:{w*8192}")
    a(f"s_lshr_b32 s45, s{WV}, 1")
    a("s_lshl_b32 s3, s45, 7")
    a(f"s_add_u32 s3, s3, {A_LP}")
    a("v_lshrrev_b32 v3, 2, v1")
    a("v_and_b32 v3, 127, v3")
    a("v_add_u32 v3, s3, v3")
    a("s_waitcnt lgkmcnt(8)")
    a("v_readfirstlane_b32 s3, v2")
    a("s_cmp_lg_u32 s3, 0")
    a("s_cselect_b32 s3, 1, 0")
    a("s_andn2_b32 s3, s3, s51")
    a(f"s_cbranch_scc1 {P}_fallback")
    acc = AO + 48
    a(f"v_add_u32 v2, {L_SEL}, v1")
    a(f"ds_read_b128 {v(AO+40,4)}, v2")
    for w in range(6):
        a(f"ds_read_b32 v{AO+32+w}, v3 offset:{w*512}")
    for w in range(8):
        a(f"s_waitcnt lgkmcnt({6 if w < 1 else 6})") if w == 0 else None
        if w == 0:
            a(f"ds_read_b32 v{AO+38}, v3 offset:{6*512}")
            a(f"ds_read_b32 v{AO+39}, v3 offset:{7*512}")
        a(f"{MF} {v(acc,16)}, {v(AO+40,4)}, {v(AO+4*w,4)}, {'0' if w == 0 else v(acc,16)}")
    a("s_lshr_b32 s3, s45, 1")
    a(f"s_lshl_b32 s46, s{RB}, 1")
    a("s_add_u32 s3, s3, s46")
    a("s_lshl_b32 s3, s3, 4")
    a(f"s_lshl_b32 s46, s{J2}, 1")
    a("s_add_u32 s3, s3, s46")
    a("s_and_b32 s46, s45, 1")
    a("s_add_u32 s3, s3, s46")
    a("s_lshl_b32 s3, s3, 11")
    a(f"s_and_b32 s46, s{WV}, 1")
    a("s_lshl_b32 s46, s46, 10")
    a("s_add_u32 s3, s3, s46")
    a(f"s_add_u32 s47, s3, {WS_OF}")
    a("s_waitcnt lgkmcnt(0)")
    lds_arrive(a, C_TRD, 2, 3)
    l = AO + 32
    a(f"v_add_f32 v{l}, v{l}, v{l+1}")
    a(f"v_add_f32 v{l+2}, v{l+2}, v{l+3}")
    a(f"v_add_f32 v{l+4}, v{l+4}, v{l+5}")
    a(f"v_add_f32 v{l+6}, v{l+6}, v{l+7}")
    a(f"v_add_f32 v{l}, v{l}, v{l+2}")
    a(f"v_add_f32 v{l+4}, v{l+4}, v{l+6}")
    a(f"v_add_f32 v{l}, v{l}, v{l+4}")
    a(f"v_rcp_f32 v{l+1}, v{l}")
    a("s_nop 3")
    for j in range(8): a(f"v_mul_f32 v{acc+j}, v{acc+j}, v{l+1}")
    for j in range(4): a(f"v_cvt_pk_bf16_f32 v{AO+j}, v{acc+2*j}, v{acc+2*j+1}")
    a(f"s_and_b32 s3, s{WV}, 1")
    a("s_cmp_eq_u32 s3, 1")
    a("s_cselect_b32 exec_hi, -1, 0")
    a("s_mov_b32 exec_lo, 0")
    a(f"v_mov_b32 v{AO+2}, 0")
    a(f"v_mov_b32 v{AO+3}, 0")
    a("s_mov_b64 exec, -1")
    pf.stamp(19)
    a(f"buffer_store_dwordx4 {v(AO,4)}, v1, s[{WSR}:{WSR+3}], s47 offen{SC1}")
    if "dup" in X or "dupo" in X:
        a(f"buffer_store_dwordx4 {v(AO,4)}, v1, s[{WSR}:{WSR+3}], s47 offen")
    a(f"s_lshl_b32 s3, s{RB}, 5")
    a(f"s_add_u32 s3, s3, s{J2}")
    a("s_lshl_b32 s3, s3, 2")
    a(f"s_add_u32 s3, s3, {FL_O}")
    arrive_flag(a, C_OCNT, 8, 3, 2, 3, P + "_oflag")
    pf.stamp(8)
    a(f"s_branch {P}_done")
    a.label(P + "_fallback")
    a("s_waitcnt lgkmcnt(0)")
    a("s_mov_b32 s51, 1")
    a(f"s_mov_b32 s{KR+2}, 0x40000")
    a("s_mov_b32 exec_lo, 0")
    for g in range(4):
        a(f"v_mov_b32 v{AQ+8*g+6}, 0")
        a(f"v_mov_b32 v{AQ+8*g+7}, 0")
    a("s_mov_b32 exec_lo, -1")
    for g in range(4): a(f"v_mov_b32 v{APB+g}, 0xff800000")
    a("s_mov_b32 s43, 0")
    a.label(P + "_fb_loop")
    a(f"buffer_load_dwordx4 {v(AK[0],4)}, v1, s[{KR}:{KR+3}], s43 offen{SC1}")
    a(f"buffer_load_dwordx4 {v(AK[0]+4,4)}, v1, s[{KR}:{KR+3}], s43 offen offset:1024{SC1}")
    a("s_waitcnt vmcnt(0)")
    for g in range(4):
        o = AO + 16 * g
        a(f"{MF} {v(o,16)}, {v(AK[0],4)}, {v(AQ+8*g,4)}, 0")
        a(f"{MF} {v(o,16)}, {v(AK[0]+4,4)}, {v(AQ+8*g+4,4)}, {v(o,16)}")
    a("s_nop 7")
    for g in range(4):
        o = AO + 16 * g
        for j in range(0, 16, 2):
            a(f"v_max3_f32 v{APB+g}, v{APB+g}, v{o+j}, v{o+j+1}")
    a("s_add_u32 s43, s43, 4096")
    a("s_cmp_lt_u32 s43, 0x40000")
    a(f"s_cbranch_scc1 {P}_fb_loop")
    for g in range(4):
        m = APB + g
        a(f"v_mov_b32 v2, v{m}")
        a("s_nop 1")
        a(f"v_permlane32_swap_b32 v2, v{m}")
        a(f"v_max_f32 v2, v2, v{m}")
        a("v_sub_f32 v2, 0, v2")
        a("v_cvt_pk_bf16_f32 v3, v2, v2")
        a("v_and_b32 v3, 0xffff0000, v3")
        a(f"v_sub_f32 v{m}, v2, v3")
        a(f"v_cvt_pk_bf16_f32 v2, v{m}, v{m}")
        a("v_and_b32 v2, 0xffff0000, v2")
        a(f"v_sub_f32 v{m}, v{m}, v2")
        a(f"v_cvt_pk_bf16_f32 v{m}, v{m}, 0")
        a("v_lshrrev_b32 v3, 16, v3")
        a("v_or_b32 v3, v3, v2")
        a("s_mov_b32 exec_lo, 0")
        a(f"v_mov_b32 v{AQ+8*g+6}, v3")
        a(f"v_mov_b32 v{AQ+8*g+7}, v{m}")
        a("s_mov_b32 exec_lo, -1")
    a(f"v_mov_b32 v3, {L_CNT}")
    sw_barrier(a, C_ATT, 44, 8, 3, 2, P + "_bf")
    a(f"s_branch {P}_restart")
    a.label(P + "_done")

def gen_background(a, pf):
    P = "bg"
    XF = 56; ARE, AIM = 8, 24
    nbar = [0]
    T = [54, 55]
    pf.T = T
    def bar():
        nbar[0] += 1
        a(f"v_mov_b32 v{T[0]}, {L_CNT}")
        sw_barrier(a, C_BG, 44, 4, T[0], T[1], f"{P}_bar{nbar[0]}")
    def stage3(tag, vd_=156, vt_=158):
        if "nopf" in X: return
        a(f"s_cmp_eq_u32 s{BW}, 3")
        a(f"s_cbranch_scc1 {P}_not3{tag}")
        a(f"s_cmp_eq_u32 s{BW}, 0")
        a(f"s_cselect_b32 s56, s{S_CRE}, s{S_CIM}")
        a(f"s_cselect_b32 s57, s{S_CRE+1}, s{S_CIM+1}")
        a(f"s_cmp_eq_u32 s{BW}, 2")
        a(f"s_cselect_b32 s56, s{S_WO}, s56")
        a(f"s_cselect_b32 s57, s{S_WO+1}, s57")
        touch_matrix(a, 56, vd_, vt_)
        a.label(P + "_not3" + tag)
    a("s_mov_b32 s44, 0")
    a(f"s_lshl_b32 s37, s{J2}, 1")
    a(f"s_and_b32 s3, s{BW}, 1")
    a("s_add_u32 s37, s37, s3")
    a(f"s_lshr_b32 s38, s{BW}, 1")
    a(f"s_cmp_eq_u32 s{BW}, 3")
    a(f"s_cbranch_scc0 {P}_nononce")
    srd(a, 48, S_DBG, 256)
    a("v_mov_b32 v7, 0")
    a.label(P + "_npoll")
    a(f"buffer_load_dword v6, v7, s[48:51], 0 offen offset:{D_NONCE}{SC1}")
    a("s_waitcnt vmcnt(0)")
    a("v_readfirstlane_b32 s3, v6")
    a("s_cmp_lg_u32 s3, 0")
    a(f"s_cbranch_scc1 {P}_npoll_ok")
    a(f"s_sleep {POLLSLEEP}")
    a(f"s_sub_u32 s{SPIN}, s{SPIN}, 1")
    a(f"s_cbranch_scc0 {P}_npoll")
    a(f"s_mov_b32 s{SPIN}, 0")
    a.label(P + "_npoll_ok")
    a(f"v_mov_b32 v7, {L_CNT}")
    a(f"ds_write_b32 v7, v6 offset:{C_NONCE}")
    a.label(P + "_nononce")
    a(f"s_cmp_eq_u32 s{J2}, 7")
    a(f"s_cbranch_scc1 {P}_skip")
    if "nobg" in X: a(f"s_branch {P}_skip")
    a(f"s_and_b32 s3, s{BW}, 1")
    a("s_cmp_eq_u32 s3, 0")
    a(f"s_cselect_b32 s{TR}, s{S_BRE}, s{S_BIM}")
    a(f"s_cselect_b32 s{TR+1}, s{S_BRE+1}, s{S_BIM+1}")
    a(f"s_mov_b32 s{TR+2}, {WBYTES}")
    a(f"s_mov_b32 s{TR+3}, 0x00020000")
    plain_lane_off(a, 8, 0, 9)
    a(f"s_lshl_b32 s3, s{J2}, 1")
    a("s_add_u32 s3, s3, s38")
    a(f"s_mul_i32 s32, s3, {32*896}")
    a(f"s_lshl_b32 s34, s{BW}, 11")
    a("s_mov_b32 m0, s34")
    a("s_mov_b32 s36, 14")
    a.label(P + "_bdma")
    a(f"s_add_u32 s33, s32, {16*896}")
    a(f"buffer_load_dwordx4 v8, s[{TR}:{TR+3}], s32 offen lds")
    a("s_add_u32 m0, m0, 1024")
    a("s_sub_u32 s36, s36, 1")
    a(f"buffer_load_dwordx4 v8, s[{TR}:{TR+3}], s33 offen lds")
    a("s_add_u32 s32, s32, 64")
    a(f"s_add_u32 m0, m0, {8192-1024}")
    a("s_cmp_lg_u32 s36, 0")
    a(f"s_cbranch_scc1 {P}_bdma")
    xfrag_addr(a, 6, 0, 8)
    a(f"s_and_b32 s3, s{BW}, 1")
    a("s_lshl_b32 s3, s3, 12")
    a("v_add_u32 v6, s3, v6")
    a("v_xor_b32 v7, 32, v6")
    a("s_waitcnt vmcnt(0)")
    bar()
    a(f"ds_read_b32 v55, v54 offset:{C_NONCE}")
    a("s_waitcnt lgkmcnt(0)")
    a(f"v_readfirstlane_b32 s{NONCE}, v55")
    if "cntpoll" in X:
        lds_arrive(a, C_BL, 54, 55)
    pf.stamp(5)
    S3 = os.environ.get("S3", "b")
    if S3 == "b": stage3("a", 52, 54)
    BB = [40, 48]
    def rdB(j):
        b = BB[j & 1]
        if j in (16, 17): a(f"v_add_u32 v{6+(j&1)}, 0x10000, v{6+(j&1)}")
        o = (j >> 1) * 8192 - (65536 if j >= 16 else 0)
        a(f"ds_read_b128 {v(b,4)}, v{6+(j&1)} offset:{o}")
        a(f"ds_read_b128 {v(b+4,4)}, v{6+(j&1)} offset:{o+2048}")
    rdB(0); rdB(1)
    for j in range(28):
        b = BB[j & 1]
        a("s_waitcnt lgkmcnt(2)" if j < 27 else "s_waitcnt lgkmcnt(0)")
        c1 = "0" if j == 0 else v(ARE,16); c2 = "0" if j == 0 else v(AIM,16)
        a(f"{MF} {v(ARE,16)}, {v(XF+4*j,4)}, {v(b,4)}, {c1}")
        a(f"{MF} {v(AIM,16)}, {v(XF+4*j,4)}, {v(b+4,4)}, {c2}")
        if j + 2 < 28: rdB(j + 2)
    a(f"v_mov_b32 v54, {L_CNT}")
    a("v_mov_b32 v55, 1")
    a("s_mov_b64 exec, 1")
    a(f"ds_add_u32 v54, v55 offset:{C_UDONE}")
    a("s_mov_b64 exec, -1")
    pf.stamp(6)
    if S3 == "u": stage3("a")
    def csq(dr, di, sr, si):
        a(f"v_mul_f32 v46, v{si}, v{si}")
        a(f"v_mul_f32 v47, v{sr}, v{si}")
        a(f"v_fma_f32 v{dr}, v{sr}, v{sr}, -v46")
        a(f"v_add_f32 v{di}, v47, v47")
    csq(40, 41, 2, 3)
    for _ in range(3): csq(40, 41, 40, 41)
    csq(42, 43, 40, 41); csq(42, 43, 42, 43)
    csq(44, 45, 42, 43)
    for _ in range(3): csq(44, 45, 44, 45)
    a("v_mov_b32 v48, v4")
    a("v_mov_b32 v49, v4")
    a("v_mov_b32 v50, v5")
    a("v_mov_b32 v51, v5")
    for r in range(0, 16, 2):
        a(f"v_pk_mul_f32 v[46:47], v[50:51], {v(AIM+r,2)}")
        a(f"v_pk_mul_f32 v[52:53], v[50:51], {v(ARE+r,2)}")
        a(f"v_pk_fma_f32 {v(ARE+r,2)}, v[48:49], {v(ARE+r,2)}, v[46:47] neg_lo:[0,0,1] neg_hi:[0,0,1]")
        a(f"v_pk_fma_f32 {v(AIM+r,2)}, v[48:49], {v(AIM+r,2)}, v[52:53]")
    a(f"v_mov_b32 v48, v{ARE}")
    a(f"v_mov_b32 v49, v{AIM}")
    for r in range(1, 16):
        cfma(a, 48, 49, 2, 3, ARE + r, AIM + r, 46, 47)
    a("v_and_b32 v50, 31, v0")
    a("v_lshlrev_b32 v50, 3, v50")
    a(f"s_and_b32 s3, s{BW}, 1")
    a("s_lshl_b32 s3, s3, 10")
    a(f"s_add_u32 s3, s3, {B_EX}")
    a("v_add_u32 v50, s3, v50")
    a("v_lshrrev_b32 v51, 5, v0")
    a("s_lshl_b32 s3, s38, 1")
    a("v_add_u32 v51, s3, v51")
    a("v_lshl_add_u32 v52, v51, 8, v50")
    a("ds_write_b64 v52, v[48:49]")
    bar()
    for c in range(4):
        a(f"ds_read_b64 {v(56+2*c,2)}, v50 offset:{c*256}")
    a("s_waitcnt lgkmcnt(0)")
    a("v_mov_b32 v64, v56")
    a("v_mov_b32 v65, v57")
    for c in range(1, 4):
        cfma(a, 64, 65, 40, 41, 56 + 2*c, 57 + 2*c, 46, 47)
    a("s_cmp_eq_u32 s38, 1")
    a(f"s_cbranch_scc0 {P}_nopub")
    a(f"s_mul_i32 s3, s{RB}, {448*16}")
    a("s_lshl_b32 s33, s37, 9")
    a("s_add_u32 s3, s3, s33")
    a(f"s_add_u32 s3, s3, {WS_E}")
    a(f"v_mov_b32 v66, s{NONCE}")
    a(f"v_mov_b32 v67, s{NONCE}")
    a("v_and_b32 v68, 31, v0")
    a("v_lshlrev_b32 v68, 4, v68")
    a("s_mov_b32 exec_hi, 0")
    a(f"buffer_store_dwordx4 v[64:67], v68, s[{WSR}:{WSR+3}], s3 offen{SC1}")
    a("s_mov_b64 exec, -1")
    a.label(P + "_nopub")
    pf.stamp(7)
    a(f"s_add_u32 s48, s{WSR}, {WS_E}")
    a(f"s_addc_u32 s49, s{WSR+1}, 0")
    a(f"s_mov_b32 s50, {32*448*16}")
    a("s_mov_b32 s51, 0x00020000")
    a("v_lshrrev_b32 v67, 5, v0")
    a("v_lshlrev_b32 v67, 4, v67")
    a(f"v_sub_u32 v67, s{RB}, v67")
    a("v_add_u32 v67, -1, v67")
    a(f"s_mov_b32 s3, {448*16}")
    a("v_mul_lo_u32 v68, v67, s3")
    a("v_and_b32 v66, 31, v0")
    a("v_lshlrev_b32 v66, 4, v66")
    a("s_lshl_b32 s33, s37, 9")
    a("v_add3_u32 v68, v68, v66, s33")
    EG = 72
    for i in range(1, 16):
        a(f"v_subrev_u32 v{136+i}, {448*16*i}, v68")
    a("v_mov_b32 v136, v68")
    a("s_waitcnt vmcnt(0)")
    a(f"s_cmp_eq_u32 s{RB}, 0")
    a(f"s_cbranch_scc1 {P}_pollE")
    a.label(P + "_pollE0")
    a("s_mov_b32 exec_hi, 0")
    a(f"buffer_load_dwordx3 {v(EG,3)}, v136, s[48:51], 0 offen{SC1}")
    a("s_mov_b64 exec, -1")
    a("s_waitcnt vmcnt(0)")
    a(f"v_cmp_ne_u32 vcc, s{NONCE}, v{EG+2}")
    a("s_cmp_eq_u32 vcc_lo, 0")
    a(f"s_cbranch_scc1 {P}_pollE")
    a(f"s_sleep {os.environ.get('ES', '6')}")
    a(f"s_sub_u32 s{SPIN}, s{SPIN}, 1")
    a(f"s_cbranch_scc0 {P}_pollE0")
    a(f"s_mov_b32 s{SPIN}, 0")
    a.label(P + "_pollE")
    for i in range(16):
        a(f"buffer_load_dwordx3 {v(EG+4*i,3)}, v{136+i}, s[48:51], 0 offen{SC1}")
    a("s_mov_b64 s[56:57], 0")
    a("s_waitcnt vmcnt(0)")
    for i in range(16):
        a(f"v_cmp_ne_u32 vcc, s{NONCE}, v{EG+4*i+2}")
        a(f"s_cmp_gt_u32 s{RB}, {i}")
        a("s_cselect_b32 s58, -1, 0")
        a(f"s_cmp_gt_u32 s{RB}, {i+16}")
        a("s_cselect_b32 s59, -1, 0")
        a("s_and_b64 vcc, vcc, s[58:59]")
        a("s_or_b64 s[56:57], s[56:57], vcc")
    a("s_cmp_eq_u64 s[56:57], 0")
    a(f"s_cbranch_scc1 {P}_pollE_ok")
    a("s_sleep 12")
    a(f"s_sub_u32 s{SPIN}, s{SPIN}, 1")
    a(f"s_cbranch_scc0 {P}_pollE")
    a(f"s_mov_b32 s{SPIN}, 0")
    a.label(P + "_pollE_ok")
    pf.stamp(8)
    a(f"v_mov_b32 v68, v{EG+60}")
    a(f"v_mov_b32 v69, v{EG+61}")
    for i in range(14, -1, -1):
        cfma(a, 68, 69, 42, 43, EG + 4*i, EG + 4*i + 1, 46, 47)
    a("v_mov_b32 v70, v68")
    a("v_mov_b32 v71, v69")
    a("v_mov_b32 v72, v68")
    a("v_mov_b32 v73, v69")
    a("s_nop 1")
    a("v_permlane32_swap_b32 v70, v72")
    a("v_permlane32_swap_b32 v71, v73")
    cfma(a, 72, 73, 44, 45, 70, 71, 46, 47)
    for cp in range(3):
        a("v_mov_b32 v74, v72")
        a("v_mov_b32 v75, v73")
        cfma(a, 74, 75, 40, 41, 56 + 2*cp, 57 + 2*cp, 46, 47)
        a(f"v_cmp_lt_u32 vcc, {cp}, v51")
        a("s_nop 1")
        a("v_cndmask_b32 v72, v72, v74, vcc")
        a("v_cndmask_b32 v73, v73, v75, vcc")
    a(f"s_lshl_b32 s3, s{BW}, 12")
    a(f"s_add_u32 s3, s3, {B_HT}")
    a("v_and_b32 v66, 31, v0")
    a("v_lshlrev_b32 v66, 1, v66")
    a("v_lshrrev_b32 v67, 5, v0")
    a("v_lshl_add_u32 v66, v67, 8, v66")
    a("v_add_u32 v66, s3, v66")
    for r in range(16):
        cfma(a, 72, 73, 2, 3, ARE + r, AIM + r, 46, 47)
        a(f"v_cvt_pk_bf16_f32 v{76+(r&1)}, v72, -v73")
        slot = (r & 3) + 8 * (r >> 2)
        a(f"ds_write_b16 v66, v{76+(r&1)} offset:{slot*64}")
        a(f"ds_write_b16_d16_hi v66, v{76+(r&1)} offset:{2048+slot*64}")
    a("v_and_b32 v67, 31, v0")
    a("v_lshlrev_b32 v67, 6, v67")
    a("v_lshrrev_b32 v68, 5, v0")
    a("v_lshl_add_u32 v67, v68, 4, v67")
    a("v_add_u32 v67, s3, v67")
    a("s_waitcnt lgkmcnt(0)")
    for part in range(2):
        for jj in range(2):
            a(f"ds_read_b128 {v(80+8*part+4*jj,4)}, v67 offset:{part*2048+jj*32}")
    a(f"s_lshl_b32 s3, s{RB}, 1")
    a("s_add_u32 s3, s3, s38")
    a("s_mul_i32 s3, s3, 56")
    a("s_lshl_b32 s33, s37, 1")
    a("s_add_u32 s3, s3, s33")
    a("s_lshl_b32 s3, s3, 10")
    a(f"s_add_u32 s3, s3, {WS_HF}")
    a(f"s_add_u32 s33, s3, {28*1024}")
    a("s_waitcnt lgkmcnt(0)")
    a(f"buffer_store_dwordx4 {v(80,4)}, v1, s[{WSR}:{WSR+3}], s3 offen{SC1}")
    a(f"buffer_store_dwordx4 {v(84,4)}, v1, s[{WSR}:{WSR+3}], s3 offen offset:1024{SC1}")
    a(f"buffer_store_dwordx4 {v(88,4)}, v1, s[{WSR}:{WSR+3}], s33 offen{SC1}")
    a(f"buffer_store_dwordx4 {v(92,4)}, v1, s[{WSR}:{WSR+3}], s33 offen offset:1024{SC1}")
    if "dup" in X:
        a(f"buffer_store_dwordx4 {v(80,4)}, v1, s[{WSR}:{WSR+3}], s3 offen")
        a(f"buffer_store_dwordx4 {v(84,4)}, v1, s[{WSR}:{WSR+3}], s3 offen offset:1024")
        a(f"buffer_store_dwordx4 {v(88,4)}, v1, s[{WSR}:{WSR+3}], s33 offen")
        a(f"buffer_store_dwordx4 {v(92,4)}, v1, s[{WSR}:{WSR+3}], s33 offen offset:1024")
    a(f"s_lshl_b32 s3, s{RB}, 5")
    a(f"s_add_u32 s3, s3, s{J2}")
    a("s_lshl_b32 s3, s3, 2")
    a(f"s_add_u32 s3, s3, {FL_H}")
    arrive_flag(a, C_HCNT, 4, 3, 66, 67, P + "_hflag")
    pf.stamp(9)
    if "hwait" in X:
        a(f"v_mov_b32 v66, {L_CNT}")
        lds_wait(a, C_HCNT, 4, 66, 67, P + "_hall")
    a(f"s_lshr_b32 s3, s{BW}, 1")
    a("s_cmp_eq_u32 s3, 0")
    a(f"s_cselect_b32 s{TR}, s{S_CRE}, s{S_CIM}")
    a(f"s_cselect_b32 s{TR+1}, s{S_CRE+1}, s{S_CIM+1}")
    plain_lane_off(a, 53, 0, 69)
    a(f"s_mul_i32 s40, s{J2}, {64*896}")
    a(f"s_and_b32 s3, s{BW}, 1")
    a("s_mul_i32 s3, s3, 448")
    a("s_add_u32 s40, s40, s3")
    a(f"s_mul_i32 s41, s{BW}, 20480")
    CDMA = [53]
    def c_dma(kb):
        a(f"s_add_u32 m0, s41, {(kb % 5)*4096}")
        for q in range(4):
            a(f"s_add_u32 s33, s40, {q*16*896 + kb*64}")
            a(f"buffer_load_dwordx4 v{CDMA[0]}, s[{TR}:{TR+3}], s33 offen lds")
            if q < 3: a("s_add_u32 m0, m0, 1024")
    for kb in range(5): c_dma(kb)
    a(f"s_cmp_eq_u32 s{BW}, 0")
    a(f"s_cbranch_scc0 {P}_nopollH")
    a("v_lshlrev_b32 v67, 2, v0")
    a(f"s_lshl_b32 s35, s{RB}, 7")
    a(f"s_add_u32 s35, s35, {FL_H}")
    a("s_mov_b64 s[58:59], 0x7f")
    poll(a, P + "_pollH", 68, 67, 35, 58)
    srd(a, 48, S_DBG, 256)
    a(f"v_mov_b32 v67, {D_GOG}")
    a.label(P + "_pollG")
    a(f"buffer_load_dword v68, v67, s[48:51], 0 offen{SC1}")
    a("s_waitcnt vmcnt(0)")
    a("v_readfirstlane_b32 s3, v68")
    a("s_cmp_lg_u32 s3, 0")
    a(f"s_cbranch_scc1 {P}_pollG_ok")
    a(f"s_sleep {POLLSLEEP}")
    a(f"s_sub_u32 s{SPIN}, s{SPIN}, 1")
    a(f"s_cbranch_scc0 {P}_pollG")
    a(f"s_mov_b32 s{SPIN}, 0")
    a.label(P + "_pollG_ok")
    a.label(P + "_nopollH")
    a("s_waitcnt vmcnt(0)")
    bar()
    pf.stamp(10)
    T[0], T[1] = 4, 5
    ACC = 8
    XS, GT = 136, 152
    if "lowy" in X: a(f"s_setprio {os.environ.get('YLOW', '0')}")
    a(f"s_lshl_b32 s3, s{RB}, 1")
    a("s_mul_i32 s3, s3, 56")
    a(f"s_mul_i32 s33, s{BW}, 14")
    a("s_add_u32 s3, s3, s33")
    a("s_lshl_b32 s3, s3, 10")
    a(f"s_add_u32 s32, s3, {WS_HF}")
    a(f"s_add_u32 s34, s32, {56*1024}")
    AF = 88; NA = 10
    plain_lane_off(a, 2, 0, 72)
    CDMA[0] = 2
    xfrag_addr(a, 6, 0, 72)
    a("v_add_u32 v6, s41, v6")
    a("v_xor_b32 v7, 32, v6")
    def ldA(st_):
        r = AF + 8 * (st_ % NA)
        a(f"s_add_u32 s35, s32, {st_*1024}")
        a(f"s_add_u32 s36, s34, {st_*1024}")
        a(f"buffer_load_dwordx4 {v(r,4)}, v1, s[{WSR}:{WSR+3}], s35 offen{SC1}")
        a(f"buffer_load_dwordx4 {v(r+4,4)}, v1, s[{WSR}:{WSR+3}], s36 offen{SC1}")
    for st_ in range(NA): ldA(st_)
    if "htouch" in X:
        a("v_lshlrev_b32 v72, 7, v0")
        a(f"s_mov_b32 m0, {L_JUNK}")
        a(f"s_add_u32 s35, s32, {NA*1024}")
        a(f"s_add_u32 s36, s34, {NA*1024}")
        a("s_mov_b32 exec_hi, 0")
        a(f"buffer_load_dword v72, s[{WSR}:{WSR+3}], s35 offen{SC1} lds")
        a(f"buffer_load_dword v72, s[{WSR}:{WSR+3}], s36 offen{SC1} lds")
        a("s_mov_b64 exec, -1")
    CB = [72, 80]
    def rdC(st_):
        b = CB[st_ & 1]
        kb = st_ >> 1
        a(f"ds_read_b128 {v(b,4)}, v{6+(st_&1)} offset:{(kb%5)*4096}")
        a(f"ds_read_b128 {v(b+4,4)}, v{6+(st_&1)} offset:{(kb%5)*4096+2048}")
    issued = []
    for st_ in range(NA): issued += [("A", st_)] * 2
    if "htouch" in X: issued += [("T", 0)] * 2
    HY = int(os.environ.get("HY", "0"))
    if HY:
        a(f"v_mov_b32 v4, {L_CNT}")
        lds_wait(a, C_LEND, HY, 4, 5, P + "_lend", sleep=8)
        a(f"s_setprio {os.environ.get('YP', '1')}")
    rdC(0)
    for st_ in range(14):
        kb = st_ >> 1
        need = [("A", st_)]
        if st_ + 1 < 14 and ((st_ + 1) >> 1) >= 5: need.append(("C", (st_ + 1) >> 1))
        last = max(i for i, t in enumerate(issued) if t in need)
        n_out = len(issued) - 1 - last
        a(f"s_waitcnt vmcnt({n_out})")
        if st_ + 1 < 14: rdC(st_ + 1)
        a(f"s_waitcnt lgkmcnt({2 if st_ + 1 < 14 else 0})")
        b = CB[st_ & 1]; r = AF + 8 * (st_ % NA)
        for rt in range(2):
            for ct in range(2):
                acc = ACC + 16 * (2 * rt + ct)
                c = "0" if st_ == 0 else v(acc, 16)
                a(f"{MF} {v(acc,16)}, {v(r+4*rt,4)}, {v(b+4*ct,4)}, {c}")
        if st_ + NA < 14:
            ldA(NA + st_); issued += [("A", NA + st_)] * 2
        if (st_ & 1) == 1 and kb + 5 < 7:
            c_dma(kb + 5); issued += [("C", kb + 5)] * 4
    pf.stamp(11)
    a(f"s_lshl_b32 s3, s{RB}, 6")
    a("s_lshl_b32 s33, s38, 5")
    a("s_add_u32 s3, s3, s33")
    a("v_lshrrev_b32 v80, 5, v0")
    a("v_lshlrev_b32 v80, 4, v80")
    a("v_add_u32 v80, s3, v80")
    a(f"s_lshl_b32 s33, s{J2}, 6")
    a(f"s_and_b32 s35, s{BW}, 1")
    a("s_lshl_b32 s35, s35, 5")
    a("s_add_u32 s33, s33, s35")
    a("v_and_b32 v81, 31, v0")
    a("v_add_u32 v81, s33, v81")
    srd(a, 48, S_X, XBYTES)
    a("v_mul_u32_u24 v82, 896, v80")
    a("v_lshl_add_u32 v82, v81, 1, v82")
    for r in range(16):
        a(f"buffer_load_ushort v{XS+r}, v82, s[48:51], 0 offen offset:{(r%4)*896}")
        if r % 4 == 3 and r < 15: a(f"v_add_u32 v82, {4*896}, v82")
    srd(a, 52, S_DSK, 896)
    a("v_lshlrev_b32 v83, 1, v81")
    a("buffer_load_ushort v3, v83, s[52:55], 0 offen")
    a("v_lshlrev_b32 v83, 2, v80")
    a(f"s_mov_b32 s35, {WS_G}")
    for q in range(4):
        a(f"buffer_load_dwordx4 {v(GT+4*q,4)}, v83, s[{WSR}:{WSR+3}], s35 offen offset:{16*q}{SC1}")

    a(f"s_setprio {os.environ.get('YP2', '2')}")
    bar()
    VT_, VD_, VO_, t1, t2, t3, t4, t5 = 72, 73, 74, 75, 76, 77, 78, 79
    srd(a, TR, S_WO, WBYTES)
    a(f"v_lshrrev_b32 v{t1}, 3, v0")
    a(f"v_mul_u32_u24 v{t1}, 896, v{t1}")
    a(f"v_and_b32 v{t2}, 7, v0")
    a(f"v_lshl_add_u32 v{t1}, v{t2}, 4, v{t1}")
    a(f"s_mul_i32 s32, s{BW}, {112*896}")
    a(f"s_lshl_b32 s3, s{J2}, 7")
    a("s_add_u32 s32, s32, s3")
    a(f"s_mul_i32 s34, s{BW}, 14336")
    a("s_mov_b32 m0, s34")
    a("s_mov_b32 s36, 14")
    a.label(P + "_wodma")
    a("s_sub_u32 s36, s36, 1")
    a(f"buffer_load_dwordx4 v{t1}, s[{TR}:{TR+3}], s32 offen lds")
    a("s_add_u32 s32, s32, 7168")
    a("s_add_u32 m0, m0, 1024")
    a("s_cmp_lg_u32 s36, 0")
    a(f"s_cbranch_scc1 {P}_wodma")
    a("v_mov_b32 v80, 0")
    a("v_mov_b32 v81, 0")
    a(f"v_lshlrev_b32 v{t2}, 3, v0")
    a(f"ds_write_b64 v{t2}, v[80:81] offset:57344")
    a(f"v_mov_b32 v4, {L_CNT}")
    lds_wait(a, C_TRD, 8, 4, 5, P + "_trd")
    a(f"s_lshl_b32 s3, s{BW}, 12")
    a(f"s_add_u32 s3, s3, {A_OP}")
    a(f"v_add_u32 v{t1}, s3, v1")
    for t in range(4):
        for q in range(4):
            a(f"ds_write_b128 v{t1}, {v(ACC+16*t+4*q,4)} offset:{t*16384+q*1024}")
    bar()
    a(f"s_lshl_b32 s3, s{BW}, 14")
    a(f"s_add_u32 s3, s3, {A_OP}")
    a(f"v_add_u32 v{t1}, s3, v1")
    for src in range(3):
        for q in range(4):
            a(f"ds_read_b128 {v(88+16*src+4*q,4)}, v{t1} offset:{src*4096+q*1024}")
    YT = 8
    for q in range(4):
        a(f"ds_read_b128 {v(YT+4*q,4)}, v{t1} offset:{3*4096+q*1024}")
        if q == 2: a("s_waitcnt lgkmcnt(4)")
    a("s_waitcnt lgkmcnt(0)")
    VT_, VD_, VO_, t1, t2, t3, t4, t5 = 40, 41, 42, 43, 44, 45, 46, 47
    a("s_waitcnt vmcnt(14)")
    for r in range(16):
        a(f"v_add_f32 v{88+r}, v{88+r}, v{104+r}")
        a(f"v_add_f32 v{YT+r}, v{YT+r}, v{120+r}")
    a("v_lshlrev_b32 v3, 16, v3")
    for r in range(16):
        a(f"v_add_f32 v{YT+r}, v{YT+r}, v{88+r}")
        a(f"v_lshlrev_b32 v{XS+r}, 16, v{XS+r}")
        a(f"v_mul_f32 v{XS+r}, v{XS+r}, v3")
        a(f"v_fma_f32 v{YT+r}, 2.0, v{YT+r}, v{XS+r}")
        a(f"v_sub_f32 v{XS+r}, 1.0, v{GT+r}")
        a(f"v_mul_f32 v{YT+r}, v{YT+r}, v{XS+r}")
    a(f"s_lshl_b32 s3, s{RB}, 6")
    a("s_lshl_b32 s33, s38, 5")
    a("s_add_u32 s3, s3, s33")
    a(f"v_lshrrev_b32 v{VT_}, 5, v0")
    a(f"v_lshlrev_b32 v{VT_}, 4, v{VT_}")
    a(f"v_add_u32 v{VT_}, s3, v{VT_}")
    a(f"s_lshl_b32 s33, s{J2}, 6")
    a(f"s_and_b32 s35, s{BW}, 1")
    a("s_lshl_b32 s35, s35, 5")
    a("s_add_u32 s33, s33, s35")
    a(f"v_and_b32 v{VD_}, 31, v0")
    a(f"v_add_u32 v{VD_}, s33, v{VD_}")
    a(f"v_mul_u32_u24 v{VO_}, 1792, v{VT_}")
    a(f"v_lshl_add_u32 v{VO_}, v{VD_}, 2, v{VO_}")
    srd(a, 48, S_OUT, OUTBYTES)
    a("v_lshrrev_b32 v6, 5, v0")
    a("v_lshlrev_b32 v6, 2, v6")
    a("v_bfe_u32 v7, v0, 2, 2")
    a("v_add_u32 v6, v6, v7")
    a("v_lshlrev_b32 v6, 7, v6")
    a("v_and_b32 v7, 16, v0")
    a(f"v_and_b32 v{t1}, 3, v0")
    a(f"v_lshl_add_u32 v7, v{t1}, 2, v7")
    a("v_lshl_add_u32 v6, v7, 1, v6")
    a(f"s_and_b32 s3, s{BW}, 1")
    a(f"s_mul_i32 s3, s3, {8*28*128}")
    a("v_add_u32 v6, s3, v6")
    a("s_waitcnt vmcnt(0)")
    a("s_setprio 3")
    pf.stamp(12)
    bar()
    a(f"v_lshlrev_b32 v{t4}, 2, v0")
    a(f"s_lshl_b32 s35, s{RB}, 7")
    a(f"s_add_u32 s35, s35, {FL_O}")
    a("s_mov_b64 s[58:59], 0xff")
    poll(a, P + "_pollO", t5, t4, 35, 58)
    pf.stamp(13)
    a(f"s_lshl_b32 s3, s{RB}, 1")
    a("s_add_u32 s3, s3, s38")
    a("s_lshl_b32 s3, s3, 15")
    a(f"s_and_b32 s33, s{BW}, 1")
    a("s_lshl_b32 s33, s33, 14")
    a("s_add_u32 s3, s3, s33")
    a(f"s_add_u32 s32, s3, {WS_OF}")
    OFR = 88
    for st_ in range(16):
        a(f"s_add_u32 s33, s32, {st_*1024}")
        a(f"buffer_load_dwordx4 {v(OFR+4*st_,4)}, v1, s[{WSR}:{WSR+3}], s33 offen{SC1}")
    PA_ = [56, 72]
    WB = [24, 32]
    def rdW(st_):
        hd, f = st_ >> 1, st_ & 1
        off = (28 * hd + 16 * f) * 128
        b = WB[st_ & 1]
        for ct in range(2):
            a(f"ds_read_b64_tr_b16 {v(b+4*ct,2)}, v6 offset:{off+ct*64}")
            a(f"ds_read_b64_tr_b16 {v(b+4*ct+2,2)}, v6 offset:{off+ct*64+1024}")
    rdW(0)
    for st_ in range(16):
        if st_ + 1 < 16: rdW(st_ + 1)
        a(f"s_waitcnt vmcnt({15-st_}) lgkmcnt({4 if st_ + 1 < 16 else 0})")
        for ct in range(2):
            c = "0" if st_ == 0 else v(PA_[ct], 16)
            a(f"{MF} {v(PA_[ct],16)}, {v(OFR+4*st_,4)}, {v(WB[st_&1]+4*ct,4)}, {c}")
    a(f"s_xor_b32 s3, s{BW}, 1")
    a("s_lshl_b32 s3, s3, 12")
    a("s_add_u32 s3, s3, 65536")
    a(f"v_add_u32 v{t1}, s3, v1")
    a(f"s_and_b32 s33, s{BW}, 1")
    a("s_nop 7")
    a("s_cmp_eq_u32 s33, 0")
    a(f"s_cbranch_scc0 {P}_send0")
    for q in range(4): a(f"ds_write_b128 v{t1}, {v(PA_[1]+4*q,4)} offset:{q*1024}")
    a(f"s_branch {P}_sent")
    a.label(P + "_send0")
    a("s_nop 1")
    for q in range(4): a(f"ds_write_b128 v{t1}, {v(PA_[0]+4*q,4)} offset:{q*1024}")
    a("s_nop 1")
    for r in range(16): a(f"v_mov_b32 v{PA_[0]+r}, v{PA_[1]+r}")
    a.label(P + "_sent")
    bar()
    a(f"s_lshl_b32 s3, s{BW}, 12")
    a("s_add_u32 s3, s3, 65536")
    a(f"v_add_u32 v{t1}, s3, v1")
    for q in range(4): a(f"ds_read_b128 {v(88+4*q,4)}, v{t1} offset:{q*1024}")
    a("s_waitcnt lgkmcnt(0)")
    for r in range(16):
        a(f"v_add_f32 v{88+r}, v{88+r}, v{PA_[0]+r}")
        a(f"v_fma_f32 v{88+r}, v{GT+r}, v{88+r}, v{YT+r}")
    for r in range(16):
        a(f"buffer_store_dword v{88+r}, v{VO_}, s[48:51], 0 offen offset:{(r%2)*1792}{os.environ.get('OST', '')}")
        if r % 2 == 1 and r < 15: a(f"v_add_u32 v{VO_}, {2*1792}, v{VO_}")
    pf.stamp(14)
    a(f"s_branch {P}_end")
    a.label(P + "_skip")
    if os.environ.get("S3", "b") in ("b", "u"): stage3("b")
    a(f"v_mov_b32 v54, {L_CNT}")
    a("v_mov_b32 v55, 1")
    a("s_mov_b64 exec, 1")
    a(f"ds_add_u32 v54, v55 offset:{C_HCNT}")
    a("s_mov_b64 exec, -1")
    a.label(P + "_end")

def lds_wait(a, coff, target, vaddr, vtmp, lab, sleep=1):
    a.label(lab)
    a(f"ds_read_b32 v{vtmp}, v{vaddr} offset:{coff}")
    a("s_waitcnt lgkmcnt(0)")
    a(f"v_readfirstlane_b32 s3, v{vtmp}")
    a(f"s_cmp_ge_u32 s3, {target}")
    a(f"s_cbranch_scc1 {lab}_ok")
    a(f"s_sleep {sleep}")
    a(f"s_sub_u32 s{SPIN}, s{SPIN}, 1")
    a(f"s_cbranch_scc0 {lab}")
    a(f"s_mov_b32 s{SPIN}, 0")
    a.label(lab + "_ok")

def lds_arrive(a, coff, vaddr, vtmp):
    a(f"v_mov_b32 v{vaddr}, {L_CNT}")
    a(f"v_mov_b32 v{vtmp}, 1")
    a("s_mov_b64 exec, 1")
    a(f"ds_add_u32 v{vaddr}, v{vtmp} offset:{coff}")
    a("s_mov_b64 exec, -1")

def dma_loop(a, lab, vaddr, n, dsrc, dlds):
    a("s_mov_b32 s36, %d" % n)
    a.label(lab)
    a("s_sub_u32 s36, s36, 1")
    a(f"buffer_load_dwordx4 v{vaddr}, s[{TR}:{TR+3}], s32 offen lds")
    a(f"s_add_u32 s32, s32, {dsrc}")
    a(f"s_add_u32 m0, m0, {dlds}")
    a("s_cmp_lg_u32 s36, 0")
    a(f"s_cbranch_scc1 {lab}")

def q_loop(a, acc, X4, W4, vxe, vxo, vw):
    def rd(j):
        k = j & 3
        a(f"ds_read_b128 {v(X4+4*k,4)}, v{vxo if j & 1 else vxe} offset:{(j>>1)*4096}")
        a(f"ds_read_b64_tr_b16 {v(W4+4*k,2)}, v{vw} offset:{j*2048}")
        a(f"ds_read_b64_tr_b16 {v(W4+4*k+2,2)}, v{vw} offset:{j*2048+512}")
    for j in range(4): rd(j)
    for j in range(28):
        left = min(3, 27 - j)
        a(f"s_waitcnt lgkmcnt({3*left})")
        c = "0" if j == 0 else v(acc, 16)
        a(f"{MF} {v(acc,16)}, {v(W4+4*(j&3),4)}, {v(X4+4*(j&3),4)}, {c}")
        if j + 4 < 28: rd(j + 4)

def gen_fused(a):
    name = NAME + "_kernel"
    a(f".globl {name}")
    a(".p2align 8")
    a(f".type {name},@function")
    a.label(name)
    END = "L_end"
    a("s_cmp_ge_u32 s2, 256")
    a(f"s_cbranch_scc1 {END}")
    a("s_load_dwordx16 s[64:79], s[0:1], 0")
    a("s_load_dwordx16 s[80:95], s[0:1], 64")
    a("s_load_dwordx4 s[96:99], s[0:1], 128")
    if "earlycode" in X:
        a("s_getpc_b64 s[56:57]")
        a.label("p0_pc0")
        a("v_lshlrev_b32 v148, 7, v0")
        a("s_mov_b32 s3, L_end-p0_pc0")
        a("v_min_u32 v148, s3, v148")
        a("global_load_dword v149, v148, s[56:57]")
    a("v_lshrrev_b32 v2, 6, v0")
    a("v_and_b32 v0, 63, v0")
    a(f"v_readfirstlane_b32 s{WV}, v2")
    a(f"v_mov_b32 v4, {L_CNT}")
    a("v_mov_b32 v5, 0")
    a("v_lshl_add_u32 v4, v0, 2, v4")
    a("ds_write_b32 v4, v5")
    a(f"s_and_b32 s{RB}, s2, 7")
    a(f"s_lshl_b32 s{RB}, s{RB}, 2")
    a(f"s_lshr_b32 s{J2}, s2, 3")
    a(f"s_and_b32 s3, s{J2}, 3")
    a(f"s_add_u32 s{RB}, s{RB}, s3")
    a(f"s_lshr_b32 s{J2}, s{J2}, 2")
    a("v_lshlrev_b32 v1, 4, v0")
    a(f"s_mov_b32 s{SPIN}, 0x100000")
    a(f"s_sub_u32 s{BW}, s{WV}, 8")
    pfA = Prof(a, 167)
    xtile_lane_off(a, 3, 0, 4, 5)
    a("s_waitcnt lgkmcnt(0)")
    srd(a, WSR, S_WS, WS_SIZE)
    if PROF: a("v_mov_b32 v167, 0")
    pfA.stamp(0)
    if PROF:
        a("s_getreg_b32 s60, hwreg(HW_REG_XCC_ID)")
        a("v_writelane_b32 v167, s60, 20")
        a("s_getreg_b32 s60, hwreg(HW_REG_HW_ID)")
        a("v_writelane_b32 v167, s60, 21")
    a(f"s_cmp_lt_u32 s{WV}, 4")
    a("s_cselect_b64 s[46:47], -1, 0")
    a(f"s_cmp_eq_u32 s{J2}, 0")
    a(f"s_cselect_b32 s{TR}, s{S_WK}, s{S_WV}")
    a(f"s_cselect_b32 s{TR+1}, s{S_WK+1}, s{S_WV+1}")
    a(f"s_mov_b32 s{TR+2}, {WKBYTES}")
    a(f"s_mov_b32 s{TR+3}, 0x00020000")
    a(f"s_mul_i32 s32, s{BW}, 7168")
    a(f"s_add_u32 s34, s32, {L_WKV}")
    a("s_mov_b32 s33, 1024")
    a("s_mov_b32 s35, 1024")
    a(f"s_cmp_lt_u32 s{J2}, 2")
    a("s_cselect_b32 s36, 7, 0")
    a(f"s_cmp_ge_u32 s{WV}, 8")
    a("s_cselect_b32 s36, s36, 0")
    a("v_cndmask_b32 v3, v1, v3, s[46:47]")
    a(f"s_mul_i32 s40, s{RB}, {64*896}")
    a(f"s_lshr_b32 s3, s{WV}, 1")
    a(f"s_mul_i32 s3, s3, {32*896}")
    a("s_add_u32 s40, s40, s3")
    a(f"s_and_b32 s3, s{WV}, 1")
    a(f"s_mul_i32 s3, s3, {8*896}")
    a("s_add_u32 s40, s40, s3")
    a(f"s_lshl_b32 s41, s{WV}, 10")
    a(f"s_cmp_lt_u32 s{WV}, 4")
    a(f"s_cselect_b32 s{TR}, s{S_X}, s{TR}")
    a(f"s_cselect_b32 s{TR+1}, s{S_X+1}, s{TR+1}")
    a(f"s_cselect_b32 s{TR+2}, {XBYTES}, s{TR+2}")
    a("s_cselect_b32 s32, s40, s32")
    a("s_cselect_b32 s34, s41, s34")
    a("s_cselect_b32 s33, 64, s33")
    a("s_cselect_b32 s35, 4096, s35")
    a("s_cselect_b32 s36, 14, s36")
    a("s_mov_b32 m0, s34")
    a("s_cmp_eq_u32 s36, 0")
    a("s_cbranch_scc1 p0_first_done")
    a.label("p0_first")
    a("s_sub_u32 s36, s36, 1")
    a(f"buffer_load_dwordx4 v3, s[{TR}:{TR+3}], s32 offen lds")
    a("s_add_u32 s32, s32, s33")
    a("s_add_u32 m0, m0, s35")
    a("s_cmp_lg_u32 s36, 0")
    a("s_cbranch_scc1 p0_first")
    a.label("p0_first_done")
    a(f"s_cmp_ge_u32 s{WV}, 8")
    a("s_cbranch_scc1 p0_bgw")
    a(f"s_cmp_ge_u32 s{WV}, 4")
    a("s_cbranch_scc1 p0_kvw")
    a("s_barrier")
    pfA.stamp(1)
    xfrag_addr(a, 6, 0, 4)
    tr_rowcol(a, 12, 13, 0, 4)
    a(f"s_lshr_b32 s38, s{WV}, 1")
    a(f"s_and_b32 s39, s{WV}, 1")
    a("s_lshl_b32 s3, s38, 11")
    a("v_add_u32 v6, s3, v6")
    a("v_xor_b32 v7, 32, v6")
    a("v_lshlrev_b32 v10, 7, v12")
    a("v_lshl_add_u32 v10, v13, 1, v10")
    a("s_mul_i32 s3, s39, 56")
    a(f"s_add_u32 s3, s3, {L_WQ}")
    a("v_add_u32 v10, s3, v10")
    a("s_waitcnt vmcnt(0)")
    lds_arrive(a, C_XR, 4, 5)
    pfA.stamp(2)
    a("s_waitcnt lgkmcnt(0)")
    a("s_barrier")
    pfA.stamp(3)
    q_loop(a, 16, 32, 48, 6, 7, 10)
    a(f"s_mov_b32 s42, {hex(QSCALE)}")
    a(f"s_lshl_b32 s3, s{WV}, 11")
    a(f"s_add_u32 s3, s3, {L_QX}")
    a("v_add_u32 v12, s3, v1")
    a("s_nop 7")
    a("s_nop 0")
    for i in range(16): a(f"v_mul_f32 v{16+i}, s42, v{16+i}")
    for i in range(8): a(f"v_cvt_pk_bf16_f32 v{32+i}, v{16+2*i}, v{17+2*i}")
    a("s_mov_b32 exec_lo, 0")
    a("v_mov_b32 v38, 0")
    a("v_mov_b32 v39, 0")
    a("s_mov_b32 exec_lo, -1")
    a("ds_write_b128 v12, v[32:35]")
    a("ds_write_b128 v12, v[36:39] offset:1024")
    a("s_branch p0_b1")
    a.label("p0_kvw")
    a(f"s_sub_u32 s39, s{WV}, 4")
    if "earlycode" not in X:
        a("s_getpc_b64 s[56:57]")
        a.label("p0_pc")
        a("s_lshl_b32 s3, s39, 13")
        a("v_lshlrev_b32 v150, 7, v0")
        a("v_add_u32 v150, s3, v150")
        a(f"s_sub_u32 s56, s56, p0_pc-{NAME}_kernel")
        a("s_subb_u32 s57, s57, 0")
        a(f"s_mov_b32 s3, L_end-{NAME}_kernel")
        a("v_min_u32 v150, s3, v150")
        a("global_load_dword v150, v150, s[56:57]")
    a("s_cmp_eq_u32 s39, 0")
    a("s_cbranch_scc0 p0_pf_out")
    a("v_lshlrev_b32 v151, 21, v0")
    a("s_mov_b64 exec, 7")
    a(f"buffer_load_dword v151, v151, s[{WSR}:{WSR+3}], 0 offen")
    a("s_mov_b64 exec, -1")
    a.label("p0_pf_out")
    a("s_cmp_eq_u32 s39, 1")
    a("s_cbranch_scc0 p0_pf_done")
    srd(a, 48, S_OUT, OUTBYTES)
    a("v_mul_u32_u24 v151, 0x1c0000, v0")
    a("s_mov_b64 exec, 7")
    a("buffer_load_dword v151, v151, s[48:51], 0 offen")
    a("s_mov_b64 exec, -1")
    if os.environ.get("S3") == "mall":
        a("s_cmp_eq_u32 s39, 3")
        a("s_cbranch_scc0 p0_pf_done")
        a("v_lshlrev_b32 v149, 7, v0")
        a(f"s_mul_i32 s3, s2, {13*128}")
        a(f"s_mov_b32 m0, {L_JUNK}")
        a("s_mov_b64 exec, 0x1fff")
        for sp in (S_CRE, S_CIM, S_WO):
            srd(a, 48, sp, WBYTES)
            a("buffer_load_dword v149, s[48:51], s3 offen lds")
        a("s_mov_b64 exec, -1")
    a.label("p0_pf_done")
    a("s_barrier")
    a(f"s_cmp_ge_u32 s{J2}, 3")
    a("s_cbranch_scc1 p0_kv_none")
    a("s_lshr_b32 s38, s39, 1")
    a("s_and_b32 s39, s39, 1")
    a(f"s_mov_b32 s15, {1 if 'dry' in X else 0}")
    a("s_setprio 3")
    a.label("p0_kv_setup")
    a(f"s_mov_b32 s8, s{WSR}")
    a(f"s_mov_b32 s9, s{WSR+1}")
    a("s_cmp_eq_u32 s15, 0")
    a(f"s_cselect_b32 s10, {WS_SIZE}, 0")
    a("s_mov_b32 s11, 0x00020000")
    xfrag_addr(a, 6, 0, 4)
    tr_rowcol(a, 12, 13, 0, 4)
    a("s_lshl_b32 s3, s38, 11")
    a("s_mul_i32 s41, s39, 28672")
    a("s_add_u32 s3, s3, s41")
    a("v_add_u32 v6, s3, v6")
    a("v_xor_b32 v7, 32, v6")
    a("s_mul_i32 s40, s39, 14")
    a(f"s_cmp_eq_u32 s{J2}, 2")
    a("s_cbranch_scc1 p0_kv_gaddr")
    a("v_mul_u32_u24 v10, 56, v12")
    a("v_lshl_add_u32 v10, v13, 1, v10")
    a(f"s_mul_i32 s3, s40, {16*56}")
    a(f"s_add_u32 s3, s3, {L_WKV}")
    a("v_add_u32 v10, s3, v10")
    a("v_add_u32 v11, 224, v10")
    a(f"s_mov_b32 s42, {16*56}")
    a("s_branch p0_kv_addr_done")
    a.label("p0_kv_gaddr")
    a("v_lshlrev_b32 v10, 3, v12")
    a("s_lshl_b32 s3, s40, 7")
    a(f"s_add_u32 s3, s3, {L_WKV}")
    a("v_add_u32 v10, s3, v10")
    a("v_add_u32 v11, 32, v10")
    a("s_mov_b32 s42, 128")
    a.label("p0_kv_addr_done")
    a(f"v_mov_b32 v4, {L_CNT}")
    a("s_cmp_lg_u32 s15, 0")
    a("s_cbranch_scc1 p0_xr_ok")
    lds_wait(a, C_XR, 8, 4, 5, "p0_xr")
    pfA.stamp(2)
    def kv_rd(i):
        a(f"ds_read_b128 {v(32+4*i,4)}, v{6+(i&1)} offset:{(i>>1)*4096}")
        a(f"ds_read_b64_tr_b16 {v(88+4*i,2)}, v10")
        a(f"ds_read_b64_tr_b16 {v(88+4*i+2,2)}, v11")
        if i < 13:
            a("v_add_u32 v10, s42, v10")
            a("v_add_u32 v11, s42, v11")
    def kv_mm(swap, tag):
        for i in range(4): kv_rd(i)
        for i in range(14):
            a(f"s_waitcnt lgkmcnt({3*min(3, 13-i)})")
            A, B = (32+4*i, 88+4*i) if swap else (88+4*i, 32+4*i)
            a(f"{MF} v[16:31], {v(A,4)}, {v(B,4)}, {'0' if i == 0 else 'v[16:31]'}")
            if i + 4 < 14: kv_rd(i + 4)
    a(f"s_cmp_ge_u32 s{J2}, 1")
    a("s_cbranch_scc1 p0_kv_swap")
    kv_mm(False, "k")
    a("s_branch p0_kv_mm_done")
    a.label("p0_kv_swap")
    kv_mm(True, "v")
    a.label("p0_kv_mm_done")
    pfA.stamp(22)
    a("s_lshl_b32 s3, s38, 12")
    a(f"s_add_u32 s3, s3, {L_QX}")
    a("v_add_u32 v12, s3, v1")
    a("s_nop 7")
    a("s_nop 0")
    a("s_cmp_lg_u32 s15, 0")
    a("s_cbranch_scc1 p0_kv_root")
    a("s_cmp_eq_u32 s39, 0")
    a("s_cbranch_scc1 p0_kv_root")
    for q in range(4): a(f"ds_write_b128 v12, {v(16+4*q,4)} offset:{q*1024}")
    a("s_waitcnt lgkmcnt(0)")
    a("s_lshl_b32 s3, s38, 2")
    a(f"v_mov_b32 v4, {L_CNT}")
    a("v_add_u32 v4, s3, v4")
    a("v_mov_b32 v5, 1")
    a("s_mov_b64 exec, 1")
    a(f"ds_add_u32 v4, v5 offset:{C_KVR}")
    a("s_mov_b64 exec, -1")
    a("s_branch p0_kv_none")
    a.label("p0_kv_root")
    a("s_lshl_b32 s3, s38, 2")
    a(f"v_mov_b32 v4, {L_CNT}")
    a("v_add_u32 v4, s3, v4")
    a("s_cmp_lg_u32 s15, 0")
    a("s_cbranch_scc1 p0_kvr_ok")
    lds_wait(a, C_KVR, 1, 4, 5, "p0_kvr")
    pfA.stamp(23)
    for i in range(4): a(f"ds_read_b128 {v(32+4*i,4)}, v12 offset:{i*1024}")
    a("s_waitcnt lgkmcnt(0)")
    for r in range(16): a(f"v_add_f32 v{16+r}, v{16+r}, v{32+r}")
    a(f"s_lshl_b32 s43, s{RB}, 1")
    a("s_add_u32 s43, s43, s38")
    a(f"s_cmp_eq_u32 s{J2}, 2")
    a("s_cbranch_scc1 p0_gate_epi")
    for i in range(8): a(f"v_cvt_pk_bf16_f32 v{32+i}, v{16+2*i}, v{17+2*i}")
    a("s_lshl_b32 s44, s43, 12")
    a(f"s_add_u32 s44, s44, {WS_KV}")
    a(f"s_cmp_eq_u32 s{J2}, 1")
    a("s_cbranch_scc1 p0_v_epi")
    a("s_mov_b32 exec_lo, 0")
    a("v_mov_b32 v38, 0x3f803f80")
    a("v_mov_b32 v39, 0x00003f80")
    a("s_mov_b32 exec_lo, -1")
    a(f"buffer_store_dwordx4 v[32:35], v1, s[8:11], s44 offen{SC1}")
    a(f"buffer_store_dwordx4 v[36:39], v1, s[8:11], s44 offen offset:1024{SC1}")
    a("s_branch p0_kv_arrive")
    a.label("p0_v_epi")
    a("v_max3_f32 v14, |v16|, |v17|, |v18|")
    for j in range(3, 15, 2): a(f"v_max3_f32 v14, v14, |v{16+j}|, |v{17+j}|")
    a("v_max_f32 v14, v14, |v31|")
    a("v_and_b32 v13, 31, v0")
    a("v_cmp_gt_u32 s[46:47], 28, v13")
    a(f"v_cmp_lt_f32 vcc, {hex(VMAX)}, v14")
    a("s_and_b64 vcc, vcc, s[46:47]")
    a("s_cbranch_vccz p0_v_ok")
    a("s_cmp_lg_u32 s15, 0")
    a("s_cbranch_scc1 p0_v_ok")
    srd(a, 48, S_DBG, 256)
    a("v_mov_b32 v14, 1")
    a(f"v_mov_b32 v15, {D_BAD}")
    a("s_mov_b64 exec, 1")
    a(f"buffer_store_dword v14, v15, s[48:51], 0 offen{SC1}")
    a("s_mov_b64 exec, -1")
    a.label("p0_v_ok")
    a("v_and_b32 v13, 31, v0")
    a("v_cmp_eq_u32 vcc, 28, v13")
    a("v_mov_b32 v14, 0x3f803f80")
    a("s_nop 0")
    a("v_cndmask_b32 v14, 0, v14, vcc")
    a("v_cmp_lt_u32 vcc, 27, v13")
    a("s_nop 1")
    for i in range(8): a(f"v_cndmask_b32 v{32+i}, v{32+i}, v14, vcc")
    a(f"buffer_store_dwordx4 v[32:35], v1, s[8:11], s44 offen offset:2048{SC1}")
    a(f"buffer_store_dwordx4 v[36:39], v1, s[8:11], s44 offen offset:3072{SC1}")
    a("s_branch p0_kv_arrive")
    a.label("p0_gate_epi")
    a(f"s_mov_b32 s42, {hex(LOG2E)}")
    for i in range(16): a(f"v_mul_f32 v{16+i}, s42, v{16+i}")
    for i in range(16): a(f"v_exp_f32 v{16+i}, -v{16+i}")
    for i in range(16): a(f"v_add_f32 v{16+i}, 1.0, v{16+i}")
    for i in range(16): a(f"v_rcp_f32 v{16+i}, v{16+i}")
    a("v_lshrrev_b32 v13, 5, v0")
    a("v_lshlrev_b32 v13, 6, v13")
    a("s_lshl_b32 s44, s43, 7")
    a(f"s_add_u32 s44, s44, {WS_G}")
    a("v_and_b32 v14, 31, v0")
    a("v_cmp_eq_u32 vcc, 0, v14")
    a("s_and_saveexec_b64 s[46:47], vcc")
    for q in range(4):
        a(f"buffer_store_dwordx4 {v(16+4*q,4)}, v13, s[8:11], s44 offen offset:{16*q}{SC1}")
    a("s_mov_b64 exec, -1")
    a.label("p0_kv_arrive")
    a("s_cmp_eq_u32 s15, 0")
    a("s_cbranch_scc1 p0_kv_real")
    a("s_mov_b32 s15, 0")
    a("s_branch p0_kv_setup")
    a.label("p0_kv_real")
    pfA.stamp(10)
    a("s_mov_b32 s16, 1")
    a("s_branch p0_kv_b0")
    a.label("p0_kv_none")
    a("s_mov_b32 s16, 0")
    a.label("p0_kv_b0")
    a("s_setprio 0")
    a("s_waitcnt lgkmcnt(0)")
    a("s_barrier")
    pfA.stamp(3)
    a("s_branch p0_b1")
    a.label("p0_bgw")
    a(f"s_cmp_eq_u32 s{WV}, 8")
    a("s_cbranch_scc0 p0_t9")
    srd(a, 48, S_X, XBYTES)
    a("s_and_b32 s3, s2, 7")
    a(f"s_mul_i32 s3, s3, {256*896}")
    a("s_lshr_b32 s46, s2, 3")
    a("s_mul_i32 s46, s46, 7168")
    a("s_add_u32 s3, s3, s46")
    a("v_lshlrev_b32 v50, 7, v0")
    a("s_mov_b32 exec_hi, 0xffffff")
    a("buffer_load_dword v52, v50, s[48:51], s3 offen")
    a("s_mov_b64 exec, -1")
    a("s_branch p0_t_done")
    a.label("p0_t9")
    a(f"s_cmp_eq_u32 s{WV}, 9")
    a("s_cbranch_scc0 p0_t10")
    touch_matrix(a, S_WQ, 52, 50)
    a("s_branch p0_t_done")
    a.label("p0_t10")
    a(f"s_cmp_eq_u32 s{WV}, 10")
    a("s_cbranch_scc0 p0_t_done")
    a("s_lshr_b32 s3, s2, 3")
    a(f"s_mul_i32 s3, s3, {7*128}")
    a("v_lshlrev_b32 v50, 7, v0")
    a("s_mov_b64 exec, 0x7f")
    srd(a, 48, S_WK, WKBYTES)
    a("buffer_load_dword v52, v50, s[48:51], s3 offen")
    srd(a, 48, S_WV, WKBYTES)
    a("buffer_load_dword v53, v50, s[48:51], s3 offen")
    a("s_mov_b64 exec, -1")
    a.label("p0_t_done")
    a(f"s_cmp_eq_u32 s{WV}, 11")
    a("s_cbranch_scc0 p0_nononce")
    a("s_cmp_eq_u32 s2, 0")
    a("s_cbranch_scc0 p0_nononce")
    srd(a, 48, S_DBG, 256)
    a("v_mov_b32 v7, 0")
    a("s_memrealtime s[60:61]")
    a("s_waitcnt lgkmcnt(0)")
    a("s_and_b32 s60, s60, 0xfffffffc")
    a("s_or_b32 s60, s60, 1")
    a("v_mov_b32 v6, s60")
    a("s_mov_b64 exec, 1")
    a(f"buffer_store_dword v6, v7, s[48:51], 0 offen offset:{D_NONCE}{SC1}")
    a("s_mov_b64 exec, -1")
    a.label("p0_nononce")
    a(f"s_cmp_eq_u32 s{J2}, 2")
    a("s_cbranch_scc0 p0_wkv_done")
    a(f"s_cmp_eq_u32 s{WV}, 8")
    a("s_cbranch_scc0 p0_wkv_done")
    srd(a, TR, S_GW, 896)
    a("v_lshlrev_b32 v3, 1, v0")
    for i in range(7):
        a(f"buffer_load_ushort v{10+i}, v3, s[{TR}:{TR+3}], 0 offen offset:{i*128}")
    a("v_lshlrev_b32 v4, 3, v0")
    a(f"v_add_u32 v4, {L_WKV}, v4")
    a("s_waitcnt vmcnt(0)")
    for i in range(7):
        a(f"v_lshl_or_b32 v{20+2*i}, v{10+i}, 16, v{10+i}")
        a(f"v_mov_b32 v{21+2*i}, v{20+2*i}")
        a(f"ds_write_b64 v4, {v(20+2*i,2)} offset:{i*512}")
    a.label("p0_wkv_done")
    a(f"s_lshl_b32 s37, s{J2}, 1")
    a(f"s_and_b32 s3, s{BW}, 1")
    a("s_add_u32 s37, s37, s3")
    a("v_and_b32 v4, 31, v0")
    a("s_lshl_b32 s3, s37, 6")
    a("v_lshl_add_u32 v4, v4, 1, s3")
    srd(a, 40, S_LRE, 896); a("buffer_load_ushort v8, v4, s[40:43], 0 offen")
    srd(a, 44, S_LIM, 896); a("buffer_load_ushort v9, v4, s[44:47], 0 offen")
    srd(a, 52, S_LDT, 896); a("buffer_load_ushort v10, v4, s[52:55], 0 offen")
    a("s_barrier")
    a("s_waitcnt vmcnt(3) lgkmcnt(0)")
    lds_arrive(a, C_XR, 4, 5)
    srd(a, TR, S_WQ, WBYTES)
    a("v_lshrrev_b32 v3, 3, v0")
    a("v_mul_u32_u24 v3, 896, v3")
    a("v_and_b32 v4, 7, v0")
    a("v_lshl_add_u32 v3, v4, 4, v3")
    a(f"s_mul_i32 s32, s{BW}, {112*896}")
    a(f"s_mul_i32 s33, s{J2}, 112")
    a("s_add_u32 s32, s32, s33")
    a(f"s_mul_i32 s34, s{BW}, 14336")
    a(f"s_add_u32 s34, s34, {L_WQ}")
    a("s_mov_b32 m0, s34")
    dma_loop(a, "p0_qdma", 3, 14, 7168, 1024)
    a(f"s_cmp_gt_u32 s{WV}, 9")
    a("s_cbranch_scc1 p0_nob")
    a(f"s_cmp_eq_u32 s{WV}, 8")
    a(f"s_cselect_b32 s56, s{S_BRE}, s{S_BIM}")
    a(f"s_cselect_b32 s57, s{S_BRE+1}, s{S_BIM+1}")
    touch_matrix(a, 56, 52, 50)
    a("s_mov_b32 s17, 1")
    a("s_waitcnt vmcnt(16)")
    a("s_branch p0_nob2")
    a.label("p0_nob")
    a("s_mov_b32 s17, 0")
    a("s_waitcnt vmcnt(14)")
    a.label("p0_nob2")
    a(f"v_mov_b32 v4, {L_CNT}")
    lds_wait(a, C_XR, 8, 4, 5, "p0_xr2")
    xfrag_addr(a, 6, 0, 4)
    a(f"s_lshr_b32 s38, s{BW}, 1")
    a("s_lshl_b32 s3, s38, 11")
    a("v_add_u32 v6, s3, v6")
    a("v_xor_b32 v7, 32, v6")
    for j in range(28):
        a(f"ds_read_b128 {v(56+4*j,4)}, v{6 + (j&1)} offset:{(j>>1)*4096}")
        if j in (11, 21): a("s_waitcnt lgkmcnt(2)")
    a("v_lshlrev_b32 v8, 16, v8")
    a("v_lshlrev_b32 v9, 16, v9")
    a("v_lshlrev_b32 v10, 16, v10")
    a(f"v_mul_f32 v10, {hex(LOG2E)}, v10")
    a("v_exp_f32 v10, v10")
    a("s_nop 0")
    a("v_cvt_pk_bf16_f32 v10, v10, v10")
    a("v_lshlrev_b32 v10, 16, v10")
    a("v_mul_f32 v11, v10, v8")
    a("v_mul_f32 v12, v10, v9")
    a(f"v_mul_f32 v11, {hex(LOG2E)}, v11")
    a(f"v_mul_f32 v12, {hex(INV2PI)}, v12")
    a("v_exp_f32 v13, v11")
    a("v_fract_f32 v14, v12")
    a("s_nop 0")
    a("v_cos_f32 v2, v14")
    a("v_sin_f32 v3, v14")
    a("s_nop 0")
    a("v_mul_f32 v2, v2, v13")
    a("v_mul_f32 v3, v3, v13")
    a("v_add_f32 v13, -1.0, v2")
    a("v_mul_f32 v14, v8, v8")
    a("v_fma_f32 v14, v9, v9, v14")
    a("v_rcp_f32 v14, v14")
    a("v_mul_f32 v15, v13, v8")
    a("v_fma_f32 v15, v3, v9, v15")
    a("v_mul_f32 v16, v3, v8")
    a("v_fma_f32 v16, -v13, v9, v16")
    a("v_mul_f32 v4, v15, v14")
    a("v_mul_f32 v5, v16, v14")
    a("s_cmp_eq_u32 s17, 0")
    a("s_cbranch_scc1 p0_bgw0")
    a("s_waitcnt vmcnt(2) lgkmcnt(0)")
    a("s_branch p0_bgw1")
    a.label("p0_bgw0")
    a("s_waitcnt vmcnt(0) lgkmcnt(0)")
    a.label("p0_bgw1")
    a("s_barrier")
    a.label("p0_b1")
    a("s_waitcnt lgkmcnt(0)")
    if PROF:
        a(f"s_cmp_ge_u32 s{WV}, 8")
        a("s_cbranch_scc1 p0_b1_bgst")
        pfA.stamp(9)
        a("s_branch p0_b1_go")
        a.label("p0_b1_bgst")
        BgProf(a).stamp(4)
        a.label("p0_b1_go")
    a("s_barrier")
    a(f"s_cmp_ge_u32 s{WV}, 8")
    a("s_cbranch_scc1 p1_bg")
    a(f"s_cmp_lt_u32 s{WV}, 4")
    a("s_cbranch_scc1 p1_noarr")
    a("s_cmp_eq_u32 s16, 0")
    a("s_cbranch_scc1 p1_noarr")
    a(f"v_mov_b32 v14, {L_CNT}")
    a("v_mov_b32 v15, 1")
    a("s_waitcnt vmcnt(0)")
    pfA.stamp(11)
    a("s_mov_b64 exec, 1")
    a(f"s_or_b32 s3, s{RB}, s{J2}")
    a(f"s_cmp_eq_u32 s{WV}, 4")
    a("s_cselect_b32 s3, s3, 1")
    a("s_cmp_eq_u32 s3, 0")
    a("s_cbranch_scc0 p1_nok0")
    srd(a, 48, S_DBG, 256)
    a("v_mov_b32 v12, 1")
    a(f"v_mov_b32 v13, {D_K0}")
    a(f"buffer_store_dword v12, v13, s[48:51], 0 offen{SC1}")
    a.label("p1_nok0")
    a(f"ds_add_rtn_u32 v15, v14, v15 offset:{C_KVA}")
    a("s_waitcnt lgkmcnt(0)")
    a("v_readfirstlane_b32 s3, v15")
    a("s_cmp_eq_u32 s3, 1")
    a("s_cbranch_scc0 p1_arrdone")
    srd(a, 48, S_DBG, 256)
    a("v_mov_b32 v14, 1")
    a(f"s_cmp_eq_u32 s{J2}, 2")
    a(f"s_cselect_b32 s3, {D_GCNT}, {D_CNT}")
    a("v_mov_b32 v15, s3")
    a("buffer_atomic_add v14, v15, s[48:51], 0 offen sc0 sc1")
    a("s_waitcnt vmcnt(0)")
    a("v_readfirstlane_b32 s3, v14")
    a(f"s_cmp_eq_u32 s{J2}, 2")
    a("s_cselect_b32 s46, 31, 63")
    a(f"s_mov_b32 s47, {D_GO}")
    a(f"s_cselect_b32 s47, {D_GOG}, s47")
    a("s_cmp_eq_u32 s3, s46")
    a("s_cbranch_scc0 p1_arrdone")
    a("v_mov_b32 v14, 1")
    a("v_mov_b32 v15, s47")
    a(f"buffer_store_dword v14, v15, s[48:51], 0 offen{SC1}")
    a.label("p1_arrdone")
    a("s_mov_b64 exec, -1")
    pfA.stamp(12)
    a.label("p1_noarr")
    if PROF: a("v_mov_b32 v0, v167")
    pf = Prof(a, 0)
    pf.stamp(4)
    gen_attention(a, pf)
    pf.flush(2)
    a(f"s_branch {END}")
    a.label("p1_bg")
    a(f"s_setprio {os.environ.get('BP', '3')}")
    gen_background(a, BgProf(a))
    a.label(END)
    a("s_endpgm")
    return name

class BgProf:
    def __init__(self, a): self.a = a; self.T = [54, 55]
    def stamp(self, slot):
        if not PROF or "noprofb" in X: return
        if "onlyb" in os.environ and str(slot) not in os.environ["onlyb"].split(","): return
        a = self.a
        a("s_memrealtime s[60:61]")
        a("s_lshl_b32 s62, s2, 4")
        a(f"s_add_u32 s62, s62, s{WV}")
        a("s_lshl_b32 s62, s62, 8")
        a(f"s_add_u32 s62, s62, {WS_PROF + 4*slot}")
        a("s_waitcnt vmcnt(0) lgkmcnt(0)")
        a("s_mov_b64 exec, 1")
        t0, t1 = self.T
        a(f"v_mov_b32 v{t0}, s60")
        a(f"v_mov_b32 v{t1}, 0")
        a(f"buffer_store_dword v{t0}, v{t1}, s[{WSR}:{WSR+3}], s62 offen")
        a("s_mov_b64 exec, -1")
        a("s_waitcnt vmcnt(0)")
    def flush(self): pass

def build():
    a = Asm()
    name = gen_fused(a)
    text = a.text()
    probs = check_hazards(text)
    ref = open("gated_mix__grouped_kv_mqa__ssm_conv_s5__prompt.s.ref").read().split("\n")
    pre = []
    for ln in ref:
        if not ln.startswith(";"): break
        if "Override launch" in ln or "grid=ceil" in ln or "@launch" in ln: continue
        pre.append(ln)
    head = "\n".join(pre) + "\n"
    head += f"; @launch grid=(256,1,1) block=(768,1,1) lds={LDS_TOTAL}\n"
    out = head + '.amdgcn_target "amdgcn-amd-amdhsa--gfx950"\n.text\n' + text
    out += f""".section .rodata,"a"
.p2align 6
.amdhsa_kernel {name}
  .amdhsa_next_free_vgpr 168
  .amdhsa_next_free_sgpr 102
  .amdhsa_accum_offset 168
  .amdhsa_group_segment_fixed_size 0
  .amdhsa_kernarg_size 144
  .amdhsa_user_sgpr_count 2
  .amdhsa_user_sgpr_kernarg_segment_ptr 1
  .amdhsa_system_sgpr_workgroup_id_x 1
.end_amdhsa_kernel
"""
    return out, probs

if __name__ == "__main__":
    out, probs = build()
    open(sys.argv[1], "w").write(out)
    print("wrote", sys.argv[1], "hazards:", len(probs))
```

```python
import sys, os, struct, math
from asmlib import Asm, v, s, check_hazards

NAME = "gated_mix__grouped_kv_mqa__ssm_conv_s5__prompt"
X = set(os.environ.get('XF', '').split(','))
PROF = "prof" in X
def f2u(x): return struct.unpack("<I", struct.pack("<f", x))[0]
QSCALE = f2u(math.log2(math.e) / math.sqrt(28.0))
LOG2E = f2u(math.log2(math.e))
INV2PI = f2u(1.0 / (2.0 * math.pi))
MF = "v_mfma_f32_32x32x16_bf16"
SC1 = " sc1"
POLLSLEEP = int(os.environ.get('PS', '1'))

WS_KV = 0x000000
WS_G  = 0x040000
WS_FL = 0x042000
FL_H  = WS_FL
FL_O  = WS_FL + 0x1000
WS_E  = 0x048000
D_CNT, D_GCNT, D_GO, D_BAD, D_K0, D_NONCE, D_GOG = 0, 64, 128, 132, 136, 140, 144
WS_OF = 0x080000
WS_HF = 0x280000
WS_PROF = 0x800000
WS_SIZE = 0x1000000
XBYTES = 2048 * 448 * 2
WBYTES = 448 * 448 * 2
WKBYTES = 448 * 28 * 2
OUTBYTES = 2048 * 448 * 4

S_X, S_WQ, S_WK, S_WV, S_WO = 64, 66, 68, 70, 72
S_LRE, S_LIM = 76, 78
S_BRE, S_BIM, S_CRE, S_CIM, S_LDT, S_DSK, S_GW, S_OUT = 80, 82, 84, 86, 88, 90, 92, 94
S_DBG, S_WS = 96, 98
RB, J2, WV, BW = 20, 21, 22, 23
WSR = 24
TR = 28
NONCE = 19
SPIN = 18

L_X = 0; L_WQ = 57344; L_WKV = 114688; L_GW = 143360
L_QX = 147456
L_CNT = 163584
C_ATT, C_BG, C_NONCE, C_BAD, C_UDONE, C_HCNT, C_OCNT, C_XR, C_KVR, C_KVA, C_TRD, C_LEND, C_BL, C_KVI = 0, 4, 8, 12, 16, 20, 24, 28, 32, 40, 44, 48, 52, 56
B_EX = 159744; B_HT = 90112
B_HT2 = 69632
L_C = 0
L_RED = 0
L_WO = 0
A_OP = 90112; A_LP = 155648
LDS_TOTAL = 163840

def srd(a, dst, src, nbytes):
    a(f"s_mov_b32 s{dst}, s{src}")
    a(f"s_mov_b32 s{dst+1}, s{src+1}")
    a(f"s_mov_b32 s{dst+2}, {hex(nbytes)}")
    a(f"s_mov_b32 s{dst+3}, 0x00020000")

class Prof:
    def __init__(self, a, vreg): self.a = a; self.v = vreg
    def stamp(self, slot):
        if not PROF or "noprofa" in X: return
        a = self.a
        a("s_memrealtime s[60:61]")
        a("s_memtime s[62:63]")
        a("s_waitcnt lgkmcnt(0)")
        a(f"v_writelane_b32 v{self.v}, s60, {slot}")
        a(f"v_writelane_b32 v{self.v}, s62, {slot+32}")
    def flush(self, vt):
        if not PROF: return
        a = self.a
        a("s_lshl_b32 s60, s2, 4")
        a(f"s_add_u32 s60, s60, s{WV}")
        a("s_lshl_b32 s60, s60, 8")
        a(f"s_add_u32 s60, s60, {WS_PROF}")
        a("s_mov_b64 exec, -1")
        a(f"v_mbcnt_lo_u32_b32 v{vt}, -1, 0")
        a(f"v_mbcnt_hi_u32_b32 v{vt}, -1, v{vt}")
        a(f"v_lshlrev_b32 v{vt}, 2, v{vt}")
        a(f"buffer_store_dword v{self.v}, v{vt}, s[{WSR}:{WSR+3}], s60 offen")
        a("s_waitcnt vmcnt(0)")

def xtile_lane_off(a, vd, vlane, vt0, vt1):
    a(f"v_lshrrev_b32 v{vt0}, 4, v{vlane}")
    a(f"v_and_b32 v{vt1}, 1, v{vt0}")
    a(f"v_lshlrev_b32 v{vt1}, 4, v{vt1}")
    a(f"v_lshrrev_b32 v{vd}, 5, v{vlane}")
    a(f"v_lshl_add_u32 v{vt1}, v{vd}, 2, v{vt1}")
    a(f"v_bfe_u32 v{vd}, v{vlane}, 2, 2")
    a(f"v_add_u32 v{vt1}, v{vt1}, v{vd}")
    a(f"v_mul_u32_u24 v{vt1}, 896, v{vt1}")
    a(f"v_and_b32 v{vd}, 3, v{vlane}")
    a(f"v_xor_b32 v{vd}, v{vd}, v{vt0}")
    a(f"v_lshl_add_u32 v{vd}, v{vd}, 4, v{vt1}")

def plain_lane_off(a, vd, vlane, vt0):
    a(f"v_lshrrev_b32 v{vt0}, 4, v{vlane}")
    a(f"v_and_b32 v{vd}, 3, v{vlane}")
    a(f"v_xor_b32 v{vd}, v{vd}, v{vt0}")
    a(f"v_lshlrev_b32 v{vd}, 4, v{vd}")
    a(f"v_lshrrev_b32 v{vt0}, 2, v{vlane}")
    a(f"v_mul_u32_u24 v{vt0}, 896, v{vt0}")
    a(f"v_add_u32 v{vd}, v{vd}, v{vt0}")

def xfrag_addr(a, vd, vlane, vt0):
    a(f"v_bfe_u32 v{vt0}, v{vlane}, 2, 2")
    a(f"v_lshrrev_b32 v{vd}, 5, v{vlane}")
    a(f"v_xor_b32 v{vt0}, v{vt0}, v{vd}")
    a(f"v_lshlrev_b32 v{vt0}, 4, v{vt0}")
    a(f"v_and_b32 v{vd}, 31, v{vlane}")
    a(f"v_lshl_add_u32 v{vd}, v{vd}, 6, v{vt0}")

def tr_rowcol(a, vrow, vcol, vlane, vt):
    a(f"v_lshrrev_b32 v{vrow}, 5, v{vlane}")
    a(f"v_lshlrev_b32 v{vrow}, 3, v{vrow}")
    a(f"v_bfe_u32 v{vt}, v{vlane}, 2, 2")
    a(f"v_add_u32 v{vrow}, v{vrow}, v{vt}")
    a(f"v_and_b32 v{vcol}, 16, v{vlane}")
    a(f"v_and_b32 v{vt}, 3, v{vlane}")
    a(f"v_lshl_add_u32 v{vcol}, v{vt}, 2, v{vcol}")

def proj_loop(a, swap, acc, xe, xo, we, wo_, vxe, vxo, vw1, vw2, s_wstep, s_cnt, lab):
    def rd(xr, wr, vx):
        a(f"ds_read_b128 {v(xr,4)}, v{vx}")
        a(f"ds_read_b64_tr_b16 {v(wr,2)}, v{vw1}")
        a(f"ds_read_b64_tr_b16 {v(wr+2,2)}, v{vw2}")
        a(f"v_add_u32 v{vx}, 0x1000, v{vx}")
        a(f"v_add_u32 v{vw1}, s{s_wstep}, v{vw1}")
        a(f"v_add_u32 v{vw2}, s{s_wstep}, v{vw2}")
    def mf(x, w):
        A, B = (x, w) if swap else (w, x)
        a(f"{MF} {v(acc,16)}, {v(A,4)}, {v(B,4)}, {v(acc,16)}")
    rd(xe, we, vxe); rd(xo, wo_, vxo)
    a(f"s_mov_b32 s{s_cnt}, 14")
    a.label(lab)
    a("s_waitcnt lgkmcnt(3)")
    mf(xe, we)
    rd(xe, we, vxe)
    a("s_waitcnt lgkmcnt(3)")
    mf(xo, wo_)
    rd(xo, wo_, vxo)
    a(f"s_sub_u32 s{s_cnt}, s{s_cnt}, 1")
    a(f"s_cmp_lg_u32 s{s_cnt}, 0")
    a(f"s_cbranch_scc1 {lab}")
    a("s_waitcnt lgkmcnt(0)")

def sw_barrier(a, coff, s_tgt, n, vaddr, vtmp, lab):
    a(f"s_add_u32 s{s_tgt}, s{s_tgt}, {n}")
    a(f"v_mov_b32 v{vtmp}, 1")
    a("s_waitcnt lgkmcnt(0)")
    a("s_mov_b64 exec, 1")
    a(f"ds_add_u32 v{vaddr}, v{vtmp} offset:{coff}")
    a("s_mov_b64 exec, -1")
    a.label(lab)
    a(f"ds_read_b32 v{vtmp}, v{vaddr} offset:{coff}")
    a("s_waitcnt lgkmcnt(0)")
    a(f"v_readfirstlane_b32 s3, v{vtmp}")
    a(f"s_cmp_ge_u32 s3, s{s_tgt}")
    a(f"s_cbranch_scc1 {lab}_ok")
    a("s_sleep 1")
    a(f"s_sub_u32 s{SPIN}, s{SPIN}, 1")
    a(f"s_cbranch_scc0 {lab}")
    a(f"s_mov_b32 s{SPIN}, 0")
    a.label(lab + "_ok")

def flag_store(a, soff_reg, vt0, vt1, val=None):
    a("s_mov_b64 exec, 1")
    a(f"v_mov_b32 v{vt0}, s{val if val is not None else NONCE}")
    a(f"v_mov_b32 v{vt1}, 0")
    a(f"buffer_store_dword v{vt0}, v{vt1}, s[{WSR}:{WSR+3}], s{soff_reg} offen{SC1}")
    a("s_mov_b64 exec, -1")

def arrive_flag(a, coff, n, soff_reg, vt0, vt1, lab):
    a(f"v_mov_b32 v{vt0}, {L_CNT}")
    a(f"v_mov_b32 v{vt1}, 1")
    a("s_waitcnt vmcnt(0)")
    a("s_mov_b64 exec, 1")
    a(f"ds_add_rtn_u32 v{vt1}, v{vt0}, v{vt1} offset:{coff}")
    a("s_waitcnt lgkmcnt(0)")
    a(f"v_readfirstlane_b32 s60, v{vt1}")
    a("s_mov_b64 exec, -1")
    a(f"s_cmp_eq_u32 s60, {n-1}")
    a(f"s_cbranch_scc0 {lab}")
    flag_store(a, soff_reg, vt0, vt1)
    a.label(lab)

def poll(a, lab, vdst, voff, soff_reg, mask_pair, sleep=None):
    sleep = POLLSLEEP if sleep is None else sleep
    a.label(lab)
    a(f"buffer_load_dword v{vdst}, v{voff}, s[{WSR}:{WSR+3}], s{soff_reg} offen{SC1}")
    a("s_waitcnt vmcnt(0)")
    a(f"v_cmp_ne_u32 vcc, s{NONCE}, v{vdst}")
    a(f"s_and_b64 vcc, vcc, s[{mask_pair}:{mask_pair+1}]")
    a(f"s_cbranch_vccz {lab}_ok")
    a(f"s_sleep {sleep}")
    a(f"s_sub_u32 s{SPIN}, s{SPIN}, 1")
    a(f"s_cbranch_scc0 {lab}")
    a(f"s_mov_b32 s{SPIN}, 0")
    a.label(lab + "_ok")

def cfma(a, hr, hi, lr, li, ur, ui, tr, ti):
    a(f"v_fma_f32 v{tr}, -v{li}, v{hi}, v{ur}")
    a(f"v_fma_f32 v{ti}, v{li}, v{hr}, v{ui}")
    a(f"v_fma_f32 v{hr}, v{lr}, v{hr}, v{tr}")
    a(f"v_fma_f32 v{hi}, v{lr}, v{hi}, v{ti}")

L_JUNK = 161792
def touch_matrix(a, sptr, vdst, vt, sr=48):
    srd(a, sr, sptr, WBYTES)
    a("s_lshr_b32 s3, s2, 3")
    a(f"s_mul_i32 s3, s3, {98*128}")
    a(f"v_lshlrev_b32 v{vt}, 7, v0")
    a(f"s_mov_b32 m0, {L_JUNK}")
    a("s_nop 0")
    a(f"buffer_load_dword v{vt}, s[{sr}:{sr+3}], s3 offen lds")
    a("s_add_u32 s3, s3, 8192")
    a("s_mov_b32 exec_hi, 3")
    a(f"buffer_load_dword v{vt}, s[{sr}:{sr+3}], s3 offen lds")
    a("s_mov_b64 exec, -1")

AQ, AO, AS, AK, AV, APB = 8, 40, [104, 120], [136, 144], [152, 160], 4

def att_unit(a, u, side):
    up = u - 1; un = u + 1
    cur = AS[u & 1]; prv = AS[(u + 1) & 1]
    Vp = AV[(up >> 2) & 1]; Op = AO + 16 * (up & 3)
    Kn = AK[(un >> 2) & 1]; Qn = AQ + 8 * (un & 3)
    side = list(side)
    def E(lo, hi):
        for j in range(lo, hi):
            a(f"v_exp_f32 v{cur+j}, v{cur+j}")
            if side:
                x = side.pop(0)
                if x: a(x)
    while side and isinstance(side[0], tuple):
        a(side.pop(0)[1])
    a(f"{MF} {v(Op,16)}, {v(Vp,4)}, {v(prv,4)}, {v(Op,16)}")
    E(0, 4)
    a(f"v_cvt_pk_bf16_f32 v{APB+2}, v{prv+12}, v{prv+13}")
    a(f"v_cvt_pk_bf16_f32 v{APB+3}, v{prv+14}, v{prv+15}")
    a(f"{MF} {v(prv,16)}, {v(Kn,4)}, {v(Qn,4)}, 0")
    E(4, 8)
    a(f"v_cvt_pk_bf16_f32 v{cur}, v{cur}, v{cur+1}")
    a(f"v_cvt_pk_bf16_f32 v{cur+1}, v{cur+2}, v{cur+3}")
    a(f"{MF} {v(prv,16)}, {v(Kn+4,4)}, {v(Qn+4,4)}, {v(prv,16)}")
    E(8, 12)
    a(f"v_cvt_pk_bf16_f32 v{cur+2}, v{cur+4}, v{cur+5}")
    a(f"v_cvt_pk_bf16_f32 v{cur+3}, v{cur+6}, v{cur+7}")
    a(f"{MF} {v(Op,16)}, {v(Vp+4,4)}, {v(APB,4)}, {v(Op,16)}")
    E(12, 16)
    a(f"v_cvt_pk_bf16_f32 v{APB}, v{cur+8}, v{cur+9}")
    a(f"v_cvt_pk_bf16_f32 v{APB+1}, v{cur+10}, v{cur+11}")
    assert not side, side

L_SEL = 162560
L_SH = 162048
LMAX = f2u(2.0 ** 90) if "forcefb" not in X else f2u(2.0 ** -20)
VMAX = f2u(2.0 ** 20)

def gen_attention(a, pf):
    P = "att"
    KR = TR
    a(f"v_add_u32 v2, {L_QX}, v1")
    for g in range(4):
        a(f"ds_read_b128 {v(AQ+8*g,4)}, v2 offset:{g*2048}")
        a(f"ds_read_b128 {v(AQ+8*g+4,4)}, v2 offset:{g*2048+1024}")
    a(f"s_add_u32 s{KR}, s{WSR}, {WS_KV}")
    a(f"s_addc_u32 s{KR+1}, s{WSR+1}, 0")
    a(f"s_mov_b32 s{KR+3}, 0x00020000")
    a("s_mov_b32 s44, 0")
    a("s_mov_b32 s51, 0")
    a(f"s_cmp_lt_u32 s{WV}, 4")
    a("s_cselect_b32 s53, 1, -1")
    a(f"s_cmp_eq_u32 s{WV}, 7")
    a(f"s_cbranch_scc0 {P}_nosel")
    a("v_lshrrev_b32 v104, 4, v1")
    a("v_and_b32 v105, 31, v104")
    a("v_lshrrev_b32 v104, 5, v104")
    a("v_lshlrev_b32 v104, 2, v104")
    a("v_sub_u32 v105, v105, v104")
    for j in range(4):
        d0 = (2 * j & 3) + 8 * ((2 * j) >> 2)
        a(f"v_cmp_eq_u32 vcc, {d0}, v105")
        a(f"v_mov_b32 v106, 0x3f80")
        a("s_nop 0")
        a(f"v_cndmask_b32 v{108+j}, 0, v106, vcc")
        a(f"v_cmp_eq_u32 vcc, {d0+1}, v105")
        a(f"v_mov_b32 v106, 0x3f800000")
        a("s_nop 0")
        a(f"v_cndmask_b32 v107, 0, v106, vcc")
        a(f"v_or_b32 v{108+j}, v{108+j}, v107")
    a(f"v_add_u32 v104, {L_SEL}, v1")
    a("ds_write_b128 v104, v[108:111]")
    a.label(P + "_nosel")
    srd(a, 56, S_DBG, 256)
    def phaseA():
        a(f"s_cmp_eq_u32 s{WV}, 0")
        a(f"s_cbranch_scc0 {P}_nopollA")
        a(f"v_mov_b32 v2, {D_K0}")
        a.label(P + "_pollA")
        a(f"buffer_load_dword v104, v2, s[56:59], 0 offen{SC1}")
        a("s_waitcnt vmcnt(0)")
        a("v_readfirstlane_b32 s3, v104")
        a("s_cmp_lg_u32 s3, 0")
        a(f"s_cbranch_scc1 {P}_nopollA")
        a(f"s_sleep {POLLSLEEP}")
        a(f"s_sub_u32 s{SPIN}, s{SPIN}, 1")
        a(f"s_cbranch_scc0 {P}_pollA")
        a(f"s_mov_b32 s{SPIN}, 0")
        a.label(P + "_nopollA")
        a(f"v_mov_b32 v3, {L_CNT}")
        sw_barrier(a, C_ATT, 44, 8, 3, 2, P + "_ba")
    def shiftblk():
        a(f"s_mov_b32 s{KR+2}, 0x40000")
        a(f"s_cmp_ge_u32 s{WV}, 4")
        a(f"s_cbranch_scc1 {P}_shwait")
        a(f"buffer_load_dwordx4 {v(AS[1],4)}, v1, s[{KR}:{KR+3}], 0 offen{SC1}")
        a(f"buffer_load_dwordx4 {v(AS[1]+4,4)}, v1, s[{KR}:{KR+3}], 0 offen offset:1024{SC1}")
        a(f"s_lshl_b32 s3, s{WV}, 11")
        a(f"s_add_u32 s3, s3, {L_QX}")
        a("v_add_u32 v2, s3, v1")
        a(f"ds_read_b128 {v(AO,4)}, v2")
        a(f"ds_read_b128 {v(AO+4,4)}, v2 offset:1024")
        a("s_waitcnt vmcnt(0) lgkmcnt(0)")
        o = AO + 16
        a(f"{MF} {v(o,16)}, {v(AS[1],4)}, {v(AO,4)}, 0")
        a(f"{MF} {v(o,16)}, {v(AS[1]+4,4)}, {v(AO+4,4)}, {v(o,16)}")
        a(f"s_lshl_b32 s3, s{WV}, 7")
        a(f"s_add_u32 s3, s3, {L_SH}")
        a("v_lshrrev_b32 v3, 2, v1")
        a("v_and_b32 v3, 127, v3")
        a("v_add_u32 v3, s3, v3")
        a("s_nop 7")
        a(f"v_max3_f32 v2, v{o}, v{o+1}, v{o+2}")
        for j in range(3, 15, 2):
            a(f"v_max3_f32 v2, v2, v{o+j}, v{o+j+1}")
        a(f"v_max_f32 v2, v2, v{o+15}")
        a(f"v_mov_b32 v{AO}, v2")
        a("s_nop 1")
        a(f"v_permlane32_swap_b32 v2, v{AO}")
        a(f"v_max_f32 v2, v2, v{AO}")
        a("v_cvt_pk_bf16_f32 v2, -v2, 0")
        a("s_mov_b32 exec_hi, 0")
        a("ds_write_b32 v3, v2")
        a("s_mov_b64 exec, -1")
        a.label(P + "_shwait")
        a(f"v_mov_b32 v3, {L_CNT}")
        sw_barrier(a, C_ATT, 44, 8, 3, 2, P + "_bs")
        a("v_lshrrev_b32 v3, 2, v1")
        a("v_and_b32 v3, 127, v3")
        a(f"v_add_u32 v3, {L_SH}, v3")
        for g in range(4): a(f"ds_read_b32 v{AO+g}, v3 offset:{g*128}")
        a("s_waitcnt lgkmcnt(0)")
        a("s_mov_b32 exec_lo, 0")
        for g in range(4): a(f"v_mov_b32 v{AQ+8*g+6}, v{AO+g}")
        a("s_mov_b32 exec_lo, -1")
    def phaseB():
        a(f"s_cmp_eq_u32 s{WV}, 0")
        a(f"s_cbranch_scc0 {P}_nopoll")
        a(f"v_mov_b32 v2, {D_GO}")
        a.label(P + "_poll")
        a(f"buffer_load_dwordx2 v[104:105], v2, s[56:59], 0 offen{SC1}")
        a("s_waitcnt vmcnt(0)")
        a("v_readfirstlane_b32 s3, v104")
        a("s_cmp_lg_u32 s3, 0")
        a(f"s_cbranch_scc1 {P}_pollok")
        a(f"s_sleep {POLLSLEEP}")
        a(f"s_sub_u32 s{SPIN}, s{SPIN}, 1")
        a(f"s_cbranch_scc0 {P}_poll")
        a(f"s_mov_b32 s{SPIN}, 0")
        a.label(P + "_pollok")
        a(f"v_mov_b32 v3, {L_CNT}")
        a("s_mov_b64 exec, 1")
        a(f"ds_add_u32 v3, v105 offset:{C_BAD}")
        a("s_mov_b64 exec, -1")
        a.label(P + "_nopoll")
        a(f"v_mov_b32 v3, {L_CNT}")
        sw_barrier(a, C_ATT, 44, 8, 3, 2, P + "_b0")
        pf.stamp(5)
        a("s_lshr_b32 s52, s2, 3")
        a("s_lshl_b32 s52, s52, 3")
        a(f"s_add_u32 s52, s52, s{WV}")
        a("s_lshl_b32 s52, s52, 10")
    def mainloads():
        a.label(P + "_restart")
        a(f"s_mov_b32 s{KR+2}, 0x40000")
        a(f"s_lshl_b32 s43, s{WV}, 15")
        a(f"buffer_load_dwordx4 {v(AK[0],4)}, v1, s[{KR}:{KR+3}], s43 offen{SC1}")
        a(f"buffer_load_dwordx4 {v(AK[0]+4,4)}, v1, s[{KR}:{KR+3}], s43 offen offset:1024{SC1}")
        a(f"buffer_load_dwordx4 {v(AV[0],4)}, v1, s[{KR}:{KR+3}], s43 offen offset:2048{SC1}")
        a(f"buffer_load_dwordx4 {v(AV[0]+4,4)}, v1, s[{KR}:{KR+3}], s43 offen offset:3072{SC1}")
        a("s_add_u32 s43, s43, 4096")
        a(f"buffer_load_dwordx4 {v(AK[1],4)}, v1, s[{KR}:{KR+3}], s43 offen{SC1}")
        a(f"buffer_load_dwordx4 {v(AK[1]+4,4)}, v1, s[{KR}:{KR+3}], s43 offen offset:1024{SC1}")
        a(f"s_lshl_b32 s3, s{WV}, 9")
        a(f"s_mov_b32 m0, {L_JUNK}")
        a("v_lshlrev_b32 v2, 3, v1")
        a("s_mov_b64 exec, 0xff")
        a(f"buffer_load_dword v2, s[{KR}:{KR+3}], s52 offen{SC1} lds")
        a("s_mov_b64 exec, -1")
        for j in range(4): a(f"v_mov_b32 v{APB+j}, 0")
        for j in range(8): a(f"v_mov_b32 v{AV[1]+j}, 0")
    if "lateshift" in X:
        phaseB(); mainloads()
        a("s_cmp_lg_u32 s51, 0")
        a(f"s_cbranch_scc1 {P}_haveshift")
        shiftblk()
    else:
        phaseA(); shiftblk(); phaseB(); mainloads()
    a.label(P + "_haveshift")
    for j in (0, 1, 2, 3, 12, 13, 14, 15): a(f"v_mov_b32 v{AS[1]+j}, 0")
    a(f"s_and_b32 s3, s{WV}, 3")
    a("s_lshl_b32 s3, s3, 2")
    a(f"s_add_u32 s3, s3, {L_CNT + 64}")
    a("v_mov_b32 v2, s3")
    for g in range(4):
        a(f"{MF} {v(AO+16*g,16)}, {v(AV[1],4)}, {v(APB,4)}, 0")
    a("s_waitcnt vmcnt(5)")
    a(f"{MF} {v(AS[0],16)}, {v(AK[0],4)}, {v(AQ,4)}, 0")
    a(f"{MF} {v(AS[0],16)}, {v(AK[0]+4,4)}, {v(AQ+4,4)}, {v(AS[0],16)}")
    a("s_mov_b32 s48, 0")
    a("s_setprio 2")
    a("s_nop 7")
    a("s_nop 1")
    pf.stamp(6)
    a(".p2align 3")
    a.label(P + "_loop")
    for u in range(8):
        g = u & 3; par = (u >> 2) & 1
        side = []
        if g == 1:
            side.append(("q0", "s_waitcnt vmcnt(2)"))
            side.append(f"buffer_load_dwordx4 {v(AV[par^1],4)}, v1, s[{KR}:{KR+3}], s43 offen offset:2048{SC1}")
            side.append(f"buffer_load_dwordx4 {v(AV[par^1]+4,4)}, v1, s[{KR}:{KR+3}], s43 offen offset:3072{SC1}")
            side.append("s_add_u32 s43, s43, 4096")
            if par == 0:
                side.append("s_cmp_eq_u32 s48, 3")
                side.append(f"s_cselect_b32 s{KR+2}, 0, s{KR+2}")
        if g == 3:
            side += [None, None, None, "s_waitcnt vmcnt(2)"]
            side.append(f"buffer_load_dwordx4 {v(AK[par],4)}, v1, s[{KR}:{KR+3}], s43 offen{SC1}")
            side.append(f"buffer_load_dwordx4 {v(AK[par]+4,4)}, v1, s[{KR}:{KR+3}], s43 offen offset:1024{SC1}")
            if par == 1:
                side += ["s_add_u32 s48, s48, 1", None, None, None, None, None, None, None, None, "s_cmp_lt_u32 s48, 4"]
        if g == 0 and "nofair" not in X:
            side += ["v_mov_b32 v3, s53", None, "s_mov_b64 exec, 1\nds_add_rtn_u32 v3, v2, v3\ns_mov_b64 exec, -1"]
        if g == 2 and "nofair" not in X:
            lab = f"{P}_fp{u}"
            side += ["s_waitcnt lgkmcnt(0)", "v_readfirstlane_b32 s54, v3", None, "s_mul_i32 s54, s54, s53", "s_cmp_gt_i32 s54, 0",
                     f"s_cbranch_scc1 {lab}a\ns_setprio 2\ns_branch {lab}b\n{lab}a:\ns_setprio 1\n{lab}b:"]
        att_unit(a, u, side)
    a(f"s_cbranch_scc1 {P}_loop")
    prv = AS[1]
    a(f"{MF} {v(AO+48,16)}, {v(AV[1],4)}, {v(prv,4)}, {v(AO+48,16)}")
    a(f"v_cvt_pk_bf16_f32 v{APB+2}, v{prv+12}, v{prv+13}")
    a(f"v_cvt_pk_bf16_f32 v{APB+3}, v{prv+14}, v{prv+15}")
    a("s_nop 1")
    a(f"{MF} {v(AO+48,16)}, {v(AV[1]+4,4)}, {v(APB,4)}, {v(AO+48,16)}")
    pf.stamp(7)
    a("s_setprio 3")
    a("s_cmp_lg_u32 s51, 0")
    a(f"s_cbranch_scc1 {P}_nolend")
    lds_arrive(a, C_LEND, 2, 3)
    a.label(P + "_nolend")
    a(f"v_mov_b32 v3, {L_CNT}")
    a.label(P + "_udone")
    a(f"ds_read2_b32 v[104:105], v3 offset0:{C_NONCE//4} offset1:{C_HCNT//4}")
    a("s_waitcnt lgkmcnt(0)")
    a("v_readfirstlane_b32 s3, v105")
    a(f"v_readfirstlane_b32 s{NONCE}, v104")
    a("s_cmp_ge_u32 s3, 4")
    a(f"s_cbranch_scc1 {P}_udone_ok")
    a(f"s_sub_u32 s{SPIN}, s{SPIN}, 1")
    a(f"s_cbranch_scc0 {P}_udone")
    a(f"s_mov_b32 s{SPIN}, 0")
    a.label(P + "_udone_ok")
    a(f"s_lshl_b32 s3, s{WV}, 13")
    a(f"s_add_u32 s3, s3, {A_OP}")
    a(f"v_add_u32 v2, s3, v1")
    a(f"s_lshl_b32 s3, s{WV}, 9")
    a(f"s_add_u32 s3, s3, {A_LP}")
    a("v_lshrrev_b32 v3, 2, v1")
    a("v_and_b32 v4, 127, v3")
    a("v_add_u32 v4, s3, v4")
    a(f"s_mov_b32 s46, {hex(LMAX)}")
    a("s_mov_b64 s[56:57], 0")
    for g in range(4):
        o = AO + 16 * g
        if g == 3: a("s_nop 3")
        a("s_mov_b32 exec_lo, 0")
        a(f"ds_write_b32 v4, v{o+12} offset:{g*128}")
        a(f"v_cmp_nge_f32 vcc, s46, v{o+12}")
        a("s_mov_b32 exec_lo, -1")
        a("s_or_b64 s[56:57], s[56:57], vcc")
        for j in range(8):
            a(f"v_cvt_pk_bf16_f32 v{AS[0]+8*g+j}, v{o+2*j}, v{o+2*j+1}")
        a(f"ds_write_b128 v2, {v(AS[0]+8*g,4)} offset:{g*2048}")
        a(f"ds_write_b128 v2, {v(AS[0]+8*g+4,4)} offset:{g*2048+1024}")
    a(f"v_mov_b32 v3, {L_CNT}")
    a("s_cmp_eq_u64 s[56:57], 0")
    a(f"s_cbranch_scc1 {P}_safe")
    a("v_mov_b32 v2, 1")
    a("s_mov_b64 exec, 1")
    a(f"ds_add_u32 v3, v2 offset:{C_BAD}")
    a("s_mov_b64 exec, -1")
    a.label(P + "_safe")
    pf.stamp(17)
    sw_barrier(a, C_ATT, 44, 8, 3, 2, P + "_b1")
    pf.stamp(18)
    a(f"ds_read_b32 v2, v3 offset:{C_BAD}")
    a(f"s_lshl_b32 s3, s{WV}, 10")
    a(f"s_add_u32 s3, s3, {A_OP}")
    a("v_add_u32 v4, s3, v1")
    for w in range(8):
        a(f"ds_read_b128 {v(AO+4*w,4)}, v4 offset:{w*8192}")
    a(f"s_lshr_b32 s45, s{WV}, 1")
    a("s_lshl_b32 s3, s45, 7")
    a(f"s_add_u32 s3, s3, {A_LP}")
    a("v_lshrrev_b32 v3, 2, v1")
    a("v_and_b32 v3, 127, v3")
    a("v_add_u32 v3, s3, v3")
    a("s_waitcnt lgkmcnt(8)")
    a("v_readfirstlane_b32 s3, v2")
    a("s_cmp_lg_u32 s3, 0")
    a("s_cselect_b32 s3, 1, 0")
    a("s_andn2_b32 s3, s3, s51")
    a(f"s_cbranch_scc1 {P}_fallback")
    acc = AO + 48
    a(f"v_add_u32 v2, {L_SEL}, v1")
    a(f"ds_read_b128 {v(AO+40,4)}, v2")
    for w in range(6):
        a(f"ds_read_b32 v{AO+32+w}, v3 offset:{w*512}")
    for w in range(8):
        a(f"s_waitcnt lgkmcnt({6 if w < 1 else 6})") if w == 0 else None
        if w == 0:
            a(f"ds_read_b32 v{AO+38}, v3 offset:{6*512}")
            a(f"ds_read_b32 v{AO+39}, v3 offset:{7*512}")
        a(f"{MF} {v(acc,16)}, {v(AO+40,4)}, {v(AO+4*w,4)}, {'0' if w == 0 else v(acc,16)}")
    a("s_lshr_b32 s3, s45, 1")
    a(f"s_lshl_b32 s46, s{RB}, 1")
    a("s_add_u32 s3, s3, s46")
    a("s_lshl_b32 s3, s3, 4")
    a(f"s_lshl_b32 s46, s{J2}, 1")
    a("s_add_u32 s3, s3, s46")
    a("s_and_b32 s46, s45, 1")
    a("s_add_u32 s3, s3, s46")
    a("s_lshl_b32 s3, s3, 11")
    a(f"s_and_b32 s46, s{WV}, 1")
    a("s_lshl_b32 s46, s46, 10")
    a("s_add_u32 s3, s3, s46")
    a(f"s_add_u32 s47, s3, {WS_OF}")
    a("s_waitcnt lgkmcnt(0)")
    lds_arrive(a, C_TRD, 2, 3)
    l = AO + 32
    a(f"v_add_f32 v{l}, v{l}, v{l+1}")
    a(f"v_add_f32 v{l+2}, v{l+2}, v{l+3}")
    a(f"v_add_f32 v{l+4}, v{l+4}, v{l+5}")
    a(f"v_add_f32 v{l+6}, v{l+6}, v{l+7}")
    a(f"v_add_f32 v{l}, v{l}, v{l+2}")
    a(f"v_add_f32 v{l+4}, v{l+4}, v{l+6}")
    a(f"v_add_f32 v{l}, v{l}, v{l+4}")
    a(f"v_rcp_f32 v{l+1}, v{l}")
    a("s_nop 3")
    for j in range(8): a(f"v_mul_f32 v{acc+j}, v{acc+j}, v{l+1}")
    for j in range(4): a(f"v_cvt_pk_bf16_f32 v{AO+j}, v{acc+2*j}, v{acc+2*j+1}")
    a(f"s_and_b32 s3, s{WV}, 1")
    a("s_cmp_eq_u32 s3, 1")
    a("s_cselect_b32 exec_hi, -1, 0")
    a("s_mov_b32 exec_lo, 0")
    a(f"v_mov_b32 v{AO+2}, 0")
    a(f"v_mov_b32 v{AO+3}, 0")
    a("s_mov_b64 exec, -1")
    pf.stamp(19)
    a(f"buffer_store_dwordx4 {v(AO,4)}, v1, s[{WSR}:{WSR+3}], s47 offen{SC1}")
    if "dup" in X or "dupo" in X:
        a(f"buffer_store_dwordx4 {v(AO,4)}, v1, s[{WSR}:{WSR+3}], s47 offen")
    a(f"s_lshl_b32 s3, s{RB}, 5")
    a(f"s_add_u32 s3, s3, s{J2}")
    a("s_lshl_b32 s3, s3, 2")
    a(f"s_add_u32 s3, s3, {FL_O}")
    arrive_flag(a, C_OCNT, 8, 3, 2, 3, P + "_oflag")
    pf.stamp(8)
    a(f"s_branch {P}_done")
    a.label(P + "_fallback")
    a("s_waitcnt lgkmcnt(0)")
    a("s_mov_b32 s51, 1")
    a(f"s_mov_b32 s{KR+2}, 0x40000")
    a("s_mov_b32 exec_lo, 0")
    for g in range(4):
        a(f"v_mov_b32 v{AQ+8*g+6}, 0")
        a(f"v_mov_b32 v{AQ+8*g+7}, 0")
    a("s_mov_b32 exec_lo, -1")
    for g in range(4): a(f"v_mov_b32 v{APB+g}, 0xff800000")
    a("s_mov_b32 s43, 0")
    a.label(P + "_fb_loop")
    a(f"buffer_load_dwordx4 {v(AK[0],4)}, v1, s[{KR}:{KR+3}], s43 offen{SC1}")
    a(f"buffer_load_dwordx4 {v(AK[0]+4,4)}, v1, s[{KR}:{KR+3}], s43 offen offset:1024{SC1}")
    a("s_waitcnt vmcnt(0)")
    for g in range(4):
        o = AO + 16 * g
        a(f"{MF} {v(o,16)}, {v(AK[0],4)}, {v(AQ+8*g,4)}, 0")
        a(f"{MF} {v(o,16)}, {v(AK[0]+4,4)}, {v(AQ+8*g+4,4)}, {v(o,16)}")
    a("s_nop 7")
    for g in range(4):
        o = AO + 16 * g
        for j in range(0, 16, 2):
            a(f"v_max3_f32 v{APB+g}, v{APB+g}, v{o+j}, v{o+j+1}")
    a("s_add_u32 s43, s43, 4096")
    a("s_cmp_lt_u32 s43, 0x40000")
    a(f"s_cbranch_scc1 {P}_fb_loop")
    for g in range(4):
        m = APB + g
        a(f"v_mov_b32 v2, v{m}")
        a("s_nop 1")
        a(f"v_permlane32_swap_b32 v2, v{m}")
        a(f"v_max_f32 v2, v2, v{m}")
        a("v_sub_f32 v2, 0, v2")
        a("v_cvt_pk_bf16_f32 v3, v2, v2")
        a("v_and_b32 v3, 0xffff0000, v3")
        a(f"v_sub_f32 v{m}, v2, v3")
        a(f"v_cvt_pk_bf16_f32 v2, v{m}, v{m}")
        a("v_and_b32 v2, 0xffff0000, v2")
        a(f"v_sub_f32 v{m}, v{m}, v2")
        a(f"v_cvt_pk_bf16_f32 v{m}, v{m}, 0")
        a("v_lshrrev_b32 v3, 16, v3")
        a("v_or_b32 v3, v3, v2")
        a("s_mov_b32 exec_lo, 0")
        a(f"v_mov_b32 v{AQ+8*g+6}, v3")
        a(f"v_mov_b32 v{AQ+8*g+7}, v{m}")
        a("s_mov_b32 exec_lo, -1")
    a(f"v_mov_b32 v3, {L_CNT}")
    sw_barrier(a, C_ATT, 44, 8, 3, 2, P + "_bf")
    a(f"s_branch {P}_restart")
    a.label(P + "_done")

def gen_background(a, pf):
    P = "bg"
    XF = 56; ARE, AIM = 8, 24
    nbar = [0]
    T = [54, 55]
    pf.T = T
    def bar():
        nbar[0] += 1
        a(f"v_mov_b32 v{T[0]}, {L_CNT}")
        sw_barrier(a, C_BG, 44, 4, T[0], T[1], f"{P}_bar{nbar[0]}")
    def stage3(tag, vd_=156, vt_=158):
        if "nopf" in X: return
        a(f"s_cmp_eq_u32 s{BW}, 3")
        a(f"s_cbranch_scc1 {P}_not3{tag}")
        a(f"s_cmp_eq_u32 s{BW}, 0")
        a(f"s_cselect_b32 s56, s{S_CRE}, s{S_CIM}")
        a(f"s_cselect_b32 s57, s{S_CRE+1}, s{S_CIM+1}")
        a(f"s_cmp_eq_u32 s{BW}, 2")
        a(f"s_cselect_b32 s56, s{S_WO}, s56")
        a(f"s_cselect_b32 s57, s{S_WO+1}, s57")
        touch_matrix(a, 56, vd_, vt_)
        a.label(P + "_not3" + tag)
    a("s_mov_b32 s44, 0")
    a(f"s_lshl_b32 s37, s{J2}, 1")
    a(f"s_and_b32 s3, s{BW}, 1")
    a("s_add_u32 s37, s37, s3")
    a(f"s_lshr_b32 s38, s{BW}, 1")
    a(f"s_cmp_eq_u32 s{BW}, 3")
    a(f"s_cbranch_scc0 {P}_nononce")
    srd(a, 48, S_DBG, 256)
    a("v_mov_b32 v7, 0")
    a.label(P + "_npoll")
    a(f"buffer_load_dword v6, v7, s[48:51], 0 offen offset:{D_NONCE}{SC1}")
    a("s_waitcnt vmcnt(0)")
    a("v_readfirstlane_b32 s3, v6")
    a("s_cmp_lg_u32 s3, 0")
    a(f"s_cbranch_scc1 {P}_npoll_ok")
    a(f"s_sleep {POLLSLEEP}")
    a(f"s_sub_u32 s{SPIN}, s{SPIN}, 1")
    a(f"s_cbranch_scc0 {P}_npoll")
    a(f"s_mov_b32 s{SPIN}, 0")
    a.label(P + "_npoll_ok")
    a(f"v_mov_b32 v7, {L_CNT}")
    a(f"ds_write_b32 v7, v6 offset:{C_NONCE}")
    a.label(P + "_nononce")
    a(f"s_cmp_eq_u32 s{J2}, 7")
    a(f"s_cbranch_scc1 {P}_skip")
    if "nobg" in X: a(f"s_branch {P}_skip")
    if "kvfirst" in X:
        a(f"s_cmp_ge_u32 s{J2}, 2")
        a(f"s_cbranch_scc1 {P}_nokvi")
        a(f"v_mov_b32 v6, {L_CNT}")
        lds_wait(a, C_KVI, 1, 6, 7, P + "_kvi")
        a.label(P + "_nokvi")
    a(f"s_and_b32 s3, s{BW}, 1")
    a("s_cmp_eq_u32 s3, 0")
    a(f"s_cselect_b32 s{TR}, s{S_BRE}, s{S_BIM}")
    a(f"s_cselect_b32 s{TR+1}, s{S_BRE+1}, s{S_BIM+1}")
    a(f"s_mov_b32 s{TR+2}, {WBYTES}")
    a(f"s_mov_b32 s{TR+3}, 0x00020000")
    plain_lane_off(a, 8, 0, 9)
    a(f"s_lshl_b32 s3, s{J2}, 1")
    a("s_add_u32 s3, s3, s38")
    a(f"s_mul_i32 s32, s3, {32*896}")
    a(f"s_lshl_b32 s34, s{BW}, 11")
    a("s_mov_b32 m0, s34")
    a("s_mov_b32 s36, 14")
    a.label(P + "_bdma")
    a(f"s_add_u32 s33, s32, {16*896}")
    a(f"buffer_load_dwordx4 v8, s[{TR}:{TR+3}], s32 offen lds")
    a("s_add_u32 m0, m0, 1024")
    a("s_sub_u32 s36, s36, 1")
    a(f"buffer_load_dwordx4 v8, s[{TR}:{TR+3}], s33 offen lds")
    a("s_add_u32 s32, s32, 64")
    a(f"s_add_u32 m0, m0, {8192-1024}")
    a("s_cmp_lg_u32 s36, 0")
    a(f"s_cbranch_scc1 {P}_bdma")
    xfrag_addr(a, 6, 0, 8)
    a(f"s_and_b32 s3, s{BW}, 1")
    a("s_lshl_b32 s3, s3, 12")
    a("v_add_u32 v6, s3, v6")
    a("v_xor_b32 v7, 32, v6")
    a("s_waitcnt vmcnt(0)")
    bar()
    a(f"ds_read_b32 v55, v54 offset:{C_NONCE}")
    a("s_waitcnt lgkmcnt(0)")
    a(f"v_readfirstlane_b32 s{NONCE}, v55")
    if "cntpoll" in X:
        lds_arrive(a, C_BL, 54, 55)
    pf.stamp(5)
    S3 = os.environ.get("S3", "b")
    if S3 == "b": stage3("a", 52, 54)
    if os.environ.get("UP"): a(f"s_setprio {os.environ['UP']}")
    BB = [40, 48]
    def rdB(j):
        b = BB[j & 1]
        if j in (16, 17): a(f"v_add_u32 v{6+(j&1)}, 0x10000, v{6+(j&1)}")
        o = (j >> 1) * 8192 - (65536 if j >= 16 else 0)
        a(f"ds_read_b128 {v(b,4)}, v{6+(j&1)} offset:{o}")
        a(f"ds_read_b128 {v(b+4,4)}, v{6+(j&1)} offset:{o+2048}")
    rdB(0); rdB(1)
    for j in range(28):
        b = BB[j & 1]
        a("s_waitcnt lgkmcnt(2)" if j < 27 else "s_waitcnt lgkmcnt(0)")
        c1 = "0" if j == 0 else v(ARE,16); c2 = "0" if j == 0 else v(AIM,16)
        a(f"{MF} {v(ARE,16)}, {v(XF+4*j,4)}, {v(b,4)}, {c1}")
        a(f"{MF} {v(AIM,16)}, {v(XF+4*j,4)}, {v(b+4,4)}, {c2}")
        if j + 2 < 28: rdB(j + 2)
    if os.environ.get("UP"): a(f"s_setprio {os.environ.get('BP', '3')}")
    a(f"v_mov_b32 v54, {L_CNT}")
    a("v_mov_b32 v55, 1")
    a("s_mov_b64 exec, 1")
    a(f"ds_add_u32 v54, v55 offset:{C_UDONE}")
    a("s_mov_b64 exec, -1")
    pf.stamp(6)
    if S3 == "u": stage3("a")
    def csq(dr, di, sr, si):
        a(f"v_mul_f32 v46, v{si}, v{si}")
        a(f"v_mul_f32 v47, v{sr}, v{si}")
        a(f"v_fma_f32 v{dr}, v{sr}, v{sr}, -v46")
        a(f"v_add_f32 v{di}, v47, v47")
    csq(40, 41, 2, 3)
    for _ in range(3): csq(40, 41, 40, 41)
    csq(42, 43, 40, 41); csq(42, 43, 42, 43)
    csq(44, 45, 42, 43)
    for _ in range(3): csq(44, 45, 44, 45)
    a("v_mov_b32 v48, v4")
    a("v_mov_b32 v49, v4")
    a("v_mov_b32 v50, v5")
    a("v_mov_b32 v51, v5")
    for r in range(0, 16, 2):
        a(f"v_pk_mul_f32 v[46:47], v[50:51], {v(AIM+r,2)}")
        a(f"v_pk_mul_f32 v[52:53], v[50:51], {v(ARE+r,2)}")
        a(f"v_pk_fma_f32 {v(ARE+r,2)}, v[48:49], {v(ARE+r,2)}, v[46:47] neg_lo:[0,0,1] neg_hi:[0,0,1]")
        a(f"v_pk_fma_f32 {v(AIM+r,2)}, v[48:49], {v(AIM+r,2)}, v[52:53]")
    a(f"v_mov_b32 v48, v{ARE}")
    a(f"v_mov_b32 v49, v{AIM}")
    for r in range(1, 16):
        cfma(a, 48, 49, 2, 3, ARE + r, AIM + r, 46, 47)
    a("v_and_b32 v50, 31, v0")
    a("v_lshlrev_b32 v50, 3, v50")
    a(f"s_and_b32 s3, s{BW}, 1")
    a("s_lshl_b32 s3, s3, 10")
    a(f"s_add_u32 s3, s3, {B_EX}")
    a("v_add_u32 v50, s3, v50")
    a("v_lshrrev_b32 v51, 5, v0")
    a("s_lshl_b32 s3, s38, 1")
    a("v_add_u32 v51, s3, v51")
    a("v_lshl_add_u32 v52, v51, 8, v50")
    a("ds_write_b64 v52, v[48:49]")
    bar()
    for c in range(4):
        a(f"ds_read_b64 {v(56+2*c,2)}, v50 offset:{c*256}")
    a("s_waitcnt lgkmcnt(0)")
    a("v_mov_b32 v64, v56")
    a("v_mov_b32 v65, v57")
    for c in range(1, 4):
        cfma(a, 64, 65, 40, 41, 56 + 2*c, 57 + 2*c, 46, 47)
    a("s_cmp_eq_u32 s38, 1")
    a(f"s_cbranch_scc0 {P}_nopub")
    a(f"s_mul_i32 s3, s{RB}, {448*16}")
    a("s_lshl_b32 s33, s37, 9")
    a("s_add_u32 s3, s3, s33")
    a(f"s_add_u32 s3, s3, {WS_E}")
    a(f"v_mov_b32 v66, s{NONCE}")
    a(f"v_mov_b32 v67, s{NONCE}")
    a("v_and_b32 v68, 31, v0")
    a("v_lshlrev_b32 v68, 4, v68")
    a("s_mov_b32 exec_hi, 0")
    a(f"buffer_store_dwordx4 v[64:67], v68, s[{WSR}:{WSR+3}], s3 offen{SC1}")
    a("s_mov_b64 exec, -1")
    a.label(P + "_nopub")
    pf.stamp(7)
    a(f"s_add_u32 s48, s{WSR}, {WS_E}")
    a(f"s_addc_u32 s49, s{WSR+1}, 0")
    a(f"s_mov_b32 s50, {32*448*16}")
    a("s_mov_b32 s51, 0x00020000")
    a("v_lshrrev_b32 v67, 5, v0")
    a("v_lshlrev_b32 v67, 4, v67")
    a(f"v_sub_u32 v67, s{RB}, v67")
    a("v_add_u32 v67, -1, v67")
    a(f"s_mov_b32 s3, {448*16}")
    a("v_mul_lo_u32 v68, v67, s3")
    a("v_and_b32 v66, 31, v0")
    a("v_lshlrev_b32 v66, 4, v66")
    a("s_lshl_b32 s33, s37, 9")
    a("v_add3_u32 v68, v68, v66, s33")
    EG = 72
    for i in range(1, 16):
        a(f"v_subrev_u32 v{136+i}, {448*16*i}, v68")
    a("v_mov_b32 v136, v68")
    a("s_waitcnt vmcnt(0)")
    a(f"s_cmp_eq_u32 s{RB}, 0")
    a(f"s_cbranch_scc1 {P}_pollE")
    a.label(P + "_pollE0")
    a("s_mov_b32 exec_hi, 0")
    a(f"buffer_load_dwordx3 {v(EG,3)}, v136, s[48:51], 0 offen{SC1}")
    a("s_mov_b64 exec, -1")
    a("s_waitcnt vmcnt(0)")
    a(f"v_cmp_ne_u32 vcc, s{NONCE}, v{EG+2}")
    a("s_cmp_eq_u32 vcc_lo, 0")
    a(f"s_cbranch_scc1 {P}_pollE")
    a(f"s_sleep {os.environ.get('ES', '6')}")
    a(f"s_sub_u32 s{SPIN}, s{SPIN}, 1")
    a(f"s_cbranch_scc0 {P}_pollE0")
    a(f"s_mov_b32 s{SPIN}, 0")
    a.label(P + "_pollE")
    for i in range(16):
        a(f"buffer_load_dwordx3 {v(EG+4*i,3)}, v{136+i}, s[48:51], 0 offen{SC1}")
    a("s_mov_b64 s[56:57], 0")
    a("s_waitcnt vmcnt(0)")
    for i in range(16):
        a(f"v_cmp_ne_u32 vcc, s{NONCE}, v{EG+4*i+2}")
        a(f"s_cmp_gt_u32 s{RB}, {i}")
        a("s_cselect_b32 s58, -1, 0")
        a(f"s_cmp_gt_u32 s{RB}, {i+16}")
        a("s_cselect_b32 s59, -1, 0")
        a("s_and_b64 vcc, vcc, s[58:59]")
        a("s_or_b64 s[56:57], s[56:57], vcc")
    a("s_cmp_eq_u64 s[56:57], 0")
    a(f"s_cbranch_scc1 {P}_pollE_ok")
    a("s_sleep 12")
    a(f"s_sub_u32 s{SPIN}, s{SPIN}, 1")
    a(f"s_cbranch_scc0 {P}_pollE")
    a(f"s_mov_b32 s{SPIN}, 0")
    a.label(P + "_pollE_ok")
    pf.stamp(8)
    a(f"v_mov_b32 v68, v{EG+60}")
    a(f"v_mov_b32 v69, v{EG+61}")
    for i in range(14, -1, -1):
        cfma(a, 68, 69, 42, 43, EG + 4*i, EG + 4*i + 1, 46, 47)
    a("v_mov_b32 v70, v68")
    a("v_mov_b32 v71, v69")
    a("v_mov_b32 v72, v68")
    a("v_mov_b32 v73, v69")
    a("s_nop 1")
    a("v_permlane32_swap_b32 v70, v72")
    a("v_permlane32_swap_b32 v71, v73")
    cfma(a, 72, 73, 44, 45, 70, 71, 46, 47)
    for cp in range(3):
        a("v_mov_b32 v74, v72")
        a("v_mov_b32 v75, v73")
        cfma(a, 74, 75, 40, 41, 56 + 2*cp, 57 + 2*cp, 46, 47)
        a(f"v_cmp_lt_u32 vcc, {cp}, v51")
        a("s_nop 1")
        a("v_cndmask_b32 v72, v72, v74, vcc")
        a("v_cndmask_b32 v73, v73, v75, vcc")
    a(f"s_lshl_b32 s3, s{BW}, 12")
    a(f"s_add_u32 s3, s3, {B_HT}")
    a("v_and_b32 v66, 31, v0")
    a("v_lshlrev_b32 v66, 1, v66")
    a("v_lshrrev_b32 v67, 5, v0")
    a("v_lshl_add_u32 v66, v67, 8, v66")
    a("v_add_u32 v66, s3, v66")
    for r in range(16):
        cfma(a, 72, 73, 2, 3, ARE + r, AIM + r, 46, 47)
        a(f"v_cvt_pk_bf16_f32 v{76+(r&1)}, v72, -v73")
        slot = (r & 3) + 8 * (r >> 2)
        a(f"ds_write_b16 v66, v{76+(r&1)} offset:{slot*64}")
        a(f"ds_write_b16_d16_hi v66, v{76+(r&1)} offset:{2048+slot*64}")
    a("v_and_b32 v67, 31, v0")
    a("v_lshlrev_b32 v67, 6, v67")
    a("v_lshrrev_b32 v68, 5, v0")
    a("v_lshl_add_u32 v67, v68, 4, v67")
    a("v_add_u32 v67, s3, v67")
    a("s_waitcnt lgkmcnt(0)")
    for part in range(2):
        for jj in range(2):
            a(f"ds_read_b128 {v(80+8*part+4*jj,4)}, v67 offset:{part*2048+jj*32}")
    a(f"s_lshl_b32 s3, s{RB}, 1")
    a("s_add_u32 s3, s3, s38")
    a("s_mul_i32 s3, s3, 56")
    a("s_lshl_b32 s33, s37, 1")
    a("s_add_u32 s3, s3, s33")
    a("s_lshl_b32 s3, s3, 10")
    a(f"s_add_u32 s3, s3, {WS_HF}")
    a(f"s_add_u32 s33, s3, {28*1024}")
    a("s_waitcnt lgkmcnt(0)")
    a(f"buffer_store_dwordx4 {v(80,4)}, v1, s[{WSR}:{WSR+3}], s3 offen{SC1}")
    a(f"buffer_store_dwordx4 {v(84,4)}, v1, s[{WSR}:{WSR+3}], s3 offen offset:1024{SC1}")
    a(f"buffer_store_dwordx4 {v(88,4)}, v1, s[{WSR}:{WSR+3}], s33 offen{SC1}")
    a(f"buffer_store_dwordx4 {v(92,4)}, v1, s[{WSR}:{WSR+3}], s33 offen offset:1024{SC1}")
    if "dup" in X:
        a(f"buffer_store_dwordx4 {v(80,4)}, v1, s[{WSR}:{WSR+3}], s3 offen")
        a(f"buffer_store_dwordx4 {v(84,4)}, v1, s[{WSR}:{WSR+3}], s3 offen offset:1024")
        a(f"buffer_store_dwordx4 {v(88,4)}, v1, s[{WSR}:{WSR+3}], s33 offen")
        a(f"buffer_store_dwordx4 {v(92,4)}, v1, s[{WSR}:{WSR+3}], s33 offen offset:1024")
    a(f"s_lshl_b32 s3, s{RB}, 5")
    a(f"s_add_u32 s3, s3, s{J2}")
    a("s_lshl_b32 s3, s3, 2")
    a(f"s_add_u32 s3, s3, {FL_H}")
    arrive_flag(a, C_HCNT, 4, 3, 66, 67, P + "_hflag")
    pf.stamp(9)
    if "hwait" in X:
        a(f"v_mov_b32 v66, {L_CNT}")
        lds_wait(a, C_HCNT, 4, 66, 67, P + "_hall")
    if "lowc" in X: a("s_setprio 0")
    a(f"s_lshr_b32 s3, s{BW}, 1")
    a("s_cmp_eq_u32 s3, 0")
    a(f"s_cselect_b32 s{TR}, s{S_CRE}, s{S_CIM}")
    a(f"s_cselect_b32 s{TR+1}, s{S_CRE+1}, s{S_CIM+1}")
    plain_lane_off(a, 53, 0, 69)
    a(f"s_mul_i32 s40, s{J2}, {64*896}")
    a(f"s_and_b32 s3, s{BW}, 1")
    a("s_mul_i32 s3, s3, 448")
    a("s_add_u32 s40, s40, s3")
    a(f"s_mul_i32 s41, s{BW}, 20480")
    CDMA = [53]
    def c_dma(kb):
        a(f"s_add_u32 m0, s41, {(kb % 5)*4096}")
        for q in range(4):
            a(f"s_add_u32 s33, s40, {q*16*896 + kb*64}")
            a(f"buffer_load_dwordx4 v{CDMA[0]}, s[{TR}:{TR+3}], s33 offen lds")
            if q < 3: a("s_add_u32 m0, m0, 1024")
    for kb in range(5): c_dma(kb)
    a(f"s_cmp_eq_u32 s{BW}, 0")
    a(f"s_cbranch_scc0 {P}_nopollH")
    a("v_lshlrev_b32 v67, 2, v0")
    a(f"s_lshl_b32 s35, s{RB}, 7")
    a(f"s_add_u32 s35, s35, {FL_H}")
    a("s_mov_b64 s[58:59], 0x7f")
    poll(a, P + "_pollH", 68, 67, 35, 58)
    srd(a, 48, S_DBG, 256)
    a(f"v_mov_b32 v67, {D_GOG}")
    a.label(P + "_pollG")
    a(f"buffer_load_dword v68, v67, s[48:51], 0 offen{SC1}")
    a("s_waitcnt vmcnt(0)")
    a("v_readfirstlane_b32 s3, v68")
    a("s_cmp_lg_u32 s3, 0")
    a(f"s_cbranch_scc1 {P}_pollG_ok")
    a(f"s_sleep {POLLSLEEP}")
    a(f"s_sub_u32 s{SPIN}, s{SPIN}, 1")
    a(f"s_cbranch_scc0 {P}_pollG")
    a(f"s_mov_b32 s{SPIN}, 0")
    a.label(P + "_pollG_ok")
    a.label(P + "_nopollH")
    a("s_waitcnt vmcnt(0)")
    bar()
    pf.stamp(10)
    T[0], T[1] = 4, 5
    ACC = 8
    XS, GT = 136, 152
    if "lowy" in X and "lowlate" not in X: a(f"s_setprio {os.environ.get('YLOW', '0')}")
    a(f"s_lshl_b32 s3, s{RB}, 1")
    a("s_mul_i32 s3, s3, 56")
    a(f"s_mul_i32 s33, s{BW}, 14")
    a("s_add_u32 s3, s3, s33")
    a("s_lshl_b32 s3, s3, 10")
    a(f"s_add_u32 s32, s3, {WS_HF}")
    a(f"s_add_u32 s34, s32, {56*1024}")
    AF = 88; NA = 10
    plain_lane_off(a, 2, 0, 72)
    CDMA[0] = 2
    xfrag_addr(a, 6, 0, 72)
    a("v_add_u32 v6, s41, v6")
    a("v_xor_b32 v7, 32, v6")
    def ldA(st_):
        r = AF + 8 * (st_ % NA)
        a(f"s_add_u32 s35, s32, {st_*1024}")
        a(f"s_add_u32 s36, s34, {st_*1024}")
        a(f"buffer_load_dwordx4 {v(r,4)}, v1, s[{WSR}:{WSR+3}], s35 offen{SC1}")
        a(f"buffer_load_dwordx4 {v(r+4,4)}, v1, s[{WSR}:{WSR+3}], s36 offen{SC1}")
    for st_ in range(NA): ldA(st_)
    if "htouch" in X:
        a("v_lshlrev_b32 v72, 7, v0")
        a(f"s_mov_b32 m0, {L_JUNK}")
        a(f"s_add_u32 s35, s32, {NA*1024}")
        a(f"s_add_u32 s36, s34, {NA*1024}")
        a("s_mov_b32 exec_hi, 0")
        a(f"buffer_load_dword v72, s[{WSR}:{WSR+3}], s35 offen{SC1} lds")
        a(f"buffer_load_dword v72, s[{WSR}:{WSR+3}], s36 offen{SC1} lds")
        a("s_mov_b64 exec, -1")
    CB = [72, 80]
    def rdC(st_):
        b = CB[st_ & 1]
        kb = st_ >> 1
        a(f"ds_read_b128 {v(b,4)}, v{6+(st_&1)} offset:{(kb%5)*4096}")
        a(f"ds_read_b128 {v(b+4,4)}, v{6+(st_&1)} offset:{(kb%5)*4096+2048}")
    issued = []
    for st_ in range(NA): issued += [("A", st_)] * 2
    if "htouch" in X: issued += [("T", 0)] * 2
    HY = int(os.environ.get("HY", "0"))
    if HY:
        a(f"v_mov_b32 v4, {L_CNT}")
        lds_wait(a, C_LEND, HY, 4, 5, P + "_lend", sleep=8)
        a(f"s_setprio {os.environ.get('YP', '1')}")
    if "lowy" in X and "lowlate" in X: a(f"s_setprio {os.environ.get('YLOW', '0')}")
    rdC(0)
    for st_ in range(14):
        kb = st_ >> 1
        need = [("A", st_)]
        if st_ + 1 < 14 and ((st_ + 1) >> 1) >= 5: need.append(("C", (st_ + 1) >> 1))
        last = max(i for i, t in enumerate(issued) if t in need)
        n_out = len(issued) - 1 - last
        a(f"s_waitcnt vmcnt({n_out})")
        if st_ + 1 < 14: rdC(st_ + 1)
        a(f"s_waitcnt lgkmcnt({2 if st_ + 1 < 14 else 0})")
        b = CB[st_ & 1]; r = AF + 8 * (st_ % NA)
        for rt in range(2):
            for ct in range(2):
                acc = ACC + 16 * (2 * rt + ct)
                c = "0" if st_ == 0 else v(acc, 16)
                a(f"{MF} {v(acc,16)}, {v(r+4*rt,4)}, {v(b+4*ct,4)}, {c}")
        if st_ + NA < 14:
            ldA(NA + st_); issued += [("A", NA + st_)] * 2
        if (st_ & 1) == 1 and kb + 5 < 7:
            c_dma(kb + 5); issued += [("C", kb + 5)] * 4
    pf.stamp(11)
    a(f"s_lshl_b32 s3, s{RB}, 6")
    a("s_lshl_b32 s33, s38, 5")
    a("s_add_u32 s3, s3, s33")
    a("v_lshrrev_b32 v80, 5, v0")
    a("v_lshlrev_b32 v80, 4, v80")
    a("v_add_u32 v80, s3, v80")
    a(f"s_lshl_b32 s33, s{J2}, 6")
    a(f"s_and_b32 s35, s{BW}, 1")
    a("s_lshl_b32 s35, s35, 5")
    a("s_add_u32 s33, s33, s35")
    a("v_and_b32 v81, 31, v0")
    a("v_add_u32 v81, s33, v81")
    srd(a, 48, S_X, XBYTES)
    a("v_mul_u32_u24 v82, 896, v80")
    a("v_lshl_add_u32 v82, v81, 1, v82")
    for r in range(16):
        a(f"buffer_load_ushort v{XS+r}, v82, s[48:51], 0 offen offset:{(r%4)*896}")
        if r % 4 == 3 and r < 15: a(f"v_add_u32 v82, {4*896}, v82")
    srd(a, 52, S_DSK, 896)
    a("v_lshlrev_b32 v83, 1, v81")
    a("buffer_load_ushort v3, v83, s[52:55], 0 offen")
    a("v_lshlrev_b32 v83, 2, v80")
    a(f"s_mov_b32 s35, {WS_G}")
    for q in range(4):
        a(f"buffer_load_dwordx4 {v(GT+4*q,4)}, v83, s[{WSR}:{WSR+3}], s35 offen offset:{16*q}{SC1}")

    a(f"s_setprio {os.environ.get('YP2', '2')}")
    bar()
    def wo_dma(t1, t2, z):
        srd(a, TR, S_WO, WBYTES)
        a(f"v_lshrrev_b32 v{t1}, 3, v0")
        a(f"v_mul_u32_u24 v{t1}, 896, v{t1}")
        a(f"v_and_b32 v{t2}, 7, v0")
        a(f"v_lshl_add_u32 v{t1}, v{t2}, 4, v{t1}")
        a(f"s_mul_i32 s32, s{BW}, {112*896}")
        a(f"s_lshl_b32 s3, s{J2}, 7")
        a("s_add_u32 s32, s32, s3")
        a(f"s_mul_i32 s34, s{BW}, 14336")
        a("s_mov_b32 m0, s34")
        a("s_mov_b32 s36, 14")
        a.label(P + "_wodma")
        a("s_sub_u32 s36, s36, 1")
        a(f"buffer_load_dwordx4 v{t1}, s[{TR}:{TR+3}], s32 offen lds")
        a("s_add_u32 s32, s32, 7168")
        a("s_add_u32 m0, m0, 1024")
        a("s_cmp_lg_u32 s36, 0")
        a(f"s_cbranch_scc1 {P}_wodma")
        a(f"v_mov_b32 v{z}, 0")
        a(f"v_mov_b32 v{z+1}, 0")
        a(f"v_lshlrev_b32 v{t2}, 3, v0")
        a(f"ds_write_b64 v{t2}, v[{z}:{z+1}] offset:57344")
    t1 = 75
    if "wolate" not in X: wo_dma(75, 76, 80)
    a(f"v_mov_b32 v4, {L_CNT}")
    lds_wait(a, C_TRD, 8, 4, 5, P + "_trd")
    a(f"s_lshl_b32 s3, s{BW}, 12")
    a(f"s_add_u32 s3, s3, {A_OP}")
    a(f"v_add_u32 v{t1}, s3, v1")
    for t in range(4):
        for q in range(4):
            a(f"ds_write_b128 v{t1}, {v(ACC+16*t+4*q,4)} offset:{t*16384+q*1024}")
    bar()
    a(f"s_lshl_b32 s3, s{BW}, 14")
    a(f"s_add_u32 s3, s3, {A_OP}")
    a(f"v_add_u32 v{t1}, s3, v1")
    for src in range(3):
        for q in range(4):
            a(f"ds_read_b128 {v(88+16*src+4*q,4)}, v{t1} offset:{src*4096+q*1024}")
    YT = 8
    for q in range(4):
        a(f"ds_read_b128 {v(YT+4*q,4)}, v{t1} offset:{3*4096+q*1024}")
        if q == 2: a("s_waitcnt lgkmcnt(4)")
    a("s_waitcnt lgkmcnt(0)")
    VT_, VD_, VO_, t1, t2, t3, t4, t5 = 40, 41, 42, 43, 44, 45, 46, 47
    a("s_waitcnt vmcnt(0)" if "wolate" in X else "s_waitcnt vmcnt(14)")
    for r in range(16):
        a(f"v_add_f32 v{88+r}, v{88+r}, v{104+r}")
        a(f"v_add_f32 v{YT+r}, v{YT+r}, v{120+r}")
    a("v_lshlrev_b32 v3, 16, v3")
    for r in range(16):
        a(f"v_add_f32 v{YT+r}, v{YT+r}, v{88+r}")
        a(f"v_lshlrev_b32 v{XS+r}, 16, v{XS+r}")
        a(f"v_mul_f32 v{XS+r}, v{XS+r}, v3")
        a(f"v_fma_f32 v{YT+r}, 2.0, v{YT+r}, v{XS+r}")
        a(f"v_sub_f32 v{XS+r}, 1.0, v{GT+r}")
        a(f"v_mul_f32 v{YT+r}, v{YT+r}, v{XS+r}")
    a(f"s_lshl_b32 s3, s{RB}, 6")
    a("s_lshl_b32 s33, s38, 5")
    a("s_add_u32 s3, s3, s33")
    a(f"v_lshrrev_b32 v{VT_}, 5, v0")
    a(f"v_lshlrev_b32 v{VT_}, 4, v{VT_}")
    a(f"v_add_u32 v{VT_}, s3, v{VT_}")
    a(f"s_lshl_b32 s33, s{J2}, 6")
    a(f"s_and_b32 s35, s{BW}, 1")
    a("s_lshl_b32 s35, s35, 5")
    a("s_add_u32 s33, s33, s35")
    a(f"v_and_b32 v{VD_}, 31, v0")
    a(f"v_add_u32 v{VD_}, s33, v{VD_}")
    a(f"v_mul_u32_u24 v{VO_}, 1792, v{VT_}")
    a(f"v_lshl_add_u32 v{VO_}, v{VD_}, 2, v{VO_}")
    srd(a, 48, S_OUT, OUTBYTES)
    a("v_lshrrev_b32 v6, 5, v0")
    a("v_lshlrev_b32 v6, 2, v6")
    a("v_bfe_u32 v7, v0, 2, 2")
    a("v_add_u32 v6, v6, v7")
    a("v_lshlrev_b32 v6, 7, v6")
    a("v_and_b32 v7, 16, v0")
    a(f"v_and_b32 v{t1}, 3, v0")
    a(f"v_lshl_add_u32 v7, v{t1}, 2, v7")
    a("v_lshl_add_u32 v6, v7, 1, v6")
    a(f"s_and_b32 s3, s{BW}, 1")
    a(f"s_mul_i32 s3, s3, {8*28*128}")
    a("v_add_u32 v6, s3, v6")
    if "wolate" in X:
        a(f"v_mov_b32 v4, {L_CNT}")
        lds_wait(a, C_OCNT, 8, 4, 5, P + "_opub")
        wo_dma(48, 49, 50)
    a("s_waitcnt vmcnt(0)")
    a("s_setprio 3")
    pf.stamp(12)
    bar()
    a(f"v_lshlrev_b32 v{t4}, 2, v0")
    a(f"s_lshl_b32 s35, s{RB}, 7")
    a(f"s_add_u32 s35, s35, {FL_O}")
    a("s_mov_b64 s[58:59], 0xff")
    poll(a, P + "_pollO", t5, t4, 35, 58)
    pf.stamp(13)
    a(f"s_lshl_b32 s3, s{RB}, 1")
    a("s_add_u32 s3, s3, s38")
    a("s_lshl_b32 s3, s3, 15")
    a(f"s_and_b32 s33, s{BW}, 1")
    a("s_lshl_b32 s33, s33, 14")
    a("s_add_u32 s3, s3, s33")
    a(f"s_add_u32 s32, s3, {WS_OF}")
    OFR = 88
    for st_ in range(16):
        a(f"s_add_u32 s33, s32, {st_*1024}")
        a(f"buffer_load_dwordx4 {v(OFR+4*st_,4)}, v1, s[{WSR}:{WSR+3}], s33 offen{SC1}")
    PA_ = [56, 72]
    WB = [24, 32]
    def rdW(st_):
        hd, f = st_ >> 1, st_ & 1
        off = (28 * hd + 16 * f) * 128
        b = WB[st_ & 1]
        for ct in range(2):
            a(f"ds_read_b64_tr_b16 {v(b+4*ct,2)}, v6 offset:{off+ct*64}")
            a(f"ds_read_b64_tr_b16 {v(b+4*ct+2,2)}, v6 offset:{off+ct*64+1024}")
    rdW(0)
    for st_ in range(16):
        if st_ + 1 < 16: rdW(st_ + 1)
        a(f"s_waitcnt vmcnt({15-st_}) lgkmcnt({4 if st_ + 1 < 16 else 0})")
        for ct in range(2):
            c = "0" if st_ == 0 else v(PA_[ct], 16)
            a(f"{MF} {v(PA_[ct],16)}, {v(OFR+4*st_,4)}, {v(WB[st_&1]+4*ct,4)}, {c}")
    a(f"s_xor_b32 s3, s{BW}, 1")
    a("s_lshl_b32 s3, s3, 12")
    a("s_add_u32 s3, s3, 65536")
    a(f"v_add_u32 v{t1}, s3, v1")
    a(f"s_and_b32 s33, s{BW}, 1")
    a("s_nop 7")
    a("s_cmp_eq_u32 s33, 0")
    a(f"s_cbranch_scc0 {P}_send0")
    for q in range(4): a(f"ds_write_b128 v{t1}, {v(PA_[1]+4*q,4)} offset:{q*1024}")
    a(f"s_branch {P}_sent")
    a.label(P + "_send0")
    a("s_nop 1")
    for q in range(4): a(f"ds_write_b128 v{t1}, {v(PA_[0]+4*q,4)} offset:{q*1024}")
    a("s_nop 1")
    for r in range(16): a(f"v_mov_b32 v{PA_[0]+r}, v{PA_[1]+r}")
    a.label(P + "_sent")
    bar()
    a(f"s_lshl_b32 s3, s{BW}, 12")
    a("s_add_u32 s3, s3, 65536")
    a(f"v_add_u32 v{t1}, s3, v1")
    for q in range(4): a(f"ds_read_b128 {v(88+4*q,4)}, v{t1} offset:{q*1024}")
    a("s_waitcnt lgkmcnt(0)")
    for r in range(16):
        a(f"v_add_f32 v{88+r}, v{88+r}, v{PA_[0]+r}")
        a(f"v_fma_f32 v{88+r}, v{GT+r}, v{88+r}, v{YT+r}")
    for r in range(16):
        a(f"buffer_store_dword v{88+r}, v{VO_}, s[48:51], 0 offen offset:{(r%2)*1792}{os.environ.get('OST', '')}")
        if r % 2 == 1 and r < 15: a(f"v_add_u32 v{VO_}, {2*1792}, v{VO_}")
    pf.stamp(14)
    a(f"s_branch {P}_end")
    a.label(P + "_skip")
    if os.environ.get("S3", "b") in ("b", "u"): stage3("b")
    a(f"v_mov_b32 v54, {L_CNT}")
    a("v_mov_b32 v55, 1")
    a("s_mov_b64 exec, 1")
    a(f"ds_add_u32 v54, v55 offset:{C_HCNT}")
    a("s_mov_b64 exec, -1")
    a.label(P + "_end")

def lds_wait(a, coff, target, vaddr, vtmp, lab, sleep=1):
    a.label(lab)
    a(f"ds_read_b32 v{vtmp}, v{vaddr} offset:{coff}")
    a("s_waitcnt lgkmcnt(0)")
    a(f"v_readfirstlane_b32 s3, v{vtmp}")
    a(f"s_cmp_ge_u32 s3, {target}")
    a(f"s_cbranch_scc1 {lab}_ok")
    a(f"s_sleep {sleep}")
    a(f"s_sub_u32 s{SPIN}, s{SPIN}, 1")
    a(f"s_cbranch_scc0 {lab}")
    a(f"s_mov_b32 s{SPIN}, 0")
    a.label(lab + "_ok")

def lds_arrive(a, coff, vaddr, vtmp):
    a(f"v_mov_b32 v{vaddr}, {L_CNT}")
    a(f"v_mov_b32 v{vtmp}, 1")
    a("s_mov_b64 exec, 1")
    a(f"ds_add_u32 v{vaddr}, v{vtmp} offset:{coff}")
    a("s_mov_b64 exec, -1")

def dma_loop(a, lab, vaddr, n, dsrc, dlds):
    a("s_mov_b32 s36, %d" % n)
    a.label(lab)
    a("s_sub_u32 s36, s36, 1")
    a(f"buffer_load_dwordx4 v{vaddr}, s[{TR}:{TR+3}], s32 offen lds")
    a(f"s_add_u32 s32, s32, {dsrc}")
    a(f"s_add_u32 m0, m0, {dlds}")
    a("s_cmp_lg_u32 s36, 0")
    a(f"s_cbranch_scc1 {lab}")

def q_loop(a, acc, X4, W4, vxe, vxo, vw):
    def rd(j):
        k = j & 3
        a(f"ds_read_b128 {v(X4+4*k,4)}, v{vxo if j & 1 else vxe} offset:{(j>>1)*4096}")
        a(f"ds_read_b64_tr_b16 {v(W4+4*k,2)}, v{vw} offset:{j*2048}")
        a(f"ds_read_b64_tr_b16 {v(W4+4*k+2,2)}, v{vw} offset:{j*2048+512}")
    for j in range(4): rd(j)
    for j in range(28):
        left = min(3, 27 - j)
        a(f"s_waitcnt lgkmcnt({3*left})")
        c = "0" if j == 0 else v(acc, 16)
        a(f"{MF} {v(acc,16)}, {v(W4+4*(j&3),4)}, {v(X4+4*(j&3),4)}, {c}")
        if j + 4 < 28: rd(j + 4)

def gen_fused(a):
    name = NAME + "_kernel"
    a(f".globl {name}")
    a(".p2align 8")
    a(f".type {name},@function")
    a.label(name)
    END = "L_end"
    a("s_cmp_ge_u32 s2, 256")
    a(f"s_cbranch_scc1 {END}")
    a("s_load_dwordx16 s[64:79], s[0:1], 0")
    a("s_load_dwordx16 s[80:95], s[0:1], 64")
    a("s_load_dwordx4 s[96:99], s[0:1], 128")
    if "earlycode" in X:
        a("s_getpc_b64 s[56:57]")
        a.label("p0_pc0")
        a("v_lshlrev_b32 v148, 7, v0")
        a("s_mov_b32 s3, L_end-p0_pc0")
        a("v_min_u32 v148, s3, v148")
        a("global_load_dword v149, v148, s[56:57]")
    a("v_lshrrev_b32 v2, 6, v0")
    a("v_and_b32 v0, 63, v0")
    a(f"v_readfirstlane_b32 s{WV}, v2")
    a(f"v_mov_b32 v4, {L_CNT}")
    a("v_mov_b32 v5, 0")
    a("v_lshl_add_u32 v4, v0, 2, v4")
    a("ds_write_b32 v4, v5")
    a(f"s_and_b32 s{RB}, s2, 7")
    a(f"s_lshl_b32 s{RB}, s{RB}, 2")
    a(f"s_lshr_b32 s{J2}, s2, 3")
    a(f"s_and_b32 s3, s{J2}, 3")
    a(f"s_add_u32 s{RB}, s{RB}, s3")
    a(f"s_lshr_b32 s{J2}, s{J2}, 2")
    a("v_lshlrev_b32 v1, 4, v0")
    a(f"s_mov_b32 s{SPIN}, 0x100000")
    a(f"s_sub_u32 s{BW}, s{WV}, 8")
    pfA = Prof(a, 167)
    xtile_lane_off(a, 3, 0, 4, 5)
    a("s_waitcnt lgkmcnt(0)")
    srd(a, WSR, S_WS, WS_SIZE)
    if PROF: a("v_mov_b32 v167, 0")
    pfA.stamp(0)
    if PROF:
        a("s_getreg_b32 s60, hwreg(HW_REG_XCC_ID)")
        a("v_writelane_b32 v167, s60, 20")
        a("s_getreg_b32 s60, hwreg(HW_REG_HW_ID)")
        a("v_writelane_b32 v167, s60, 21")
    a(f"s_cmp_lt_u32 s{WV}, 4")
    a("s_cselect_b64 s[46:47], -1, 0")
    a(f"s_cmp_eq_u32 s{J2}, 0")
    a(f"s_cselect_b32 s{TR}, s{S_WK}, s{S_WV}")
    a(f"s_cselect_b32 s{TR+1}, s{S_WK+1}, s{S_WV+1}")
    a(f"s_mov_b32 s{TR+2}, {WKBYTES}")
    a(f"s_mov_b32 s{TR+3}, 0x00020000")
    a(f"s_mul_i32 s32, s{BW}, 7168")
    a(f"s_add_u32 s34, s32, {L_WKV}")
    a("s_mov_b32 s33, 1024")
    a("s_mov_b32 s35, 1024")
    a(f"s_cmp_lt_u32 s{J2}, 2")
    a("s_cselect_b32 s36, 7, 0")
    a(f"s_cmp_ge_u32 s{WV}, 8")
    a("s_cselect_b32 s36, s36, 0")
    a("v_cndmask_b32 v3, v1, v3, s[46:47]")
    a(f"s_mul_i32 s40, s{RB}, {64*896}")
    a(f"s_lshr_b32 s3, s{WV}, 1")
    a(f"s_mul_i32 s3, s3, {32*896}")
    a("s_add_u32 s40, s40, s3")
    a(f"s_and_b32 s3, s{WV}, 1")
    a(f"s_mul_i32 s3, s3, {8*896}")
    a("s_add_u32 s40, s40, s3")
    a(f"s_lshl_b32 s41, s{WV}, 10")
    a(f"s_cmp_lt_u32 s{WV}, 4")
    a(f"s_cselect_b32 s{TR}, s{S_X}, s{TR}")
    a(f"s_cselect_b32 s{TR+1}, s{S_X+1}, s{TR+1}")
    a(f"s_cselect_b32 s{TR+2}, {XBYTES}, s{TR+2}")
    a("s_cselect_b32 s32, s40, s32")
    a("s_cselect_b32 s34, s41, s34")
    a("s_cselect_b32 s33, 64, s33")
    a("s_cselect_b32 s35, 4096, s35")
    a("s_cselect_b32 s36, 14, s36")
    a("s_mov_b32 m0, s34")
    a("s_cmp_eq_u32 s36, 0")
    a("s_cbranch_scc1 p0_first_done")
    a.label("p0_first")
    a("s_sub_u32 s36, s36, 1")
    a(f"buffer_load_dwordx4 v3, s[{TR}:{TR+3}], s32 offen lds")
    a("s_add_u32 s32, s32, s33")
    a("s_add_u32 m0, m0, s35")
    a("s_cmp_lg_u32 s36, 0")
    a("s_cbranch_scc1 p0_first")
    a.label("p0_first_done")
    a(f"s_cmp_ge_u32 s{WV}, 8")
    a("s_cbranch_scc1 p0_bgw")
    a(f"s_cmp_ge_u32 s{WV}, 4")
    a("s_cbranch_scc1 p0_kvw")
    a("s_barrier")
    pfA.stamp(1)
    xfrag_addr(a, 6, 0, 4)
    tr_rowcol(a, 12, 13, 0, 4)
    a(f"s_lshr_b32 s38, s{WV}, 1")
    a(f"s_and_b32 s39, s{WV}, 1")
    a("s_lshl_b32 s3, s38, 11")
    a("v_add_u32 v6, s3, v6")
    a("v_xor_b32 v7, 32, v6")
    a("v_lshlrev_b32 v10, 7, v12")
    a("v_lshl_add_u32 v10, v13, 1, v10")
    a("s_mul_i32 s3, s39, 56")
    a(f"s_add_u32 s3, s3, {L_WQ}")
    a("v_add_u32 v10, s3, v10")
    a("s_waitcnt vmcnt(0)")
    lds_arrive(a, C_XR, 4, 5)
    pfA.stamp(2)
    a("s_waitcnt lgkmcnt(0)")
    a("s_barrier")
    pfA.stamp(3)
    q_loop(a, 16, 32, 48, 6, 7, 10)
    a(f"s_mov_b32 s42, {hex(QSCALE)}")
    a(f"s_lshl_b32 s3, s{WV}, 11")
    a(f"s_add_u32 s3, s3, {L_QX}")
    a("v_add_u32 v12, s3, v1")
    a("s_nop 7")
    a("s_nop 0")
    for i in range(16): a(f"v_mul_f32 v{16+i}, s42, v{16+i}")
    for i in range(8): a(f"v_cvt_pk_bf16_f32 v{32+i}, v{16+2*i}, v{17+2*i}")
    a("s_mov_b32 exec_lo, 0")
    a("v_mov_b32 v38, 0")
    a("v_mov_b32 v39, 0")
    a("s_mov_b32 exec_lo, -1")
    a("ds_write_b128 v12, v[32:35]")
    a("ds_write_b128 v12, v[36:39] offset:1024")
    a("s_branch p0_b1")
    a.label("p0_kvw")
    a(f"s_sub_u32 s39, s{WV}, 4")
    if "earlycode" not in X:
        a("s_getpc_b64 s[56:57]")
        a.label("p0_pc")
        a("s_lshl_b32 s3, s39, 13")
        a("v_lshlrev_b32 v150, 7, v0")
        a("v_add_u32 v150, s3, v150")
        a(f"s_sub_u32 s56, s56, p0_pc-{NAME}_kernel")
        a("s_subb_u32 s57, s57, 0")
        a(f"s_mov_b32 s3, L_end-{NAME}_kernel")
        a("v_min_u32 v150, s3, v150")
        a("global_load_dword v150, v150, s[56:57]")
    a("s_cmp_eq_u32 s39, 0")
    a("s_cbranch_scc0 p0_pf_out")
    a("v_lshlrev_b32 v151, 21, v0")
    a("s_mov_b64 exec, 7")
    a(f"buffer_load_dword v151, v151, s[{WSR}:{WSR+3}], 0 offen")
    a("s_mov_b64 exec, -1")
    a.label("p0_pf_out")
    a("s_cmp_eq_u32 s39, 1")
    a("s_cbranch_scc0 p0_pf_done")
    srd(a, 48, S_OUT, OUTBYTES)
    a("v_mul_u32_u24 v151, 0x1c0000, v0")
    a("s_mov_b64 exec, 7")
    a("buffer_load_dword v151, v151, s[48:51], 0 offen")
    a("s_mov_b64 exec, -1")
    if os.environ.get("S3") == "mall":
        a("s_cmp_eq_u32 s39, 3")
        a("s_cbranch_scc0 p0_pf_done")
        a("v_lshlrev_b32 v149, 7, v0")
        a(f"s_mul_i32 s3, s2, {13*128}")
        a(f"s_mov_b32 m0, {L_JUNK}")
        a("s_mov_b64 exec, 0x1fff")
        for sp in (S_CRE, S_CIM, S_WO):
            srd(a, 48, sp, WBYTES)
            a("buffer_load_dword v149, s[48:51], s3 offen lds")
        a("s_mov_b64 exec, -1")
    a.label("p0_pf_done")
    a("s_barrier")
    a(f"s_cmp_ge_u32 s{J2}, 3")
    a("s_cbranch_scc1 p0_kv_none")
    a("s_lshr_b32 s38, s39, 1")
    a("s_and_b32 s39, s39, 1")
    a(f"s_mov_b32 s15, {1 if 'dry' in X else 0}")
    a("s_setprio 3")
    a.label("p0_kv_setup")
    a(f"s_mov_b32 s8, s{WSR}")
    a(f"s_mov_b32 s9, s{WSR+1}")
    a("s_cmp_eq_u32 s15, 0")
    a(f"s_cselect_b32 s10, {WS_SIZE}, 0")
    a("s_mov_b32 s11, 0x00020000")
    xfrag_addr(a, 6, 0, 4)
    tr_rowcol(a, 12, 13, 0, 4)
    a("s_lshl_b32 s3, s38, 11")
    a("s_mul_i32 s41, s39, 28672")
    a("s_add_u32 s3, s3, s41")
    a("v_add_u32 v6, s3, v6")
    a("v_xor_b32 v7, 32, v6")
    a("s_mul_i32 s40, s39, 14")
    a(f"s_cmp_eq_u32 s{J2}, 2")
    a("s_cbranch_scc1 p0_kv_gaddr")
    a("v_mul_u32_u24 v10, 56, v12")
    a("v_lshl_add_u32 v10, v13, 1, v10")
    a(f"s_mul_i32 s3, s40, {16*56}")
    a(f"s_add_u32 s3, s3, {L_WKV}")
    a("v_add_u32 v10, s3, v10")
    a("v_add_u32 v11, 224, v10")
    a(f"s_mov_b32 s42, {16*56}")
    a("s_branch p0_kv_addr_done")
    a.label("p0_kv_gaddr")
    a("v_lshlrev_b32 v10, 3, v12")
    a("s_lshl_b32 s3, s40, 7")
    a(f"s_add_u32 s3, s3, {L_WKV}")
    a("v_add_u32 v10, s3, v10")
    a("v_add_u32 v11, 32, v10")
    a("s_mov_b32 s42, 128")
    a.label("p0_kv_addr_done")
    a(f"v_mov_b32 v4, {L_CNT}")
    a("s_cmp_lg_u32 s15, 0")
    a("s_cbranch_scc1 p0_xr_ok")
    lds_wait(a, C_XR, 8, 4, 5, "p0_xr")
    pfA.stamp(2)
    def kv_rd(i):
        a(f"ds_read_b128 {v(32+4*i,4)}, v{6+(i&1)} offset:{(i>>1)*4096}")
        a(f"ds_read_b64_tr_b16 {v(88+4*i,2)}, v10")
        a(f"ds_read_b64_tr_b16 {v(88+4*i+2,2)}, v11")
        if i < 13:
            a("v_add_u32 v10, s42, v10")
            a("v_add_u32 v11, s42, v11")
    def kv_mm(swap, tag):
        for i in range(4): kv_rd(i)
        for i in range(14):
            a(f"s_waitcnt lgkmcnt({3*min(3, 13-i)})")
            A, B = (32+4*i, 88+4*i) if swap else (88+4*i, 32+4*i)
            a(f"{MF} v[16:31], {v(A,4)}, {v(B,4)}, {'0' if i == 0 else 'v[16:31]'}")
            if i + 4 < 14: kv_rd(i + 4)
    a(f"s_cmp_ge_u32 s{J2}, 1")
    a("s_cbranch_scc1 p0_kv_swap")
    kv_mm(False, "k")
    a("s_branch p0_kv_mm_done")
    a.label("p0_kv_swap")
    kv_mm(True, "v")
    a.label("p0_kv_mm_done")
    pfA.stamp(22)
    a("s_lshl_b32 s3, s38, 12")
    a(f"s_add_u32 s3, s3, {L_QX}")
    a("v_add_u32 v12, s3, v1")
    a("s_nop 7")
    a("s_nop 0")
    a("s_cmp_lg_u32 s15, 0")
    a("s_cbranch_scc1 p0_kv_root")
    a("s_cmp_eq_u32 s39, 0")
    a("s_cbranch_scc1 p0_kv_root")
    for q in range(4): a(f"ds_write_b128 v12, {v(16+4*q,4)} offset:{q*1024}")
    a("s_waitcnt lgkmcnt(0)")
    a("s_lshl_b32 s3, s38, 2")
    a(f"v_mov_b32 v4, {L_CNT}")
    a("v_add_u32 v4, s3, v4")
    a("v_mov_b32 v5, 1")
    a("s_mov_b64 exec, 1")
    a(f"ds_add_u32 v4, v5 offset:{C_KVR}")
    a("s_mov_b64 exec, -1")
    a("s_branch p0_kv_none")
    a.label("p0_kv_root")
    a("s_lshl_b32 s3, s38, 2")
    a(f"v_mov_b32 v4, {L_CNT}")
    a("v_add_u32 v4, s3, v4")
    a("s_cmp_lg_u32 s15, 0")
    a("s_cbranch_scc1 p0_kvr_ok")
    lds_wait(a, C_KVR, 1, 4, 5, "p0_kvr")
    pfA.stamp(23)
    for i in range(4): a(f"ds_read_b128 {v(32+4*i,4)}, v12 offset:{i*1024}")
    a("s_waitcnt lgkmcnt(0)")
    for r in range(16): a(f"v_add_f32 v{16+r}, v{16+r}, v{32+r}")
    a(f"s_lshl_b32 s43, s{RB}, 1")
    a("s_add_u32 s43, s43, s38")
    a(f"s_cmp_eq_u32 s{J2}, 2")
    a("s_cbranch_scc1 p0_gate_epi")
    for i in range(8): a(f"v_cvt_pk_bf16_f32 v{32+i}, v{16+2*i}, v{17+2*i}")
    a("s_lshl_b32 s44, s43, 12")
    a(f"s_add_u32 s44, s44, {WS_KV}")
    a(f"s_cmp_eq_u32 s{J2}, 1")
    a("s_cbranch_scc1 p0_v_epi")
    a("s_mov_b32 exec_lo, 0")
    a("v_mov_b32 v38, 0x3f803f80")
    a("v_mov_b32 v39, 0x00003f80")
    a("s_mov_b32 exec_lo, -1")
    a(f"buffer_store_dwordx4 v[32:35], v1, s[8:11], s44 offen{SC1}")
    a(f"buffer_store_dwordx4 v[36:39], v1, s[8:11], s44 offen offset:1024{SC1}")
    a("s_branch p0_kv_arrive")
    a.label("p0_v_epi")
    a("v_max3_f32 v14, |v16|, |v17|, |v18|")
    for j in range(3, 15, 2): a(f"v_max3_f32 v14, v14, |v{16+j}|, |v{17+j}|")
    a("v_max_f32 v14, v14, |v31|")
    a("v_and_b32 v13, 31, v0")
    a("v_cmp_gt_u32 s[46:47], 28, v13")
    a(f"v_cmp_lt_f32 vcc, {hex(VMAX)}, v14")
    a("s_and_b64 vcc, vcc, s[46:47]")
    a("s_cbranch_vccz p0_v_ok")
    a("s_cmp_lg_u32 s15, 0")
    a("s_cbranch_scc1 p0_v_ok")
    srd(a, 48, S_DBG, 256)
    a("v_mov_b32 v14, 1")
    a(f"v_mov_b32 v15, {D_BAD}")
    a("s_mov_b64 exec, 1")
    a(f"buffer_store_dword v14, v15, s[48:51], 0 offen{SC1}")
    a("s_mov_b64 exec, -1")
    a.label("p0_v_ok")
    a("v_and_b32 v13, 31, v0")
    a("v_cmp_eq_u32 vcc, 28, v13")
    a("v_mov_b32 v14, 0x3f803f80")
    a("s_nop 0")
    a("v_cndmask_b32 v14, 0, v14, vcc")
    a("v_cmp_lt_u32 vcc, 27, v13")
    a("s_nop 1")
    for i in range(8): a(f"v_cndmask_b32 v{32+i}, v{32+i}, v14, vcc")
    a(f"buffer_store_dwordx4 v[32:35], v1, s[8:11], s44 offen offset:2048{SC1}")
    a(f"buffer_store_dwordx4 v[36:39], v1, s[8:11], s44 offen offset:3072{SC1}")
    a("s_branch p0_kv_arrive")
    a.label("p0_gate_epi")
    a(f"s_mov_b32 s42, {hex(LOG2E)}")
    for i in range(16): a(f"v_mul_f32 v{16+i}, s42, v{16+i}")
    for i in range(16): a(f"v_exp_f32 v{16+i}, -v{16+i}")
    for i in range(16): a(f"v_add_f32 v{16+i}, 1.0, v{16+i}")
    for i in range(16): a(f"v_rcp_f32 v{16+i}, v{16+i}")
    a("v_lshrrev_b32 v13, 5, v0")
    a("v_lshlrev_b32 v13, 6, v13")
    a("s_lshl_b32 s44, s43, 7")
    a(f"s_add_u32 s44, s44, {WS_G}")
    a("v_and_b32 v14, 31, v0")
    a("v_cmp_eq_u32 vcc, 0, v14")
    a("s_and_saveexec_b64 s[46:47], vcc")
    for q in range(4):
        a(f"buffer_store_dwordx4 {v(16+4*q,4)}, v13, s[8:11], s44 offen offset:{16*q}{SC1}")
    a("s_mov_b64 exec, -1")
    a.label("p0_kv_arrive")
    a("s_cmp_eq_u32 s15, 0")
    a("s_cbranch_scc1 p0_kv_real")
    a("s_mov_b32 s15, 0")
    a("s_branch p0_kv_setup")
    a.label("p0_kv_real")
    pfA.stamp(10)
    a("s_mov_b32 s16, 1")
    a("s_branch p0_kv_b0")
    a.label("p0_kv_none")
    a("s_mov_b32 s16, 0")
    a.label("p0_kv_b0")
    a("s_setprio 0")
    a("s_waitcnt lgkmcnt(0)")
    a("s_barrier")
    pfA.stamp(3)
    a("s_branch p0_b1")
    a.label("p0_bgw")
    a(f"s_cmp_eq_u32 s{WV}, 8")
    a("s_cbranch_scc0 p0_t9")
    srd(a, 48, S_X, XBYTES)
    a("s_and_b32 s3, s2, 7")
    a(f"s_mul_i32 s3, s3, {256*896}")
    a("s_lshr_b32 s46, s2, 3")
    a("s_mul_i32 s46, s46, 7168")
    a("s_add_u32 s3, s3, s46")
    a("v_lshlrev_b32 v50, 7, v0")
    a("s_mov_b32 exec_hi, 0xffffff")
    a("buffer_load_dword v52, v50, s[48:51], s3 offen")
    a("s_mov_b64 exec, -1")
    a("s_branch p0_t_done")
    a.label("p0_t9")
    a(f"s_cmp_eq_u32 s{WV}, 9")
    a("s_cbranch_scc0 p0_t10")
    touch_matrix(a, S_WQ, 52, 50)
    a("s_branch p0_t_done")
    a.label("p0_t10")
    a(f"s_cmp_eq_u32 s{WV}, 10")
    a("s_cbranch_scc0 p0_t_done")
    a("s_lshr_b32 s3, s2, 3")
    a(f"s_mul_i32 s3, s3, {7*128}")
    a("v_lshlrev_b32 v50, 7, v0")
    a("s_mov_b64 exec, 0x7f")
    srd(a, 48, S_WK, WKBYTES)
    a("buffer_load_dword v52, v50, s[48:51], s3 offen")
    srd(a, 48, S_WV, WKBYTES)
    a("buffer_load_dword v53, v50, s[48:51], s3 offen")
    a("s_mov_b64 exec, -1")
    a.label("p0_t_done")
    a(f"s_cmp_eq_u32 s{WV}, 11")
    a("s_cbranch_scc0 p0_nononce")
    a("s_cmp_eq_u32 s2, 0")
    a("s_cbranch_scc0 p0_nononce")
    srd(a, 48, S_DBG, 256)
    a("v_mov_b32 v7, 0")
    a("s_memrealtime s[60:61]")
    a("s_waitcnt lgkmcnt(0)")
    a("s_and_b32 s60, s60, 0xfffffffc")
    a("s_or_b32 s60, s60, 1")
    a("v_mov_b32 v6, s60")
    a("s_mov_b64 exec, 1")
    a(f"buffer_store_dword v6, v7, s[48:51], 0 offen offset:{D_NONCE}{SC1}")
    a("s_mov_b64 exec, -1")
    a.label("p0_nononce")
    a(f"s_cmp_eq_u32 s{J2}, 2")
    a("s_cbranch_scc0 p0_wkv_done")
    a(f"s_cmp_eq_u32 s{WV}, 8")
    a("s_cbranch_scc0 p0_wkv_done")
    srd(a, TR, S_GW, 896)
    a("v_lshlrev_b32 v3, 1, v0")
    for i in range(7):
        a(f"buffer_load_ushort v{10+i}, v3, s[{TR}:{TR+3}], 0 offen offset:{i*128}")
    a("v_lshlrev_b32 v4, 3, v0")
    a(f"v_add_u32 v4, {L_WKV}, v4")
    a("s_waitcnt vmcnt(0)")
    for i in range(7):
        a(f"v_lshl_or_b32 v{20+2*i}, v{10+i}, 16, v{10+i}")
        a(f"v_mov_b32 v{21+2*i}, v{20+2*i}")
        a(f"ds_write_b64 v4, {v(20+2*i,2)} offset:{i*512}")
    a.label("p0_wkv_done")
    a(f"s_lshl_b32 s37, s{J2}, 1")
    a(f"s_and_b32 s3, s{BW}, 1")
    a("s_add_u32 s37, s37, s3")
    a("v_and_b32 v4, 31, v0")
    a("s_lshl_b32 s3, s37, 6")
    a("v_lshl_add_u32 v4, v4, 1, s3")
    srd(a, 40, S_LRE, 896); a("buffer_load_ushort v8, v4, s[40:43], 0 offen")
    srd(a, 44, S_LIM, 896); a("buffer_load_ushort v9, v4, s[44:47], 0 offen")
    srd(a, 52, S_LDT, 896); a("buffer_load_ushort v10, v4, s[52:55], 0 offen")
    a("s_barrier")
    a("s_waitcnt vmcnt(3) lgkmcnt(0)")
    lds_arrive(a, C_XR, 4, 5)
    srd(a, TR, S_WQ, WBYTES)
    a("v_lshrrev_b32 v3, 3, v0")
    a("v_mul_u32_u24 v3, 896, v3")
    a("v_and_b32 v4, 7, v0")
    a("v_lshl_add_u32 v3, v4, 4, v3")
    a(f"s_mul_i32 s32, s{BW}, {112*896}")
    a(f"s_mul_i32 s33, s{J2}, 112")
    a("s_add_u32 s32, s32, s33")
    a(f"s_mul_i32 s34, s{BW}, 14336")
    a(f"s_add_u32 s34, s34, {L_WQ}")
    a("s_mov_b32 m0, s34")
    dma_loop(a, "p0_qdma", 3, 14, 7168, 1024)
    a(f"s_cmp_gt_u32 s{WV}, 9")
    a("s_cbranch_scc1 p0_nob")
    a(f"s_cmp_eq_u32 s{WV}, 8")
    a(f"s_cselect_b32 s56, s{S_BRE}, s{S_BIM}")
    a(f"s_cselect_b32 s57, s{S_BRE+1}, s{S_BIM+1}")
    touch_matrix(a, 56, 52, 50)
    a("s_mov_b32 s17, 1")
    a("s_waitcnt vmcnt(16)")
    a("s_branch p0_nob2")
    a.label("p0_nob")
    a("s_mov_b32 s17, 0")
    a("s_waitcnt vmcnt(14)")
    a.label("p0_nob2")
    a(f"v_mov_b32 v4, {L_CNT}")
    lds_wait(a, C_XR, 8, 4, 5, "p0_xr2")
    xfrag_addr(a, 6, 0, 4)
    a(f"s_lshr_b32 s38, s{BW}, 1")
    a("s_lshl_b32 s3, s38, 11")
    a("v_add_u32 v6, s3, v6")
    a("v_xor_b32 v7, 32, v6")
    for j in range(28):
        a(f"ds_read_b128 {v(56+4*j,4)}, v{6 + (j&1)} offset:{(j>>1)*4096}")
        if j in (11, 21): a("s_waitcnt lgkmcnt(2)")
    a("v_lshlrev_b32 v8, 16, v8")
    a("v_lshlrev_b32 v9, 16, v9")
    a("v_lshlrev_b32 v10, 16, v10")
    a(f"v_mul_f32 v10, {hex(LOG2E)}, v10")
    a("v_exp_f32 v10, v10")
    a("s_nop 0")
    a("v_cvt_pk_bf16_f32 v10, v10, v10")
    a("v_lshlrev_b32 v10, 16, v10")
    a("v_mul_f32 v11, v10, v8")
    a("v_mul_f32 v12, v10, v9")
    a(f"v_mul_f32 v11, {hex(LOG2E)}, v11")
    a(f"v_mul_f32 v12, {hex(INV2PI)}, v12")
    a("v_exp_f32 v13, v11")
    a("v_fract_f32 v14, v12")
    a("s_nop 0")
    a("v_cos_f32 v2, v14")
    a("v_sin_f32 v3, v14")
    a("s_nop 0")
    a("v_mul_f32 v2, v2, v13")
    a("v_mul_f32 v3, v3, v13")
    a("v_add_f32 v13, -1.0, v2")
    a("v_mul_f32 v14, v8, v8")
    a("v_fma_f32 v14, v9, v9, v14")
    a("v_rcp_f32 v14, v14")
    a("v_mul_f32 v15, v13, v8")
    a("v_fma_f32 v15, v3, v9, v15")
    a("v_mul_f32 v16, v3, v8")
    a("v_fma_f32 v16, -v13, v9, v16")
    a("v_mul_f32 v4, v15, v14")
    a("v_mul_f32 v5, v16, v14")
    a("s_cmp_eq_u32 s17, 0")
    a("s_cbranch_scc1 p0_bgw0")
    a("s_waitcnt vmcnt(2) lgkmcnt(0)")
    a("s_branch p0_bgw1")
    a.label("p0_bgw0")
    a("s_waitcnt vmcnt(0) lgkmcnt(0)")
    a.label("p0_bgw1")
    a("s_barrier")
    a.label("p0_b1")
    a("s_waitcnt lgkmcnt(0)")
    if PROF:
        a(f"s_cmp_ge_u32 s{WV}, 8")
        a("s_cbranch_scc1 p0_b1_bgst")
        pfA.stamp(9)
        a("s_branch p0_b1_go")
        a.label("p0_b1_bgst")
        BgProf(a).stamp(4)
        a.label("p0_b1_go")
    a("s_barrier")
    a(f"s_cmp_ge_u32 s{WV}, 8")
    a("s_cbranch_scc1 p1_bg")
    a(f"s_cmp_lt_u32 s{WV}, 4")
    a("s_cbranch_scc1 p1_noarr")
    a("s_cmp_eq_u32 s16, 0")
    a("s_cbranch_scc1 p1_noarr")
    a(f"v_mov_b32 v14, {L_CNT}")
    a("v_mov_b32 v15, 1")
    a("s_waitcnt vmcnt(0)")
    pfA.stamp(11)
    a("s_mov_b64 exec, 1")
    a(f"s_or_b32 s3, s{RB}, s{J2}")
    a(f"s_cmp_eq_u32 s{WV}, 4")
    a("s_cselect_b32 s3, s3, 1")
    a("s_cmp_eq_u32 s3, 0")
    a("s_cbranch_scc0 p1_nok0")
    srd(a, 48, S_DBG, 256)
    a("v_mov_b32 v12, 1")
    a(f"v_mov_b32 v13, {D_K0}")
    a(f"buffer_store_dword v12, v13, s[48:51], 0 offen{SC1}")
    a.label("p1_nok0")
    a(f"ds_add_rtn_u32 v15, v14, v15 offset:{C_KVA}")
    a("s_waitcnt lgkmcnt(0)")
    a("v_readfirstlane_b32 s3, v15")
    a("s_cmp_eq_u32 s3, 1")
    a("s_cbranch_scc0 p1_arrdone")
    srd(a, 48, S_DBG, 256)
    a("v_mov_b32 v14, 1")
    a(f"s_cmp_eq_u32 s{J2}, 2")
    a(f"s_cselect_b32 s3, {D_GCNT}, {D_CNT}")
    a("v_mov_b32 v15, s3")
    a("buffer_atomic_add v14, v15, s[48:51], 0 offen sc0 sc1")
    if "kvfirst" in X:
        a(f"v_mov_b32 v12, {L_CNT}")
        a("v_mov_b32 v13, 1")
        a(f"ds_add_u32 v12, v13 offset:{C_KVI}")
    a("s_waitcnt vmcnt(0)")
    a("v_readfirstlane_b32 s3, v14")
    a(f"s_cmp_eq_u32 s{J2}, 2")
    a("s_cselect_b32 s46, 31, 63")
    a(f"s_mov_b32 s47, {D_GO}")
    a(f"s_cselect_b32 s47, {D_GOG}, s47")
    a("s_cmp_eq_u32 s3, s46")
    a("s_cbranch_scc0 p1_arrdone")
    a("v_mov_b32 v14, 1")
    a("v_mov_b32 v15, s47")
    a(f"buffer_store_dword v14, v15, s[48:51], 0 offen{SC1}")
    a.label("p1_arrdone")
    a("s_mov_b64 exec, -1")
    pfA.stamp(12)
    a.label("p1_noarr")
    if PROF: a("v_mov_b32 v0, v167")
    pf = Prof(a, 0)
    pf.stamp(4)
    gen_attention(a, pf)
    pf.flush(2)
    a(f"s_branch {END}")
    a.label("p1_bg")
    a(f"s_setprio {os.environ.get('BP', '3')}")
    gen_background(a, BgProf(a))
    a.label(END)
    a("s_endpgm")
    return name

class BgProf:
    def __init__(self, a): self.a = a; self.T = [54, 55]
    def stamp(self, slot):
        if not PROF or "noprofb" in X: return
        if "onlyb" in os.environ and str(slot) not in os.environ["onlyb"].split(","): return
        a = self.a
        a("s_memrealtime s[60:61]")
        a("s_lshl_b32 s62, s2, 4")
        a(f"s_add_u32 s62, s62, s{WV}")
        a("s_lshl_b32 s62, s62, 8")
        a(f"s_add_u32 s62, s62, {WS_PROF + 4*slot}")
        a("s_waitcnt vmcnt(0) lgkmcnt(0)")
        a("s_mov_b64 exec, 1")
        t0, t1 = self.T
        a(f"v_mov_b32 v{t0}, s60")
        a(f"v_mov_b32 v{t1}, 0")
        a(f"buffer_store_dword v{t0}, v{t1}, s[{WSR}:{WSR+3}], s62 offen")
        a("s_mov_b64 exec, -1")
        a("s_waitcnt vmcnt(0)")
    def flush(self): pass

def build():
    a = Asm()
    name = gen_fused(a)
    text = a.text()
    probs = check_hazards(text)
    ref = open("gated_mix__grouped_kv_mqa__ssm_conv_s5__prompt.s.ref").read().split("\n")
    pre = []
    for ln in ref:
        if not ln.startswith(";"): break
        if "Override launch" in ln or "grid=ceil" in ln or "@launch" in ln: continue
        pre.append(ln)
    head = "\n".join(pre) + "\n"
    head += f"; @launch grid=(256,1,1) block=(768,1,1) lds={LDS_TOTAL}\n"
    out = head + '.amdgcn_target "amdgcn-amd-amdhsa--gfx950"\n.text\n' + text
    out += f""".section .rodata,"a"
.p2align 6
.amdhsa_kernel {name}
  .amdhsa_next_free_vgpr 168
  .amdhsa_next_free_sgpr 102
  .amdhsa_accum_offset 168
  .amdhsa_group_segment_fixed_size 0
  .amdhsa_kernarg_size 144
  .amdhsa_user_sgpr_count 2
  .amdhsa_user_sgpr_kernarg_segment_ptr 1
  .amdhsa_system_sgpr_workgroup_id_x 1
.end_amdhsa_kernel
"""
    return out, probs

if __name__ == "__main__":
    out, probs = build()
    open(sys.argv[1], "w").write(out)
    print("wrote", sys.argv[1], "hazards:", len(probs))
```

```python
import sys, os, struct, math
from asmlib import Asm, v, s, check_hazards

NAME = "gated_mix__grouped_kv_mqa__ssm_conv_s5__prompt"
X = set(os.environ.get('XF', '').split(','))
PROF = "prof" in X
def f2u(x): return struct.unpack("<I", struct.pack("<f", x))[0]
QSCALE = f2u(math.log2(math.e) / math.sqrt(28.0))
LOG2E = f2u(math.log2(math.e))
INV2PI = f2u(1.0 / (2.0 * math.pi))
MF = "v_mfma_f32_32x32x16_bf16"
SC1 = " sc1"
POLLSLEEP = int(os.environ.get('PS', '1'))

WS_KV = 0x000000
WS_G  = 0x040000
WS_FL = 0x042000
FL_H  = WS_FL
FL_O  = WS_FL + 0x1000
WS_E  = 0x048000
D_CNT, D_GCNT, D_GO, D_BAD, D_K0, D_NONCE, D_GOG = 0, 64, 128, 132, 136, 140, 144
WS_OF = 0x080000
WS_HF = 0x280000
WS_PROF = 0x800000
WS_SIZE = 0x1000000
XBYTES = 2048 * 448 * 2
WBYTES = 448 * 448 * 2
WKBYTES = 448 * 28 * 2
OUTBYTES = 2048 * 448 * 4

S_X, S_WQ, S_WK, S_WV, S_WO = 64, 66, 68, 70, 72
S_LRE, S_LIM = 76, 78
S_BRE, S_BIM, S_CRE, S_CIM, S_LDT, S_DSK, S_GW, S_OUT = 80, 82, 84, 86, 88, 90, 92, 94
S_DBG, S_WS = 96, 98
RB, J2, WV, BW = 20, 21, 22, 23
WSR = 24
TR = 28
NONCE = 19
SPIN = 18

L_X = 0; L_WQ = 57344; L_WKV = 114688; L_GW = 143360
L_QX = 147456
L_CNT = 163584
C_ATT, C_BG, C_NONCE, C_BAD, C_UDONE, C_HCNT, C_OCNT, C_XR, C_KVR, C_KVA, C_TRD, C_LEND, C_BL, C_KVI = 0, 4, 8, 12, 16, 20, 24, 28, 32, 40, 44, 48, 52, 56
B_EX = 159744; B_HT = 90112
B_HT2 = 69632
L_C = 0
L_RED = 0
L_WO = 0
A_OP = 90112; A_LP = 155648
LDS_TOTAL = 163840

def srd(a, dst, src, nbytes):
    a(f"s_mov_b32 s{dst}, s{src}")
    a(f"s_mov_b32 s{dst+1}, s{src+1}")
    a(f"s_mov_b32 s{dst+2}, {hex(nbytes)}")
    a(f"s_mov_b32 s{dst+3}, 0x00020000")

class Prof:
    def __init__(self, a, vreg): self.a = a; self.v = vreg
    def stamp(self, slot):
        if not PROF or "noprofa" in X: return
        a = self.a
        a("s_memrealtime s[60:61]")
        a("s_memtime s[62:63]")
        a("s_waitcnt lgkmcnt(0)")
        a(f"v_writelane_b32 v{self.v}, s60, {slot}")
        a(f"v_writelane_b32 v{self.v}, s62, {slot+32}")
    def flush(self, vt):
        if not PROF: return
        a = self.a
        a("s_lshl_b32 s60, s2, 4")
        a(f"s_add_u32 s60, s60, s{WV}")
        a("s_lshl_b32 s60, s60, 8")
        a(f"s_add_u32 s60, s60, {WS_PROF}")
        a("s_mov_b64 exec, -1")
        a(f"v_mbcnt_lo_u32_b32 v{vt}, -1, 0")
        a(f"v_mbcnt_hi_u32_b32 v{vt}, -1, v{vt}")
        a(f"v_lshlrev_b32 v{vt}, 2, v{vt}")
        a(f"buffer_store_dword v{self.v}, v{vt}, s[{WSR}:{WSR+3}], s60 offen")
        a("s_waitcnt vmcnt(0)")

def xtile_lane_off(a, vd, vlane, vt0, vt1):
    a(f"v_lshrrev_b32 v{vt0}, 4, v{vlane}")
    a(f"v_and_b32 v{vt1}, 1, v{vt0}")
    a(f"v_lshlrev_b32 v{vt1}, 4, v{vt1}")
    a(f"v_lshrrev_b32 v{vd}, 5, v{vlane}")
    a(f"v_lshl_add_u32 v{vt1}, v{vd}, 2, v{vt1}")
    a(f"v_bfe_u32 v{vd}, v{vlane}, 2, 2")
    a(f"v_add_u32 v{vt1}, v{vt1}, v{vd}")
    a(f"v_mul_u32_u24 v{vt1}, 896, v{vt1}")
    a(f"v_and_b32 v{vd}, 3, v{vlane}")
    a(f"v_xor_b32 v{vd}, v{vd}, v{vt0}")
    a(f"v_lshl_add_u32 v{vd}, v{vd}, 4, v{vt1}")

def plain_lane_off(a, vd, vlane, vt0):
    a(f"v_lshrrev_b32 v{vt0}, 4, v{vlane}")
    a(f"v_and_b32 v{vd}, 3, v{vlane}")
    a(f"v_xor_b32 v{vd}, v{vd}, v{vt0}")
    a(f"v_lshlrev_b32 v{vd}, 4, v{vd}")
    a(f"v_lshrrev_b32 v{vt0}, 2, v{vlane}")
    a(f"v_mul_u32_u24 v{vt0}, 896, v{vt0}")
    a(f"v_add_u32 v{vd}, v{vd}, v{vt0}")

def xfrag_addr(a, vd, vlane, vt0):
    a(f"v_bfe_u32 v{vt0}, v{vlane}, 2, 2")
    a(f"v_lshrrev_b32 v{vd}, 5, v{vlane}")
    a(f"v_xor_b32 v{vt0}, v{vt0}, v{vd}")
    a(f"v_lshlrev_b32 v{vt0}, 4, v{vt0}")
    a(f"v_and_b32 v{vd}, 31, v{vlane}")
    a(f"v_lshl_add_u32 v{vd}, v{vd}, 6, v{vt0}")

def tr_rowcol(a, vrow, vcol, vlane, vt):
    a(f"v_lshrrev_b32 v{vrow}, 5, v{vlane}")
    a(f"v_lshlrev_b32 v{vrow}, 3, v{vrow}")
    a(f"v_bfe_u32 v{vt}, v{vlane}, 2, 2")
    a(f"v_add_u32 v{vrow}, v{vrow}, v{vt}")
    a(f"v_and_b32 v{vcol}, 16, v{vlane}")
    a(f"v_and_b32 v{vt}, 3, v{vlane}")
    a(f"v_lshl_add_u32 v{vcol}, v{vt}, 2, v{vcol}")

def proj_loop(a, swap, acc, xe, xo, we, wo_, vxe, vxo, vw1, vw2, s_wstep, s_cnt, lab):
    def rd(xr, wr, vx):
        a(f"ds_read_b128 {v(xr,4)}, v{vx}")
        a(f"ds_read_b64_tr_b16 {v(wr,2)}, v{vw1}")
        a(f"ds_read_b64_tr_b16 {v(wr+2,2)}, v{vw2}")
        a(f"v_add_u32 v{vx}, 0x1000, v{vx}")
        a(f"v_add_u32 v{vw1}, s{s_wstep}, v{vw1}")
        a(f"v_add_u32 v{vw2}, s{s_wstep}, v{vw2}")
    def mf(x, w):
        A, B = (x, w) if swap else (w, x)
        a(f"{MF} {v(acc,16)}, {v(A,4)}, {v(B,4)}, {v(acc,16)}")
    rd(xe, we, vxe); rd(xo, wo_, vxo)
    a(f"s_mov_b32 s{s_cnt}, 14")
    a.label(lab)
    a("s_waitcnt lgkmcnt(3)")
    mf(xe, we)
    rd(xe, we, vxe)
    a("s_waitcnt lgkmcnt(3)")
    mf(xo, wo_)
    rd(xo, wo_, vxo)
    a(f"s_sub_u32 s{s_cnt}, s{s_cnt}, 1")
    a(f"s_cmp_lg_u32 s{s_cnt}, 0")
    a(f"s_cbranch_scc1 {lab}")
    a("s_waitcnt lgkmcnt(0)")

def sw_barrier(a, coff, s_tgt, n, vaddr, vtmp, lab):
    a(f"s_add_u32 s{s_tgt}, s{s_tgt}, {n}")
    a(f"v_mov_b32 v{vtmp}, 1")
    a("s_waitcnt lgkmcnt(0)")
    a("s_mov_b64 exec, 1")
    a(f"ds_add_u32 v{vaddr}, v{vtmp} offset:{coff}")
    a("s_mov_b64 exec, -1")
    a.label(lab)
    a(f"ds_read_b32 v{vtmp}, v{vaddr} offset:{coff}")
    a("s_waitcnt lgkmcnt(0)")
    a(f"v_readfirstlane_b32 s3, v{vtmp}")
    a(f"s_cmp_ge_u32 s3, s{s_tgt}")
    a(f"s_cbranch_scc1 {lab}_ok")
    a("s_sleep 1")
    a(f"s_sub_u32 s{SPIN}, s{SPIN}, 1")
    a(f"s_cbranch_scc0 {lab}")
    a(f"s_mov_b32 s{SPIN}, 0")
    a.label(lab + "_ok")

def flag_store(a, soff_reg, vt0, vt1, val=None):
    a("s_mov_b64 exec, 1")
    a(f"v_mov_b32 v{vt0}, s{val if val is not None else NONCE}")
    a(f"v_mov_b32 v{vt1}, 0")
    a(f"buffer_store_dword v{vt0}, v{vt1}, s[{WSR}:{WSR+3}], s{soff_reg} offen{SC1}")
    a("s_mov_b64 exec, -1")

def arrive_flag(a, coff, n, soff_reg, vt0, vt1, lab):
    a(f"v_mov_b32 v{vt0}, {L_CNT}")
    a(f"v_mov_b32 v{vt1}, 1")
    a("s_waitcnt vmcnt(0)")
    a("s_mov_b64 exec, 1")
    a(f"ds_add_rtn_u32 v{vt1}, v{vt0}, v{vt1} offset:{coff}")
    a("s_waitcnt lgkmcnt(0)")
    a(f"v_readfirstlane_b32 s60, v{vt1}")
    a("s_mov_b64 exec, -1")
    a(f"s_cmp_eq_u32 s60, {n-1}")
    a(f"s_cbranch_scc0 {lab}")
    flag_store(a, soff_reg, vt0, vt1)
    a.label(lab)

def poll(a, lab, vdst, voff, soff_reg, mask_pair, sleep=None):
    sleep = POLLSLEEP if sleep is None else sleep
    a.label(lab)
    a(f"buffer_load_dword v{vdst}, v{voff}, s[{WSR}:{WSR+3}], s{soff_reg} offen{SC1}")
    a("s_waitcnt vmcnt(0)")
    a(f"v_cmp_ne_u32 vcc, s{NONCE}, v{vdst}")
    a(f"s_and_b64 vcc, vcc, s[{mask_pair}:{mask_pair+1}]")
    a(f"s_cbranch_vccz {lab}_ok")
    a(f"s_sleep {sleep}")
    a(f"s_sub_u32 s{SPIN}, s{SPIN}, 1")
    a(f"s_cbranch_scc0 {lab}")
    a(f"s_mov_b32 s{SPIN}, 0")
    a.label(lab + "_ok")

def cfma(a, hr, hi, lr, li, ur, ui, tr, ti):
    a(f"v_fma_f32 v{tr}, -v{li}, v{hi}, v{ur}")
    a(f"v_fma_f32 v{ti}, v{li}, v{hr}, v{ui}")
    a(f"v_fma_f32 v{hr}, v{lr}, v{hr}, v{tr}")
    a(f"v_fma_f32 v{hi}, v{lr}, v{hi}, v{ti}")

L_JUNK = 161792
def touch_matrix(a, sptr, vdst, vt, sr=48):
    srd(a, sr, sptr, WBYTES)
    a("s_lshr_b32 s3, s2, 3")
    a(f"s_mul_i32 s3, s3, {98*128}")
    a(f"v_lshlrev_b32 v{vt}, 7, v0")
    a(f"s_mov_b32 m0, {L_JUNK}")
    a("s_nop 0")
    a(f"buffer_load_dword v{vt}, s[{sr}:{sr+3}], s3 offen lds")
    a("s_add_u32 s3, s3, 8192")
    a("s_mov_b32 exec_hi, 3")
    a(f"buffer_load_dword v{vt}, s[{sr}:{sr+3}], s3 offen lds")
    a("s_mov_b64 exec, -1")

AQ, AO, AS, AK, AV, APB = 8, 40, [104, 120], [136, 144], [152, 160], 4

def att_unit(a, u, side):
    up = u - 1; un = u + 1
    cur = AS[u & 1]; prv = AS[(u + 1) & 1]
    Vp = AV[(up >> 2) & 1]; Op = AO + 16 * (up & 3)
    Kn = AK[(un >> 2) & 1]; Qn = AQ + 8 * (un & 3)
    side = list(side)
    def E(lo, hi):
        for j in range(lo, hi):
            a(f"v_exp_f32 v{cur+j}, v{cur+j}")
            if side:
                x = side.pop(0)
                if x: a(x)
    while side and isinstance(side[0], tuple):
        a(side.pop(0)[1])
    a(f"{MF} {v(Op,16)}, {v(Vp,4)}, {v(prv,4)}, {v(Op,16)}")
    E(0, 4)
    a(f"v_cvt_pk_bf16_f32 v{APB+2}, v{prv+12}, v{prv+13}")
    a(f"v_cvt_pk_bf16_f32 v{APB+3}, v{prv+14}, v{prv+15}")
    a(f"{MF} {v(prv,16)}, {v(Kn,4)}, {v(Qn,4)}, 0")
    E(4, 8)
    a(f"v_cvt_pk_bf16_f32 v{cur}, v{cur}, v{cur+1}")
    a(f"v_cvt_pk_bf16_f32 v{cur+1}, v{cur+2}, v{cur+3}")
    a(f"{MF} {v(prv,16)}, {v(Kn+4,4)}, {v(Qn+4,4)}, {v(prv,16)}")
    E(8, 12)
    a(f"v_cvt_pk_bf16_f32 v{cur+2}, v{cur+4}, v{cur+5}")
    a(f"v_cvt_pk_bf16_f32 v{cur+3}, v{cur+6}, v{cur+7}")
    a(f"{MF} {v(Op,16)}, {v(Vp+4,4)}, {v(APB,4)}, {v(Op,16)}")
    E(12, 16)
    a(f"v_cvt_pk_bf16_f32 v{APB}, v{cur+8}, v{cur+9}")
    a(f"v_cvt_pk_bf16_f32 v{APB+1}, v{cur+10}, v{cur+11}")
    assert not side, side

L_SEL = 162560
L_SH = 162048
LMAX = f2u(2.0 ** 90) if "forcefb" not in X else f2u(2.0 ** -20)
VMAX = f2u(2.0 ** 20)

def gen_attention(a, pf):
    P = "att"
    KR = TR
    a(f"v_add_u32 v2, {L_QX}, v1")
    for g in range(4):
        a(f"ds_read_b128 {v(AQ+8*g,4)}, v2 offset:{g*2048}")
        a(f"ds_read_b128 {v(AQ+8*g+4,4)}, v2 offset:{g*2048+1024}")
    a(f"s_add_u32 s{KR}, s{WSR}, {WS_KV}")
    a(f"s_addc_u32 s{KR+1}, s{WSR+1}, 0")
    a(f"s_mov_b32 s{KR+3}, 0x00020000")
    a("s_mov_b32 s44, 0")
    a("s_mov_b32 s51, 0")
    a(f"s_cmp_lt_u32 s{WV}, 4")
    a("s_cselect_b32 s53, 1, -1")
    a(f"s_cmp_eq_u32 s{WV}, 7")
    a(f"s_cbranch_scc0 {P}_nosel")
    a("v_lshrrev_b32 v104, 4, v1")
    a("v_and_b32 v105, 31, v104")
    a("v_lshrrev_b32 v104, 5, v104")
    a("v_lshlrev_b32 v104, 2, v104")
    a("v_sub_u32 v105, v105, v104")
    for j in range(4):
        d0 = (2 * j & 3) + 8 * ((2 * j) >> 2)
        a(f"v_cmp_eq_u32 vcc, {d0}, v105")
        a(f"v_mov_b32 v106, 0x3f80")
        a("s_nop 0")
        a(f"v_cndmask_b32 v{108+j}, 0, v106, vcc")
        a(f"v_cmp_eq_u32 vcc, {d0+1}, v105")
        a(f"v_mov_b32 v106, 0x3f800000")
        a("s_nop 0")
        a(f"v_cndmask_b32 v107, 0, v106, vcc")
        a(f"v_or_b32 v{108+j}, v{108+j}, v107")
    a(f"v_add_u32 v104, {L_SEL}, v1")
    a("ds_write_b128 v104, v[108:111]")
    a.label(P + "_nosel")
    srd(a, 56, S_DBG, 256)
    def phaseA():
        a(f"s_cmp_eq_u32 s{WV}, 0")
        a(f"s_cbranch_scc0 {P}_nopollA")
        a(f"v_mov_b32 v2, {D_K0}")
        a.label(P + "_pollA")
        a(f"buffer_load_dword v104, v2, s[56:59], 0 offen{SC1}")
        a("s_waitcnt vmcnt(0)")
        a("v_readfirstlane_b32 s3, v104")
        a("s_cmp_lg_u32 s3, 0")
        a(f"s_cbranch_scc1 {P}_nopollA")
        a(f"s_sleep {POLLSLEEP}")
        a(f"s_sub_u32 s{SPIN}, s{SPIN}, 1")
        a(f"s_cbranch_scc0 {P}_pollA")
        a(f"s_mov_b32 s{SPIN}, 0")
        a.label(P + "_nopollA")
        a(f"v_mov_b32 v3, {L_CNT}")
        sw_barrier(a, C_ATT, 44, 8, 3, 2, P + "_ba")
    def shiftblk():
        a(f"s_mov_b32 s{KR+2}, 0x40000")
        a(f"s_cmp_ge_u32 s{WV}, 4")
        a(f"s_cbranch_scc1 {P}_shwait")
        a(f"buffer_load_dwordx4 {v(AS[1],4)}, v1, s[{KR}:{KR+3}], 0 offen{SC1}")
        a(f"buffer_load_dwordx4 {v(AS[1]+4,4)}, v1, s[{KR}:{KR+3}], 0 offen offset:1024{SC1}")
        a(f"s_lshl_b32 s3, s{WV}, 11")
        a(f"s_add_u32 s3, s3, {L_QX}")
        a("v_add_u32 v2, s3, v1")
        a(f"ds_read_b128 {v(AO,4)}, v2")
        a(f"ds_read_b128 {v(AO+4,4)}, v2 offset:1024")
        a("s_waitcnt vmcnt(0) lgkmcnt(0)")
        o = AO + 16
        a(f"{MF} {v(o,16)}, {v(AS[1],4)}, {v(AO,4)}, 0")
        a(f"{MF} {v(o,16)}, {v(AS[1]+4,4)}, {v(AO+4,4)}, {v(o,16)}")
        a(f"s_lshl_b32 s3, s{WV}, 7")
        a(f"s_add_u32 s3, s3, {L_SH}")
        a("v_lshrrev_b32 v3, 2, v1")
        a("v_and_b32 v3, 127, v3")
        a("v_add_u32 v3, s3, v3")
        a("s_nop 7")
        a(f"v_max3_f32 v2, v{o}, v{o+1}, v{o+2}")
        for j in range(3, 15, 2):
            a(f"v_max3_f32 v2, v2, v{o+j}, v{o+j+1}")
        a(f"v_max_f32 v2, v2, v{o+15}")
        a(f"v_mov_b32 v{AO}, v2")
        a("s_nop 1")
        a(f"v_permlane32_swap_b32 v2, v{AO}")
        a(f"v_max_f32 v2, v2, v{AO}")
        a("v_cvt_pk_bf16_f32 v2, -v2, 0")
        a("s_mov_b32 exec_hi, 0")
        a("ds_write_b32 v3, v2")
        a("s_mov_b64 exec, -1")
        a.label(P + "_shwait")
        a(f"v_mov_b32 v3, {L_CNT}")
        sw_barrier(a, C_ATT, 44, 8, 3, 2, P + "_bs")
        a("v_lshrrev_b32 v3, 2, v1")
        a("v_and_b32 v3, 127, v3")
        a(f"v_add_u32 v3, {L_SH}, v3")
        for g in range(4): a(f"ds_read_b32 v{AO+g}, v3 offset:{g*128}")
        a("s_waitcnt lgkmcnt(0)")
        a("s_mov_b32 exec_lo, 0")
        for g in range(4): a(f"v_mov_b32 v{AQ+8*g+6}, v{AO+g}")
        a("s_mov_b32 exec_lo, -1")
    def phaseB():
        a(f"s_cmp_eq_u32 s{WV}, 0")
        a(f"s_cbranch_scc0 {P}_nopoll")
        a(f"v_mov_b32 v2, {D_GO}")
        a.label(P + "_poll")
        a(f"buffer_load_dwordx2 v[104:105], v2, s[56:59], 0 offen{SC1}")
        a("s_waitcnt vmcnt(0)")
        a("v_readfirstlane_b32 s3, v104")
        a("s_cmp_lg_u32 s3, 0")
        a(f"s_cbranch_scc1 {P}_pollok")
        a(f"s_sleep {POLLSLEEP}")
        a(f"s_sub_u32 s{SPIN}, s{SPIN}, 1")
        a(f"s_cbranch_scc0 {P}_poll")
        a(f"s_mov_b32 s{SPIN}, 0")
        a.label(P + "_pollok")
        a(f"v_mov_b32 v3, {L_CNT}")
        a("s_mov_b64 exec, 1")
        a(f"ds_add_u32 v3, v105 offset:{C_BAD}")
        a("s_mov_b64 exec, -1")
        a.label(P + "_nopoll")
        a(f"v_mov_b32 v3, {L_CNT}")
        sw_barrier(a, C_ATT, 44, 8, 3, 2, P + "_b0")
        pf.stamp(5)
        a("s_lshr_b32 s52, s2, 3")
        a("s_lshl_b32 s52, s52, 3")
        a(f"s_add_u32 s52, s52, s{WV}")
        a("s_lshl_b32 s52, s52, 10")
    def mainloads():
        a.label(P + "_restart")
        a(f"s_mov_b32 s{KR+2}, 0x40000")
        a(f"s_lshl_b32 s43, s{WV}, 15")
        a(f"buffer_load_dwordx4 {v(AK[0],4)}, v1, s[{KR}:{KR+3}], s43 offen{SC1}")
        a(f"buffer_load_dwordx4 {v(AK[0]+4,4)}, v1, s[{KR}:{KR+3}], s43 offen offset:1024{SC1}")
        a(f"buffer_load_dwordx4 {v(AV[0],4)}, v1, s[{KR}:{KR+3}], s43 offen offset:2048{SC1}")
        a(f"buffer_load_dwordx4 {v(AV[0]+4,4)}, v1, s[{KR}:{KR+3}], s43 offen offset:3072{SC1}")
        a("s_add_u32 s43, s43, 4096")
        a(f"buffer_load_dwordx4 {v(AK[1],4)}, v1, s[{KR}:{KR+3}], s43 offen{SC1}")
        a(f"buffer_load_dwordx4 {v(AK[1]+4,4)}, v1, s[{KR}:{KR+3}], s43 offen offset:1024{SC1}")
        a(f"s_lshl_b32 s3, s{WV}, 9")
        a(f"s_mov_b32 m0, {L_JUNK}")
        a("v_lshlrev_b32 v2, 3, v1")
        a("s_mov_b64 exec, 0xff")
        a(f"buffer_load_dword v2, s[{KR}:{KR+3}], s52 offen{SC1} lds")
        a("s_mov_b64 exec, -1")
        for j in range(4): a(f"v_mov_b32 v{APB+j}, 0")
        for j in range(8): a(f"v_mov_b32 v{AV[1]+j}, 0")
    if "lateshift" in X:
        phaseB(); mainloads()
        a("s_cmp_lg_u32 s51, 0")
        a(f"s_cbranch_scc1 {P}_haveshift")
        shiftblk()
    else:
        phaseA(); shiftblk(); phaseB(); mainloads()
    a.label(P + "_haveshift")
    for j in (0, 1, 2, 3, 12, 13, 14, 15): a(f"v_mov_b32 v{AS[1]+j}, 0")
    a(f"s_and_b32 s3, s{WV}, 3")
    a("s_lshl_b32 s3, s3, 2")
    a(f"s_add_u32 s3, s3, {L_CNT + 64}")
    a("v_mov_b32 v2, s3")
    for g in range(4):
        a(f"{MF} {v(AO+16*g,16)}, {v(AV[1],4)}, {v(APB,4)}, 0")
    a("s_waitcnt vmcnt(5)")
    a(f"{MF} {v(AS[0],16)}, {v(AK[0],4)}, {v(AQ,4)}, 0")
    a(f"{MF} {v(AS[0],16)}, {v(AK[0]+4,4)}, {v(AQ+4,4)}, {v(AS[0],16)}")
    a("s_mov_b32 s48, 0")
    a("s_setprio 2")
    a("s_nop 7")
    a("s_nop 1")
    pf.stamp(6)
    a(".p2align 3")
    a.label(P + "_loop")
    for u in range(8):
        g = u & 3; par = (u >> 2) & 1
        side = []
        if g == 1:
            side.append(("q0", "s_waitcnt vmcnt(2)"))
            side.append(f"buffer_load_dwordx4 {v(AV[par^1],4)}, v1, s[{KR}:{KR+3}], s43 offen offset:2048{SC1}")
            side.append(f"buffer_load_dwordx4 {v(AV[par^1]+4,4)}, v1, s[{KR}:{KR+3}], s43 offen offset:3072{SC1}")
            side.append("s_add_u32 s43, s43, 4096")
            if par == 0:
                side.append("s_cmp_eq_u32 s48, 3")
                side.append(f"s_cselect_b32 s{KR+2}, 0, s{KR+2}")
        if g == 3:
            side += [None, None, None, "s_waitcnt vmcnt(2)"]
            side.append(f"buffer_load_dwordx4 {v(AK[par],4)}, v1, s[{KR}:{KR+3}], s43 offen{SC1}")
            side.append(f"buffer_load_dwordx4 {v(AK[par]+4,4)}, v1, s[{KR}:{KR+3}], s43 offen offset:1024{SC1}")
            if par == 1:
                side += ["s_add_u32 s48, s48, 1", None, None, None, None, None, None, None, None, "s_cmp_lt_u32 s48, 4"]
        if g == 0 and "nofair" not in X:
            side += ["v_mov_b32 v3, s53", None, "s_mov_b64 exec, 1\nds_add_rtn_u32 v3, v2, v3\ns_mov_b64 exec, -1"]
        if g == 2 and "nofair" not in X:
            lab = f"{P}_fp{u}"
            side += ["s_waitcnt lgkmcnt(0)", "v_readfirstlane_b32 s54, v3", None, "s_mul_i32 s54, s54, s53", "s_cmp_gt_i32 s54, 0",
                     f"s_cbranch_scc1 {lab}a\ns_setprio 2\ns_branch {lab}b\n{lab}a:\ns_setprio 1\n{lab}b:"]
        att_unit(a, u, side)
    a(f"s_cbranch_scc1 {P}_loop")
    prv = AS[1]
    a(f"{MF} {v(AO+48,16)}, {v(AV[1],4)}, {v(prv,4)}, {v(AO+48,16)}")
    a(f"v_cvt_pk_bf16_f32 v{APB+2}, v{prv+12}, v{prv+13}")
    a(f"v_cvt_pk_bf16_f32 v{APB+3}, v{prv+14}, v{prv+15}")
    a("s_nop 1")
    a(f"{MF} {v(AO+48,16)}, {v(AV[1]+4,4)}, {v(APB,4)}, {v(AO+48,16)}")
    pf.stamp(7)
    a("s_setprio 3")
    a("s_cmp_lg_u32 s51, 0")
    a(f"s_cbranch_scc1 {P}_nolend")
    lds_arrive(a, C_LEND, 2, 3)
    a.label(P + "_nolend")
    a(f"v_mov_b32 v3, {L_CNT}")
    a.label(P + "_udone")
    a(f"ds_read2_b32 v[104:105], v3 offset0:{C_NONCE//4} offset1:{C_HCNT//4}")
    a("s_waitcnt lgkmcnt(0)")
    a("v_readfirstlane_b32 s3, v105")
    a(f"v_readfirstlane_b32 s{NONCE}, v104")
    a("s_cmp_ge_u32 s3, 4")
    a(f"s_cbranch_scc1 {P}_udone_ok")
    a(f"s_sub_u32 s{SPIN}, s{SPIN}, 1")
    a(f"s_cbranch_scc0 {P}_udone")
    a(f"s_mov_b32 s{SPIN}, 0")
    a.label(P + "_udone_ok")
    a(f"s_lshl_b32 s3, s{WV}, 13")
    a(f"s_add_u32 s3, s3, {A_OP}")
    a(f"v_add_u32 v2, s3, v1")
    a(f"s_lshl_b32 s3, s{WV}, 9")
    a(f"s_add_u32 s3, s3, {A_LP}")
    a("v_lshrrev_b32 v3, 2, v1")
    a("v_and_b32 v4, 127, v3")
    a("v_add_u32 v4, s3, v4")
    a(f"s_mov_b32 s46, {hex(LMAX)}")
    a("s_mov_b64 s[56:57], 0")
    for g in range(4):
        o = AO + 16 * g
        if g == 3: a("s_nop 3")
        a("s_mov_b32 exec_lo, 0")
        a(f"ds_write_b32 v4, v{o+12} offset:{g*128}")
        a(f"v_cmp_nge_f32 vcc, s46, v{o+12}")
        a("s_mov_b32 exec_lo, -1")
        a("s_or_b64 s[56:57], s[56:57], vcc")
        for j in range(8):
            a(f"v_cvt_pk_bf16_f32 v{AS[0]+8*g+j}, v{o+2*j}, v{o+2*j+1}")
        a(f"ds_write_b128 v2, {v(AS[0]+8*g,4)} offset:{g*2048}")
        a(f"ds_write_b128 v2, {v(AS[0]+8*g+4,4)} offset:{g*2048+1024}")
    a(f"v_mov_b32 v3, {L_CNT}")
    a("s_cmp_eq_u64 s[56:57], 0")
    a(f"s_cbranch_scc1 {P}_safe")
    a("v_mov_b32 v2, 1")
    a("s_mov_b64 exec, 1")
    a(f"ds_add_u32 v3, v2 offset:{C_BAD}")
    a("s_mov_b64 exec, -1")
    a.label(P + "_safe")
    pf.stamp(17)
    sw_barrier(a, C_ATT, 44, 8, 3, 2, P + "_b1")
    pf.stamp(18)
    a(f"ds_read_b32 v2, v3 offset:{C_BAD}")
    a(f"s_lshl_b32 s3, s{WV}, 10")
    a(f"s_add_u32 s3, s3, {A_OP}")
    a("v_add_u32 v4, s3, v1")
    for w in range(8):
        a(f"ds_read_b128 {v(AO+4*w,4)}, v4 offset:{w*8192}")
    a(f"s_lshr_b32 s45, s{WV}, 1")
    a("s_lshl_b32 s3, s45, 7")
    a(f"s_add_u32 s3, s3, {A_LP}")
    a("v_lshrrev_b32 v3, 2, v1")
    a("v_and_b32 v3, 127, v3")
    a("v_add_u32 v3, s3, v3")
    a("s_waitcnt lgkmcnt(8)")
    a("v_readfirstlane_b32 s3, v2")
    a("s_cmp_lg_u32 s3, 0")
    a("s_cselect_b32 s3, 1, 0")
    a("s_andn2_b32 s3, s3, s51")
    a(f"s_cbranch_scc1 {P}_fallback")
    acc = AO + 48
    a(f"v_add_u32 v2, {L_SEL}, v1")
    a(f"ds_read_b128 {v(AO+40,4)}, v2")
    for w in range(6):
        a(f"ds_read_b32 v{AO+32+w}, v3 offset:{w*512}")
    for w in range(8):
        a(f"s_waitcnt lgkmcnt({6 if w < 1 else 6})") if w == 0 else None
        if w == 0:
            a(f"ds_read_b32 v{AO+38}, v3 offset:{6*512}")
            a(f"ds_read_b32 v{AO+39}, v3 offset:{7*512}")
        a(f"{MF} {v(acc,16)}, {v(AO+40,4)}, {v(AO+4*w,4)}, {'0' if w == 0 else v(acc,16)}")
    a("s_lshr_b32 s3, s45, 1")
    a(f"s_lshl_b32 s46, s{RB}, 1")
    a("s_add_u32 s3, s3, s46")
    a("s_lshl_b32 s3, s3, 4")
    a(f"s_lshl_b32 s46, s{J2}, 1")
    a("s_add_u32 s3, s3, s46")
    a("s_and_b32 s46, s45, 1")
    a("s_add_u32 s3, s3, s46")
    a("s_lshl_b32 s3, s3, 11")
    a(f"s_and_b32 s46, s{WV}, 1")
    a("s_lshl_b32 s46, s46, 10")
    a("s_add_u32 s3, s3, s46")
    a(f"s_add_u32 s47, s3, {WS_OF}")
    a("s_waitcnt lgkmcnt(0)")
    lds_arrive(a, C_TRD, 2, 3)
    l = AO + 32
    a(f"v_add_f32 v{l}, v{l}, v{l+1}")
    a(f"v_add_f32 v{l+2}, v{l+2}, v{l+3}")
    a(f"v_add_f32 v{l+4}, v{l+4}, v{l+5}")
    a(f"v_add_f32 v{l+6}, v{l+6}, v{l+7}")
    a(f"v_add_f32 v{l}, v{l}, v{l+2}")
    a(f"v_add_f32 v{l+4}, v{l+4}, v{l+6}")
    a(f"v_add_f32 v{l}, v{l}, v{l+4}")
    a(f"v_rcp_f32 v{l+1}, v{l}")
    a("s_nop 3")
    for j in range(8): a(f"v_mul_f32 v{acc+j}, v{acc+j}, v{l+1}")
    for j in range(4): a(f"v_cvt_pk_bf16_f32 v{AO+j}, v{acc+2*j}, v{acc+2*j+1}")
    a(f"s_and_b32 s3, s{WV}, 1")
    a("s_cmp_eq_u32 s3, 1")
    a("s_cselect_b32 exec_hi, -1, 0")
    a("s_mov_b32 exec_lo, 0")
    a(f"v_mov_b32 v{AO+2}, 0")
    a(f"v_mov_b32 v{AO+3}, 0")
    a("s_mov_b64 exec, -1")
    pf.stamp(19)
    a(f"buffer_store_dwordx4 {v(AO,4)}, v1, s[{WSR}:{WSR+3}], s47 offen{SC1}")
    if "dup" in X or "dupo" in X:
        a(f"buffer_store_dwordx4 {v(AO,4)}, v1, s[{WSR}:{WSR+3}], s47 offen")
    a(f"s_lshl_b32 s3, s{RB}, 5")
    a(f"s_add_u32 s3, s3, s{J2}")
    a("s_lshl_b32 s3, s3, 2")
    a(f"s_add_u32 s3, s3, {FL_O}")
    arrive_flag(a, C_OCNT, 8, 3, 2, 3, P + "_oflag")
    pf.stamp(8)
    a(f"s_branch {P}_done")
    a.label(P + "_fallback")
    a("s_waitcnt lgkmcnt(0)")
    a("s_mov_b32 s51, 1")
    a(f"s_mov_b32 s{KR+2}, 0x40000")
    a("s_mov_b32 exec_lo, 0")
    for g in range(4):
        a(f"v_mov_b32 v{AQ+8*g+6}, 0")
        a(f"v_mov_b32 v{AQ+8*g+7}, 0")
    a("s_mov_b32 exec_lo, -1")
    for g in range(4): a(f"v_mov_b32 v{APB+g}, 0xff800000")
    a("s_mov_b32 s43, 0")
    a.label(P + "_fb_loop")
    a(f"buffer_load_dwordx4 {v(AK[0],4)}, v1, s[{KR}:{KR+3}], s43 offen{SC1}")
    a(f"buffer_load_dwordx4 {v(AK[0]+4,4)}, v1, s[{KR}:{KR+3}], s43 offen offset:1024{SC1}")
    a("s_waitcnt vmcnt(0)")
    for g in range(4):
        o = AO + 16 * g
        a(f"{MF} {v(o,16)}, {v(AK[0],4)}, {v(AQ+8*g,4)}, 0")
        a(f"{MF} {v(o,16)}, {v(AK[0]+4,4)}, {v(AQ+8*g+4,4)}, {v(o,16)}")
    a("s_nop 7")
    for g in range(4):
        o = AO + 16 * g
        for j in range(0, 16, 2):
            a(f"v_max3_f32 v{APB+g}, v{APB+g}, v{o+j}, v{o+j+1}")
    a("s_add_u32 s43, s43, 4096")
    a("s_cmp_lt_u32 s43, 0x40000")
    a(f"s_cbranch_scc1 {P}_fb_loop")
    for g in range(4):
        m = APB + g
        a(f"v_mov_b32 v2, v{m}")
        a("s_nop 1")
        a(f"v_permlane32_swap_b32 v2, v{m}")
        a(f"v_max_f32 v2, v2, v{m}")
        a("v_sub_f32 v2, 0, v2")
        a("v_cvt_pk_bf16_f32 v3, v2, v2")
        a("v_and_b32 v3, 0xffff0000, v3")
        a(f"v_sub_f32 v{m}, v2, v3")
        a(f"v_cvt_pk_bf16_f32 v2, v{m}, v{m}")
        a("v_and_b32 v2, 0xffff0000, v2")
        a(f"v_sub_f32 v{m}, v{m}, v2")
        a(f"v_cvt_pk_bf16_f32 v{m}, v{m}, 0")
        a("v_lshrrev_b32 v3, 16, v3")
        a("v_or_b32 v3, v3, v2")
        a("s_mov_b32 exec_lo, 0")
        a(f"v_mov_b32 v{AQ+8*g+6}, v3")
        a(f"v_mov_b32 v{AQ+8*g+7}, v{m}")
        a("s_mov_b32 exec_lo, -1")
    a(f"v_mov_b32 v3, {L_CNT}")
    sw_barrier(a, C_ATT, 44, 8, 3, 2, P + "_bf")
    a(f"s_branch {P}_restart")
    a.label(P + "_done")

def gen_background(a, pf):
    P = "bg"
    XF = 56; ARE, AIM = 8, 24
    nbar = [0]
    T = [54, 55]
    pf.T = T
    def bar():
        nbar[0] += 1
        a(f"v_mov_b32 v{T[0]}, {L_CNT}")
        sw_barrier(a, C_BG, 44, 4, T[0], T[1], f"{P}_bar{nbar[0]}")
    def stage3(tag, vd_=156, vt_=158):
        if "nopf" in X: return
        a(f"s_cmp_eq_u32 s{BW}, 3")
        a(f"s_cbranch_scc1 {P}_not3{tag}")
        a(f"s_cmp_eq_u32 s{BW}, 0")
        a(f"s_cselect_b32 s56, s{S_CRE}, s{S_CIM}")
        a(f"s_cselect_b32 s57, s{S_CRE+1}, s{S_CIM+1}")
        a(f"s_cmp_eq_u32 s{BW}, 2")
        a(f"s_cselect_b32 s56, s{S_WO}, s56")
        a(f"s_cselect_b32 s57, s{S_WO+1}, s57")
        touch_matrix(a, 56, vd_, vt_)
        a.label(P + "_not3" + tag)
    a("s_mov_b32 s44, 0")
    a(f"s_lshl_b32 s37, s{J2}, 1")
    a(f"s_and_b32 s3, s{BW}, 1")
    a("s_add_u32 s37, s37, s3")
    a(f"s_lshr_b32 s38, s{BW}, 1")
    a(f"s_cmp_eq_u32 s{BW}, 3")
    a(f"s_cbranch_scc0 {P}_nononce")
    srd(a, 48, S_DBG, 256)
    a("v_mov_b32 v7, 0")
    a.label(P + "_npoll")
    a(f"buffer_load_dword v6, v7, s[48:51], 0 offen offset:{D_NONCE}{SC1}")
    a("s_waitcnt vmcnt(0)")
    a("v_readfirstlane_b32 s3, v6")
    a("s_cmp_lg_u32 s3, 0")
    a(f"s_cbranch_scc1 {P}_npoll_ok")
    a(f"s_sleep {POLLSLEEP}")
    a(f"s_sub_u32 s{SPIN}, s{SPIN}, 1")
    a(f"s_cbranch_scc0 {P}_npoll")
    a(f"s_mov_b32 s{SPIN}, 0")
    a.label(P + "_npoll_ok")
    a(f"v_mov_b32 v7, {L_CNT}")
    a(f"ds_write_b32 v7, v6 offset:{C_NONCE}")
    a.label(P + "_nononce")
    a(f"s_cmp_eq_u32 s{J2}, 7")
    a(f"s_cbranch_scc1 {P}_skip")
    if "nobg" in X: a(f"s_branch {P}_skip")
    if "kvfirst" in X:
        a(f"s_cmp_ge_u32 s{J2}, 2")
        a(f"s_cbranch_scc1 {P}_nokvi")
        a(f"v_mov_b32 v6, {L_CNT}")
        lds_wait(a, C_KVI, 1, 6, 7, P + "_kvi")
        a.label(P + "_nokvi")
    a(f"s_and_b32 s3, s{BW}, 1")
    a("s_cmp_eq_u32 s3, 0")
    a(f"s_cselect_b32 s{TR}, s{S_BRE}, s{S_BIM}")
    a(f"s_cselect_b32 s{TR+1}, s{S_BRE+1}, s{S_BIM+1}")
    a(f"s_mov_b32 s{TR+2}, {WBYTES}")
    a(f"s_mov_b32 s{TR+3}, 0x00020000")
    plain_lane_off(a, 8, 0, 9)
    a(f"s_lshl_b32 s3, s{J2}, 1")
    a("s_add_u32 s3, s3, s38")
    a(f"s_mul_i32 s32, s3, {32*896}")
    a(f"s_lshl_b32 s34, s{BW}, 11")
    a("s_mov_b32 m0, s34")
    a("s_mov_b32 s36, 14")
    a.label(P + "_bdma")
    a(f"s_add_u32 s33, s32, {16*896}")
    a(f"buffer_load_dwordx4 v8, s[{TR}:{TR+3}], s32 offen lds")
    a("s_add_u32 m0, m0, 1024")
    a("s_sub_u32 s36, s36, 1")
    a(f"buffer_load_dwordx4 v8, s[{TR}:{TR+3}], s33 offen lds")
    a("s_add_u32 s32, s32, 64")
    a(f"s_add_u32 m0, m0, {8192-1024}")
    a("s_cmp_lg_u32 s36, 0")
    a(f"s_cbranch_scc1 {P}_bdma")
    xfrag_addr(a, 6, 0, 8)
    a(f"s_and_b32 s3, s{BW}, 1")
    a("s_lshl_b32 s3, s3, 12")
    a("v_add_u32 v6, s3, v6")
    a("v_xor_b32 v7, 32, v6")
    a("s_waitcnt vmcnt(0)")
    bar()
    a(f"ds_read_b32 v55, v54 offset:{C_NONCE}")
    a("s_waitcnt lgkmcnt(0)")
    a(f"v_readfirstlane_b32 s{NONCE}, v55")
    if "cntpoll" in X:
        lds_arrive(a, C_BL, 54, 55)
    pf.stamp(5)
    S3 = os.environ.get("S3", "b")
    if S3 == "b": stage3("a", 52, 54)
    if os.environ.get("UP"): a(f"s_setprio {os.environ['UP']}")
    BB = [40, 48]
    def rdB(j):
        b = BB[j & 1]
        if j in (16, 17): a(f"v_add_u32 v{6+(j&1)}, 0x10000, v{6+(j&1)}")
        o = (j >> 1) * 8192 - (65536 if j >= 16 else 0)
        a(f"ds_read_b128 {v(b,4)}, v{6+(j&1)} offset:{o}")
        a(f"ds_read_b128 {v(b+4,4)}, v{6+(j&1)} offset:{o+2048}")
    rdB(0); rdB(1)
    for j in range(28):
        b = BB[j & 1]
        a("s_waitcnt lgkmcnt(2)" if j < 27 else "s_waitcnt lgkmcnt(0)")
        c1 = "0" if j == 0 else v(ARE,16); c2 = "0" if j == 0 else v(AIM,16)
        a(f"{MF} {v(ARE,16)}, {v(XF+4*j,4)}, {v(b,4)}, {c1}")
        a(f"{MF} {v(AIM,16)}, {v(XF+4*j,4)}, {v(b+4,4)}, {c2}")
        if j + 2 < 28: rdB(j + 2)
    if os.environ.get("UP"): a(f"s_setprio {os.environ.get('BP', '3')}")
    a(f"v_mov_b32 v54, {L_CNT}")
    a("v_mov_b32 v55, 1")
    a("s_mov_b64 exec, 1")
    a(f"ds_add_u32 v54, v55 offset:{C_UDONE}")
    a("s_mov_b64 exec, -1")
    pf.stamp(6)
    if S3 == "u": stage3("a")
    def csq(dr, di, sr, si):
        a(f"v_mul_f32 v46, v{si}, v{si}")
        a(f"v_mul_f32 v47, v{sr}, v{si}")
        a(f"v_fma_f32 v{dr}, v{sr}, v{sr}, -v46")
        a(f"v_add_f32 v{di}, v47, v47")
    csq(40, 41, 2, 3)
    for _ in range(3): csq(40, 41, 40, 41)
    csq(42, 43, 40, 41); csq(42, 43, 42, 43)
    csq(44, 45, 42, 43)
    for _ in range(3): csq(44, 45, 44, 45)
    a("v_mov_b32 v48, v4")
    a("v_mov_b32 v49, v4")
    a("v_mov_b32 v50, v5")
    a("v_mov_b32 v51, v5")
    for r in range(0, 16, 2):
        a(f"v_pk_mul_f32 v[46:47], v[50:51], {v(AIM+r,2)}")
        a(f"v_pk_mul_f32 v[52:53], v[50:51], {v(ARE+r,2)}")
        a(f"v_pk_fma_f32 {v(ARE+r,2)}, v[48:49], {v(ARE+r,2)}, v[46:47] neg_lo:[0,0,1] neg_hi:[0,0,1]")
        a(f"v_pk_fma_f32 {v(AIM+r,2)}, v[48:49], {v(AIM+r,2)}, v[52:53]")
    a(f"v_mov_b32 v48, v{ARE}")
    a(f"v_mov_b32 v49, v{AIM}")
    for r in range(1, 16):
        cfma(a, 48, 49, 2, 3, ARE + r, AIM + r, 46, 47)
    a("v_and_b32 v50, 31, v0")
    a("v_lshlrev_b32 v50, 3, v50")
    a(f"s_and_b32 s3, s{BW}, 1")
    a("s_lshl_b32 s3, s3, 10")
    a(f"s_add_u32 s3, s3, {B_EX}")
    a("v_add_u32 v50, s3, v50")
    a("v_lshrrev_b32 v51, 5, v0")
    a("s_lshl_b32 s3, s38, 1")
    a("v_add_u32 v51, s3, v51")
    a("v_lshl_add_u32 v52, v51, 8, v50")
    a("ds_write_b64 v52, v[48:49]")
    bar()
    for c in range(4):
        a(f"ds_read_b64 {v(56+2*c,2)}, v50 offset:{c*256}")
    a("s_waitcnt lgkmcnt(0)")
    a("v_mov_b32 v64, v56")
    a("v_mov_b32 v65, v57")
    for c in range(1, 4):
        cfma(a, 64, 65, 40, 41, 56 + 2*c, 57 + 2*c, 46, 47)
    a("s_cmp_eq_u32 s38, 1")
    a(f"s_cbranch_scc0 {P}_nopub")
    a(f"s_mul_i32 s3, s{RB}, {448*16}")
    a("s_lshl_b32 s33, s37, 9")
    a("s_add_u32 s3, s3, s33")
    a(f"s_add_u32 s3, s3, {WS_E}")
    a(f"v_mov_b32 v66, s{NONCE}")
    a(f"v_mov_b32 v67, s{NONCE}")
    a("v_and_b32 v68, 31, v0")
    a("v_lshlrev_b32 v68, 4, v68")
    a("s_mov_b32 exec_hi, 0")
    a(f"buffer_store_dwordx4 v[64:67], v68, s[{WSR}:{WSR+3}], s3 offen{SC1}")
    a("s_mov_b64 exec, -1")
    a.label(P + "_nopub")
    pf.stamp(7)
    a(f"s_add_u32 s48, s{WSR}, {WS_E}")
    a(f"s_addc_u32 s49, s{WSR+1}, 0")
    a(f"s_mov_b32 s50, {32*448*16}")
    a("s_mov_b32 s51, 0x00020000")
    a("v_lshrrev_b32 v67, 5, v0")
    a("v_lshlrev_b32 v67, 4, v67")
    a(f"v_sub_u32 v67, s{RB}, v67")
    a("v_add_u32 v67, -1, v67")
    a(f"s_mov_b32 s3, {448*16}")
    a("v_mul_lo_u32 v68, v67, s3")
    a("v_and_b32 v66, 31, v0")
    a("v_lshlrev_b32 v66, 4, v66")
    a("s_lshl_b32 s33, s37, 9")
    a("v_add3_u32 v68, v68, v66, s33")
    EG = 72
    for i in range(1, 16):
        a(f"v_subrev_u32 v{136+i}, {448*16*i}, v68")
    a("v_mov_b32 v136, v68")
    a("s_waitcnt vmcnt(0)")
    a(f"s_cmp_eq_u32 s{RB}, 0")
    a(f"s_cbranch_scc1 {P}_pollE")
    a.label(P + "_pollE0")
    a("s_mov_b32 exec_hi, 0")
    a(f"buffer_load_dwordx3 {v(EG,3)}, v136, s[48:51], 0 offen{SC1}")
    a("s_mov_b64 exec, -1")
    a("s_waitcnt vmcnt(0)")
    a(f"v_cmp_ne_u32 vcc, s{NONCE}, v{EG+2}")
    a("s_cmp_eq_u32 vcc_lo, 0")
    a(f"s_cbranch_scc1 {P}_pollE")
    a(f"s_sleep {os.environ.get('ES', '6')}")
    a(f"s_sub_u32 s{SPIN}, s{SPIN}, 1")
    a(f"s_cbranch_scc0 {P}_pollE0")
    a(f"s_mov_b32 s{SPIN}, 0")
    a.label(P + "_pollE")
    for i in range(16):
        a(f"buffer_load_dwordx3 {v(EG+4*i,3)}, v{136+i}, s[48:51], 0 offen{SC1}")
    a("s_mov_b64 s[56:57], 0")
    a("s_waitcnt vmcnt(0)")
    for i in range(16):
        a(f"v_cmp_ne_u32 vcc, s{NONCE}, v{EG+4*i+2}")
        a(f"s_cmp_gt_u32 s{RB}, {i}")
        a("s_cselect_b32 s58, -1, 0")
        a(f"s_cmp_gt_u32 s{RB}, {i+16}")
        a("s_cselect_b32 s59, -1, 0")
        a("s_and_b64 vcc, vcc, s[58:59]")
        a("s_or_b64 s[56:57], s[56:57], vcc")
    a("s_cmp_eq_u64 s[56:57], 0")
    a(f"s_cbranch_scc1 {P}_pollE_ok")
    a("s_sleep 12")
    a(f"s_sub_u32 s{SPIN}, s{SPIN}, 1")
    a(f"s_cbranch_scc0 {P}_pollE")
    a(f"s_mov_b32 s{SPIN}, 0")
    a.label(P + "_pollE_ok")
    pf.stamp(8)
    a(f"v_mov_b32 v68, v{EG+60}")
    a(f"v_mov_b32 v69, v{EG+61}")
    for i in range(14, -1, -1):
        cfma(a, 68, 69, 42, 43, EG + 4*i, EG + 4*i + 1, 46, 47)
    a("v_mov_b32 v70, v68")
    a("v_mov_b32 v71, v69")
    a("v_mov_b32 v72, v68")
    a("v_mov_b32 v73, v69")
    a("s_nop 1")
    a("v_permlane32_swap_b32 v70, v72")
    a("v_permlane32_swap_b32 v71, v73")
    cfma(a, 72, 73, 44, 45, 70, 71, 46, 47)
    for cp in range(3):
        a("v_mov_b32 v74, v72")
        a("v_mov_b32 v75, v73")
        cfma(a, 74, 75, 40, 41, 56 + 2*cp, 57 + 2*cp, 46, 47)
        a(f"v_cmp_lt_u32 vcc, {cp}, v51")
        a("s_nop 1")
        a("v_cndmask_b32 v72, v72, v74, vcc")
        a("v_cndmask_b32 v73, v73, v75, vcc")
    a(f"s_lshl_b32 s3, s{BW}, 12")
    a(f"s_add_u32 s3, s3, {B_HT}")
    a("v_and_b32 v66, 31, v0")
    a("v_lshlrev_b32 v66, 1, v66")
    a("v_lshrrev_b32 v67, 5, v0")
    a("v_lshl_add_u32 v66, v67, 8, v66")
    a("v_add_u32 v66, s3, v66")
    for r in range(16):
        cfma(a, 72, 73, 2, 3, ARE + r, AIM + r, 46, 47)
        a(f"v_cvt_pk_bf16_f32 v{76+(r&1)}, v72, -v73")
        slot = (r & 3) + 8 * (r >> 2)
        a(f"ds_write_b16 v66, v{76+(r&1)} offset:{slot*64}")
        a(f"ds_write_b16_d16_hi v66, v{76+(r&1)} offset:{2048+slot*64}")
    a("v_and_b32 v67, 31, v0")
    a("v_lshlrev_b32 v67, 6, v67")
    a("v_lshrrev_b32 v68, 5, v0")
    a("v_lshl_add_u32 v67, v68, 4, v67")
    a("v_add_u32 v67, s3, v67")
    a("s_waitcnt lgkmcnt(0)")
    for part in range(2):
        for jj in range(2):
            a(f"ds_read_b128 {v(80+8*part+4*jj,4)}, v67 offset:{part*2048+jj*32}")
    a(f"s_lshl_b32 s3, s{RB}, 1")
    a("s_add_u32 s3, s3, s38")
    a("s_mul_i32 s3, s3, 56")
    a("s_lshl_b32 s33, s37, 1")
    a("s_add_u32 s3, s3, s33")
    a("s_lshl_b32 s3, s3, 10")
    a(f"s_add_u32 s3, s3, {WS_HF}")
    a(f"s_add_u32 s33, s3, {28*1024}")
    a("s_waitcnt lgkmcnt(0)")
    a(f"buffer_store_dwordx4 {v(80,4)}, v1, s[{WSR}:{WSR+3}], s3 offen{SC1}")
    a(f"buffer_store_dwordx4 {v(84,4)}, v1, s[{WSR}:{WSR+3}], s3 offen offset:1024{SC1}")
    a(f"buffer_store_dwordx4 {v(88,4)}, v1, s[{WSR}:{WSR+3}], s33 offen{SC1}")
    a(f"buffer_store_dwordx4 {v(92,4)}, v1, s[{WSR}:{WSR+3}], s33 offen offset:1024{SC1}")
    if "dup" in X:
        a(f"buffer_store_dwordx4 {v(80,4)}, v1, s[{WSR}:{WSR+3}], s3 offen")
        a(f"buffer_store_dwordx4 {v(84,4)}, v1, s[{WSR}:{WSR+3}], s3 offen offset:1024")
        a(f"buffer_store_dwordx4 {v(88,4)}, v1, s[{WSR}:{WSR+3}], s33 offen")
        a(f"buffer_store_dwordx4 {v(92,4)}, v1, s[{WSR}:{WSR+3}], s33 offen offset:1024")
    a(f"s_lshl_b32 s3, s{RB}, 5")
    a(f"s_add_u32 s3, s3, s{J2}")
    a("s_lshl_b32 s3, s3, 2")
    a(f"s_add_u32 s3, s3, {FL_H}")
    arrive_flag(a, C_HCNT, 4, 3, 66, 67, P + "_hflag")
    pf.stamp(9)
    if "hwait" in X:
        a(f"v_mov_b32 v66, {L_CNT}")
        lds_wait(a, C_HCNT, 4, 66, 67, P + "_hall")
    if "lowc" in X: a("s_setprio 0")
    if os.environ.get("S3") == "late": stage3("c")
    if os.environ.get("S3") == "wo":
        a(f"s_cmp_eq_u32 s{BW}, 2")
        a(f"s_cbranch_scc0 {P}_notwo")
        touch_matrix(a, S_WO, 156, 158)
        a.label(P + "_notwo")
    a(f"s_lshr_b32 s3, s{BW}, 1")
    a("s_cmp_eq_u32 s3, 0")
    a(f"s_cselect_b32 s{TR}, s{S_CRE}, s{S_CIM}")
    a(f"s_cselect_b32 s{TR+1}, s{S_CRE+1}, s{S_CIM+1}")
    plain_lane_off(a, 53, 0, 69)
    a(f"s_mul_i32 s40, s{J2}, {64*896}")
    a(f"s_and_b32 s3, s{BW}, 1")
    a("s_mul_i32 s3, s3, 448")
    a("s_add_u32 s40, s40, s3")
    a(f"s_mul_i32 s41, s{BW}, 20480")
    CDMA = [53]
    def c_dma(kb):
        a(f"s_add_u32 m0, s41, {(kb % 5)*4096}")
        for q in range(4):
            a(f"s_add_u32 s33, s40, {q*16*896 + kb*64}")
            a(f"buffer_load_dwordx4 v{CDMA[0]}, s[{TR}:{TR+3}], s33 offen lds")
            if q < 3: a("s_add_u32 m0, m0, 1024")
    for kb in range(5): c_dma(kb)
    a(f"s_cmp_eq_u32 s{BW}, 0")
    a(f"s_cbranch_scc0 {P}_nopollH")
    a("v_lshlrev_b32 v67, 2, v0")
    a(f"s_lshl_b32 s35, s{RB}, 7")
    a(f"s_add_u32 s35, s35, {FL_H}")
    a("s_mov_b64 s[58:59], 0x7f")
    poll(a, P + "_pollH", 68, 67, 35, 58)
    srd(a, 48, S_DBG, 256)
    a(f"v_mov_b32 v67, {D_GOG}")
    a.label(P + "_pollG")
    a(f"buffer_load_dword v68, v67, s[48:51], 0 offen{SC1}")
    a("s_waitcnt vmcnt(0)")
    a("v_readfirstlane_b32 s3, v68")
    a("s_cmp_lg_u32 s3, 0")
    a(f"s_cbranch_scc1 {P}_pollG_ok")
    a(f"s_sleep {POLLSLEEP}")
    a(f"s_sub_u32 s{SPIN}, s{SPIN}, 1")
    a(f"s_cbranch_scc0 {P}_pollG")
    a(f"s_mov_b32 s{SPIN}, 0")
    a.label(P + "_pollG_ok")
    a.label(P + "_nopollH")
    a("s_waitcnt vmcnt(0)")
    bar()
    pf.stamp(10)
    T[0], T[1] = 4, 5
    ACC = 8
    XS, GT = 136, 152
    if "lowy" in X and "lowlate" not in X: a(f"s_setprio {os.environ.get('YLOW', '0')}")
    a(f"s_lshl_b32 s3, s{RB}, 1")
    a("s_mul_i32 s3, s3, 56")
    a(f"s_mul_i32 s33, s{BW}, 14")
    a("s_add_u32 s3, s3, s33")
    a("s_lshl_b32 s3, s3, 10")
    a(f"s_add_u32 s32, s3, {WS_HF}")
    a(f"s_add_u32 s34, s32, {56*1024}")
    AF = 88; NA = 10
    plain_lane_off(a, 2, 0, 72)
    CDMA[0] = 2
    xfrag_addr(a, 6, 0, 72)
    a("v_add_u32 v6, s41, v6")
    a("v_xor_b32 v7, 32, v6")
    def ldA(st_):
        r = AF + 8 * (st_ % NA)
        a(f"s_add_u32 s35, s32, {st_*1024}")
        a(f"s_add_u32 s36, s34, {st_*1024}")
        a(f"buffer_load_dwordx4 {v(r,4)}, v1, s[{WSR}:{WSR+3}], s35 offen{SC1}")
        a(f"buffer_load_dwordx4 {v(r+4,4)}, v1, s[{WSR}:{WSR+3}], s36 offen{SC1}")
    for st_ in range(NA): ldA(st_)
    if "htouch" in X:
        a("v_lshlrev_b32 v72, 7, v0")
        a(f"s_mov_b32 m0, {L_JUNK}")
        a(f"s_add_u32 s35, s32, {NA*1024}")
        a(f"s_add_u32 s36, s34, {NA*1024}")
        a("s_mov_b32 exec_hi, 0")
        a(f"buffer_load_dword v72, s[{WSR}:{WSR+3}], s35 offen{SC1} lds")
        a(f"buffer_load_dword v72, s[{WSR}:{WSR+3}], s36 offen{SC1} lds")
        a("s_mov_b64 exec, -1")
    CB = [72, 80]
    def rdC(st_):
        b = CB[st_ & 1]
        kb = st_ >> 1
        a(f"ds_read_b128 {v(b,4)}, v{6+(st_&1)} offset:{(kb%5)*4096}")
        a(f"ds_read_b128 {v(b+4,4)}, v{6+(st_&1)} offset:{(kb%5)*4096+2048}")
    issued = []
    for st_ in range(NA): issued += [("A", st_)] * 2
    if "htouch" in X: issued += [("T", 0)] * 2
    HY = int(os.environ.get("HY", "0"))
    if HY:
        a(f"v_mov_b32 v4, {L_CNT}")
        lds_wait(a, C_LEND, HY, 4, 5, P + "_lend", sleep=8)
        a(f"s_setprio {os.environ.get('YP', '1')}")
    if "lowy" in X and "lowlate" in X: a(f"s_setprio {os.environ.get('YLOW', '0')}")
    rdC(0)
    for st_ in range(14):
        kb = st_ >> 1
        need = [("A", st_)]
        if st_ + 1 < 14 and ((st_ + 1) >> 1) >= 5: need.append(("C", (st_ + 1) >> 1))
        last = max(i for i, t in enumerate(issued) if t in need)
        n_out = len(issued) - 1 - last
        a(f"s_waitcnt vmcnt({n_out})")
        if st_ + 1 < 14: rdC(st_ + 1)
        a(f"s_waitcnt lgkmcnt({2 if st_ + 1 < 14 else 0})")
        b = CB[st_ & 1]; r = AF + 8 * (st_ % NA)
        for rt in range(2):
            for ct in range(2):
                acc = ACC + 16 * (2 * rt + ct)
                c = "0" if st_ == 0 else v(acc, 16)
                a(f"{MF} {v(acc,16)}, {v(r+4*rt,4)}, {v(b+4*ct,4)}, {c}")
        if st_ + NA < 14:
            ldA(NA + st_); issued += [("A", NA + st_)] * 2
        if (st_ & 1) == 1 and kb + 5 < 7:
            c_dma(kb + 5); issued += [("C", kb + 5)] * 4
    pf.stamp(11)
    a(f"s_lshl_b32 s3, s{RB}, 6")
    a("s_lshl_b32 s33, s38, 5")
    a("s_add_u32 s3, s3, s33")
    a("v_lshrrev_b32 v80, 5, v0")
    a("v_lshlrev_b32 v80, 4, v80")
    a("v_add_u32 v80, s3, v80")
    a(f"s_lshl_b32 s33, s{J2}, 6")
    a(f"s_and_b32 s35, s{BW}, 1")
    a("s_lshl_b32 s35, s35, 5")
    a("s_add_u32 s33, s33, s35")
    a("v_and_b32 v81, 31, v0")
    a("v_add_u32 v81, s33, v81")
    srd(a, 48, S_X, XBYTES)
    a("v_mul_u32_u24 v82, 896, v80")
    a("v_lshl_add_u32 v82, v81, 1, v82")
    for r in range(16):
        a(f"buffer_load_ushort v{XS+r}, v82, s[48:51], 0 offen offset:{(r%4)*896}")
        if r % 4 == 3 and r < 15: a(f"v_add_u32 v82, {4*896}, v82")
    srd(a, 52, S_DSK, 896)
    a("v_lshlrev_b32 v83, 1, v81")
    a("buffer_load_ushort v3, v83, s[52:55], 0 offen")
    a("v_lshlrev_b32 v83, 2, v80")
    a(f"s_mov_b32 s35, {WS_G}")
    for q in range(4):
        a(f"buffer_load_dwordx4 {v(GT+4*q,4)}, v83, s[{WSR}:{WSR+3}], s35 offen offset:{16*q}{SC1}")

    a(f"s_setprio {os.environ.get('YP2', '2')}")
    bar()
    def wo_dma(t1, t2, z):
        srd(a, TR, S_WO, WBYTES)
        a(f"v_lshrrev_b32 v{t1}, 3, v0")
        a(f"v_mul_u32_u24 v{t1}, 896, v{t1}")
        a(f"v_and_b32 v{t2}, 7, v0")
        a(f"v_lshl_add_u32 v{t1}, v{t2}, 4, v{t1}")
        a(f"s_mul_i32 s32, s{BW}, {112*896}")
        a(f"s_lshl_b32 s3, s{J2}, 7")
        a("s_add_u32 s32, s32, s3")
        a(f"s_mul_i32 s34, s{BW}, 14336")
        a("s_mov_b32 m0, s34")
        a("s_mov_b32 s36, 14")
        a.label(P + "_wodma")
        a("s_sub_u32 s36, s36, 1")
        a(f"buffer_load_dwordx4 v{t1}, s[{TR}:{TR+3}], s32 offen lds")
        a("s_add_u32 s32, s32, 7168")
        a("s_add_u32 m0, m0, 1024")
        a("s_cmp_lg_u32 s36, 0")
        a(f"s_cbranch_scc1 {P}_wodma")
        a(f"v_mov_b32 v{z}, 0")
        a(f"v_mov_b32 v{z+1}, 0")
        a(f"v_lshlrev_b32 v{t2}, 3, v0")
        a(f"ds_write_b64 v{t2}, v[{z}:{z+1}] offset:57344")
    t1 = 75
    if "wolate" not in X: wo_dma(75, 76, 80)
    a(f"v_mov_b32 v4, {L_CNT}")
    lds_wait(a, C_TRD, 8, 4, 5, P + "_trd")
    a(f"s_lshl_b32 s3, s{BW}, 12")
    a(f"s_add_u32 s3, s3, {A_OP}")
    a(f"v_add_u32 v{t1}, s3, v1")
    for t in range(4):
        for q in range(4):
            a(f"ds_write_b128 v{t1}, {v(ACC+16*t+4*q,4)} offset:{t*16384+q*1024}")
    bar()
    a(f"s_lshl_b32 s3, s{BW}, 14")
    a(f"s_add_u32 s3, s3, {A_OP}")
    a(f"v_add_u32 v{t1}, s3, v1")
    for src in range(3):
        for q in range(4):
            a(f"ds_read_b128 {v(88+16*src+4*q,4)}, v{t1} offset:{src*4096+q*1024}")
    YT = 8
    for q in range(4):
        a(f"ds_read_b128 {v(YT+4*q,4)}, v{t1} offset:{3*4096+q*1024}")
        if q == 2: a("s_waitcnt lgkmcnt(4)")
    a("s_waitcnt lgkmcnt(0)")
    VT_, VD_, VO_, t1, t2, t3, t4, t5 = 40, 41, 42, 43, 44, 45, 46, 47
    a("s_waitcnt vmcnt(0)" if "wolate" in X else "s_waitcnt vmcnt(14)")
    for r in range(16):
        a(f"v_add_f32 v{88+r}, v{88+r}, v{104+r}")
        a(f"v_add_f32 v{YT+r}, v{YT+r}, v{120+r}")
    a("v_lshlrev_b32 v3, 16, v3")
    for r in range(16):
        a(f"v_add_f32 v{YT+r}, v{YT+r}, v{88+r}")
        a(f"v_lshlrev_b32 v{XS+r}, 16, v{XS+r}")
        a(f"v_mul_f32 v{XS+r}, v{XS+r}, v3")
        a(f"v_fma_f32 v{YT+r}, 2.0, v{YT+r}, v{XS+r}")
        a(f"v_sub_f32 v{XS+r}, 1.0, v{GT+r}")
        a(f"v_mul_f32 v{YT+r}, v{YT+r}, v{XS+r}")
    a(f"s_lshl_b32 s3, s{RB}, 6")
    a("s_lshl_b32 s33, s38, 5")
    a("s_add_u32 s3, s3, s33")
    a(f"v_lshrrev_b32 v{VT_}, 5, v0")
    a(f"v_lshlrev_b32 v{VT_}, 4, v{VT_}")
    a(f"v_add_u32 v{VT_}, s3, v{VT_}")
    a(f"s_lshl_b32 s33, s{J2}, 6")
    a(f"s_and_b32 s35, s{BW}, 1")
    a("s_lshl_b32 s35, s35, 5")
    a("s_add_u32 s33, s33, s35")
    a(f"v_and_b32 v{VD_}, 31, v0")
    a(f"v_add_u32 v{VD_}, s33, v{VD_}")
    a(f"v_mul_u32_u24 v{VO_}, 1792, v{VT_}")
    a(f"v_lshl_add_u32 v{VO_}, v{VD_}, 2, v{VO_}")
    srd(a, 48, S_OUT, OUTBYTES)
    a("v_lshrrev_b32 v6, 5, v0")
    a("v_lshlrev_b32 v6, 2, v6")
    a("v_bfe_u32 v7, v0, 2, 2")
    a("v_add_u32 v6, v6, v7")
    a("v_lshlrev_b32 v6, 7, v6")
    a("v_and_b32 v7, 16, v0")
    a(f"v_and_b32 v{t1}, 3, v0")
    a(f"v_lshl_add_u32 v7, v{t1}, 2, v7")
    a("v_lshl_add_u32 v6, v7, 1, v6")
    a(f"s_and_b32 s3, s{BW}, 1")
    a(f"s_mul_i32 s3, s3, {8*28*128}")
    a("v_add_u32 v6, s3, v6")
    if "wolate" in X:
        a(f"v_mov_b32 v4, {L_CNT}")
        lds_wait(a, C_OCNT, 8, 4, 5, P + "_opub")
        wo_dma(48, 49, 50)
    a("s_waitcnt vmcnt(0)")
    a("s_setprio 3")
    pf.stamp(12)
    bar()
    a(f"v_lshlrev_b32 v{t4}, 2, v0")
    a(f"s_lshl_b32 s35, s{RB}, 7")
    a(f"s_add_u32 s35, s35, {FL_O}")
    a("s_mov_b64 s[58:59], 0xff")
    poll(a, P + "_pollO", t5, t4, 35, 58)
    pf.stamp(13)
    a(f"s_lshl_b32 s3, s{RB}, 1")
    a("s_add_u32 s3, s3, s38")
    a("s_lshl_b32 s3, s3, 15")
    a(f"s_and_b32 s33, s{BW}, 1")
    a("s_lshl_b32 s33, s33, 14")
    a("s_add_u32 s3, s3, s33")
    a(f"s_add_u32 s32, s3, {WS_OF}")
    OFR = 88
    for st_ in range(16):
        a(f"s_add_u32 s33, s32, {st_*1024}")
        a(f"buffer_load_dwordx4 {v(OFR+4*st_,4)}, v1, s[{WSR}:{WSR+3}], s33 offen{SC1}")
    PA_ = [56, 72]
    WB = [24, 32]
    def rdW(st_):
        hd, f = st_ >> 1, st_ & 1
        off = (28 * hd + 16 * f) * 128
        b = WB[st_ & 1]
        for ct in range(2):
            a(f"ds_read_b64_tr_b16 {v(b+4*ct,2)}, v6 offset:{off+ct*64}")
            a(f"ds_read_b64_tr_b16 {v(b+4*ct+2,2)}, v6 offset:{off+ct*64+1024}")
    rdW(0)
    for st_ in range(16):
        if st_ + 1 < 16: rdW(st_ + 1)
        a(f"s_waitcnt vmcnt({15-st_}) lgkmcnt({4 if st_ + 1 < 16 else 0})")
        for ct in range(2):
            c = "0" if st_ == 0 else v(PA_[ct], 16)
            a(f"{MF} {v(PA_[ct],16)}, {v(OFR+4*st_,4)}, {v(WB[st_&1]+4*ct,4)}, {c}")
    a(f"s_xor_b32 s3, s{BW}, 1")
    a("s_lshl_b32 s3, s3, 12")
    a("s_add_u32 s3, s3, 65536")
    a(f"v_add_u32 v{t1}, s3, v1")
    a(f"s_and_b32 s33, s{BW}, 1")
    a("s_nop 7")
    a("s_cmp_eq_u32 s33, 0")
    a(f"s_cbranch_scc0 {P}_send0")
    for q in range(4): a(f"ds_write_b128 v{t1}, {v(PA_[1]+4*q,4)} offset:{q*1024}")
    a(f"s_branch {P}_sent")
    a.label(P + "_send0")
    a("s_nop 1")
    for q in range(4): a(f"ds_write_b128 v{t1}, {v(PA_[0]+4*q,4)} offset:{q*1024}")
    a("s_nop 1")
    for r in range(16): a(f"v_mov_b32 v{PA_[0]+r}, v{PA_[1]+r}")
    a.label(P + "_sent")
    bar()
    a(f"s_lshl_b32 s3, s{BW}, 12")
    a("s_add_u32 s3, s3, 65536")
    a(f"v_add_u32 v{t1}, s3, v1")
    for q in range(4): a(f"ds_read_b128 {v(88+4*q,4)}, v{t1} offset:{q*1024}")
    a("s_waitcnt lgkmcnt(0)")
    for r in range(16):
        a(f"v_add_f32 v{88+r}, v{88+r}, v{PA_[0]+r}")
        a(f"v_fma_f32 v{88+r}, v{GT+r}, v{88+r}, v{YT+r}")
    for r in range(16):
        a(f"buffer_store_dword v{88+r}, v{VO_}, s[48:51], 0 offen offset:{(r%2)*1792}{os.environ.get('OST', '')}")
        if r % 2 == 1 and r < 15: a(f"v_add_u32 v{VO_}, {2*1792}, v{VO_}")
    pf.stamp(14)
    a(f"s_branch {P}_end")
    a.label(P + "_skip")
    if os.environ.get("S3", "b") in ("b", "u", "late", "wo"): stage3("b")
    a(f"v_mov_b32 v54, {L_CNT}")
    a("v_mov_b32 v55, 1")
    a("s_mov_b64 exec, 1")
    a(f"ds_add_u32 v54, v55 offset:{C_HCNT}")
    a("s_mov_b64 exec, -1")
    a.label(P + "_end")

def lds_wait(a, coff, target, vaddr, vtmp, lab, sleep=1):
    a.label(lab)
    a(f"ds_read_b32 v{vtmp}, v{vaddr} offset:{coff}")
    a("s_waitcnt lgkmcnt(0)")
    a(f"v_readfirstlane_b32 s3, v{vtmp}")
    a(f"s_cmp_ge_u32 s3, {target}")
    a(f"s_cbranch_scc1 {lab}_ok")
    a(f"s_sleep {sleep}")
    a(f"s_sub_u32 s{SPIN}, s{SPIN}, 1")
    a(f"s_cbranch_scc0 {lab}")
    a(f"s_mov_b32 s{SPIN}, 0")
    a.label(lab + "_ok")

def lds_arrive(a, coff, vaddr, vtmp):
    a(f"v_mov_b32 v{vaddr}, {L_CNT}")
    a(f"v_mov_b32 v{vtmp}, 1")
    a("s_mov_b64 exec, 1")
    a(f"ds_add_u32 v{vaddr}, v{vtmp} offset:{coff}")
    a("s_mov_b64 exec, -1")

def dma_loop(a, lab, vaddr, n, dsrc, dlds):
    a("s_mov_b32 s36, %d" % n)
    a.label(lab)
    a("s_sub_u32 s36, s36, 1")
    a(f"buffer_load_dwordx4 v{vaddr}, s[{TR}:{TR+3}], s32 offen lds")
    a(f"s_add_u32 s32, s32, {dsrc}")
    a(f"s_add_u32 m0, m0, {dlds}")
    a("s_cmp_lg_u32 s36, 0")
    a(f"s_cbranch_scc1 {lab}")

def q_loop(a, acc, X4, W4, vxe, vxo, vw):
    def rd(j):
        k = j & 3
        a(f"ds_read_b128 {v(X4+4*k,4)}, v{vxo if j & 1 else vxe} offset:{(j>>1)*4096}")
        a(f"ds_read_b64_tr_b16 {v(W4+4*k,2)}, v{vw} offset:{j*2048}")
        a(f"ds_read_b64_tr_b16 {v(W4+4*k+2,2)}, v{vw} offset:{j*2048+512}")
    for j in range(4): rd(j)
    for j in range(28):
        left = min(3, 27 - j)
        a(f"s_waitcnt lgkmcnt({3*left})")
        c = "0" if j == 0 else v(acc, 16)
        a(f"{MF} {v(acc,16)}, {v(W4+4*(j&3),4)}, {v(X4+4*(j&3),4)}, {c}")
        if j + 4 < 28: rd(j + 4)

def gen_fused(a):
    name = NAME + "_kernel"
    a(f".globl {name}")
    a(".p2align 8")
    a(f".type {name},@function")
    a.label(name)
    END = "L_end"
    a("s_cmp_ge_u32 s2, 256")
    a(f"s_cbranch_scc1 {END}")
    a("s_load_dwordx16 s[64:79], s[0:1], 0")
    a("s_load_dwordx16 s[80:95], s[0:1], 64")
    a("s_load_dwordx4 s[96:99], s[0:1], 128")
    if "earlycode" in X:
        a("s_getpc_b64 s[56:57]")
        a.label("p0_pc0")
        a("v_lshlrev_b32 v148, 7, v0")
        a("s_mov_b32 s3, L_end-p0_pc0")
        a("v_min_u32 v148, s3, v148")
        a("global_load_dword v149, v148, s[56:57]")
    a("v_lshrrev_b32 v2, 6, v0")
    a("v_and_b32 v0, 63, v0")
    a(f"v_readfirstlane_b32 s{WV}, v2")
    a(f"v_mov_b32 v4, {L_CNT}")
    a("v_mov_b32 v5, 0")
    a("v_lshl_add_u32 v4, v0, 2, v4")
    a("ds_write_b32 v4, v5")
    a(f"s_and_b32 s{RB}, s2, 7")
    a(f"s_lshl_b32 s{RB}, s{RB}, 2")
    a(f"s_lshr_b32 s{J2}, s2, 3")
    a(f"s_and_b32 s3, s{J2}, 3")
    a(f"s_add_u32 s{RB}, s{RB}, s3")
    a(f"s_lshr_b32 s{J2}, s{J2}, 2")
    a("v_lshlrev_b32 v1, 4, v0")
    a(f"s_mov_b32 s{SPIN}, 0x100000")
    a(f"s_sub_u32 s{BW}, s{WV}, 8")
    pfA = Prof(a, 167)
    xtile_lane_off(a, 3, 0, 4, 5)
    a("s_waitcnt lgkmcnt(0)")
    srd(a, WSR, S_WS, WS_SIZE)
    if PROF: a("v_mov_b32 v167, 0")
    pfA.stamp(0)
    if PROF:
        a("s_getreg_b32 s60, hwreg(HW_REG_XCC_ID)")
        a("v_writelane_b32 v167, s60, 20")
        a("s_getreg_b32 s60, hwreg(HW_REG_HW_ID)")
        a("v_writelane_b32 v167, s60, 21")
    a(f"s_cmp_lt_u32 s{WV}, 4")
    a("s_cselect_b64 s[46:47], -1, 0")
    a(f"s_cmp_eq_u32 s{J2}, 0")
    a(f"s_cselect_b32 s{TR}, s{S_WK}, s{S_WV}")
    a(f"s_cselect_b32 s{TR+1}, s{S_WK+1}, s{S_WV+1}")
    a(f"s_mov_b32 s{TR+2}, {WKBYTES}")
    a(f"s_mov_b32 s{TR+3}, 0x00020000")
    a(f"s_mul_i32 s32, s{BW}, 7168")
    a(f"s_add_u32 s34, s32, {L_WKV}")
    a("s_mov_b32 s33, 1024")
    a("s_mov_b32 s35, 1024")
    a(f"s_cmp_lt_u32 s{J2}, 2")
    a("s_cselect_b32 s36, 7, 0")
    a(f"s_cmp_ge_u32 s{WV}, 8")
    a("s_cselect_b32 s36, s36, 0")
    a("v_cndmask_b32 v3, v1, v3, s[46:47]")
    a(f"s_mul_i32 s40, s{RB}, {64*896}")
    a(f"s_lshr_b32 s3, s{WV}, 1")
    a(f"s_mul_i32 s3, s3, {32*896}")
    a("s_add_u32 s40, s40, s3")
    a(f"s_and_b32 s3, s{WV}, 1")
    a(f"s_mul_i32 s3, s3, {8*896}")
    a("s_add_u32 s40, s40, s3")
    a(f"s_lshl_b32 s41, s{WV}, 10")
    a(f"s_cmp_lt_u32 s{WV}, 4")
    a(f"s_cselect_b32 s{TR}, s{S_X}, s{TR}")
    a(f"s_cselect_b32 s{TR+1}, s{S_X+1}, s{TR+1}")
    a(f"s_cselect_b32 s{TR+2}, {XBYTES}, s{TR+2}")
    a("s_cselect_b32 s32, s40, s32")
    a("s_cselect_b32 s34, s41, s34")
    a("s_cselect_b32 s33, 64, s33")
    a("s_cselect_b32 s35, 4096, s35")
    a("s_cselect_b32 s36, 14, s36")
    a("s_mov_b32 m0, s34")
    a("s_cmp_eq_u32 s36, 0")
    a("s_cbranch_scc1 p0_first_done")
    a.label("p0_first")
    a("s_sub_u32 s36, s36, 1")
    a(f"buffer_load_dwordx4 v3, s[{TR}:{TR+3}], s32 offen lds")
    a("s_add_u32 s32, s32, s33")
    a("s_add_u32 m0, m0, s35")
    a("s_cmp_lg_u32 s36, 0")
    a("s_cbranch_scc1 p0_first")
    a.label("p0_first_done")
    a(f"s_cmp_ge_u32 s{WV}, 8")
    a("s_cbranch_scc1 p0_bgw")
    a(f"s_cmp_ge_u32 s{WV}, 4")
    a("s_cbranch_scc1 p0_kvw")
    a("s_barrier")
    pfA.stamp(1)
    xfrag_addr(a, 6, 0, 4)
    tr_rowcol(a, 12, 13, 0, 4)
    a(f"s_lshr_b32 s38, s{WV}, 1")
    a(f"s_and_b32 s39, s{WV}, 1")
    a("s_lshl_b32 s3, s38, 11")
    a("v_add_u32 v6, s3, v6")
    a("v_xor_b32 v7, 32, v6")
    a("v_lshlrev_b32 v10, 7, v12")
    a("v_lshl_add_u32 v10, v13, 1, v10")
    a("s_mul_i32 s3, s39, 56")
    a(f"s_add_u32 s3, s3, {L_WQ}")
    a("v_add_u32 v10, s3, v10")
    a("s_waitcnt vmcnt(0)")
    lds_arrive(a, C_XR, 4, 5)
    pfA.stamp(2)
    a("s_waitcnt lgkmcnt(0)")
    a("s_barrier")
    pfA.stamp(3)
    q_loop(a, 16, 32, 48, 6, 7, 10)
    a(f"s_mov_b32 s42, {hex(QSCALE)}")
    a(f"s_lshl_b32 s3, s{WV}, 11")
    a(f"s_add_u32 s3, s3, {L_QX}")
    a("v_add_u32 v12, s3, v1")
    a("s_nop 7")
    a("s_nop 0")
    for i in range(16): a(f"v_mul_f32 v{16+i}, s42, v{16+i}")
    for i in range(8): a(f"v_cvt_pk_bf16_f32 v{32+i}, v{16+2*i}, v{17+2*i}")
    a("s_mov_b32 exec_lo, 0")
    a("v_mov_b32 v38, 0")
    a("v_mov_b32 v39, 0")
    a("s_mov_b32 exec_lo, -1")
    a("ds_write_b128 v12, v[32:35]")
    a("ds_write_b128 v12, v[36:39] offset:1024")
    a("s_branch p0_b1")
    a.label("p0_kvw")
    a(f"s_sub_u32 s39, s{WV}, 4")
    if "earlycode" not in X:
        a("s_getpc_b64 s[56:57]")
        a.label("p0_pc")
        a("s_lshl_b32 s3, s39, 13")
        a("v_lshlrev_b32 v150, 7, v0")
        a("v_add_u32 v150, s3, v150")
        a(f"s_sub_u32 s56, s56, p0_pc-{NAME}_kernel")
        a("s_subb_u32 s57, s57, 0")
        a(f"s_mov_b32 s3, L_end-{NAME}_kernel")
        a("v_min_u32 v150, s3, v150")
        a("global_load_dword v150, v150, s[56:57]")
    a("s_cmp_eq_u32 s39, 0")
    a("s_cbranch_scc0 p0_pf_out")
    a("v_lshlrev_b32 v151, 21, v0")
    a("s_mov_b64 exec, 7")
    a(f"buffer_load_dword v151, v151, s[{WSR}:{WSR+3}], 0 offen")
    a("s_mov_b64 exec, -1")
    a.label("p0_pf_out")
    a("s_cmp_eq_u32 s39, 1")
    a("s_cbranch_scc0 p0_pf_done")
    srd(a, 48, S_OUT, OUTBYTES)
    a("v_mul_u32_u24 v151, 0x1c0000, v0")
    a("s_mov_b64 exec, 7")
    a("buffer_load_dword v151, v151, s[48:51], 0 offen")
    a("s_mov_b64 exec, -1")
    if os.environ.get("S3") == "mall":
        a("s_cmp_eq_u32 s39, 3")
        a("s_cbranch_scc0 p0_pf_done")
        a("v_lshlrev_b32 v149, 7, v0")
        a(f"s_mul_i32 s3, s2, {13*128}")
        a(f"s_mov_b32 m0, {L_JUNK}")
        a("s_mov_b64 exec, 0x1fff")
        for sp in (S_CRE, S_CIM, S_WO):
            srd(a, 48, sp, WBYTES)
            a("buffer_load_dword v149, s[48:51], s3 offen lds")
        a("s_mov_b64 exec, -1")
    a.label("p0_pf_done")
    a("s_barrier")
    a(f"s_cmp_ge_u32 s{J2}, 3")
    a("s_cbranch_scc1 p0_kv_none")
    a("s_lshr_b32 s38, s39, 1")
    a("s_and_b32 s39, s39, 1")
    a(f"s_mov_b32 s15, {1 if 'dry' in X else 0}")
    a("s_setprio 3")
    a.label("p0_kv_setup")
    a(f"s_mov_b32 s8, s{WSR}")
    a(f"s_mov_b32 s9, s{WSR+1}")
    a("s_cmp_eq_u32 s15, 0")
    a(f"s_cselect_b32 s10, {WS_SIZE}, 0")
    a("s_mov_b32 s11, 0x00020000")
    xfrag_addr(a, 6, 0, 4)
    tr_rowcol(a, 12, 13, 0, 4)
    a("s_lshl_b32 s3, s38, 11")
    a("s_mul_i32 s41, s39, 28672")
    a("s_add_u32 s3, s3, s41")
    a("v_add_u32 v6, s3, v6")
    a("v_xor_b32 v7, 32, v6")
    a("s_mul_i32 s40, s39, 14")
    a(f"s_cmp_eq_u32 s{J2}, 2")
    a("s_cbranch_scc1 p0_kv_gaddr")
    a("v_mul_u32_u24 v10, 56, v12")
    a("v_lshl_add_u32 v10, v13, 1, v10")
    a(f"s_mul_i32 s3, s40, {16*56}")
    a(f"s_add_u32 s3, s3, {L_WKV}")
    a("v_add_u32 v10, s3, v10")
    a("v_add_u32 v11, 224, v10")
    a(f"s_mov_b32 s42, {16*56}")
    a("s_branch p0_kv_addr_done")
    a.label("p0_kv_gaddr")
    a("v_lshlrev_b32 v10, 3, v12")
    a("s_lshl_b32 s3, s40, 7")
    a(f"s_add_u32 s3, s3, {L_WKV}")
    a("v_add_u32 v10, s3, v10")
    a("v_add_u32 v11, 32, v10")
    a("s_mov_b32 s42, 128")
    a.label("p0_kv_addr_done")
    a(f"v_mov_b32 v4, {L_CNT}")
    a("s_cmp_lg_u32 s15, 0")
    a("s_cbranch_scc1 p0_xr_ok")
    lds_wait(a, C_XR, 8, 4, 5, "p0_xr")
    pfA.stamp(2)
    def kv_rd(i):
        a(f"ds_read_b128 {v(32+4*i,4)}, v{6+(i&1)} offset:{(i>>1)*4096}")
        a(f"ds_read_b64_tr_b16 {v(88+4*i,2)}, v10")
        a(f"ds_read_b64_tr_b16 {v(88+4*i+2,2)}, v11")
        if i < 13:
            a("v_add_u32 v10, s42, v10")
            a("v_add_u32 v11, s42, v11")
    def kv_mm(swap, tag):
        for i in range(4): kv_rd(i)
        for i in range(14):
            a(f"s_waitcnt lgkmcnt({3*min(3, 13-i)})")
            A, B = (32+4*i, 88+4*i) if swap else (88+4*i, 32+4*i)
            a(f"{MF} v[16:31], {v(A,4)}, {v(B,4)}, {'0' if i == 0 else 'v[16:31]'}")
            if i + 4 < 14: kv_rd(i + 4)
    a(f"s_cmp_ge_u32 s{J2}, 1")
    a("s_cbranch_scc1 p0_kv_swap")
    kv_mm(False, "k")
    a("s_branch p0_kv_mm_done")
    a.label("p0_kv_swap")
    kv_mm(True, "v")
    a.label("p0_kv_mm_done")
    pfA.stamp(22)
    a("s_lshl_b32 s3, s38, 12")
    a(f"s_add_u32 s3, s3, {L_QX}")
    a("v_add_u32 v12, s3, v1")
    a("s_nop 7")
    a("s_nop 0")
    a("s_cmp_lg_u32 s15, 0")
    a("s_cbranch_scc1 p0_kv_root")
    a("s_cmp_eq_u32 s39, 0")
    a("s_cbranch_scc1 p0_kv_root")
    for q in range(4): a(f"ds_write_b128 v12, {v(16+4*q,4)} offset:{q*1024}")
    a("s_waitcnt lgkmcnt(0)")
    a("s_lshl_b32 s3, s38, 2")
    a(f"v_mov_b32 v4, {L_CNT}")
    a("v_add_u32 v4, s3, v4")
    a("v_mov_b32 v5, 1")
    a("s_mov_b64 exec, 1")
    a(f"ds_add_u32 v4, v5 offset:{C_KVR}")
    a("s_mov_b64 exec, -1")
    a("s_branch p0_kv_none")
    a.label("p0_kv_root")
    a("s_lshl_b32 s3, s38, 2")
    a(f"v_mov_b32 v4, {L_CNT}")
    a("v_add_u32 v4, s3, v4")
    a("s_cmp_lg_u32 s15, 0")
    a("s_cbranch_scc1 p0_kvr_ok")
    lds_wait(a, C_KVR, 1, 4, 5, "p0_kvr")
    pfA.stamp(23)
    for i in range(4): a(f"ds_read_b128 {v(32+4*i,4)}, v12 offset:{i*1024}")
    a("s_waitcnt lgkmcnt(0)")
    for r in range(16): a(f"v_add_f32 v{16+r}, v{16+r}, v{32+r}")
    a(f"s_lshl_b32 s43, s{RB}, 1")
    a("s_add_u32 s43, s43, s38")
    a(f"s_cmp_eq_u32 s{J2}, 2")
    a("s_cbranch_scc1 p0_gate_epi")
    for i in range(8): a(f"v_cvt_pk_bf16_f32 v{32+i}, v{16+2*i}, v{17+2*i}")
    a("s_lshl_b32 s44, s43, 12")
    a(f"s_add_u32 s44, s44, {WS_KV}")
    a(f"s_cmp_eq_u32 s{J2}, 1")
    a("s_cbranch_scc1 p0_v_epi")
    a("s_mov_b32 exec_lo, 0")
    a("v_mov_b32 v38, 0x3f803f80")
    a("v_mov_b32 v39, 0x00003f80")
    a("s_mov_b32 exec_lo, -1")
    a(f"buffer_store_dwordx4 v[32:35], v1, s[8:11], s44 offen{SC1}")
    a(f"buffer_store_dwordx4 v[36:39], v1, s[8:11], s44 offen offset:1024{SC1}")
    a("s_branch p0_kv_arrive")
    a.label("p0_v_epi")
    a("v_max3_f32 v14, |v16|, |v17|, |v18|")
    for j in range(3, 15, 2): a(f"v_max3_f32 v14, v14, |v{16+j}|, |v{17+j}|")
    a("v_max_f32 v14, v14, |v31|")
    a("v_and_b32 v13, 31, v0")
    a("v_cmp_gt_u32 s[46:47], 28, v13")
    a(f"v_cmp_lt_f32 vcc, {hex(VMAX)}, v14")
    a("s_and_b64 vcc, vcc, s[46:47]")
    a("s_cbranch_vccz p0_v_ok")
    a("s_cmp_lg_u32 s15, 0")
    a("s_cbranch_scc1 p0_v_ok")
    srd(a, 48, S_DBG, 256)
    a("v_mov_b32 v14, 1")
    a(f"v_mov_b32 v15, {D_BAD}")
    a("s_mov_b64 exec, 1")
    a(f"buffer_store_dword v14, v15, s[48:51], 0 offen{SC1}")
    a("s_mov_b64 exec, -1")
    a.label("p0_v_ok")
    a("v_and_b32 v13, 31, v0")
    a("v_cmp_eq_u32 vcc, 28, v13")
    a("v_mov_b32 v14, 0x3f803f80")
    a("s_nop 0")
    a("v_cndmask_b32 v14, 0, v14, vcc")
    a("v_cmp_lt_u32 vcc, 27, v13")
    a("s_nop 1")
    for i in range(8): a(f"v_cndmask_b32 v{32+i}, v{32+i}, v14, vcc")
    a(f"buffer_store_dwordx4 v[32:35], v1, s[8:11], s44 offen offset:2048{SC1}")
    a(f"buffer_store_dwordx4 v[36:39], v1, s[8:11], s44 offen offset:3072{SC1}")
    a("s_branch p0_kv_arrive")
    a.label("p0_gate_epi")
    a(f"s_mov_b32 s42, {hex(LOG2E)}")
    for i in range(16): a(f"v_mul_f32 v{16+i}, s42, v{16+i}")
    for i in range(16): a(f"v_exp_f32 v{16+i}, -v{16+i}")
    for i in range(16): a(f"v_add_f32 v{16+i}, 1.0, v{16+i}")
    for i in range(16): a(f"v_rcp_f32 v{16+i}, v{16+i}")
    a("v_lshrrev_b32 v13, 5, v0")
    a("v_lshlrev_b32 v13, 6, v13")
    a("s_lshl_b32 s44, s43, 7")
    a(f"s_add_u32 s44, s44, {WS_G}")
    a("v_and_b32 v14, 31, v0")
    a("v_cmp_eq_u32 vcc, 0, v14")
    a("s_and_saveexec_b64 s[46:47], vcc")
    for q in range(4):
        a(f"buffer_store_dwordx4 {v(16+4*q,4)}, v13, s[8:11], s44 offen offset:{16*q}{SC1}")
    a("s_mov_b64 exec, -1")
    a.label("p0_kv_arrive")
    a("s_cmp_eq_u32 s15, 0")
    a("s_cbranch_scc1 p0_kv_real")
    a("s_mov_b32 s15, 0")
    a("s_branch p0_kv_setup")
    a.label("p0_kv_real")
    pfA.stamp(10)
    a("s_mov_b32 s16, 1")
    a("s_branch p0_kv_b0")
    a.label("p0_kv_none")
    a("s_mov_b32 s16, 0")
    a.label("p0_kv_b0")
    a("s_setprio 0")
    a("s_waitcnt lgkmcnt(0)")
    a("s_barrier")
    pfA.stamp(3)
    a("s_branch p0_b1")
    a.label("p0_bgw")
    a(f"s_cmp_eq_u32 s{WV}, 8")
    a("s_cbranch_scc0 p0_t9")
    srd(a, 48, S_X, XBYTES)
    a("s_and_b32 s3, s2, 7")
    a(f"s_mul_i32 s3, s3, {256*896}")
    a("s_lshr_b32 s46, s2, 3")
    a("s_mul_i32 s46, s46, 7168")
    a("s_add_u32 s3, s3, s46")
    a("v_lshlrev_b32 v50, 7, v0")
    a("s_mov_b32 exec_hi, 0xffffff")
    a("buffer_load_dword v52, v50, s[48:51], s3 offen")
    a("s_mov_b64 exec, -1")
    a("s_branch p0_t_done")
    a.label("p0_t9")
    a(f"s_cmp_eq_u32 s{WV}, 9")
    a("s_cbranch_scc0 p0_t10")
    touch_matrix(a, S_WQ, 52, 50)
    a("s_branch p0_t_done")
    a.label("p0_t10")
    a(f"s_cmp_eq_u32 s{WV}, 10")
    a("s_cbranch_scc0 p0_t_done")
    a("s_lshr_b32 s3, s2, 3")
    a(f"s_mul_i32 s3, s3, {7*128}")
    a("v_lshlrev_b32 v50, 7, v0")
    a("s_mov_b64 exec, 0x7f")
    srd(a, 48, S_WK, WKBYTES)
    a("buffer_load_dword v52, v50, s[48:51], s3 offen")
    srd(a, 48, S_WV, WKBYTES)
    a("buffer_load_dword v53, v50, s[48:51], s3 offen")
    a("s_mov_b64 exec, -1")
    a.label("p0_t_done")
    a(f"s_cmp_eq_u32 s{WV}, 11")
    a("s_cbranch_scc0 p0_nononce")
    a("s_cmp_eq_u32 s2, 0")
    a("s_cbranch_scc0 p0_nononce")
    srd(a, 48, S_DBG, 256)
    a("v_mov_b32 v7, 0")
    a("s_memrealtime s[60:61]")
    a("s_waitcnt lgkmcnt(0)")
    a("s_and_b32 s60, s60, 0xfffffffc")
    a("s_or_b32 s60, s60, 1")
    a("v_mov_b32 v6, s60")
    a("s_mov_b64 exec, 1")
    a(f"buffer_store_dword v6, v7, s[48:51], 0 offen offset:{D_NONCE}{SC1}")
    a("s_mov_b64 exec, -1")
    a.label("p0_nononce")
    a(f"s_cmp_eq_u32 s{J2}, 2")
    a("s_cbranch_scc0 p0_wkv_done")
    a(f"s_cmp_eq_u32 s{WV}, 8")
    a("s_cbranch_scc0 p0_wkv_done")
    srd(a, TR, S_GW, 896)
    a("v_lshlrev_b32 v3, 1, v0")
    for i in range(7):
        a(f"buffer_load_ushort v{10+i}, v3, s[{TR}:{TR+3}], 0 offen offset:{i*128}")
    a("v_lshlrev_b32 v4, 3, v0")
    a(f"v_add_u32 v4, {L_WKV}, v4")
    a("s_waitcnt vmcnt(0)")
    for i in range(7):
        a(f"v_lshl_or_b32 v{20+2*i}, v{10+i}, 16, v{10+i}")
        a(f"v_mov_b32 v{21+2*i}, v{20+2*i}")
        a(f"ds_write_b64 v4, {v(20+2*i,2)} offset:{i*512}")
    a.label("p0_wkv_done")
    a(f"s_lshl_b32 s37, s{J2}, 1")
    a(f"s_and_b32 s3, s{BW}, 1")
    a("s_add_u32 s37, s37, s3")
    a("v_and_b32 v4, 31, v0")
    a("s_lshl_b32 s3, s37, 6")
    a("v_lshl_add_u32 v4, v4, 1, s3")
    srd(a, 40, S_LRE, 896); a("buffer_load_ushort v8, v4, s[40:43], 0 offen")
    srd(a, 44, S_LIM, 896); a("buffer_load_ushort v9, v4, s[44:47], 0 offen")
    srd(a, 52, S_LDT, 896); a("buffer_load_ushort v10, v4, s[52:55], 0 offen")
    a("s_barrier")
    a("s_waitcnt vmcnt(3) lgkmcnt(0)")
    lds_arrive(a, C_XR, 4, 5)
    srd(a, TR, S_WQ, WBYTES)
    a("v_lshrrev_b32 v3, 3, v0")
    a("v_mul_u32_u24 v3, 896, v3")
    a("v_and_b32 v4, 7, v0")
    a("v_lshl_add_u32 v3, v4, 4, v3")
    a(f"s_mul_i32 s32, s{BW}, {112*896}")
    a(f"s_mul_i32 s33, s{J2}, 112")
    a("s_add_u32 s32, s32, s33")
    a(f"s_mul_i32 s34, s{BW}, 14336")
    a(f"s_add_u32 s34, s34, {L_WQ}")
    a("s_mov_b32 m0, s34")
    dma_loop(a, "p0_qdma", 3, 14, 7168, 1024)
    a(f"s_cmp_gt_u32 s{WV}, 9")
    a("s_cbranch_scc1 p0_nob")
    a(f"s_cmp_eq_u32 s{WV}, 8")
    a(f"s_cselect_b32 s56, s{S_BRE}, s{S_BIM}")
    a(f"s_cselect_b32 s57, s{S_BRE+1}, s{S_BIM+1}")
    touch_matrix(a, 56, 52, 50)
    a("s_mov_b32 s17, 1")
    a("s_waitcnt vmcnt(16)")
    a("s_branch p0_nob2")
    a.label("p0_nob")
    a("s_mov_b32 s17, 0")
    a("s_waitcnt vmcnt(14)")
    a.label("p0_nob2")
    a(f"v_mov_b32 v4, {L_CNT}")
    lds_wait(a, C_XR, 8, 4, 5, "p0_xr2")
    xfrag_addr(a, 6, 0, 4)
    a(f"s_lshr_b32 s38, s{BW}, 1")
    a("s_lshl_b32 s3, s38, 11")
    a("v_add_u32 v6, s3, v6")
    a("v_xor_b32 v7, 32, v6")
    for j in range(28):
        a(f"ds_read_b128 {v(56+4*j,4)}, v{6 + (j&1)} offset:{(j>>1)*4096}")
        if j in (11, 21): a("s_waitcnt lgkmcnt(2)")
    a("v_lshlrev_b32 v8, 16, v8")
    a("v_lshlrev_b32 v9, 16, v9")
    a("v_lshlrev_b32 v10, 16, v10")
    a(f"v_mul_f32 v10, {hex(LOG2E)}, v10")
    a("v_exp_f32 v10, v10")
    a("s_nop 0")
    a("v_cvt_pk_bf16_f32 v10, v10, v10")
    a("v_lshlrev_b32 v10, 16, v10")
    a("v_mul_f32 v11, v10, v8")
    a("v_mul_f32 v12, v10, v9")
    a(f"v_mul_f32 v11, {hex(LOG2E)}, v11")
    a(f"v_mul_f32 v12, {hex(INV2PI)}, v12")
    a("v_exp_f32 v13, v11")
    a("v_fract_f32 v14, v12")
    a("s_nop 0")
    a("v_cos_f32 v2, v14")
    a("v_sin_f32 v3, v14")
    a("s_nop 0")
    a("v_mul_f32 v2, v2, v13")
    a("v_mul_f32 v3, v3, v13")
    a("v_add_f32 v13, -1.0, v2")
    a("v_mul_f32 v14, v8, v8")
    a("v_fma_f32 v14, v9, v9, v14")
    a("v_rcp_f32 v14, v14")
    a("v_mul_f32 v15, v13, v8")
    a("v_fma_f32 v15, v3, v9, v15")
    a("v_mul_f32 v16, v3, v8")
    a("v_fma_f32 v16, -v13, v9, v16")
    a("v_mul_f32 v4, v15, v14")
    a("v_mul_f32 v5, v16, v14")
    a("s_cmp_eq_u32 s17, 0")
    a("s_cbranch_scc1 p0_bgw0")
    a("s_waitcnt vmcnt(2) lgkmcnt(0)")
    a("s_branch p0_bgw1")
    a.label("p0_bgw0")
    a("s_waitcnt vmcnt(0) lgkmcnt(0)")
    a.label("p0_bgw1")
    a("s_barrier")
    a.label("p0_b1")
    a("s_waitcnt lgkmcnt(0)")
    if PROF:
        a(f"s_cmp_ge_u32 s{WV}, 8")
        a("s_cbranch_scc1 p0_b1_bgst")
        pfA.stamp(9)
        a("s_branch p0_b1_go")
        a.label("p0_b1_bgst")
        BgProf(a).stamp(4)
        a.label("p0_b1_go")
    a("s_barrier")
    a(f"s_cmp_ge_u32 s{WV}, 8")
    a("s_cbranch_scc1 p1_bg")
    a(f"s_cmp_lt_u32 s{WV}, 4")
    a("s_cbranch_scc1 p1_noarr")
    a("s_cmp_eq_u32 s16, 0")
    a("s_cbranch_scc1 p1_noarr")
    a(f"v_mov_b32 v14, {L_CNT}")
    a("v_mov_b32 v15, 1")
    a("s_waitcnt vmcnt(0)")
    pfA.stamp(11)
    a("s_mov_b64 exec, 1")
    a(f"s_or_b32 s3, s{RB}, s{J2}")
    a(f"s_cmp_eq_u32 s{WV}, 4")
    a("s_cselect_b32 s3, s3, 1")
    a("s_cmp_eq_u32 s3, 0")
    a("s_cbranch_scc0 p1_nok0")
    srd(a, 48, S_DBG, 256)
    a("v_mov_b32 v12, 1")
    a(f"v_mov_b32 v13, {D_K0}")
    a(f"buffer_store_dword v12, v13, s[48:51], 0 offen{SC1}")
    a.label("p1_nok0")
    a(f"ds_add_rtn_u32 v15, v14, v15 offset:{C_KVA}")
    a("s_waitcnt lgkmcnt(0)")
    a("v_readfirstlane_b32 s3, v15")
    a("s_cmp_eq_u32 s3, 1")
    a("s_cbranch_scc0 p1_arrdone")
    srd(a, 48, S_DBG, 256)
    a("v_mov_b32 v14, 1")
    a(f"s_cmp_eq_u32 s{J2}, 2")
    a(f"s_cselect_b32 s3, {D_GCNT}, {D_CNT}")
    a("v_mov_b32 v15, s3")
    a("buffer_atomic_add v14, v15, s[48:51], 0 offen sc0 sc1")
    if "kvfirst" in X:
        a(f"v_mov_b32 v12, {L_CNT}")
        a("v_mov_b32 v13, 1")
        a(f"ds_add_u32 v12, v13 offset:{C_KVI}")
    a("s_waitcnt vmcnt(0)")
    a("v_readfirstlane_b32 s3, v14")
    a(f"s_cmp_eq_u32 s{J2}, 2")
    a("s_cselect_b32 s46, 31, 63")
    a(f"s_mov_b32 s47, {D_GO}")
    a(f"s_cselect_b32 s47, {D_GOG}, s47")
    a("s_cmp_eq_u32 s3, s46")
    a("s_cbranch_scc0 p1_arrdone")
    a("v_mov_b32 v14, 1")
    a("v_mov_b32 v15, s47")
    a(f"buffer_store_dword v14, v15, s[48:51], 0 offen{SC1}")
    a.label("p1_arrdone")
    a("s_mov_b64 exec, -1")
    pfA.stamp(12)
    a.label("p1_noarr")
    if PROF: a("v_mov_b32 v0, v167")
    pf = Prof(a, 0)
    pf.stamp(4)
    gen_attention(a, pf)
    pf.flush(2)
    a(f"s_branch {END}")
    a.label("p1_bg")
    a(f"s_setprio {os.environ.get('BP', '3')}")
    gen_background(a, BgProf(a))
    a.label(END)
    a("s_endpgm")
    return name

class BgProf:
    def __init__(self, a): self.a = a; self.T = [54, 55]
    def stamp(self, slot):
        if not PROF or "noprofb" in X: return
        if "onlyb" in os.environ and str(slot) not in os.environ["onlyb"].split(","): return
        a = self.a
        a("s_memrealtime s[60:61]")
        a("s_lshl_b32 s62, s2, 4")
        a(f"s_add_u32 s62, s62, s{WV}")
        a("s_lshl_b32 s62, s62, 8")
        a(f"s_add_u32 s62, s62, {WS_PROF + 4*slot}")
        a("s_waitcnt vmcnt(0) lgkmcnt(0)")
        a("s_mov_b64 exec, 1")
        t0, t1 = self.T
        a(f"v_mov_b32 v{t0}, s60")
        a(f"v_mov_b32 v{t1}, 0")
        a(f"buffer_store_dword v{t0}, v{t1}, s[{WSR}:{WSR+3}], s62 offen")
        a("s_mov_b64 exec, -1")
        a("s_waitcnt vmcnt(0)")
    def flush(self): pass

def build():
    a = Asm()
    name = gen_fused(a)
    text = a.text()
    probs = check_hazards(text)
    ref = open("gated_mix__grouped_kv_mqa__ssm_conv_s5__prompt.s.ref").read().split("\n")
    pre = []
    for ln in ref:
        if not ln.startswith(";"): break
        if "Override launch" in ln or "grid=ceil" in ln or "@launch" in ln: continue
        pre.append(ln)
    head = "\n".join(pre) + "\n"
    head += f"; @launch grid=(256,1,1) block=(768,1,1) lds={LDS_TOTAL}\n"
    out = head + '.amdgcn_target "amdgcn-amd-amdhsa--gfx950"\n.text\n' + text
    out += f""".section .rodata,"a"
.p2align 6
.amdhsa_kernel {name}
  .amdhsa_next_free_vgpr 168
  .amdhsa_next_free_sgpr 102
  .amdhsa_accum_offset 168
  .amdhsa_group_segment_fixed_size 0
  .amdhsa_kernarg_size 144
  .amdhsa_user_sgpr_count 2
  .amdhsa_user_sgpr_kernarg_segment_ptr 1
  .amdhsa_system_sgpr_workgroup_id_x 1
.end_amdhsa_kernel
"""
    return out, probs

if __name__ == "__main__":
    out, probs = build()
    open(sys.argv[1], "w").write(out)
    print("wrote", sys.argv[1], "hazards:", len(probs))
```

```python
import sys, os, struct, math
from asmlib import Asm, v, s, check_hazards

NAME = "gated_mix__grouped_kv_mqa__ssm_conv_s5__prompt"
X = set(os.environ.get('XF', '').split(','))
PROF = "prof" in X
def f2u(x): return struct.unpack("<I", struct.pack("<f", x))[0]
QSCALE = f2u(math.log2(math.e) / math.sqrt(28.0))
LOG2E = f2u(math.log2(math.e))
INV2PI = f2u(1.0 / (2.0 * math.pi))
MF = "v_mfma_f32_32x32x16_bf16"
SC1 = " sc1"
POLLSLEEP = int(os.environ.get('PS', '1'))

WS_KV = 0x000000
WS_G  = 0x040000
WS_FL = 0x042000
FL_H  = WS_FL
FL_O  = WS_FL + 0x1000
WS_E  = 0x048000
D_CNT, D_GCNT, D_GO, D_BAD, D_K0, D_NONCE, D_GOG = 0, 64, 128, 132, 136, 140, 144
WS_OF = 0x080000
WS_HF = 0x280000
WS_PROF = 0x800000
WS_SIZE = 0x1000000
XBYTES = 2048 * 448 * 2
WBYTES = 448 * 448 * 2
WKBYTES = 448 * 28 * 2
OUTBYTES = 2048 * 448 * 4

S_X, S_WQ, S_WK, S_WV, S_WO = 64, 66, 68, 70, 72
S_LRE, S_LIM = 76, 78
S_BRE, S_BIM, S_CRE, S_CIM, S_LDT, S_DSK, S_GW, S_OUT = 80, 82, 84, 86, 88, 90, 92, 94
S_DBG, S_WS = 96, 98
RB, J2, WV, BW = 20, 21, 22, 23
WSR = 24
TR = 28
NONCE = 19
SPIN = 18

L_X = 0; L_WQ = 57344; L_WKV = 114688; L_GW = 143360
L_QX = 147456
L_CNT = 163584
C_ATT, C_BG, C_NONCE, C_BAD, C_UDONE, C_HCNT, C_OCNT, C_XR, C_KVR, C_KVA, C_TRD, C_LEND, C_BL, C_KVI = 0, 4, 8, 12, 16, 20, 24, 28, 32, 40, 44, 48, 52, 56
B_EX = 159744; B_HT = 90112
B_HT2 = 69632
L_C = 0
L_RED = 0
L_WO = 0
A_OP = 90112; A_LP = 155648
LDS_TOTAL = 163840

def srd(a, dst, src, nbytes):
    a(f"s_mov_b32 s{dst}, s{src}")
    a(f"s_mov_b32 s{dst+1}, s{src+1}")
    a(f"s_mov_b32 s{dst+2}, {hex(nbytes)}")
    a(f"s_mov_b32 s{dst+3}, 0x00020000")

class Prof:
    def __init__(self, a, vreg): self.a = a; self.v = vreg
    def stamp(self, slot):
        if not PROF or "noprofa" in X: return
        a = self.a
        a("s_memrealtime s[60:61]")
        a("s_memtime s[62:63]")
        a("s_waitcnt lgkmcnt(0)")
        a(f"v_writelane_b32 v{self.v}, s60, {slot}")
        a(f"v_writelane_b32 v{self.v}, s62, {slot+32}")
    def flush(self, vt):
        if not PROF: return
        a = self.a
        a("s_lshl_b32 s60, s2, 4")
        a(f"s_add_u32 s60, s60, s{WV}")
        a("s_lshl_b32 s60, s60, 8")
        a(f"s_add_u32 s60, s60, {WS_PROF}")
        a("s_mov_b64 exec, -1")
        a(f"v_mbcnt_lo_u32_b32 v{vt}, -1, 0")
        a(f"v_mbcnt_hi_u32_b32 v{vt}, -1, v{vt}")
        a(f"v_lshlrev_b32 v{vt}, 2, v{vt}")
        a(f"buffer_store_dword v{self.v}, v{vt}, s[{WSR}:{WSR+3}], s60 offen")
        a("s_waitcnt vmcnt(0)")

def xtile_lane_off(a, vd, vlane, vt0, vt1):
    a(f"v_lshrrev_b32 v{vt0}, 4, v{vlane}")
    a(f"v_and_b32 v{vt1}, 1, v{vt0}")
    a(f"v_lshlrev_b32 v{vt1}, 4, v{vt1}")
    a(f"v_lshrrev_b32 v{vd}, 5, v{vlane}")
    a(f"v_lshl_add_u32 v{vt1}, v{vd}, 2, v{vt1}")
    a(f"v_bfe_u32 v{vd}, v{vlane}, 2, 2")
    a(f"v_add_u32 v{vt1}, v{vt1}, v{vd}")
    a(f"v_mul_u32_u24 v{vt1}, 896, v{vt1}")
    a(f"v_and_b32 v{vd}, 3, v{vlane}")
    a(f"v_xor_b32 v{vd}, v{vd}, v{vt0}")
    a(f"v_lshl_add_u32 v{vd}, v{vd}, 4, v{vt1}")

def plain_lane_off(a, vd, vlane, vt0):
    a(f"v_lshrrev_b32 v{vt0}, 4, v{vlane}")
    a(f"v_and_b32 v{vd}, 3, v{vlane}")
    a(f"v_xor_b32 v{vd}, v{vd}, v{vt0}")
    a(f"v_lshlrev_b32 v{vd}, 4, v{vd}")
    a(f"v_lshrrev_b32 v{vt0}, 2, v{vlane}")
    a(f"v_mul_u32_u24 v{vt0}, 896, v{vt0}")
    a(f"v_add_u32 v{vd}, v{vd}, v{vt0}")

def xfrag_addr(a, vd, vlane, vt0):
    a(f"v_bfe_u32 v{vt0}, v{vlane}, 2, 2")
    a(f"v_lshrrev_b32 v{vd}, 5, v{vlane}")
    a(f"v_xor_b32 v{vt0}, v{vt0}, v{vd}")
    a(f"v_lshlrev_b32 v{vt0}, 4, v{vt0}")
    a(f"v_and_b32 v{vd}, 31, v{vlane}")
    a(f"v_lshl_add_u32 v{vd}, v{vd}, 6, v{vt0}")

def tr_rowcol(a, vrow, vcol, vlane, vt):
    a(f"v_lshrrev_b32 v{vrow}, 5, v{vlane}")
    a(f"v_lshlrev_b32 v{vrow}, 3, v{vrow}")
    a(f"v_bfe_u32 v{vt}, v{vlane}, 2, 2")
    a(f"v_add_u32 v{vrow}, v{vrow}, v{vt}")
    a(f"v_and_b32 v{vcol}, 16, v{vlane}")
    a(f"v_and_b32 v{vt}, 3, v{vlane}")
    a(f"v_lshl_add_u32 v{vcol}, v{vt}, 2, v{vcol}")

def proj_loop(a, swap, acc, xe, xo, we, wo_, vxe, vxo, vw1, vw2, s_wstep, s_cnt, lab):
    def rd(xr, wr, vx):
        a(f"ds_read_b128 {v(xr,4)}, v{vx}")
        a(f"ds_read_b64_tr_b16 {v(wr,2)}, v{vw1}")
        a(f"ds_read_b64_tr_b16 {v(wr+2,2)}, v{vw2}")
        a(f"v_add_u32 v{vx}, 0x1000, v{vx}")
        a(f"v_add_u32 v{vw1}, s{s_wstep}, v{vw1}")
        a(f"v_add_u32 v{vw2}, s{s_wstep}, v{vw2}")
    def mf(x, w):
        A, B = (x, w) if swap else (w, x)
        a(f"{MF} {v(acc,16)}, {v(A,4)}, {v(B,4)}, {v(acc,16)}")
    rd(xe, we, vxe); rd(xo, wo_, vxo)
    a(f"s_mov_b32 s{s_cnt}, 14")
    a.label(lab)
    a("s_waitcnt lgkmcnt(3)")
    mf(xe, we)
    rd(xe, we, vxe)
    a("s_waitcnt lgkmcnt(3)")
    mf(xo, wo_)
    rd(xo, wo_, vxo)
    a(f"s_sub_u32 s{s_cnt}, s{s_cnt}, 1")
    a(f"s_cmp_lg_u32 s{s_cnt}, 0")
    a(f"s_cbranch_scc1 {lab}")
    a("s_waitcnt lgkmcnt(0)")

def sw_barrier(a, coff, s_tgt, n, vaddr, vtmp, lab):
    a(f"s_add_u32 s{s_tgt}, s{s_tgt}, {n}")
    a(f"v_mov_b32 v{vtmp}, 1")
    a("s_waitcnt lgkmcnt(0)")
    a("s_mov_b64 exec, 1")
    a(f"ds_add_u32 v{vaddr}, v{vtmp} offset:{coff}")
    a("s_mov_b64 exec, -1")
    a.label(lab)
    a(f"ds_read_b32 v{vtmp}, v{vaddr} offset:{coff}")
    a("s_waitcnt lgkmcnt(0)")
    a(f"v_readfirstlane_b32 s3, v{vtmp}")
    a(f"s_cmp_ge_u32 s3, s{s_tgt}")
    a(f"s_cbranch_scc1 {lab}_ok")
    a("s_sleep 1")
    a(f"s_sub_u32 s{SPIN}, s{SPIN}, 1")
    a(f"s_cbranch_scc0 {lab}")
    a(f"s_mov_b32 s{SPIN}, 0")
    a.label(lab + "_ok")

def flag_store(a, soff_reg, vt0, vt1, val=None):
    a("s_mov_b64 exec, 1")
    a(f"v_mov_b32 v{vt0}, s{val if val is not None else NONCE}")
    a(f"v_mov_b32 v{vt1}, 0")
    a(f"buffer_store_dword v{vt0}, v{vt1}, s[{WSR}:{WSR+3}], s{soff_reg} offen{SC1}")
    a("s_mov_b64 exec, -1")

def arrive_flag(a, coff, n, soff_reg, vt0, vt1, lab):
    a(f"v_mov_b32 v{vt0}, {L_CNT}")
    a(f"v_mov_b32 v{vt1}, 1")
    a("s_waitcnt vmcnt(0)")
    a("s_mov_b64 exec, 1")
    a(f"ds_add_rtn_u32 v{vt1}, v{vt0}, v{vt1} offset:{coff}")
    a("s_waitcnt lgkmcnt(0)")
    a(f"v_readfirstlane_b32 s60, v{vt1}")
    a("s_mov_b64 exec, -1")
    a(f"s_cmp_eq_u32 s60, {n-1}")
    a(f"s_cbranch_scc0 {lab}")
    flag_store(a, soff_reg, vt0, vt1)
    a.label(lab)

def poll(a, lab, vdst, voff, soff_reg, mask_pair, sleep=None):
    sleep = POLLSLEEP if sleep is None else sleep
    a.label(lab)
    a(f"buffer_load_dword v{vdst}, v{voff}, s[{WSR}:{WSR+3}], s{soff_reg} offen{SC1}")
    a("s_waitcnt vmcnt(0)")
    a(f"v_cmp_ne_u32 vcc, s{NONCE}, v{vdst}")
    a(f"s_and_b64 vcc, vcc, s[{mask_pair}:{mask_pair+1}]")
    a(f"s_cbranch_vccz {lab}_ok")
    a(f"s_sleep {sleep}")
    a(f"s_sub_u32 s{SPIN}, s{SPIN}, 1")
    a(f"s_cbranch_scc0 {lab}")
    a(f"s_mov_b32 s{SPIN}, 0")
    a.label(lab + "_ok")

def cfma(a, hr, hi, lr, li, ur, ui, tr, ti):
    a(f"v_fma_f32 v{tr}, -v{li}, v{hi}, v{ur}")
    a(f"v_fma_f32 v{ti}, v{li}, v{hr}, v{ui}")
    a(f"v_fma_f32 v{hr}, v{lr}, v{hr}, v{tr}")
    a(f"v_fma_f32 v{hi}, v{lr}, v{hi}, v{ti}")

L_JUNK = 161792
def touch_matrix(a, sptr, vdst, vt, sr=48):
    srd(a, sr, sptr, WBYTES)
    a("s_lshr_b32 s3, s2, 3")
    a(f"s_mul_i32 s3, s3, {98*128}")
    a(f"v_lshlrev_b32 v{vt}, 7, v0")
    a(f"s_mov_b32 m0, {L_JUNK}")
    a("s_nop 0")
    a(f"buffer_load_dword v{vt}, s[{sr}:{sr+3}], s3 offen lds")
    a("s_add_u32 s3, s3, 8192")
    a("s_mov_b32 exec_hi, 3")
    a(f"buffer_load_dword v{vt}, s[{sr}:{sr+3}], s3 offen lds")
    a("s_mov_b64 exec, -1")

AQ, AO, AS, AK, AV, APB = 8, 40, [104, 120], [136, 144], [152, 160], 4

def att_unit(a, u, side):
    up = u - 1; un = u + 1
    cur = AS[u & 1]; prv = AS[(u + 1) & 1]
    Vp = AV[(up >> 2) & 1]; Op = AO + 16 * (up & 3)
    Kn = AK[(un >> 2) & 1]; Qn = AQ + 8 * (un & 3)
    side = list(side)
    def E(lo, hi):
        for j in range(lo, hi):
            a(f"v_exp_f32 v{cur+j}, v{cur+j}")
            if side:
                x = side.pop(0)
                if x: a(x)
    while side and isinstance(side[0], tuple):
        a(side.pop(0)[1])
    a(f"{MF} {v(Op,16)}, {v(Vp,4)}, {v(prv,4)}, {v(Op,16)}")
    E(0, 4)
    a(f"v_cvt_pk_bf16_f32 v{APB+2}, v{prv+12}, v{prv+13}")
    a(f"v_cvt_pk_bf16_f32 v{APB+3}, v{prv+14}, v{prv+15}")
    a(f"{MF} {v(prv,16)}, {v(Kn,4)}, {v(Qn,4)}, 0")
    E(4, 8)
    a(f"v_cvt_pk_bf16_f32 v{cur}, v{cur}, v{cur+1}")
    a(f"v_cvt_pk_bf16_f32 v{cur+1}, v{cur+2}, v{cur+3}")
    a(f"{MF} {v(prv,16)}, {v(Kn+4,4)}, {v(Qn+4,4)}, {v(prv,16)}")
    E(8, 12)
    a(f"v_cvt_pk_bf16_f32 v{cur+2}, v{cur+4}, v{cur+5}")
    a(f"v_cvt_pk_bf16_f32 v{cur+3}, v{cur+6}, v{cur+7}")
    a(f"{MF} {v(Op,16)}, {v(Vp+4,4)}, {v(APB,4)}, {v(Op,16)}")
    E(12, 16)
    a(f"v_cvt_pk_bf16_f32 v{APB}, v{cur+8}, v{cur+9}")
    a(f"v_cvt_pk_bf16_f32 v{APB+1}, v{cur+10}, v{cur+11}")
    assert not side, side

L_SEL = 162560
L_SH = 162048
LMAX = f2u(2.0 ** 90) if "forcefb" not in X else f2u(2.0 ** -20)
VMAX = f2u(2.0 ** 20)

def gen_attention(a, pf):
    P = "att"
    KR = TR
    a(f"v_add_u32 v2, {L_QX}, v1")
    for g in range(4):
        a(f"ds_read_b128 {v(AQ+8*g,4)}, v2 offset:{g*2048}")
        a(f"ds_read_b128 {v(AQ+8*g+4,4)}, v2 offset:{g*2048+1024}")
    a(f"s_add_u32 s{KR}, s{WSR}, {WS_KV}")
    a(f"s_addc_u32 s{KR+1}, s{WSR+1}, 0")
    a(f"s_mov_b32 s{KR+3}, 0x00020000")
    a("s_mov_b32 s44, 0")
    a("s_mov_b32 s51, 0")
    a(f"s_cmp_lt_u32 s{WV}, 4")
    a("s_cselect_b32 s53, 1, -1")
    a(f"s_cmp_eq_u32 s{WV}, 7")
    a(f"s_cbranch_scc0 {P}_nosel")
    a("v_lshrrev_b32 v104, 4, v1")
    a("v_and_b32 v105, 31, v104")
    a("v_lshrrev_b32 v104, 5, v104")
    a("v_lshlrev_b32 v104, 2, v104")
    a("v_sub_u32 v105, v105, v104")
    for j in range(4):
        d0 = (2 * j & 3) + 8 * ((2 * j) >> 2)
        a(f"v_cmp_eq_u32 vcc, {d0}, v105")
        a(f"v_mov_b32 v106, 0x3f80")
        a("s_nop 0")
        a(f"v_cndmask_b32 v{108+j}, 0, v106, vcc")
        a(f"v_cmp_eq_u32 vcc, {d0+1}, v105")
        a(f"v_mov_b32 v106, 0x3f800000")
        a("s_nop 0")
        a(f"v_cndmask_b32 v107, 0, v106, vcc")
        a(f"v_or_b32 v{108+j}, v{108+j}, v107")
    a(f"v_add_u32 v104, {L_SEL}, v1")
    a("ds_write_b128 v104, v[108:111]")
    a.label(P + "_nosel")
    srd(a, 56, S_DBG, 256)
    def phaseA():
        a(f"s_cmp_eq_u32 s{WV}, 0")
        a(f"s_cbranch_scc0 {P}_nopollA")
        a(f"v_mov_b32 v2, {D_K0}")
        a.label(P + "_pollA")
        a(f"buffer_load_dword v104, v2, s[56:59], 0 offen{SC1}")
        a("s_waitcnt vmcnt(0)")
        a("v_readfirstlane_b32 s3, v104")
        a("s_cmp_lg_u32 s3, 0")
        a(f"s_cbranch_scc1 {P}_nopollA")
        a(f"s_sleep {POLLSLEEP}")
        a(f"s_sub_u32 s{SPIN}, s{SPIN}, 1")
        a(f"s_cbranch_scc0 {P}_pollA")
        a(f"s_mov_b32 s{SPIN}, 0")
        a.label(P + "_nopollA")
        a(f"v_mov_b32 v3, {L_CNT}")
        sw_barrier(a, C_ATT, 44, 8, 3, 2, P + "_ba")
    def shiftblk():
        a(f"s_mov_b32 s{KR+2}, 0x40000")
        a(f"s_cmp_ge_u32 s{WV}, 4")
        a(f"s_cbranch_scc1 {P}_shhi" if "gomerge" in X else f"s_cbranch_scc1 {P}_shwait")
        a(f"buffer_load_dwordx4 {v(AS[1],4)}, v1, s[{KR}:{KR+3}], 0 offen{SC1}")
        a(f"buffer_load_dwordx4 {v(AS[1]+4,4)}, v1, s[{KR}:{KR+3}], 0 offen offset:1024{SC1}")
        a(f"s_lshl_b32 s3, s{WV}, 11")
        a(f"s_add_u32 s3, s3, {L_QX}")
        a("v_add_u32 v2, s3, v1")
        a(f"ds_read_b128 {v(AO,4)}, v2")
        a(f"ds_read_b128 {v(AO+4,4)}, v2 offset:1024")
        a("s_waitcnt vmcnt(0) lgkmcnt(0)")
        o = AO + 16
        a(f"{MF} {v(o,16)}, {v(AS[1],4)}, {v(AO,4)}, 0")
        a(f"{MF} {v(o,16)}, {v(AS[1]+4,4)}, {v(AO+4,4)}, {v(o,16)}")
        a(f"s_lshl_b32 s3, s{WV}, 7")
        a(f"s_add_u32 s3, s3, {L_SH}")
        a("v_lshrrev_b32 v3, 2, v1")
        a("v_and_b32 v3, 127, v3")
        a("v_add_u32 v3, s3, v3")
        a("s_nop 7")
        a(f"v_max3_f32 v2, v{o}, v{o+1}, v{o+2}")
        for j in range(3, 15, 2):
            a(f"v_max3_f32 v2, v2, v{o+j}, v{o+j+1}")
        a(f"v_max_f32 v2, v2, v{o+15}")
        a(f"v_mov_b32 v{AO}, v2")
        a("s_nop 1")
        a(f"v_permlane32_swap_b32 v2, v{AO}")
        a(f"v_max_f32 v2, v2, v{AO}")
        a("v_cvt_pk_bf16_f32 v2, -v2, 0")
        a("s_mov_b32 exec_hi, 0")
        a("ds_write_b32 v3, v2")
        a("s_mov_b64 exec, -1")
        if "gomerge" in X:
            a(f"s_branch {P}_shwait")
            a.label(P + "_shhi")
            a(f"s_cmp_eq_u32 s{WV}, 7")
            a(f"s_cbranch_scc0 {P}_shwait")
            a(f"v_mov_b32 v2, {D_GO}")
            a.label(P + "_pollm")
            a(f"buffer_load_dwordx2 v[104:105], v2, s[56:59], 0 offen{SC1}")
            a("s_waitcnt vmcnt(0)")
            a("v_readfirstlane_b32 s3, v104")
            a("s_cmp_lg_u32 s3, 0")
            a(f"s_cbranch_scc1 {P}_pollmok")
            a(f"s_sleep {POLLSLEEP}")
            a(f"s_sub_u32 s{SPIN}, s{SPIN}, 1")
            a(f"s_cbranch_scc0 {P}_pollm")
            a(f"s_mov_b32 s{SPIN}, 0")
            a.label(P + "_pollmok")
            a(f"v_mov_b32 v3, {L_CNT}")
            a("s_mov_b64 exec, 1")
            a(f"ds_add_u32 v3, v105 offset:{C_BAD}")
            a("s_mov_b64 exec, -1")
        a.label(P + "_shwait")
        a(f"v_mov_b32 v3, {L_CNT}")
        sw_barrier(a, C_ATT, 44, 8, 3, 2, P + "_bs")
        a("v_lshrrev_b32 v3, 2, v1")
        a("v_and_b32 v3, 127, v3")
        a(f"v_add_u32 v3, {L_SH}, v3")
        for g in range(4): a(f"ds_read_b32 v{AO+g}, v3 offset:{g*128}")
        a("s_waitcnt lgkmcnt(0)")
        a("s_mov_b32 exec_lo, 0")
        for g in range(4): a(f"v_mov_b32 v{AQ+8*g+6}, v{AO+g}")
        a("s_mov_b32 exec_lo, -1")
    def phaseB():
        a(f"s_cmp_eq_u32 s{WV}, 0")
        a(f"s_cbranch_scc0 {P}_nopoll")
        a(f"v_mov_b32 v2, {D_GO}")
        a.label(P + "_poll")
        a(f"buffer_load_dwordx2 v[104:105], v2, s[56:59], 0 offen{SC1}")
        a("s_waitcnt vmcnt(0)")
        a("v_readfirstlane_b32 s3, v104")
        a("s_cmp_lg_u32 s3, 0")
        a(f"s_cbranch_scc1 {P}_pollok")
        a(f"s_sleep {POLLSLEEP}")
        a(f"s_sub_u32 s{SPIN}, s{SPIN}, 1")
        a(f"s_cbranch_scc0 {P}_poll")
        a(f"s_mov_b32 s{SPIN}, 0")
        a.label(P + "_pollok")
        a(f"v_mov_b32 v3, {L_CNT}")
        a("s_mov_b64 exec, 1")
        a(f"ds_add_u32 v3, v105 offset:{C_BAD}")
        a("s_mov_b64 exec, -1")
        a.label(P + "_nopoll")
        a(f"v_mov_b32 v3, {L_CNT}")
        sw_barrier(a, C_ATT, 44, 8, 3, 2, P + "_b0")
        pf.stamp(5)
        a("s_lshr_b32 s52, s2, 3")
        a("s_lshl_b32 s52, s52, 3")
        a(f"s_add_u32 s52, s52, s{WV}")
        a("s_lshl_b32 s52, s52, 10")
    def mainloads():
        a.label(P + "_restart")
        a(f"s_mov_b32 s{KR+2}, 0x40000")
        a(f"s_lshl_b32 s43, s{WV}, 15")
        a(f"buffer_load_dwordx4 {v(AK[0],4)}, v1, s[{KR}:{KR+3}], s43 offen{SC1}")
        a(f"buffer_load_dwordx4 {v(AK[0]+4,4)}, v1, s[{KR}:{KR+3}], s43 offen offset:1024{SC1}")
        a(f"buffer_load_dwordx4 {v(AV[0],4)}, v1, s[{KR}:{KR+3}], s43 offen offset:2048{SC1}")
        a(f"buffer_load_dwordx4 {v(AV[0]+4,4)}, v1, s[{KR}:{KR+3}], s43 offen offset:3072{SC1}")
        a("s_add_u32 s43, s43, 4096")
        a(f"buffer_load_dwordx4 {v(AK[1],4)}, v1, s[{KR}:{KR+3}], s43 offen{SC1}")
        a(f"buffer_load_dwordx4 {v(AK[1]+4,4)}, v1, s[{KR}:{KR+3}], s43 offen offset:1024{SC1}")
        a(f"s_lshl_b32 s3, s{WV}, 9")
        a(f"s_mov_b32 m0, {L_JUNK}")
        a("v_lshlrev_b32 v2, 3, v1")
        a("s_mov_b64 exec, 0xff")
        a(f"buffer_load_dword v2, s[{KR}:{KR+3}], s52 offen{SC1} lds")
        a("s_mov_b64 exec, -1")
        for j in range(4): a(f"v_mov_b32 v{APB+j}, 0")
        for j in range(8): a(f"v_mov_b32 v{AV[1]+j}, 0")
    if "lateshift" in X:
        phaseB(); mainloads()
        a("s_cmp_lg_u32 s51, 0")
        a(f"s_cbranch_scc1 {P}_haveshift")
        shiftblk()
    elif "gomerge" in X:
        phaseA(); shiftblk()
        pf.stamp(5)
        a("s_lshr_b32 s52, s2, 3")
        a("s_lshl_b32 s52, s52, 3")
        a(f"s_add_u32 s52, s52, s{WV}")
        a("s_lshl_b32 s52, s52, 10")
        mainloads()
    else:
        phaseA(); shiftblk(); phaseB(); mainloads()
    a.label(P + "_haveshift")
    for j in (0, 1, 2, 3, 12, 13, 14, 15): a(f"v_mov_b32 v{AS[1]+j}, 0")
    a(f"s_and_b32 s3, s{WV}, 3")
    a("s_lshl_b32 s3, s3, 2")
    a(f"s_add_u32 s3, s3, {L_CNT + 64}")
    a("v_mov_b32 v2, s3")
    for g in range(4):
        a(f"{MF} {v(AO+16*g,16)}, {v(AV[1],4)}, {v(APB,4)}, 0")
    a("s_waitcnt vmcnt(5)")
    a(f"{MF} {v(AS[0],16)}, {v(AK[0],4)}, {v(AQ,4)}, 0")
    a(f"{MF} {v(AS[0],16)}, {v(AK[0]+4,4)}, {v(AQ+4,4)}, {v(AS[0],16)}")
    a("s_mov_b32 s48, 0")
    a("s_setprio 2")
    a("s_nop 7")
    a("s_nop 1")
    pf.stamp(6)
    a(".p2align 3")
    a.label(P + "_loop")
    for u in range(8):
        g = u & 3; par = (u >> 2) & 1
        side = []
        if g == 1:
            side.append(("q0", "s_waitcnt vmcnt(2)"))
            side.append(f"buffer_load_dwordx4 {v(AV[par^1],4)}, v1, s[{KR}:{KR+3}], s43 offen offset:2048{SC1}")
            side.append(f"buffer_load_dwordx4 {v(AV[par^1]+4,4)}, v1, s[{KR}:{KR+3}], s43 offen offset:3072{SC1}")
            side.append("s_add_u32 s43, s43, 4096")
            if par == 0:
                side.append("s_cmp_eq_u32 s48, 3")
                side.append(f"s_cselect_b32 s{KR+2}, 0, s{KR+2}")
        if g == 3:
            side += [None, None, None, "s_waitcnt vmcnt(2)"]
            side.append(f"buffer_load_dwordx4 {v(AK[par],4)}, v1, s[{KR}:{KR+3}], s43 offen{SC1}")
            side.append(f"buffer_load_dwordx4 {v(AK[par]+4,4)}, v1, s[{KR}:{KR+3}], s43 offen offset:1024{SC1}")
            if par == 1:
                side += ["s_add_u32 s48, s48, 1", None, None, None, None, None, None, None, None, "s_cmp_lt_u32 s48, 4"]
        if g == 0 and "nofair" not in X:
            side += ["v_mov_b32 v3, s53", None, "s_mov_b64 exec, 1\nds_add_rtn_u32 v3, v2, v3\ns_mov_b64 exec, -1"]
        if g == 2 and "nofair" not in X:
            lab = f"{P}_fp{u}"
            side += ["s_waitcnt lgkmcnt(0)", "v_readfirstlane_b32 s54, v3", None, "s_mul_i32 s54, s54, s53", "s_cmp_gt_i32 s54, 0",
                     f"s_cbranch_scc1 {lab}a\ns_setprio 2\ns_branch {lab}b\n{lab}a:\ns_setprio 1\n{lab}b:"]
        att_unit(a, u, side)
    a(f"s_cbranch_scc1 {P}_loop")
    prv = AS[1]
    a(f"{MF} {v(AO+48,16)}, {v(AV[1],4)}, {v(prv,4)}, {v(AO+48,16)}")
    a(f"v_cvt_pk_bf16_f32 v{APB+2}, v{prv+12}, v{prv+13}")
    a(f"v_cvt_pk_bf16_f32 v{APB+3}, v{prv+14}, v{prv+15}")
    a("s_nop 1")
    a(f"{MF} {v(AO+48,16)}, {v(AV[1]+4,4)}, {v(APB,4)}, {v(AO+48,16)}")
    pf.stamp(7)
    a("s_setprio 3")
    a("s_cmp_lg_u32 s51, 0")
    a(f"s_cbranch_scc1 {P}_nolend")
    lds_arrive(a, C_LEND, 2, 3)
    a.label(P + "_nolend")
    a(f"v_mov_b32 v3, {L_CNT}")
    a.label(P + "_udone")
    a(f"ds_read2_b32 v[104:105], v3 offset0:{C_NONCE//4} offset1:{C_HCNT//4}")
    a("s_waitcnt lgkmcnt(0)")
    a("v_readfirstlane_b32 s3, v105")
    a(f"v_readfirstlane_b32 s{NONCE}, v104")
    a("s_cmp_ge_u32 s3, 4")
    a(f"s_cbranch_scc1 {P}_udone_ok")
    a(f"s_sub_u32 s{SPIN}, s{SPIN}, 1")
    a(f"s_cbranch_scc0 {P}_udone")
    a(f"s_mov_b32 s{SPIN}, 0")
    a.label(P + "_udone_ok")
    a(f"s_lshl_b32 s3, s{WV}, 13")
    a(f"s_add_u32 s3, s3, {A_OP}")
    a(f"v_add_u32 v2, s3, v1")
    a(f"s_lshl_b32 s3, s{WV}, 9")
    a(f"s_add_u32 s3, s3, {A_LP}")
    a("v_lshrrev_b32 v3, 2, v1")
    a("v_and_b32 v4, 127, v3")
    a("v_add_u32 v4, s3, v4")
    a(f"s_mov_b32 s46, {hex(LMAX)}")
    a("s_mov_b64 s[56:57], 0")
    for g in range(4):
        o = AO + 16 * g
        if g == 3: a("s_nop 3")
        a("s_mov_b32 exec_lo, 0")
        a(f"ds_write_b32 v4, v{o+12} offset:{g*128}")
        a(f"v_cmp_nge_f32 vcc, s46, v{o+12}")
        a("s_mov_b32 exec_lo, -1")
        a("s_or_b64 s[56:57], s[56:57], vcc")
        for j in range(8):
            a(f"v_cvt_pk_bf16_f32 v{AS[0]+8*g+j}, v{o+2*j}, v{o+2*j+1}")
        a(f"ds_write_b128 v2, {v(AS[0]+8*g,4)} offset:{g*2048}")
        a(f"ds_write_b128 v2, {v(AS[0]+8*g+4,4)} offset:{g*2048+1024}")
    a(f"v_mov_b32 v3, {L_CNT}")
    a("s_cmp_eq_u64 s[56:57], 0")
    a(f"s_cbranch_scc1 {P}_safe")
    a("v_mov_b32 v2, 1")
    a("s_mov_b64 exec, 1")
    a(f"ds_add_u32 v3, v2 offset:{C_BAD}")
    a("s_mov_b64 exec, -1")
    a.label(P + "_safe")
    pf.stamp(17)
    sw_barrier(a, C_ATT, 44, 8, 3, 2, P + "_b1")
    pf.stamp(18)
    a(f"ds_read_b32 v2, v3 offset:{C_BAD}")
    a(f"s_lshl_b32 s3, s{WV}, 10")
    a(f"s_add_u32 s3, s3, {A_OP}")
    a("v_add_u32 v4, s3, v1")
    for w in range(8):
        a(f"ds_read_b128 {v(AO+4*w,4)}, v4 offset:{w*8192}")
    a(f"s_lshr_b32 s45, s{WV}, 1")
    a("s_lshl_b32 s3, s45, 7")
    a(f"s_add_u32 s3, s3, {A_LP}")
    a("v_lshrrev_b32 v3, 2, v1")
    a("v_and_b32 v3, 127, v3")
    a("v_add_u32 v3, s3, v3")
    a("s_waitcnt lgkmcnt(8)")
    a("v_readfirstlane_b32 s3, v2")
    a("s_cmp_lg_u32 s3, 0")
    a("s_cselect_b32 s3, 1, 0")
    a("s_andn2_b32 s3, s3, s51")
    a(f"s_cbranch_scc1 {P}_fallback")
    acc = AO + 48
    a(f"v_add_u32 v2, {L_SEL}, v1")
    a(f"ds_read_b128 {v(AO+40,4)}, v2")
    for w in range(6):
        a(f"ds_read_b32 v{AO+32+w}, v3 offset:{w*512}")
    for w in range(8):
        a(f"s_waitcnt lgkmcnt({6 if w < 1 else 6})") if w == 0 else None
        if w == 0:
            a(f"ds_read_b32 v{AO+38}, v3 offset:{6*512}")
            a(f"ds_read_b32 v{AO+39}, v3 offset:{7*512}")
        a(f"{MF} {v(acc,16)}, {v(AO+40,4)}, {v(AO+4*w,4)}, {'0' if w == 0 else v(acc,16)}")
    a("s_lshr_b32 s3, s45, 1")
    a(f"s_lshl_b32 s46, s{RB}, 1")
    a("s_add_u32 s3, s3, s46")
    a("s_lshl_b32 s3, s3, 4")
    a(f"s_lshl_b32 s46, s{J2}, 1")
    a("s_add_u32 s3, s3, s46")
    a("s_and_b32 s46, s45, 1")
    a("s_add_u32 s3, s3, s46")
    a("s_lshl_b32 s3, s3, 11")
    a(f"s_and_b32 s46, s{WV}, 1")
    a("s_lshl_b32 s46, s46, 10")
    a("s_add_u32 s3, s3, s46")
    a(f"s_add_u32 s47, s3, {WS_OF}")
    a("s_waitcnt lgkmcnt(0)")
    lds_arrive(a, C_TRD, 2, 3)
    l = AO + 32
    a(f"v_add_f32 v{l}, v{l}, v{l+1}")
    a(f"v_add_f32 v{l+2}, v{l+2}, v{l+3}")
    a(f"v_add_f32 v{l+4}, v{l+4}, v{l+5}")
    a(f"v_add_f32 v{l+6}, v{l+6}, v{l+7}")
    a(f"v_add_f32 v{l}, v{l}, v{l+2}")
    a(f"v_add_f32 v{l+4}, v{l+4}, v{l+6}")
    a(f"v_add_f32 v{l}, v{l}, v{l+4}")
    a(f"v_rcp_f32 v{l+1}, v{l}")
    a("s_nop 3")
    for j in range(8): a(f"v_mul_f32 v{acc+j}, v{acc+j}, v{l+1}")
    for j in range(4): a(f"v_cvt_pk_bf16_f32 v{AO+j}, v{acc+2*j}, v{acc+2*j+1}")
    a(f"s_and_b32 s3, s{WV}, 1")
    a("s_cmp_eq_u32 s3, 1")
    a("s_cselect_b32 exec_hi, -1, 0")
    a("s_mov_b32 exec_lo, 0")
    a(f"v_mov_b32 v{AO+2}, 0")
    a(f"v_mov_b32 v{AO+3}, 0")
    a("s_mov_b64 exec, -1")
    pf.stamp(19)
    a(f"buffer_store_dwordx4 {v(AO,4)}, v1, s[{WSR}:{WSR+3}], s47 offen{SC1}")
    if "dup" in X or "dupo" in X:
        a(f"buffer_store_dwordx4 {v(AO,4)}, v1, s[{WSR}:{WSR+3}], s47 offen")
    a(f"s_lshl_b32 s3, s{RB}, 5")
    a(f"s_add_u32 s3, s3, s{J2}")
    a("s_lshl_b32 s3, s3, 2")
    a(f"s_add_u32 s3, s3, {FL_O}")
    arrive_flag(a, C_OCNT, 8, 3, 2, 3, P + "_oflag")
    pf.stamp(8)
    a(f"s_branch {P}_done")
    a.label(P + "_fallback")
    a("s_waitcnt lgkmcnt(0)")
    a("s_mov_b32 s51, 1")
    a(f"s_mov_b32 s{KR+2}, 0x40000")
    a("s_mov_b32 exec_lo, 0")
    for g in range(4):
        a(f"v_mov_b32 v{AQ+8*g+6}, 0")
        a(f"v_mov_b32 v{AQ+8*g+7}, 0")
    a("s_mov_b32 exec_lo, -1")
    for g in range(4): a(f"v_mov_b32 v{APB+g}, 0xff800000")
    a("s_mov_b32 s43, 0")
    a.label(P + "_fb_loop")
    a(f"buffer_load_dwordx4 {v(AK[0],4)}, v1, s[{KR}:{KR+3}], s43 offen{SC1}")
    a(f"buffer_load_dwordx4 {v(AK[0]+4,4)}, v1, s[{KR}:{KR+3}], s43 offen offset:1024{SC1}")
    a("s_waitcnt vmcnt(0)")
    for g in range(4):
        o = AO + 16 * g
        a(f"{MF} {v(o,16)}, {v(AK[0],4)}, {v(AQ+8*g,4)}, 0")
        a(f"{MF} {v(o,16)}, {v(AK[0]+4,4)}, {v(AQ+8*g+4,4)}, {v(o,16)}")
    a("s_nop 7")
    for g in range(4):
        o = AO + 16 * g
        for j in range(0, 16, 2):
            a(f"v_max3_f32 v{APB+g}, v{APB+g}, v{o+j}, v{o+j+1}")
    a("s_add_u32 s43, s43, 4096")
    a("s_cmp_lt_u32 s43, 0x40000")
    a(f"s_cbranch_scc1 {P}_fb_loop")
    for g in range(4):
        m = APB + g
        a(f"v_mov_b32 v2, v{m}")
        a("s_nop 1")
        a(f"v_permlane32_swap_b32 v2, v{m}")
        a(f"v_max_f32 v2, v2, v{m}")
        a("v_sub_f32 v2, 0, v2")
        a("v_cvt_pk_bf16_f32 v3, v2, v2")
        a("v_and_b32 v3, 0xffff0000, v3")
        a(f"v_sub_f32 v{m}, v2, v3")
        a(f"v_cvt_pk_bf16_f32 v2, v{m}, v{m}")
        a("v_and_b32 v2, 0xffff0000, v2")
        a(f"v_sub_f32 v{m}, v{m}, v2")
        a(f"v_cvt_pk_bf16_f32 v{m}, v{m}, 0")
        a("v_lshrrev_b32 v3, 16, v3")
        a("v_or_b32 v3, v3, v2")
        a("s_mov_b32 exec_lo, 0")
        a(f"v_mov_b32 v{AQ+8*g+6}, v3")
        a(f"v_mov_b32 v{AQ+8*g+7}, v{m}")
        a("s_mov_b32 exec_lo, -1")
    a(f"v_mov_b32 v3, {L_CNT}")
    sw_barrier(a, C_ATT, 44, 8, 3, 2, P + "_bf")
    a(f"s_branch {P}_restart")
    a.label(P + "_done")

def gen_background(a, pf):
    P = "bg"
    XF = 56; ARE, AIM = 8, 24
    nbar = [0]
    T = [54, 55]
    pf.T = T
    def bar():
        nbar[0] += 1
        a(f"v_mov_b32 v{T[0]}, {L_CNT}")
        sw_barrier(a, C_BG, 44, 4, T[0], T[1], f"{P}_bar{nbar[0]}")
    def stage3(tag, vd_=156, vt_=158):
        if "nopf" in X: return
        a(f"s_cmp_eq_u32 s{BW}, 3")
        a(f"s_cbranch_scc1 {P}_not3{tag}")
        a(f"s_cmp_eq_u32 s{BW}, 0")
        a(f"s_cselect_b32 s56, s{S_CRE}, s{S_CIM}")
        a(f"s_cselect_b32 s57, s{S_CRE+1}, s{S_CIM+1}")
        a(f"s_cmp_eq_u32 s{BW}, 2")
        a(f"s_cselect_b32 s56, s{S_WO}, s56")
        a(f"s_cselect_b32 s57, s{S_WO+1}, s57")
        touch_matrix(a, 56, vd_, vt_)
        a.label(P + "_not3" + tag)
    a("s_mov_b32 s44, 0")
    a(f"s_lshl_b32 s37, s{J2}, 1")
    a(f"s_and_b32 s3, s{BW}, 1")
    a("s_add_u32 s37, s37, s3")
    a(f"s_lshr_b32 s38, s{BW}, 1")
    a(f"s_cmp_eq_u32 s{BW}, 3")
    a(f"s_cbranch_scc0 {P}_nononce")
    srd(a, 48, S_DBG, 256)
    a("v_mov_b32 v7, 0")
    a.label(P + "_npoll")
    a(f"buffer_load_dword v6, v7, s[48:51], 0 offen offset:{D_NONCE}{SC1}")
    a("s_waitcnt vmcnt(0)")
    a("v_readfirstlane_b32 s3, v6")
    a("s_cmp_lg_u32 s3, 0")
    a(f"s_cbranch_scc1 {P}_npoll_ok")
    a(f"s_sleep {POLLSLEEP}")
    a(f"s_sub_u32 s{SPIN}, s{SPIN}, 1")
    a(f"s_cbranch_scc0 {P}_npoll")
    a(f"s_mov_b32 s{SPIN}, 0")
    a.label(P + "_npoll_ok")
    a(f"v_mov_b32 v7, {L_CNT}")
    a(f"ds_write_b32 v7, v6 offset:{C_NONCE}")
    a.label(P + "_nononce")
    a(f"s_cmp_eq_u32 s{J2}, 7")
    a(f"s_cbranch_scc1 {P}_skip")
    if "nobg" in X: a(f"s_branch {P}_skip")
    if "kvfirst" in X:
        a(f"s_cmp_ge_u32 s{J2}, 2")
        a(f"s_cbranch_scc1 {P}_nokvi")
        a(f"v_mov_b32 v6, {L_CNT}")
        lds_wait(a, C_KVI, 1, 6, 7, P + "_kvi")
        a.label(P + "_nokvi")
    a(f"s_and_b32 s3, s{BW}, 1")
    a("s_cmp_eq_u32 s3, 0")
    a(f"s_cselect_b32 s{TR}, s{S_BRE}, s{S_BIM}")
    a(f"s_cselect_b32 s{TR+1}, s{S_BRE+1}, s{S_BIM+1}")
    a(f"s_mov_b32 s{TR+2}, {WBYTES}")
    a(f"s_mov_b32 s{TR+3}, 0x00020000")
    plain_lane_off(a, 8, 0, 9)
    a(f"s_lshl_b32 s3, s{J2}, 1")
    a("s_add_u32 s3, s3, s38")
    a(f"s_mul_i32 s32, s3, {32*896}")
    a(f"s_lshl_b32 s34, s{BW}, 11")
    a("s_mov_b32 m0, s34")
    a("s_mov_b32 s36, 14")
    a.label(P + "_bdma")
    a(f"s_add_u32 s33, s32, {16*896}")
    a(f"buffer_load_dwordx4 v8, s[{TR}:{TR+3}], s32 offen lds")
    a("s_add_u32 m0, m0, 1024")
    a("s_sub_u32 s36, s36, 1")
    a(f"buffer_load_dwordx4 v8, s[{TR}:{TR+3}], s33 offen lds")
    a("s_add_u32 s32, s32, 64")
    a(f"s_add_u32 m0, m0, {8192-1024}")
    a("s_cmp_lg_u32 s36, 0")
    a(f"s_cbranch_scc1 {P}_bdma")
    xfrag_addr(a, 6, 0, 8)
    a(f"s_and_b32 s3, s{BW}, 1")
    a("s_lshl_b32 s3, s3, 12")
    a("v_add_u32 v6, s3, v6")
    a("v_xor_b32 v7, 32, v6")
    if os.environ.get("S3") == "bi":
        stage3("a", 52, 54)
        a(f"s_cmp_eq_u32 s{BW}, 3")
        a(f"s_cbranch_scc1 {P}_bw0")
        a("s_waitcnt vmcnt(2)")
        a.label(P + "_bw0")
        a(f"s_cmp_lg_u32 s{BW}, 3")
        a(f"s_cbranch_scc1 {P}_bw1")
        a("s_waitcnt vmcnt(0)")
        a.label(P + "_bw1")
    else:
        a("s_waitcnt vmcnt(0)")
    bar()
    a(f"ds_read_b32 v55, v54 offset:{C_NONCE}")
    a("s_waitcnt lgkmcnt(0)")
    a(f"v_readfirstlane_b32 s{NONCE}, v55")
    if "cntpoll" in X:
        lds_arrive(a, C_BL, 54, 55)
    pf.stamp(5)
    S3 = os.environ.get("S3", "b")
    if S3 == "b": stage3("a", 52, 54)
    if os.environ.get("UP"): a(f"s_setprio {os.environ['UP']}")
    BB = [40, 48]
    def rdB(j):
        b = BB[j & 1]
        if j in (16, 17): a(f"v_add_u32 v{6+(j&1)}, 0x10000, v{6+(j&1)}")
        o = (j >> 1) * 8192 - (65536 if j >= 16 else 0)
        a(f"ds_read_b128 {v(b,4)}, v{6+(j&1)} offset:{o}")
        a(f"ds_read_b128 {v(b+4,4)}, v{6+(j&1)} offset:{o+2048}")
    rdB(0); rdB(1)
    for j in range(28):
        b = BB[j & 1]
        a("s_waitcnt lgkmcnt(2)" if j < 27 else "s_waitcnt lgkmcnt(0)")
        c1 = "0" if j == 0 else v(ARE,16); c2 = "0" if j == 0 else v(AIM,16)
        a(f"{MF} {v(ARE,16)}, {v(XF+4*j,4)}, {v(b,4)}, {c1}")
        a(f"{MF} {v(AIM,16)}, {v(XF+4*j,4)}, {v(b+4,4)}, {c2}")
        if j + 2 < 28: rdB(j + 2)
    if os.environ.get("UP"): a(f"s_setprio {os.environ.get('BP', '3')}")
    a(f"v_mov_b32 v54, {L_CNT}")
    a("v_mov_b32 v55, 1")
    a("s_mov_b64 exec, 1")
    a(f"ds_add_u32 v54, v55 offset:{C_UDONE}")
    a("s_mov_b64 exec, -1")
    pf.stamp(6)
    if S3 == "u": stage3("a")
    def csq(dr, di, sr, si):
        a(f"v_mul_f32 v46, v{si}, v{si}")
        a(f"v_mul_f32 v47, v{sr}, v{si}")
        a(f"v_fma_f32 v{dr}, v{sr}, v{sr}, -v46")
        a(f"v_add_f32 v{di}, v47, v47")
    csq(40, 41, 2, 3)
    for _ in range(3): csq(40, 41, 40, 41)
    csq(42, 43, 40, 41); csq(42, 43, 42, 43)
    csq(44, 45, 42, 43)
    for _ in range(3): csq(44, 45, 44, 45)
    a("v_mov_b32 v48, v4")
    a("v_mov_b32 v49, v4")
    a("v_mov_b32 v50, v5")
    a("v_mov_b32 v51, v5")
    for r in range(0, 16, 2):
        a(f"v_pk_mul_f32 v[46:47], v[50:51], {v(AIM+r,2)}")
        a(f"v_pk_mul_f32 v[52:53], v[50:51], {v(ARE+r,2)}")
        a(f"v_pk_fma_f32 {v(ARE+r,2)}, v[48:49], {v(ARE+r,2)}, v[46:47] neg_lo:[0,0,1] neg_hi:[0,0,1]")
        a(f"v_pk_fma_f32 {v(AIM+r,2)}, v[48:49], {v(AIM+r,2)}, v[52:53]")
    a(f"v_mov_b32 v48, v{ARE}")
    a(f"v_mov_b32 v49, v{AIM}")
    for r in range(1, 16):
        cfma(a, 48, 49, 2, 3, ARE + r, AIM + r, 46, 47)
    a("v_and_b32 v50, 31, v0")
    a("v_lshlrev_b32 v50, 3, v50")
    a(f"s_and_b32 s3, s{BW}, 1")
    a("s_lshl_b32 s3, s3, 10")
    a(f"s_add_u32 s3, s3, {B_EX}")
    a("v_add_u32 v50, s3, v50")
    a("v_lshrrev_b32 v51, 5, v0")
    a("s_lshl_b32 s3, s38, 1")
    a("v_add_u32 v51, s3, v51")
    a("v_lshl_add_u32 v52, v51, 8, v50")
    a("ds_write_b64 v52, v[48:49]")
    bar()
    for c in range(4):
        a(f"ds_read_b64 {v(56+2*c,2)}, v50 offset:{c*256}")
    a("s_waitcnt lgkmcnt(0)")
    a("v_mov_b32 v64, v56")
    a("v_mov_b32 v65, v57")
    for c in range(1, 4):
        cfma(a, 64, 65, 40, 41, 56 + 2*c, 57 + 2*c, 46, 47)
    a("s_cmp_eq_u32 s38, 1")
    a(f"s_cbranch_scc0 {P}_nopub")
    a(f"s_mul_i32 s3, s{RB}, {448*16}")
    a("s_lshl_b32 s33, s37, 9")
    a("s_add_u32 s3, s3, s33")
    a(f"s_add_u32 s3, s3, {WS_E}")
    a(f"v_mov_b32 v66, s{NONCE}")
    a(f"v_mov_b32 v67, s{NONCE}")
    a("v_and_b32 v68, 31, v0")
    a("v_lshlrev_b32 v68, 4, v68")
    a("s_mov_b32 exec_hi, 0")
    a(f"buffer_store_dwordx4 v[64:67], v68, s[{WSR}:{WSR+3}], s3 offen{SC1}")
    a("s_mov_b64 exec, -1")
    a.label(P + "_nopub")
    pf.stamp(7)
    a(f"s_add_u32 s48, s{WSR}, {WS_E}")
    a(f"s_addc_u32 s49, s{WSR+1}, 0")
    a(f"s_mov_b32 s50, {32*448*16}")
    a("s_mov_b32 s51, 0x00020000")
    a("v_lshrrev_b32 v67, 5, v0")
    a("v_lshlrev_b32 v67, 4, v67")
    a(f"v_sub_u32 v67, s{RB}, v67")
    a("v_add_u32 v67, -1, v67")
    a(f"s_mov_b32 s3, {448*16}")
    a("v_mul_lo_u32 v68, v67, s3")
    a("v_and_b32 v66, 31, v0")
    a("v_lshlrev_b32 v66, 4, v66")
    a("s_lshl_b32 s33, s37, 9")
    a("v_add3_u32 v68, v68, v66, s33")
    EG = 72
    for i in range(1, 16):
        a(f"v_subrev_u32 v{136+i}, {448*16*i}, v68")
    a("v_mov_b32 v136, v68")
    a("s_waitcnt vmcnt(0)")
    a(f"s_cmp_eq_u32 s{RB}, 0")
    a(f"s_cbranch_scc1 {P}_pollE")
    a.label(P + "_pollE0")
    a("s_mov_b32 exec_hi, 0")
    a(f"buffer_load_dwordx3 {v(EG,3)}, v136, s[48:51], 0 offen{SC1}")
    a("s_mov_b64 exec, -1")
    a("s_waitcnt vmcnt(0)")
    a(f"v_cmp_ne_u32 vcc, s{NONCE}, v{EG+2}")
    a("s_cmp_eq_u32 vcc_lo, 0")
    a(f"s_cbranch_scc1 {P}_pollE")
    a(f"s_sleep {os.environ.get('ES', '6')}")
    a(f"s_sub_u32 s{SPIN}, s{SPIN}, 1")
    a(f"s_cbranch_scc0 {P}_pollE0")
    a(f"s_mov_b32 s{SPIN}, 0")
    a.label(P + "_pollE")
    for i in range(16):
        a(f"buffer_load_dwordx3 {v(EG+4*i,3)}, v{136+i}, s[48:51], 0 offen{SC1}")
    a("s_mov_b64 s[56:57], 0")
    a("s_waitcnt vmcnt(0)")
    for i in range(16):
        a(f"v_cmp_ne_u32 vcc, s{NONCE}, v{EG+4*i+2}")
        a(f"s_cmp_gt_u32 s{RB}, {i}")
        a("s_cselect_b32 s58, -1, 0")
        a(f"s_cmp_gt_u32 s{RB}, {i+16}")
        a("s_cselect_b32 s59, -1, 0")
        a("s_and_b64 vcc, vcc, s[58:59]")
        a("s_or_b64 s[56:57], s[56:57], vcc")
    a("s_cmp_eq_u64 s[56:57], 0")
    a(f"s_cbranch_scc1 {P}_pollE_ok")
    a("s_sleep 12")
    a(f"s_sub_u32 s{SPIN}, s{SPIN}, 1")
    a(f"s_cbranch_scc0 {P}_pollE")
    a(f"s_mov_b32 s{SPIN}, 0")
    a.label(P + "_pollE_ok")
    pf.stamp(8)
    a(f"v_mov_b32 v68, v{EG+60}")
    a(f"v_mov_b32 v69, v{EG+61}")
    for i in range(14, -1, -1):
        cfma(a, 68, 69, 42, 43, EG + 4*i, EG + 4*i + 1, 46, 47)
    a("v_mov_b32 v70, v68")
    a("v_mov_b32 v71, v69")
    a("v_mov_b32 v72, v68")
    a("v_mov_b32 v73, v69")
    a("s_nop 1")
    a("v_permlane32_swap_b32 v70, v72")
    a("v_permlane32_swap_b32 v71, v73")
    cfma(a, 72, 73, 44, 45, 70, 71, 46, 47)
    for cp in range(3):
        a("v_mov_b32 v74, v72")
        a("v_mov_b32 v75, v73")
        cfma(a, 74, 75, 40, 41, 56 + 2*cp, 57 + 2*cp, 46, 47)
        a(f"v_cmp_lt_u32 vcc, {cp}, v51")
        a("s_nop 1")
        a("v_cndmask_b32 v72, v72, v74, vcc")
        a("v_cndmask_b32 v73, v73, v75, vcc")
    a(f"s_lshl_b32 s3, s{BW}, 12")
    a(f"s_add_u32 s3, s3, {B_HT}")
    a("v_and_b32 v66, 31, v0")
    a("v_lshlrev_b32 v66, 1, v66")
    a("v_lshrrev_b32 v67, 5, v0")
    a("v_lshl_add_u32 v66, v67, 8, v66")
    a("v_add_u32 v66, s3, v66")
    for r in range(16):
        cfma(a, 72, 73, 2, 3, ARE + r, AIM + r, 46, 47)
        a(f"v_cvt_pk_bf16_f32 v{76+(r&1)}, v72, -v73")
        slot = (r & 3) + 8 * (r >> 2)
        a(f"ds_write_b16 v66, v{76+(r&1)} offset:{slot*64}")
        a(f"ds_write_b16_d16_hi v66, v{76+(r&1)} offset:{2048+slot*64}")
    a("v_and_b32 v67, 31, v0")
    a("v_lshlrev_b32 v67, 6, v67")
    a("v_lshrrev_b32 v68, 5, v0")
    a("v_lshl_add_u32 v67, v68, 4, v67")
    a("v_add_u32 v67, s3, v67")
    a("s_waitcnt lgkmcnt(0)")
    for part in range(2):
        for jj in range(2):
            a(f"ds_read_b128 {v(80+8*part+4*jj,4)}, v67 offset:{part*2048+jj*32}")
    a(f"s_lshl_b32 s3, s{RB}, 1")
    a("s_add_u32 s3, s3, s38")
    a("s_mul_i32 s3, s3, 56")
    a("s_lshl_b32 s33, s37, 1")
    a("s_add_u32 s3, s3, s33")
    a("s_lshl_b32 s3, s3, 10")
    a(f"s_add_u32 s3, s3, {WS_HF}")
    a(f"s_add_u32 s33, s3, {28*1024}")
    a("s_waitcnt lgkmcnt(0)")
    a(f"buffer_store_dwordx4 {v(80,4)}, v1, s[{WSR}:{WSR+3}], s3 offen{SC1}")
    a(f"buffer_store_dwordx4 {v(84,4)}, v1, s[{WSR}:{WSR+3}], s3 offen offset:1024{SC1}")
    a(f"buffer_store_dwordx4 {v(88,4)}, v1, s[{WSR}:{WSR+3}], s33 offen{SC1}")
    a(f"buffer_store_dwordx4 {v(92,4)}, v1, s[{WSR}:{WSR+3}], s33 offen offset:1024{SC1}")
    if "dup" in X:
        a(f"buffer_store_dwordx4 {v(80,4)}, v1, s[{WSR}:{WSR+3}], s3 offen")
        a(f"buffer_store_dwordx4 {v(84,4)}, v1, s[{WSR}:{WSR+3}], s3 offen offset:1024")
        a(f"buffer_store_dwordx4 {v(88,4)}, v1, s[{WSR}:{WSR+3}], s33 offen")
        a(f"buffer_store_dwordx4 {v(92,4)}, v1, s[{WSR}:{WSR+3}], s33 offen offset:1024")
    a(f"s_lshl_b32 s3, s{RB}, 5")
    a(f"s_add_u32 s3, s3, s{J2}")
    a("s_lshl_b32 s3, s3, 2")
    a(f"s_add_u32 s3, s3, {FL_H}")
    arrive_flag(a, C_HCNT, 4, 3, 66, 67, P + "_hflag")
    pf.stamp(9)
    if "hwait" in X:
        a(f"v_mov_b32 v66, {L_CNT}")
        lds_wait(a, C_HCNT, 4, 66, 67, P + "_hall")
    if "lowc" in X: a("s_setprio 0")
    if os.environ.get("S3") == "late": stage3("c")
    if os.environ.get("S3") == "wo":
        a(f"s_cmp_eq_u32 s{BW}, 2")
        a(f"s_cbranch_scc0 {P}_notwo")
        touch_matrix(a, S_WO, 156, 158)
        a.label(P + "_notwo")
    a(f"s_lshr_b32 s3, s{BW}, 1")
    a("s_cmp_eq_u32 s3, 0")
    a(f"s_cselect_b32 s{TR}, s{S_CRE}, s{S_CIM}")
    a(f"s_cselect_b32 s{TR+1}, s{S_CRE+1}, s{S_CIM+1}")
    plain_lane_off(a, 53, 0, 69)
    a(f"s_mul_i32 s40, s{J2}, {64*896}")
    a(f"s_and_b32 s3, s{BW}, 1")
    a("s_mul_i32 s3, s3, 448")
    a("s_add_u32 s40, s40, s3")
    a(f"s_mul_i32 s41, s{BW}, 20480")
    CDMA = [53]
    def c_dma(kb):
        a(f"s_add_u32 m0, s41, {(kb % 5)*4096}")
        for q in range(4):
            a(f"s_add_u32 s33, s40, {q*16*896 + kb*64}")
            a(f"buffer_load_dwordx4 v{CDMA[0]}, s[{TR}:{TR+3}], s33 offen lds")
            if q < 3: a("s_add_u32 m0, m0, 1024")
    for kb in range(5): c_dma(kb)
    a(f"s_cmp_eq_u32 s{BW}, 0")
    a(f"s_cbranch_scc0 {P}_nopollH")
    a("v_lshlrev_b32 v67, 2, v0")
    a(f"s_lshl_b32 s35, s{RB}, 7")
    a(f"s_add_u32 s35, s35, {FL_H}")
    a("s_mov_b64 s[58:59], 0x7f")
    poll(a, P + "_pollH", 68, 67, 35, 58)
    srd(a, 48, S_DBG, 256)
    a(f"v_mov_b32 v67, {D_GOG}")
    a.label(P + "_pollG")
    a(f"buffer_load_dword v68, v67, s[48:51], 0 offen{SC1}")
    a("s_waitcnt vmcnt(0)")
    a("v_readfirstlane_b32 s3, v68")
    a("s_cmp_lg_u32 s3, 0")
    a(f"s_cbranch_scc1 {P}_pollG_ok")
    a(f"s_sleep {POLLSLEEP}")
    a(f"s_sub_u32 s{SPIN}, s{SPIN}, 1")
    a(f"s_cbranch_scc0 {P}_pollG")
    a(f"s_mov_b32 s{SPIN}, 0")
    a.label(P + "_pollG_ok")
    a.label(P + "_nopollH")
    a("s_waitcnt vmcnt(0)")
    bar()
    pf.stamp(10)
    T[0], T[1] = 4, 5
    ACC = 8
    XS, GT = 136, 152
    if "lowy" in X and "lowlate" not in X: a(f"s_setprio {os.environ.get('YLOW', '0')}")
    a(f"s_lshl_b32 s3, s{RB}, 1")
    a("s_mul_i32 s3, s3, 56")
    a(f"s_mul_i32 s33, s{BW}, 14")
    a("s_add_u32 s3, s3, s33")
    a("s_lshl_b32 s3, s3, 10")
    a(f"s_add_u32 s32, s3, {WS_HF}")
    a(f"s_add_u32 s34, s32, {56*1024}")
    AF = 88; NA = 10
    plain_lane_off(a, 2, 0, 72)
    CDMA[0] = 2
    xfrag_addr(a, 6, 0, 72)
    a("v_add_u32 v6, s41, v6")
    a("v_xor_b32 v7, 32, v6")
    def ldA(st_):
        r = AF + 8 * (st_ % NA)
        a(f"s_add_u32 s35, s32, {st_*1024}")
        a(f"s_add_u32 s36, s34, {st_*1024}")
        a(f"buffer_load_dwordx4 {v(r,4)}, v1, s[{WSR}:{WSR+3}], s35 offen{SC1}")
        a(f"buffer_load_dwordx4 {v(r+4,4)}, v1, s[{WSR}:{WSR+3}], s36 offen{SC1}")
    for st_ in range(NA): ldA(st_)
    if "htouch" in X:
        a("v_lshlrev_b32 v72, 7, v0")
        a(f"s_mov_b32 m0, {L_JUNK}")
        a(f"s_add_u32 s35, s32, {NA*1024}")
        a(f"s_add_u32 s36, s34, {NA*1024}")
        a("s_mov_b32 exec_hi, 0")
        a(f"buffer_load_dword v72, s[{WSR}:{WSR+3}], s35 offen{SC1} lds")
        a(f"buffer_load_dword v72, s[{WSR}:{WSR+3}], s36 offen{SC1} lds")
        a("s_mov_b64 exec, -1")
    CB = [72, 80]
    def rdC(st_):
        b = CB[st_ & 1]
        kb = st_ >> 1
        a(f"ds_read_b128 {v(b,4)}, v{6+(st_&1)} offset:{(kb%5)*4096}")
        a(f"ds_read_b128 {v(b+4,4)}, v{6+(st_&1)} offset:{(kb%5)*4096+2048}")
    issued = []
    for st_ in range(NA): issued += [("A", st_)] * 2
    if "htouch" in X: issued += [("T", 0)] * 2
    HY = int(os.environ.get("HY", "0"))
    if HY:
        a(f"v_mov_b32 v4, {L_CNT}")
        lds_wait(a, C_LEND, HY, 4, 5, P + "_lend", sleep=8)
        a(f"s_setprio {os.environ.get('YP', '1')}")
    if "lowy" in X and "lowlate" in X: a(f"s_setprio {os.environ.get('YLOW', '0')}")
    rdC(0)
    for st_ in range(14):
        kb = st_ >> 1
        need = [("A", st_)]
        if st_ + 1 < 14 and ((st_ + 1) >> 1) >= 5: need.append(("C", (st_ + 1) >> 1))
        last = max(i for i, t in enumerate(issued) if t in need)
        n_out = len(issued) - 1 - last
        a(f"s_waitcnt vmcnt({n_out})")
        if st_ + 1 < 14: rdC(st_ + 1)
        a(f"s_waitcnt lgkmcnt({2 if st_ + 1 < 14 else 0})")
        b = CB[st_ & 1]; r = AF + 8 * (st_ % NA)
        for rt in range(2):
            for ct in range(2):
                acc = ACC + 16 * (2 * rt + ct)
                c = "0" if st_ == 0 else v(acc, 16)
                a(f"{MF} {v(acc,16)}, {v(r+4*rt,4)}, {v(b+4*ct,4)}, {c}")
        if st_ + NA < 14:
            ldA(NA + st_); issued += [("A", NA + st_)] * 2
        if (st_ & 1) == 1 and kb + 5 < 7:
            c_dma(kb + 5); issued += [("C", kb + 5)] * 4
    pf.stamp(11)
    a(f"s_lshl_b32 s3, s{RB}, 6")
    a("s_lshl_b32 s33, s38, 5")
    a("s_add_u32 s3, s3, s33")
    a("v_lshrrev_b32 v80, 5, v0")
    a("v_lshlrev_b32 v80, 4, v80")
    a("v_add_u32 v80, s3, v80")
    a(f"s_lshl_b32 s33, s{J2}, 6")
    a(f"s_and_b32 s35, s{BW}, 1")
    a("s_lshl_b32 s35, s35, 5")
    a("s_add_u32 s33, s33, s35")
    a("v_and_b32 v81, 31, v0")
    a("v_add_u32 v81, s33, v81")
    srd(a, 48, S_X, XBYTES)
    a("v_mul_u32_u24 v82, 896, v80")
    a("v_lshl_add_u32 v82, v81, 1, v82")
    for r in range(16):
        a(f"buffer_load_ushort v{XS+r}, v82, s[48:51], 0 offen offset:{(r%4)*896}")
        if r % 4 == 3 and r < 15: a(f"v_add_u32 v82, {4*896}, v82")
    srd(a, 52, S_DSK, 896)
    a("v_lshlrev_b32 v83, 1, v81")
    a("buffer_load_ushort v3, v83, s[52:55], 0 offen")
    a("v_lshlrev_b32 v83, 2, v80")
    a(f"s_mov_b32 s35, {WS_G}")
    for q in range(4):
        a(f"buffer_load_dwordx4 {v(GT+4*q,4)}, v83, s[{WSR}:{WSR+3}], s35 offen offset:{16*q}{SC1}")

    a(f"s_setprio {os.environ.get('YP2', '2')}")
    bar()
    def wo_dma(t1, t2, z):
        srd(a, TR, S_WO, WBYTES)
        a(f"v_lshrrev_b32 v{t1}, 3, v0")
        a(f"v_mul_u32_u24 v{t1}, 896, v{t1}")
        a(f"v_and_b32 v{t2}, 7, v0")
        a(f"v_lshl_add_u32 v{t1}, v{t2}, 4, v{t1}")
        a(f"s_mul_i32 s32, s{BW}, {112*896}")
        a(f"s_lshl_b32 s3, s{J2}, 7")
        a("s_add_u32 s32, s32, s3")
        a(f"s_mul_i32 s34, s{BW}, 14336")
        a("s_mov_b32 m0, s34")
        a("s_mov_b32 s36, 14")
        a.label(P + "_wodma")
        a("s_sub_u32 s36, s36, 1")
        a(f"buffer_load_dwordx4 v{t1}, s[{TR}:{TR+3}], s32 offen lds")
        a("s_add_u32 s32, s32, 7168")
        a("s_add_u32 m0, m0, 1024")
        a("s_cmp_lg_u32 s36, 0")
        a(f"s_cbranch_scc1 {P}_wodma")
        a(f"v_mov_b32 v{z}, 0")
        a(f"v_mov_b32 v{z+1}, 0")
        a(f"v_lshlrev_b32 v{t2}, 3, v0")
        a(f"ds_write_b64 v{t2}, v[{z}:{z+1}] offset:57344")
    t1 = 75
    if "wolate" not in X: wo_dma(75, 76, 80)
    a(f"v_mov_b32 v4, {L_CNT}")
    lds_wait(a, C_TRD, 8, 4, 5, P + "_trd")
    a(f"s_lshl_b32 s3, s{BW}, 12")
    a(f"s_add_u32 s3, s3, {A_OP}")
    a(f"v_add_u32 v{t1}, s3, v1")
    for t in range(4):
        for q in range(4):
            a(f"ds_write_b128 v{t1}, {v(ACC+16*t+4*q,4)} offset:{t*16384+q*1024}")
    bar()
    a(f"s_lshl_b32 s3, s{BW}, 14")
    a(f"s_add_u32 s3, s3, {A_OP}")
    a(f"v_add_u32 v{t1}, s3, v1")
    for src in range(3):
        for q in range(4):
            a(f"ds_read_b128 {v(88+16*src+4*q,4)}, v{t1} offset:{src*4096+q*1024}")
    YT = 8
    for q in range(4):
        a(f"ds_read_b128 {v(YT+4*q,4)}, v{t1} offset:{3*4096+q*1024}")
        if q == 2: a("s_waitcnt lgkmcnt(4)")
    a("s_waitcnt lgkmcnt(0)")
    VT_, VD_, VO_, t1, t2, t3, t4, t5 = 40, 41, 42, 43, 44, 45, 46, 47
    a("s_waitcnt vmcnt(0)" if "wolate" in X else "s_waitcnt vmcnt(14)")
    for r in range(16):
        a(f"v_add_f32 v{88+r}, v{88+r}, v{104+r}")
        a(f"v_add_f32 v{YT+r}, v{YT+r}, v{120+r}")
    a("v_lshlrev_b32 v3, 16, v3")
    for r in range(16):
        a(f"v_add_f32 v{YT+r}, v{YT+r}, v{88+r}")
        a(f"v_lshlrev_b32 v{XS+r}, 16, v{XS+r}")
        a(f"v_mul_f32 v{XS+r}, v{XS+r}, v3")
        a(f"v_fma_f32 v{YT+r}, 2.0, v{YT+r}, v{XS+r}")
        a(f"v_sub_f32 v{XS+r}, 1.0, v{GT+r}")
        a(f"v_mul_f32 v{YT+r}, v{YT+r}, v{XS+r}")
    a(f"s_lshl_b32 s3, s{RB}, 6")
    a("s_lshl_b32 s33, s38, 5")
    a("s_add_u32 s3, s3, s33")
    a(f"v_lshrrev_b32 v{VT_}, 5, v0")
    a(f"v_lshlrev_b32 v{VT_}, 4, v{VT_}")
    a(f"v_add_u32 v{VT_}, s3, v{VT_}")
    a(f"s_lshl_b32 s33, s{J2}, 6")
    a(f"s_and_b32 s35, s{BW}, 1")
    a("s_lshl_b32 s35, s35, 5")
    a("s_add_u32 s33, s33, s35")
    a(f"v_and_b32 v{VD_}, 31, v0")
    a(f"v_add_u32 v{VD_}, s33, v{VD_}")
    a(f"v_mul_u32_u24 v{VO_}, 1792, v{VT_}")
    a(f"v_lshl_add_u32 v{VO_}, v{VD_}, 2, v{VO_}")
    srd(a, 48, S_OUT, OUTBYTES)
    a("v_lshrrev_b32 v6, 5, v0")
    a("v_lshlrev_b32 v6, 2, v6")
    a("v_bfe_u32 v7, v0, 2, 2")
    a("v_add_u32 v6, v6, v7")
    a("v_lshlrev_b32 v6, 7, v6")
    a("v_and_b32 v7, 16, v0")
    a(f"v_and_b32 v{t1}, 3, v0")
    a(f"v_lshl_add_u32 v7, v{t1}, 2, v7")
    a("v_lshl_add_u32 v6, v7, 1, v6")
    a(f"s_and_b32 s3, s{BW}, 1")
    a(f"s_mul_i32 s3, s3, {8*28*128}")
    a("v_add_u32 v6, s3, v6")
    if "wolate" in X:
        a(f"v_mov_b32 v4, {L_CNT}")
        lds_wait(a, C_OCNT, 8, 4, 5, P + "_opub")
        wo_dma(48, 49, 50)
    a("s_waitcnt vmcnt(0)")
    a("s_setprio 3")
    pf.stamp(12)
    bar()
    a(f"v_lshlrev_b32 v{t4}, 2, v0")
    a(f"s_lshl_b32 s35, s{RB}, 7")
    a(f"s_add_u32 s35, s35, {FL_O}")
    a("s_mov_b64 s[58:59], 0xff")
    poll(a, P + "_pollO", t5, t4, 35, 58)
    pf.stamp(13)
    a(f"s_lshl_b32 s3, s{RB}, 1")
    a("s_add_u32 s3, s3, s38")
    a("s_lshl_b32 s3, s3, 15")
    a(f"s_and_b32 s33, s{BW}, 1")
    a("s_lshl_b32 s33, s33, 14")
    a("s_add_u32 s3, s3, s33")
    a(f"s_add_u32 s32, s3, {WS_OF}")
    OFR = 88
    for st_ in range(16):
        a(f"s_add_u32 s33, s32, {st_*1024}")
        a(f"buffer_load_dwordx4 {v(OFR+4*st_,4)}, v1, s[{WSR}:{WSR+3}], s33 offen{SC1}")
    PA_ = [56, 72]
    WB = [24, 32]
    def rdW(st_):
        hd, f = st_ >> 1, st_ & 1
        off = (28 * hd + 16 * f) * 128
        b = WB[st_ & 1]
        for ct in range(2):
            a(f"ds_read_b64_tr_b16 {v(b+4*ct,2)}, v6 offset:{off+ct*64}")
            a(f"ds_read_b64_tr_b16 {v(b+4*ct+2,2)}, v6 offset:{off+ct*64+1024}")
    rdW(0)
    for st_ in range(16):
        if st_ + 1 < 16: rdW(st_ + 1)
        a(f"s_waitcnt vmcnt({15-st_}) lgkmcnt({4 if st_ + 1 < 16 else 0})")
        for ct in range(2):
            c = "0" if st_ == 0 else v(PA_[ct], 16)
            a(f"{MF} {v(PA_[ct],16)}, {v(OFR+4*st_,4)}, {v(WB[st_&1]+4*ct,4)}, {c}")
    a(f"s_xor_b32 s3, s{BW}, 1")
    a("s_lshl_b32 s3, s3, 12")
    a("s_add_u32 s3, s3, 65536")
    a(f"v_add_u32 v{t1}, s3, v1")
    a(f"s_and_b32 s33, s{BW}, 1")
    a("s_nop 7")
    a("s_cmp_eq_u32 s33, 0")
    a(f"s_cbranch_scc0 {P}_send0")
    for q in range(4): a(f"ds_write_b128 v{t1}, {v(PA_[1]+4*q,4)} offset:{q*1024}")
    a(f"s_branch {P}_sent")
    a.label(P + "_send0")
    a("s_nop 1")
    for q in range(4): a(f"ds_write_b128 v{t1}, {v(PA_[0]+4*q,4)} offset:{q*1024}")
    a("s_nop 1")
    for r in range(16): a(f"v_mov_b32 v{PA_[0]+r}, v{PA_[1]+r}")
    a.label(P + "_sent")
    bar()
    a(f"s_lshl_b32 s3, s{BW}, 12")
    a("s_add_u32 s3, s3, 65536")
    a(f"v_add_u32 v{t1}, s3, v1")
    for q in range(4): a(f"ds_read_b128 {v(88+4*q,4)}, v{t1} offset:{q*1024}")
    a("s_waitcnt lgkmcnt(0)")
    for r in range(16):
        a(f"v_add_f32 v{88+r}, v{88+r}, v{PA_[0]+r}")
        a(f"v_fma_f32 v{88+r}, v{GT+r}, v{88+r}, v{YT+r}")
    for r in range(16):
        a(f"buffer_store_dword v{88+r}, v{VO_}, s[48:51], 0 offen offset:{(r%2)*1792}{os.environ.get('OST', '')}")
        if r % 2 == 1 and r < 15: a(f"v_add_u32 v{VO_}, {2*1792}, v{VO_}")
    pf.stamp(14)
    a(f"s_branch {P}_end")
    a.label(P + "_skip")
    if os.environ.get("S3", "b") in ("b", "u", "late", "wo", "bi"): stage3("b")
    a(f"v_mov_b32 v54, {L_CNT}")
    a("v_mov_b32 v55, 1")
    a("s_mov_b64 exec, 1")
    a(f"ds_add_u32 v54, v55 offset:{C_HCNT}")
    a("s_mov_b64 exec, -1")
    a.label(P + "_end")

def lds_wait(a, coff, target, vaddr, vtmp, lab, sleep=1):
    a.label(lab)
    a(f"ds_read_b32 v{vtmp}, v{vaddr} offset:{coff}")
    a("s_waitcnt lgkmcnt(0)")
    a(f"v_readfirstlane_b32 s3, v{vtmp}")
    a(f"s_cmp_ge_u32 s3, {target}")
    a(f"s_cbranch_scc1 {lab}_ok")
    a(f"s_sleep {sleep}")
    a(f"s_sub_u32 s{SPIN}, s{SPIN}, 1")
    a(f"s_cbranch_scc0 {lab}")
    a(f"s_mov_b32 s{SPIN}, 0")
    a.label(lab + "_ok")

def lds_arrive(a, coff, vaddr, vtmp):
    a(f"v_mov_b32 v{vaddr}, {L_CNT}")
    a(f"v_mov_b32 v{vtmp}, 1")
    a("s_mov_b64 exec, 1")
    a(f"ds_add_u32 v{vaddr}, v{vtmp} offset:{coff}")
    a("s_mov_b64 exec, -1")

def dma_loop(a, lab, vaddr, n, dsrc, dlds):
    a("s_mov_b32 s36, %d" % n)
    a.label(lab)
    a("s_sub_u32 s36, s36, 1")
    a(f"buffer_load_dwordx4 v{vaddr}, s[{TR}:{TR+3}], s32 offen lds")
    a(f"s_add_u32 s32, s32, {dsrc}")
    a(f"s_add_u32 m0, m0, {dlds}")
    a("s_cmp_lg_u32 s36, 0")
    a(f"s_cbranch_scc1 {lab}")

def q_loop(a, acc, X4, W4, vxe, vxo, vw):
    def rd(j):
        k = j & 3
        a(f"ds_read_b128 {v(X4+4*k,4)}, v{vxo if j & 1 else vxe} offset:{(j>>1)*4096}")
        a(f"ds_read_b64_tr_b16 {v(W4+4*k,2)}, v{vw} offset:{j*2048}")
        a(f"ds_read_b64_tr_b16 {v(W4+4*k+2,2)}, v{vw} offset:{j*2048+512}")
    for j in range(4): rd(j)
    for j in range(28):
        left = min(3, 27 - j)
        a(f"s_waitcnt lgkmcnt({3*left})")
        c = "0" if j == 0 else v(acc, 16)
        a(f"{MF} {v(acc,16)}, {v(W4+4*(j&3),4)}, {v(X4+4*(j&3),4)}, {c}")
        if j + 4 < 28: rd(j + 4)

def gen_fused(a):
    name = NAME + "_kernel"
    a(f".globl {name}")
    a(".p2align 8")
    a(f".type {name},@function")
    a.label(name)
    END = "L_end"
    a("s_cmp_ge_u32 s2, 256")
    a(f"s_cbranch_scc1 {END}")
    a("s_load_dwordx16 s[64:79], s[0:1], 0")
    a("s_load_dwordx16 s[80:95], s[0:1], 64")
    a("s_load_dwordx4 s[96:99], s[0:1], 128")
    if "earlycode" in X:
        a("s_getpc_b64 s[56:57]")
        a.label("p0_pc0")
        a("v_lshlrev_b32 v148, 7, v0")
        a("s_mov_b32 s3, L_end-p0_pc0")
        a("v_min_u32 v148, s3, v148")
        a("global_load_dword v149, v148, s[56:57]")
    a("v_lshrrev_b32 v2, 6, v0")
    a("v_and_b32 v0, 63, v0")
    a(f"v_readfirstlane_b32 s{WV}, v2")
    a(f"v_mov_b32 v4, {L_CNT}")
    a("v_mov_b32 v5, 0")
    a("v_lshl_add_u32 v4, v0, 2, v4")
    a("ds_write_b32 v4, v5")
    a(f"s_and_b32 s{RB}, s2, 7")
    a(f"s_lshl_b32 s{RB}, s{RB}, 2")
    a(f"s_lshr_b32 s{J2}, s2, 3")
    a(f"s_and_b32 s3, s{J2}, 3")
    a(f"s_add_u32 s{RB}, s{RB}, s3")
    a(f"s_lshr_b32 s{J2}, s{J2}, 2")
    a("v_lshlrev_b32 v1, 4, v0")
    a(f"s_mov_b32 s{SPIN}, 0x100000")
    a(f"s_sub_u32 s{BW}, s{WV}, 8")
    pfA = Prof(a, 167)
    xtile_lane_off(a, 3, 0, 4, 5)
    a("s_waitcnt lgkmcnt(0)")
    srd(a, WSR, S_WS, WS_SIZE)
    if PROF: a("v_mov_b32 v167, 0")
    pfA.stamp(0)
    if PROF:
        a("s_getreg_b32 s60, hwreg(HW_REG_XCC_ID)")
        a("v_writelane_b32 v167, s60, 20")
        a("s_getreg_b32 s60, hwreg(HW_REG_HW_ID)")
        a("v_writelane_b32 v167, s60, 21")
    a(f"s_cmp_lt_u32 s{WV}, 4")
    a("s_cselect_b64 s[46:47], -1, 0")
    a(f"s_cmp_eq_u32 s{J2}, 0")
    a(f"s_cselect_b32 s{TR}, s{S_WK}, s{S_WV}")
    a(f"s_cselect_b32 s{TR+1}, s{S_WK+1}, s{S_WV+1}")
    a(f"s_mov_b32 s{TR+2}, {WKBYTES}")
    a(f"s_mov_b32 s{TR+3}, 0x00020000")
    a(f"s_mul_i32 s32, s{BW}, 7168")
    a(f"s_add_u32 s34, s32, {L_WKV}")
    a("s_mov_b32 s33, 1024")
    a("s_mov_b32 s35, 1024")
    a(f"s_cmp_lt_u32 s{J2}, 2")
    a("s_cselect_b32 s36, 7, 0")
    a(f"s_cmp_ge_u32 s{WV}, 8")
    a("s_cselect_b32 s36, s36, 0")
    a("v_cndmask_b32 v3, v1, v3, s[46:47]")
    a(f"s_mul_i32 s40, s{RB}, {64*896}")
    a(f"s_lshr_b32 s3, s{WV}, 1")
    a(f"s_mul_i32 s3, s3, {32*896}")
    a("s_add_u32 s40, s40, s3")
    a(f"s_and_b32 s3, s{WV}, 1")
    a(f"s_mul_i32 s3, s3, {8*896}")
    a("s_add_u32 s40, s40, s3")
    a(f"s_lshl_b32 s41, s{WV}, 10")
    a(f"s_cmp_lt_u32 s{WV}, 4")
    a(f"s_cselect_b32 s{TR}, s{S_X}, s{TR}")
    a(f"s_cselect_b32 s{TR+1}, s{S_X+1}, s{TR+1}")
    a(f"s_cselect_b32 s{TR+2}, {XBYTES}, s{TR+2}")
    a("s_cselect_b32 s32, s40, s32")
    a("s_cselect_b32 s34, s41, s34")
    a("s_cselect_b32 s33, 64, s33")
    a("s_cselect_b32 s35, 4096, s35")
    a("s_cselect_b32 s36, 14, s36")
    a("s_mov_b32 m0, s34")
    a("s_cmp_eq_u32 s36, 0")
    a("s_cbranch_scc1 p0_first_done")
    a.label("p0_first")
    a("s_sub_u32 s36, s36, 1")
    a(f"buffer_load_dwordx4 v3, s[{TR}:{TR+3}], s32 offen lds")
    a("s_add_u32 s32, s32, s33")
    a("s_add_u32 m0, m0, s35")
    a("s_cmp_lg_u32 s36, 0")
    a("s_cbranch_scc1 p0_first")
    a.label("p0_first_done")
    a(f"s_cmp_ge_u32 s{WV}, 8")
    a("s_cbranch_scc1 p0_bgw")
    a(f"s_cmp_ge_u32 s{WV}, 4")
    a("s_cbranch_scc1 p0_kvw")
    a("s_barrier")
    pfA.stamp(1)
    xfrag_addr(a, 6, 0, 4)
    tr_rowcol(a, 12, 13, 0, 4)
    a(f"s_lshr_b32 s38, s{WV}, 1")
    a(f"s_and_b32 s39, s{WV}, 1")
    a("s_lshl_b32 s3, s38, 11")
    a("v_add_u32 v6, s3, v6")
    a("v_xor_b32 v7, 32, v6")
    a("v_lshlrev_b32 v10, 7, v12")
    a("v_lshl_add_u32 v10, v13, 1, v10")
    a("s_mul_i32 s3, s39, 56")
    a(f"s_add_u32 s3, s3, {L_WQ}")
    a("v_add_u32 v10, s3, v10")
    a("s_waitcnt vmcnt(0)")
    lds_arrive(a, C_XR, 4, 5)
    pfA.stamp(2)
    a("s_waitcnt lgkmcnt(0)")
    a("s_barrier")
    pfA.stamp(3)
    q_loop(a, 16, 32, 48, 6, 7, 10)
    a(f"s_mov_b32 s42, {hex(QSCALE)}")
    a(f"s_lshl_b32 s3, s{WV}, 11")
    a(f"s_add_u32 s3, s3, {L_QX}")
    a("v_add_u32 v12, s3, v1")
    a("s_nop 7")
    a("s_nop 0")
    for i in range(16): a(f"v_mul_f32 v{16+i}, s42, v{16+i}")
    for i in range(8): a(f"v_cvt_pk_bf16_f32 v{32+i}, v{16+2*i}, v{17+2*i}")
    a("s_mov_b32 exec_lo, 0")
    a("v_mov_b32 v38, 0")
    a("v_mov_b32 v39, 0")
    a("s_mov_b32 exec_lo, -1")
    a("ds_write_b128 v12, v[32:35]")
    a("ds_write_b128 v12, v[36:39] offset:1024")
    a("s_branch p0_b1")
    a.label("p0_kvw")
    a(f"s_sub_u32 s39, s{WV}, 4")
    if "earlycode" not in X:
        a("s_getpc_b64 s[56:57]")
        a.label("p0_pc")
        a("s_lshl_b32 s3, s39, 13")
        a("v_lshlrev_b32 v150, 7, v0")
        a("v_add_u32 v150, s3, v150")
        a(f"s_sub_u32 s56, s56, p0_pc-{NAME}_kernel")
        a("s_subb_u32 s57, s57, 0")
        a(f"s_mov_b32 s3, L_end-{NAME}_kernel")
        a("v_min_u32 v150, s3, v150")
        a("global_load_dword v150, v150, s[56:57]")
    a("s_cmp_eq_u32 s39, 0")
    a("s_cbranch_scc0 p0_pf_out")
    a("v_lshlrev_b32 v151, 21, v0")
    a("s_mov_b64 exec, 7")
    a(f"buffer_load_dword v151, v151, s[{WSR}:{WSR+3}], 0 offen")
    a("s_mov_b64 exec, -1")
    a.label("p0_pf_out")
    a("s_cmp_eq_u32 s39, 1")
    a("s_cbranch_scc0 p0_pf_done")
    srd(a, 48, S_OUT, OUTBYTES)
    a("v_mul_u32_u24 v151, 0x1c0000, v0")
    a("s_mov_b64 exec, 7")
    a("buffer_load_dword v151, v151, s[48:51], 0 offen")
    a("s_mov_b64 exec, -1")
    if os.environ.get("S3") == "mall" or "mallwarm" in X:
        a("s_cmp_eq_u32 s39, 3")
        a("s_cbranch_scc0 p0_pf_done")
        a("v_lshlrev_b32 v149, 7, v0")
        a(f"s_mul_i32 s3, s2, {13*128}")
        a(f"s_mov_b32 m0, {L_JUNK}")
        a("s_mov_b64 exec, 0x1fff")
        for sp in (S_CRE, S_CIM, S_WO):
            srd(a, 48, sp, WBYTES)
            a("buffer_load_dword v149, s[48:51], s3 offen lds")
        a("s_mov_b64 exec, -1")
    a.label("p0_pf_done")
    a("s_barrier")
    a(f"s_cmp_ge_u32 s{J2}, 3")
    a("s_cbranch_scc1 p0_kv_none")
    a("s_lshr_b32 s38, s39, 1")
    a("s_and_b32 s39, s39, 1")
    a(f"s_mov_b32 s15, {1 if 'dry' in X else 0}")
    a("s_setprio 3")
    a.label("p0_kv_setup")
    a(f"s_mov_b32 s8, s{WSR}")
    a(f"s_mov_b32 s9, s{WSR+1}")
    a("s_cmp_eq_u32 s15, 0")
    a(f"s_cselect_b32 s10, {WS_SIZE}, 0")
    a("s_mov_b32 s11, 0x00020000")
    xfrag_addr(a, 6, 0, 4)
    tr_rowcol(a, 12, 13, 0, 4)
    a("s_lshl_b32 s3, s38, 11")
    a("s_mul_i32 s41, s39, 28672")
    a("s_add_u32 s3, s3, s41")
    a("v_add_u32 v6, s3, v6")
    a("v_xor_b32 v7, 32, v6")
    a("s_mul_i32 s40, s39, 14")
    a(f"s_cmp_eq_u32 s{J2}, 2")
    a("s_cbranch_scc1 p0_kv_gaddr")
    a("v_mul_u32_u24 v10, 56, v12")
    a("v_lshl_add_u32 v10, v13, 1, v10")
    a(f"s_mul_i32 s3, s40, {16*56}")
    a(f"s_add_u32 s3, s3, {L_WKV}")
    a("v_add_u32 v10, s3, v10")
    a("v_add_u32 v11, 224, v10")
    a(f"s_mov_b32 s42, {16*56}")
    a("s_branch p0_kv_addr_done")
    a.label("p0_kv_gaddr")
    a("v_lshlrev_b32 v10, 3, v12")
    a("s_lshl_b32 s3, s40, 7")
    a(f"s_add_u32 s3, s3, {L_WKV}")
    a("v_add_u32 v10, s3, v10")
    a("v_add_u32 v11, 32, v10")
    a("s_mov_b32 s42, 128")
    a.label("p0_kv_addr_done")
    a(f"v_mov_b32 v4, {L_CNT}")
    a("s_cmp_lg_u32 s15, 0")
    a("s_cbranch_scc1 p0_xr_ok")
    lds_wait(a, C_XR, 8, 4, 5, "p0_xr")
    pfA.stamp(2)
    def kv_rd(i):
        a(f"ds_read_b128 {v(32+4*i,4)}, v{6+(i&1)} offset:{(i>>1)*4096}")
        a(f"ds_read_b64_tr_b16 {v(88+4*i,2)}, v10")
        a(f"ds_read_b64_tr_b16 {v(88+4*i+2,2)}, v11")
        if i < 13:
            a("v_add_u32 v10, s42, v10")
            a("v_add_u32 v11, s42, v11")
    def kv_mm(swap, tag):
        for i in range(4): kv_rd(i)
        for i in range(14):
            a(f"s_waitcnt lgkmcnt({3*min(3, 13-i)})")
            A, B = (32+4*i, 88+4*i) if swap else (88+4*i, 32+4*i)
            a(f"{MF} v[16:31], {v(A,4)}, {v(B,4)}, {'0' if i == 0 else 'v[16:31]'}")
            if i + 4 < 14: kv_rd(i + 4)
    a(f"s_cmp_ge_u32 s{J2}, 1")
    a("s_cbranch_scc1 p0_kv_swap")
    kv_mm(False, "k")
    a("s_branch p0_kv_mm_done")
    a.label("p0_kv_swap")
    kv_mm(True, "v")
    a.label("p0_kv_mm_done")
    pfA.stamp(22)
    a("s_lshl_b32 s3, s38, 12")
    a(f"s_add_u32 s3, s3, {L_QX}")
    a("v_add_u32 v12, s3, v1")
    a("s_nop 7")
    a("s_nop 0")
    a("s_cmp_lg_u32 s15, 0")
    a("s_cbranch_scc1 p0_kv_root")
    a("s_cmp_eq_u32 s39, 0")
    a("s_cbranch_scc1 p0_kv_root")
    for q in range(4): a(f"ds_write_b128 v12, {v(16+4*q,4)} offset:{q*1024}")
    a("s_waitcnt lgkmcnt(0)")
    a("s_lshl_b32 s3, s38, 2")
    a(f"v_mov_b32 v4, {L_CNT}")
    a("v_add_u32 v4, s3, v4")
    a("v_mov_b32 v5, 1")
    a("s_mov_b64 exec, 1")
    a(f"ds_add_u32 v4, v5 offset:{C_KVR}")
    a("s_mov_b64 exec, -1")
    a("s_branch p0_kv_none")
    a.label("p0_kv_root")
    a("s_lshl_b32 s3, s38, 2")
    a(f"v_mov_b32 v4, {L_CNT}")
    a("v_add_u32 v4, s3, v4")
    a("s_cmp_lg_u32 s15, 0")
    a("s_cbranch_scc1 p0_kvr_ok")
    lds_wait(a, C_KVR, 1, 4, 5, "p0_kvr")
    pfA.stamp(23)
    for i in range(4): a(f"ds_read_b128 {v(32+4*i,4)}, v12 offset:{i*1024}")
    a("s_waitcnt lgkmcnt(0)")
    for r in range(16): a(f"v_add_f32 v{16+r}, v{16+r}, v{32+r}")
    a(f"s_lshl_b32 s43, s{RB}, 1")
    a("s_add_u32 s43, s43, s38")
    a(f"s_cmp_eq_u32 s{J2}, 2")
    a("s_cbranch_scc1 p0_gate_epi")
    for i in range(8): a(f"v_cvt_pk_bf16_f32 v{32+i}, v{16+2*i}, v{17+2*i}")
    a("s_lshl_b32 s44, s43, 12")
    a(f"s_add_u32 s44, s44, {WS_KV}")
    a(f"s_cmp_eq_u32 s{J2}, 1")
    a("s_cbranch_scc1 p0_v_epi")
    a("s_mov_b32 exec_lo, 0")
    a("v_mov_b32 v38, 0x3f803f80")
    a("v_mov_b32 v39, 0x00003f80")
    a("s_mov_b32 exec_lo, -1")
    a(f"buffer_store_dwordx4 v[32:35], v1, s[8:11], s44 offen{SC1}")
    a(f"buffer_store_dwordx4 v[36:39], v1, s[8:11], s44 offen offset:1024{SC1}")
    a("s_branch p0_kv_arrive")
    a.label("p0_v_epi")
    a("v_max3_f32 v14, |v16|, |v17|, |v18|")
    for j in range(3, 15, 2): a(f"v_max3_f32 v14, v14, |v{16+j}|, |v{17+j}|")
    a("v_max_f32 v14, v14, |v31|")
    a("v_and_b32 v13, 31, v0")
    a("v_cmp_gt_u32 s[46:47], 28, v13")
    a(f"v_cmp_lt_f32 vcc, {hex(VMAX)}, v14")
    a("s_and_b64 vcc, vcc, s[46:47]")
    a("s_cbranch_vccz p0_v_ok")
    a("s_cmp_lg_u32 s15, 0")
    a("s_cbranch_scc1 p0_v_ok")
    srd(a, 48, S_DBG, 256)
    a("v_mov_b32 v14, 1")
    a(f"v_mov_b32 v15, {D_BAD}")
    a("s_mov_b64 exec, 1")
    a(f"buffer_store_dword v14, v15, s[48:51], 0 offen{SC1}")
    a("s_mov_b64 exec, -1")
    a.label("p0_v_ok")
    a("v_and_b32 v13, 31, v0")
    a("v_cmp_eq_u32 vcc, 28, v13")
    a("v_mov_b32 v14, 0x3f803f80")
    a("s_nop 0")
    a("v_cndmask_b32 v14, 0, v14, vcc")
    a("v_cmp_lt_u32 vcc, 27, v13")
    a("s_nop 1")
    for i in range(8): a(f"v_cndmask_b32 v{32+i}, v{32+i}, v14, vcc")
    a(f"buffer_store_dwordx4 v[32:35], v1, s[8:11], s44 offen offset:2048{SC1}")
    a(f"buffer_store_dwordx4 v[36:39], v1, s[8:11], s44 offen offset:3072{SC1}")
    a("s_branch p0_kv_arrive")
    a.label("p0_gate_epi")
    a(f"s_mov_b32 s42, {hex(LOG2E)}")
    for i in range(16): a(f"v_mul_f32 v{16+i}, s42, v{16+i}")
    for i in range(16): a(f"v_exp_f32 v{16+i}, -v{16+i}")
    for i in range(16): a(f"v_add_f32 v{16+i}, 1.0, v{16+i}")
    for i in range(16): a(f"v_rcp_f32 v{16+i}, v{16+i}")
    a("v_lshrrev_b32 v13, 5, v0")
    a("v_lshlrev_b32 v13, 6, v13")
    a("s_lshl_b32 s44, s43, 7")
    a(f"s_add_u32 s44, s44, {WS_G}")
    a("v_and_b32 v14, 31, v0")
    a("v_cmp_eq_u32 vcc, 0, v14")
    a("s_and_saveexec_b64 s[46:47], vcc")
    for q in range(4):
        a(f"buffer_store_dwordx4 {v(16+4*q,4)}, v13, s[8:11], s44 offen offset:{16*q}{SC1}")
    a("s_mov_b64 exec, -1")
    a.label("p0_kv_arrive")
    a("s_cmp_eq_u32 s15, 0")
    a("s_cbranch_scc1 p0_kv_real")
    a("s_mov_b32 s15, 0")
    a("s_branch p0_kv_setup")
    a.label("p0_kv_real")
    pfA.stamp(10)
    a("s_mov_b32 s16, 1")
    a("s_branch p0_kv_b0")
    a.label("p0_kv_none")
    a("s_mov_b32 s16, 0")
    a.label("p0_kv_b0")
    a("s_setprio 0")
    a("s_waitcnt lgkmcnt(0)")
    a("s_barrier")
    pfA.stamp(3)
    a("s_branch p0_b1")
    a.label("p0_bgw")
    a(f"s_cmp_eq_u32 s{WV}, 8")
    a("s_cbranch_scc0 p0_t9")
    srd(a, 48, S_X, XBYTES)
    a("s_and_b32 s3, s2, 7")
    a(f"s_mul_i32 s3, s3, {256*896}")
    a("s_lshr_b32 s46, s2, 3")
    a("s_mul_i32 s46, s46, 7168")
    a("s_add_u32 s3, s3, s46")
    a("v_lshlrev_b32 v50, 7, v0")
    a("s_mov_b32 exec_hi, 0xffffff")
    a("buffer_load_dword v52, v50, s[48:51], s3 offen")
    a("s_mov_b64 exec, -1")
    a("s_branch p0_t_done")
    a.label("p0_t9")
    a(f"s_cmp_eq_u32 s{WV}, 9")
    a("s_cbranch_scc0 p0_t10")
    touch_matrix(a, S_WQ, 52, 50)
    a("s_branch p0_t_done")
    a.label("p0_t10")
    a(f"s_cmp_eq_u32 s{WV}, 10")
    a("s_cbranch_scc0 p0_t_done")
    a("s_lshr_b32 s3, s2, 3")
    a(f"s_mul_i32 s3, s3, {7*128}")
    a("v_lshlrev_b32 v50, 7, v0")
    a("s_mov_b64 exec, 0x7f")
    srd(a, 48, S_WK, WKBYTES)
    a("buffer_load_dword v52, v50, s[48:51], s3 offen")
    srd(a, 48, S_WV, WKBYTES)
    a("buffer_load_dword v53, v50, s[48:51], s3 offen")
    a("s_mov_b64 exec, -1")
    a.label("p0_t_done")
    a(f"s_cmp_eq_u32 s{WV}, 11")
    a("s_cbranch_scc0 p0_nononce")
    a("s_cmp_eq_u32 s2, 0")
    a("s_cbranch_scc0 p0_nononce")
    srd(a, 48, S_DBG, 256)
    a("v_mov_b32 v7, 0")
    a("s_memrealtime s[60:61]")
    a("s_waitcnt lgkmcnt(0)")
    a("s_and_b32 s60, s60, 0xfffffffc")
    a("s_or_b32 s60, s60, 1")
    a("v_mov_b32 v6, s60")
    a("s_mov_b64 exec, 1")
    a(f"buffer_store_dword v6, v7, s[48:51], 0 offen offset:{D_NONCE}{SC1}")
    a("s_mov_b64 exec, -1")
    a.label("p0_nononce")
    a(f"s_cmp_eq_u32 s{J2}, 2")
    a("s_cbranch_scc0 p0_wkv_done")
    a(f"s_cmp_eq_u32 s{WV}, 8")
    a("s_cbranch_scc0 p0_wkv_done")
    srd(a, TR, S_GW, 896)
    a("v_lshlrev_b32 v3, 1, v0")
    for i in range(7):
        a(f"buffer_load_ushort v{10+i}, v3, s[{TR}:{TR+3}], 0 offen offset:{i*128}")
    a("v_lshlrev_b32 v4, 3, v0")
    a(f"v_add_u32 v4, {L_WKV}, v4")
    a("s_waitcnt vmcnt(0)")
    for i in range(7):
        a(f"v_lshl_or_b32 v{20+2*i}, v{10+i}, 16, v{10+i}")
        a(f"v_mov_b32 v{21+2*i}, v{20+2*i}")
        a(f"ds_write_b64 v4, {v(20+2*i,2)} offset:{i*512}")
    a.label("p0_wkv_done")
    a(f"s_lshl_b32 s37, s{J2}, 1")
    a(f"s_and_b32 s3, s{BW}, 1")
    a("s_add_u32 s37, s37, s3")
    a("v_and_b32 v4, 31, v0")
    a("s_lshl_b32 s3, s37, 6")
    a("v_lshl_add_u32 v4, v4, 1, s3")
    srd(a, 40, S_LRE, 896); a("buffer_load_ushort v8, v4, s[40:43], 0 offen")
    srd(a, 44, S_LIM, 896); a("buffer_load_ushort v9, v4, s[44:47], 0 offen")
    srd(a, 52, S_LDT, 896); a("buffer_load_ushort v10, v4, s[52:55], 0 offen")
    a("s_barrier")
    a("s_waitcnt vmcnt(3) lgkmcnt(0)")
    lds_arrive(a, C_XR, 4, 5)
    srd(a, TR, S_WQ, WBYTES)
    a("v_lshrrev_b32 v3, 3, v0")
    a("v_mul_u32_u24 v3, 896, v3")
    a("v_and_b32 v4, 7, v0")
    a("v_lshl_add_u32 v3, v4, 4, v3")
    a(f"s_mul_i32 s32, s{BW}, {112*896}")
    a(f"s_mul_i32 s33, s{J2}, 112")
    a("s_add_u32 s32, s32, s33")
    a(f"s_mul_i32 s34, s{BW}, 14336")
    a(f"s_add_u32 s34, s34, {L_WQ}")
    a("s_mov_b32 m0, s34")
    dma_loop(a, "p0_qdma", 3, 14, 7168, 1024)
    a(f"s_cmp_gt_u32 s{WV}, 9")
    a("s_cbranch_scc1 p0_nob")
    a(f"s_cmp_eq_u32 s{WV}, 8")
    a(f"s_cselect_b32 s56, s{S_BRE}, s{S_BIM}")
    a(f"s_cselect_b32 s57, s{S_BRE+1}, s{S_BIM+1}")
    touch_matrix(a, 56, 52, 50)
    a("s_mov_b32 s17, 1")
    a("s_waitcnt vmcnt(16)")
    a("s_branch p0_nob2")
    a.label("p0_nob")
    a("s_mov_b32 s17, 0")
    a("s_waitcnt vmcnt(14)")
    a.label("p0_nob2")
    a(f"v_mov_b32 v4, {L_CNT}")
    lds_wait(a, C_XR, 8, 4, 5, "p0_xr2")
    xfrag_addr(a, 6, 0, 4)
    a(f"s_lshr_b32 s38, s{BW}, 1")
    a("s_lshl_b32 s3, s38, 11")
    a("v_add_u32 v6, s3, v6")
    a("v_xor_b32 v7, 32, v6")
    for j in range(28):
        a(f"ds_read_b128 {v(56+4*j,4)}, v{6 + (j&1)} offset:{(j>>1)*4096}")
        if j in (11, 21): a("s_waitcnt lgkmcnt(2)")
    a("v_lshlrev_b32 v8, 16, v8")
    a("v_lshlrev_b32 v9, 16, v9")
    a("v_lshlrev_b32 v10, 16, v10")
    a(f"v_mul_f32 v10, {hex(LOG2E)}, v10")
    a("v_exp_f32 v10, v10")
    a("s_nop 0")
    a("v_cvt_pk_bf16_f32 v10, v10, v10")
    a("v_lshlrev_b32 v10, 16, v10")
    a("v_mul_f32 v11, v10, v8")
    a("v_mul_f32 v12, v10, v9")
    a(f"v_mul_f32 v11, {hex(LOG2E)}, v11")
    a(f"v_mul_f32 v12, {hex(INV2PI)}, v12")
    a("v_exp_f32 v13, v11")
    a("v_fract_f32 v14, v12")
    a("s_nop 0")
    a("v_cos_f32 v2, v14")
    a("v_sin_f32 v3, v14")
    a("s_nop 0")
    a("v_mul_f32 v2, v2, v13")
    a("v_mul_f32 v3, v3, v13")
    a("v_add_f32 v13, -1.0, v2")
    a("v_mul_f32 v14, v8, v8")
    a("v_fma_f32 v14, v9, v9, v14")
    a("v_rcp_f32 v14, v14")
    a("v_mul_f32 v15, v13, v8")
    a("v_fma_f32 v15, v3, v9, v15")
    a("v_mul_f32 v16, v3, v8")
    a("v_fma_f32 v16, -v13, v9, v16")
    a("v_mul_f32 v4, v15, v14")
    a("v_mul_f32 v5, v16, v14")
    a("s_cmp_eq_u32 s17, 0")
    a("s_cbranch_scc1 p0_bgw0")
    a("s_waitcnt vmcnt(2) lgkmcnt(0)")
    a("s_branch p0_bgw1")
    a.label("p0_bgw0")
    a("s_waitcnt vmcnt(0) lgkmcnt(0)")
    a.label("p0_bgw1")
    a("s_barrier")
    a.label("p0_b1")
    a("s_waitcnt lgkmcnt(0)")
    if PROF:
        a(f"s_cmp_ge_u32 s{WV}, 8")
        a("s_cbranch_scc1 p0_b1_bgst")
        pfA.stamp(9)
        a("s_branch p0_b1_go")
        a.label("p0_b1_bgst")
        BgProf(a).stamp(4)
        a.label("p0_b1_go")
    a("s_barrier")
    a(f"s_cmp_ge_u32 s{WV}, 8")
    a("s_cbranch_scc1 p1_bg")
    a(f"s_cmp_lt_u32 s{WV}, 4")
    a("s_cbranch_scc1 p1_noarr")
    a("s_cmp_eq_u32 s16, 0")
    a("s_cbranch_scc1 p1_noarr")
    a(f"v_mov_b32 v14, {L_CNT}")
    a("v_mov_b32 v15, 1")
    a("s_waitcnt vmcnt(0)")
    pfA.stamp(11)
    a("s_mov_b64 exec, 1")
    a(f"s_or_b32 s3, s{RB}, s{J2}")
    a(f"s_cmp_eq_u32 s{WV}, 4")
    a("s_cselect_b32 s3, s3, 1")
    a("s_cmp_eq_u32 s3, 0")
    a("s_cbranch_scc0 p1_nok0")
    srd(a, 48, S_DBG, 256)
    a("v_mov_b32 v12, 1")
    a(f"v_mov_b32 v13, {D_K0}")
    a(f"buffer_store_dword v12, v13, s[48:51], 0 offen{SC1}")
    a.label("p1_nok0")
    a(f"ds_add_rtn_u32 v15, v14, v15 offset:{C_KVA}")
    a("s_waitcnt lgkmcnt(0)")
    a("v_readfirstlane_b32 s3, v15")
    a("s_cmp_eq_u32 s3, 1")
    a("s_cbranch_scc0 p1_arrdone")
    srd(a, 48, S_DBG, 256)
    a("v_mov_b32 v14, 1")
    a(f"s_cmp_eq_u32 s{J2}, 2")
    a(f"s_cselect_b32 s3, {D_GCNT}, {D_CNT}")
    a("v_mov_b32 v15, s3")
    a("buffer_atomic_add v14, v15, s[48:51], 0 offen sc0 sc1")
    if "kvfirst" in X:
        a(f"v_mov_b32 v12, {L_CNT}")
        a("v_mov_b32 v13, 1")
        a(f"ds_add_u32 v12, v13 offset:{C_KVI}")
    a("s_waitcnt vmcnt(0)")
    a("v_readfirstlane_b32 s3, v14")
    a(f"s_cmp_eq_u32 s{J2}, 2")
    a("s_cselect_b32 s46, 31, 63")
    a(f"s_mov_b32 s47, {D_GO}")
    a(f"s_cselect_b32 s47, {D_GOG}, s47")
    a("s_cmp_eq_u32 s3, s46")
    a("s_cbranch_scc0 p1_arrdone")
    a("v_mov_b32 v14, 1")
    a("v_mov_b32 v15, s47")
    a(f"buffer_store_dword v14, v15, s[48:51], 0 offen{SC1}")
    a.label("p1_arrdone")
    a("s_mov_b64 exec, -1")
    pfA.stamp(12)
    a.label("p1_noarr")
    if PROF: a("v_mov_b32 v0, v167")
    pf = Prof(a, 0)
    pf.stamp(4)
    gen_attention(a, pf)
    pf.flush(2)
    a(f"s_branch {END}")
    a.label("p1_bg")
    a(f"s_setprio {os.environ.get('BP', '3')}")
    gen_background(a, BgProf(a))
    a.label(END)
    a("s_endpgm")
    return name

class BgProf:
    def __init__(self, a): self.a = a; self.T = [54, 55]
    def stamp(self, slot):
        if not PROF or "noprofb" in X: return
        if "onlyb" in os.environ and str(slot) not in os.environ["onlyb"].split(","): return
        a = self.a
        a("s_memrealtime s[60:61]")
        a("s_lshl_b32 s62, s2, 4")
        a(f"s_add_u32 s62, s62, s{WV}")
        a("s_lshl_b32 s62, s62, 8")
        a(f"s_add_u32 s62, s62, {WS_PROF + 4*slot}")
        a("s_waitcnt vmcnt(0) lgkmcnt(0)")
        a("s_mov_b64 exec, 1")
        t0, t1 = self.T
        a(f"v_mov_b32 v{t0}, s60")
        a(f"v_mov_b32 v{t1}, 0")
        a(f"buffer_store_dword v{t0}, v{t1}, s[{WSR}:{WSR+3}], s62 offen")
        a("s_mov_b64 exec, -1")
        a("s_waitcnt vmcnt(0)")
    def flush(self): pass

def build():
    a = Asm()
    name = gen_fused(a)
    text = a.text()
    probs = check_hazards(text)
    ref = open("gated_mix__grouped_kv_mqa__ssm_conv_s5__prompt.s.ref").read().split("\n")
    pre = []
    for ln in ref:
        if not ln.startswith(";"): break
        if "Override launch" in ln or "grid=ceil" in ln or "@launch" in ln: continue
        pre.append(ln)
    head = "\n".join(pre) + "\n"
    head += f"; @launch grid=(256,1,1) block=(768,1,1) lds={LDS_TOTAL}\n"
    out = head + '.amdgcn_target "amdgcn-amd-amdhsa--gfx950"\n.text\n' + text
    out += f""".section .rodata,"a"
.p2align 6
.amdhsa_kernel {name}
  .amdhsa_next_free_vgpr 168
  .amdhsa_next_free_sgpr 102
  .amdhsa_accum_offset 168
  .amdhsa_group_segment_fixed_size 0
  .amdhsa_kernarg_size 144
  .amdhsa_user_sgpr_count 2
  .amdhsa_user_sgpr_kernarg_segment_ptr 1
  .amdhsa_system_sgpr_workgroup_id_x 1
.end_amdhsa_kernel
"""
    return out, probs

if __name__ == "__main__":
    out, probs = build()
    open(sys.argv[1], "w").write(out)
    print("wrote", sys.argv[1], "hazards:", len(probs))
```

```python
import sys, os, struct, math
from asmlib import Asm, v, s, check_hazards

NAME = "gated_mix__grouped_kv_mqa__ssm_conv_s5__prompt"
X = set(os.environ.get('XF', '').split(','))
PROF = "prof" in X
def f2u(x): return struct.unpack("<I", struct.pack("<f", x))[0]
QSCALE = f2u(math.log2(math.e) / math.sqrt(28.0))
LOG2E = f2u(math.log2(math.e))
INV2PI = f2u(1.0 / (2.0 * math.pi))
MF = "v_mfma_f32_32x32x16_bf16"
SC1 = " sc1"
POLLSLEEP = int(os.environ.get('PS', '1'))

WS_KV = 0x000000
WS_G  = 0x040000
WS_FL = 0x042000
FL_H  = WS_FL
FL_O  = WS_FL + 0x1000
WS_E  = 0x048000
D_CNT, D_GCNT, D_GO, D_BAD, D_K0, D_NONCE, D_GOG = 0, 64, 128, 132, 136, 140, 144
WS_OF = 0x080000
WS_HF = 0x280000
WS_PROF = 0x800000
WS_SIZE = 0x1000000
XBYTES = 2048 * 448 * 2
WBYTES = 448 * 448 * 2
WKBYTES = 448 * 28 * 2
OUTBYTES = 2048 * 448 * 4

S_X, S_WQ, S_WK, S_WV, S_WO = 64, 66, 68, 70, 72
S_LRE, S_LIM = 76, 78
S_BRE, S_BIM, S_CRE, S_CIM, S_LDT, S_DSK, S_GW, S_OUT = 80, 82, 84, 86, 88, 90, 92, 94
S_DBG, S_WS = 96, 98
RB, J2, WV, BW = 20, 21, 22, 23
WSR = 24
TR = 28
NONCE = 19
SPIN = 18

L_X = 0; L_WQ = 57344; L_WKV = 114688; L_GW = 143360
L_QX = 147456
L_CNT = 163584
C_ATT, C_BG, C_NONCE, C_BAD, C_UDONE, C_HCNT, C_OCNT, C_XR, C_KVR, C_KVA, C_TRD, C_LEND, C_BL, C_KVI = 0, 4, 8, 12, 16, 20, 24, 28, 32, 40, 44, 48, 52, 56
B_EX = 159744; B_HT = 90112
B_HT2 = 69632
L_C = 0
L_RED = 0
L_WO = 0
A_OP = 90112; A_LP = 155648
LDS_TOTAL = 163840

def srd(a, dst, src, nbytes):
    a(f"s_mov_b32 s{dst}, s{src}")
    a(f"s_mov_b32 s{dst+1}, s{src+1}")
    a(f"s_mov_b32 s{dst+2}, {hex(nbytes)}")
    a(f"s_mov_b32 s{dst+3}, 0x00020000")

class Prof:
    def __init__(self, a, vreg): self.a = a; self.v = vreg
    def stamp(self, slot):
        if not PROF or "noprofa" in X: return
        a = self.a
        a("s_memrealtime s[60:61]")
        a("s_memtime s[62:63]")
        a("s_waitcnt lgkmcnt(0)")
        a(f"v_writelane_b32 v{self.v}, s60, {slot}")
        a(f"v_writelane_b32 v{self.v}, s62, {slot+32}")
    def flush(self, vt):
        if not PROF: return
        a = self.a
        a("s_lshl_b32 s60, s2, 4")
        a(f"s_add_u32 s60, s60, s{WV}")
        a("s_lshl_b32 s60, s60, 8")
        a(f"s_add_u32 s60, s60, {WS_PROF}")
        a("s_mov_b64 exec, -1")
        a(f"v_mbcnt_lo_u32_b32 v{vt}, -1, 0")
        a(f"v_mbcnt_hi_u32_b32 v{vt}, -1, v{vt}")
        a(f"v_lshlrev_b32 v{vt}, 2, v{vt}")
        a(f"buffer_store_dword v{self.v}, v{vt}, s[{WSR}:{WSR+3}], s60 offen")
        a("s_waitcnt vmcnt(0)")

def xtile_lane_off(a, vd, vlane, vt0, vt1):
    a(f"v_lshrrev_b32 v{vt0}, 4, v{vlane}")
    a(f"v_and_b32 v{vt1}, 1, v{vt0}")
    a(f"v_lshlrev_b32 v{vt1}, 4, v{vt1}")
    a(f"v_lshrrev_b32 v{vd}, 5, v{vlane}")
    a(f"v_lshl_add_u32 v{vt1}, v{vd}, 2, v{vt1}")
    a(f"v_bfe_u32 v{vd}, v{vlane}, 2, 2")
    a(f"v_add_u32 v{vt1}, v{vt1}, v{vd}")
    a(f"v_mul_u32_u24 v{vt1}, 896, v{vt1}")
    a(f"v_and_b32 v{vd}, 3, v{vlane}")
    a(f"v_xor_b32 v{vd}, v{vd}, v{vt0}")
    a(f"v_lshl_add_u32 v{vd}, v{vd}, 4, v{vt1}")

def plain_lane_off(a, vd, vlane, vt0):
    a(f"v_lshrrev_b32 v{vt0}, 4, v{vlane}")
    a(f"v_and_b32 v{vd}, 3, v{vlane}")
    a(f"v_xor_b32 v{vd}, v{vd}, v{vt0}")
    a(f"v_lshlrev_b32 v{vd}, 4, v{vd}")
    a(f"v_lshrrev_b32 v{vt0}, 2, v{vlane}")
    a(f"v_mul_u32_u24 v{vt0}, 896, v{vt0}")
    a(f"v_add_u32 v{vd}, v{vd}, v{vt0}")

def xfrag_addr(a, vd, vlane, vt0):
    a(f"v_bfe_u32 v{vt0}, v{vlane}, 2, 2")
    a(f"v_lshrrev_b32 v{vd}, 5, v{vlane}")
    a(f"v_xor_b32 v{vt0}, v{vt0}, v{vd}")
    a(f"v_lshlrev_b32 v{vt0}, 4, v{vt0}")
    a(f"v_and_b32 v{vd}, 31, v{vlane}")
    a(f"v_lshl_add_u32 v{vd}, v{vd}, 6, v{vt0}")

def tr_rowcol(a, vrow, vcol, vlane, vt):
    a(f"v_lshrrev_b32 v{vrow}, 5, v{vlane}")
    a(f"v_lshlrev_b32 v{vrow}, 3, v{vrow}")
    a(f"v_bfe_u32 v{vt}, v{vlane}, 2, 2")
    a(f"v_add_u32 v{vrow}, v{vrow}, v{vt}")
    a(f"v_and_b32 v{vcol}, 16, v{vlane}")
    a(f"v_and_b32 v{vt}, 3, v{vlane}")
    a(f"v_lshl_add_u32 v{vcol}, v{vt}, 2, v{vcol}")

def proj_loop(a, swap, acc, xe, xo, we, wo_, vxe, vxo, vw1, vw2, s_wstep, s_cnt, lab):
    def rd(xr, wr, vx):
        a(f"ds_read_b128 {v(xr,4)}, v{vx}")
        a(f"ds_read_b64_tr_b16 {v(wr,2)}, v{vw1}")
        a(f"ds_read_b64_tr_b16 {v(wr+2,2)}, v{vw2}")
        a(f"v_add_u32 v{vx}, 0x1000, v{vx}")
        a(f"v_add_u32 v{vw1}, s{s_wstep}, v{vw1}")
        a(f"v_add_u32 v{vw2}, s{s_wstep}, v{vw2}")
    def mf(x, w):
        A, B = (x, w) if swap else (w, x)
        a(f"{MF} {v(acc,16)}, {v(A,4)}, {v(B,4)}, {v(acc,16)}")
    rd(xe, we, vxe); rd(xo, wo_, vxo)
    a(f"s_mov_b32 s{s_cnt}, 14")
    a.label(lab)
    a("s_waitcnt lgkmcnt(3)")
    mf(xe, we)
    rd(xe, we, vxe)
    a("s_waitcnt lgkmcnt(3)")
    mf(xo, wo_)
    rd(xo, wo_, vxo)
    a(f"s_sub_u32 s{s_cnt}, s{s_cnt}, 1")
    a(f"s_cmp_lg_u32 s{s_cnt}, 0")
    a(f"s_cbranch_scc1 {lab}")
    a("s_waitcnt lgkmcnt(0)")

def sw_barrier(a, coff, s_tgt, n, vaddr, vtmp, lab):
    a(f"s_add_u32 s{s_tgt}, s{s_tgt}, {n}")
    a(f"v_mov_b32 v{vtmp}, 1")
    a("s_waitcnt lgkmcnt(0)")
    a("s_mov_b64 exec, 1")
    a(f"ds_add_u32 v{vaddr}, v{vtmp} offset:{coff}")
    a("s_mov_b64 exec, -1")
    a.label(lab)
    a(f"ds_read_b32 v{vtmp}, v{vaddr} offset:{coff}")
    a("s_waitcnt lgkmcnt(0)")
    a(f"v_readfirstlane_b32 s3, v{vtmp}")
    a(f"s_cmp_ge_u32 s3, s{s_tgt}")
    a(f"s_cbranch_scc1 {lab}_ok")
    a("s_sleep 1")
    a(f"s_sub_u32 s{SPIN}, s{SPIN}, 1")
    a(f"s_cbranch_scc0 {lab}")
    a(f"s_mov_b32 s{SPIN}, 0")
    a.label(lab + "_ok")

def flag_store(a, soff_reg, vt0, vt1, val=None):
    a("s_mov_b64 exec, 1")
    a(f"v_mov_b32 v{vt0}, s{val if val is not None else NONCE}")
    a(f"v_mov_b32 v{vt1}, 0")
    a(f"buffer_store_dword v{vt0}, v{vt1}, s[{WSR}:{WSR+3}], s{soff_reg} offen{SC1}")
    a("s_mov_b64 exec, -1")

def arrive_flag(a, coff, n, soff_reg, vt0, vt1, lab):
    a(f"v_mov_b32 v{vt0}, {L_CNT}")
    a(f"v_mov_b32 v{vt1}, 1")
    a("s_waitcnt vmcnt(0)")
    a("s_mov_b64 exec, 1")
    a(f"ds_add_rtn_u32 v{vt1}, v{vt0}, v{vt1} offset:{coff}")
    a("s_waitcnt lgkmcnt(0)")
    a(f"v_readfirstlane_b32 s60, v{vt1}")
    a("s_mov_b64 exec, -1")
    a(f"s_cmp_eq_u32 s60, {n-1}")
    a(f"s_cbranch_scc0 {lab}")
    flag_store(a, soff_reg, vt0, vt1)
    a.label(lab)

def poll(a, lab, vdst, voff, soff_reg, mask_pair, sleep=None):
    sleep = POLLSLEEP if sleep is None else sleep
    a.label(lab)
    a(f"buffer_load_dword v{vdst}, v{voff}, s[{WSR}:{WSR+3}], s{soff_reg} offen{SC1}")
    a("s_waitcnt vmcnt(0)")
    a(f"v_cmp_ne_u32 vcc, s{NONCE}, v{vdst}")
    a(f"s_and_b64 vcc, vcc, s[{mask_pair}:{mask_pair+1}]")
    a(f"s_cbranch_vccz {lab}_ok")
    a(f"s_sleep {sleep}")
    a(f"s_sub_u32 s{SPIN}, s{SPIN}, 1")
    a(f"s_cbranch_scc0 {lab}")
    a(f"s_mov_b32 s{SPIN}, 0")
    a.label(lab + "_ok")

def cfma(a, hr, hi, lr, li, ur, ui, tr, ti):
    a(f"v_fma_f32 v{tr}, -v{li}, v{hi}, v{ur}")
    a(f"v_fma_f32 v{ti}, v{li}, v{hr}, v{ui}")
    a(f"v_fma_f32 v{hr}, v{lr}, v{hr}, v{tr}")
    a(f"v_fma_f32 v{hi}, v{lr}, v{hi}, v{ti}")

L_JUNK = 161792
def touch_matrix(a, sptr, vdst, vt, sr=48):
    srd(a, sr, sptr, WBYTES)
    a("s_lshr_b32 s3, s2, 3")
    a(f"s_mul_i32 s3, s3, {98*128}")
    a(f"v_lshlrev_b32 v{vt}, 7, v0")
    a(f"s_mov_b32 m0, {L_JUNK}")
    a("s_nop 0")
    a(f"buffer_load_dword v{vt}, s[{sr}:{sr+3}], s3 offen lds")
    a("s_add_u32 s3, s3, 8192")
    a("s_mov_b32 exec_hi, 3")
    a(f"buffer_load_dword v{vt}, s[{sr}:{sr+3}], s3 offen lds")
    a("s_mov_b64 exec, -1")

AQ, AO, AS, AK, AV, APB = 8, 40, [104, 120], [136, 144], [152, 160], 4

def att_unit(a, u, side):
    up = u - 1; un = u + 1
    cur = AS[u & 1]; prv = AS[(u + 1) & 1]
    Vp = AV[(up >> 2) & 1]; Op = AO + 16 * (up & 3)
    Kn = AK[(un >> 2) & 1]; Qn = AQ + 8 * (un & 3)
    side = list(side)
    def E(lo, hi):
        for j in range(lo, hi):
            a(f"v_exp_f32 v{cur+j}, v{cur+j}")
            if side:
                x = side.pop(0)
                if x: a(x)
    while side and isinstance(side[0], tuple):
        a(side.pop(0)[1])
    a(f"{MF} {v(Op,16)}, {v(Vp,4)}, {v(prv,4)}, {v(Op,16)}")
    E(0, 4)
    a(f"v_cvt_pk_bf16_f32 v{APB+2}, v{prv+12}, v{prv+13}")
    a(f"v_cvt_pk_bf16_f32 v{APB+3}, v{prv+14}, v{prv+15}")
    a(f"{MF} {v(prv,16)}, {v(Kn,4)}, {v(Qn,4)}, 0")
    E(4, 8)
    a(f"v_cvt_pk_bf16_f32 v{cur}, v{cur}, v{cur+1}")
    a(f"v_cvt_pk_bf16_f32 v{cur+1}, v{cur+2}, v{cur+3}")
    a(f"{MF} {v(prv,16)}, {v(Kn+4,4)}, {v(Qn+4,4)}, {v(prv,16)}")
    E(8, 12)
    a(f"v_cvt_pk_bf16_f32 v{cur+2}, v{cur+4}, v{cur+5}")
    a(f"v_cvt_pk_bf16_f32 v{cur+3}, v{cur+6}, v{cur+7}")
    a(f"{MF} {v(Op,16)}, {v(Vp+4,4)}, {v(APB,4)}, {v(Op,16)}")
    E(12, 16)
    a(f"v_cvt_pk_bf16_f32 v{APB}, v{cur+8}, v{cur+9}")
    a(f"v_cvt_pk_bf16_f32 v{APB+1}, v{cur+10}, v{cur+11}")
    assert not side, side

L_SEL = 162560
L_SH = 162048
LMAX = f2u(2.0 ** 90) if "forcefb" not in X else f2u(2.0 ** -20)
VMAX = f2u(2.0 ** 20)

def gen_attention(a, pf):
    P = "att"
    KR = TR
    a(f"v_add_u32 v2, {L_QX}, v1")
    for g in range(4):
        a(f"ds_read_b128 {v(AQ+8*g,4)}, v2 offset:{g*2048}")
        a(f"ds_read_b128 {v(AQ+8*g+4,4)}, v2 offset:{g*2048+1024}")
    a(f"s_add_u32 s{KR}, s{WSR}, {WS_KV}")
    a(f"s_addc_u32 s{KR+1}, s{WSR+1}, 0")
    a(f"s_mov_b32 s{KR+3}, 0x00020000")
    a("s_mov_b32 s44, 0")
    a("s_mov_b32 s51, 0")
    a(f"s_cmp_lt_u32 s{WV}, 4")
    a("s_cselect_b32 s53, 1, -1")
    a(f"s_cmp_eq_u32 s{WV}, 7")
    a(f"s_cbranch_scc0 {P}_nosel")
    a("v_lshrrev_b32 v104, 4, v1")
    a("v_and_b32 v105, 31, v104")
    a("v_lshrrev_b32 v104, 5, v104")
    a("v_lshlrev_b32 v104, 2, v104")
    a("v_sub_u32 v105, v105, v104")
    for j in range(4):
        d0 = (2 * j & 3) + 8 * ((2 * j) >> 2)
        a(f"v_cmp_eq_u32 vcc, {d0}, v105")
        a(f"v_mov_b32 v106, 0x3f80")
        a("s_nop 0")
        a(f"v_cndmask_b32 v{108+j}, 0, v106, vcc")
        a(f"v_cmp_eq_u32 vcc, {d0+1}, v105")
        a(f"v_mov_b32 v106, 0x3f800000")
        a("s_nop 0")
        a(f"v_cndmask_b32 v107, 0, v106, vcc")
        a(f"v_or_b32 v{108+j}, v{108+j}, v107")
    a(f"v_add_u32 v104, {L_SEL}, v1")
    a("ds_write_b128 v104, v[108:111]")
    a.label(P + "_nosel")
    srd(a, 56, S_DBG, 256)
    def phaseA():
        a(f"s_cmp_eq_u32 s{WV}, 0")
        a(f"s_cbranch_scc0 {P}_nopollA")
        a(f"v_mov_b32 v2, {D_K0}")
        a.label(P + "_pollA")
        a(f"buffer_load_dword v104, v2, s[56:59], 0 offen{SC1}")
        a("s_waitcnt vmcnt(0)")
        a("v_readfirstlane_b32 s3, v104")
        a("s_cmp_lg_u32 s3, 0")
        a(f"s_cbranch_scc1 {P}_nopollA")
        a(f"s_sleep {POLLSLEEP}")
        a(f"s_sub_u32 s{SPIN}, s{SPIN}, 1")
        a(f"s_cbranch_scc0 {P}_pollA")
        a(f"s_mov_b32 s{SPIN}, 0")
        a.label(P + "_nopollA")
        a(f"v_mov_b32 v3, {L_CNT}")
        sw_barrier(a, C_ATT, 44, 8, 3, 2, P + "_ba")
    def shiftblk():
        a(f"s_mov_b32 s{KR+2}, 0x40000")
        a(f"s_cmp_ge_u32 s{WV}, 4")
        a(f"s_cbranch_scc1 {P}_shhi" if "gomerge" in X else f"s_cbranch_scc1 {P}_shwait")
        a(f"buffer_load_dwordx4 {v(AS[1],4)}, v1, s[{KR}:{KR+3}], 0 offen{SC1}")
        a(f"buffer_load_dwordx4 {v(AS[1]+4,4)}, v1, s[{KR}:{KR+3}], 0 offen offset:1024{SC1}")
        a(f"s_lshl_b32 s3, s{WV}, 11")
        a(f"s_add_u32 s3, s3, {L_QX}")
        a("v_add_u32 v2, s3, v1")
        a(f"ds_read_b128 {v(AO,4)}, v2")
        a(f"ds_read_b128 {v(AO+4,4)}, v2 offset:1024")
        a("s_waitcnt vmcnt(0) lgkmcnt(0)")
        o = AO + 16
        a(f"{MF} {v(o,16)}, {v(AS[1],4)}, {v(AO,4)}, 0")
        a(f"{MF} {v(o,16)}, {v(AS[1]+4,4)}, {v(AO+4,4)}, {v(o,16)}")
        a(f"s_lshl_b32 s3, s{WV}, 7")
        a(f"s_add_u32 s3, s3, {L_SH}")
        a("v_lshrrev_b32 v3, 2, v1")
        a("v_and_b32 v3, 127, v3")
        a("v_add_u32 v3, s3, v3")
        a("s_nop 7")
        a(f"v_max3_f32 v2, v{o}, v{o+1}, v{o+2}")
        for j in range(3, 15, 2):
            a(f"v_max3_f32 v2, v2, v{o+j}, v{o+j+1}")
        a(f"v_max_f32 v2, v2, v{o+15}")
        a(f"v_mov_b32 v{AO}, v2")
        a("s_nop 1")
        a(f"v_permlane32_swap_b32 v2, v{AO}")
        a(f"v_max_f32 v2, v2, v{AO}")
        a("v_cvt_pk_bf16_f32 v2, -v2, 0")
        a("s_mov_b32 exec_hi, 0")
        a("ds_write_b32 v3, v2")
        a("s_mov_b64 exec, -1")
        if "gomerge" in X:
            a(f"s_branch {P}_shwait")
            a.label(P + "_shhi")
            a(f"s_cmp_eq_u32 s{WV}, 7")
            a(f"s_cbranch_scc0 {P}_shwait")
            a(f"v_mov_b32 v2, {D_GO}")
            a.label(P + "_pollm")
            a(f"buffer_load_dwordx2 v[104:105], v2, s[56:59], 0 offen{SC1}")
            a("s_waitcnt vmcnt(0)")
            a("v_readfirstlane_b32 s3, v104")
            a("s_cmp_lg_u32 s3, 0")
            a(f"s_cbranch_scc1 {P}_pollmok")
            a(f"s_sleep {POLLSLEEP}")
            a(f"s_sub_u32 s{SPIN}, s{SPIN}, 1")
            a(f"s_cbranch_scc0 {P}_pollm")
            a(f"s_mov_b32 s{SPIN}, 0")
            a.label(P + "_pollmok")
            a(f"v_mov_b32 v3, {L_CNT}")
            a("s_mov_b64 exec, 1")
            a(f"ds_add_u32 v3, v105 offset:{C_BAD}")
            a("s_mov_b64 exec, -1")
        a.label(P + "_shwait")
        a(f"v_mov_b32 v3, {L_CNT}")
        sw_barrier(a, C_ATT, 44, 8, 3, 2, P + "_bs")
        a("v_lshrrev_b32 v3, 2, v1")
        a("v_and_b32 v3, 127, v3")
        a(f"v_add_u32 v3, {L_SH}, v3")
        for g in range(4): a(f"ds_read_b32 v{AO+g}, v3 offset:{g*128}")
        a("s_waitcnt lgkmcnt(0)")
        a("s_mov_b32 exec_lo, 0")
        for g in range(4): a(f"v_mov_b32 v{AQ+8*g+6}, v{AO+g}")
        a("s_mov_b32 exec_lo, -1")
    def phaseB():
        a(f"s_cmp_eq_u32 s{WV}, 0")
        a(f"s_cbranch_scc0 {P}_nopoll")
        a(f"v_mov_b32 v2, {D_GO}")
        a.label(P + "_poll")
        a(f"buffer_load_dwordx2 v[104:105], v2, s[56:59], 0 offen{SC1}")
        a("s_waitcnt vmcnt(0)")
        a("v_readfirstlane_b32 s3, v104")
        a("s_cmp_lg_u32 s3, 0")
        a(f"s_cbranch_scc1 {P}_pollok")
        a(f"s_sleep {POLLSLEEP}")
        a(f"s_sub_u32 s{SPIN}, s{SPIN}, 1")
        a(f"s_cbranch_scc0 {P}_poll")
        a(f"s_mov_b32 s{SPIN}, 0")
        a.label(P + "_pollok")
        a(f"v_mov_b32 v3, {L_CNT}")
        a("s_mov_b64 exec, 1")
        a(f"ds_add_u32 v3, v105 offset:{C_BAD}")
        a("s_mov_b64 exec, -1")
        a.label(P + "_nopoll")
        a(f"v_mov_b32 v3, {L_CNT}")
        sw_barrier(a, C_ATT, 44, 8, 3, 2, P + "_b0")
        pf.stamp(5)
        a("s_lshr_b32 s52, s2, 3")
        a("s_lshl_b32 s52, s52, 3")
        a(f"s_add_u32 s52, s52, s{WV}")
        a("s_lshl_b32 s52, s52, 10")
    def mainloads():
        a.label(P + "_restart")
        a(f"s_mov_b32 s{KR+2}, 0x40000")
        a(f"s_lshl_b32 s43, s{WV}, 15")
        a(f"buffer_load_dwordx4 {v(AK[0],4)}, v1, s[{KR}:{KR+3}], s43 offen{SC1}")
        a(f"buffer_load_dwordx4 {v(AK[0]+4,4)}, v1, s[{KR}:{KR+3}], s43 offen offset:1024{SC1}")
        a(f"buffer_load_dwordx4 {v(AV[0],4)}, v1, s[{KR}:{KR+3}], s43 offen offset:2048{SC1}")
        a(f"buffer_load_dwordx4 {v(AV[0]+4,4)}, v1, s[{KR}:{KR+3}], s43 offen offset:3072{SC1}")
        a("s_add_u32 s43, s43, 4096")
        a(f"buffer_load_dwordx4 {v(AK[1],4)}, v1, s[{KR}:{KR+3}], s43 offen{SC1}")
        a(f"buffer_load_dwordx4 {v(AK[1]+4,4)}, v1, s[{KR}:{KR+3}], s43 offen offset:1024{SC1}")
        a(f"s_lshl_b32 s3, s{WV}, 9")
        a(f"s_mov_b32 m0, {L_JUNK}")
        a("v_lshlrev_b32 v2, 3, v1")
        a("s_mov_b64 exec, 0xff")
        a(f"buffer_load_dword v2, s[{KR}:{KR+3}], s52 offen{SC1} lds")
        a("s_mov_b64 exec, -1")
        for j in range(4): a(f"v_mov_b32 v{APB+j}, 0")
        for j in range(8): a(f"v_mov_b32 v{AV[1]+j}, 0")
    if "lateshift" in X:
        phaseB(); mainloads()
        a("s_cmp_lg_u32 s51, 0")
        a(f"s_cbranch_scc1 {P}_haveshift")
        shiftblk()
    elif "gomerge" in X:
        phaseA(); shiftblk()
        pf.stamp(5)
        a("s_lshr_b32 s52, s2, 3")
        a("s_lshl_b32 s52, s52, 3")
        a(f"s_add_u32 s52, s52, s{WV}")
        a("s_lshl_b32 s52, s52, 10")
        mainloads()
    else:
        phaseA(); shiftblk(); phaseB(); mainloads()
    a.label(P + "_haveshift")
    for j in (0, 1, 2, 3, 12, 13, 14, 15): a(f"v_mov_b32 v{AS[1]+j}, 0")
    a(f"s_and_b32 s3, s{WV}, 3")
    a("s_lshl_b32 s3, s3, 2")
    a(f"s_add_u32 s3, s3, {L_CNT + 64}")
    a("v_mov_b32 v2, s3")
    for g in range(4):
        a(f"{MF} {v(AO+16*g,16)}, {v(AV[1],4)}, {v(APB,4)}, 0")
    a("s_waitcnt vmcnt(5)")
    a(f"{MF} {v(AS[0],16)}, {v(AK[0],4)}, {v(AQ,4)}, 0")
    a(f"{MF} {v(AS[0],16)}, {v(AK[0]+4,4)}, {v(AQ+4,4)}, {v(AS[0],16)}")
    a("s_mov_b32 s48, 0")
    a("s_setprio 2")
    a("s_nop 7")
    a("s_nop 1")
    pf.stamp(6)
    a(".p2align 3")
    a.label(P + "_loop")
    for u in range(8):
        g = u & 3; par = (u >> 2) & 1
        side = []
        if g == 1:
            side.append(("q0", "s_waitcnt vmcnt(2)"))
            side.append(f"buffer_load_dwordx4 {v(AV[par^1],4)}, v1, s[{KR}:{KR+3}], s43 offen offset:2048{SC1}")
            side.append(f"buffer_load_dwordx4 {v(AV[par^1]+4,4)}, v1, s[{KR}:{KR+3}], s43 offen offset:3072{SC1}")
            side.append("s_add_u32 s43, s43, 4096")
            if par == 0:
                side.append("s_cmp_eq_u32 s48, 3")
                side.append(f"s_cselect_b32 s{KR+2}, 0, s{KR+2}")
        if g == 3:
            side += [None, None, None, "s_waitcnt vmcnt(2)"]
            side.append(f"buffer_load_dwordx4 {v(AK[par],4)}, v1, s[{KR}:{KR+3}], s43 offen{SC1}")
            side.append(f"buffer_load_dwordx4 {v(AK[par]+4,4)}, v1, s[{KR}:{KR+3}], s43 offen offset:1024{SC1}")
            if par == 1:
                side += ["s_add_u32 s48, s48, 1", None, None, None, None, None, None, None, None, "s_cmp_lt_u32 s48, 4"]
        if g == 0 and "nofair" not in X:
            side += ["v_mov_b32 v3, s53", None, "s_mov_b64 exec, 1\nds_add_rtn_u32 v3, v2, v3\ns_mov_b64 exec, -1"]
        if g == 2 and "nofair" not in X:
            lab = f"{P}_fp{u}"
            side += ["s_waitcnt lgkmcnt(0)", "v_readfirstlane_b32 s54, v3", None, "s_mul_i32 s54, s54, s53", "s_cmp_gt_i32 s54, 0",
                     f"s_cbranch_scc1 {lab}a\ns_setprio 2\ns_branch {lab}b\n{lab}a:\ns_setprio 1\n{lab}b:"]
        att_unit(a, u, side)
    a(f"s_cbranch_scc1 {P}_loop")
    prv = AS[1]
    a(f"{MF} {v(AO+48,16)}, {v(AV[1],4)}, {v(prv,4)}, {v(AO+48,16)}")
    a(f"v_cvt_pk_bf16_f32 v{APB+2}, v{prv+12}, v{prv+13}")
    a(f"v_cvt_pk_bf16_f32 v{APB+3}, v{prv+14}, v{prv+15}")
    a("s_nop 1")
    a(f"{MF} {v(AO+48,16)}, {v(AV[1]+4,4)}, {v(APB,4)}, {v(AO+48,16)}")
    pf.stamp(7)
    a("s_setprio 3")
    a("s_cmp_lg_u32 s51, 0")
    a(f"s_cbranch_scc1 {P}_nolend")
    lds_arrive(a, C_LEND, 2, 3)
    a.label(P + "_nolend")
    a(f"v_mov_b32 v3, {L_CNT}")
    a.label(P + "_udone")
    a(f"ds_read2_b32 v[104:105], v3 offset0:{C_NONCE//4} offset1:{C_HCNT//4}")
    a("s_waitcnt lgkmcnt(0)")
    a("v_readfirstlane_b32 s3, v105")
    a(f"v_readfirstlane_b32 s{NONCE}, v104")
    a("s_cmp_ge_u32 s3, 4")
    a(f"s_cbranch_scc1 {P}_udone_ok")
    a(f"s_sub_u32 s{SPIN}, s{SPIN}, 1")
    a(f"s_cbranch_scc0 {P}_udone")
    a(f"s_mov_b32 s{SPIN}, 0")
    a.label(P + "_udone_ok")
    a(f"s_lshl_b32 s3, s{WV}, 13")
    a(f"s_add_u32 s3, s3, {A_OP}")
    a(f"v_add_u32 v2, s3, v1")
    a(f"s_lshl_b32 s3, s{WV}, 9")
    a(f"s_add_u32 s3, s3, {A_LP}")
    a("v_lshrrev_b32 v3, 2, v1")
    a("v_and_b32 v4, 127, v3")
    a("v_add_u32 v4, s3, v4")
    a(f"s_mov_b32 s46, {hex(LMAX)}")
    a("s_mov_b64 s[56:57], 0")
    for g in range(4):
        o = AO + 16 * g
        if g == 3: a("s_nop 3")
        a("s_mov_b32 exec_lo, 0")
        a(f"ds_write_b32 v4, v{o+12} offset:{g*128}")
        a(f"v_cmp_nge_f32 vcc, s46, v{o+12}")
        a("s_mov_b32 exec_lo, -1")
        a("s_or_b64 s[56:57], s[56:57], vcc")
        for j in range(8):
            a(f"v_cvt_pk_bf16_f32 v{AS[0]+8*g+j}, v{o+2*j}, v{o+2*j+1}")
        a(f"ds_write_b128 v2, {v(AS[0]+8*g,4)} offset:{g*2048}")
        a(f"ds_write_b128 v2, {v(AS[0]+8*g+4,4)} offset:{g*2048+1024}")
    a(f"v_mov_b32 v3, {L_CNT}")
    a("s_cmp_eq_u64 s[56:57], 0")
    a(f"s_cbranch_scc1 {P}_safe")
    a("v_mov_b32 v2, 1")
    a("s_mov_b64 exec, 1")
    a(f"ds_add_u32 v3, v2 offset:{C_BAD}")
    a("s_mov_b64 exec, -1")
    a.label(P + "_safe")
    pf.stamp(17)
    sw_barrier(a, C_ATT, 44, 8, 3, 2, P + "_b1")
    pf.stamp(18)
    a(f"ds_read_b32 v2, v3 offset:{C_BAD}")
    a(f"s_lshl_b32 s3, s{WV}, 10")
    a(f"s_add_u32 s3, s3, {A_OP}")
    a("v_add_u32 v4, s3, v1")
    for w in range(8):
        a(f"ds_read_b128 {v(AO+4*w,4)}, v4 offset:{w*8192}")
    a(f"s_lshr_b32 s45, s{WV}, 1")
    a("s_lshl_b32 s3, s45, 7")
    a(f"s_add_u32 s3, s3, {A_LP}")
    a("v_lshrrev_b32 v3, 2, v1")
    a("v_and_b32 v3, 127, v3")
    a("v_add_u32 v3, s3, v3")
    a("s_waitcnt lgkmcnt(8)")
    a("v_readfirstlane_b32 s3, v2")
    a("s_cmp_lg_u32 s3, 0")
    a("s_cselect_b32 s3, 1, 0")
    a("s_andn2_b32 s3, s3, s51")
    a(f"s_cbranch_scc1 {P}_fallback")
    acc = AO + 48
    a(f"v_add_u32 v2, {L_SEL}, v1")
    a(f"ds_read_b128 {v(AO+40,4)}, v2")
    for w in range(6):
        a(f"ds_read_b32 v{AO+32+w}, v3 offset:{w*512}")
    for w in range(8):
        a(f"s_waitcnt lgkmcnt({6 if w < 1 else 6})") if w == 0 else None
        if w == 0:
            a(f"ds_read_b32 v{AO+38}, v3 offset:{6*512}")
            a(f"ds_read_b32 v{AO+39}, v3 offset:{7*512}")
        a(f"{MF} {v(acc,16)}, {v(AO+40,4)}, {v(AO+4*w,4)}, {'0' if w == 0 else v(acc,16)}")
    a("s_lshr_b32 s3, s45, 1")
    a(f"s_lshl_b32 s46, s{RB}, 1")
    a("s_add_u32 s3, s3, s46")
    a("s_lshl_b32 s3, s3, 4")
    a(f"s_lshl_b32 s46, s{J2}, 1")
    a("s_add_u32 s3, s3, s46")
    a("s_and_b32 s46, s45, 1")
    a("s_add_u32 s3, s3, s46")
    a("s_lshl_b32 s3, s3, 11")
    a(f"s_and_b32 s46, s{WV}, 1")
    a("s_lshl_b32 s46, s46, 10")
    a("s_add_u32 s3, s3, s46")
    a(f"s_add_u32 s47, s3, {WS_OF}")
    a("s_waitcnt lgkmcnt(0)")
    lds_arrive(a, C_TRD, 2, 3)
    l = AO + 32
    a(f"v_add_f32 v{l}, v{l}, v{l+1}")
    a(f"v_add_f32 v{l+2}, v{l+2}, v{l+3}")
    a(f"v_add_f32 v{l+4}, v{l+4}, v{l+5}")
    a(f"v_add_f32 v{l+6}, v{l+6}, v{l+7}")
    a(f"v_add_f32 v{l}, v{l}, v{l+2}")
    a(f"v_add_f32 v{l+4}, v{l+4}, v{l+6}")
    a(f"v_add_f32 v{l}, v{l}, v{l+4}")
    a(f"v_rcp_f32 v{l+1}, v{l}")
    a("s_nop 3")
    for j in range(8): a(f"v_mul_f32 v{acc+j}, v{acc+j}, v{l+1}")
    for j in range(4): a(f"v_cvt_pk_bf16_f32 v{AO+j}, v{acc+2*j}, v{acc+2*j+1}")
    a(f"s_and_b32 s3, s{WV}, 1")
    a("s_cmp_eq_u32 s3, 1")
    a("s_cselect_b32 exec_hi, -1, 0")
    a("s_mov_b32 exec_lo, 0")
    a(f"v_mov_b32 v{AO+2}, 0")
    a(f"v_mov_b32 v{AO+3}, 0")
    a("s_mov_b64 exec, -1")
    pf.stamp(19)
    a(f"buffer_store_dwordx4 {v(AO,4)}, v1, s[{WSR}:{WSR+3}], s47 offen{SC1}")
    if "dup" in X or "dupo" in X:
        a(f"buffer_store_dwordx4 {v(AO,4)}, v1, s[{WSR}:{WSR+3}], s47 offen")
    a(f"s_lshl_b32 s3, s{RB}, 5")
    a(f"s_add_u32 s3, s3, s{J2}")
    a("s_lshl_b32 s3, s3, 2")
    a(f"s_add_u32 s3, s3, {FL_O}")
    arrive_flag(a, C_OCNT, 8, 3, 2, 3, P + "_oflag")
    pf.stamp(8)
    a(f"s_branch {P}_done")
    a.label(P + "_fallback")
    a("s_waitcnt lgkmcnt(0)")
    a("s_mov_b32 s51, 1")
    a(f"s_mov_b32 s{KR+2}, 0x40000")
    a("s_mov_b32 exec_lo, 0")
    for g in range(4):
        a(f"v_mov_b32 v{AQ+8*g+6}, 0")
        a(f"v_mov_b32 v{AQ+8*g+7}, 0")
    a("s_mov_b32 exec_lo, -1")
    for g in range(4): a(f"v_mov_b32 v{APB+g}, 0xff800000")
    a("s_mov_b32 s43, 0")
    a.label(P + "_fb_loop")
    a(f"buffer_load_dwordx4 {v(AK[0],4)}, v1, s[{KR}:{KR+3}], s43 offen{SC1}")
    a(f"buffer_load_dwordx4 {v(AK[0]+4,4)}, v1, s[{KR}:{KR+3}], s43 offen offset:1024{SC1}")
    a("s_waitcnt vmcnt(0)")
    for g in range(4):
        o = AO + 16 * g
        a(f"{MF} {v(o,16)}, {v(AK[0],4)}, {v(AQ+8*g,4)}, 0")
        a(f"{MF} {v(o,16)}, {v(AK[0]+4,4)}, {v(AQ+8*g+4,4)}, {v(o,16)}")
    a("s_nop 7")
    for g in range(4):
        o = AO + 16 * g
        for j in range(0, 16, 2):
            a(f"v_max3_f32 v{APB+g}, v{APB+g}, v{o+j}, v{o+j+1}")
    a("s_add_u32 s43, s43, 4096")
    a("s_cmp_lt_u32 s43, 0x40000")
    a(f"s_cbranch_scc1 {P}_fb_loop")
    for g in range(4):
        m = APB + g
        a(f"v_mov_b32 v2, v{m}")
        a("s_nop 1")
        a(f"v_permlane32_swap_b32 v2, v{m}")
        a(f"v_max_f32 v2, v2, v{m}")
        a("v_sub_f32 v2, 0, v2")
        a("v_cvt_pk_bf16_f32 v3, v2, v2")
        a("v_and_b32 v3, 0xffff0000, v3")
        a(f"v_sub_f32 v{m}, v2, v3")
        a(f"v_cvt_pk_bf16_f32 v2, v{m}, v{m}")
        a("v_and_b32 v2, 0xffff0000, v2")
        a(f"v_sub_f32 v{m}, v{m}, v2")
        a(f"v_cvt_pk_bf16_f32 v{m}, v{m}, 0")
        a("v_lshrrev_b32 v3, 16, v3")
        a("v_or_b32 v3, v3, v2")
        a("s_mov_b32 exec_lo, 0")
        a(f"v_mov_b32 v{AQ+8*g+6}, v3")
        a(f"v_mov_b32 v{AQ+8*g+7}, v{m}")
        a("s_mov_b32 exec_lo, -1")
    a(f"v_mov_b32 v3, {L_CNT}")
    sw_barrier(a, C_ATT, 44, 8, 3, 2, P + "_bf")
    a(f"s_branch {P}_restart")
    a.label(P + "_done")

def gen_background(a, pf):
    P = "bg"
    XF = 56; ARE, AIM = 8, 24
    nbar = [0]
    T = [54, 55]
    pf.T = T
    def bar():
        nbar[0] += 1
        a(f"v_mov_b32 v{T[0]}, {L_CNT}")
        sw_barrier(a, C_BG, 44, 4, T[0], T[1], f"{P}_bar{nbar[0]}")
    def stage3(tag, vd_=156, vt_=158):
        if "nopf" in X: return
        a(f"s_cmp_eq_u32 s{BW}, 3")
        a(f"s_cbranch_scc1 {P}_not3{tag}")
        a(f"s_cmp_eq_u32 s{BW}, 0")
        a(f"s_cselect_b32 s56, s{S_CRE}, s{S_CIM}")
        a(f"s_cselect_b32 s57, s{S_CRE+1}, s{S_CIM+1}")
        a(f"s_cmp_eq_u32 s{BW}, 2")
        a(f"s_cselect_b32 s56, s{S_WO}, s56")
        a(f"s_cselect_b32 s57, s{S_WO+1}, s57")
        touch_matrix(a, 56, vd_, vt_)
        a.label(P + "_not3" + tag)
    a("s_mov_b32 s44, 0")
    a(f"s_lshl_b32 s37, s{J2}, 1")
    a(f"s_and_b32 s3, s{BW}, 1")
    a("s_add_u32 s37, s37, s3")
    a(f"s_lshr_b32 s38, s{BW}, 1")
    a(f"s_cmp_eq_u32 s{BW}, 3")
    a(f"s_cbranch_scc0 {P}_nononce")
    srd(a, 48, S_DBG, 256)
    a("v_mov_b32 v7, 0")
    a.label(P + "_npoll")
    a(f"buffer_load_dword v6, v7, s[48:51], 0 offen offset:{D_NONCE}{SC1}")
    a("s_waitcnt vmcnt(0)")
    a("v_readfirstlane_b32 s3, v6")
    a("s_cmp_lg_u32 s3, 0")
    a(f"s_cbranch_scc1 {P}_npoll_ok")
    a(f"s_sleep {POLLSLEEP}")
    a(f"s_sub_u32 s{SPIN}, s{SPIN}, 1")
    a(f"s_cbranch_scc0 {P}_npoll")
    a(f"s_mov_b32 s{SPIN}, 0")
    a.label(P + "_npoll_ok")
    a(f"v_mov_b32 v7, {L_CNT}")
    a(f"ds_write_b32 v7, v6 offset:{C_NONCE}")
    a.label(P + "_nononce")
    a(f"s_cmp_eq_u32 s{J2}, 7")
    a(f"s_cbranch_scc1 {P}_skip")
    if "nobg" in X: a(f"s_branch {P}_skip")
    if "kvfirst" in X:
        a(f"s_cmp_ge_u32 s{J2}, 2")
        a(f"s_cbranch_scc1 {P}_nokvi")
        a(f"v_mov_b32 v6, {L_CNT}")
        lds_wait(a, C_KVI, 1, 6, 7, P + "_kvi")
        a.label(P + "_nokvi")
    a(f"s_and_b32 s3, s{BW}, 1")
    a("s_cmp_eq_u32 s3, 0")
    a(f"s_cselect_b32 s{TR}, s{S_BRE}, s{S_BIM}")
    a(f"s_cselect_b32 s{TR+1}, s{S_BRE+1}, s{S_BIM+1}")
    a(f"s_mov_b32 s{TR+2}, {WBYTES}")
    a(f"s_mov_b32 s{TR+3}, 0x00020000")
    plain_lane_off(a, 8, 0, 9)
    a(f"s_lshl_b32 s3, s{J2}, 1")
    a("s_add_u32 s3, s3, s38")
    a(f"s_mul_i32 s32, s3, {32*896}")
    a(f"s_lshl_b32 s34, s{BW}, 11")
    a("s_mov_b32 m0, s34")
    a("s_mov_b32 s36, 14")
    a.label(P + "_bdma")
    a(f"s_add_u32 s33, s32, {16*896}")
    a(f"buffer_load_dwordx4 v8, s[{TR}:{TR+3}], s32 offen lds")
    a("s_add_u32 m0, m0, 1024")
    a("s_sub_u32 s36, s36, 1")
    a(f"buffer_load_dwordx4 v8, s[{TR}:{TR+3}], s33 offen lds")
    a("s_add_u32 s32, s32, 64")
    a(f"s_add_u32 m0, m0, {8192-1024}")
    a("s_cmp_lg_u32 s36, 0")
    a(f"s_cbranch_scc1 {P}_bdma")
    xfrag_addr(a, 6, 0, 8)
    a(f"s_and_b32 s3, s{BW}, 1")
    a("s_lshl_b32 s3, s3, 12")
    a("v_add_u32 v6, s3, v6")
    a("v_xor_b32 v7, 32, v6")
    if os.environ.get("S3") == "bi":
        stage3("a", 52, 54)
        a(f"s_cmp_eq_u32 s{BW}, 3")
        a(f"s_cbranch_scc1 {P}_bw0")
        a("s_waitcnt vmcnt(2)")
        a.label(P + "_bw0")
        a(f"s_cmp_lg_u32 s{BW}, 3")
        a(f"s_cbranch_scc1 {P}_bw1")
        a("s_waitcnt vmcnt(0)")
        a.label(P + "_bw1")
    else:
        a("s_waitcnt vmcnt(0)")
    bar()
    a(f"ds_read_b32 v55, v54 offset:{C_NONCE}")
    a("s_waitcnt lgkmcnt(0)")
    a(f"v_readfirstlane_b32 s{NONCE}, v55")
    if "cntpoll" in X:
        lds_arrive(a, C_BL, 54, 55)
    pf.stamp(5)
    S3 = os.environ.get("S3", "b")
    if S3 == "b": stage3("a", 52, 54)
    if os.environ.get("UP"): a(f"s_setprio {os.environ['UP']}")
    BB = [40, 48]
    def rdB(j):
        b = BB[j & 1]
        if j in (16, 17): a(f"v_add_u32 v{6+(j&1)}, 0x10000, v{6+(j&1)}")
        o = (j >> 1) * 8192 - (65536 if j >= 16 else 0)
        a(f"ds_read_b128 {v(b,4)}, v{6+(j&1)} offset:{o}")
        a(f"ds_read_b128 {v(b+4,4)}, v{6+(j&1)} offset:{o+2048}")
    rdB(0); rdB(1)
    for j in range(28):
        b = BB[j & 1]
        a("s_waitcnt lgkmcnt(2)" if j < 27 else "s_waitcnt lgkmcnt(0)")
        c1 = "0" if j == 0 else v(ARE,16); c2 = "0" if j == 0 else v(AIM,16)
        a(f"{MF} {v(ARE,16)}, {v(XF+4*j,4)}, {v(b,4)}, {c1}")
        a(f"{MF} {v(AIM,16)}, {v(XF+4*j,4)}, {v(b+4,4)}, {c2}")
        if j + 2 < 28: rdB(j + 2)
    if os.environ.get("UP"): a(f"s_setprio {os.environ.get('BP', '3')}")
    a(f"v_mov_b32 v54, {L_CNT}")
    a("v_mov_b32 v55, 1")
    a("s_mov_b64 exec, 1")
    a(f"ds_add_u32 v54, v55 offset:{C_UDONE}")
    a("s_mov_b64 exec, -1")
    pf.stamp(6)
    if S3 == "u": stage3("a")
    def csq(dr, di, sr, si):
        a(f"v_mul_f32 v46, v{si}, v{si}")
        a(f"v_mul_f32 v47, v{sr}, v{si}")
        a(f"v_fma_f32 v{dr}, v{sr}, v{sr}, -v46")
        a(f"v_add_f32 v{di}, v47, v47")
    csq(40, 41, 2, 3)
    for _ in range(3): csq(40, 41, 40, 41)
    csq(42, 43, 40, 41); csq(42, 43, 42, 43)
    csq(44, 45, 42, 43)
    for _ in range(3): csq(44, 45, 44, 45)
    a("v_mov_b32 v48, v4")
    a("v_mov_b32 v49, v4")
    a("v_mov_b32 v50, v5")
    a("v_mov_b32 v51, v5")
    for r in range(0, 16, 2):
        a(f"v_pk_mul_f32 v[46:47], v[50:51], {v(AIM+r,2)}")
        a(f"v_pk_mul_f32 v[52:53], v[50:51], {v(ARE+r,2)}")
        a(f"v_pk_fma_f32 {v(ARE+r,2)}, v[48:49], {v(ARE+r,2)}, v[46:47] neg_lo:[0,0,1] neg_hi:[0,0,1]")
        a(f"v_pk_fma_f32 {v(AIM+r,2)}, v[48:49], {v(AIM+r,2)}, v[52:53]")
    a(f"v_mov_b32 v48, v{ARE}")
    a(f"v_mov_b32 v49, v{AIM}")
    for r in range(1, 16):
        cfma(a, 48, 49, 2, 3, ARE + r, AIM + r, 46, 47)
    a("v_and_b32 v50, 31, v0")
    a("v_lshlrev_b32 v50, 3, v50")
    a(f"s_and_b32 s3, s{BW}, 1")
    a("s_lshl_b32 s3, s3, 10")
    a(f"s_add_u32 s3, s3, {B_EX}")
    a("v_add_u32 v50, s3, v50")
    a("v_lshrrev_b32 v51, 5, v0")
    a("s_lshl_b32 s3, s38, 1")
    a("v_add_u32 v51, s3, v51")
    a("v_lshl_add_u32 v52, v51, 8, v50")
    a("ds_write_b64 v52, v[48:49]")
    bar()
    for c in range(4):
        a(f"ds_read_b64 {v(56+2*c,2)}, v50 offset:{c*256}")
    a("s_waitcnt lgkmcnt(0)")
    a("v_mov_b32 v64, v56")
    a("v_mov_b32 v65, v57")
    for c in range(1, 4):
        cfma(a, 64, 65, 40, 41, 56 + 2*c, 57 + 2*c, 46, 47)
    a("s_cmp_eq_u32 s38, 1")
    a(f"s_cbranch_scc0 {P}_nopub")
    a(f"s_mul_i32 s3, s{RB}, {448*16}")
    a("s_lshl_b32 s33, s37, 9")
    a("s_add_u32 s3, s3, s33")
    a(f"s_add_u32 s3, s3, {WS_E}")
    a(f"v_mov_b32 v66, s{NONCE}")
    a(f"v_mov_b32 v67, s{NONCE}")
    a("v_and_b32 v68, 31, v0")
    a("v_lshlrev_b32 v68, 4, v68")
    a("s_mov_b32 exec_hi, 0")
    a(f"buffer_store_dwordx4 v[64:67], v68, s[{WSR}:{WSR+3}], s3 offen{SC1}")
    a("s_mov_b64 exec, -1")
    a.label(P + "_nopub")
    pf.stamp(7)
    a(f"s_add_u32 s48, s{WSR}, {WS_E}")
    a(f"s_addc_u32 s49, s{WSR+1}, 0")
    a(f"s_mov_b32 s50, {32*448*16}")
    a("s_mov_b32 s51, 0x00020000")
    a("v_lshrrev_b32 v67, 5, v0")
    a("v_lshlrev_b32 v67, 4, v67")
    a(f"v_sub_u32 v67, s{RB}, v67")
    a("v_add_u32 v67, -1, v67")
    a(f"s_mov_b32 s3, {448*16}")
    a("v_mul_lo_u32 v68, v67, s3")
    a("v_and_b32 v66, 31, v0")
    a("v_lshlrev_b32 v66, 4, v66")
    a("s_lshl_b32 s33, s37, 9")
    a("v_add3_u32 v68, v68, v66, s33")
    EG = 72
    for i in range(1, 16):
        a(f"v_subrev_u32 v{136+i}, {448*16*i}, v68")
    a("v_mov_b32 v136, v68")
    a("s_waitcnt vmcnt(0)")
    if "efirst" in X:
        a(f"s_branch {P}_pollE")
    else:
        a(f"s_cmp_eq_u32 s{RB}, 0")
        a(f"s_cbranch_scc1 {P}_pollE")
    a.label(P + "_pollE0")
    a("s_mov_b32 exec_hi, 0")
    a(f"buffer_load_dwordx3 {v(EG,3)}, v136, s[48:51], 0 offen{SC1}")
    a("s_mov_b64 exec, -1")
    a("s_waitcnt vmcnt(0)")
    a(f"v_cmp_ne_u32 vcc, s{NONCE}, v{EG+2}")
    a("s_cmp_eq_u32 vcc_lo, 0")
    a(f"s_cbranch_scc1 {P}_pollE")
    a(f"s_sleep {os.environ.get('ES', '6')}")
    a(f"s_sub_u32 s{SPIN}, s{SPIN}, 1")
    a(f"s_cbranch_scc0 {P}_pollE0")
    a(f"s_mov_b32 s{SPIN}, 0")
    a.label(P + "_pollE")
    for i in range(16):
        a(f"buffer_load_dwordx3 {v(EG+4*i,3)}, v{136+i}, s[48:51], 0 offen{SC1}")
    a("s_mov_b64 s[56:57], 0")
    a("s_waitcnt vmcnt(0)")
    for i in range(16):
        a(f"v_cmp_ne_u32 vcc, s{NONCE}, v{EG+4*i+2}")
        a(f"s_cmp_gt_u32 s{RB}, {i}")
        a("s_cselect_b32 s58, -1, 0")
        a(f"s_cmp_gt_u32 s{RB}, {i+16}")
        a("s_cselect_b32 s59, -1, 0")
        a("s_and_b64 vcc, vcc, s[58:59]")
        a("s_or_b64 s[56:57], s[56:57], vcc")
    a("s_cmp_eq_u64 s[56:57], 0")
    a(f"s_cbranch_scc1 {P}_pollE_ok")
    a("s_sleep 4" if "efirst" in X else "s_sleep 12")
    a(f"s_sub_u32 s{SPIN}, s{SPIN}, 1")
    a(f"s_cbranch_scc0 {P}_pollE0" if "efirst" in X else f"s_cbranch_scc0 {P}_pollE")
    a(f"s_mov_b32 s{SPIN}, 0")
    a.label(P + "_pollE_ok")
    pf.stamp(8)
    a(f"v_mov_b32 v68, v{EG+60}")
    a(f"v_mov_b32 v69, v{EG+61}")
    for i in range(14, -1, -1):
        cfma(a, 68, 69, 42, 43, EG + 4*i, EG + 4*i + 1, 46, 47)
    a("v_mov_b32 v70, v68")
    a("v_mov_b32 v71, v69")
    a("v_mov_b32 v72, v68")
    a("v_mov_b32 v73, v69")
    a("s_nop 1")
    a("v_permlane32_swap_b32 v70, v72")
    a("v_permlane32_swap_b32 v71, v73")
    cfma(a, 72, 73, 44, 45, 70, 71, 46, 47)
    for cp in range(3):
        a("v_mov_b32 v74, v72")
        a("v_mov_b32 v75, v73")
        cfma(a, 74, 75, 40, 41, 56 + 2*cp, 57 + 2*cp, 46, 47)
        a(f"v_cmp_lt_u32 vcc, {cp}, v51")
        a("s_nop 1")
        a("v_cndmask_b32 v72, v72, v74, vcc")
        a("v_cndmask_b32 v73, v73, v75, vcc")
    a(f"s_lshl_b32 s3, s{BW}, 12")
    a(f"s_add_u32 s3, s3, {B_HT}")
    a("v_and_b32 v66, 31, v0")
    a("v_lshlrev_b32 v66, 1, v66")
    a("v_lshrrev_b32 v67, 5, v0")
    a("v_lshl_add_u32 v66, v67, 8, v66")
    a("v_add_u32 v66, s3, v66")
    for r in range(16):
        cfma(a, 72, 73, 2, 3, ARE + r, AIM + r, 46, 47)
        a(f"v_cvt_pk_bf16_f32 v{76+(r&1)}, v72, -v73")
        slot = (r & 3) + 8 * (r >> 2)
        a(f"ds_write_b16 v66, v{76+(r&1)} offset:{slot*64}")
        a(f"ds_write_b16_d16_hi v66, v{76+(r&1)} offset:{2048+slot*64}")
    a("v_and_b32 v67, 31, v0")
    a("v_lshlrev_b32 v67, 6, v67")
    a("v_lshrrev_b32 v68, 5, v0")
    a("v_lshl_add_u32 v67, v68, 4, v67")
    a("v_add_u32 v67, s3, v67")
    a("s_waitcnt lgkmcnt(0)")
    for part in range(2):
        for jj in range(2):
            a(f"ds_read_b128 {v(80+8*part+4*jj,4)}, v67 offset:{part*2048+jj*32}")
    a(f"s_lshl_b32 s3, s{RB}, 1")
    a("s_add_u32 s3, s3, s38")
    a("s_mul_i32 s3, s3, 56")
    a("s_lshl_b32 s33, s37, 1")
    a("s_add_u32 s3, s3, s33")
    a("s_lshl_b32 s3, s3, 10")
    a(f"s_add_u32 s3, s3, {WS_HF}")
    a(f"s_add_u32 s33, s3, {28*1024}")
    a("s_waitcnt lgkmcnt(0)")
    a(f"buffer_store_dwordx4 {v(80,4)}, v1, s[{WSR}:{WSR+3}], s3 offen{SC1}")
    a(f"buffer_store_dwordx4 {v(84,4)}, v1, s[{WSR}:{WSR+3}], s3 offen offset:1024{SC1}")
    a(f"buffer_store_dwordx4 {v(88,4)}, v1, s[{WSR}:{WSR+3}], s33 offen{SC1}")
    a(f"buffer_store_dwordx4 {v(92,4)}, v1, s[{WSR}:{WSR+3}], s33 offen offset:1024{SC1}")
    if "dup" in X:
        a(f"buffer_store_dwordx4 {v(80,4)}, v1, s[{WSR}:{WSR+3}], s3 offen")
        a(f"buffer_store_dwordx4 {v(84,4)}, v1, s[{WSR}:{WSR+3}], s3 offen offset:1024")
        a(f"buffer_store_dwordx4 {v(88,4)}, v1, s[{WSR}:{WSR+3}], s33 offen")
        a(f"buffer_store_dwordx4 {v(92,4)}, v1, s[{WSR}:{WSR+3}], s33 offen offset:1024")
    a(f"s_lshl_b32 s3, s{RB}, 5")
    a(f"s_add_u32 s3, s3, s{J2}")
    a("s_lshl_b32 s3, s3, 2")
    a(f"s_add_u32 s3, s3, {FL_H}")
    arrive_flag(a, C_HCNT, 4, 3, 66, 67, P + "_hflag")
    pf.stamp(9)
    if "hwait" in X:
        a(f"v_mov_b32 v66, {L_CNT}")
        lds_wait(a, C_HCNT, 4, 66, 67, P + "_hall")
    if "lowc" in X: a("s_setprio 0")
    if os.environ.get("S3") == "late": stage3("c")
    if os.environ.get("S3") == "wo":
        a(f"s_cmp_eq_u32 s{BW}, 2")
        a(f"s_cbranch_scc0 {P}_notwo")
        touch_matrix(a, S_WO, 156, 158)
        a.label(P + "_notwo")
    a(f"s_lshr_b32 s3, s{BW}, 1")
    a("s_cmp_eq_u32 s3, 0")
    a(f"s_cselect_b32 s{TR}, s{S_CRE}, s{S_CIM}")
    a(f"s_cselect_b32 s{TR+1}, s{S_CRE+1}, s{S_CIM+1}")
    plain_lane_off(a, 53, 0, 69)
    a(f"s_mul_i32 s40, s{J2}, {64*896}")
    a(f"s_and_b32 s3, s{BW}, 1")
    a("s_mul_i32 s3, s3, 448")
    a("s_add_u32 s40, s40, s3")
    a(f"s_mul_i32 s41, s{BW}, 20480")
    CDMA = [53]
    def c_dma(kb):
        a(f"s_add_u32 m0, s41, {(kb % 5)*4096}")
        for q in range(4):
            a(f"s_add_u32 s33, s40, {q*16*896 + kb*64}")
            a(f"buffer_load_dwordx4 v{CDMA[0]}, s[{TR}:{TR+3}], s33 offen lds")
            if q < 3: a("s_add_u32 m0, m0, 1024")
    for kb in range(5): c_dma(kb)
    a(f"s_cmp_eq_u32 s{BW}, 0")
    a(f"s_cbranch_scc0 {P}_nopollH2" if "gpar" in X else f"s_cbranch_scc0 {P}_nopollH")
    a("v_lshlrev_b32 v67, 2, v0")
    a(f"s_lshl_b32 s35, s{RB}, 7")
    a(f"s_add_u32 s35, s35, {FL_H}")
    a("s_mov_b64 s[58:59], 0x7f")
    poll(a, P + "_pollH", 68, 67, 35, 58)
    if "gpar" in X:
        a(f"s_branch {P}_pollG_ok")
        a.label(P + "_nopollH2")
        a(f"s_cmp_eq_u32 s{BW}, 1")
        a(f"s_cbranch_scc0 {P}_pollG_ok")
    srd(a, 48, S_DBG, 256)
    a(f"v_mov_b32 v67, {D_GOG}")
    a.label(P + "_pollG")
    a(f"buffer_load_dword v68, v67, s[48:51], 0 offen{SC1}")
    a("s_waitcnt vmcnt(0)")
    a("v_readfirstlane_b32 s3, v68")
    a("s_cmp_lg_u32 s3, 0")
    a(f"s_cbranch_scc1 {P}_pollG_ok")
    a(f"s_sleep {POLLSLEEP}")
    a(f"s_sub_u32 s{SPIN}, s{SPIN}, 1")
    a(f"s_cbranch_scc0 {P}_pollG")
    a(f"s_mov_b32 s{SPIN}, 0")
    a.label(P + "_pollG_ok")
    a.label(P + "_nopollH")
    a("s_waitcnt vmcnt(0)")
    bar()
    pf.stamp(10)
    T[0], T[1] = 4, 5
    ACC = 8
    XS, GT = 136, 152
    if "lowy" in X and "lowlate" not in X: a(f"s_setprio {os.environ.get('YLOW', '0')}")
    a(f"s_lshl_b32 s3, s{RB}, 1")
    a("s_mul_i32 s3, s3, 56")
    a(f"s_mul_i32 s33, s{BW}, 14")
    a("s_add_u32 s3, s3, s33")
    a("s_lshl_b32 s3, s3, 10")
    a(f"s_add_u32 s32, s3, {WS_HF}")
    a(f"s_add_u32 s34, s32, {56*1024}")
    AF = 88; NA = 10
    plain_lane_off(a, 2, 0, 72)
    CDMA[0] = 2
    xfrag_addr(a, 6, 0, 72)
    a("v_add_u32 v6, s41, v6")
    a("v_xor_b32 v7, 32, v6")
    def ldA(st_):
        r = AF + 8 * (st_ % NA)
        a(f"s_add_u32 s35, s32, {st_*1024}")
        a(f"s_add_u32 s36, s34, {st_*1024}")
        a(f"buffer_load_dwordx4 {v(r,4)}, v1, s[{WSR}:{WSR+3}], s35 offen{SC1}")
        a(f"buffer_load_dwordx4 {v(r+4,4)}, v1, s[{WSR}:{WSR+3}], s36 offen{SC1}")
    for st_ in range(NA): ldA(st_)
    if "htouch" in X:
        a("v_lshlrev_b32 v72, 7, v0")
        a(f"s_mov_b32 m0, {L_JUNK}")
        a(f"s_add_u32 s35, s32, {NA*1024}")
        a(f"s_add_u32 s36, s34, {NA*1024}")
        a("s_mov_b32 exec_hi, 0")
        a(f"buffer_load_dword v72, s[{WSR}:{WSR+3}], s35 offen{SC1} lds")
        a(f"buffer_load_dword v72, s[{WSR}:{WSR+3}], s36 offen{SC1} lds")
        a("s_mov_b64 exec, -1")
    CB = [72, 80]
    def rdC(st_):
        b = CB[st_ & 1]
        kb = st_ >> 1
        a(f"ds_read_b128 {v(b,4)}, v{6+(st_&1)} offset:{(kb%5)*4096}")
        a(f"ds_read_b128 {v(b+4,4)}, v{6+(st_&1)} offset:{(kb%5)*4096+2048}")
    issued = []
    for st_ in range(NA): issued += [("A", st_)] * 2
    if "htouch" in X: issued += [("T", 0)] * 2
    HY = int(os.environ.get("HY", "0"))
    if HY:
        a(f"v_mov_b32 v4, {L_CNT}")
        lds_wait(a, C_LEND, HY, 4, 5, P + "_lend", sleep=8)
        a(f"s_setprio {os.environ.get('YP', '1')}")
    if "lowy" in X and "lowlate" in X: a(f"s_setprio {os.environ.get('YLOW', '0')}")
    rdC(0)
    for st_ in range(14):
        kb = st_ >> 1
        need = [("A", st_)]
        if st_ + 1 < 14 and ((st_ + 1) >> 1) >= 5: need.append(("C", (st_ + 1) >> 1))
        last = max(i for i, t in enumerate(issued) if t in need)
        n_out = len(issued) - 1 - last
        a(f"s_waitcnt vmcnt({n_out})")
        if st_ + 1 < 14: rdC(st_ + 1)
        a(f"s_waitcnt lgkmcnt({2 if st_ + 1 < 14 else 0})")
        b = CB[st_ & 1]; r = AF + 8 * (st_ % NA)
        for rt in range(2):
            for ct in range(2):
                acc = ACC + 16 * (2 * rt + ct)
                c = "0" if st_ == 0 else v(acc, 16)
                a(f"{MF} {v(acc,16)}, {v(r+4*rt,4)}, {v(b+4*ct,4)}, {c}")
        if st_ + NA < 14:
            ldA(NA + st_); issued += [("A", NA + st_)] * 2
        if (st_ & 1) == 1 and kb + 5 < 7:
            c_dma(kb + 5); issued += [("C", kb + 5)] * 4
    pf.stamp(11)
    a(f"s_lshl_b32 s3, s{RB}, 6")
    a("s_lshl_b32 s33, s38, 5")
    a("s_add_u32 s3, s3, s33")
    a("v_lshrrev_b32 v80, 5, v0")
    a("v_lshlrev_b32 v80, 4, v80")
    a("v_add_u32 v80, s3, v80")
    a(f"s_lshl_b32 s33, s{J2}, 6")
    a(f"s_and_b32 s35, s{BW}, 1")
    a("s_lshl_b32 s35, s35, 5")
    a("s_add_u32 s33, s33, s35")
    a("v_and_b32 v81, 31, v0")
    a("v_add_u32 v81, s33, v81")
    srd(a, 48, S_X, XBYTES)
    a("v_mul_u32_u24 v82, 896, v80")
    a("v_lshl_add_u32 v82, v81, 1, v82")
    for r in range(16):
        a(f"buffer_load_ushort v{XS+r}, v82, s[48:51], 0 offen offset:{(r%4)*896}")
        if r % 4 == 3 and r < 15: a(f"v_add_u32 v82, {4*896}, v82")
    srd(a, 52, S_DSK, 896)
    a("v_lshlrev_b32 v83, 1, v81")
    a("buffer_load_ushort v3, v83, s[52:55], 0 offen")
    a("v_lshlrev_b32 v83, 2, v80")
    a(f"s_mov_b32 s35, {WS_G}")
    for q in range(4):
        a(f"buffer_load_dwordx4 {v(GT+4*q,4)}, v83, s[{WSR}:{WSR+3}], s35 offen offset:{16*q}{SC1}")

    a(f"s_setprio {os.environ.get('YP2', '2')}")
    bar()
    def wo_dma(t1, t2, z):
        srd(a, TR, S_WO, WBYTES)
        a(f"v_lshrrev_b32 v{t1}, 3, v0")
        a(f"v_mul_u32_u24 v{t1}, 896, v{t1}")
        a(f"v_and_b32 v{t2}, 7, v0")
        a(f"v_lshl_add_u32 v{t1}, v{t2}, 4, v{t1}")
        a(f"s_mul_i32 s32, s{BW}, {112*896}")
        a(f"s_lshl_b32 s3, s{J2}, 7")
        a("s_add_u32 s32, s32, s3")
        a(f"s_mul_i32 s34, s{BW}, 14336")
        a("s_mov_b32 m0, s34")
        a("s_mov_b32 s36, 14")
        a.label(P + "_wodma")
        a("s_sub_u32 s36, s36, 1")
        a(f"buffer_load_dwordx4 v{t1}, s[{TR}:{TR+3}], s32 offen lds")
        a("s_add_u32 s32, s32, 7168")
        a("s_add_u32 m0, m0, 1024")
        a("s_cmp_lg_u32 s36, 0")
        a(f"s_cbranch_scc1 {P}_wodma")
        a(f"v_mov_b32 v{z}, 0")
        a(f"v_mov_b32 v{z+1}, 0")
        a(f"v_lshlrev_b32 v{t2}, 3, v0")
        a(f"ds_write_b64 v{t2}, v[{z}:{z+1}] offset:57344")
    t1 = 75
    if "wolate" not in X: wo_dma(75, 76, 80)
    a(f"v_mov_b32 v4, {L_CNT}")
    lds_wait(a, C_TRD, 8, 4, 5, P + "_trd")
    a(f"s_lshl_b32 s3, s{BW}, 12")
    a(f"s_add_u32 s3, s3, {A_OP}")
    a(f"v_add_u32 v{t1}, s3, v1")
    for t in range(4):
        for q in range(4):
            a(f"ds_write_b128 v{t1}, {v(ACC+16*t+4*q,4)} offset:{t*16384+q*1024}")
    bar()
    a(f"s_lshl_b32 s3, s{BW}, 14")
    a(f"s_add_u32 s3, s3, {A_OP}")
    a(f"v_add_u32 v{t1}, s3, v1")
    for src in range(3):
        for q in range(4):
            a(f"ds_read_b128 {v(88+16*src+4*q,4)}, v{t1} offset:{src*4096+q*1024}")
    YT = 8
    for q in range(4):
        a(f"ds_read_b128 {v(YT+4*q,4)}, v{t1} offset:{3*4096+q*1024}")
        if q == 2: a("s_waitcnt lgkmcnt(4)")
    a("s_waitcnt lgkmcnt(0)")
    VT_, VD_, VO_, t1, t2, t3, t4, t5 = 40, 41, 42, 43, 44, 45, 46, 47
    a("s_waitcnt vmcnt(0)" if "wolate" in X else "s_waitcnt vmcnt(14)")
    for r in range(16):
        a(f"v_add_f32 v{88+r}, v{88+r}, v{104+r}")
        a(f"v_add_f32 v{YT+r}, v{YT+r}, v{120+r}")
    a("v_lshlrev_b32 v3, 16, v3")
    for r in range(16):
        a(f"v_add_f32 v{YT+r}, v{YT+r}, v{88+r}")
        a(f"v_lshlrev_b32 v{XS+r}, 16, v{XS+r}")
        a(f"v_mul_f32 v{XS+r}, v{XS+r}, v3")
        a(f"v_fma_f32 v{YT+r}, 2.0, v{YT+r}, v{XS+r}")
        a(f"v_sub_f32 v{XS+r}, 1.0, v{GT+r}")
        a(f"v_mul_f32 v{YT+r}, v{YT+r}, v{XS+r}")
    a(f"s_lshl_b32 s3, s{RB}, 6")
    a("s_lshl_b32 s33, s38, 5")
    a("s_add_u32 s3, s3, s33")
    a(f"v_lshrrev_b32 v{VT_}, 5, v0")
    a(f"v_lshlrev_b32 v{VT_}, 4, v{VT_}")
    a(f"v_add_u32 v{VT_}, s3, v{VT_}")
    a(f"s_lshl_b32 s33, s{J2}, 6")
    a(f"s_and_b32 s35, s{BW}, 1")
    a("s_lshl_b32 s35, s35, 5")
    a("s_add_u32 s33, s33, s35")
    a(f"v_and_b32 v{VD_}, 31, v0")
    a(f"v_add_u32 v{VD_}, s33, v{VD_}")
    a(f"v_mul_u32_u24 v{VO_}, 1792, v{VT_}")
    a(f"v_lshl_add_u32 v{VO_}, v{VD_}, 2, v{VO_}")
    srd(a, 48, S_OUT, OUTBYTES)
    a("v_lshrrev_b32 v6, 5, v0")
    a("v_lshlrev_b32 v6, 2, v6")
    a("v_bfe_u32 v7, v0, 2, 2")
    a("v_add_u32 v6, v6, v7")
    a("v_lshlrev_b32 v6, 7, v6")
    a("v_and_b32 v7, 16, v0")
    a(f"v_and_b32 v{t1}, 3, v0")
    a(f"v_lshl_add_u32 v7, v{t1}, 2, v7")
    a("v_lshl_add_u32 v6, v7, 1, v6")
    a(f"s_and_b32 s3, s{BW}, 1")
    a(f"s_mul_i32 s3, s3, {8*28*128}")
    a("v_add_u32 v6, s3, v6")
    if "wolate" in X:
        a(f"v_mov_b32 v4, {L_CNT}")
        lds_wait(a, C_OCNT, 8, 4, 5, P + "_opub")
        wo_dma(48, 49, 50)
    a("s_waitcnt vmcnt(0)")
    a("s_setprio 3")
    pf.stamp(12)
    bar()
    a(f"v_lshlrev_b32 v{t4}, 2, v0")
    a(f"s_lshl_b32 s35, s{RB}, 7")
    a(f"s_add_u32 s35, s35, {FL_O}")
    a("s_mov_b64 s[58:59], 0xff")
    poll(a, P + "_pollO", t5, t4, 35, 58)
    pf.stamp(13)
    a(f"s_lshl_b32 s3, s{RB}, 1")
    a("s_add_u32 s3, s3, s38")
    a("s_lshl_b32 s3, s3, 15")
    a(f"s_and_b32 s33, s{BW}, 1")
    a("s_lshl_b32 s33, s33, 14")
    a("s_add_u32 s3, s3, s33")
    a(f"s_add_u32 s32, s3, {WS_OF}")
    OFR = 88
    for st_ in range(16):
        a(f"s_add_u32 s33, s32, {st_*1024}")
        a(f"buffer_load_dwordx4 {v(OFR+4*st_,4)}, v1, s[{WSR}:{WSR+3}], s33 offen{SC1}")
    PA_ = [56, 72]
    WB = [24, 32]
    def rdW(st_):
        hd, f = st_ >> 1, st_ & 1
        off = (28 * hd + 16 * f) * 128
        b = WB[st_ & 1]
        for ct in range(2):
            a(f"ds_read_b64_tr_b16 {v(b+4*ct,2)}, v6 offset:{off+ct*64}")
            a(f"ds_read_b64_tr_b16 {v(b+4*ct+2,2)}, v6 offset:{off+ct*64+1024}")
    rdW(0)
    for st_ in range(16):
        if st_ + 1 < 16: rdW(st_ + 1)
        a(f"s_waitcnt vmcnt({15-st_}) lgkmcnt({4 if st_ + 1 < 16 else 0})")
        for ct in range(2):
            c = "0" if st_ == 0 else v(PA_[ct], 16)
            a(f"{MF} {v(PA_[ct],16)}, {v(OFR+4*st_,4)}, {v(WB[st_&1]+4*ct,4)}, {c}")
    a(f"s_xor_b32 s3, s{BW}, 1")
    a("s_lshl_b32 s3, s3, 12")
    a("s_add_u32 s3, s3, 65536")
    a(f"v_add_u32 v{t1}, s3, v1")
    a(f"s_and_b32 s33, s{BW}, 1")
    a("s_nop 7")
    a("s_cmp_eq_u32 s33, 0")
    a(f"s_cbranch_scc0 {P}_send0")
    for q in range(4): a(f"ds_write_b128 v{t1}, {v(PA_[1]+4*q,4)} offset:{q*1024}")
    a(f"s_branch {P}_sent")
    a.label(P + "_send0")
    a("s_nop 1")
    for q in range(4): a(f"ds_write_b128 v{t1}, {v(PA_[0]+4*q,4)} offset:{q*1024}")
    a("s_nop 1")
    for r in range(16): a(f"v_mov_b32 v{PA_[0]+r}, v{PA_[1]+r}")
    a.label(P + "_sent")
    bar()
    a(f"s_lshl_b32 s3, s{BW}, 12")
    a("s_add_u32 s3, s3, 65536")
    a(f"v_add_u32 v{t1}, s3, v1")
    for q in range(4): a(f"ds_read_b128 {v(88+4*q,4)}, v{t1} offset:{q*1024}")
    a("s_waitcnt lgkmcnt(0)")
    for r in range(16):
        a(f"v_add_f32 v{88+r}, v{88+r}, v{PA_[0]+r}")
        a(f"v_fma_f32 v{88+r}, v{GT+r}, v{88+r}, v{YT+r}")
    for r in range(16):
        a(f"buffer_store_dword v{88+r}, v{VO_}, s[48:51], 0 offen offset:{(r%2)*1792}{os.environ.get('OST', '')}")
        if r % 2 == 1 and r < 15: a(f"v_add_u32 v{VO_}, {2*1792}, v{VO_}")
    pf.stamp(14)
    a(f"s_branch {P}_end")
    a.label(P + "_skip")
    if os.environ.get("S3", "b") in ("b", "u", "late", "wo", "bi"): stage3("b")
    a(f"v_mov_b32 v54, {L_CNT}")
    a("v_mov_b32 v55, 1")
    a("s_mov_b64 exec, 1")
    a(f"ds_add_u32 v54, v55 offset:{C_HCNT}")
    a("s_mov_b64 exec, -1")
    a.label(P + "_end")

def lds_wait(a, coff, target, vaddr, vtmp, lab, sleep=1):
    a.label(lab)
    a(f"ds_read_b32 v{vtmp}, v{vaddr} offset:{coff}")
    a("s_waitcnt lgkmcnt(0)")
    a(f"v_readfirstlane_b32 s3, v{vtmp}")
    a(f"s_cmp_ge_u32 s3, {target}")
    a(f"s_cbranch_scc1 {lab}_ok")
    a(f"s_sleep {sleep}")
    a(f"s_sub_u32 s{SPIN}, s{SPIN}, 1")
    a(f"s_cbranch_scc0 {lab}")
    a(f"s_mov_b32 s{SPIN}, 0")
    a.label(lab + "_ok")

def lds_arrive(a, coff, vaddr, vtmp):
    a(f"v_mov_b32 v{vaddr}, {L_CNT}")
    a(f"v_mov_b32 v{vtmp}, 1")
    a("s_mov_b64 exec, 1")
    a(f"ds_add_u32 v{vaddr}, v{vtmp} offset:{coff}")
    a("s_mov_b64 exec, -1")

def dma_loop(a, lab, vaddr, n, dsrc, dlds):
    a("s_mov_b32 s36, %d" % n)
    a.label(lab)
    a("s_sub_u32 s36, s36, 1")
    a(f"buffer_load_dwordx4 v{vaddr}, s[{TR}:{TR+3}], s32 offen lds")
    a(f"s_add_u32 s32, s32, {dsrc}")
    a(f"s_add_u32 m0, m0, {dlds}")
    a("s_cmp_lg_u32 s36, 0")
    a(f"s_cbranch_scc1 {lab}")

def q_loop(a, acc, X4, W4, vxe, vxo, vw):
    def rd(j):
        k = j & 3
        a(f"ds_read_b128 {v(X4+4*k,4)}, v{vxo if j & 1 else vxe} offset:{(j>>1)*4096}")
        a(f"ds_read_b64_tr_b16 {v(W4+4*k,2)}, v{vw} offset:{j*2048}")
        a(f"ds_read_b64_tr_b16 {v(W4+4*k+2,2)}, v{vw} offset:{j*2048+512}")
    for j in range(4): rd(j)
    for j in range(28):
        left = min(3, 27 - j)
        a(f"s_waitcnt lgkmcnt({3*left})")
        c = "0" if j == 0 else v(acc, 16)
        a(f"{MF} {v(acc,16)}, {v(W4+4*(j&3),4)}, {v(X4+4*(j&3),4)}, {c}")
        if j + 4 < 28: rd(j + 4)

def gen_fused(a):
    name = NAME + "_kernel"
    a(f".globl {name}")
    a(".p2align 8")
    a(f".type {name},@function")
    a.label(name)
    END = "L_end"
    a("s_cmp_ge_u32 s2, 256")
    a(f"s_cbranch_scc1 {END}")
    a("s_load_dwordx16 s[64:79], s[0:1], 0")
    a("s_load_dwordx16 s[80:95], s[0:1], 64")
    a("s_load_dwordx4 s[96:99], s[0:1], 128")
    if "earlycode" in X:
        a("s_getpc_b64 s[56:57]")
        a.label("p0_pc0")
        a("v_lshlrev_b32 v148, 7, v0")
        a("s_mov_b32 s3, L_end-p0_pc0")
        a("v_min_u32 v148, s3, v148")
        a("global_load_dword v149, v148, s[56:57]")
    a("v_lshrrev_b32 v2, 6, v0")
    a("v_and_b32 v0, 63, v0")
    a(f"v_readfirstlane_b32 s{WV}, v2")
    a(f"v_mov_b32 v4, {L_CNT}")
    a("v_mov_b32 v5, 0")
    a("v_lshl_add_u32 v4, v0, 2, v4")
    a("ds_write_b32 v4, v5")
    a(f"s_and_b32 s{RB}, s2, 7")
    a(f"s_lshl_b32 s{RB}, s{RB}, 2")
    a(f"s_lshr_b32 s{J2}, s2, 3")
    a(f"s_and_b32 s3, s{J2}, 3")
    a(f"s_add_u32 s{RB}, s{RB}, s3")
    a(f"s_lshr_b32 s{J2}, s{J2}, 2")
    a("v_lshlrev_b32 v1, 4, v0")
    a(f"s_mov_b32 s{SPIN}, 0x100000")
    a(f"s_sub_u32 s{BW}, s{WV}, 8")
    pfA = Prof(a, 167)
    xtile_lane_off(a, 3, 0, 4, 5)
    a("s_waitcnt lgkmcnt(0)")
    srd(a, WSR, S_WS, WS_SIZE)
    if PROF: a("v_mov_b32 v167, 0")
    pfA.stamp(0)
    if PROF:
        a("s_getreg_b32 s60, hwreg(HW_REG_XCC_ID)")
        a("v_writelane_b32 v167, s60, 20")
        a("s_getreg_b32 s60, hwreg(HW_REG_HW_ID)")
        a("v_writelane_b32 v167, s60, 21")
    a(f"s_cmp_lt_u32 s{WV}, 4")
    a("s_cselect_b64 s[46:47], -1, 0")
    a(f"s_cmp_eq_u32 s{J2}, 0")
    a(f"s_cselect_b32 s{TR}, s{S_WK}, s{S_WV}")
    a(f"s_cselect_b32 s{TR+1}, s{S_WK+1}, s{S_WV+1}")
    a(f"s_mov_b32 s{TR+2}, {WKBYTES}")
    a(f"s_mov_b32 s{TR+3}, 0x00020000")
    a(f"s_mul_i32 s32, s{BW}, 7168")
    a(f"s_add_u32 s34, s32, {L_WKV}")
    a("s_mov_b32 s33, 1024")
    a("s_mov_b32 s35, 1024")
    a(f"s_cmp_lt_u32 s{J2}, 2")
    a("s_cselect_b32 s36, 7, 0")
    a(f"s_cmp_ge_u32 s{WV}, 8")
    a("s_cselect_b32 s36, s36, 0")
    a("v_cndmask_b32 v3, v1, v3, s[46:47]")
    a(f"s_mul_i32 s40, s{RB}, {64*896}")
    a(f"s_lshr_b32 s3, s{WV}, 1")
    a(f"s_mul_i32 s3, s3, {32*896}")
    a("s_add_u32 s40, s40, s3")
    a(f"s_and_b32 s3, s{WV}, 1")
    a(f"s_mul_i32 s3, s3, {8*896}")
    a("s_add_u32 s40, s40, s3")
    a(f"s_lshl_b32 s41, s{WV}, 10")
    a(f"s_cmp_lt_u32 s{WV}, 4")
    a(f"s_cselect_b32 s{TR}, s{S_X}, s{TR}")
    a(f"s_cselect_b32 s{TR+1}, s{S_X+1}, s{TR+1}")
    a(f"s_cselect_b32 s{TR+2}, {XBYTES}, s{TR+2}")
    a("s_cselect_b32 s32, s40, s32")
    a("s_cselect_b32 s34, s41, s34")
    a("s_cselect_b32 s33, 64, s33")
    a("s_cselect_b32 s35, 4096, s35")
    a("s_cselect_b32 s36, 14, s36")
    a("s_mov_b32 m0, s34")
    a("s_cmp_eq_u32 s36, 0")
    a("s_cbranch_scc1 p0_first_done")
    a.label("p0_first")
    a("s_sub_u32 s36, s36, 1")
    a(f"buffer_load_dwordx4 v3, s[{TR}:{TR+3}], s32 offen lds")
    a("s_add_u32 s32, s32, s33")
    a("s_add_u32 m0, m0, s35")
    a("s_cmp_lg_u32 s36, 0")
    a("s_cbranch_scc1 p0_first")
    a.label("p0_first_done")
    a(f"s_cmp_ge_u32 s{WV}, 8")
    a("s_cbranch_scc1 p0_bgw")
    a(f"s_cmp_ge_u32 s{WV}, 4")
    a("s_cbranch_scc1 p0_kvw")
    a("s_barrier")
    pfA.stamp(1)
    xfrag_addr(a, 6, 0, 4)
    tr_rowcol(a, 12, 13, 0, 4)
    a(f"s_lshr_b32 s38, s{WV}, 1")
    a(f"s_and_b32 s39, s{WV}, 1")
    a("s_lshl_b32 s3, s38, 11")
    a("v_add_u32 v6, s3, v6")
    a("v_xor_b32 v7, 32, v6")
    a("v_lshlrev_b32 v10, 7, v12")
    a("v_lshl_add_u32 v10, v13, 1, v10")
    a("s_mul_i32 s3, s39, 56")
    a(f"s_add_u32 s3, s3, {L_WQ}")
    a("v_add_u32 v10, s3, v10")
    a("s_waitcnt vmcnt(0)")
    lds_arrive(a, C_XR, 4, 5)
    pfA.stamp(2)
    a("s_waitcnt lgkmcnt(0)")
    a("s_barrier")
    pfA.stamp(3)
    q_loop(a, 16, 32, 48, 6, 7, 10)
    a(f"s_mov_b32 s42, {hex(QSCALE)}")
    a(f"s_lshl_b32 s3, s{WV}, 11")
    a(f"s_add_u32 s3, s3, {L_QX}")
    a("v_add_u32 v12, s3, v1")
    a("s_nop 7")
    a("s_nop 0")
    for i in range(16): a(f"v_mul_f32 v{16+i}, s42, v{16+i}")
    for i in range(8): a(f"v_cvt_pk_bf16_f32 v{32+i}, v{16+2*i}, v{17+2*i}")
    a("s_mov_b32 exec_lo, 0")
    a("v_mov_b32 v38, 0")
    a("v_mov_b32 v39, 0")
    a("s_mov_b32 exec_lo, -1")
    a("ds_write_b128 v12, v[32:35]")
    a("ds_write_b128 v12, v[36:39] offset:1024")
    a("s_branch p0_b1")
    a.label("p0_kvw")
    a(f"s_sub_u32 s39, s{WV}, 4")
    if "earlycode" not in X:
        a("s_getpc_b64 s[56:57]")
        a.label("p0_pc")
        a("s_lshl_b32 s3, s39, 13")
        a("v_lshlrev_b32 v150, 7, v0")
        a("v_add_u32 v150, s3, v150")
        a(f"s_sub_u32 s56, s56, p0_pc-{NAME}_kernel")
        a("s_subb_u32 s57, s57, 0")
        a(f"s_mov_b32 s3, L_end-{NAME}_kernel")
        a("v_min_u32 v150, s3, v150")
        a("global_load_dword v150, v150, s[56:57]")
    a("s_cmp_eq_u32 s39, 0")
    a("s_cbranch_scc0 p0_pf_out")
    a("v_lshlrev_b32 v151, 21, v0")
    a("s_mov_b64 exec, 7")
    a(f"buffer_load_dword v151, v151, s[{WSR}:{WSR+3}], 0 offen")
    a("s_mov_b64 exec, -1")
    a.label("p0_pf_out")
    a("s_cmp_eq_u32 s39, 1")
    a("s_cbranch_scc0 p0_pf_done")
    srd(a, 48, S_OUT, OUTBYTES)
    a("v_mul_u32_u24 v151, 0x1c0000, v0")
    a("s_mov_b64 exec, 7")
    a("buffer_load_dword v151, v151, s[48:51], 0 offen")
    a("s_mov_b64 exec, -1")
    if os.environ.get("S3") == "mall" or "mallwarm" in X:
        a("s_cmp_eq_u32 s39, 3")
        a("s_cbranch_scc0 p0_pf_done")
        a("v_lshlrev_b32 v149, 7, v0")
        a(f"s_mul_i32 s3, s2, {13*128}")
        a(f"s_mov_b32 m0, {L_JUNK}")
        a("s_mov_b64 exec, 0x1fff")
        for sp in (S_CRE, S_CIM, S_WO):
            srd(a, 48, sp, WBYTES)
            a("buffer_load_dword v149, s[48:51], s3 offen lds")
        a("s_mov_b64 exec, -1")
    a.label("p0_pf_done")
    a("s_barrier")
    a(f"s_cmp_ge_u32 s{J2}, 3")
    a("s_cbranch_scc1 p0_kv_none")
    a("s_lshr_b32 s38, s39, 1")
    a("s_and_b32 s39, s39, 1")
    a(f"s_mov_b32 s15, {1 if 'dry' in X else 0}")
    a("s_setprio 3")
    a.label("p0_kv_setup")
    a(f"s_mov_b32 s8, s{WSR}")
    a(f"s_mov_b32 s9, s{WSR+1}")
    a("s_cmp_eq_u32 s15, 0")
    a(f"s_cselect_b32 s10, {WS_SIZE}, 0")
    a("s_mov_b32 s11, 0x00020000")
    xfrag_addr(a, 6, 0, 4)
    tr_rowcol(a, 12, 13, 0, 4)
    a("s_lshl_b32 s3, s38, 11")
    a("s_mul_i32 s41, s39, 28672")
    a("s_add_u32 s3, s3, s41")
    a("v_add_u32 v6, s3, v6")
    a("v_xor_b32 v7, 32, v6")
    a("s_mul_i32 s40, s39, 14")
    a(f"s_cmp_eq_u32 s{J2}, 2")
    a("s_cbranch_scc1 p0_kv_gaddr")
    a("v_mul_u32_u24 v10, 56, v12")
    a("v_lshl_add_u32 v10, v13, 1, v10")
    a(f"s_mul_i32 s3, s40, {16*56}")
    a(f"s_add_u32 s3, s3, {L_WKV}")
    a("v_add_u32 v10, s3, v10")
    a("v_add_u32 v11, 224, v10")
    a(f"s_mov_b32 s42, {16*56}")
    a("s_branch p0_kv_addr_done")
    a.label("p0_kv_gaddr")
    a("v_lshlrev_b32 v10, 3, v12")
    a("s_lshl_b32 s3, s40, 7")
    a(f"s_add_u32 s3, s3, {L_WKV}")
    a("v_add_u32 v10, s3, v10")
    a("v_add_u32 v11, 32, v10")
    a("s_mov_b32 s42, 128")
    a.label("p0_kv_addr_done")
    a(f"v_mov_b32 v4, {L_CNT}")
    a("s_cmp_lg_u32 s15, 0")
    a("s_cbranch_scc1 p0_xr_ok")
    lds_wait(a, C_XR, 8, 4, 5, "p0_xr")
    pfA.stamp(2)
    def kv_rd(i):
        a(f"ds_read_b128 {v(32+4*i,4)}, v{6+(i&1)} offset:{(i>>1)*4096}")
        a(f"ds_read_b64_tr_b16 {v(88+4*i,2)}, v10")
        a(f"ds_read_b64_tr_b16 {v(88+4*i+2,2)}, v11")
        if i < 13:
            a("v_add_u32 v10, s42, v10")
            a("v_add_u32 v11, s42, v11")
    def kv_mm(swap, tag):
        for i in range(4): kv_rd(i)
        for i in range(14):
            a(f"s_waitcnt lgkmcnt({3*min(3, 13-i)})")
            A, B = (32+4*i, 88+4*i) if swap else (88+4*i, 32+4*i)
            a(f"{MF} v[16:31], {v(A,4)}, {v(B,4)}, {'0' if i == 0 else 'v[16:31]'}")
            if i + 4 < 14: kv_rd(i + 4)
    a(f"s_cmp_ge_u32 s{J2}, 1")
    a("s_cbranch_scc1 p0_kv_swap")
    kv_mm(False, "k")
    a("s_branch p0_kv_mm_done")
    a.label("p0_kv_swap")
    kv_mm(True, "v")
    a.label("p0_kv_mm_done")
    pfA.stamp(22)
    a("s_lshl_b32 s3, s38, 12")
    a(f"s_add_u32 s3, s3, {L_QX}")
    a("v_add_u32 v12, s3, v1")
    a("s_nop 7")
    a("s_nop 0")
    a("s_cmp_lg_u32 s15, 0")
    a("s_cbranch_scc1 p0_kv_root")
    a("s_cmp_eq_u32 s39, 0")
    a("s_cbranch_scc1 p0_kv_root")
    for q in range(4): a(f"ds_write_b128 v12, {v(16+4*q,4)} offset:{q*1024}")
    a("s_waitcnt lgkmcnt(0)")
    a("s_lshl_b32 s3, s38, 2")
    a(f"v_mov_b32 v4, {L_CNT}")
    a("v_add_u32 v4, s3, v4")
    a("v_mov_b32 v5, 1")
    a("s_mov_b64 exec, 1")
    a(f"ds_add_u32 v4, v5 offset:{C_KVR}")
    a("s_mov_b64 exec, -1")
    a("s_branch p0_kv_none")
    a.label("p0_kv_root")
    a("s_lshl_b32 s3, s38, 2")
    a(f"v_mov_b32 v4, {L_CNT}")
    a("v_add_u32 v4, s3, v4")
    a("s_cmp_lg_u32 s15, 0")
    a("s_cbranch_scc1 p0_kvr_ok")
    lds_wait(a, C_KVR, 1, 4, 5, "p0_kvr")
    pfA.stamp(23)
    for i in range(4): a(f"ds_read_b128 {v(32+4*i,4)}, v12 offset:{i*1024}")
    a("s_waitcnt lgkmcnt(0)")
    for r in range(16): a(f"v_add_f32 v{16+r}, v{16+r}, v{32+r}")
    a(f"s_lshl_b32 s43, s{RB}, 1")
    a("s_add_u32 s43, s43, s38")
    a(f"s_cmp_eq_u32 s{J2}, 2")
    a("s_cbranch_scc1 p0_gate_epi")
    for i in range(8): a(f"v_cvt_pk_bf16_f32 v{32+i}, v{16+2*i}, v{17+2*i}")
    a("s_lshl_b32 s44, s43, 12")
    a(f"s_add_u32 s44, s44, {WS_KV}")
    a(f"s_cmp_eq_u32 s{J2}, 1")
    a("s_cbranch_scc1 p0_v_epi")
    a("s_mov_b32 exec_lo, 0")
    a("v_mov_b32 v38, 0x3f803f80")
    a("v_mov_b32 v39, 0x00003f80")
    a("s_mov_b32 exec_lo, -1")
    a(f"buffer_store_dwordx4 v[32:35], v1, s[8:11], s44 offen{SC1}")
    a(f"buffer_store_dwordx4 v[36:39], v1, s[8:11], s44 offen offset:1024{SC1}")
    a("s_branch p0_kv_arrive")
    a.label("p0_v_epi")
    a("v_max3_f32 v14, |v16|, |v17|, |v18|")
    for j in range(3, 15, 2): a(f"v_max3_f32 v14, v14, |v{16+j}|, |v{17+j}|")
    a("v_max_f32 v14, v14, |v31|")
    a("v_and_b32 v13, 31, v0")
    a("v_cmp_gt_u32 s[46:47], 28, v13")
    a(f"v_cmp_lt_f32 vcc, {hex(VMAX)}, v14")
    a("s_and_b64 vcc, vcc, s[46:47]")
    a("s_cbranch_vccz p0_v_ok")
    a("s_cmp_lg_u32 s15, 0")
    a("s_cbranch_scc1 p0_v_ok")
    srd(a, 48, S_DBG, 256)
    a("v_mov_b32 v14, 1")
    a(f"v_mov_b32 v15, {D_BAD}")
    a("s_mov_b64 exec, 1")
    a(f"buffer_store_dword v14, v15, s[48:51], 0 offen{SC1}")
    a("s_mov_b64 exec, -1")
    a.label("p0_v_ok")
    a("v_and_b32 v13, 31, v0")
    a("v_cmp_eq_u32 vcc, 28, v13")
    a("v_mov_b32 v14, 0x3f803f80")
    a("s_nop 0")
    a("v_cndmask_b32 v14, 0, v14, vcc")
    a("v_cmp_lt_u32 vcc, 27, v13")
    a("s_nop 1")
    for i in range(8): a(f"v_cndmask_b32 v{32+i}, v{32+i}, v14, vcc")
    a(f"buffer_store_dwordx4 v[32:35], v1, s[8:11], s44 offen offset:2048{SC1}")
    a(f"buffer_store_dwordx4 v[36:39], v1, s[8:11], s44 offen offset:3072{SC1}")
    a("s_branch p0_kv_arrive")
    a.label("p0_gate_epi")
    a(f"s_mov_b32 s42, {hex(LOG2E)}")
    for i in range(16): a(f"v_mul_f32 v{16+i}, s42, v{16+i}")
    for i in range(16): a(f"v_exp_f32 v{16+i}, -v{16+i}")
    for i in range(16): a(f"v_add_f32 v{16+i}, 1.0, v{16+i}")
    for i in range(16): a(f"v_rcp_f32 v{16+i}, v{16+i}")
    a("v_lshrrev_b32 v13, 5, v0")
    a("v_lshlrev_b32 v13, 6, v13")
    a("s_lshl_b32 s44, s43, 7")
    a(f"s_add_u32 s44, s44, {WS_G}")
    a("v_and_b32 v14, 31, v0")
    a("v_cmp_eq_u32 vcc, 0, v14")
    a("s_and_saveexec_b64 s[46:47], vcc")
    for q in range(4):
        a(f"buffer_store_dwordx4 {v(16+4*q,4)}, v13, s[8:11], s44 offen offset:{16*q}{SC1}")
    a("s_mov_b64 exec, -1")
    a.label("p0_kv_arrive")
    a("s_cmp_eq_u32 s15, 0")
    a("s_cbranch_scc1 p0_kv_real")
    a("s_mov_b32 s15, 0")
    a("s_branch p0_kv_setup")
    a.label("p0_kv_real")
    pfA.stamp(10)
    a("s_mov_b32 s16, 1")
    a("s_branch p0_kv_b0")
    a.label("p0_kv_none")
    a("s_mov_b32 s16, 0")
    a.label("p0_kv_b0")
    a("s_setprio 0")
    a("s_waitcnt lgkmcnt(0)")
    a("s_barrier")
    pfA.stamp(3)
    a("s_branch p0_b1")
    a.label("p0_bgw")
    a(f"s_cmp_eq_u32 s{WV}, 8")
    a("s_cbranch_scc0 p0_t9")
    srd(a, 48, S_X, XBYTES)
    a("s_and_b32 s3, s2, 7")
    a(f"s_mul_i32 s3, s3, {256*896}")
    a("s_lshr_b32 s46, s2, 3")
    a("s_mul_i32 s46, s46, 7168")
    a("s_add_u32 s3, s3, s46")
    a("v_lshlrev_b32 v50, 7, v0")
    a("s_mov_b32 exec_hi, 0xffffff")
    a("buffer_load_dword v52, v50, s[48:51], s3 offen")
    a("s_mov_b64 exec, -1")
    a("s_branch p0_t_done")
    a.label("p0_t9")
    a(f"s_cmp_eq_u32 s{WV}, 9")
    a("s_cbranch_scc0 p0_t10")
    touch_matrix(a, S_WQ, 52, 50)
    a("s_branch p0_t_done")
    a.label("p0_t10")
    a(f"s_cmp_eq_u32 s{WV}, 10")
    a("s_cbranch_scc0 p0_t_done")
    a("s_lshr_b32 s3, s2, 3")
    a(f"s_mul_i32 s3, s3, {7*128}")
    a("v_lshlrev_b32 v50, 7, v0")
    a("s_mov_b64 exec, 0x7f")
    srd(a, 48, S_WK, WKBYTES)
    a("buffer_load_dword v52, v50, s[48:51], s3 offen")
    srd(a, 48, S_WV, WKBYTES)
    a("buffer_load_dword v53, v50, s[48:51], s3 offen")
    a("s_mov_b64 exec, -1")
    a.label("p0_t_done")
    a(f"s_cmp_eq_u32 s{WV}, 11")
    a("s_cbranch_scc0 p0_nononce")
    a("s_cmp_eq_u32 s2, 0")
    a("s_cbranch_scc0 p0_nononce")
    srd(a, 48, S_DBG, 256)
    a("v_mov_b32 v7, 0")
    a("s_memrealtime s[60:61]")
    a("s_waitcnt lgkmcnt(0)")
    a("s_and_b32 s60, s60, 0xfffffffc")
    a("s_or_b32 s60, s60, 1")
    a("v_mov_b32 v6, s60")
    a("s_mov_b64 exec, 1")
    a(f"buffer_store_dword v6, v7, s[48:51], 0 offen offset:{D_NONCE}{SC1}")
    a("s_mov_b64 exec, -1")
    a.label("p0_nononce")
    a(f"s_cmp_eq_u32 s{J2}, 2")
    a("s_cbranch_scc0 p0_wkv_done")
    a(f"s_cmp_eq_u32 s{WV}, 8")
    a("s_cbranch_scc0 p0_wkv_done")
    srd(a, TR, S_GW, 896)
    a("v_lshlrev_b32 v3, 1, v0")
    for i in range(7):
        a(f"buffer_load_ushort v{10+i}, v3, s[{TR}:{TR+3}], 0 offen offset:{i*128}")
    a("v_lshlrev_b32 v4, 3, v0")
    a(f"v_add_u32 v4, {L_WKV}, v4")
    a("s_waitcnt vmcnt(0)")
    for i in range(7):
        a(f"v_lshl_or_b32 v{20+2*i}, v{10+i}, 16, v{10+i}")
        a(f"v_mov_b32 v{21+2*i}, v{20+2*i}")
        a(f"ds_write_b64 v4, {v(20+2*i,2)} offset:{i*512}")
    a.label("p0_wkv_done")
    a(f"s_lshl_b32 s37, s{J2}, 1")
    a(f"s_and_b32 s3, s{BW}, 1")
    a("s_add_u32 s37, s37, s3")
    a("v_and_b32 v4, 31, v0")
    a("s_lshl_b32 s3, s37, 6")
    a("v_lshl_add_u32 v4, v4, 1, s3")
    srd(a, 40, S_LRE, 896); a("buffer_load_ushort v8, v4, s[40:43], 0 offen")
    srd(a, 44, S_LIM, 896); a("buffer_load_ushort v9, v4, s[44:47], 0 offen")
    srd(a, 52, S_LDT, 896); a("buffer_load_ushort v10, v4, s[52:55], 0 offen")
    a("s_barrier")
    a("s_waitcnt vmcnt(3) lgkmcnt(0)")
    lds_arrive(a, C_XR, 4, 5)
    srd(a, TR, S_WQ, WBYTES)
    a("v_lshrrev_b32 v3, 3, v0")
    a("v_mul_u32_u24 v3, 896, v3")
    a("v_and_b32 v4, 7, v0")
    a("v_lshl_add_u32 v3, v4, 4, v3")
    a(f"s_mul_i32 s32, s{BW}, {112*896}")
    a(f"s_mul_i32 s33, s{J2}, 112")
    a("s_add_u32 s32, s32, s33")
    a(f"s_mul_i32 s34, s{BW}, 14336")
    a(f"s_add_u32 s34, s34, {L_WQ}")
    a("s_mov_b32 m0, s34")
    dma_loop(a, "p0_qdma", 3, 14, 7168, 1024)
    a(f"s_cmp_gt_u32 s{WV}, 9")
    a("s_cbranch_scc1 p0_nob")
    a(f"s_cmp_eq_u32 s{WV}, 8")
    a(f"s_cselect_b32 s56, s{S_BRE}, s{S_BIM}")
    a(f"s_cselect_b32 s57, s{S_BRE+1}, s{S_BIM+1}")
    touch_matrix(a, 56, 52, 50)
    a("s_mov_b32 s17, 1")
    a("s_waitcnt vmcnt(16)")
    a("s_branch p0_nob2")
    a.label("p0_nob")
    a("s_mov_b32 s17, 0")
    a("s_waitcnt vmcnt(14)")
    a.label("p0_nob2")
    a(f"v_mov_b32 v4, {L_CNT}")
    lds_wait(a, C_XR, 8, 4, 5, "p0_xr2")
    xfrag_addr(a, 6, 0, 4)
    a(f"s_lshr_b32 s38, s{BW}, 1")
    a("s_lshl_b32 s3, s38, 11")
    a("v_add_u32 v6, s3, v6")
    a("v_xor_b32 v7, 32, v6")
    for j in range(28):
        a(f"ds_read_b128 {v(56+4*j,4)}, v{6 + (j&1)} offset:{(j>>1)*4096}")
        if j in (11, 21): a("s_waitcnt lgkmcnt(2)")
    a("v_lshlrev_b32 v8, 16, v8")
    a("v_lshlrev_b32 v9, 16, v9")
    a("v_lshlrev_b32 v10, 16, v10")
    a(f"v_mul_f32 v10, {hex(LOG2E)}, v10")
    a("v_exp_f32 v10, v10")
    a("s_nop 0")
    a("v_cvt_pk_bf16_f32 v10, v10, v10")
    a("v_lshlrev_b32 v10, 16, v10")
    a("v_mul_f32 v11, v10, v8")
    a("v_mul_f32 v12, v10, v9")
    a(f"v_mul_f32 v11, {hex(LOG2E)}, v11")
    a(f"v_mul_f32 v12, {hex(INV2PI)}, v12")
    a("v_exp_f32 v13, v11")
    a("v_fract_f32 v14, v12")
    a("s_nop 0")
    a("v_cos_f32 v2, v14")
    a("v_sin_f32 v3, v14")
    a("s_nop 0")
    a("v_mul_f32 v2, v2, v13")
    a("v_mul_f32 v3, v3, v13")
    a("v_add_f32 v13, -1.0, v2")
    a("v_mul_f32 v14, v8, v8")
    a("v_fma_f32 v14, v9, v9, v14")
    a("v_rcp_f32 v14, v14")
    a("v_mul_f32 v15, v13, v8")
    a("v_fma_f32 v15, v3, v9, v15")
    a("v_mul_f32 v16, v3, v8")
    a("v_fma_f32 v16, -v13, v9, v16")
    a("v_mul_f32 v4, v15, v14")
    a("v_mul_f32 v5, v16, v14")
    a("s_cmp_eq_u32 s17, 0")
    a("s_cbranch_scc1 p0_bgw0")
    a("s_waitcnt vmcnt(2) lgkmcnt(0)")
    a("s_branch p0_bgw1")
    a.label("p0_bgw0")
    a("s_waitcnt vmcnt(0) lgkmcnt(0)")
    a.label("p0_bgw1")
    a("s_barrier")
    a.label("p0_b1")
    a("s_waitcnt lgkmcnt(0)")
    if PROF:
        a(f"s_cmp_ge_u32 s{WV}, 8")
        a("s_cbranch_scc1 p0_b1_bgst")
        pfA.stamp(9)
        a("s_branch p0_b1_go")
        a.label("p0_b1_bgst")
        BgProf(a).stamp(4)
        a.label("p0_b1_go")
    a("s_barrier")
    a(f"s_cmp_ge_u32 s{WV}, 8")
    a("s_cbranch_scc1 p1_bg")
    a(f"s_cmp_lt_u32 s{WV}, 4")
    a("s_cbranch_scc1 p1_noarr")
    a("s_cmp_eq_u32 s16, 0")
    a("s_cbranch_scc1 p1_noarr")
    a(f"v_mov_b32 v14, {L_CNT}")
    a("v_mov_b32 v15, 1")
    a("s_waitcnt vmcnt(0)")
    pfA.stamp(11)
    a("s_mov_b64 exec, 1")
    a(f"s_or_b32 s3, s{RB}, s{J2}")
    a(f"s_cmp_eq_u32 s{WV}, 4")
    a("s_cselect_b32 s3, s3, 1")
    a("s_cmp_eq_u32 s3, 0")
    a("s_cbranch_scc0 p1_nok0")
    srd(a, 48, S_DBG, 256)
    a("v_mov_b32 v12, 1")
    a(f"v_mov_b32 v13, {D_K0}")
    a(f"buffer_store_dword v12, v13, s[48:51], 0 offen{SC1}")
    a.label("p1_nok0")
    a(f"ds_add_rtn_u32 v15, v14, v15 offset:{C_KVA}")
    a("s_waitcnt lgkmcnt(0)")
    a("v_readfirstlane_b32 s3, v15")
    a("s_cmp_eq_u32 s3, 1")
    a("s_cbranch_scc0 p1_arrdone")
    srd(a, 48, S_DBG, 256)
    a("v_mov_b32 v14, 1")
    a(f"s_cmp_eq_u32 s{J2}, 2")
    a(f"s_cselect_b32 s3, {D_GCNT}, {D_CNT}")
    a("v_mov_b32 v15, s3")
    a("buffer_atomic_add v14, v15, s[48:51], 0 offen sc0 sc1")
    if "kvfirst" in X:
        a(f"v_mov_b32 v12, {L_CNT}")
        a("v_mov_b32 v13, 1")
        a(f"ds_add_u32 v12, v13 offset:{C_KVI}")
    a("s_waitcnt vmcnt(0)")
    a("v_readfirstlane_b32 s3, v14")
    a(f"s_cmp_eq_u32 s{J2}, 2")
    a("s_cselect_b32 s46, 31, 63")
    a(f"s_mov_b32 s47, {D_GO}")
    a(f"s_cselect_b32 s47, {D_GOG}, s47")
    a("s_cmp_eq_u32 s3, s46")
    a("s_cbranch_scc0 p1_arrdone")
    a("v_mov_b32 v14, 1")
    a("v_mov_b32 v15, s47")
    a(f"buffer_store_dword v14, v15, s[48:51], 0 offen{SC1}")
    a.label("p1_arrdone")
    a("s_mov_b64 exec, -1")
    pfA.stamp(12)
    a.label("p1_noarr")
    if PROF: a("v_mov_b32 v0, v167")
    pf = Prof(a, 0)
    pf.stamp(4)
    gen_attention(a, pf)
    pf.flush(2)
    a(f"s_branch {END}")
    a.label("p1_bg")
    a(f"s_setprio {os.environ.get('BP', '3')}")
    gen_background(a, BgProf(a))
    a.label(END)
    a("s_endpgm")
    return name

class BgProf:
    def __init__(self, a): self.a = a; self.T = [54, 55]
    def stamp(self, slot):
        if not PROF or "noprofb" in X: return
        if "onlyb" in os.environ and str(slot) not in os.environ["onlyb"].split(","): return
        a = self.a
        a("s_memrealtime s[60:61]")
        a("s_lshl_b32 s62, s2, 4")
        a(f"s_add_u32 s62, s62, s{WV}")
        a("s_lshl_b32 s62, s62, 8")
        a(f"s_add_u32 s62, s62, {WS_PROF + 4*slot}")
        a("s_waitcnt vmcnt(0) lgkmcnt(0)")
        a("s_mov_b64 exec, 1")
        t0, t1 = self.T
        a(f"v_mov_b32 v{t0}, s60")
        a(f"v_mov_b32 v{t1}, 0")
        a(f"buffer_store_dword v{t0}, v{t1}, s[{WSR}:{WSR+3}], s62 offen")
        a("s_mov_b64 exec, -1")
        a("s_waitcnt vmcnt(0)")
    def flush(self): pass

def build():
    a = Asm()
    name = gen_fused(a)
    text = a.text()
    probs = check_hazards(text)
    ref = open("gated_mix__grouped_kv_mqa__ssm_conv_s5__prompt.s.ref").read().split("\n")
    pre = []
    for ln in ref:
        if not ln.startswith(";"): break
        if "Override launch" in ln or "grid=ceil" in ln or "@launch" in ln: continue
        pre.append(ln)
    head = "\n".join(pre) + "\n"
    head += f"; @launch grid=(256,1,1) block=(768,1,1) lds={LDS_TOTAL}\n"
    out = head + '.amdgcn_target "amdgcn-amd-amdhsa--gfx950"\n.text\n' + text
    out += f""".section .rodata,"a"
.p2align 6
.amdhsa_kernel {name}
  .amdhsa_next_free_vgpr 168
  .amdhsa_next_free_sgpr 102
  .amdhsa_accum_offset 168
  .amdhsa_group_segment_fixed_size 0
  .amdhsa_kernarg_size 144
  .amdhsa_user_sgpr_count 2
  .amdhsa_user_sgpr_kernarg_segment_ptr 1
  .amdhsa_system_sgpr_workgroup_id_x 1
.end_amdhsa_kernel
"""
    return out, probs

if __name__ == "__main__":
    out, probs = build()
    open(sys.argv[1], "w").write(out)
    print("wrote", sys.argv[1], "hazards:", len(probs))
```

```python
import sys, os, struct, math
from asmlib import Asm, v, s, check_hazards

NAME = "gated_mix__grouped_kv_mqa__ssm_conv_s5__prompt"
X = set(os.environ.get('XF', '').split(','))
PROF = "prof" in X
def f2u(x): return struct.unpack("<I", struct.pack("<f", x))[0]
QSCALE = f2u(math.log2(math.e) / math.sqrt(28.0))
LOG2E = f2u(math.log2(math.e))
INV2PI = f2u(1.0 / (2.0 * math.pi))
MF = "v_mfma_f32_32x32x16_bf16"
SC1 = " sc1"
POLLSLEEP = int(os.environ.get('PS', '1'))

WS_KV = 0x000000
WS_G  = 0x040000
WS_FL = 0x042000
FL_H  = WS_FL
FL_O  = WS_FL + 0x1000
WS_E  = 0x048000
D_CNT, D_GCNT, D_GO, D_BAD, D_K0, D_NONCE, D_GOG = 0, 64, 128, 132, 136, 140, 144
WS_OF = 0x080000
WS_HF = 0x280000
WS_PROF = 0x800000
WS_SIZE = 0x1000000
XBYTES = 2048 * 448 * 2
WBYTES = 448 * 448 * 2
WKBYTES = 448 * 28 * 2
OUTBYTES = 2048 * 448 * 4

S_X, S_WQ, S_WK, S_WV, S_WO = 64, 66, 68, 70, 72
S_LRE, S_LIM = 76, 78
S_BRE, S_BIM, S_CRE, S_CIM, S_LDT, S_DSK, S_GW, S_OUT = 80, 82, 84, 86, 88, 90, 92, 94
S_DBG, S_WS = 96, 98
RB, J2, WV, BW = 20, 21, 22, 23
WSR = 24
TR = 28
NONCE = 19
SPIN = 18

L_X = 0; L_WQ = 57344; L_WKV = 114688; L_GW = 143360
L_QX = 147456
L_CNT = 163584
C_ATT, C_BG, C_NONCE, C_BAD, C_UDONE, C_HCNT, C_OCNT, C_XR, C_KVR, C_KVA, C_TRD, C_LEND, C_BL, C_KVI, C_YD, C_WOL = 0, 4, 8, 12, 16, 20, 24, 28, 32, 40, 44, 48, 52, 56, 60, 80
B_EX = 159744; B_HT = 90112
B_HT2 = 69632
L_C = 0
L_RED = 0
L_WO = 0
A_OP = 90112; A_LP = 155648
LDS_TOTAL = 163840

def srd(a, dst, src, nbytes):
    a(f"s_mov_b32 s{dst}, s{src}")
    a(f"s_mov_b32 s{dst+1}, s{src+1}")
    a(f"s_mov_b32 s{dst+2}, {hex(nbytes)}")
    a(f"s_mov_b32 s{dst+3}, 0x00020000")

class Prof:
    def __init__(self, a, vreg): self.a = a; self.v = vreg
    def stamp(self, slot):
        if not PROF or "noprofa" in X: return
        a = self.a
        a("s_memrealtime s[60:61]")
        a("s_memtime s[62:63]")
        a("s_waitcnt lgkmcnt(0)")
        a(f"v_writelane_b32 v{self.v}, s60, {slot}")
        a(f"v_writelane_b32 v{self.v}, s62, {slot+32}")
    def flush(self, vt):
        if not PROF: return
        a = self.a
        a("s_lshl_b32 s60, s2, 4")
        a(f"s_add_u32 s60, s60, s{WV}")
        a("s_lshl_b32 s60, s60, 8")
        a(f"s_add_u32 s60, s60, {WS_PROF}")
        a("s_mov_b64 exec, -1")
        a(f"v_mbcnt_lo_u32_b32 v{vt}, -1, 0")
        a(f"v_mbcnt_hi_u32_b32 v{vt}, -1, v{vt}")
        a(f"v_lshlrev_b32 v{vt}, 2, v{vt}")
        a(f"buffer_store_dword v{self.v}, v{vt}, s[{WSR}:{WSR+3}], s60 offen")
        a("s_waitcnt vmcnt(0)")

def xtile_lane_off(a, vd, vlane, vt0, vt1):
    a(f"v_lshrrev_b32 v{vt0}, 4, v{vlane}")
    a(f"v_and_b32 v{vt1}, 1, v{vt0}")
    a(f"v_lshlrev_b32 v{vt1}, 4, v{vt1}")
    a(f"v_lshrrev_b32 v{vd}, 5, v{vlane}")
    a(f"v_lshl_add_u32 v{vt1}, v{vd}, 2, v{vt1}")
    a(f"v_bfe_u32 v{vd}, v{vlane}, 2, 2")
    a(f"v_add_u32 v{vt1}, v{vt1}, v{vd}")
    a(f"v_mul_u32_u24 v{vt1}, 896, v{vt1}")
    a(f"v_and_b32 v{vd}, 3, v{vlane}")
    a(f"v_xor_b32 v{vd}, v{vd}, v{vt0}")
    a(f"v_lshl_add_u32 v{vd}, v{vd}, 4, v{vt1}")

def plain_lane_off(a, vd, vlane, vt0):
    a(f"v_lshrrev_b32 v{vt0}, 4, v{vlane}")
    a(f"v_and_b32 v{vd}, 3, v{vlane}")
    a(f"v_xor_b32 v{vd}, v{vd}, v{vt0}")
    a(f"v_lshlrev_b32 v{vd}, 4, v{vd}")
    a(f"v_lshrrev_b32 v{vt0}, 2, v{vlane}")
    a(f"v_mul_u32_u24 v{vt0}, 896, v{vt0}")
    a(f"v_add_u32 v{vd}, v{vd}, v{vt0}")

def xfrag_addr(a, vd, vlane, vt0):
    a(f"v_bfe_u32 v{vt0}, v{vlane}, 2, 2")
    a(f"v_lshrrev_b32 v{vd}, 5, v{vlane}")
    a(f"v_xor_b32 v{vt0}, v{vt0}, v{vd}")
    a(f"v_lshlrev_b32 v{vt0}, 4, v{vt0}")
    a(f"v_and_b32 v{vd}, 31, v{vlane}")
    a(f"v_lshl_add_u32 v{vd}, v{vd}, 6, v{vt0}")

def tr_rowcol(a, vrow, vcol, vlane, vt):
    a(f"v_lshrrev_b32 v{vrow}, 5, v{vlane}")
    a(f"v_lshlrev_b32 v{vrow}, 3, v{vrow}")
    a(f"v_bfe_u32 v{vt}, v{vlane}, 2, 2")
    a(f"v_add_u32 v{vrow}, v{vrow}, v{vt}")
    a(f"v_and_b32 v{vcol}, 16, v{vlane}")
    a(f"v_and_b32 v{vt}, 3, v{vlane}")
    a(f"v_lshl_add_u32 v{vcol}, v{vt}, 2, v{vcol}")

def proj_loop(a, swap, acc, xe, xo, we, wo_, vxe, vxo, vw1, vw2, s_wstep, s_cnt, lab):
    def rd(xr, wr, vx):
        a(f"ds_read_b128 {v(xr,4)}, v{vx}")
        a(f"ds_read_b64_tr_b16 {v(wr,2)}, v{vw1}")
        a(f"ds_read_b64_tr_b16 {v(wr+2,2)}, v{vw2}")
        a(f"v_add_u32 v{vx}, 0x1000, v{vx}")
        a(f"v_add_u32 v{vw1}, s{s_wstep}, v{vw1}")
        a(f"v_add_u32 v{vw2}, s{s_wstep}, v{vw2}")
    def mf(x, w):
        A, B = (x, w) if swap else (w, x)
        a(f"{MF} {v(acc,16)}, {v(A,4)}, {v(B,4)}, {v(acc,16)}")
    rd(xe, we, vxe); rd(xo, wo_, vxo)
    a(f"s_mov_b32 s{s_cnt}, 14")
    a.label(lab)
    a("s_waitcnt lgkmcnt(3)")
    mf(xe, we)
    rd(xe, we, vxe)
    a("s_waitcnt lgkmcnt(3)")
    mf(xo, wo_)
    rd(xo, wo_, vxo)
    a(f"s_sub_u32 s{s_cnt}, s{s_cnt}, 1")
    a(f"s_cmp_lg_u32 s{s_cnt}, 0")
    a(f"s_cbranch_scc1 {lab}")
    a("s_waitcnt lgkmcnt(0)")

def sw_barrier(a, coff, s_tgt, n, vaddr, vtmp, lab):
    a(f"s_add_u32 s{s_tgt}, s{s_tgt}, {n}")
    a(f"v_mov_b32 v{vtmp}, 1")
    a("s_waitcnt lgkmcnt(0)")
    a("s_mov_b64 exec, 1")
    a(f"ds_add_u32 v{vaddr}, v{vtmp} offset:{coff}")
    a("s_mov_b64 exec, -1")
    a.label(lab)
    a(f"ds_read_b32 v{vtmp}, v{vaddr} offset:{coff}")
    a("s_waitcnt lgkmcnt(0)")
    a(f"v_readfirstlane_b32 s3, v{vtmp}")
    a(f"s_cmp_ge_u32 s3, s{s_tgt}")
    a(f"s_cbranch_scc1 {lab}_ok")
    a("s_sleep 1")
    a(f"s_sub_u32 s{SPIN}, s{SPIN}, 1")
    a(f"s_cbranch_scc0 {lab}")
    a(f"s_mov_b32 s{SPIN}, 0")
    a.label(lab + "_ok")

def flag_store(a, soff_reg, vt0, vt1, val=None):
    a("s_mov_b64 exec, 1")
    a(f"v_mov_b32 v{vt0}, s{val if val is not None else NONCE}")
    a(f"v_mov_b32 v{vt1}, 0")
    a(f"buffer_store_dword v{vt0}, v{vt1}, s[{WSR}:{WSR+3}], s{soff_reg} offen{SC1}")
    a("s_mov_b64 exec, -1")

def arrive_flag(a, coff, n, soff_reg, vt0, vt1, lab):
    a(f"v_mov_b32 v{vt0}, {L_CNT}")
    a(f"v_mov_b32 v{vt1}, 1")
    a("s_waitcnt vmcnt(0)")
    a("s_mov_b64 exec, 1")
    a(f"ds_add_rtn_u32 v{vt1}, v{vt0}, v{vt1} offset:{coff}")
    a("s_waitcnt lgkmcnt(0)")
    a(f"v_readfirstlane_b32 s60, v{vt1}")
    a("s_mov_b64 exec, -1")
    a(f"s_cmp_eq_u32 s60, {n-1}")
    a(f"s_cbranch_scc0 {lab}")
    flag_store(a, soff_reg, vt0, vt1)
    a.label(lab)

def poll(a, lab, vdst, voff, soff_reg, mask_pair, sleep=None):
    sleep = POLLSLEEP if sleep is None else sleep
    a.label(lab)
    a(f"buffer_load_dword v{vdst}, v{voff}, s[{WSR}:{WSR+3}], s{soff_reg} offen{SC1}")
    a("s_waitcnt vmcnt(0)")
    a(f"v_cmp_ne_u32 vcc, s{NONCE}, v{vdst}")
    a(f"s_and_b64 vcc, vcc, s[{mask_pair}:{mask_pair+1}]")
    a(f"s_cbranch_vccz {lab}_ok")
    a(f"s_sleep {sleep}")
    a(f"s_sub_u32 s{SPIN}, s{SPIN}, 1")
    a(f"s_cbranch_scc0 {lab}")
    a(f"s_mov_b32 s{SPIN}, 0")
    a.label(lab + "_ok")

def cfma(a, hr, hi, lr, li, ur, ui, tr, ti):
    a(f"v_fma_f32 v{tr}, -v{li}, v{hi}, v{ur}")
    a(f"v_fma_f32 v{ti}, v{li}, v{hr}, v{ui}")
    a(f"v_fma_f32 v{hr}, v{lr}, v{hr}, v{tr}")
    a(f"v_fma_f32 v{hi}, v{lr}, v{hi}, v{ti}")

L_JUNK = 161792
def touch_matrix(a, sptr, vdst, vt, sr=48):
    srd(a, sr, sptr, WBYTES)
    a("s_lshr_b32 s3, s2, 3")
    a(f"s_mul_i32 s3, s3, {98*128}")
    a(f"v_lshlrev_b32 v{vt}, 7, v0")
    a(f"s_mov_b32 m0, {L_JUNK}")
    a("s_nop 0")
    a(f"buffer_load_dword v{vt}, s[{sr}:{sr+3}], s3 offen lds")
    a("s_add_u32 s3, s3, 8192")
    a("s_mov_b32 exec_hi, 3")
    a(f"buffer_load_dword v{vt}, s[{sr}:{sr+3}], s3 offen lds")
    a("s_mov_b64 exec, -1")

AQ, AO, AS, AK, AV, APB = 8, 40, [104, 120], [136, 144], [152, 160], 4

def att_unit(a, u, side):
    up = u - 1; un = u + 1
    cur = AS[u & 1]; prv = AS[(u + 1) & 1]
    Vp = AV[(up >> 2) & 1]; Op = AO + 16 * (up & 3)
    Kn = AK[(un >> 2) & 1]; Qn = AQ + 8 * (un & 3)
    side = list(side)
    def E(lo, hi):
        for j in range(lo, hi):
            a(f"v_exp_f32 v{cur+j}, v{cur+j}")
            if side:
                x = side.pop(0)
                if x: a(x)
    while side and isinstance(side[0], tuple):
        a(side.pop(0)[1])
    a(f"{MF} {v(Op,16)}, {v(Vp,4)}, {v(prv,4)}, {v(Op,16)}")
    E(0, 4)
    a(f"v_cvt_pk_bf16_f32 v{APB+2}, v{prv+12}, v{prv+13}")
    a(f"v_cvt_pk_bf16_f32 v{APB+3}, v{prv+14}, v{prv+15}")
    a(f"{MF} {v(prv,16)}, {v(Kn,4)}, {v(Qn,4)}, 0")
    E(4, 8)
    a(f"v_cvt_pk_bf16_f32 v{cur}, v{cur}, v{cur+1}")
    a(f"v_cvt_pk_bf16_f32 v{cur+1}, v{cur+2}, v{cur+3}")
    a(f"{MF} {v(prv,16)}, {v(Kn+4,4)}, {v(Qn+4,4)}, {v(prv,16)}")
    E(8, 12)
    a(f"v_cvt_pk_bf16_f32 v{cur+2}, v{cur+4}, v{cur+5}")
    a(f"v_cvt_pk_bf16_f32 v{cur+3}, v{cur+6}, v{cur+7}")
    a(f"{MF} {v(Op,16)}, {v(Vp+4,4)}, {v(APB,4)}, {v(Op,16)}")
    E(12, 16)
    a(f"v_cvt_pk_bf16_f32 v{APB}, v{cur+8}, v{cur+9}")
    a(f"v_cvt_pk_bf16_f32 v{APB+1}, v{cur+10}, v{cur+11}")
    assert not side, side

L_SEL = 162560
L_SH = 162048
LMAX = f2u(2.0 ** 90) if "forcefb" not in X else f2u(2.0 ** -20)
VMAX = f2u(2.0 ** 20)

def gen_attention(a, pf):
    P = "att"
    KR = TR
    a(f"v_add_u32 v2, {L_QX}, v1")
    for g in range(4):
        a(f"ds_read_b128 {v(AQ+8*g,4)}, v2 offset:{g*2048}")
        a(f"ds_read_b128 {v(AQ+8*g+4,4)}, v2 offset:{g*2048+1024}")
    a(f"s_add_u32 s{KR}, s{WSR}, {WS_KV}")
    a(f"s_addc_u32 s{KR+1}, s{WSR+1}, 0")
    a(f"s_mov_b32 s{KR+3}, 0x00020000")
    a("s_mov_b32 s44, 0")
    a("s_mov_b32 s51, 0")
    a(f"s_cmp_lt_u32 s{WV}, 4")
    a("s_cselect_b32 s53, 1, -1")
    a(f"s_cmp_eq_u32 s{WV}, 7")
    a(f"s_cbranch_scc0 {P}_nosel")
    a("v_lshrrev_b32 v104, 4, v1")
    a("v_and_b32 v105, 31, v104")
    a("v_lshrrev_b32 v104, 5, v104")
    a("v_lshlrev_b32 v104, 2, v104")
    a("v_sub_u32 v105, v105, v104")
    for j in range(4):
        d0 = (2 * j & 3) + 8 * ((2 * j) >> 2)
        a(f"v_cmp_eq_u32 vcc, {d0}, v105")
        a(f"v_mov_b32 v106, 0x3f80")
        a("s_nop 0")
        a(f"v_cndmask_b32 v{108+j}, 0, v106, vcc")
        a(f"v_cmp_eq_u32 vcc, {d0+1}, v105")
        a(f"v_mov_b32 v106, 0x3f800000")
        a("s_nop 0")
        a(f"v_cndmask_b32 v107, 0, v106, vcc")
        a(f"v_or_b32 v{108+j}, v{108+j}, v107")
    a(f"v_add_u32 v104, {L_SEL}, v1")
    a("ds_write_b128 v104, v[108:111]")
    a.label(P + "_nosel")
    srd(a, 56, S_DBG, 256)
    def phaseA():
        a(f"s_cmp_eq_u32 s{WV}, 0")
        a(f"s_cbranch_scc0 {P}_nopollA")
        a(f"v_mov_b32 v2, {D_K0}")
        a.label(P + "_pollA")
        a(f"buffer_load_dword v104, v2, s[56:59], 0 offen{SC1}")
        a("s_waitcnt vmcnt(0)")
        a("v_readfirstlane_b32 s3, v104")
        a("s_cmp_lg_u32 s3, 0")
        a(f"s_cbranch_scc1 {P}_nopollA")
        a(f"s_sleep {POLLSLEEP}")
        a(f"s_sub_u32 s{SPIN}, s{SPIN}, 1")
        a(f"s_cbranch_scc0 {P}_pollA")
        a(f"s_mov_b32 s{SPIN}, 0")
        a.label(P + "_nopollA")
        a(f"v_mov_b32 v3, {L_CNT}")
        sw_barrier(a, C_ATT, 44, 8, 3, 2, P + "_ba")
    def shiftblk():
        a(f"s_mov_b32 s{KR+2}, 0x40000")
        a(f"s_cmp_ge_u32 s{WV}, 4")
        a(f"s_cbranch_scc1 {P}_shhi" if "gomerge" in X else f"s_cbranch_scc1 {P}_shwait")
        a(f"buffer_load_dwordx4 {v(AS[1],4)}, v1, s[{KR}:{KR+3}], 0 offen{SC1}")
        a(f"buffer_load_dwordx4 {v(AS[1]+4,4)}, v1, s[{KR}:{KR+3}], 0 offen offset:1024{SC1}")
        a(f"s_lshl_b32 s3, s{WV}, 11")
        a(f"s_add_u32 s3, s3, {L_QX}")
        a("v_add_u32 v2, s3, v1")
        a(f"ds_read_b128 {v(AO,4)}, v2")
        a(f"ds_read_b128 {v(AO+4,4)}, v2 offset:1024")
        a("s_waitcnt vmcnt(0) lgkmcnt(0)")
        o = AO + 16
        a(f"{MF} {v(o,16)}, {v(AS[1],4)}, {v(AO,4)}, 0")
        a(f"{MF} {v(o,16)}, {v(AS[1]+4,4)}, {v(AO+4,4)}, {v(o,16)}")
        a(f"s_lshl_b32 s3, s{WV}, 7")
        a(f"s_add_u32 s3, s3, {L_SH}")
        a("v_lshrrev_b32 v3, 2, v1")
        a("v_and_b32 v3, 127, v3")
        a("v_add_u32 v3, s3, v3")
        a("s_nop 7")
        a(f"v_max3_f32 v2, v{o}, v{o+1}, v{o+2}")
        for j in range(3, 15, 2):
            a(f"v_max3_f32 v2, v2, v{o+j}, v{o+j+1}")
        a(f"v_max_f32 v2, v2, v{o+15}")
        a(f"v_mov_b32 v{AO}, v2")
        a("s_nop 1")
        a(f"v_permlane32_swap_b32 v2, v{AO}")
        a(f"v_max_f32 v2, v2, v{AO}")
        a("v_cvt_pk_bf16_f32 v2, -v2, 0")
        a("s_mov_b32 exec_hi, 0")
        a("ds_write_b32 v3, v2")
        a("s_mov_b64 exec, -1")
        if "gomerge" in X:
            a(f"s_branch {P}_shwait")
            a.label(P + "_shhi")
            a(f"s_cmp_eq_u32 s{WV}, 7")
            a(f"s_cbranch_scc0 {P}_shwait")
            a(f"v_mov_b32 v2, {D_GO}")
            a.label(P + "_pollm")
            a(f"buffer_load_dwordx2 v[104:105], v2, s[56:59], 0 offen{SC1}")
            a("s_waitcnt vmcnt(0)")
            a("v_readfirstlane_b32 s3, v104")
            a("s_cmp_lg_u32 s3, 0")
            a(f"s_cbranch_scc1 {P}_pollmok")
            a(f"s_sleep {POLLSLEEP}")
            a(f"s_sub_u32 s{SPIN}, s{SPIN}, 1")
            a(f"s_cbranch_scc0 {P}_pollm")
            a(f"s_mov_b32 s{SPIN}, 0")
            a.label(P + "_pollmok")
            a(f"v_mov_b32 v3, {L_CNT}")
            a("s_mov_b64 exec, 1")
            a(f"ds_add_u32 v3, v105 offset:{C_BAD}")
            a("s_mov_b64 exec, -1")
        a.label(P + "_shwait")
        a(f"v_mov_b32 v3, {L_CNT}")
        sw_barrier(a, C_ATT, 44, 8, 3, 2, P + "_bs")
        a("v_lshrrev_b32 v3, 2, v1")
        a("v_and_b32 v3, 127, v3")
        a(f"v_add_u32 v3, {L_SH}, v3")
        for g in range(4): a(f"ds_read_b32 v{AO+g}, v3 offset:{g*128}")
        a("s_waitcnt lgkmcnt(0)")
        a("s_mov_b32 exec_lo, 0")
        for g in range(4): a(f"v_mov_b32 v{AQ+8*g+6}, v{AO+g}")
        a("s_mov_b32 exec_lo, -1")
    def phaseB():
        a(f"s_cmp_eq_u32 s{WV}, 0")
        a(f"s_cbranch_scc0 {P}_nopoll")
        a(f"v_mov_b32 v2, {D_GO}")
        a.label(P + "_poll")
        a(f"buffer_load_dwordx2 v[104:105], v2, s[56:59], 0 offen{SC1}")
        a("s_waitcnt vmcnt(0)")
        a("v_readfirstlane_b32 s3, v104")
        a("s_cmp_lg_u32 s3, 0")
        a(f"s_cbranch_scc1 {P}_pollok")
        a(f"s_sleep {POLLSLEEP}")
        a(f"s_sub_u32 s{SPIN}, s{SPIN}, 1")
        a(f"s_cbranch_scc0 {P}_poll")
        a(f"s_mov_b32 s{SPIN}, 0")
        a.label(P + "_pollok")
        a(f"v_mov_b32 v3, {L_CNT}")
        a("s_mov_b64 exec, 1")
        a(f"ds_add_u32 v3, v105 offset:{C_BAD}")
        a("s_mov_b64 exec, -1")
        a.label(P + "_nopoll")
        a(f"v_mov_b32 v3, {L_CNT}")
        sw_barrier(a, C_ATT, 44, 8, 3, 2, P + "_b0")
        pf.stamp(5)
        a("s_lshr_b32 s52, s2, 3")
        a("s_lshl_b32 s52, s52, 3")
        a(f"s_add_u32 s52, s52, s{WV}")
        a("s_lshl_b32 s52, s52, 10")
    def mainloads():
        a.label(P + "_restart")
        a(f"s_mov_b32 s{KR+2}, 0x40000")
        a(f"s_lshl_b32 s43, s{WV}, 15")
        a(f"buffer_load_dwordx4 {v(AK[0],4)}, v1, s[{KR}:{KR+3}], s43 offen{SC1}")
        a(f"buffer_load_dwordx4 {v(AK[0]+4,4)}, v1, s[{KR}:{KR+3}], s43 offen offset:1024{SC1}")
        a(f"buffer_load_dwordx4 {v(AV[0],4)}, v1, s[{KR}:{KR+3}], s43 offen offset:2048{SC1}")
        a(f"buffer_load_dwordx4 {v(AV[0]+4,4)}, v1, s[{KR}:{KR+3}], s43 offen offset:3072{SC1}")
        a("s_add_u32 s43, s43, 4096")
        a(f"buffer_load_dwordx4 {v(AK[1],4)}, v1, s[{KR}:{KR+3}], s43 offen{SC1}")
        a(f"buffer_load_dwordx4 {v(AK[1]+4,4)}, v1, s[{KR}:{KR+3}], s43 offen offset:1024{SC1}")
        a(f"s_lshl_b32 s3, s{WV}, 9")
        a(f"s_mov_b32 m0, {L_JUNK}")
        a("v_lshlrev_b32 v2, 3, v1")
        a("s_mov_b64 exec, 0xff")
        a(f"buffer_load_dword v2, s[{KR}:{KR+3}], s52 offen{SC1} lds")
        a("s_mov_b64 exec, -1")
        for j in range(4): a(f"v_mov_b32 v{APB+j}, 0")
        for j in range(8): a(f"v_mov_b32 v{AV[1]+j}, 0")
    if "lateshift" in X:
        phaseB(); mainloads()
        a("s_cmp_lg_u32 s51, 0")
        a(f"s_cbranch_scc1 {P}_haveshift")
        shiftblk()
    elif "gomerge" in X:
        phaseA(); shiftblk()
        pf.stamp(5)
        a("s_lshr_b32 s52, s2, 3")
        a("s_lshl_b32 s52, s52, 3")
        a(f"s_add_u32 s52, s52, s{WV}")
        a("s_lshl_b32 s52, s52, 10")
        mainloads()
    else:
        phaseA(); shiftblk(); phaseB(); mainloads()
    a.label(P + "_haveshift")
    for j in (0, 1, 2, 3, 12, 13, 14, 15): a(f"v_mov_b32 v{AS[1]+j}, 0")
    a(f"s_and_b32 s3, s{WV}, 3")
    a("s_lshl_b32 s3, s3, 2")
    a(f"s_add_u32 s3, s3, {L_CNT + 64}")
    a("v_mov_b32 v2, s3")
    for g in range(4):
        a(f"{MF} {v(AO+16*g,16)}, {v(AV[1],4)}, {v(APB,4)}, 0")
    a("s_waitcnt vmcnt(5)")
    a(f"{MF} {v(AS[0],16)}, {v(AK[0],4)}, {v(AQ,4)}, 0")
    a(f"{MF} {v(AS[0],16)}, {v(AK[0]+4,4)}, {v(AQ+4,4)}, {v(AS[0],16)}")
    a("s_mov_b32 s48, 0")
    a("s_setprio 2")
    a("s_nop 7")
    a("s_nop 1")
    pf.stamp(6)
    a(".p2align 3")
    a.label(P + "_loop")
    for u in range(8):
        g = u & 3; par = (u >> 2) & 1
        side = []
        if g == 1:
            side.append(("q0", "s_waitcnt vmcnt(2)"))
            side.append(f"buffer_load_dwordx4 {v(AV[par^1],4)}, v1, s[{KR}:{KR+3}], s43 offen offset:2048{SC1}")
            side.append(f"buffer_load_dwordx4 {v(AV[par^1]+4,4)}, v1, s[{KR}:{KR+3}], s43 offen offset:3072{SC1}")
            side.append("s_add_u32 s43, s43, 4096")
            if par == 0:
                side.append("s_cmp_eq_u32 s48, 3")
                side.append(f"s_cselect_b32 s{KR+2}, 0, s{KR+2}")
        if g == 3:
            side += [None, None, None, "s_waitcnt vmcnt(2)"]
            side.append(f"buffer_load_dwordx4 {v(AK[par],4)}, v1, s[{KR}:{KR+3}], s43 offen{SC1}")
            side.append(f"buffer_load_dwordx4 {v(AK[par]+4,4)}, v1, s[{KR}:{KR+3}], s43 offen offset:1024{SC1}")
            if par == 1:
                side += ["s_add_u32 s48, s48, 1", None, None, None, None, None, None, None, None, "s_cmp_lt_u32 s48, 4"]
        if g == 0 and "nofair" not in X:
            side += ["v_mov_b32 v3, s53", None, "s_mov_b64 exec, 1\nds_add_rtn_u32 v3, v2, v3\ns_mov_b64 exec, -1"]
        if g == 2 and "nofair" not in X:
            lab = f"{P}_fp{u}"
            side += ["s_waitcnt lgkmcnt(0)", "v_readfirstlane_b32 s54, v3", None, "s_mul_i32 s54, s54, s53", "s_cmp_gt_i32 s54, 0",
                     f"s_cbranch_scc1 {lab}a\ns_setprio 2\ns_branch {lab}b\n{lab}a:\ns_setprio 1\n{lab}b:"]
        att_unit(a, u, side)
    a(f"s_cbranch_scc1 {P}_loop")
    prv = AS[1]
    a(f"{MF} {v(AO+48,16)}, {v(AV[1],4)}, {v(prv,4)}, {v(AO+48,16)}")
    a(f"v_cvt_pk_bf16_f32 v{APB+2}, v{prv+12}, v{prv+13}")
    a(f"v_cvt_pk_bf16_f32 v{APB+3}, v{prv+14}, v{prv+15}")
    a("s_nop 1")
    a(f"{MF} {v(AO+48,16)}, {v(AV[1]+4,4)}, {v(APB,4)}, {v(AO+48,16)}")
    pf.stamp(7)
    a("s_setprio 3")
    a("s_cmp_lg_u32 s51, 0")
    a(f"s_cbranch_scc1 {P}_nolend")
    lds_arrive(a, C_LEND, 2, 3)
    a.label(P + "_nolend")
    a(f"v_mov_b32 v3, {L_CNT}")
    a.label(P + "_udone")
    a(f"ds_read2_b32 v[104:105], v3 offset0:{C_NONCE//4} offset1:{C_HCNT//4}")
    a("s_waitcnt lgkmcnt(0)")
    a("v_readfirstlane_b32 s3, v105")
    a(f"v_readfirstlane_b32 s{NONCE}, v104")
    a("s_cmp_ge_u32 s3, 4")
    a(f"s_cbranch_scc1 {P}_udone_ok")
    a(f"s_sub_u32 s{SPIN}, s{SPIN}, 1")
    a(f"s_cbranch_scc0 {P}_udone")
    a(f"s_mov_b32 s{SPIN}, 0")
    a.label(P + "_udone_ok")
    a(f"s_lshl_b32 s3, s{WV}, 13")
    a(f"s_add_u32 s3, s3, {A_OP}")
    a(f"v_add_u32 v2, s3, v1")
    a(f"s_lshl_b32 s3, s{WV}, 9")
    a(f"s_add_u32 s3, s3, {A_LP}")
    a("v_lshrrev_b32 v3, 2, v1")
    a("v_and_b32 v4, 127, v3")
    a("v_add_u32 v4, s3, v4")
    a(f"s_mov_b32 s46, {hex(LMAX)}")
    a("s_mov_b64 s[56:57], 0")
    for g in range(4):
        o = AO + 16 * g
        if g == 3: a("s_nop 3")
        a("s_mov_b32 exec_lo, 0")
        a(f"ds_write_b32 v4, v{o+12} offset:{g*128}")
        a(f"v_cmp_nge_f32 vcc, s46, v{o+12}")
        a("s_mov_b32 exec_lo, -1")
        a("s_or_b64 s[56:57], s[56:57], vcc")
        for j in range(8):
            a(f"v_cvt_pk_bf16_f32 v{AS[0]+8*g+j}, v{o+2*j}, v{o+2*j+1}")
        a(f"ds_write_b128 v2, {v(AS[0]+8*g,4)} offset:{g*2048}")
        a(f"ds_write_b128 v2, {v(AS[0]+8*g+4,4)} offset:{g*2048+1024}")
    a(f"v_mov_b32 v3, {L_CNT}")
    a("s_cmp_eq_u64 s[56:57], 0")
    a(f"s_cbranch_scc1 {P}_safe")
    a("v_mov_b32 v2, 1")
    a("s_mov_b64 exec, 1")
    a(f"ds_add_u32 v3, v2 offset:{C_BAD}")
    a("s_mov_b64 exec, -1")
    a.label(P + "_safe")
    pf.stamp(17)
    sw_barrier(a, C_ATT, 44, 8, 3, 2, P + "_b1")
    pf.stamp(18)
    a(f"ds_read_b32 v2, v3 offset:{C_BAD}")
    a(f"s_lshl_b32 s3, s{WV}, 10")
    a(f"s_add_u32 s3, s3, {A_OP}")
    a("v_add_u32 v4, s3, v1")
    for w in range(8):
        a(f"ds_read_b128 {v(AO+4*w,4)}, v4 offset:{w*8192}")
    a(f"s_lshr_b32 s45, s{WV}, 1")
    a("s_lshl_b32 s3, s45, 7")
    a(f"s_add_u32 s3, s3, {A_LP}")
    a("v_lshrrev_b32 v3, 2, v1")
    a("v_and_b32 v3, 127, v3")
    a("v_add_u32 v3, s3, v3")
    a("s_waitcnt lgkmcnt(8)")
    a("v_readfirstlane_b32 s3, v2")
    a("s_cmp_lg_u32 s3, 0")
    a("s_cselect_b32 s3, 1, 0")
    a("s_andn2_b32 s3, s3, s51")
    a(f"s_cbranch_scc1 {P}_fallback")
    acc = AO + 48
    a(f"v_add_u32 v2, {L_SEL}, v1")
    a(f"ds_read_b128 {v(AO+40,4)}, v2")
    for w in range(6):
        a(f"ds_read_b32 v{AO+32+w}, v3 offset:{w*512}")
    for w in range(8):
        a(f"s_waitcnt lgkmcnt({6 if w < 1 else 6})") if w == 0 else None
        if w == 0:
            a(f"ds_read_b32 v{AO+38}, v3 offset:{6*512}")
            a(f"ds_read_b32 v{AO+39}, v3 offset:{7*512}")
        a(f"{MF} {v(acc,16)}, {v(AO+40,4)}, {v(AO+4*w,4)}, {'0' if w == 0 else v(acc,16)}")
    a("s_lshr_b32 s3, s45, 1")
    a(f"s_lshl_b32 s46, s{RB}, 1")
    a("s_add_u32 s3, s3, s46")
    a("s_lshl_b32 s3, s3, 4")
    a(f"s_lshl_b32 s46, s{J2}, 1")
    a("s_add_u32 s3, s3, s46")
    a("s_and_b32 s46, s45, 1")
    a("s_add_u32 s3, s3, s46")
    a("s_lshl_b32 s3, s3, 11")
    a(f"s_and_b32 s46, s{WV}, 1")
    a("s_lshl_b32 s46, s46, 10")
    a("s_add_u32 s3, s3, s46")
    a(f"s_add_u32 s47, s3, {WS_OF}")
    a("s_waitcnt lgkmcnt(0)")
    lds_arrive(a, C_TRD, 2, 3)
    l = AO + 32
    a(f"v_add_f32 v{l}, v{l}, v{l+1}")
    a(f"v_add_f32 v{l+2}, v{l+2}, v{l+3}")
    a(f"v_add_f32 v{l+4}, v{l+4}, v{l+5}")
    a(f"v_add_f32 v{l+6}, v{l+6}, v{l+7}")
    a(f"v_add_f32 v{l}, v{l}, v{l+2}")
    a(f"v_add_f32 v{l+4}, v{l+4}, v{l+6}")
    a(f"v_add_f32 v{l}, v{l}, v{l+4}")
    a(f"v_rcp_f32 v{l+1}, v{l}")
    a("s_nop 3")
    for j in range(8): a(f"v_mul_f32 v{acc+j}, v{acc+j}, v{l+1}")
    for j in range(4): a(f"v_cvt_pk_bf16_f32 v{AO+j}, v{acc+2*j}, v{acc+2*j+1}")
    a(f"s_and_b32 s3, s{WV}, 1")
    a("s_cmp_eq_u32 s3, 1")
    a("s_cselect_b32 exec_hi, -1, 0")
    a("s_mov_b32 exec_lo, 0")
    a(f"v_mov_b32 v{AO+2}, 0")
    a(f"v_mov_b32 v{AO+3}, 0")
    a("s_mov_b64 exec, -1")
    pf.stamp(19)
    a(f"buffer_store_dwordx4 {v(AO,4)}, v1, s[{WSR}:{WSR+3}], s47 offen{SC1}")
    if "dup" in X or "dupo" in X:
        a(f"buffer_store_dwordx4 {v(AO,4)}, v1, s[{WSR}:{WSR+3}], s47 offen")
    a(f"s_lshl_b32 s3, s{RB}, 5")
    a(f"s_add_u32 s3, s3, s{J2}")
    a("s_lshl_b32 s3, s3, 2")
    a(f"s_add_u32 s3, s3, {FL_O}")
    arrive_flag(a, C_OCNT, 8, 3, 2, 3, P + "_oflag")
    pf.stamp(8)
    if "wohelp" in X:
        a(f"s_cmp_eq_u32 s{J2}, 7")
        a(f"s_cbranch_scc1 {P}_done")
        a(f"v_mov_b32 v3, {L_CNT}")
        lds_wait(a, C_YD, 4, 3, 2, P + "_yd")
        srd(a, TR, S_WO, WBYTES)
        a("v_lshrrev_b32 v4, 4, v1")
        a("v_lshrrev_b32 v5, 3, v4")
        a("v_mul_u32_u24 v5, 896, v5")
        a("v_and_b32 v4, 7, v4")
        a("v_lshl_add_u32 v5, v4, 4, v5")
        a(f"s_mul_i32 s32, s{WV}, {56*896}")
        a(f"s_lshl_b32 s3, s{J2}, 7")
        a("s_add_u32 s32, s32, s3")
        a(f"s_mul_i32 s34, s{WV}, 7168")
        a("s_mov_b32 m0, s34")
        dma_loop(a, P + "_wodma", 5, 7, 7168, 1024)
        a("s_waitcnt vmcnt(0)")
        lds_arrive(a, C_WOL, 3, 2)
    a(f"s_branch {P}_done")
    a.label(P + "_fallback")
    a("s_waitcnt lgkmcnt(0)")
    a("s_mov_b32 s51, 1")
    a(f"s_mov_b32 s{KR+2}, 0x40000")
    a("s_mov_b32 exec_lo, 0")
    for g in range(4):
        a(f"v_mov_b32 v{AQ+8*g+6}, 0")
        a(f"v_mov_b32 v{AQ+8*g+7}, 0")
    a("s_mov_b32 exec_lo, -1")
    for g in range(4): a(f"v_mov_b32 v{APB+g}, 0xff800000")
    a("s_mov_b32 s43, 0")
    a.label(P + "_fb_loop")
    a(f"buffer_load_dwordx4 {v(AK[0],4)}, v1, s[{KR}:{KR+3}], s43 offen{SC1}")
    a(f"buffer_load_dwordx4 {v(AK[0]+4,4)}, v1, s[{KR}:{KR+3}], s43 offen offset:1024{SC1}")
    a("s_waitcnt vmcnt(0)")
    for g in range(4):
        o = AO + 16 * g
        a(f"{MF} {v(o,16)}, {v(AK[0],4)}, {v(AQ+8*g,4)}, 0")
        a(f"{MF} {v(o,16)}, {v(AK[0]+4,4)}, {v(AQ+8*g+4,4)}, {v(o,16)}")
    a("s_nop 7")
    for g in range(4):
        o = AO + 16 * g
        for j in range(0, 16, 2):
            a(f"v_max3_f32 v{APB+g}, v{APB+g}, v{o+j}, v{o+j+1}")
    a("s_add_u32 s43, s43, 4096")
    a("s_cmp_lt_u32 s43, 0x40000")
    a(f"s_cbranch_scc1 {P}_fb_loop")
    for g in range(4):
        m = APB + g
        a(f"v_mov_b32 v2, v{m}")
        a("s_nop 1")
        a(f"v_permlane32_swap_b32 v2, v{m}")
        a(f"v_max_f32 v2, v2, v{m}")
        a("v_sub_f32 v2, 0, v2")
        a("v_cvt_pk_bf16_f32 v3, v2, v2")
        a("v_and_b32 v3, 0xffff0000, v3")
        a(f"v_sub_f32 v{m}, v2, v3")
        a(f"v_cvt_pk_bf16_f32 v2, v{m}, v{m}")
        a("v_and_b32 v2, 0xffff0000, v2")
        a(f"v_sub_f32 v{m}, v{m}, v2")
        a(f"v_cvt_pk_bf16_f32 v{m}, v{m}, 0")
        a("v_lshrrev_b32 v3, 16, v3")
        a("v_or_b32 v3, v3, v2")
        a("s_mov_b32 exec_lo, 0")
        a(f"v_mov_b32 v{AQ+8*g+6}, v3")
        a(f"v_mov_b32 v{AQ+8*g+7}, v{m}")
        a("s_mov_b32 exec_lo, -1")
    a(f"v_mov_b32 v3, {L_CNT}")
    sw_barrier(a, C_ATT, 44, 8, 3, 2, P + "_bf")
    a(f"s_branch {P}_restart")
    a.label(P + "_done")

def gen_background(a, pf):
    P = "bg"
    XF = 56; ARE, AIM = 8, 24
    nbar = [0]
    T = [54, 55]
    pf.T = T
    def bar():
        nbar[0] += 1
        a(f"v_mov_b32 v{T[0]}, {L_CNT}")
        sw_barrier(a, C_BG, 44, 4, T[0], T[1], f"{P}_bar{nbar[0]}")
    def stage3(tag, vd_=156, vt_=158):
        if "nopf" in X: return
        a(f"s_cmp_eq_u32 s{BW}, 3")
        a(f"s_cbranch_scc1 {P}_not3{tag}")
        a(f"s_cmp_eq_u32 s{BW}, 0")
        a(f"s_cselect_b32 s56, s{S_CRE}, s{S_CIM}")
        a(f"s_cselect_b32 s57, s{S_CRE+1}, s{S_CIM+1}")
        a(f"s_cmp_eq_u32 s{BW}, 2")
        a(f"s_cselect_b32 s56, s{S_WO}, s56")
        a(f"s_cselect_b32 s57, s{S_WO+1}, s57")
        touch_matrix(a, 56, vd_, vt_)
        a.label(P + "_not3" + tag)
    a("s_mov_b32 s44, 0")
    a(f"s_lshl_b32 s37, s{J2}, 1")
    a(f"s_and_b32 s3, s{BW}, 1")
    a("s_add_u32 s37, s37, s3")
    a(f"s_lshr_b32 s38, s{BW}, 1")
    a(f"s_cmp_eq_u32 s{BW}, 3")
    a(f"s_cbranch_scc0 {P}_nononce")
    srd(a, 48, S_DBG, 256)
    a("v_mov_b32 v7, 0")
    a.label(P + "_npoll")
    a(f"buffer_load_dword v6, v7, s[48:51], 0 offen offset:{D_NONCE}{SC1}")
    a("s_waitcnt vmcnt(0)")
    a("v_readfirstlane_b32 s3, v6")
    a("s_cmp_lg_u32 s3, 0")
    a(f"s_cbranch_scc1 {P}_npoll_ok")
    a(f"s_sleep {POLLSLEEP}")
    a(f"s_sub_u32 s{SPIN}, s{SPIN}, 1")
    a(f"s_cbranch_scc0 {P}_npoll")
    a(f"s_mov_b32 s{SPIN}, 0")
    a.label(P + "_npoll_ok")
    a(f"v_mov_b32 v7, {L_CNT}")
    a(f"ds_write_b32 v7, v6 offset:{C_NONCE}")
    a.label(P + "_nononce")
    a(f"s_cmp_eq_u32 s{J2}, 7")
    a(f"s_cbranch_scc1 {P}_skip")
    if "nobg" in X: a(f"s_branch {P}_skip")
    if "kvfirst" in X:
        a(f"s_cmp_ge_u32 s{J2}, 2")
        a(f"s_cbranch_scc1 {P}_nokvi")
        a(f"v_mov_b32 v6, {L_CNT}")
        lds_wait(a, C_KVI, 1, 6, 7, P + "_kvi")
        a.label(P + "_nokvi")
    a(f"s_and_b32 s3, s{BW}, 1")
    a("s_cmp_eq_u32 s3, 0")
    a(f"s_cselect_b32 s{TR}, s{S_BRE}, s{S_BIM}")
    a(f"s_cselect_b32 s{TR+1}, s{S_BRE+1}, s{S_BIM+1}")
    a(f"s_mov_b32 s{TR+2}, {WBYTES}")
    a(f"s_mov_b32 s{TR+3}, 0x00020000")
    plain_lane_off(a, 8, 0, 9)
    a(f"s_lshl_b32 s3, s{J2}, 1")
    a("s_add_u32 s3, s3, s38")
    a(f"s_mul_i32 s32, s3, {32*896}")
    a(f"s_lshl_b32 s34, s{BW}, 11")
    a("s_mov_b32 m0, s34")
    a("s_mov_b32 s36, 14")
    a.label(P + "_bdma")
    a(f"s_add_u32 s33, s32, {16*896}")
    a(f"buffer_load_dwordx4 v8, s[{TR}:{TR+3}], s32 offen lds")
    a("s_add_u32 m0, m0, 1024")
    a("s_sub_u32 s36, s36, 1")
    a(f"buffer_load_dwordx4 v8, s[{TR}:{TR+3}], s33 offen lds")
    a("s_add_u32 s32, s32, 64")
    a(f"s_add_u32 m0, m0, {8192-1024}")
    a("s_cmp_lg_u32 s36, 0")
    a(f"s_cbranch_scc1 {P}_bdma")
    xfrag_addr(a, 6, 0, 8)
    a(f"s_and_b32 s3, s{BW}, 1")
    a("s_lshl_b32 s3, s3, 12")
    a("v_add_u32 v6, s3, v6")
    a("v_xor_b32 v7, 32, v6")
    if os.environ.get("S3") == "bi":
        stage3("a", 52, 54)
        a(f"s_cmp_eq_u32 s{BW}, 3")
        a(f"s_cbranch_scc1 {P}_bw0")
        a("s_waitcnt vmcnt(2)")
        a.label(P + "_bw0")
        a(f"s_cmp_lg_u32 s{BW}, 3")
        a(f"s_cbranch_scc1 {P}_bw1")
        a("s_waitcnt vmcnt(0)")
        a.label(P + "_bw1")
    else:
        a("s_waitcnt vmcnt(0)")
    bar()
    a(f"ds_read_b32 v55, v54 offset:{C_NONCE}")
    a("s_waitcnt lgkmcnt(0)")
    a(f"v_readfirstlane_b32 s{NONCE}, v55")
    if "cntpoll" in X:
        lds_arrive(a, C_BL, 54, 55)
    pf.stamp(5)
    S3 = os.environ.get("S3", "b")
    if S3 == "b": stage3("a", 52, 54)
    if os.environ.get("UP"): a(f"s_setprio {os.environ['UP']}")
    BB = [40, 48]
    def rdB(j):
        b = BB[j & 1]
        if j in (16, 17): a(f"v_add_u32 v{6+(j&1)}, 0x10000, v{6+(j&1)}")
        o = (j >> 1) * 8192 - (65536 if j >= 16 else 0)
        a(f"ds_read_b128 {v(b,4)}, v{6+(j&1)} offset:{o}")
        a(f"ds_read_b128 {v(b+4,4)}, v{6+(j&1)} offset:{o+2048}")
    rdB(0); rdB(1)
    for j in range(28):
        b = BB[j & 1]
        a("s_waitcnt lgkmcnt(2)" if j < 27 else "s_waitcnt lgkmcnt(0)")
        c1 = "0" if j == 0 else v(ARE,16); c2 = "0" if j == 0 else v(AIM,16)
        a(f"{MF} {v(ARE,16)}, {v(XF+4*j,4)}, {v(b,4)}, {c1}")
        a(f"{MF} {v(AIM,16)}, {v(XF+4*j,4)}, {v(b+4,4)}, {c2}")
        if j + 2 < 28: rdB(j + 2)
    if os.environ.get("UP"): a(f"s_setprio {os.environ.get('BP', '3')}")
    a(f"v_mov_b32 v54, {L_CNT}")
    a("v_mov_b32 v55, 1")
    a("s_mov_b64 exec, 1")
    a(f"ds_add_u32 v54, v55 offset:{C_UDONE}")
    a("s_mov_b64 exec, -1")
    pf.stamp(6)
    if S3 == "u": stage3("a")
    def csq(dr, di, sr, si):
        a(f"v_mul_f32 v46, v{si}, v{si}")
        a(f"v_mul_f32 v47, v{sr}, v{si}")
        a(f"v_fma_f32 v{dr}, v{sr}, v{sr}, -v46")
        a(f"v_add_f32 v{di}, v47, v47")
    csq(40, 41, 2, 3)
    for _ in range(3): csq(40, 41, 40, 41)
    csq(42, 43, 40, 41); csq(42, 43, 42, 43)
    csq(44, 45, 42, 43)
    for _ in range(3): csq(44, 45, 44, 45)
    a("v_mov_b32 v48, v4")
    a("v_mov_b32 v49, v4")
    a("v_mov_b32 v50, v5")
    a("v_mov_b32 v51, v5")
    for r in range(0, 16, 2):
        a(f"v_pk_mul_f32 v[46:47], v[50:51], {v(AIM+r,2)}")
        a(f"v_pk_mul_f32 v[52:53], v[50:51], {v(ARE+r,2)}")
        a(f"v_pk_fma_f32 {v(ARE+r,2)}, v[48:49], {v(ARE+r,2)}, v[46:47] neg_lo:[0,0,1] neg_hi:[0,0,1]")
        a(f"v_pk_fma_f32 {v(AIM+r,2)}, v[48:49], {v(AIM+r,2)}, v[52:53]")
    a(f"v_mov_b32 v48, v{ARE}")
    a(f"v_mov_b32 v49, v{AIM}")
    for r in range(1, 16):
        cfma(a, 48, 49, 2, 3, ARE + r, AIM + r, 46, 47)
    a("v_and_b32 v50, 31, v0")
    a("v_lshlrev_b32 v50, 3, v50")
    a(f"s_and_b32 s3, s{BW}, 1")
    a("s_lshl_b32 s3, s3, 10")
    a(f"s_add_u32 s3, s3, {B_EX}")
    a("v_add_u32 v50, s3, v50")
    a("v_lshrrev_b32 v51, 5, v0")
    a("s_lshl_b32 s3, s38, 1")
    a("v_add_u32 v51, s3, v51")
    a("v_lshl_add_u32 v52, v51, 8, v50")
    a("ds_write_b64 v52, v[48:49]")
    bar()
    for c in range(4):
        a(f"ds_read_b64 {v(56+2*c,2)}, v50 offset:{c*256}")
    a("s_waitcnt lgkmcnt(0)")
    a("v_mov_b32 v64, v56")
    a("v_mov_b32 v65, v57")
    for c in range(1, 4):
        cfma(a, 64, 65, 40, 41, 56 + 2*c, 57 + 2*c, 46, 47)
    a("s_cmp_eq_u32 s38, 1")
    a(f"s_cbranch_scc0 {P}_nopub")
    a(f"s_mul_i32 s3, s{RB}, {448*16}")
    a("s_lshl_b32 s33, s37, 9")
    a("s_add_u32 s3, s3, s33")
    a(f"s_add_u32 s3, s3, {WS_E}")
    a(f"v_mov_b32 v66, s{NONCE}")
    a(f"v_mov_b32 v67, s{NONCE}")
    a("v_and_b32 v68, 31, v0")
    a("v_lshlrev_b32 v68, 4, v68")
    a("s_mov_b32 exec_hi, 0")
    a(f"buffer_store_dwordx4 v[64:67], v68, s[{WSR}:{WSR+3}], s3 offen{SC1}")
    a("s_mov_b64 exec, -1")
    a.label(P + "_nopub")
    pf.stamp(7)
    a(f"s_add_u32 s48, s{WSR}, {WS_E}")
    a(f"s_addc_u32 s49, s{WSR+1}, 0")
    a(f"s_mov_b32 s50, {32*448*16}")
    a("s_mov_b32 s51, 0x00020000")
    a("v_lshrrev_b32 v67, 5, v0")
    a("v_lshlrev_b32 v67, 4, v67")
    a(f"v_sub_u32 v67, s{RB}, v67")
    a("v_add_u32 v67, -1, v67")
    a(f"s_mov_b32 s3, {448*16}")
    a("v_mul_lo_u32 v68, v67, s3")
    a("v_and_b32 v66, 31, v0")
    a("v_lshlrev_b32 v66, 4, v66")
    a("s_lshl_b32 s33, s37, 9")
    a("v_add3_u32 v68, v68, v66, s33")
    EG = 72
    for i in range(1, 16):
        a(f"v_subrev_u32 v{136+i}, {448*16*i}, v68")
    a("v_mov_b32 v136, v68")
    a("s_waitcnt vmcnt(0)")
    if "efirst" in X:
        a(f"s_branch {P}_pollE")
    else:
        a(f"s_cmp_eq_u32 s{RB}, 0")
        a(f"s_cbranch_scc1 {P}_pollE")
    a.label(P + "_pollE0")
    a("s_mov_b32 exec_hi, 0")
    a(f"buffer_load_dwordx3 {v(EG,3)}, v136, s[48:51], 0 offen{SC1}")
    a("s_mov_b64 exec, -1")
    a("s_waitcnt vmcnt(0)")
    a(f"v_cmp_ne_u32 vcc, s{NONCE}, v{EG+2}")
    a("s_cmp_eq_u32 vcc_lo, 0")
    a(f"s_cbranch_scc1 {P}_pollE")
    a(f"s_sleep {os.environ.get('ES', '6')}")
    a(f"s_sub_u32 s{SPIN}, s{SPIN}, 1")
    a(f"s_cbranch_scc0 {P}_pollE0")
    a(f"s_mov_b32 s{SPIN}, 0")
    a.label(P + "_pollE")
    for i in range(16):
        a(f"buffer_load_dwordx3 {v(EG+4*i,3)}, v{136+i}, s[48:51], 0 offen{SC1}")
    a("s_mov_b64 s[56:57], 0")
    a("s_waitcnt vmcnt(0)")
    for i in range(16):
        a(f"v_cmp_ne_u32 vcc, s{NONCE}, v{EG+4*i+2}")
        a(f"s_cmp_gt_u32 s{RB}, {i}")
        a("s_cselect_b32 s58, -1, 0")
        a(f"s_cmp_gt_u32 s{RB}, {i+16}")
        a("s_cselect_b32 s59, -1, 0")
        a("s_and_b64 vcc, vcc, s[58:59]")
        a("s_or_b64 s[56:57], s[56:57], vcc")
    a("s_cmp_eq_u64 s[56:57], 0")
    a(f"s_cbranch_scc1 {P}_pollE_ok")
    a("s_sleep 4" if "efirst" in X else "s_sleep 12")
    a(f"s_sub_u32 s{SPIN}, s{SPIN}, 1")
    a(f"s_cbranch_scc0 {P}_pollE0" if "efirst" in X else f"s_cbranch_scc0 {P}_pollE")
    a(f"s_mov_b32 s{SPIN}, 0")
    a.label(P + "_pollE_ok")
    pf.stamp(8)
    a(f"v_mov_b32 v68, v{EG+60}")
    a(f"v_mov_b32 v69, v{EG+61}")
    for i in range(14, -1, -1):
        cfma(a, 68, 69, 42, 43, EG + 4*i, EG + 4*i + 1, 46, 47)
    a("v_mov_b32 v70, v68")
    a("v_mov_b32 v71, v69")
    a("v_mov_b32 v72, v68")
    a("v_mov_b32 v73, v69")
    a("s_nop 1")
    a("v_permlane32_swap_b32 v70, v72")
    a("v_permlane32_swap_b32 v71, v73")
    cfma(a, 72, 73, 44, 45, 70, 71, 46, 47)
    for cp in range(3):
        a("v_mov_b32 v74, v72")
        a("v_mov_b32 v75, v73")
        cfma(a, 74, 75, 40, 41, 56 + 2*cp, 57 + 2*cp, 46, 47)
        a(f"v_cmp_lt_u32 vcc, {cp}, v51")
        a("s_nop 1")
        a("v_cndmask_b32 v72, v72, v74, vcc")
        a("v_cndmask_b32 v73, v73, v75, vcc")
    a(f"s_lshl_b32 s3, s{BW}, 12")
    a(f"s_add_u32 s3, s3, {B_HT}")
    a("v_and_b32 v66, 31, v0")
    a("v_lshlrev_b32 v66, 1, v66")
    a("v_lshrrev_b32 v67, 5, v0")
    a("v_lshl_add_u32 v66, v67, 8, v66")
    a("v_add_u32 v66, s3, v66")
    for r in range(16):
        cfma(a, 72, 73, 2, 3, ARE + r, AIM + r, 46, 47)
        a(f"v_cvt_pk_bf16_f32 v{76+(r&1)}, v72, -v73")
        slot = (r & 3) + 8 * (r >> 2)
        a(f"ds_write_b16 v66, v{76+(r&1)} offset:{slot*64}")
        a(f"ds_write_b16_d16_hi v66, v{76+(r&1)} offset:{2048+slot*64}")
    a("v_and_b32 v67, 31, v0")
    a("v_lshlrev_b32 v67, 6, v67")
    a("v_lshrrev_b32 v68, 5, v0")
    a("v_lshl_add_u32 v67, v68, 4, v67")
    a("v_add_u32 v67, s3, v67")
    a("s_waitcnt lgkmcnt(0)")
    for part in range(2):
        for jj in range(2):
            a(f"ds_read_b128 {v(80+8*part+4*jj,4)}, v67 offset:{part*2048+jj*32}")
    a(f"s_lshl_b32 s3, s{RB}, 1")
    a("s_add_u32 s3, s3, s38")
    a("s_mul_i32 s3, s3, 56")
    a("s_lshl_b32 s33, s37, 1")
    a("s_add_u32 s3, s3, s33")
    a("s_lshl_b32 s3, s3, 10")
    a(f"s_add_u32 s3, s3, {WS_HF}")
    a(f"s_add_u32 s33, s3, {28*1024}")
    a("s_waitcnt lgkmcnt(0)")
    a(f"buffer_store_dwordx4 {v(80,4)}, v1, s[{WSR}:{WSR+3}], s3 offen{SC1}")
    a(f"buffer_store_dwordx4 {v(84,4)}, v1, s[{WSR}:{WSR+3}], s3 offen offset:1024{SC1}")
    a(f"buffer_store_dwordx4 {v(88,4)}, v1, s[{WSR}:{WSR+3}], s33 offen{SC1}")
    a(f"buffer_store_dwordx4 {v(92,4)}, v1, s[{WSR}:{WSR+3}], s33 offen offset:1024{SC1}")
    if "dup" in X:
        a(f"buffer_store_dwordx4 {v(80,4)}, v1, s[{WSR}:{WSR+3}], s3 offen")
        a(f"buffer_store_dwordx4 {v(84,4)}, v1, s[{WSR}:{WSR+3}], s3 offen offset:1024")
        a(f"buffer_store_dwordx4 {v(88,4)}, v1, s[{WSR}:{WSR+3}], s33 offen")
        a(f"buffer_store_dwordx4 {v(92,4)}, v1, s[{WSR}:{WSR+3}], s33 offen offset:1024")
    a(f"s_lshl_b32 s3, s{RB}, 5")
    a(f"s_add_u32 s3, s3, s{J2}")
    a("s_lshl_b32 s3, s3, 2")
    a(f"s_add_u32 s3, s3, {FL_H}")
    arrive_flag(a, C_HCNT, 4, 3, 66, 67, P + "_hflag")
    pf.stamp(9)
    if "hwait" in X:
        a(f"v_mov_b32 v66, {L_CNT}")
        lds_wait(a, C_HCNT, 4, 66, 67, P + "_hall")
    if "lowc" in X: a("s_setprio 0")
    if os.environ.get("S3") == "late": stage3("c")
    if os.environ.get("S3") == "wo":
        a(f"s_cmp_eq_u32 s{BW}, 2")
        a(f"s_cbranch_scc0 {P}_notwo")
        touch_matrix(a, S_WO, 156, 158)
        a.label(P + "_notwo")
    a(f"s_lshr_b32 s3, s{BW}, 1")
    a("s_cmp_eq_u32 s3, 0")
    a(f"s_cselect_b32 s{TR}, s{S_CRE}, s{S_CIM}")
    a(f"s_cselect_b32 s{TR+1}, s{S_CRE+1}, s{S_CIM+1}")
    plain_lane_off(a, 53, 0, 69)
    a(f"s_mul_i32 s40, s{J2}, {64*896}")
    a(f"s_and_b32 s3, s{BW}, 1")
    a("s_mul_i32 s3, s3, 448")
    a("s_add_u32 s40, s40, s3")
    a(f"s_mul_i32 s41, s{BW}, 20480")
    CDMA = [53]
    def c_dma(kb):
        a(f"s_add_u32 m0, s41, {(kb % 5)*4096}")
        for q in range(4):
            a(f"s_add_u32 s33, s40, {q*16*896 + kb*64}")
            a(f"buffer_load_dwordx4 v{CDMA[0]}, s[{TR}:{TR+3}], s33 offen lds")
            if q < 3: a("s_add_u32 m0, m0, 1024")
    for kb in range(5): c_dma(kb)
    if "lowc2" in X: a("s_setprio 3")
    a(f"s_cmp_eq_u32 s{BW}, 0")
    a(f"s_cbranch_scc0 {P}_nopollH2" if "gpar" in X else f"s_cbranch_scc0 {P}_nopollH")
    a("v_lshlrev_b32 v67, 2, v0")
    a(f"s_lshl_b32 s35, s{RB}, 7")
    a(f"s_add_u32 s35, s35, {FL_H}")
    a("s_mov_b64 s[58:59], 0x7f")
    poll(a, P + "_pollH", 68, 67, 35, 58)
    if "gpar" in X:
        a(f"s_branch {P}_pollG_ok")
        a.label(P + "_nopollH2")
        a(f"s_cmp_eq_u32 s{BW}, 1")
        a(f"s_cbranch_scc0 {P}_pollG_ok")
    srd(a, 48, S_DBG, 256)
    a(f"v_mov_b32 v67, {D_GOG}")
    a.label(P + "_pollG")
    a(f"buffer_load_dword v68, v67, s[48:51], 0 offen{SC1}")
    a("s_waitcnt vmcnt(0)")
    a("v_readfirstlane_b32 s3, v68")
    a("s_cmp_lg_u32 s3, 0")
    a(f"s_cbranch_scc1 {P}_pollG_ok")
    a(f"s_sleep {POLLSLEEP}")
    a(f"s_sub_u32 s{SPIN}, s{SPIN}, 1")
    a(f"s_cbranch_scc0 {P}_pollG")
    a(f"s_mov_b32 s{SPIN}, 0")
    a.label(P + "_pollG_ok")
    a.label(P + "_nopollH")
    a("s_waitcnt vmcnt(0)")
    bar()
    pf.stamp(10)
    T[0], T[1] = 4, 5
    ACC = 8
    XS, GT = 136, 152
    if "lowy" in X and "lowlate" not in X: a(f"s_setprio {os.environ.get('YLOW', '0')}")
    a(f"s_lshl_b32 s3, s{RB}, 1")
    a("s_mul_i32 s3, s3, 56")
    a(f"s_mul_i32 s33, s{BW}, 14")
    a("s_add_u32 s3, s3, s33")
    a("s_lshl_b32 s3, s3, 10")
    a(f"s_add_u32 s32, s3, {WS_HF}")
    a(f"s_add_u32 s34, s32, {56*1024}")
    AF = 88; NA = 10
    plain_lane_off(a, 2, 0, 72)
    CDMA[0] = 2
    xfrag_addr(a, 6, 0, 72)
    a("v_add_u32 v6, s41, v6")
    a("v_xor_b32 v7, 32, v6")
    def ldA(st_):
        r = AF + 8 * (st_ % NA)
        a(f"s_add_u32 s35, s32, {st_*1024}")
        a(f"s_add_u32 s36, s34, {st_*1024}")
        a(f"buffer_load_dwordx4 {v(r,4)}, v1, s[{WSR}:{WSR+3}], s35 offen{SC1}")
        a(f"buffer_load_dwordx4 {v(r+4,4)}, v1, s[{WSR}:{WSR+3}], s36 offen{SC1}")
    for st_ in range(NA): ldA(st_)
    if "htouch" in X:
        a("v_lshlrev_b32 v72, 7, v0")
        a(f"s_mov_b32 m0, {L_JUNK}")
        a(f"s_add_u32 s35, s32, {NA*1024}")
        a(f"s_add_u32 s36, s34, {NA*1024}")
        a("s_mov_b32 exec_hi, 0")
        a(f"buffer_load_dword v72, s[{WSR}:{WSR+3}], s35 offen{SC1} lds")
        a(f"buffer_load_dword v72, s[{WSR}:{WSR+3}], s36 offen{SC1} lds")
        a("s_mov_b64 exec, -1")
    CB = [72, 80]
    def rdC(st_):
        b = CB[st_ & 1]
        kb = st_ >> 1
        a(f"ds_read_b128 {v(b,4)}, v{6+(st_&1)} offset:{(kb%5)*4096}")
        a(f"ds_read_b128 {v(b+4,4)}, v{6+(st_&1)} offset:{(kb%5)*4096+2048}")
    issued = []
    for st_ in range(NA): issued += [("A", st_)] * 2
    if "htouch" in X: issued += [("T", 0)] * 2
    HY = int(os.environ.get("HY", "0"))
    if HY:
        a(f"v_mov_b32 v4, {L_CNT}")
        lds_wait(a, C_LEND, HY, 4, 5, P + "_lend", sleep=8)
        a(f"s_setprio {os.environ.get('YP', '1')}")
    if "lowy" in X and "lowlate" in X: a(f"s_setprio {os.environ.get('YLOW', '0')}")
    rdC(0)
    for st_ in range(14):
        kb = st_ >> 1
        need = [("A", st_)]
        if st_ + 1 < 14 and ((st_ + 1) >> 1) >= 5: need.append(("C", (st_ + 1) >> 1))
        last = max(i for i, t in enumerate(issued) if t in need)
        n_out = len(issued) - 1 - last
        a(f"s_waitcnt vmcnt({n_out})")
        if st_ + 1 < 14: rdC(st_ + 1)
        a(f"s_waitcnt lgkmcnt({2 if st_ + 1 < 14 else 0})")
        b = CB[st_ & 1]; r = AF + 8 * (st_ % NA)
        for rt in range(2):
            for ct in range(2):
                acc = ACC + 16 * (2 * rt + ct)
                c = "0" if st_ == 0 else v(acc, 16)
                a(f"{MF} {v(acc,16)}, {v(r+4*rt,4)}, {v(b+4*ct,4)}, {c}")
        if st_ + NA < 14:
            ldA(NA + st_); issued += [("A", NA + st_)] * 2
        if (st_ & 1) == 1 and kb + 5 < 7:
            c_dma(kb + 5); issued += [("C", kb + 5)] * 4
    pf.stamp(11)
    a(f"s_lshl_b32 s3, s{RB}, 6")
    a("s_lshl_b32 s33, s38, 5")
    a("s_add_u32 s3, s3, s33")
    a("v_lshrrev_b32 v80, 5, v0")
    a("v_lshlrev_b32 v80, 4, v80")
    a("v_add_u32 v80, s3, v80")
    a(f"s_lshl_b32 s33, s{J2}, 6")
    a(f"s_and_b32 s35, s{BW}, 1")
    a("s_lshl_b32 s35, s35, 5")
    a("s_add_u32 s33, s33, s35")
    a("v_and_b32 v81, 31, v0")
    a("v_add_u32 v81, s33, v81")
    srd(a, 48, S_X, XBYTES)
    a("v_mul_u32_u24 v82, 896, v80")
    a("v_lshl_add_u32 v82, v81, 1, v82")
    for r in range(16):
        a(f"buffer_load_ushort v{XS+r}, v82, s[48:51], 0 offen offset:{(r%4)*896}")
        if r % 4 == 3 and r < 15: a(f"v_add_u32 v82, {4*896}, v82")
    srd(a, 52, S_DSK, 896)
    a("v_lshlrev_b32 v83, 1, v81")
    a("buffer_load_ushort v3, v83, s[52:55], 0 offen")
    a("v_lshlrev_b32 v83, 2, v80")
    a(f"s_mov_b32 s35, {WS_G}")
    for q in range(4):
        a(f"buffer_load_dwordx4 {v(GT+4*q,4)}, v83, s[{WSR}:{WSR+3}], s35 offen offset:{16*q}{SC1}")

    a(f"s_setprio {os.environ.get('YP2', '2')}")
    bar()
    def wo_dma(t1, t2, z):
        srd(a, TR, S_WO, WBYTES)
        a(f"v_lshrrev_b32 v{t1}, 3, v0")
        a(f"v_mul_u32_u24 v{t1}, 896, v{t1}")
        a(f"v_and_b32 v{t2}, 7, v0")
        a(f"v_lshl_add_u32 v{t1}, v{t2}, 4, v{t1}")
        a(f"s_mul_i32 s32, s{BW}, {112*896}")
        a(f"s_lshl_b32 s3, s{J2}, 7")
        a("s_add_u32 s32, s32, s3")
        a(f"s_mul_i32 s34, s{BW}, 14336")
        a("s_mov_b32 m0, s34")
        a("s_mov_b32 s36, 14")
        a.label(P + "_wodma")
        a("s_sub_u32 s36, s36, 1")
        a(f"buffer_load_dwordx4 v{t1}, s[{TR}:{TR+3}], s32 offen lds")
        a("s_add_u32 s32, s32, 7168")
        a("s_add_u32 m0, m0, 1024")
        a("s_cmp_lg_u32 s36, 0")
        a(f"s_cbranch_scc1 {P}_wodma")
        a(f"v_mov_b32 v{z}, 0")
        a(f"v_mov_b32 v{z+1}, 0")
        a(f"v_lshlrev_b32 v{t2}, 3, v0")
        a(f"ds_write_b64 v{t2}, v[{z}:{z+1}] offset:57344")
    t1 = 75
    if "wohelp" in X:
        lds_arrive(a, C_YD, 4, 5)
        a("v_mov_b32 v80, 0")
        a("v_mov_b32 v81, 0")
        a("v_lshlrev_b32 v76, 3, v0")
        a("ds_write_b64 v76, v[80:81] offset:57344")
    elif "wolate" not in X: wo_dma(75, 76, 80)
    a(f"v_mov_b32 v4, {L_CNT}")
    lds_wait(a, C_TRD, 8, 4, 5, P + "_trd")
    a(f"s_lshl_b32 s3, s{BW}, 12")
    a(f"s_add_u32 s3, s3, {A_OP}")
    a(f"v_add_u32 v{t1}, s3, v1")
    for t in range(4):
        for q in range(4):
            a(f"ds_write_b128 v{t1}, {v(ACC+16*t+4*q,4)} offset:{t*16384+q*1024}")
    bar()
    a(f"s_lshl_b32 s3, s{BW}, 14")
    a(f"s_add_u32 s3, s3, {A_OP}")
    a(f"v_add_u32 v{t1}, s3, v1")
    for src in range(3):
        for q in range(4):
            a(f"ds_read_b128 {v(88+16*src+4*q,4)}, v{t1} offset:{src*4096+q*1024}")
    YT = 8
    for q in range(4):
        a(f"ds_read_b128 {v(YT+4*q,4)}, v{t1} offset:{3*4096+q*1024}")
        if q == 2: a("s_waitcnt lgkmcnt(4)")
    a("s_waitcnt lgkmcnt(0)")
    VT_, VD_, VO_, t1, t2, t3, t4, t5 = 40, 41, 42, 43, 44, 45, 46, 47
    a("s_waitcnt vmcnt(0)" if "wolate" in X else "s_waitcnt vmcnt(14)")
    for r in range(16):
        a(f"v_add_f32 v{88+r}, v{88+r}, v{104+r}")
        a(f"v_add_f32 v{YT+r}, v{YT+r}, v{120+r}")
    a("v_lshlrev_b32 v3, 16, v3")
    for r in range(16):
        a(f"v_add_f32 v{YT+r}, v{YT+r}, v{88+r}")
        a(f"v_lshlrev_b32 v{XS+r}, 16, v{XS+r}")
        a(f"v_mul_f32 v{XS+r}, v{XS+r}, v3")
        a(f"v_fma_f32 v{YT+r}, 2.0, v{YT+r}, v{XS+r}")
        a(f"v_sub_f32 v{XS+r}, 1.0, v{GT+r}")
        a(f"v_mul_f32 v{YT+r}, v{YT+r}, v{XS+r}")
    a(f"s_lshl_b32 s3, s{RB}, 6")
    a("s_lshl_b32 s33, s38, 5")
    a("s_add_u32 s3, s3, s33")
    a(f"v_lshrrev_b32 v{VT_}, 5, v0")
    a(f"v_lshlrev_b32 v{VT_}, 4, v{VT_}")
    a(f"v_add_u32 v{VT_}, s3, v{VT_}")
    a(f"s_lshl_b32 s33, s{J2}, 6")
    a(f"s_and_b32 s35, s{BW}, 1")
    a("s_lshl_b32 s35, s35, 5")
    a("s_add_u32 s33, s33, s35")
    a(f"v_and_b32 v{VD_}, 31, v0")
    a(f"v_add_u32 v{VD_}, s33, v{VD_}")
    a(f"v_mul_u32_u24 v{VO_}, 1792, v{VT_}")
    a(f"v_lshl_add_u32 v{VO_}, v{VD_}, 2, v{VO_}")
    srd(a, 48, S_OUT, OUTBYTES)
    a("v_lshrrev_b32 v6, 5, v0")
    a("v_lshlrev_b32 v6, 2, v6")
    a("v_bfe_u32 v7, v0, 2, 2")
    a("v_add_u32 v6, v6, v7")
    a("v_lshlrev_b32 v6, 7, v6")
    a("v_and_b32 v7, 16, v0")
    a(f"v_and_b32 v{t1}, 3, v0")
    a(f"v_lshl_add_u32 v7, v{t1}, 2, v7")
    a("v_lshl_add_u32 v6, v7, 1, v6")
    a(f"s_and_b32 s3, s{BW}, 1")
    a(f"s_mul_i32 s3, s3, {8*28*128}")
    a("v_add_u32 v6, s3, v6")
    if "wohelp" in X:
        a(f"v_mov_b32 v4, {L_CNT}")
        lds_wait(a, C_WOL, 8, 4, 5, P + "_wol")
    elif "wolate" in X:
        a(f"v_mov_b32 v4, {L_CNT}")
        lds_wait(a, C_OCNT, 8, 4, 5, P + "_opub")
        wo_dma(48, 49, 50)
    a("s_waitcnt vmcnt(0)")
    a("s_setprio 3")
    pf.stamp(12)
    bar()
    a(f"v_lshlrev_b32 v{t4}, 2, v0")
    a(f"s_lshl_b32 s35, s{RB}, 7")
    a(f"s_add_u32 s35, s35, {FL_O}")
    a("s_mov_b64 s[58:59], 0xff")
    poll(a, P + "_pollO", t5, t4, 35, 58)
    pf.stamp(13)
    a(f"s_lshl_b32 s3, s{RB}, 1")
    a("s_add_u32 s3, s3, s38")
    a("s_lshl_b32 s3, s3, 15")
    a(f"s_and_b32 s33, s{BW}, 1")
    a("s_lshl_b32 s33, s33, 14")
    a("s_add_u32 s3, s3, s33")
    a(f"s_add_u32 s32, s3, {WS_OF}")
    OFR = 88
    for st_ in range(16):
        a(f"s_add_u32 s33, s32, {st_*1024}")
        a(f"buffer_load_dwordx4 {v(OFR+4*st_,4)}, v1, s[{WSR}:{WSR+3}], s33 offen{SC1}")
    PA_ = [56, 72]
    WB = [24, 32]
    def rdW(st_):
        hd, f = st_ >> 1, st_ & 1
        off = (28 * hd + 16 * f) * 128
        b = WB[st_ & 1]
        for ct in range(2):
            a(f"ds_read_b64_tr_b16 {v(b+4*ct,2)}, v6 offset:{off+ct*64}")
            a(f"ds_read_b64_tr_b16 {v(b+4*ct+2,2)}, v6 offset:{off+ct*64+1024}")
    rdW(0)
    for st_ in range(16):
        if st_ + 1 < 16: rdW(st_ + 1)
        a(f"s_waitcnt vmcnt({15-st_}) lgkmcnt({4 if st_ + 1 < 16 else 0})")
        for ct in range(2):
            c = "0" if st_ == 0 else v(PA_[ct], 16)
            a(f"{MF} {v(PA_[ct],16)}, {v(OFR+4*st_,4)}, {v(WB[st_&1]+4*ct,4)}, {c}")
    a(f"s_xor_b32 s3, s{BW}, 1")
    a("s_lshl_b32 s3, s3, 12")
    a("s_add_u32 s3, s3, 65536")
    a(f"v_add_u32 v{t1}, s3, v1")
    a(f"s_and_b32 s33, s{BW}, 1")
    a("s_nop 7")
    a("s_cmp_eq_u32 s33, 0")
    a(f"s_cbranch_scc0 {P}_send0")
    for q in range(4): a(f"ds_write_b128 v{t1}, {v(PA_[1]+4*q,4)} offset:{q*1024}")
    a(f"s_branch {P}_sent")
    a.label(P + "_send0")
    a("s_nop 1")
    for q in range(4): a(f"ds_write_b128 v{t1}, {v(PA_[0]+4*q,4)} offset:{q*1024}")
    a("s_nop 1")
    for r in range(16): a(f"v_mov_b32 v{PA_[0]+r}, v{PA_[1]+r}")
    a.label(P + "_sent")
    bar()
    a(f"s_lshl_b32 s3, s{BW}, 12")
    a("s_add_u32 s3, s3, 65536")
    a(f"v_add_u32 v{t1}, s3, v1")
    for q in range(4): a(f"ds_read_b128 {v(88+4*q,4)}, v{t1} offset:{q*1024}")
    a("s_waitcnt lgkmcnt(0)")
    for r in range(16):
        a(f"v_add_f32 v{88+r}, v{88+r}, v{PA_[0]+r}")
        a(f"v_fma_f32 v{88+r}, v{GT+r}, v{88+r}, v{YT+r}")
    for r in range(16):
        a(f"buffer_store_dword v{88+r}, v{VO_}, s[48:51], 0 offen offset:{(r%2)*1792}{os.environ.get('OST', '')}")
        if r % 2 == 1 and r < 15: a(f"v_add_u32 v{VO_}, {2*1792}, v{VO_}")
    pf.stamp(14)
    a(f"s_branch {P}_end")
    a.label(P + "_skip")
    if os.environ.get("S3", "b") in ("b", "u", "late", "wo", "bi"): stage3("b")
    a(f"v_mov_b32 v54, {L_CNT}")
    a("v_mov_b32 v55, 1")
    a("s_mov_b64 exec, 1")
    a(f"ds_add_u32 v54, v55 offset:{C_HCNT}")
    a("s_mov_b64 exec, -1")
    a.label(P + "_end")

def lds_wait(a, coff, target, vaddr, vtmp, lab, sleep=1):
    a.label(lab)
    a(f"ds_read_b32 v{vtmp}, v{vaddr} offset:{coff}")
    a("s_waitcnt lgkmcnt(0)")
    a(f"v_readfirstlane_b32 s3, v{vtmp}")
    a(f"s_cmp_ge_u32 s3, {target}")
    a(f"s_cbranch_scc1 {lab}_ok")
    a(f"s_sleep {sleep}")
    a(f"s_sub_u32 s{SPIN}, s{SPIN}, 1")
    a(f"s_cbranch_scc0 {lab}")
    a(f"s_mov_b32 s{SPIN}, 0")
    a.label(lab + "_ok")

def lds_arrive(a, coff, vaddr, vtmp):
    a(f"v_mov_b32 v{vaddr}, {L_CNT}")
    a(f"v_mov_b32 v{vtmp}, 1")
    a("s_mov_b64 exec, 1")
    a(f"ds_add_u32 v{vaddr}, v{vtmp} offset:{coff}")
    a("s_mov_b64 exec, -1")

def dma_loop(a, lab, vaddr, n, dsrc, dlds):
    a("s_mov_b32 s36, %d" % n)
    a.label(lab)
    a("s_sub_u32 s36, s36, 1")
    a(f"buffer_load_dwordx4 v{vaddr}, s[{TR}:{TR+3}], s32 offen lds")
    a(f"s_add_u32 s32, s32, {dsrc}")
    a(f"s_add_u32 m0, m0, {dlds}")
    a("s_cmp_lg_u32 s36, 0")
    a(f"s_cbranch_scc1 {lab}")

def q_loop(a, acc, X4, W4, vxe, vxo, vw):
    def rd(j):
        k = j & 3
        a(f"ds_read_b128 {v(X4+4*k,4)}, v{vxo if j & 1 else vxe} offset:{(j>>1)*4096}")
        a(f"ds_read_b64_tr_b16 {v(W4+4*k,2)}, v{vw} offset:{j*2048}")
        a(f"ds_read_b64_tr_b16 {v(W4+4*k+2,2)}, v{vw} offset:{j*2048+512}")
    for j in range(4): rd(j)
    for j in range(28):
        left = min(3, 27 - j)
        a(f"s_waitcnt lgkmcnt({3*left})")
        c = "0" if j == 0 else v(acc, 16)
        a(f"{MF} {v(acc,16)}, {v(W4+4*(j&3),4)}, {v(X4+4*(j&3),4)}, {c}")
        if j + 4 < 28: rd(j + 4)

def gen_fused(a):
    name = NAME + "_kernel"
    a(f".globl {name}")
    a(".p2align 8")
    a(f".type {name},@function")
    a.label(name)
    END = "L_end"
    a("s_cmp_ge_u32 s2, 256")
    a(f"s_cbranch_scc1 {END}")
    a("s_load_dwordx16 s[64:79], s[0:1], 0")
    a("s_load_dwordx16 s[80:95], s[0:1], 64")
    a("s_load_dwordx4 s[96:99], s[0:1], 128")
    if "earlycode" in X:
        a("s_getpc_b64 s[56:57]")
        a.label("p0_pc0")
        a("v_lshlrev_b32 v148, 7, v0")
        a("s_mov_b32 s3, L_end-p0_pc0")
        a("v_min_u32 v148, s3, v148")
        a("global_load_dword v149, v148, s[56:57]")
    a("v_lshrrev_b32 v2, 6, v0")
    a("v_and_b32 v0, 63, v0")
    a(f"v_readfirstlane_b32 s{WV}, v2")
    a(f"v_mov_b32 v4, {L_CNT}")
    a("v_mov_b32 v5, 0")
    a("v_lshl_add_u32 v4, v0, 2, v4")
    a("ds_write_b32 v4, v5")
    a(f"s_and_b32 s{RB}, s2, 7")
    a(f"s_lshl_b32 s{RB}, s{RB}, 2")
    a(f"s_lshr_b32 s{J2}, s2, 3")
    a(f"s_and_b32 s3, s{J2}, 3")
    a(f"s_add_u32 s{RB}, s{RB}, s3")
    a(f"s_lshr_b32 s{J2}, s{J2}, 2")
    a("v_lshlrev_b32 v1, 4, v0")
    a(f"s_mov_b32 s{SPIN}, 0x100000")
    a(f"s_sub_u32 s{BW}, s{WV}, 8")
    pfA = Prof(a, 167)
    xtile_lane_off(a, 3, 0, 4, 5)
    a("s_waitcnt lgkmcnt(0)")
    srd(a, WSR, S_WS, WS_SIZE)
    if PROF: a("v_mov_b32 v167, 0")
    pfA.stamp(0)
    if PROF:
        a("s_getreg_b32 s60, hwreg(HW_REG_XCC_ID)")
        a("v_writelane_b32 v167, s60, 20")
        a("s_getreg_b32 s60, hwreg(HW_REG_HW_ID)")
        a("v_writelane_b32 v167, s60, 21")
    a(f"s_cmp_lt_u32 s{WV}, 4")
    a("s_cselect_b64 s[46:47], -1, 0")
    a(f"s_cmp_eq_u32 s{J2}, 0")
    a(f"s_cselect_b32 s{TR}, s{S_WK}, s{S_WV}")
    a(f"s_cselect_b32 s{TR+1}, s{S_WK+1}, s{S_WV+1}")
    a(f"s_mov_b32 s{TR+2}, {WKBYTES}")
    a(f"s_mov_b32 s{TR+3}, 0x00020000")
    a(f"s_mul_i32 s32, s{BW}, 7168")
    a(f"s_add_u32 s34, s32, {L_WKV}")
    a("s_mov_b32 s33, 1024")
    a("s_mov_b32 s35, 1024")
    a(f"s_cmp_lt_u32 s{J2}, 2")
    a("s_cselect_b32 s36, 7, 0")
    a(f"s_cmp_ge_u32 s{WV}, 8")
    a("s_cselect_b32 s36, s36, 0")
    a("v_cndmask_b32 v3, v1, v3, s[46:47]")
    a(f"s_mul_i32 s40, s{RB}, {64*896}")
    a(f"s_lshr_b32 s3, s{WV}, 1")
    a(f"s_mul_i32 s3, s3, {32*896}")
    a("s_add_u32 s40, s40, s3")
    a(f"s_and_b32 s3, s{WV}, 1")
    a(f"s_mul_i32 s3, s3, {8*896}")
    a("s_add_u32 s40, s40, s3")
    a(f"s_lshl_b32 s41, s{WV}, 10")
    a(f"s_cmp_lt_u32 s{WV}, 4")
    a(f"s_cselect_b32 s{TR}, s{S_X}, s{TR}")
    a(f"s_cselect_b32 s{TR+1}, s{S_X+1}, s{TR+1}")
    a(f"s_cselect_b32 s{TR+2}, {XBYTES}, s{TR+2}")
    a("s_cselect_b32 s32, s40, s32")
    a("s_cselect_b32 s34, s41, s34")
    a("s_cselect_b32 s33, 64, s33")
    a("s_cselect_b32 s35, 4096, s35")
    a("s_cselect_b32 s36, 14, s36")
    a("s_mov_b32 m0, s34")
    a("s_cmp_eq_u32 s36, 0")
    a("s_cbranch_scc1 p0_first_done")
    a.label("p0_first")
    a("s_sub_u32 s36, s36, 1")
    a(f"buffer_load_dwordx4 v3, s[{TR}:{TR+3}], s32 offen lds")
    a("s_add_u32 s32, s32, s33")
    a("s_add_u32 m0, m0, s35")
    a("s_cmp_lg_u32 s36, 0")
    a("s_cbranch_scc1 p0_first")
    a.label("p0_first_done")
    a(f"s_cmp_ge_u32 s{WV}, 8")
    a("s_cbranch_scc1 p0_bgw")
    a(f"s_cmp_ge_u32 s{WV}, 4")
    a("s_cbranch_scc1 p0_kvw")
    a("s_barrier")
    pfA.stamp(1)
    xfrag_addr(a, 6, 0, 4)
    tr_rowcol(a, 12, 13, 0, 4)
    a(f"s_lshr_b32 s38, s{WV}, 1")
    a(f"s_and_b32 s39, s{WV}, 1")
    a("s_lshl_b32 s3, s38, 11")
    a("v_add_u32 v6, s3, v6")
    a("v_xor_b32 v7, 32, v6")
    a("v_lshlrev_b32 v10, 7, v12")
    a("v_lshl_add_u32 v10, v13, 1, v10")
    a("s_mul_i32 s3, s39, 56")
    a(f"s_add_u32 s3, s3, {L_WQ}")
    a("v_add_u32 v10, s3, v10")
    a("s_waitcnt vmcnt(0)")
    lds_arrive(a, C_XR, 4, 5)
    pfA.stamp(2)
    a("s_waitcnt lgkmcnt(0)")
    a("s_barrier")
    pfA.stamp(3)
    q_loop(a, 16, 32, 48, 6, 7, 10)
    a(f"s_mov_b32 s42, {hex(QSCALE)}")
    a(f"s_lshl_b32 s3, s{WV}, 11")
    a(f"s_add_u32 s3, s3, {L_QX}")
    a("v_add_u32 v12, s3, v1")
    a("s_nop 7")
    a("s_nop 0")
    for i in range(16): a(f"v_mul_f32 v{16+i}, s42, v{16+i}")
    for i in range(8): a(f"v_cvt_pk_bf16_f32 v{32+i}, v{16+2*i}, v{17+2*i}")
    a("s_mov_b32 exec_lo, 0")
    a("v_mov_b32 v38, 0")
    a("v_mov_b32 v39, 0")
    a("s_mov_b32 exec_lo, -1")
    a("ds_write_b128 v12, v[32:35]")
    a("ds_write_b128 v12, v[36:39] offset:1024")
    a("s_branch p0_b1")
    a.label("p0_kvw")
    a(f"s_sub_u32 s39, s{WV}, 4")
    if "earlycode" not in X:
        a("s_getpc_b64 s[56:57]")
        a.label("p0_pc")
        a("s_lshl_b32 s3, s39, 13")
        a("v_lshlrev_b32 v150, 7, v0")
        a("v_add_u32 v150, s3, v150")
        a(f"s_sub_u32 s56, s56, p0_pc-{NAME}_kernel")
        a("s_subb_u32 s57, s57, 0")
        a(f"s_mov_b32 s3, L_end-{NAME}_kernel")
        a("v_min_u32 v150, s3, v150")
        a("global_load_dword v150, v150, s[56:57]")
    a("s_cmp_eq_u32 s39, 0")
    a("s_cbranch_scc0 p0_pf_out")
    a("v_lshlrev_b32 v151, 21, v0")
    a("s_mov_b64 exec, 7")
    a(f"buffer_load_dword v151, v151, s[{WSR}:{WSR+3}], 0 offen")
    a("s_mov_b64 exec, -1")
    a.label("p0_pf_out")
    a("s_cmp_eq_u32 s39, 1")
    a("s_cbranch_scc0 p0_pf_done")
    srd(a, 48, S_OUT, OUTBYTES)
    a("v_mul_u32_u24 v151, 0x1c0000, v0")
    a("s_mov_b64 exec, 7")
    a("buffer_load_dword v151, v151, s[48:51], 0 offen")
    a("s_mov_b64 exec, -1")
    if os.environ.get("S3") == "mall" or "mallwarm" in X:
        a("s_cmp_eq_u32 s39, 3")
        a("s_cbranch_scc0 p0_pf_done")
        a("v_lshlrev_b32 v149, 7, v0")
        a(f"s_mul_i32 s3, s2, {13*128}")
        a(f"s_mov_b32 m0, {L_JUNK}")
        a("s_mov_b64 exec, 0x1fff")
        for sp in (S_CRE, S_CIM, S_WO):
            srd(a, 48, sp, WBYTES)
            a("buffer_load_dword v149, s[48:51], s3 offen lds")
        a("s_mov_b64 exec, -1")
    a.label("p0_pf_done")
    if "wqearly" in X:
        srd(a, TR, S_WQ, WBYTES)
        a("v_lshrrev_b32 v3, 3, v0")
        a("v_mul_u32_u24 v3, 896, v3")
        a("v_and_b32 v4, 7, v0")
        a("v_lshl_add_u32 v3, v4, 4, v3")
        a(f"s_mul_i32 s32, s39, {112*896}")
        a(f"s_mul_i32 s33, s{J2}, 112")
        a("s_add_u32 s32, s32, s33")
        a("s_mul_i32 s34, s39, 14336")
        a(f"s_add_u32 s34, s34, {L_WQ}")
        a("s_mov_b32 m0, s34")
        dma_loop(a, "p0_qdma2", 3, 14, 7168, 1024)
    a("s_barrier")
    a(f"s_cmp_ge_u32 s{J2}, 3")
    a("s_cbranch_scc1 p0_kv_none")
    a("s_lshr_b32 s38, s39, 1")
    a("s_and_b32 s39, s39, 1")
    a(f"s_mov_b32 s15, {1 if 'dry' in X else 0}")
    a("s_setprio 3")
    a.label("p0_kv_setup")
    a(f"s_mov_b32 s8, s{WSR}")
    a(f"s_mov_b32 s9, s{WSR+1}")
    a("s_cmp_eq_u32 s15, 0")
    a(f"s_cselect_b32 s10, {WS_SIZE}, 0")
    a("s_mov_b32 s11, 0x00020000")
    xfrag_addr(a, 6, 0, 4)
    tr_rowcol(a, 12, 13, 0, 4)
    a("s_lshl_b32 s3, s38, 11")
    a("s_mul_i32 s41, s39, 28672")
    a("s_add_u32 s3, s3, s41")
    a("v_add_u32 v6, s3, v6")
    a("v_xor_b32 v7, 32, v6")
    a("s_mul_i32 s40, s39, 14")
    a(f"s_cmp_eq_u32 s{J2}, 2")
    a("s_cbranch_scc1 p0_kv_gaddr")
    a("v_mul_u32_u24 v10, 56, v12")
    a("v_lshl_add_u32 v10, v13, 1, v10")
    a(f"s_mul_i32 s3, s40, {16*56}")
    a(f"s_add_u32 s3, s3, {L_WKV}")
    a("v_add_u32 v10, s3, v10")
    a("v_add_u32 v11, 224, v10")
    a(f"s_mov_b32 s42, {16*56}")
    a("s_branch p0_kv_addr_done")
    a.label("p0_kv_gaddr")
    a("v_lshlrev_b32 v10, 3, v12")
    a("s_lshl_b32 s3, s40, 7")
    a(f"s_add_u32 s3, s3, {L_WKV}")
    a("v_add_u32 v10, s3, v10")
    a("v_add_u32 v11, 32, v10")
    a("s_mov_b32 s42, 128")
    a.label("p0_kv_addr_done")
    a(f"v_mov_b32 v4, {L_CNT}")
    a("s_cmp_lg_u32 s15, 0")
    a("s_cbranch_scc1 p0_xr_ok")
    lds_wait(a, C_XR, 8, 4, 5, "p0_xr")
    pfA.stamp(2)
    def kv_rd(i):
        a(f"ds_read_b128 {v(32+4*i,4)}, v{6+(i&1)} offset:{(i>>1)*4096}")
        a(f"ds_read_b64_tr_b16 {v(88+4*i,2)}, v10")
        a(f"ds_read_b64_tr_b16 {v(88+4*i+2,2)}, v11")
        if i < 13:
            a("v_add_u32 v10, s42, v10")
            a("v_add_u32 v11, s42, v11")
    def kv_mm(swap, tag):
        for i in range(4): kv_rd(i)
        for i in range(14):
            a(f"s_waitcnt lgkmcnt({3*min(3, 13-i)})")
            A, B = (32+4*i, 88+4*i) if swap else (88+4*i, 32+4*i)
            a(f"{MF} v[16:31], {v(A,4)}, {v(B,4)}, {'0' if i == 0 else 'v[16:31]'}")
            if i + 4 < 14: kv_rd(i + 4)
    a(f"s_cmp_ge_u32 s{J2}, 1")
    a("s_cbranch_scc1 p0_kv_swap")
    kv_mm(False, "k")
    a("s_branch p0_kv_mm_done")
    a.label("p0_kv_swap")
    kv_mm(True, "v")
    a.label("p0_kv_mm_done")
    pfA.stamp(22)
    a("s_lshl_b32 s3, s38, 12")
    a(f"s_add_u32 s3, s3, {L_QX}")
    a("v_add_u32 v12, s3, v1")
    a("s_nop 7")
    a("s_nop 0")
    a("s_cmp_lg_u32 s15, 0")
    a("s_cbranch_scc1 p0_kv_root")
    a("s_cmp_eq_u32 s39, 0")
    a("s_cbranch_scc1 p0_kv_root")
    for q in range(4): a(f"ds_write_b128 v12, {v(16+4*q,4)} offset:{q*1024}")
    a("s_waitcnt lgkmcnt(0)")
    a("s_lshl_b32 s3, s38, 2")
    a(f"v_mov_b32 v4, {L_CNT}")
    a("v_add_u32 v4, s3, v4")
    a("v_mov_b32 v5, 1")
    a("s_mov_b64 exec, 1")
    a(f"ds_add_u32 v4, v5 offset:{C_KVR}")
    a("s_mov_b64 exec, -1")
    a("s_branch p0_kv_none")
    a.label("p0_kv_root")
    a("s_lshl_b32 s3, s38, 2")
    a(f"v_mov_b32 v4, {L_CNT}")
    a("v_add_u32 v4, s3, v4")
    a("s_cmp_lg_u32 s15, 0")
    a("s_cbranch_scc1 p0_kvr_ok")
    lds_wait(a, C_KVR, 1, 4, 5, "p0_kvr")
    pfA.stamp(23)
    for i in range(4): a(f"ds_read_b128 {v(32+4*i,4)}, v12 offset:{i*1024}")
    a("s_waitcnt lgkmcnt(0)")
    for r in range(16): a(f"v_add_f32 v{16+r}, v{16+r}, v{32+r}")
    a(f"s_lshl_b32 s43, s{RB}, 1")
    a("s_add_u32 s43, s43, s38")
    a(f"s_cmp_eq_u32 s{J2}, 2")
    a("s_cbranch_scc1 p0_gate_epi")
    for i in range(8): a(f"v_cvt_pk_bf16_f32 v{32+i}, v{16+2*i}, v{17+2*i}")
    a("s_lshl_b32 s44, s43, 12")
    a(f"s_add_u32 s44, s44, {WS_KV}")
    a(f"s_cmp_eq_u32 s{J2}, 1")
    a("s_cbranch_scc1 p0_v_epi")
    a("s_mov_b32 exec_lo, 0")
    a("v_mov_b32 v38, 0x3f803f80")
    a("v_mov_b32 v39, 0x00003f80")
    a("s_mov_b32 exec_lo, -1")
    a(f"buffer_store_dwordx4 v[32:35], v1, s[8:11], s44 offen{SC1}")
    a(f"buffer_store_dwordx4 v[36:39], v1, s[8:11], s44 offen offset:1024{SC1}")
    a("s_branch p0_kv_arrive")
    a.label("p0_v_epi")
    a("v_max3_f32 v14, |v16|, |v17|, |v18|")
    for j in range(3, 15, 2): a(f"v_max3_f32 v14, v14, |v{16+j}|, |v{17+j}|")
    a("v_max_f32 v14, v14, |v31|")
    a("v_and_b32 v13, 31, v0")
    a("v_cmp_gt_u32 s[46:47], 28, v13")
    a(f"v_cmp_lt_f32 vcc, {hex(VMAX)}, v14")
    a("s_and_b64 vcc, vcc, s[46:47]")
    a("s_cbranch_vccz p0_v_ok")
    a("s_cmp_lg_u32 s15, 0")
    a("s_cbranch_scc1 p0_v_ok")
    srd(a, 48, S_DBG, 256)
    a("v_mov_b32 v14, 1")
    a(f"v_mov_b32 v15, {D_BAD}")
    a("s_mov_b64 exec, 1")
    a(f"buffer_store_dword v14, v15, s[48:51], 0 offen{SC1}")
    a("s_mov_b64 exec, -1")
    a.label("p0_v_ok")
    a("v_and_b32 v13, 31, v0")
    a("v_cmp_eq_u32 vcc, 28, v13")
    a("v_mov_b32 v14, 0x3f803f80")
    a("s_nop 0")
    a("v_cndmask_b32 v14, 0, v14, vcc")
    a("v_cmp_lt_u32 vcc, 27, v13")
    a("s_nop 1")
    for i in range(8): a(f"v_cndmask_b32 v{32+i}, v{32+i}, v14, vcc")
    a(f"buffer_store_dwordx4 v[32:35], v1, s[8:11], s44 offen offset:2048{SC1}")
    a(f"buffer_store_dwordx4 v[36:39], v1, s[8:11], s44 offen offset:3072{SC1}")
    a("s_branch p0_kv_arrive")
    a.label("p0_gate_epi")
    a(f"s_mov_b32 s42, {hex(LOG2E)}")
    for i in range(16): a(f"v_mul_f32 v{16+i}, s42, v{16+i}")
    for i in range(16): a(f"v_exp_f32 v{16+i}, -v{16+i}")
    for i in range(16): a(f"v_add_f32 v{16+i}, 1.0, v{16+i}")
    for i in range(16): a(f"v_rcp_f32 v{16+i}, v{16+i}")
    a("v_lshrrev_b32 v13, 5, v0")
    a("v_lshlrev_b32 v13, 6, v13")
    a("s_lshl_b32 s44, s43, 7")
    a(f"s_add_u32 s44, s44, {WS_G}")
    a("v_and_b32 v14, 31, v0")
    a("v_cmp_eq_u32 vcc, 0, v14")
    a("s_and_saveexec_b64 s[46:47], vcc")
    for q in range(4):
        a(f"buffer_store_dwordx4 {v(16+4*q,4)}, v13, s[8:11], s44 offen offset:{16*q}{SC1}")
    a("s_mov_b64 exec, -1")
    a.label("p0_kv_arrive")
    a("s_cmp_eq_u32 s15, 0")
    a("s_cbranch_scc1 p0_kv_real")
    a("s_mov_b32 s15, 0")
    a("s_branch p0_kv_setup")
    a.label("p0_kv_real")
    pfA.stamp(10)
    a("s_mov_b32 s16, 1")
    a("s_branch p0_kv_b0")
    a.label("p0_kv_none")
    a("s_mov_b32 s16, 0")
    a.label("p0_kv_b0")
    a("s_setprio 0")
    if "wqearly" in X:
        a("s_cmp_eq_u32 s16, 0")
        a("s_cbranch_scc1 p0_kv_b0w")
        a(f"s_cmp_eq_u32 s{J2}, 2")
        a("s_cbranch_scc1 p0_kv_b0g")
        a("s_waitcnt vmcnt(2)")
        a("s_branch p0_kv_b0x")
        a.label("p0_kv_b0g")
        a("s_waitcnt vmcnt(4)")
        a("s_branch p0_kv_b0x")
        a.label("p0_kv_b0w")
        a("s_waitcnt vmcnt(0)")
        a.label("p0_kv_b0x")
    a("s_waitcnt lgkmcnt(0)")
    a("s_barrier")
    pfA.stamp(3)
    a("s_branch p0_b1")
    a.label("p0_bgw")
    a(f"s_cmp_eq_u32 s{WV}, 8")
    a("s_cbranch_scc0 p0_t9")
    srd(a, 48, S_X, XBYTES)
    a("s_and_b32 s3, s2, 7")
    a(f"s_mul_i32 s3, s3, {256*896}")
    a("s_lshr_b32 s46, s2, 3")
    a("s_mul_i32 s46, s46, 7168")
    a("s_add_u32 s3, s3, s46")
    a("v_lshlrev_b32 v50, 7, v0")
    a("s_mov_b32 exec_hi, 0xffffff")
    a("buffer_load_dword v52, v50, s[48:51], s3 offen")
    a("s_mov_b64 exec, -1")
    a("s_branch p0_t_done")
    a.label("p0_t9")
    a(f"s_cmp_eq_u32 s{WV}, 9")
    a("s_cbranch_scc0 p0_t10")
    touch_matrix(a, S_WQ, 52, 50)
    a("s_branch p0_t_done")
    a.label("p0_t10")
    a(f"s_cmp_eq_u32 s{WV}, 10")
    a("s_cbranch_scc0 p0_t_done")
    a("s_lshr_b32 s3, s2, 3")
    a(f"s_mul_i32 s3, s3, {7*128}")
    a("v_lshlrev_b32 v50, 7, v0")
    a("s_mov_b64 exec, 0x7f")
    srd(a, 48, S_WK, WKBYTES)
    a("buffer_load_dword v52, v50, s[48:51], s3 offen")
    srd(a, 48, S_WV, WKBYTES)
    a("buffer_load_dword v53, v50, s[48:51], s3 offen")
    a("s_mov_b64 exec, -1")
    a.label("p0_t_done")
    a(f"s_cmp_eq_u32 s{WV}, 11")
    a("s_cbranch_scc0 p0_nononce")
    a("s_cmp_eq_u32 s2, 0")
    a("s_cbranch_scc0 p0_nononce")
    srd(a, 48, S_DBG, 256)
    a("v_mov_b32 v7, 0")
    a("s_memrealtime s[60:61]")
    a("s_waitcnt lgkmcnt(0)")
    a("s_and_b32 s60, s60, 0xfffffffc")
    a("s_or_b32 s60, s60, 1")
    a("v_mov_b32 v6, s60")
    a("s_mov_b64 exec, 1")
    a(f"buffer_store_dword v6, v7, s[48:51], 0 offen offset:{D_NONCE}{SC1}")
    a("s_mov_b64 exec, -1")
    a.label("p0_nononce")
    a(f"s_cmp_eq_u32 s{J2}, 2")
    a("s_cbranch_scc0 p0_wkv_done")
    a(f"s_cmp_eq_u32 s{WV}, 8")
    a("s_cbranch_scc0 p0_wkv_done")
    srd(a, TR, S_GW, 896)
    a("v_lshlrev_b32 v3, 1, v0")
    for i in range(7):
        a(f"buffer_load_ushort v{10+i}, v3, s[{TR}:{TR+3}], 0 offen offset:{i*128}")
    a("v_lshlrev_b32 v4, 3, v0")
    a(f"v_add_u32 v4, {L_WKV}, v4")
    a("s_waitcnt vmcnt(0)")
    for i in range(7):
        a(f"v_lshl_or_b32 v{20+2*i}, v{10+i}, 16, v{10+i}")
        a(f"v_mov_b32 v{21+2*i}, v{20+2*i}")
        a(f"ds_write_b64 v4, {v(20+2*i,2)} offset:{i*512}")
    a.label("p0_wkv_done")
    a(f"s_lshl_b32 s37, s{J2}, 1")
    a(f"s_and_b32 s3, s{BW}, 1")
    a("s_add_u32 s37, s37, s3")
    a("v_and_b32 v4, 31, v0")
    a("s_lshl_b32 s3, s37, 6")
    a("v_lshl_add_u32 v4, v4, 1, s3")
    srd(a, 40, S_LRE, 896); a("buffer_load_ushort v8, v4, s[40:43], 0 offen")
    srd(a, 44, S_LIM, 896); a("buffer_load_ushort v9, v4, s[44:47], 0 offen")
    srd(a, 52, S_LDT, 896); a("buffer_load_ushort v10, v4, s[52:55], 0 offen")
    a("s_barrier")
    a("s_waitcnt vmcnt(3) lgkmcnt(0)")
    lds_arrive(a, C_XR, 4, 5)
    if "wqearly" not in X:
        srd(a, TR, S_WQ, WBYTES)
        a("v_lshrrev_b32 v3, 3, v0")
        a("v_mul_u32_u24 v3, 896, v3")
        a("v_and_b32 v4, 7, v0")
        a("v_lshl_add_u32 v3, v4, 4, v3")
        a(f"s_mul_i32 s32, s{BW}, {112*896}")
        a(f"s_mul_i32 s33, s{J2}, 112")
        a("s_add_u32 s32, s32, s33")
        a(f"s_mul_i32 s34, s{BW}, 14336")
        a(f"s_add_u32 s34, s34, {L_WQ}")
        a("s_mov_b32 m0, s34")
        dma_loop(a, "p0_qdma", 3, 14, 7168, 1024)
    a(f"s_cmp_gt_u32 s{WV}, 9")
    a("s_cbranch_scc1 p0_nob")
    a(f"s_cmp_eq_u32 s{WV}, 8")
    a(f"s_cselect_b32 s56, s{S_BRE}, s{S_BIM}")
    a(f"s_cselect_b32 s57, s{S_BRE+1}, s{S_BIM+1}")
    touch_matrix(a, 56, 52, 50)
    a("s_mov_b32 s17, 1")
    a("s_waitcnt vmcnt(2)" if "wqearly" in X else "s_waitcnt vmcnt(16)")
    a("s_branch p0_nob2")
    a.label("p0_nob")
    a("s_mov_b32 s17, 0")
    a("s_waitcnt vmcnt(0)" if "wqearly" in X else "s_waitcnt vmcnt(14)")
    a.label("p0_nob2")
    a(f"v_mov_b32 v4, {L_CNT}")
    lds_wait(a, C_XR, 8, 4, 5, "p0_xr2")
    xfrag_addr(a, 6, 0, 4)
    a(f"s_lshr_b32 s38, s{BW}, 1")
    a("s_lshl_b32 s3, s38, 11")
    a("v_add_u32 v6, s3, v6")
    a("v_xor_b32 v7, 32, v6")
    for j in range(28):
        a(f"ds_read_b128 {v(56+4*j,4)}, v{6 + (j&1)} offset:{(j>>1)*4096}")
        if j in (11, 21): a("s_waitcnt lgkmcnt(2)")
    a("v_lshlrev_b32 v8, 16, v8")
    a("v_lshlrev_b32 v9, 16, v9")
    a("v_lshlrev_b32 v10, 16, v10")
    a(f"v_mul_f32 v10, {hex(LOG2E)}, v10")
    a("v_exp_f32 v10, v10")
    a("s_nop 0")
    a("v_cvt_pk_bf16_f32 v10, v10, v10")
    a("v_lshlrev_b32 v10, 16, v10")
    a("v_mul_f32 v11, v10, v8")
    a("v_mul_f32 v12, v10, v9")
    a(f"v_mul_f32 v11, {hex(LOG2E)}, v11")
    a(f"v_mul_f32 v12, {hex(INV2PI)}, v12")
    a("v_exp_f32 v13, v11")
    a("v_fract_f32 v14, v12")
    a("s_nop 0")
    a("v_cos_f32 v2, v14")
    a("v_sin_f32 v3, v14")
    a("s_nop 0")
    a("v_mul_f32 v2, v2, v13")
    a("v_mul_f32 v3, v3, v13")
    a("v_add_f32 v13, -1.0, v2")
    a("v_mul_f32 v14, v8, v8")
    a("v_fma_f32 v14, v9, v9, v14")
    a("v_rcp_f32 v14, v14")
    a("v_mul_f32 v15, v13, v8")
    a("v_fma_f32 v15, v3, v9, v15")
    a("v_mul_f32 v16, v3, v8")
    a("v_fma_f32 v16, -v13, v9, v16")
    a("v_mul_f32 v4, v15, v14")
    a("v_mul_f32 v5, v16, v14")
    a("s_cmp_eq_u32 s17, 0")
    a("s_cbranch_scc1 p0_bgw0")
    a("s_waitcnt vmcnt(2) lgkmcnt(0)")
    a("s_branch p0_bgw1")
    a.label("p0_bgw0")
    a("s_waitcnt vmcnt(0) lgkmcnt(0)")
    a.label("p0_bgw1")
    a("s_barrier")
    a.label("p0_b1")
    a("s_waitcnt lgkmcnt(0)")
    if PROF:
        a(f"s_cmp_ge_u32 s{WV}, 8")
        a("s_cbranch_scc1 p0_b1_bgst")
        pfA.stamp(9)
        a("s_branch p0_b1_go")
        a.label("p0_b1_bgst")
        BgProf(a).stamp(4)
        a.label("p0_b1_go")
    a("s_barrier")
    a(f"s_cmp_ge_u32 s{WV}, 8")
    a("s_cbranch_scc1 p1_bg")
    a(f"s_cmp_lt_u32 s{WV}, 4")
    a("s_cbranch_scc1 p1_noarr")
    a("s_cmp_eq_u32 s16, 0")
    a("s_cbranch_scc1 p1_noarr")
    a(f"v_mov_b32 v14, {L_CNT}")
    a("v_mov_b32 v15, 1")
    a("s_waitcnt vmcnt(0)")
    pfA.stamp(11)
    a("s_mov_b64 exec, 1")
    a(f"s_or_b32 s3, s{RB}, s{J2}")
    a(f"s_cmp_eq_u32 s{WV}, 4")
    a("s_cselect_b32 s3, s3, 1")
    a("s_cmp_eq_u32 s3, 0")
    a("s_cbranch_scc0 p1_nok0")
    srd(a, 48, S_DBG, 256)
    a("v_mov_b32 v12, 1")
    a(f"v_mov_b32 v13, {D_K0}")
    a(f"buffer_store_dword v12, v13, s[48:51], 0 offen{SC1}")
    a.label("p1_nok0")
    a(f"ds_add_rtn_u32 v15, v14, v15 offset:{C_KVA}")
    a("s_waitcnt lgkmcnt(0)")
    a("v_readfirstlane_b32 s3, v15")
    a("s_cmp_eq_u32 s3, 1")
    a("s_cbranch_scc0 p1_arrdone")
    srd(a, 48, S_DBG, 256)
    a("v_mov_b32 v14, 1")
    a(f"s_cmp_eq_u32 s{J2}, 2")
    a(f"s_cselect_b32 s3, {D_GCNT}, {D_CNT}")
    a("v_mov_b32 v15, s3")
    a("buffer_atomic_add v14, v15, s[48:51], 0 offen sc0 sc1")
    if "kvfirst" in X:
        a(f"v_mov_b32 v12, {L_CNT}")
        a("v_mov_b32 v13, 1")
        a(f"ds_add_u32 v12, v13 offset:{C_KVI}")
    a("s_waitcnt vmcnt(0)")
    a("v_readfirstlane_b32 s3, v14")
    a(f"s_cmp_eq_u32 s{J2}, 2")
    a("s_cselect_b32 s46, 31, 63")
    a(f"s_mov_b32 s47, {D_GO}")
    a(f"s_cselect_b32 s47, {D_GOG}, s47")
    a("s_cmp_eq_u32 s3, s46")
    a("s_cbranch_scc0 p1_arrdone")
    a("v_mov_b32 v14, 1")
    a("v_mov_b32 v15, s47")
    a(f"buffer_store_dword v14, v15, s[48:51], 0 offen{SC1}")
    a.label("p1_arrdone")
    a("s_mov_b64 exec, -1")
    pfA.stamp(12)
    a.label("p1_noarr")
    if PROF: a("v_mov_b32 v0, v167")
    pf = Prof(a, 0)
    pf.stamp(4)
    gen_attention(a, pf)
    pf.flush(2)
    a(f"s_branch {END}")
    a.label("p1_bg")
    a(f"s_setprio {os.environ.get('BP', '3')}")
    gen_background(a, BgProf(a))
    a.label(END)
    a("s_endpgm")
    return name

class BgProf:
    def __init__(self, a): self.a = a; self.T = [54, 55]
    def stamp(self, slot):
        if not PROF or "noprofb" in X: return
        if "onlyb" in os.environ and str(slot) not in os.environ["onlyb"].split(","): return
        a = self.a
        a("s_memrealtime s[60:61]")
        a("s_lshl_b32 s62, s2, 4")
        a(f"s_add_u32 s62, s62, s{WV}")
        a("s_lshl_b32 s62, s62, 8")
        a(f"s_add_u32 s62, s62, {WS_PROF + 4*slot}")
        a("s_waitcnt vmcnt(0) lgkmcnt(0)")
        a("s_mov_b64 exec, 1")
        t0, t1 = self.T
        a(f"v_mov_b32 v{t0}, s60")
        a(f"v_mov_b32 v{t1}, 0")
        a(f"buffer_store_dword v{t0}, v{t1}, s[{WSR}:{WSR+3}], s62 offen")
        a("s_mov_b64 exec, -1")
        a("s_waitcnt vmcnt(0)")
    def flush(self): pass


DOC = """;
; ---------------------------------------------------------------------------------------------------------
; One persistent launch, 256 workgroups (one per CU) x 12 waves.  Workgroup = (rb: 64 rows of x, j2: head pair).
;                 exact carry by Horner), y = 2 Re(C h), then out = g * (O wo) + (1-g) * (y + x*Dskip).
;   workgroup fails, att_fallback recomputes the true row maxima over all keys (3-term bf16 split) and redoes the pass.
; Hand-offs between workgroups: write-through (sc1) payload stores, vmcnt(0), then a flag / counter; readers use sc1 loads.
; ---------------------------------------------------------------------------------------------------------
"""

def build():
    a = Asm()
    name = gen_fused(a)
    text = a.text()
    probs = check_hazards(text)
    ref = open("gated_mix__grouped_kv_mqa__ssm_conv_s5__prompt.s.ref").read().split("\n")
    pre = []
    for ln in ref:
        if not ln.startswith(";"): break
        if "Override launch" in ln or "grid=ceil" in ln or "@launch" in ln: continue
        pre.append(ln)
    head = "\n".join(pre) + "\n"
    head += f"; @launch grid=(256,1,1) block=(768,1,1) lds={LDS_TOTAL}\n"
    head += DOC
    out = head + '.amdgcn_target "amdgcn-amd-amdhsa--gfx950"\n.text\n' + text
    out += f""".section .rodata,"a"
.p2align 6
.amdhsa_kernel {name}
  .amdhsa_next_free_vgpr 168
  .amdhsa_next_free_sgpr 102
  .amdhsa_accum_offset 168
  .amdhsa_group_segment_fixed_size 0
  .amdhsa_kernarg_size 144
  .amdhsa_user_sgpr_count 2
  .amdhsa_user_sgpr_kernarg_segment_ptr 1
  .amdhsa_system_sgpr_workgroup_id_x 1
.end_amdhsa_kernel
"""
    return out, probs

if __name__ == "__main__":
    out, probs = build()
    open(sys.argv[1], "w").write(out)
    print("wrote", sys.argv[1], "hazards:", len(probs))
```

```python
import sys, os, struct, math
from asmlib import Asm, v, s, check_hazards

NAME = "gated_mix__grouped_kv_mqa__ssm_conv_s5__prompt"
X = set(os.environ.get('XF', '').split(','))
PROF = "prof" in X
def f2u(x): return struct.unpack("<I", struct.pack("<f", x))[0]
QSCALE = f2u(math.log2(math.e) / math.sqrt(28.0))
LOG2E = f2u(math.log2(math.e))
INV2PI = f2u(1.0 / (2.0 * math.pi))
MF = "v_mfma_f32_32x32x16_bf16"
SC1 = " sc1"
POLLSLEEP = int(os.environ.get('PS', '1'))

WS_KV = 0x000000
WS_G  = 0x040000
WS_FL = 0x042000
FL_H  = WS_FL
FL_O  = WS_FL + 0x1000
WS_E  = 0x048000
D_CNT, D_GCNT, D_GO, D_BAD, D_K0, D_NONCE, D_GOG = 0, 64, 128, 132, 136, 140, 144
WS_OF = 0x080000
WS_HF = 0x280000
WS_PROF = 0x800000
WS_SIZE = 0x1000000
XBYTES = 2048 * 448 * 2
WBYTES = 448 * 448 * 2
WKBYTES = 448 * 28 * 2
OUTBYTES = 2048 * 448 * 4

S_X, S_WQ, S_WK, S_WV, S_WO = 64, 66, 68, 70, 72
S_LRE, S_LIM = 76, 78
S_BRE, S_BIM, S_CRE, S_CIM, S_LDT, S_DSK, S_GW, S_OUT = 80, 82, 84, 86, 88, 90, 92, 94
S_DBG, S_WS = 96, 98
RB, J2, WV, BW = 20, 21, 22, 23
WSR = 24
TR = 28
NONCE = 19
SPIN = 18

L_X = 0; L_WQ = 57344; L_WKV = 114688; L_GW = 143360
L_QX = 147456
L_CNT = 163584
C_ATT, C_BG, C_NONCE, C_BAD, C_UDONE, C_HCNT, C_OCNT, C_XR, C_KVR, C_KVA, C_TRD, C_LEND, C_BL, C_KVI, C_YD, C_WOL = 0, 4, 8, 12, 16, 20, 24, 28, 32, 40, 44, 48, 52, 56, 60, 80
B_EX = 159744; B_HT = 90112
B_HT2 = 69632
L_C = 0
L_RED = 0
L_WO = 0
A_OP = 90112; A_LP = 155648
LDS_TOTAL = 163840

def srd(a, dst, src, nbytes):
    a(f"s_mov_b32 s{dst}, s{src}")
    a(f"s_mov_b32 s{dst+1}, s{src+1}")
    a(f"s_mov_b32 s{dst+2}, {hex(nbytes)}")
    a(f"s_mov_b32 s{dst+3}, 0x00020000")

class Prof:
    def __init__(self, a, vreg): self.a = a; self.v = vreg
    def stamp(self, slot):
        if not PROF or "noprofa" in X: return
        a = self.a
        a("s_memrealtime s[60:61]")
        a("s_memtime s[62:63]")
        a("s_waitcnt lgkmcnt(0)")
        a(f"v_writelane_b32 v{self.v}, s60, {slot}")
        a(f"v_writelane_b32 v{self.v}, s62, {slot+32}")
    def flush(self, vt):
        if not PROF: return
        a = self.a
        a("s_lshl_b32 s60, s2, 4")
        a(f"s_add_u32 s60, s60, s{WV}")
        a("s_lshl_b32 s60, s60, 8")
        a(f"s_add_u32 s60, s60, {WS_PROF}")
        a("s_mov_b64 exec, -1")
        a(f"v_mbcnt_lo_u32_b32 v{vt}, -1, 0")
        a(f"v_mbcnt_hi_u32_b32 v{vt}, -1, v{vt}")
        a(f"v_lshlrev_b32 v{vt}, 2, v{vt}")
        a(f"buffer_store_dword v{self.v}, v{vt}, s[{WSR}:{WSR+3}], s60 offen")
        a("s_waitcnt vmcnt(0)")

def xtile_lane_off(a, vd, vlane, vt0, vt1):
    a(f"v_lshrrev_b32 v{vt0}, 4, v{vlane}")
    a(f"v_and_b32 v{vt1}, 1, v{vt0}")
    a(f"v_lshlrev_b32 v{vt1}, 4, v{vt1}")
    a(f"v_lshrrev_b32 v{vd}, 5, v{vlane}")
    a(f"v_lshl_add_u32 v{vt1}, v{vd}, 2, v{vt1}")
    a(f"v_bfe_u32 v{vd}, v{vlane}, 2, 2")
    a(f"v_add_u32 v{vt1}, v{vt1}, v{vd}")
    a(f"v_mul_u32_u24 v{vt1}, 896, v{vt1}")
    a(f"v_and_b32 v{vd}, 3, v{vlane}")
    a(f"v_xor_b32 v{vd}, v{vd}, v{vt0}")
    a(f"v_lshl_add_u32 v{vd}, v{vd}, 4, v{vt1}")

def plain_lane_off(a, vd, vlane, vt0):
    a(f"v_lshrrev_b32 v{vt0}, 4, v{vlane}")
    a(f"v_and_b32 v{vd}, 3, v{vlane}")
    a(f"v_xor_b32 v{vd}, v{vd}, v{vt0}")
    a(f"v_lshlrev_b32 v{vd}, 4, v{vd}")
    a(f"v_lshrrev_b32 v{vt0}, 2, v{vlane}")
    a(f"v_mul_u32_u24 v{vt0}, 896, v{vt0}")
    a(f"v_add_u32 v{vd}, v{vd}, v{vt0}")

def xfrag_addr(a, vd, vlane, vt0):
    a(f"v_bfe_u32 v{vt0}, v{vlane}, 2, 2")
    a(f"v_lshrrev_b32 v{vd}, 5, v{vlane}")
    a(f"v_xor_b32 v{vt0}, v{vt0}, v{vd}")
    a(f"v_lshlrev_b32 v{vt0}, 4, v{vt0}")
    a(f"v_and_b32 v{vd}, 31, v{vlane}")
    a(f"v_lshl_add_u32 v{vd}, v{vd}, 6, v{vt0}")

def tr_rowcol(a, vrow, vcol, vlane, vt):
    a(f"v_lshrrev_b32 v{vrow}, 5, v{vlane}")
    a(f"v_lshlrev_b32 v{vrow}, 3, v{vrow}")
    a(f"v_bfe_u32 v{vt}, v{vlane}, 2, 2")
    a(f"v_add_u32 v{vrow}, v{vrow}, v{vt}")
    a(f"v_and_b32 v{vcol}, 16, v{vlane}")
    a(f"v_and_b32 v{vt}, 3, v{vlane}")
    a(f"v_lshl_add_u32 v{vcol}, v{vt}, 2, v{vcol}")

def proj_loop(a, swap, acc, xe, xo, we, wo_, vxe, vxo, vw1, vw2, s_wstep, s_cnt, lab):
    def rd(xr, wr, vx):
        a(f"ds_read_b128 {v(xr,4)}, v{vx}")
        a(f"ds_read_b64_tr_b16 {v(wr,2)}, v{vw1}")
        a(f"ds_read_b64_tr_b16 {v(wr+2,2)}, v{vw2}")
        a(f"v_add_u32 v{vx}, 0x1000, v{vx}")
        a(f"v_add_u32 v{vw1}, s{s_wstep}, v{vw1}")
        a(f"v_add_u32 v{vw2}, s{s_wstep}, v{vw2}")
    def mf(x, w):
        A, B = (x, w) if swap else (w, x)
        a(f"{MF} {v(acc,16)}, {v(A,4)}, {v(B,4)}, {v(acc,16)}")
    rd(xe, we, vxe); rd(xo, wo_, vxo)
    a(f"s_mov_b32 s{s_cnt}, 14")
    a.label(lab)
    a("s_waitcnt lgkmcnt(3)")
    mf(xe, we)
    rd(xe, we, vxe)
    a("s_waitcnt lgkmcnt(3)")
    mf(xo, wo_)
    rd(xo, wo_, vxo)
    a(f"s_sub_u32 s{s_cnt}, s{s_cnt}, 1")
    a(f"s_cmp_lg_u32 s{s_cnt}, 0")
    a(f"s_cbranch_scc1 {lab}")
    a("s_waitcnt lgkmcnt(0)")

def sw_barrier(a, coff, s_tgt, n, vaddr, vtmp, lab):
    a(f"s_add_u32 s{s_tgt}, s{s_tgt}, {n}")
    a(f"v_mov_b32 v{vtmp}, 1")
    a("s_waitcnt lgkmcnt(0)")
    a("s_mov_b64 exec, 1")
    a(f"ds_add_u32 v{vaddr}, v{vtmp} offset:{coff}")
    a("s_mov_b64 exec, -1")
    a.label(lab)
    a(f"ds_read_b32 v{vtmp}, v{vaddr} offset:{coff}")
    a("s_waitcnt lgkmcnt(0)")
    a(f"v_readfirstlane_b32 s3, v{vtmp}")
    a(f"s_cmp_ge_u32 s3, s{s_tgt}")
    a(f"s_cbranch_scc1 {lab}_ok")
    a("s_sleep 1")
    a(f"s_sub_u32 s{SPIN}, s{SPIN}, 1")
    a(f"s_cbranch_scc0 {lab}")
    a(f"s_mov_b32 s{SPIN}, 0")
    a.label(lab + "_ok")

def flag_store(a, soff_reg, vt0, vt1, val=None):
    a("s_mov_b64 exec, 1")
    a(f"v_mov_b32 v{vt0}, s{val if val is not None else NONCE}")
    a(f"v_mov_b32 v{vt1}, 0")
    a(f"buffer_store_dword v{vt0}, v{vt1}, s[{WSR}:{WSR+3}], s{soff_reg} offen{SC1}")
    a("s_mov_b64 exec, -1")

def arrive_flag(a, coff, n, soff_reg, vt0, vt1, lab):
    a(f"v_mov_b32 v{vt0}, {L_CNT}")
    a(f"v_mov_b32 v{vt1}, 1")
    a("s_waitcnt vmcnt(0)")
    a("s_mov_b64 exec, 1")
    a(f"ds_add_rtn_u32 v{vt1}, v{vt0}, v{vt1} offset:{coff}")
    a("s_waitcnt lgkmcnt(0)")
    a(f"v_readfirstlane_b32 s60, v{vt1}")
    a("s_mov_b64 exec, -1")
    a(f"s_cmp_eq_u32 s60, {n-1}")
    a(f"s_cbranch_scc0 {lab}")
    flag_store(a, soff_reg, vt0, vt1)
    a.label(lab)

def poll(a, lab, vdst, voff, soff_reg, mask_pair, sleep=None):
    sleep = POLLSLEEP if sleep is None else sleep
    a.label(lab)
    a(f"buffer_load_dword v{vdst}, v{voff}, s[{WSR}:{WSR+3}], s{soff_reg} offen{SC1}")
    a("s_waitcnt vmcnt(0)")
    a(f"v_cmp_ne_u32 vcc, s{NONCE}, v{vdst}")
    a(f"s_and_b64 vcc, vcc, s[{mask_pair}:{mask_pair+1}]")
    a(f"s_cbranch_vccz {lab}_ok")
    a(f"s_sleep {sleep}")
    a(f"s_sub_u32 s{SPIN}, s{SPIN}, 1")
    a(f"s_cbranch_scc0 {lab}")
    a(f"s_mov_b32 s{SPIN}, 0")
    a.label(lab + "_ok")

def cfma(a, hr, hi, lr, li, ur, ui, tr, ti):
    a(f"v_fma_f32 v{tr}, -v{li}, v{hi}, v{ur}")
    a(f"v_fma_f32 v{ti}, v{li}, v{hr}, v{ui}")
    a(f"v_fma_f32 v{hr}, v{lr}, v{hr}, v{tr}")
    a(f"v_fma_f32 v{hi}, v{lr}, v{hi}, v{ti}")

L_JUNK = 161792
def touch_matrix(a, sptr, vdst, vt, sr=48):
    srd(a, sr, sptr, WBYTES)
    a("s_lshr_b32 s3, s2, 3")
    a(f"s_mul_i32 s3, s3, {98*128}")
    a(f"v_lshlrev_b32 v{vt}, 7, v0")
    a(f"s_mov_b32 m0, {L_JUNK}")
    a("s_nop 0")
    a(f"buffer_load_dword v{vt}, s[{sr}:{sr+3}], s3 offen lds")
    a("s_add_u32 s3, s3, 8192")
    a("s_mov_b32 exec_hi, 3")
    a(f"buffer_load_dword v{vt}, s[{sr}:{sr+3}], s3 offen lds")
    a("s_mov_b64 exec, -1")

AQ, AO, AS, AK, AV, APB = 8, 40, [104, 120], [136, 144], [152, 160], 4

def att_unit(a, u, side):
    up = u - 1; un = u + 1
    cur = AS[u & 1]; prv = AS[(u + 1) & 1]
    Vp = AV[(up >> 2) & 1]; Op = AO + 16 * (up & 3)
    Kn = AK[(un >> 2) & 1]; Qn = AQ + 8 * (un & 3)
    side = list(side)
    def E(lo, hi):
        for j in range(lo, hi):
            a(f"v_exp_f32 v{cur+j}, v{cur+j}")
            if side:
                x = side.pop(0)
                if x: a(x)
    while side and isinstance(side[0], tuple):
        a(side.pop(0)[1])
    a(f"{MF} {v(Op,16)}, {v(Vp,4)}, {v(prv,4)}, {v(Op,16)}")
    E(0, 4)
    a(f"v_cvt_pk_bf16_f32 v{APB+2}, v{prv+12}, v{prv+13}")
    a(f"v_cvt_pk_bf16_f32 v{APB+3}, v{prv+14}, v{prv+15}")
    a(f"{MF} {v(prv,16)}, {v(Kn,4)}, {v(Qn,4)}, 0")
    E(4, 8)
    a(f"v_cvt_pk_bf16_f32 v{cur}, v{cur}, v{cur+1}")
    a(f"v_cvt_pk_bf16_f32 v{cur+1}, v{cur+2}, v{cur+3}")
    a(f"{MF} {v(prv,16)}, {v(Kn+4,4)}, {v(Qn+4,4)}, {v(prv,16)}")
    E(8, 12)
    a(f"v_cvt_pk_bf16_f32 v{cur+2}, v{cur+4}, v{cur+5}")
    a(f"v_cvt_pk_bf16_f32 v{cur+3}, v{cur+6}, v{cur+7}")
    a(f"{MF} {v(Op,16)}, {v(Vp+4,4)}, {v(APB,4)}, {v(Op,16)}")
    E(12, 16)
    a(f"v_cvt_pk_bf16_f32 v{APB}, v{cur+8}, v{cur+9}")
    a(f"v_cvt_pk_bf16_f32 v{APB+1}, v{cur+10}, v{cur+11}")
    assert not side, side

L_SEL = 162560
L_SH = 162048
LMAX = f2u(2.0 ** 90) if "forcefb" not in X else f2u(2.0 ** -20)
VMAX = f2u(2.0 ** 20)

def gen_attention(a, pf):
    P = "att"
    KR = TR
    a(f"v_add_u32 v2, {L_QX}, v1")
    for g in range(4):
        a(f"ds_read_b128 {v(AQ+8*g,4)}, v2 offset:{g*2048}")
        a(f"ds_read_b128 {v(AQ+8*g+4,4)}, v2 offset:{g*2048+1024}")
    a(f"s_add_u32 s{KR}, s{WSR}, {WS_KV}")
    a(f"s_addc_u32 s{KR+1}, s{WSR+1}, 0")
    a(f"s_mov_b32 s{KR+3}, 0x00020000")
    a("s_mov_b32 s44, 0")
    a("s_mov_b32 s51, 0")
    a(f"s_cmp_lt_u32 s{WV}, 4")
    a("s_cselect_b32 s53, 1, -1")
    a(f"s_cmp_eq_u32 s{WV}, 7")
    a(f"s_cbranch_scc0 {P}_nosel")
    a("v_lshrrev_b32 v104, 4, v1")
    a("v_and_b32 v105, 31, v104")
    a("v_lshrrev_b32 v104, 5, v104")
    a("v_lshlrev_b32 v104, 2, v104")
    a("v_sub_u32 v105, v105, v104")
    for j in range(4):
        d0 = (2 * j & 3) + 8 * ((2 * j) >> 2)
        a(f"v_cmp_eq_u32 vcc, {d0}, v105")
        a(f"v_mov_b32 v106, 0x3f80")
        a("s_nop 0")
        a(f"v_cndmask_b32 v{108+j}, 0, v106, vcc")
        a(f"v_cmp_eq_u32 vcc, {d0+1}, v105")
        a(f"v_mov_b32 v106, 0x3f800000")
        a("s_nop 0")
        a(f"v_cndmask_b32 v107, 0, v106, vcc")
        a(f"v_or_b32 v{108+j}, v{108+j}, v107")
    a(f"v_add_u32 v104, {L_SEL}, v1")
    a("ds_write_b128 v104, v[108:111]")
    a.label(P + "_nosel")
    srd(a, 56, S_DBG, 256)
    def phaseA():
        a(f"s_cmp_eq_u32 s{WV}, 0")
        a(f"s_cbranch_scc0 {P}_nopollA")
        a(f"v_mov_b32 v2, {D_K0}")
        a.label(P + "_pollA")
        a(f"buffer_load_dword v104, v2, s[56:59], 0 offen{SC1}")
        a("s_waitcnt vmcnt(0)")
        a("v_readfirstlane_b32 s3, v104")
        a("s_cmp_lg_u32 s3, 0")
        a(f"s_cbranch_scc1 {P}_nopollA")
        a(f"s_sleep {POLLSLEEP}")
        a(f"s_sub_u32 s{SPIN}, s{SPIN}, 1")
        a(f"s_cbranch_scc0 {P}_pollA")
        a(f"s_mov_b32 s{SPIN}, 0")
        a.label(P + "_nopollA")
        a(f"v_mov_b32 v3, {L_CNT}")
        sw_barrier(a, C_ATT, 44, 8, 3, 2, P + "_ba")
    def shiftblk():
        a(f"s_mov_b32 s{KR+2}, 0x40000")
        a(f"s_cmp_ge_u32 s{WV}, 4")
        a(f"s_cbranch_scc1 {P}_shhi" if "gomerge" in X else f"s_cbranch_scc1 {P}_shwait")
        a(f"buffer_load_dwordx4 {v(AS[1],4)}, v1, s[{KR}:{KR+3}], 0 offen{SC1}")
        a(f"buffer_load_dwordx4 {v(AS[1]+4,4)}, v1, s[{KR}:{KR+3}], 0 offen offset:1024{SC1}")
        a(f"s_lshl_b32 s3, s{WV}, 11")
        a(f"s_add_u32 s3, s3, {L_QX}")
        a("v_add_u32 v2, s3, v1")
        a(f"ds_read_b128 {v(AO,4)}, v2")
        a(f"ds_read_b128 {v(AO+4,4)}, v2 offset:1024")
        a("s_waitcnt vmcnt(0) lgkmcnt(0)")
        o = AO + 16
        a(f"{MF} {v(o,16)}, {v(AS[1],4)}, {v(AO,4)}, 0")
        a(f"{MF} {v(o,16)}, {v(AS[1]+4,4)}, {v(AO+4,4)}, {v(o,16)}")
        a(f"s_lshl_b32 s3, s{WV}, 7")
        a(f"s_add_u32 s3, s3, {L_SH}")
        a("v_lshrrev_b32 v3, 2, v1")
        a("v_and_b32 v3, 127, v3")
        a("v_add_u32 v3, s3, v3")
        a("s_nop 7")
        a(f"v_max3_f32 v2, v{o}, v{o+1}, v{o+2}")
        for j in range(3, 15, 2):
            a(f"v_max3_f32 v2, v2, v{o+j}, v{o+j+1}")
        a(f"v_max_f32 v2, v2, v{o+15}")
        a(f"v_mov_b32 v{AO}, v2")
        a("s_nop 1")
        a(f"v_permlane32_swap_b32 v2, v{AO}")
        a(f"v_max_f32 v2, v2, v{AO}")
        a("v_cvt_pk_bf16_f32 v2, -v2, 0")
        a("s_mov_b32 exec_hi, 0")
        a("ds_write_b32 v3, v2")
        a("s_mov_b64 exec, -1")
        if "gomerge" in X:
            a(f"s_branch {P}_shwait")
            a.label(P + "_shhi")
            a(f"s_cmp_eq_u32 s{WV}, 7")
            a(f"s_cbranch_scc0 {P}_shwait")
            a(f"v_mov_b32 v2, {D_GO}")
            a.label(P + "_pollm")
            a(f"buffer_load_dwordx2 v[104:105], v2, s[56:59], 0 offen{SC1}")
            a("s_waitcnt vmcnt(0)")
            a("v_readfirstlane_b32 s3, v104")
            a("s_cmp_lg_u32 s3, 0")
            a(f"s_cbranch_scc1 {P}_pollmok")
            a(f"s_sleep {POLLSLEEP}")
            a(f"s_sub_u32 s{SPIN}, s{SPIN}, 1")
            a(f"s_cbranch_scc0 {P}_pollm")
            a(f"s_mov_b32 s{SPIN}, 0")
            a.label(P + "_pollmok")
            a(f"v_mov_b32 v3, {L_CNT}")
            a("s_mov_b64 exec, 1")
            a(f"ds_add_u32 v3, v105 offset:{C_BAD}")
            a("s_mov_b64 exec, -1")
        a.label(P + "_shwait")
        a(f"v_mov_b32 v3, {L_CNT}")
        sw_barrier(a, C_ATT, 44, 8, 3, 2, P + "_bs")
        a("v_lshrrev_b32 v3, 2, v1")
        a("v_and_b32 v3, 127, v3")
        a(f"v_add_u32 v3, {L_SH}, v3")
        for g in range(4): a(f"ds_read_b32 v{AO+g}, v3 offset:{g*128}")
        a("s_waitcnt lgkmcnt(0)")
        a("s_mov_b32 exec_lo, 0")
        for g in range(4): a(f"v_mov_b32 v{AQ+8*g+6}, v{AO+g}")
        a("s_mov_b32 exec_lo, -1")
    def phaseB():
        a(f"s_cmp_eq_u32 s{WV}, 0")
        a(f"s_cbranch_scc0 {P}_nopoll")
        a(f"v_mov_b32 v2, {D_GO}")
        a.label(P + "_poll")
        a(f"buffer_load_dwordx2 v[104:105], v2, s[56:59], 0 offen{SC1}")
        a("s_waitcnt vmcnt(0)")
        a("v_readfirstlane_b32 s3, v104")
        a("s_cmp_lg_u32 s3, 0")
        a(f"s_cbranch_scc1 {P}_pollok")
        a(f"s_sleep {POLLSLEEP}")
        a(f"s_sub_u32 s{SPIN}, s{SPIN}, 1")
        a(f"s_cbranch_scc0 {P}_poll")
        a(f"s_mov_b32 s{SPIN}, 0")
        a.label(P + "_pollok")
        a(f"v_mov_b32 v3, {L_CNT}")
        a("s_mov_b64 exec, 1")
        a(f"ds_add_u32 v3, v105 offset:{C_BAD}")
        a("s_mov_b64 exec, -1")
        a.label(P + "_nopoll")
        a(f"v_mov_b32 v3, {L_CNT}")
        sw_barrier(a, C_ATT, 44, 8, 3, 2, P + "_b0")
        pf.stamp(5)
        a("s_lshr_b32 s52, s2, 3")
        a("s_lshl_b32 s52, s52, 3")
        a(f"s_add_u32 s52, s52, s{WV}")
        a("s_lshl_b32 s52, s52, 10")
    def mainloads():
        a.label(P + "_restart")
        a(f"s_mov_b32 s{KR+2}, 0x40000")
        a(f"s_lshl_b32 s43, s{WV}, 15")
        a(f"buffer_load_dwordx4 {v(AK[0],4)}, v1, s[{KR}:{KR+3}], s43 offen{SC1}")
        a(f"buffer_load_dwordx4 {v(AK[0]+4,4)}, v1, s[{KR}:{KR+3}], s43 offen offset:1024{SC1}")
        a(f"buffer_load_dwordx4 {v(AV[0],4)}, v1, s[{KR}:{KR+3}], s43 offen offset:2048{SC1}")
        a(f"buffer_load_dwordx4 {v(AV[0]+4,4)}, v1, s[{KR}:{KR+3}], s43 offen offset:3072{SC1}")
        a("s_add_u32 s43, s43, 4096")
        a(f"buffer_load_dwordx4 {v(AK[1],4)}, v1, s[{KR}:{KR+3}], s43 offen{SC1}")
        a(f"buffer_load_dwordx4 {v(AK[1]+4,4)}, v1, s[{KR}:{KR+3}], s43 offen offset:1024{SC1}")
        a(f"s_lshl_b32 s3, s{WV}, 9")
        a(f"s_mov_b32 m0, {L_JUNK}")
        a("v_lshlrev_b32 v2, 3, v1")
        a("s_mov_b64 exec, 0xff")
        a(f"buffer_load_dword v2, s[{KR}:{KR+3}], s52 offen{SC1} lds")
        a("s_mov_b64 exec, -1")
        for j in range(4): a(f"v_mov_b32 v{APB+j}, 0")
        for j in range(8): a(f"v_mov_b32 v{AV[1]+j}, 0")
    if "lateshift" in X:
        phaseB(); mainloads()
        a("s_cmp_lg_u32 s51, 0")
        a(f"s_cbranch_scc1 {P}_haveshift")
        shiftblk()
    elif "gomerge" in X:
        phaseA(); shiftblk()
        pf.stamp(5)
        a("s_lshr_b32 s52, s2, 3")
        a("s_lshl_b32 s52, s52, 3")
        a(f"s_add_u32 s52, s52, s{WV}")
        a("s_lshl_b32 s52, s52, 10")
        mainloads()
    else:
        phaseA(); shiftblk(); phaseB(); mainloads()
    a.label(P + "_haveshift")
    for j in (0, 1, 2, 3, 12, 13, 14, 15): a(f"v_mov_b32 v{AS[1]+j}, 0")
    a(f"s_and_b32 s3, s{WV}, 3")
    a("s_lshl_b32 s3, s3, 2")
    a(f"s_add_u32 s3, s3, {L_CNT + 64}")
    a("v_mov_b32 v2, s3")
    for g in range(4):
        a(f"{MF} {v(AO+16*g,16)}, {v(AV[1],4)}, {v(APB,4)}, 0")
    a("s_waitcnt vmcnt(5)")
    a(f"{MF} {v(AS[0],16)}, {v(AK[0],4)}, {v(AQ,4)}, 0")
    a(f"{MF} {v(AS[0],16)}, {v(AK[0]+4,4)}, {v(AQ+4,4)}, {v(AS[0],16)}")
    a("s_mov_b32 s48, 0")
    a("s_setprio 2")
    a("s_nop 7")
    a("s_nop 1")
    pf.stamp(6)
    a(".p2align 3")
    a.label(P + "_loop")
    for u in range(8):
        g = u & 3; par = (u >> 2) & 1
        side = []
        if g == 1:
            side.append(("q0", "s_waitcnt vmcnt(2)"))
            side.append(f"buffer_load_dwordx4 {v(AV[par^1],4)}, v1, s[{KR}:{KR+3}], s43 offen offset:2048{SC1}")
            side.append(f"buffer_load_dwordx4 {v(AV[par^1]+4,4)}, v1, s[{KR}:{KR+3}], s43 offen offset:3072{SC1}")
            side.append("s_add_u32 s43, s43, 4096")
            if par == 0:
                side.append("s_cmp_eq_u32 s48, 3")
                side.append(f"s_cselect_b32 s{KR+2}, 0, s{KR+2}")
        if g == 3:
            side += [None, None, None, "s_waitcnt vmcnt(2)"]
            side.append(f"buffer_load_dwordx4 {v(AK[par],4)}, v1, s[{KR}:{KR+3}], s43 offen{SC1}")
            side.append(f"buffer_load_dwordx4 {v(AK[par]+4,4)}, v1, s[{KR}:{KR+3}], s43 offen offset:1024{SC1}")
            if par == 1:
                side += ["s_add_u32 s48, s48, 1", None, None, None, None, None, None, None, None, "s_cmp_lt_u32 s48, 4"]
        if g == 0 and "nofair" not in X:
            side += ["v_mov_b32 v3, s53", None, "s_mov_b64 exec, 1\nds_add_rtn_u32 v3, v2, v3\ns_mov_b64 exec, -1"]
        if g == 2 and "nofair" not in X:
            lab = f"{P}_fp{u}"
            side += ["s_waitcnt lgkmcnt(0)", "v_readfirstlane_b32 s54, v3", None, "s_mul_i32 s54, s54, s53", "s_cmp_gt_i32 s54, 0",
                     f"s_cbranch_scc1 {lab}a\ns_setprio 2\ns_branch {lab}b\n{lab}a:\ns_setprio 1\n{lab}b:"]
        att_unit(a, u, side)
    a(f"s_cbranch_scc1 {P}_loop")
    prv = AS[1]
    a(f"{MF} {v(AO+48,16)}, {v(AV[1],4)}, {v(prv,4)}, {v(AO+48,16)}")
    a(f"v_cvt_pk_bf16_f32 v{APB+2}, v{prv+12}, v{prv+13}")
    a(f"v_cvt_pk_bf16_f32 v{APB+3}, v{prv+14}, v{prv+15}")
    a("s_nop 1")
    a(f"{MF} {v(AO+48,16)}, {v(AV[1]+4,4)}, {v(APB,4)}, {v(AO+48,16)}")
    pf.stamp(7)
    a("s_setprio 3")
    a("s_cmp_lg_u32 s51, 0")
    a(f"s_cbranch_scc1 {P}_nolend")
    lds_arrive(a, C_LEND, 2, 3)
    a.label(P + "_nolend")
    a(f"v_mov_b32 v3, {L_CNT}")
    a.label(P + "_udone")
    a(f"ds_read2_b32 v[104:105], v3 offset0:{C_NONCE//4} offset1:{C_HCNT//4}")
    a("s_waitcnt lgkmcnt(0)")
    a("v_readfirstlane_b32 s3, v105")
    a(f"v_readfirstlane_b32 s{NONCE}, v104")
    a("s_cmp_ge_u32 s3, 4")
    a(f"s_cbranch_scc1 {P}_udone_ok")
    a(f"s_sub_u32 s{SPIN}, s{SPIN}, 1")
    a(f"s_cbranch_scc0 {P}_udone")
    a(f"s_mov_b32 s{SPIN}, 0")
    a.label(P + "_udone_ok")
    a(f"s_lshl_b32 s3, s{WV}, 13")
    a(f"s_add_u32 s3, s3, {A_OP}")
    a(f"v_add_u32 v2, s3, v1")
    a(f"s_lshl_b32 s3, s{WV}, 9")
    a(f"s_add_u32 s3, s3, {A_LP}")
    a("v_lshrrev_b32 v3, 2, v1")
    a("v_and_b32 v4, 127, v3")
    a("v_add_u32 v4, s3, v4")
    a(f"s_mov_b32 s46, {hex(LMAX)}")
    a("s_mov_b64 s[56:57], 0")
    for g in range(4):
        o = AO + 16 * g
        if g == 3: a("s_nop 3")
        a("s_mov_b32 exec_lo, 0")
        a(f"ds_write_b32 v4, v{o+12} offset:{g*128}")
        a(f"v_cmp_nge_f32 vcc, s46, v{o+12}")
        a("s_mov_b32 exec_lo, -1")
        a("s_or_b64 s[56:57], s[56:57], vcc")
        for j in range(8):
            a(f"v_cvt_pk_bf16_f32 v{AS[0]+8*g+j}, v{o+2*j}, v{o+2*j+1}")
        a(f"ds_write_b128 v2, {v(AS[0]+8*g,4)} offset:{g*2048}")
        a(f"ds_write_b128 v2, {v(AS[0]+8*g+4,4)} offset:{g*2048+1024}")
    a(f"v_mov_b32 v3, {L_CNT}")
    a("s_cmp_eq_u64 s[56:57], 0")
    a(f"s_cbranch_scc1 {P}_safe")
    a("v_mov_b32 v2, 1")
    a("s_mov_b64 exec, 1")
    a(f"ds_add_u32 v3, v2 offset:{C_BAD}")
    a("s_mov_b64 exec, -1")
    a.label(P + "_safe")
    pf.stamp(17)
    sw_barrier(a, C_ATT, 44, 8, 3, 2, P + "_b1")
    pf.stamp(18)
    a(f"ds_read_b32 v2, v3 offset:{C_BAD}")
    a(f"s_lshl_b32 s3, s{WV}, 10")
    a(f"s_add_u32 s3, s3, {A_OP}")
    a("v_add_u32 v4, s3, v1")
    for w in range(8):
        a(f"ds_read_b128 {v(AO+4*w,4)}, v4 offset:{w*8192}")
    a(f"s_lshr_b32 s45, s{WV}, 1")
    a("s_lshl_b32 s3, s45, 7")
    a(f"s_add_u32 s3, s3, {A_LP}")
    a("v_lshrrev_b32 v3, 2, v1")
    a("v_and_b32 v3, 127, v3")
    a("v_add_u32 v3, s3, v3")
    a("s_waitcnt lgkmcnt(8)")
    a("v_readfirstlane_b32 s3, v2")
    a("s_cmp_lg_u32 s3, 0")
    a("s_cselect_b32 s3, 1, 0")
    a("s_andn2_b32 s3, s3, s51")
    a(f"s_cbranch_scc1 {P}_fallback")
    acc = AO + 48
    a(f"v_add_u32 v2, {L_SEL}, v1")
    a(f"ds_read_b128 {v(AO+40,4)}, v2")
    for w in range(6):
        a(f"ds_read_b32 v{AO+32+w}, v3 offset:{w*512}")
    for w in range(8):
        a(f"s_waitcnt lgkmcnt({6 if w < 1 else 6})") if w == 0 else None
        if w == 0:
            a(f"ds_read_b32 v{AO+38}, v3 offset:{6*512}")
            a(f"ds_read_b32 v{AO+39}, v3 offset:{7*512}")
        a(f"{MF} {v(acc,16)}, {v(AO+40,4)}, {v(AO+4*w,4)}, {'0' if w == 0 else v(acc,16)}")
    a("s_lshr_b32 s3, s45, 1")
    a(f"s_lshl_b32 s46, s{RB}, 1")
    a("s_add_u32 s3, s3, s46")
    a("s_lshl_b32 s3, s3, 4")
    a(f"s_lshl_b32 s46, s{J2}, 1")
    a("s_add_u32 s3, s3, s46")
    a("s_and_b32 s46, s45, 1")
    a("s_add_u32 s3, s3, s46")
    a("s_lshl_b32 s3, s3, 11")
    a(f"s_and_b32 s46, s{WV}, 1")
    a("s_lshl_b32 s46, s46, 10")
    a("s_add_u32 s3, s3, s46")
    a(f"s_add_u32 s47, s3, {WS_OF}")
    a("s_waitcnt lgkmcnt(0)")
    lds_arrive(a, C_TRD, 2, 3)
    l = AO + 32
    a(f"v_add_f32 v{l}, v{l}, v{l+1}")
    a(f"v_add_f32 v{l+2}, v{l+2}, v{l+3}")
    a(f"v_add_f32 v{l+4}, v{l+4}, v{l+5}")
    a(f"v_add_f32 v{l+6}, v{l+6}, v{l+7}")
    a(f"v_add_f32 v{l}, v{l}, v{l+2}")
    a(f"v_add_f32 v{l+4}, v{l+4}, v{l+6}")
    a(f"v_add_f32 v{l}, v{l}, v{l+4}")
    a(f"v_rcp_f32 v{l+1}, v{l}")
    a("s_nop 3")
    for j in range(8): a(f"v_mul_f32 v{acc+j}, v{acc+j}, v{l+1}")
    for j in range(4): a(f"v_cvt_pk_bf16_f32 v{AO+j}, v{acc+2*j}, v{acc+2*j+1}")
    a(f"s_and_b32 s3, s{WV}, 1")
    a("s_cmp_eq_u32 s3, 1")
    a("s_cselect_b32 exec_hi, -1, 0")
    a("s_mov_b32 exec_lo, 0")
    a(f"v_mov_b32 v{AO+2}, 0")
    a(f"v_mov_b32 v{AO+3}, 0")
    a("s_mov_b64 exec, -1")
    pf.stamp(19)
    a(f"buffer_store_dwordx4 {v(AO,4)}, v1, s[{WSR}:{WSR+3}], s47 offen{SC1}")
    if "dup" in X or "dupo" in X:
        a(f"buffer_store_dwordx4 {v(AO,4)}, v1, s[{WSR}:{WSR+3}], s47 offen")
    a(f"s_lshl_b32 s3, s{RB}, 5")
    a(f"s_add_u32 s3, s3, s{J2}")
    a("s_lshl_b32 s3, s3, 2")
    a(f"s_add_u32 s3, s3, {FL_O}")
    arrive_flag(a, C_OCNT, 8, 3, 2, 3, P + "_oflag")
    pf.stamp(8)
    if "wohelp" in X:
        a(f"s_cmp_eq_u32 s{J2}, 7")
        a(f"s_cbranch_scc1 {P}_done")
        a(f"v_mov_b32 v3, {L_CNT}")
        lds_wait(a, C_YD, 4, 3, 2, P + "_yd")
        srd(a, TR, S_WO, WBYTES)
        a("v_lshrrev_b32 v4, 4, v1")
        a("v_lshrrev_b32 v5, 3, v4")
        a("v_mul_u32_u24 v5, 896, v5")
        a("v_and_b32 v4, 7, v4")
        a("v_lshl_add_u32 v5, v4, 4, v5")
        a(f"s_mul_i32 s32, s{WV}, {56*896}")
        a(f"s_lshl_b32 s3, s{J2}, 7")
        a("s_add_u32 s32, s32, s3")
        a(f"s_mul_i32 s34, s{WV}, 7168")
        a("s_mov_b32 m0, s34")
        dma_loop(a, P + "_wodma", 5, 7, 7168, 1024)
        a("s_waitcnt vmcnt(0)")
        lds_arrive(a, C_WOL, 3, 2)
    a(f"s_branch {P}_done")
    a.label(P + "_fallback")
    a("s_waitcnt lgkmcnt(0)")
    a("s_mov_b32 s51, 1")
    a(f"s_mov_b32 s{KR+2}, 0x40000")
    a("s_mov_b32 exec_lo, 0")
    for g in range(4):
        a(f"v_mov_b32 v{AQ+8*g+6}, 0")
        a(f"v_mov_b32 v{AQ+8*g+7}, 0")
    a("s_mov_b32 exec_lo, -1")
    for g in range(4): a(f"v_mov_b32 v{APB+g}, 0xff800000")
    a("s_mov_b32 s43, 0")
    a.label(P + "_fb_loop")
    a(f"buffer_load_dwordx4 {v(AK[0],4)}, v1, s[{KR}:{KR+3}], s43 offen{SC1}")
    a(f"buffer_load_dwordx4 {v(AK[0]+4,4)}, v1, s[{KR}:{KR+3}], s43 offen offset:1024{SC1}")
    a("s_waitcnt vmcnt(0)")
    for g in range(4):
        o = AO + 16 * g
        a(f"{MF} {v(o,16)}, {v(AK[0],4)}, {v(AQ+8*g,4)}, 0")
        a(f"{MF} {v(o,16)}, {v(AK[0]+4,4)}, {v(AQ+8*g+4,4)}, {v(o,16)}")
    a("s_nop 7")
    for g in range(4):
        o = AO + 16 * g
        for j in range(0, 16, 2):
            a(f"v_max3_f32 v{APB+g}, v{APB+g}, v{o+j}, v{o+j+1}")
    a("s_add_u32 s43, s43, 4096")
    a("s_cmp_lt_u32 s43, 0x40000")
    a(f"s_cbranch_scc1 {P}_fb_loop")
    for g in range(4):
        m = APB + g
        a(f"v_mov_b32 v2, v{m}")
        a("s_nop 1")
        a(f"v_permlane32_swap_b32 v2, v{m}")
        a(f"v_max_f32 v2, v2, v{m}")
        a("v_sub_f32 v2, 0, v2")
        a("v_cvt_pk_bf16_f32 v3, v2, v2")
        a("v_and_b32 v3, 0xffff0000, v3")
        a(f"v_sub_f32 v{m}, v2, v3")
        a(f"v_cvt_pk_bf16_f32 v2, v{m}, v{m}")
        a("v_and_b32 v2, 0xffff0000, v2")
        a(f"v_sub_f32 v{m}, v{m}, v2")
        a(f"v_cvt_pk_bf16_f32 v{m}, v{m}, 0")
        a("v_lshrrev_b32 v3, 16, v3")
        a("v_or_b32 v3, v3, v2")
        a("s_mov_b32 exec_lo, 0")
        a(f"v_mov_b32 v{AQ+8*g+6}, v3")
        a(f"v_mov_b32 v{AQ+8*g+7}, v{m}")
        a("s_mov_b32 exec_lo, -1")
    a(f"v_mov_b32 v3, {L_CNT}")
    sw_barrier(a, C_ATT, 44, 8, 3, 2, P + "_bf")
    a(f"s_branch {P}_restart")
    a.label(P + "_done")

def gen_background(a, pf):
    P = "bg"
    XF = 56; ARE, AIM = 8, 24
    nbar = [0]
    T = [54, 55]
    pf.T = T
    def bar():
        nbar[0] += 1
        a(f"v_mov_b32 v{T[0]}, {L_CNT}")
        sw_barrier(a, C_BG, 44, 4, T[0], T[1], f"{P}_bar{nbar[0]}")
    def stage3(tag, vd_=156, vt_=158):
        if "nopf" in X: return
        a(f"s_cmp_eq_u32 s{BW}, 3")
        a(f"s_cbranch_scc1 {P}_not3{tag}")
        a(f"s_cmp_eq_u32 s{BW}, 0")
        a(f"s_cselect_b32 s56, s{S_CRE}, s{S_CIM}")
        a(f"s_cselect_b32 s57, s{S_CRE+1}, s{S_CIM+1}")
        a(f"s_cmp_eq_u32 s{BW}, 2")
        a(f"s_cselect_b32 s56, s{S_WO}, s56")
        a(f"s_cselect_b32 s57, s{S_WO+1}, s57")
        touch_matrix(a, 56, vd_, vt_)
        a.label(P + "_not3" + tag)
    a("s_mov_b32 s44, 0")
    a(f"s_lshl_b32 s37, s{J2}, 1")
    a(f"s_and_b32 s3, s{BW}, 1")
    a("s_add_u32 s37, s37, s3")
    a(f"s_lshr_b32 s38, s{BW}, 1")
    a(f"s_cmp_eq_u32 s{BW}, 3")
    a(f"s_cbranch_scc0 {P}_nononce")
    srd(a, 48, S_DBG, 256)
    a("v_mov_b32 v7, 0")
    a.label(P + "_npoll")
    a(f"buffer_load_dword v6, v7, s[48:51], 0 offen offset:{D_NONCE}{SC1}")
    a("s_waitcnt vmcnt(0)")
    a("v_readfirstlane_b32 s3, v6")
    a("s_cmp_lg_u32 s3, 0")
    a(f"s_cbranch_scc1 {P}_npoll_ok")
    a(f"s_sleep {POLLSLEEP}")
    a(f"s_sub_u32 s{SPIN}, s{SPIN}, 1")
    a(f"s_cbranch_scc0 {P}_npoll")
    a(f"s_mov_b32 s{SPIN}, 0")
    a.label(P + "_npoll_ok")
    a(f"v_mov_b32 v7, {L_CNT}")
    a(f"ds_write_b32 v7, v6 offset:{C_NONCE}")
    a.label(P + "_nononce")
    a(f"s_cmp_eq_u32 s{J2}, 7")
    a(f"s_cbranch_scc1 {P}_skip")
    if "nobg" in X: a(f"s_branch {P}_skip")
    if "kvfirst" in X:
        a(f"s_cmp_ge_u32 s{J2}, 2")
        a(f"s_cbranch_scc1 {P}_nokvi")
        a(f"v_mov_b32 v6, {L_CNT}")
        lds_wait(a, C_KVI, 1, 6, 7, P + "_kvi")
        a.label(P + "_nokvi")
    a(f"s_and_b32 s3, s{BW}, 1")
    a("s_cmp_eq_u32 s3, 0")
    a(f"s_cselect_b32 s{TR}, s{S_BRE}, s{S_BIM}")
    a(f"s_cselect_b32 s{TR+1}, s{S_BRE+1}, s{S_BIM+1}")
    a(f"s_mov_b32 s{TR+2}, {WBYTES}")
    a(f"s_mov_b32 s{TR+3}, 0x00020000")
    plain_lane_off(a, 8, 0, 9)
    a(f"s_lshl_b32 s3, s{J2}, 1")
    a("s_add_u32 s3, s3, s38")
    a(f"s_mul_i32 s32, s3, {32*896}")
    a(f"s_lshl_b32 s34, s{BW}, 11")
    a("s_mov_b32 m0, s34")
    a("s_mov_b32 s36, 14")
    a.label(P + "_bdma")
    a(f"s_add_u32 s33, s32, {16*896}")
    a(f"buffer_load_dwordx4 v8, s[{TR}:{TR+3}], s32 offen lds")
    a("s_add_u32 m0, m0, 1024")
    a("s_sub_u32 s36, s36, 1")
    a(f"buffer_load_dwordx4 v8, s[{TR}:{TR+3}], s33 offen lds")
    a("s_add_u32 s32, s32, 64")
    a(f"s_add_u32 m0, m0, {8192-1024}")
    a("s_cmp_lg_u32 s36, 0")
    a(f"s_cbranch_scc1 {P}_bdma")
    xfrag_addr(a, 6, 0, 8)
    a(f"s_and_b32 s3, s{BW}, 1")
    a("s_lshl_b32 s3, s3, 12")
    a("v_add_u32 v6, s3, v6")
    a("v_xor_b32 v7, 32, v6")
    if os.environ.get("S3") == "bi":
        stage3("a", 52, 54)
        a(f"s_cmp_eq_u32 s{BW}, 3")
        a(f"s_cbranch_scc1 {P}_bw0")
        a("s_waitcnt vmcnt(2)")
        a.label(P + "_bw0")
        a(f"s_cmp_lg_u32 s{BW}, 3")
        a(f"s_cbranch_scc1 {P}_bw1")
        a("s_waitcnt vmcnt(0)")
        a.label(P + "_bw1")
    else:
        a("s_waitcnt vmcnt(0)")
    bar()
    a(f"ds_read_b32 v55, v54 offset:{C_NONCE}")
    a("s_waitcnt lgkmcnt(0)")
    a(f"v_readfirstlane_b32 s{NONCE}, v55")
    if "cntpoll" in X:
        lds_arrive(a, C_BL, 54, 55)
    pf.stamp(5)
    S3 = os.environ.get("S3", "b")
    if S3 == "b": stage3("a", 52, 54)
    if os.environ.get("UP"): a(f"s_setprio {os.environ['UP']}")
    if S3 == "go": a("s_mov_b32 s17, 0")
    BB = [40, 48]
    def rdB(j):
        b = BB[j & 1]
        if j in (16, 17): a(f"v_add_u32 v{6+(j&1)}, 0x10000, v{6+(j&1)}")
        o = (j >> 1) * 8192 - (65536 if j >= 16 else 0)
        a(f"ds_read_b128 {v(b,4)}, v{6+(j&1)} offset:{o}")
        a(f"ds_read_b128 {v(b+4,4)}, v{6+(j&1)} offset:{o+2048}")
    rdB(0); rdB(1)
    for j in range(28):
        b = BB[j & 1]
        a("s_waitcnt lgkmcnt(2)" if j < 27 else "s_waitcnt lgkmcnt(0)")
        c1 = "0" if j == 0 else v(ARE,16); c2 = "0" if j == 0 else v(AIM,16)
        a(f"{MF} {v(ARE,16)}, {v(XF+4*j,4)}, {v(b,4)}, {c1}")
        a(f"{MF} {v(AIM,16)}, {v(XF+4*j,4)}, {v(b+4,4)}, {c2}")
        if j + 2 < 28: rdB(j + 2)
        if S3 == "go" and j in (5, 11, 17, 23, 27):
            lab = f"{P}_s3_{j}"
            a("s_cmp_lg_u32 s17, 0")
            a(f"s_cbranch_scc1 {lab}")
            if j != 27:
                a(f"v_mov_b32 v56, {L_CNT}")
                a(f"ds_read_b32 v57, v56 offset:{C_ATT}")
                a("s_waitcnt lgkmcnt(0)")
                a("v_readfirstlane_b32 s3, v57")
                a("s_cmp_lt_u32 s3, 16")
                a(f"s_cbranch_scc1 {lab}")
            a("s_mov_b32 s17, 1")
            stage3(f"g{j}", 56, 58)
            a.label(lab)
    if os.environ.get("UP"): a(f"s_setprio {os.environ.get('BP', '3')}")
    a(f"v_mov_b32 v54, {L_CNT}")
    a("v_mov_b32 v55, 1")
    a("s_mov_b64 exec, 1")
    a(f"ds_add_u32 v54, v55 offset:{C_UDONE}")
    a("s_mov_b64 exec, -1")
    pf.stamp(6)
    if S3 == "u": stage3("a")
    def csq(dr, di, sr, si):
        a(f"v_mul_f32 v46, v{si}, v{si}")
        a(f"v_mul_f32 v47, v{sr}, v{si}")
        a(f"v_fma_f32 v{dr}, v{sr}, v{sr}, -v46")
        a(f"v_add_f32 v{di}, v47, v47")
    csq(40, 41, 2, 3)
    for _ in range(3): csq(40, 41, 40, 41)
    csq(42, 43, 40, 41); csq(42, 43, 42, 43)
    csq(44, 45, 42, 43)
    for _ in range(3): csq(44, 45, 44, 45)
    a("v_mov_b32 v48, v4")
    a("v_mov_b32 v49, v4")
    a("v_mov_b32 v50, v5")
    a("v_mov_b32 v51, v5")
    for r in range(0, 16, 2):
        a(f"v_pk_mul_f32 v[46:47], v[50:51], {v(AIM+r,2)}")
        a(f"v_pk_mul_f32 v[52:53], v[50:51], {v(ARE+r,2)}")
        a(f"v_pk_fma_f32 {v(ARE+r,2)}, v[48:49], {v(ARE+r,2)}, v[46:47] neg_lo:[0,0,1] neg_hi:[0,0,1]")
        a(f"v_pk_fma_f32 {v(AIM+r,2)}, v[48:49], {v(AIM+r,2)}, v[52:53]")
    a(f"v_mov_b32 v48, v{ARE}")
    a(f"v_mov_b32 v49, v{AIM}")
    for r in range(1, 16):
        cfma(a, 48, 49, 2, 3, ARE + r, AIM + r, 46, 47)
    a("v_and_b32 v50, 31, v0")
    a("v_lshlrev_b32 v50, 3, v50")
    a(f"s_and_b32 s3, s{BW}, 1")
    a("s_lshl_b32 s3, s3, 10")
    a(f"s_add_u32 s3, s3, {B_EX}")
    a("v_add_u32 v50, s3, v50")
    a("v_lshrrev_b32 v51, 5, v0")
    a("s_lshl_b32 s3, s38, 1")
    a("v_add_u32 v51, s3, v51")
    a("v_lshl_add_u32 v52, v51, 8, v50")
    a("ds_write_b64 v52, v[48:49]")
    bar()
    for c in range(4):
        a(f"ds_read_b64 {v(56+2*c,2)}, v50 offset:{c*256}")
    a("s_waitcnt lgkmcnt(0)")
    a("v_mov_b32 v64, v56")
    a("v_mov_b32 v65, v57")
    for c in range(1, 4):
        cfma(a, 64, 65, 40, 41, 56 + 2*c, 57 + 2*c, 46, 47)
    a("s_cmp_eq_u32 s38, 1")
    a(f"s_cbranch_scc0 {P}_nopub")
    a(f"s_mul_i32 s3, s{RB}, {448*16}")
    a("s_lshl_b32 s33, s37, 9")
    a("s_add_u32 s3, s3, s33")
    a(f"s_add_u32 s3, s3, {WS_E}")
    a(f"v_mov_b32 v66, s{NONCE}")
    a(f"v_mov_b32 v67, s{NONCE}")
    a("v_and_b32 v68, 31, v0")
    a("v_lshlrev_b32 v68, 4, v68")
    a("s_mov_b32 exec_hi, 0")
    a(f"buffer_store_dwordx4 v[64:67], v68, s[{WSR}:{WSR+3}], s3 offen{SC1}")
    a("s_mov_b64 exec, -1")
    a.label(P + "_nopub")
    pf.stamp(7)
    a(f"s_add_u32 s48, s{WSR}, {WS_E}")
    a(f"s_addc_u32 s49, s{WSR+1}, 0")
    a(f"s_mov_b32 s50, {32*448*16}")
    a("s_mov_b32 s51, 0x00020000")
    a("v_lshrrev_b32 v67, 5, v0")
    a("v_lshlrev_b32 v67, 4, v67")
    a(f"v_sub_u32 v67, s{RB}, v67")
    a("v_add_u32 v67, -1, v67")
    a(f"s_mov_b32 s3, {448*16}")
    a("v_mul_lo_u32 v68, v67, s3")
    a("v_and_b32 v66, 31, v0")
    a("v_lshlrev_b32 v66, 4, v66")
    a("s_lshl_b32 s33, s37, 9")
    a("v_add3_u32 v68, v68, v66, s33")
    EG = 72
    for i in range(1, 16):
        a(f"v_subrev_u32 v{136+i}, {448*16*i}, v68")
    a("v_mov_b32 v136, v68")
    a("s_waitcnt vmcnt(0)")
    if "efirst" in X:
        a(f"s_branch {P}_pollE")
    else:
        a(f"s_cmp_eq_u32 s{RB}, 0")
        a(f"s_cbranch_scc1 {P}_pollE")
    a.label(P + "_pollE0")
    a("s_mov_b32 exec_hi, 0")
    a(f"buffer_load_dwordx3 {v(EG,3)}, v136, s[48:51], 0 offen{SC1}")
    a("s_mov_b64 exec, -1")
    a("s_waitcnt vmcnt(0)")
    a(f"v_cmp_ne_u32 vcc, s{NONCE}, v{EG+2}")
    a("s_cmp_eq_u32 vcc_lo, 0")
    a(f"s_cbranch_scc1 {P}_pollE")
    a(f"s_sleep {os.environ.get('ES', '6')}")
    a(f"s_sub_u32 s{SPIN}, s{SPIN}, 1")
    a(f"s_cbranch_scc0 {P}_pollE0")
    a(f"s_mov_b32 s{SPIN}, 0")
    a.label(P + "_pollE")
    for i in range(16):
        a(f"buffer_load_dwordx3 {v(EG+4*i,3)}, v{136+i}, s[48:51], 0 offen{SC1}")
    a("s_mov_b64 s[56:57], 0")
    a("s_waitcnt vmcnt(0)")
    for i in range(16):
        a(f"v_cmp_ne_u32 vcc, s{NONCE}, v{EG+4*i+2}")
        a(f"s_cmp_gt_u32 s{RB}, {i}")
        a("s_cselect_b32 s58, -1, 0")
        a(f"s_cmp_gt_u32 s{RB}, {i+16}")
        a("s_cselect_b32 s59, -1, 0")
        a("s_and_b64 vcc, vcc, s[58:59]")
        a("s_or_b64 s[56:57], s[56:57], vcc")
    a("s_cmp_eq_u64 s[56:57], 0")
    a(f"s_cbranch_scc1 {P}_pollE_ok")
    a("s_sleep 4" if "efirst" in X else "s_sleep 12")
    a(f"s_sub_u32 s{SPIN}, s{SPIN}, 1")
    a(f"s_cbranch_scc0 {P}_pollE0" if "efirst" in X else f"s_cbranch_scc0 {P}_pollE")
    a(f"s_mov_b32 s{SPIN}, 0")
    a.label(P + "_pollE_ok")
    pf.stamp(8)
    a(f"v_mov_b32 v68, v{EG+60}")
    a(f"v_mov_b32 v69, v{EG+61}")
    for i in range(14, -1, -1):
        cfma(a, 68, 69, 42, 43, EG + 4*i, EG + 4*i + 1, 46, 47)
    a("v_mov_b32 v70, v68")
    a("v_mov_b32 v71, v69")
    a("v_mov_b32 v72, v68")
    a("v_mov_b32 v73, v69")
    a("s_nop 1")
    a("v_permlane32_swap_b32 v70, v72")
    a("v_permlane32_swap_b32 v71, v73")
    cfma(a, 72, 73, 44, 45, 70, 71, 46, 47)
    for cp in range(3):
        a("v_mov_b32 v74, v72")
        a("v_mov_b32 v75, v73")
        cfma(a, 74, 75, 40, 41, 56 + 2*cp, 57 + 2*cp, 46, 47)
        a(f"v_cmp_lt_u32 vcc, {cp}, v51")
        a("s_nop 1")
        a("v_cndmask_b32 v72, v72, v74, vcc")
        a("v_cndmask_b32 v73, v73, v75, vcc")
    a(f"s_lshl_b32 s3, s{BW}, 12")
    a(f"s_add_u32 s3, s3, {B_HT}")
    a("v_and_b32 v66, 31, v0")
    a("v_lshlrev_b32 v66, 1, v66")
    a("v_lshrrev_b32 v67, 5, v0")
    a("v_lshl_add_u32 v66, v67, 8, v66")
    a("v_add_u32 v66, s3, v66")
    for r in range(16):
        cfma(a, 72, 73, 2, 3, ARE + r, AIM + r, 46, 47)
        a(f"v_cvt_pk_bf16_f32 v{76+(r&1)}, v72, -v73")
        slot = (r & 3) + 8 * (r >> 2)
        a(f"ds_write_b16 v66, v{76+(r&1)} offset:{slot*64}")
        a(f"ds_write_b16_d16_hi v66, v{76+(r&1)} offset:{2048+slot*64}")
    a("v_and_b32 v67, 31, v0")
    a("v_lshlrev_b32 v67, 6, v67")
    a("v_lshrrev_b32 v68, 5, v0")
    a("v_lshl_add_u32 v67, v68, 4, v67")
    a("v_add_u32 v67, s3, v67")
    a("s_waitcnt lgkmcnt(0)")
    for part in range(2):
        for jj in range(2):
            a(f"ds_read_b128 {v(80+8*part+4*jj,4)}, v67 offset:{part*2048+jj*32}")
    a(f"s_lshl_b32 s3, s{RB}, 1")
    a("s_add_u32 s3, s3, s38")
    a("s_mul_i32 s3, s3, 56")
    a("s_lshl_b32 s33, s37, 1")
    a("s_add_u32 s3, s3, s33")
    a("s_lshl_b32 s3, s3, 10")
    a(f"s_add_u32 s3, s3, {WS_HF}")
    a(f"s_add_u32 s33, s3, {28*1024}")
    a("s_waitcnt lgkmcnt(0)")
    a(f"buffer_store_dwordx4 {v(80,4)}, v1, s[{WSR}:{WSR+3}], s3 offen{SC1}")
    a(f"buffer_store_dwordx4 {v(84,4)}, v1, s[{WSR}:{WSR+3}], s3 offen offset:1024{SC1}")
    a(f"buffer_store_dwordx4 {v(88,4)}, v1, s[{WSR}:{WSR+3}], s33 offen{SC1}")
    a(f"buffer_store_dwordx4 {v(92,4)}, v1, s[{WSR}:{WSR+3}], s33 offen offset:1024{SC1}")
    if "dup" in X:
        a(f"buffer_store_dwordx4 {v(80,4)}, v1, s[{WSR}:{WSR+3}], s3 offen")
        a(f"buffer_store_dwordx4 {v(84,4)}, v1, s[{WSR}:{WSR+3}], s3 offen offset:1024")
        a(f"buffer_store_dwordx4 {v(88,4)}, v1, s[{WSR}:{WSR+3}], s33 offen")
        a(f"buffer_store_dwordx4 {v(92,4)}, v1, s[{WSR}:{WSR+3}], s33 offen offset:1024")
    a(f"s_lshl_b32 s3, s{RB}, 5")
    a(f"s_add_u32 s3, s3, s{J2}")
    a("s_lshl_b32 s3, s3, 2")
    a(f"s_add_u32 s3, s3, {FL_H}")
    arrive_flag(a, C_HCNT, 4, 3, 66, 67, P + "_hflag")
    pf.stamp(9)
    if "hwait" in X:
        a(f"v_mov_b32 v66, {L_CNT}")
        lds_wait(a, C_HCNT, 4, 66, 67, P + "_hall")
    if "lowc" in X: a("s_setprio 0")
    if os.environ.get("S3") == "late": stage3("c")
    if os.environ.get("S3") == "wo":
        a(f"s_cmp_eq_u32 s{BW}, 2")
        a(f"s_cbranch_scc0 {P}_notwo")
        touch_matrix(a, S_WO, 156, 158)
        a.label(P + "_notwo")
    a(f"s_lshr_b32 s3, s{BW}, 1")
    a("s_cmp_eq_u32 s3, 0")
    a(f"s_cselect_b32 s{TR}, s{S_CRE}, s{S_CIM}")
    a(f"s_cselect_b32 s{TR+1}, s{S_CRE+1}, s{S_CIM+1}")
    plain_lane_off(a, 53, 0, 69)
    a(f"s_mul_i32 s40, s{J2}, {64*896}")
    a(f"s_and_b32 s3, s{BW}, 1")
    a("s_mul_i32 s3, s3, 448")
    a("s_add_u32 s40, s40, s3")
    a(f"s_mul_i32 s41, s{BW}, 20480")
    CDMA = [53]
    def c_dma(kb):
        a(f"s_add_u32 m0, s41, {(kb % 5)*4096}")
        for q in range(4):
            a(f"s_add_u32 s33, s40, {q*16*896 + kb*64}")
            a(f"buffer_load_dwordx4 v{CDMA[0]}, s[{TR}:{TR+3}], s33 offen lds")
            if q < 3: a("s_add_u32 m0, m0, 1024")
    for kb in range(5): c_dma(kb)
    if "lowc2" in X: a("s_setprio 3")
    a(f"s_cmp_eq_u32 s{BW}, 0")
    a(f"s_cbranch_scc0 {P}_nopollH2" if "gpar" in X else f"s_cbranch_scc0 {P}_nopollH")
    a("v_lshlrev_b32 v67, 2, v0")
    a(f"s_lshl_b32 s35, s{RB}, 7")
    a(f"s_add_u32 s35, s35, {FL_H}")
    a("s_mov_b64 s[58:59], 0x7f")
    poll(a, P + "_pollH", 68, 67, 35, 58)
    if "gpar" in X:
        a(f"s_branch {P}_pollG_ok")
        a.label(P + "_nopollH2")
        a(f"s_cmp_eq_u32 s{BW}, 1")
        a(f"s_cbranch_scc0 {P}_pollG_ok")
    srd(a, 48, S_DBG, 256)
    a(f"v_mov_b32 v67, {D_GOG}")
    a.label(P + "_pollG")
    a(f"buffer_load_dword v68, v67, s[48:51], 0 offen{SC1}")
    a("s_waitcnt vmcnt(0)")
    a("v_readfirstlane_b32 s3, v68")
    a("s_cmp_lg_u32 s3, 0")
    a(f"s_cbranch_scc1 {P}_pollG_ok")
    a(f"s_sleep {POLLSLEEP}")
    a(f"s_sub_u32 s{SPIN}, s{SPIN}, 1")
    a(f"s_cbranch_scc0 {P}_pollG")
    a(f"s_mov_b32 s{SPIN}, 0")
    a.label(P + "_pollG_ok")
    a.label(P + "_nopollH")
    a("s_waitcnt vmcnt(0)")
    bar()
    pf.stamp(10)
    T[0], T[1] = 4, 5
    ACC = 8
    XS, GT = 136, 152
    if "lowy" in X and "lowlate" not in X: a(f"s_setprio {os.environ.get('YLOW', '0')}")
    a(f"s_lshl_b32 s3, s{RB}, 1")
    a("s_mul_i32 s3, s3, 56")
    a(f"s_mul_i32 s33, s{BW}, 14")
    a("s_add_u32 s3, s3, s33")
    a("s_lshl_b32 s3, s3, 10")
    a(f"s_add_u32 s32, s3, {WS_HF}")
    a(f"s_add_u32 s34, s32, {56*1024}")
    AF = 88; NA = 10
    plain_lane_off(a, 2, 0, 72)
    CDMA[0] = 2
    xfrag_addr(a, 6, 0, 72)
    a("v_add_u32 v6, s41, v6")
    a("v_xor_b32 v7, 32, v6")
    def ldA(st_):
        r = AF + 8 * (st_ % NA)
        a(f"s_add_u32 s35, s32, {st_*1024}")
        a(f"s_add_u32 s36, s34, {st_*1024}")
        a(f"buffer_load_dwordx4 {v(r,4)}, v1, s[{WSR}:{WSR+3}], s35 offen{SC1}")
        a(f"buffer_load_dwordx4 {v(r+4,4)}, v1, s[{WSR}:{WSR+3}], s36 offen{SC1}")
    for st_ in range(NA): ldA(st_)
    if "htouch" in X:
        a("v_lshlrev_b32 v72, 7, v0")
        a(f"s_mov_b32 m0, {L_JUNK}")
        a(f"s_add_u32 s35, s32, {NA*1024}")
        a(f"s_add_u32 s36, s34, {NA*1024}")
        a("s_mov_b32 exec_hi, 0")
        a(f"buffer_load_dword v72, s[{WSR}:{WSR+3}], s35 offen{SC1} lds")
        a(f"buffer_load_dword v72, s[{WSR}:{WSR+3}], s36 offen{SC1} lds")
        a("s_mov_b64 exec, -1")
    CB = [72, 80]
    def rdC(st_):
        b = CB[st_ & 1]
        kb = st_ >> 1
        a(f"ds_read_b128 {v(b,4)}, v{6+(st_&1)} offset:{(kb%5)*4096}")
        a(f"ds_read_b128 {v(b+4,4)}, v{6+(st_&1)} offset:{(kb%5)*4096+2048}")
    issued = []
    for st_ in range(NA): issued += [("A", st_)] * 2
    if "htouch" in X: issued += [("T", 0)] * 2
    HY = int(os.environ.get("HY", "0"))
    if HY:
        a(f"v_mov_b32 v4, {L_CNT}")
        lds_wait(a, C_LEND, HY, 4, 5, P + "_lend", sleep=8)
        a(f"s_setprio {os.environ.get('YP', '1')}")
    if "lowy" in X and "lowlate" in X: a(f"s_setprio {os.environ.get('YLOW', '0')}")
    rdC(0)
    for st_ in range(14):
        kb = st_ >> 1
        need = [("A", st_)]
        if st_ + 1 < 14 and ((st_ + 1) >> 1) >= 5: need.append(("C", (st_ + 1) >> 1))
        last = max(i for i, t in enumerate(issued) if t in need)
        n_out = len(issued) - 1 - last
        a(f"s_waitcnt vmcnt({n_out})")
        if st_ + 1 < 14: rdC(st_ + 1)
        a(f"s_waitcnt lgkmcnt({2 if st_ + 1 < 14 else 0})")
        b = CB[st_ & 1]; r = AF + 8 * (st_ % NA)
        for rt in range(2):
            for ct in range(2):
                acc = ACC + 16 * (2 * rt + ct)
                c = "0" if st_ == 0 else v(acc, 16)
                a(f"{MF} {v(acc,16)}, {v(r+4*rt,4)}, {v(b+4*ct,4)}, {c}")
        if st_ + NA < 14:
            ldA(NA + st_); issued += [("A", NA + st_)] * 2
        if (st_ & 1) == 1 and kb + 5 < 7:
            c_dma(kb + 5); issued += [("C", kb + 5)] * 4
    pf.stamp(11)
    a(f"s_lshl_b32 s3, s{RB}, 6")
    a("s_lshl_b32 s33, s38, 5")
    a("s_add_u32 s3, s3, s33")
    a("v_lshrrev_b32 v80, 5, v0")
    a("v_lshlrev_b32 v80, 4, v80")
    a("v_add_u32 v80, s3, v80")
    a(f"s_lshl_b32 s33, s{J2}, 6")
    a(f"s_and_b32 s35, s{BW}, 1")
    a("s_lshl_b32 s35, s35, 5")
    a("s_add_u32 s33, s33, s35")
    a("v_and_b32 v81, 31, v0")
    a("v_add_u32 v81, s33, v81")
    srd(a, 48, S_X, XBYTES)
    a("v_mul_u32_u24 v82, 896, v80")
    a("v_lshl_add_u32 v82, v81, 1, v82")
    for r in range(16):
        a(f"buffer_load_ushort v{XS+r}, v82, s[48:51], 0 offen offset:{(r%4)*896}")
        if r % 4 == 3 and r < 15: a(f"v_add_u32 v82, {4*896}, v82")
    srd(a, 52, S_DSK, 896)
    a("v_lshlrev_b32 v83, 1, v81")
    a("buffer_load_ushort v3, v83, s[52:55], 0 offen")
    a("v_lshlrev_b32 v83, 2, v80")
    a(f"s_mov_b32 s35, {WS_G}")
    for q in range(4):
        a(f"buffer_load_dwordx4 {v(GT+4*q,4)}, v83, s[{WSR}:{WSR+3}], s35 offen offset:{16*q}{SC1}")

    a(f"s_setprio {os.environ.get('YP2', '2')}")
    bar()
    def wo_dma(t1, t2, z):
        srd(a, TR, S_WO, WBYTES)
        a(f"v_lshrrev_b32 v{t1}, 3, v0")
        a(f"v_mul_u32_u24 v{t1}, 896, v{t1}")
        a(f"v_and_b32 v{t2}, 7, v0")
        a(f"v_lshl_add_u32 v{t1}, v{t2}, 4, v{t1}")
        a(f"s_mul_i32 s32, s{BW}, {112*896}")
        a(f"s_lshl_b32 s3, s{J2}, 7")
        a("s_add_u32 s32, s32, s3")
        a(f"s_mul_i32 s34, s{BW}, 14336")
        a("s_mov_b32 m0, s34")
        a("s_mov_b32 s36, 14")
        a.label(P + "_wodma")
        a("s_sub_u32 s36, s36, 1")
        a(f"buffer_load_dwordx4 v{t1}, s[{TR}:{TR+3}], s32 offen lds")
        a("s_add_u32 s32, s32, 7168")
        a("s_add_u32 m0, m0, 1024")
        a("s_cmp_lg_u32 s36, 0")
        a(f"s_cbranch_scc1 {P}_wodma")
        a(f"v_mov_b32 v{z}, 0")
        a(f"v_mov_b32 v{z+1}, 0")
        a(f"v_lshlrev_b32 v{t2}, 3, v0")
        a(f"ds_write_b64 v{t2}, v[{z}:{z+1}] offset:57344")
    t1 = 75
    if "wohelp" in X:
        lds_arrive(a, C_YD, 4, 5)
        a("v_mov_b32 v80, 0")
        a("v_mov_b32 v81, 0")
        a("v_lshlrev_b32 v76, 3, v0")
        a("ds_write_b64 v76, v[80:81] offset:57344")
    elif "wolate" not in X: wo_dma(75, 76, 80)
    a(f"v_mov_b32 v4, {L_CNT}")
    lds_wait(a, C_TRD, 8, 4, 5, P + "_trd")
    a(f"s_lshl_b32 s3, s{BW}, 12")
    a(f"s_add_u32 s3, s3, {A_OP}")
    a(f"v_add_u32 v{t1}, s3, v1")
    for t in range(4):
        for q in range(4):
            a(f"ds_write_b128 v{t1}, {v(ACC+16*t+4*q,4)} offset:{t*16384+q*1024}")
    bar()
    a(f"s_lshl_b32 s3, s{BW}, 14")
    a(f"s_add_u32 s3, s3, {A_OP}")
    a(f"v_add_u32 v{t1}, s3, v1")
    for src in range(3):
        for q in range(4):
            a(f"ds_read_b128 {v(88+16*src+4*q,4)}, v{t1} offset:{src*4096+q*1024}")
    YT = 8
    for q in range(4):
        a(f"ds_read_b128 {v(YT+4*q,4)}, v{t1} offset:{3*4096+q*1024}")
        if q == 2: a("s_waitcnt lgkmcnt(4)")
    a("s_waitcnt lgkmcnt(0)")
    VT_, VD_, VO_, t1, t2, t3, t4, t5 = 40, 41, 42, 43, 44, 45, 46, 47
    a("s_waitcnt vmcnt(0)" if "wolate" in X else "s_waitcnt vmcnt(14)")
    for r in range(16):
        a(f"v_add_f32 v{88+r}, v{88+r}, v{104+r}")
        a(f"v_add_f32 v{YT+r}, v{YT+r}, v{120+r}")
    a("v_lshlrev_b32 v3, 16, v3")
    for r in range(16):
        a(f"v_add_f32 v{YT+r}, v{YT+r}, v{88+r}")
        a(f"v_lshlrev_b32 v{XS+r}, 16, v{XS+r}")
        a(f"v_mul_f32 v{XS+r}, v{XS+r}, v3")
        a(f"v_fma_f32 v{YT+r}, 2.0, v{YT+r}, v{XS+r}")
        a(f"v_sub_f32 v{XS+r}, 1.0, v{GT+r}")
        a(f"v_mul_f32 v{YT+r}, v{YT+r}, v{XS+r}")
    a(f"s_lshl_b32 s3, s{RB}, 6")
    a("s_lshl_b32 s33, s38, 5")
    a("s_add_u32 s3, s3, s33")
    a(f"v_lshrrev_b32 v{VT_}, 5, v0")
    a(f"v_lshlrev_b32 v{VT_}, 4, v{VT_}")
    a(f"v_add_u32 v{VT_}, s3, v{VT_}")
    a(f"s_lshl_b32 s33, s{J2}, 6")
    a(f"s_and_b32 s35, s{BW}, 1")
    a("s_lshl_b32 s35, s35, 5")
    a("s_add_u32 s33, s33, s35")
    a(f"v_and_b32 v{VD_}, 31, v0")
    a(f"v_add_u32 v{VD_}, s33, v{VD_}")
    a(f"v_mul_u32_u24 v{VO_}, 1792, v{VT_}")
    a(f"v_lshl_add_u32 v{VO_}, v{VD_}, 2, v{VO_}")
    srd(a, 48, S_OUT, OUTBYTES)
    a("v_lshrrev_b32 v6, 5, v0")
    a("v_lshlrev_b32 v6, 2, v6")
    a("v_bfe_u32 v7, v0, 2, 2")
    a("v_add_u32 v6, v6, v7")
    a("v_lshlrev_b32 v6, 7, v6")
    a("v_and_b32 v7, 16, v0")
    a(f"v_and_b32 v{t1}, 3, v0")
    a(f"v_lshl_add_u32 v7, v{t1}, 2, v7")
    a("v_lshl_add_u32 v6, v7, 1, v6")
    a(f"s_and_b32 s3, s{BW}, 1")
    a(f"s_mul_i32 s3, s3, {8*28*128}")
    a("v_add_u32 v6, s3, v6")
    if "wohelp" in X:
        a(f"v_mov_b32 v4, {L_CNT}")
        lds_wait(a, C_WOL, 8, 4, 5, P + "_wol")
    elif "wolate" in X:
        a(f"v_mov_b32 v4, {L_CNT}")
        lds_wait(a, C_OCNT, 8, 4, 5, P + "_opub")
        wo_dma(48, 49, 50)
    a("s_waitcnt vmcnt(0)")
    a("s_setprio 3")
    pf.stamp(12)
    bar()
    a(f"v_lshlrev_b32 v{t4}, 2, v0")
    a(f"s_lshl_b32 s35, s{RB}, 7")
    a(f"s_add_u32 s35, s35, {FL_O}")
    a("s_mov_b64 s[58:59], 0xff")
    poll(a, P + "_pollO", t5, t4, 35, 58)
    pf.stamp(13)
    a(f"s_lshl_b32 s3, s{RB}, 1")
    a("s_add_u32 s3, s3, s38")
    a("s_lshl_b32 s3, s3, 15")
    a(f"s_and_b32 s33, s{BW}, 1")
    a("s_lshl_b32 s33, s33, 14")
    a("s_add_u32 s3, s3, s33")
    a(f"s_add_u32 s32, s3, {WS_OF}")
    OFR = 88
    for st_ in range(16):
        a(f"s_add_u32 s33, s32, {st_*1024}")
        a(f"buffer_load_dwordx4 {v(OFR+4*st_,4)}, v1, s[{WSR}:{WSR+3}], s33 offen{SC1}")
    PA_ = [56, 72]
    WB = [24, 32]
    def rdW(st_):
        hd, f = st_ >> 1, st_ & 1
        off = (28 * hd + 16 * f) * 128
        b = WB[st_ & 1]
        for ct in range(2):
            a(f"ds_read_b64_tr_b16 {v(b+4*ct,2)}, v6 offset:{off+ct*64}")
            a(f"ds_read_b64_tr_b16 {v(b+4*ct+2,2)}, v6 offset:{off+ct*64+1024}")
    rdW(0)
    for st_ in range(16):
        if st_ + 1 < 16: rdW(st_ + 1)
        a(f"s_waitcnt vmcnt({15-st_}) lgkmcnt({4 if st_ + 1 < 16 else 0})")
        for ct in range(2):
            c = "0" if st_ == 0 else v(PA_[ct], 16)
            a(f"{MF} {v(PA_[ct],16)}, {v(OFR+4*st_,4)}, {v(WB[st_&1]+4*ct,4)}, {c}")
    a(f"s_xor_b32 s3, s{BW}, 1")
    a("s_lshl_b32 s3, s3, 12")
    a("s_add_u32 s3, s3, 65536")
    a(f"v_add_u32 v{t1}, s3, v1")
    a(f"s_and_b32 s33, s{BW}, 1")
    a("s_nop 7")
    a("s_cmp_eq_u32 s33, 0")
    a(f"s_cbranch_scc0 {P}_send0")
    for q in range(4): a(f"ds_write_b128 v{t1}, {v(PA_[1]+4*q,4)} offset:{q*1024}")
    a(f"s_branch {P}_sent")
    a.label(P + "_send0")
    a("s_nop 1")
    for q in range(4): a(f"ds_write_b128 v{t1}, {v(PA_[0]+4*q,4)} offset:{q*1024}")
    a("s_nop 1")
    for r in range(16): a(f"v_mov_b32 v{PA_[0]+r}, v{PA_[1]+r}")
    a.label(P + "_sent")
    bar()
    a(f"s_lshl_b32 s3, s{BW}, 12")
    a("s_add_u32 s3, s3, 65536")
    a(f"v_add_u32 v{t1}, s3, v1")
    for q in range(4): a(f"ds_read_b128 {v(88+4*q,4)}, v{t1} offset:{q*1024}")
    a("s_waitcnt lgkmcnt(0)")
    for r in range(16):
        a(f"v_add_f32 v{88+r}, v{88+r}, v{PA_[0]+r}")
        a(f"v_fma_f32 v{88+r}, v{GT+r}, v{88+r}, v{YT+r}")
    for r in range(16):
        a(f"buffer_store_dword v{88+r}, v{VO_}, s[48:51], 0 offen offset:{(r%2)*1792}{os.environ.get('OST', '')}")
        if r % 2 == 1 and r < 15: a(f"v_add_u32 v{VO_}, {2*1792}, v{VO_}")
    pf.stamp(14)
    a(f"s_branch {P}_end")
    a.label(P + "_skip")
    if os.environ.get("S3", "b") in ("b", "u", "late", "wo", "bi", "go"): stage3("b")
    a(f"v_mov_b32 v54, {L_CNT}")
    a("v_mov_b32 v55, 1")
    a("s_mov_b64 exec, 1")
    a(f"ds_add_u32 v54, v55 offset:{C_HCNT}")
    a("s_mov_b64 exec, -1")
    a.label(P + "_end")

def lds_wait(a, coff, target, vaddr, vtmp, lab, sleep=1):
    a.label(lab)
    a(f"ds_read_b32 v{vtmp}, v{vaddr} offset:{coff}")
    a("s_waitcnt lgkmcnt(0)")
    a(f"v_readfirstlane_b32 s3, v{vtmp}")
    a(f"s_cmp_ge_u32 s3, {target}")
    a(f"s_cbranch_scc1 {lab}_ok")
    a(f"s_sleep {sleep}")
    a(f"s_sub_u32 s{SPIN}, s{SPIN}, 1")
    a(f"s_cbranch_scc0 {lab}")
    a(f"s_mov_b32 s{SPIN}, 0")
    a.label(lab + "_ok")

def lds_arrive(a, coff, vaddr, vtmp):
    a(f"v_mov_b32 v{vaddr}, {L_CNT}")
    a(f"v_mov_b32 v{vtmp}, 1")
    a("s_mov_b64 exec, 1")
    a(f"ds_add_u32 v{vaddr}, v{vtmp} offset:{coff}")
    a("s_mov_b64 exec, -1")

def dma_loop(a, lab, vaddr, n, dsrc, dlds):
    a("s_mov_b32 s36, %d" % n)
    a.label(lab)
    a("s_sub_u32 s36, s36, 1")
    a(f"buffer_load_dwordx4 v{vaddr}, s[{TR}:{TR+3}], s32 offen lds")
    a(f"s_add_u32 s32, s32, {dsrc}")
    a(f"s_add_u32 m0, m0, {dlds}")
    a("s_cmp_lg_u32 s36, 0")
    a(f"s_cbranch_scc1 {lab}")

def q_loop(a, acc, X4, W4, vxe, vxo, vw):
    def rd(j):
        k = j & 3
        a(f"ds_read_b128 {v(X4+4*k,4)}, v{vxo if j & 1 else vxe} offset:{(j>>1)*4096}")
        a(f"ds_read_b64_tr_b16 {v(W4+4*k,2)}, v{vw} offset:{j*2048}")
        a(f"ds_read_b64_tr_b16 {v(W4+4*k+2,2)}, v{vw} offset:{j*2048+512}")
    for j in range(4): rd(j)
    for j in range(28):
        left = min(3, 27 - j)
        a(f"s_waitcnt lgkmcnt({3*left})")
        c = "0" if j == 0 else v(acc, 16)
        a(f"{MF} {v(acc,16)}, {v(W4+4*(j&3),4)}, {v(X4+4*(j&3),4)}, {c}")
        if j + 4 < 28: rd(j + 4)

def gen_fused(a):
    name = NAME + "_kernel"
    a(f".globl {name}")
    a(".p2align 8")
    a(f".type {name},@function")
    a.label(name)
    END = "L_end"
    a("s_cmp_ge_u32 s2, 256")
    a(f"s_cbranch_scc1 {END}")
    a("s_load_dwordx16 s[64:79], s[0:1], 0")
    a("s_load_dwordx16 s[80:95], s[0:1], 64")
    a("s_load_dwordx4 s[96:99], s[0:1], 128")
    if "earlycode" in X:
        a("s_getpc_b64 s[56:57]")
        a.label("p0_pc0")
        a("v_lshlrev_b32 v148, 7, v0")
        a("s_mov_b32 s3, L_end-p0_pc0")
        a("v_min_u32 v148, s3, v148")
        a("global_load_dword v149, v148, s[56:57]")
    a("v_lshrrev_b32 v2, 6, v0")
    a("v_and_b32 v0, 63, v0")
    a(f"v_readfirstlane_b32 s{WV}, v2")
    a(f"v_mov_b32 v4, {L_CNT}")
    a("v_mov_b32 v5, 0")
    a("v_lshl_add_u32 v4, v0, 2, v4")
    a("ds_write_b32 v4, v5")
    a(f"s_and_b32 s{RB}, s2, 7")
    a(f"s_lshl_b32 s{RB}, s{RB}, 2")
    a(f"s_lshr_b32 s{J2}, s2, 3")
    a(f"s_and_b32 s3, s{J2}, 3")
    a(f"s_add_u32 s{RB}, s{RB}, s3")
    a(f"s_lshr_b32 s{J2}, s{J2}, 2")
    a("v_lshlrev_b32 v1, 4, v0")
    a(f"s_mov_b32 s{SPIN}, 0x100000")
    a(f"s_sub_u32 s{BW}, s{WV}, 8")
    pfA = Prof(a, 167)
    xtile_lane_off(a, 3, 0, 4, 5)
    a("s_waitcnt lgkmcnt(0)")
    srd(a, WSR, S_WS, WS_SIZE)
    if PROF: a("v_mov_b32 v167, 0")
    pfA.stamp(0)
    if PROF:
        a("s_getreg_b32 s60, hwreg(HW_REG_XCC_ID)")
        a("v_writelane_b32 v167, s60, 20")
        a("s_getreg_b32 s60, hwreg(HW_REG_HW_ID)")
        a("v_writelane_b32 v167, s60, 21")
    a(f"s_cmp_lt_u32 s{WV}, 4")
    a("s_cselect_b64 s[46:47], -1, 0")
    a(f"s_cmp_eq_u32 s{J2}, 0")
    a(f"s_cselect_b32 s{TR}, s{S_WK}, s{S_WV}")
    a(f"s_cselect_b32 s{TR+1}, s{S_WK+1}, s{S_WV+1}")
    a(f"s_mov_b32 s{TR+2}, {WKBYTES}")
    a(f"s_mov_b32 s{TR+3}, 0x00020000")
    a(f"s_mul_i32 s32, s{BW}, 7168")
    a(f"s_add_u32 s34, s32, {L_WKV}")
    a("s_mov_b32 s33, 1024")
    a("s_mov_b32 s35, 1024")
    a(f"s_cmp_lt_u32 s{J2}, 2")
    a("s_cselect_b32 s36, 7, 0")
    a(f"s_cmp_ge_u32 s{WV}, 8")
    a("s_cselect_b32 s36, s36, 0")
    a("v_cndmask_b32 v3, v1, v3, s[46:47]")
    a(f"s_mul_i32 s40, s{RB}, {64*896}")
    a(f"s_lshr_b32 s3, s{WV}, 1")
    a(f"s_mul_i32 s3, s3, {32*896}")
    a("s_add_u32 s40, s40, s3")
    a(f"s_and_b32 s3, s{WV}, 1")
    a(f"s_mul_i32 s3, s3, {8*896}")
    a("s_add_u32 s40, s40, s3")
    a(f"s_lshl_b32 s41, s{WV}, 10")
    a(f"s_cmp_lt_u32 s{WV}, 4")
    a(f"s_cselect_b32 s{TR}, s{S_X}, s{TR}")
    a(f"s_cselect_b32 s{TR+1}, s{S_X+1}, s{TR+1}")
    a(f"s_cselect_b32 s{TR+2}, {XBYTES}, s{TR+2}")
    a("s_cselect_b32 s32, s40, s32")
    a("s_cselect_b32 s34, s41, s34")
    a("s_cselect_b32 s33, 64, s33")
    a("s_cselect_b32 s35, 4096, s35")
    a("s_cselect_b32 s36, 14, s36")
    a("s_mov_b32 m0, s34")
    a("s_cmp_eq_u32 s36, 0")
    a("s_cbranch_scc1 p0_first_done")
    a.label("p0_first")
    a("s_sub_u32 s36, s36, 1")
    a(f"buffer_load_dwordx4 v3, s[{TR}:{TR+3}], s32 offen lds")
    a("s_add_u32 s32, s32, s33")
    a("s_add_u32 m0, m0, s35")
    a("s_cmp_lg_u32 s36, 0")
    a("s_cbranch_scc1 p0_first")
    a.label("p0_first_done")
    a(f"s_cmp_ge_u32 s{WV}, 8")
    a("s_cbranch_scc1 p0_bgw")
    a(f"s_cmp_ge_u32 s{WV}, 4")
    a("s_cbranch_scc1 p0_kvw")
    a("s_barrier")
    pfA.stamp(1)
    xfrag_addr(a, 6, 0, 4)
    tr_rowcol(a, 12, 13, 0, 4)
    a(f"s_lshr_b32 s38, s{WV}, 1")
    a(f"s_and_b32 s39, s{WV}, 1")
    a("s_lshl_b32 s3, s38, 11")
    a("v_add_u32 v6, s3, v6")
    a("v_xor_b32 v7, 32, v6")
    a("v_lshlrev_b32 v10, 7, v12")
    a("v_lshl_add_u32 v10, v13, 1, v10")
    a("s_mul_i32 s3, s39, 56")
    a(f"s_add_u32 s3, s3, {L_WQ}")
    a("v_add_u32 v10, s3, v10")
    a("s_waitcnt vmcnt(0)")
    lds_arrive(a, C_XR, 4, 5)
    pfA.stamp(2)
    a("s_waitcnt lgkmcnt(0)")
    a("s_barrier")
    pfA.stamp(3)
    q_loop(a, 16, 32, 48, 6, 7, 10)
    a(f"s_mov_b32 s42, {hex(QSCALE)}")
    a(f"s_lshl_b32 s3, s{WV}, 11")
    a(f"s_add_u32 s3, s3, {L_QX}")
    a("v_add_u32 v12, s3, v1")
    a("s_nop 7")
    a("s_nop 0")
    for i in range(16): a(f"v_mul_f32 v{16+i}, s42, v{16+i}")
    for i in range(8): a(f"v_cvt_pk_bf16_f32 v{32+i}, v{16+2*i}, v{17+2*i}")
    a("s_mov_b32 exec_lo, 0")
    a("v_mov_b32 v38, 0")
    a("v_mov_b32 v39, 0")
    a("s_mov_b32 exec_lo, -1")
    a("ds_write_b128 v12, v[32:35]")
    a("ds_write_b128 v12, v[36:39] offset:1024")
    a("s_branch p0_b1")
    a.label("p0_kvw")
    a(f"s_sub_u32 s39, s{WV}, 4")
    if "earlycode" not in X:
        a("s_getpc_b64 s[56:57]")
        a.label("p0_pc")
        a("s_lshl_b32 s3, s39, 13")
        a("v_lshlrev_b32 v150, 7, v0")
        a("v_add_u32 v150, s3, v150")
        a(f"s_sub_u32 s56, s56, p0_pc-{NAME}_kernel")
        a("s_subb_u32 s57, s57, 0")
        a(f"s_mov_b32 s3, L_end-{NAME}_kernel")
        a("v_min_u32 v150, s3, v150")
        a("global_load_dword v150, v150, s[56:57]")
    a("s_cmp_eq_u32 s39, 0")
    a("s_cbranch_scc0 p0_pf_out")
    a("v_lshlrev_b32 v151, 21, v0")
    a("s_mov_b64 exec, 7")
    a(f"buffer_load_dword v151, v151, s[{WSR}:{WSR+3}], 0 offen")
    a("s_mov_b64 exec, -1")
    a.label("p0_pf_out")
    a("s_cmp_eq_u32 s39, 1")
    a("s_cbranch_scc0 p0_pf_mall")
    srd(a, 48, S_OUT, OUTBYTES)
    a("v_mul_u32_u24 v151, 0x1c0000, v0")
    a("s_mov_b64 exec, 7")
    a("buffer_load_dword v151, v151, s[48:51], 0 offen")
    a("s_mov_b64 exec, -1")
    a.label("p0_pf_mall")
    if os.environ.get("S3") == "mall" or "mallwarm2" in X:
        a("s_cmp_eq_u32 s39, 3")
        a("s_cbranch_scc0 p0_pf_done")
        a("v_lshlrev_b32 v149, 7, v0")
        a(f"s_mul_i32 s3, s2, {13*128}")
        a(f"s_mov_b32 m0, {L_JUNK}")
        a("s_mov_b64 exec, 0x1fff")
        for sp in ((S_CRE, S_CIM, S_WO) if "mallb" not in X else (S_BRE, S_BIM, S_CRE, S_CIM, S_WO)):
            srd(a, 48, sp, WBYTES)
            a("buffer_load_dword v149, s[48:51], s3 offen lds")
        a("s_mov_b64 exec, -1")
    a.label("p0_pf_done")
    if "wqearly" in X:
        srd(a, TR, S_WQ, WBYTES)
        a("v_lshrrev_b32 v3, 3, v0")
        a("v_mul_u32_u24 v3, 896, v3")
        a("v_and_b32 v4, 7, v0")
        a("v_lshl_add_u32 v3, v4, 4, v3")
        a(f"s_mul_i32 s32, s39, {112*896}")
        a(f"s_mul_i32 s33, s{J2}, 112")
        a("s_add_u32 s32, s32, s33")
        a("s_mul_i32 s34, s39, 14336")
        a(f"s_add_u32 s34, s34, {L_WQ}")
        a("s_mov_b32 m0, s34")
        dma_loop(a, "p0_qdma2", 3, 14, 7168, 1024)
    a("s_barrier")
    a(f"s_cmp_ge_u32 s{J2}, 3")
    a("s_cbranch_scc1 p0_kv_none")
    a("s_lshr_b32 s38, s39, 1")
    a("s_and_b32 s39, s39, 1")
    a(f"s_mov_b32 s15, {1 if 'dry' in X else 0}")
    a("s_setprio 3")
    a.label("p0_kv_setup")
    a(f"s_mov_b32 s8, s{WSR}")
    a(f"s_mov_b32 s9, s{WSR+1}")
    a("s_cmp_eq_u32 s15, 0")
    a(f"s_cselect_b32 s10, {WS_SIZE}, 0")
    a("s_mov_b32 s11, 0x00020000")
    xfrag_addr(a, 6, 0, 4)
    tr_rowcol(a, 12, 13, 0, 4)
    a("s_lshl_b32 s3, s38, 11")
    a("s_mul_i32 s41, s39, 28672")
    a("s_add_u32 s3, s3, s41")
    a("v_add_u32 v6, s3, v6")
    a("v_xor_b32 v7, 32, v6")
    a("s_mul_i32 s40, s39, 14")
    a(f"s_cmp_eq_u32 s{J2}, 2")
    a("s_cbranch_scc1 p0_kv_gaddr")
    a("v_mul_u32_u24 v10, 56, v12")
    a("v_lshl_add_u32 v10, v13, 1, v10")
    a(f"s_mul_i32 s3, s40, {16*56}")
    a(f"s_add_u32 s3, s3, {L_WKV}")
    a("v_add_u32 v10, s3, v10")
    a("v_add_u32 v11, 224, v10")
    a(f"s_mov_b32 s42, {16*56}")
    a("s_branch p0_kv_addr_done")
    a.label("p0_kv_gaddr")
    a("v_lshlrev_b32 v10, 3, v12")
    a("s_lshl_b32 s3, s40, 7")
    a(f"s_add_u32 s3, s3, {L_WKV}")
    a("v_add_u32 v10, s3, v10")
    a("v_add_u32 v11, 32, v10")
    a("s_mov_b32 s42, 128")
    a.label("p0_kv_addr_done")
    a(f"v_mov_b32 v4, {L_CNT}")
    a("s_cmp_lg_u32 s15, 0")
    a("s_cbranch_scc1 p0_xr_ok")
    lds_wait(a, C_XR, 8, 4, 5, "p0_xr")
    pfA.stamp(2)
    def kv_rd(i):
        a(f"ds_read_b128 {v(32+4*i,4)}, v{6+(i&1)} offset:{(i>>1)*4096}")
        a(f"ds_read_b64_tr_b16 {v(88+4*i,2)}, v10")
        a(f"ds_read_b64_tr_b16 {v(88+4*i+2,2)}, v11")
        if i < 13:
            a("v_add_u32 v10, s42, v10")
            a("v_add_u32 v11, s42, v11")
    def kv_mm(swap, tag):
        for i in range(4): kv_rd(i)
        for i in range(14):
            a(f"s_waitcnt lgkmcnt({3*min(3, 13-i)})")
            A, B = (32+4*i, 88+4*i) if swap else (88+4*i, 32+4*i)
            a(f"{MF} v[16:31], {v(A,4)}, {v(B,4)}, {'0' if i == 0 else 'v[16:31]'}")
            if i + 4 < 14: kv_rd(i + 4)
    a(f"s_cmp_ge_u32 s{J2}, 1")
    a("s_cbranch_scc1 p0_kv_swap")
    kv_mm(False, "k")
    a("s_branch p0_kv_mm_done")
    a.label("p0_kv_swap")
    kv_mm(True, "v")
    a.label("p0_kv_mm_done")
    pfA.stamp(22)
    a("s_lshl_b32 s3, s38, 12")
    a(f"s_add_u32 s3, s3, {L_QX}")
    a("v_add_u32 v12, s3, v1")
    a("s_nop 7")
    a("s_nop 0")
    a("s_cmp_lg_u32 s15, 0")
    a("s_cbranch_scc1 p0_kv_root")
    a("s_cmp_eq_u32 s39, 0")
    a("s_cbranch_scc1 p0_kv_root")
    for q in range(4): a(f"ds_write_b128 v12, {v(16+4*q,4)} offset:{q*1024}")
    a("s_waitcnt lgkmcnt(0)")
    a("s_lshl_b32 s3, s38, 2")
    a(f"v_mov_b32 v4, {L_CNT}")
    a("v_add_u32 v4, s3, v4")
    a("v_mov_b32 v5, 1")
    a("s_mov_b64 exec, 1")
    a(f"ds_add_u32 v4, v5 offset:{C_KVR}")
    a("s_mov_b64 exec, -1")
    a("s_branch p0_kv_none")
    a.label("p0_kv_root")
    a("s_lshl_b32 s3, s38, 2")
    a(f"v_mov_b32 v4, {L_CNT}")
    a("v_add_u32 v4, s3, v4")
    a("s_cmp_lg_u32 s15, 0")
    a("s_cbranch_scc1 p0_kvr_ok")
    lds_wait(a, C_KVR, 1, 4, 5, "p0_kvr")
    pfA.stamp(23)
    for i in range(4): a(f"ds_read_b128 {v(32+4*i,4)}, v12 offset:{i*1024}")
    a("s_waitcnt lgkmcnt(0)")
    for r in range(16): a(f"v_add_f32 v{16+r}, v{16+r}, v{32+r}")
    a(f"s_lshl_b32 s43, s{RB}, 1")
    a("s_add_u32 s43, s43, s38")
    a(f"s_cmp_eq_u32 s{J2}, 2")
    a("s_cbranch_scc1 p0_gate_epi")
    for i in range(8): a(f"v_cvt_pk_bf16_f32 v{32+i}, v{16+2*i}, v{17+2*i}")
    a("s_lshl_b32 s44, s43, 12")
    a(f"s_add_u32 s44, s44, {WS_KV}")
    a(f"s_cmp_eq_u32 s{J2}, 1")
    a("s_cbranch_scc1 p0_v_epi")
    a("s_mov_b32 exec_lo, 0")
    a("v_mov_b32 v38, 0x3f803f80")
    a("v_mov_b32 v39, 0x00003f80")
    a("s_mov_b32 exec_lo, -1")
    a(f"buffer_store_dwordx4 v[32:35], v1, s[8:11], s44 offen{SC1}")
    a(f"buffer_store_dwordx4 v[36:39], v1, s[8:11], s44 offen offset:1024{SC1}")
    a("s_branch p0_kv_arrive")
    a.label("p0_v_epi")
    a("v_max3_f32 v14, |v16|, |v17|, |v18|")
    for j in range(3, 15, 2): a(f"v_max3_f32 v14, v14, |v{16+j}|, |v{17+j}|")
    a("v_max_f32 v14, v14, |v31|")
    a("v_and_b32 v13, 31, v0")
    a("v_cmp_gt_u32 s[46:47], 28, v13")
    a(f"v_cmp_lt_f32 vcc, {hex(VMAX)}, v14")
    a("s_and_b64 vcc, vcc, s[46:47]")
    a("s_cbranch_vccz p0_v_ok")
    a("s_cmp_lg_u32 s15, 0")
    a("s_cbranch_scc1 p0_v_ok")
    srd(a, 48, S_DBG, 256)
    a("v_mov_b32 v14, 1")
    a(f"v_mov_b32 v15, {D_BAD}")
    a("s_mov_b64 exec, 1")
    a(f"buffer_store_dword v14, v15, s[48:51], 0 offen{SC1}")
    a("s_mov_b64 exec, -1")
    a.label("p0_v_ok")
    a("v_and_b32 v13, 31, v0")
    a("v_cmp_eq_u32 vcc, 28, v13")
    a("v_mov_b32 v14, 0x3f803f80")
    a("s_nop 0")
    a("v_cndmask_b32 v14, 0, v14, vcc")
    a("v_cmp_lt_u32 vcc, 27, v13")
    a("s_nop 1")
    for i in range(8): a(f"v_cndmask_b32 v{32+i}, v{32+i}, v14, vcc")
    a(f"buffer_store_dwordx4 v[32:35], v1, s[8:11], s44 offen offset:2048{SC1}")
    a(f"buffer_store_dwordx4 v[36:39], v1, s[8:11], s44 offen offset:3072{SC1}")
    a("s_branch p0_kv_arrive")
    a.label("p0_gate_epi")
    a(f"s_mov_b32 s42, {hex(LOG2E)}")
    for i in range(16): a(f"v_mul_f32 v{16+i}, s42, v{16+i}")
    for i in range(16): a(f"v_exp_f32 v{16+i}, -v{16+i}")
    for i in range(16): a(f"v_add_f32 v{16+i}, 1.0, v{16+i}")
    for i in range(16): a(f"v_rcp_f32 v{16+i}, v{16+i}")
    a("v_lshrrev_b32 v13, 5, v0")
    a("v_lshlrev_b32 v13, 6, v13")
    a("s_lshl_b32 s44, s43, 7")
    a(f"s_add_u32 s44, s44, {WS_G}")
    a("v_and_b32 v14, 31, v0")
    a("v_cmp_eq_u32 vcc, 0, v14")
    a("s_and_saveexec_b64 s[46:47], vcc")
    for q in range(4):
        a(f"buffer_store_dwordx4 {v(16+4*q,4)}, v13, s[8:11], s44 offen offset:{16*q}{SC1}")
    a("s_mov_b64 exec, -1")
    a.label("p0_kv_arrive")
    a("s_cmp_eq_u32 s15, 0")
    a("s_cbranch_scc1 p0_kv_real")
    a("s_mov_b32 s15, 0")
    a("s_branch p0_kv_setup")
    a.label("p0_kv_real")
    pfA.stamp(10)
    a("s_mov_b32 s16, 1")
    a("s_branch p0_kv_b0")
    a.label("p0_kv_none")
    a("s_mov_b32 s16, 0")
    a.label("p0_kv_b0")
    a("s_setprio 0")
    if "wqearly" in X:
        a("s_cmp_eq_u32 s16, 0")
        a("s_cbranch_scc1 p0_kv_b0w")
        a(f"s_cmp_eq_u32 s{J2}, 2")
        a("s_cbranch_scc1 p0_kv_b0g")
        a("s_waitcnt vmcnt(2)")
        a("s_branch p0_kv_b0x")
        a.label("p0_kv_b0g")
        a("s_waitcnt vmcnt(4)")
        a("s_branch p0_kv_b0x")
        a.label("p0_kv_b0w")
        a("s_waitcnt vmcnt(0)")
        a.label("p0_kv_b0x")
    a("s_waitcnt lgkmcnt(0)")
    a("s_barrier")
    pfA.stamp(3)
    a("s_branch p0_b1")
    a.label("p0_bgw")
    a(f"s_cmp_eq_u32 s{WV}, 8")
    a("s_cbranch_scc0 p0_t9")
    srd(a, 48, S_X, XBYTES)
    a("s_and_b32 s3, s2, 7")
    a(f"s_mul_i32 s3, s3, {256*896}")
    a("s_lshr_b32 s46, s2, 3")
    a("s_mul_i32 s46, s46, 7168")
    a("s_add_u32 s3, s3, s46")
    a("v_lshlrev_b32 v50, 7, v0")
    a("s_mov_b32 exec_hi, 0xffffff")
    a("buffer_load_dword v52, v50, s[48:51], s3 offen")
    a("s_mov_b64 exec, -1")
    a("s_branch p0_t_done")
    a.label("p0_t9")
    a(f"s_cmp_eq_u32 s{WV}, 9")
    a("s_cbranch_scc0 p0_t10")
    touch_matrix(a, S_WQ, 52, 50)
    a("s_branch p0_t_done")
    a.label("p0_t10")
    a(f"s_cmp_eq_u32 s{WV}, 10")
    a("s_cbranch_scc0 p0_t_done")
    a("s_lshr_b32 s3, s2, 3")
    a(f"s_mul_i32 s3, s3, {7*128}")
    a("v_lshlrev_b32 v50, 7, v0")
    a("s_mov_b64 exec, 0x7f")
    srd(a, 48, S_WK, WKBYTES)
    a("buffer_load_dword v52, v50, s[48:51], s3 offen")
    srd(a, 48, S_WV, WKBYTES)
    a("buffer_load_dword v53, v50, s[48:51], s3 offen")
    a("s_mov_b64 exec, -1")
    a.label("p0_t_done")
    a(f"s_cmp_eq_u32 s{WV}, 11")
    a("s_cbranch_scc0 p0_nononce")
    a("s_cmp_eq_u32 s2, 0")
    a("s_cbranch_scc0 p0_nononce")
    srd(a, 48, S_DBG, 256)
    a("v_mov_b32 v7, 0")
    a("s_memrealtime s[60:61]")
    a("s_waitcnt lgkmcnt(0)")
    a("s_and_b32 s60, s60, 0xfffffffc")
    a("s_or_b32 s60, s60, 1")
    a("v_mov_b32 v6, s60")
    a("s_mov_b64 exec, 1")
    a(f"buffer_store_dword v6, v7, s[48:51], 0 offen offset:{D_NONCE}{SC1}")
    a("s_mov_b64 exec, -1")
    a.label("p0_nononce")
    a(f"s_cmp_eq_u32 s{J2}, 2")
    a("s_cbranch_scc0 p0_wkv_done")
    a(f"s_cmp_eq_u32 s{WV}, 8")
    a("s_cbranch_scc0 p0_wkv_done")
    srd(a, TR, S_GW, 896)
    a("v_lshlrev_b32 v3, 1, v0")
    for i in range(7):
        a(f"buffer_load_ushort v{10+i}, v3, s[{TR}:{TR+3}], 0 offen offset:{i*128}")
    a("v_lshlrev_b32 v4, 3, v0")
    a(f"v_add_u32 v4, {L_WKV}, v4")
    a("s_waitcnt vmcnt(0)")
    for i in range(7):
        a(f"v_lshl_or_b32 v{20+2*i}, v{10+i}, 16, v{10+i}")
        a(f"v_mov_b32 v{21+2*i}, v{20+2*i}")
        a(f"ds_write_b64 v4, {v(20+2*i,2)} offset:{i*512}")
    a.label("p0_wkv_done")
    a(f"s_lshl_b32 s37, s{J2}, 1")
    a(f"s_and_b32 s3, s{BW}, 1")
    a("s_add_u32 s37, s37, s3")
    a("v_and_b32 v4, 31, v0")
    a("s_lshl_b32 s3, s37, 6")
    a("v_lshl_add_u32 v4, v4, 1, s3")
    srd(a, 40, S_LRE, 896); a("buffer_load_ushort v8, v4, s[40:43], 0 offen")
    srd(a, 44, S_LIM, 896); a("buffer_load_ushort v9, v4, s[44:47], 0 offen")
    srd(a, 52, S_LDT, 896); a("buffer_load_ushort v10, v4, s[52:55], 0 offen")
    a("s_barrier")
    a("s_waitcnt vmcnt(3) lgkmcnt(0)")
    lds_arrive(a, C_XR, 4, 5)
    if "wqearly" not in X:
        srd(a, TR, S_WQ, WBYTES)
        a("v_lshrrev_b32 v3, 3, v0")
        a("v_mul_u32_u24 v3, 896, v3")
        a("v_and_b32 v4, 7, v0")
        a("v_lshl_add_u32 v3, v4, 4, v3")
        a(f"s_mul_i32 s32, s{BW}, {112*896}")
        a(f"s_mul_i32 s33, s{J2}, 112")
        a("s_add_u32 s32, s32, s33")
        a(f"s_mul_i32 s34, s{BW}, 14336")
        a(f"s_add_u32 s34, s34, {L_WQ}")
        a("s_mov_b32 m0, s34")
        dma_loop(a, "p0_qdma", 3, 14, 7168, 1024)
    a(f"s_cmp_gt_u32 s{WV}, 9")
    a("s_cbranch_scc1 p0_nob")
    a(f"s_cmp_eq_u32 s{WV}, 8")
    a(f"s_cselect_b32 s56, s{S_BRE}, s{S_BIM}")
    a(f"s_cselect_b32 s57, s{S_BRE+1}, s{S_BIM+1}")
    touch_matrix(a, 56, 52, 50)
    a("s_mov_b32 s17, 1")
    a("s_waitcnt vmcnt(2)" if "wqearly" in X else "s_waitcnt vmcnt(16)")
    a("s_branch p0_nob2")
    a.label("p0_nob")
    a("s_mov_b32 s17, 0")
    a("s_waitcnt vmcnt(0)" if "wqearly" in X else "s_waitcnt vmcnt(14)")
    a.label("p0_nob2")
    a(f"v_mov_b32 v4, {L_CNT}")
    lds_wait(a, C_XR, 8, 4, 5, "p0_xr2")
    xfrag_addr(a, 6, 0, 4)
    a(f"s_lshr_b32 s38, s{BW}, 1")
    a("s_lshl_b32 s3, s38, 11")
    a("v_add_u32 v6, s3, v6")
    a("v_xor_b32 v7, 32, v6")
    for j in range(28):
        a(f"ds_read_b128 {v(56+4*j,4)}, v{6 + (j&1)} offset:{(j>>1)*4096}")
        if j in (11, 21): a("s_waitcnt lgkmcnt(2)")
    a("v_lshlrev_b32 v8, 16, v8")
    a("v_lshlrev_b32 v9, 16, v9")
    a("v_lshlrev_b32 v10, 16, v10")
    a(f"v_mul_f32 v10, {hex(LOG2E)}, v10")
    a("v_exp_f32 v10, v10")
    a("s_nop 0")
    a("v_cvt_pk_bf16_f32 v10, v10, v10")
    a("v_lshlrev_b32 v10, 16, v10")
    a("v_mul_f32 v11, v10, v8")
    a("v_mul_f32 v12, v10, v9")
    a(f"v_mul_f32 v11, {hex(LOG2E)}, v11")
    a(f"v_mul_f32 v12, {hex(INV2PI)}, v12")
    a("v_exp_f32 v13, v11")
    a("v_fract_f32 v14, v12")
    a("s_nop 0")
    a("v_cos_f32 v2, v14")
    a("v_sin_f32 v3, v14")
    a("s_nop 0")
    a("v_mul_f32 v2, v2, v13")
    a("v_mul_f32 v3, v3, v13")
    a("v_add_f32 v13, -1.0, v2")
    a("v_mul_f32 v14, v8, v8")
    a("v_fma_f32 v14, v9, v9, v14")
    a("v_rcp_f32 v14, v14")
    a("v_mul_f32 v15, v13, v8")
    a("v_fma_f32 v15, v3, v9, v15")
    a("v_mul_f32 v16, v3, v8")
    a("v_fma_f32 v16, -v13, v9, v16")
    a("v_mul_f32 v4, v15, v14")
    a("v_mul_f32 v5, v16, v14")
    a("s_cmp_eq_u32 s17, 0")
    a("s_cbranch_scc1 p0_bgw0")
    a("s_waitcnt vmcnt(2) lgkmcnt(0)")
    a("s_branch p0_bgw1")
    a.label("p0_bgw0")
    a("s_waitcnt vmcnt(0) lgkmcnt(0)")
    a.label("p0_bgw1")
    a("s_barrier")
    a.label("p0_b1")
    a("s_waitcnt lgkmcnt(0)")
    if PROF:
        a(f"s_cmp_ge_u32 s{WV}, 8")
        a("s_cbranch_scc1 p0_b1_bgst")
        pfA.stamp(9)
        a("s_branch p0_b1_go")
        a.label("p0_b1_bgst")
        BgProf(a).stamp(4)
        a.label("p0_b1_go")
    a("s_barrier")
    a(f"s_cmp_ge_u32 s{WV}, 8")
    a("s_cbranch_scc1 p1_bg")
    a(f"s_cmp_lt_u32 s{WV}, 4")
    a("s_cbranch_scc1 p1_noarr")
    a("s_cmp_eq_u32 s16, 0")
    a("s_cbranch_scc1 p1_noarr")
    a(f"v_mov_b32 v14, {L_CNT}")
    a("v_mov_b32 v15, 1")
    a("s_waitcnt vmcnt(0)")
    pfA.stamp(11)
    a("s_mov_b64 exec, 1")
    a(f"s_or_b32 s3, s{RB}, s{J2}")
    a(f"s_cmp_eq_u32 s{WV}, 4")
    a("s_cselect_b32 s3, s3, 1")
    a("s_cmp_eq_u32 s3, 0")
    a("s_cbranch_scc0 p1_nok0")
    srd(a, 48, S_DBG, 256)
    a("v_mov_b32 v12, 1")
    a(f"v_mov_b32 v13, {D_K0}")
    a(f"buffer_store_dword v12, v13, s[48:51], 0 offen{SC1}")
    a.label("p1_nok0")
    a(f"ds_add_rtn_u32 v15, v14, v15 offset:{C_KVA}")
    a("s_waitcnt lgkmcnt(0)")
    a("v_readfirstlane_b32 s3, v15")
    a("s_cmp_eq_u32 s3, 1")
    a("s_cbranch_scc0 p1_arrdone")
    srd(a, 48, S_DBG, 256)
    a("v_mov_b32 v14, 1")
    a(f"s_cmp_eq_u32 s{J2}, 2")
    a(f"s_cselect_b32 s3, {D_GCNT}, {D_CNT}")
    a("v_mov_b32 v15, s3")
    a("buffer_atomic_add v14, v15, s[48:51], 0 offen sc0 sc1")
    if "kvfirst" in X:
        a(f"v_mov_b32 v12, {L_CNT}")
        a("v_mov_b32 v13, 1")
        a(f"ds_add_u32 v12, v13 offset:{C_KVI}")
    a("s_waitcnt vmcnt(0)")
    a("v_readfirstlane_b32 s3, v14")
    a(f"s_cmp_eq_u32 s{J2}, 2")
    a("s_cselect_b32 s46, 31, 63")
    a(f"s_mov_b32 s47, {D_GO}")
    a(f"s_cselect_b32 s47, {D_GOG}, s47")
    a("s_cmp_eq_u32 s3, s46")
    a("s_cbranch_scc0 p1_arrdone")
    a("v_mov_b32 v14, 1")
    a("v_mov_b32 v15, s47")
    a(f"buffer_store_dword v14, v15, s[48:51], 0 offen{SC1}")
    a.label("p1_arrdone")
    a("s_mov_b64 exec, -1")
    pfA.stamp(12)
    a.label("p1_noarr")
    if PROF: a("v_mov_b32 v0, v167")
    pf = Prof(a, 0)
    pf.stamp(4)
    gen_attention(a, pf)
    pf.flush(2)
    a(f"s_branch {END}")
    a.label("p1_bg")
    a(f"s_setprio {os.environ.get('BP', '3')}")
    gen_background(a, BgProf(a))
    a.label(END)
    a("s_endpgm")
    return name

class BgProf:
    def __init__(self, a): self.a = a; self.T = [54, 55]
    def stamp(self, slot):
        if not PROF or "noprofb" in X: return
        if "onlyb" in os.environ and str(slot) not in os.environ["onlyb"].split(","): return
        a = self.a
        a("s_memrealtime s[60:61]")
        a("s_lshl_b32 s62, s2, 4")
        a(f"s_add_u32 s62, s62, s{WV}")
        a("s_lshl_b32 s62, s62, 8")
        a(f"s_add_u32 s62, s62, {WS_PROF + 4*slot}")
        a("s_waitcnt vmcnt(0) lgkmcnt(0)")
        a("s_mov_b64 exec, 1")
        t0, t1 = self.T
        a(f"v_mov_b32 v{t0}, s60")
        a(f"v_mov_b32 v{t1}, 0")
        a(f"buffer_store_dword v{t0}, v{t1}, s[{WSR}:{WSR+3}], s62 offen")
        a("s_mov_b64 exec, -1")
        a("s_waitcnt vmcnt(0)")
    def flush(self): pass


DOC = """;
; ---------------------------------------------------------------------------------------------------------
; One persistent launch, 256 workgroups (one per CU) x 12 waves.  Workgroup = (rb: 64 rows of x, j2: head pair).
;                 exact carry by Horner), y = 2 Re(C h), then out = g * (O wo) + (1-g) * (y + x*Dskip).
;   workgroup fails, att_fallback recomputes the true row maxima over all keys (3-term bf16 split) and redoes the pass.
; Hand-offs between workgroups: write-through (sc1) payload stores, vmcnt(0), then a flag / counter; readers use sc1 loads.
; ---------------------------------------------------------------------------------------------------------
"""

def build():
    a = Asm()
    name = gen_fused(a)
    text = a.text()
    probs = check_hazards(text)
    ref = open("gated_mix__grouped_kv_mqa__ssm_conv_s5__prompt.s.ref").read().split("\n")
    pre = []
    for ln in ref:
        if not ln.startswith(";"): break
        if "Override launch" in ln or "grid=ceil" in ln or "@launch" in ln: continue
        pre.append(ln)
    head = "\n".join(pre) + "\n"
    head += f"; @launch grid=(256,1,1) block=(768,1,1) lds={LDS_TOTAL}\n"
    head += DOC
    out = head + '.amdgcn_target "amdgcn-amd-amdhsa--gfx950"\n.text\n' + text
    out += f""".section .rodata,"a"
.p2align 6
.amdhsa_kernel {name}
  .amdhsa_next_free_vgpr 168
  .amdhsa_next_free_sgpr 102
  .amdhsa_accum_offset 168
  .amdhsa_group_segment_fixed_size 0
  .amdhsa_kernarg_size 144
  .amdhsa_user_sgpr_count 2
  .amdhsa_user_sgpr_kernarg_segment_ptr 1
  .amdhsa_system_sgpr_workgroup_id_x 1
.end_amdhsa_kernel
"""
    return out, probs

if __name__ == "__main__":
    out, probs = build()
    open(sys.argv[1], "w").write(out)
    print("wrote", sys.argv[1], "hazards:", len(probs))
```

```python
import sys, os, struct, math
from asmlib import Asm, v, s, check_hazards

NAME = "gated_mix__grouped_kv_mqa__ssm_conv_s5__prompt"
X = set(os.environ.get('XF', '').split(','))
PROF = "prof" in X
def f2u(x): return struct.unpack("<I", struct.pack("<f", x))[0]
QSCALE = f2u(math.log2(math.e) / math.sqrt(28.0))
LOG2E = f2u(math.log2(math.e))
INV2PI = f2u(1.0 / (2.0 * math.pi))
MF = "v_mfma_f32_32x32x16_bf16"
SC1 = " sc1"
POLLSLEEP = int(os.environ.get('PS', '1'))

WS_KV = 0x000000
WS_G  = 0x040000
WS_FL = 0x042000
FL_H  = WS_FL
FL_O  = WS_FL + 0x1000
WS_E  = 0x048000
D_CNT, D_GCNT, D_GO, D_BAD, D_K0, D_NONCE, D_GOG = 0, 64, 128, 132, 136, 140, 144
WS_OF = 0x080000
WS_HF = 0x280000
WS_PROF = 0x800000
WS_SIZE = 0x1000000
XBYTES = 2048 * 448 * 2
WBYTES = 448 * 448 * 2
WKBYTES = 448 * 28 * 2
OUTBYTES = 2048 * 448 * 4

S_X, S_WQ, S_WK, S_WV, S_WO = 64, 66, 68, 70, 72
S_LRE, S_LIM = 76, 78
S_BRE, S_BIM, S_CRE, S_CIM, S_LDT, S_DSK, S_GW, S_OUT = 80, 82, 84, 86, 88, 90, 92, 94
S_DBG, S_WS = 96, 98
RB, J2, WV, BW = 20, 21, 22, 23
WSR = 24
TR = 28
NONCE = 19
SPIN = 18

L_X = 0; L_WQ = 57344; L_WKV = 114688; L_GW = 143360
L_QX = 147456
L_CNT = 163584
C_ATT, C_BG, C_NONCE, C_BAD, C_UDONE, C_HCNT, C_OCNT, C_XR, C_KVR, C_KVA, C_TRD, C_LEND, C_BL, C_KVI, C_YD, C_WOL, C_XF, C_WQR, C_B1F, C_QD = 0, 4, 8, 12, 16, 20, 24, 28, 32, 40, 44, 48, 52, 56, 60, 80, 84, 88, 92, 96
B_EX = 159744; B_HT = 90112
B_HT2 = 69632
L_C = 0
L_RED = 0
L_WO = 0
A_OP = 90112; A_LP = 155648
LDS_TOTAL = 163840

def srd(a, dst, src, nbytes):
    a(f"s_mov_b32 s{dst}, s{src}")
    a(f"s_mov_b32 s{dst+1}, s{src+1}")
    a(f"s_mov_b32 s{dst+2}, {hex(nbytes)}")
    a(f"s_mov_b32 s{dst+3}, 0x00020000")

class Prof:
    def __init__(self, a, vreg): self.a = a; self.v = vreg
    def stamp(self, slot):
        if not PROF or "noprofa" in X: return
        a = self.a
        a("s_memrealtime s[60:61]")
        a("s_memtime s[62:63]")
        a("s_waitcnt lgkmcnt(0)")
        a(f"v_writelane_b32 v{self.v}, s60, {slot}")
        a(f"v_writelane_b32 v{self.v}, s62, {slot+32}")
    def flush(self, vt):
        if not PROF: return
        a = self.a
        a("s_lshl_b32 s60, s2, 4")
        a(f"s_add_u32 s60, s60, s{WV}")
        a("s_lshl_b32 s60, s60, 8")
        a(f"s_add_u32 s60, s60, {WS_PROF}")
        a("s_mov_b64 exec, -1")
        a(f"v_mbcnt_lo_u32_b32 v{vt}, -1, 0")
        a(f"v_mbcnt_hi_u32_b32 v{vt}, -1, v{vt}")
        a(f"v_lshlrev_b32 v{vt}, 2, v{vt}")
        a(f"buffer_store_dword v{self.v}, v{vt}, s[{WSR}:{WSR+3}], s60 offen")
        a("s_waitcnt vmcnt(0)")

def xtile_lane_off(a, vd, vlane, vt0, vt1):
    a(f"v_lshrrev_b32 v{vt0}, 4, v{vlane}")
    a(f"v_and_b32 v{vt1}, 1, v{vt0}")
    a(f"v_lshlrev_b32 v{vt1}, 4, v{vt1}")
    a(f"v_lshrrev_b32 v{vd}, 5, v{vlane}")
    a(f"v_lshl_add_u32 v{vt1}, v{vd}, 2, v{vt1}")
    a(f"v_bfe_u32 v{vd}, v{vlane}, 2, 2")
    a(f"v_add_u32 v{vt1}, v{vt1}, v{vd}")
    a(f"v_mul_u32_u24 v{vt1}, 896, v{vt1}")
    a(f"v_and_b32 v{vd}, 3, v{vlane}")
    a(f"v_xor_b32 v{vd}, v{vd}, v{vt0}")
    a(f"v_lshl_add_u32 v{vd}, v{vd}, 4, v{vt1}")

def plain_lane_off(a, vd, vlane, vt0):
    a(f"v_lshrrev_b32 v{vt0}, 4, v{vlane}")
    a(f"v_and_b32 v{vd}, 3, v{vlane}")
    a(f"v_xor_b32 v{vd}, v{vd}, v{vt0}")
    a(f"v_lshlrev_b32 v{vd}, 4, v{vd}")
    a(f"v_lshrrev_b32 v{vt0}, 2, v{vlane}")
    a(f"v_mul_u32_u24 v{vt0}, 896, v{vt0}")
    a(f"v_add_u32 v{vd}, v{vd}, v{vt0}")

def xfrag_addr(a, vd, vlane, vt0):
    a(f"v_bfe_u32 v{vt0}, v{vlane}, 2, 2")
    a(f"v_lshrrev_b32 v{vd}, 5, v{vlane}")
    a(f"v_xor_b32 v{vt0}, v{vt0}, v{vd}")
    a(f"v_lshlrev_b32 v{vt0}, 4, v{vt0}")
    a(f"v_and_b32 v{vd}, 31, v{vlane}")
    a(f"v_lshl_add_u32 v{vd}, v{vd}, 6, v{vt0}")

def tr_rowcol(a, vrow, vcol, vlane, vt):
    a(f"v_lshrrev_b32 v{vrow}, 5, v{vlane}")
    a(f"v_lshlrev_b32 v{vrow}, 3, v{vrow}")
    a(f"v_bfe_u32 v{vt}, v{vlane}, 2, 2")
    a(f"v_add_u32 v{vrow}, v{vrow}, v{vt}")
    a(f"v_and_b32 v{vcol}, 16, v{vlane}")
    a(f"v_and_b32 v{vt}, 3, v{vlane}")
    a(f"v_lshl_add_u32 v{vcol}, v{vt}, 2, v{vcol}")

def proj_loop(a, swap, acc, xe, xo, we, wo_, vxe, vxo, vw1, vw2, s_wstep, s_cnt, lab):
    def rd(xr, wr, vx):
        a(f"ds_read_b128 {v(xr,4)}, v{vx}")
        a(f"ds_read_b64_tr_b16 {v(wr,2)}, v{vw1}")
        a(f"ds_read_b64_tr_b16 {v(wr+2,2)}, v{vw2}")
        a(f"v_add_u32 v{vx}, 0x1000, v{vx}")
        a(f"v_add_u32 v{vw1}, s{s_wstep}, v{vw1}")
        a(f"v_add_u32 v{vw2}, s{s_wstep}, v{vw2}")
    def mf(x, w):
        A, B = (x, w) if swap else (w, x)
        a(f"{MF} {v(acc,16)}, {v(A,4)}, {v(B,4)}, {v(acc,16)}")
    rd(xe, we, vxe); rd(xo, wo_, vxo)
    a(f"s_mov_b32 s{s_cnt}, 14")
    a.label(lab)
    a("s_waitcnt lgkmcnt(3)")
    mf(xe, we)
    rd(xe, we, vxe)
    a("s_waitcnt lgkmcnt(3)")
    mf(xo, wo_)
    rd(xo, wo_, vxo)
    a(f"s_sub_u32 s{s_cnt}, s{s_cnt}, 1")
    a(f"s_cmp_lg_u32 s{s_cnt}, 0")
    a(f"s_cbranch_scc1 {lab}")
    a("s_waitcnt lgkmcnt(0)")

def sw_barrier(a, coff, s_tgt, n, vaddr, vtmp, lab):
    a(f"s_add_u32 s{s_tgt}, s{s_tgt}, {n}")
    a(f"v_mov_b32 v{vtmp}, 1")
    a("s_waitcnt lgkmcnt(0)")
    a("s_mov_b64 exec, 1")
    a(f"ds_add_u32 v{vaddr}, v{vtmp} offset:{coff}")
    a("s_mov_b64 exec, -1")
    a.label(lab)
    a(f"ds_read_b32 v{vtmp}, v{vaddr} offset:{coff}")
    a("s_waitcnt lgkmcnt(0)")
    a(f"v_readfirstlane_b32 s3, v{vtmp}")
    a(f"s_cmp_ge_u32 s3, s{s_tgt}")
    a(f"s_cbranch_scc1 {lab}_ok")
    a("s_sleep 1")
    a(f"s_sub_u32 s{SPIN}, s{SPIN}, 1")
    a(f"s_cbranch_scc0 {lab}")
    a(f"s_mov_b32 s{SPIN}, 0")
    a.label(lab + "_ok")

def flag_store(a, soff_reg, vt0, vt1, val=None):
    a("s_mov_b64 exec, 1")
    a(f"v_mov_b32 v{vt0}, s{val if val is not None else NONCE}")
    a(f"v_mov_b32 v{vt1}, 0")
    a(f"buffer_store_dword v{vt0}, v{vt1}, s[{WSR}:{WSR+3}], s{soff_reg} offen{SC1}")
    a("s_mov_b64 exec, -1")

def arrive_flag(a, coff, n, soff_reg, vt0, vt1, lab):
    a(f"v_mov_b32 v{vt0}, {L_CNT}")
    a(f"v_mov_b32 v{vt1}, 1")
    a("s_waitcnt vmcnt(0)")
    a("s_mov_b64 exec, 1")
    a(f"ds_add_rtn_u32 v{vt1}, v{vt0}, v{vt1} offset:{coff}")
    a("s_waitcnt lgkmcnt(0)")
    a(f"v_readfirstlane_b32 s60, v{vt1}")
    a("s_mov_b64 exec, -1")
    a(f"s_cmp_eq_u32 s60, {n-1}")
    a(f"s_cbranch_scc0 {lab}")
    flag_store(a, soff_reg, vt0, vt1)
    a.label(lab)

def poll(a, lab, vdst, voff, soff_reg, mask_pair, sleep=None):
    sleep = POLLSLEEP if sleep is None else sleep
    a.label(lab)
    a(f"buffer_load_dword v{vdst}, v{voff}, s[{WSR}:{WSR+3}], s{soff_reg} offen{SC1}")
    a("s_waitcnt vmcnt(0)")
    a(f"v_cmp_ne_u32 vcc, s{NONCE}, v{vdst}")
    a(f"s_and_b64 vcc, vcc, s[{mask_pair}:{mask_pair+1}]")
    a(f"s_cbranch_vccz {lab}_ok")
    a(f"s_sleep {sleep}")
    a(f"s_sub_u32 s{SPIN}, s{SPIN}, 1")
    a(f"s_cbranch_scc0 {lab}")
    a(f"s_mov_b32 s{SPIN}, 0")
    a.label(lab + "_ok")

def cfma(a, hr, hi, lr, li, ur, ui, tr, ti):
    a(f"v_fma_f32 v{tr}, -v{li}, v{hi}, v{ur}")
    a(f"v_fma_f32 v{ti}, v{li}, v{hr}, v{ui}")
    a(f"v_fma_f32 v{hr}, v{lr}, v{hr}, v{tr}")
    a(f"v_fma_f32 v{hi}, v{lr}, v{hi}, v{ti}")

L_JUNK = 161792
def touch_matrix(a, sptr, vdst, vt, sr=48):
    srd(a, sr, sptr, WBYTES)
    a("s_lshr_b32 s3, s2, 3")
    a(f"s_mul_i32 s3, s3, {98*128}")
    a(f"v_lshlrev_b32 v{vt}, 7, v0")
    a(f"s_mov_b32 m0, {L_JUNK}")
    a("s_nop 0")
    a(f"buffer_load_dword v{vt}, s[{sr}:{sr+3}], s3 offen lds")
    a("s_add_u32 s3, s3, 8192")
    a("s_mov_b32 exec_hi, 3")
    a(f"buffer_load_dword v{vt}, s[{sr}:{sr+3}], s3 offen lds")
    a("s_mov_b64 exec, -1")

AQ, AO, AS, AK, AV, APB = 8, 40, [104, 120], [136, 144], [152, 160], 4

def att_unit(a, u, side):
    up = u - 1; un = u + 1
    cur = AS[u & 1]; prv = AS[(u + 1) & 1]
    Vp = AV[(up >> 2) & 1]; Op = AO + 16 * (up & 3)
    Kn = AK[(un >> 2) & 1]; Qn = AQ + 8 * (un & 3)
    side = list(side)
    def E(lo, hi):
        for j in range(lo, hi):
            a(f"v_exp_f32 v{cur+j}, v{cur+j}")
            if side:
                x = side.pop(0)
                if x: a(x)
    while side and isinstance(side[0], tuple):
        a(side.pop(0)[1])
    a(f"{MF} {v(Op,16)}, {v(Vp,4)}, {v(prv,4)}, {v(Op,16)}")
    E(0, 4)
    a(f"v_cvt_pk_bf16_f32 v{APB+2}, v{prv+12}, v{prv+13}")
    a(f"v_cvt_pk_bf16_f32 v{APB+3}, v{prv+14}, v{prv+15}")
    a(f"{MF} {v(prv,16)}, {v(Kn,4)}, {v(Qn,4)}, 0")
    E(4, 8)
    a(f"v_cvt_pk_bf16_f32 v{cur}, v{cur}, v{cur+1}")
    a(f"v_cvt_pk_bf16_f32 v{cur+1}, v{cur+2}, v{cur+3}")
    a(f"{MF} {v(prv,16)}, {v(Kn+4,4)}, {v(Qn+4,4)}, {v(prv,16)}")
    E(8, 12)
    a(f"v_cvt_pk_bf16_f32 v{cur+2}, v{cur+4}, v{cur+5}")
    a(f"v_cvt_pk_bf16_f32 v{cur+3}, v{cur+6}, v{cur+7}")
    a(f"{MF} {v(Op,16)}, {v(Vp+4,4)}, {v(APB,4)}, {v(Op,16)}")
    E(12, 16)
    a(f"v_cvt_pk_bf16_f32 v{APB}, v{cur+8}, v{cur+9}")
    a(f"v_cvt_pk_bf16_f32 v{APB+1}, v{cur+10}, v{cur+11}")
    assert not side, side

L_SEL = 162560
L_SH = 162048
LMAX = f2u(2.0 ** 90) if "forcefb" not in X else f2u(2.0 ** -20)
VMAX = f2u(2.0 ** 20)

def gen_attention(a, pf):
    P = "att"
    KR = TR
    a(f"v_add_u32 v2, {L_QX}, v1")
    for g in range(4):
        a(f"ds_read_b128 {v(AQ+8*g,4)}, v2 offset:{g*2048}")
        a(f"ds_read_b128 {v(AQ+8*g+4,4)}, v2 offset:{g*2048+1024}")
    a(f"s_add_u32 s{KR}, s{WSR}, {WS_KV}")
    a(f"s_addc_u32 s{KR+1}, s{WSR+1}, 0")
    a(f"s_mov_b32 s{KR+3}, 0x00020000")
    a("s_mov_b32 s44, 0")
    a("s_mov_b32 s51, 0")
    a(f"s_cmp_lt_u32 s{WV}, 4")
    a("s_cselect_b32 s53, 1, -1")
    a(f"s_cmp_eq_u32 s{WV}, 7")
    a(f"s_cbranch_scc0 {P}_nosel")
    a("v_lshrrev_b32 v104, 4, v1")
    a("v_and_b32 v105, 31, v104")
    a("v_lshrrev_b32 v104, 5, v104")
    a("v_lshlrev_b32 v104, 2, v104")
    a("v_sub_u32 v105, v105, v104")
    for j in range(4):
        d0 = (2 * j & 3) + 8 * ((2 * j) >> 2)
        a(f"v_cmp_eq_u32 vcc, {d0}, v105")
        a(f"v_mov_b32 v106, 0x3f80")
        a("s_nop 0")
        a(f"v_cndmask_b32 v{108+j}, 0, v106, vcc")
        a(f"v_cmp_eq_u32 vcc, {d0+1}, v105")
        a(f"v_mov_b32 v106, 0x3f800000")
        a("s_nop 0")
        a(f"v_cndmask_b32 v107, 0, v106, vcc")
        a(f"v_or_b32 v{108+j}, v{108+j}, v107")
    a(f"v_add_u32 v104, {L_SEL}, v1")
    a("ds_write_b128 v104, v[108:111]")
    a.label(P + "_nosel")
    srd(a, 56, S_DBG, 256)
    def phaseA():
        a(f"s_cmp_eq_u32 s{WV}, 0")
        a(f"s_cbranch_scc0 {P}_nopollA")
        a(f"v_mov_b32 v2, {D_K0}")
        a.label(P + "_pollA")
        a(f"buffer_load_dword v104, v2, s[56:59], 0 offen{SC1}")
        a("s_waitcnt vmcnt(0)")
        a("v_readfirstlane_b32 s3, v104")
        a("s_cmp_lg_u32 s3, 0")
        a(f"s_cbranch_scc1 {P}_nopollA")
        a(f"s_sleep {POLLSLEEP}")
        a(f"s_sub_u32 s{SPIN}, s{SPIN}, 1")
        a(f"s_cbranch_scc0 {P}_pollA")
        a(f"s_mov_b32 s{SPIN}, 0")
        a.label(P + "_nopollA")
        a(f"v_mov_b32 v3, {L_CNT}")
        sw_barrier(a, C_ATT, 44, 8, 3, 2, P + "_ba")
    def shiftblk():
        a(f"s_mov_b32 s{KR+2}, 0x40000")
        a(f"s_cmp_ge_u32 s{WV}, 4")
        a(f"s_cbranch_scc1 {P}_shhi" if "gomerge" in X else f"s_cbranch_scc1 {P}_shwait")
        a(f"buffer_load_dwordx4 {v(AS[1],4)}, v1, s[{KR}:{KR+3}], 0 offen{SC1}")
        a(f"buffer_load_dwordx4 {v(AS[1]+4,4)}, v1, s[{KR}:{KR+3}], 0 offen offset:1024{SC1}")
        a(f"s_lshl_b32 s3, s{WV}, 11")
        a(f"s_add_u32 s3, s3, {L_QX}")
        a("v_add_u32 v2, s3, v1")
        a(f"ds_read_b128 {v(AO,4)}, v2")
        a(f"ds_read_b128 {v(AO+4,4)}, v2 offset:1024")
        a("s_waitcnt vmcnt(0) lgkmcnt(0)")
        o = AO + 16
        a(f"{MF} {v(o,16)}, {v(AS[1],4)}, {v(AO,4)}, 0")
        a(f"{MF} {v(o,16)}, {v(AS[1]+4,4)}, {v(AO+4,4)}, {v(o,16)}")
        a(f"s_lshl_b32 s3, s{WV}, 7")
        a(f"s_add_u32 s3, s3, {L_SH}")
        a("v_lshrrev_b32 v3, 2, v1")
        a("v_and_b32 v3, 127, v3")
        a("v_add_u32 v3, s3, v3")
        a("s_nop 7")
        a(f"v_max3_f32 v2, v{o}, v{o+1}, v{o+2}")
        for j in range(3, 15, 2):
            a(f"v_max3_f32 v2, v2, v{o+j}, v{o+j+1}")
        a(f"v_max_f32 v2, v2, v{o+15}")
        a(f"v_mov_b32 v{AO}, v2")
        a("s_nop 1")
        a(f"v_permlane32_swap_b32 v2, v{AO}")
        a(f"v_max_f32 v2, v2, v{AO}")
        a("v_cvt_pk_bf16_f32 v2, -v2, 0")
        a("s_mov_b32 exec_hi, 0")
        a("ds_write_b32 v3, v2")
        a("s_mov_b64 exec, -1")
        if "gomerge" in X:
            a(f"s_branch {P}_shwait")
            a.label(P + "_shhi")
            a(f"s_cmp_eq_u32 s{WV}, 7")
            a(f"s_cbranch_scc0 {P}_shwait")
            a(f"v_mov_b32 v2, {D_GO}")
            a.label(P + "_pollm")
            a(f"buffer_load_dwordx2 v[104:105], v2, s[56:59], 0 offen{SC1}")
            a("s_waitcnt vmcnt(0)")
            a("v_readfirstlane_b32 s3, v104")
            a("s_cmp_lg_u32 s3, 0")
            a(f"s_cbranch_scc1 {P}_pollmok")
            a(f"s_sleep {POLLSLEEP}")
            a(f"s_sub_u32 s{SPIN}, s{SPIN}, 1")
            a(f"s_cbranch_scc0 {P}_pollm")
            a(f"s_mov_b32 s{SPIN}, 0")
            a.label(P + "_pollmok")
            a(f"v_mov_b32 v3, {L_CNT}")
            a("s_mov_b64 exec, 1")
            a(f"ds_add_u32 v3, v105 offset:{C_BAD}")
            a("s_mov_b64 exec, -1")
        a.label(P + "_shwait")
        a(f"v_mov_b32 v3, {L_CNT}")
        sw_barrier(a, C_ATT, 44, 8, 3, 2, P + "_bs")
        a("v_lshrrev_b32 v3, 2, v1")
        a("v_and_b32 v3, 127, v3")
        a(f"v_add_u32 v3, {L_SH}, v3")
        for g in range(4): a(f"ds_read_b32 v{AO+g}, v3 offset:{g*128}")
        a("s_waitcnt lgkmcnt(0)")
        a("s_mov_b32 exec_lo, 0")
        for g in range(4): a(f"v_mov_b32 v{AQ+8*g+6}, v{AO+g}")
        a("s_mov_b32 exec_lo, -1")
    def phaseB():
        a(f"s_cmp_eq_u32 s{WV}, 0")
        a(f"s_cbranch_scc0 {P}_nopoll")
        a(f"v_mov_b32 v2, {D_GO}")
        a.label(P + "_poll")
        a(f"buffer_load_dwordx2 v[104:105], v2, s[56:59], 0 offen{SC1}")
        a("s_waitcnt vmcnt(0)")
        a("v_readfirstlane_b32 s3, v104")
        a("s_cmp_lg_u32 s3, 0")
        a(f"s_cbranch_scc1 {P}_pollok")
        a(f"s_sleep {POLLSLEEP}")
        a(f"s_sub_u32 s{SPIN}, s{SPIN}, 1")
        a(f"s_cbranch_scc0 {P}_poll")
        a(f"s_mov_b32 s{SPIN}, 0")
        a.label(P + "_pollok")
        a(f"v_mov_b32 v3, {L_CNT}")
        a("s_mov_b64 exec, 1")
        a(f"ds_add_u32 v3, v105 offset:{C_BAD}")
        a("s_mov_b64 exec, -1")
        a.label(P + "_nopoll")
        a(f"v_mov_b32 v3, {L_CNT}")
        sw_barrier(a, C_ATT, 44, 8, 3, 2, P + "_b0")
        pf.stamp(5)
        a("s_lshr_b32 s52, s2, 3")
        a("s_lshl_b32 s52, s52, 3")
        a(f"s_add_u32 s52, s52, s{WV}")
        a("s_lshl_b32 s52, s52, 10")
    def mainloads():
        a.label(P + "_restart")
        a(f"s_mov_b32 s{KR+2}, 0x40000")
        a(f"s_lshl_b32 s43, s{WV}, 15")
        a(f"buffer_load_dwordx4 {v(AK[0],4)}, v1, s[{KR}:{KR+3}], s43 offen{SC1}")
        a(f"buffer_load_dwordx4 {v(AK[0]+4,4)}, v1, s[{KR}:{KR+3}], s43 offen offset:1024{SC1}")
        a(f"buffer_load_dwordx4 {v(AV[0],4)}, v1, s[{KR}:{KR+3}], s43 offen offset:2048{SC1}")
        a(f"buffer_load_dwordx4 {v(AV[0]+4,4)}, v1, s[{KR}:{KR+3}], s43 offen offset:3072{SC1}")
        a("s_add_u32 s43, s43, 4096")
        a(f"buffer_load_dwordx4 {v(AK[1],4)}, v1, s[{KR}:{KR+3}], s43 offen{SC1}")
        a(f"buffer_load_dwordx4 {v(AK[1]+4,4)}, v1, s[{KR}:{KR+3}], s43 offen offset:1024{SC1}")
        a(f"s_lshl_b32 s3, s{WV}, 9")
        a(f"s_mov_b32 m0, {L_JUNK}")
        a("v_lshlrev_b32 v2, 3, v1")
        a("s_mov_b64 exec, 0xff")
        a(f"buffer_load_dword v2, s[{KR}:{KR+3}], s52 offen{SC1} lds")
        a("s_mov_b64 exec, -1")
        for j in range(4): a(f"v_mov_b32 v{APB+j}, 0")
        for j in range(8): a(f"v_mov_b32 v{AV[1]+j}, 0")
    if "lateshift" in X:
        phaseB(); mainloads()
        a("s_cmp_lg_u32 s51, 0")
        a(f"s_cbranch_scc1 {P}_haveshift")
        shiftblk()
    elif "gomerge" in X:
        phaseA(); shiftblk()
        pf.stamp(5)
        a("s_lshr_b32 s52, s2, 3")
        a("s_lshl_b32 s52, s52, 3")
        a(f"s_add_u32 s52, s52, s{WV}")
        a("s_lshl_b32 s52, s52, 10")
        mainloads()
    else:
        phaseA(); shiftblk(); phaseB(); mainloads()
    a.label(P + "_haveshift")
    for j in (0, 1, 2, 3, 12, 13, 14, 15): a(f"v_mov_b32 v{AS[1]+j}, 0")
    a(f"s_and_b32 s3, s{WV}, 3")
    a("s_lshl_b32 s3, s3, 2")
    a(f"s_add_u32 s3, s3, {L_CNT + 64}")
    a("v_mov_b32 v2, s3")
    for g in range(4):
        a(f"{MF} {v(AO+16*g,16)}, {v(AV[1],4)}, {v(APB,4)}, 0")
    a("s_waitcnt vmcnt(5)")
    a(f"{MF} {v(AS[0],16)}, {v(AK[0],4)}, {v(AQ,4)}, 0")
    a(f"{MF} {v(AS[0],16)}, {v(AK[0]+4,4)}, {v(AQ+4,4)}, {v(AS[0],16)}")
    a("s_mov_b32 s48, 0")
    a("s_setprio 2")
    a("s_nop 7")
    a("s_nop 1")
    pf.stamp(6)
    a(".p2align 3")
    a.label(P + "_loop")
    for u in range(8):
        g = u & 3; par = (u >> 2) & 1
        side = []
        if g == 1:
            side.append(("q0", "s_waitcnt vmcnt(2)"))
            side.append(f"buffer_load_dwordx4 {v(AV[par^1],4)}, v1, s[{KR}:{KR+3}], s43 offen offset:2048{SC1}")
            side.append(f"buffer_load_dwordx4 {v(AV[par^1]+4,4)}, v1, s[{KR}:{KR+3}], s43 offen offset:3072{SC1}")
            side.append("s_add_u32 s43, s43, 4096")
            if par == 0:
                side.append("s_cmp_eq_u32 s48, 3")
                side.append(f"s_cselect_b32 s{KR+2}, 0, s{KR+2}")
        if g == 3:
            side += [None, None, None, "s_waitcnt vmcnt(2)"]
            side.append(f"buffer_load_dwordx4 {v(AK[par],4)}, v1, s[{KR}:{KR+3}], s43 offen{SC1}")
            side.append(f"buffer_load_dwordx4 {v(AK[par]+4,4)}, v1, s[{KR}:{KR+3}], s43 offen offset:1024{SC1}")
            if par == 1:
                side += ["s_add_u32 s48, s48, 1", None, None, None, None, None, None, None, None, "s_cmp_lt_u32 s48, 4"]
        if g == 0 and "nofair" not in X:
            side += ["v_mov_b32 v3, s53", None, "s_mov_b64 exec, 1\nds_add_rtn_u32 v3, v2, v3\ns_mov_b64 exec, -1"]
        if g == 2 and "nofair" not in X:
            lab = f"{P}_fp{u}"
            side += ["s_waitcnt lgkmcnt(0)", "v_readfirstlane_b32 s54, v3", None, "s_mul_i32 s54, s54, s53", "s_cmp_gt_i32 s54, 0",
                     f"s_cbranch_scc1 {lab}a\ns_setprio 2\ns_branch {lab}b\n{lab}a:\ns_setprio 1\n{lab}b:"]
        att_unit(a, u, side)
    a(f"s_cbranch_scc1 {P}_loop")
    prv = AS[1]
    a(f"{MF} {v(AO+48,16)}, {v(AV[1],4)}, {v(prv,4)}, {v(AO+48,16)}")
    a(f"v_cvt_pk_bf16_f32 v{APB+2}, v{prv+12}, v{prv+13}")
    a(f"v_cvt_pk_bf16_f32 v{APB+3}, v{prv+14}, v{prv+15}")
    a("s_nop 1")
    a(f"{MF} {v(AO+48,16)}, {v(AV[1]+4,4)}, {v(APB,4)}, {v(AO+48,16)}")
    pf.stamp(7)
    a("s_setprio 3")
    a("s_cmp_lg_u32 s51, 0")
    a(f"s_cbranch_scc1 {P}_nolend")
    lds_arrive(a, C_LEND, 2, 3)
    a.label(P + "_nolend")
    a(f"v_mov_b32 v3, {L_CNT}")
    a.label(P + "_udone")
    a(f"ds_read2_b32 v[104:105], v3 offset0:{C_NONCE//4} offset1:{C_HCNT//4}")
    a("s_waitcnt lgkmcnt(0)")
    a("v_readfirstlane_b32 s3, v105")
    a(f"v_readfirstlane_b32 s{NONCE}, v104")
    a("s_cmp_ge_u32 s3, 4")
    a(f"s_cbranch_scc1 {P}_udone_ok")
    a(f"s_sub_u32 s{SPIN}, s{SPIN}, 1")
    a(f"s_cbranch_scc0 {P}_udone")
    a(f"s_mov_b32 s{SPIN}, 0")
    a.label(P + "_udone_ok")
    a(f"s_lshl_b32 s3, s{WV}, 13")
    a(f"s_add_u32 s3, s3, {A_OP}")
    a(f"v_add_u32 v2, s3, v1")
    a(f"s_lshl_b32 s3, s{WV}, 9")
    a(f"s_add_u32 s3, s3, {A_LP}")
    a("v_lshrrev_b32 v3, 2, v1")
    a("v_and_b32 v4, 127, v3")
    a("v_add_u32 v4, s3, v4")
    a(f"s_mov_b32 s46, {hex(LMAX)}")
    a("s_mov_b64 s[56:57], 0")
    for g in range(4):
        o = AO + 16 * g
        if g == 3: a("s_nop 3")
        a("s_mov_b32 exec_lo, 0")
        a(f"ds_write_b32 v4, v{o+12} offset:{g*128}")
        a(f"v_cmp_nge_f32 vcc, s46, v{o+12}")
        a("s_mov_b32 exec_lo, -1")
        a("s_or_b64 s[56:57], s[56:57], vcc")
        for j in range(8):
            a(f"v_cvt_pk_bf16_f32 v{AS[0]+8*g+j}, v{o+2*j}, v{o+2*j+1}")
        a(f"ds_write_b128 v2, {v(AS[0]+8*g,4)} offset:{g*2048}")
        a(f"ds_write_b128 v2, {v(AS[0]+8*g+4,4)} offset:{g*2048+1024}")
    a(f"v_mov_b32 v3, {L_CNT}")
    a("s_cmp_eq_u64 s[56:57], 0")
    a(f"s_cbranch_scc1 {P}_safe")
    a("v_mov_b32 v2, 1")
    a("s_mov_b64 exec, 1")
    a(f"ds_add_u32 v3, v2 offset:{C_BAD}")
    a("s_mov_b64 exec, -1")
    a.label(P + "_safe")
    pf.stamp(17)
    sw_barrier(a, C_ATT, 44, 8, 3, 2, P + "_b1")
    pf.stamp(18)
    a(f"ds_read_b32 v2, v3 offset:{C_BAD}")
    a(f"s_lshl_b32 s3, s{WV}, 10")
    a(f"s_add_u32 s3, s3, {A_OP}")
    a("v_add_u32 v4, s3, v1")
    for w in range(8):
        a(f"ds_read_b128 {v(AO+4*w,4)}, v4 offset:{w*8192}")
    a(f"s_lshr_b32 s45, s{WV}, 1")
    a("s_lshl_b32 s3, s45, 7")
    a(f"s_add_u32 s3, s3, {A_LP}")
    a("v_lshrrev_b32 v3, 2, v1")
    a("v_and_b32 v3, 127, v3")
    a("v_add_u32 v3, s3, v3")
    a("s_waitcnt lgkmcnt(8)")
    a("v_readfirstlane_b32 s3, v2")
    a("s_cmp_lg_u32 s3, 0")
    a("s_cselect_b32 s3, 1, 0")
    a("s_andn2_b32 s3, s3, s51")
    a(f"s_cbranch_scc1 {P}_fallback")
    acc = AO + 48
    a(f"v_add_u32 v2, {L_SEL}, v1")
    a(f"ds_read_b128 {v(AO+40,4)}, v2")
    for w in range(6):
        a(f"ds_read_b32 v{AO+32+w}, v3 offset:{w*512}")
    for w in range(8):
        a(f"s_waitcnt lgkmcnt({6 if w < 1 else 6})") if w == 0 else None
        if w == 0:
            a(f"ds_read_b32 v{AO+38}, v3 offset:{6*512}")
            a(f"ds_read_b32 v{AO+39}, v3 offset:{7*512}")
        a(f"{MF} {v(acc,16)}, {v(AO+40,4)}, {v(AO+4*w,4)}, {'0' if w == 0 else v(acc,16)}")
    a("s_lshr_b32 s3, s45, 1")
    a(f"s_lshl_b32 s46, s{RB}, 1")
    a("s_add_u32 s3, s3, s46")
    a("s_lshl_b32 s3, s3, 4")
    a(f"s_lshl_b32 s46, s{J2}, 1")
    a("s_add_u32 s3, s3, s46")
    a("s_and_b32 s46, s45, 1")
    a("s_add_u32 s3, s3, s46")
    a("s_lshl_b32 s3, s3, 11")
    a(f"s_and_b32 s46, s{WV}, 1")
    a("s_lshl_b32 s46, s46, 10")
    a("s_add_u32 s3, s3, s46")
    a(f"s_add_u32 s47, s3, {WS_OF}")
    a("s_waitcnt lgkmcnt(0)")
    lds_arrive(a, C_TRD, 2, 3)
    l = AO + 32
    a(f"v_add_f32 v{l}, v{l}, v{l+1}")
    a(f"v_add_f32 v{l+2}, v{l+2}, v{l+3}")
    a(f"v_add_f32 v{l+4}, v{l+4}, v{l+5}")
    a(f"v_add_f32 v{l+6}, v{l+6}, v{l+7}")
    a(f"v_add_f32 v{l}, v{l}, v{l+2}")
    a(f"v_add_f32 v{l+4}, v{l+4}, v{l+6}")
    a(f"v_add_f32 v{l}, v{l}, v{l+4}")
    a(f"v_rcp_f32 v{l+1}, v{l}")
    a("s_nop 3")
    for j in range(8): a(f"v_mul_f32 v{acc+j}, v{acc+j}, v{l+1}")
    for j in range(4): a(f"v_cvt_pk_bf16_f32 v{AO+j}, v{acc+2*j}, v{acc+2*j+1}")
    a(f"s_and_b32 s3, s{WV}, 1")
    a("s_cmp_eq_u32 s3, 1")
    a("s_cselect_b32 exec_hi, -1, 0")
    a("s_mov_b32 exec_lo, 0")
    a(f"v_mov_b32 v{AO+2}, 0")
    a(f"v_mov_b32 v{AO+3}, 0")
    a("s_mov_b64 exec, -1")
    pf.stamp(19)
    a(f"buffer_store_dwordx4 {v(AO,4)}, v1, s[{WSR}:{WSR+3}], s47 offen{SC1}")
    if "dup" in X or "dupo" in X:
        a(f"buffer_store_dwordx4 {v(AO,4)}, v1, s[{WSR}:{WSR+3}], s47 offen")
    a(f"s_lshl_b32 s3, s{RB}, 5")
    a(f"s_add_u32 s3, s3, s{J2}")
    a("s_lshl_b32 s3, s3, 2")
    a(f"s_add_u32 s3, s3, {FL_O}")
    arrive_flag(a, C_OCNT, 8, 3, 2, 3, P + "_oflag")
    pf.stamp(8)
    if "wohelp" in X:
        a(f"s_cmp_eq_u32 s{J2}, 7")
        a(f"s_cbranch_scc1 {P}_done")
        a(f"v_mov_b32 v3, {L_CNT}")
        lds_wait(a, C_YD, 4, 3, 2, P + "_yd")
        srd(a, TR, S_WO, WBYTES)
        a("v_lshrrev_b32 v4, 4, v1")
        a("v_lshrrev_b32 v5, 3, v4")
        a("v_mul_u32_u24 v5, 896, v5")
        a("v_and_b32 v4, 7, v4")
        a("v_lshl_add_u32 v5, v4, 4, v5")
        a(f"s_mul_i32 s32, s{WV}, {56*896}")
        a(f"s_lshl_b32 s3, s{J2}, 7")
        a("s_add_u32 s32, s32, s3")
        a(f"s_mul_i32 s34, s{WV}, 7168")
        a("s_mov_b32 m0, s34")
        dma_loop(a, P + "_wodma", 5, 7, 7168, 1024)
        a("s_waitcnt vmcnt(0)")
        lds_arrive(a, C_WOL, 3, 2)
    a(f"s_branch {P}_done")
    a.label(P + "_fallback")
    a("s_waitcnt lgkmcnt(0)")
    a("s_mov_b32 s51, 1")
    a(f"s_mov_b32 s{KR+2}, 0x40000")
    a("s_mov_b32 exec_lo, 0")
    for g in range(4):
        a(f"v_mov_b32 v{AQ+8*g+6}, 0")
        a(f"v_mov_b32 v{AQ+8*g+7}, 0")
    a("s_mov_b32 exec_lo, -1")
    for g in range(4): a(f"v_mov_b32 v{APB+g}, 0xff800000")
    a("s_mov_b32 s43, 0")
    a.label(P + "_fb_loop")
    a(f"buffer_load_dwordx4 {v(AK[0],4)}, v1, s[{KR}:{KR+3}], s43 offen{SC1}")
    a(f"buffer_load_dwordx4 {v(AK[0]+4,4)}, v1, s[{KR}:{KR+3}], s43 offen offset:1024{SC1}")
    a("s_waitcnt vmcnt(0)")
    for g in range(4):
        o = AO + 16 * g
        a(f"{MF} {v(o,16)}, {v(AK[0],4)}, {v(AQ+8*g,4)}, 0")
        a(f"{MF} {v(o,16)}, {v(AK[0]+4,4)}, {v(AQ+8*g+4,4)}, {v(o,16)}")
    a("s_nop 7")
    for g in range(4):
        o = AO + 16 * g
        for j in range(0, 16, 2):
            a(f"v_max3_f32 v{APB+g}, v{APB+g}, v{o+j}, v{o+j+1}")
    a("s_add_u32 s43, s43, 4096")
    a("s_cmp_lt_u32 s43, 0x40000")
    a(f"s_cbranch_scc1 {P}_fb_loop")
    for g in range(4):
        m = APB + g
        a(f"v_mov_b32 v2, v{m}")
        a("s_nop 1")
        a(f"v_permlane32_swap_b32 v2, v{m}")
        a(f"v_max_f32 v2, v2, v{m}")
        a("v_sub_f32 v2, 0, v2")
        a("v_cvt_pk_bf16_f32 v3, v2, v2")
        a("v_and_b32 v3, 0xffff0000, v3")
        a(f"v_sub_f32 v{m}, v2, v3")
        a(f"v_cvt_pk_bf16_f32 v2, v{m}, v{m}")
        a("v_and_b32 v2, 0xffff0000, v2")
        a(f"v_sub_f32 v{m}, v{m}, v2")
        a(f"v_cvt_pk_bf16_f32 v{m}, v{m}, 0")
        a("v_lshrrev_b32 v3, 16, v3")
        a("v_or_b32 v3, v3, v2")
        a("s_mov_b32 exec_lo, 0")
        a(f"v_mov_b32 v{AQ+8*g+6}, v3")
        a(f"v_mov_b32 v{AQ+8*g+7}, v{m}")
        a("s_mov_b32 exec_lo, -1")
    a(f"v_mov_b32 v3, {L_CNT}")
    sw_barrier(a, C_ATT, 44, 8, 3, 2, P + "_bf")
    a(f"s_branch {P}_restart")
    a.label(P + "_done")

def gen_background(a, pf):
    P = "bg"
    XF = 56; ARE, AIM = 8, 24
    nbar = [0]
    T = [54, 55]
    pf.T = T
    def bar():
        nbar[0] += 1
        a(f"v_mov_b32 v{T[0]}, {L_CNT}")
        sw_barrier(a, C_BG, 44, 4, T[0], T[1], f"{P}_bar{nbar[0]}")
    def stage3(tag, vd_=156, vt_=158):
        if "nopf" in X: return
        a(f"s_cmp_eq_u32 s{BW}, 3")
        a(f"s_cbranch_scc1 {P}_not3{tag}")
        a(f"s_cmp_eq_u32 s{BW}, 0")
        a(f"s_cselect_b32 s56, s{S_CRE}, s{S_CIM}")
        a(f"s_cselect_b32 s57, s{S_CRE+1}, s{S_CIM+1}")
        a(f"s_cmp_eq_u32 s{BW}, 2")
        a(f"s_cselect_b32 s56, s{S_WO}, s56")
        a(f"s_cselect_b32 s57, s{S_WO+1}, s57")
        touch_matrix(a, 56, vd_, vt_)
        a.label(P + "_not3" + tag)
    a("s_mov_b32 s44, 0")
    a(f"s_lshl_b32 s37, s{J2}, 1")
    a(f"s_and_b32 s3, s{BW}, 1")
    a("s_add_u32 s37, s37, s3")
    a(f"s_lshr_b32 s38, s{BW}, 1")
    def nonce_get(tag, vd, vt):
        a(f"s_cmp_eq_u32 s{BW}, 3")
        a(f"s_cbranch_scc0 {P}_non{tag}")
        srd(a, 48, S_DBG, 256)
        a.label(P + "_np" + tag)
        a(f"v_readfirstlane_b32 s3, v{vd}")
        a("s_cmp_lg_u32 s3, 0")
        a(f"s_cbranch_scc1 {P}_npok{tag}")
        a(f"s_sleep {POLLSLEEP}")
        a(f"v_mov_b32 v{vt}, 0")
        a(f"buffer_load_dword v{vd}, v{vt}, s[48:51], 0 offen offset:{D_NONCE}{SC1}")
        a("s_waitcnt vmcnt(0)")
        a(f"s_sub_u32 s{SPIN}, s{SPIN}, 1")
        a(f"s_cbranch_scc0 {P}_np{tag}")
        a(f"s_mov_b32 s{SPIN}, 0")
        a.label(P + "_npok" + tag)
        a(f"v_mov_b32 v{vt}, {L_CNT}")
        a(f"ds_write_b32 v{vt}, v{vd} offset:{C_NONCE}")
        a.label(P + "_non" + tag)
    def nonce_issue(tag, vd, vt):
        a(f"s_cmp_eq_u32 s{BW}, 3")
        a(f"s_cbranch_scc0 {P}_noi{tag}")
        srd(a, 48, S_DBG, 256)
        a(f"v_mov_b32 v{vt}, 0")
        a(f"buffer_load_dword v{vd}, v{vt}, s[48:51], 0 offen offset:{D_NONCE}{SC1}")
        a.label(P + "_noi" + tag)
    srd(a, TR, S_WQ, WBYTES)
    a("v_lshrrev_b32 v20, 3, v0")
    a("v_mul_u32_u24 v20, 896, v20")
    a("v_and_b32 v21, 7, v0")
    a("v_lshl_add_u32 v20, v21, 4, v20")
    a(f"s_mul_i32 s32, s{BW}, {112*896}")
    a(f"s_mul_i32 s33, s{J2}, 112")
    a("s_add_u32 s32, s32, s33")
    a(f"s_mul_i32 s34, s{BW}, 14336")
    a(f"s_add_u32 s34, s34, {L_WQ}")
    a("s_mov_b32 m0, s34")
    dma_loop(a, P + "_qdma", 20, 14, 7168, 1024)
    a("s_mov_b32 s17, 0")
    if "btouch0" not in X:
        a(f"s_cmp_gt_u32 s{BW}, 1")
        a(f"s_cbranch_scc1 {P}_nob")
        a(f"s_cmp_eq_u32 s{BW}, 0")
        a(f"s_cselect_b32 s56, s{S_BRE}, s{S_BIM}")
        a(f"s_cselect_b32 s57, s{S_BRE+1}, s{S_BIM+1}")
        touch_matrix(a, 56, 52, 21)
        a("s_mov_b32 s17, 1")
        a.label(P + "_nob")
    a(f"s_cmp_eq_u32 s{J2}, 7")
    a(f"s_cbranch_scc1 {P}_skip")
    if "nobg" in X: a(f"s_branch {P}_skip")
    a(f"v_mov_b32 v16, {L_CNT}")
    lds_wait(a, C_XR, 8, 16, 17, P + "_xr")
    xfrag_addr(a, 6, 0, 16)
    a("s_lshl_b32 s3, s38, 11")
    a("v_add_u32 v6, s3, v6")
    a("v_xor_b32 v7, 32, v6")
    for j in range(28):
        a(f"ds_read_b128 {v(56+4*j,4)}, v{6 + (j&1)} offset:{(j>>1)*4096}")
        if j in (11, 21): a("s_waitcnt lgkmcnt(2)")
    a("s_cmp_eq_u32 s17, 0")
    a(f"s_cbranch_scc1 {P}_pw0")
    a("s_waitcnt vmcnt(16)")
    a.label(P + "_pw0")
    a("s_cmp_lg_u32 s17, 0")
    a(f"s_cbranch_scc1 {P}_pw1")
    a("s_waitcnt vmcnt(14)")
    a.label(P + "_pw1")
    a("v_lshlrev_b32 v8, 16, v8")
    a("v_lshlrev_b32 v9, 16, v9")
    a("v_lshlrev_b32 v10, 16, v10")
    a(f"v_mul_f32 v10, {hex(LOG2E)}, v10")
    a("v_exp_f32 v10, v10")
    a("s_nop 0")
    a("v_cvt_pk_bf16_f32 v10, v10, v10")
    a("v_lshlrev_b32 v10, 16, v10")
    a("v_mul_f32 v11, v10, v8")
    a("v_mul_f32 v12, v10, v9")
    a(f"v_mul_f32 v11, {hex(LOG2E)}, v11")
    a(f"v_mul_f32 v12, {hex(INV2PI)}, v12")
    a("v_exp_f32 v13, v11")
    a("v_fract_f32 v14, v12")
    a("s_nop 0")
    a("v_cos_f32 v2, v14")
    a("v_sin_f32 v3, v14")
    a("s_nop 0")
    a("v_mul_f32 v2, v2, v13")
    a("v_mul_f32 v3, v3, v13")
    a("v_add_f32 v13, -1.0, v2")
    a("v_mul_f32 v14, v8, v8")
    a("v_fma_f32 v14, v9, v9, v14")
    a("v_rcp_f32 v14, v14")
    a("v_mul_f32 v15, v13, v8")
    a("v_fma_f32 v15, v3, v9, v15")
    a("v_mul_f32 v16, v3, v8")
    a("v_fma_f32 v16, -v13, v9, v16")
    a("v_mul_f32 v4, v15, v14")
    a("v_mul_f32 v5, v16, v14")
    a("s_waitcnt lgkmcnt(0)")
    lds_arrive(a, C_XF, 16, 17)
    a("s_cmp_eq_u32 s17, 0")
    a(f"s_cbranch_scc1 {P}_qw0")
    a("s_waitcnt vmcnt(2)")
    a.label(P + "_qw0")
    a("s_cmp_lg_u32 s17, 0")
    a(f"s_cbranch_scc1 {P}_qw1")
    a("s_waitcnt vmcnt(0)")
    a.label(P + "_qw1")
    lds_arrive(a, C_WQR, 16, 17)
    a(f"s_and_b32 s3, s{BW}, 1")
    a("s_cmp_eq_u32 s3, 0")
    a(f"s_cselect_b32 s{TR}, s{S_BRE}, s{S_BIM}")
    a(f"s_cselect_b32 s{TR+1}, s{S_BRE+1}, s{S_BIM+1}")
    a(f"s_mov_b32 s{TR+2}, {WBYTES}")
    a(f"s_mov_b32 s{TR+3}, 0x00020000")
    plain_lane_off(a, 20, 0, 21)
    a(f"s_lshl_b32 s3, s{J2}, 1")
    a("s_add_u32 s3, s3, s38")
    a(f"s_mul_i32 s32, s3, {32*896}")
    def b_dma(lab, base, n):
        a(f"s_lshl_b32 s34, s{BW}, 11")
        if base: a(f"s_add_u32 s34, s34, {base}")
        a("s_mov_b32 m0, s34")
        a(f"s_mov_b32 s36, {n}")
        a.label(lab)
        a(f"s_add_u32 s33, s32, {16*896}")
        a(f"buffer_load_dwordx4 v20, s[{TR}:{TR+3}], s32 offen lds")
        a("s_add_u32 m0, m0, 1024")
        a("s_sub_u32 s36, s36, 1")
        a(f"buffer_load_dwordx4 v20, s[{TR}:{TR+3}], s33 offen lds")
        a("s_add_u32 s32, s32, 64")
        a(f"s_add_u32 m0, m0, {8192-1024}")
        a("s_cmp_lg_u32 s36, 0")
        a(f"s_cbranch_scc1 {lab}")
    a(f"v_mov_b32 v16, {L_CNT}")
    lds_wait(a, C_XF, 12, 16, 17, P + "_xf")
    b_dma(P + "_bdma1", 0, 7)
    b_dma(P + "_bdma2", L_WKV, 3)
    nonce_issue("a", 22, 21)
    xfrag_addr(a, 6, 0, 16)
    a(f"s_and_b32 s3, s{BW}, 1")
    a("s_lshl_b32 s3, s3, 12")
    a("v_add_u32 v6, s3, v6")
    a("v_xor_b32 v7, 32, v6")
    a("s_waitcnt vmcnt(0)")
    nonce_get("a", 22, 21)
    a("s_waitcnt lgkmcnt(0)")
    bar()
    a(f"ds_read_b32 v55, v54 offset:{C_NONCE}")
    a("s_waitcnt lgkmcnt(0)")
    a(f"v_readfirstlane_b32 s{NONCE}, v55")
    pf.stamp(5)
    a(f"v_mov_b32 v16, {L_CNT}")
    lds_wait(a, C_QD, 4, 16, 17, P + "_qd2")
    b_dma(P + "_bdma3", L_WQ, 4)
    S3 = os.environ.get("S3", "b")
    if S3 == "b": stage3("a", 52, 54)
    if os.environ.get("UP"): a(f"s_setprio {os.environ['UP']}")
    if S3 == "go": a("s_mov_b32 s17, 0")
    BB = [40, 48]
    def rdB(j):
        b = BB[j & 1]
        kb = j >> 1
        o = (kb if kb < 7 else (kb - 7 if kb < 10 else kb - 10)) * 8192
        if j in (14, 15): a(f"v_add_u32 v{6+(j&1)}, {L_WKV}, v{6+(j&1)}")
        a(f"ds_read_b128 {v(b,4)}, v{6+(j&1)} offset:{o}")
        a(f"ds_read_b128 {v(b+4,4)}, v{6+(j&1)} offset:{o+2048}")
    rdB(0); rdB(1)
    for j in range(28):
        b = BB[j & 1]
        a("s_waitcnt lgkmcnt(0)" if j in (19, 27) else "s_waitcnt lgkmcnt(2)")
        c1 = "0" if j == 0 else v(ARE,16); c2 = "0" if j == 0 else v(AIM,16)
        a(f"{MF} {v(ARE,16)}, {v(XF+4*j,4)}, {v(b,4)}, {c1}")
        a(f"{MF} {v(AIM,16)}, {v(XF+4*j,4)}, {v(b+4,4)}, {c2}")
        if j == 19:
            a(f"v_subrev_u32 v6, {L_WKV - L_WQ}, v6")
            a(f"v_subrev_u32 v7, {L_WKV - L_WQ}, v7")
            a("s_waitcnt vmcnt(0)")
            T[0], T[1] = 56, 57
            bar()
            T[0], T[1] = 54, 55
            rdB(20); rdB(21)
        elif j + 2 < 28 and j != 18:
            rdB(j + 2)
        if S3 == "go" and j in (5, 11, 17, 23, 27):
            lab = f"{P}_s3_{j}"
            a("s_cmp_lg_u32 s17, 0")
            a(f"s_cbranch_scc1 {lab}")
            if j != 27:
                a(f"v_mov_b32 v56, {L_CNT}")
                a(f"ds_read_b32 v57, v56 offset:{C_ATT}")
                a("s_waitcnt lgkmcnt(0)")
                a("v_readfirstlane_b32 s3, v57")
                a("s_cmp_lt_u32 s3, 16")
                a(f"s_cbranch_scc1 {lab}")
            a("s_mov_b32 s17, 1")
            stage3(f"g{j}", 56, 58)
            a.label(lab)
    if os.environ.get("UP"): a(f"s_setprio {os.environ.get('BP', '3')}")
    a(f"v_mov_b32 v54, {L_CNT}")
    a("v_mov_b32 v55, 1")
    a("s_mov_b64 exec, 1")
    a(f"ds_add_u32 v54, v55 offset:{C_UDONE}")
    a("s_mov_b64 exec, -1")
    pf.stamp(6)
    if S3 == "u": stage3("a")
    def csq(dr, di, sr, si):
        a(f"v_mul_f32 v46, v{si}, v{si}")
        a(f"v_mul_f32 v47, v{sr}, v{si}")
        a(f"v_fma_f32 v{dr}, v{sr}, v{sr}, -v46")
        a(f"v_add_f32 v{di}, v47, v47")
    csq(40, 41, 2, 3)
    for _ in range(3): csq(40, 41, 40, 41)
    csq(42, 43, 40, 41); csq(42, 43, 42, 43)
    csq(44, 45, 42, 43)
    for _ in range(3): csq(44, 45, 44, 45)
    a("v_mov_b32 v48, v4")
    a("v_mov_b32 v49, v4")
    a("v_mov_b32 v50, v5")
    a("v_mov_b32 v51, v5")
    for r in range(0, 16, 2):
        a(f"v_pk_mul_f32 v[46:47], v[50:51], {v(AIM+r,2)}")
        a(f"v_pk_mul_f32 v[52:53], v[50:51], {v(ARE+r,2)}")
        a(f"v_pk_fma_f32 {v(ARE+r,2)}, v[48:49], {v(ARE+r,2)}, v[46:47] neg_lo:[0,0,1] neg_hi:[0,0,1]")
        a(f"v_pk_fma_f32 {v(AIM+r,2)}, v[48:49], {v(AIM+r,2)}, v[52:53]")
    a(f"v_mov_b32 v48, v{ARE}")
    a(f"v_mov_b32 v49, v{AIM}")
    for r in range(1, 16):
        cfma(a, 48, 49, 2, 3, ARE + r, AIM + r, 46, 47)
    a("v_and_b32 v50, 31, v0")
    a("v_lshlrev_b32 v50, 3, v50")
    a(f"s_and_b32 s3, s{BW}, 1")
    a("s_lshl_b32 s3, s3, 10")
    a(f"s_add_u32 s3, s3, {B_EX}")
    a("v_add_u32 v50, s3, v50")
    a("v_lshrrev_b32 v51, 5, v0")
    a("s_lshl_b32 s3, s38, 1")
    a("v_add_u32 v51, s3, v51")
    a("v_lshl_add_u32 v52, v51, 8, v50")
    a("ds_write_b64 v52, v[48:49]")
    bar()
    for c in range(4):
        a(f"ds_read_b64 {v(56+2*c,2)}, v50 offset:{c*256}")
    a("s_waitcnt lgkmcnt(0)")
    a("v_mov_b32 v64, v56")
    a("v_mov_b32 v65, v57")
    for c in range(1, 4):
        cfma(a, 64, 65, 40, 41, 56 + 2*c, 57 + 2*c, 46, 47)
    a("s_cmp_eq_u32 s38, 1")
    a(f"s_cbranch_scc0 {P}_nopub")
    a(f"s_mul_i32 s3, s{RB}, {448*16}")
    a("s_lshl_b32 s33, s37, 9")
    a("s_add_u32 s3, s3, s33")
    a(f"s_add_u32 s3, s3, {WS_E}")
    a(f"v_mov_b32 v66, s{NONCE}")
    a(f"v_mov_b32 v67, s{NONCE}")
    a("v_and_b32 v68, 31, v0")
    a("v_lshlrev_b32 v68, 4, v68")
    a("s_mov_b32 exec_hi, 0")
    a(f"buffer_store_dwordx4 v[64:67], v68, s[{WSR}:{WSR+3}], s3 offen{SC1}")
    a("s_mov_b64 exec, -1")
    a.label(P + "_nopub")
    pf.stamp(7)
    a(f"s_add_u32 s48, s{WSR}, {WS_E}")
    a(f"s_addc_u32 s49, s{WSR+1}, 0")
    a(f"s_mov_b32 s50, {32*448*16}")
    a("s_mov_b32 s51, 0x00020000")
    a("v_lshrrev_b32 v67, 5, v0")
    a("v_lshlrev_b32 v67, 4, v67")
    a(f"v_sub_u32 v67, s{RB}, v67")
    a("v_add_u32 v67, -1, v67")
    a(f"s_mov_b32 s3, {448*16}")
    a("v_mul_lo_u32 v68, v67, s3")
    a("v_and_b32 v66, 31, v0")
    a("v_lshlrev_b32 v66, 4, v66")
    a("s_lshl_b32 s33, s37, 9")
    a("v_add3_u32 v68, v68, v66, s33")
    EG = 72
    for i in range(1, 16):
        a(f"v_subrev_u32 v{136+i}, {448*16*i}, v68")
    a("v_mov_b32 v136, v68")
    a("s_waitcnt vmcnt(0)")
    if "efirst" in X:
        a(f"s_branch {P}_pollE")
    else:
        a(f"s_cmp_eq_u32 s{RB}, 0")
        a(f"s_cbranch_scc1 {P}_pollE")
    a.label(P + "_pollE0")
    a("s_mov_b32 exec_hi, 0")
    a(f"buffer_load_dwordx3 {v(EG,3)}, v136, s[48:51], 0 offen{SC1}")
    a("s_mov_b64 exec, -1")
    a("s_waitcnt vmcnt(0)")
    a(f"v_cmp_ne_u32 vcc, s{NONCE}, v{EG+2}")
    a("s_cmp_eq_u32 vcc_lo, 0")
    a(f"s_cbranch_scc1 {P}_pollE")
    a(f"s_sleep {os.environ.get('ES', '6')}")
    a(f"s_sub_u32 s{SPIN}, s{SPIN}, 1")
    a(f"s_cbranch_scc0 {P}_pollE0")
    a(f"s_mov_b32 s{SPIN}, 0")
    a.label(P + "_pollE")
    for i in range(16):
        a(f"buffer_load_dwordx3 {v(EG+4*i,3)}, v{136+i}, s[48:51], 0 offen{SC1}")
    a("s_mov_b64 s[56:57], 0")
    a("s_waitcnt vmcnt(0)")
    for i in range(16):
        a(f"v_cmp_ne_u32 vcc, s{NONCE}, v{EG+4*i+2}")
        a(f"s_cmp_gt_u32 s{RB}, {i}")
        a("s_cselect_b32 s58, -1, 0")
        a(f"s_cmp_gt_u32 s{RB}, {i+16}")
        a("s_cselect_b32 s59, -1, 0")
        a("s_and_b64 vcc, vcc, s[58:59]")
        a("s_or_b64 s[56:57], s[56:57], vcc")
    a("s_cmp_eq_u64 s[56:57], 0")
    a(f"s_cbranch_scc1 {P}_pollE_ok")
    a("s_sleep 4" if "efirst" in X else "s_sleep 12")
    a(f"s_sub_u32 s{SPIN}, s{SPIN}, 1")
    a(f"s_cbranch_scc0 {P}_pollE0" if "efirst" in X else f"s_cbranch_scc0 {P}_pollE")
    a(f"s_mov_b32 s{SPIN}, 0")
    a.label(P + "_pollE_ok")
    pf.stamp(8)
    a(f"v_mov_b32 v68, v{EG+60}")
    a(f"v_mov_b32 v69, v{EG+61}")
    for i in range(14, -1, -1):
        cfma(a, 68, 69, 42, 43, EG + 4*i, EG + 4*i + 1, 46, 47)
    a("v_mov_b32 v70, v68")
    a("v_mov_b32 v71, v69")
    a("v_mov_b32 v72, v68")
    a("v_mov_b32 v73, v69")
    a("s_nop 1")
    a("v_permlane32_swap_b32 v70, v72")
    a("v_permlane32_swap_b32 v71, v73")
    cfma(a, 72, 73, 44, 45, 70, 71, 46, 47)
    for cp in range(3):
        a("v_mov_b32 v74, v72")
        a("v_mov_b32 v75, v73")
        cfma(a, 74, 75, 40, 41, 56 + 2*cp, 57 + 2*cp, 46, 47)
        a(f"v_cmp_lt_u32 vcc, {cp}, v51")
        a("s_nop 1")
        a("v_cndmask_b32 v72, v72, v74, vcc")
        a("v_cndmask_b32 v73, v73, v75, vcc")
    a(f"v_mov_b32 v66, {L_CNT}")
    lds_wait(a, C_QD, 4, 66, 67, P + "_qd")
    a(f"s_lshl_b32 s3, s{BW}, 12")
    a(f"s_add_u32 s3, s3, {B_HT}")
    a("v_and_b32 v66, 31, v0")
    a("v_lshlrev_b32 v66, 1, v66")
    a("v_lshrrev_b32 v67, 5, v0")
    a("v_lshl_add_u32 v66, v67, 8, v66")
    a("v_add_u32 v66, s3, v66")
    for r in range(16):
        cfma(a, 72, 73, 2, 3, ARE + r, AIM + r, 46, 47)
        a(f"v_cvt_pk_bf16_f32 v{76+(r&1)}, v72, -v73")
        slot = (r & 3) + 8 * (r >> 2)
        a(f"ds_write_b16 v66, v{76+(r&1)} offset:{slot*64}")
        a(f"ds_write_b16_d16_hi v66, v{76+(r&1)} offset:{2048+slot*64}")
    a("v_and_b32 v67, 31, v0")
    a("v_lshlrev_b32 v67, 6, v67")
    a("v_lshrrev_b32 v68, 5, v0")
    a("v_lshl_add_u32 v67, v68, 4, v67")
    a("v_add_u32 v67, s3, v67")
    a("s_waitcnt lgkmcnt(0)")
    for part in range(2):
        for jj in range(2):
            a(f"ds_read_b128 {v(80+8*part+4*jj,4)}, v67 offset:{part*2048+jj*32}")
    a(f"s_lshl_b32 s3, s{RB}, 1")
    a("s_add_u32 s3, s3, s38")
    a("s_mul_i32 s3, s3, 56")
    a("s_lshl_b32 s33, s37, 1")
    a("s_add_u32 s3, s3, s33")
    a("s_lshl_b32 s3, s3, 10")
    a(f"s_add_u32 s3, s3, {WS_HF}")
    a(f"s_add_u32 s33, s3, {28*1024}")
    a("s_waitcnt lgkmcnt(0)")
    a(f"buffer_store_dwordx4 {v(80,4)}, v1, s[{WSR}:{WSR+3}], s3 offen{SC1}")
    a(f"buffer_store_dwordx4 {v(84,4)}, v1, s[{WSR}:{WSR+3}], s3 offen offset:1024{SC1}")
    a(f"buffer_store_dwordx4 {v(88,4)}, v1, s[{WSR}:{WSR+3}], s33 offen{SC1}")
    a(f"buffer_store_dwordx4 {v(92,4)}, v1, s[{WSR}:{WSR+3}], s33 offen offset:1024{SC1}")
    if "dup" in X:
        a(f"buffer_store_dwordx4 {v(80,4)}, v1, s[{WSR}:{WSR+3}], s3 offen")
        a(f"buffer_store_dwordx4 {v(84,4)}, v1, s[{WSR}:{WSR+3}], s3 offen offset:1024")
        a(f"buffer_store_dwordx4 {v(88,4)}, v1, s[{WSR}:{WSR+3}], s33 offen")
        a(f"buffer_store_dwordx4 {v(92,4)}, v1, s[{WSR}:{WSR+3}], s33 offen offset:1024")
    a(f"s_lshl_b32 s3, s{RB}, 5")
    a(f"s_add_u32 s3, s3, s{J2}")
    a("s_lshl_b32 s3, s3, 2")
    a(f"s_add_u32 s3, s3, {FL_H}")
    arrive_flag(a, C_HCNT, 4, 3, 66, 67, P + "_hflag")
    pf.stamp(9)
    if "hwait" in X:
        a(f"v_mov_b32 v66, {L_CNT}")
        lds_wait(a, C_HCNT, 4, 66, 67, P + "_hall")
    if "lowc" in X: a("s_setprio 0")
    if os.environ.get("S3") == "late": stage3("c")
    if os.environ.get("S3") == "wo":
        a(f"s_cmp_eq_u32 s{BW}, 2")
        a(f"s_cbranch_scc0 {P}_notwo")
        touch_matrix(a, S_WO, 156, 158)
        a.label(P + "_notwo")
    a(f"s_lshr_b32 s3, s{BW}, 1")
    a("s_cmp_eq_u32 s3, 0")
    a(f"s_cselect_b32 s{TR}, s{S_CRE}, s{S_CIM}")
    a(f"s_cselect_b32 s{TR+1}, s{S_CRE+1}, s{S_CIM+1}")
    plain_lane_off(a, 53, 0, 69)
    a(f"s_mul_i32 s40, s{J2}, {64*896}")
    a(f"s_and_b32 s3, s{BW}, 1")
    a("s_mul_i32 s3, s3, 448")
    a("s_add_u32 s40, s40, s3")
    a(f"s_mul_i32 s41, s{BW}, 20480")
    CDMA = [53]
    def c_dma(kb):
        a(f"s_add_u32 m0, s41, {(kb % 5)*4096}")
        for q in range(4):
            a(f"s_add_u32 s33, s40, {q*16*896 + kb*64}")
            a(f"buffer_load_dwordx4 v{CDMA[0]}, s[{TR}:{TR+3}], s33 offen lds")
            if q < 3: a("s_add_u32 m0, m0, 1024")
    for kb in range(5): c_dma(kb)
    if "lowc2" in X: a("s_setprio 3")
    a(f"s_cmp_eq_u32 s{BW}, 0")
    a(f"s_cbranch_scc0 {P}_nopollH2" if "gpar" in X else f"s_cbranch_scc0 {P}_nopollH")
    a("v_lshlrev_b32 v67, 2, v0")
    a(f"s_lshl_b32 s35, s{RB}, 7")
    a(f"s_add_u32 s35, s35, {FL_H}")
    a("s_mov_b64 s[58:59], 0x7f")
    poll(a, P + "_pollH", 68, 67, 35, 58)
    if "gpar" in X:
        a(f"s_branch {P}_pollG_ok")
        a.label(P + "_nopollH2")
        a(f"s_cmp_eq_u32 s{BW}, 1")
        a(f"s_cbranch_scc0 {P}_pollG_ok")
    srd(a, 48, S_DBG, 256)
    a(f"v_mov_b32 v67, {D_GOG}")
    a.label(P + "_pollG")
    a(f"buffer_load_dword v68, v67, s[48:51], 0 offen{SC1}")
    a("s_waitcnt vmcnt(0)")
    a("v_readfirstlane_b32 s3, v68")
    a("s_cmp_lg_u32 s3, 0")
    a(f"s_cbranch_scc1 {P}_pollG_ok")
    a(f"s_sleep {POLLSLEEP}")
    a(f"s_sub_u32 s{SPIN}, s{SPIN}, 1")
    a(f"s_cbranch_scc0 {P}_pollG")
    a(f"s_mov_b32 s{SPIN}, 0")
    a.label(P + "_pollG_ok")
    a.label(P + "_nopollH")
    a("s_waitcnt vmcnt(0)")
    bar()
    pf.stamp(10)
    T[0], T[1] = 4, 5
    ACC = 8
    XS, GT = 136, 152
    if "lowy" in X and "lowlate" not in X: a(f"s_setprio {os.environ.get('YLOW', '0')}")
    a(f"s_lshl_b32 s3, s{RB}, 1")
    a("s_mul_i32 s3, s3, 56")
    a(f"s_mul_i32 s33, s{BW}, 14")
    a("s_add_u32 s3, s3, s33")
    a("s_lshl_b32 s3, s3, 10")
    a(f"s_add_u32 s32, s3, {WS_HF}")
    a(f"s_add_u32 s34, s32, {56*1024}")
    AF = 88; NA = 10
    plain_lane_off(a, 2, 0, 72)
    CDMA[0] = 2
    xfrag_addr(a, 6, 0, 72)
    a("v_add_u32 v6, s41, v6")
    a("v_xor_b32 v7, 32, v6")
    def ldA(st_):
        r = AF + 8 * (st_ % NA)
        a(f"s_add_u32 s35, s32, {st_*1024}")
        a(f"s_add_u32 s36, s34, {st_*1024}")
        a(f"buffer_load_dwordx4 {v(r,4)}, v1, s[{WSR}:{WSR+3}], s35 offen{SC1}")
        a(f"buffer_load_dwordx4 {v(r+4,4)}, v1, s[{WSR}:{WSR+3}], s36 offen{SC1}")
    for st_ in range(NA): ldA(st_)
    if "htouch" in X:
        a("v_lshlrev_b32 v72, 7, v0")
        a(f"s_mov_b32 m0, {L_JUNK}")
        a(f"s_add_u32 s35, s32, {NA*1024}")
        a(f"s_add_u32 s36, s34, {NA*1024}")
        a("s_mov_b32 exec_hi, 0")
        a(f"buffer_load_dword v72, s[{WSR}:{WSR+3}], s35 offen{SC1} lds")
        a(f"buffer_load_dword v72, s[{WSR}:{WSR+3}], s36 offen{SC1} lds")
        a("s_mov_b64 exec, -1")
    CB = [72, 80]
    def rdC(st_):
        b = CB[st_ & 1]
        kb = st_ >> 1
        a(f"ds_read_b128 {v(b,4)}, v{6+(st_&1)} offset:{(kb%5)*4096}")
        a(f"ds_read_b128 {v(b+4,4)}, v{6+(st_&1)} offset:{(kb%5)*4096+2048}")
    issued = []
    for st_ in range(NA): issued += [("A", st_)] * 2
    if "htouch" in X: issued += [("T", 0)] * 2
    HY = int(os.environ.get("HY", "0"))
    if HY:
        a(f"v_mov_b32 v4, {L_CNT}")
        lds_wait(a, C_LEND, HY, 4, 5, P + "_lend", sleep=8)
        a(f"s_setprio {os.environ.get('YP', '1')}")
    if "lowy" in X and "lowlate" in X: a(f"s_setprio {os.environ.get('YLOW', '0')}")
    rdC(0)
    for st_ in range(14):
        kb = st_ >> 1
        need = [("A", st_)]
        if st_ + 1 < 14 and ((st_ + 1) >> 1) >= 5: need.append(("C", (st_ + 1) >> 1))
        last = max(i for i, t in enumerate(issued) if t in need)
        n_out = len(issued) - 1 - last
        a(f"s_waitcnt vmcnt({n_out})")
        if st_ + 1 < 14: rdC(st_ + 1)
        a(f"s_waitcnt lgkmcnt({2 if st_ + 1 < 14 else 0})")
        b = CB[st_ & 1]; r = AF + 8 * (st_ % NA)
        for rt in range(2):
            for ct in range(2):
                acc = ACC + 16 * (2 * rt + ct)
                c = "0" if st_ == 0 else v(acc, 16)
                a(f"{MF} {v(acc,16)}, {v(r+4*rt,4)}, {v(b+4*ct,4)}, {c}")
        if st_ + NA < 14:
            ldA(NA + st_); issued += [("A", NA + st_)] * 2
        if (st_ & 1) == 1 and kb + 5 < 7:
            c_dma(kb + 5); issued += [("C", kb + 5)] * 4
    pf.stamp(11)
    a(f"s_lshl_b32 s3, s{RB}, 6")
    a("s_lshl_b32 s33, s38, 5")
    a("s_add_u32 s3, s3, s33")
    a("v_lshrrev_b32 v80, 5, v0")
    a("v_lshlrev_b32 v80, 4, v80")
    a("v_add_u32 v80, s3, v80")
    a(f"s_lshl_b32 s33, s{J2}, 6")
    a(f"s_and_b32 s35, s{BW}, 1")
    a("s_lshl_b32 s35, s35, 5")
    a("s_add_u32 s33, s33, s35")
    a("v_and_b32 v81, 31, v0")
    a("v_add_u32 v81, s33, v81")
    srd(a, 48, S_X, XBYTES)
    a("v_mul_u32_u24 v82, 896, v80")
    a("v_lshl_add_u32 v82, v81, 1, v82")
    for r in range(16):
        a(f"buffer_load_ushort v{XS+r}, v82, s[48:51], 0 offen offset:{(r%4)*896}")
        if r % 4 == 3 and r < 15: a(f"v_add_u32 v82, {4*896}, v82")
    srd(a, 52, S_DSK, 896)
    a("v_lshlrev_b32 v83, 1, v81")
    a("buffer_load_ushort v3, v83, s[52:55], 0 offen")
    a("v_lshlrev_b32 v83, 2, v80")
    a(f"s_mov_b32 s35, {WS_G}")
    for q in range(4):
        a(f"buffer_load_dwordx4 {v(GT+4*q,4)}, v83, s[{WSR}:{WSR+3}], s35 offen offset:{16*q}{SC1}")

    a(f"s_setprio {os.environ.get('YP2', '2')}")
    bar()
    def wo_dma(t1, t2, z):
        srd(a, TR, S_WO, WBYTES)
        a(f"v_lshrrev_b32 v{t1}, 3, v0")
        a(f"v_mul_u32_u24 v{t1}, 896, v{t1}")
        a(f"v_and_b32 v{t2}, 7, v0")
        a(f"v_lshl_add_u32 v{t1}, v{t2}, 4, v{t1}")
        a(f"s_mul_i32 s32, s{BW}, {112*896}")
        a(f"s_lshl_b32 s3, s{J2}, 7")
        a("s_add_u32 s32, s32, s3")
        a(f"s_mul_i32 s34, s{BW}, 14336")
        a("s_mov_b32 m0, s34")
        a("s_mov_b32 s36, 14")
        a.label(P + "_wodma")
        a("s_sub_u32 s36, s36, 1")
        a(f"buffer_load_dwordx4 v{t1}, s[{TR}:{TR+3}], s32 offen lds")
        a("s_add_u32 s32, s32, 7168")
        a("s_add_u32 m0, m0, 1024")
        a("s_cmp_lg_u32 s36, 0")
        a(f"s_cbranch_scc1 {P}_wodma")
        a(f"v_mov_b32 v{z}, 0")
        a(f"v_mov_b32 v{z+1}, 0")
        a(f"v_lshlrev_b32 v{t2}, 3, v0")
        a(f"ds_write_b64 v{t2}, v[{z}:{z+1}] offset:57344")
    t1 = 75
    if "wohelp" in X:
        lds_arrive(a, C_YD, 4, 5)
        a("v_mov_b32 v80, 0")
        a("v_mov_b32 v81, 0")
        a("v_lshlrev_b32 v76, 3, v0")
        a("ds_write_b64 v76, v[80:81] offset:57344")
    elif "wolate" not in X: wo_dma(75, 76, 80)
    a(f"v_mov_b32 v4, {L_CNT}")
    lds_wait(a, C_TRD, 8, 4, 5, P + "_trd")
    a(f"s_lshl_b32 s3, s{BW}, 12")
    a(f"s_add_u32 s3, s3, {A_OP}")
    a(f"v_add_u32 v{t1}, s3, v1")
    for t in range(4):
        for q in range(4):
            a(f"ds_write_b128 v{t1}, {v(ACC+16*t+4*q,4)} offset:{t*16384+q*1024}")
    bar()
    a(f"s_lshl_b32 s3, s{BW}, 14")
    a(f"s_add_u32 s3, s3, {A_OP}")
    a(f"v_add_u32 v{t1}, s3, v1")
    for src in range(3):
        for q in range(4):
            a(f"ds_read_b128 {v(88+16*src+4*q,4)}, v{t1} offset:{src*4096+q*1024}")
    YT = 8
    for q in range(4):
        a(f"ds_read_b128 {v(YT+4*q,4)}, v{t1} offset:{3*4096+q*1024}")
        if q == 2: a("s_waitcnt lgkmcnt(4)")
    a("s_waitcnt lgkmcnt(0)")
    VT_, VD_, VO_, t1, t2, t3, t4, t5 = 40, 41, 42, 43, 44, 45, 46, 47
    a("s_waitcnt vmcnt(0)" if "wolate" in X else "s_waitcnt vmcnt(14)")
    for r in range(16):
        a(f"v_add_f32 v{88+r}, v{88+r}, v{104+r}")
        a(f"v_add_f32 v{YT+r}, v{YT+r}, v{120+r}")
    a("v_lshlrev_b32 v3, 16, v3")
    for r in range(16):
        a(f"v_add_f32 v{YT+r}, v{YT+r}, v{88+r}")
        a(f"v_lshlrev_b32 v{XS+r}, 16, v{XS+r}")
        a(f"v_mul_f32 v{XS+r}, v{XS+r}, v3")
        a(f"v_fma_f32 v{YT+r}, 2.0, v{YT+r}, v{XS+r}")
        a(f"v_sub_f32 v{XS+r}, 1.0, v{GT+r}")
        a(f"v_mul_f32 v{YT+r}, v{YT+r}, v{XS+r}")
    a(f"s_lshl_b32 s3, s{RB}, 6")
    a("s_lshl_b32 s33, s38, 5")
    a("s_add_u32 s3, s3, s33")
    a(f"v_lshrrev_b32 v{VT_}, 5, v0")
    a(f"v_lshlrev_b32 v{VT_}, 4, v{VT_}")
    a(f"v_add_u32 v{VT_}, s3, v{VT_}")
    a(f"s_lshl_b32 s33, s{J2}, 6")
    a(f"s_and_b32 s35, s{BW}, 1")
    a("s_lshl_b32 s35, s35, 5")
    a("s_add_u32 s33, s33, s35")
    a(f"v_and_b32 v{VD_}, 31, v0")
    a(f"v_add_u32 v{VD_}, s33, v{VD_}")
    a(f"v_mul_u32_u24 v{VO_}, 1792, v{VT_}")
    a(f"v_lshl_add_u32 v{VO_}, v{VD_}, 2, v{VO_}")
    srd(a, 48, S_OUT, OUTBYTES)
    a("v_lshrrev_b32 v6, 5, v0")
    a("v_lshlrev_b32 v6, 2, v6")
    a("v_bfe_u32 v7, v0, 2, 2")
    a("v_add_u32 v6, v6, v7")
    a("v_lshlrev_b32 v6, 7, v6")
    a("v_and_b32 v7, 16, v0")
    a(f"v_and_b32 v{t1}, 3, v0")
    a(f"v_lshl_add_u32 v7, v{t1}, 2, v7")
    a("v_lshl_add_u32 v6, v7, 1, v6")
    a(f"s_and_b32 s3, s{BW}, 1")
    a(f"s_mul_i32 s3, s3, {8*28*128}")
    a("v_add_u32 v6, s3, v6")
    if "wohelp" in X:
        a(f"v_mov_b32 v4, {L_CNT}")
        lds_wait(a, C_WOL, 8, 4, 5, P + "_wol")
    elif "wolate" in X:
        a(f"v_mov_b32 v4, {L_CNT}")
        lds_wait(a, C_OCNT, 8, 4, 5, P + "_opub")
        wo_dma(48, 49, 50)
    a("s_waitcnt vmcnt(0)")
    a("s_setprio 3")
    pf.stamp(12)
    bar()
    a(f"v_lshlrev_b32 v{t4}, 2, v0")
    a(f"s_lshl_b32 s35, s{RB}, 7")
    a(f"s_add_u32 s35, s35, {FL_O}")
    a("s_mov_b64 s[58:59], 0xff")
    poll(a, P + "_pollO", t5, t4, 35, 58)
    pf.stamp(13)
    a(f"s_lshl_b32 s3, s{RB}, 1")
    a("s_add_u32 s3, s3, s38")
    a("s_lshl_b32 s3, s3, 15")
    a(f"s_and_b32 s33, s{BW}, 1")
    a("s_lshl_b32 s33, s33, 14")
    a("s_add_u32 s3, s3, s33")
    a(f"s_add_u32 s32, s3, {WS_OF}")
    OFR = 88
    for st_ in range(16):
        a(f"s_add_u32 s33, s32, {st_*1024}")
        a(f"buffer_load_dwordx4 {v(OFR+4*st_,4)}, v1, s[{WSR}:{WSR+3}], s33 offen{SC1}")
    PA_ = [56, 72]
    WB = [24, 32]
    def rdW(st_):
        hd, f = st_ >> 1, st_ & 1
        off = (28 * hd + 16 * f) * 128
        b = WB[st_ & 1]
        for ct in range(2):
            a(f"ds_read_b64_tr_b16 {v(b+4*ct,2)}, v6 offset:{off+ct*64}")
            a(f"ds_read_b64_tr_b16 {v(b+4*ct+2,2)}, v6 offset:{off+ct*64+1024}")
    rdW(0)
    for st_ in range(16):
        if st_ + 1 < 16: rdW(st_ + 1)
        a(f"s_waitcnt vmcnt({15-st_}) lgkmcnt({4 if st_ + 1 < 16 else 0})")
        for ct in range(2):
            c = "0" if st_ == 0 else v(PA_[ct], 16)
            a(f"{MF} {v(PA_[ct],16)}, {v(OFR+4*st_,4)}, {v(WB[st_&1]+4*ct,4)}, {c}")
    a(f"s_xor_b32 s3, s{BW}, 1")
    a("s_lshl_b32 s3, s3, 12")
    a("s_add_u32 s3, s3, 65536")
    a(f"v_add_u32 v{t1}, s3, v1")
    a(f"s_and_b32 s33, s{BW}, 1")
    a("s_nop 7")
    a("s_cmp_eq_u32 s33, 0")
    a(f"s_cbranch_scc0 {P}_send0")
    for q in range(4): a(f"ds_write_b128 v{t1}, {v(PA_[1]+4*q,4)} offset:{q*1024}")
    a(f"s_branch {P}_sent")
    a.label(P + "_send0")
    a("s_nop 1")
    for q in range(4): a(f"ds_write_b128 v{t1}, {v(PA_[0]+4*q,4)} offset:{q*1024}")
    a("s_nop 1")
    for r in range(16): a(f"v_mov_b32 v{PA_[0]+r}, v{PA_[1]+r}")
    a.label(P + "_sent")
    bar()
    a(f"s_lshl_b32 s3, s{BW}, 12")
    a("s_add_u32 s3, s3, 65536")
    a(f"v_add_u32 v{t1}, s3, v1")
    for q in range(4): a(f"ds_read_b128 {v(88+4*q,4)}, v{t1} offset:{q*1024}")
    a("s_waitcnt lgkmcnt(0)")
    for r in range(16):
        a(f"v_add_f32 v{88+r}, v{88+r}, v{PA_[0]+r}")
        a(f"v_fma_f32 v{88+r}, v{GT+r}, v{88+r}, v{YT+r}")
    for r in range(16):
        a(f"buffer_store_dword v{88+r}, v{VO_}, s[48:51], 0 offen offset:{(r%2)*1792}{os.environ.get('OST', '')}")
        if r % 2 == 1 and r < 15: a(f"v_add_u32 v{VO_}, {2*1792}, v{VO_}")
    pf.stamp(14)
    a(f"s_branch {P}_end")
    a.label(P + "_skip")
    lds_arrive(a, C_XF, 16, 17)
    nonce_issue("b", 22, 21)
    a("s_waitcnt vmcnt(0)")
    lds_arrive(a, C_WQR, 16, 17)
    nonce_get("b", 22, 21)
    a("s_waitcnt lgkmcnt(0)")
    if os.environ.get("S3", "b") in ("b", "u"): stage3("b")
    lds_arrive(a, C_HCNT, 54, 55)
    a.label(P + "_end")

def lds_wait(a, coff, target, vaddr, vtmp, lab, sleep=1):
    a.label(lab)
    a(f"ds_read_b32 v{vtmp}, v{vaddr} offset:{coff}")
    a("s_waitcnt lgkmcnt(0)")
    a(f"v_readfirstlane_b32 s3, v{vtmp}")
    a(f"s_cmp_ge_u32 s3, {target}")
    a(f"s_cbranch_scc1 {lab}_ok")
    a(f"s_sleep {sleep}")
    a(f"s_sub_u32 s{SPIN}, s{SPIN}, 1")
    a(f"s_cbranch_scc0 {lab}")
    a(f"s_mov_b32 s{SPIN}, 0")
    a.label(lab + "_ok")

def lds_arrive(a, coff, vaddr, vtmp):
    a(f"v_mov_b32 v{vaddr}, {L_CNT}")
    a(f"v_mov_b32 v{vtmp}, 1")
    a("s_mov_b64 exec, 1")
    a(f"ds_add_u32 v{vaddr}, v{vtmp} offset:{coff}")
    a("s_mov_b64 exec, -1")

def dma_loop(a, lab, vaddr, n, dsrc, dlds):
    a("s_mov_b32 s36, %d" % n)
    a.label(lab)
    a("s_sub_u32 s36, s36, 1")
    a(f"buffer_load_dwordx4 v{vaddr}, s[{TR}:{TR+3}], s32 offen lds")
    a(f"s_add_u32 s32, s32, {dsrc}")
    a(f"s_add_u32 m0, m0, {dlds}")
    a("s_cmp_lg_u32 s36, 0")
    a(f"s_cbranch_scc1 {lab}")

def q_loop(a, acc, X4, W4, vxe, vxo, vw):
    def rd(j):
        k = j & 3
        a(f"ds_read_b128 {v(X4+4*k,4)}, v{vxo if j & 1 else vxe} offset:{(j>>1)*4096}")
        a(f"ds_read_b64_tr_b16 {v(W4+4*k,2)}, v{vw} offset:{j*2048}")
        a(f"ds_read_b64_tr_b16 {v(W4+4*k+2,2)}, v{vw} offset:{j*2048+512}")
    for j in range(4): rd(j)
    for j in range(28):
        left = min(3, 27 - j)
        a(f"s_waitcnt lgkmcnt({3*left})")
        c = "0" if j == 0 else v(acc, 16)
        a(f"{MF} {v(acc,16)}, {v(W4+4*(j&3),4)}, {v(X4+4*(j&3),4)}, {c}")
        if j + 4 < 28: rd(j + 4)

def q_loop_regs(a, acc, XF, W4, vw):
    def rd(j):
        k = j & 3
        a(f"ds_read_b64_tr_b16 {v(W4+4*k,2)}, v{vw} offset:{j*2048}")
        a(f"ds_read_b64_tr_b16 {v(W4+4*k+2,2)}, v{vw} offset:{j*2048+512}")
    for j in range(4): rd(j)
    for j in range(28):
        left = min(3, 27 - j)
        a(f"s_waitcnt lgkmcnt({2*left})")
        c = "0" if j == 0 else v(acc, 16)
        a(f"{MF} {v(acc,16)}, {v(W4+4*(j&3),4)}, {v(XF+4*j,4)}, {c}")
        if j + 4 < 28: rd(j + 4)

def gen_fused(a):
    name = NAME + "_kernel"
    a(f".globl {name}")
    a(".p2align 8")
    a(f".type {name},@function")
    a.label(name)
    END = "L_end"
    a("s_cmp_ge_u32 s2, 256")
    a(f"s_cbranch_scc1 {END}")
    a("s_load_dwordx16 s[64:79], s[0:1], 0")
    a("s_load_dwordx16 s[80:95], s[0:1], 64")
    a("s_load_dwordx4 s[96:99], s[0:1], 128")
    if "earlycode" in X:
        a("s_getpc_b64 s[56:57]")
        a.label("p0_pc0")
        a("v_lshlrev_b32 v148, 7, v0")
        a("s_mov_b32 s3, L_end-p0_pc0")
        a("v_min_u32 v148, s3, v148")
        a("global_load_dword v149, v148, s[56:57]")
    a("v_lshrrev_b32 v2, 6, v0")
    a("v_and_b32 v0, 63, v0")
    a(f"v_readfirstlane_b32 s{WV}, v2")
    a(f"v_mov_b32 v4, {L_CNT}")
    a("v_mov_b32 v5, 0")
    a("v_lshl_add_u32 v4, v0, 2, v4")
    a("ds_write_b32 v4, v5")
    a(f"s_and_b32 s{RB}, s2, 7")
    a(f"s_lshl_b32 s{RB}, s{RB}, 2")
    a(f"s_lshr_b32 s{J2}, s2, 3")
    a(f"s_and_b32 s3, s{J2}, 3")
    a(f"s_add_u32 s{RB}, s{RB}, s3")
    a(f"s_lshr_b32 s{J2}, s{J2}, 2")
    a("v_lshlrev_b32 v1, 4, v0")
    a(f"s_mov_b32 s{SPIN}, 0x100000")
    a(f"s_sub_u32 s{BW}, s{WV}, 8")
    pfA = Prof(a, 9)
    xtile_lane_off(a, 3, 0, 4, 5)
    a("s_waitcnt lgkmcnt(0)")
    srd(a, WSR, S_WS, WS_SIZE)
    if PROF: a("v_mov_b32 v9, 0")
    pfA.stamp(0)
    if PROF:
        a("s_getreg_b32 s60, hwreg(HW_REG_XCC_ID)")
        a("v_writelane_b32 v9, s60, 20")
        a("s_getreg_b32 s60, hwreg(HW_REG_HW_ID)")
        a("v_writelane_b32 v9, s60, 21")
    a(f"s_cmp_lt_u32 s{WV}, 4")
    a("s_cselect_b64 s[46:47], -1, 0")
    a(f"s_cmp_eq_u32 s{J2}, 0")
    a(f"s_cselect_b32 s{TR}, s{S_WK}, s{S_WV}")
    a(f"s_cselect_b32 s{TR+1}, s{S_WK+1}, s{S_WV+1}")
    a(f"s_mov_b32 s{TR+2}, {WKBYTES}")
    a(f"s_mov_b32 s{TR+3}, 0x00020000")
    a(f"s_mul_i32 s32, s{BW}, 7168")
    a(f"s_add_u32 s34, s32, {L_WKV}")
    a("s_mov_b32 s33, 1024")
    a("s_mov_b32 s35, 1024")
    a(f"s_cmp_lt_u32 s{J2}, 2")
    a("s_cselect_b32 s36, 7, 0")
    a(f"s_cmp_ge_u32 s{WV}, 8")
    a("s_cselect_b32 s36, s36, 0")
    a("v_cndmask_b32 v3, v1, v3, s[46:47]")
    a(f"s_mul_i32 s40, s{RB}, {64*896}")
    a(f"s_lshr_b32 s3, s{WV}, 1")
    a(f"s_mul_i32 s3, s3, {32*896}")
    a("s_add_u32 s40, s40, s3")
    a(f"s_and_b32 s3, s{WV}, 1")
    a(f"s_mul_i32 s3, s3, {8*896}")
    a("s_add_u32 s40, s40, s3")
    a(f"s_lshl_b32 s41, s{WV}, 10")
    a(f"s_cmp_lt_u32 s{WV}, 4")
    a(f"s_cselect_b32 s{TR}, s{S_X}, s{TR}")
    a(f"s_cselect_b32 s{TR+1}, s{S_X+1}, s{TR+1}")
    a(f"s_cselect_b32 s{TR+2}, {XBYTES}, s{TR+2}")
    a("s_cselect_b32 s32, s40, s32")
    a("s_cselect_b32 s34, s41, s34")
    a("s_cselect_b32 s33, 64, s33")
    a("s_cselect_b32 s35, 4096, s35")
    a("s_cselect_b32 s36, 14, s36")
    a("s_mov_b32 m0, s34")
    a("s_cmp_eq_u32 s36, 0")
    a("s_cbranch_scc1 p0_first_done")
    a.label("p0_first")
    a("s_sub_u32 s36, s36, 1")
    a(f"buffer_load_dwordx4 v3, s[{TR}:{TR+3}], s32 offen lds")
    a("s_add_u32 s32, s32, s33")
    a("s_add_u32 m0, m0, s35")
    a("s_cmp_lg_u32 s36, 0")
    a("s_cbranch_scc1 p0_first")
    a.label("p0_first_done")
    a(f"s_cmp_ge_u32 s{WV}, 8")
    a("s_cbranch_scc1 p0_bgw")
    a(f"s_cmp_ge_u32 s{WV}, 4")
    a("s_cbranch_scc1 p0_kvw")
    a("s_barrier")
    pfA.stamp(1)
    xfrag_addr(a, 6, 0, 4)
    tr_rowcol(a, 12, 13, 0, 4)
    a(f"s_lshr_b32 s38, s{WV}, 1")
    a(f"s_and_b32 s39, s{WV}, 1")
    a("s_lshl_b32 s3, s38, 11")
    a("v_add_u32 v6, s3, v6")
    a("v_xor_b32 v7, 32, v6")
    a("v_lshlrev_b32 v10, 7, v12")
    a("v_lshl_add_u32 v10, v13, 1, v10")
    a("s_mul_i32 s3, s39, 56")
    a(f"s_add_u32 s3, s3, {L_WQ}")
    a("v_add_u32 v10, s3, v10")
    a("s_waitcnt vmcnt(0)")
    lds_arrive(a, C_XR, 4, 5)
    pfA.stamp(2)
    a(f"v_mov_b32 v4, {L_CNT}")
    lds_wait(a, C_XR, 8, 4, 5, "p0_xr0")
    for j in range(28):
        a(f"ds_read_b128 {v(56+4*j,4)}, v{6 + (j&1)} offset:{(j>>1)*4096}")
        if j in (11, 21): a("s_waitcnt lgkmcnt(2)")
    a("s_waitcnt lgkmcnt(0)")
    lds_arrive(a, C_XF, 4, 5)
    a(f"v_mov_b32 v4, {L_CNT}")
    lds_wait(a, C_WQR, 4, 4, 5, "p0_wqr", sleep=2)
    pfA.stamp(3)
    q_loop_regs(a, 16, 56, 32, 10)
    a(f"s_mov_b32 s42, {hex(QSCALE)}")
    a(f"s_lshl_b32 s3, s{WV}, 11")
    a(f"s_add_u32 s3, s3, {L_QX}")
    a("v_add_u32 v12, s3, v1")
    a("s_nop 7")
    a("s_nop 0")
    for i in range(16): a(f"v_mul_f32 v{16+i}, s42, v{16+i}")
    for i in range(8): a(f"v_cvt_pk_bf16_f32 v{32+i}, v{16+2*i}, v{17+2*i}")
    a("s_mov_b32 exec_lo, 0")
    a("v_mov_b32 v38, 0")
    a("v_mov_b32 v39, 0")
    a("s_mov_b32 exec_lo, -1")
    a("ds_write_b128 v12, v[32:35]")
    a("ds_write_b128 v12, v[36:39] offset:1024")
    a("s_waitcnt lgkmcnt(0)")
    lds_arrive(a, C_QD, 4, 5)
    a("s_branch p1_att")
    a.label("p0_kvw")
    a(f"s_sub_u32 s39, s{WV}, 4")
    if "earlycode" not in X:
        a("s_getpc_b64 s[56:57]")
        a.label("p0_pc")
        a("s_lshl_b32 s3, s39, 13")
        a("v_lshlrev_b32 v150, 7, v0")
        a("v_add_u32 v150, s3, v150")
        a(f"s_sub_u32 s56, s56, p0_pc-{NAME}_kernel")
        a("s_subb_u32 s57, s57, 0")
        a(f"s_mov_b32 s3, L_end-{NAME}_kernel")
        a("v_min_u32 v150, s3, v150")
        a("global_load_dword v150, v150, s[56:57]")
    a("s_cmp_eq_u32 s39, 0")
    a("s_cbranch_scc0 p0_pf_out")
    a("v_lshlrev_b32 v151, 21, v0")
    a("s_mov_b64 exec, 7")
    a(f"buffer_load_dword v151, v151, s[{WSR}:{WSR+3}], 0 offen")
    a("s_mov_b64 exec, -1")
    a.label("p0_pf_out")
    a("s_cmp_eq_u32 s39, 1")
    a("s_cbranch_scc0 p0_pf_mall")
    srd(a, 48, S_OUT, OUTBYTES)
    a("v_mul_u32_u24 v151, 0x1c0000, v0")
    a("s_mov_b64 exec, 7")
    a("buffer_load_dword v151, v151, s[48:51], 0 offen")
    a("s_mov_b64 exec, -1")
    a.label("p0_pf_mall")
    if os.environ.get("S3") == "mall" or "mallwarm2" in X:
        a("s_cmp_eq_u32 s39, 3")
        a("s_cbranch_scc0 p0_pf_done")
        a("v_lshlrev_b32 v149, 7, v0")
        a(f"s_mul_i32 s3, s2, {13*128}")
        a(f"s_mov_b32 m0, {L_JUNK}")
        a("s_mov_b64 exec, 0x1fff")
        for sp in ((S_CRE, S_CIM, S_WO) if "mallb" not in X else (S_BRE, S_BIM, S_CRE, S_CIM, S_WO)):
            srd(a, 48, sp, WBYTES)
            a("buffer_load_dword v149, s[48:51], s3 offen lds")
        a("s_mov_b64 exec, -1")
    a.label("p0_pf_done")
    if "wqearly" in X:
        srd(a, TR, S_WQ, WBYTES)
        a("v_lshrrev_b32 v3, 3, v0")
        a("v_mul_u32_u24 v3, 896, v3")
        a("v_and_b32 v4, 7, v0")
        a("v_lshl_add_u32 v3, v4, 4, v3")
        a(f"s_mul_i32 s32, s39, {112*896}")
        a(f"s_mul_i32 s33, s{J2}, 112")
        a("s_add_u32 s32, s32, s33")
        a("s_mul_i32 s34, s39, 14336")
        a(f"s_add_u32 s34, s34, {L_WQ}")
        a("s_mov_b32 m0, s34")
        dma_loop(a, "p0_qdma2", 3, 14, 7168, 1024)
    a("s_barrier")
    a(f"s_cmp_ge_u32 s{J2}, 3")
    a("s_cbranch_scc1 p0_kv_nojob")
    a("s_lshr_b32 s38, s39, 1")
    a("s_and_b32 s39, s39, 1")
    a(f"s_mov_b32 s15, {1 if 'dry' in X else 0}")
    a("s_setprio 3")
    a.label("p0_kv_setup")
    a(f"s_mov_b32 s8, s{WSR}")
    a(f"s_mov_b32 s9, s{WSR+1}")
    a("s_cmp_eq_u32 s15, 0")
    a(f"s_cselect_b32 s10, {WS_SIZE}, 0")
    a("s_mov_b32 s11, 0x00020000")
    xfrag_addr(a, 6, 0, 4)
    tr_rowcol(a, 12, 13, 0, 4)
    a("s_lshl_b32 s3, s38, 11")
    a("s_mul_i32 s41, s39, 28672")
    a("s_add_u32 s3, s3, s41")
    a("v_add_u32 v6, s3, v6")
    a("v_xor_b32 v7, 32, v6")
    a("s_mul_i32 s40, s39, 14")
    a(f"s_cmp_eq_u32 s{J2}, 2")
    a("s_cbranch_scc1 p0_kv_gaddr")
    a("v_mul_u32_u24 v10, 56, v12")
    a("v_lshl_add_u32 v10, v13, 1, v10")
    a(f"s_mul_i32 s3, s40, {16*56}")
    a(f"s_add_u32 s3, s3, {L_WKV}")
    a("v_add_u32 v10, s3, v10")
    a("v_add_u32 v11, 224, v10")
    a(f"s_mov_b32 s42, {16*56}")
    a("s_branch p0_kv_addr_done")
    a.label("p0_kv_gaddr")
    a("v_lshlrev_b32 v10, 3, v12")
    a("s_lshl_b32 s3, s40, 7")
    a(f"s_add_u32 s3, s3, {L_WKV}")
    a("v_add_u32 v10, s3, v10")
    a("v_add_u32 v11, 32, v10")
    a("s_mov_b32 s42, 128")
    a.label("p0_kv_addr_done")
    a(f"v_mov_b32 v4, {L_CNT}")
    a("s_cmp_lg_u32 s15, 0")
    a("s_cbranch_scc1 p0_xr_ok")
    lds_wait(a, C_XR, 8, 4, 5, "p0_xr")
    pfA.stamp(2)
    def kv_rd(i):
        a(f"ds_read_b128 {v(32+4*i,4)}, v{6+(i&1)} offset:{(i>>1)*4096}")
        a(f"ds_read_b64_tr_b16 {v(88+4*i,2)}, v10")
        a(f"ds_read_b64_tr_b16 {v(88+4*i+2,2)}, v11")
        if i < 13:
            a("v_add_u32 v10, s42, v10")
            a("v_add_u32 v11, s42, v11")
    def kv_mm(swap, tag):
        for i in range(4): kv_rd(i)
        for i in range(14):
            a(f"s_waitcnt lgkmcnt({3*min(3, 13-i)})")
            A, B = (32+4*i, 88+4*i) if swap else (88+4*i, 32+4*i)
            a(f"{MF} v[16:31], {v(A,4)}, {v(B,4)}, {'0' if i == 0 else 'v[16:31]'}")
            if i + 4 < 14: kv_rd(i + 4)
    a(f"s_cmp_ge_u32 s{J2}, 1")
    a("s_cbranch_scc1 p0_kv_swap")
    kv_mm(False, "k")
    a("s_branch p0_kv_mm_done")
    a.label("p0_kv_swap")
    kv_mm(True, "v")
    a.label("p0_kv_mm_done")
    lds_arrive(a, C_XF, 4, 5)
    pfA.stamp(22)
    a(f"s_mul_i32 s3, s38, {155648 - 143360}")
    a("s_add_u32 s3, s3, 143360")
    a("v_add_u32 v12, s3, v1")
    a("s_nop 7")
    a("s_nop 0")
    a("s_cmp_lg_u32 s15, 0")
    a("s_cbranch_scc1 p0_kv_root")
    a("s_cmp_eq_u32 s39, 0")
    a("s_cbranch_scc1 p0_kv_root")
    for q in range(4): a(f"ds_write_b128 v12, {v(16+4*q,4)} offset:{q*1024}")
    a("s_waitcnt lgkmcnt(0)")
    a("s_lshl_b32 s3, s38, 2")
    a(f"v_mov_b32 v4, {L_CNT}")
    a("v_add_u32 v4, s3, v4")
    a("v_mov_b32 v5, 1")
    a("s_mov_b64 exec, 1")
    a(f"ds_add_u32 v4, v5 offset:{C_KVR}")
    a("s_mov_b64 exec, -1")
    a("s_branch p0_kv_none")
    a.label("p0_kv_root")
    a("s_lshl_b32 s3, s38, 2")
    a(f"v_mov_b32 v4, {L_CNT}")
    a("v_add_u32 v4, s3, v4")
    a("s_cmp_lg_u32 s15, 0")
    a("s_cbranch_scc1 p0_kvr_ok")
    lds_wait(a, C_KVR, 1, 4, 5, "p0_kvr")
    pfA.stamp(23)
    for i in range(4): a(f"ds_read_b128 {v(32+4*i,4)}, v12 offset:{i*1024}")
    a("s_waitcnt lgkmcnt(0)")
    for r in range(16): a(f"v_add_f32 v{16+r}, v{16+r}, v{32+r}")
    a(f"s_lshl_b32 s43, s{RB}, 1")
    a("s_add_u32 s43, s43, s38")
    a(f"s_cmp_eq_u32 s{J2}, 2")
    a("s_cbranch_scc1 p0_gate_epi")
    for i in range(8): a(f"v_cvt_pk_bf16_f32 v{32+i}, v{16+2*i}, v{17+2*i}")
    a("s_lshl_b32 s44, s43, 12")
    a(f"s_add_u32 s44, s44, {WS_KV}")
    a(f"s_cmp_eq_u32 s{J2}, 1")
    a("s_cbranch_scc1 p0_v_epi")
    a("s_mov_b32 exec_lo, 0")
    a("v_mov_b32 v38, 0x3f803f80")
    a("v_mov_b32 v39, 0x00003f80")
    a("s_mov_b32 exec_lo, -1")
    a(f"buffer_store_dwordx4 v[32:35], v1, s[8:11], s44 offen{SC1}")
    a(f"buffer_store_dwordx4 v[36:39], v1, s[8:11], s44 offen offset:1024{SC1}")
    a("s_branch p0_kv_arrive")
    a.label("p0_v_epi")
    a("v_max3_f32 v14, |v16|, |v17|, |v18|")
    for j in range(3, 15, 2): a(f"v_max3_f32 v14, v14, |v{16+j}|, |v{17+j}|")
    a("v_max_f32 v14, v14, |v31|")
    a("v_and_b32 v13, 31, v0")
    a("v_cmp_gt_u32 s[46:47], 28, v13")
    a(f"v_cmp_lt_f32 vcc, {hex(VMAX)}, v14")
    a("s_and_b64 vcc, vcc, s[46:47]")
    a("s_cbranch_vccz p0_v_ok")
    a("s_cmp_lg_u32 s15, 0")
    a("s_cbranch_scc1 p0_v_ok")
    srd(a, 48, S_DBG, 256)
    a("v_mov_b32 v14, 1")
    a(f"v_mov_b32 v15, {D_BAD}")
    a("s_mov_b64 exec, 1")
    a(f"buffer_store_dword v14, v15, s[48:51], 0 offen{SC1}")
    a("s_mov_b64 exec, -1")
    a.label("p0_v_ok")
    a("v_and_b32 v13, 31, v0")
    a("v_cmp_eq_u32 vcc, 28, v13")
    a("v_mov_b32 v14, 0x3f803f80")
    a("s_nop 0")
    a("v_cndmask_b32 v14, 0, v14, vcc")
    a("v_cmp_lt_u32 vcc, 27, v13")
    a("s_nop 1")
    for i in range(8): a(f"v_cndmask_b32 v{32+i}, v{32+i}, v14, vcc")
    a(f"buffer_store_dwordx4 v[32:35], v1, s[8:11], s44 offen offset:2048{SC1}")
    a(f"buffer_store_dwordx4 v[36:39], v1, s[8:11], s44 offen offset:3072{SC1}")
    a("s_branch p0_kv_arrive")
    a.label("p0_gate_epi")
    a(f"s_mov_b32 s42, {hex(LOG2E)}")
    for i in range(16): a(f"v_mul_f32 v{16+i}, s42, v{16+i}")
    for i in range(16): a(f"v_exp_f32 v{16+i}, -v{16+i}")
    for i in range(16): a(f"v_add_f32 v{16+i}, 1.0, v{16+i}")
    for i in range(16): a(f"v_rcp_f32 v{16+i}, v{16+i}")
    a("v_lshrrev_b32 v13, 5, v0")
    a("v_lshlrev_b32 v13, 6, v13")
    a("s_lshl_b32 s44, s43, 7")
    a(f"s_add_u32 s44, s44, {WS_G}")
    a("v_and_b32 v14, 31, v0")
    a("v_cmp_eq_u32 vcc, 0, v14")
    a("s_and_saveexec_b64 s[46:47], vcc")
    for q in range(4):
        a(f"buffer_store_dwordx4 {v(16+4*q,4)}, v13, s[8:11], s44 offen offset:{16*q}{SC1}")
    a("s_mov_b64 exec, -1")
    a.label("p0_kv_arrive")
    a("s_cmp_eq_u32 s15, 0")
    a("s_cbranch_scc1 p0_kv_real")
    a("s_mov_b32 s15, 0")
    a("s_branch p0_kv_setup")
    a.label("p0_kv_real")
    pfA.stamp(10)
    a("s_mov_b32 s16, 1")
    a("s_branch p0_kv_b0")
    a.label("p0_kv_nojob")
    lds_arrive(a, C_XF, 4, 5)
    a.label("p0_kv_none")
    a("s_mov_b32 s16, 0")
    a.label("p0_kv_b0")
    a("s_setprio 0")
    a("s_cmp_eq_u32 s16, 0")
    a("s_cbranch_scc1 p1_noarr")
    a(f"v_mov_b32 v14, {L_CNT}")
    a("v_mov_b32 v15, 1")
    a("s_waitcnt vmcnt(0)")
    pfA.stamp(11)
    a("s_mov_b64 exec, 1")
    a(f"s_or_b32 s3, s{RB}, s{J2}")
    a(f"s_cmp_eq_u32 s{WV}, 4")
    a("s_cselect_b32 s3, s3, 1")
    a("s_cmp_eq_u32 s3, 0")
    a("s_cbranch_scc0 p1_nok0")
    srd(a, 48, S_DBG, 256)
    a("v_mov_b32 v12, 1")
    a(f"v_mov_b32 v13, {D_K0}")
    a(f"buffer_store_dword v12, v13, s[48:51], 0 offen{SC1}")
    a.label("p1_nok0")
    a(f"ds_add_rtn_u32 v15, v14, v15 offset:{C_KVA}")
    a("s_waitcnt lgkmcnt(0)")
    a("v_readfirstlane_b32 s3, v15")
    a("s_cmp_eq_u32 s3, 1")
    a("s_cbranch_scc0 p1_arrdone")
    srd(a, 48, S_DBG, 256)
    a("v_mov_b32 v14, 1")
    a(f"s_cmp_eq_u32 s{J2}, 2")
    a(f"s_cselect_b32 s3, {D_GCNT}, {D_CNT}")
    a("v_mov_b32 v15, s3")
    a("buffer_atomic_add v14, v15, s[48:51], 0 offen sc0 sc1")
    if "kvfirst" in X:
        a(f"v_mov_b32 v12, {L_CNT}")
        a("v_mov_b32 v13, 1")
        a(f"ds_add_u32 v12, v13 offset:{C_KVI}")
    a("s_waitcnt vmcnt(0)")
    a("v_readfirstlane_b32 s3, v14")
    a(f"s_cmp_eq_u32 s{J2}, 2")
    a("s_cselect_b32 s46, 31, 63")
    a(f"s_mov_b32 s47, {D_GO}")
    a(f"s_cselect_b32 s47, {D_GOG}, s47")
    a("s_cmp_eq_u32 s3, s46")
    a("s_cbranch_scc0 p1_arrdone")
    a("v_mov_b32 v14, 1")
    a("v_mov_b32 v15, s47")
    a(f"buffer_store_dword v14, v15, s[48:51], 0 offen{SC1}")
    a.label("p1_arrdone")
    a("s_mov_b64 exec, -1")
    pfA.stamp(12)
    a.label("p1_noarr")
    a("s_branch p1_att")
    a.label("p0_bgw")
    a(f"s_cmp_eq_u32 s{WV}, 8")
    a("s_cbranch_scc0 p0_t9")
    srd(a, 48, S_X, XBYTES)
    a("s_and_b32 s3, s2, 7")
    a(f"s_mul_i32 s3, s3, {256*896}")
    a("s_lshr_b32 s46, s2, 3")
    a("s_mul_i32 s46, s46, 7168")
    a("s_add_u32 s3, s3, s46")
    a("v_lshlrev_b32 v50, 7, v0")
    a("s_mov_b32 exec_hi, 0xffffff")
    a("buffer_load_dword v52, v50, s[48:51], s3 offen")
    a("s_mov_b64 exec, -1")
    a("s_branch p0_t_done")
    a.label("p0_t9")
    a(f"s_cmp_eq_u32 s{WV}, 9")
    a("s_cbranch_scc0 p0_t10")
    touch_matrix(a, S_WQ, 52, 50)
    a("s_branch p0_t_done")
    a.label("p0_t10")
    a(f"s_cmp_eq_u32 s{WV}, 10")
    a("s_cbranch_scc0 p0_t_done")
    a("s_lshr_b32 s3, s2, 3")
    a(f"s_mul_i32 s3, s3, {7*128}")
    a("v_lshlrev_b32 v50, 7, v0")
    a("s_mov_b64 exec, 0x7f")
    srd(a, 48, S_WK, WKBYTES)
    a("buffer_load_dword v52, v50, s[48:51], s3 offen")
    srd(a, 48, S_WV, WKBYTES)
    a("buffer_load_dword v53, v50, s[48:51], s3 offen")
    a("s_mov_b64 exec, -1")
    a.label("p0_t_done")
    a(f"s_cmp_eq_u32 s{WV}, 11")
    a("s_cbranch_scc0 p0_nononce")
    a("s_cmp_eq_u32 s2, 0")
    a("s_cbranch_scc0 p0_nononce")
    srd(a, 48, S_DBG, 256)
    a("v_mov_b32 v7, 0")
    a("s_memrealtime s[60:61]")
    a("s_waitcnt lgkmcnt(0)")
    a("s_and_b32 s60, s60, 0xfffffffc")
    a("s_or_b32 s60, s60, 1")
    a("v_mov_b32 v6, s60")
    a("s_mov_b64 exec, 1")
    a(f"buffer_store_dword v6, v7, s[48:51], 0 offen offset:{D_NONCE}{SC1}")
    a("s_mov_b64 exec, -1")
    a.label("p0_nononce")
    a(f"s_cmp_eq_u32 s{J2}, 2")
    a("s_cbranch_scc0 p0_wkv_done")
    a(f"s_cmp_eq_u32 s{WV}, 8")
    a("s_cbranch_scc0 p0_wkv_done")
    srd(a, TR, S_GW, 896)
    a("v_lshlrev_b32 v3, 1, v0")
    for i in range(7):
        a(f"buffer_load_ushort v{10+i}, v3, s[{TR}:{TR+3}], 0 offen offset:{i*128}")
    a("v_lshlrev_b32 v4, 3, v0")
    a(f"v_add_u32 v4, {L_WKV}, v4")
    a("s_waitcnt vmcnt(0)")
    for i in range(7):
        a(f"v_lshl_or_b32 v{20+2*i}, v{10+i}, 16, v{10+i}")
        a(f"v_mov_b32 v{21+2*i}, v{20+2*i}")
        a(f"ds_write_b64 v4, {v(20+2*i,2)} offset:{i*512}")
    a.label("p0_wkv_done")
    a(f"s_lshl_b32 s37, s{J2}, 1")
    a(f"s_and_b32 s3, s{BW}, 1")
    a("s_add_u32 s37, s37, s3")
    a("v_and_b32 v4, 31, v0")
    a("s_lshl_b32 s3, s37, 6")
    a("v_lshl_add_u32 v4, v4, 1, s3")
    srd(a, 40, S_LRE, 896); a("buffer_load_ushort v8, v4, s[40:43], 0 offen")
    srd(a, 44, S_LIM, 896); a("buffer_load_ushort v9, v4, s[44:47], 0 offen")
    srd(a, 52, S_LDT, 896); a("buffer_load_ushort v10, v4, s[52:55], 0 offen")
    a("s_barrier")
    a("s_waitcnt vmcnt(3) lgkmcnt(0)")
    lds_arrive(a, C_XR, 4, 5)
    a("s_branch p1_bg")
    a.label("p1_att")
    a(f"v_mov_b32 v4, {L_CNT}")
    lds_wait(a, C_QD, 4, 4, 5, "p1_qd", sleep=2)
    if PROF: a("v_mov_b32 v0, v9")
    pf = Prof(a, 0)
    pf.stamp(4)
    gen_attention(a, pf)
    pf.flush(2)
    a(f"s_branch {END}")
    a.label("p1_bg")
    a(f"s_setprio {os.environ.get('BP', '3')}")
    gen_background(a, BgProf(a))
    a.label(END)
    a("s_endpgm")
    return name

class BgProf:
    def __init__(self, a): self.a = a; self.T = [54, 55]
    def stamp(self, slot):
        if not PROF or "noprofb" in X: return
        if "onlyb" in os.environ and str(slot) not in os.environ["onlyb"].split(","): return
        a = self.a
        a("s_memrealtime s[60:61]")
        a("s_lshl_b32 s62, s2, 4")
        a(f"s_add_u32 s62, s62, s{WV}")
        a("s_lshl_b32 s62, s62, 8")
        a(f"s_add_u32 s62, s62, {WS_PROF + 4*slot}")
        a("s_waitcnt vmcnt(0) lgkmcnt(0)")
        a("s_mov_b64 exec, 1")
        t0, t1 = self.T
        a(f"v_mov_b32 v{t0}, s60")
        a(f"v_mov_b32 v{t1}, 0")
        a(f"buffer_store_dword v{t0}, v{t1}, s[{WSR}:{WSR+3}], s62 offen")
        a("s_mov_b64 exec, -1")
        a("s_waitcnt vmcnt(0)")
    def flush(self): pass


DOC = """;
; ---------------------------------------------------------------------------------------------------------
; One persistent launch, 256 workgroups (one per CU) x 12 waves.  Workgroup = (rb: 64 rows of x, j2: head pair).
;                 exact carry by Horner), y = 2 Re(C h), then out = g * (O wo) + (1-g) * (y + x*Dskip).
;   workgroup fails, att_fallback recomputes the true row maxima over all keys (3-term bf16 split) and redoes the pass.
; Hand-offs between workgroups: write-through (sc1) payload stores, vmcnt(0), then a flag / counter; readers use sc1 loads.
; ---------------------------------------------------------------------------------------------------------
"""

def build():
    a = Asm()
    name = gen_fused(a)
    text = a.text()
    probs = check_hazards(text)
    ref = open("gated_mix__grouped_kv_mqa__ssm_conv_s5__prompt.s.ref").read().split("\n")
    pre = []
    for ln in ref:
        if not ln.startswith(";"): break
        if "Override launch" in ln or "grid=ceil" in ln or "@launch" in ln: continue
        pre.append(ln)
    head = "\n".join(pre) + "\n"
    head += f"; @launch grid=(256,1,1) block=(768,1,1) lds={LDS_TOTAL}\n"
    head += DOC
    out = head + '.amdgcn_target "amdgcn-amd-amdhsa--gfx950"\n.text\n' + text
    out += f""".section .rodata,"a"
.p2align 6
.amdhsa_kernel {name}
  .amdhsa_next_free_vgpr 168
  .amdhsa_next_free_sgpr 102
  .amdhsa_accum_offset 168
  .amdhsa_group_segment_fixed_size 0
  .amdhsa_kernarg_size 144
  .amdhsa_user_sgpr_count 2
  .amdhsa_user_sgpr_kernarg_segment_ptr 1
  .amdhsa_system_sgpr_workgroup_id_x 1
.end_amdhsa_kernel
"""
    return out, probs

if __name__ == "__main__":
    out, probs = build()
    open(sys.argv[1], "w").write(out)
    print("wrote", sys.argv[1], "hazards:", len(probs))
```

```python
import sys, os, struct, math
from asmlib import Asm, v, s, check_hazards

NAME = "gated_mix__grouped_kv_mqa__ssm_conv_s5__prompt"
X = set(os.environ.get('XF', '').split(','))
PROF = "prof" in X
def f2u(x): return struct.unpack("<I", struct.pack("<f", x))[0]
QSCALE = f2u(math.log2(math.e) / math.sqrt(28.0))
LOG2E = f2u(math.log2(math.e))
INV2PI = f2u(1.0 / (2.0 * math.pi))
MF = "v_mfma_f32_32x32x16_bf16"
SC1 = " sc1"
POLLSLEEP = int(os.environ.get('PS', '1'))

WS_KV = 0x000000
WS_G  = 0x040000
WS_FL = 0x042000
FL_H  = WS_FL
FL_O  = WS_FL + 0x1000
WS_E  = 0x048000
D_CNT, D_GCNT, D_GO, D_BAD, D_K0, D_NONCE, D_GOG = 0, 64, 128, 132, 136, 140, 144
WS_OF = 0x080000
WS_HF = 0x280000
WS_PROF = 0x800000
WS_SIZE = 0x1000000
XBYTES = 2048 * 448 * 2
WBYTES = 448 * 448 * 2
WKBYTES = 448 * 28 * 2
OUTBYTES = 2048 * 448 * 4

S_X, S_WQ, S_WK, S_WV, S_WO = 64, 66, 68, 70, 72
S_LRE, S_LIM = 76, 78
S_BRE, S_BIM, S_CRE, S_CIM, S_LDT, S_DSK, S_GW, S_OUT = 80, 82, 84, 86, 88, 90, 92, 94
S_DBG, S_WS = 96, 98
RB, J2, WV, BW = 20, 21, 22, 23
WSR = 24
TR = 28
NONCE = 19
SPIN = 18

L_X = 0; L_WQ = 57344; L_WKV = 114688; L_GW = 143360
L_QX = 147456
L_CNT = 163584
C_ATT, C_BG, C_NONCE, C_BAD, C_UDONE, C_HCNT, C_OCNT, C_XR, C_KVR, C_KVA, C_TRD, C_LEND, C_BL, C_KVI, C_YD, C_WOL, C_XF, C_WQR, C_B1F, C_QD = 0, 4, 8, 12, 16, 20, 24, 28, 32, 40, 44, 48, 52, 56, 60, 80, 84, 88, 92, 96
B_EX = 159744; B_HT = 90112
B_HT2 = 69632
L_C = 0
L_RED = 0
L_WO = 0
A_OP = 90112; A_LP = 155648
LDS_TOTAL = 163840

def srd(a, dst, src, nbytes):
    a(f"s_mov_b32 s{dst}, s{src}")
    a(f"s_mov_b32 s{dst+1}, s{src+1}")
    a(f"s_mov_b32 s{dst+2}, {hex(nbytes)}")
    a(f"s_mov_b32 s{dst+3}, 0x00020000")

class Prof:
    def __init__(self, a, vreg): self.a = a; self.v = vreg
    def stamp(self, slot):
        if not PROF or "noprofa" in X: return
        a = self.a
        a("s_memrealtime s[60:61]")
        a("s_memtime s[62:63]")
        a("s_waitcnt lgkmcnt(0)")
        a(f"v_writelane_b32 v{self.v}, s60, {slot}")
        a(f"v_writelane_b32 v{self.v}, s62, {slot+32}")
    def flush(self, vt):
        if not PROF: return
        a = self.a
        a("s_lshl_b32 s60, s2, 4")
        a(f"s_add_u32 s60, s60, s{WV}")
        a("s_lshl_b32 s60, s60, 8")
        a(f"s_add_u32 s60, s60, {WS_PROF}")
        a("s_mov_b64 exec, -1")
        a(f"v_mbcnt_lo_u32_b32 v{vt}, -1, 0")
        a(f"v_mbcnt_hi_u32_b32 v{vt}, -1, v{vt}")
        a(f"v_lshlrev_b32 v{vt}, 2, v{vt}")
        a(f"buffer_store_dword v{self.v}, v{vt}, s[{WSR}:{WSR+3}], s60 offen")
        a("s_waitcnt vmcnt(0)")

def xtile_lane_off(a, vd, vlane, vt0, vt1):
    a(f"v_lshrrev_b32 v{vt0}, 4, v{vlane}")
    a(f"v_and_b32 v{vt1}, 1, v{vt0}")
    a(f"v_lshlrev_b32 v{vt1}, 4, v{vt1}")
    a(f"v_lshrrev_b32 v{vd}, 5, v{vlane}")
    a(f"v_lshl_add_u32 v{vt1}, v{vd}, 2, v{vt1}")
    a(f"v_bfe_u32 v{vd}, v{vlane}, 2, 2")
    a(f"v_add_u32 v{vt1}, v{vt1}, v{vd}")
    a(f"v_mul_u32_u24 v{vt1}, 896, v{vt1}")
    a(f"v_and_b32 v{vd}, 3, v{vlane}")
    a(f"v_xor_b32 v{vd}, v{vd}, v{vt0}")
    a(f"v_lshl_add_u32 v{vd}, v{vd}, 4, v{vt1}")

def plain_lane_off(a, vd, vlane, vt0):
    a(f"v_lshrrev_b32 v{vt0}, 4, v{vlane}")
    a(f"v_and_b32 v{vd}, 3, v{vlane}")
    a(f"v_xor_b32 v{vd}, v{vd}, v{vt0}")
    a(f"v_lshlrev_b32 v{vd}, 4, v{vd}")
    a(f"v_lshrrev_b32 v{vt0}, 2, v{vlane}")
    a(f"v_mul_u32_u24 v{vt0}, 896, v{vt0}")
    a(f"v_add_u32 v{vd}, v{vd}, v{vt0}")

def xfrag_addr(a, vd, vlane, vt0):
    a(f"v_bfe_u32 v{vt0}, v{vlane}, 2, 2")
    a(f"v_lshrrev_b32 v{vd}, 5, v{vlane}")
    a(f"v_xor_b32 v{vt0}, v{vt0}, v{vd}")
    a(f"v_lshlrev_b32 v{vt0}, 4, v{vt0}")
    a(f"v_and_b32 v{vd}, 31, v{vlane}")
    a(f"v_lshl_add_u32 v{vd}, v{vd}, 6, v{vt0}")

def tr_rowcol(a, vrow, vcol, vlane, vt):
    a(f"v_lshrrev_b32 v{vrow}, 5, v{vlane}")
    a(f"v_lshlrev_b32 v{vrow}, 3, v{vrow}")
    a(f"v_bfe_u32 v{vt}, v{vlane}, 2, 2")
    a(f"v_add_u32 v{vrow}, v{vrow}, v{vt}")
    a(f"v_and_b32 v{vcol}, 16, v{vlane}")
    a(f"v_and_b32 v{vt}, 3, v{vlane}")
    a(f"v_lshl_add_u32 v{vcol}, v{vt}, 2, v{vcol}")

def proj_loop(a, swap, acc, xe, xo, we, wo_, vxe, vxo, vw1, vw2, s_wstep, s_cnt, lab):
    def rd(xr, wr, vx):
        a(f"ds_read_b128 {v(xr,4)}, v{vx}")
        a(f"ds_read_b64_tr_b16 {v(wr,2)}, v{vw1}")
        a(f"ds_read_b64_tr_b16 {v(wr+2,2)}, v{vw2}")
        a(f"v_add_u32 v{vx}, 0x1000, v{vx}")
        a(f"v_add_u32 v{vw1}, s{s_wstep}, v{vw1}")
        a(f"v_add_u32 v{vw2}, s{s_wstep}, v{vw2}")
    def mf(x, w):
        A, B = (x, w) if swap else (w, x)
        a(f"{MF} {v(acc,16)}, {v(A,4)}, {v(B,4)}, {v(acc,16)}")
    rd(xe, we, vxe); rd(xo, wo_, vxo)
    a(f"s_mov_b32 s{s_cnt}, 14")
    a.label(lab)
    a("s_waitcnt lgkmcnt(3)")
    mf(xe, we)
    rd(xe, we, vxe)
    a("s_waitcnt lgkmcnt(3)")
    mf(xo, wo_)
    rd(xo, wo_, vxo)
    a(f"s_sub_u32 s{s_cnt}, s{s_cnt}, 1")
    a(f"s_cmp_lg_u32 s{s_cnt}, 0")
    a(f"s_cbranch_scc1 {lab}")
    a("s_waitcnt lgkmcnt(0)")

def sw_barrier(a, coff, s_tgt, n, vaddr, vtmp, lab):
    a(f"s_add_u32 s{s_tgt}, s{s_tgt}, {n}")
    a(f"v_mov_b32 v{vtmp}, 1")
    a("s_waitcnt lgkmcnt(0)")
    a("s_mov_b64 exec, 1")
    a(f"ds_add_u32 v{vaddr}, v{vtmp} offset:{coff}")
    a("s_mov_b64 exec, -1")
    a.label(lab)
    a(f"ds_read_b32 v{vtmp}, v{vaddr} offset:{coff}")
    a("s_waitcnt lgkmcnt(0)")
    a(f"v_readfirstlane_b32 s3, v{vtmp}")
    a(f"s_cmp_ge_u32 s3, s{s_tgt}")
    a(f"s_cbranch_scc1 {lab}_ok")
    a("s_sleep 1")
    a(f"s_sub_u32 s{SPIN}, s{SPIN}, 1")
    a(f"s_cbranch_scc0 {lab}")
    a(f"s_mov_b32 s{SPIN}, 0")
    a.label(lab + "_ok")

def flag_store(a, soff_reg, vt0, vt1, val=None):
    a("s_mov_b64 exec, 1")
    a(f"v_mov_b32 v{vt0}, s{val if val is not None else NONCE}")
    a(f"v_mov_b32 v{vt1}, 0")
    a(f"buffer_store_dword v{vt0}, v{vt1}, s[{WSR}:{WSR+3}], s{soff_reg} offen{SC1}")
    a("s_mov_b64 exec, -1")

def arrive_flag(a, coff, n, soff_reg, vt0, vt1, lab):
    a(f"v_mov_b32 v{vt0}, {L_CNT}")
    a(f"v_mov_b32 v{vt1}, 1")
    a("s_waitcnt vmcnt(0)")
    a("s_mov_b64 exec, 1")
    a(f"ds_add_rtn_u32 v{vt1}, v{vt0}, v{vt1} offset:{coff}")
    a("s_waitcnt lgkmcnt(0)")
    a(f"v_readfirstlane_b32 s60, v{vt1}")
    a("s_mov_b64 exec, -1")
    a(f"s_cmp_eq_u32 s60, {n-1}")
    a(f"s_cbranch_scc0 {lab}")
    flag_store(a, soff_reg, vt0, vt1)
    a.label(lab)

def poll(a, lab, vdst, voff, soff_reg, mask_pair, sleep=None):
    sleep = POLLSLEEP if sleep is None else sleep
    a.label(lab)
    a(f"buffer_load_dword v{vdst}, v{voff}, s[{WSR}:{WSR+3}], s{soff_reg} offen{SC1}")
    a("s_waitcnt vmcnt(0)")
    a(f"v_cmp_ne_u32 vcc, s{NONCE}, v{vdst}")
    a(f"s_and_b64 vcc, vcc, s[{mask_pair}:{mask_pair+1}]")
    a(f"s_cbranch_vccz {lab}_ok")
    a(f"s_sleep {sleep}")
    a(f"s_sub_u32 s{SPIN}, s{SPIN}, 1")
    a(f"s_cbranch_scc0 {lab}")
    a(f"s_mov_b32 s{SPIN}, 0")
    a.label(lab + "_ok")

def cfma(a, hr, hi, lr, li, ur, ui, tr, ti):
    a(f"v_fma_f32 v{tr}, -v{li}, v{hi}, v{ur}")
    a(f"v_fma_f32 v{ti}, v{li}, v{hr}, v{ui}")
    a(f"v_fma_f32 v{hr}, v{lr}, v{hr}, v{tr}")
    a(f"v_fma_f32 v{hi}, v{lr}, v{hi}, v{ti}")

L_JUNK = 161792
def touch_matrix(a, sptr, vdst, vt, sr=48):
    srd(a, sr, sptr, WBYTES)
    a("s_lshr_b32 s3, s2, 3")
    a(f"s_mul_i32 s3, s3, {98*128}")
    a(f"v_lshlrev_b32 v{vt}, 7, v0")
    a(f"s_mov_b32 m0, {L_JUNK}")
    a("s_nop 0")
    a(f"buffer_load_dword v{vt}, s[{sr}:{sr+3}], s3 offen lds")
    a("s_add_u32 s3, s3, 8192")
    a("s_mov_b32 exec_hi, 3")
    a(f"buffer_load_dword v{vt}, s[{sr}:{sr+3}], s3 offen lds")
    a("s_mov_b64 exec, -1")

AQ, AO, AS, AK, AV, APB = 8, 40, [104, 120], [136, 144], [152, 160], 4

def att_unit(a, u, side):
    up = u - 1; un = u + 1
    cur = AS[u & 1]; prv = AS[(u + 1) & 1]
    Vp = AV[(up >> 2) & 1]; Op = AO + 16 * (up & 3)
    Kn = AK[(un >> 2) & 1]; Qn = AQ + 8 * (un & 3)
    side = list(side)
    def E(lo, hi):
        for j in range(lo, hi):
            a(f"v_exp_f32 v{cur+j}, v{cur+j}")
            if side:
                x = side.pop(0)
                if x: a(x)
    while side and isinstance(side[0], tuple):
        a(side.pop(0)[1])
    a(f"{MF} {v(Op,16)}, {v(Vp,4)}, {v(prv,4)}, {v(Op,16)}")
    E(0, 4)
    a(f"v_cvt_pk_bf16_f32 v{APB+2}, v{prv+12}, v{prv+13}")
    a(f"v_cvt_pk_bf16_f32 v{APB+3}, v{prv+14}, v{prv+15}")
    a(f"{MF} {v(prv,16)}, {v(Kn,4)}, {v(Qn,4)}, 0")
    E(4, 8)
    a(f"v_cvt_pk_bf16_f32 v{cur}, v{cur}, v{cur+1}")
    a(f"v_cvt_pk_bf16_f32 v{cur+1}, v{cur+2}, v{cur+3}")
    a(f"{MF} {v(prv,16)}, {v(Kn+4,4)}, {v(Qn+4,4)}, {v(prv,16)}")
    E(8, 12)
    a(f"v_cvt_pk_bf16_f32 v{cur+2}, v{cur+4}, v{cur+5}")
    a(f"v_cvt_pk_bf16_f32 v{cur+3}, v{cur+6}, v{cur+7}")
    a(f"{MF} {v(Op,16)}, {v(Vp+4,4)}, {v(APB,4)}, {v(Op,16)}")
    E(12, 16)
    a(f"v_cvt_pk_bf16_f32 v{APB}, v{cur+8}, v{cur+9}")
    a(f"v_cvt_pk_bf16_f32 v{APB+1}, v{cur+10}, v{cur+11}")
    assert not side, side

L_SEL = 162560
L_SH = 162048
LMAX = f2u(2.0 ** 90) if "forcefb" not in X else f2u(2.0 ** -20)
VMAX = f2u(2.0 ** 20)

def gen_attention(a, pf):
    P = "att"
    KR = TR
    a(f"v_add_u32 v2, {L_QX}, v1")
    for g in range(4):
        a(f"ds_read_b128 {v(AQ+8*g,4)}, v2 offset:{g*2048}")
        a(f"ds_read_b128 {v(AQ+8*g+4,4)}, v2 offset:{g*2048+1024}")
    a(f"s_add_u32 s{KR}, s{WSR}, {WS_KV}")
    a(f"s_addc_u32 s{KR+1}, s{WSR+1}, 0")
    a(f"s_mov_b32 s{KR+3}, 0x00020000")
    a("s_mov_b32 s44, 0")
    a("s_mov_b32 s51, 0")
    a(f"s_cmp_lt_u32 s{WV}, 4")
    a("s_cselect_b32 s53, 1, -1")
    a(f"s_cmp_eq_u32 s{WV}, 7")
    a(f"s_cbranch_scc0 {P}_nosel")
    a("v_lshrrev_b32 v104, 4, v1")
    a("v_and_b32 v105, 31, v104")
    a("v_lshrrev_b32 v104, 5, v104")
    a("v_lshlrev_b32 v104, 2, v104")
    a("v_sub_u32 v105, v105, v104")
    for j in range(4):
        d0 = (2 * j & 3) + 8 * ((2 * j) >> 2)
        a(f"v_cmp_eq_u32 vcc, {d0}, v105")
        a(f"v_mov_b32 v106, 0x3f80")
        a("s_nop 0")
        a(f"v_cndmask_b32 v{108+j}, 0, v106, vcc")
        a(f"v_cmp_eq_u32 vcc, {d0+1}, v105")
        a(f"v_mov_b32 v106, 0x3f800000")
        a("s_nop 0")
        a(f"v_cndmask_b32 v107, 0, v106, vcc")
        a(f"v_or_b32 v{108+j}, v{108+j}, v107")
    a(f"v_add_u32 v104, {L_SEL}, v1")
    a("ds_write_b128 v104, v[108:111]")
    a.label(P + "_nosel")
    srd(a, 56, S_DBG, 256)
    def phaseA():
        a(f"s_cmp_eq_u32 s{WV}, 0")
        a(f"s_cbranch_scc0 {P}_nopollA")
        a(f"v_mov_b32 v2, {D_K0}")
        a.label(P + "_pollA")
        a(f"buffer_load_dword v104, v2, s[56:59], 0 offen{SC1}")
        a("s_waitcnt vmcnt(0)")
        a("v_readfirstlane_b32 s3, v104")
        a("s_cmp_lg_u32 s3, 0")
        a(f"s_cbranch_scc1 {P}_nopollA")
        a(f"s_sleep {POLLSLEEP}")
        a(f"s_sub_u32 s{SPIN}, s{SPIN}, 1")
        a(f"s_cbranch_scc0 {P}_pollA")
        a(f"s_mov_b32 s{SPIN}, 0")
        a.label(P + "_nopollA")
        a(f"v_mov_b32 v3, {L_CNT}")
        sw_barrier(a, C_ATT, 44, 8, 3, 2, P + "_ba")
    def shiftblk():
        a(f"s_mov_b32 s{KR+2}, 0x40000")
        a(f"s_cmp_ge_u32 s{WV}, 4")
        a(f"s_cbranch_scc1 {P}_shhi" if "gomerge" in X else f"s_cbranch_scc1 {P}_shwait")
        a(f"buffer_load_dwordx4 {v(AS[1],4)}, v1, s[{KR}:{KR+3}], 0 offen{SC1}")
        a(f"buffer_load_dwordx4 {v(AS[1]+4,4)}, v1, s[{KR}:{KR+3}], 0 offen offset:1024{SC1}")
        a(f"s_lshl_b32 s3, s{WV}, 11")
        a(f"s_add_u32 s3, s3, {L_QX}")
        a("v_add_u32 v2, s3, v1")
        a(f"ds_read_b128 {v(AO,4)}, v2")
        a(f"ds_read_b128 {v(AO+4,4)}, v2 offset:1024")
        a("s_waitcnt vmcnt(0) lgkmcnt(0)")
        o = AO + 16
        a(f"{MF} {v(o,16)}, {v(AS[1],4)}, {v(AO,4)}, 0")
        a(f"{MF} {v(o,16)}, {v(AS[1]+4,4)}, {v(AO+4,4)}, {v(o,16)}")
        a(f"s_lshl_b32 s3, s{WV}, 7")
        a(f"s_add_u32 s3, s3, {L_SH}")
        a("v_lshrrev_b32 v3, 2, v1")
        a("v_and_b32 v3, 127, v3")
        a("v_add_u32 v3, s3, v3")
        a("s_nop 7")
        a(f"v_max3_f32 v2, v{o}, v{o+1}, v{o+2}")
        for j in range(3, 15, 2):
            a(f"v_max3_f32 v2, v2, v{o+j}, v{o+j+1}")
        a(f"v_max_f32 v2, v2, v{o+15}")
        a(f"v_mov_b32 v{AO}, v2")
        a("s_nop 1")
        a(f"v_permlane32_swap_b32 v2, v{AO}")
        a(f"v_max_f32 v2, v2, v{AO}")
        a("v_cvt_pk_bf16_f32 v2, -v2, 0")
        a("s_mov_b32 exec_hi, 0")
        a("ds_write_b32 v3, v2")
        a("s_mov_b64 exec, -1")
        if "gomerge" in X:
            a(f"s_branch {P}_shwait")
            a.label(P + "_shhi")
            a(f"s_cmp_eq_u32 s{WV}, 7")
            a(f"s_cbranch_scc0 {P}_shwait")
            a(f"v_mov_b32 v2, {D_GO}")
            a.label(P + "_pollm")
            a(f"buffer_load_dwordx2 v[104:105], v2, s[56:59], 0 offen{SC1}")
            a("s_waitcnt vmcnt(0)")
            a("v_readfirstlane_b32 s3, v104")
            a("s_cmp_lg_u32 s3, 0")
            a(f"s_cbranch_scc1 {P}_pollmok")
            a(f"s_sleep {POLLSLEEP}")
            a(f"s_sub_u32 s{SPIN}, s{SPIN}, 1")
            a(f"s_cbranch_scc0 {P}_pollm")
            a(f"s_mov_b32 s{SPIN}, 0")
            a.label(P + "_pollmok")
            a(f"v_mov_b32 v3, {L_CNT}")
            a("s_mov_b64 exec, 1")
            a(f"ds_add_u32 v3, v105 offset:{C_BAD}")
            a("s_mov_b64 exec, -1")
        a.label(P + "_shwait")
        a(f"v_mov_b32 v3, {L_CNT}")
        sw_barrier(a, C_ATT, 44, 8, 3, 2, P + "_bs")
        a("v_lshrrev_b32 v3, 2, v1")
        a("v_and_b32 v3, 127, v3")
        a(f"v_add_u32 v3, {L_SH}, v3")
        for g in range(4): a(f"ds_read_b32 v{AO+g}, v3 offset:{g*128}")
        a("s_waitcnt lgkmcnt(0)")
        a("s_mov_b32 exec_lo, 0")
        for g in range(4): a(f"v_mov_b32 v{AQ+8*g+6}, v{AO+g}")
        a("s_mov_b32 exec_lo, -1")
    def phaseB():
        a(f"s_cmp_eq_u32 s{WV}, 0")
        a(f"s_cbranch_scc0 {P}_nopoll")
        a(f"v_mov_b32 v2, {D_GO}")
        a.label(P + "_poll")
        a(f"buffer_load_dwordx2 v[104:105], v2, s[56:59], 0 offen{SC1}")
        a("s_waitcnt vmcnt(0)")
        a("v_readfirstlane_b32 s3, v104")
        a("s_cmp_lg_u32 s3, 0")
        a(f"s_cbranch_scc1 {P}_pollok")
        a(f"s_sleep {POLLSLEEP}")
        a(f"s_sub_u32 s{SPIN}, s{SPIN}, 1")
        a(f"s_cbranch_scc0 {P}_poll")
        a(f"s_mov_b32 s{SPIN}, 0")
        a.label(P + "_pollok")
        a(f"v_mov_b32 v3, {L_CNT}")
        a("s_mov_b64 exec, 1")
        a(f"ds_add_u32 v3, v105 offset:{C_BAD}")
        a("s_mov_b64 exec, -1")
        a.label(P + "_nopoll")
        a(f"v_mov_b32 v3, {L_CNT}")
        sw_barrier(a, C_ATT, 44, 8, 3, 2, P + "_b0")
        pf.stamp(5)
        a("s_lshr_b32 s52, s2, 3")
        a("s_lshl_b32 s52, s52, 3")
        a(f"s_add_u32 s52, s52, s{WV}")
        a("s_lshl_b32 s52, s52, 10")
    def mainloads():
        a.label(P + "_restart")
        a(f"s_mov_b32 s{KR+2}, 0x40000")
        a(f"s_lshl_b32 s43, s{WV}, 15")
        a(f"buffer_load_dwordx4 {v(AK[0],4)}, v1, s[{KR}:{KR+3}], s43 offen{SC1}")
        a(f"buffer_load_dwordx4 {v(AK[0]+4,4)}, v1, s[{KR}:{KR+3}], s43 offen offset:1024{SC1}")
        a(f"buffer_load_dwordx4 {v(AV[0],4)}, v1, s[{KR}:{KR+3}], s43 offen offset:2048{SC1}")
        a(f"buffer_load_dwordx4 {v(AV[0]+4,4)}, v1, s[{KR}:{KR+3}], s43 offen offset:3072{SC1}")
        a("s_add_u32 s43, s43, 4096")
        a(f"buffer_load_dwordx4 {v(AK[1],4)}, v1, s[{KR}:{KR+3}], s43 offen{SC1}")
        a(f"buffer_load_dwordx4 {v(AK[1]+4,4)}, v1, s[{KR}:{KR+3}], s43 offen offset:1024{SC1}")
        a(f"s_lshl_b32 s3, s{WV}, 9")
        a(f"s_mov_b32 m0, {L_JUNK}")
        a("v_lshlrev_b32 v2, 3, v1")
        a("s_mov_b64 exec, 0xff")
        a(f"buffer_load_dword v2, s[{KR}:{KR+3}], s52 offen{SC1} lds")
        a("s_mov_b64 exec, -1")
        for j in range(4): a(f"v_mov_b32 v{APB+j}, 0")
        for j in range(8): a(f"v_mov_b32 v{AV[1]+j}, 0")
    if "lateshift" in X:
        phaseB(); mainloads()
        a("s_cmp_lg_u32 s51, 0")
        a(f"s_cbranch_scc1 {P}_haveshift")
        shiftblk()
    elif "gomerge" in X:
        phaseA(); shiftblk()
        pf.stamp(5)
        a("s_lshr_b32 s52, s2, 3")
        a("s_lshl_b32 s52, s52, 3")
        a(f"s_add_u32 s52, s52, s{WV}")
        a("s_lshl_b32 s52, s52, 10")
        mainloads()
    else:
        phaseA(); shiftblk(); phaseB(); mainloads()
    a.label(P + "_haveshift")
    for j in (0, 1, 2, 3, 12, 13, 14, 15): a(f"v_mov_b32 v{AS[1]+j}, 0")
    a(f"s_and_b32 s3, s{WV}, 3")
    a("s_lshl_b32 s3, s3, 2")
    a(f"s_add_u32 s3, s3, {L_CNT + 64}")
    a("v_mov_b32 v2, s3")
    for g in range(4):
        a(f"{MF} {v(AO+16*g,16)}, {v(AV[1],4)}, {v(APB,4)}, 0")
    a("s_waitcnt vmcnt(5)")
    a(f"{MF} {v(AS[0],16)}, {v(AK[0],4)}, {v(AQ,4)}, 0")
    a(f"{MF} {v(AS[0],16)}, {v(AK[0]+4,4)}, {v(AQ+4,4)}, {v(AS[0],16)}")
    a("s_mov_b32 s48, 0")
    a("s_setprio 2")
    a("s_nop 7")
    a("s_nop 1")
    pf.stamp(6)
    a(".p2align 3")
    a.label(P + "_loop")
    for u in range(8):
        g = u & 3; par = (u >> 2) & 1
        side = []
        if g == 1:
            side.append(("q0", "s_waitcnt vmcnt(2)"))
            side.append(f"buffer_load_dwordx4 {v(AV[par^1],4)}, v1, s[{KR}:{KR+3}], s43 offen offset:2048{SC1}")
            side.append(f"buffer_load_dwordx4 {v(AV[par^1]+4,4)}, v1, s[{KR}:{KR+3}], s43 offen offset:3072{SC1}")
            side.append("s_add_u32 s43, s43, 4096")
            if par == 0:
                side.append("s_cmp_eq_u32 s48, 3")
                side.append(f"s_cselect_b32 s{KR+2}, 0, s{KR+2}")
        if g == 3:
            side += [None, None, None, "s_waitcnt vmcnt(2)"]
            side.append(f"buffer_load_dwordx4 {v(AK[par],4)}, v1, s[{KR}:{KR+3}], s43 offen{SC1}")
            side.append(f"buffer_load_dwordx4 {v(AK[par]+4,4)}, v1, s[{KR}:{KR+3}], s43 offen offset:1024{SC1}")
            if par == 1:
                side += ["s_add_u32 s48, s48, 1", None, None, None, None, None, None, None, None, "s_cmp_lt_u32 s48, 4"]
        if g == 0 and "nofair" not in X:
            side += ["v_mov_b32 v3, s53", None, "s_mov_b64 exec, 1\nds_add_rtn_u32 v3, v2, v3\ns_mov_b64 exec, -1"]
        if g == 2 and "nofair" not in X:
            lab = f"{P}_fp{u}"
            side += ["s_waitcnt lgkmcnt(0)", "v_readfirstlane_b32 s54, v3", None, "s_mul_i32 s54, s54, s53", "s_cmp_gt_i32 s54, 0",
                     f"s_cbranch_scc1 {lab}a\ns_setprio 2\ns_branch {lab}b\n{lab}a:\ns_setprio 1\n{lab}b:"]
        att_unit(a, u, side)
    a(f"s_cbranch_scc1 {P}_loop")
    prv = AS[1]
    a(f"{MF} {v(AO+48,16)}, {v(AV[1],4)}, {v(prv,4)}, {v(AO+48,16)}")
    a(f"v_cvt_pk_bf16_f32 v{APB+2}, v{prv+12}, v{prv+13}")
    a(f"v_cvt_pk_bf16_f32 v{APB+3}, v{prv+14}, v{prv+15}")
    a("s_nop 1")
    a(f"{MF} {v(AO+48,16)}, {v(AV[1]+4,4)}, {v(APB,4)}, {v(AO+48,16)}")
    pf.stamp(7)
    a("s_setprio 3")
    a("s_cmp_lg_u32 s51, 0")
    a(f"s_cbranch_scc1 {P}_nolend")
    lds_arrive(a, C_LEND, 2, 3)
    a.label(P + "_nolend")
    a(f"v_mov_b32 v3, {L_CNT}")
    a.label(P + "_udone")
    a(f"ds_read2_b32 v[104:105], v3 offset0:{C_NONCE//4} offset1:{C_HCNT//4}")
    a("s_waitcnt lgkmcnt(0)")
    a("v_readfirstlane_b32 s3, v105")
    a(f"v_readfirstlane_b32 s{NONCE}, v104")
    a("s_cmp_ge_u32 s3, 4")
    a(f"s_cbranch_scc1 {P}_udone_ok")
    a(f"s_sub_u32 s{SPIN}, s{SPIN}, 1")
    a(f"s_cbranch_scc0 {P}_udone")
    a(f"s_mov_b32 s{SPIN}, 0")
    a.label(P + "_udone_ok")
    a(f"s_lshl_b32 s3, s{WV}, 13")
    a(f"s_add_u32 s3, s3, {A_OP}")
    a(f"v_add_u32 v2, s3, v1")
    a(f"s_lshl_b32 s3, s{WV}, 9")
    a(f"s_add_u32 s3, s3, {A_LP}")
    a("v_lshrrev_b32 v3, 2, v1")
    a("v_and_b32 v4, 127, v3")
    a("v_add_u32 v4, s3, v4")
    a(f"s_mov_b32 s46, {hex(LMAX)}")
    a("s_mov_b64 s[56:57], 0")
    for g in range(4):
        o = AO + 16 * g
        if g == 3: a("s_nop 3")
        a("s_mov_b32 exec_lo, 0")
        a(f"ds_write_b32 v4, v{o+12} offset:{g*128}")
        a(f"v_cmp_nge_f32 vcc, s46, v{o+12}")
        a("s_mov_b32 exec_lo, -1")
        a("s_or_b64 s[56:57], s[56:57], vcc")
        for j in range(8):
            a(f"v_cvt_pk_bf16_f32 v{AS[0]+8*g+j}, v{o+2*j}, v{o+2*j+1}")
        a(f"ds_write_b128 v2, {v(AS[0]+8*g,4)} offset:{g*2048}")
        a(f"ds_write_b128 v2, {v(AS[0]+8*g+4,4)} offset:{g*2048+1024}")
    a(f"v_mov_b32 v3, {L_CNT}")
    a("s_cmp_eq_u64 s[56:57], 0")
    a(f"s_cbranch_scc1 {P}_safe")
    a("v_mov_b32 v2, 1")
    a("s_mov_b64 exec, 1")
    a(f"ds_add_u32 v3, v2 offset:{C_BAD}")
    a("s_mov_b64 exec, -1")
    a.label(P + "_safe")
    pf.stamp(17)
    sw_barrier(a, C_ATT, 44, 8, 3, 2, P + "_b1")
    pf.stamp(18)
    a(f"ds_read_b32 v2, v3 offset:{C_BAD}")
    a(f"s_lshl_b32 s3, s{WV}, 10")
    a(f"s_add_u32 s3, s3, {A_OP}")
    a("v_add_u32 v4, s3, v1")
    for w in range(8):
        a(f"ds_read_b128 {v(AO+4*w,4)}, v4 offset:{w*8192}")
    a(f"s_lshr_b32 s45, s{WV}, 1")
    a("s_lshl_b32 s3, s45, 7")
    a(f"s_add_u32 s3, s3, {A_LP}")
    a("v_lshrrev_b32 v3, 2, v1")
    a("v_and_b32 v3, 127, v3")
    a("v_add_u32 v3, s3, v3")
    a("s_waitcnt lgkmcnt(8)")
    a("v_readfirstlane_b32 s3, v2")
    a("s_cmp_lg_u32 s3, 0")
    a("s_cselect_b32 s3, 1, 0")
    a("s_andn2_b32 s3, s3, s51")
    a(f"s_cbranch_scc1 {P}_fallback")
    acc = AO + 48
    a(f"v_add_u32 v2, {L_SEL}, v1")
    a(f"ds_read_b128 {v(AO+40,4)}, v2")
    for w in range(6):
        a(f"ds_read_b32 v{AO+32+w}, v3 offset:{w*512}")
    for w in range(8):
        a(f"s_waitcnt lgkmcnt({6 if w < 1 else 6})") if w == 0 else None
        if w == 0:
            a(f"ds_read_b32 v{AO+38}, v3 offset:{6*512}")
            a(f"ds_read_b32 v{AO+39}, v3 offset:{7*512}")
        a(f"{MF} {v(acc,16)}, {v(AO+40,4)}, {v(AO+4*w,4)}, {'0' if w == 0 else v(acc,16)}")
    a("s_lshr_b32 s3, s45, 1")
    a(f"s_lshl_b32 s46, s{RB}, 1")
    a("s_add_u32 s3, s3, s46")
    a("s_lshl_b32 s3, s3, 4")
    a(f"s_lshl_b32 s46, s{J2}, 1")
    a("s_add_u32 s3, s3, s46")
    a("s_and_b32 s46, s45, 1")
    a("s_add_u32 s3, s3, s46")
    a("s_lshl_b32 s3, s3, 11")
    a(f"s_and_b32 s46, s{WV}, 1")
    a("s_lshl_b32 s46, s46, 10")
    a("s_add_u32 s3, s3, s46")
    a(f"s_add_u32 s47, s3, {WS_OF}")
    a("s_waitcnt lgkmcnt(0)")
    lds_arrive(a, C_TRD, 2, 3)
    l = AO + 32
    a(f"v_add_f32 v{l}, v{l}, v{l+1}")
    a(f"v_add_f32 v{l+2}, v{l+2}, v{l+3}")
    a(f"v_add_f32 v{l+4}, v{l+4}, v{l+5}")
    a(f"v_add_f32 v{l+6}, v{l+6}, v{l+7}")
    a(f"v_add_f32 v{l}, v{l}, v{l+2}")
    a(f"v_add_f32 v{l+4}, v{l+4}, v{l+6}")
    a(f"v_add_f32 v{l}, v{l}, v{l+4}")
    a(f"v_rcp_f32 v{l+1}, v{l}")
    a("s_nop 3")
    for j in range(8): a(f"v_mul_f32 v{acc+j}, v{acc+j}, v{l+1}")
    for j in range(4): a(f"v_cvt_pk_bf16_f32 v{AO+j}, v{acc+2*j}, v{acc+2*j+1}")
    a(f"s_and_b32 s3, s{WV}, 1")
    a("s_cmp_eq_u32 s3, 1")
    a("s_cselect_b32 exec_hi, -1, 0")
    a("s_mov_b32 exec_lo, 0")
    a(f"v_mov_b32 v{AO+2}, 0")
    a(f"v_mov_b32 v{AO+3}, 0")
    a("s_mov_b64 exec, -1")
    pf.stamp(19)
    a(f"buffer_store_dwordx4 {v(AO,4)}, v1, s[{WSR}:{WSR+3}], s47 offen{SC1}")
    if "dup" in X or "dupo" in X:
        a(f"buffer_store_dwordx4 {v(AO,4)}, v1, s[{WSR}:{WSR+3}], s47 offen")
    a(f"s_lshl_b32 s3, s{RB}, 5")
    a(f"s_add_u32 s3, s3, s{J2}")
    a("s_lshl_b32 s3, s3, 2")
    a(f"s_add_u32 s3, s3, {FL_O}")
    arrive_flag(a, C_OCNT, 8, 3, 2, 3, P + "_oflag")
    pf.stamp(8)
    if "wohelp" in X:
        a(f"s_cmp_eq_u32 s{J2}, 7")
        a(f"s_cbranch_scc1 {P}_done")
        a(f"v_mov_b32 v3, {L_CNT}")
        lds_wait(a, C_YD, 4, 3, 2, P + "_yd")
        srd(a, TR, S_WO, WBYTES)
        a("v_lshrrev_b32 v4, 4, v1")
        a("v_lshrrev_b32 v5, 3, v4")
        a("v_mul_u32_u24 v5, 896, v5")
        a("v_and_b32 v4, 7, v4")
        a("v_lshl_add_u32 v5, v4, 4, v5")
        a(f"s_mul_i32 s32, s{WV}, {56*896}")
        a(f"s_lshl_b32 s3, s{J2}, 7")
        a("s_add_u32 s32, s32, s3")
        a(f"s_mul_i32 s34, s{WV}, 7168")
        a("s_mov_b32 m0, s34")
        dma_loop(a, P + "_wodma", 5, 7, 7168, 1024)
        a("s_waitcnt vmcnt(0)")
        lds_arrive(a, C_WOL, 3, 2)
    a(f"s_branch {P}_done")
    a.label(P + "_fallback")
    a("s_waitcnt lgkmcnt(0)")
    a("s_mov_b32 s51, 1")
    a(f"s_mov_b32 s{KR+2}, 0x40000")
    a("s_mov_b32 exec_lo, 0")
    for g in range(4):
        a(f"v_mov_b32 v{AQ+8*g+6}, 0")
        a(f"v_mov_b32 v{AQ+8*g+7}, 0")
    a("s_mov_b32 exec_lo, -1")
    for g in range(4): a(f"v_mov_b32 v{APB+g}, 0xff800000")
    a("s_mov_b32 s43, 0")
    a.label(P + "_fb_loop")
    a(f"buffer_load_dwordx4 {v(AK[0],4)}, v1, s[{KR}:{KR+3}], s43 offen{SC1}")
    a(f"buffer_load_dwordx4 {v(AK[0]+4,4)}, v1, s[{KR}:{KR+3}], s43 offen offset:1024{SC1}")
    a("s_waitcnt vmcnt(0)")
    for g in range(4):
        o = AO + 16 * g
        a(f"{MF} {v(o,16)}, {v(AK[0],4)}, {v(AQ+8*g,4)}, 0")
        a(f"{MF} {v(o,16)}, {v(AK[0]+4,4)}, {v(AQ+8*g+4,4)}, {v(o,16)}")
    a("s_nop 7")
    for g in range(4):
        o = AO + 16 * g
        for j in range(0, 16, 2):
            a(f"v_max3_f32 v{APB+g}, v{APB+g}, v{o+j}, v{o+j+1}")
    a("s_add_u32 s43, s43, 4096")
    a("s_cmp_lt_u32 s43, 0x40000")
    a(f"s_cbranch_scc1 {P}_fb_loop")
    for g in range(4):
        m = APB + g
        a(f"v_mov_b32 v2, v{m}")
        a("s_nop 1")
        a(f"v_permlane32_swap_b32 v2, v{m}")
        a(f"v_max_f32 v2, v2, v{m}")
        a("v_sub_f32 v2, 0, v2")
        a("v_cvt_pk_bf16_f32 v3, v2, v2")
        a("v_and_b32 v3, 0xffff0000, v3")
        a(f"v_sub_f32 v{m}, v2, v3")
        a(f"v_cvt_pk_bf16_f32 v2, v{m}, v{m}")
        a("v_and_b32 v2, 0xffff0000, v2")
        a(f"v_sub_f32 v{m}, v{m}, v2")
        a(f"v_cvt_pk_bf16_f32 v{m}, v{m}, 0")
        a("v_lshrrev_b32 v3, 16, v3")
        a("v_or_b32 v3, v3, v2")
        a("s_mov_b32 exec_lo, 0")
        a(f"v_mov_b32 v{AQ+8*g+6}, v3")
        a(f"v_mov_b32 v{AQ+8*g+7}, v{m}")
        a("s_mov_b32 exec_lo, -1")
    a(f"v_mov_b32 v3, {L_CNT}")
    sw_barrier(a, C_ATT, 44, 8, 3, 2, P + "_bf")
    a(f"s_branch {P}_restart")
    a.label(P + "_done")

def gen_background(a, pf):
    P = "bg"
    XF = 56; ARE, AIM = 8, 24
    nbar = [0]
    T = [54, 55]
    pf.T = T
    def bar():
        nbar[0] += 1
        a(f"v_mov_b32 v{T[0]}, {L_CNT}")
        sw_barrier(a, C_BG, 44, 4, T[0], T[1], f"{P}_bar{nbar[0]}")
    def stage3(tag, vd_=156, vt_=158):
        if "nopf" in X: return
        a(f"s_cmp_eq_u32 s{BW}, 3")
        a(f"s_cbranch_scc1 {P}_not3{tag}")
        a(f"s_cmp_eq_u32 s{BW}, 0")
        a(f"s_cselect_b32 s56, s{S_CRE}, s{S_CIM}")
        a(f"s_cselect_b32 s57, s{S_CRE+1}, s{S_CIM+1}")
        a(f"s_cmp_eq_u32 s{BW}, 2")
        a(f"s_cselect_b32 s56, s{S_WO}, s56")
        a(f"s_cselect_b32 s57, s{S_WO+1}, s57")
        touch_matrix(a, 56, vd_, vt_)
        a.label(P + "_not3" + tag)
    a("s_mov_b32 s44, 0")
    a(f"s_lshl_b32 s37, s{J2}, 1")
    a(f"s_and_b32 s3, s{BW}, 1")
    a("s_add_u32 s37, s37, s3")
    a(f"s_lshr_b32 s38, s{BW}, 1")
    def nonce_get(tag, vd, vt):
        a(f"s_cmp_eq_u32 s{BW}, 3")
        a(f"s_cbranch_scc0 {P}_non{tag}")
        srd(a, 48, S_DBG, 256)
        a.label(P + "_np" + tag)
        a(f"v_readfirstlane_b32 s3, v{vd}")
        a("s_cmp_lg_u32 s3, 0")
        a(f"s_cbranch_scc1 {P}_npok{tag}")
        a(f"s_sleep {POLLSLEEP}")
        a(f"v_mov_b32 v{vt}, 0")
        a(f"buffer_load_dword v{vd}, v{vt}, s[48:51], 0 offen offset:{D_NONCE}{SC1}")
        a("s_waitcnt vmcnt(0)")
        a(f"s_sub_u32 s{SPIN}, s{SPIN}, 1")
        a(f"s_cbranch_scc0 {P}_np{tag}")
        a(f"s_mov_b32 s{SPIN}, 0")
        a.label(P + "_npok" + tag)
        a(f"v_mov_b32 v{vt}, {L_CNT}")
        a(f"ds_write_b32 v{vt}, v{vd} offset:{C_NONCE}")
        a.label(P + "_non" + tag)
    def nonce_issue(tag, vd, vt):
        a(f"s_cmp_eq_u32 s{BW}, 3")
        a(f"s_cbranch_scc0 {P}_noi{tag}")
        srd(a, 48, S_DBG, 256)
        a(f"v_mov_b32 v{vt}, 0")
        a(f"buffer_load_dword v{vd}, v{vt}, s[48:51], 0 offen offset:{D_NONCE}{SC1}")
        a.label(P + "_noi" + tag)
    srd(a, TR, S_WQ, WBYTES)
    a("v_lshrrev_b32 v20, 3, v0")
    a("v_mul_u32_u24 v20, 896, v20")
    a("v_and_b32 v21, 7, v0")
    a("v_lshl_add_u32 v20, v21, 4, v20")
    a(f"s_mul_i32 s32, s{BW}, {112*896}")
    a(f"s_mul_i32 s33, s{J2}, 112")
    a("s_add_u32 s32, s32, s33")
    a(f"s_mul_i32 s34, s{BW}, 14336")
    a(f"s_add_u32 s34, s34, {L_WQ}")
    a("s_mov_b32 m0, s34")
    dma_loop(a, P + "_qdma", 20, 14, 7168, 1024)
    a("s_mov_b32 s17, 0")
    if "btouch0" not in X:
        a(f"s_cmp_gt_u32 s{BW}, 1")
        a(f"s_cbranch_scc1 {P}_nob")
        a(f"s_cmp_eq_u32 s{BW}, 0")
        a(f"s_cselect_b32 s56, s{S_BRE}, s{S_BIM}")
        a(f"s_cselect_b32 s57, s{S_BRE+1}, s{S_BIM+1}")
        touch_matrix(a, 56, 52, 21)
        a("s_mov_b32 s17, 1")
        a.label(P + "_nob")
    a(f"s_cmp_eq_u32 s{J2}, 7")
    a(f"s_cbranch_scc1 {P}_skip")
    if "nobg" in X: a(f"s_branch {P}_skip")
    a(f"v_mov_b32 v16, {L_CNT}")
    lds_wait(a, C_XR, 8, 16, 17, P + "_xr")
    xfrag_addr(a, 6, 0, 16)
    a("s_lshl_b32 s3, s38, 11")
    a("v_add_u32 v6, s3, v6")
    a("v_xor_b32 v7, 32, v6")
    for j in range(28):
        a(f"ds_read_b128 {v(56+4*j,4)}, v{6 + (j&1)} offset:{(j>>1)*4096}")
        if j in (11, 21): a("s_waitcnt lgkmcnt(2)")
    a("s_cmp_eq_u32 s17, 0")
    a(f"s_cbranch_scc1 {P}_pw0")
    a("s_waitcnt vmcnt(16)")
    a.label(P + "_pw0")
    a("s_cmp_lg_u32 s17, 0")
    a(f"s_cbranch_scc1 {P}_pw1")
    a("s_waitcnt vmcnt(14)")
    a.label(P + "_pw1")
    a("v_lshlrev_b32 v8, 16, v8")
    a("v_lshlrev_b32 v9, 16, v9")
    a("v_lshlrev_b32 v10, 16, v10")
    a(f"v_mul_f32 v10, {hex(LOG2E)}, v10")
    a("v_exp_f32 v10, v10")
    a("s_nop 0")
    a("v_cvt_pk_bf16_f32 v10, v10, v10")
    a("v_lshlrev_b32 v10, 16, v10")
    a("v_mul_f32 v11, v10, v8")
    a("v_mul_f32 v12, v10, v9")
    a(f"v_mul_f32 v11, {hex(LOG2E)}, v11")
    a(f"v_mul_f32 v12, {hex(INV2PI)}, v12")
    a("v_exp_f32 v13, v11")
    a("v_fract_f32 v14, v12")
    a("s_nop 0")
    a("v_cos_f32 v2, v14")
    a("v_sin_f32 v3, v14")
    a("s_nop 0")
    a("v_mul_f32 v2, v2, v13")
    a("v_mul_f32 v3, v3, v13")
    a("v_add_f32 v13, -1.0, v2")
    a("v_mul_f32 v14, v8, v8")
    a("v_fma_f32 v14, v9, v9, v14")
    a("v_rcp_f32 v14, v14")
    a("v_mul_f32 v15, v13, v8")
    a("v_fma_f32 v15, v3, v9, v15")
    a("v_mul_f32 v16, v3, v8")
    a("v_fma_f32 v16, -v13, v9, v16")
    a("v_mul_f32 v4, v15, v14")
    a("v_mul_f32 v5, v16, v14")
    a("s_waitcnt lgkmcnt(0)")
    lds_arrive(a, C_XF, 16, 17)
    a("s_cmp_eq_u32 s17, 0")
    a(f"s_cbranch_scc1 {P}_qw0")
    a("s_waitcnt vmcnt(2)")
    a.label(P + "_qw0")
    a("s_cmp_lg_u32 s17, 0")
    a(f"s_cbranch_scc1 {P}_qw1")
    a("s_waitcnt vmcnt(0)")
    a.label(P + "_qw1")
    lds_arrive(a, C_WQR, 16, 17)
    a(f"s_and_b32 s3, s{BW}, 1")
    a("s_cmp_eq_u32 s3, 0")
    a(f"s_cselect_b32 s{TR}, s{S_BRE}, s{S_BIM}")
    a(f"s_cselect_b32 s{TR+1}, s{S_BRE+1}, s{S_BIM+1}")
    a(f"s_mov_b32 s{TR+2}, {WBYTES}")
    a(f"s_mov_b32 s{TR+3}, 0x00020000")
    plain_lane_off(a, 20, 0, 21)
    a(f"s_lshl_b32 s3, s{J2}, 1")
    a("s_add_u32 s3, s3, s38")
    a(f"s_mul_i32 s32, s3, {32*896}")
    def b_dma(lab, base, n):
        a(f"s_lshl_b32 s34, s{BW}, 11")
        if base: a(f"s_add_u32 s34, s34, {base}")
        a("s_mov_b32 m0, s34")
        a(f"s_mov_b32 s36, {n}")
        a.label(lab)
        a(f"s_add_u32 s33, s32, {16*896}")
        a(f"buffer_load_dwordx4 v20, s[{TR}:{TR+3}], s32 offen lds")
        a("s_add_u32 m0, m0, 1024")
        a("s_sub_u32 s36, s36, 1")
        a(f"buffer_load_dwordx4 v20, s[{TR}:{TR+3}], s33 offen lds")
        a("s_add_u32 s32, s32, 64")
        a(f"s_add_u32 m0, m0, {8192-1024}")
        a("s_cmp_lg_u32 s36, 0")
        a(f"s_cbranch_scc1 {lab}")
    a(f"v_mov_b32 v16, {L_CNT}")
    lds_wait(a, C_XF, 12, 16, 17, P + "_xf")
    b_dma(P + "_bdma1", 0, 7)
    b_dma(P + "_bdma2", L_WKV, 3)
    nonce_issue("a", 22, 21)
    xfrag_addr(a, 6, 0, 16)
    a(f"s_and_b32 s3, s{BW}, 1")
    a("s_lshl_b32 s3, s3, 12")
    a("v_add_u32 v6, s3, v6")
    a("v_xor_b32 v7, 32, v6")
    a("s_waitcnt vmcnt(0)")
    nonce_get("a", 22, 21)
    a("s_waitcnt lgkmcnt(0)")
    bar()
    a(f"ds_read_b32 v55, v54 offset:{C_NONCE}")
    a("s_waitcnt lgkmcnt(0)")
    a(f"v_readfirstlane_b32 s{NONCE}, v55")
    pf.stamp(5)
    a(f"v_mov_b32 v16, {L_CNT}")
    lds_wait(a, C_QD, 4, 16, 17, P + "_qd2")
    b_dma(P + "_bdma3", L_WQ, 4)
    S3 = os.environ.get("S3", "b")
    if S3 == "b": stage3("a", 52, 54)
    if os.environ.get("UP"): a(f"s_setprio {os.environ['UP']}")
    if S3 == "go": a("s_mov_b32 s17, 0")
    BB = [40, 48]
    def rdB(j):
        b = BB[j & 1]
        kb = j >> 1
        o = (kb if kb < 7 else (kb - 7 if kb < 10 else kb - 10)) * 8192
        if j in (14, 15): a(f"v_add_u32 v{6+(j&1)}, {L_WKV}, v{6+(j&1)}")
        a(f"ds_read_b128 {v(b,4)}, v{6+(j&1)} offset:{o}")
        a(f"ds_read_b128 {v(b+4,4)}, v{6+(j&1)} offset:{o+2048}")
    rdB(0); rdB(1)
    for j in range(28):
        b = BB[j & 1]
        a("s_waitcnt lgkmcnt(0)" if j in (19, 27) else "s_waitcnt lgkmcnt(2)")
        c1 = "0" if j == 0 else v(ARE,16); c2 = "0" if j == 0 else v(AIM,16)
        a(f"{MF} {v(ARE,16)}, {v(XF+4*j,4)}, {v(b,4)}, {c1}")
        a(f"{MF} {v(AIM,16)}, {v(XF+4*j,4)}, {v(b+4,4)}, {c2}")
        if j == 19:
            a(f"v_subrev_u32 v6, {L_WKV - L_WQ}, v6")
            a(f"v_subrev_u32 v7, {L_WKV - L_WQ}, v7")
            a("s_waitcnt vmcnt(0)")
            T[0], T[1] = 56, 57
            bar()
            T[0], T[1] = 54, 55
            rdB(20); rdB(21)
        elif j + 2 < 28 and j != 18:
            rdB(j + 2)
        if S3 == "go" and j in (5, 11, 17, 23, 27):
            lab = f"{P}_s3_{j}"
            a("s_cmp_lg_u32 s17, 0")
            a(f"s_cbranch_scc1 {lab}")
            if j != 27:
                a(f"v_mov_b32 v56, {L_CNT}")
                a(f"ds_read_b32 v57, v56 offset:{C_ATT}")
                a("s_waitcnt lgkmcnt(0)")
                a("v_readfirstlane_b32 s3, v57")
                a("s_cmp_lt_u32 s3, 16")
                a(f"s_cbranch_scc1 {lab}")
            a("s_mov_b32 s17, 1")
            stage3(f"g{j}", 56, 58)
            a.label(lab)
    if os.environ.get("UP"): a(f"s_setprio {os.environ.get('BP', '3')}")
    a(f"v_mov_b32 v54, {L_CNT}")
    a("v_mov_b32 v55, 1")
    a("s_mov_b64 exec, 1")
    a(f"ds_add_u32 v54, v55 offset:{C_UDONE}")
    a("s_mov_b64 exec, -1")
    pf.stamp(6)
    if S3 == "u": stage3("a")
    def csq(dr, di, sr, si):
        a(f"v_mul_f32 v46, v{si}, v{si}")
        a(f"v_mul_f32 v47, v{sr}, v{si}")
        a(f"v_fma_f32 v{dr}, v{sr}, v{sr}, -v46")
        a(f"v_add_f32 v{di}, v47, v47")
    csq(40, 41, 2, 3)
    for _ in range(3): csq(40, 41, 40, 41)
    csq(42, 43, 40, 41); csq(42, 43, 42, 43)
    csq(44, 45, 42, 43)
    for _ in range(3): csq(44, 45, 44, 45)
    a("v_mov_b32 v48, v4")
    a("v_mov_b32 v49, v4")
    a("v_mov_b32 v50, v5")
    a("v_mov_b32 v51, v5")
    for r in range(0, 16, 2):
        a(f"v_pk_mul_f32 v[46:47], v[50:51], {v(AIM+r,2)}")
        a(f"v_pk_mul_f32 v[52:53], v[50:51], {v(ARE+r,2)}")
        a(f"v_pk_fma_f32 {v(ARE+r,2)}, v[48:49], {v(ARE+r,2)}, v[46:47] neg_lo:[0,0,1] neg_hi:[0,0,1]")
        a(f"v_pk_fma_f32 {v(AIM+r,2)}, v[48:49], {v(AIM+r,2)}, v[52:53]")
    a(f"v_mov_b32 v48, v{ARE}")
    a(f"v_mov_b32 v49, v{AIM}")
    for r in range(1, 16):
        cfma(a, 48, 49, 2, 3, ARE + r, AIM + r, 46, 47)
    a("v_and_b32 v50, 31, v0")
    a("v_lshlrev_b32 v50, 3, v50")
    a(f"s_and_b32 s3, s{BW}, 1")
    a("s_lshl_b32 s3, s3, 10")
    a(f"s_add_u32 s3, s3, {B_EX}")
    a("v_add_u32 v50, s3, v50")
    a("v_lshrrev_b32 v51, 5, v0")
    a("s_lshl_b32 s3, s38, 1")
    a("v_add_u32 v51, s3, v51")
    a("v_lshl_add_u32 v52, v51, 8, v50")
    a("ds_write_b64 v52, v[48:49]")
    bar()
    for c in range(4):
        a(f"ds_read_b64 {v(56+2*c,2)}, v50 offset:{c*256}")
    a("s_waitcnt lgkmcnt(0)")
    a("v_mov_b32 v64, v56")
    a("v_mov_b32 v65, v57")
    for c in range(1, 4):
        cfma(a, 64, 65, 40, 41, 56 + 2*c, 57 + 2*c, 46, 47)
    a("s_cmp_eq_u32 s38, 1")
    a(f"s_cbranch_scc0 {P}_nopub")
    a(f"s_mul_i32 s3, s{RB}, {448*16}")
    a("s_lshl_b32 s33, s37, 9")
    a("s_add_u32 s3, s3, s33")
    a(f"s_add_u32 s3, s3, {WS_E}")
    a(f"v_mov_b32 v66, s{NONCE}")
    a(f"v_mov_b32 v67, s{NONCE}")
    a("v_and_b32 v68, 31, v0")
    a("v_lshlrev_b32 v68, 4, v68")
    a("s_mov_b32 exec_hi, 0")
    a(f"buffer_store_dwordx4 v[64:67], v68, s[{WSR}:{WSR+3}], s3 offen{SC1}")
    a("s_mov_b64 exec, -1")
    a.label(P + "_nopub")
    pf.stamp(7)
    a(f"s_add_u32 s48, s{WSR}, {WS_E}")
    a(f"s_addc_u32 s49, s{WSR+1}, 0")
    a(f"s_mov_b32 s50, {32*448*16}")
    a("s_mov_b32 s51, 0x00020000")
    a("v_lshrrev_b32 v67, 5, v0")
    a("v_lshlrev_b32 v67, 4, v67")
    a(f"v_sub_u32 v67, s{RB}, v67")
    a("v_add_u32 v67, -1, v67")
    a(f"s_mov_b32 s3, {448*16}")
    a("v_mul_lo_u32 v68, v67, s3")
    a("v_and_b32 v66, 31, v0")
    a("v_lshlrev_b32 v66, 4, v66")
    a("s_lshl_b32 s33, s37, 9")
    a("v_add3_u32 v68, v68, v66, s33")
    EG = 72
    for i in range(1, 16):
        a(f"v_subrev_u32 v{136+i}, {448*16*i}, v68")
    a("v_mov_b32 v136, v68")
    if "enowait" not in X: a("s_waitcnt vmcnt(0)")
    if "efirst" in X:
        a(f"s_branch {P}_pollE")
    else:
        a(f"s_cmp_eq_u32 s{RB}, 0")
        a(f"s_cbranch_scc1 {P}_pollE")
    a.label(P + "_pollE0")
    a("s_mov_b32 exec_hi, 0")
    a(f"buffer_load_dwordx3 {v(EG,3)}, v136, s[48:51], 0 offen{SC1}")
    a("s_mov_b64 exec, -1")
    a("s_waitcnt vmcnt(0)")
    a(f"v_cmp_ne_u32 vcc, s{NONCE}, v{EG+2}")
    a("s_cmp_eq_u32 vcc_lo, 0")
    a(f"s_cbranch_scc1 {P}_pollE")
    a(f"s_sleep {os.environ.get('ES', '6')}")
    a(f"s_sub_u32 s{SPIN}, s{SPIN}, 1")
    a(f"s_cbranch_scc0 {P}_pollE0")
    a(f"s_mov_b32 s{SPIN}, 0")
    a.label(P + "_pollE")
    for i in range(16):
        a(f"buffer_load_dwordx3 {v(EG+4*i,3)}, v{136+i}, s[48:51], 0 offen{SC1}")
    a("s_mov_b64 s[56:57], 0")
    a("s_waitcnt vmcnt(0)")
    for i in range(16):
        a(f"v_cmp_ne_u32 vcc, s{NONCE}, v{EG+4*i+2}")
        a(f"s_cmp_gt_u32 s{RB}, {i}")
        a("s_cselect_b32 s58, -1, 0")
        a(f"s_cmp_gt_u32 s{RB}, {i+16}")
        a("s_cselect_b32 s59, -1, 0")
        a("s_and_b64 vcc, vcc, s[58:59]")
        a("s_or_b64 s[56:57], s[56:57], vcc")
    a("s_cmp_eq_u64 s[56:57], 0")
    a(f"s_cbranch_scc1 {P}_pollE_ok")
    a("s_sleep 4" if "efirst" in X else "s_sleep 12")
    a(f"s_sub_u32 s{SPIN}, s{SPIN}, 1")
    a(f"s_cbranch_scc0 {P}_pollE0" if "efirst" in X else f"s_cbranch_scc0 {P}_pollE")
    a(f"s_mov_b32 s{SPIN}, 0")
    a.label(P + "_pollE_ok")
    pf.stamp(8)
    a(f"v_mov_b32 v68, v{EG+60}")
    a(f"v_mov_b32 v69, v{EG+61}")
    for i in range(14, -1, -1):
        cfma(a, 68, 69, 42, 43, EG + 4*i, EG + 4*i + 1, 46, 47)
    a("v_mov_b32 v70, v68")
    a("v_mov_b32 v71, v69")
    a("v_mov_b32 v72, v68")
    a("v_mov_b32 v73, v69")
    a("s_nop 1")
    a("v_permlane32_swap_b32 v70, v72")
    a("v_permlane32_swap_b32 v71, v73")
    cfma(a, 72, 73, 44, 45, 70, 71, 46, 47)
    for cp in range(3):
        a("v_mov_b32 v74, v72")
        a("v_mov_b32 v75, v73")
        cfma(a, 74, 75, 40, 41, 56 + 2*cp, 57 + 2*cp, 46, 47)
        a(f"v_cmp_lt_u32 vcc, {cp}, v51")
        a("s_nop 1")
        a("v_cndmask_b32 v72, v72, v74, vcc")
        a("v_cndmask_b32 v73, v73, v75, vcc")
    a(f"v_mov_b32 v66, {L_CNT}")
    lds_wait(a, C_QD, 4, 66, 67, P + "_qd")
    a(f"s_lshl_b32 s3, s{BW}, 12")
    a(f"s_add_u32 s3, s3, {B_HT}")
    a("v_and_b32 v66, 31, v0")
    a("v_lshlrev_b32 v66, 1, v66")
    a("v_lshrrev_b32 v67, 5, v0")
    a("v_lshl_add_u32 v66, v67, 8, v66")
    a("v_add_u32 v66, s3, v66")
    for r in range(16):
        cfma(a, 72, 73, 2, 3, ARE + r, AIM + r, 46, 47)
        a(f"v_cvt_pk_bf16_f32 v{76+(r&1)}, v72, -v73")
        slot = (r & 3) + 8 * (r >> 2)
        a(f"ds_write_b16 v66, v{76+(r&1)} offset:{slot*64}")
        a(f"ds_write_b16_d16_hi v66, v{76+(r&1)} offset:{2048+slot*64}")
    a("v_and_b32 v67, 31, v0")
    a("v_lshlrev_b32 v67, 6, v67")
    a("v_lshrrev_b32 v68, 5, v0")
    a("v_lshl_add_u32 v67, v68, 4, v67")
    a("v_add_u32 v67, s3, v67")
    a("s_waitcnt lgkmcnt(0)")
    for part in range(2):
        for jj in range(2):
            a(f"ds_read_b128 {v(80+8*part+4*jj,4)}, v67 offset:{part*2048+jj*32}")
    a(f"s_lshl_b32 s3, s{RB}, 1")
    a("s_add_u32 s3, s3, s38")
    a("s_mul_i32 s3, s3, 56")
    a("s_lshl_b32 s33, s37, 1")
    a("s_add_u32 s3, s3, s33")
    a("s_lshl_b32 s3, s3, 10")
    a(f"s_add_u32 s3, s3, {WS_HF}")
    a(f"s_add_u32 s33, s3, {28*1024}")
    a("s_waitcnt lgkmcnt(0)")
    a(f"buffer_store_dwordx4 {v(80,4)}, v1, s[{WSR}:{WSR+3}], s3 offen{SC1}")
    a(f"buffer_store_dwordx4 {v(84,4)}, v1, s[{WSR}:{WSR+3}], s3 offen offset:1024{SC1}")
    a(f"buffer_store_dwordx4 {v(88,4)}, v1, s[{WSR}:{WSR+3}], s33 offen{SC1}")
    a(f"buffer_store_dwordx4 {v(92,4)}, v1, s[{WSR}:{WSR+3}], s33 offen offset:1024{SC1}")
    if "dup" in X:
        a(f"buffer_store_dwordx4 {v(80,4)}, v1, s[{WSR}:{WSR+3}], s3 offen")
        a(f"buffer_store_dwordx4 {v(84,4)}, v1, s[{WSR}:{WSR+3}], s3 offen offset:1024")
        a(f"buffer_store_dwordx4 {v(88,4)}, v1, s[{WSR}:{WSR+3}], s33 offen")
        a(f"buffer_store_dwordx4 {v(92,4)}, v1, s[{WSR}:{WSR+3}], s33 offen offset:1024")
    a(f"s_lshl_b32 s3, s{RB}, 5")
    a(f"s_add_u32 s3, s3, s{J2}")
    a("s_lshl_b32 s3, s3, 2")
    a(f"s_add_u32 s3, s3, {FL_H}")
    arrive_flag(a, C_HCNT, 4, 3, 66, 67, P + "_hflag")
    pf.stamp(9)
    if "hwait" in X:
        a(f"v_mov_b32 v66, {L_CNT}")
        lds_wait(a, C_HCNT, 4, 66, 67, P + "_hall")
    if "lowc" in X: a("s_setprio 0")
    if os.environ.get("S3") == "late": stage3("c")
    if os.environ.get("S3") == "wo":
        a(f"s_cmp_eq_u32 s{BW}, 2")
        a(f"s_cbranch_scc0 {P}_notwo")
        touch_matrix(a, S_WO, 156, 158)
        a.label(P + "_notwo")
    a(f"s_lshr_b32 s3, s{BW}, 1")
    a("s_cmp_eq_u32 s3, 0")
    a(f"s_cselect_b32 s{TR}, s{S_CRE}, s{S_CIM}")
    a(f"s_cselect_b32 s{TR+1}, s{S_CRE+1}, s{S_CIM+1}")
    plain_lane_off(a, 53, 0, 69)
    a(f"s_mul_i32 s40, s{J2}, {64*896}")
    a(f"s_and_b32 s3, s{BW}, 1")
    a("s_mul_i32 s3, s3, 448")
    a("s_add_u32 s40, s40, s3")
    a(f"s_mul_i32 s41, s{BW}, 20480")
    CDMA = [53]
    def c_dma(kb):
        a(f"s_add_u32 m0, s41, {(kb % 5)*4096}")
        for q in range(4):
            a(f"s_add_u32 s33, s40, {q*16*896 + kb*64}")
            a(f"buffer_load_dwordx4 v{CDMA[0]}, s[{TR}:{TR+3}], s33 offen lds")
            if q < 3: a("s_add_u32 m0, m0, 1024")
    for kb in range(5): c_dma(kb)
    if "lowc2" in X: a("s_setprio 3")
    a(f"s_cmp_eq_u32 s{BW}, 0")
    a(f"s_cbranch_scc0 {P}_nopollH2" if "gpar" in X else f"s_cbranch_scc0 {P}_nopollH")
    a("v_lshlrev_b32 v67, 2, v0")
    a(f"s_lshl_b32 s35, s{RB}, 7")
    a(f"s_add_u32 s35, s35, {FL_H}")
    a("s_mov_b64 s[58:59], 0x7f")
    poll(a, P + "_pollH", 68, 67, 35, 58)
    if "gpar" in X:
        a(f"s_branch {P}_pollG_ok")
        a.label(P + "_nopollH2")
        a(f"s_cmp_eq_u32 s{BW}, 1")
        a(f"s_cbranch_scc0 {P}_pollG_ok")
    srd(a, 48, S_DBG, 256)
    a(f"v_mov_b32 v67, {D_GOG}")
    a.label(P + "_pollG")
    a(f"buffer_load_dword v68, v67, s[48:51], 0 offen{SC1}")
    a("s_waitcnt vmcnt(0)")
    a("v_readfirstlane_b32 s3, v68")
    a("s_cmp_lg_u32 s3, 0")
    a(f"s_cbranch_scc1 {P}_pollG_ok")
    a(f"s_sleep {POLLSLEEP}")
    a(f"s_sub_u32 s{SPIN}, s{SPIN}, 1")
    a(f"s_cbranch_scc0 {P}_pollG")
    a(f"s_mov_b32 s{SPIN}, 0")
    a.label(P + "_pollG_ok")
    a.label(P + "_nopollH")
    a("s_waitcnt vmcnt(0)")
    bar()
    pf.stamp(10)
    T[0], T[1] = 4, 5
    ACC = 8
    XS, GT = 136, 152
    if "lowy" in X and "lowlate" not in X: a(f"s_setprio {os.environ.get('YLOW', '0')}")
    a(f"s_lshl_b32 s3, s{RB}, 1")
    a("s_mul_i32 s3, s3, 56")
    a(f"s_mul_i32 s33, s{BW}, 14")
    a("s_add_u32 s3, s3, s33")
    a("s_lshl_b32 s3, s3, 10")
    a(f"s_add_u32 s32, s3, {WS_HF}")
    a(f"s_add_u32 s34, s32, {56*1024}")
    AF = 88; NA = 10
    plain_lane_off(a, 2, 0, 72)
    CDMA[0] = 2
    xfrag_addr(a, 6, 0, 72)
    a("v_add_u32 v6, s41, v6")
    a("v_xor_b32 v7, 32, v6")
    def ldA(st_):
        r = AF + 8 * (st_ % NA)
        a(f"s_add_u32 s35, s32, {st_*1024}")
        a(f"s_add_u32 s36, s34, {st_*1024}")
        a(f"buffer_load_dwordx4 {v(r,4)}, v1, s[{WSR}:{WSR+3}], s35 offen{SC1}")
        a(f"buffer_load_dwordx4 {v(r+4,4)}, v1, s[{WSR}:{WSR+3}], s36 offen{SC1}")
    for st_ in range(NA): ldA(st_)
    if "htouch" in X:
        a("v_lshlrev_b32 v72, 7, v0")
        a(f"s_mov_b32 m0, {L_JUNK}")
        a(f"s_add_u32 s35, s32, {NA*1024}")
        a(f"s_add_u32 s36, s34, {NA*1024}")
        a("s_mov_b32 exec_hi, 0")
        a(f"buffer_load_dword v72, s[{WSR}:{WSR+3}], s35 offen{SC1} lds")
        a(f"buffer_load_dword v72, s[{WSR}:{WSR+3}], s36 offen{SC1} lds")
        a("s_mov_b64 exec, -1")
    CB = [72, 80]
    def rdC(st_):
        b = CB[st_ & 1]
        kb = st_ >> 1
        a(f"ds_read_b128 {v(b,4)}, v{6+(st_&1)} offset:{(kb%5)*4096}")
        a(f"ds_read_b128 {v(b+4,4)}, v{6+(st_&1)} offset:{(kb%5)*4096+2048}")
    issued = []
    for st_ in range(NA): issued += [("A", st_)] * 2
    if "htouch" in X: issued += [("T", 0)] * 2
    HY = int(os.environ.get("HY", "0"))
    if HY:
        a(f"v_mov_b32 v4, {L_CNT}")
        lds_wait(a, C_LEND, HY, 4, 5, P + "_lend", sleep=8)
        a(f"s_setprio {os.environ.get('YP', '1')}")
    if "lowy" in X and "lowlate" in X: a(f"s_setprio {os.environ.get('YLOW', '0')}")
    rdC(0)
    for st_ in range(14):
        kb = st_ >> 1
        need = [("A", st_)]
        if st_ + 1 < 14 and ((st_ + 1) >> 1) >= 5: need.append(("C", (st_ + 1) >> 1))
        last = max(i for i, t in enumerate(issued) if t in need)
        n_out = len(issued) - 1 - last
        a(f"s_waitcnt vmcnt({n_out})")
        if st_ + 1 < 14: rdC(st_ + 1)
        a(f"s_waitcnt lgkmcnt({2 if st_ + 1 < 14 else 0})")
        b = CB[st_ & 1]; r = AF + 8 * (st_ % NA)
        for rt in range(2):
            for ct in range(2):
                acc = ACC + 16 * (2 * rt + ct)
                c = "0" if st_ == 0 else v(acc, 16)
                a(f"{MF} {v(acc,16)}, {v(r+4*rt,4)}, {v(b+4*ct,4)}, {c}")
        if st_ + NA < 14:
            ldA(NA + st_); issued += [("A", NA + st_)] * 2
        if (st_ & 1) == 1 and kb + 5 < 7:
            c_dma(kb + 5); issued += [("C", kb + 5)] * 4
    pf.stamp(11)
    a(f"s_lshl_b32 s3, s{RB}, 6")
    a("s_lshl_b32 s33, s38, 5")
    a("s_add_u32 s3, s3, s33")
    a("v_lshrrev_b32 v80, 5, v0")
    a("v_lshlrev_b32 v80, 4, v80")
    a("v_add_u32 v80, s3, v80")
    a(f"s_lshl_b32 s33, s{J2}, 6")
    a(f"s_and_b32 s35, s{BW}, 1")
    a("s_lshl_b32 s35, s35, 5")
    a("s_add_u32 s33, s33, s35")
    a("v_and_b32 v81, 31, v0")
    a("v_add_u32 v81, s33, v81")
    srd(a, 48, S_X, XBYTES)
    a("v_mul_u32_u24 v82, 896, v80")
    a("v_lshl_add_u32 v82, v81, 1, v82")
    for r in range(16):
        a(f"buffer_load_ushort v{XS+r}, v82, s[48:51], 0 offen offset:{(r%4)*896}")
        if r % 4 == 3 and r < 15: a(f"v_add_u32 v82, {4*896}, v82")
    srd(a, 52, S_DSK, 896)
    a("v_lshlrev_b32 v83, 1, v81")
    a("buffer_load_ushort v3, v83, s[52:55], 0 offen")
    a("v_lshlrev_b32 v83, 2, v80")
    a(f"s_mov_b32 s35, {WS_G}")
    for q in range(4):
        a(f"buffer_load_dwordx4 {v(GT+4*q,4)}, v83, s[{WSR}:{WSR+3}], s35 offen offset:{16*q}{SC1}")

    a(f"s_setprio {os.environ.get('YP2', '2')}")
    bar()
    def wo_dma(t1, t2, z):
        srd(a, TR, S_WO, WBYTES)
        a(f"v_lshrrev_b32 v{t1}, 3, v0")
        a(f"v_mul_u32_u24 v{t1}, 896, v{t1}")
        a(f"v_and_b32 v{t2}, 7, v0")
        a(f"v_lshl_add_u32 v{t1}, v{t2}, 4, v{t1}")
        a(f"s_mul_i32 s32, s{BW}, {112*896}")
        a(f"s_lshl_b32 s3, s{J2}, 7")
        a("s_add_u32 s32, s32, s3")
        a(f"s_mul_i32 s34, s{BW}, 14336")
        a("s_mov_b32 m0, s34")
        a("s_mov_b32 s36, 14")
        a.label(P + "_wodma")
        a("s_sub_u32 s36, s36, 1")
        a(f"buffer_load_dwordx4 v{t1}, s[{TR}:{TR+3}], s32 offen lds")
        a("s_add_u32 s32, s32, 7168")
        a("s_add_u32 m0, m0, 1024")
        a("s_cmp_lg_u32 s36, 0")
        a(f"s_cbranch_scc1 {P}_wodma")
        a(f"v_mov_b32 v{z}, 0")
        a(f"v_mov_b32 v{z+1}, 0")
        a(f"v_lshlrev_b32 v{t2}, 3, v0")
        a(f"ds_write_b64 v{t2}, v[{z}:{z+1}] offset:57344")
    t1 = 75
    if "wohelp" in X:
        lds_arrive(a, C_YD, 4, 5)
        a("v_mov_b32 v80, 0")
        a("v_mov_b32 v81, 0")
        a("v_lshlrev_b32 v76, 3, v0")
        a("ds_write_b64 v76, v[80:81] offset:57344")
    elif "wolate" not in X: wo_dma(75, 76, 80)
    a(f"v_mov_b32 v4, {L_CNT}")
    lds_wait(a, C_TRD, 8, 4, 5, P + "_trd")
    a(f"s_lshl_b32 s3, s{BW}, 12")
    a(f"s_add_u32 s3, s3, {A_OP}")
    a(f"v_add_u32 v{t1}, s3, v1")
    for t in range(4):
        for q in range(4):
            a(f"ds_write_b128 v{t1}, {v(ACC+16*t+4*q,4)} offset:{t*16384+q*1024}")
    bar()
    a(f"s_lshl_b32 s3, s{BW}, 14")
    a(f"s_add_u32 s3, s3, {A_OP}")
    a(f"v_add_u32 v{t1}, s3, v1")
    for src in range(3):
        for q in range(4):
            a(f"ds_read_b128 {v(88+16*src+4*q,4)}, v{t1} offset:{src*4096+q*1024}")
    YT = 8
    for q in range(4):
        a(f"ds_read_b128 {v(YT+4*q,4)}, v{t1} offset:{3*4096+q*1024}")
        if q == 2: a("s_waitcnt lgkmcnt(4)")
    a("s_waitcnt lgkmcnt(0)")
    VT_, VD_, VO_, t1, t2, t3, t4, t5 = 40, 41, 42, 43, 44, 45, 46, 47
    a("s_waitcnt vmcnt(0)" if "wolate" in X else "s_waitcnt vmcnt(14)")
    for r in range(16):
        a(f"v_add_f32 v{88+r}, v{88+r}, v{104+r}")
        a(f"v_add_f32 v{YT+r}, v{YT+r}, v{120+r}")
    a("v_lshlrev_b32 v3, 16, v3")
    for r in range(16):
        a(f"v_add_f32 v{YT+r}, v{YT+r}, v{88+r}")
        a(f"v_lshlrev_b32 v{XS+r}, 16, v{XS+r}")
        a(f"v_mul_f32 v{XS+r}, v{XS+r}, v3")
        a(f"v_fma_f32 v{YT+r}, 2.0, v{YT+r}, v{XS+r}")
        a(f"v_sub_f32 v{XS+r}, 1.0, v{GT+r}")
        a(f"v_mul_f32 v{YT+r}, v{YT+r}, v{XS+r}")
    a(f"s_lshl_b32 s3, s{RB}, 6")
    a("s_lshl_b32 s33, s38, 5")
    a("s_add_u32 s3, s3, s33")
    a(f"v_lshrrev_b32 v{VT_}, 5, v0")
    a(f"v_lshlrev_b32 v{VT_}, 4, v{VT_}")
    a(f"v_add_u32 v{VT_}, s3, v{VT_}")
    a(f"s_lshl_b32 s33, s{J2}, 6")
    a(f"s_and_b32 s35, s{BW}, 1")
    a("s_lshl_b32 s35, s35, 5")
    a("s_add_u32 s33, s33, s35")
    a(f"v_and_b32 v{VD_}, 31, v0")
    a(f"v_add_u32 v{VD_}, s33, v{VD_}")
    a(f"v_mul_u32_u24 v{VO_}, 1792, v{VT_}")
    a(f"v_lshl_add_u32 v{VO_}, v{VD_}, 2, v{VO_}")
    srd(a, 48, S_OUT, OUTBYTES)
    a("v_lshrrev_b32 v6, 5, v0")
    a("v_lshlrev_b32 v6, 2, v6")
    a("v_bfe_u32 v7, v0, 2, 2")
    a("v_add_u32 v6, v6, v7")
    a("v_lshlrev_b32 v6, 7, v6")
    a("v_and_b32 v7, 16, v0")
    a(f"v_and_b32 v{t1}, 3, v0")
    a(f"v_lshl_add_u32 v7, v{t1}, 2, v7")
    a("v_lshl_add_u32 v6, v7, 1, v6")
    a(f"s_and_b32 s3, s{BW}, 1")
    a(f"s_mul_i32 s3, s3, {8*28*128}")
    a("v_add_u32 v6, s3, v6")
    if "wohelp" in X:
        a(f"v_mov_b32 v4, {L_CNT}")
        lds_wait(a, C_WOL, 8, 4, 5, P + "_wol")
    elif "wolate" in X:
        a(f"v_mov_b32 v4, {L_CNT}")
        lds_wait(a, C_OCNT, 8, 4, 5, P + "_opub")
        wo_dma(48, 49, 50)
    a("s_waitcnt vmcnt(0)")
    a("s_setprio 3")
    pf.stamp(12)
    bar()
    a(f"v_lshlrev_b32 v{t4}, 2, v0")
    a(f"s_lshl_b32 s35, s{RB}, 7")
    a(f"s_add_u32 s35, s35, {FL_O}")
    a("s_mov_b64 s[58:59], 0xff")
    poll(a, P + "_pollO", t5, t4, 35, 58)
    pf.stamp(13)
    a(f"s_lshl_b32 s3, s{RB}, 1")
    a("s_add_u32 s3, s3, s38")
    a("s_lshl_b32 s3, s3, 15")
    a(f"s_and_b32 s33, s{BW}, 1")
    a("s_lshl_b32 s33, s33, 14")
    a("s_add_u32 s3, s3, s33")
    a(f"s_add_u32 s32, s3, {WS_OF}")
    OFR = 88
    for st_ in range(16):
        a(f"s_add_u32 s33, s32, {st_*1024}")
        a(f"buffer_load_dwordx4 {v(OFR+4*st_,4)}, v1, s[{WSR}:{WSR+3}], s33 offen{SC1}")
    PA_ = [56, 72]
    WB = [24, 32]
    def rdW(st_):
        hd, f = st_ >> 1, st_ & 1
        off = (28 * hd + 16 * f) * 128
        b = WB[st_ & 1]
        for ct in range(2):
            a(f"ds_read_b64_tr_b16 {v(b+4*ct,2)}, v6 offset:{off+ct*64}")
            a(f"ds_read_b64_tr_b16 {v(b+4*ct+2,2)}, v6 offset:{off+ct*64+1024}")
    rdW(0)
    for st_ in range(16):
        if st_ + 1 < 16: rdW(st_ + 1)
        a(f"s_waitcnt vmcnt({15-st_}) lgkmcnt({4 if st_ + 1 < 16 else 0})")
        for ct in range(2):
            c = "0" if st_ == 0 else v(PA_[ct], 16)
            a(f"{MF} {v(PA_[ct],16)}, {v(OFR+4*st_,4)}, {v(WB[st_&1]+4*ct,4)}, {c}")
    a(f"s_xor_b32 s3, s{BW}, 1")
    a("s_lshl_b32 s3, s3, 12")
    a("s_add_u32 s3, s3, 65536")
    a(f"v_add_u32 v{t1}, s3, v1")
    a(f"s_and_b32 s33, s{BW}, 1")
    a("s_nop 7")
    a("s_cmp_eq_u32 s33, 0")
    a(f"s_cbranch_scc0 {P}_send0")
    for q in range(4): a(f"ds_write_b128 v{t1}, {v(PA_[1]+4*q,4)} offset:{q*1024}")
    a(f"s_branch {P}_sent")
    a.label(P + "_send0")
    a("s_nop 1")
    for q in range(4): a(f"ds_write_b128 v{t1}, {v(PA_[0]+4*q,4)} offset:{q*1024}")
    a("s_nop 1")
    for r in range(16): a(f"v_mov_b32 v{PA_[0]+r}, v{PA_[1]+r}")
    a.label(P + "_sent")
    bar()
    a(f"s_lshl_b32 s3, s{BW}, 12")
    a("s_add_u32 s3, s3, 65536")
    a(f"v_add_u32 v{t1}, s3, v1")
    for q in range(4): a(f"ds_read_b128 {v(88+4*q,4)}, v{t1} offset:{q*1024}")
    a("s_waitcnt lgkmcnt(0)")
    for r in range(16):
        a(f"v_add_f32 v{88+r}, v{88+r}, v{PA_[0]+r}")
        a(f"v_fma_f32 v{88+r}, v{GT+r}, v{88+r}, v{YT+r}")
    for r in range(16):
        a(f"buffer_store_dword v{88+r}, v{VO_}, s[48:51], 0 offen offset:{(r%2)*1792}{os.environ.get('OST', '')}")
        if r % 2 == 1 and r < 15: a(f"v_add_u32 v{VO_}, {2*1792}, v{VO_}")
    pf.stamp(14)
    a(f"s_branch {P}_end")
    a.label(P + "_skip")
    lds_arrive(a, C_XF, 16, 17)
    a("s_cmp_eq_u32 s17, 0")
    a(f"s_cbranch_scc1 {P}_sw0")
    a("s_waitcnt vmcnt(2)")
    a.label(P + "_sw0")
    a("s_cmp_lg_u32 s17, 0")
    a(f"s_cbranch_scc1 {P}_sw1")
    a("s_waitcnt vmcnt(0)")
    a.label(P + "_sw1")
    lds_arrive(a, C_WQR, 16, 17)
    a(f"v_mov_b32 v16, {L_CNT}")
    lds_wait(a, C_QD, 4, 16, 17, P + "_sqd", sleep=4)
    nonce_issue("b", 22, 21)
    a("s_waitcnt vmcnt(0)")
    nonce_get("b", 22, 21)
    a("s_waitcnt lgkmcnt(0)")
    if os.environ.get("S3", "b") in ("b", "u", "late"): stage3("b")
    lds_arrive(a, C_HCNT, 54, 55)
    a.label(P + "_end")

def lds_wait(a, coff, target, vaddr, vtmp, lab, sleep=1):
    a.label(lab)
    a(f"ds_read_b32 v{vtmp}, v{vaddr} offset:{coff}")
    a("s_waitcnt lgkmcnt(0)")
    a(f"v_readfirstlane_b32 s3, v{vtmp}")
    a(f"s_cmp_ge_u32 s3, {target}")
    a(f"s_cbranch_scc1 {lab}_ok")
    a(f"s_sleep {sleep}")
    a(f"s_sub_u32 s{SPIN}, s{SPIN}, 1")
    a(f"s_cbranch_scc0 {lab}")
    a(f"s_mov_b32 s{SPIN}, 0")
    a.label(lab + "_ok")

def lds_arrive(a, coff, vaddr, vtmp):
    a(f"v_mov_b32 v{vaddr}, {L_CNT}")
    a(f"v_mov_b32 v{vtmp}, 1")
    a("s_mov_b64 exec, 1")
    a(f"ds_add_u32 v{vaddr}, v{vtmp} offset:{coff}")
    a("s_mov_b64 exec, -1")

def dma_loop(a, lab, vaddr, n, dsrc, dlds):
    a("s_mov_b32 s36, %d" % n)
    a.label(lab)
    a("s_sub_u32 s36, s36, 1")
    a(f"buffer_load_dwordx4 v{vaddr}, s[{TR}:{TR+3}], s32 offen lds")
    a(f"s_add_u32 s32, s32, {dsrc}")
    a(f"s_add_u32 m0, m0, {dlds}")
    a("s_cmp_lg_u32 s36, 0")
    a(f"s_cbranch_scc1 {lab}")

def q_loop(a, acc, X4, W4, vxe, vxo, vw):
    def rd(j):
        k = j & 3
        a(f"ds_read_b128 {v(X4+4*k,4)}, v{vxo if j & 1 else vxe} offset:{(j>>1)*4096}")
        a(f"ds_read_b64_tr_b16 {v(W4+4*k,2)}, v{vw} offset:{j*2048}")
        a(f"ds_read_b64_tr_b16 {v(W4+4*k+2,2)}, v{vw} offset:{j*2048+512}")
    for j in range(4): rd(j)
    for j in range(28):
        left = min(3, 27 - j)
        a(f"s_waitcnt lgkmcnt({3*left})")
        c = "0" if j == 0 else v(acc, 16)
        a(f"{MF} {v(acc,16)}, {v(W4+4*(j&3),4)}, {v(X4+4*(j&3),4)}, {c}")
        if j + 4 < 28: rd(j + 4)

def q_loop_regs(a, acc, XF, W4, vw):
    def rd(j):
        k = j & 3
        a(f"ds_read_b64_tr_b16 {v(W4+4*k,2)}, v{vw} offset:{j*2048}")
        a(f"ds_read_b64_tr_b16 {v(W4+4*k+2,2)}, v{vw} offset:{j*2048+512}")
    for j in range(4): rd(j)
    for j in range(28):
        left = min(3, 27 - j)
        a(f"s_waitcnt lgkmcnt({2*left})")
        c = "0" if j == 0 else v(acc, 16)
        a(f"{MF} {v(acc,16)}, {v(W4+4*(j&3),4)}, {v(XF+4*j,4)}, {c}")
        if j + 4 < 28: rd(j + 4)

def gen_fused(a):
    name = NAME + "_kernel"
    a(f".globl {name}")
    a(".p2align 8")
    a(f".type {name},@function")
    a.label(name)
    END = "L_end"
    a("s_cmp_ge_u32 s2, 256")
    a(f"s_cbranch_scc1 {END}")
    a("s_load_dwordx16 s[64:79], s[0:1], 0")
    a("s_load_dwordx16 s[80:95], s[0:1], 64")
    a("s_load_dwordx4 s[96:99], s[0:1], 128")
    if "earlycode" in X:
        a("s_getpc_b64 s[56:57]")
        a.label("p0_pc0")
        a("v_lshlrev_b32 v148, 7, v0")
        a("s_mov_b32 s3, L_end-p0_pc0")
        a("v_min_u32 v148, s3, v148")
        a("global_load_dword v149, v148, s[56:57]")
    a("v_lshrrev_b32 v2, 6, v0")
    a("v_and_b32 v0, 63, v0")
    a(f"v_readfirstlane_b32 s{WV}, v2")
    a(f"v_mov_b32 v4, {L_CNT}")
    a("v_mov_b32 v5, 0")
    a("v_lshl_add_u32 v4, v0, 2, v4")
    a("ds_write_b32 v4, v5")
    a(f"s_and_b32 s{RB}, s2, 7")
    a(f"s_lshl_b32 s{RB}, s{RB}, 2")
    a(f"s_lshr_b32 s{J2}, s2, 3")
    a(f"s_and_b32 s3, s{J2}, 3")
    a(f"s_add_u32 s{RB}, s{RB}, s3")
    a(f"s_lshr_b32 s{J2}, s{J2}, 2")
    a("v_lshlrev_b32 v1, 4, v0")
    a(f"s_mov_b32 s{SPIN}, 0x100000")
    a(f"s_sub_u32 s{BW}, s{WV}, 8")
    pfA = Prof(a, 9)
    xtile_lane_off(a, 3, 0, 4, 5)
    a("s_waitcnt lgkmcnt(0)")
    srd(a, WSR, S_WS, WS_SIZE)
    if PROF: a("v_mov_b32 v9, 0")
    pfA.stamp(0)
    if PROF:
        a("s_getreg_b32 s60, hwreg(HW_REG_XCC_ID)")
        a("v_writelane_b32 v9, s60, 20")
        a("s_getreg_b32 s60, hwreg(HW_REG_HW_ID)")
        a("v_writelane_b32 v9, s60, 21")
    a(f"s_cmp_lt_u32 s{WV}, 4")
    a("s_cselect_b64 s[46:47], -1, 0")
    a(f"s_cmp_eq_u32 s{J2}, 0")
    a(f"s_cselect_b32 s{TR}, s{S_WK}, s{S_WV}")
    a(f"s_cselect_b32 s{TR+1}, s{S_WK+1}, s{S_WV+1}")
    a(f"s_mov_b32 s{TR+2}, {WKBYTES}")
    a(f"s_mov_b32 s{TR+3}, 0x00020000")
    a(f"s_mul_i32 s32, s{BW}, 7168")
    a(f"s_add_u32 s34, s32, {L_WKV}")
    a("s_mov_b32 s33, 1024")
    a("s_mov_b32 s35, 1024")
    a(f"s_cmp_lt_u32 s{J2}, 2")
    a("s_cselect_b32 s36, 7, 0")
    a(f"s_cmp_ge_u32 s{WV}, 8")
    a("s_cselect_b32 s36, s36, 0")
    a("v_cndmask_b32 v3, v1, v3, s[46:47]")
    a(f"s_mul_i32 s40, s{RB}, {64*896}")
    a(f"s_lshr_b32 s3, s{WV}, 1")
    a(f"s_mul_i32 s3, s3, {32*896}")
    a("s_add_u32 s40, s40, s3")
    a(f"s_and_b32 s3, s{WV}, 1")
    a(f"s_mul_i32 s3, s3, {8*896}")
    a("s_add_u32 s40, s40, s3")
    a(f"s_lshl_b32 s41, s{WV}, 10")
    a(f"s_cmp_lt_u32 s{WV}, 4")
    a(f"s_cselect_b32 s{TR}, s{S_X}, s{TR}")
    a(f"s_cselect_b32 s{TR+1}, s{S_X+1}, s{TR+1}")
    a(f"s_cselect_b32 s{TR+2}, {XBYTES}, s{TR+2}")
    a("s_cselect_b32 s32, s40, s32")
    a("s_cselect_b32 s34, s41, s34")
    a("s_cselect_b32 s33, 64, s33")
    a("s_cselect_b32 s35, 4096, s35")
    a("s_cselect_b32 s36, 14, s36")
    a("s_mov_b32 m0, s34")
    a("s_cmp_eq_u32 s36, 0")
    a("s_cbranch_scc1 p0_first_done")
    a.label("p0_first")
    a("s_sub_u32 s36, s36, 1")
    a(f"buffer_load_dwordx4 v3, s[{TR}:{TR+3}], s32 offen lds")
    a("s_add_u32 s32, s32, s33")
    a("s_add_u32 m0, m0, s35")
    a("s_cmp_lg_u32 s36, 0")
    a("s_cbranch_scc1 p0_first")
    a.label("p0_first_done")
    a(f"s_cmp_ge_u32 s{WV}, 8")
    a("s_cbranch_scc1 p0_bgw")
    a(f"s_cmp_ge_u32 s{WV}, 4")
    a("s_cbranch_scc1 p0_kvw")
    a("s_barrier")
    pfA.stamp(1)
    xfrag_addr(a, 6, 0, 4)
    tr_rowcol(a, 12, 13, 0, 4)
    a(f"s_lshr_b32 s38, s{WV}, 1")
    a(f"s_and_b32 s39, s{WV}, 1")
    a("s_lshl_b32 s3, s38, 11")
    a("v_add_u32 v6, s3, v6")
    a("v_xor_b32 v7, 32, v6")
    a("v_lshlrev_b32 v10, 7, v12")
    a("v_lshl_add_u32 v10, v13, 1, v10")
    a("s_mul_i32 s3, s39, 56")
    a(f"s_add_u32 s3, s3, {L_WQ}")
    a("v_add_u32 v10, s3, v10")
    a("s_waitcnt vmcnt(0)")
    lds_arrive(a, C_XR, 4, 5)
    pfA.stamp(2)
    a(f"v_mov_b32 v4, {L_CNT}")
    lds_wait(a, C_XR, 8, 4, 5, "p0_xr0")
    for j in range(28):
        a(f"ds_read_b128 {v(56+4*j,4)}, v{6 + (j&1)} offset:{(j>>1)*4096}")
        if j in (11, 21): a("s_waitcnt lgkmcnt(2)")
    a("s_waitcnt lgkmcnt(0)")
    lds_arrive(a, C_XF, 4, 5)
    a(f"v_mov_b32 v4, {L_CNT}")
    lds_wait(a, C_WQR, 4, 4, 5, "p0_wqr", sleep=2)
    pfA.stamp(3)
    q_loop_regs(a, 16, 56, 32, 10)
    a(f"s_mov_b32 s42, {hex(QSCALE)}")
    a(f"s_lshl_b32 s3, s{WV}, 11")
    a(f"s_add_u32 s3, s3, {L_QX}")
    a("v_add_u32 v12, s3, v1")
    a("s_nop 7")
    a("s_nop 0")
    for i in range(16): a(f"v_mul_f32 v{16+i}, s42, v{16+i}")
    for i in range(8): a(f"v_cvt_pk_bf16_f32 v{32+i}, v{16+2*i}, v{17+2*i}")
    a("s_mov_b32 exec_lo, 0")
    a("v_mov_b32 v38, 0")
    a("v_mov_b32 v39, 0")
    a("s_mov_b32 exec_lo, -1")
    a("ds_write_b128 v12, v[32:35]")
    a("ds_write_b128 v12, v[36:39] offset:1024")
    a("s_waitcnt lgkmcnt(0)")
    lds_arrive(a, C_QD, 4, 5)
    a("s_branch p1_att")
    a.label("p0_kvw")
    a(f"s_sub_u32 s39, s{WV}, 4")
    if "earlycode" not in X:
        a("s_getpc_b64 s[56:57]")
        a.label("p0_pc")
        a("s_lshl_b32 s3, s39, 13")
        a("v_lshlrev_b32 v150, 7, v0")
        a("v_add_u32 v150, s3, v150")
        a(f"s_sub_u32 s56, s56, p0_pc-{NAME}_kernel")
        a("s_subb_u32 s57, s57, 0")
        a(f"s_mov_b32 s3, L_end-{NAME}_kernel")
        a("v_min_u32 v150, s3, v150")
        a("global_load_dword v150, v150, s[56:57]")
    a("s_cmp_eq_u32 s39, 0")
    a("s_cbranch_scc0 p0_pf_out")
    a("v_lshlrev_b32 v151, 21, v0")
    a("s_mov_b64 exec, 7")
    a(f"buffer_load_dword v151, v151, s[{WSR}:{WSR+3}], 0 offen")
    a("s_mov_b64 exec, -1")
    a.label("p0_pf_out")
    a("s_cmp_eq_u32 s39, 1")
    a("s_cbranch_scc0 p0_pf_mall")
    srd(a, 48, S_OUT, OUTBYTES)
    a("v_mul_u32_u24 v151, 0x1c0000, v0")
    a("s_mov_b64 exec, 7")
    a("buffer_load_dword v151, v151, s[48:51], 0 offen")
    a("s_mov_b64 exec, -1")
    a.label("p0_pf_mall")
    if os.environ.get("S3") == "mall" or "mallwarm2" in X:
        a("s_cmp_eq_u32 s39, 3")
        a("s_cbranch_scc0 p0_pf_done")
        a("v_lshlrev_b32 v149, 7, v0")
        a(f"s_mul_i32 s3, s2, {13*128}")
        a(f"s_mov_b32 m0, {L_JUNK}")
        a("s_mov_b64 exec, 0x1fff")
        for sp in ((S_CRE, S_CIM, S_WO) if "mallb" not in X else (S_BRE, S_BIM, S_CRE, S_CIM, S_WO)):
            srd(a, 48, sp, WBYTES)
            a("buffer_load_dword v149, s[48:51], s3 offen lds")
        a("s_mov_b64 exec, -1")
    a.label("p0_pf_done")
    if "wqearly" in X:
        srd(a, TR, S_WQ, WBYTES)
        a("v_lshrrev_b32 v3, 3, v0")
        a("v_mul_u32_u24 v3, 896, v3")
        a("v_and_b32 v4, 7, v0")
        a("v_lshl_add_u32 v3, v4, 4, v3")
        a(f"s_mul_i32 s32, s39, {112*896}")
        a(f"s_mul_i32 s33, s{J2}, 112")
        a("s_add_u32 s32, s32, s33")
        a("s_mul_i32 s34, s39, 14336")
        a(f"s_add_u32 s34, s34, {L_WQ}")
        a("s_mov_b32 m0, s34")
        dma_loop(a, "p0_qdma2", 3, 14, 7168, 1024)
    a("s_barrier")
    a(f"s_cmp_ge_u32 s{J2}, 3")
    a("s_cbranch_scc1 p0_kv_nojob")
    a("s_lshr_b32 s38, s39, 1")
    a("s_and_b32 s39, s39, 1")
    a(f"s_mov_b32 s15, {1 if 'dry' in X else 0}")
    a("s_setprio 3")
    a.label("p0_kv_setup")
    a(f"s_mov_b32 s8, s{WSR}")
    a(f"s_mov_b32 s9, s{WSR+1}")
    a("s_cmp_eq_u32 s15, 0")
    a(f"s_cselect_b32 s10, {WS_SIZE}, 0")
    a("s_mov_b32 s11, 0x00020000")
    xfrag_addr(a, 6, 0, 4)
    tr_rowcol(a, 12, 13, 0, 4)
    a("s_lshl_b32 s3, s38, 11")
    a("s_mul_i32 s41, s39, 28672")
    a("s_add_u32 s3, s3, s41")
    a("v_add_u32 v6, s3, v6")
    a("v_xor_b32 v7, 32, v6")
    a("s_mul_i32 s40, s39, 14")
    a(f"s_cmp_eq_u32 s{J2}, 2")
    a("s_cbranch_scc1 p0_kv_gaddr")
    a("v_mul_u32_u24 v10, 56, v12")
    a("v_lshl_add_u32 v10, v13, 1, v10")
    a(f"s_mul_i32 s3, s40, {16*56}")
    a(f"s_add_u32 s3, s3, {L_WKV}")
    a("v_add_u32 v10, s3, v10")
    a("v_add_u32 v11, 224, v10")
    a(f"s_mov_b32 s42, {16*56}")
    a("s_branch p0_kv_addr_done")
    a.label("p0_kv_gaddr")
    a("v_lshlrev_b32 v10, 3, v12")
    a("s_lshl_b32 s3, s40, 7")
    a(f"s_add_u32 s3, s3, {L_WKV}")
    a("v_add_u32 v10, s3, v10")
    a("v_add_u32 v11, 32, v10")
    a("s_mov_b32 s42, 128")
    a.label("p0_kv_addr_done")
    a(f"v_mov_b32 v4, {L_CNT}")
    a("s_cmp_lg_u32 s15, 0")
    a("s_cbranch_scc1 p0_xr_ok")
    lds_wait(a, C_XR, 8, 4, 5, "p0_xr")
    pfA.stamp(2)
    def kv_rd(i):
        a(f"ds_read_b128 {v(32+4*i,4)}, v{6+(i&1)} offset:{(i>>1)*4096}")
        a(f"ds_read_b64_tr_b16 {v(88+4*i,2)}, v10")
        a(f"ds_read_b64_tr_b16 {v(88+4*i+2,2)}, v11")
        if i < 13:
            a("v_add_u32 v10, s42, v10")
            a("v_add_u32 v11, s42, v11")
    def kv_mm(swap, tag):
        for i in range(4): kv_rd(i)
        for i in range(14):
            a(f"s_waitcnt lgkmcnt({3*min(3, 13-i)})")
            A, B = (32+4*i, 88+4*i) if swap else (88+4*i, 32+4*i)
            a(f"{MF} v[16:31], {v(A,4)}, {v(B,4)}, {'0' if i == 0 else 'v[16:31]'}")
            if i + 4 < 14: kv_rd(i + 4)
    a(f"s_cmp_ge_u32 s{J2}, 1")
    a("s_cbranch_scc1 p0_kv_swap")
    kv_mm(False, "k")
    a("s_branch p0_kv_mm_done")
    a.label("p0_kv_swap")
    kv_mm(True, "v")
    a.label("p0_kv_mm_done")
    lds_arrive(a, C_XF, 4, 5)
    pfA.stamp(22)
    a(f"s_mul_i32 s3, s38, {155648 - 143360}")
    a("s_add_u32 s3, s3, 143360")
    a("v_add_u32 v12, s3, v1")
    a("s_nop 7")
    a("s_nop 0")
    a("s_cmp_lg_u32 s15, 0")
    a("s_cbranch_scc1 p0_kv_root")
    a("s_cmp_eq_u32 s39, 0")
    a("s_cbranch_scc1 p0_kv_root")
    for q in range(4): a(f"ds_write_b128 v12, {v(16+4*q,4)} offset:{q*1024}")
    a("s_waitcnt lgkmcnt(0)")
    a("s_lshl_b32 s3, s38, 2")
    a(f"v_mov_b32 v4, {L_CNT}")
    a("v_add_u32 v4, s3, v4")
    a("v_mov_b32 v5, 1")
    a("s_mov_b64 exec, 1")
    a(f"ds_add_u32 v4, v5 offset:{C_KVR}")
    a("s_mov_b64 exec, -1")
    a("s_branch p0_kv_none")
    a.label("p0_kv_root")
    a("s_lshl_b32 s3, s38, 2")
    a(f"v_mov_b32 v4, {L_CNT}")
    a("v_add_u32 v4, s3, v4")
    a("s_cmp_lg_u32 s15, 0")
    a("s_cbranch_scc1 p0_kvr_ok")
    lds_wait(a, C_KVR, 1, 4, 5, "p0_kvr")
    pfA.stamp(23)
    for i in range(4): a(f"ds_read_b128 {v(32+4*i,4)}, v12 offset:{i*1024}")
    a("s_waitcnt lgkmcnt(0)")
    for r in range(16): a(f"v_add_f32 v{16+r}, v{16+r}, v{32+r}")
    a(f"s_lshl_b32 s43, s{RB}, 1")
    a("s_add_u32 s43, s43, s38")
    a(f"s_cmp_eq_u32 s{J2}, 2")
    a("s_cbranch_scc1 p0_gate_epi")
    for i in range(8): a(f"v_cvt_pk_bf16_f32 v{32+i}, v{16+2*i}, v{17+2*i}")
    a("s_lshl_b32 s44, s43, 12")
    a(f"s_add_u32 s44, s44, {WS_KV}")
    a(f"s_cmp_eq_u32 s{J2}, 1")
    a("s_cbranch_scc1 p0_v_epi")
    a("s_mov_b32 exec_lo, 0")
    a("v_mov_b32 v38, 0x3f803f80")
    a("v_mov_b32 v39, 0x00003f80")
    a("s_mov_b32 exec_lo, -1")
    a(f"buffer_store_dwordx4 v[32:35], v1, s[8:11], s44 offen{SC1}")
    a(f"buffer_store_dwordx4 v[36:39], v1, s[8:11], s44 offen offset:1024{SC1}")
    a("s_branch p0_kv_arrive")
    a.label("p0_v_epi")
    a("v_max3_f32 v14, |v16|, |v17|, |v18|")
    for j in range(3, 15, 2): a(f"v_max3_f32 v14, v14, |v{16+j}|, |v{17+j}|")
    a("v_max_f32 v14, v14, |v31|")
    a("v_and_b32 v13, 31, v0")
    a("v_cmp_gt_u32 s[46:47], 28, v13")
    a(f"v_cmp_lt_f32 vcc, {hex(VMAX)}, v14")
    a("s_and_b64 vcc, vcc, s[46:47]")
    a("s_cbranch_vccz p0_v_ok")
    a("s_cmp_lg_u32 s15, 0")
    a("s_cbranch_scc1 p0_v_ok")
    srd(a, 48, S_DBG, 256)
    a("v_mov_b32 v14, 1")
    a(f"v_mov_b32 v15, {D_BAD}")
    a("s_mov_b64 exec, 1")
    a(f"buffer_store_dword v14, v15, s[48:51], 0 offen{SC1}")
    a("s_mov_b64 exec, -1")
    a.label("p0_v_ok")
    a("v_and_b32 v13, 31, v0")
    a("v_cmp_eq_u32 vcc, 28, v13")
    a("v_mov_b32 v14, 0x3f803f80")
    a("s_nop 0")
    a("v_cndmask_b32 v14, 0, v14, vcc")
    a("v_cmp_lt_u32 vcc, 27, v13")
    a("s_nop 1")
    for i in range(8): a(f"v_cndmask_b32 v{32+i}, v{32+i}, v14, vcc")
    a(f"buffer_store_dwordx4 v[32:35], v1, s[8:11], s44 offen offset:2048{SC1}")
    a(f"buffer_store_dwordx4 v[36:39], v1, s[8:11], s44 offen offset:3072{SC1}")
    a("s_branch p0_kv_arrive")
    a.label("p0_gate_epi")
    a(f"s_mov_b32 s42, {hex(LOG2E)}")
    for i in range(16): a(f"v_mul_f32 v{16+i}, s42, v{16+i}")
    for i in range(16): a(f"v_exp_f32 v{16+i}, -v{16+i}")
    for i in range(16): a(f"v_add_f32 v{16+i}, 1.0, v{16+i}")
    for i in range(16): a(f"v_rcp_f32 v{16+i}, v{16+i}")
    a("v_lshrrev_b32 v13, 5, v0")
    a("v_lshlrev_b32 v13, 6, v13")
    a("s_lshl_b32 s44, s43, 7")
    a(f"s_add_u32 s44, s44, {WS_G}")
    a("v_and_b32 v14, 31, v0")
    a("v_cmp_eq_u32 vcc, 0, v14")
    a("s_and_saveexec_b64 s[46:47], vcc")
    for q in range(4):
        a(f"buffer_store_dwordx4 {v(16+4*q,4)}, v13, s[8:11], s44 offen offset:{16*q}{SC1}")
    a("s_mov_b64 exec, -1")
    a.label("p0_kv_arrive")
    a("s_cmp_eq_u32 s15, 0")
    a("s_cbranch_scc1 p0_kv_real")
    a("s_mov_b32 s15, 0")
    a("s_branch p0_kv_setup")
    a.label("p0_kv_real")
    pfA.stamp(10)
    a("s_mov_b32 s16, 1")
    a("s_branch p0_kv_b0")
    a.label("p0_kv_nojob")
    lds_arrive(a, C_XF, 4, 5)
    a.label("p0_kv_none")
    a("s_mov_b32 s16, 0")
    a.label("p0_kv_b0")
    a("s_setprio 0")
    a("s_cmp_eq_u32 s16, 0")
    a("s_cbranch_scc1 p1_noarr")
    a(f"v_mov_b32 v14, {L_CNT}")
    a("v_mov_b32 v15, 1")
    a("s_waitcnt vmcnt(0)")
    pfA.stamp(11)
    a("s_mov_b64 exec, 1")
    a(f"s_or_b32 s3, s{RB}, s{J2}")
    a(f"s_cmp_eq_u32 s{WV}, 4")
    a("s_cselect_b32 s3, s3, 1")
    a("s_cmp_eq_u32 s3, 0")
    a("s_cbranch_scc0 p1_nok0")
    srd(a, 48, S_DBG, 256)
    a("v_mov_b32 v12, 1")
    a(f"v_mov_b32 v13, {D_K0}")
    a(f"buffer_store_dword v12, v13, s[48:51], 0 offen{SC1}")
    a.label("p1_nok0")
    a(f"ds_add_rtn_u32 v15, v14, v15 offset:{C_KVA}")
    a("s_waitcnt lgkmcnt(0)")
    a("v_readfirstlane_b32 s3, v15")
    a("s_cmp_eq_u32 s3, 1")
    a("s_cbranch_scc0 p1_arrdone")
    srd(a, 48, S_DBG, 256)
    a("v_mov_b32 v14, 1")
    a(f"s_cmp_eq_u32 s{J2}, 2")
    a(f"s_cselect_b32 s3, {D_GCNT}, {D_CNT}")
    a("v_mov_b32 v15, s3")
    a("buffer_atomic_add v14, v15, s[48:51], 0 offen sc0 sc1")
    if "kvfirst" in X:
        a(f"v_mov_b32 v12, {L_CNT}")
        a("v_mov_b32 v13, 1")
        a(f"ds_add_u32 v12, v13 offset:{C_KVI}")
    a("s_waitcnt vmcnt(0)")
    a("v_readfirstlane_b32 s3, v14")
    a(f"s_cmp_eq_u32 s{J2}, 2")
    a("s_cselect_b32 s46, 31, 63")
    a(f"s_mov_b32 s47, {D_GO}")
    a(f"s_cselect_b32 s47, {D_GOG}, s47")
    a("s_cmp_eq_u32 s3, s46")
    a("s_cbranch_scc0 p1_arrdone")
    a("v_mov_b32 v14, 1")
    a("v_mov_b32 v15, s47")
    a(f"buffer_store_dword v14, v15, s[48:51], 0 offen{SC1}")
    a.label("p1_arrdone")
    a("s_mov_b64 exec, -1")
    pfA.stamp(12)
    a.label("p1_noarr")
    a("s_branch p1_att")
    a.label("p0_bgw")
    a(f"s_cmp_eq_u32 s{WV}, 8")
    a("s_cbranch_scc0 p0_t9")
    srd(a, 48, S_X, XBYTES)
    a("s_and_b32 s3, s2, 7")
    a(f"s_mul_i32 s3, s3, {256*896}")
    a("s_lshr_b32 s46, s2, 3")
    a("s_mul_i32 s46, s46, 7168")
    a("s_add_u32 s3, s3, s46")
    a("v_lshlrev_b32 v50, 7, v0")
    a("s_mov_b32 exec_hi, 0xffffff")
    a("buffer_load_dword v52, v50, s[48:51], s3 offen")
    a("s_mov_b64 exec, -1")
    a("s_branch p0_t_done")
    a.label("p0_t9")
    a(f"s_cmp_eq_u32 s{WV}, 9")
    a("s_cbranch_scc0 p0_t10")
    touch_matrix(a, S_WQ, 52, 50)
    a("s_branch p0_t_done")
    a.label("p0_t10")
    a(f"s_cmp_eq_u32 s{WV}, 10")
    a("s_cbranch_scc0 p0_t_done")
    a("s_lshr_b32 s3, s2, 3")
    a(f"s_mul_i32 s3, s3, {7*128}")
    a("v_lshlrev_b32 v50, 7, v0")
    a("s_mov_b64 exec, 0x7f")
    srd(a, 48, S_WK, WKBYTES)
    a("buffer_load_dword v52, v50, s[48:51], s3 offen")
    srd(a, 48, S_WV, WKBYTES)
    a("buffer_load_dword v53, v50, s[48:51], s3 offen")
    a("s_mov_b64 exec, -1")
    a.label("p0_t_done")
    a(f"s_cmp_eq_u32 s{WV}, 11")
    a("s_cbranch_scc0 p0_nononce")
    a("s_cmp_eq_u32 s2, 0")
    a("s_cbranch_scc0 p0_nononce")
    srd(a, 48, S_DBG, 256)
    a("v_mov_b32 v7, 0")
    a("s_memrealtime s[60:61]")
    a("s_waitcnt lgkmcnt(0)")
    a("s_and_b32 s60, s60, 0xfffffffc")
    a("s_or_b32 s60, s60, 1")
    a("v_mov_b32 v6, s60")
    a("s_mov_b64 exec, 1")
    a(f"buffer_store_dword v6, v7, s[48:51], 0 offen offset:{D_NONCE}{SC1}")
    a("s_mov_b64 exec, -1")
    a.label("p0_nononce")
    a(f"s_cmp_eq_u32 s{J2}, 2")
    a("s_cbranch_scc0 p0_wkv_done")
    a(f"s_cmp_eq_u32 s{WV}, 8")
    a("s_cbranch_scc0 p0_wkv_done")
    srd(a, TR, S_GW, 896)
    a("v_lshlrev_b32 v3, 1, v0")
    for i in range(7):
        a(f"buffer_load_ushort v{10+i}, v3, s[{TR}:{TR+3}], 0 offen offset:{i*128}")
    a("v_lshlrev_b32 v4, 3, v0")
    a(f"v_add_u32 v4, {L_WKV}, v4")
    a("s_waitcnt vmcnt(0)")
    for i in range(7):
        a(f"v_lshl_or_b32 v{20+2*i}, v{10+i}, 16, v{10+i}")
        a(f"v_mov_b32 v{21+2*i}, v{20+2*i}")
        a(f"ds_write_b64 v4, {v(20+2*i,2)} offset:{i*512}")
    a.label("p0_wkv_done")
    a(f"s_lshl_b32 s37, s{J2}, 1")
    a(f"s_and_b32 s3, s{BW}, 1")
    a("s_add_u32 s37, s37, s3")
    a("v_and_b32 v4, 31, v0")
    a("s_lshl_b32 s3, s37, 6")
    a("v_lshl_add_u32 v4, v4, 1, s3")
    srd(a, 40, S_LRE, 896); a("buffer_load_ushort v8, v4, s[40:43], 0 offen")
    srd(a, 44, S_LIM, 896); a("buffer_load_ushort v9, v4, s[44:47], 0 offen")
    srd(a, 52, S_LDT, 896); a("buffer_load_ushort v10, v4, s[52:55], 0 offen")
    a("s_barrier")
    a("s_waitcnt vmcnt(3) lgkmcnt(0)")
    lds_arrive(a, C_XR, 4, 5)
    a("s_branch p1_bg")
    a.label("p1_att")
    a(f"v_mov_b32 v4, {L_CNT}")
    lds_wait(a, C_QD, 4, 4, 5, "p1_qd", sleep=2)
    if PROF: a("v_mov_b32 v0, v9")
    pf = Prof(a, 0)
    pf.stamp(4)
    gen_attention(a, pf)
    pf.flush(2)
    a(f"s_branch {END}")
    a.label("p1_bg")
    a(f"s_setprio {os.environ.get('BP', '3')}")
    gen_background(a, BgProf(a))
    a.label(END)
    a("s_endpgm")
    return name

class BgProf:
    def __init__(self, a): self.a = a; self.T = [54, 55]
    def stamp(self, slot):
        if not PROF or "noprofb" in X: return
        if "onlyb" in os.environ and str(slot) not in os.environ["onlyb"].split(","): return
        a = self.a
        a("s_memrealtime s[60:61]")
        a("s_lshl_b32 s62, s2, 4")
        a(f"s_add_u32 s62, s62, s{WV}")
        a("s_lshl_b32 s62, s62, 8")
        a(f"s_add_u32 s62, s62, {WS_PROF + 4*slot}")
        a("s_waitcnt vmcnt(0) lgkmcnt(0)")
        a("s_mov_b64 exec, 1")
        t0, t1 = self.T
        a(f"v_mov_b32 v{t0}, s60")
        a(f"v_mov_b32 v{t1}, 0")
        a(f"buffer_store_dword v{t0}, v{t1}, s[{WSR}:{WSR+3}], s62 offen")
        a("s_mov_b64 exec, -1")
        a("s_waitcnt vmcnt(0)")
    def flush(self): pass


DOC = """;
; ---------------------------------------------------------------------------------------------------------
; One persistent launch, 256 workgroups (one per CU) x 12 waves.  Workgroup = (rb: 64 rows of x, j2: head pair).
;                 exact carry by Horner), y = 2 Re(C h), then out = g * (O wo) + (1-g) * (y + x*Dskip).
;   workgroup fails, att_fallback recomputes the true row maxima over all keys (3-term bf16 split) and redoes the pass.
; Hand-offs between workgroups: write-through (sc1) payload stores, vmcnt(0), then a flag / counter; readers use sc1 loads.
; ---------------------------------------------------------------------------------------------------------
"""

def build():
    a = Asm()
    name = gen_fused(a)
    text = a.text()
    probs = check_hazards(text)
    ref = open("gated_mix__grouped_kv_mqa__ssm_conv_s5__prompt.s.ref").read().split("\n")
    pre = []
    for ln in ref:
        if not ln.startswith(";"): break
        if "Override launch" in ln or "grid=ceil" in ln or "@launch" in ln: continue
        pre.append(ln)
    head = "\n".join(pre) + "\n"
    head += f"; @launch grid=(256,1,1) block=(768,1,1) lds={LDS_TOTAL}\n"
    head += DOC
    out = head + '.amdgcn_target "amdgcn-amd-amdhsa--gfx950"\n.text\n' + text
    out += f""".section .rodata,"a"
.p2align 6
.amdhsa_kernel {name}
  .amdhsa_next_free_vgpr 168
  .amdhsa_next_free_sgpr 102
  .amdhsa_accum_offset 168
  .amdhsa_group_segment_fixed_size 0
  .amdhsa_kernarg_size 144
  .amdhsa_user_sgpr_count 2
  .amdhsa_user_sgpr_kernarg_segment_ptr 1
  .amdhsa_system_sgpr_workgroup_id_x 1
.end_amdhsa_kernel
"""
    return out, probs

if __name__ == "__main__":
    out, probs = build()
    open(sys.argv[1], "w").write(out)
    print("wrote", sys.argv[1], "hazards:", len(probs))
```
